```python
import torch

def _softmax(x, axis=-1):
    return torch.softmax(x, dim=axis)
def _gelu(x):
    return torch.nn.functional.gelu(x, approximate="tanh")
def _silu(x):
    return torch.nn.functional.silu(x)
def _sigmoid(x):
    return torch.sigmoid(x)
def _layernorm(x, axis=-1, eps=1e-5):
    m = x.mean(dim=axis, keepdim=True)
    v = x.var(dim=axis, keepdim=True, unbiased=False)
    return (x - m) / torch.sqrt(v + eps)
def _scatter_add(tgt, idx, src, axis=0):
    return tgt.clone().index_add_(axis, idx, src)
def _segment_sum(src, seg, n):
    out = torch.zeros((n,) + src.shape[1:], dtype=src.dtype)
    return out.index_add_(0, seg, src)
def _pad(x, pw):
    flat = tuple(v for pair in reversed(pw) for v in pair)
    return torch.nn.functional.pad(x, flat)

kernel_name = 'parallel_sum__linear_kernel_hedgehog__dense_activation_gelu__prompt'

def setup_inputs():

    _w = (lambda a: (lambda t: t.to(torch.bfloat16) if t.is_floating_point() else t)(torch.as_tensor(a)))
    def _A_setup():
        B, S, D, H = 1, 2048, 512, 32
        Dh = D // H
        return {
            "x": _w((lambda *s: torch.randn(*s, dtype=torch.bfloat16) * 0.05)(B, S, D)),
            "wqkv": _w((lambda *s: torch.randn(*s, dtype=torch.bfloat16) * 0.2)(D, 3 * D)),
            "w_phi": _w((lambda *s: torch.randn(*s, dtype=torch.bfloat16) * 0.2)(H, Dh, Dh) * (Dh ** -0.5)),
            "wo": _w((lambda *s: torch.randn(*s, dtype=torch.bfloat16) * 0.05)(D, D)),
        }
    _A_in = _A_setup()

    def _B_setup():
        B, S, D, F = 1, 2048, 512, 1792
        return {
            "x": _w((lambda *s: torch.randn(*s, dtype=torch.bfloat16) * 0.05)(B, S, D)),
            "w1": _w((lambda *s: torch.randn(*s, dtype=torch.bfloat16) * 0.8)(D, F) * (D ** -0.5)),
            "b1": _w((lambda *s: torch.randn(*s, dtype=torch.bfloat16) * 12.8)(F) * 0.01),
            "w2": _w((lambda *s: torch.randn(*s, dtype=torch.bfloat16) * 0.4)(F, D) * (F ** -0.5)),
            "b2": _w((lambda *s: torch.randn(*s, dtype=torch.bfloat16) * 6.4)(D) * 0.01),
        }
    _B_in = _B_setup()

    return {
        "A_x": _A_in["x"],
        "A_wqkv": _A_in["wqkv"],
        "A_w_phi": _A_in["w_phi"],
        "A_wo": _A_in["wo"],
        "B_x": _B_in["x"],
        "B_w1": _B_in["w1"],
        "B_b1": _B_in["b1"],
        "B_w2": _B_in["w2"],
        "B_b2": _B_in["b2"],
    }

def reference(A_x, A_wqkv, A_w_phi, A_wo, B_x, B_w1, B_b1, B_w2, B_b2):
    def _A_ref(x, wqkv, w_phi, wo):
        B, S, D = x.shape
        H = 32; Dh = D // H
        qkv = (lambda x, *d: x.permute(*d))((x @ wqkv).reshape(B, S, 3, H, Dh), 2, 0, 3, 1, 4)
        q, k, v = qkv[0], qkv[1], qkv[2]
        pq = torch.einsum("bhsd,hdf->bhsf", q, w_phi)
        pk = torch.einsum("bhsd,hdf->bhsf", k, w_phi)
        phi_q = torch.concatenate([_softmax(pq, axis=-1), _softmax(-pq, axis=-1)], axis=-1)
        phi_k = torch.concatenate([_softmax(pk, axis=-1), _softmax(-pk, axis=-1)], axis=-1)
        kv = torch.einsum("bhsf,bhsd->bhfd", phi_k, v)
        z  = torch.einsum("bhsf->bhf", phi_k)
        num = torch.einsum("bhqf,bhfd->bhqd", phi_q, kv)
        den = torch.einsum("bhqf,bhf->bhq", phi_q, z)[..., None] + 1e-6
        o = num / den
        return (lambda x, *d: x.permute(*d))(o, 0, 2, 1, 3).reshape(B, S, D) @ wo

    def _B_ref(x, w1, b1, w2, b2):
        h = torch.einsum("bsd,df->bsf", x, w1) + b1
        h = _gelu(h)
        return torch.einsum("bsf,fd->bsd", h, w2) + b2

    x = A_x
    xn = _layernorm(x, axis=-1)
    return x + _A_ref(xn, A_wqkv, A_w_phi, A_wo) + _B_ref(xn, B_w1, B_b1, B_w2, B_b2)
```

```python
import re

def v(i, n=1): return f"v{i}" if n == 1 else f"v[{i}:{i+n-1}]"
def s(i, n=1): return f"s{i}" if n == 1 else f"s[{i}:{i+n-1}]"

_reg = re.compile(r"^(-?)(?:abs\()?([vs])(?:(\d+)|\[(\d+):(\d+)\])\)?$")
def regs_of(tok):
    tok = tok.strip()
    if tok == "vcc": return [("s", 106), ("s", 107)]
    if tok == "exec": return [("s", 126), ("s", 127)]
    if tok == "m0": return [("s", 124)]
    m = _reg.match(tok)
    if not m: return []
    k = m.group(2)
    if m.group(3) is not None: return [(k, int(m.group(3)))]
    return [(k, r) for r in range(int(m.group(4)), int(m.group(5)) + 1)]

TRANS = ("v_exp_f32", "v_log_f32", "v_rcp_f32", "v_rsq_f32", "v_sqrt_f32", "v_sin_f32", "v_cos_f32")

class Ins:
    __slots__ = ("text", "op", "ops", "mods", "defs", "uses", "kind", "cond", "note")
    def __init__(self, text, cond=False):
        self.text = text.strip(); self.cond = cond; self.note = ""
        mt = re.search(r";\s*tag=(\w+)", self.text)
        if mt: self.note = mt.group(1)
        t = self.text.split(";")[0].strip()
        if t.endswith(":") or t.startswith(".") or t == "":
            self.op = "label" if t.endswith(":") else "dir"; self.ops = []; self.mods = ""
            self.defs = []; self.uses = []; self.kind = self.op; return
        sp = t.split(None, 1)
        self.op = sp[0]; rest = sp[1] if len(sp) > 1 else ""
        parts = [p.strip() for p in rest.split(",")] if rest else []
        mods = ""
        if parts:
            last = parts[-1].split(None, 1)
            parts[-1] = last[0]
            if len(last) > 1: mods = last[1]
        self.ops = parts; self.mods = mods
        op = self.op
        R = [regs_of(p) for p in parts]
        flat = lambda L: [x for l in L for x in l]
        d, u = [], []
        if op.startswith("v_mfma"):
            k = "mfma"; d = R[0]; u = flat(R[1:])
        elif op.startswith("ds_read"):
            k = "dsr"; d = R[0]; u = flat(R[1:])
        elif op.startswith("ds_"):
            k = "dsw"; u = flat(R)
        elif op.startswith("buffer_load") or op.startswith("global_load"):
            if re.search(r"\blds\b", mods): k = "dma"; u = flat(R) + [("s", 124)]
            else:
                k = "vld"; d = R[0]; u = flat(R[1:])
                if "d16" in op: u += R[0]
        elif op.startswith("buffer_store") or op.startswith("global_store") or op.startswith("buffer_atomic"):
            k = "vst"; u = flat(R)
        elif op.startswith("s_load") or op in ("s_memtime", "s_memrealtime"):
            k = "smem"; d = R[0]; u = flat(R[1:])
        elif op.startswith("v_"):
            k = "valu"
            if op.startswith("v_permlane") and "swap" in op:
                d = flat(R); u = flat(R)
            else:
                d = R[0]; u = flat(R[1:])
                if op.startswith(("v_fmac", "v_dot2c", "v_mac")): u += R[0]
                if op.startswith("v_cmpx"): d += [("s", 126), ("s", 127)]
        elif op in ("s_waitcnt", "s_barrier", "s_nop", "s_sleep", "s_setprio", "s_endpgm") or op.startswith("s_cbranch") or op == "s_branch":
            k = op if op in ("s_waitcnt", "s_barrier", "s_nop") else "ctl"
            if "vcc" in op: u = [("s", 106), ("s", 107)]
        elif op.startswith("s_"):
            k = "salu"
            if op.startswith(("s_cmp", "s_bitcmp")): u = flat(R)
            else:
                d = R[0] if R else []; u = flat(R[1:])
                if "saveexec" in op: d = d + [("s", 126), ("s", 127)]
        else:
            raise ValueError("unknown op " + text)
        self.kind = k; self.defs = d; self.uses = u
    def states(self):
        if self.kind in ("label", "dir"): return 0
        if self.kind == "s_nop": return int(self.ops[0], 0) + 1
        return 1

class Prog:
    def __init__(self):
        self.ins = []; self._cond = None; self._lab = 0
    def __call__(self, text):
        for l in text.split("\n"):
            if l.strip(): self.ins.append(Ins(l, self._cond))
    def add(self, lst):
        for t in lst: self(t)
    def cond_begin(self, key): assert not self._cond; self._cond = key
    def cond_end(self): self._cond = None
    def lab(self, p="L"):
        self._lab += 1; return f"{p}_{self._lab}"

def interleave(main, fill, per=None, lead=0):
    out = []; n = len(main); pos = 0
    for i, g in enumerate(main):
        out += g
        if i < lead: continue
        tgt = len(fill) * (i + 1 - lead) // (n - lead) if per is None else min(len(fill), pos + per)
        out += fill[pos:tgt]; pos = tgt
    out += fill[pos:]
    return out

_wc = re.compile(r"(vmcnt|lgkmcnt)\((\d+)\)")
def auto_wait(ins):
    out = []
    Q = {"lgkmcnt": [], "vmcnt": []}
    def sure(e, key): return (not e[1]) or e[1] == key
    def need(q, regs, key):
        idx = -1
        for i, e in enumerate(q):
            if (e[0] & regs) and not (key and key in e[2]): idx = i
        if idx < 0: return None
        return sum(1 for e in q[idx + 1:] if sure(e, key))
    def retire(nm, n, key):
        q = Q[nm]; cnt = 0; cut = 0
        for i in range(len(q) - 1, -1, -1):
            if cnt >= n: cut = i + 1; break
            if sure(q[i], key): cnt += 1
        else: cut = 0
        if n == 0: cut = len(q)
        if not key: Q[nm] = q[cut:]
        else:
            keep = []
            for e in q[:cut]:
                if e[1] == key: continue
                e[2].add(key); keep.append(e)
            Q[nm] = keep + q[cut:]
    for I in ins:
        if I.kind == "dir" and I.text.startswith(".reset"):
            Q["lgkmcnt"] = []; Q["vmcnt"] = []; continue
        if I.kind == "dir" and I.text.startswith(".waitvm"):
            a = I.text.split(); key = ("tag", a[1])
            n = need(Q["vmcnt"], {key}, I.cond)
            w = []
            if n is not None: w.append(f"vmcnt({min(n,63)})")
            if len(a) > 2: w.append("lgkmcnt(0)")
            if not w: continue
            I = Ins("s_waitcnt " + " ".join(w), I.cond)
        if I.kind == "s_waitcnt":
            for nm, n in _wc.findall(I.text): retire(nm, int(n), I.cond)
            out.append(I); continue
        regs = set(I.uses) | set(I.defs)
        w = []
        assert not any(e[0] & regs for e in Q["lgkmcnt"] if ("smem",) in e[0]), "smem pending: " + I.text
        for nm, mx in (("vmcnt", 63), ("lgkmcnt", 15)):
            n = need(Q[nm], regs, I.cond)
            if n is not None:
                n = min(n, mx)
                if nm == "lgkmcnt" and any(("smem",) in e[0] for e in Q[nm]): n = 0
                w.append(f"{nm}({n})"); retire(nm, n, I.cond)
        if w: out.append(Ins("s_waitcnt " + " ".join(w), I.cond))
        if I.kind in ("dsr", "dsw"): Q["lgkmcnt"].append([set(I.defs), I.cond, set()])
        elif I.kind == "smem": Q["lgkmcnt"].append([set(I.defs) | {("smem",)}, I.cond, set()])
        elif I.kind in ("vld", "vst", "dma"): Q["vmcnt"].append([set(I.defs) | ({("tag", I.note)} if I.note else set()), I.cond, set()])
        out.append(I)
    return out

def hazards(ins, stats=None):
    out = []
    def is_v(r): return r[0] == "v"
    for I in ins:
        if I.kind in ("label", "dir"):
            out.append(I); continue
        needn = 0; dist = 0
        U = set(I.uses); D = set(I.defs)
        for P in reversed(out):
            if dist >= 20: break
            if P.kind in ("label", "dir"): continue
            req = 0
            PD = set(P.defs)
            if P.kind == "mfma":
                npass = 8 if "32x32" in P.op else 4
                big = {8: 12, 4: 8}[npass]; ovl = {8: 10, 4: 6}[npass]; war = {8: 7, 4: 3}[npass]
                if I.kind == "mfma":
                    ab = set(regs_of(I.ops[1])) | set(regs_of(I.ops[2])); c = set(regs_of(I.ops[3]))
                    if PD & ab: req = max(req, big)
                    if PD & c and not (I.ops[3] == P.ops[0] and I.op == P.op): req = max(req, ovl)
                    if PD & D and not (I.ops[0] == P.ops[0] and I.ops[3] == P.ops[0]): req = max(req, big)
                elif I.kind in ("valu", "dsr", "dsw", "vld", "vst", "dma"):
                    if PD & (U | D): req = max(req, big)
                    if I.kind == "valu" and set(regs_of(P.ops[3])) & D: req = max(req, war)
            elif P.kind == "valu":
                pv = {r for r in PD if is_v(r)}; ps = {r for r in PD if not is_v(r)}
                isdot = P.op.startswith("v_dot")
                if I.kind == "mfma" and pv & U: req = max(req, 3 if isdot else 2)
                if ("s", 126) in ps and I.kind == "mfma": req = max(req, 4)
                if I.kind == "valu":
                    if P.op.startswith(TRANS) and not I.op.startswith(TRANS) and pv & U: req = max(req, 1)
                    if I.op.startswith("v_permlane") and pv & U: req = max(req, 2)
                    if ("dpp" in I.op) and pv & U: req = max(req, 2)
                    if I.op.startswith(("v_readfirstlane", "v_readlane")) and pv & U: req = max(req, 1)
                    if ps & U: req = max(req, 4 if I.op.startswith(("v_readlane", "v_writelane")) else 2)
                    if I.op.startswith("v_cndmask") and len(I.ops) == 4 and ps & set(regs_of(I.ops[3])): req = max(req, 2)
                    if isdot and pv & (U | D):
                        if I.op == P.op and not (pv & (set(regs_of(I.ops[1])) | set(regs_of(I.ops[2])))): pass
                        else: req = max(req, 3)
                if isdot and I.kind in ("dsw", "vst", "dsr", "vld") and pv & (U | D): req = max(req, 3)
                if I.kind in ("vld", "vst", "dma") and ps & U: req = max(req, 5)
                if I.kind == "ctl" and ps & U: req = max(req, 1)
                if I.kind == "salu" and ps & U: req = max(req, 1)
            elif P.kind == "vst":
                if ("x4" in P.op or "x3" in P.op) and I.kind in ("valu", "dsr", "vld", "mfma") and set(regs_of(P.ops[0])) & D:
                    req = max(req, 2)
            elif P.kind == "dsw":
                if ("b128" in P.op or "b96" in P.op) and I.kind == "valu" and set(P.uses) & D: req = max(req, 2)
            elif P.kind == "salu":
                if ("s", 124) in PD and I.kind == "dma": req = max(req, 1)
            needn = max(needn, req - dist)
            if not (P.cond and P.cond != I.cond): dist += P.states()
        if needn > 0:
            if stats is not None: stats.append((needn, I.text))
            while needn > 0:
                k = min(needn, 16); out.append(Ins(f"s_nop {k-1}", I.cond)); needn -= k
        out.append(I)
    return out

def render(ins):
    o = []
    for I in ins:
        o.append(I.text if I.kind in ("label", "dir") else "    " + I.text)
    return "\n".join(o) + "\n"
```

```python
import sys, math, struct
from ir import *

NAME = "parallel_sum__linear_kernel_hedgehog__dense_activation_gelu__prompt_kernel"
OPT = dict(a.split("=") for a in sys.argv[2:] if "=" in a)
STAMP = int(OPT.get("stamp", 0))

def f2u(x): return struct.unpack("<I", struct.pack("<f", x))[0]
LOG2E = 1.4426950408889634
GC1 = -2.0 * LOG2E * math.sqrt(2.0 / math.pi)
GC2 = GC1 * 0.044715

HF_RB = 144 * 1024
WS_KVP = 0xA00000
KVP_SZ = 8704
WS_FLG = 0xC00000
WS_KVF = 0xC08000
WS_STAMP = 0xD00000
WS_SIZE = 0x1000000
RA, RB, RC = 0, 65536, 131072
L_KVB = 147456
L_CS = 155648
L_ST = L_CS + 4096
L_WPHI = L_CS + 6144
LDS_SIZE = 163840
SPIN_MAX = 1 << 15

sW, sRT, sG, sM, sN = 3, 4, 5, 6, 7
SX, SWT, SWS, SW2, SWO, SOUT, SDBG, SAUX, SB2 = 8, 12, 16, 20, 24, 28, 32, 36, 40
sXo, sWo, sM0x, sT0, sT1, sSIG, sONE, sFO, sHALF, sHo, sWq, sW3, sT2, sCNT, sW34, sT3 = range(44, 60)
sEX = 60
sH0, sH3, sM4, sK = 62, 63, 64, 65
sST = 66
sB2o, sBOo, sFL, sOo, sA0, sA1, sR4, sSH = range(90, 98)
sROT, sC1, sD0, sD1 = 98, 99, 100, 101
VCSA = 0; vL = 1
AX = 2; AW = 6; AB = 10; VZ, VFV = 12, 13
VX0, VX1, VW, VB, VW3 = 14, 15, 16, 17, 18
VSTA, S1, S2, CS0 = 19, 20, 21, 22
RSTD, STD, K1, K2, VL16 = 23, 24, 25, 26, 27
BAUG, AAUG, SEL, BIAS = 28, 32, 36, 40
T = 44
WF = 64
ACC0, ACC1, ACC2 = 80, 96, 112
XF = 128

P = Prog()
STI = dict(start=0, kernarg=1, it0=2, pass1=3, sub1=4, sub2=5, qsm=6, sub3=6, kvseen=7, x7=7, p1end=8, hseen=9, p2mm=10, end=11)
def stamp_i(name):
    if not STAMP: return []
    i = STI[name]
    return [f"{'s_memrealtime' if STAMP == 1 else 's_memtime'} {s(sST + 2*i, 2)} ; stamp {i} {name}"]
def stamp(name): P.add(stamp_i(name))

def mfma(d, a, b, c=None):
    return f"v_mfma_f32_32x32x16_bf16 {v(d,16)}, {v(a,4)}, {v(b,4)}, {v(d,16) if c is None else c}"
def m16(d, a, b, c=None):
    return f"v_mfma_f32_16x16x32_bf16 {v(d,4)}, {v(a,4)}, {v(b,4)}, {v(d,4) if c is None else c}"
def srd(base, nbytes):
    P(f"s_mov_b32 {s(base+2)}, {nbytes}\ns_mov_b32 {s(base+3)}, 0x20000")
def lines(t): return [l for l in t.split("\n") if l.strip()]

P("s_cmp_ge_u32 s2, 256")
P("s_cbranch_scc1 L_end")
stamp("start")
P(f"s_load_dwordx2 {s(SX,2)}, s[0:1], 0")
P(f"s_load_dwordx2 {s(SWS,2)}, s[0:1], 88")
P(f"s_load_dwordx2 {s(SDBG,2)}, s[0:1], 80")
P(f"s_load_dwordx2 {s(SW2,2)}, s[0:1], 56")
P(f"s_load_dwordx2 {s(SWO,2)}, s[0:1], 24")
P(f"s_load_dwordx2 {s(SOUT,2)}, s[0:1], 72")
P(f"s_load_dwordx2 {s(SB2,2)}, s[0:1], 64")
P(f"v_lshrrev_b32 v2, 6, v0")
P(f"v_and_b32 {v(vL)}, 63, v0")
P(f"s_and_b32 {s(sT0)}, s2, 7")
P(f"s_lshr_b32 {s(sT1)}, s2, 3")
P(f"v_readfirstlane_b32 {s(sW)}, v2")
P(f"s_lshr_b32 {s(sRT)}, {s(sT0)}, 2\ns_lshl_b32 {s(sRT)}, {s(sRT)}, 3\ns_and_b32 {s(sT2)}, {s(sT1)}, 7\ns_add_u32 {s(sRT)}, {s(sRT)}, {s(sT2)}")
P(f"s_and_b32 {s(sG)}, {s(sT0)}, 3\ns_lshl_b32 {s(sG)}, {s(sG)}, 1\ns_lshr_b32 {s(sT2)}, {s(sT1)}, 4\ns_add_u32 {s(sG)}, {s(sG)}, {s(sT2)}")
P(f"s_lshl_b32 {s(sM)}, {s(sT0)}, 2\ns_and_b32 {s(sT2)}, {s(sT1)}, 3\ns_add_u32 {s(sM)}, {s(sM)}, {s(sT2)}")
P(f"s_lshr_b32 {s(sN)}, {s(sT1)}, 2")
srd(SX, 2097152)
P(f"s_lshl_b32 {s(sM0x)}, {s(sW)}, 11")
P(f"v_lshrrev_b32 v2, 3, {v(vL)}\nv_and_b32 v3, 7, {v(vL)}\nv_lshrrev_b32 v4, 4, {v(vL)}")
P(f"v_xor_b32 v5, v3, v4\nv_lshlrev_b32 v5, 4, v5\nv_lshl_add_u32 {v(VX0)}, v2, 10, v5")
P(f"v_xor_b32 v5, 64, {v(VX0)}\nv_add_u32 {v(VX1)}, {8192-1024}, v5")
P(f"v_and_b32 v4, 1, v4\nv_lshlrev_b32 v4, 2, v4\nv_xor_b32 v4, v3, v4\nv_lshlrev_b32 v4, 4, v4")
P(f"v_lshl_add_u32 {v(VB)}, v2, 10, v4")
P(f"s_lshl_b32 {s(sXo)}, {s(sRT)}, 17\ns_lshl_b32 {s(sT2)}, {s(sW)}, 14\ns_add_u32 {s(sXo)}, {s(sXo)}, {s(sT2)}")
P(f"s_lshr_b32 {s(sT2)}, {s(sT1)}, 3\ns_lshl_b32 {s(sT2)}, {s(sT2)}, 1\ns_add_u32 {s(sROT)}, {s(sRT)}, {s(sT2)}\ns_and_b32 {s(sROT)}, {s(sROT)}, 7")
if OPT.get("norot"): P(f"s_mov_b32 {s(sROT)}, 0")
P(f"s_mov_b32 {s(sK)}, {s(sROT)}")
P(f"s_bitcmp1_b32 {s(sT1)}, 3")
P("s_cbranch_scc1 L_ffn")

def item1(it, pitch):
    q = it & 3
    return [[f"s_lshl_b32 {s(sD0)}, {s(sK)}, 7", f"s_add_u32 m0, {s(sM0x)}, {RA+q*16384}", f"s_add_u32 {s(sD0)}, {s(sD0)}, {s(sXo)}",
             f"buffer_load_dwordx4 {v(VX0)}, {s(SX,4)}, {s(sD0)} offen lds"],
            [f"s_mul_i32 {s(sD1)}, {s(sK)}, {64*pitch}",
             f"buffer_load_dwordx4 {v(VX1)}, {s(SX,4)}, {s(sD0)} offen offset:1024 lds"],
            [f"s_lshr_b32 {s(sD0)}, {s(sM0x)}, 1", f"s_add_u32 m0, {s(sD0)}, {RB+it*8192}", f"s_add_u32 {s(sD1)}, {s(sD1)}, {s(sWo)}",
             f"buffer_load_dwordx4 {v(VW)}, {s(SWT,4)}, {s(sD1)} offen lds ; tag=it{it}",
             f"s_add_u32 {s(sK)}, {s(sK)}, 1", f"s_and_b32 {s(sK)}, {s(sK)}, 7"]]
def wquarter(region, q, coloff, pitch, tag):
    return [[f"s_add_u32 {s(sD1)}, {s(sC1)}, {2*q}", f"s_and_b32 {s(sD1)}, {s(sD1)}, 7", f"s_mul_i32 {s(sD1)}, {s(sD1)}, {64*pitch}",
             f"s_add_u32 m0, {s(sM0x)}, {region+q*16384}", f"s_add_u32 {s(sD1)}, {s(sD1)}, {s(sWq)}"] +
            ([f"s_add_u32 {s(sD1)}, {s(sD1)}, {coloff}"] if coloff else []) +
            [f"buffer_load_dwordx4 {v(VW)}, {s(SWT,4)}, {s(sD1)} offen lds"],
            [f"s_add_u32 {s(sD1)}, {s(sD1)}, {8*pitch-1024}",
             f"buffer_load_dwordx4 {v(VW)}, {s(SWT,4)}, {s(sD1)} offen offset:1024 lds ; tag={tag}"]]
def w3quarter(q, pitch):
    return [[f"s_add_u32 {s(sD1)}, {s(sC1)}, {2*q}", f"s_and_b32 {s(sD1)}, {s(sD1)}, 7", f"s_mul_i32 {s(sD1)}, {s(sD1)}, {64*pitch}",
             f"s_lshr_b32 {s(sD0)}, {s(sM0x)}, 1", f"s_add_u32 m0, {s(sD0)}, {RA+q*8192}", f"s_add_u32 {s(sD1)}, {s(sD1)}, {s(sW3)}",
             f"buffer_load_dwordx4 {v(VW3)}, {s(SWT,4)}, {s(sD1)} offen lds ; tag=w3"]]

def spin(label, load, cmp):
    P(f"s_mov_b32 {s(sCNT)}, 0")
    P(f"{label}:")
    P(cmp)
    P(f"s_add_u32 {s(sCNT)}, {s(sCNT)}, 1")
    P(f"s_cbranch_vccz {label}_ok")
    P(f"s_cmp_gt_u32 {s(sCNT)}, {SPIN_MAX}")
    P(f"s_cbranch_scc1 {label}_ok")
    P("s_sleep 1")
    old = P._cond; P._cond = label
    P(load)
    P("s_waitcnt vmcnt(0)")
    P._cond = old
    P(f"s_branch {label}")
    P(f"{label}_ok:")

def gelu(acc, n, soff, off, tagn, t0=T):
    L = []
    for g4 in range(0, n, 4):
        t = t0 + 8 + (g4 & 4)
        a = [acc + g4 + i for i in range(4)]
        L += [f"v_mul_f32 {v(t+i)}, {v(a[i])}, {v(a[i])}" for i in range(4)]
        L += [f"v_fma_f32 {v(t+i)}, {v(t+i)}, {v(K2)}, {v(K1)}" for i in range(4)]
        L += [f"v_mul_f32 {v(t+i)}, {v(a[i])}, {v(t+i)}" for i in range(4)]
        L += [f"v_exp_f32 {v(t+i)}, {v(t+i)}" for i in range(4)]
        L += [f"v_fma_f32 {v(t+i)}, {v(t+i)}, {v(STD)}, {v(STD)}" for i in range(4)]
        L += [f"v_rcp_f32 {v(t+i)}, {v(t+i)}" for i in range(4)]
        L += [f"v_mul_f32 {v(t+i)}, {v(a[i])}, {v(t+i)}" for i in range(4)]
        pk = t0 + (g4 >> 1)
        L += [f"v_cvt_pk_bf16_f32 {v(pk)}, {v(t)}, {v(t+1)}", f"v_cvt_pk_bf16_f32 {v(pk+1)}, {v(t+2)}, {v(t+3)}"]
        if g4 & 4:
            j = g4 >> 3
            L += [f"buffer_store_dwordx4 {v(t0+4*j,4)}, {v(VL16)}, {s(SWS,4)}, {s(soff)} offen offset:{off+1024*j} sc1 ; tag={tagn}"]
    return L

def sum4(d, r):
    return [f"v_add_f32 {v(d)}, {v(r)}, {v(r+1)}", f"v_add_f32 {v(r+2)}, {v(r+2)}, {v(r+3)}", f"v_add_f32 {v(d)}, {v(d)}, {v(r+2)}"]

MS, U = T + 4, T + 16
CSR = T + 12
MC = AAUG

def stats_final():
    t = T + 16
    return [f"v_add_f32 {v(S1)}, {v(MS)}, {v(MS+2)}", f"v_add_f32 {v(S2)}, {v(MS+1)}, {v(MS+3)}",
          f"v_mul_f32 {v(S1)}, {f2u(-1.0/512):#x}, {v(S1)}",
          f"v_mul_f32 {v(t)}, {v(S1)}, {v(S1)}",
          f"v_fma_f32 {v(S2)}, {v(S2)}, {s(sT3)}, -{v(t)}",
          f"v_max_f32 {v(S2)}, 0, {v(S2)}",
          f"v_add_f32 {v(S2)}, {f2u(1e-5):#x}, {v(S2)}",
          f"v_rsq_f32 {v(RSTD)}, {v(S2)}",
          f"v_cvt_pk_bf16_f32 {v(t)}, {v(S1)}, {v(S1)}",
          f"v_mul_f32 {v(STD)}, {v(S2)}, {v(RSTD)}",
          f"v_and_b32 {v(t+1)}, 0xffff0000, {v(t)}",
          f"v_sub_f32 {v(t+1)}, {v(S1)}, {v(t+1)}",
          f"v_cvt_pk_bf16_f32 {v(BAUG)}, {v(S1)}, {v(t+1)}",
          f"v_cvt_pk_bf16_f32 {v(BAUG+1)}, {v(S1)}, {v(STD)}",
          f"v_and_b32 {v(t+1)}, 0xffff0000, {v(BAUG+1)}",
          f"v_sub_f32 {v(t+1)}, {v(STD)}, {v(t+1)}",
          f"v_cmp_gt_u32 vcc, 32, {v(vL)}",
          f"v_cvt_pk_bf16_f32 {v(BAUG+2)}, {v(t+1)}, 0",
          f"v_cndmask_b32 {v(BAUG)}, 0, {v(BAUG)}, vcc",
          f"v_cndmask_b32 {v(BAUG+1)}, 0, {v(BAUG+1)}, vcc",
          f"v_cndmask_b32 {v(BAUG+2)}, 0, {v(BAUG+2)}, vcc"]

def aug(acc, part, bias):
    t = T + 18; dst = AAUG
    L = sum4(CS0, part) + [f"v_cvt_pk_bf16_f32 {v(dst)}, {v(CS0)}, {v(CS0)}",
         f"v_and_b32 {v(t)}, 0xffff0000, {v(dst)}",
         f"v_sub_f32 {v(t)}, {v(CS0)}, {v(t)}"]
    if bias is None:
        L += [f"v_cvt_pk_bf16_f32 {v(dst+1)}, {v(t)}, 0"]
    else:
        L += [f"v_cvt_pk_bf16_f32 {v(t)}, {v(t)}, 0", f"v_mov_b32 {v(dst+2)}, {v(bias)}",
              f"v_lshl_or_b32 {v(dst+1)}, {v(bias)}, 16, {v(t)}"]
    return L + [mfma(acc, dst, BAUG)]

def flag(level, tag):
    return [f".waitvm {tag}", f"v_mov_b32 {v(VFV)}, {level}",
            f"buffer_store_dword {v(VFV)}, {v(VZ)}, {s(SWS,4)}, {s(sFO)} offen sc1"]

KAREA = [None, RA + 32768, RA + 32768 + 2048, RB, RB + 2048, RB + 32768, RB + 32768 + 2048, RA + 2048, RA]
def rot_k(kk, dst):
    if kk < 12: return [f"s_add_u32 {s(dst)}, {s(sR4)}, {kk}", f"s_and_b32 {s(dst)}, {s(dst)}, 3", f"s_add_u32 {s(dst)}, {s(dst)}, {s(sSH)}"] + \
                       ([f"s_add_u32 {s(dst)}, {s(dst)}, {kk & ~3}"] if kk & ~3 else [])
    if kk < 14: return [f"s_mul_i32 {s(dst)}, {s(sSH)}, 6", f"s_sub_u32 {s(dst)}, {kk}, {s(dst)}"]
    return [f"s_add_u32 {s(dst)}, {s(sR4)}, {kk-14}", f"s_and_b32 {s(dst)}, {s(dst)}, 3"]
def b_dma(kk):
    slot = kk % 9
    m0 = f"s_add_u32 m0, {s(sM4)}, {KAREA[slot]}" if slot else f"s_add_u32 m0, {s(sM0x)}, {RC}"
    sr, so = (SW2, sB2o) if kk < 14 else (SWO, sBOo)
    return [rot_k(kk, sD0) + [f"s_lshl_b32 {s(sD0)}, {s(sD0)}, 14", m0, f"s_add_u32 {s(sD0)}, {s(sD0)}, {s(so)}",
             f"buffer_load_dwordx4 {v(VB)}, {s(sr,4)}, {s(sD0)} offen lds"],
            [f"s_add_u32 {s(sD0)}, {s(sD0)}, {8192 - 1024}",
             f"buffer_load_dwordx4 {v(VB)}, {s(sr,4)}, {s(sD0)} offen offset:1024 lds ; tag=b{kk}"]]

def setup(ffn):
    pitch = 3584 if ffn else 3072
    tp = "f" if ffn else "a"
    P(f"s_load_dwordx2 {s(SWT,2)}, s[0:1], {40 if ffn else 8}")
    P(f"s_load_dwordx2 {s(SAUX,2)}, s[0:1], {48 if ffn else 16}")
    srd(SWT, 1835008 if ffn else 1572864)
    P(f"v_mul_u32_u24 {v(VW)}, {pitch}, v2\nv_add_u32 {v(VW)}, {v(VW)}, v4")
    if ffn:
        P(f"s_mul_i32 {s(sT0)}, {s(sG)}, 448\ns_and_b32 {s(sT1)}, {s(sG)}, 1\ns_lshl_b32 {s(sT2)}, {s(sT1)}, 6\ns_add_u32 {s(sWq)}, {s(sT0)}, {s(sT2)}")
        P(f"s_mul_i32 {s(sWo)}, {s(sW)}, {8*pitch}\ns_add_u32 {s(sWo)}, {s(sWo)}, {s(sWq)}")
    else:
        P(f"s_lshl_b32 {s(sWq)}, {s(sG)}, 7")
        P(f"s_mul_i32 {s(sWo)}, {s(sW)}, {8*pitch}\ns_add_u32 {s(sWo)}, {s(sWo)}, {s(sWq)}\ns_add_u32 {s(sWo)}, {s(sWo)}, 1024")
    P("s_waitcnt lgkmcnt(0)")
    stamp("kernarg")
    for g_ in item1(0, pitch): P.add(g_)
    srd(SWS, WS_SIZE); srd(SDBG, 256); srd(SW2, 1835008); srd(SWO, 524288); srd(SOUT, 2097152); srd(SB2, 1024); srd(SAUX, 3584 if ffn else 16384)
    P(f"v_lshlrev_b32 {v(VL16)}, 4, {v(vL)}")
    P(f"s_lshr_b32 {s(sHALF)}, {s(sW)}, 2")
    P(f"s_and_b32 {s(sW34)}, {s(sW)}, 3\ns_xor_b32 {s(sSIG)}, {s(sW34)}, {s(sHALF)}")
    if not ffn:
        for i in range(4): P(f"v_mov_b32 {v(T+i)}, 0")
        P(f"s_lshl_b32 {s(sT0)}, {s(sW)}, 8\ns_add_u32 {s(sT0)}, {s(sT0)}, s2\ns_sub_u32 {s(sT0)}, {s(sT0)}, 256\ns_cmp_lt_u32 {s(sT0)}, 8")
        P(f"s_cbranch_scc0 L_nzero")
        P.cond_begin("zw")
        P(f"s_lshl_b32 {s(sT0)}, s2, 12\ns_add_u32 {s(sT0)}, {s(sT0)}, {WS_FLG}")
        for i in range(4): P(f"buffer_store_dwordx4 {v(T,4)}, {v(VL16)}, {s(SWS,4)}, {s(sT0)} offen offset:{1024*i} sc1")
        P(f"s_lshl_b32 {s(sT0)}, s2, 8\ns_add_u32 {s(sT0)}, {s(sT0)}, {WS_KVF}\nv_lshlrev_b32 v3, 2, {v(vL)}")
        P(f"buffer_store_dword {v(T)}, v3, {s(SWS,4)}, {s(sT0)} offen sc1 ; tag=zf")
        P.cond_end()
        P(f"L_nzero:")
    for g_ in item1(1, pitch): P.add(g_)
    P(f"s_lshl_b32 {s(sT0)}, {s(sRT)}, 4\ns_add_u32 {s(sT0)}, {s(sT0)}, {s(sG)}\ns_lshl_b32 {s(sT0)}, {s(sT0)}, 7\ns_lshl_b32 {s(sT1)}, {s(sW)}, 2\ns_add_u32 {s(sT0)}, {s(sT0)}, {s(sT1)}")
    P(f"s_add_u32 {s(sFO)}, {s(sT0)}, {WS_FLG + (1024 if ffn else 0)}")
    P(f"s_lshl_b32 {s(sT0)}, {s(sRT)}, 2\ns_add_u32 {s(sT0)}, {s(sT0)}, {s(sW34)}\ns_mul_i32 {s(sHo)}, {s(sT0)}, {HF_RB}")
    if ffn:
        P(f"v_and_b32 v5, 31, {v(vL)}\nv_lshlrev_b32 v5, 1, v5")
        P(f"s_lshl_b32 {s(sT0)}, {s(sHALF)}, 6\ns_add_u32 {s(sT0)}, {s(sT0)}, {s(sWq)}")
        for i in range(3): P(f"buffer_load_ushort {v(BIAS+i)}, v5, {s(SAUX,4)}, {s(sT0)} offen offset:{128*i}")
        P(f"s_lshl_b32 {s(sT0)}, {s(sT0)}, 5\ns_add_u32 {s(sH0)}, {s(sHo)}, {s(sT0)}")
        P(f"s_mul_i32 {s(sW3)}, {s(sG)}, 448\ns_add_u32 {s(sT0)}, {s(sW3)}, 384\ns_bitcmp1_b32 {s(sG)}, 0\ns_cselect_b32 {s(sW3)}, {s(sW3)}, {s(sT0)}")
        P(f"s_lshl_b32 {s(sT0)}, {s(sHALF)}, 5\nv_xor_b32 v5, {s(sT0)}, v5")
        P(f"buffer_load_ushort {v(BIAS+3)}, v5, {s(SAUX,4)}, {s(sW3)} offen")
        P(f"s_add_u32 {s(sT0)}, {s(sT0)}, {s(sW3)}\ns_lshl_b32 {s(sT0)}, {s(sT0)}, 5\ns_add_u32 {s(sH3)}, {s(sHo)}, {s(sT0)}")
        P(f"v_lshrrev_b32 v2, 2, {v(vL)}\nv_and_b32 v4, 3, {v(vL)}\nv_lshlrev_b32 v4, 4, v4\nv_mul_u32_u24 {v(VW3)}, {pitch}, v2\nv_add_u32 {v(VW3)}, {v(VW3)}, v4")
    else:
        P(f"s_cmp_lt_u32 {s(sW)}, 2")
        P(f"s_cbranch_scc0 L_nphi")
        P.cond_begin("w01")
        P(f"s_lshl_b32 {s(sT0)}, {s(sG)}, 11\ns_lshl_b32 {s(sT1)}, {s(sW)}, 10\ns_add_u32 {s(sT0)}, {s(sT0)}, {s(sT1)}\ns_add_u32 m0, {s(sT1)}, {L_WPHI}\ns_nop 0")
        P(f"buffer_load_dwordx4 {v(VL16)}, {s(SAUX,4)}, {s(sT0)} offen lds")
        P.cond_end()
        P("L_nphi:")
    P(f"s_mul_i32 {s(sT0)}, {s(sW34)}, {16*pitch}\ns_add_u32 {s(sWq)}, {s(sWq)}, {s(sT0)}")
    if ffn: P(f"s_add_u32 {s(sW3)}, {s(sW3)}, {s(sT0)}")
    P(f"s_add_u32 {s(sC1)}, {s(sROT)}, {s(sHALF)}")
    P(f"s_mov_b32 {s(sT3)}, {f2u(1.0/512):#x}\ns_mov_b32 {s(sONE)}, 0x3f803f80")
    P(f"v_bfe_u32 {v(T)}, {v(vL)}, 2, 2\nv_lshrrev_b32 {v(T+1)}, 5, {v(vL)}")
    P(f"v_bfe_u32 {v(T+2)}, {v(vL)}, 4, 1\nv_lshlrev_b32 {v(T+2)}, 5, {v(T+2)}\nv_and_b32 {v(T+3)}, 3, {v(vL)}\nv_lshl_add_u32 {v(T+2)}, {v(T+3)}, 3, {v(T+2)}")
    P(f"v_and_b32 {v(T+4)}, 31, {v(vL)}\nv_bfe_u32 {v(T+5)}, {v(vL)}, 1, 3\nv_xor_b32 {v(T+5)}, {v(T+5)}, {v(T+1)}")
    P(f"s_lshl_b32 {s(sT0)}, {s(sW34)}, 12\nv_lshlrev_b32 {v(T+8)}, 7, {v(T+4)}\nv_add_u32 {v(T+8)}, {s(sT0)}, {v(T+8)}")
    P(f"v_lshl_add_u32 {v(T+9)}, {v(T+1)}, 3, {v(T)}\nv_lshl_add_u32 {v(T+10)}, {v(T+9)}, 7, {v(T+2)}\nv_lshrrev_b32 {v(T+7)}, 1, {v(T)}\nv_xor_b32 {v(T+7)}, {s(sHALF)}, {v(T+7)}\nv_lshl_add_u32 {v(T+10)}, {v(T+7)}, 6, {v(T+10)}")
    for p in range(4):
        P(f"s_xor_b32 {s(sT0)}, {s(sSIG)}, {p}\ns_lshl_b32 {s(sT1)}, {s(sT0)}, 1\nv_xor_b32 {v(T+6)}, {s(sT1)}, {v(T+5)}\nv_lshl_add_u32 {v(AX+p)}, {v(T+6)}, 4, {v(T+8)}")
        P(f"s_lshl_b32 {s(sT1)}, {s(sT0)}, 11\ns_add_u32 {s(sT1)}, {s(sT1)}, {RB}\nv_add_u32 {v(AW+p)}, {s(sT1)}, {v(T+10)}")
    if ffn:
        P(f"s_lshl_b32 {s(sT0)}, {s(sHALF)}, 5\nv_xor_b32 {v(T+7)}, {s(sT0)}, {v(T+2)}\nv_lshl_add_u32 {v(T+7)}, {v(T+9)}, 6, {v(T+7)}")
        for i, p in enumerate((0, 2)):
            P(f"s_xor_b32 {s(sT0)}, {s(sSIG)}, {p}\ns_lshl_b32 {s(sT0)}, {s(sT0)}, 10\nv_add_u32 {v(AB+i)}, {s(sT0)}, {v(T+7)}")
    P(f"v_lshlrev_b32 {v(T+4)}, 4, {v(T+4)}")
    P(f"s_lshl_b32 {s(sT0)}, {s(sHALF)}, 9\ns_add_u32 {s(sT0)}, {s(sT0)}, {L_CS}\nv_add_u32 {v(VCSA)}, {s(sT0)}, {v(T+4)}")
    P(f"s_lshl_b32 {s(sT0)}, {s(sW34)}, 9\ns_add_u32 {s(sT0)}, {s(sT0)}, {L_ST}\nv_add_u32 {v(VSTA)}, {s(sT0)}, {v(T+4)}")
    P(f"v_lshrrev_b32 {v(T+4)}, 2, {v(vL)}\nv_xor_b32 {v(T+4)}, {v(T+4)}, {v(vL)}\nv_and_b32 {v(T+4)}, 4, {v(T+4)}\nv_cmp_eq_u32 vcc, 0, {v(T+4)}\nv_mov_b32 {v(T+4)}, {s(sONE)}")
    for r in (S1, S2, VZ, BAUG+3, AAUG+2, AAUG+3): P(f"v_mov_b32 {v(r)}, 0")
    for i in range(4): P(f"v_cndmask_b32 {v(SEL+i)}, 0, {v(T+4)}, vcc")
    P(f"s_lshl_b32 {s(sW34)}, {s(sW34)}, 2")
    P(f"s_lshl_b32 {s(sT0)}, {s(sN)}, 7\ns_mul_i32 {s(sB2o)}, {s(sW)}, {224*1024}\ns_add_u32 {s(sB2o)}, {s(sB2o)}, {s(sT0)}")
    P(f"s_lshl_b32 {s(sBOo)}, {s(sW)}, 16\ns_add_u32 {s(sBOo)}, {s(sBOo)}, {s(sT0)}\ns_lshl_b32 {s(sM4)}, {s(sW)}, 12")
    P(f"s_lshl_b32 {s(sOo)}, {s(sM)}, 16\ns_lshl_b32 {s(sT1)}, {s(sW)}, 13\ns_add_u32 {s(sOo)}, {s(sOo)}, {s(sT1)}\ns_add_u32 {s(sOo)}, {s(sOo)}, {s(sT0)}")
    P(f"s_add_u32 {s(sR4)}, {s(sM)}, {s(sN)}\ns_and_b32 {s(sR4)}, {s(sR4)}, {0 if OPT.get('norot') else 3}\ns_and_b32 {s(sSH)}, {s(sW)}, 1\ns_lshl_b32 {s(sSH)}, {s(sSH)}, 1")
    P(f"s_lshr_b32 {s(sT0)}, {s(sM)}, 1\ns_lshl_b32 {s(sT0)}, {s(sT0)}, 4\ns_add_u32 {s(sT0)}, {s(sT0)}, {s(sW)}\ns_lshl_b32 {s(sT0)}, {s(sT0)}, 7")
    P(f"s_and_b32 {s(sT1)}, {s(sM)}, 1\ns_lshl_b32 {s(sT1)}, {s(sT1)}, 3\ns_add_u32 {s(sT0)}, {s(sT0)}, {s(sT1)}\ns_add_u32 {s(sFL)}, {s(sT0)}, {WS_FLG}")
    P(f"s_mul_i32 {s(sA0)}, {s(sM)}, {2*HF_RB}\ns_mul_i32 {s(sT0)}, {s(sW)}, {14*1024}\ns_add_u32 {s(sA1)}, {s(sA0)}, {s(sM4)}\ns_add_u32 {s(sA1)}, {s(sA1)}, {112*1024}\ns_add_u32 {s(sA0)}, {s(sA0)}, {s(sT0)}")

class Sched:
    def __init__(self, n):
        self.n = n; self.pre = [[] for _ in range(n)]; self.post = [[] for _ in range(n)]
        self.fill = [[] for _ in range(n)]; self.dma = [[] for _ in range(n)]; self.blk = {}
    def spread(self, lst, a, b):
        for i in range(a, b): self.fill[i] += lst[len(lst)*(i-a)//(b-a): len(lst)*(i+1-a)//(b-a)]
    def dmas(self, groups, a, step=1):
        for i, g in enumerate(groups): self.dma[a + i*step] += g

def rd(G):
    b = WF + 4 * (G & 3)
    if G < 96:
        ks = G & 31; st, p = ks >> 2, ks & 3
        L = [f"ds_read_b128 {v(XF+4*ks,4)}, {v(AX+p)} offset:{RA+(st&3)*16384}"] if G < 32 else []
        if ks < 4 and G >= 32: L.append(f"v_xor_b32 {v(AW+p)}, {RB}, {v(AW+p)}")
        return L + [f"ds_read_b64_tr_b16 {v(b+2*t,2)}, {v(AW+p)} offset:{8192*st+512*t}" for t in range(2)]
    i = G - 96
    return [f"ds_read_b64_tr_b16 {v(b+2*t,2)}, {v(AB+(i&1))} offset:{4096*(i>>1)+256*t}" for t in range(2)]
def xq(G): return XF + 4 * (G & 31) if G < 96 else XF + 8 * (G - 96)

def common_sched(S, ffn, accs, MC):
    pitch = 3584 if ffn else 3072
    tp = "f" if ffn else "a"
    c1, c2 = (128, 256) if ffn else (2048, 0)
    S.dmas(item1(2, pitch), 0, 0)
    for st in range(8):
        G = 4 * st + 2
        S.pre[G] += [f".waitvm it{st+1}" if st < 7 else ".waitvm w1q0 lgkm0", "s_barrier"]
        if st <= 4: S.dmas(item1(st + 3, pitch), G)
        else: S.dmas(wquarter(RA, st - 5, c1, pitch, f"w1q{st-5}"), G)
    def sq(r, i): return [f"v_and_b32 {v(U+2*i)}, 0xffff0000, {v(r)}", f"v_lshlrev_b32 {v(U+1+2*i)}, 16, {v(r)}",
                          f"v_fmac_f32 {v(S1)}, {v(U+2*i)}, {v(U+2*i)}", f"v_fmac_f32 {v(S2)}, {v(U+1+2*i)}, {v(U+1+2*i)}"]
    for f in range(0, 32, 2):
        x = XF + 4 * f; a = max(f - 1, 0); b = f if f < 30 else 29
        S.post[a] += sq(x, 0) + sq(x + 1, 1) + [m16(MS, SEL, x, "0" if f == 0 else None)]
        S.post[b] += sq(x + 2, 0) + sq(x + 3, 1)
    S.post[29] += [f"v_add_f32 {v(S2)}, {v(S1)}, {v(S2)}", f"s_lshl_b32 {s(sT0)}, {s(sHALF)}, 3", f"v_mov_b32 {v(S1)}, {v(S2)}",
                   f"v_add_u32 {v(T)}, {s(sT0)}, {v(VSTA)}", f"v_permlane32_swap_b32 {v(S1)}, {v(S2)}",
                   f"v_add_f32 {v(MS+1)}, {v(S1)}, {v(S2)}", f"ds_write_b64 {v(T)}, {v(MS,2)}"]
    S.post[30] += [f"ds_read_b128 {v(MS,4)}, {v(VSTA)}"]
    for ps in range(3):
        for st in range(8):
            G = 32 * ps + 4 * st
            S.post[G] += [m16(MC, SEL, WF + 4 * (G & 3), "0" if st == 0 else None)]
        S.post[32*ps + 29] += [f"v_add_u32 {v(MC+1)}, {s(sW34)}, {v(VCSA)}", f"ds_write_b32 {v(MC+1)}, {v(MC)} offset:{1024*ps}"]
    for q in (1, 2, 3): S.pre[32 + 8*q - 2] += [f".waitvm w1q{q}", "s_barrier"]
    S.dmas(wquarter(RA, 3, c1, pitch, "w1q3"), 38)
    w2 = sum([wquarter(RB, q, c2, pitch, "w2") for q in range(4)], [])
    S.dmas(w2, 40, 2)
    S.pre[62] += [".waitvm w2 lgkm0", "s_barrier"]
    S.pre[66] += ["s_barrier"]
    def announce():
        P(f"s_lshl_b32 {s(sT0)}, {s(sW)}, 8\ns_add_u32 {s(sT0)}, {s(sT0)}, s2\ns_sub_u32 {s(sT0)}, {s(sT0)}, 256\ns_cmp_lt_u32 {s(sT0)}, 8")
        P(f"s_cbranch_scc0 L_nd")
        P.cond_begin("zw")
        P(".waitvm zf")
        P(f"s_lshl_b32 {s(sT0)}, s2, 2\nv_mov_b32 {v(VFV)}, 1")
        P(f"buffer_store_dword {v(VFV)}, {v(VZ)}, {s(SDBG,4)}, {s(sT0)} offen sc1")
        P.cond_end()
        P(f"L_nd:")
    if not ffn: S.blk[3] = announce
    ld = f"buffer_load_dword {v(VX0)}, {v(VX1)}, {s(SDBG,4)}, 0 offen sc1"
    def poll0():
        P(f"s_cmp_eq_u32 {s(sW)}, 7"); P(f"s_cbranch_scc0 L_np{tp}")
        P.cond_begin("w7")
        P(f"v_and_b32 {v(VX1)}, 7, {v(vL)}\nv_lshlrev_b32 {v(VX1)}, 2, {v(VX1)}"); P(ld)
        P.cond_end(); P(f"L_np{tp}:")
    def check0():
        P(f"s_cmp_eq_u32 {s(sW)}, 7"); P(f"s_cbranch_scc0 L_nc{tp}")
        P.cond_begin("w7")
        P(f"v_mov_b32 {v(VX0)}, {v(VX0)}")
        spin(f"L_ncs{tp}", ld, f"v_cmp_ne_u32 vcc, 1, {v(VX0)}")
        P.cond_end(); P(f"L_nc{tp}:")
    S.blk[39] = poll0; S.blk[62] = check0

def run_sched(S, accs):
    P(".waitvm it0")
    P("s_barrier")
    stamp("it0")
    P.add(rd(0)); P.add(rd(1))
    for G in range(S.n):
        if G in S.blk: S.blk[G]()
        P.add(S.pre[G])
        first = G in (0, 32, 64, 96)
        P(mfma(accs[G >> 5], WF + 4 * (G & 3), xq(G), "0" if first else None))
        if G + 2 < S.n: P.add(rd(G + 2))
        P.add(S.post[G]); P.add(S.fill[G]); P.add(S.dma[G])

def softmax(p, out, LS):
    t = T + 16
    L = [f"v_max3_f32 {v(t)}, {v(p)}, {v(p+1)}, {v(p+2)}", f"v_max3_f32 {v(t+1)}, {v(p+3)}, {v(p+4)}, {v(p+5)}",
         f"v_max3_f32 {v(t)}, {v(t)}, {v(p+6)}, {v(p+7)}", f"v_max3_f32 {v(t+1)}, {v(t+1)}, {v(p+8)}, {v(p+9)}",
         f"v_max3_f32 {v(t)}, {v(t)}, {v(p+10)}, {v(p+11)}", f"v_max3_f32 {v(t+1)}, {v(t+1)}, {v(p+12)}, {v(p+13)}",
         f"v_max3_f32 {v(t)}, {v(t)}, {v(p+14)}, {v(p+15)}", f"v_max_f32 {v(t)}, {v(t)}, {v(t+1)}",
         f"v_mul_f32 {v(t)}, {v(t)}, {v(LS)}"]
    L += [f"v_fma_f32 {v(p+i)}, {v(p+i)}, {v(LS)}, -{v(t)}" for i in range(16)]
    L += [f"v_exp_f32 {v(p+i)}, {v(p+i)}" for i in range(16)]
    L += [f"v_add_f32 {v(t)}, {v(p)}, {v(p+1)}", f"v_add_f32 {v(t+1)}, {v(p+2)}, {v(p+3)}"]
    for i in range(4, 16, 2):
        L += [f"v_add_f32 {v(t)}, {v(t)}, {v(p+i)}", f"v_add_f32 {v(t+1)}, {v(t+1)}, {v(p+i+1)}"]
    L += [f"v_add_f32 {v(t)}, {v(t)}, {v(t+1)}", f"v_rcp_f32 {v(t)}, {v(t)}"]
    L += [f"v_mul_f32 {v(p+i)}, {v(p+i)}, {v(t)}" for i in range(16)]
    L += [f"v_cvt_pk_bf16_f32 {v(out+i)}, {v(p+2*i)}, {v(p+2*i+1)}" for i in range(8)]
    return L

setup(False)
LS = K1; VPK = K2; VV = VW3; MC = BIAS
PHI0, PHI1 = AX, AAUG
PHI0 = AX
PHI1 = S1
PHI1 = T + 12
t = T + 16
P(f"v_bfe_u32 {v(t)}, {v(vL)}, 2, 2\nv_lshrrev_b32 {v(t+1)}, 5, {v(vL)}\nv_lshl_add_u32 {v(t)}, {v(t+1)}, 2, {v(t)}\nv_lshlrev_b32 {v(t)}, 5, {v(t)}")
P(f"v_bfe_u32 {v(t+2)}, {v(vL)}, 1, 1\nv_lshl_add_u32 {v(t)}, {v(t+2)}, 3, {v(t)}\nv_bfe_u32 {v(t+2)}, {v(vL)}, 4, 1\nv_lshl_add_u32 {v(t)}, {v(t+2)}, 4, {v(t)}")
P(f"s_lshl_b32 {s(sT1)}, {s(sHALF)}, 10\ns_add_u32 {s(sT1)}, {s(sT1)}, {L_WPHI}\nv_add_u32 {v(AB)}, {s(sT1)}, {v(t)}")
P(f"v_bfe_u32 {v(t)}, {v(vL)}, 2, 1\nv_mul_u32_u24 {v(t)}, 0x8000, {v(t)}\nv_lshl_or_b32 {v(AB+1)}, {v(t)}, 16, {v(t)}")
P(f"v_and_b32 {v(t)}, 31, {v(vL)}\nv_lshlrev_b32 {v(t)}, 6, {v(t)}\ns_lshl_b32 {s(sT1)}, {s(sW34)}, 9")
P(f"s_lshl_b32 {s(sT2)}, {s(sHALF)}, 14\ns_add_u32 {s(sT2)}, {s(sT2)}, {s(sT1)}\nv_lshl_add_u32 {v(VPK)}, {v(t+1)}, 5, {v(t)}\nv_add_u32 {v(VPK)}, {s(sT2)}, {v(VPK)}")
P(f"s_lshl_b32 {s(sT2)}, {s(sHALF)}, 13\ns_add_u32 {s(sT2)}, {s(sT2)}, {s(sT1)}\ns_add_u32 {s(sT2)}, {s(sT2)}, {RA+32768}\nv_lshl_add_u32 {v(VV)}, {v(t+1)}, 4, {v(t)}\nv_add_u32 {v(VV)}, {s(sT2)}, {v(VV)}")
def phi_load(hl, dst):
    return [f"ds_read_b64_tr_b16 {v(dst+2*tt,2)}, {v(AB)} offset:{512*hl+256*tt}" for tt in range(2)] + \
           [f"v_xor_b32 {v(dst+i)}, {v(AB+1)}, {v(dst+i)}" for i in range(4)]
S = Sched(96)
common_sched(S, False, None, MC)
S.post[30] += [f"ds_read_b128 {v(CSR,4)}, {v(VCSA)}"]
S.post[31] += stamp_i("pass1")
fill = stats_final() + aug(ACC0, CSR, None) + phi_load(0, AX) + phi_load(1, T + 8) + [f"v_mul_f32 {v(LS)}, {f2u(LOG2E):#x}, {v(RSTD)}"]
fill += [f"v_cvt_pk_bf16_f32 {v(T+i)}, {v(ACC0+2*i)}, {v(ACC0+2*i+1)}" for i in range(8)]
fill += [mfma(ACC2, AX, T, "0"), mfma(ACC0, T + 8, T + 4, "0")]
fill += softmax(ACC2, T + 8, LS) + softmax(ACC0, T, LS)
S.spread(fill, 32, 64)
S.post[62] += [f"ds_read_b128 {v(MC,4)}, {v(VCSA)} offset:1024"]
S.post[63] += stamp_i("sub1")
S.pre[64] += sum4(CS0, MC)
fill = aug(ACC1, MC, None)[3:]
S.spread(fill, 64, 66)
fill = [f"ds_write_b128 {v(VPK)}, {v(T+8,4)}", f"ds_write_b128 {v(VPK)}, {v(T+12,4)} offset:16",
        f"ds_write_b128 {v(VPK)}, {v(T,4)} offset:8192", f"ds_write_b128 {v(VPK)}, {v(T+4,4)} offset:{8192+16}"]
fill += [f"v_mul_f32 {v(ACC1+i)}, {v(ACC1+i)}, {v(RSTD)}" for i in range(16)]
fill += [f"v_cvt_pk_bf16_f32 {v(ACC1+i)}, {v(ACC1+2*i)}, {v(ACC1+2*i+1)}" for i in range(8)]
fill += [f"ds_write_b128 {v(VV)}, {v(ACC1,4)}", f"ds_write_b128 {v(VV)}, {v(ACC1+4,4)} offset:32"]
S.spread(fill, 66, 72)
S.dmas(b_dma(0), 58)
def kvblock():
    P("s_waitcnt lgkmcnt(0)")
    P("s_barrier")
    P(f"s_cmp_lt_u32 {s(sW)}, 4")
    P("s_cbranch_scc0 L_nkv")
    P.cond_begin("lo4")
    t = T + 16
    P(f"v_bfe_u32 {v(t)}, {v(vL)}, 2, 2\nv_lshrrev_b32 {v(t+1)}, 5, {v(vL)}\nv_lshl_add_u32 {v(t)}, {v(t+1)}, 3, {v(t)}\nv_lshlrev_b32 {v(t)}, 6, {v(t)}")
    P(f"v_and_b32 {v(t+2)}, 63, {v(AW)}\nv_add_u32 {v(t+2)}, {v(t+2)}, {v(t)}\ns_lshl_b32 {s(sT0)}, {s(sW)}, 13\nv_add_u32 {v(t+2)}, {s(sT0)}, {v(t+2)}")
    P(f"v_and_b32 {v(t+1)}, 1, {v(vL)}\nv_lshl_add_u32 {v(t)}, {v(t+1)}, 4, {v(t)}\nv_bfe_u32 {v(t+1)}, {v(vL)}, 1, 1\nv_lshl_add_u32 {v(t)}, {v(t+1)}, 3, {v(t)}")
    P(f"s_lshr_b32 {s(sT0)}, {s(sW)}, 1\ns_lshl_b32 {s(sT0)}, {s(sT0)}, 13\ns_lshl_b32 {s(sT1)}, {s(sSH)}, 4\ns_add_u32 {s(sT0)}, {s(sT0)}, {s(sT1)}\ns_add_u32 {s(sT0)}, {s(sT0)}, {RA+32768}")
    P(f"v_add_u32 {v(t)}, {s(sT0)}, {v(t)}")
    P(f"v_and_b32 {v(t+1)}, 16, {v(vL)}\nv_cmp_eq_u32 vcc, 0, {v(t+1)}\nv_mov_b32 {v(t+3)}, {s(sONE)}")
    KB = [T, T + 8, ACC1, ACC1 + 8]
    def kr(J):
        for tt in range(2):
            P(f"ds_read_b64_tr_b16 {v(KB[J&3]+2*tt,2)}, {v(t)} offset:{1024*J+256*tt}")
            P(f"ds_read_b64_tr_b16 {v(KB[J&3]+4+2*tt,2)}, {v(t+2)} offset:{1024*J+256*tt}")
    kr(0); kr(1); kr(2)
    for J in range(8):
        for i in range(4): P(f"v_cndmask_b32 {v(KB[J&3]+i)}, {v(t+3)}, {v(KB[J&3]+i)}, vcc")
        if J + 3 < 8: kr(J + 3)
        P(mfma(ACC0, KB[J&3], KB[J&3] + 4, "0" if J == 0 else None))
    P(f"v_and_b32 {v(t)}, 31, {v(vL)}\nv_lshlrev_b32 {v(t)}, 2, {v(t)}\nv_lshrrev_b32 {v(t+1)}, 5, {v(vL)}\nv_lshl_add_u32 {v(t+1)}, {v(t+1)}, 9, {v(t)}")
    P(f"s_lshl_b32 {s(sT0)}, {s(sG)}, 4\ns_add_u32 {s(sT0)}, {s(sT0)}, {s(sRT)}\ns_mul_i32 {s(sT0)}, {s(sT0)}, {KVP_SZ}\ns_add_u32 {s(sT0)}, {s(sT0)}, {WS_KVP}")
    P(f"s_lshl_b32 {s(sT1)}, {s(sW)}, 7\ns_add_u32 {s(sT1)}, {s(sT1)}, {s(sT0)}\ns_add_u32 {s(sT1)}, {s(sT1)}, 8192")
    P(f"s_add_u32 {s(sT0)}, {s(sT0)}, {s(sM0x)}")
    for r in range(8):
        P(f"buffer_store_dword {v(ACC0+r)}, {v(t+1)}, {s(SWS,4)}, {s(sT0)} offen offset:{((r&3)+8*(r>>2))*128} sc1")
    P(f"buffer_store_dword {v(ACC0+8)}, {v(t)}, {s(SWS,4)}, {s(sT1)} offen sc1 ; tag=kv")
    P.cond_end()
    P("L_nkv:")
S.blk[72] = kvblock
S.pre[94] += ["s_waitcnt lgkmcnt(0)", "s_barrier"]
S.post[94] += [f"ds_read_b128 {v(CSR,4)}, {v(VCSA)} offset:2048"] + phi_load(1, T + 8)
run_sched(S, [ACC0, ACC1, ACC2])
stamp("sub2")
def kvflag():
    P(f"s_cmp_lt_u32 {s(sW)}, 4")
    P("s_cbranch_scc0 L_nkf")
    P.cond_begin("lo4")
    P(".waitvm kv")
    P(f"s_lshl_b32 {s(sT0)}, {s(sG)}, 8\ns_lshl_b32 {s(sT1)}, {s(sRT)}, 4\ns_add_u32 {s(sT0)}, {s(sT0)}, {s(sT1)}\ns_add_u32 {s(sT0)}, {s(sT0)}, {s(sW34)}\ns_add_u32 {s(sT0)}, {s(sT0)}, {WS_KVF}")
    P(f"v_mov_b32 {v(VFV)}, 1")
    P(f"buffer_store_dword {v(VFV)}, {v(VZ)}, {s(SWS,4)}, {s(sT0)} offen sc1")
    P.cond_end()
    P("L_nkf:")
kvflag()
PQ = WF
P.add(aug(ACC2, CSR, None))
bd = sum([b_dma(kk) for kk in (1, 2, 7, 8)], [])
for g_ in bd[:2]: P.add(g_)
for i in range(8): P(f"v_cvt_pk_bf16_f32 {v(T+i)}, {v(ACC2+2*i)}, {v(ACC2+2*i+1)}")
P(mfma(ACC1, AX, T, "0"))
P(mfma(ACC2, T + 8, T + 4, "0"))
for g_ in bd[2:4]: P.add(g_)
P.add(interleave(bd[4:], softmax(ACC1, PQ, LS) + softmax(ACC2, PQ + 8, LS)))
stamp("qsm")
P(f"s_cmp_eq_u32 {s(sW)}, 7")
P("s_cbranch_scc0 L_nkp")
P.cond_begin("w7b")
P(f"s_lshl_b32 {s(sT2)}, {s(sG)}, 8\ns_add_u32 {s(sT2)}, {s(sT2)}, {WS_KVF}\nv_lshlrev_b32 {v(T+1)}, 2, {v(vL)}\nv_mov_b32 {v(T)}, 0")
spin("L_spkv", f"buffer_load_dword {v(T)}, {v(T+1)}, {s(SWS,4)}, {s(sT2)} offen sc1", f"v_cmp_ne_u32 vcc, 1, {v(T)}")
P.cond_end()
P("L_nkp:")
P("s_barrier")
stamp("kvseen")
G = XF
P(f"s_mul_i32 {s(sT2)}, {s(sG)}, {16*KVP_SZ}\ns_add_u32 {s(sT2)}, {s(sT2)}, {WS_KVP}")
P(f"s_lshl_b32 {s(sT0)}, {s(sW)}, 10\ns_add_u32 {s(sT0)}, {s(sT0)}, {s(sT2)}\ns_lshl_b32 {s(sT1)}, {s(sRT)}, 1")
P(f"v_lshrrev_b32 {v(T)}, 3, {v(vL)}\nv_mul_u32_u24 {v(T)}, {KVP_SZ}, {v(T)}\nv_and_b32 {v(T+1)}, 7, {v(vL)}\nv_lshl_add_u32 {v(T)}, {v(T+1)}, 4, {v(T)}")
for r in range(16):
    P(f"s_and_b32 {s(sT1)}, {s(sT1)}, 15\ns_mul_i32 {s(sD0)}, {s(sT1)}, {KVP_SZ}\ns_add_u32 {s(sD0)}, {s(sD0)}, {s(sT0)}\ns_add_u32 {s(sT1)}, {s(sT1)}, 1")
    P(f"buffer_load_dwordx4 {v(G+4*r,4)}, {v(VL16)}, {s(SWS,4)}, {s(sD0)} offen sc1")
P(f"s_lshr_b32 {s(sT0)}, {s(sW)}, 1\ns_lshl_b32 {s(sT0)}, {s(sT0)}, 7\ns_add_u32 {s(sT0)}, {s(sT0)}, {s(sT2)}\ns_add_u32 {s(sT0)}, {s(sT0)}, 8192\ns_add_u32 {s(sT1)}, {s(sT0)}, {8*KVP_SZ}")
P(f"buffer_load_dwordx4 {v(G+64,4)}, {v(T)}, {s(SWS,4)}, {s(sT0)} offen sc1")
P(f"buffer_load_dwordx4 {v(G+68,4)}, {v(T)}, {s(SWS,4)}, {s(sT1)} offen sc1")
P(f"v_bfe_u32 {v(T+2)}, {v(vL)}, 2, 1\nv_lshlrev_b32 {v(T+2)}, 9, {v(T+2)}\nv_bfe_u32 {v(T+3)}, {v(vL)}, 1, 1\nv_lshl_add_u32 {v(T+2)}, {v(T+3)}, 10, {v(T+2)}")
P(f"v_and_b32 {v(T+3)}, 1, {v(vL)}\nv_lshl_add_u32 {v(T+2)}, {v(T+3)}, 3, {v(T+2)}")
P(f"s_lshr_b32 {s(sT0)}, {s(sW)}, 1\ns_lshl_b32 {s(sT0)}, {s(sT0)}, 11\ns_add_u32 {s(sT0)}, {s(sT0)}, {L_KVB}\nv_add_u32 {v(T+2)}, {s(sT0)}, {v(T+2)}")
P(f"v_lshrrev_b32 {v(T+3)}, 3, {v(vL)}\ns_lshl_b32 {s(sT0)}, {s(sSH)}, 6\nv_lshl_add_u32 {v(T+3)}, {v(T+3)}, 4, {v(T+2)}\nv_add_u32 {v(T+3)}, {s(sT0)}, {v(T+3)}")
for r in range(1, 16):
    for i in range(0, 4, 2): P(f"v_pk_add_f32 {v(G+i,2)}, {v(G+i,2)}, {v(G+4*r+i,2)}")
P(f"v_cvt_pk_bf16_f32 {v(G)}, {v(G)}, {v(G+1)}\nv_cvt_pk_bf16_f32 {v(G+1)}, {v(G+2)}, {v(G+3)}")
P(f"ds_write_b64 {v(T+3)}, {v(G,2)}")
Z = G + 64
for i in range(4): P(f"v_add_f32 {v(Z+i)}, {v(Z+i)}, {v(Z+4+i)}")
for i in range(4): P(f"v_add_f32_dpp {v(Z+i)}, {v(Z+i)}, {v(Z+i)} row_ror:8 row_mask:0xf bank_mask:0xf")
for sw in ("v_permlane16_swap_b32", "v_permlane32_swap_b32"):
    for i in range(4): P(f"v_mov_b32 {v(Z+4+i)}, {v(Z+i)}")
    for i in range(4): P(f"{sw} {v(Z+i)}, {v(Z+4+i)}")
    for i in range(4): P(f"v_add_f32 {v(Z+i)}, {v(Z+i)}, {v(Z+4+i)}")
P(f"v_cvt_pk_bf16_f32 {v(Z)}, {v(Z)}, {v(Z+1)}\nv_cvt_pk_bf16_f32 {v(Z+1)}, {v(Z+2)}, {v(Z+3)}")
P(f"ds_write_b64 {v(T+2)}, {v(Z,2)} offset:256")
P(f"v_and_b32 {v(T)}, 31, {v(vL)}\nv_min_u32 {v(T)}, 16, {v(T)}\nv_and_b32 {v(T+1)}, 32, {v(vL)}\nv_add_u32 {v(T)}, {v(T)}, {v(T+1)}\nv_lshlrev_b32 {v(T)}, 4, {v(T)}")
P(f"s_lshl_b32 {s(sT0)}, {s(sHALF)}, 12\ns_add_u32 {s(sT0)}, {s(sT0)}, {L_KVB}\nv_add_u32 {v(T)}, {s(sT0)}, {v(T)}")
P("s_waitcnt lgkmcnt(0)")
P("s_barrier")
for i in range(4): P(f"ds_read_b128 {v(G+4*i,4)}, {v(T)} offset:{1024*i}")
P(mfma(ACC0, G, PQ, "0")); P(mfma(ACC1, G + 8, PQ + 8, "0"))
P(mfma(ACC0, G + 4, PQ + 4)); P(mfma(ACC1, G + 12, PQ + 12))
P(f"s_lshl_b32 {s(sT0)}, {s(sG)}, 2\ns_lshl_b32 {s(sT1)}, {s(sHALF)}, 1\ns_add_u32 {s(sT0)}, {s(sT0)}, {s(sT1)}\ns_add_u32 {s(sT0)}, {s(sT0)}, 112\ns_lshl_b32 {s(sT0)}, {s(sT0)}, 10\ns_add_u32 {s(sT0)}, {s(sT0)}, {s(sHo)}")
for hl, acc in enumerate((ACC0, ACC1)):
    P(f"v_add_f32 {v(acc+8)}, {f2u(1e-6):#x}, {v(acc+8)}\nv_rcp_f32 {v(acc+8)}, {v(acc+8)}")
    for i in range(8): P(f"v_mul_f32 {v(acc+i)}, {v(acc+i)}, {v(acc+8)}")
    for i in range(4): P(f"v_cvt_pk_bf16_f32 {v(T+4*hl+i)}, {v(acc+2*i)}, {v(acc+2*i+1)}")
    P(f"buffer_store_dwordx4 {v(T+4*hl,4)}, {v(VL16)}, {s(SWS,4)}, {s(sT0)} offen offset:{1024*hl} sc1 ; tag=hl")
for kk in (3, 4, 5, 6):
    for g_ in b_dma(kk): P.add(g_)
P.add(flag(4, "hl"))
stamp("p1end")
P("s_waitcnt vmcnt(0)")
P("s_branch L_p2")

P("L_ffn:")
P(".reset")
setup(True)
MC = ACC2; CSF = ACC2 + 4
S = Sched(112)
common_sched(S, True, None, MC)
S.post[30] += [f"ds_read_b128 {v(CSF,4)}, {v(VCSA)}"]
S.post[31] += stamp_i("pass1")
fill = stats_final() + aug(ACC0, CSF, BIAS)
fill += [f"v_mul_f32 {v(K1)}, {f2u(GC1):#x}, {v(RSTD)}", f"v_mul_f32 {v(K2)}, {v(RSTD)}, {v(RSTD)}",
         f"v_mul_f32 {v(K2)}, {v(K2)}, {v(RSTD)}", f"v_mul_f32 {v(K2)}, {f2u(GC2):#x}, {v(K2)}"]
fill += gelu(ACC0, 16, sH0, 0, "h1") + [f"s_add_u32 {s(sH0)}, {s(sH0)}, 4096"]
S.spread(fill, 32, 64)
S.post[62] += [f"ds_read_b128 {v(CSF,4)}, {v(VCSA)} offset:1024"]
S.post[63] += stamp_i("sub1")
S.dmas(b_dma(0), 58)
fill = aug(ACC1, CSF, BIAS + 1) + gelu(ACC1, 16, sH0, 0, "h2") + [f"s_add_u32 {s(sH0)}, {s(sH0)}, 4096"]
S.spread(fill, 64, 96)
S.dmas(sum([w3quarter(q, 3584) for q in range(4)], []) + b_dma(1) + b_dma(2), 66, 2)
S.post[76] += flag(1, "h1")
S.pre[94] += [".waitvm w3 lgkm0", "s_barrier"]
S.post[94] += [f"ds_read_b128 {v(CSF,4)}, {v(VCSA)} offset:2048"]
S.post[95] += stamp_i("sub2")
fill = aug(ACC0, CSF, BIAS + 2) + gelu(ACC0, 16, sH0, 0, "h3")
S.spread(fill, 96, 112)
S.pre[98] += ["s_barrier"]
S.dmas(sum([b_dma(kk) for kk in (3, 4, 5)], []), 98, 2)
S.post[104] += flag(2, "h2")
for i in range(0, 16, 2): S.post[96 + i] += [m16(MC, SEL, WF + 4 * (i & 3), "0" if i == 0 else None)]
run_sched(S, [ACC0, ACC1, ACC0, ACC1])
t = T + 16
P(f"v_and_b32 {v(t)}, 31, {v(vL)}\ns_lshl_b32 {s(sT0)}, {s(sHALF)}, 4\nv_xor_b32 {v(t)}, {s(sT0)}, {v(t)}\nv_lshlrev_b32 {v(t)}, 4, {v(t)}\nv_add_u32 {v(t)}, {L_CS+3072}, {v(t)}")
P(f"v_add_u32 {v(t+1)}, {s(sW34)}, {v(VCSA)}")
P(f"ds_write_b32 {v(t+1)}, {v(MC)} offset:3072")
P(f"s_add_u32 {s(sT1)}, {s(sM4)}, {KAREA[6]}\ns_xor_b32 {s(sT0)}, {s(sT1)}, 16384\nv_add_u32 {v(t+1)}, {s(sT0)}, {v(VL16)}\nv_add_u32 {v(AB)}, {s(sT1)}, {v(VL16)}")
P(f"ds_write_b128 {v(t+1)}, {v(ACC1+8,4)}\nds_write_b128 {v(t+1)}, {v(ACC1+12,4)} offset:1024")
P("s_waitcnt lgkmcnt(0)")
P("s_barrier")
stamp("sub3")
P(f"ds_read_b128 {v(CSF,4)}, {v(t)}")
P(f"ds_read_b128 {v(ACC0,4)}, {v(AB)}\nds_read_b128 {v(ACC0+4,4)}, {v(AB)} offset:1024")
for g_ in b_dma(7): P.add(g_)
P.add(aug(ACC1, CSF, BIAS + 3))
P("s_waitcnt lgkmcnt(0)")
for g_ in b_dma(6) + b_dma(8): P.add(g_)
for i in range(8): P(f"v_add_f32 {v(ACC1+i)}, {v(ACC1+i)}, {v(ACC0+i)}")
P.add(flag(3, "h3"))
P.add(gelu(ACC1, 8, sH3, 0, "h4"))
stamp("x7")
P.add(flag(4, "h4"))
stamp("p1end")
P("s_waitcnt vmcnt(0)")

P("L_p2:")
P(".reset")
AC = 64; NAF = 8
def AFq(kk, rb): return XF + 4 + 8 * (2 * (kk % NAF) + rb)
def BTq(kk, nb): return XF + 8 * (2 * (kk & 1) + nb)
BA = 2
VFL, VXR, VRED, VL16B, VPF, VPO = 8, 9, 10, 11, 14, 15
VWR = 20
XR, B2R = 32, 36
P(f"v_and_b32 {v(T)}, 1, {v(vL)}\nv_bfe_u32 {v(T+1)}, {v(vL)}, 1, 1\nv_lshlrev_b32 {v(T)}, 2, {v(T)}\nv_lshl_add_u32 {v(VFL)}, {v(T+1)}, 4, {v(T)}")
ldf = f"buffer_load_dword {v(VPF)}, {v(VFL)}, {s(SWS,4)}, {s(sFL)} offen offset:1024 sc1"
ldo = f"buffer_load_dword {v(VPO)}, {v(VFL)}, {s(SWS,4)}, {s(sFL)} offen sc1"
P(ldf)
P(f"v_bfe_u32 {v(T)}, {v(vL)}, 2, 2\nv_lshrrev_b32 {v(T+1)}, 5, {v(vL)}\nv_and_b32 {v(T+2)}, 63, {v(AW)}")
P(f"v_lshl_add_u32 {v(T+4)}, {v(T+1)}, 2, {v(T)}\nv_lshl_add_u32 {v(T+4)}, {v(T+4)}, 7, {v(T+2)}\nv_lshrrev_b32 {v(T+5)}, 1, {v(T)}")
P(f"v_lshl_add_u32 {v(T+4)}, {v(T+5)}, 6, {v(T+4)}\nv_xor_b32 {v(T+5)}, 64, {v(T+4)}")
P(f"s_add_u32 {s(sT0)}, {s(sM4)}, 65536\ns_add_u32 {s(sT1)}, {s(sM0x)}, {RC}")
for nb in range(2):
    P(f"v_add_u32 {v(BA+nb)}, {s(sM4)}, {v(T+4+nb)}\nv_add_u32 {v(BA+2+nb)}, {s(sT0)}, {v(T+4+nb)}\nv_add_u32 {v(BA+4+nb)}, {s(sT1)}, {v(T+4+nb)}")
def b_reads(kk):
    slot = kk % 9
    if slot == 0: var, off = 2, 0
    else: var, off = (KAREA[slot] >> 16), KAREA[slot] & 0xffff
    return [f".waitvm b{kk}"] + [f"ds_read_b64_tr_b16 {v(BTq(kk,nb)+2*tt,2)}, {v(BA+2*var+nb)} offset:{off+1024*tt}" for nb in range(2) for tt in range(2)]
P(f"v_lshrrev_b32 {v(T)}, 3, {v(vL)}\nv_and_b32 {v(T+1)}, 7, {v(vL)}\nv_lshlrev_b32 {v(T+1)}, 4, {v(T+1)}\nv_lshl_add_u32 {v(VXR)}, {v(T)}, 10, {v(T+1)}")
P(f"s_lshl_b32 {s(sT0)}, {s(sN)}, 7")
P(f"buffer_load_dwordx4 {v(XR,4)}, {v(VXR)}, {s(SX,4)}, {s(sOo)} offen")
P(f"buffer_load_dwordx4 {v(B2R,4)}, {v(T+1)}, {s(SB2,4)}, {s(sT0)} offen")
P(f"v_add_u32 {v(VL16B)}, {HF_RB}, {v(VL16)}")
P.add(b_reads(0))
def a_loads(kk):
    so = sA0 if kk < 14 else sA1
    return rot_k(kk, sT0) + [f"s_lshl_b32 {s(sT0)}, {s(sT0)}, 10", f"s_add_u32 {s(sT0)}, {s(sT0)}, {s(so)}",
          f"buffer_load_dwordx4 {v(AFq(kk,0),4)}, {v(VL16)}, {s(SWS,4)}, {s(sT0)} offen sc1",
          f"buffer_load_dwordx4 {v(AFq(kk,1),4)}, {v(VL16B)}, {s(SWS,4)}, {s(sT0)} offen sc1"]
def need(level, reg, ld):
    P(f"v_mov_b32 {v(reg)}, {v(reg)}")
    spin(P.lab("L_sp"), ld, f"v_cmp_gt_u32 vcc, {level}, {v(reg)}")
DA = int(OPT.get("da", 6))
gate = {0: (2, VPF, ldf), 8: (3, VPF, ldf), 12: (4, VPF, ldf), 14: (4, VPO, ldo)}
prepoll = {5: ldf, 9: ldf, 11: ldo}
def a_issue(kk):
    if kk in prepoll: P(prepoll[kk])
    if kk in gate: need(*gate[kk])
    if kk == 0: stamp("hseen")
    P.add(a_loads(kk))
for kk in range(DA): a_issue(kk)
for kk in range(18):
    if kk + 1 < 18: P.add(b_reads(kk + 1))
    for nb in range(2):
        for rb in range(2):
            P(mfma(AC + 16 * (2 * nb + rb), BTq(kk, nb), AFq(kk, rb), "0" if kk == 0 else None))
    if kk + DA < 18: a_issue(kk + DA)
    if kk + 9 < 18:
        for g_ in b_dma(kk + 9): P.add(g_)
stamp("p2mm")
for q in range(4):
    P(f"v_xor_b32 {v(VWR+q)}, {64*q}, {v(VL16)}\nv_add_u32 {v(VWR+q)}, {s(sM4)}, {v(VWR+q)}")
    P(f"v_add_u32 {v(T+q)}, 65536, {v(VWR+q)}")
for blk in range(4):
    for q in range(4):
        ad = VWR + q if blk < 2 else T + q
        P(f"ds_write_b128 {v(ad)}, {v(AC+16*blk+4*q,4)} offset:{(blk&1)*32768+1024*q}")
P(f"v_lshrrev_b32 {v(T+4)}, 3, {v(vL)}\ns_lshl_b32 {s(sT0)}, {s(sW34)}, 1\nv_add_u32 {v(T+4)}, {s(sT0)}, {v(T+4)}")
P(f"v_and_b32 {v(T+5)}, 3, {v(vL)}\nv_lshlrev_b32 {v(T+6)}, 2, {v(T+5)}\nv_xor_b32 {v(T+4)}, {v(T+4)}, {v(T+6)}\nv_lshlrev_b32 {v(T+4)}, 4, {v(T+4)}\nv_lshl_add_u32 {v(T+4)}, {v(T+5)}, 10, {v(T+4)}")
P(f"v_bfe_u32 {v(T+5)}, {v(vL)}, 2, 1\nv_lshl_add_u32 {v(T+4)}, {v(T+5)}, 16, {v(T+4)}\ns_lshl_b32 {s(sT0)}, {s(sHALF)}, 15\nv_add_u32 {v(VRED)}, {s(sT0)}, {v(T+4)}")
F = T + 8
for i in range(4):
    P(f"v_lshlrev_b32 {v(F+2*i)}, 16, {v(XR+i)}\nv_and_b32 {v(F+2*i+1)}, 0xffff0000, {v(XR+i)}")
    P(f"v_lshlrev_b32 {v(T+4)}, 16, {v(B2R+i)}\nv_and_b32 {v(T+5)}, 0xffff0000, {v(B2R+i)}")
    P(f"v_add_f32 {v(F+2*i)}, {v(F+2*i)}, {v(T+4)}\nv_add_f32 {v(F+2*i+1)}, {v(F+2*i+1)}, {v(T+5)}")
P("s_waitcnt lgkmcnt(0)")
P("s_barrier")
R = XF
for ww in range(8):
    for hf in range(2): P(f"ds_read_b128 {v(R+8*ww+4*hf,4)}, {v(VRED)} offset:{4096*ww+512*hf}")
for ww in range(8):
    for i in range(0, 8, 2): P(f"v_pk_add_f32 {v(F+i,2)}, {v(F+i,2)}, {v(R+8*ww+i,2)}")
for i in range(4): P(f"v_cvt_pk_bf16_f32 {v(XR+i)}, {v(F+2*i)}, {v(F+2*i+1)}")
P(f"buffer_store_dwordx4 {v(XR,4)}, {v(VXR)}, {s(SOUT,4)}, {s(sOo)} offen")
if STAMP:
    stamp("end")
    P("s_waitcnt lgkmcnt(0)")
    n = 12
    P(f"s_lshl_b32 {s(sT0)}, s2, 3\ns_add_u32 {s(sT0)}, {s(sT0)}, {s(sW)}\ns_lshl_b32 {s(sT0)}, {s(sT0)}, 6\ns_add_u32 {s(sT0)}, {s(sT0)}, {WS_STAMP}")
    P(f"v_mov_b32 v2, 0\ns_mov_b64 exec, 1")
    for i in range(n):
        P(f"v_mov_b32 v3, {s(sST+2*i)}\nbuffer_store_dword v3, v2, {s(SWS,4)}, {s(sT0)} offen offset:{4*i}")
P("L_end:")
P("s_endpgm")

ins = P.ins
if OPT.get("nodma"): ins = [I for I in ins if I.kind != "dma"]
if OPT.get("notr"): ins = [I for I in ins if not I.op.startswith("ds_read_b64_tr")]
if OPT.get("nofmac"): ins = [I for I in ins if not (I.op.startswith("v_fmac") or (I.op == "v_and_b32" and "0xffff0000" in I.text) or (I.op == "v_lshlrev_b32" and I.ops[1] == "16"))]
if OPT.get("nom16"): ins = [I for I in ins if "16x16x32" not in I.op]
if OPT.get("nomfma"): ins = [I for I in ins if I.kind != "mfma"]
if STAMP:
    for I in ins:
        if I.op in ("s_memrealtime", "s_memtime"): I.kind = "salu"
ins = auto_wait(ins)
st = []
ins = hazards(ins, st)
hdr = open("parallel_sum__linear_kernel_hedgehog__dense_activation_gelu__prompt.s.ref").read().split("; Override")[0]
out = hdr + f"; @launch grid=(256,1,1) block=(512,1,1) lds={LDS_SIZE}\n"
out += f'.amdgcn_target "amdgcn-amd-amdhsa--gfx950"\n.text\n.globl {NAME}\n.p2align 8\n.type {NAME},@function\n{NAME}:\n'
out += render(ins)
out += f""".section .rodata,"a"
.p2align 6
.amdhsa_kernel {NAME}
  .amdhsa_next_free_vgpr 256
  .amdhsa_next_free_sgpr 102
  .amdhsa_accum_offset 256
  .amdhsa_group_segment_fixed_size 0
  .amdhsa_kernarg_size 96
  .amdhsa_user_sgpr_count 2
  .amdhsa_user_sgpr_kernarg_segment_ptr 1
  .amdhsa_system_sgpr_workgroup_id_x 1
.end_amdhsa_kernel
"""
open(sys.argv[1], "w").write(out)
print(f"instrs={sum(1 for I in ins if I.kind not in ('label','dir'))} nop-sites={len(st)} nop-states={sum(n for n,_ in st)}", file=sys.stderr)
if OPT.get("nops"):
    for n, tx in st: print(n, tx, file=sys.stderr)
```

```python
import sys, math, struct
from ir import *

NAME = "parallel_sum__linear_kernel_hedgehog__dense_activation_gelu__prompt_kernel"
OPT = dict(a.split("=") for a in sys.argv[2:] if "=" in a)
STAMP = int(OPT.get("stamp", 0))

def f2u(x): return struct.unpack("<I", struct.pack("<f", x))[0]
LOG2E = 1.4426950408889634
GC1 = -2.0 * LOG2E * math.sqrt(2.0 / math.pi)
GC2 = GC1 * 0.044715

HF_RB = 144 * 1024
WS_KVP = 0xA00000
KVP_SZ = 8704
WS_FLG = 0xC00000
WS_KVF = 0xC08000
WS_STAMP = 0xD00000
WS_SIZE = 0x1000000
RA, RB, RC = 0, 65536, 131072
L_KVB = 147456
L_CS = 155648
L_ST = L_CS + 4096
L_WPHI = L_CS + 6144
LDS_SIZE = 163840
SPIN_MAX = 1 << 15

sW, sRT, sG, sM, sN = 3, 4, 5, 6, 7
SX, SWT, SWS, SW2, SWO, SOUT, SDBG, SAUX, SB2 = 8, 12, 16, 20, 24, 28, 32, 36, 40
sXo, sWo, sM0x, sT0, sT1, sSIG, sONE, sFO, sHALF, sHo, sWq, sW3, sT2, sCNT, sW34, sT3 = range(44, 60)
sEX = 60
sH0, sH3, sM4, sK = 62, 63, 64, 65
sST = 66
sB2o, sBOo, sFL, sOo, sA0, sA1, sR4, sSH = range(90, 98)
sROT, sC1, sD0, sD1 = 98, 99, 100, 101
VCSA = 0; vL = 1
AX = 2; AW = 6; AB = 10; VZ, VFV = 12, 13
VX0, VX1, VW, VB, VW3 = 14, 15, 16, 17, 18
VSTA, S1, S2, CS0 = 19, 20, 21, 22
RSTD, STD, K1, K2, VL16 = 23, 24, 25, 26, 27
BAUG, AAUG, SEL, BIAS = 28, 32, 36, 40
T = 44
WF = 64
ACC0, ACC1, ACC2 = 80, 96, 112
XF = 128

P = Prog()
STI = dict(start=0, kernarg=1, it0=2, pass1=3, sub1=4, sub2=5, qsm=6, sub3=6, kvseen=7, x7=7, p1end=8, hseen=9, p2mm=10, end=11)
def stamp_i(name):
    if not STAMP: return []
    i = STI[name]
    return [f"{'s_memrealtime' if STAMP == 1 else 's_memtime'} {s(sST + 2*i, 2)} ; stamp {i} {name}"]
def stamp(name): P.add(stamp_i(name))

def mfma(d, a, b, c=None):
    return f"v_mfma_f32_32x32x16_bf16 {v(d,16)}, {v(a,4)}, {v(b,4)}, {v(d,16) if c is None else c}"
def m16(d, a, b, c=None):
    return f"v_mfma_f32_16x16x32_bf16 {v(d,4)}, {v(a,4)}, {v(b,4)}, {v(d,4) if c is None else c}"
def srd(base, nbytes):
    P(f"s_mov_b32 {s(base+2)}, {nbytes}\ns_mov_b32 {s(base+3)}, 0x20000")
def lines(t): return [l for l in t.split("\n") if l.strip()]

P("s_cmp_ge_u32 s2, 256")
P("s_cbranch_scc1 L_end")
stamp("start")
P(f"s_load_dwordx2 {s(SX,2)}, s[0:1], 0")
P(f"s_load_dwordx2 {s(SWS,2)}, s[0:1], 88")
P(f"s_load_dwordx2 {s(SDBG,2)}, s[0:1], 80")
P(f"s_load_dwordx2 {s(SW2,2)}, s[0:1], 56")
P(f"s_load_dwordx2 {s(SWO,2)}, s[0:1], 24")
P(f"s_load_dwordx2 {s(SOUT,2)}, s[0:1], 72")
P(f"s_load_dwordx2 {s(SB2,2)}, s[0:1], 64")
P(f"v_lshrrev_b32 v2, 6, v0")
P(f"v_and_b32 {v(vL)}, 63, v0")
P(f"s_and_b32 {s(sT0)}, s2, 7")
P(f"s_lshr_b32 {s(sT1)}, s2, 3")
P(f"v_readfirstlane_b32 {s(sW)}, v2")
P(f"s_lshr_b32 {s(sRT)}, {s(sT0)}, 2\ns_lshl_b32 {s(sRT)}, {s(sRT)}, 3\ns_and_b32 {s(sT2)}, {s(sT1)}, 7\ns_add_u32 {s(sRT)}, {s(sRT)}, {s(sT2)}")
P(f"s_and_b32 {s(sG)}, {s(sT0)}, 3\ns_lshl_b32 {s(sG)}, {s(sG)}, 1\ns_lshr_b32 {s(sT2)}, {s(sT1)}, 4\ns_add_u32 {s(sG)}, {s(sG)}, {s(sT2)}")
P(f"s_lshl_b32 {s(sM)}, {s(sT0)}, 2\ns_and_b32 {s(sT2)}, {s(sT1)}, 3\ns_add_u32 {s(sM)}, {s(sM)}, {s(sT2)}")
P(f"s_lshr_b32 {s(sN)}, {s(sT1)}, 2")
srd(SX, 2097152)
P(f"s_lshl_b32 {s(sM0x)}, {s(sW)}, 11")
P(f"v_lshrrev_b32 v2, 3, {v(vL)}\nv_and_b32 v3, 7, {v(vL)}\nv_lshrrev_b32 v4, 4, {v(vL)}")
P(f"v_xor_b32 v5, v3, v4\nv_lshlrev_b32 v5, 4, v5\nv_lshl_add_u32 {v(VX0)}, v2, 10, v5")
P(f"v_xor_b32 v5, 64, {v(VX0)}\nv_add_u32 {v(VX1)}, {8192-1024}, v5")
P(f"v_and_b32 v4, 1, v4\nv_lshlrev_b32 v4, 2, v4\nv_xor_b32 v4, v3, v4\nv_lshlrev_b32 v4, 4, v4")
P(f"v_lshl_add_u32 {v(VB)}, v2, 10, v4")
P(f"s_lshl_b32 {s(sXo)}, {s(sRT)}, 17\ns_lshl_b32 {s(sT2)}, {s(sW)}, 14\ns_add_u32 {s(sXo)}, {s(sXo)}, {s(sT2)}")
P(f"s_lshr_b32 {s(sT2)}, {s(sT1)}, 3\ns_lshl_b32 {s(sT2)}, {s(sT2)}, 1\ns_add_u32 {s(sROT)}, {s(sRT)}, {s(sT2)}\ns_and_b32 {s(sROT)}, {s(sROT)}, 7")
if OPT.get("norot"): P(f"s_mov_b32 {s(sROT)}, 0")
P(f"s_mov_b32 {s(sK)}, {s(sROT)}")
P(f"s_bitcmp1_b32 {s(sT1)}, 3")
P("s_cbranch_scc1 L_ffn")

def item1(it, pitch):
    q = it & 3
    return [[f"s_lshl_b32 {s(sD0)}, {s(sK)}, 7", f"s_add_u32 m0, {s(sM0x)}, {RA+q*16384}", f"s_add_u32 {s(sD0)}, {s(sD0)}, {s(sXo)}",
             f"buffer_load_dwordx4 {v(VX0)}, {s(SX,4)}, {s(sD0)} offen lds"],
            [f"s_mul_i32 {s(sD1)}, {s(sK)}, {64*pitch}",
             f"buffer_load_dwordx4 {v(VX1)}, {s(SX,4)}, {s(sD0)} offen offset:1024 lds"],
            [f"s_lshr_b32 {s(sD0)}, {s(sM0x)}, 1", f"s_add_u32 m0, {s(sD0)}, {RB+it*8192}", f"s_add_u32 {s(sD1)}, {s(sD1)}, {s(sWo)}",
             f"buffer_load_dwordx4 {v(VW)}, {s(SWT,4)}, {s(sD1)} offen lds ; tag=it{it}",
             f"s_add_u32 {s(sK)}, {s(sK)}, 1", f"s_and_b32 {s(sK)}, {s(sK)}, 7"]]
def wquarter(region, q, coloff, pitch, tag):
    return [[f"s_add_u32 {s(sD1)}, {s(sC1)}, {2*q}", f"s_and_b32 {s(sD1)}, {s(sD1)}, 7", f"s_mul_i32 {s(sD1)}, {s(sD1)}, {64*pitch}",
             f"s_add_u32 m0, {s(sM0x)}, {region+q*16384}", f"s_add_u32 {s(sD1)}, {s(sD1)}, {s(sWq)}"] +
            ([f"s_add_u32 {s(sD1)}, {s(sD1)}, {coloff}"] if coloff else []) +
            [f"buffer_load_dwordx4 {v(VW)}, {s(SWT,4)}, {s(sD1)} offen lds"],
            [f"s_add_u32 {s(sD1)}, {s(sD1)}, {8*pitch-1024}",
             f"buffer_load_dwordx4 {v(VW)}, {s(SWT,4)}, {s(sD1)} offen offset:1024 lds ; tag={tag}"]]
def w3quarter(q, pitch):
    return [[f"s_add_u32 {s(sD1)}, {s(sC1)}, {2*q}", f"s_and_b32 {s(sD1)}, {s(sD1)}, 7", f"s_mul_i32 {s(sD1)}, {s(sD1)}, {64*pitch}",
             f"s_lshr_b32 {s(sD0)}, {s(sM0x)}, 1", f"s_add_u32 m0, {s(sD0)}, {RA+q*8192}", f"s_add_u32 {s(sD1)}, {s(sD1)}, {s(sW3)}",
             f"buffer_load_dwordx4 {v(VW3)}, {s(SWT,4)}, {s(sD1)} offen lds ; tag=w3"]]

def spin(label, load, cmp):
    P(f"s_mov_b32 {s(sCNT)}, 0")
    P(f"{label}:")
    P(cmp)
    P(f"s_add_u32 {s(sCNT)}, {s(sCNT)}, 1")
    P(f"s_cbranch_vccz {label}_ok")
    P(f"s_cmp_gt_u32 {s(sCNT)}, {SPIN_MAX}")
    P(f"s_cbranch_scc1 {label}_ok")
    P("s_sleep 1")
    old = P._cond; P._cond = label
    P(load)
    P("s_waitcnt vmcnt(0)")
    P._cond = old
    P(f"s_branch {label}")
    P(f"{label}_ok:")

def gelu(acc, n, soff, off, tagn, t0=T):
    L = []
    for g4 in range(0, n, 4):
        t = t0 + 8 + (g4 & 4)
        a = [acc + g4 + i for i in range(4)]
        L += [f"v_mul_f32 {v(t+i)}, {v(a[i])}, {v(a[i])}" for i in range(4)]
        L += [f"v_fma_f32 {v(t+i)}, {v(t+i)}, {v(K2)}, {v(K1)}" for i in range(4)]
        L += [f"v_mul_f32 {v(t+i)}, {v(a[i])}, {v(t+i)}" for i in range(4)]
        L += [f"v_exp_f32 {v(t+i)}, {v(t+i)}" for i in range(4)]
        L += [f"v_fma_f32 {v(t+i)}, {v(t+i)}, {v(STD)}, {v(STD)}" for i in range(4)]
        L += [f"v_rcp_f32 {v(t+i)}, {v(t+i)}" for i in range(4)]
        L += [f"v_mul_f32 {v(t+i)}, {v(a[i])}, {v(t+i)}" for i in range(4)]
        pk = t0 + (g4 >> 1)
        L += [f"v_cvt_pk_bf16_f32 {v(pk)}, {v(t)}, {v(t+1)}", f"v_cvt_pk_bf16_f32 {v(pk+1)}, {v(t+2)}, {v(t+3)}"]
        if g4 & 4:
            j = g4 >> 3
            L += [f"buffer_store_dwordx4 {v(t0+4*j,4)}, {v(VL16)}, {s(SWS,4)}, {s(soff)} offen offset:{off+1024*j} sc1 ; tag={tagn}"]
    return L

def sum4(d, r):
    return [f"v_add_f32 {v(d)}, {v(r)}, {v(r+1)}", f"v_add_f32 {v(r+2)}, {v(r+2)}, {v(r+3)}", f"v_add_f32 {v(d)}, {v(d)}, {v(r+2)}"]

MS, U = T + 4, T + 16
CSR = T + 12
MC = AAUG

def stats_final():
    t = T + 16
    return [f"v_add_f32 {v(S1)}, {v(MS)}, {v(MS+2)}", f"v_add_f32 {v(S2)}, {v(MS+1)}, {v(MS+3)}",
          f"v_mul_f32 {v(S1)}, {f2u(-1.0/512):#x}, {v(S1)}",
          f"v_mul_f32 {v(t)}, {v(S1)}, {v(S1)}",
          f"v_fma_f32 {v(S2)}, {v(S2)}, {s(sT3)}, -{v(t)}",
          f"v_max_f32 {v(S2)}, 0, {v(S2)}",
          f"v_add_f32 {v(S2)}, {f2u(1e-5):#x}, {v(S2)}",
          f"v_rsq_f32 {v(RSTD)}, {v(S2)}",
          f"v_cvt_pk_bf16_f32 {v(t)}, {v(S1)}, {v(S1)}",
          f"v_mul_f32 {v(STD)}, {v(S2)}, {v(RSTD)}",
          f"v_and_b32 {v(t+1)}, 0xffff0000, {v(t)}",
          f"v_sub_f32 {v(t+1)}, {v(S1)}, {v(t+1)}",
          f"v_cvt_pk_bf16_f32 {v(BAUG)}, {v(S1)}, {v(t+1)}",
          f"v_cvt_pk_bf16_f32 {v(BAUG+1)}, {v(S1)}, {v(STD)}",
          f"v_and_b32 {v(t+1)}, 0xffff0000, {v(BAUG+1)}",
          f"v_sub_f32 {v(t+1)}, {v(STD)}, {v(t+1)}",
          f"v_cmp_gt_u32 vcc, 32, {v(vL)}",
          f"v_cvt_pk_bf16_f32 {v(BAUG+2)}, {v(t+1)}, 0",
          f"v_cndmask_b32 {v(BAUG)}, 0, {v(BAUG)}, vcc",
          f"v_cndmask_b32 {v(BAUG+1)}, 0, {v(BAUG+1)}, vcc",
          f"v_cndmask_b32 {v(BAUG+2)}, 0, {v(BAUG+2)}, vcc"]

def aug(acc, part, bias):
    t = T + 18; dst = AAUG
    L = sum4(CS0, part) + [f"v_cvt_pk_bf16_f32 {v(dst)}, {v(CS0)}, {v(CS0)}",
         f"v_and_b32 {v(t)}, 0xffff0000, {v(dst)}",
         f"v_sub_f32 {v(t)}, {v(CS0)}, {v(t)}"]
    if bias is None:
        L += [f"v_cvt_pk_bf16_f32 {v(dst+1)}, {v(t)}, 0"]
    else:
        L += [f"v_cvt_pk_bf16_f32 {v(t)}, {v(t)}, 0", f"v_mov_b32 {v(dst+2)}, {v(bias)}",
              f"v_lshl_or_b32 {v(dst+1)}, {v(bias)}, 16, {v(t)}"]
    return L + [mfma(acc, dst, BAUG)]

def flag(level, tag):
    return [f".waitvm {tag}", f"v_mov_b32 {v(VFV)}, {level}",
            f"buffer_store_dword {v(VFV)}, {v(VZ)}, {s(SWS,4)}, {s(sFO)} offen sc1"]

KAREA = [None, RA + 32768, RA + 32768 + 2048, RB, RB + 2048, RB + 32768, RB + 32768 + 2048, RA + 2048, RA]
def rot_k(kk, dst):
    if kk < 12: return [f"s_add_u32 {s(dst)}, {s(sR4)}, {kk}", f"s_and_b32 {s(dst)}, {s(dst)}, 3", f"s_add_u32 {s(dst)}, {s(dst)}, {s(sSH)}"] + \
                       ([f"s_add_u32 {s(dst)}, {s(dst)}, {kk & ~3}"] if kk & ~3 else [])
    if kk < 14: return [f"s_mul_i32 {s(dst)}, {s(sSH)}, 6", f"s_sub_u32 {s(dst)}, {kk}, {s(dst)}"]
    return [f"s_add_u32 {s(dst)}, {s(sR4)}, {kk-14}", f"s_and_b32 {s(dst)}, {s(dst)}, 3"]
def b_dma(kk):
    slot = kk % 9
    m0 = f"s_add_u32 m0, {s(sM4)}, {KAREA[slot]}" if slot else f"s_add_u32 m0, {s(sM0x)}, {RC}"
    sr, so = (SW2, sB2o) if kk < 14 else (SWO, sBOo)
    return [rot_k(kk, sD0) + [f"s_lshl_b32 {s(sD0)}, {s(sD0)}, 14", m0, f"s_add_u32 {s(sD0)}, {s(sD0)}, {s(so)}",
             f"buffer_load_dwordx4 {v(VB)}, {s(sr,4)}, {s(sD0)} offen lds"],
            [f"s_add_u32 {s(sD0)}, {s(sD0)}, {8192 - 1024}",
             f"buffer_load_dwordx4 {v(VB)}, {s(sr,4)}, {s(sD0)} offen offset:1024 lds ; tag=b{kk}"]]

def setup(ffn):
    pitch = 3584 if ffn else 3072
    tp = "f" if ffn else "a"
    P(f"s_load_dwordx2 {s(SWT,2)}, s[0:1], {40 if ffn else 8}")
    P(f"s_load_dwordx2 {s(SAUX,2)}, s[0:1], {48 if ffn else 16}")
    srd(SWT, 1835008 if ffn else 1572864)
    P(f"v_mul_u32_u24 {v(VW)}, {pitch}, v2\nv_add_u32 {v(VW)}, {v(VW)}, v4")
    if ffn:
        P(f"s_mul_i32 {s(sT0)}, {s(sG)}, 448\ns_and_b32 {s(sT1)}, {s(sG)}, 1\ns_lshl_b32 {s(sT2)}, {s(sT1)}, 6\ns_add_u32 {s(sWq)}, {s(sT0)}, {s(sT2)}")
        P(f"s_mul_i32 {s(sWo)}, {s(sW)}, {8*pitch}\ns_add_u32 {s(sWo)}, {s(sWo)}, {s(sWq)}")
    else:
        P(f"s_lshl_b32 {s(sWq)}, {s(sG)}, 7")
        P(f"s_mul_i32 {s(sWo)}, {s(sW)}, {8*pitch}\ns_add_u32 {s(sWo)}, {s(sWo)}, {s(sWq)}\ns_add_u32 {s(sWo)}, {s(sWo)}, 1024")
    P("s_waitcnt lgkmcnt(0)")
    stamp("kernarg")
    for g_ in item1(0, pitch): P.add(g_)
    srd(SWS, WS_SIZE); srd(SDBG, 256); srd(SW2, 1835008); srd(SWO, 524288); srd(SOUT, 2097152); srd(SB2, 1024); srd(SAUX, 3584 if ffn else 16384)
    P(f"v_lshlrev_b32 {v(VL16)}, 4, {v(vL)}")
    P(f"s_lshr_b32 {s(sHALF)}, {s(sW)}, 2")
    P(f"s_and_b32 {s(sW34)}, {s(sW)}, 3\ns_xor_b32 {s(sSIG)}, {s(sW34)}, {s(sHALF)}")
    if not ffn:
        for i in range(4): P(f"v_mov_b32 {v(T+i)}, 0")
        P(f"s_lshl_b32 {s(sT0)}, {s(sW)}, 8\ns_add_u32 {s(sT0)}, {s(sT0)}, s2\ns_sub_u32 {s(sT0)}, {s(sT0)}, 256\ns_cmp_lt_u32 {s(sT0)}, 8")
        P(f"s_cbranch_scc0 L_nzero")
        P.cond_begin("zw")
        P(f"s_lshl_b32 {s(sT0)}, s2, 12\ns_add_u32 {s(sT0)}, {s(sT0)}, {WS_FLG}")
        for i in range(4): P(f"buffer_store_dwordx4 {v(T,4)}, {v(VL16)}, {s(SWS,4)}, {s(sT0)} offen offset:{1024*i} sc1")
        P(f"s_lshl_b32 {s(sT0)}, s2, 8\ns_add_u32 {s(sT0)}, {s(sT0)}, {WS_KVF}\nv_lshlrev_b32 v3, 2, {v(vL)}")
        P(f"buffer_store_dword {v(T)}, v3, {s(SWS,4)}, {s(sT0)} offen sc1 ; tag=zf")
        P.cond_end()
        P(f"L_nzero:")
    for g_ in item1(1, pitch): P.add(g_)
    P(f"s_lshl_b32 {s(sT0)}, {s(sRT)}, 4\ns_add_u32 {s(sT0)}, {s(sT0)}, {s(sG)}\ns_lshl_b32 {s(sT0)}, {s(sT0)}, 7\ns_lshl_b32 {s(sT1)}, {s(sW)}, 2\ns_add_u32 {s(sT0)}, {s(sT0)}, {s(sT1)}")
    P(f"s_add_u32 {s(sFO)}, {s(sT0)}, {WS_FLG + (1024 if ffn else 0)}")
    P(f"s_lshl_b32 {s(sT0)}, {s(sRT)}, 2\ns_add_u32 {s(sT0)}, {s(sT0)}, {s(sW34)}\ns_mul_i32 {s(sHo)}, {s(sT0)}, {HF_RB}")
    if ffn:
        P(f"v_and_b32 v5, 31, {v(vL)}\nv_lshlrev_b32 v5, 1, v5")
        P(f"s_lshl_b32 {s(sT0)}, {s(sHALF)}, 6\ns_add_u32 {s(sT0)}, {s(sT0)}, {s(sWq)}")
        for i in range(3): P(f"buffer_load_ushort {v(BIAS+i)}, v5, {s(SAUX,4)}, {s(sT0)} offen offset:{128*i}")
        P(f"s_lshl_b32 {s(sT0)}, {s(sT0)}, 5\ns_add_u32 {s(sH0)}, {s(sHo)}, {s(sT0)}")
        P(f"s_mul_i32 {s(sW3)}, {s(sG)}, 448\ns_add_u32 {s(sT0)}, {s(sW3)}, 384\ns_bitcmp1_b32 {s(sG)}, 0\ns_cselect_b32 {s(sW3)}, {s(sW3)}, {s(sT0)}")
        P(f"s_lshl_b32 {s(sT0)}, {s(sHALF)}, 5\nv_xor_b32 v5, {s(sT0)}, v5")
        P(f"buffer_load_ushort {v(BIAS+3)}, v5, {s(SAUX,4)}, {s(sW3)} offen")
        P(f"s_add_u32 {s(sT0)}, {s(sT0)}, {s(sW3)}\ns_lshl_b32 {s(sT0)}, {s(sT0)}, 5\ns_add_u32 {s(sH3)}, {s(sHo)}, {s(sT0)}")
        P(f"v_lshrrev_b32 v2, 2, {v(vL)}\nv_and_b32 v4, 3, {v(vL)}\nv_lshlrev_b32 v4, 4, v4\nv_mul_u32_u24 {v(VW3)}, {pitch}, v2\nv_add_u32 {v(VW3)}, {v(VW3)}, v4")
    else:
        P(f"s_cmp_lt_u32 {s(sW)}, 2")
        P(f"s_cbranch_scc0 L_nphi")
        P.cond_begin("w01")
        P(f"s_lshl_b32 {s(sT0)}, {s(sG)}, 11\ns_lshl_b32 {s(sT1)}, {s(sW)}, 10\ns_add_u32 {s(sT0)}, {s(sT0)}, {s(sT1)}\ns_add_u32 m0, {s(sT1)}, {L_WPHI}\ns_nop 0")
        P(f"buffer_load_dwordx4 {v(VL16)}, {s(SAUX,4)}, {s(sT0)} offen lds")
        P.cond_end()
        P("L_nphi:")
    P(f"s_mul_i32 {s(sT0)}, {s(sW34)}, {16*pitch}\ns_add_u32 {s(sWq)}, {s(sWq)}, {s(sT0)}")
    if ffn: P(f"s_add_u32 {s(sW3)}, {s(sW3)}, {s(sT0)}")
    P(f"s_add_u32 {s(sC1)}, {s(sROT)}, {s(sHALF)}")
    P(f"s_mov_b32 {s(sT3)}, {f2u(1.0/512):#x}\ns_mov_b32 {s(sONE)}, 0x3f803f80")
    P(f"v_bfe_u32 {v(T)}, {v(vL)}, 2, 2\nv_lshrrev_b32 {v(T+1)}, 5, {v(vL)}")
    P(f"v_bfe_u32 {v(T+2)}, {v(vL)}, 4, 1\nv_lshlrev_b32 {v(T+2)}, 5, {v(T+2)}\nv_and_b32 {v(T+3)}, 3, {v(vL)}\nv_lshl_add_u32 {v(T+2)}, {v(T+3)}, 3, {v(T+2)}")
    P(f"v_and_b32 {v(T+4)}, 31, {v(vL)}\nv_bfe_u32 {v(T+5)}, {v(vL)}, 1, 3\nv_xor_b32 {v(T+5)}, {v(T+5)}, {v(T+1)}")
    P(f"s_lshl_b32 {s(sT0)}, {s(sW34)}, 12\nv_lshlrev_b32 {v(T+8)}, 7, {v(T+4)}\nv_add_u32 {v(T+8)}, {s(sT0)}, {v(T+8)}")
    P(f"v_lshl_add_u32 {v(T+9)}, {v(T+1)}, 3, {v(T)}\nv_lshl_add_u32 {v(T+10)}, {v(T+9)}, 7, {v(T+2)}\nv_lshrrev_b32 {v(T+7)}, 1, {v(T)}\nv_xor_b32 {v(T+7)}, {s(sHALF)}, {v(T+7)}\nv_lshl_add_u32 {v(T+10)}, {v(T+7)}, 6, {v(T+10)}")
    for p in range(4):
        P(f"s_xor_b32 {s(sT0)}, {s(sSIG)}, {p}\ns_lshl_b32 {s(sT1)}, {s(sT0)}, 1\nv_xor_b32 {v(T+6)}, {s(sT1)}, {v(T+5)}\nv_lshl_add_u32 {v(AX+p)}, {v(T+6)}, 4, {v(T+8)}")
        P(f"s_lshl_b32 {s(sT1)}, {s(sT0)}, 11\ns_add_u32 {s(sT1)}, {s(sT1)}, {RB}\nv_add_u32 {v(AW+p)}, {s(sT1)}, {v(T+10)}")
    if ffn:
        P(f"s_lshl_b32 {s(sT0)}, {s(sHALF)}, 5\nv_xor_b32 {v(T+7)}, {s(sT0)}, {v(T+2)}\nv_lshl_add_u32 {v(T+7)}, {v(T+9)}, 6, {v(T+7)}")
        for i, p in enumerate((0, 2)):
            P(f"s_xor_b32 {s(sT0)}, {s(sSIG)}, {p}\ns_lshl_b32 {s(sT0)}, {s(sT0)}, 10\nv_add_u32 {v(AB+i)}, {s(sT0)}, {v(T+7)}")
    P(f"v_lshlrev_b32 {v(T+4)}, 4, {v(T+4)}")
    P(f"s_lshl_b32 {s(sT0)}, {s(sHALF)}, 9\ns_add_u32 {s(sT0)}, {s(sT0)}, {L_CS}\nv_add_u32 {v(VCSA)}, {s(sT0)}, {v(T+4)}")
    P(f"s_lshl_b32 {s(sT0)}, {s(sW34)}, 9\ns_add_u32 {s(sT0)}, {s(sT0)}, {L_ST}\nv_add_u32 {v(VSTA)}, {s(sT0)}, {v(T+4)}")
    P(f"v_lshrrev_b32 {v(T+4)}, 2, {v(vL)}\nv_xor_b32 {v(T+4)}, {v(T+4)}, {v(vL)}\nv_and_b32 {v(T+4)}, 4, {v(T+4)}\nv_cmp_eq_u32 vcc, 0, {v(T+4)}\nv_mov_b32 {v(T+4)}, {s(sONE)}")
    for r in (S1, S2, VZ, BAUG+3, AAUG+2, AAUG+3): P(f"v_mov_b32 {v(r)}, 0")
    for i in range(4): P(f"v_cndmask_b32 {v(SEL+i)}, 0, {v(T+4)}, vcc")
    P(f"s_lshl_b32 {s(sW34)}, {s(sW34)}, 2")
    P(f"s_lshl_b32 {s(sT0)}, {s(sN)}, 7\ns_mul_i32 {s(sB2o)}, {s(sW)}, {224*1024}\ns_add_u32 {s(sB2o)}, {s(sB2o)}, {s(sT0)}")
    P(f"s_lshl_b32 {s(sBOo)}, {s(sW)}, 16\ns_add_u32 {s(sBOo)}, {s(sBOo)}, {s(sT0)}\ns_lshl_b32 {s(sM4)}, {s(sW)}, 12")
    P(f"s_lshl_b32 {s(sOo)}, {s(sM)}, 16\ns_lshl_b32 {s(sT1)}, {s(sW)}, 13\ns_add_u32 {s(sOo)}, {s(sOo)}, {s(sT1)}\ns_add_u32 {s(sOo)}, {s(sOo)}, {s(sT0)}")
    P(f"s_add_u32 {s(sR4)}, {s(sM)}, {s(sN)}\ns_and_b32 {s(sR4)}, {s(sR4)}, {0 if OPT.get('norot') else 3}\ns_and_b32 {s(sSH)}, {s(sW)}, 1\ns_lshl_b32 {s(sSH)}, {s(sSH)}, 1")
    P(f"s_lshr_b32 {s(sT0)}, {s(sM)}, 1\ns_lshl_b32 {s(sT0)}, {s(sT0)}, 4\ns_add_u32 {s(sT0)}, {s(sT0)}, {s(sW)}\ns_lshl_b32 {s(sT0)}, {s(sT0)}, 7")
    P(f"s_and_b32 {s(sT1)}, {s(sM)}, 1\ns_lshl_b32 {s(sT1)}, {s(sT1)}, 3\ns_add_u32 {s(sT0)}, {s(sT0)}, {s(sT1)}\ns_add_u32 {s(sFL)}, {s(sT0)}, {WS_FLG}")
    P(f"s_mul_i32 {s(sA0)}, {s(sM)}, {2*HF_RB}\ns_mul_i32 {s(sT0)}, {s(sW)}, {14*1024}\ns_add_u32 {s(sA1)}, {s(sA0)}, {s(sM4)}\ns_add_u32 {s(sA1)}, {s(sA1)}, {112*1024}\ns_add_u32 {s(sA0)}, {s(sA0)}, {s(sT0)}")

class Sched:
    def __init__(self, n):
        self.n = n; self.pre = [[] for _ in range(n)]; self.post = [[] for _ in range(n)]
        self.fill = [[] for _ in range(n)]; self.dma = [[] for _ in range(n)]; self.blk = {}
    def spread(self, lst, a, b):
        for i in range(a, b): self.fill[i] += lst[len(lst)*(i-a)//(b-a): len(lst)*(i+1-a)//(b-a)]
    def dmas(self, groups, a, step=1):
        for i, g in enumerate(groups): self.dma[a + i*step] += g

def rd(G):
    b = WF + 4 * (G & 3)
    if G < 96:
        ks = G & 31; st, p = ks >> 2, ks & 3
        L = [f"ds_read_b128 {v(XF+4*ks,4)}, {v(AX+p)} offset:{RA+(st&3)*16384}"] if G < 32 else []
        if ks < 4 and G >= 32: L.append(f"v_xor_b32 {v(AW+p)}, {RB}, {v(AW+p)}")
        return L + [f"ds_read_b64_tr_b16 {v(b+2*t,2)}, {v(AW+p)} offset:{8192*st+512*t}" for t in range(2)]
    i = G - 96
    return [f"ds_read_b64_tr_b16 {v(b+2*t,2)}, {v(AB+(i&1))} offset:{4096*(i>>1)+256*t}" for t in range(2)]
def xq(G): return XF + 4 * (G & 31) if G < 96 else XF + 8 * (G - 96)

def common_sched(S, ffn, accs, MC):
    pitch = 3584 if ffn else 3072
    tp = "f" if ffn else "a"
    c1, c2 = (128, 256) if ffn else (2048, 0)
    S.dmas(item1(2, pitch), 0, 0)
    for st in range(8):
        G = 4 * st + 2
        S.pre[G] += [f".waitvm it{st+1}" if st < 7 else ".waitvm w1q0 lgkm0", "s_barrier"]
        if st <= 4: S.dmas(item1(st + 3, pitch), G)
        else: S.dmas(wquarter(RA, st - 5, c1, pitch, f"w1q{st-5}"), G)
    def sq(r, i): return [f"v_and_b32 {v(U+2*i)}, 0xffff0000, {v(r)}", f"v_lshlrev_b32 {v(U+1+2*i)}, 16, {v(r)}",
                          f"v_fmac_f32 {v(S1)}, {v(U+2*i)}, {v(U+2*i)}", f"v_fmac_f32 {v(S2)}, {v(U+1+2*i)}, {v(U+1+2*i)}"]
    for f in range(0, 32, 2):
        x = XF + 4 * f; a = max(f - 1, 0); b = f if f < 30 else 29
        S.post[a] += sq(x, 0) + sq(x + 1, 1) + [m16(MS, SEL, x, "0" if f == 0 else None)]
        S.post[b] += sq(x + 2, 0) + sq(x + 3, 1)
    S.post[29] += [f"v_add_f32 {v(S2)}, {v(S1)}, {v(S2)}", f"s_lshl_b32 {s(sT0)}, {s(sHALF)}, 3", f"v_mov_b32 {v(S1)}, {v(S2)}",
                   f"v_add_u32 {v(T)}, {s(sT0)}, {v(VSTA)}", f"v_permlane32_swap_b32 {v(S1)}, {v(S2)}",
                   f"v_add_f32 {v(MS+1)}, {v(S1)}, {v(S2)}", f"ds_write_b64 {v(T)}, {v(MS,2)}"]
    S.post[30] += [f"ds_read_b128 {v(MS,4)}, {v(VSTA)}"]
    for ps in range(3):
        for st in range(8):
            G = 32 * ps + 4 * st
            S.post[G] += [m16(MC, SEL, WF + 4 * (G & 3), "0" if st == 0 else None)]
        S.post[32*ps + 29] += [f"v_add_u32 {v(MC+1)}, {s(sW34)}, {v(VCSA)}", f"ds_write_b32 {v(MC+1)}, {v(MC)} offset:{1024*ps}"]
    for q in (1, 2, 3): S.pre[32 + 8*q - 2] += [f".waitvm w1q{q}", "s_barrier"]
    S.dmas(wquarter(RA, 3, c1, pitch, "w1q3"), 38)
    w2 = sum([wquarter(RB, q, c2, pitch, "w2") for q in range(4)], [])
    S.dmas(w2, 40, 2)
    S.pre[62] += [".waitvm w2 lgkm0", "s_barrier"]
    S.pre[66] += ["s_barrier"]
    def announce():
        P(f"s_lshl_b32 {s(sT0)}, {s(sW)}, 8\ns_add_u32 {s(sT0)}, {s(sT0)}, s2\ns_sub_u32 {s(sT0)}, {s(sT0)}, 256\ns_cmp_lt_u32 {s(sT0)}, 8")
        P(f"s_cbranch_scc0 L_nd")
        P.cond_begin("zw")
        P(".waitvm zf")
        P(f"s_lshl_b32 {s(sT0)}, s2, 2\nv_mov_b32 {v(VFV)}, 1")
        P(f"buffer_store_dword {v(VFV)}, {v(VZ)}, {s(SDBG,4)}, {s(sT0)} offen sc1")
        P.cond_end()
        P(f"L_nd:")
    if not ffn: S.blk[3] = announce
    ld = f"buffer_load_dword {v(VX0)}, {v(VX1)}, {s(SDBG,4)}, 0 offen sc1"
    def poll0():
        P(f"s_cmp_eq_u32 {s(sW)}, 7"); P(f"s_cbranch_scc0 L_np{tp}")
        P.cond_begin("w7")
        P(f"v_and_b32 {v(VX1)}, 7, {v(vL)}\nv_lshlrev_b32 {v(VX1)}, 2, {v(VX1)}"); P(ld)
        P.cond_end(); P(f"L_np{tp}:")
    def check0():
        P(f"s_cmp_eq_u32 {s(sW)}, 7"); P(f"s_cbranch_scc0 L_nc{tp}")
        P.cond_begin("w7")
        P(f"v_mov_b32 {v(VX0)}, {v(VX0)}")
        spin(f"L_ncs{tp}", ld, f"v_cmp_ne_u32 vcc, 1, {v(VX0)}")
        P.cond_end(); P(f"L_nc{tp}:")
    S.blk[39] = poll0; S.blk[62] = check0

def run_sched(S, accs):
    P(".waitvm it0")
    P("s_barrier")
    stamp("it0")
    P.add(rd(0)); P.add(rd(1))
    for G in range(S.n):
        if G in S.blk: S.blk[G]()
        P.add(S.pre[G])
        first = G in (0, 32, 64, 96)
        P(mfma(accs[G >> 5], WF + 4 * (G & 3), xq(G), "0" if first else None))
        if G + 2 < S.n: P.add(rd(G + 2))
        P.add(S.post[G]); P.add(S.fill[G]); P.add(S.dma[G])

def softmax(p, out, LS):
    t = T + 16
    L = [f"v_max3_f32 {v(t)}, {v(p)}, {v(p+1)}, {v(p+2)}", f"v_max3_f32 {v(t+1)}, {v(p+3)}, {v(p+4)}, {v(p+5)}",
         f"v_max3_f32 {v(t)}, {v(t)}, {v(p+6)}, {v(p+7)}", f"v_max3_f32 {v(t+1)}, {v(t+1)}, {v(p+8)}, {v(p+9)}",
         f"v_max3_f32 {v(t)}, {v(t)}, {v(p+10)}, {v(p+11)}", f"v_max3_f32 {v(t+1)}, {v(t+1)}, {v(p+12)}, {v(p+13)}",
         f"v_max3_f32 {v(t)}, {v(t)}, {v(p+14)}, {v(p+15)}", f"v_max_f32 {v(t)}, {v(t)}, {v(t+1)}",
         f"v_mul_f32 {v(t)}, {v(t)}, {v(LS)}"]
    L += [f"v_fma_f32 {v(p+i)}, {v(p+i)}, {v(LS)}, -{v(t)}" for i in range(16)]
    L += [f"v_exp_f32 {v(p+i)}, {v(p+i)}" for i in range(16)]
    L += [f"v_add_f32 {v(t)}, {v(p)}, {v(p+1)}", f"v_add_f32 {v(t+1)}, {v(p+2)}, {v(p+3)}"]
    for i in range(4, 16, 2):
        L += [f"v_add_f32 {v(t)}, {v(t)}, {v(p+i)}", f"v_add_f32 {v(t+1)}, {v(t+1)}, {v(p+i+1)}"]
    L += [f"v_add_f32 {v(t)}, {v(t)}, {v(t+1)}", f"v_rcp_f32 {v(t)}, {v(t)}"]
    L += [f"v_mul_f32 {v(p+i)}, {v(p+i)}, {v(t)}" for i in range(16)]
    L += [f"v_cvt_pk_bf16_f32 {v(out+i)}, {v(p+2*i)}, {v(p+2*i+1)}" for i in range(8)]
    return L

setup(False)
LS = K1; VPK = K2; VV = VW3; MC = BIAS
PHI0, PHI1 = AX, AAUG
PHI0 = AX
PHI1 = S1
PHI1 = T + 12
t = T + 16
P(f"v_bfe_u32 {v(t)}, {v(vL)}, 2, 2\nv_lshrrev_b32 {v(t+1)}, 5, {v(vL)}\nv_lshl_add_u32 {v(t)}, {v(t+1)}, 2, {v(t)}\nv_lshlrev_b32 {v(t)}, 5, {v(t)}")
P(f"v_bfe_u32 {v(t+2)}, {v(vL)}, 1, 1\nv_lshl_add_u32 {v(t)}, {v(t+2)}, 3, {v(t)}\nv_bfe_u32 {v(t+2)}, {v(vL)}, 4, 1\nv_lshl_add_u32 {v(t)}, {v(t+2)}, 4, {v(t)}")
P(f"s_lshl_b32 {s(sT1)}, {s(sHALF)}, 10\ns_add_u32 {s(sT1)}, {s(sT1)}, {L_WPHI}\nv_add_u32 {v(AB)}, {s(sT1)}, {v(t)}")
P(f"v_bfe_u32 {v(t)}, {v(vL)}, 2, 1\nv_mul_u32_u24 {v(t)}, 0x8000, {v(t)}\nv_lshl_or_b32 {v(AB+1)}, {v(t)}, 16, {v(t)}")
P(f"v_and_b32 {v(t)}, 31, {v(vL)}\nv_lshlrev_b32 {v(t)}, 6, {v(t)}\ns_lshl_b32 {s(sT1)}, {s(sW34)}, 9")
P(f"s_lshl_b32 {s(sT2)}, {s(sHALF)}, 14\ns_add_u32 {s(sT2)}, {s(sT2)}, {s(sT1)}\nv_lshl_add_u32 {v(VPK)}, {v(t+1)}, 5, {v(t)}\nv_add_u32 {v(VPK)}, {s(sT2)}, {v(VPK)}")
P(f"s_lshl_b32 {s(sT2)}, {s(sHALF)}, 13\ns_add_u32 {s(sT2)}, {s(sT2)}, {s(sT1)}\ns_add_u32 {s(sT2)}, {s(sT2)}, {RA+32768}\nv_lshl_add_u32 {v(VV)}, {v(t+1)}, 4, {v(t)}\nv_add_u32 {v(VV)}, {s(sT2)}, {v(VV)}")
def phi_load(hl, dst):
    return [f"ds_read_b64_tr_b16 {v(dst+2*tt,2)}, {v(AB)} offset:{512*hl+256*tt}" for tt in range(2)] + \
           [f"v_xor_b32 {v(dst+i)}, {v(AB+1)}, {v(dst+i)}" for i in range(4)]
S = Sched(96)
common_sched(S, False, None, MC)
S.post[30] += [f"ds_read_b128 {v(CSR,4)}, {v(VCSA)}"]
S.post[31] += stamp_i("pass1")
fill = stats_final() + aug(ACC0, CSR, None) + phi_load(0, AX) + phi_load(1, T + 8) + [f"v_mul_f32 {v(LS)}, {f2u(LOG2E):#x}, {v(RSTD)}"]
fill += [f"v_cvt_pk_bf16_f32 {v(T+i)}, {v(ACC0+2*i)}, {v(ACC0+2*i+1)}" for i in range(8)]
fill += [mfma(ACC2, AX, T, "0"), mfma(ACC0, T + 8, T + 4, "0")]
fill += softmax(ACC2, T + 8, LS) + softmax(ACC0, T, LS)
S.spread(fill, 32, 64)
S.post[62] += [f"ds_read_b128 {v(MC,4)}, {v(VCSA)} offset:1024"]
S.post[63] += stamp_i("sub1")
S.pre[64] += sum4(CS0, MC)
fill = aug(ACC1, MC, None)[3:]
S.spread(fill, 64, 66)
fill = [f"ds_write_b128 {v(VPK)}, {v(T+8,4)}", f"ds_write_b128 {v(VPK)}, {v(T+12,4)} offset:16",
        f"ds_write_b128 {v(VPK)}, {v(T,4)} offset:8192", f"ds_write_b128 {v(VPK)}, {v(T+4,4)} offset:{8192+16}"]
fill += [f"v_mul_f32 {v(ACC1+i)}, {v(ACC1+i)}, {v(RSTD)}" for i in range(16)]
fill += [f"v_cvt_pk_bf16_f32 {v(ACC1+i)}, {v(ACC1+2*i)}, {v(ACC1+2*i+1)}" for i in range(8)]
fill += [f"ds_write_b128 {v(VV)}, {v(ACC1,4)}", f"ds_write_b128 {v(VV)}, {v(ACC1+4,4)} offset:32"]
S.spread(fill, 66, 72)
S.dmas(b_dma(0), 58)
def kvblock():
    P("s_waitcnt lgkmcnt(0)")
    P("s_barrier")
    P(f"s_cmp_lt_u32 {s(sW)}, 4")
    P("s_cbranch_scc0 L_nkv")
    P.cond_begin("lo4")
    t = T + 16
    P(f"v_bfe_u32 {v(t)}, {v(vL)}, 2, 2\nv_lshrrev_b32 {v(t+1)}, 5, {v(vL)}\nv_lshl_add_u32 {v(t)}, {v(t+1)}, 3, {v(t)}\nv_lshlrev_b32 {v(t)}, 6, {v(t)}")
    P(f"v_and_b32 {v(t+2)}, 63, {v(AW)}\nv_add_u32 {v(t+2)}, {v(t+2)}, {v(t)}\ns_lshl_b32 {s(sT0)}, {s(sW)}, 13\nv_add_u32 {v(t+2)}, {s(sT0)}, {v(t+2)}")
    P(f"v_and_b32 {v(t+1)}, 1, {v(vL)}\nv_lshl_add_u32 {v(t)}, {v(t+1)}, 4, {v(t)}\nv_bfe_u32 {v(t+1)}, {v(vL)}, 1, 1\nv_lshl_add_u32 {v(t)}, {v(t+1)}, 3, {v(t)}")
    P(f"s_lshr_b32 {s(sT0)}, {s(sW)}, 1\ns_lshl_b32 {s(sT0)}, {s(sT0)}, 13\ns_lshl_b32 {s(sT1)}, {s(sSH)}, 4\ns_add_u32 {s(sT0)}, {s(sT0)}, {s(sT1)}\ns_add_u32 {s(sT0)}, {s(sT0)}, {RA+32768}")
    P(f"v_add_u32 {v(t)}, {s(sT0)}, {v(t)}")
    P(f"v_and_b32 {v(t+1)}, 16, {v(vL)}\nv_cmp_eq_u32 vcc, 0, {v(t+1)}\nv_mov_b32 {v(t+3)}, {s(sONE)}")
    KB = [T, T + 8, ACC1, ACC1 + 8]
    def kr(J):
        for tt in range(2):
            P(f"ds_read_b64_tr_b16 {v(KB[J&3]+2*tt,2)}, {v(t)} offset:{1024*J+256*tt}")
            P(f"ds_read_b64_tr_b16 {v(KB[J&3]+4+2*tt,2)}, {v(t+2)} offset:{1024*J+256*tt}")
    kr(0); kr(1); kr(2)
    for J in range(8):
        for i in range(4): P(f"v_cndmask_b32 {v(KB[J&3]+i)}, {v(t+3)}, {v(KB[J&3]+i)}, vcc")
        if J + 3 < 8: kr(J + 3)
        P(mfma(ACC0, KB[J&3], KB[J&3] + 4, "0" if J == 0 else None))
    P(f"v_and_b32 {v(t)}, 31, {v(vL)}\nv_lshlrev_b32 {v(t)}, 2, {v(t)}\nv_lshrrev_b32 {v(t+1)}, 5, {v(vL)}\nv_lshl_add_u32 {v(t+1)}, {v(t+1)}, 9, {v(t)}")
    P(f"s_lshl_b32 {s(sT0)}, {s(sG)}, 4\ns_add_u32 {s(sT0)}, {s(sT0)}, {s(sRT)}\ns_mul_i32 {s(sT0)}, {s(sT0)}, {KVP_SZ}\ns_add_u32 {s(sT0)}, {s(sT0)}, {WS_KVP}")
    P(f"s_lshl_b32 {s(sT1)}, {s(sW)}, 7\ns_add_u32 {s(sT1)}, {s(sT1)}, {s(sT0)}\ns_add_u32 {s(sT1)}, {s(sT1)}, 8192")
    P(f"s_add_u32 {s(sT0)}, {s(sT0)}, {s(sM0x)}")
    for r in range(8):
        P(f"buffer_store_dword {v(ACC0+r)}, {v(t+1)}, {s(SWS,4)}, {s(sT0)} offen offset:{((r&3)+8*(r>>2))*128} sc1")
    P(f"buffer_store_dword {v(ACC0+8)}, {v(t)}, {s(SWS,4)}, {s(sT1)} offen sc1 ; tag=kv")
    P.cond_end()
    P("L_nkv:")
S.blk[72] = kvblock
S.pre[94] += ["s_waitcnt lgkmcnt(0)", "s_barrier"]
S.post[94] += [f"ds_read_b128 {v(CSR,4)}, {v(VCSA)} offset:2048"] + phi_load(1, T + 8)
run_sched(S, [ACC0, ACC1, ACC2])
stamp("sub2")
def kvflag():
    P(f"s_cmp_lt_u32 {s(sW)}, 4")
    P("s_cbranch_scc0 L_nkf")
    P.cond_begin("lo4")
    P(".waitvm kv")
    P(f"s_lshl_b32 {s(sT0)}, {s(sG)}, 8\ns_lshl_b32 {s(sT1)}, {s(sRT)}, 4\ns_add_u32 {s(sT0)}, {s(sT0)}, {s(sT1)}\ns_add_u32 {s(sT0)}, {s(sT0)}, {s(sW34)}\ns_add_u32 {s(sT0)}, {s(sT0)}, {WS_KVF}")
    P(f"v_mov_b32 {v(VFV)}, 1")
    P(f"buffer_store_dword {v(VFV)}, {v(VZ)}, {s(SWS,4)}, {s(sT0)} offen sc1")
    P.cond_end()
    P("L_nkf:")
kvflag()
PQ = WF
P.add(aug(ACC2, CSR, None))
bd = sum([b_dma(kk) for kk in (1, 2, 7, 8)], [])
for g_ in bd[:2]: P.add(g_)
for i in range(8): P(f"v_cvt_pk_bf16_f32 {v(T+i)}, {v(ACC2+2*i)}, {v(ACC2+2*i+1)}")
P(mfma(ACC1, AX, T, "0"))
P(mfma(ACC2, T + 8, T + 4, "0"))
for g_ in bd[2:4]: P.add(g_)
P.add(interleave(bd[4:], softmax(ACC1, PQ, LS) + softmax(ACC2, PQ + 8, LS)))
stamp("qsm")
P(f"s_cmp_eq_u32 {s(sW)}, 7")
P("s_cbranch_scc0 L_nkp")
P.cond_begin("w7b")
P(f"s_lshl_b32 {s(sT2)}, {s(sG)}, 8\ns_add_u32 {s(sT2)}, {s(sT2)}, {WS_KVF}\nv_lshlrev_b32 {v(T+1)}, 2, {v(vL)}\nv_mov_b32 {v(T)}, 0")
spin("L_spkv", f"buffer_load_dword {v(T)}, {v(T+1)}, {s(SWS,4)}, {s(sT2)} offen sc1", f"v_cmp_ne_u32 vcc, 1, {v(T)}")
P.cond_end()
P("L_nkp:")
P("s_barrier")
stamp("kvseen")
G = XF
P(f"s_mul_i32 {s(sT2)}, {s(sG)}, {16*KVP_SZ}\ns_add_u32 {s(sT2)}, {s(sT2)}, {WS_KVP}")
P(f"s_lshl_b32 {s(sT0)}, {s(sW)}, 10\ns_add_u32 {s(sT0)}, {s(sT0)}, {s(sT2)}\ns_lshl_b32 {s(sT1)}, {s(sRT)}, 1")
P(f"v_lshrrev_b32 {v(T)}, 3, {v(vL)}\nv_mul_u32_u24 {v(T)}, {KVP_SZ}, {v(T)}\nv_and_b32 {v(T+1)}, 7, {v(vL)}\nv_lshl_add_u32 {v(T)}, {v(T+1)}, 4, {v(T)}")
for r in range(16):
    P(f"s_and_b32 {s(sT1)}, {s(sT1)}, 15\ns_mul_i32 {s(sD0)}, {s(sT1)}, {KVP_SZ}\ns_add_u32 {s(sD0)}, {s(sD0)}, {s(sT0)}\ns_add_u32 {s(sT1)}, {s(sT1)}, 1")
    P(f"buffer_load_dwordx4 {v(G+4*r,4)}, {v(VL16)}, {s(SWS,4)}, {s(sD0)} offen sc1")
P(f"s_lshr_b32 {s(sT0)}, {s(sW)}, 1\ns_lshl_b32 {s(sT0)}, {s(sT0)}, 7\ns_add_u32 {s(sT0)}, {s(sT0)}, {s(sT2)}\ns_add_u32 {s(sT0)}, {s(sT0)}, 8192\ns_add_u32 {s(sT1)}, {s(sT0)}, {8*KVP_SZ}")
P(f"buffer_load_dwordx4 {v(G+64,4)}, {v(T)}, {s(SWS,4)}, {s(sT0)} offen sc1")
P(f"buffer_load_dwordx4 {v(G+68,4)}, {v(T)}, {s(SWS,4)}, {s(sT1)} offen sc1")
P(f"v_bfe_u32 {v(T+2)}, {v(vL)}, 2, 1\nv_lshlrev_b32 {v(T+2)}, 9, {v(T+2)}\nv_bfe_u32 {v(T+3)}, {v(vL)}, 1, 1\nv_lshl_add_u32 {v(T+2)}, {v(T+3)}, 10, {v(T+2)}")
P(f"v_and_b32 {v(T+3)}, 1, {v(vL)}\nv_lshl_add_u32 {v(T+2)}, {v(T+3)}, 3, {v(T+2)}")
P(f"s_lshr_b32 {s(sT0)}, {s(sW)}, 1\ns_lshl_b32 {s(sT0)}, {s(sT0)}, 11\ns_add_u32 {s(sT0)}, {s(sT0)}, {L_KVB}\nv_add_u32 {v(T+2)}, {s(sT0)}, {v(T+2)}")
P(f"v_lshrrev_b32 {v(T+3)}, 3, {v(vL)}\ns_lshl_b32 {s(sT0)}, {s(sSH)}, 6\nv_lshl_add_u32 {v(T+3)}, {v(T+3)}, 4, {v(T+2)}\nv_add_u32 {v(T+3)}, {s(sT0)}, {v(T+3)}")
for r in range(1, 16):
    for i in range(0, 4, 2): P(f"v_pk_add_f32 {v(G+i,2)}, {v(G+i,2)}, {v(G+4*r+i,2)}")
P(f"v_cvt_pk_bf16_f32 {v(G)}, {v(G)}, {v(G+1)}\nv_cvt_pk_bf16_f32 {v(G+1)}, {v(G+2)}, {v(G+3)}")
P(f"ds_write_b64 {v(T+3)}, {v(G,2)}")
Z = G + 64
for i in range(4): P(f"v_add_f32 {v(Z+i)}, {v(Z+i)}, {v(Z+4+i)}")
for i in range(4): P(f"v_add_f32_dpp {v(Z+i)}, {v(Z+i)}, {v(Z+i)} row_ror:8 row_mask:0xf bank_mask:0xf")
for sw in ("v_permlane16_swap_b32", "v_permlane32_swap_b32"):
    for i in range(4): P(f"v_mov_b32 {v(Z+4+i)}, {v(Z+i)}")
    for i in range(4): P(f"{sw} {v(Z+i)}, {v(Z+4+i)}")
    for i in range(4): P(f"v_add_f32 {v(Z+i)}, {v(Z+i)}, {v(Z+4+i)}")
P(f"v_cvt_pk_bf16_f32 {v(Z)}, {v(Z)}, {v(Z+1)}\nv_cvt_pk_bf16_f32 {v(Z+1)}, {v(Z+2)}, {v(Z+3)}")
P(f"ds_write_b64 {v(T+2)}, {v(Z,2)} offset:256")
P(f"v_and_b32 {v(T)}, 31, {v(vL)}\nv_min_u32 {v(T)}, 16, {v(T)}\nv_and_b32 {v(T+1)}, 32, {v(vL)}\nv_add_u32 {v(T)}, {v(T)}, {v(T+1)}\nv_lshlrev_b32 {v(T)}, 4, {v(T)}")
P(f"s_lshl_b32 {s(sT0)}, {s(sHALF)}, 12\ns_add_u32 {s(sT0)}, {s(sT0)}, {L_KVB}\nv_add_u32 {v(T)}, {s(sT0)}, {v(T)}")
P("s_waitcnt lgkmcnt(0)")
P("s_barrier")
for i in range(4): P(f"ds_read_b128 {v(G+4*i,4)}, {v(T)} offset:{1024*i}")
P(mfma(ACC0, G, PQ, "0")); P(mfma(ACC1, G + 8, PQ + 8, "0"))
P(mfma(ACC0, G + 4, PQ + 4)); P(mfma(ACC1, G + 12, PQ + 12))
P(f"s_lshl_b32 {s(sT0)}, {s(sG)}, 2\ns_lshl_b32 {s(sT1)}, {s(sHALF)}, 1\ns_add_u32 {s(sT0)}, {s(sT0)}, {s(sT1)}\ns_add_u32 {s(sT0)}, {s(sT0)}, 112\ns_lshl_b32 {s(sT0)}, {s(sT0)}, 10\ns_add_u32 {s(sT0)}, {s(sT0)}, {s(sHo)}")
for hl, acc in enumerate((ACC0, ACC1)):
    P(f"v_add_f32 {v(acc+8)}, {f2u(1e-6):#x}, {v(acc+8)}\nv_rcp_f32 {v(acc+8)}, {v(acc+8)}")
    for i in range(8): P(f"v_mul_f32 {v(acc+i)}, {v(acc+i)}, {v(acc+8)}")
    for i in range(4): P(f"v_cvt_pk_bf16_f32 {v(T+4*hl+i)}, {v(acc+2*i)}, {v(acc+2*i+1)}")
    P(f"buffer_store_dwordx4 {v(T+4*hl,4)}, {v(VL16)}, {s(SWS,4)}, {s(sT0)} offen offset:{1024*hl} sc1 ; tag=hl")
for kk in (3, 4, 5, 6):
    for g_ in b_dma(kk): P.add(g_)
P.add(flag(4, "hl"))
stamp("p1end")
P("s_waitcnt vmcnt(0)")
P("s_branch L_p2")

P("L_ffn:")
P(".reset")
setup(True)
MC = ACC2; CSF = ACC2 + 4
S = Sched(112)
common_sched(S, True, None, MC)
S.post[30] += [f"ds_read_b128 {v(CSF,4)}, {v(VCSA)}"]
S.post[31] += stamp_i("pass1")
fill = stats_final() + aug(ACC0, CSF, BIAS)
fill += [f"v_mul_f32 {v(K1)}, {f2u(GC1):#x}, {v(RSTD)}", f"v_mul_f32 {v(K2)}, {v(RSTD)}, {v(RSTD)}",
         f"v_mul_f32 {v(K2)}, {v(K2)}, {v(RSTD)}", f"v_mul_f32 {v(K2)}, {f2u(GC2):#x}, {v(K2)}"]
fill += gelu(ACC0, 16, sH0, 0, "h1") + [f"s_add_u32 {s(sH0)}, {s(sH0)}, 4096"]
S.spread(fill, 32, 64)
S.post[62] += [f"ds_read_b128 {v(CSF,4)}, {v(VCSA)} offset:1024"]
S.post[63] += stamp_i("sub1")
S.dmas(b_dma(0), 58)
fill = aug(ACC1, CSF, BIAS + 1) + gelu(ACC1, 16, sH0, 0, "h2") + [f"s_add_u32 {s(sH0)}, {s(sH0)}, 4096"]
S.spread(fill, 64, 96)
S.dmas(sum([w3quarter(q, 3584) for q in range(4)], []) + b_dma(1) + b_dma(2), 66, 2)
S.post[76] += flag(1, "h1")
S.pre[94] += [".waitvm w3 lgkm0", "s_barrier"]
S.post[94] += [f"ds_read_b128 {v(CSF,4)}, {v(VCSA)} offset:2048"]
S.post[95] += stamp_i("sub2")
fill = aug(ACC0, CSF, BIAS + 2) + gelu(ACC0, 16, sH0, 0, "h3")
S.spread(fill, 96, 112)
S.pre[98] += ["s_barrier"]
S.dmas(sum([b_dma(kk) for kk in (3, 4, 5)], []), 98, 2)
S.post[104] += flag(2, "h2")
for i in range(0, 16, 2): S.post[96 + i] += [m16(MC, SEL, WF + 4 * (i & 3), "0" if i == 0 else None)]
run_sched(S, [ACC0, ACC1, ACC0, ACC1])
t = T + 16
P(f"v_and_b32 {v(t)}, 31, {v(vL)}\ns_lshl_b32 {s(sT0)}, {s(sHALF)}, 4\nv_xor_b32 {v(t)}, {s(sT0)}, {v(t)}\nv_lshlrev_b32 {v(t)}, 4, {v(t)}\nv_add_u32 {v(t)}, {L_CS+3072}, {v(t)}")
P(f"v_add_u32 {v(t+1)}, {s(sW34)}, {v(VCSA)}")
P(f"ds_write_b32 {v(t+1)}, {v(MC)} offset:3072")
P(f"s_add_u32 {s(sT1)}, {s(sM4)}, {KAREA[6]}\ns_xor_b32 {s(sT0)}, {s(sT1)}, 16384\nv_add_u32 {v(t+1)}, {s(sT0)}, {v(VL16)}\nv_add_u32 {v(AB)}, {s(sT1)}, {v(VL16)}")
P(f"ds_write_b128 {v(t+1)}, {v(ACC1+8,4)}\nds_write_b128 {v(t+1)}, {v(ACC1+12,4)} offset:1024")
P("s_waitcnt lgkmcnt(0)")
P("s_barrier")
stamp("sub3")
P(f"ds_read_b128 {v(CSF,4)}, {v(t)}")
P(f"ds_read_b128 {v(ACC0,4)}, {v(AB)}\nds_read_b128 {v(ACC0+4,4)}, {v(AB)} offset:1024")
for g_ in b_dma(7): P.add(g_)
P.add(aug(ACC1, CSF, BIAS + 3))
P("s_waitcnt lgkmcnt(0)")
for g_ in b_dma(6) + b_dma(8): P.add(g_)
for i in range(8): P(f"v_add_f32 {v(ACC1+i)}, {v(ACC1+i)}, {v(ACC0+i)}")
P.add(flag(3, "h3"))
P.add(gelu(ACC1, 8, sH3, 0, "h4"))
stamp("x7")
P.add(flag(4, "h4"))
stamp("p1end")
P("s_waitcnt vmcnt(0)")

P("L_p2:")
P(".reset")
AC = 64; NAF = 8
def AFq(kk, rb): return XF + 4 + 8 * (2 * (kk % NAF) + rb)
def BTq(kk, nb): return XF + 8 * (2 * (kk & 1) + nb)
BA = 2
VFL, VXR, VRED, VL16B, VPF, VPO = 8, 9, 10, 11, 14, 15
VWR = 20
XR, B2R = 32, 36
P(f"v_and_b32 {v(T)}, 1, {v(vL)}\nv_bfe_u32 {v(T+1)}, {v(vL)}, 1, 1\nv_lshlrev_b32 {v(T)}, 2, {v(T)}\nv_lshl_add_u32 {v(VFL)}, {v(T+1)}, 4, {v(T)}")
ldf = f"buffer_load_dword {v(VPF)}, {v(VFL)}, {s(SWS,4)}, {s(sFL)} offen offset:1024 sc1"
ldo = f"buffer_load_dword {v(VPO)}, {v(VFL)}, {s(SWS,4)}, {s(sFL)} offen sc1"
P(ldf)
P(f"v_bfe_u32 {v(T)}, {v(vL)}, 2, 2\nv_lshrrev_b32 {v(T+1)}, 5, {v(vL)}\nv_and_b32 {v(T+2)}, 63, {v(AW)}")
P(f"v_lshl_add_u32 {v(T+4)}, {v(T+1)}, 2, {v(T)}\nv_lshl_add_u32 {v(T+4)}, {v(T+4)}, 7, {v(T+2)}\nv_lshrrev_b32 {v(T+5)}, 1, {v(T)}")
P(f"v_lshl_add_u32 {v(T+4)}, {v(T+5)}, 6, {v(T+4)}\nv_xor_b32 {v(T+5)}, 64, {v(T+4)}")
P(f"s_add_u32 {s(sT0)}, {s(sM4)}, 65536\ns_add_u32 {s(sT1)}, {s(sM0x)}, {RC}")
for nb in range(2):
    P(f"v_add_u32 {v(BA+nb)}, {s(sM4)}, {v(T+4+nb)}\nv_add_u32 {v(BA+2+nb)}, {s(sT0)}, {v(T+4+nb)}\nv_add_u32 {v(BA+4+nb)}, {s(sT1)}, {v(T+4+nb)}")
def b_reads(kk):
    slot = kk % 9
    if slot == 0: var, off = 2, 0
    else: var, off = (KAREA[slot] >> 16), KAREA[slot] & 0xffff
    return [f".waitvm b{kk}"] + [f"ds_read_b64_tr_b16 {v(BTq(kk,nb)+2*tt,2)}, {v(BA+2*var+nb)} offset:{off+1024*tt}" for nb in range(2) for tt in range(2)]
P(f"v_lshrrev_b32 {v(T)}, 3, {v(vL)}\nv_and_b32 {v(T+1)}, 7, {v(vL)}\nv_lshlrev_b32 {v(T+1)}, 4, {v(T+1)}\nv_lshl_add_u32 {v(VXR)}, {v(T)}, 10, {v(T+1)}")
P(f"s_lshl_b32 {s(sT0)}, {s(sN)}, 7")
P(f"buffer_load_dwordx4 {v(XR,4)}, {v(VXR)}, {s(SX,4)}, {s(sOo)} offen")
P(f"buffer_load_dwordx4 {v(B2R,4)}, {v(T+1)}, {s(SB2,4)}, {s(sT0)} offen")
P(f"v_add_u32 {v(VL16B)}, {HF_RB}, {v(VL16)}")
P.add(b_reads(0))
def a_loads(kk):
    so = sA0 if kk < 14 else sA1
    return rot_k(kk, sT0) + [f"s_lshl_b32 {s(sT0)}, {s(sT0)}, 10", f"s_add_u32 {s(sT0)}, {s(sT0)}, {s(so)}",
          f"buffer_load_dwordx4 {v(AFq(kk,0),4)}, {v(VL16)}, {s(SWS,4)}, {s(sT0)} offen sc1",
          f"buffer_load_dwordx4 {v(AFq(kk,1),4)}, {v(VL16B)}, {s(SWS,4)}, {s(sT0)} offen sc1"]
def need(level, reg, ld):
    P(f"v_mov_b32 {v(reg)}, {v(reg)}")
    spin(P.lab("L_sp"), ld, f"v_cmp_gt_u32 vcc, {level}, {v(reg)}")
DA = int(OPT.get("da", 6))
gate = {0: (2, VPF, ldf), 8: (3, VPF, ldf), 12: (4, VPF, ldf), 14: (4, VPO, ldo)}
prepoll = {5: ldf, 9: ldf, 11: ldo}
def a_issue(kk):
    if kk in prepoll: P(prepoll[kk])
    if kk in gate: need(*gate[kk])
    if kk == 0: stamp("hseen")
    P.add(a_loads(kk))
for kk in range(DA): a_issue(kk)
for kk in range(18):
    if kk + 1 < 18: P.add(b_reads(kk + 1))
    for nb in range(2):
        for rb in range(2):
            P(mfma(AC + 16 * (2 * nb + rb), BTq(kk, nb), AFq(kk, rb), "0" if kk == 0 else None))
    if kk + DA < 18: a_issue(kk + DA)
    if kk + 9 < 18:
        for g_ in b_dma(kk + 9): P.add(g_)
stamp("p2mm")
for q in range(4):
    P(f"v_xor_b32 {v(VWR+q)}, {64*q}, {v(VL16)}\nv_add_u32 {v(VWR+q)}, {s(sM4)}, {v(VWR+q)}")
    P(f"v_add_u32 {v(T+q)}, 65536, {v(VWR+q)}")
for blk in range(4):
    for q in range(4):
        ad = VWR + q if blk < 2 else T + q
        P(f"ds_write_b128 {v(ad)}, {v(AC+16*blk+4*q,4)} offset:{(blk&1)*32768+1024*q}")
P(f"v_lshrrev_b32 {v(T+4)}, 3, {v(vL)}\ns_lshl_b32 {s(sT0)}, {s(sW34)}, 1\nv_add_u32 {v(T+4)}, {s(sT0)}, {v(T+4)}")
P(f"v_and_b32 {v(T+5)}, 3, {v(vL)}\nv_lshlrev_b32 {v(T+6)}, 2, {v(T+5)}\nv_xor_b32 {v(T+4)}, {v(T+4)}, {v(T+6)}\nv_lshlrev_b32 {v(T+4)}, 4, {v(T+4)}\nv_lshl_add_u32 {v(T+4)}, {v(T+5)}, 10, {v(T+4)}")
P(f"v_bfe_u32 {v(T+5)}, {v(vL)}, 2, 1\nv_lshl_add_u32 {v(T+4)}, {v(T+5)}, 16, {v(T+4)}\ns_lshl_b32 {s(sT0)}, {s(sHALF)}, 15\nv_add_u32 {v(VRED)}, {s(sT0)}, {v(T+4)}")
F = T + 8
for i in range(4):
    P(f"v_lshlrev_b32 {v(F+2*i)}, 16, {v(XR+i)}\nv_and_b32 {v(F+2*i+1)}, 0xffff0000, {v(XR+i)}")
    P(f"v_lshlrev_b32 {v(T+4)}, 16, {v(B2R+i)}\nv_and_b32 {v(T+5)}, 0xffff0000, {v(B2R+i)}")
    P(f"v_add_f32 {v(F+2*i)}, {v(F+2*i)}, {v(T+4)}\nv_add_f32 {v(F+2*i+1)}, {v(F+2*i+1)}, {v(T+5)}")
P("s_waitcnt lgkmcnt(0)")
P("s_barrier")
R = XF
for ww in range(8):
    for hf in range(2): P(f"ds_read_b128 {v(R+8*ww+4*hf,4)}, {v(VRED)} offset:{4096*ww+512*hf}")
for ww in range(8):
    for i in range(0, 8, 2): P(f"v_pk_add_f32 {v(F+i,2)}, {v(F+i,2)}, {v(R+8*ww+i,2)}")
for i in range(4): P(f"v_cvt_pk_bf16_f32 {v(XR+i)}, {v(F+2*i)}, {v(F+2*i+1)}")
P(f"buffer_store_dwordx4 {v(XR,4)}, {v(VXR)}, {s(SOUT,4)}, {s(sOo)} offen")
if STAMP:
    stamp("end")
    P("s_waitcnt lgkmcnt(0)")
    n = 12
    P(f"s_lshl_b32 {s(sT0)}, s2, 3\ns_add_u32 {s(sT0)}, {s(sT0)}, {s(sW)}\ns_lshl_b32 {s(sT0)}, {s(sT0)}, 6\ns_add_u32 {s(sT0)}, {s(sT0)}, {WS_STAMP}")
    P(f"v_mov_b32 v2, 0\ns_mov_b64 exec, 1")
    for i in range(n):
        P(f"v_mov_b32 v3, {s(sST+2*i)}\nbuffer_store_dword v3, v2, {s(SWS,4)}, {s(sT0)} offen offset:{4*i}")
if OPT.get("dbgst"):
    P(f"s_cmp_eq_u32 {s(sW)}, 0\ns_cbranch_scc0 L_end")
    P(f"s_not_b32 {s(sT0)}, {s(sST)}\nv_mov_b32 v3, {s(sT0)}\nbuffer_atomic_umax v3, v2, {s(SDBG,4)}, 0 offen offset:32 sc1")
    for j, i in enumerate((0, 2, 3, 5, 8, 10, 11)):
        P(f"v_mov_b32 v{4+j}, {s(sST+2*i)}\nbuffer_atomic_umax v{4+j}, v2, {s(SDBG,4)}, 0 offen offset:{36+4*j} sc1")
P("L_end:")
P("s_endpgm")

ins = P.ins
if OPT.get("nodma"): ins = [I for I in ins if I.kind != "dma"]
if OPT.get("notr"): ins = [I for I in ins if not I.op.startswith("ds_read_b64_tr")]
if OPT.get("nofmac"): ins = [I for I in ins if not (I.op.startswith("v_fmac") or (I.op == "v_and_b32" and "0xffff0000" in I.text) or (I.op == "v_lshlrev_b32" and I.ops[1] == "16"))]
if OPT.get("nom16"): ins = [I for I in ins if "16x16x32" not in I.op]
if OPT.get("nomfma"): ins = [I for I in ins if I.kind != "mfma"]
if STAMP:
    for I in ins:
        if I.op in ("s_memrealtime", "s_memtime"): I.kind = "salu"
ins = auto_wait(ins)
st = []
ins = hazards(ins, st)
hdr = open("parallel_sum__linear_kernel_hedgehog__dense_activation_gelu__prompt.s.ref").read().split("; Override")[0]
out = hdr + f"; @launch grid=(256,1,1) block=(512,1,1) lds={LDS_SIZE}\n"
out += f'.amdgcn_target "amdgcn-amd-amdhsa--gfx950"\n.text\n.globl {NAME}\n.p2align 8\n.type {NAME},@function\n{NAME}:\n'
out += render(ins)
out += f""".section .rodata,"a"
.p2align 6
.amdhsa_kernel {NAME}
  .amdhsa_next_free_vgpr 256
  .amdhsa_next_free_sgpr 102
  .amdhsa_accum_offset 256
  .amdhsa_group_segment_fixed_size 0
  .amdhsa_kernarg_size 96
  .amdhsa_user_sgpr_count 2
  .amdhsa_user_sgpr_kernarg_segment_ptr 1
  .amdhsa_system_sgpr_workgroup_id_x 1
.end_amdhsa_kernel
"""
open(sys.argv[1], "w").write(out)
print(f"instrs={sum(1 for I in ins if I.kind not in ('label','dir'))} nop-sites={len(st)} nop-states={sum(n for n,_ in st)}", file=sys.stderr)
if OPT.get("nops"):
    for n, tx in st: print(n, tx, file=sys.stderr)
```

```python
import re

def v(i, n=1): return f"v{i}" if n == 1 else f"v[{i}:{i+n-1}]"
def s(i, n=1): return f"s{i}" if n == 1 else f"s[{i}:{i+n-1}]"

_reg = re.compile(r"^(-?)(?:abs\()?([vs])(?:(\d+)|\[(\d+):(\d+)\])\)?$")
def regs_of(tok):
    tok = tok.strip()
    if tok == "vcc": return [("s", 106), ("s", 107)]
    if tok == "exec": return [("s", 126), ("s", 127)]
    if tok == "m0": return [("s", 124)]
    m = _reg.match(tok)
    if not m: return []
    k = m.group(2)
    if m.group(3) is not None: return [(k, int(m.group(3)))]
    return [(k, r) for r in range(int(m.group(4)), int(m.group(5)) + 1)]

TRANS = ("v_exp_f32", "v_log_f32", "v_rcp_f32", "v_rsq_f32", "v_sqrt_f32", "v_sin_f32", "v_cos_f32")

class Ins:
    __slots__ = ("text", "op", "ops", "mods", "defs", "uses", "kind", "cond", "note")
    def __init__(self, text, cond=False):
        self.text = text.strip(); self.cond = cond; self.note = ""
        mt = re.search(r";\s*tag=(\w+)", self.text)
        if mt: self.note = mt.group(1)
        t = self.text.split(";")[0].strip()
        if t.endswith(":") or t.startswith(".") or t == "":
            self.op = "label" if t.endswith(":") else "dir"; self.ops = []; self.mods = ""
            self.defs = []; self.uses = []; self.kind = self.op; return
        t = re.sub(r"\s+(op_sel|op_sel_hi|neg_lo|neg_hi):\[[^\]]*\]", "", t)
        sp = t.split(None, 1)
        self.op = sp[0]; rest = sp[1] if len(sp) > 1 else ""
        parts = [p.strip() for p in rest.split(",")] if rest else []
        mods = ""
        if parts:
            last = parts[-1].split(None, 1)
            parts[-1] = last[0]
            if len(last) > 1: mods = last[1]
        self.ops = parts; self.mods = mods
        op = self.op
        R = [regs_of(p) for p in parts]
        flat = lambda L: [x for l in L for x in l]
        d, u = [], []
        if op.startswith("v_mfma"):
            k = "mfma"; d = R[0]; u = flat(R[1:])
        elif op.startswith("ds_read"):
            k = "dsr"; d = R[0]; u = flat(R[1:])
        elif op.startswith("ds_"):
            k = "dsw"; u = flat(R)
        elif op.startswith("buffer_load") or op.startswith("global_load"):
            if re.search(r"\blds\b", mods): k = "dma"; u = flat(R) + [("s", 124)]
            else:
                k = "vld"; d = R[0]; u = flat(R[1:])
                if "d16" in op: u += R[0]
        elif op == "buffer_wbl2": k = "salu"
        elif op.startswith("buffer_store") or op.startswith("global_store") or op.startswith("buffer_atomic"):
            k = "vst"; u = flat(R)
        elif op.startswith(("s_load", "s_buffer_load")) or op in ("s_memtime", "s_memrealtime"):
            k = "smem"; d = R[0]; u = flat(R[1:])
        elif op.startswith("v_"):
            k = "valu"
            if op.startswith("v_permlane") and "swap" in op:
                d = flat(R); u = flat(R)
            else:
                d = R[0]; u = flat(R[1:])
                if op.startswith(("v_fmac", "v_dot2c", "v_mac")): u += R[0]
                if op.startswith("v_cmpx"): d += [("s", 126), ("s", 127)]
        elif op in ("s_waitcnt", "s_barrier", "s_nop", "s_sleep", "s_setprio", "s_endpgm") or op.startswith("s_cbranch") or op == "s_branch":
            k = op if op in ("s_waitcnt", "s_barrier", "s_nop") else "ctl"
            if "vcc" in op: u = [("s", 106), ("s", 107)]
        elif op.startswith("s_"):
            k = "salu"
            if op.startswith(("s_cmp", "s_bitcmp", "s_set_gpr_idx")): u = flat(R)
            else:
                d = R[0] if R else []; u = flat(R[1:])
                if "saveexec" in op: d = d + [("s", 126), ("s", 127)]
        else:
            raise ValueError("unknown op " + text)
        self.kind = k; self.defs = d; self.uses = u
    def states(self):
        if self.kind in ("label", "dir"): return 0
        if self.kind == "s_nop": return int(self.ops[0], 0) + 1
        return 1

class Prog:
    def __init__(self):
        self.ins = []; self._cond = None; self._lab = 0
    def __call__(self, text):
        for l in text.split("\n"):
            if l.strip(): self.ins.append(Ins(l, self._cond))
    def add(self, lst):
        for t in lst: self(t)
    def cond_begin(self, key): assert not self._cond; self._cond = key
    def cond_end(self): self._cond = None
    def lab(self, p="L"):
        self._lab += 1; return f"{p}_{self._lab}"

def interleave(main, fill, per=None, lead=0):
    out = []; n = len(main); pos = 0
    for i, g in enumerate(main):
        out += g
        if i < lead: continue
        tgt = len(fill) * (i + 1 - lead) // (n - lead) if per is None else min(len(fill), pos + per)
        out += fill[pos:tgt]; pos = tgt
    out += fill[pos:]
    return out

_wc = re.compile(r"(vmcnt|lgkmcnt)\((\d+)\)")
def auto_wait(ins):
    out = []
    Q = {"lgkmcnt": [], "vmcnt": []}
    def sure(e, key): return ((not e[1]) or e[1] == key) and ("smem",) not in e[0]
    def need(q, regs, key):
        idx = -1
        for i, e in enumerate(q):
            if (e[0] & regs) and not (key and key in e[2]): idx = i
        if idx < 0: return None
        return sum(1 for e in q[idx + 1:] if sure(e, key))
    def retire(nm, n, key):
        q = Q[nm]; cnt = 0; cut = 0
        for i in range(len(q) - 1, -1, -1):
            if cnt >= n: cut = i + 1; break
            if sure(q[i], key): cnt += 1
        else: cut = 0
        if n == 0: cut = len(q)
        if n > 0 and any(("smem",) in e[0] for e in q[:cut]):
            sm = [e for e in q[:cut] if ("smem",) in e[0]]; q = [e for e in q[:cut] if ("smem",) not in e[0]] + sm + q[cut:]; cut -= len(sm)
        if not key: Q[nm] = q[cut:]
        else:
            keep = []
            for e in q[:cut]:
                if e[1] == key: continue
                e[2].add(key); keep.append(e)
            Q[nm] = keep + q[cut:]
    for I in ins:
        if I.kind == "dir" and I.text.startswith(".reset"):
            Q["lgkmcnt"] = []; Q["vmcnt"] = []; continue
        if I.kind == "dir" and I.text.startswith(".waitvm"):
            a = I.text.split(); key = ("tag", a[1])
            n = need(Q["vmcnt"], {key}, I.cond)
            w = []
            if n is not None: w.append(f"vmcnt({min(n,63)})")
            if len(a) > 2: w.append("lgkmcnt(0)")
            if not w: continue
            I = Ins("s_waitcnt " + " ".join(w), I.cond)
        if I.kind == "s_waitcnt":
            for nm, n in _wc.findall(I.text): retire(nm, int(n), I.cond)
            out.append(I); continue
        regs = set(I.uses) | set(I.defs)
        w = []
        for nm, mx in (("vmcnt", 63), ("lgkmcnt", 15)):
            n = need(Q[nm], regs, I.cond)
            if n is not None:
                n = min(n, mx)
                if nm == "lgkmcnt" and any(("smem",) in e[0] and (e[0] & regs) for e in Q[nm]): n = 0
                w.append(f"{nm}({n})"); retire(nm, n, I.cond)
        if w: out.append(Ins("s_waitcnt " + " ".join(w), I.cond))
        if I.kind in ("dsr", "dsw"): Q["lgkmcnt"].append([set(I.defs), I.cond, set()])
        elif I.kind == "smem": Q["lgkmcnt"].append([set(I.defs) | {("smem",)}, I.cond, set()])
        elif I.kind in ("vld", "vst", "dma"): Q["vmcnt"].append([set(I.defs) | ({("tag", I.note)} if I.note else set()), I.cond, set()])
        out.append(I)
    return out

def hazards(ins, stats=None):
    out = []
    def is_v(r): return r[0] == "v"
    for I in ins:
        if I.kind in ("label", "dir"):
            out.append(I); continue
        needn = 0; dist = 0
        U = set(I.uses); D = set(I.defs)
        for P in reversed(out):
            if dist >= 20: break
            if P.kind in ("label", "dir"): continue
            req = 0
            PD = set(P.defs)
            if P.kind == "mfma":
                npass = 8 if "32x32" in P.op else (2 if "4x4x4" in P.op else 4)
                big = {8: 12, 4: 8, 2: 5}[npass]; ovl = {8: 10, 4: 6, 2: 4}[npass]; war = {8: 7, 4: 3, 2: 1}[npass]
                if I.kind == "mfma":
                    ab = set(regs_of(I.ops[1])) | set(regs_of(I.ops[2])); c = set(regs_of(I.ops[3]))
                    if PD & ab: req = max(req, big)
                    if PD & c and not (I.ops[3] == P.ops[0] and I.op == P.op): req = max(req, ovl)
                    if PD & c and npass == 2: req = max(req, 2)
                    if PD & D and not (I.ops[0] == P.ops[0] and I.ops[3] == P.ops[0]): req = max(req, big)
                elif I.kind in ("valu", "dsr", "dsw", "vld", "vst", "dma"):
                    if PD & (U | D): req = max(req, big)
                    if I.kind == "valu" and set(regs_of(P.ops[3])) & D: req = max(req, war)
            elif P.kind == "valu":
                pv = {r for r in PD if is_v(r)}; ps = {r for r in PD if not is_v(r)}
                isdot = P.op.startswith("v_dot")
                if I.kind == "mfma" and pv & U: req = max(req, 3 if isdot else 2)
                if ("s", 126) in ps and I.kind == "mfma": req = max(req, 4)
                if I.kind == "valu":
                    if P.op.startswith(TRANS) and not I.op.startswith(TRANS) and pv & U: req = max(req, 1)
                    if I.op.startswith("v_permlane") and pv & U: req = max(req, 2)
                    if ("dpp" in I.op) and pv & U: req = max(req, 2)
                    if I.op.startswith(("v_readfirstlane", "v_readlane")) and pv & U: req = max(req, 1)
                    if ps & U: req = max(req, 4 if I.op.startswith(("v_readlane", "v_writelane")) else 2)
                    if I.op.startswith("v_cndmask") and len(I.ops) == 4 and ps & set(regs_of(I.ops[3])): req = max(req, 2)
                    if isdot and pv & (U | D):
                        if I.op == P.op and not (pv & (set(regs_of(I.ops[1])) | set(regs_of(I.ops[2])))): pass
                        else: req = max(req, 3)
                if isdot and I.kind in ("dsw", "vst", "dsr", "vld") and pv & (U | D): req = max(req, 3)
                if I.kind in ("vld", "vst", "dma") and ps & U: req = max(req, 5)
                if I.kind == "ctl" and ps & U: req = max(req, 1)
                if I.kind == "salu" and ps & U: req = max(req, 1)
            elif P.kind == "vst":
                if ("x4" in P.op or "x3" in P.op) and I.kind in ("valu", "dsr", "vld", "mfma") and set(regs_of(P.ops[0])) & D:
                    req = max(req, 2)
            elif P.kind == "dsw":
                if ("b128" in P.op or "b96" in P.op) and I.kind == "valu" and set(P.uses) & D: req = max(req, 2)
            elif P.kind == "salu":
                if ("s", 124) in PD and I.kind == "dma": req = max(req, 1)
            needn = max(needn, req - dist)
            if not (P.cond and P.cond != I.cond): dist += P.states()
        if needn > 0:
            if stats is not None: stats.append((needn, I.text))
            while needn > 0:
                k = min(needn, 16); out.append(Ins(f"s_nop {k-1}", I.cond)); needn -= k
        out.append(I)
    return out

def render(ins):
    o = []
    for I in ins:
        o.append(I.text if I.kind in ("label", "dir") else "    " + I.text)
    return "\n".join(o) + "\n"
```

```python
import sys, math, struct
from ir import *

NAME = "parallel_sum__linear_kernel_hedgehog__dense_activation_gelu__prompt_kernel"
OPT = dict(a.split("=") for a in sys.argv[2:] if "=" in a)
STAMP = int(OPT.get("stamp", 0))

def f2u(x): return struct.unpack("<I", struct.pack("<f", x))[0]
LOG2E = 1.4426950408889634
GC1 = -2.0 * LOG2E * math.sqrt(2.0 / math.pi)
GC2 = GC1 * 0.044715

HF_RB = 144 * 1024
WS_KVP = 0xA00000
KVP_SZ = 4352
WS_FLG = 0xC00000
WS_KVF = 0xC08000
WS_STAMP = 0xD00000
WS_SIZE = 0x1000000
RA, RB, RC = 0, 65536, 131072
L_KVB = 147456
L_CS = 155648
L_ST = L_CS + 4096
L_WPHI = L_CS + 6144
LDS_SIZE = 163840
SPIN_MAX = 1 << 15

sW, sRT, sG, sM, sN = 3, 4, 5, 6, 7
SX, SW2, SWS, SWT, SAUX, SDBG, SWO, SOUT = 8, 12, 16, 20, 24, 28, 36, 40
sXo, sWo, sROT, sC1 = 32, 33, 34, 35
SB2 = 92
sFL, sOo, sM0x, sT0, sT1, sSIG, sONE, sFO, sHALF, sHo, sWq, sW3, sT2, sCNT, sW34, sT3 = range(44, 60)
sEX = 60
sH0, sH3, sM4, sK = 62, 63, 64, 65
sST = 66
sB2o, sBOo = 90, 91
sA0, sA1, sR4, sSH, sD0, sD1 = range(96, 102)
sOK = sSIG
sQ = [sXo, sWo, sROT, sC1]
sPL = 28
VCSA = 0; vL = 1
AX = 2; AW = 6; AB = 10; VZ, VFV = 12, 13
VX0, VX1, VW, VB, VW3 = 14, 15, 16, 17, 18
VSTA, S1, S2, CS0 = 19, 20, 21, 22
VW0 = 22
RSTD, STD, K1, K2, VL16 = 23, 24, 25, 26, 27
BAUG, AAUG, SEL, BIAS = 28, 32, 36, 40
T = 44
WF = 64
ACC0, ACC1, ACC2 = 80, 96, 112
XF = 128

P = Prog()
STI = dict(start=0, kernarg=1, it0=2, pass1=3, sub1=4, sub2=5, qsm=6, sub3=6, kvseen=7, x7=7, p1end=8, hseen=9, p2mm=10, end=11)
if OPT.get("sp") == "p2": STI = dict(start=0, p1end=1, k1=2, k3=3, k5=4, k7=5, k9=6, k11=7, k13=8, k15=9, p2mm=10, end=11)
if OPT.get("sp") == "att": STI = dict(start=0, sub1=1, kv0=2, kv1=3, kv2=4, sub2=5, qsm=6, kvseen=7, sm2=8, gsum=9, p1end=10, end=11)
if OPT.get("sp", "").startswith("l:"): STI = {n: i for i, n in enumerate(["start"] + OPT["sp"][2:].split(","))}
def stamp_i(name):
    if not STAMP or name not in STI: return []
    i = STI[name]
    return [f"{'s_memrealtime' if STAMP == 1 else 's_memtime'} {s(sST + 2*i, 2)} ; stamp {i} {name}"]
def stamp(name): P.add(stamp_i(name))

def mfma(d, a, b, c=None):
    return f"v_mfma_f32_32x32x16_bf16 {v(d,16)}, {v(a,4)}, {v(b,4)}, {v(d,16) if c is None else c}"
def m16(d, a, b, c=None):
    return f"v_mfma_f32_16x16x32_bf16 {v(d,4)}, {v(a,4)}, {v(b,4)}, {v(d,4) if c is None else c}"
def srd(base, nbytes):
    P(f"s_mov_b32 {s(base+2)}, {nbytes}\ns_mov_b32 {s(base+3)}, 0x20000")
def lines(t): return [l for l in t.split("\n") if l.strip()]

P("s_cmp_ge_u32 s2, 256")
P("s_cbranch_scc1 L_end")
stamp("start")
P(f"s_load_dwordx2 {s(SX,2)}, s[0:1], 0")
P(f"s_load_dwordx2 {s(SWS,2)}, s[0:1], 88")
P(f"s_load_dwordx2 {s(SDBG,2)}, s[0:1], 80")
P(f"s_load_dwordx2 {s(SW2,2)}, s[0:1], 56")
P(f"s_load_dwordx2 {s(SWO,2)}, s[0:1], 24")
P(f"s_load_dwordx2 {s(SOUT,2)}, s[0:1], 72")
P(f"s_load_dwordx2 {s(SB2,2)}, s[0:1], 64")
P(f"v_lshrrev_b32 v2, 6, v0")
P(f"v_and_b32 {v(vL)}, 63, v0")
P(f"s_and_b32 {s(sT0)}, s2, 7")
P(f"s_lshr_b32 {s(sT1)}, s2, 3")
P(f"v_readfirstlane_b32 {s(sW)}, v2")
P(f"s_lshr_b32 {s(sRT)}, {s(sT0)}, 2\ns_lshl_b32 {s(sRT)}, {s(sRT)}, 3\ns_and_b32 {s(sT2)}, {s(sT1)}, 7\ns_add_u32 {s(sRT)}, {s(sRT)}, {s(sT2)}")
P(f"s_and_b32 {s(sG)}, {s(sT0)}, 3\ns_lshl_b32 {s(sG)}, {s(sG)}, 1\ns_lshr_b32 {s(sT2)}, {s(sT1)}, 4\ns_add_u32 {s(sG)}, {s(sG)}, {s(sT2)}")
P(f"s_lshl_b32 {s(sM)}, {s(sT0)}, 2\ns_and_b32 {s(sT2)}, {s(sT1)}, 3\ns_add_u32 {s(sM)}, {s(sM)}, {s(sT2)}")
P(f"s_lshr_b32 {s(sN)}, {s(sT1)}, 2")
srd(SX, 2097152)
P(f"s_lshl_b32 {s(sM0x)}, {s(sW)}, 11")
P(f"v_lshrrev_b32 v2, 3, {v(vL)}\nv_and_b32 v3, 7, {v(vL)}\nv_lshrrev_b32 v4, 4, {v(vL)}")
P(f"v_xor_b32 v5, v3, v4\nv_lshlrev_b32 v5, 4, v5\nv_lshl_add_u32 {v(VX0)}, v2, 10, v5")
P(f"v_xor_b32 v5, 64, {v(VX0)}\nv_add_u32 {v(VX1)}, {8192-1024}, v5")
P(f"v_and_b32 v4, 1, v4\nv_lshlrev_b32 v4, 2, v4\nv_xor_b32 v4, v3, v4\nv_lshlrev_b32 v4, 4, v4")
P(f"v_lshl_add_u32 {v(VB)}, v2, 10, v4")
P(f"s_lshl_b32 {s(sXo)}, {s(sRT)}, 17\ns_lshl_b32 {s(sT2)}, {s(sW)}, 14\ns_add_u32 {s(sXo)}, {s(sXo)}, {s(sT2)}")
P(f"s_lshr_b32 {s(sT2)}, {s(sT1)}, 3\ns_lshl_b32 {s(sT2)}, {s(sT2)}, 1\ns_add_u32 {s(sROT)}, {s(sRT)}, {s(sT2)}\ns_and_b32 {s(sROT)}, {s(sROT)}, 7")
if OPT.get("norot"): P(f"s_mov_b32 {s(sROT)}, 0")
P(f"s_lshl_b32 {s(sK)}, {s(sROT)}, 7")
P(f"v_add_u32 {v(VX0)}, {s(sXo)}, {v(VX0)}\nv_add_u32 {v(VX1)}, {s(sXo)}, {v(VX1)}")
P(f"s_lshr_b32 {s(sD0)}, {s(sM0x)}, 1")
P(f"s_bitcmp1_b32 {s(sT1)}, 3")
P("s_cbranch_scc1 L_ffn")

def item1(it, pitch):
    q = it & 3
    return [[f"s_add_u32 m0, {s(sM0x)}, {RA+q*16384}", f"s_mul_i32 {s(sD1)}, {s(sK)}, {pitch//2}",
             f"buffer_load_dwordx4 {v(VX0)}, {s(SX,4)}, {s(sK)} offen lds"],
            [f"buffer_load_dwordx4 {v(VX1)}, {s(SX,4)}, {s(sK)} offen offset:1024 lds"],
            [f"s_add_u32 m0, {s(sD0)}, {RB+it*8192}", f"s_add_u32 {s(sK)}, {s(sK)}, 128",
             f"buffer_load_dwordx4 {v(VW0)}, {s(SWT,4)}, {s(sD1)} offen lds ; tag=it{it}",
             f"s_and_b32 {s(sK)}, {s(sK)}, 1023"]]
def wquarter(region, q, coloff, pitch, tag):
    return [[f"s_add_u32 m0, {s(sM0x)}, {region+q*16384}", f"s_add_u32 {s(sD1)}, {s(sQ[q])}, {coloff}",
             f"buffer_load_dwordx4 {v(VW)}, {s(SWT,4)}, {s(sD1)} offen lds"],
            [f"s_add_u32 {s(sD1)}, {s(sD1)}, {8*pitch-1024}",
             f"buffer_load_dwordx4 {v(VW)}, {s(SWT,4)}, {s(sD1)} offen offset:1024 lds ; tag={tag}"]]
def w3quarter(q, pitch):
    return [[f"s_lshr_b32 {s(sD1)}, {s(sM0x)}, 1", f"s_add_u32 m0, {s(sD1)}, {RA+q*8192}", "s_nop 0",
             f"buffer_load_dwordx4 {v(VW3)}, {s(SWT,4)}, {s(sQ[q])} offen lds ; tag=w3"]]

def spin(label, load, cmp):
    P(f"s_mov_b32 {s(sCNT)}, 0")
    P(f"{label}:")
    P(cmp)
    P(f"s_add_u32 {s(sCNT)}, {s(sCNT)}, 1")
    P(f"s_cbranch_vccz {label}_ok")
    P(f"s_cmp_gt_u32 {s(sCNT)}, {SPIN_MAX}")
    P(f"s_cbranch_scc1 {label}_ok")
    P("s_sleep 1")
    old = P._cond; P._cond = label
    P(load)
    P("s_waitcnt vmcnt(0)")
    P._cond = old
    P(f"s_branch {label}")
    P(f"{label}_ok:")

def gelu(acc, n, pk=False, t0=T):
    L = []
    for g4 in range(0, n, 4):
        t = t0 + 8 + (g4 & 4)
        a = [acc + g4 + i for i in range(4)]
        if pk:
            L += [f"v_pk_mul_f32 {v(t+i,2)}, {v(a[i],2)}, {v(a[i],2)}" for i in (0, 2)]
            L += [f"v_pk_fma_f32 {v(t+i,2)}, {v(t+i,2)}, {v(K2,2)}, {v(STD,2)} op_sel:[0,0,1] op_sel_hi:[1,0,1]" for i in (0, 2)]
            L += [f"v_pk_mul_f32 {v(t+i,2)}, {v(a[i],2)}, {v(t+i,2)}" for i in (0, 2)]
        else:
            L += [f"v_mul_f32 {v(t+i)}, {v(a[i])}, {v(a[i])}" for i in range(4)]
            L += [f"v_fma_f32 {v(t+i)}, {v(t+i)}, {v(K2)}, {v(K1)}" for i in range(4)]
            L += [f"v_mul_f32 {v(t+i)}, {v(a[i])}, {v(t+i)}" for i in range(4)]
        L += [f"v_exp_f32 {v(t+i)}, {v(t+i)}" for i in range(4)]
        if pk: L += [f"v_pk_fma_f32 {v(t+i,2)}, {v(t+i,2)}, {v(STD,2)}, {v(STD,2)} op_sel_hi:[1,0,0]" for i in (0, 2)]
        else: L += [f"v_fma_f32 {v(t+i)}, {v(t+i)}, {v(STD)}, {v(STD)}" for i in range(4)]
        L += [f"v_rcp_f32 {v(t+i)}, {v(t+i)}" for i in range(4)]
        if pk: L += [f"v_pk_mul_f32 {v(t+i,2)}, {v(a[i],2)}, {v(t+i,2)}" for i in (0, 2)]
        else: L += [f"v_mul_f32 {v(t+i)}, {v(a[i])}, {v(t+i)}" for i in range(4)]
        pr = t0 + (g4 >> 1)
        L += [f"v_cvt_pk_bf16_f32 {v(pr)}, {v(t)}, {v(t+1)}", f"v_cvt_pk_bf16_f32 {v(pr+1)}, {v(t+2)}, {v(t+3)}"]
    return L
def hstore(soff, n, tagn):
    return [f"buffer_store_dwordx4 {v(T+4*j,4)}, {v(VL16)}, {s(SWS,4)}, {s(soff)} offen offset:{1024*j} sc1 ; tag={tagn}" for j in range(n)]
assert K1 == STD + 1

def sum4(d, r):
    return [f"v_add_f32 {v(d)}, {v(r)}, {v(r+1)}", f"v_add_f32 {v(r+2)}, {v(r+2)}, {v(r+3)}", f"v_add_f32 {v(d)}, {v(d)}, {v(r+2)}"]

MS, U = T + 4, T + 16
CSR = T + 12
MC = AAUG

def stats_final():
    t = T + 16
    return [f"v_add_f32 {v(S1)}, {v(MS)}, {v(MS+2)}", f"v_add_f32 {v(S2)}, {v(MS+1)}, {v(MS+3)}",
          f"v_mul_f32 {v(S1)}, {f2u(-1.0/512):#x}, {v(S1)}",
          f"v_mul_f32 {v(t)}, {v(S1)}, {v(S1)}",
          f"v_fma_f32 {v(S2)}, {v(S2)}, {s(sT3)}, -{v(t)}",
          f"v_max_f32 {v(S2)}, 0, {v(S2)}",
          f"v_add_f32 {v(S2)}, {f2u(1e-5):#x}, {v(S2)}",
          f"v_rsq_f32 {v(RSTD)}, {v(S2)}",
          f"v_cvt_pk_bf16_f32 {v(t)}, {v(S1)}, {v(S1)}",
          f"v_mul_f32 {v(STD)}, {v(S2)}, {v(RSTD)}",
          f"v_and_b32 {v(t+1)}, 0xffff0000, {v(t)}",
          f"v_sub_f32 {v(t+1)}, {v(S1)}, {v(t+1)}",
          f"v_cvt_pk_bf16_f32 {v(BAUG)}, {v(S1)}, {v(t+1)}",
          f"v_cvt_pk_bf16_f32 {v(BAUG+1)}, {v(S1)}, {v(STD)}",
          f"v_and_b32 {v(t+1)}, 0xffff0000, {v(BAUG+1)}",
          f"v_sub_f32 {v(t+1)}, {v(STD)}, {v(t+1)}",
          f"v_cmp_gt_u32 vcc, 32, {v(vL)}",
          f"v_cvt_pk_bf16_f32 {v(BAUG+2)}, {v(t+1)}, 0",
          f"v_cndmask_b32 {v(BAUG)}, 0, {v(BAUG)}, vcc",
          f"v_cndmask_b32 {v(BAUG+1)}, 0, {v(BAUG+1)}, vcc",
          f"v_cndmask_b32 {v(BAUG+2)}, 0, {v(BAUG+2)}, vcc"]

def aug(acc, part, bias):
    t = T + 18; dst = AAUG
    L = sum4(CS0, part) + [f"v_cvt_pk_bf16_f32 {v(dst)}, {v(CS0)}, {v(CS0)}",
         f"v_and_b32 {v(t)}, 0xffff0000, {v(dst)}",
         f"v_sub_f32 {v(t)}, {v(CS0)}, {v(t)}"]
    if bias is None:
        L += [f"v_cvt_pk_bf16_f32 {v(dst+1)}, {v(t)}, 0"]
    else:
        L += [f"v_cvt_pk_bf16_f32 {v(t)}, {v(t)}, 0", f"v_mov_b32 {v(dst+2)}, {v(bias)}",
              f"v_lshl_or_b32 {v(dst+1)}, {v(bias)}, 16, {v(t)}"]
    return L + [mfma(acc, dst, BAUG)]

def flag(level, tag):
    return [f".waitvm {tag}", f"v_mov_b32 {v(VFV)}, {level}",
            f"buffer_store_dword {v(VFV)}, {v(VZ)}, {s(SWS,4)}, {s(sFO)} offen sc1"]

KAREA = [None, RA + 32768, RA + 32768 + 2048, RB, RB + 2048, RB + 32768, RB + 32768 + 2048, RA + 2048, RA]
def rot_k(kk, dst):
    if kk < 12: return [f"s_add_u32 {s(dst)}, {s(sR4)}, {kk}", f"s_and_b32 {s(dst)}, {s(dst)}, 3", f"s_add_u32 {s(dst)}, {s(dst)}, {s(sSH)}"] + \
                       ([f"s_add_u32 {s(dst)}, {s(dst)}, {kk & ~3}"] if kk & ~3 else [])
    if kk < 14: return [f"s_mul_i32 {s(dst)}, {s(sSH)}, 6", f"s_sub_u32 {s(dst)}, {kk}, {s(dst)}"]
    return [f"s_add_u32 {s(dst)}, {s(sR4)}, {kk-14}", f"s_and_b32 {s(dst)}, {s(dst)}, 3"]
def b_dma(kk):
    slot = kk % 9
    m0 = f"s_add_u32 m0, {s(sM4)}, {KAREA[slot]}" if slot else f"s_add_u32 m0, {s(sM0x)}, {RC}"
    sr, so = (SW2, sB2o) if kk < 14 else (SWO, sBOo)
    return [rot_k(kk, sD0) + [f"s_lshl_b32 {s(sD0)}, {s(sD0)}, 14", m0, f"s_add_u32 {s(sD0)}, {s(sD0)}, {s(so)}",
             f"buffer_load_dwordx4 {v(VB)}, {s(sr,4)}, {s(sD0)} offen lds"],
            [f"s_add_u32 {s(sD0)}, {s(sD0)}, {8192 - 1024}",
             f"buffer_load_dwordx4 {v(VB)}, {s(sr,4)}, {s(sD0)} offen offset:1024 lds ; tag=b{kk}"]]

def setup(ffn):
    pitch = 3584 if ffn else 3072
    tp = "f" if ffn else "a"
    P(f"s_load_dwordx2 {s(SWT,2)}, s[0:1], {40 if ffn else 8}")
    P(f"s_load_dwordx2 {s(SAUX,2)}, s[0:1], {48 if ffn else 16}")
    srd(SWT, 1835008 if ffn else 1572864)
    P(f"v_mul_u32_u24 {v(VW)}, {pitch}, v2\nv_add_u32 {v(VW)}, {v(VW)}, v4")
    if ffn:
        P(f"s_mul_i32 {s(sT0)}, {s(sG)}, 448\ns_and_b32 {s(sT1)}, {s(sG)}, 1\ns_lshl_b32 {s(sT2)}, {s(sT1)}, 6\ns_add_u32 {s(sWq)}, {s(sT0)}, {s(sT2)}")
        P(f"s_mul_i32 {s(sWo)}, {s(sW)}, {8*pitch}\ns_add_u32 {s(sWo)}, {s(sWo)}, {s(sWq)}")
    else:
        P(f"s_lshl_b32 {s(sWq)}, {s(sG)}, 7")
        P(f"s_mul_i32 {s(sWo)}, {s(sW)}, {8*pitch}\ns_add_u32 {s(sWo)}, {s(sWo)}, {s(sWq)}\ns_add_u32 {s(sWo)}, {s(sWo)}, 1024")
    P(f"v_add_u32 {v(VW0)}, {s(sWo)}, {v(VW)}")
    P("s_waitcnt lgkmcnt(0)")
    stamp("kernarg")
    for g_ in item1(0, pitch): P.add(g_)
    srd(SWS, WS_SIZE); srd(SDBG, 256); srd(SW2, 1835008); srd(SWO, 524288); srd(SOUT, 2097152); srd(SB2, 1024); srd(SAUX, 3584 if ffn else 16384)
    P(f"v_lshlrev_b32 {v(VL16)}, 4, {v(vL)}")
    P(f"s_lshr_b32 {s(sHALF)}, {s(sW)}, 2")
    P(f"s_and_b32 {s(sW34)}, {s(sW)}, 3\ns_xor_b32 {s(sSIG)}, {s(sW34)}, {s(sHALF)}")
    if not ffn:
        for i in range(4): P(f"v_mov_b32 {v(T+i)}, 0")
        P(f"s_lshl_b32 {s(sT0)}, {s(sW)}, 8\ns_add_u32 {s(sT0)}, {s(sT0)}, s2\ns_sub_u32 {s(sT0)}, {s(sT0)}, 256\ns_cmp_lt_u32 {s(sT0)}, 8")
        P(f"s_cbranch_scc0 L_nzero")
        P.cond_begin("zw")
        P(f"s_lshl_b32 {s(sT0)}, s2, 12\ns_add_u32 {s(sT0)}, {s(sT0)}, {WS_FLG}")
        for i in range(4): P(f"buffer_store_dwordx4 {v(T,4)}, {v(VL16)}, {s(SWS,4)}, {s(sT0)} offen offset:{1024*i} sc1")
        P(f"s_lshl_b32 {s(sT0)}, s2, 8\ns_add_u32 {s(sT0)}, {s(sT0)}, {WS_KVF}\nv_lshlrev_b32 v3, 2, {v(vL)}")
        P(f"buffer_store_dword {v(T)}, v3, {s(SWS,4)}, {s(sT0)} offen sc1 ; tag=zf")
        P.cond_end()
        P(f"L_nzero:")
    if OPT.get("touch", "1") == "1":
        P(f"s_cmp_lt_u32 {s(sW)}, 6")
        P(f"s_cbranch_scc1 L_nt{tp}")
        P.cond_begin("w67")
        P(f"v_lshlrev_b32 v3, 7, {v(vL)}\ns_mul_i32 {s(sT0)}, s2, 7168\ns_lshl_b32 {s(sT1)}, s2, 11")
        P(f"s_cmp_eq_u32 {s(sW)}, 6\ns_cbranch_scc0 L_nta{tp}")
        P(f"buffer_load_dword v255, v3, {s(SW2,4)}, {s(sT0)} offen")
        P(f"s_branch L_nt{tp}")
        P(f"L_nta{tp}:")
        P(f"v_and_b32 v3, 2047, v3")
        P(f"buffer_load_dword v255, v3, {s(SWO,4)}, {s(sT1)} offen")
        P(f"buffer_load_dword v254, v3, {s(SB2,4)}, 0 offen")
        P.cond_end()
        P(f"L_nt{tp}:")
    late1 = OPT.get("late1", "1") == "1"
    if not late1:
        for g_ in item1(1, pitch): P.add(g_)
    P(f"s_lshl_b32 {s(sT0)}, {s(sRT)}, 4\ns_add_u32 {s(sT0)}, {s(sT0)}, {s(sG)}\ns_lshl_b32 {s(sT0)}, {s(sT0)}, 7")
    P(f"s_and_b32 {s(sT1)}, {s(sW)}, 2\ns_lshl_b32 {s(sT1)}, {s(sT1)}, 3\ns_add_u32 {s(sT0)}, {s(sT0)}, {s(sT1)}\ns_and_b32 {s(sT1)}, {s(sW)}, 1\ns_lshl_b32 {s(sT1)}, {s(sT1)}, 2\ns_add_u32 {s(sT0)}, {s(sT0)}, {s(sT1)}\ns_lshl_b32 {s(sT1)}, {s(sHALF)}, 3\ns_add_u32 {s(sT0)}, {s(sT0)}, {s(sT1)}")
    P(f"s_add_u32 {s(sFO)}, {s(sT0)}, {WS_FLG + (1024 if ffn else 0)}")
    P(f"s_lshl_b32 {s(sT0)}, {s(sRT)}, 2\ns_add_u32 {s(sT0)}, {s(sT0)}, {s(sW34)}\ns_mul_i32 {s(sHo)}, {s(sT0)}, {HF_RB}")
    if ffn:
        P(f"v_and_b32 v5, 31, {v(vL)}\nv_lshlrev_b32 v5, 1, v5")
        P(f"s_lshl_b32 {s(sT0)}, {s(sHALF)}, 6\ns_add_u32 {s(sT0)}, {s(sT0)}, {s(sWq)}")
        for i in range(3): P(f"buffer_load_ushort {v(BIAS+i)}, v5, {s(SAUX,4)}, {s(sT0)} offen offset:{128*i}")
        P(f"s_lshl_b32 {s(sT0)}, {s(sT0)}, 5\ns_add_u32 {s(sH0)}, {s(sHo)}, {s(sT0)}")
        P(f"s_mul_i32 {s(sW3)}, {s(sG)}, 448\ns_add_u32 {s(sT0)}, {s(sW3)}, 384\ns_bitcmp1_b32 {s(sG)}, 0\ns_cselect_b32 {s(sW3)}, {s(sW3)}, {s(sT0)}")
        P(f"s_lshl_b32 {s(sT0)}, {s(sHALF)}, 5\nv_xor_b32 v5, {s(sT0)}, v5")
        P(f"buffer_load_ushort {v(BIAS+3)}, v5, {s(SAUX,4)}, {s(sW3)} offen")
        P(f"s_add_u32 {s(sT0)}, {s(sT0)}, {s(sW3)}\ns_lshl_b32 {s(sT0)}, {s(sT0)}, 5\ns_add_u32 {s(sH3)}, {s(sHo)}, {s(sT0)}")
        P(f"v_lshrrev_b32 v2, 2, {v(vL)}\nv_and_b32 v4, 3, {v(vL)}\nv_lshlrev_b32 v4, 4, v4\nv_mul_u32_u24 {v(VW3)}, {pitch}, v2\nv_add_u32 {v(VW3)}, {v(VW3)}, v4")
    else:
        P(f"s_cmp_lt_u32 {s(sW)}, 2")
        P(f"s_cbranch_scc0 L_nphi")
        P.cond_begin("w01")
        P(f"s_lshl_b32 {s(sT0)}, {s(sG)}, 11\ns_lshl_b32 {s(sT1)}, {s(sW)}, 10\ns_add_u32 {s(sT0)}, {s(sT0)}, {s(sT1)}\ns_add_u32 m0, {s(sT1)}, {L_WPHI}\ns_nop 0")
        P(f"buffer_load_dwordx4 {v(VL16)}, {s(SAUX,4)}, {s(sT0)} offen lds")
        P.cond_end()
        P("L_nphi:")
    P(f"s_mul_i32 {s(sT0)}, {s(sW34)}, {16*pitch}\ns_add_u32 {s(sWq)}, {s(sWq)}, {s(sT0)}")
    P(f"v_add_u32 {v(VW)}, {s(sWq)}, {v(VW)}")
    if ffn: P(f"s_add_u32 {s(sW3)}, {s(sW3)}, {s(sT0)}\nv_add_u32 {v(VW3)}, {s(sW3)}, {v(VW3)}")
    P(f"s_add_u32 {s(sT0)}, {s(sROT)}, {s(sHALF)}")
    for q in range(4):
        P(f"s_add_u32 {s(sT1)}, {s(sT0)}, {2*q}\ns_and_b32 {s(sT1)}, {s(sT1)}, 7\ns_mul_i32 {s(sQ[q])}, {s(sT1)}, {64*pitch}")
    P(f"s_mov_b32 {s(sT3)}, {f2u(1.0/512):#x}\ns_mov_b32 {s(sONE)}, 0x3f803f80")
    P(f"v_bfe_u32 {v(T)}, {v(vL)}, 2, 2\nv_lshrrev_b32 {v(T+1)}, 5, {v(vL)}")
    P(f"v_bfe_u32 {v(T+2)}, {v(vL)}, 4, 1\nv_lshlrev_b32 {v(T+2)}, 5, {v(T+2)}\nv_and_b32 {v(T+3)}, 3, {v(vL)}\nv_lshl_add_u32 {v(T+2)}, {v(T+3)}, 3, {v(T+2)}")
    P(f"v_and_b32 {v(T+4)}, 31, {v(vL)}\nv_bfe_u32 {v(T+5)}, {v(vL)}, 1, 3\nv_xor_b32 {v(T+5)}, {v(T+5)}, {v(T+1)}")
    P(f"s_lshl_b32 {s(sT0)}, {s(sW34)}, 12\nv_lshlrev_b32 {v(T+8)}, 7, {v(T+4)}\nv_add_u32 {v(T+8)}, {s(sT0)}, {v(T+8)}")
    P(f"v_lshl_add_u32 {v(T+9)}, {v(T+1)}, 3, {v(T)}\nv_lshl_add_u32 {v(T+10)}, {v(T+9)}, 7, {v(T+2)}\nv_lshrrev_b32 {v(T+7)}, 1, {v(T)}\nv_xor_b32 {v(T+7)}, {s(sHALF)}, {v(T+7)}\nv_lshl_add_u32 {v(T+10)}, {v(T+7)}, 6, {v(T+10)}")
    for p in range(4):
        P(f"s_xor_b32 {s(sT0)}, {s(sSIG)}, {p}\ns_lshl_b32 {s(sT1)}, {s(sT0)}, 1\nv_xor_b32 {v(T+6)}, {s(sT1)}, {v(T+5)}\nv_lshl_add_u32 {v(AX+p)}, {v(T+6)}, 4, {v(T+8)}")
        P(f"s_lshl_b32 {s(sT1)}, {s(sT0)}, 11\ns_add_u32 {s(sT1)}, {s(sT1)}, {RB}\nv_add_u32 {v(AW+p)}, {s(sT1)}, {v(T+10)}")
    if ffn:
        P(f"s_lshl_b32 {s(sT0)}, {s(sHALF)}, 5\nv_xor_b32 {v(T+7)}, {s(sT0)}, {v(T+2)}\nv_lshl_add_u32 {v(T+7)}, {v(T+9)}, 6, {v(T+7)}")
        for i, p in enumerate((0, 2)):
            P(f"s_xor_b32 {s(sT0)}, {s(sSIG)}, {p}\ns_lshl_b32 {s(sT0)}, {s(sT0)}, 10\nv_add_u32 {v(AB+i)}, {s(sT0)}, {v(T+7)}")
    P(f"v_lshlrev_b32 {v(T+4)}, 4, {v(T+4)}")
    P(f"s_lshl_b32 {s(sT0)}, {s(sHALF)}, 9\ns_add_u32 {s(sT0)}, {s(sT0)}, {L_CS}\nv_add_u32 {v(VCSA)}, {s(sT0)}, {v(T+4)}")
    P(f"s_lshl_b32 {s(sT0)}, {s(sW34)}, 9\ns_add_u32 {s(sT0)}, {s(sT0)}, {L_ST}\nv_add_u32 {v(VSTA)}, {s(sT0)}, {v(T+4)}")
    P(f"v_lshrrev_b32 {v(T+4)}, 2, {v(vL)}\nv_xor_b32 {v(T+4)}, {v(T+4)}, {v(vL)}\nv_and_b32 {v(T+4)}, 4, {v(T+4)}\nv_cmp_eq_u32 vcc, 0, {v(T+4)}\nv_mov_b32 {v(T+4)}, {s(sONE)}")
    for r in (VZ, BAUG+3, AAUG+2, AAUG+3): P(f"v_mov_b32 {v(r)}, 0")
    for i in range(4): P(f"v_cndmask_b32 {v(SEL+i)}, 0, {v(T+4)}, vcc")
    P(f"s_lshl_b32 {s(sW34)}, {s(sW34)}, 2")
    if late1:
        for g_ in item1(1, pitch): P.add(g_)
    P(f"s_lshl_b32 {s(sT0)}, {s(sN)}, 7\ns_mul_i32 {s(sB2o)}, {s(sW)}, {224*1024}\ns_add_u32 {s(sB2o)}, {s(sB2o)}, {s(sT0)}")
    P(f"s_lshl_b32 {s(sBOo)}, {s(sW)}, 16\ns_add_u32 {s(sBOo)}, {s(sBOo)}, {s(sT0)}\ns_lshl_b32 {s(sM4)}, {s(sW)}, 12")
    P(f"s_lshl_b32 {s(sOo)}, {s(sM)}, 16\ns_lshl_b32 {s(sT1)}, {s(sW)}, 13\ns_add_u32 {s(sOo)}, {s(sOo)}, {s(sT1)}\ns_add_u32 {s(sOo)}, {s(sOo)}, {s(sT0)}")
    P(f"s_add_u32 {s(sR4)}, {s(sM)}, {s(sN)}\ns_and_b32 {s(sR4)}, {s(sR4)}, {0 if OPT.get('norot') else 3}\ns_and_b32 {s(sSH)}, {s(sW)}, 1\ns_lshl_b32 {s(sSH)}, {s(sSH)}, 1")
    P(f"s_lshr_b32 {s(sT0)}, {s(sM)}, 1\ns_lshl_b32 {s(sT0)}, {s(sT0)}, 4\ns_add_u32 {s(sT0)}, {s(sT0)}, {s(sW)}\ns_lshl_b32 {s(sT0)}, {s(sT0)}, 7")
    P(f"s_and_b32 {s(sT1)}, {s(sM)}, 1\ns_lshl_b32 {s(sT1)}, {s(sT1)}, 4\ns_add_u32 {s(sT0)}, {s(sT0)}, {s(sT1)}\ns_add_u32 {s(sFL)}, {s(sT0)}, {WS_FLG}")
    P(f"s_mul_i32 {s(sA0)}, {s(sM)}, {2*HF_RB}\ns_mul_i32 {s(sT0)}, {s(sW)}, {14*1024}\ns_add_u32 {s(sA1)}, {s(sA0)}, {s(sM4)}\ns_add_u32 {s(sA1)}, {s(sA1)}, {112*1024}\ns_add_u32 {s(sA0)}, {s(sA0)}, {s(sT0)}")

class Sched:
    def __init__(self, n):
        self.n = n; self.pre = [[] for _ in range(n)]; self.post = [[] for _ in range(n)]
        self.fill = [[] for _ in range(n)]; self.dma = [[] for _ in range(n)]; self.blk = {}
    def spread(self, lst, a, b):
        for i in range(a, b): self.fill[i] += lst[len(lst)*(i-a)//(b-a): len(lst)*(i+1-a)//(b-a)]
    def dmas(self, groups, a, step=1):
        for i, g in enumerate(groups): self.dma[a + i*step] += g

def rd(G):
    b = WF + 4 * (G & 3)
    if G < 96:
        ks = G & 31; st, p = ks >> 2, ks & 3
        L = [f"ds_read_b128 {v(XF+4*ks,4)}, {v(AX+p)} offset:{RA+(st&3)*16384}"] if G < 32 else []
        if ks < 4 and G >= 32: L.append(f"v_xor_b32 {v(AW+p)}, {RB}, {v(AW+p)}")
        return L + [f"ds_read_b64_tr_b16 {v(b+2*t,2)}, {v(AW+p)} offset:{8192*st+512*t}" for t in range(2)]
    i = G - 96
    return [f"ds_read_b64_tr_b16 {v(b+2*t,2)}, {v(AB+(i&1))} offset:{4096*(i>>1)+256*t}" for t in range(2)]
def xq(G): return XF + 4 * (G & 31) if G < 96 else XF + 8 * (G - 96)

def common_sched(S, ffn, accs, MC):
    pitch = 3584 if ffn else 3072
    tp = "f" if ffn else "a"
    c1, c2 = (128, 256) if ffn else (2048, 0)
    S.dmas(item1(2, pitch), 0, 0)
    for st in range(8):
        G = 4 * st + 2
        S.pre[G] += [f".waitvm it{st+1}" if st < 7 else ".waitvm w1q0 lgkm0", "s_barrier"]
        if st <= 4: S.dmas(item1(st + 3, pitch), G)
        else: S.dmas(wquarter(RA, st - 5, c1, pitch, f"w1q{st-5}"), G)
    def m4(d, r, c=None): return f"v_mfma_f32_4x4x4_16b_bf16 {v(d,4)}, {v(r,2)}, {v(r,2)}, {v(d,4) if c is None else c}"
    Q0, Q1 = T + 8, T + 16
    for f in range(0, 32, 2):
        x = XF + 4 * f; a = max(f - 1, 0); c = "0" if f == 0 else None
        S.post[a] += [m4(Q0, x, c), m4(Q1, x + 2, c), m16(MS, SEL, x, c)]
    S.post[28] += [f"v_and_b32 {v(S1)}, 3, {v(vL)}", f"v_cmp_eq_u32 {s(sEX,2)}, 1, {v(S1)}", f"s_lshl_b32 {s(sT0)}, {s(sHALF)}, 3",
                   f"v_add_u32 {v(T)}, {s(sT0)}, {v(VSTA)}"]
    S.post[29] += [f"v_add_f32 {v(Q0+i)}, {v(Q0+i)}, {v(Q1+i)}" for i in range(4)]
    S.post[29] += [f"v_cmp_eq_u32 vcc, 2, {v(S1)}", f"v_cndmask_b32 {v(S2)}, {v(Q0)}, {v(Q0+1)}, {s(sEX,2)}", f"v_cmp_eq_u32 {s(sEX,2)}, 3, {v(S1)}",
                   f"v_cndmask_b32 {v(S2)}, {v(S2)}, {v(Q0+2)}, vcc", f"v_cndmask_b32 {v(S2)}, {v(S2)}, {v(Q0+3)}, {s(sEX,2)}",
                   f"v_mov_b32 {v(S1)}, {v(S2)}", f"v_permlane32_swap_b32 {v(S1)}, {v(S2)}",
                   f"v_add_f32 {v(MS+1)}, {v(S1)}, {v(S2)}", f"ds_write_b64 {v(T)}, {v(MS,2)}"]
    S.post[30] += [f"ds_read_b128 {v(MS,4)}, {v(VSTA)}"]
    for ps in range(3):
        for st in range(8):
            G = 32 * ps + 4 * st
            S.post[G] += [m16(MC, SEL, WF + 4 * (G & 3), "0" if st == 0 else None)]
        S.post[32*ps + 29] += [f"v_add_u32 {v(MC+1)}, {s(sW34)}, {v(VCSA)}", f"ds_write_b32 {v(MC+1)}, {v(MC)} offset:{1024*ps}"]
    for q in (1, 2, 3): S.pre[32 + 8*q - 2] += [f".waitvm w1q{q}", "s_barrier"]
    w2 = sum([wquarter(RB, q, c2, pitch, "w2") for q in range(4)], [])
    for g_, G in zip(w2[:2] + wquarter(RA, 3, c1, pitch, "w1q3") + w2[2:], (33, 35, 38, 39, 41, 43, 45, 47, 49, 51)): S.dma[G] += g_
    S.pre[62] += [".waitvm w2 lgkm0", "s_barrier"]
    S.pre[66] += ["s_barrier"]
    def announce():
        P(f"s_lshl_b32 {s(sT0)}, {s(sW)}, 8\ns_add_u32 {s(sT0)}, {s(sT0)}, s2\ns_sub_u32 {s(sT0)}, {s(sT0)}, 256\ns_cmp_lt_u32 {s(sT0)}, 8")
        P(f"s_cbranch_scc0 L_nd")
        P.cond_begin("zw")
        P(".waitvm zf")
        P(f"s_lshl_b32 {s(sT0)}, s2, 2\nv_mov_b32 {v(VFV)}, 1")
        P(f"buffer_store_dword {v(VFV)}, {v(VZ)}, {s(SDBG,4)}, {s(sT0)} offen sc1")
        P.cond_end()
        P(f"L_nd:")
    if not ffn: S.blk[3] = announce
    ld = f"buffer_load_dword {v(VX0)}, {v(VX1)}, {s(SDBG,4)}, 0 offen sc1"
    def poll0():
        P(f"s_cmp_eq_u32 {s(sW)}, 7"); P(f"s_cbranch_scc0 L_np{tp}")
        P.cond_begin("w7")
        P(f"v_and_b32 {v(VX1)}, 7, {v(vL)}\nv_lshlrev_b32 {v(VX1)}, 2, {v(VX1)}"); P(ld)
        P.cond_end(); P(f"L_np{tp}:")
    def check0():
        P(f"s_cmp_eq_u32 {s(sW)}, 7"); P(f"s_cbranch_scc0 L_nc{tp}")
        P.cond_begin("w7")
        P(f"v_mov_b32 {v(VX0)}, {v(VX0)}")
        spin(f"L_ncs{tp}", ld, f"v_cmp_ne_u32 vcc, 1, {v(VX0)}")
        P.cond_end(); P(f"L_nc{tp}:")
    S.blk[39] = poll0; S.blk[62] = check0

def run_sched(S, accs):
    P(".waitvm it0")
    P("s_barrier")
    stamp("it0")
    P.add(rd(0)); P.add(rd(1))
    for G in range(S.n):
        stamp(f"g{G}")
        if G in S.blk: S.blk[G]()
        P.add(S.pre[G])
        if OPT.get("prio", "1") == "1": P(f"s_setprio {3 - ((G + 2) & 3)}")
        first = G in (0, 32, 64, 96)
        P(mfma(accs[G >> 5], WF + 4 * (G & 3), xq(G), "0" if first else None))
        if G + 2 < S.n: P.add(rd(G + 2))
        P.add(S.post[G]); P.add(S.fill[G]); P.add(S.dma[G])
        if ("e", G) in S.blk: S.blk[("e", G)]()
    P("s_setprio 0")

AC = 64; NAF = 8
def AFq(kk, rb): return XF + 4 + 8 * (2 * (kk % NAF) + rb)
def BTq(kk, nb): return XF + 8 * (2 * (kk & 1) + nb)
BA = 2
VXR, VRED = 9, 10
VWR = 20
XR, B2R = 32, 36
def a_loads(kk):
    so = sA0 if kk < 14 else sA1
    return rot_k(kk, sT0) + [f"s_lshl_b32 {s(sT0)}, {s(sT0)}, 10", f"s_add_u32 {s(sT0)}, {s(sT0)}, {s(so)}",
          f"buffer_load_dwordx4 {v(AFq(kk,0),4)}, {v(VL16)}, {s(SWS,4)}, {s(sT0)} offen sc1",
          f"s_add_u32 {s(sT0)}, {s(sT0)}, {HF_RB}",
          f"buffer_load_dwordx4 {v(AFq(kk,1),4)}, {v(VL16)}, {s(SWS,4)}, {s(sT0)} offen sc1"]
def spoll(o): return f"s_buffer_load_dwordx4 {s(sPL,4)}, {s(SWS,4)}, {s(sFL)} offset:{0 if o else 1024} glc"
def sneed(level, o):
    lb = P.lab("L_sp")
    P(f"s_mov_b32 {s(sCNT)}, 0")
    P(f"{lb}:")
    P("s_waitcnt lgkmcnt(0)")
    P(f"s_min_u32 {s(sPL)}, {s(sPL)}, {s(sPL+1)}\ns_min_u32 {s(sPL+2)}, {s(sPL+2)}, {s(sPL+3)}\ns_min_u32 {s(sPL)}, {s(sPL)}, {s(sPL+2)}")
    P(f"s_cmp_ge_u32 {s(sPL)}, {level}")
    P(f"s_cbranch_scc1 {lb}_ok")
    P(f"s_add_u32 {s(sCNT)}, {s(sCNT)}, 1\ns_cmp_gt_u32 {s(sCNT)}, {SPIN_MAX}")
    P(f"s_cbranch_scc1 {lb}_ok")
    P("s_sleep 1")
    I = Ins(spoll(o)); I.kind = "salu"; P.ins.append(I)
    P(f"s_branch {lb}")
    P(f"{lb}_ok:")
def smin(): return lines(f"s_min_u32 {s(sPL)}, {s(sPL)}, {s(sPL+1)}\ns_min_u32 {s(sPL+2)}, {s(sPL+2)}, {s(sPL+3)}\ns_min_u32 {s(sPL)}, {s(sPL)}, {s(sPL+2)}")
def try_issue(level, lo, hi):
    lb = P.lab("L_try")
    P("s_waitcnt lgkmcnt(0)")
    P.add(smin())
    P(f"s_cmp_ge_u32 {s(sPL)}, {level}\ns_cselect_b32 {s(sOK)}, 1, 0")
    P(f"s_cbranch_scc0 {lb}")
    P.cond_begin(lb)
    for kk in range(lo, hi): P.add(a_loads(kk))
    P.cond_end()
    P(f"{lb}:")
def fallback(level, o, lo, hi):
    lb = P.lab("L_fb")
    P(f"s_cmp_eq_u32 {s(sOK)}, 1")
    P(f"s_cbranch_scc1 {lb}")
    n0 = len(P.ins)
    P(spoll(o))
    sneed(level, o)
    for kk in range(lo, hi): P.add(a_loads(kk))
    P("s_waitcnt vmcnt(0)")
    for I in P.ins[n0:]:
        I.cond = lb
        if I.kind in ("vld", "smem"): I.kind = "opaque"
    P(f"{lb}:")
def b_reads(kk):
    slot = kk % 9
    if slot == 0: var, off = 2, 0
    else: var, off = (KAREA[slot] >> 16), KAREA[slot] & 0xffff
    return [f".waitvm b{kk}"] + [f"ds_read_b64_tr_b16 {v(BTq(kk,nb)+2*tt,2)}, {v(BA+2*var+nb)} offset:{off+1024*tt}" for nb in range(2) for tt in range(2)]
def phase2(lasttag):
    P(f"v_bfe_u32 {v(T+8)}, {v(vL)}, 2, 2\nv_lshrrev_b32 {v(T+9)}, 5, {v(vL)}\nv_and_b32 {v(T+10)}, 63, {v(AW)}")
    P(f"v_lshl_add_u32 {v(T+12)}, {v(T+9)}, 2, {v(T+8)}\nv_lshl_add_u32 {v(T+12)}, {v(T+12)}, 7, {v(T+10)}\nv_lshrrev_b32 {v(T+13)}, 1, {v(T+8)}")
    P(f"v_lshl_add_u32 {v(T+12)}, {v(T+13)}, 6, {v(T+12)}\nv_xor_b32 {v(T+13)}, 64, {v(T+12)}")
    P(f"s_add_u32 {s(sT0)}, {s(sM4)}, 65536\ns_add_u32 {s(sT1)}, {s(sM0x)}, {RC}")
    for nb in range(2):
        P(f"v_add_u32 {v(BA+nb)}, {s(sM4)}, {v(T+12+nb)}\nv_add_u32 {v(BA+2+nb)}, {s(sT0)}, {v(T+12+nb)}\nv_add_u32 {v(BA+4+nb)}, {s(sT1)}, {v(T+12+nb)}")
    fallback(1, 0, 0, 4)
    P(spoll(0))
    P.add(b_reads(0))
    stamp("hseen")
    FL = int(OPT.get("fl", 3))
    for kk in range(18):
        if kk == 4: fallback(2, 0, 4, 8)
        if kk + 1 < 18: P.add(b_reads(kk + 1))
        for nb in range(2):
            for rb in range(2):
                P(mfma(AC + 16 * (2 * nb + rb), BTq(kk, nb), AFq(kk, rb), "0" if kk == 0 else None))
        stamp(f"k{kk}")
        if kk == 1: try_issue(2, 4, 8)
        if kk == FL: P.add(flag(3, lasttag))
        if kk + 9 < 18:
            for g_ in b_dma(kk + 9): P.add(g_)
        if kk == 4: P(spoll(0))
        if kk == 5:
            sneed(3, 0)
            for k2 in range(8, 14): P.add(a_loads(k2))
        if kk == 8: P(spoll(1))
        if kk == 9:
            sneed(3, 1)
            for k2 in range(14, 18): P.add(a_loads(k2))
        if kk == 10:
            P(f"v_lshrrev_b32 {v(T)}, 3, {v(vL)}\nv_and_b32 {v(T+1)}, 7, {v(vL)}\nv_lshlrev_b32 {v(T+1)}, 4, {v(T+1)}\nv_lshl_add_u32 {v(VXR)}, {v(T)}, 10, {v(T+1)}")
            P(f"s_lshl_b32 {s(sT0)}, {s(sN)}, 7")
            P(f"buffer_load_dwordx4 {v(XR,4)}, {v(VXR)}, {s(SX,4)}, {s(sOo)} offen")
            P(f"buffer_load_dwordx4 {v(B2R,4)}, {v(T+1)}, {s(SB2,4)}, {s(sT0)} offen")
        if kk == 12:
            for q in range(4):
                P(f"v_xor_b32 {v(VWR+q)}, {64*q}, {v(VL16)}\nv_add_u32 {v(VWR+q)}, {s(sM4)}, {v(VWR+q)}")
                P(f"v_add_u32 {v(T+q)}, 65536, {v(VWR+q)}")
            P(f"v_lshrrev_b32 {v(T+4)}, 3, {v(vL)}\ns_lshl_b32 {s(sT0)}, {s(sW34)}, 1\nv_add_u32 {v(T+4)}, {s(sT0)}, {v(T+4)}")
            P(f"v_and_b32 {v(T+5)}, 3, {v(vL)}\nv_lshlrev_b32 {v(T+6)}, 2, {v(T+5)}\nv_xor_b32 {v(T+4)}, {v(T+4)}, {v(T+6)}\nv_lshlrev_b32 {v(T+4)}, 4, {v(T+4)}\nv_lshl_add_u32 {v(T+4)}, {v(T+5)}, 10, {v(T+4)}")
            P(f"v_bfe_u32 {v(T+5)}, {v(vL)}, 2, 1\nv_lshl_add_u32 {v(T+4)}, {v(T+5)}, 16, {v(T+4)}\ns_lshl_b32 {s(sT0)}, {s(sHALF)}, 15\nv_add_u32 {v(VRED)}, {s(sT0)}, {v(T+4)}")
        F = T + 8
        if kk == 17:
            for i in range(4):
                P(f"v_lshlrev_b32 {v(F+2*i)}, 16, {v(XR+i)}\nv_and_b32 {v(F+2*i+1)}, 0xffff0000, {v(XR+i)}")
                P(f"v_lshlrev_b32 {v(T+4)}, 16, {v(B2R+i)}\nv_and_b32 {v(T+5)}, 0xffff0000, {v(B2R+i)}")
                P(f"v_add_f32 {v(F+2*i)}, {v(F+2*i)}, {v(T+4)}\nv_add_f32 {v(F+2*i+1)}, {v(F+2*i+1)}, {v(T+5)}")
    stamp("p2mm")
    for blk in range(4):
        for q in range(4):
            ad = VWR + q if blk < 2 else T + q
            P(f"ds_write_b128 {v(ad)}, {v(AC+16*blk+4*q,4)} offset:{(blk&1)*32768+1024*q}")
    P("s_waitcnt lgkmcnt(0)")
    P("s_barrier")
    R = XF
    for ww in range(8):
        for hf in range(2): P(f"ds_read_b128 {v(R+8*ww+4*hf,4)}, {v(VRED)} offset:{4096*ww+512*hf}")
    for ww in range(8):
        for i in range(0, 8, 2): P(f"v_pk_add_f32 {v(F+i,2)}, {v(F+i,2)}, {v(R+8*ww+i,2)}")
    for i in range(4): P(f"v_cvt_pk_bf16_f32 {v(XR+i)}, {v(F+2*i)}, {v(F+2*i+1)}")
    P(f"buffer_store_dwordx4 {v(XR,4)}, {v(VXR)}, {s(SOUT,4)}, {s(sOo)} offen")
    if STAMP:
        stamp("end")
        P("s_waitcnt lgkmcnt(0)")
        P(f"s_lshl_b32 {s(sT0)}, s2, 3\ns_add_u32 {s(sT0)}, {s(sT0)}, {s(sW)}\ns_lshl_b32 {s(sT0)}, {s(sT0)}, 6\ns_add_u32 {s(sT0)}, {s(sT0)}, {WS_STAMP}")
        P(f"v_mov_b32 v2, 0\ns_mov_b64 exec, 1")
        for i in range(12):
            P(f"v_mov_b32 v3, {s(sST+2*i)}\nbuffer_store_dword v3, v2, {s(SWS,4)}, {s(sT0)} offen offset:{4*i}")
    P("s_endpgm")

def softmax(p, out, LS):
    t = T + 16
    L = [f"v_max3_f32 {v(t)}, {v(p)}, {v(p+1)}, {v(p+2)}", f"v_max3_f32 {v(t+1)}, {v(p+3)}, {v(p+4)}, {v(p+5)}",
         f"v_max3_f32 {v(t)}, {v(t)}, {v(p+6)}, {v(p+7)}", f"v_max3_f32 {v(t+1)}, {v(t+1)}, {v(p+8)}, {v(p+9)}",
         f"v_max3_f32 {v(t)}, {v(t)}, {v(p+10)}, {v(p+11)}", f"v_max3_f32 {v(t+1)}, {v(t+1)}, {v(p+12)}, {v(p+13)}",
         f"v_max3_f32 {v(t)}, {v(t)}, {v(p+14)}, {v(p+15)}", f"v_max_f32 {v(t)}, {v(t)}, {v(t+1)}",
         f"v_mul_f32 {v(t)}, {v(t)}, {v(LS)}"]
    L += [f"v_fma_f32 {v(p+i)}, {v(p+i)}, {v(LS)}, -{v(t)}" for i in range(16)]
    L += [f"v_exp_f32 {v(p+i)}, {v(p+i)}" for i in range(16)]
    L += [f"v_add_f32 {v(t)}, {v(p)}, {v(p+1)}", f"v_add_f32 {v(t+1)}, {v(p+2)}, {v(p+3)}"]
    for i in range(4, 16, 2):
        L += [f"v_add_f32 {v(t)}, {v(t)}, {v(p+i)}", f"v_add_f32 {v(t+1)}, {v(t+1)}, {v(p+i+1)}"]
    L += [f"v_add_f32 {v(t)}, {v(t)}, {v(t+1)}", f"v_rcp_f32 {v(t)}, {v(t)}"]
    L += [f"v_mul_f32 {v(p+i)}, {v(p+i)}, {v(t)}" for i in range(16)]
    L += [f"v_cvt_pk_bf16_f32 {v(out+i)}, {v(p+2*i)}, {v(p+2*i+1)}" for i in range(8)]
    return L

setup(False)
LS = K1; VPK = K2; VV = VW3; MC = BIAS
PHI0, PHI1 = AX, AAUG
PHI0 = AX
PHI1 = S1
PHI1 = T + 12
t = T + 16
P(f"v_bfe_u32 {v(t)}, {v(vL)}, 2, 2\nv_lshrrev_b32 {v(t+1)}, 5, {v(vL)}\nv_lshl_add_u32 {v(t)}, {v(t+1)}, 2, {v(t)}\nv_lshlrev_b32 {v(t)}, 5, {v(t)}")
P(f"v_bfe_u32 {v(t+2)}, {v(vL)}, 1, 1\nv_lshl_add_u32 {v(t)}, {v(t+2)}, 3, {v(t)}\nv_bfe_u32 {v(t+2)}, {v(vL)}, 4, 1\nv_lshl_add_u32 {v(t)}, {v(t+2)}, 4, {v(t)}")
P(f"s_lshl_b32 {s(sT1)}, {s(sHALF)}, 10\ns_add_u32 {s(sT1)}, {s(sT1)}, {L_WPHI}\nv_add_u32 {v(AB)}, {s(sT1)}, {v(t)}")
P(f"v_bfe_u32 {v(t)}, {v(vL)}, 2, 1\nv_mul_u32_u24 {v(t)}, 0x8000, {v(t)}\nv_lshl_or_b32 {v(AB+1)}, {v(t)}, 16, {v(t)}")
P(f"v_and_b32 {v(t)}, 31, {v(vL)}\nv_lshlrev_b32 {v(t)}, 6, {v(t)}\ns_lshl_b32 {s(sT1)}, {s(sW34)}, 9\nv_bfe_u32 {v(t+2)}, {v(vL)}, 1, 2")
P(f"v_lshlrev_b32 {v(t+3)}, 1, {v(t+1)}\nv_xor_b32 {v(t+3)}, {v(t+3)}, {v(t+2)}")
P(f"s_lshl_b32 {s(sT2)}, {s(sHALF)}, 14\ns_add_u32 {s(sT2)}, {s(sT2)}, {s(sT1)}\nv_lshl_add_u32 {v(VPK)}, {v(t+3)}, 4, {v(t)}\nv_add_u32 {v(VPK)}, {s(sT2)}, {v(VPK)}")
P(f"v_xor_b32 {v(t+3)}, {v(t+1)}, {v(t+2)}")
P(f"s_lshl_b32 {s(sT2)}, {s(sHALF)}, 13\ns_add_u32 {s(sT2)}, {s(sT2)}, {s(sT1)}\ns_add_u32 {s(sT2)}, {s(sT2)}, {RA+32768}\nv_lshl_add_u32 {v(VV)}, {v(t+3)}, 4, {v(t)}\nv_add_u32 {v(VV)}, {s(sT2)}, {v(VV)}")
def phi_load(hl, dst):
    return [f"ds_read_b64_tr_b16 {v(dst+2*tt,2)}, {v(AB)} offset:{512*hl+256*tt}" for tt in range(2)] + \
           [f"v_xor_b32 {v(dst+i)}, {v(AB+1)}, {v(dst+i)}" for i in range(4)]
S = Sched(96)
common_sched(S, False, None, MC)
S.post[30] += [f"ds_read_b128 {v(CSR,4)}, {v(VCSA)}"]
S.post[31] += stamp_i("pass1")
fill = stats_final() + aug(ACC0, CSR, None) + phi_load(0, AX) + phi_load(1, T + 8) + [f"v_mul_f32 {v(LS)}, {f2u(LOG2E):#x}, {v(RSTD)}"]
fill += [f"v_cvt_pk_bf16_f32 {v(T+i)}, {v(ACC0+2*i)}, {v(ACC0+2*i+1)}" for i in range(8)]
fill += [mfma(ACC2, AX, T, "0"), mfma(ACC0, T + 8, T + 4, "0")]
fill += softmax(ACC2, T + 8, LS) + softmax(ACC0, T, LS)
S.spread(fill, 32, 64)
S.post[62] += [f"ds_read_b128 {v(MC,4)}, {v(VCSA)} offset:1024"]
S.post[63] += stamp_i("sub1")
S.pre[64] += sum4(CS0, MC)
fill = aug(ACC1, MC, None)[3:]
S.spread(fill, 64, 66)
fill = [f"ds_write_b128 {v(VPK)}, {v(T+8,4)}", f"ds_write_b128 {v(VPK)}, {v(T,4)} offset:8192", f"v_xor_b32 {v(VPK)}, 16, {v(VPK)}",
        f"ds_write_b128 {v(VPK)}, {v(T+12,4)}", f"ds_write_b128 {v(VPK)}, {v(T+4,4)} offset:8192"]
fill += [f"v_mul_f32 {v(ACC1+i)}, {v(ACC1+i)}, {v(RSTD)}" for i in range(16)]
fill += [f"v_cvt_pk_bf16_f32 {v(ACC1+i)}, {v(ACC1+2*i)}, {v(ACC1+2*i+1)}" for i in range(8)]
fill += [f"ds_write_b128 {v(VV)}, {v(ACC1,4)}", f"v_xor_b32 {v(VV)}, 32, {v(VV)}", f"ds_write_b128 {v(VV)}, {v(ACC1+4,4)}"]
S.spread(fill, 66, 72)
S.dmas(b_dma(0), 58)
def kvblock():
    P("s_waitcnt lgkmcnt(0)")
    P("s_barrier")
    stamp("kv0"); stamp("kv1")
    P(f"s_cmp_lt_u32 {s(sW)}, 4")
    P("s_cbranch_scc0 L_nkv")
    P.cond_begin("lo4")
    t = T + 16; u = S1
    P(f"v_bfe_u32 {v(u)}, {v(vL)}, 2, 2\nv_lshrrev_b32 {v(u+1)}, 5, {v(vL)}\nv_lshl_add_u32 {v(u)}, {v(u+1)}, 3, {v(u)}\nv_lshlrev_b32 {v(u)}, 6, {v(u)}")
    P(f"v_bfe_u32 {v(u+1)}, {v(vL)}, 1, 1\nv_lshl_add_u32 {v(u)}, {v(u+1)}, 3, {v(u)}\nv_bfe_u32 {v(u+1)}, {v(vL)}, 3, 1\nv_and_b32 {v(VSTA)}, 1, {v(vL)}")
    P(f"v_or_b32 {v(t)}, {s(sSH)}, {v(VSTA)}\nv_xor_b32 {v(t)}, {v(t)}, {v(u+1)}\nv_lshl_add_u32 {v(t)}, {v(t)}, 4, {v(u)}")
    P(f"s_lshr_b32 {s(sT0)}, {s(sW)}, 1\ns_lshl_b32 {s(sT0)}, {s(sT0)}, 13\ns_add_u32 {s(sT0)}, {s(sT0)}, {RA+32768}\nv_add_u32 {v(t)}, {s(sT0)}, {v(t)}\nv_xor_b32 {v(t+1)}, 32, {v(t)}")
    P(f"v_bfe_u32 {v(t+2)}, {v(vL)}, 4, 1\nv_lshl_add_u32 {v(t+2)}, {v(VSTA)}, 1, {v(t+2)}\nv_xor_b32 {v(t+2)}, {v(t+2)}, {v(u+1)}\nv_lshl_add_u32 {v(t+2)}, {v(t+2)}, 4, {v(u)}")
    P(f"s_lshl_b32 {s(sT0)}, {s(sW)}, 13\nv_add_u32 {v(t+2)}, {s(sT0)}, {v(t+2)}\nv_xor_b32 {v(t+3)}, 32, {v(t+2)}")
    P(f"v_and_b32 {v(u)}, 16, {v(vL)}\nv_cmp_eq_u32 vcc, 0, {v(u)}\nv_mov_b32 {v(u+1)}, {s(sONE)}")
    KB = [T, T + 8, ACC1, ACC1 + 8]
    def kr(J):
        for tt in range(2):
            P(f"ds_read_b64_tr_b16 {v(KB[J&3]+2*tt,2)}, {v(t+tt)} offset:{1024*J+256*tt}")
            P(f"ds_read_b64_tr_b16 {v(KB[J&3]+4+2*tt,2)}, {v(t+2+tt)} offset:{1024*J+256*tt}")
    kr(0); kr(1); kr(2)
    for J in range(8):
        for i in range(4): P(f"v_cndmask_b32 {v(KB[J&3]+i)}, {v(u+1)}, {v(KB[J&3]+i)}, vcc")
        if J + 3 < 8: kr(J + 3)
        P(mfma(ACC0, KB[J&3] + 4, KB[J&3], "0" if J == 0 else None))
    P(f"v_lshrrev_b32 {v(u)}, 5, {v(vL)}\nv_and_b32 {v(t)}, 15, {v(vL)}\nv_lshlrev_b32 {v(t)}, 4, {v(t)}\nv_lshl_add_u32 {v(t)}, {v(u)}, 8, {v(t)}\ns_lshl_b32 {s(sT0)}, {s(sW)}, 10\nv_add_u32 {v(t)}, {s(sT0)}, {v(t)}\nv_add_u32 {v(t+1)}, 512, {v(t)}")
    P(f"s_lshl_b32 {s(sT0)}, {s(sW)}, 6\ns_add_u32 {s(sT0)}, {s(sT0)}, 4096\nv_lshlrev_b32 {v(u)}, 4, {v(u)}\nv_add_u32 {v(u)}, {s(sT0)}, {v(u)}")
    P(f"v_and_b32 {v(t+2)}, 15, {v(vL)}\nv_lshl_add_u32 {v(u)}, {v(t+2)}, 26, {v(u)}\nv_add_u32 {v(u+1)}, 32, {v(u)}")
    P(f"v_cndmask_b32 {v(t)}, {v(u)}, {v(t)}, vcc\nv_cndmask_b32 {v(t+1)}, {v(u+1)}, {v(t+1)}, vcc")
    P(f"s_lshl_b32 {s(sT0)}, {s(sG)}, 4\ns_add_u32 {s(sT0)}, {s(sT0)}, {s(sRT)}\ns_mul_i32 {s(sT0)}, {s(sT0)}, {KVP_SZ}\ns_add_u32 {s(sT0)}, {s(sT0)}, {WS_KVP}")
    for i in range(8): P(f"v_cvt_pk_bf16_f32 {v(T+i)}, {v(ACC0+2*i)}, {v(ACC0+2*i+1)}")
    stamp("kv1")
    for j in range(2): P(f"buffer_store_dwordx4 {v(T+4*j,4)}, {v(t+j)}, {s(SWS,4)}, {s(sT0)} offen sc1 ; tag=kv")
    P.cond_end()
    P("L_nkv:")
    stamp("kv2")
S.blk[72] = kvblock
S.pre[94] += [".waitvm kv lgkm0", "s_barrier"]
def kvflag():
    P(f"s_cmp_eq_u32 {s(sW)}, 0")
    P("s_cbranch_scc0 L_nkf")
    P.cond_begin("w0")
    P(f"s_lshl_b32 {s(sT0)}, {s(sG)}, 8\ns_lshl_b32 {s(sT1)}, {s(sRT)}, 2\ns_add_u32 {s(sT0)}, {s(sT0)}, {s(sT1)}\ns_add_u32 {s(sT0)}, {s(sT0)}, {WS_KVF}")
    P(f"v_mov_b32 {v(VFV)}, 1")
    P(f"buffer_store_dword {v(VFV)}, {v(VZ)}, {s(SWS,4)}, {s(sT0)} offen sc1")
    P.cond_end()
    P("L_nkf:")
S.blk[("e", 94)] = kvflag
S.post[94] += [f"ds_read_b128 {v(CSR,4)}, {v(VCSA)} offset:2048"] + phi_load(1, T + 8)
run_sched(S, [ACC0, ACC1, ACC2])
stamp("sub2")
PQ = WF
P.add(aug(ACC2, CSR, None))
bd = sum([b_dma(kk) for kk in (1, 2, 7, 8)], [])
for g_ in bd[:2]: P.add(g_)
for i in range(8): P(f"v_cvt_pk_bf16_f32 {v(T+i)}, {v(ACC2+2*i)}, {v(ACC2+2*i+1)}")
P(mfma(ACC1, AX, T, "0"))
P(mfma(ACC2, T + 8, T + 4, "0"))
for g_ in bd[2:4]: P.add(g_)
P.add(interleave(bd[4:], softmax(ACC1, PQ, LS)))
stamp("qsm")
P(f"s_cmp_eq_u32 {s(sW)}, 3")
P("s_cbranch_scc0 L_nkp")
n0 = len(P.ins)
P(f"s_lshl_b32 {s(sT2)}, {s(sG)}, 8\ns_add_u32 {s(sT2)}, {s(sT2)}, {WS_KVF}\ns_mov_b32 {s(sCNT)}, 0")
P("L_spkv:")
P(f"s_buffer_load_dwordx16 s[20:35], {s(SWS,4)}, {s(sT2)} glc")
P(f"s_add_u32 {s(sCNT)}, {s(sCNT)}, 1")
P("s_waitcnt lgkmcnt(0)")
for i in range(22, 36, 2): P(f"s_and_b64 s[20:21], s[20:21], s[{i}:{i+1}]")
P("s_and_b32 s20, s20, s21")
P("s_cbranch_scc1 L_nkp")
P(f"s_cmp_gt_u32 {s(sCNT)}, {SPIN_MAX}")
P("s_cbranch_scc1 L_nkp")
P("s_sleep 1")
P("s_branch L_spkv")
for I in P.ins[n0:]:
    I.cond = "kvp"
    if I.kind == "smem": I.kind = "opaque"
P("L_nkp:")
P("s_barrier")
stamp("kvseen")
def Gq(r): return XF + 8 * r
Z = T + 8; GA = XF + 64
P(spoll(0))
P(f"s_mul_i32 {s(sT2)}, {s(sG)}, {16*KVP_SZ}\ns_add_u32 {s(sT2)}, {s(sT2)}, {WS_KVP}")
P(f"s_lshl_b32 {s(sT0)}, {s(sW)}, 5\ns_add_u32 {s(sT0)}, {s(sT0)}, {s(sT2)}\ns_add_u32 {s(sT0)}, {s(sT0)}, 4096")
P(f"v_and_b32 {v(T)}, 15, {v(vL)}\nv_mul_u32_u24 {v(T)}, {KVP_SZ}, {v(T)}\nv_and_b32 {v(T+1)}, 16, {v(vL)}\nv_add_u32 {v(T)}, {v(T)}, {v(T+1)}")
P(f"buffer_load_dwordx4 {v(Z,4)}, {v(T)}, {s(SWS,4)}, {s(sT0)} offen sc1")
P(f"v_lshrrev_b32 {v(T+1)}, 5, {v(vL)}\nv_mul_u32_u24 {v(T)}, {8*KVP_SZ - 512}, {v(T+1)}\nv_add_u32 {v(T)}, {v(T)}, {v(VL16)}")
P(f"s_lshl_b32 {s(sT0)}, {s(sW)}, 9\ns_add_u32 {s(sT0)}, {s(sT0)}, {s(sT2)}\ns_mov_b32 {s(sT1)}, {s(sRT)}")
gl = []
for r in range(8):
    gl.append(lines(f"s_and_b32 {s(sT1)}, {s(sT1)}, 7\ns_mul_i32 {s(sD0)}, {s(sT1)}, {KVP_SZ}\ns_add_u32 {s(sD0)}, {s(sD0)}, {s(sT0)}\ns_add_u32 {s(sT1)}, {s(sT1)}, 1") +
              [f"buffer_load_dwordx4 {v(Gq(r),4)}, {v(T)}, {s(SWS,4)}, {s(sD0)} offen sc1"])
for g_ in gl: P.add(g_)
P.add(softmax(ACC2, PQ + 8, LS))
stamp("sm2")
try_issue(1, 0, 4)
P(f"v_bfe_u32 {v(T+2)}, {v(vL)}, 4, 1\nv_lshlrev_b32 {v(T+2)}, 9, {v(T+2)}\nv_lshl_add_u32 {v(T+2)}, {v(T+1)}, 3, {v(T+2)}")
P(f"s_lshl_b32 {s(sT0)}, {s(sW)}, 10\ns_add_u32 {s(sT0)}, {s(sT0)}, {L_KVB}\nv_add_u32 {v(T+2)}, {s(sT0)}, {v(T+2)}")
P(f"v_and_b32 {v(T+3)}, 15, {v(vL)}\nv_lshl_add_u32 {v(T+3)}, {v(T+3)}, 4, {v(T+2)}")
P(f"v_cmp_gt_u32 vcc, 32, {v(vL)}\ns_mov_b32 {s(sT0)}, 0x3f80\ns_mov_b32 {s(sT1)}, 0x3f800000")
P(f"v_cndmask_b32 {v(Z)}, {v(Z+2)}, {v(Z)}, vcc\nv_cndmask_b32 {v(Z+1)}, {v(Z+3)}, {v(Z+1)}, vcc")
P(f"v_lshlrev_b32 {v(Z+4)}, 16, {v(Z)}\nv_and_b32 {v(Z+5)}, 0xffff0000, {v(Z)}\nv_lshlrev_b32 {v(Z+6)}, 16, {v(Z+1)}\nv_and_b32 {v(Z+7)}, 0xffff0000, {v(Z+1)}")
for ror in (8, 4, 2, 1):
    for i in range(4): P(f"v_add_f32_dpp {v(Z+4+i)}, {v(Z+4+i)}, {v(Z+4+i)} row_ror:{ror} row_mask:0xf bank_mask:0xf")
P(f"v_cvt_pk_bf16_f32 {v(Z)}, {v(Z+4)}, {v(Z+5)}\nv_cvt_pk_bf16_f32 {v(Z+1)}, {v(Z+6)}, {v(Z+7)}")
P(f"ds_write_b64 {v(T+2)}, {v(Z,2)} offset:256")
def ga(i): return GA + (i & 3) + 8 * (i >> 2)
for i in range(4):
    P(f"v_lshlrev_b32 {v(ga(2*i))}, 16, {v(Gq(0)+i)}\nv_and_b32 {v(ga(2*i+1))}, 0xffff0000, {v(Gq(0)+i)}")
for r in range(1, 8):
    for i in range(4):
        P(f"v_dot2c_f32_bf16 {v(ga(2*i))}, {s(sT0)}, {v(Gq(r)+i)}\nv_dot2c_f32_bf16 {v(ga(2*i+1))}, {s(sT1)}, {v(Gq(r)+i)}")
for i in range(4): P(f"v_permlane32_swap_b32 {v(ga(i))}, {v(ga(i+4))}")
for i in range(4): P(f"v_add_f32 {v(ga(i))}, {v(ga(i))}, {v(ga(i+4))}")
P(f"v_cvt_pk_bf16_f32 {v(GA)}, {v(GA)}, {v(GA+1)}\nv_cvt_pk_bf16_f32 {v(GA+1)}, {v(GA+2)}, {v(GA+3)}")
P(f"ds_write_b64 {v(T+3)}, {v(GA,2)}")
stamp("gsum")
P(f"v_and_b32 {v(T)}, 31, {v(vL)}\nv_min_u32 {v(T)}, 16, {v(T)}\nv_and_b32 {v(T+1)}, 32, {v(vL)}\nv_add_u32 {v(T)}, {v(T)}, {v(T+1)}\nv_lshlrev_b32 {v(T)}, 4, {v(T)}")
P(f"s_lshl_b32 {s(sT0)}, {s(sHALF)}, 12\ns_add_u32 {s(sT0)}, {s(sT0)}, {L_KVB}\nv_add_u32 {v(T)}, {s(sT0)}, {v(T)}")
P("s_waitcnt lgkmcnt(0)")
P("s_barrier")
for i in range(4): P(f"ds_read_b128 {v(Gq(i),4)}, {v(T)} offset:{1024*i}")
P(mfma(ACC0, Gq(0), PQ, "0")); P(mfma(ACC1, Gq(2), PQ + 8, "0"))
P(mfma(ACC0, Gq(1), PQ + 4)); P(mfma(ACC1, Gq(3), PQ + 12))
P(f"s_lshl_b32 {s(sT0)}, {s(sG)}, 2\ns_lshl_b32 {s(sT1)}, {s(sHALF)}, 1\ns_add_u32 {s(sT0)}, {s(sT0)}, {s(sT1)}\ns_add_u32 {s(sT0)}, {s(sT0)}, 112\ns_lshl_b32 {s(sT0)}, {s(sT0)}, 10\ns_add_u32 {s(sT0)}, {s(sT0)}, {s(sHo)}")
for hl, acc in enumerate((ACC0, ACC1)):
    P(f"v_add_f32 {v(acc+8)}, {f2u(1e-6):#x}, {v(acc+8)}\nv_rcp_f32 {v(acc+8)}, {v(acc+8)}")
    for i in range(8): P(f"v_mul_f32 {v(acc+i)}, {v(acc+i)}, {v(acc+8)}")
    for i in range(4): P(f"v_cvt_pk_bf16_f32 {v(T+4*hl+i)}, {v(acc+2*i)}, {v(acc+2*i+1)}")
    P(f"buffer_store_dwordx4 {v(T+4*hl,4)}, {v(VL16)}, {s(SWS,4)}, {s(sT0)} offen offset:{1024*hl} sc1 ; tag=hl")
for kk in (3, 4, 5, 6):
    for g_ in b_dma(kk): P.add(g_)
stamp("p1end")
phase2("hl")

P("L_ffn:")
P(".reset")
setup(True)
MC = ACC2; CSF = ACC2 + 4
S = Sched(112)
common_sched(S, True, None, MC)
S.post[30] += [f"ds_read_b128 {v(CSF,4)}, {v(VCSA)}"]
S.post[31] += stamp_i("pass1")
fill = stats_final() + aug(ACC0, CSF, BIAS)
fill += [f"v_mul_f32 {v(K1)}, {f2u(GC1):#x}, {v(RSTD)}", f"v_mul_f32 {v(K2)}, {v(RSTD)}, {v(RSTD)}",
         f"v_mul_f32 {v(K2)}, {v(K2)}, {v(RSTD)}", f"v_mul_f32 {v(K2)}, {f2u(GC2):#x}, {v(K2)}"]
fill += gelu(ACC0, 16) + hstore(sH0, 2, "h1") + [f"s_add_u32 {s(sH0)}, {s(sH0)}, 4096"]
S.spread(fill, 32, 64)
S.post[62] += [f"ds_read_b128 {v(CSF,4)}, {v(VCSA)} offset:1024"]
S.post[63] += stamp_i("sub1")
S.dmas(b_dma(0), 58)
fill = aug(ACC1, CSF, BIAS + 1) + gelu(ACC1, 16) + hstore(sH0, 2, "h2") + [f"s_add_u32 {s(sH0)}, {s(sH0)}, 4096"]
S.spread(fill, 64, 96)
S.dmas(sum([w3quarter(q, 3584) for q in range(4)], []) + b_dma(1) + b_dma(2), 66, 2)
S.post[93] += flag(1, "h1")
S.pre[94] += [".waitvm w3 lgkm0", "s_barrier"]
S.post[94] += [f"ds_read_b128 {v(CSF,4)}, {v(VCSA)} offset:2048"]
S.post[95] += stamp_i("sub2")
fill = aug(ACC0, CSF, BIAS + 2) + gelu(ACC0, 16)
S.spread(fill, 96, 112)
S.pre[98] += ["s_barrier"]
S.dmas(sum([b_dma(kk) for kk in (3, 4, 5)], []), 98, 2)
S.post[105] += [spoll(0)]
def early_a():
    stamp("t0")
    try_issue(1, 0, 4)
    stamp("t1")
    P.add(hstore(sH0, 2, "h3"))
    stamp("t2")
S.blk[("e", 111)] = early_a
for i in range(0, 16, 2): S.post[96 + i] += [m16(MC, SEL, WF + 4 * (i & 3), "0" if i == 0 else None)]
run_sched(S, [ACC0, ACC1, ACC0, ACC1])
t = T + 16
P(f"v_and_b32 {v(t)}, 31, {v(vL)}\ns_lshl_b32 {s(sT0)}, {s(sHALF)}, 4\nv_xor_b32 {v(t)}, {s(sT0)}, {v(t)}\nv_lshlrev_b32 {v(t)}, 4, {v(t)}\nv_add_u32 {v(t)}, {L_CS+3072}, {v(t)}")
P(f"v_add_u32 {v(t+1)}, {s(sW34)}, {v(VCSA)}")
P(f"ds_write_b32 {v(t+1)}, {v(MC)} offset:3072")
P(f"s_add_u32 {s(sT1)}, {s(sM4)}, {KAREA[6]}\ns_xor_b32 {s(sT0)}, {s(sT1)}, 16384\nv_add_u32 {v(t+1)}, {s(sT0)}, {v(VL16)}\nv_add_u32 {v(AB)}, {s(sT1)}, {v(VL16)}")
P(f"ds_write_b128 {v(t+1)}, {v(ACC1+8,4)}\nds_write_b128 {v(t+1)}, {v(ACC1+12,4)} offset:1024")
P("s_waitcnt lgkmcnt(0)")
P("s_barrier")
stamp("sub3")
P(f"ds_read_b128 {v(CSF,4)}, {v(t)}")
P(f"ds_read_b128 {v(ACC0,4)}, {v(AB)}\nds_read_b128 {v(ACC0+4,4)}, {v(AB)} offset:1024")
P.add(flag(2, "h2"))
P.add(aug(ACC1, CSF, BIAS + 3))
for i in range(0, 8, 2): P(f"v_pk_add_f32 {v(ACC1+i,2)}, {v(ACC1+i,2)}, {v(ACC0+i,2)}")
stamp("x7")
P.add(gelu(ACC1, 8, True) + hstore(sH3, 1, "h4"))
for g_ in b_dma(6) + b_dma(7) + b_dma(8): P.add(g_)
stamp("p1end")
phase2("h4")

P("L_end:")
P("s_endpgm")

ins = P.ins
if OPT.get("nodma"): ins = [I for I in ins if I.kind != "dma"]
if OPT.get("notr"): ins = [I for I in ins if not I.op.startswith("ds_read_b64_tr")]
if OPT.get("nofmac"): ins = [I for I in ins if not (I.op.startswith("v_fmac") or (I.op == "v_and_b32" and "0xffff0000" in I.text) or (I.op == "v_lshlrev_b32" and I.ops[1] == "16"))]
if OPT.get("nom16"): ins = [I for I in ins if "16x16x32" not in I.op]
if OPT.get("notrans"): ins = [I for I in ins if not I.op.startswith(("v_exp", "v_rcp"))]
if OPT.get("novalu"): ins = [I for I in ins if not I.op.startswith(("v_exp", "v_rcp", "v_mul_f32", "v_fma_f32", "v_cvt_pk", "v_max3", "v_add_f32"))]
if OPT.get("nost"): ins = [I for I in ins if not (I.kind == "vst" and "x4" in I.op and "tag=h" in I.text)]
if OPT.get("nomfma"): ins = [I for I in ins if I.kind != "mfma"]
if STAMP:
    for I in ins:
        if I.op in ("s_memrealtime", "s_memtime"): I.kind = "salu"
ins = auto_wait(ins)
st = []
ins = hazards(ins, st)
hdr = open("parallel_sum__linear_kernel_hedgehog__dense_activation_gelu__prompt.s.ref").read().split("; Override")[0]
out = hdr + f"; @launch grid=(256,1,1) block=(512,1,1) lds={LDS_SIZE}\n"
out += f'.amdgcn_target "amdgcn-amd-amdhsa--gfx950"\n.text\n.globl {NAME}\n.p2align 8\n.type {NAME},@function\n{NAME}:\n'
out += render(ins)
out += f""".section .rodata,"a"
.p2align 6
.amdhsa_kernel {NAME}
  .amdhsa_next_free_vgpr 256
  .amdhsa_next_free_sgpr 102
  .amdhsa_accum_offset 256
  .amdhsa_group_segment_fixed_size 0
  .amdhsa_kernarg_size 96
  .amdhsa_user_sgpr_count 2
  .amdhsa_user_sgpr_kernarg_segment_ptr 1
  .amdhsa_system_sgpr_workgroup_id_x 1
.end_amdhsa_kernel
"""
open(sys.argv[1], "w").write(out)
print(f"instrs={sum(1 for I in ins if I.kind not in ('label','dir'))} nop-sites={len(st)} nop-states={sum(n for n,_ in st)}", file=sys.stderr)
if OPT.get("nops"):
    for n, tx in st: print(n, tx, file=sys.stderr)
```

```python
import sys, math, struct
from ir import *

NAME = "parallel_sum__linear_kernel_hedgehog__dense_activation_gelu__prompt_kernel"
OPT = dict(a.split("=") for a in sys.argv[2:] if "=" in a)
STAMP = int(OPT.get("stamp", 0))

def f2u(x): return struct.unpack("<I", struct.pack("<f", x))[0]
LOG2E = 1.4426950408889634
GC1 = -2.0 * LOG2E * math.sqrt(2.0 / math.pi)
GC2 = GC1 * 0.044715

HF_RB = 144 * 1024
WS_KVP = 0xA00000
KVP_SZ = 4608
WS_FLG = 0xC00000
WS_KVF = 0xC08000
WS_STAMP = 0xD00000
WS_SIZE = 0x1000000
RA, RB, RC = 0, 65536, 131072
L_KVB = 147456
L_CS = 155648
L_ST = L_CS + 4096
L_WPHI = L_CS + 6144
LDS_SIZE = 163840
SPIN_MAX = 1 << 15

sW, sRT, sG, sM, sN = 3, 4, 5, 6, 7
SX, SW2, SWS, SWT, SAUX, SDBG, SWO, SOUT = 8, 12, 16, 20, 24, 28, 36, 40
sXo, sWo, sROT, sC1 = 32, 33, 34, 35
SB2 = 92
sFL, sOo, sM0x, sT0, sT1, sSIG, sONE, sFO, sHALF, sHo, sWq, sW3, sT2, sCNT, sW34, sT3 = range(44, 60)
sEX = 60
sH0, sH3, sM4, sK = 62, 63, 64, 65
sST = 66
sB2o, sBOo = 90, 91
sA0, sA1, sR4, sSH, sD0, sD1 = range(96, 102)
sOK = sSIG
sQ = [sXo, sWo, sROT, sC1]
sPL = 28
VCSA = 0; vL = 1
AX = 2; AW = 6; AB = 10; VZ, VFV = 12, 13
VX0, VX1, VW, VB, VW3 = 14, 15, 16, 17, 18
VSTA, S1, S2, CS0 = 19, 20, 21, 22
VW0 = 22
RSTD, STD, K1, K2, VL16 = 23, 24, 25, 26, 27
BAUG, AAUG, SEL, BIAS = 28, 32, 36, 40
T = 44
WF = 64
ACC0, ACC1, ACC2 = 80, 96, 112
XF = 128
PZ = ACC2 + 8

P = Prog()
STI = dict(start=0, kernarg=1, it0=2, pass1=3, sub1=4, sub2=5, qsm=6, sub3=6, kvseen=7, x7=7, p1end=8, hseen=9, p2mm=10, end=11)
if OPT.get("sp") == "p2": STI = dict(start=0, p1end=1, k1=2, k3=3, k5=4, k7=5, k9=6, k11=7, k13=8, k15=9, p2mm=10, end=11)
if OPT.get("sp") == "att": STI = dict(start=0, sub1=1, kv0=2, kv1=3, kv2=4, sub2=5, qsm=6, kvseen=7, sm2=8, gsum=9, p1end=10, end=11)
if OPT.get("sp", "").startswith("l:"): STI = {n: i for i, n in enumerate(["start"] + OPT["sp"][2:].split(","))}
def stamp_i(name):
    if not STAMP or name not in STI: return []
    i = STI[name]
    return [f"{'s_memrealtime' if STAMP == 1 else 's_memtime'} {s(sST + 2*i, 2)} ; stamp {i} {name}"]
def stamp(name): P.add(stamp_i(name))

def mfma(d, a, b, c=None):
    return f"v_mfma_f32_32x32x16_bf16 {v(d,16)}, {v(a,4)}, {v(b,4)}, {v(d,16) if c is None else c}"
def m16(d, a, b, c=None):
    return f"v_mfma_f32_16x16x32_bf16 {v(d,4)}, {v(a,4)}, {v(b,4)}, {v(d,4) if c is None else c}"
def srd(base, nbytes):
    P(f"s_mov_b32 {s(base+2)}, {nbytes}\ns_mov_b32 {s(base+3)}, 0x20000")
def lines(t): return [l for l in t.split("\n") if l.strip()]

P("s_cmp_ge_u32 s2, 256")
P("s_cbranch_scc1 L_end")
stamp("start")
if OPT.get("exit0"): P("s_endpgm")
P(f"s_load_dwordx2 {s(SX,2)}, s[0:1], 0")
P(f"s_load_dwordx2 {s(SWS,2)}, s[0:1], 88")
P(f"s_load_dwordx2 {s(SDBG,2)}, s[0:1], 80")
P(f"s_load_dwordx2 {s(SW2,2)}, s[0:1], 56")
P(f"s_load_dwordx2 {s(SWO,2)}, s[0:1], 24")
P(f"s_load_dwordx2 {s(SOUT,2)}, s[0:1], 72")
P(f"s_load_dwordx2 {s(SB2,2)}, s[0:1], 64")
if OPT.get("stouch", "0") != "0":
    P(f"s_load_dwordx2 {s(sEX,2)}, s[0:1], 8")
    P(f"s_load_dwordx2 {s(sA0,2)}, s[0:1], 40")
P(f"v_lshrrev_b32 v2, 6, v0")
P(f"v_and_b32 {v(vL)}, 63, v0")
P(f"s_and_b32 {s(sT0)}, s2, 7")
P(f"s_lshr_b32 {s(sT1)}, s2, 3")
P(f"v_readfirstlane_b32 {s(sW)}, v2")
P(f"s_lshr_b32 {s(sRT)}, {s(sT0)}, 2\ns_lshl_b32 {s(sRT)}, {s(sRT)}, 3\ns_and_b32 {s(sT2)}, {s(sT1)}, 7\ns_add_u32 {s(sRT)}, {s(sRT)}, {s(sT2)}")
P(f"s_and_b32 {s(sG)}, {s(sT0)}, 3\ns_lshl_b32 {s(sG)}, {s(sG)}, 1\ns_lshr_b32 {s(sT2)}, {s(sT1)}, 4\ns_add_u32 {s(sG)}, {s(sG)}, {s(sT2)}")
P(f"s_lshl_b32 {s(sM)}, {s(sT0)}, 2\ns_and_b32 {s(sT2)}, {s(sT1)}, 3\ns_add_u32 {s(sM)}, {s(sM)}, {s(sT2)}")
P(f"s_lshr_b32 {s(sN)}, {s(sT1)}, 2")
srd(SX, 2097152)
P(f"s_lshl_b32 {s(sM0x)}, {s(sW)}, 11")
P(f"v_lshrrev_b32 v2, 3, {v(vL)}\nv_and_b32 v3, 7, {v(vL)}\nv_lshrrev_b32 v4, 4, {v(vL)}")
P(f"v_xor_b32 v5, v3, v4\nv_lshlrev_b32 v5, 4, v5\nv_lshl_add_u32 {v(VX0)}, v2, 10, v5")
P(f"v_xor_b32 v5, 64, {v(VX0)}\nv_add_u32 {v(VX1)}, {8192-1024}, v5")
P(f"v_and_b32 v4, 1, v4\nv_lshlrev_b32 v4, 2, v4\nv_xor_b32 v4, v3, v4\nv_lshlrev_b32 v4, 4, v4")
P(f"v_lshl_add_u32 {v(VB)}, v2, 10, v4")
P(f"s_lshl_b32 {s(sXo)}, {s(sRT)}, 17\ns_lshl_b32 {s(sT2)}, {s(sW)}, 14\ns_add_u32 {s(sXo)}, {s(sXo)}, {s(sT2)}")
P(f"s_lshr_b32 {s(sT2)}, {s(sT1)}, 3\ns_lshl_b32 {s(sT2)}, {s(sT2)}, 1\ns_add_u32 {s(sROT)}, {s(sRT)}, {s(sT2)}\ns_and_b32 {s(sROT)}, {s(sROT)}, {OPT.get('rm', 7)}")
if OPT.get("norot"): P(f"s_mov_b32 {s(sROT)}, 0")
P(f"s_lshl_b32 {s(sK)}, {s(sROT)}, 7")
P(f"v_add_u32 {v(VX0)}, {s(sXo)}, {v(VX0)}\nv_add_u32 {v(VX1)}, {s(sXo)}, {v(VX1)}")
P(f"s_lshr_b32 {s(sD0)}, {s(sM0x)}, 1")
P(f"s_bitcmp1_b32 {s(sT1)}, 3")
P("s_cbranch_scc1 L_ffn")

def item1(it, pitch):
    q = it & 3
    return [[f"s_add_u32 m0, {s(sM0x)}, {RA+q*16384}", f"s_mul_i32 {s(sD1)}, {s(sK)}, {pitch//2}",
             f"buffer_load_dwordx4 {v(VX0)}, {s(SX,4)}, {s(sK)} offen lds"],
            [f"buffer_load_dwordx4 {v(VX1)}, {s(SX,4)}, {s(sK)} offen offset:1024 lds"],
            [f"s_add_u32 m0, {s(sD0)}, {RB+it*8192}", f"s_add_u32 {s(sK)}, {s(sK)}, 128",
             f"buffer_load_dwordx4 {v(VW0)}, {s(SWT,4)}, {s(sD1)} offen lds ; tag=it{it}",
             f"s_and_b32 {s(sK)}, {s(sK)}, 1023"]]
def wquarter(region, q, coloff, pitch, tag):
    return [[f"s_add_u32 m0, {s(sM0x)}, {region+q*16384}", f"s_add_u32 {s(sD1)}, {s(sQ[q])}, {coloff}",
             f"buffer_load_dwordx4 {v(VW)}, {s(SWT,4)}, {s(sD1)} offen lds"],
            [f"s_add_u32 {s(sD1)}, {s(sD1)}, {8*pitch-1024}",
             f"buffer_load_dwordx4 {v(VW)}, {s(SWT,4)}, {s(sD1)} offen offset:1024 lds ; tag={tag}"]]
def w3quarter(q, pitch):
    return [[f"s_lshr_b32 {s(sD1)}, {s(sM0x)}, 1", f"s_add_u32 m0, {s(sD1)}, {RA+q*8192}", "s_nop 0",
             f"buffer_load_dwordx4 {v(VW3)}, {s(SWT,4)}, {s(sQ[q])} offen lds ; tag=w3"]]

def spin(label, load, cmp):
    P(f"s_mov_b32 {s(sCNT)}, 0")
    P(f"{label}:")
    P(cmp)
    P(f"s_add_u32 {s(sCNT)}, {s(sCNT)}, 1")
    P(f"s_cbranch_vccz {label}_ok")
    P(f"s_cmp_gt_u32 {s(sCNT)}, {SPIN_MAX}")
    P(f"s_cbranch_scc1 {label}_ok")
    P("s_sleep 1")
    old = P._cond; P._cond = label
    P(load)
    P("s_waitcnt vmcnt(0)")
    P._cond = old
    P(f"s_branch {label}")
    P(f"{label}_ok:")

def gelu(acc, n, pk=False, t0=T, out=T):
    L = []
    for g4 in range(0, n, 4):
        t = t0 + 8 + (g4 & 4)
        a = [acc + g4 + i for i in range(4)]
        if pk:
            L += [f"v_pk_mul_f32 {v(t+i,2)}, {v(a[i],2)}, {v(a[i],2)}" for i in (0, 2)]
            L += [f"v_pk_fma_f32 {v(t+i,2)}, {v(t+i,2)}, {v(K2,2)}, {v(STD,2)} op_sel:[0,0,1] op_sel_hi:[1,0,1]" for i in (0, 2)]
            L += [f"v_pk_mul_f32 {v(t+i,2)}, {v(a[i],2)}, {v(t+i,2)}" for i in (0, 2)]
        else:
            L += [f"v_mul_f32 {v(t+i)}, {v(a[i])}, {v(a[i])}" for i in range(4)]
            L += [f"v_fma_f32 {v(t+i)}, {v(t+i)}, {v(K2)}, {v(K1)}" for i in range(4)]
            L += [f"v_mul_f32 {v(t+i)}, {v(a[i])}, {v(t+i)}" for i in range(4)]
        L += [f"v_exp_f32 {v(t+i)}, {v(t+i)}" for i in range(4)]
        if pk: L += [f"v_pk_fma_f32 {v(t+i,2)}, {v(t+i,2)}, {v(STD,2)}, {v(STD,2)} op_sel_hi:[1,0,0]" for i in (0, 2)]
        else: L += [f"v_fma_f32 {v(t+i)}, {v(t+i)}, {v(STD)}, {v(STD)}" for i in range(4)]
        L += [f"v_rcp_f32 {v(t+i)}, {v(t+i)}" for i in range(4)]
        if pk: L += [f"v_pk_mul_f32 {v(t+i,2)}, {v(a[i],2)}, {v(t+i,2)}" for i in (0, 2)]
        else: L += [f"v_mul_f32 {v(t+i)}, {v(a[i])}, {v(t+i)}" for i in range(4)]
        pr = out + (g4 >> 1)
        L += [f"v_cvt_pk_bf16_f32 {v(pr)}, {v(t)}, {v(t+1)}", f"v_cvt_pk_bf16_f32 {v(pr+1)}, {v(t+2)}, {v(t+3)}"]
    return L
def hstore(soff, n, tagn, src=T):
    return [f"buffer_store_dwordx4 {v(src+4*j,4)}, {v(VL16)}, {s(SWS,4)}, {s(soff)} offen offset:{1024*j} sc1 ; tag={tagn}" for j in range(n)]
assert K1 == STD + 1

def sum4(d, r):
    return [f"v_add_f32 {v(d)}, {v(r)}, {v(r+1)}", f"v_add_f32 {v(r+2)}, {v(r+2)}, {v(r+3)}", f"v_add_f32 {v(d)}, {v(d)}, {v(r+2)}"]

MS, U = T + 4, T + 16
CSR = T + 12
MC = AAUG

def stats_final():
    t = T + 16
    return [f"v_add_f32 {v(S1)}, {v(MS)}, {v(MS+2)}", f"v_add_f32 {v(S2)}, {v(MS+1)}, {v(MS+3)}",
          f"v_mul_f32 {v(S1)}, {f2u(-1.0/512):#x}, {v(S1)}",
          f"v_mul_f32 {v(t)}, {v(S1)}, {v(S1)}",
          f"v_fma_f32 {v(S2)}, {v(S2)}, {s(sT3)}, -{v(t)}",
          f"v_max_f32 {v(S2)}, 0, {v(S2)}",
          f"v_add_f32 {v(S2)}, {f2u(1e-5):#x}, {v(S2)}",
          f"v_rsq_f32 {v(RSTD)}, {v(S2)}",
          f"v_cvt_pk_bf16_f32 {v(t)}, {v(S1)}, {v(S1)}",
          f"v_mul_f32 {v(STD)}, {v(S2)}, {v(RSTD)}",
          f"v_and_b32 {v(t+1)}, 0xffff0000, {v(t)}",
          f"v_sub_f32 {v(t+1)}, {v(S1)}, {v(t+1)}",
          f"v_cvt_pk_bf16_f32 {v(BAUG)}, {v(S1)}, {v(t+1)}",
          f"v_cvt_pk_bf16_f32 {v(BAUG+1)}, {v(S1)}, {v(STD)}",
          f"v_and_b32 {v(t+1)}, 0xffff0000, {v(BAUG+1)}",
          f"v_sub_f32 {v(t+1)}, {v(STD)}, {v(t+1)}",
          f"v_cmp_gt_u32 vcc, 32, {v(vL)}",
          f"v_cvt_pk_bf16_f32 {v(BAUG+2)}, {v(t+1)}, 0",
          f"v_cndmask_b32 {v(BAUG)}, 0, {v(BAUG)}, vcc",
          f"v_cndmask_b32 {v(BAUG+1)}, 0, {v(BAUG+1)}, vcc",
          f"v_cndmask_b32 {v(BAUG+2)}, 0, {v(BAUG+2)}, vcc"]

def aug(acc, part, bias):
    t = T + 18; dst = AAUG
    L = sum4(CS0, part) + [f"v_cvt_pk_bf16_f32 {v(dst)}, {v(CS0)}, {v(CS0)}",
         f"v_and_b32 {v(t)}, 0xffff0000, {v(dst)}",
         f"v_sub_f32 {v(t)}, {v(CS0)}, {v(t)}"]
    if bias is None:
        L += [f"v_cvt_pk_bf16_f32 {v(dst+1)}, {v(t)}, 0"]
    else:
        L += [f"v_cvt_pk_bf16_f32 {v(t)}, {v(t)}, 0", f"v_mov_b32 {v(dst+2)}, {v(bias)}",
              f"v_lshl_or_b32 {v(dst+1)}, {v(bias)}, 16, {v(t)}"]
    return L + [mfma(acc, dst, BAUG)]

def flag(level, tag):
    return [f".waitvm {tag}", f"v_mov_b32 {v(VFV)}, {level}",
            f"buffer_store_dword {v(VFV)}, {v(VZ)}, {s(SWS,4)}, {s(sFO)} offen sc1"]

Q = 16384
KAREA = []
def rot_k(kk, dst):
    if kk < 12: return [f"s_add_u32 {s(dst)}, {s(sR4)}, {kk}", f"s_and_b32 {s(dst)}, {s(dst)}, 3", f"s_add_u32 {s(dst)}, {s(dst)}, {s(sSH)}"] + \
                       ([f"s_add_u32 {s(dst)}, {s(dst)}, {kk & ~3}"] if kk & ~3 else [])
    if kk < 14: return [f"s_mul_i32 {s(dst)}, {s(sSH)}, 6", f"s_sub_u32 {s(dst)}, {kk}, {s(dst)}"]
    return [f"s_add_u32 {s(dst)}, {s(sR4)}, {kk-14}", f"s_and_b32 {s(dst)}, {s(dst)}, 3"]
def b_dma(kk):
    slot = kk % 9
    m0 = f"s_add_u32 m0, {s(sM0x)}, {KAREA[slot]}"
    sr, so = (SW2, sB2o) if kk < 14 else (SWO, sBOo)
    return [rot_k(kk, sD0) + [f"s_lshl_b32 {s(sD0)}, {s(sD0)}, 14", m0, f"s_add_u32 {s(sD0)}, {s(sD0)}, {s(so)}",
             f"buffer_load_dwordx4 {v(VB)}, {s(sr,4)}, {s(sD0)} offen lds"],
            [f"s_add_u32 {s(sD0)}, {s(sD0)}, {8192 - 1024}",
             f"buffer_load_dwordx4 {v(VB)}, {s(sr,4)}, {s(sD0)} offen offset:1024 lds ; tag=b{kk}"]]

def setup(ffn):
    pitch = 3584 if ffn else 3072
    tp = "f" if ffn else "a"
    P(f"s_load_dwordx2 {s(SWT,2)}, s[0:1], {40 if ffn else 8}")
    P(f"s_load_dwordx2 {s(SAUX,2)}, s[0:1], {48 if ffn else 16}")
    srd(SWT, 1835008 if ffn else 1572864)
    P(f"v_mul_u32_u24 {v(VW)}, {pitch}, v2\nv_add_u32 {v(VW)}, {v(VW)}, v4")
    if ffn:
        P(f"s_mul_i32 {s(sT0)}, {s(sG)}, 448\ns_and_b32 {s(sT1)}, {s(sG)}, 1\ns_lshl_b32 {s(sT2)}, {s(sT1)}, 6\ns_add_u32 {s(sWq)}, {s(sT0)}, {s(sT2)}")
        P(f"s_mul_i32 {s(sWo)}, {s(sW)}, {8*pitch}\ns_add_u32 {s(sWo)}, {s(sWo)}, {s(sWq)}")
    else:
        P(f"s_lshl_b32 {s(sWq)}, {s(sG)}, 7")
        P(f"s_mul_i32 {s(sWo)}, {s(sW)}, {8*pitch}\ns_add_u32 {s(sWo)}, {s(sWo)}, {s(sWq)}\ns_add_u32 {s(sWo)}, {s(sWo)}, 1024")
    P(f"v_add_u32 {v(VW0)}, {s(sWo)}, {v(VW)}")
    P("s_waitcnt lgkmcnt(0)")
    stamp("kernarg")
    for g_ in item1(0, pitch): P.add(g_)
    srd(SWS, WS_SIZE); srd(SDBG, 256); srd(SW2, 1835008); srd(SWO, 524288); srd(SOUT, 2097152); srd(SB2, 1024); srd(SAUX, 3584 if ffn else 16384)
    P(f"v_lshlrev_b32 {v(VL16)}, 4, {v(vL)}")
    P(f"s_lshr_b32 {s(sHALF)}, {s(sW)}, 2")
    P(f"s_and_b32 {s(sW34)}, {s(sW)}, 3\ns_xor_b32 {s(sSIG)}, {s(sW34)}, {s(sHALF)}")
    if not ffn:
        for i in range(4): P(f"v_mov_b32 {v(T+i)}, 0")
        P(f"s_lshl_b32 {s(sT0)}, {s(sW)}, 8\ns_add_u32 {s(sT0)}, {s(sT0)}, s2\ns_sub_u32 {s(sT0)}, {s(sT0)}, 256\ns_cmp_lt_u32 {s(sT0)}, 8")
        P(f"s_cbranch_scc0 L_nzero")
        P.cond_begin("zw")
        P(f"s_lshl_b32 {s(sT0)}, s2, 12\ns_add_u32 {s(sT0)}, {s(sT0)}, {WS_FLG}")
        for i in range(4): P(f"buffer_store_dwordx4 {v(T,4)}, {v(VL16)}, {s(SWS,4)}, {s(sT0)} offen offset:{1024*i} sc1")
        P(f"s_lshl_b32 {s(sT0)}, s2, 8\ns_add_u32 {s(sT0)}, {s(sT0)}, {WS_KVF}\nv_lshlrev_b32 v3, 2, {v(vL)}")
        P(f"buffer_store_dword {v(T)}, v3, {s(SWS,4)}, {s(sT0)} offen sc1 ; tag=zf")
        P.cond_end()
        P(f"L_nzero:")
    if OPT.get("touch", "1") == "1":
        P(f"s_cmp_lt_u32 {s(sW)}, 6")
        P(f"s_cbranch_scc1 L_nt{tp}")
        P.cond_begin("w67")
        P(f"v_lshlrev_b32 v3, 7, {v(vL)}\ns_mul_i32 {s(sT0)}, s2, 7168\ns_lshl_b32 {s(sT1)}, s2, 11")
        P(f"s_cmp_eq_u32 {s(sW)}, 6\ns_cbranch_scc0 L_nta{tp}")
        P(f"buffer_load_dword v255, v3, {s(SW2,4)}, {s(sT0)} offen")
        P(f"s_branch L_nt{tp}")
        P(f"L_nta{tp}:")
        P(f"v_and_b32 v3, 2047, v3")
        P(f"buffer_load_dword v255, v3, {s(SWO,4)}, {s(sT1)} offen")
        P(f"buffer_load_dword v254, v3, {s(SB2,4)}, 0 offen")
        P.cond_end()
        P(f"L_nt{tp}:")
    if OPT.get("cpf", "1") == "1":
        P(f"s_cmp_eq_u32 {s(sW)}, 5")
        P(f"s_cbranch_scc0 L_ncp{tp}")
        P.cond_begin("w5")
        P(f"s_getpc_b64 {s(sEX,2)}")
        P(f"L_pc{tp}:")
        P(f"s_sub_u32 {s(sEX)}, {s(sEX)}, L_pc{tp}-{NAME}\ns_subb_u32 {s(sEX+1)}, {s(sEX+1)}, 0")
        P(f"s_lshr_b32 {s(sT0)}, s2, 3\ns_lshl_b32 {s(sT0)}, {s(sT0)}, 11\nv_and_b32 v3, 15, {v(vL)}\nv_lshlrev_b32 v3, 7, v3\nv_add_u32 v3, {s(sT0)}, v3")
        P(f"v_min_u32 v3, L_end-{NAME}, v3")
        P(f"global_load_dword v253, v3, {s(sEX,2)}")
        P.cond_end()
        P(f"L_ncp{tp}:")
    def stouch():
        n0 = len(P.ins)
        P(f"s_lshl_b32 {s(sT0)}, s2, 3\ns_add_u32 {s(sT0)}, {s(sT0)}, {s(sW)}\ns_mul_i32 {s(sT1)}, {s(sT0)}, 768\ns_mul_i32 {s(sT0)}, {s(sT0)}, 896")
        for i in range(6): P(f"s_load_dword {s(sCNT)}, {s(sEX,2)}, {s(sT1)} offset:{128*i}")
        for i in range(7): P(f"s_load_dword {s(sCNT)}, {s(sA0,2)}, {s(sT0)} offset:{128*i}")
    if OPT.get("stouch", "0") == "1": stouch()
    late1 = OPT.get("late1", "1") == "1"
    if not late1:
        for g_ in item1(1, pitch): P.add(g_)
    P(f"s_lshl_b32 {s(sT0)}, {s(sRT)}, 4\ns_add_u32 {s(sT0)}, {s(sT0)}, {s(sG)}\ns_lshl_b32 {s(sT0)}, {s(sT0)}, 7")
    P(f"s_and_b32 {s(sT1)}, {s(sW)}, 2\ns_lshl_b32 {s(sT1)}, {s(sT1)}, 3\ns_add_u32 {s(sT0)}, {s(sT0)}, {s(sT1)}\ns_and_b32 {s(sT1)}, {s(sW)}, 1\ns_lshl_b32 {s(sT1)}, {s(sT1)}, 2\ns_add_u32 {s(sT0)}, {s(sT0)}, {s(sT1)}\ns_lshl_b32 {s(sT1)}, {s(sHALF)}, 3\ns_add_u32 {s(sT0)}, {s(sT0)}, {s(sT1)}")
    P(f"s_add_u32 {s(sFO)}, {s(sT0)}, {WS_FLG + (1024 if ffn else 0)}")
    P(f"s_lshl_b32 {s(sT0)}, {s(sRT)}, 2\ns_add_u32 {s(sT0)}, {s(sT0)}, {s(sW34)}\ns_mul_i32 {s(sHo)}, {s(sT0)}, {HF_RB}")
    if ffn:
        P(f"v_and_b32 v5, 31, {v(vL)}\nv_lshlrev_b32 v5, 1, v5")
        P(f"s_lshl_b32 {s(sT0)}, {s(sHALF)}, 6\ns_add_u32 {s(sT0)}, {s(sT0)}, {s(sWq)}")
        for i in range(3): P(f"buffer_load_ushort {v(BIAS+i)}, v5, {s(SAUX,4)}, {s(sT0)} offen offset:{128*i}")
        P(f"s_lshl_b32 {s(sT0)}, {s(sT0)}, 5\ns_add_u32 {s(sH0)}, {s(sHo)}, {s(sT0)}")
        P(f"s_mul_i32 {s(sW3)}, {s(sG)}, 448\ns_add_u32 {s(sT0)}, {s(sW3)}, 384\ns_bitcmp1_b32 {s(sG)}, 0\ns_cselect_b32 {s(sW3)}, {s(sW3)}, {s(sT0)}")
        P(f"s_lshl_b32 {s(sT0)}, {s(sHALF)}, 5\nv_xor_b32 v5, {s(sT0)}, v5")
        P(f"buffer_load_ushort {v(BIAS+3)}, v5, {s(SAUX,4)}, {s(sW3)} offen")
        P(f"s_add_u32 {s(sT0)}, {s(sT0)}, {s(sW3)}\ns_lshl_b32 {s(sT0)}, {s(sT0)}, 5\ns_add_u32 {s(sH3)}, {s(sHo)}, {s(sT0)}")
        P(f"v_lshrrev_b32 v2, 2, {v(vL)}\nv_and_b32 v4, 3, {v(vL)}\nv_lshlrev_b32 v4, 4, v4\nv_mul_u32_u24 {v(VW3)}, {pitch}, v2\nv_add_u32 {v(VW3)}, {v(VW3)}, v4")
    else:
        P(f"s_cmp_lt_u32 {s(sW)}, 2")
        P(f"s_cbranch_scc0 L_nphi")
        P.cond_begin("w01")
        P(f"s_lshl_b32 {s(sT0)}, {s(sG)}, 11\ns_lshl_b32 {s(sT1)}, {s(sW)}, 10\ns_add_u32 {s(sT0)}, {s(sT0)}, {s(sT1)}\ns_add_u32 m0, {s(sT1)}, {L_WPHI}\ns_nop 0")
        P(f"buffer_load_dwordx4 {v(VL16)}, {s(SAUX,4)}, {s(sT0)} offen lds")
        P.cond_end()
        P("L_nphi:")
    P(f"s_mul_i32 {s(sT0)}, {s(sW34)}, {16*pitch}\ns_add_u32 {s(sWq)}, {s(sWq)}, {s(sT0)}")
    P(f"v_add_u32 {v(VW)}, {s(sWq)}, {v(VW)}")
    if ffn: P(f"s_add_u32 {s(sW3)}, {s(sW3)}, {s(sT0)}\nv_add_u32 {v(VW3)}, {s(sW3)}, {v(VW3)}")
    P(f"s_add_u32 {s(sT0)}, {s(sROT)}, {s(sHALF)}")
    for q in range(4):
        P(f"s_add_u32 {s(sT1)}, {s(sT0)}, {2*q}\ns_and_b32 {s(sT1)}, {s(sT1)}, 7\ns_mul_i32 {s(sQ[q])}, {s(sT1)}, {64*pitch}")
    P(f"s_mov_b32 {s(sT3)}, {f2u(1.0/512):#x}\ns_mov_b32 {s(sONE)}, 0x3f803f80")
    P(f"v_bfe_u32 {v(T)}, {v(vL)}, 2, 2\nv_lshrrev_b32 {v(T+1)}, 5, {v(vL)}")
    P(f"v_bfe_u32 {v(T+2)}, {v(vL)}, 4, 1\nv_lshlrev_b32 {v(T+2)}, 5, {v(T+2)}\nv_and_b32 {v(T+3)}, 3, {v(vL)}\nv_lshl_add_u32 {v(T+2)}, {v(T+3)}, 3, {v(T+2)}")
    P(f"v_and_b32 {v(T+4)}, 31, {v(vL)}\nv_bfe_u32 {v(T+5)}, {v(vL)}, 1, 3\nv_xor_b32 {v(T+5)}, {v(T+5)}, {v(T+1)}")
    P(f"s_lshl_b32 {s(sT0)}, {s(sW34)}, 12\nv_lshlrev_b32 {v(T+8)}, 7, {v(T+4)}\nv_add_u32 {v(T+8)}, {s(sT0)}, {v(T+8)}")
    P(f"v_lshl_add_u32 {v(T+9)}, {v(T+1)}, 3, {v(T)}\nv_lshl_add_u32 {v(T+10)}, {v(T+9)}, 7, {v(T+2)}\nv_lshrrev_b32 {v(T+7)}, 1, {v(T)}\nv_xor_b32 {v(T+7)}, {s(sHALF)}, {v(T+7)}\nv_lshl_add_u32 {v(T+10)}, {v(T+7)}, 6, {v(T+10)}")
    for p in range(4):
        P(f"s_xor_b32 {s(sT0)}, {s(sSIG)}, {p}\ns_lshl_b32 {s(sT1)}, {s(sT0)}, 1\nv_xor_b32 {v(T+6)}, {s(sT1)}, {v(T+5)}\nv_lshl_add_u32 {v(AX+p)}, {v(T+6)}, 4, {v(T+8)}")
        P(f"s_lshl_b32 {s(sT1)}, {s(sT0)}, 11\ns_add_u32 {s(sT1)}, {s(sT1)}, {RB}\nv_add_u32 {v(AW+p)}, {s(sT1)}, {v(T+10)}")
    if ffn:
        P(f"s_lshl_b32 {s(sT0)}, {s(sHALF)}, 5\nv_xor_b32 {v(T+7)}, {s(sT0)}, {v(T+2)}\nv_lshl_add_u32 {v(T+7)}, {v(T+9)}, 6, {v(T+7)}")
        for i, p in enumerate((0, 2)):
            P(f"s_xor_b32 {s(sT0)}, {s(sSIG)}, {p}\ns_lshl_b32 {s(sT0)}, {s(sT0)}, 10\nv_add_u32 {v(AB+i)}, {s(sT0)}, {v(T+7)}")
    P(f"v_lshlrev_b32 {v(T+4)}, 4, {v(T+4)}")
    P(f"s_lshl_b32 {s(sT0)}, {s(sHALF)}, 9\ns_add_u32 {s(sT0)}, {s(sT0)}, {L_CS}\nv_add_u32 {v(VCSA)}, {s(sT0)}, {v(T+4)}")
    P(f"s_lshl_b32 {s(sT0)}, {s(sW34)}, 9\ns_add_u32 {s(sT0)}, {s(sT0)}, {L_ST}\nv_add_u32 {v(VSTA)}, {s(sT0)}, {v(T+4)}")
    P(f"v_lshrrev_b32 {v(T+4)}, 2, {v(vL)}\nv_xor_b32 {v(T+4)}, {v(T+4)}, {v(vL)}\nv_and_b32 {v(T+4)}, 4, {v(T+4)}\nv_cmp_eq_u32 vcc, 0, {v(T+4)}\nv_mov_b32 {v(T+4)}, {s(sONE)}")
    for i in range(4): P(f"v_mov_b32 {v(PZ+i)}, -1")
    for r in (VZ, BAUG+3, AAUG+2, AAUG+3): P(f"v_mov_b32 {v(r)}, 0")
    for i in range(4): P(f"v_cndmask_b32 {v(SEL+i)}, 0, {v(T+4)}, vcc")
    P(f"s_lshl_b32 {s(sW34)}, {s(sW34)}, 2")
    if late1:
        for g_ in item1(1, pitch): P.add(g_)
    if OPT.get("stouch", "0") == "2": stouch()
    P(f"s_lshl_b32 {s(sT0)}, {s(sN)}, 7\ns_mul_i32 {s(sB2o)}, {s(sW)}, {224*1024}\ns_add_u32 {s(sB2o)}, {s(sB2o)}, {s(sT0)}")
    P(f"s_lshl_b32 {s(sBOo)}, {s(sW)}, 16\ns_add_u32 {s(sBOo)}, {s(sBOo)}, {s(sT0)}\ns_lshl_b32 {s(sM4)}, {s(sW)}, 12")
    P(f"s_lshl_b32 {s(sOo)}, {s(sM)}, 16\ns_lshl_b32 {s(sT1)}, {s(sW)}, 13\ns_add_u32 {s(sOo)}, {s(sOo)}, {s(sT1)}\ns_add_u32 {s(sOo)}, {s(sOo)}, {s(sT0)}")
    P(f"s_add_u32 {s(sR4)}, {s(sM)}, {s(sN)}\ns_and_b32 {s(sR4)}, {s(sR4)}, {0 if OPT.get('norot') else 3}\ns_and_b32 {s(sSH)}, {s(sW)}, 1\ns_lshl_b32 {s(sSH)}, {s(sSH)}, 1")
    P(f"s_lshr_b32 {s(sT0)}, {s(sM)}, 1\ns_lshl_b32 {s(sT0)}, {s(sT0)}, 4\ns_add_u32 {s(sT0)}, {s(sT0)}, {s(sW)}\ns_lshl_b32 {s(sT0)}, {s(sT0)}, 7")
    P(f"s_and_b32 {s(sT1)}, {s(sM)}, 1\ns_lshl_b32 {s(sT1)}, {s(sT1)}, 4\ns_add_u32 {s(sT0)}, {s(sT0)}, {s(sT1)}\ns_add_u32 {s(sFL)}, {s(sT0)}, {WS_FLG}")
    P(f"s_mul_i32 {s(sA0)}, {s(sM)}, {2*HF_RB}\ns_mul_i32 {s(sT0)}, {s(sW)}, {14*1024}\ns_add_u32 {s(sA1)}, {s(sA0)}, {s(sM4)}\ns_add_u32 {s(sA1)}, {s(sA1)}, {112*1024}\ns_add_u32 {s(sA0)}, {s(sA0)}, {s(sT0)}")

class Sched:
    def __init__(self, n):
        self.n = n; self.pre = [[] for _ in range(n)]; self.post = [[] for _ in range(n)]
        self.fill = [[] for _ in range(n)]; self.dma = [[] for _ in range(n)]; self.blk = {}
    def spread(self, lst, a, b):
        for i in range(a, b): self.fill[i] += lst[len(lst)*(i-a)//(b-a): len(lst)*(i+1-a)//(b-a)]
    def dmas(self, groups, a, step=1):
        for i, g in enumerate(groups): self.dma[a + i*step] += g

def rd(G):
    b = WF + 4 * (G & 3)
    if G < 96:
        ks = G & 31; st, p = ks >> 2, ks & 3
        L = [f"ds_read_b128 {v(XF+4*ks,4)}, {v(AX+p)} offset:{RA+(st&3)*16384}"] if G < 32 else []
        if ks < 4 and G >= 32: L.append(f"v_xor_b32 {v(AW+p)}, {RB}, {v(AW+p)}")
        return L + [f"ds_read_b64_tr_b16 {v(b+2*t,2)}, {v(AW+p)} offset:{8192*st+512*t}" for t in range(2)]
    i = G - 96
    return [f"ds_read_b64_tr_b16 {v(b+2*t,2)}, {v(AB+(i&1))} offset:{4096*(i>>1)+256*t}" for t in range(2)]
def xq(G): return XF + 4 * (G & 31) if G < 96 else XF + 8 * (G - 96)

def common_sched(S, ffn, accs, MC):
    pitch = 3584 if ffn else 3072
    tp = "f" if ffn else "a"
    c1, c2 = (128, 256) if ffn else (2048, 0)
    S.dmas(item1(2, pitch), 0, 0)
    for st in range(8):
        G = 4 * st + 2
        S.pre[G] += [f".waitvm it{st+1}" if st < 7 else ".waitvm w1q0 lgkm0", "s_barrier"]
        if st <= 4: S.dmas(item1(st + 3, pitch), G)
        else: S.dmas(wquarter(RA, st - 5, c1, pitch, f"w1q{st-5}"), G)
    def m4(d, r, c=None): return f"v_mfma_f32_4x4x4_16b_bf16 {v(d,4)}, {v(r,2)}, {v(r,2)}, {v(d,4) if c is None else c}"
    Q0, Q1 = T + 8, T + 16
    for f in range(0, 32, 2):
        x = XF + 4 * f; a = max(f - 1, 0); c = "0" if f == 0 else None
        S.post[a] += [m4(Q0, x, c), m4(Q1, x + 2, c), m16(MS, SEL, x, c)]
    S.post[28] += [f"v_and_b32 {v(S1)}, 3, {v(vL)}", f"v_cmp_eq_u32 {s(sEX,2)}, 1, {v(S1)}", f"s_lshl_b32 {s(sT0)}, {s(sHALF)}, 3",
                   f"v_add_u32 {v(T)}, {s(sT0)}, {v(VSTA)}"]
    S.post[29] += [f"v_add_f32 {v(Q0+i)}, {v(Q0+i)}, {v(Q1+i)}" for i in range(4)]
    S.post[29] += [f"v_cmp_eq_u32 vcc, 2, {v(S1)}", f"v_cndmask_b32 {v(S2)}, {v(Q0)}, {v(Q0+1)}, {s(sEX,2)}", f"v_cmp_eq_u32 {s(sEX,2)}, 3, {v(S1)}",
                   f"v_cndmask_b32 {v(S2)}, {v(S2)}, {v(Q0+2)}, vcc", f"v_cndmask_b32 {v(S2)}, {v(S2)}, {v(Q0+3)}, {s(sEX,2)}",
                   f"v_mov_b32 {v(S1)}, {v(S2)}", f"v_permlane32_swap_b32 {v(S1)}, {v(S2)}",
                   f"v_add_f32 {v(MS+1)}, {v(S1)}, {v(S2)}", f"ds_write_b64 {v(T)}, {v(MS,2)}"]
    S.post[30] += [f"ds_read_b128 {v(MS,4)}, {v(VSTA)}"]
    for ps in range(3):
        for st in range(8):
            G = 32 * ps + 4 * st
            S.post[G] += [m16(MC, SEL, WF + 4 * (G & 3), "0" if st == 0 else None)]
        S.post[32*ps + 29] += [f"v_add_u32 {v(MC+1)}, {s(sW34)}, {v(VCSA)}", f"ds_write_b32 {v(MC+1)}, {v(MC)} offset:{1024*ps}"]
    for q in (1, 2, 3): S.pre[32 + 8*q - 2] += [f".waitvm w1q{q}", "s_barrier"]
    w2 = sum([wquarter(RB, q, c2, pitch, "w2") for q in range(4)], [])
    for g_, G in zip(w2[:4] + wquarter(RA, 3, c1, pitch, "w1q3") + w2[4:], (32, 34, 35, 37, 38, 40, 41, 43, 44, 46)): S.dma[G] += g_
    S.pre[62] += [".waitvm w2 lgkm0", "s_barrier"]
    for G in (78, 86): S.pre[G] += ["s_barrier"]
    if ffn:
        S.post[int(OPT.get("f1", 90))] += flag(1, "h1"); S.post[int(OPT.get("f2", 110))] += flag(2, "h2")
        S.post[90] += [spoll(1)]; S.blk[("e", 95)] = lambda: sneed(1, 1)
        S.post[101] += [spoll(0)]; S.blk[("e", 105)] = lambda: sneed(1, 0)
    else:
        S.post[63] += flag(1, "pz")
        S.post[87] += [spoll(1)]; S.blk[("e", 95)] = lambda: sneed(1, 1)
    def announce():
        P(f"s_lshl_b32 {s(sT0)}, {s(sW)}, 8\ns_add_u32 {s(sT0)}, {s(sT0)}, s2\ns_sub_u32 {s(sT0)}, {s(sT0)}, 256\ns_cmp_lt_u32 {s(sT0)}, 8")
        P(f"s_cbranch_scc0 L_nd")
        P.cond_begin("zw")
        P(".waitvm zf")
        P(f"s_lshl_b32 {s(sT0)}, s2, 2\nv_mov_b32 {v(VFV)}, 1")
        P(f"buffer_store_dword {v(VFV)}, {v(VZ)}, {s(SDBG,4)}, {s(sT0)} offen sc1")
        P.cond_end()
        P(f"L_nd:")
    if not ffn: S.blk[3] = announce
    ld = f"buffer_load_dword {v(VX0)}, {v(VX1)}, {s(SDBG,4)}, 0 offen sc1"
    def poll0():
        P(f"s_cmp_eq_u32 {s(sW)}, 7"); P(f"s_cbranch_scc0 L_np{tp}")
        P.cond_begin("w7")
        P(f"v_and_b32 {v(VX1)}, 7, {v(vL)}\nv_lshlrev_b32 {v(VX1)}, 2, {v(VX1)}"); P(ld)
        P.cond_end(); P(f"L_np{tp}:")
    def check0():
        P(f"s_cmp_eq_u32 {s(sW)}, 7"); P(f"s_cbranch_scc0 L_nc{tp}")
        P.cond_begin("w7")
        P(f"v_mov_b32 {v(VX0)}, {v(VX0)}")
        spin(f"L_ncs{tp}", ld, f"v_cmp_ne_u32 vcc, 1, {v(VX0)}")
        P.cond_end(); P(f"L_nc{tp}:")
    S.blk[39] = poll0; S.blk[62] = check0

def run_sched(S, accs):
    P(".waitvm it0")
    P("s_barrier")
    stamp("it0")
    P.add(rd(0)); P.add(rd(1))
    for G in range(S.n):
        stamp(f"g{G}")
        if G in S.blk: S.blk[G]()
        late = OPT.get("bam", "1") == "1" and G >= 32
        if not late: P.add(S.pre[G])
        if OPT.get("prio", "1") == "1": P(f"s_setprio {3 - ((G + 2) & 3)}")
        first = G in (0, 32, 64, 96)
        P(mfma(accs[G >> 5], WF + 4 * (G & 3), xq(G), "0" if first else None))
        if late: P.add(S.pre[G])
        if G + 2 < S.n: P.add(rd(G + 2))
        P.add(S.post[G]); P.add(S.fill[G]); P.add(S.dma[G])
        if ("e", G) in S.blk: S.blk[("e", G)]()
    P("s_setprio 0")

AC = 64; NAF = 8
def AFq(kk, rb): return XF + 4 + 8 * (2 * (kk % NAF) + rb)
def BTq(kk, nb): return XF + 8 * (2 * (kk & 1) + nb)
BA = 2
VXR, VRED = 9, 10
VWR = 20
XR, B2R = 32, 36
def a_jobs(kk):
    so = sA0 if kk < 14 else sA1
    return [rot_k(kk, sD1) + [f"s_lshl_b32 {s(sD1)}, {s(sD1)}, 10", f"s_add_u32 {s(sD1)}, {s(sD1)}, {s(so)}",
             f"buffer_load_dwordx4 {v(AFq(kk,0),4)}, {v(VL16)}, {s(SWS,4)}, {s(sD1)} offen sc1"],
            [f"s_add_u32 {s(sD1)}, {s(sD1)}, {HF_RB}",
             f"buffer_load_dwordx4 {v(AFq(kk,1),4)}, {v(VL16)}, {s(SWS,4)}, {s(sD1)} offen sc1"]]
def vcheck(regs, t):
    L = [f"v_max3_u32 {v(t)}, {v(regs[0])}, {v(regs[1])}, {v(regs[2])}"]; r = regs[3:]
    while len(r) >= 2: L.append(f"v_max3_u32 {v(t)}, {v(t)}, {v(r[0])}, {v(r[1])}"); r = r[2:]
    if r: L.append(f"v_max_u32 {v(t)}, {v(t)}, {v(r[0])}")
    return L + [f"v_cmp_eq_u32 vcc, -1, {v(t)}"]
SLOW = []
def validate(regs, t, reload):
    lb = P.lab("L_v")
    P.add(vcheck(regs, t))
    P(f"s_cbranch_vccnz {lb}_slow")
    P(f"{lb}_back:")
    SLOW.append([f"{lb}_slow:", f"s_mov_b32 {s(sCNT)}, 0", f"{lb}_loop:", "s_sleep 2"] + reload + ["s_waitcnt vmcnt(0)"] + vcheck(regs, t) +
                [f"s_add_u32 {s(sCNT)}, {s(sCNT)}, 1", f"s_cbranch_vccz {lb}_back", f"s_cmp_gt_u32 {s(sCNT)}, {SPIN_MAX}",
                 f"s_cbranch_scc0 {lb}_loop", f"s_branch {lb}_back"])
def flush_slow():
    for blk in SLOW:
        P(".reset"); P.add(blk)
    SLOW.clear()
def spoll(o): return f"s_buffer_load_dwordx4 {s(sPL,4)}, {s(SWS,4)}, {s(sFL)} offset:{0 if o else 1024} glc"
def sneed(level, o):
    lb = P.lab("L_sp")
    P(f"s_mov_b32 {s(sCNT)}, 0")
    P(f"{lb}:")
    P("s_waitcnt lgkmcnt(0)")
    P(f"s_min_u32 {s(sPL)}, {s(sPL)}, {s(sPL+1)}\ns_min_u32 {s(sPL+2)}, {s(sPL+2)}, {s(sPL+3)}\ns_min_u32 {s(sPL)}, {s(sPL)}, {s(sPL+2)}")
    P(f"s_cmp_ge_u32 {s(sPL)}, {level}")
    P(f"s_cbranch_scc1 {lb}_ok")
    P(f"s_add_u32 {s(sCNT)}, {s(sCNT)}, 1\ns_cmp_gt_u32 {s(sCNT)}, {SPIN_MAX}")
    P(f"s_cbranch_scc1 {lb}_ok")
    P("s_sleep 1")
    I = Ins(spoll(o)); I.kind = "salu"; P.ins.append(I)
    P(f"s_branch {lb}")
    P(f"{lb}_ok:")
def b_reads(kk):
    slot = kk % 9
    var, off = (KAREA[slot] >> 16), KAREA[slot] & 0xffff
    return [f".waitvm b{kk}"] + [f"ds_read_b64_tr_b16 {v(BTq(kk,nb)+2*tt,2)}, {v(BA+2*var+nb)} offset:{off+1024*tt}" for nb in range(2) for tt in range(2)]
def phase2(done=(), ordr="B6 B7 B8 B9 A4 A5 A6 A7 B10 A8 B11 A9 A10 B12 A11 B13 A12 B14 A13 B15 B16 B17 A14 A15 A16 A17"):
    P(f"v_bfe_u32 {v(T+8)}, {v(vL)}, 2, 2\nv_lshrrev_b32 {v(T+9)}, 5, {v(vL)}\nv_and_b32 {v(T+10)}, 63, {v(AW)}")
    P(f"v_lshl_add_u32 {v(T+12)}, {v(T+9)}, 2, {v(T+8)}\nv_lshl_add_u32 {v(T+12)}, {v(T+12)}, 7, {v(T+10)}\nv_lshrrev_b32 {v(T+13)}, 1, {v(T+8)}")
    P(f"v_lshl_add_u32 {v(T+12)}, {v(T+13)}, 6, {v(T+12)}\nv_xor_b32 {v(T+13)}, 64, {v(T+12)}")
    P(f"s_add_u32 {s(sT0)}, {s(sM0x)}, 65536\ns_add_u32 {s(sT1)}, {s(sM0x)}, {RC}")
    for nb in range(2):
        P(f"v_add_u32 {v(BA+nb)}, {s(sM0x)}, {v(T+12+nb)}\nv_add_u32 {v(BA+2+nb)}, {s(sT0)}, {v(T+12+nb)}\nv_add_u32 {v(BA+4+nb)}, {s(sT1)}, {v(T+12+nb)}")
    P.add(b_reads(0))
    stamp("hseen")
    order = [j for j in ordr.split() if j not in done]
    jobs = []
    for j in order:
        k2 = int(j[1:]); gs = a_jobs(k2) if j[0] == "A" else b_dma(k2)
        jobs += [(j, gs[0]), (None, gs[1])]
    for kk in range(18):
        rem = [x for x, _ in jobs if x]
        assert f"A{kk+1}" not in rem and f"B{kk+2}" not in rem, (kk, rem)
        if OPT.get("v"): print(kk, rem, file=sys.stderr)
        if jobs and jobs[0][0] is None: P.add(jobs.pop(0)[1])
        if kk + 1 < 18: P.add(b_reads(kk + 1))
        for nb in range(2):
            for rb in range(2):
                P(mfma(AC + 16 * (2 * nb + rb), BTq(kk, nb), AFq(kk, rb), "0" if kk == 0 else None))
                if not jobs: continue
                j, g_ = jobs[0]
                if j:
                    k2 = int(j[1:]); last = (nb, rb) == (1, 1)
                    free = k2 - (8 if j[0] == "A" else 9)
                    if free > kk or (free == kk and not last): continue
                    if j == "A4": sneed(2, 0)
                jobs.pop(0); P.add(g_)
        stamp(f"k{kk}")
        if jobs and jobs[0][0] is None: P.add(jobs.pop(0)[1])
        if 8 <= kk + 1 < 18: validate([AFq(kk + 1, rb) + i for rb in range(2) for i in range(4)], T + 16, sum(a_jobs(kk + 1), []))
        if kk == 8:
            P(f"v_lshrrev_b32 {v(T+17)}, 3, {v(vL)}\nv_and_b32 {v(T+18)}, 7, {v(vL)}\nv_lshlrev_b32 {v(T+18)}, 4, {v(T+18)}\nv_lshl_add_u32 {v(VXR)}, {v(T+17)}, 10, {v(T+18)}")
            P(f"s_lshl_b32 {s(sT0)}, {s(sN)}, 7")
            P(f"buffer_load_dwordx4 {v(XR,4)}, {v(VXR)}, {s(SX,4)}, {s(sOo)} offen")
            P(f"buffer_load_dwordx4 {v(B2R,4)}, {v(T+18)}, {s(SB2,4)}, {s(sT0)} offen")
        if kk == 3:
            for q in range(4):
                P(f"v_xor_b32 {v(VWR+q)}, {64*q}, {v(VL16)}\nv_add_u32 {v(VWR+q)}, {s(sM0x)}, {v(VWR+q)}")
                P(f"v_add_u32 {v(T+q)}, 65536, {v(VWR+q)}")
            P(f"v_lshrrev_b32 {v(T+4)}, 3, {v(vL)}\ns_lshl_b32 {s(sT0)}, {s(sW34)}, 1\nv_add_u32 {v(T+4)}, {s(sT0)}, {v(T+4)}")
            P(f"v_and_b32 {v(T+5)}, 3, {v(vL)}\nv_lshlrev_b32 {v(T+6)}, 2, {v(T+5)}\nv_xor_b32 {v(T+4)}, {v(T+4)}, {v(T+6)}\nv_lshlrev_b32 {v(T+4)}, 4, {v(T+4)}\nv_and_b32 {v(T+6)}, 1, {v(T+5)}\nv_lshl_add_u32 {v(T+4)}, {v(T+6)}, 10, {v(T+4)}\nv_lshrrev_b32 {v(T+6)}, 1, {v(T+5)}\nv_lshl_add_u32 {v(T+4)}, {v(T+6)}, 14, {v(T+4)}")
            P(f"v_bfe_u32 {v(T+5)}, {v(vL)}, 2, 1\nv_lshl_add_u32 {v(T+4)}, {v(T+5)}, 16, {v(T+4)}\ns_lshl_b32 {s(sT0)}, {s(sHALF)}, 15\nv_add_u32 {v(VRED)}, {s(sT0)}, {v(T+4)}")
        F = T + 8
        if kk == 14:
            for i in range(4):
                P(f"v_lshlrev_b32 {v(F+2*i)}, 16, {v(XR+i)}\nv_and_b32 {v(F+2*i+1)}, 0xffff0000, {v(XR+i)}")
                P(f"v_lshlrev_b32 {v(T+4)}, 16, {v(B2R+i)}\nv_and_b32 {v(T+5)}, 0xffff0000, {v(B2R+i)}")
                P(f"v_add_f32 {v(F+2*i)}, {v(F+2*i)}, {v(T+4)}\nv_add_f32 {v(F+2*i+1)}, {v(F+2*i+1)}, {v(T+5)}")
    stamp("p2mm")
    for blk in range(4):
        for q in range(4):
            ad = VWR + q if blk < 2 else T + q
            P(f"ds_write_b128 {v(ad)}, {v(AC+16*blk+4*q,4)} offset:{(blk&1)*32768+(q>>1)*16384+(q&1)*1024}")
    P("s_waitcnt lgkmcnt(0)")
    P("s_barrier")
    R = XF
    for ww in range(8):
        for hf in range(2): P(f"ds_read_b128 {v(R+8*ww+4*hf,4)}, {v(VRED)} offset:{2048*ww+512*hf}")
    for ww in range(8):
        for i in range(0, 8, 2): P(f"v_pk_add_f32 {v(F+i,2)}, {v(F+i,2)}, {v(R+8*ww+i,2)}")
    for i in range(4): P(f"v_cvt_pk_bf16_f32 {v(XR+i)}, {v(F+2*i)}, {v(F+2*i+1)}")
    P(f"buffer_store_dwordx4 {v(XR,4)}, {v(VXR)}, {s(SOUT,4)}, {s(sOo)} offen {OPT.get('om', '').replace('+', ' ')}")
    if STAMP:
        stamp("end")
        P("s_waitcnt lgkmcnt(0)")
        P(f"s_lshl_b32 {s(sT0)}, s2, 3\ns_add_u32 {s(sT0)}, {s(sT0)}, {s(sW)}\ns_lshl_b32 {s(sT0)}, {s(sT0)}, 6\ns_add_u32 {s(sT0)}, {s(sT0)}, {WS_STAMP}")
        P(f"v_mov_b32 v2, 0\ns_mov_b64 exec, 1")
        for i in range(12):
            P(f"v_mov_b32 v3, {s(sST+2*i)}\nbuffer_store_dword v3, v2, {s(SWS,4)}, {s(sT0)} offen offset:{4*i}")
    P("s_endpgm")
    flush_slow()

def softmax(p, out, LS):
    t = T + 16
    L = [f"v_max3_f32 {v(t)}, {v(p)}, {v(p+1)}, {v(p+2)}", f"v_max3_f32 {v(t+1)}, {v(p+3)}, {v(p+4)}, {v(p+5)}",
         f"v_max3_f32 {v(t)}, {v(t)}, {v(p+6)}, {v(p+7)}", f"v_max3_f32 {v(t+1)}, {v(t+1)}, {v(p+8)}, {v(p+9)}",
         f"v_max3_f32 {v(t)}, {v(t)}, {v(p+10)}, {v(p+11)}", f"v_max3_f32 {v(t+1)}, {v(t+1)}, {v(p+12)}, {v(p+13)}",
         f"v_max3_f32 {v(t)}, {v(t)}, {v(p+14)}, {v(p+15)}", f"v_max_f32 {v(t)}, {v(t)}, {v(t+1)}",
         f"v_mul_f32 {v(t)}, {v(t)}, {v(LS)}"]
    L += [f"v_fma_f32 {v(p+i)}, {v(p+i)}, {v(LS)}, -{v(t)}" for i in range(16)]
    L += [f"v_exp_f32 {v(p+i)}, {v(p+i)}" for i in range(16)]
    L += [f"v_add_f32 {v(t)}, {v(p)}, {v(p+1)}", f"v_add_f32 {v(t+1)}, {v(p+2)}, {v(p+3)}"]
    for i in range(4, 16, 2):
        L += [f"v_add_f32 {v(t)}, {v(t)}, {v(p+i)}", f"v_add_f32 {v(t+1)}, {v(t+1)}, {v(p+i+1)}"]
    L += [f"v_add_f32 {v(t)}, {v(t)}, {v(t+1)}", f"v_rcp_f32 {v(t)}, {v(t)}"]
    L += [f"v_mul_f32 {v(p+i)}, {v(p+i)}, {v(t)}" for i in range(16)]
    L += [f"v_cvt_pk_bf16_f32 {v(out+i)}, {v(p+2*i)}, {v(p+2*i+1)}" for i in range(8)]
    return L

setup(False)
KAREA[:] = [RC, RA+3*Q, RB, RA, RA+Q, RA+2*Q, RB+Q, RB+2*Q, RB+3*Q]
LS = K1; VPK = K2; VV = VW3; MC = BIAS
PHI0, PHI1 = AX, AAUG
PHI0 = AX
PHI1 = S1
PHI1 = T + 12
t = T + 16
P(f"v_bfe_u32 {v(t)}, {v(vL)}, 2, 2\nv_lshrrev_b32 {v(t+1)}, 5, {v(vL)}\nv_lshl_add_u32 {v(t)}, {v(t+1)}, 2, {v(t)}\nv_lshlrev_b32 {v(t)}, 5, {v(t)}")
P(f"v_bfe_u32 {v(t+2)}, {v(vL)}, 1, 1\nv_lshl_add_u32 {v(t)}, {v(t+2)}, 3, {v(t)}\nv_bfe_u32 {v(t+2)}, {v(vL)}, 4, 1\nv_lshl_add_u32 {v(t)}, {v(t+2)}, 4, {v(t)}")
P(f"s_lshl_b32 {s(sT1)}, {s(sHALF)}, 10\ns_add_u32 {s(sT1)}, {s(sT1)}, {L_WPHI}\nv_add_u32 {v(AB)}, {s(sT1)}, {v(t)}")
P(f"v_bfe_u32 {v(t)}, {v(vL)}, 2, 1\nv_mul_u32_u24 {v(t)}, 0x8000, {v(t)}\nv_lshl_or_b32 {v(AB+1)}, {v(t)}, 16, {v(t)}")
P(f"v_and_b32 {v(t)}, 31, {v(vL)}\nv_lshlrev_b32 {v(t)}, 6, {v(t)}\ns_lshl_b32 {s(sT1)}, {s(sW34)}, 9\nv_bfe_u32 {v(t+2)}, {v(vL)}, 1, 2")
P(f"v_lshlrev_b32 {v(t+3)}, 1, {v(t+1)}\nv_xor_b32 {v(t+3)}, {v(t+3)}, {v(t+2)}")
P(f"s_lshl_b32 {s(sT2)}, {s(sHALF)}, 14\ns_add_u32 {s(sT2)}, {s(sT2)}, {s(sT1)}\nv_lshl_add_u32 {v(VPK)}, {v(t+3)}, 4, {v(t)}\nv_add_u32 {v(VPK)}, {s(sT2)}, {v(VPK)}")
P(f"v_xor_b32 {v(t+3)}, {v(t+1)}, {v(t+2)}")
P(f"s_lshl_b32 {s(sT2)}, {s(sHALF)}, 13\ns_add_u32 {s(sT2)}, {s(sT2)}, {s(sT1)}\ns_add_u32 {s(sT2)}, {s(sT2)}, {RA+32768}\nv_lshl_add_u32 {v(VV)}, {v(t+3)}, 4, {v(t)}\nv_add_u32 {v(VV)}, {s(sT2)}, {v(VV)}")
def phi_load(hl, dst):
    return [f"ds_read_b64_tr_b16 {v(dst+2*tt,2)}, {v(AB)} offset:{512*hl+256*tt}" for tt in range(2)] + \
           [f"v_xor_b32 {v(dst+i)}, {v(AB+1)}, {v(dst+i)}" for i in range(4)]
S = Sched(96)
common_sched(S, False, None, MC)
S.post[30] += [f"ds_read_b128 {v(CSR,4)}, {v(VCSA)}"]
sKV, sOS = sH0, sH3
P(f"s_lshl_b32 {s(sT0)}, {s(sG)}, 4\ns_add_u32 {s(sT0)}, {s(sT0)}, {s(sRT)}\ns_mul_i32 {s(sT0)}, {s(sT0)}, {KVP_SZ}\ns_mul_i32 {s(sT1)}, {s(sW)}, 1152\ns_add_u32 {s(sT0)}, {s(sT0)}, {s(sT1)}\ns_add_u32 {s(sT0)}, {s(sT0)}, {WS_KVP}")
P(f"s_cmp_lt_u32 {s(sW)}, 4\ns_cselect_b32 {s(sKV)}, {s(sT0)}, 0x7f000000")
P(f"s_lshl_b32 {s(sT0)}, {s(sG)}, 2\ns_lshl_b32 {s(sT1)}, {s(sHALF)}, 1\ns_add_u32 {s(sT0)}, {s(sT0)}, {s(sT1)}\ns_add_u32 {s(sT0)}, {s(sT0)}, 112\ns_lshl_b32 {s(sT0)}, {s(sT0)}, 10\ns_add_u32 {s(sOS)}, {s(sT0)}, {s(sHo)}")
P(f"v_lshrrev_b32 {v(PZ+4)}, 2, {v(vL)}\nv_lshl_add_u32 {v(PZ+4)}, {v(PZ+4)}, 26, {v(VL16)}")
S.post[31] += [f"buffer_store_dwordx4 {v(PZ,4)}, {v(VL16)}, {s(SWS,4)}, {s(sKV)} offen sc1"]
S.post[32] += [f"buffer_store_dwordx4 {v(PZ,4)}, {v(PZ+4)}, {s(SWS,4)}, {s(sKV)} offen offset:1024 sc1"]
S.post[33] += [f"buffer_store_dwordx4 {v(PZ,4)}, {v(VL16)}, {s(SWS,4)}, {s(sOS)} offen sc1"]
S.post[36] += [f"buffer_store_dwordx4 {v(PZ,4)}, {v(VL16)}, {s(SWS,4)}, {s(sOS)} offen offset:1024 sc1 ; tag=pz"]
S.post[31] += stamp_i("pass1")
fill = stats_final() + aug(ACC0, CSR, None) + phi_load(0, AX) + phi_load(1, T + 8) + [f"v_mul_f32 {v(LS)}, {f2u(LOG2E):#x}, {v(RSTD)}"]
fill += [f"v_cvt_pk_bf16_f32 {v(T+i)}, {v(ACC0+2*i)}, {v(ACC0+2*i+1)}" for i in range(8)]
fill += [mfma(ACC2, AX, T, "0"), mfma(ACC0, T + 8, T + 4, "0")]
S.spread(fill, 32, 40)
S.spread(softmax(ACC2, T + 8, LS) + softmax(ACC0, T, LS), 41, 64)
S.post[56] += [f"ds_write_b128 {v(VPK)}, {v(T+8,4)}", f"v_xor_b32 {v(VSTA)}, 16, {v(VPK)}"]
S.post[57] += [f"ds_write_b128 {v(VSTA)}, {v(T+12,4)}"]
S.post[62] += [f"ds_read_b128 {v(MC,4)}, {v(VCSA)} offset:1024"]
S.post[63] += stamp_i("sub1")
S.pre[64] += sum4(CS0, MC)
S.fill[64] += aug(ACC1, MC, None)[3:]
S.post[65] += [f"ds_write_b128 {v(VPK)}, {v(T,4)} offset:8192"]
S.post[66] += [f"ds_write_b128 {v(VSTA)}, {v(T+4,4)} offset:8192"]
fill = []
fill += [f"v_mul_f32 {v(ACC1+i)}, {v(ACC1+i)}, {v(RSTD)}" for i in range(16)]
fill += [f"v_cvt_pk_bf16_f32 {v(ACC1+i)}, {v(ACC1+2*i)}, {v(ACC1+2*i+1)}" for i in range(8)]
fill += [f"ds_write_b128 {v(VV)}, {v(ACC1,4)}", f"v_xor_b32 {v(VV)}, 32, {v(VV)}", f"ds_write_b128 {v(VV)}, {v(ACC1+4,4)}"]
S.spread(fill, 66, 70)
S.dmas(b_dma(0), 50, 3)
S.dmas(b_dma(1), 72, 3); S.dmas(b_dma(2), 78, 3); S.dmas(b_dma(3) + b_dma(4), 86, 2)
def kvblock():
    P("s_waitcnt lgkmcnt(0)")
    P("s_barrier")
    stamp("kv0"); stamp("kv1")
    P(f"s_cmp_lt_u32 {s(sW)}, 4")
    P("s_cbranch_scc0 L_nkv")
    P.cond_begin("lo4")
    t = T + 16; u = S1
    P(f"v_bfe_u32 {v(u)}, {v(vL)}, 2, 2\nv_lshrrev_b32 {v(u+1)}, 5, {v(vL)}\nv_lshl_add_u32 {v(u)}, {v(u+1)}, 3, {v(u)}\nv_lshlrev_b32 {v(u)}, 6, {v(u)}")
    P(f"v_bfe_u32 {v(u+1)}, {v(vL)}, 1, 1\nv_lshl_add_u32 {v(u)}, {v(u+1)}, 3, {v(u)}\nv_bfe_u32 {v(u+1)}, {v(vL)}, 3, 1\nv_and_b32 {v(VSTA)}, 1, {v(vL)}")
    P(f"v_or_b32 {v(t)}, {s(sSH)}, {v(VSTA)}\nv_xor_b32 {v(t)}, {v(t)}, {v(u+1)}\nv_lshl_add_u32 {v(t)}, {v(t)}, 4, {v(u)}")
    P(f"s_lshr_b32 {s(sT0)}, {s(sW)}, 1\ns_lshl_b32 {s(sT0)}, {s(sT0)}, 13\ns_add_u32 {s(sT0)}, {s(sT0)}, {RA+32768}\nv_add_u32 {v(t)}, {s(sT0)}, {v(t)}\nv_xor_b32 {v(t+1)}, 32, {v(t)}")
    P(f"v_bfe_u32 {v(t+2)}, {v(vL)}, 4, 1\nv_lshl_add_u32 {v(t+2)}, {v(VSTA)}, 1, {v(t+2)}\nv_xor_b32 {v(t+2)}, {v(t+2)}, {v(u+1)}\nv_lshl_add_u32 {v(t+2)}, {v(t+2)}, 4, {v(u)}")
    P(f"s_lshl_b32 {s(sT0)}, {s(sW)}, 13\nv_add_u32 {v(t+2)}, {s(sT0)}, {v(t+2)}\nv_xor_b32 {v(t+3)}, 32, {v(t+2)}")
    P(f"v_and_b32 {v(u)}, 16, {v(vL)}\nv_cmp_eq_u32 vcc, 0, {v(u)}\nv_mov_b32 {v(u+1)}, {s(sONE)}")
    KB = [T, T + 8, ACC1, ACC1 + 8]
    def kr(J):
        for tt in range(2):
            P(f"ds_read_b64_tr_b16 {v(KB[J&3]+2*tt,2)}, {v(t+tt)} offset:{1024*J+256*tt}")
            P(f"ds_read_b64_tr_b16 {v(KB[J&3]+4+2*tt,2)}, {v(t+2+tt)} offset:{1024*J+256*tt}")
    kr(0); kr(1); kr(2)
    for J in range(8):
        for i in range(4): P(f"v_cndmask_b32 {v(KB[J&3]+i)}, {v(u+1)}, {v(KB[J&3]+i)}, vcc")
        if J + 3 < 8: kr(J + 3)
        P(mfma(ACC0, KB[J&3] + 4, KB[J&3], "0" if J == 0 else None))
    P(f"v_lshrrev_b32 {v(u)}, 5, {v(vL)}\nv_and_b32 {v(t+2)}, 15, {v(vL)}\nv_lshlrev_b32 {v(t)}, 4, {v(t+2)}\nv_lshl_add_u32 {v(t)}, {v(u)}, 8, {v(t)}\nv_add_u32 {v(t+1)}, 512, {v(t)}")
    P(f"v_lshlrev_b32 {v(u)}, 4, {v(u)}\nv_add_u32 {v(u)}, 1024, {v(u)}\nv_lshl_add_u32 {v(u)}, {v(t+2)}, 26, {v(u)}\nv_add_u32 {v(u+1)}, 32, {v(u)}")
    P(f"v_cndmask_b32 {v(t)}, {v(u)}, {v(t)}, vcc\nv_cndmask_b32 {v(t+1)}, {v(u+1)}, {v(t+1)}, vcc")
    for i in range(8): P(f"v_cvt_pk_bf16_f32 {v(T+i)}, {v(ACC0+2*i)}, {v(ACC0+2*i+1)}")
    stamp("kv1")
    for j in range(2): P(f"buffer_store_dwordx4 {v(T+4*j,4)}, {v(t+j)}, {s(SWS,4)}, {s(sKV)} offen sc1")
    P.cond_end()
    P("L_nkv:")
    stamp("kv2")
S.blk[70] = kvblock
S.pre[94] += ["s_waitcnt lgkmcnt(0)", "s_barrier"]
def kvflag():
    P(f"s_cmp_eq_u32 {s(sW)}, 0")
    P("s_cbranch_scc0 L_nkf")
    P.cond_begin("w0")
    P(f"s_lshl_b32 {s(sT0)}, {s(sG)}, 8\ns_lshl_b32 {s(sT1)}, {s(sRT)}, 2\ns_add_u32 {s(sT0)}, {s(sT0)}, {s(sT1)}\ns_add_u32 {s(sT0)}, {s(sT0)}, {WS_KVF}")
    P(f"v_mov_b32 {v(VFV)}, 1")
    P(f"buffer_store_dword {v(VFV)}, {v(VZ)}, {s(SWS,4)}, {s(sT0)} offen sc1")
    P.cond_end()
    P("L_nkf:")
S.blk[("e", 62)] = kvflag
def kvpoll():
    P(f"s_cmp_eq_u32 {s(sW)}, 7")
    P("s_cbranch_scc0 L_nkp")
    n0 = len(P.ins)
    P(f"s_lshl_b32 {s(sT2)}, {s(sG)}, 8\ns_add_u32 {s(sT2)}, {s(sT2)}, {WS_KVF}\ns_mov_b32 {s(sCNT)}, 0")
    P("s_branch L_spkv1")
    P("L_spkv:")
    P(f"s_buffer_load_dwordx16 s[20:35], {s(SWS,4)}, {s(sT2)} glc")
    P("L_spkv1:")
    P(f"s_add_u32 {s(sCNT)}, {s(sCNT)}, 1")
    P("s_waitcnt lgkmcnt(0)")
    for i in range(22, 36, 2): P(f"s_and_b64 s[20:21], s[20:21], s[{i}:{i+1}]")
    P("s_and_b32 s20, s20, s21")
    P("s_cbranch_scc1 L_nkp")
    P(f"s_cmp_gt_u32 {s(sCNT)}, {SPIN_MAX}")
    P("s_cbranch_scc1 L_nkp")
    P("s_sleep 1")
    P("s_branch L_spkv")
    for I in P.ins[n0:]:
        I.cond = "kvp"
        if I.kind == "smem": I.kind = "opaque"
    P("L_nkp:")
def kvreq():
    P(f"s_cmp_eq_u32 {s(sW)}, 7")
    P("s_cbranch_scc0 L_nkr")
    n0 = len(P.ins)
    P(f"s_lshl_b32 {s(sT2)}, {s(sG)}, 8\ns_add_u32 {s(sT2)}, {s(sT2)}, {WS_KVF}")
    P(f"s_buffer_load_dwordx16 s[20:35], {s(SWS,4)}, {s(sT2)} glc")
    for I in P.ins[n0:]:
        I.cond = "kvp"
        if I.kind == "smem": I.kind = "opaque"
    P("L_nkr:")
S.blk[78] = kvreq; S.blk[86] = kvpoll
S.post[94] += [f"ds_read_b128 {v(CSR,4)}, {v(VCSA)} offset:2048"] + phi_load(1, T + 8)
run_sched(S, [ACC0, ACC1, ACC2])
stamp("sub2")
PQ = WF
def Gq(r): return XF + 8 * r
Z = XF + 80; GA = XF + 64
VG, VGZ = S1, S2
P(f"s_mul_i32 {s(sT2)}, {s(sG)}, {16*KVP_SZ}\ns_lshr_b32 {s(sT0)}, {s(sW)}, 1\ns_mul_i32 {s(sT0)}, {s(sT0)}, 1152\ns_add_u32 {s(sT2)}, {s(sT2)}, {s(sT0)}\ns_add_u32 {s(sT2)}, {s(sT2)}, {WS_KVP}")
P(f"v_and_b32 {v(VGZ)}, 15, {v(vL)}\nv_mul_u32_u24 {v(VGZ)}, {KVP_SZ}, {v(VGZ)}\nv_and_b32 {v(VG)}, 16, {v(vL)}\nv_add_u32 {v(VGZ)}, {v(VGZ)}, {v(VG)}\ns_lshl_b32 {s(sT0)}, {s(sSH)}, 4\nv_add_u32 {v(VGZ)}, {s(sT0)}, {v(VGZ)}")
P(f"v_lshrrev_b32 {v(VG)}, 5, {v(vL)}\nv_mul_u32_u24 {v(VG)}, {8*KVP_SZ - 512}, {v(VG)}\nv_add_u32 {v(VG)}, {v(VG)}, {v(VL16)}\ns_lshl_b32 {s(sT0)}, {s(sSH)}, 8\nv_add_u32 {v(VG)}, {s(sT0)}, {v(VG)}")
gl = [[f"buffer_load_dwordx4 {v(Z,4)}, {v(VGZ)}, {s(SWS,4)}, {s(sT2)} offen offset:1024 sc1"]]
for r in range(8):
    gl.append(lines(f"s_add_u32 {s(sD1)}, {s(sRT)}, {r}\ns_and_b32 {s(sD1)}, {s(sD1)}, 7\ns_mul_i32 {s(sD1)}, {s(sD1)}, {KVP_SZ}\ns_add_u32 {s(sD1)}, {s(sD1)}, {s(sT2)}") +
              [f"buffer_load_dwordx4 {v(Gq(r),4)}, {v(VG)}, {s(SWS,4)}, {s(sD1)} offen sc1"])
P.add(aug(ACC2, CSR, None))
bd = sum([b_dma(kk) for kk in (5, 6, 7)], [])
GD = int(OPT.get("gd", 2))
for g_ in bd[:GD]: P.add(g_)
for i in range(8): P(f"v_cvt_pk_bf16_f32 {v(T+i)}, {v(ACC2+2*i)}, {v(ACC2+2*i+1)}")
P(mfma(ACC1, AX, T, "0"))
P(mfma(ACC2, T + 8, T + 4, "0"))
P.add(interleave(gl, softmax(ACC1, PQ, LS)))
stamp("qsm")
P(spoll(0))
P.add(interleave(bd[GD:], softmax(ACC2, PQ + 8, LS)))
stamp("sm2")
sneed(1, 0)
validate([Z + i for i in range(4)] + [Gq(r) + i for r in range(8) for i in range(4)], T + 16, sum(gl, []))
stamp("kvseen")
aj = sum([a_jobs(kk) for kk in range(4)], [])
n_o0 = len(P.ins)
P(f"v_lshrrev_b32 {v(T+1)}, 5, {v(vL)}")
P(f"v_bfe_u32 {v(T+2)}, {v(vL)}, 4, 1\nv_lshlrev_b32 {v(T+2)}, 9, {v(T+2)}\nv_lshl_add_u32 {v(T+2)}, {v(T+1)}, 3, {v(T+2)}")
P(f"s_lshl_b32 {s(sT0)}, {s(sW)}, 10\ns_add_u32 {s(sT0)}, {s(sT0)}, {L_KVB}\nv_add_u32 {v(T+2)}, {s(sT0)}, {v(T+2)}")
P(f"v_and_b32 {v(T+3)}, 15, {v(vL)}\nv_lshl_add_u32 {v(T+3)}, {v(T+3)}, 4, {v(T+2)}")
P(f"v_cmp_gt_u32 vcc, 32, {v(vL)}\ns_mov_b32 {s(sT0)}, 0x3f80\ns_mov_b32 {s(sT1)}, 0x3f800000")
P(f"v_cndmask_b32 {v(Z)}, {v(Z+2)}, {v(Z)}, vcc\nv_cndmask_b32 {v(Z+1)}, {v(Z+3)}, {v(Z+1)}, vcc")
P(f"v_lshlrev_b32 {v(Z+8)}, 16, {v(Z)}\nv_and_b32 {v(Z+9)}, 0xffff0000, {v(Z)}\nv_lshlrev_b32 {v(Z+10)}, 16, {v(Z+1)}\nv_and_b32 {v(Z+11)}, 0xffff0000, {v(Z+1)}")
for ror in (8, 4, 2, 1):
    for i in range(4): P(f"v_add_f32_dpp {v(Z+8+i)}, {v(Z+8+i)}, {v(Z+8+i)} row_ror:{ror} row_mask:0xf bank_mask:0xf")
P(f"v_cvt_pk_bf16_f32 {v(Z)}, {v(Z+8)}, {v(Z+9)}\nv_cvt_pk_bf16_f32 {v(Z+1)}, {v(Z+10)}, {v(Z+11)}")
P(f"ds_write_b64 {v(T+2)}, {v(Z,2)} offset:256")
def ga(i): return GA + (i & 3) + 8 * (i >> 2)
for i in range(4):
    P(f"v_lshlrev_b32 {v(ga(2*i))}, 16, {v(Gq(0)+i)}\nv_and_b32 {v(ga(2*i+1))}, 0xffff0000, {v(Gq(0)+i)}")
for r in range(1, 8):
    for i in range(4):
        P(f"v_dot2c_f32_bf16 {v(ga(2*i))}, {s(sT0)}, {v(Gq(r)+i)}\nv_dot2c_f32_bf16 {v(ga(2*i+1))}, {s(sT1)}, {v(Gq(r)+i)}")
for i in range(4): P(f"v_permlane32_swap_b32 {v(ga(i))}, {v(ga(i+4))}")
for i in range(4): P(f"v_add_f32 {v(ga(i))}, {v(ga(i))}, {v(ga(i+4))}")
P(f"v_cvt_pk_bf16_f32 {v(GA)}, {v(GA)}, {v(GA+1)}\nv_cvt_pk_bf16_f32 {v(GA+1)}, {v(GA+2)}, {v(GA+3)}")
P(f"ds_write_b64 {v(T+3)}, {v(GA,2)}")
stamp("gsum")
P(f"v_and_b32 {v(T)}, 31, {v(vL)}\nv_min_u32 {v(T)}, 16, {v(T)}\nv_and_b32 {v(T+1)}, 32, {v(vL)}\nv_add_u32 {v(T)}, {v(T)}, {v(T+1)}\nv_lshlrev_b32 {v(T)}, 4, {v(T)}")
P(f"s_lshl_b32 {s(sT0)}, {s(sHALF)}, 12\ns_add_u32 {s(sT0)}, {s(sT0)}, {L_KVB}\nv_add_u32 {v(T)}, {s(sT0)}, {v(T)}")
P("s_waitcnt lgkmcnt(0)")
P("s_barrier")
for i in range(4): P(f"ds_read_b128 {v(Gq(i),4)}, {v(T)} offset:{1024*i}")
P(mfma(ACC0, Gq(0), PQ, "0")); P(mfma(ACC1, Gq(2), PQ + 8, "0"))
P(mfma(ACC0, Gq(1), PQ + 4)); P(mfma(ACC1, Gq(3), PQ + 12))
body = P.ins[n_o0:]; del P.ins[n_o0:]
for i, g_ in enumerate(aj):
    P.add(g_); P.ins += body[len(body)*i//8: len(body)*(i+1)//8]
P(spoll(0))
for hl, acc in enumerate((ACC0, ACC1)):
    P(f"v_add_f32 {v(acc+8)}, {f2u(1e-6):#x}, {v(acc+8)}\nv_rcp_f32 {v(acc+8)}, {v(acc+8)}")
    for i in range(8): P(f"v_mul_f32 {v(acc+i)}, {v(acc+i)}, {v(acc+8)}")
    for i in range(4): P(f"v_cvt_pk_bf16_f32 {v(T+4*hl+i)}, {v(acc+2*i)}, {v(acc+2*i+1)}")
    P(f"buffer_store_dwordx4 {v(T+4*hl,4)}, {v(VL16)}, {s(SWS,4)}, {s(sOS)} offen offset:{1024*hl} sc1")
stamp("p1end")
phase2(("B6", "B7"), "B8 A4 A5 B9 A6 A7 A8 B10 A9 B11 A10 B12 A11 B13 A12 B14 A13 B15 B16 B17 A14 A15 A16 A17")

P("L_ffn:")
P(".reset")
setup(True)
KAREA[:] = [RC, RA+2*Q, RA+3*Q, RB, RB+Q, RB+2*Q, RA, RA+Q, RB+3*Q]
MC = ACC2; CSF = ACC2 + 4
S = Sched(112)
common_sched(S, True, None, MC)
S.post[30] += [f"ds_read_b128 {v(CSF,4)}, {v(VCSA)}"]
pzs = [[f"s_add_u32 {s(sT2)}, {s(sH0)}, 8192", f"buffer_store_dwordx4 {v(PZ,4)}, {v(VL16)}, {s(SWS,4)}, {s(sT2)} offen sc1"],
       [f"buffer_store_dwordx4 {v(PZ,4)}, {v(VL16)}, {s(SWS,4)}, {s(sT2)} offen offset:1024 sc1"],
       [f"buffer_store_dwordx4 {v(PZ,4)}, {v(VL16)}, {s(SWS,4)}, {s(sH3)} offen sc1 ; tag=h1"]]
for g_, G in zip(pzs, [int(x) for x in OPT.get("pz", "50,57,68").split(",")]): S.post[G] += g_
S.post[31] += stamp_i("pass1")
fill = stats_final() + aug(ACC0, CSF, BIAS)
fill += [f"v_mul_f32 {v(K1)}, {f2u(GC1):#x}, {v(RSTD)}", f"v_mul_f32 {v(K2)}, {v(RSTD)}, {v(RSTD)}",
         f"v_mul_f32 {v(K2)}, {v(K2)}, {v(RSTD)}", f"v_mul_f32 {v(K2)}, {f2u(GC2):#x}, {v(K2)}"]
S.spread(fill, 32, 39)
S.spread(gelu(ACC0, 16) + hstore(sH0, 2, "h1") + [f"s_add_u32 {s(sH0)}, {s(sH0)}, 4096"], 39, 64)
S.post[62] += [f"ds_read_b128 {v(CSF,4)}, {v(VCSA)} offset:1024"]
S.post[63] += stamp_i("sub1")
S.spread(aug(ACC1, CSF, BIAS + 1), 64, 66)
S.spread(gelu(ACC1, 16) + hstore(sH0, 2, "h2") + [f"s_add_u32 {s(sH0)}, {s(sH0)}, 4096"], 67, 96)
w3 = sum([w3quarter(q, 3584) for q in range(4)], [])
for g_, G in zip(w3 + b_dma(0), [int(x) for x in OPT.get("w3", "48,54,60,72,75,76").split(",")]): S.dma[G] += g_
S.dmas(b_dma(1), 78, 2); S.dmas(b_dma(2), 82, 2); S.dmas(b_dma(3), 86, 2); S.dmas(b_dma(4), 90, 2); S.dmas(b_dma(5), 100, 2)
S.pre[94] += [".waitvm w3 lgkm0", "s_barrier"]
S.post[94] += [f"ds_read_b128 {v(CSF,4)}, {v(VCSA)} offset:2048"]
S.post[95] += stamp_i("sub2")
S.fill[96] += aug(ACC0, CSF, BIAS + 2)
S.spread(gelu(ACC0, 16), 98, 112)
S.pre[100] += ["s_barrier"]
aj = sum([a_jobs(kk) for kk in range(4)], [])
S.dmas(aj[:4], 106)
for i in range(0, 16, 2): S.post[96 + i] += [m16(MC, SEL, WF + 4 * (i & 3), "0" if i == 0 else None)]
run_sched(S, [ACC0, ACC1, ACC0, ACC1])
t = T + 16
P(f"v_and_b32 {v(t)}, 31, {v(vL)}\ns_lshl_b32 {s(sT0)}, {s(sHALF)}, 4\nv_xor_b32 {v(t)}, {s(sT0)}, {v(t)}\nv_lshlrev_b32 {v(t)}, 4, {v(t)}\nv_add_u32 {v(t)}, {L_CS+3072}, {v(t)}")
P(f"v_add_u32 {v(t+1)}, {s(sW34)}, {v(VCSA)}")
P(f"ds_write_b32 {v(t+1)}, {v(MC)} offset:3072")
P.add(aj[4])
P(f"s_add_u32 {s(sT1)}, {s(sM0x)}, {KAREA[8]}\ns_xor_b32 {s(sT0)}, {s(sT1)}, 8192\nv_add_u32 {v(t+1)}, {s(sT0)}, {v(VL16)}\nv_add_u32 {v(AB)}, {s(sT1)}, {v(VL16)}")
P(f"ds_write_b128 {v(t+1)}, {v(ACC1+8,4)}\nds_write_b128 {v(t+1)}, {v(ACC1+12,4)} offset:1024")
P("s_waitcnt lgkmcnt(0)")
P("s_barrier")
stamp("sub3")
P(f"ds_read_b128 {v(CSF,4)}, {v(t)}")
P(f"ds_read_b128 {v(ACC0,4)}, {v(AB)}\nds_read_b128 {v(ACC0+4,4)}, {v(AB)} offset:1024")
P.add(aj[5])
P.add(aug(ACC1, CSF, BIAS + 3))
P.add(aj[6] + aj[7])
for i in range(0, 8, 2): P(f"v_pk_add_f32 {v(ACC1+i,2)}, {v(ACC1+i,2)}, {v(ACC0+i,2)}")
stamp("x7")
gt = gelu(ACC1, 8, True, out=BIAS); h3 = hstore(sH0, 2, "h3")
P.add([h3[0]] + gt[:20] + [h3[1], spoll(0)] + gt[20:] + hstore(sH3, 1, "h4", BIAS))
stamp("p1end")
phase2(())

P("L_end:")
P("s_endpgm")

ins = P.ins
if OPT.get("nodma"): ins = [I for I in ins if I.kind != "dma"]
if OPT.get("notr"): ins = [I for I in ins if not I.op.startswith("ds_read_b64_tr")]
if OPT.get("nofmac"): ins = [I for I in ins if not (I.op.startswith("v_fmac") or (I.op == "v_and_b32" and "0xffff0000" in I.text) or (I.op == "v_lshlrev_b32" and I.ops[1] == "16"))]
if OPT.get("nom16"): ins = [I for I in ins if "16x16x32" not in I.op]
if OPT.get("notrans"): ins = [I for I in ins if not I.op.startswith(("v_exp", "v_rcp"))]
if OPT.get("novalu"): ins = [I for I in ins if not I.op.startswith(("v_exp", "v_rcp", "v_mul_f32", "v_fma_f32", "v_cvt_pk", "v_max3", "v_add_f32"))]
if OPT.get("nost"): ins = [I for I in ins if not (I.kind == "vst" and "x4" in I.op and "tag=h" in I.text)]
if OPT.get("nomfma"): ins = [I for I in ins if I.kind != "mfma"]
if STAMP:
    for I in ins:
        if I.op in ("s_memrealtime", "s_memtime"): I.kind = "salu"
ins = auto_wait(ins)
st = []
ins = hazards(ins, st)
hdr = open("parallel_sum__linear_kernel_hedgehog__dense_activation_gelu__prompt.s.ref").read().split("; Override")[0]
out = hdr + f"; @launch grid=(256,1,1) block=(512,1,1) lds={LDS_SIZE}\n"
out += f'.amdgcn_target "amdgcn-amd-amdhsa--gfx950"\n.text\n.globl {NAME}\n.p2align 8\n.type {NAME},@function\n{NAME}:\n'
out += render(ins)
out += f""".section .rodata,"a"
.p2align 6
.amdhsa_kernel {NAME}
  .amdhsa_next_free_vgpr 256
  .amdhsa_next_free_sgpr 102
  .amdhsa_accum_offset 256
  .amdhsa_group_segment_fixed_size 0
  .amdhsa_kernarg_size 96
  .amdhsa_user_sgpr_count 2
  .amdhsa_user_sgpr_kernarg_segment_ptr 1
  .amdhsa_system_sgpr_workgroup_id_x 1
.end_amdhsa_kernel
"""
open(sys.argv[1], "w").write(out)
print(f"instrs={sum(1 for I in ins if I.kind not in ('label','dir'))} nop-sites={len(st)} nop-states={sum(n for n,_ in st)}", file=sys.stderr)
if OPT.get("nops"):
    for n, tx in st: print(n, tx, file=sys.stderr)
```

```python
import sys, math, struct
from ir import *

NAME = "parallel_sum__linear_kernel_hedgehog__dense_activation_gelu__prompt_kernel"
OPT = dict(a.split("=") for a in sys.argv[2:] if "=" in a)
STAMP = int(OPT.get("stamp", 0))

def f2u(x): return struct.unpack("<I", struct.pack("<f", x))[0]
LOG2E = 1.4426950408889634
GC1 = -2.0 * LOG2E * math.sqrt(2.0 / math.pi)
GC2 = GC1 * 0.044715

HF_RB = 144 * 1024
WS_KVP = 0xA00000
KVP_SZ = 4608
WS_FLG = 0xC00000
WS_KVF = 0xC08000
WS_STAMP = 0xD00000
WS_SIZE = 0x1000000
RA, RB, RC = 0, 65536, 131072
L_KVB = 147456
L_CS = 155648
L_ST = L_CS + 4096
L_WPHI = L_CS + 6144
LDS_SIZE = 163840
SPIN_MAX = 1 << 15

sW, sRT, sG, sM, sN = 3, 4, 5, 6, 7
SX, SW2, SWS, SWT, SAUX, SDBG, SWO, SOUT = 8, 12, 16, 20, 24, 28, 36, 40
sXo, sWo, sROT, sC1 = 32, 33, 34, 35
SB2 = 92
sFL, sOo, sM0x, sT0, sT1, sSIG, sONE, sFO, sHALF, sHo, sWq, sW3, sT2, sCNT, sW34, sT3 = range(44, 60)
sEX = 60
sH0, sH3, sM4, sK = 62, 63, 64, 65
sST = 66
sB2o, sBOo = 90, 91
sA0, sA1, sR4, sSH, sD0, sD1 = range(96, 102)
sOK = sSIG
sQ = [sXo, sWo, sROT, sC1]
sPL = 28
VCSA = 0; vL = 1
AX = 2; AW = 6; AB = 10; VZ, VFV = 12, 13
VX0, VX1, VW, VB, VW3 = 14, 15, 16, 17, 18
VSTA, S1, S2, CS0 = 19, 20, 21, 22
VW0 = 22
RSTD, STD, K1, K2, VL16 = 23, 24, 25, 26, 27
BAUG, AAUG, SEL, BIAS = 28, 32, 36, 40
T = 44
WF = 64
ACC0, ACC1, ACC2 = 80, 96, 112
XF = 128
VTD = 15
PZ = ACC2 + 8

P = Prog()
STI = dict(start=0, kernarg=1, it0=2, pass1=3, sub1=4, sub2=5, qsm=6, sub3=6, kvseen=7, x7=7, p1end=8, hseen=9, p2mm=10, end=11)
if OPT.get("sp") == "p2": STI = dict(start=0, p1end=1, k1=2, k3=3, k5=4, k7=5, k9=6, k11=7, k13=8, k15=9, p2mm=10, end=11)
if OPT.get("sp") == "att": STI = dict(start=0, sub1=1, kv0=2, kv1=3, kv2=4, sub2=5, qsm=6, kvseen=7, sm2=8, gsum=9, p1end=10, end=11)
if OPT.get("sp", "").startswith("l:"): STI = {n: i for i, n in enumerate(["start"] + OPT["sp"][2:].split(","))}
def stamp_i(name):
    if not STAMP or name not in STI: return []
    i = STI[name]
    return [f"{'s_memrealtime' if STAMP == 1 else 's_memtime'} {s(sST + 2*i, 2)} ; stamp {i} {name}"]
def stamp(name): P.add(stamp_i(name))

def mfma(d, a, b, c=None):
    return f"v_mfma_f32_32x32x16_bf16 {v(d,16)}, {v(a,4)}, {v(b,4)}, {v(d,16) if c is None else c}"
def m16(d, a, b, c=None):
    return f"v_mfma_f32_16x16x32_bf16 {v(d,4)}, {v(a,4)}, {v(b,4)}, {v(d,4) if c is None else c}"
def srd(base, nbytes):
    P(f"s_mov_b32 {s(base+2)}, {nbytes}\ns_mov_b32 {s(base+3)}, 0x20000")
def lines(t): return [l for l in t.split("\n") if l.strip()]

P("s_cmp_ge_u32 s2, 256")
P("s_cbranch_scc1 L_end")
stamp("start")
if OPT.get("exit0"): P("s_endpgm")
if OPT.get("cpf", "1") == "2":
    P(f"s_getpc_b64 {s(sEX,2)}")
    P("L_pc0:")
    P(f"v_lshlrev_b32 v3, 7, v0")
    P(f"v_min_u32 v3, L_end-L_pc0, v3")
    P(f"global_load_dword v253, v3, {s(sEX,2)}")
P(f"s_load_dwordx2 {s(SX,2)}, s[0:1], 0")
P(f"s_load_dwordx2 {s(SWS,2)}, s[0:1], 88")
P(f"s_load_dwordx2 {s(SDBG,2)}, s[0:1], 80")
P(f"s_load_dwordx2 {s(SW2,2)}, s[0:1], 56")
P(f"s_load_dwordx2 {s(SWO,2)}, s[0:1], 24")
P(f"s_load_dwordx2 {s(SOUT,2)}, s[0:1], 72")
P(f"s_load_dwordx2 {s(SB2,2)}, s[0:1], 64")
if OPT.get("stouch", "0") != "0":
    P(f"s_load_dwordx2 {s(sEX,2)}, s[0:1], 8")
    P(f"s_load_dwordx2 {s(sA0,2)}, s[0:1], 40")
P(f"v_lshrrev_b32 v2, 6, v0")
P(f"v_and_b32 {v(vL)}, 63, v0")
P(f"s_and_b32 {s(sT0)}, s2, 7")
P(f"s_lshr_b32 {s(sT1)}, s2, 3")
P(f"v_readfirstlane_b32 {s(sW)}, v2")
P(f"s_lshr_b32 {s(sRT)}, {s(sT0)}, 2\ns_lshl_b32 {s(sRT)}, {s(sRT)}, 3\ns_and_b32 {s(sT2)}, {s(sT1)}, 7\ns_add_u32 {s(sRT)}, {s(sRT)}, {s(sT2)}")
P(f"s_and_b32 {s(sG)}, {s(sT0)}, 3\ns_lshl_b32 {s(sG)}, {s(sG)}, 1\ns_lshr_b32 {s(sT2)}, {s(sT1)}, 4\ns_add_u32 {s(sG)}, {s(sG)}, {s(sT2)}")
P(f"s_lshl_b32 {s(sM)}, {s(sT0)}, 2\ns_and_b32 {s(sT2)}, {s(sT1)}, 3\ns_add_u32 {s(sM)}, {s(sM)}, {s(sT2)}")
P(f"s_lshr_b32 {s(sN)}, {s(sT1)}, 2")
srd(SX, 2097152)
P(f"s_lshl_b32 {s(sM0x)}, {s(sW)}, 11")
P(f"v_lshrrev_b32 v2, 3, {v(vL)}\nv_and_b32 v3, 7, {v(vL)}\nv_lshrrev_b32 v4, 4, {v(vL)}")
P(f"v_xor_b32 v5, v3, v4\nv_lshlrev_b32 v5, 4, v5\nv_lshl_add_u32 {v(VX0)}, v2, 10, v5")
P(f"v_xor_b32 v5, 64, {v(VX0)}\nv_add_u32 {v(VX1)}, {8192-1024}, v5")
P(f"v_and_b32 v4, 1, v4\nv_lshlrev_b32 v4, 2, v4\nv_xor_b32 v4, v3, v4\nv_lshlrev_b32 v4, 4, v4")
P(f"v_lshl_add_u32 {v(VB)}, v2, 10, v4")
P(f"s_lshl_b32 {s(sXo)}, {s(sRT)}, 17\ns_lshl_b32 {s(sT2)}, {s(sW)}, 14\ns_add_u32 {s(sXo)}, {s(sXo)}, {s(sT2)}")
P(f"s_lshr_b32 {s(sT2)}, {s(sT1)}, 3\ns_lshl_b32 {s(sT2)}, {s(sT2)}, 1\ns_add_u32 {s(sROT)}, {s(sRT)}, {s(sT2)}\ns_and_b32 {s(sROT)}, {s(sROT)}, {OPT.get('rm', 7)}")
if OPT.get("norot"): P(f"s_mov_b32 {s(sROT)}, 0")
P(f"s_lshl_b32 {s(sK)}, {s(sROT)}, 7")
P(f"v_add_u32 {v(VX0)}, {s(sXo)}, {v(VX0)}\nv_add_u32 {v(VX1)}, {s(sXo)}, {v(VX1)}")
P(f"s_lshr_b32 {s(sD0)}, {s(sM0x)}, 1")
P(f"s_bitcmp1_b32 {s(sT1)}, 3")
P("s_cbranch_scc1 L_ffn")

def item1(it, pitch):
    q = it & 3
    return [[f"s_add_u32 m0, {s(sM0x)}, {RA+q*16384}", f"s_mul_i32 {s(sD1)}, {s(sK)}, {pitch//2}",
             f"buffer_load_dwordx4 {v(VX0)}, {s(SX,4)}, {s(sK)} offen lds"],
            [f"buffer_load_dwordx4 {v(VX1)}, {s(SX,4)}, {s(sK)} offen offset:1024 lds"],
            [f"s_add_u32 m0, {s(sD0)}, {RB+it*8192}", f"s_add_u32 {s(sK)}, {s(sK)}, 128",
             f"buffer_load_dwordx4 {v(VW0)}, {s(SWT,4)}, {s(sD1)} offen lds ; tag=it{it}",
             f"s_and_b32 {s(sK)}, {s(sK)}, 1023"]]
def wquarter(region, q, coloff, pitch, tag):
    return [[f"s_add_u32 m0, {s(sM0x)}, {region+q*16384}", f"s_add_u32 {s(sD1)}, {s(sQ[q])}, {coloff}",
             f"buffer_load_dwordx4 {v(VW)}, {s(SWT,4)}, {s(sD1)} offen lds"],
            [f"s_add_u32 {s(sD1)}, {s(sD1)}, {8*pitch-1024}",
             f"buffer_load_dwordx4 {v(VW)}, {s(SWT,4)}, {s(sD1)} offen offset:1024 lds ; tag={tag}"]]
def w3quarter(q, pitch):
    return [[f"s_lshr_b32 {s(sD1)}, {s(sM0x)}, 1", f"s_add_u32 m0, {s(sD1)}, {RA+q*8192}", "s_nop 0",
             f"buffer_load_dwordx4 {v(VW3)}, {s(SWT,4)}, {s(sQ[q])} offen lds ; tag=w3"]]

def spin(label, load, cmp):
    P(f"s_mov_b32 {s(sCNT)}, 0")
    P(f"{label}:")
    P(cmp)
    P(f"s_add_u32 {s(sCNT)}, {s(sCNT)}, 1")
    P(f"s_cbranch_vccz {label}_ok")
    P(f"s_cmp_gt_u32 {s(sCNT)}, {SPIN_MAX}")
    P(f"s_cbranch_scc1 {label}_ok")
    P("s_sleep 1")
    old = P._cond; P._cond = label
    P(load)
    P("s_waitcnt vmcnt(0)")
    P._cond = old
    P(f"s_branch {label}")
    P(f"{label}_ok:")

def gelu(acc, n, pk=False, t0=T, out=T):
    L = []
    for g4 in range(0, n, 4):
        t = t0 + 8 + (g4 & 4)
        a = [acc + g4 + i for i in range(4)]
        if pk:
            L += [f"v_pk_mul_f32 {v(t+i,2)}, {v(a[i],2)}, {v(a[i],2)}" for i in (0, 2)]
            L += [f"v_pk_fma_f32 {v(t+i,2)}, {v(t+i,2)}, {v(K2,2)}, {v(STD,2)} op_sel:[0,0,1] op_sel_hi:[1,0,1]" for i in (0, 2)]
            L += [f"v_pk_mul_f32 {v(t+i,2)}, {v(a[i],2)}, {v(t+i,2)}" for i in (0, 2)]
        else:
            L += [f"v_mul_f32 {v(t+i)}, {v(a[i])}, {v(a[i])}" for i in range(4)]
            L += [f"v_fma_f32 {v(t+i)}, {v(t+i)}, {v(K2)}, {v(K1)}" for i in range(4)]
            L += [f"v_mul_f32 {v(t+i)}, {v(a[i])}, {v(t+i)}" for i in range(4)]
        L += [f"v_exp_f32 {v(t+i)}, {v(t+i)}" for i in range(4)]
        if pk: L += [f"v_pk_fma_f32 {v(t+i,2)}, {v(t+i,2)}, {v(STD,2)}, {v(STD,2)} op_sel_hi:[1,0,0]" for i in (0, 2)]
        else: L += [f"v_fma_f32 {v(t+i)}, {v(t+i)}, {v(STD)}, {v(STD)}" for i in range(4)]
        L += [f"v_rcp_f32 {v(t+i)}, {v(t+i)}" for i in range(4)]
        if pk: L += [f"v_pk_mul_f32 {v(t+i,2)}, {v(a[i],2)}, {v(t+i,2)}" for i in (0, 2)]
        else: L += [f"v_mul_f32 {v(t+i)}, {v(a[i])}, {v(t+i)}" for i in range(4)]
        pr = out + (g4 >> 1)
        L += [f"v_cvt_pk_bf16_f32 {v(pr)}, {v(t)}, {v(t+1)}", f"v_cvt_pk_bf16_f32 {v(pr+1)}, {v(t+2)}, {v(t+3)}"]
    return L
def hstore(soff, n, tagn, src=T):
    return [f"buffer_store_dwordx4 {v(src+4*j,4)}, {v(VL16)}, {s(SWS,4)}, {s(soff)} offen offset:{1024*j} sc1 ; tag={tagn}" for j in range(n)]
assert K1 == STD + 1

def sum4(d, r):
    return [f"v_add_f32 {v(d)}, {v(r)}, {v(r+1)}", f"v_add_f32 {v(r+2)}, {v(r+2)}, {v(r+3)}", f"v_add_f32 {v(d)}, {v(d)}, {v(r+2)}"]

MS, U = T + 4, T + 16
CSR = T + 12
MC = AAUG

def stats_final():
    t = T + 16
    return [f"v_add_f32 {v(S1)}, {v(MS)}, {v(MS+2)}", f"v_add_f32 {v(S2)}, {v(MS+1)}, {v(MS+3)}",
          f"v_mul_f32 {v(S1)}, {f2u(-1.0/512):#x}, {v(S1)}",
          f"v_mul_f32 {v(t)}, {v(S1)}, {v(S1)}",
          f"v_fma_f32 {v(S2)}, {v(S2)}, {s(sT3)}, -{v(t)}",
          f"v_max_f32 {v(S2)}, 0, {v(S2)}",
          f"v_add_f32 {v(S2)}, {f2u(1e-5):#x}, {v(S2)}",
          f"v_rsq_f32 {v(RSTD)}, {v(S2)}",
          f"v_cvt_pk_bf16_f32 {v(t)}, {v(S1)}, {v(S1)}",
          f"v_mul_f32 {v(STD)}, {v(S2)}, {v(RSTD)}",
          f"v_and_b32 {v(t+1)}, 0xffff0000, {v(t)}",
          f"v_sub_f32 {v(t+1)}, {v(S1)}, {v(t+1)}",
          f"v_cvt_pk_bf16_f32 {v(BAUG)}, {v(S1)}, {v(t+1)}",
          f"v_cvt_pk_bf16_f32 {v(BAUG+1)}, {v(S1)}, {v(STD)}",
          f"v_and_b32 {v(t+1)}, 0xffff0000, {v(BAUG+1)}",
          f"v_sub_f32 {v(t+1)}, {v(STD)}, {v(t+1)}",
          f"v_cmp_gt_u32 vcc, 32, {v(vL)}",
          f"v_cvt_pk_bf16_f32 {v(BAUG+2)}, {v(t+1)}, 0",
          f"v_cndmask_b32 {v(BAUG)}, 0, {v(BAUG)}, vcc",
          f"v_cndmask_b32 {v(BAUG+1)}, 0, {v(BAUG+1)}, vcc",
          f"v_cndmask_b32 {v(BAUG+2)}, 0, {v(BAUG+2)}, vcc"]

def aug(acc, part, bias):
    t = T + 18; dst = AAUG
    L = sum4(CS0, part) + [f"v_cvt_pk_bf16_f32 {v(dst)}, {v(CS0)}, {v(CS0)}",
         f"v_and_b32 {v(t)}, 0xffff0000, {v(dst)}",
         f"v_sub_f32 {v(t)}, {v(CS0)}, {v(t)}"]
    if bias is None:
        L += [f"v_cvt_pk_bf16_f32 {v(dst+1)}, {v(t)}, 0"]
    else:
        L += [f"v_cvt_pk_bf16_f32 {v(t)}, {v(t)}, 0", f"v_mov_b32 {v(dst+2)}, {v(bias)}",
              f"v_lshl_or_b32 {v(dst+1)}, {v(bias)}, 16, {v(t)}"]
    return L + [mfma(acc, dst, BAUG)]

def flag(level, tag):
    return [f".waitvm {tag}", f"v_mov_b32 {v(VFV)}, {level}",
            f"buffer_store_dword {v(VFV)}, {v(VZ)}, {s(SWS,4)}, {s(sFO)} offen sc1"]

Q = 16384
KAREA = []
def rot_k(kk, dst):
    if kk < 12: return [f"s_add_u32 {s(dst)}, {s(sR4)}, {kk}", f"s_and_b32 {s(dst)}, {s(dst)}, 3", f"s_add_u32 {s(dst)}, {s(dst)}, {s(sSH)}"] + \
                       ([f"s_add_u32 {s(dst)}, {s(dst)}, {kk & ~3}"] if kk & ~3 else [])
    if kk < 14: return [f"s_mul_i32 {s(dst)}, {s(sSH)}, 6", f"s_sub_u32 {s(dst)}, {kk}, {s(dst)}"]
    return [f"s_add_u32 {s(dst)}, {s(sR4)}, {kk-14}", f"s_and_b32 {s(dst)}, {s(dst)}, 3"]
def b_dma(kk):
    slot = kk % 9
    m0 = f"s_add_u32 m0, {s(sM0x)}, {KAREA[slot]}"
    sr, so = (SW2, sB2o) if kk < 14 else (SWO, sBOo)
    return [rot_k(kk, sD0) + [f"s_lshl_b32 {s(sD0)}, {s(sD0)}, 14", m0, f"s_add_u32 {s(sD0)}, {s(sD0)}, {s(so)}",
             f"buffer_load_dwordx4 {v(VB)}, {s(sr,4)}, {s(sD0)} offen lds"],
            [f"s_add_u32 {s(sD0)}, {s(sD0)}, {8192 - 1024}",
             f"buffer_load_dwordx4 {v(VB)}, {s(sr,4)}, {s(sD0)} offen offset:1024 lds ; tag=b{kk}"]]

def setup(ffn):
    pitch = 3584 if ffn else 3072
    tp = "f" if ffn else "a"
    P(f"s_load_dwordx2 {s(SWT,2)}, s[0:1], {40 if ffn else 8}")
    P(f"s_load_dwordx2 {s(SAUX,2)}, s[0:1], {48 if ffn else 16}")
    srd(SWT, 1835008 if ffn else 1572864)
    P(f"v_mul_u32_u24 {v(VW)}, {pitch}, v2\nv_add_u32 {v(VW)}, {v(VW)}, v4")
    if ffn:
        P(f"s_mul_i32 {s(sT0)}, {s(sG)}, 448\ns_and_b32 {s(sT1)}, {s(sG)}, 1\ns_lshl_b32 {s(sT2)}, {s(sT1)}, 6\ns_add_u32 {s(sWq)}, {s(sT0)}, {s(sT2)}")
        P(f"s_mul_i32 {s(sWo)}, {s(sW)}, {8*pitch}\ns_add_u32 {s(sWo)}, {s(sWo)}, {s(sWq)}")
    else:
        P(f"s_lshl_b32 {s(sWq)}, {s(sG)}, 7")
        P(f"s_mul_i32 {s(sWo)}, {s(sW)}, {8*pitch}\ns_add_u32 {s(sWo)}, {s(sWo)}, {s(sWq)}\ns_add_u32 {s(sWo)}, {s(sWo)}, 1024")
    P(f"v_add_u32 {v(VW0)}, {s(sWo)}, {v(VW)}")
    P("s_waitcnt lgkmcnt(0)")
    stamp("kernarg")
    for g_ in item1(0, pitch): P.add(g_)
    srd(SWS, WS_SIZE); srd(SDBG, 256); srd(SW2, 1835008); srd(SWO, 524288); srd(SOUT, 2097152); srd(SB2, 1024); srd(SAUX, 3584 if ffn else 16384)
    P(f"v_lshlrev_b32 {v(VL16)}, 4, {v(vL)}")
    P(f"s_lshr_b32 {s(sHALF)}, {s(sW)}, 2")
    P(f"s_and_b32 {s(sW34)}, {s(sW)}, 3\ns_xor_b32 {s(sSIG)}, {s(sW34)}, {s(sHALF)}")
    if not ffn:
        for i in range(4): P(f"v_mov_b32 {v(T+i)}, 0")
        P(f"s_lshl_b32 {s(sT0)}, {s(sW)}, 8\ns_add_u32 {s(sT0)}, {s(sT0)}, s2\ns_sub_u32 {s(sT0)}, {s(sT0)}, 256\ns_cmp_lt_u32 {s(sT0)}, 8")
        P(f"s_cbranch_scc0 L_nzero")
        P.cond_begin("zw")
        P(f"s_lshl_b32 {s(sT0)}, s2, 12\ns_add_u32 {s(sT0)}, {s(sT0)}, {WS_FLG}")
        for i in range(4): P(f"buffer_store_dwordx4 {v(T,4)}, {v(VL16)}, {s(SWS,4)}, {s(sT0)} offen offset:{1024*i} sc1")
        P(f"s_lshl_b32 {s(sT0)}, s2, 8\ns_add_u32 {s(sT0)}, {s(sT0)}, {WS_KVF}\nv_lshlrev_b32 v3, 2, {v(vL)}")
        P(f"buffer_store_dword {v(T)}, v3, {s(SWS,4)}, {s(sT0)} offen sc1 ; tag=zf")
        P.cond_end()
        P(f"L_nzero:")
    if OPT.get("touch", "0") == "1":
        P(f"s_cmp_lt_u32 {s(sW)}, 6")
        P(f"s_cbranch_scc1 L_nt{tp}")
        P.cond_begin("w67")
        P(f"v_lshlrev_b32 v3, 7, {v(vL)}\ns_mul_i32 {s(sT0)}, s2, 7168\ns_lshl_b32 {s(sT1)}, s2, 11")
        P(f"s_cmp_eq_u32 {s(sW)}, 6\ns_cbranch_scc0 L_nta{tp}")
        P(f"buffer_load_dword v255, v3, {s(SW2,4)}, {s(sT0)} offen")
        P(f"s_branch L_nt{tp}")
        P(f"L_nta{tp}:")
        P(f"v_and_b32 v3, 2047, v3")
        P(f"buffer_load_dword v255, v3, {s(SWO,4)}, {s(sT1)} offen")
        P(f"buffer_load_dword v254, v3, {s(SB2,4)}, 0 offen")
        P.cond_end()
        P(f"L_nt{tp}:")
    def wtouch():
        P(f"s_sub_u32 {s(sT0)}, {s(sW)}, 2\ns_cmp_lt_u32 {s(sT0)}, {3 if ffn else 2}")
        P(f"s_cbranch_scc0 L_nw{tp}")
        P.cond_begin("w234")
        P(f"v_mul_u32_u24 v3, {pitch}, {v(vL)}\ns_mul_i32 {s(sT1)}, {s(sROT)}, {64*pitch}\ns_add_u32 {s(sT1)}, {s(sT1)}, {s(sWq)}")
        if ffn:
            P(f"s_lshl_b32 {s(sT2)}, {s(sT0)}, 7\ns_add_u32 {s(sT1)}, {s(sT1)}, {s(sT2)}\ns_add_u32 {s(sT1)}, {s(sT1)}, 128")
            P(f"s_lshr_b32 {s(sT0)}, {s(sT0)}, 1\ns_and_b32 {s(sT0)}, {s(sT0)}, {s(sG)}\ns_mul_i32 {s(sT0)}, {s(sT0)}, 448\ns_sub_u32 {s(sT1)}, {s(sT1)}, {s(sT0)}")
        else:
            P(f"s_xor_b32 {s(sT0)}, {s(sT0)}, 1\ns_lshl_b32 {s(sT0)}, {s(sT0)}, 11\ns_add_u32 {s(sT1)}, {s(sT1)}, {s(sT0)}")
        P(f"buffer_load_dword v250, v3, {s(SWT,4)}, {s(sT1)} offen")
        P.cond_end()
        P(f"L_nw{tp}:")
    if OPT.get("wt", "0") == "1": wtouch()
    if OPT.get("cpf", "1") == "1":
        P(f"s_cmp_eq_u32 {s(sW)}, 5")
        P(f"s_cbranch_scc0 L_ncp{tp}")
        P.cond_begin("w5")
        P(f"s_getpc_b64 {s(sEX,2)}")
        P(f"L_pc{tp}:")
        P(f"s_sub_u32 {s(sEX)}, {s(sEX)}, L_pc{tp}-{NAME}\ns_subb_u32 {s(sEX+1)}, {s(sEX+1)}, 0")
        P(f"s_lshr_b32 {s(sT0)}, s2, 3\ns_lshl_b32 {s(sT0)}, {s(sT0)}, 11\nv_and_b32 v3, 15, {v(vL)}\nv_lshlrev_b32 v3, 7, v3\nv_add_u32 v3, {s(sT0)}, v3")
        P(f"v_min_u32 v3, L_end-{NAME}, v3")
        P(f"global_load_dword v253, v3, {s(sEX,2)}")
        P.cond_end()
        P(f"L_ncp{tp}:")
    if OPT.get("pt"):
        P(f"s_cmp_eq_u32 {s(sW)}, 4")
        P(f"s_cbranch_scc0 L_npt{tp}")
        n0 = len(P.ins)
        P(f"v_lshlrev_b32 v3, 21, {v(vL)}")
        P(f"buffer_load_dword v252, v3, {s(SWS,4)}, 0 offen")
        P(f"buffer_load_dword v251, v3, {s(SOUT,4)}, 0 offen")
        for I in P.ins[n0:]: I.cond = "w4"
        P(f"L_npt{tp}:")
    def stouch():
        n0 = len(P.ins)
        P(f"s_lshl_b32 {s(sT0)}, s2, 3\ns_add_u32 {s(sT0)}, {s(sT0)}, {s(sW)}\ns_mul_i32 {s(sT1)}, {s(sT0)}, 768\ns_mul_i32 {s(sT0)}, {s(sT0)}, 896")
        for i in range(6): P(f"s_load_dword {s(sCNT)}, {s(sEX,2)}, {s(sT1)} offset:{128*i}")
        for i in range(7): P(f"s_load_dword {s(sCNT)}, {s(sA0,2)}, {s(sT0)} offset:{128*i}")
    if OPT.get("stouch", "0") == "1": stouch()
    late1 = OPT.get("late1", "1") == "1"
    if not late1:
        for g_ in item1(1, pitch): P.add(g_)
    P(f"s_lshl_b32 {s(sT0)}, {s(sRT)}, 4\ns_add_u32 {s(sT0)}, {s(sT0)}, {s(sG)}\ns_lshl_b32 {s(sT0)}, {s(sT0)}, 7")
    P(f"s_and_b32 {s(sT1)}, {s(sW)}, 2\ns_lshl_b32 {s(sT1)}, {s(sT1)}, 3\ns_add_u32 {s(sT0)}, {s(sT0)}, {s(sT1)}\ns_and_b32 {s(sT1)}, {s(sW)}, 1\ns_lshl_b32 {s(sT1)}, {s(sT1)}, 2\ns_add_u32 {s(sT0)}, {s(sT0)}, {s(sT1)}\ns_lshl_b32 {s(sT1)}, {s(sHALF)}, 3\ns_add_u32 {s(sT0)}, {s(sT0)}, {s(sT1)}")
    P(f"s_add_u32 {s(sFO)}, {s(sT0)}, {WS_FLG + (1024 if ffn else 0)}")
    P(f"s_lshl_b32 {s(sT0)}, {s(sRT)}, 2\ns_add_u32 {s(sT0)}, {s(sT0)}, {s(sW34)}\ns_mul_i32 {s(sHo)}, {s(sT0)}, {HF_RB}")
    if ffn:
        P(f"v_and_b32 v5, 31, {v(vL)}\nv_lshlrev_b32 v5, 1, v5")
        P(f"s_lshl_b32 {s(sT0)}, {s(sHALF)}, 6\ns_add_u32 {s(sT0)}, {s(sT0)}, {s(sWq)}")
        for i in range(3): P(f"buffer_load_ushort {v(BIAS+i)}, v5, {s(SAUX,4)}, {s(sT0)} offen offset:{128*i}")
        P(f"s_lshl_b32 {s(sT0)}, {s(sT0)}, 5\ns_add_u32 {s(sH0)}, {s(sHo)}, {s(sT0)}")
        P(f"s_mul_i32 {s(sW3)}, {s(sG)}, 448\ns_add_u32 {s(sT0)}, {s(sW3)}, 384\ns_bitcmp1_b32 {s(sG)}, 0\ns_cselect_b32 {s(sW3)}, {s(sW3)}, {s(sT0)}")
        P(f"s_lshl_b32 {s(sT0)}, {s(sHALF)}, 5\nv_xor_b32 v5, {s(sT0)}, v5")
        P(f"buffer_load_ushort {v(BIAS+3)}, v5, {s(SAUX,4)}, {s(sW3)} offen")
        P(f"s_add_u32 {s(sT0)}, {s(sT0)}, {s(sW3)}\ns_lshl_b32 {s(sT0)}, {s(sT0)}, 5\ns_add_u32 {s(sH3)}, {s(sHo)}, {s(sT0)}")
        P(f"v_lshrrev_b32 v2, 2, {v(vL)}\nv_and_b32 v4, 3, {v(vL)}\nv_lshlrev_b32 v4, 4, v4\nv_mul_u32_u24 {v(VW3)}, {pitch}, v2\nv_add_u32 {v(VW3)}, {v(VW3)}, v4")
    else:
        P(f"s_cmp_lt_u32 {s(sW)}, 2")
        P(f"s_cbranch_scc0 L_nphi")
        P.cond_begin("w01")
        P(f"s_lshl_b32 {s(sT0)}, {s(sG)}, 11\ns_lshl_b32 {s(sT1)}, {s(sW)}, 10\ns_add_u32 {s(sT0)}, {s(sT0)}, {s(sT1)}\ns_add_u32 m0, {s(sT1)}, {L_WPHI}\ns_nop 0")
        P(f"buffer_load_dwordx4 {v(VL16)}, {s(SAUX,4)}, {s(sT0)} offen lds")
        P.cond_end()
        P("L_nphi:")
    P(f"s_mul_i32 {s(sT0)}, {s(sW34)}, {16*pitch}\ns_add_u32 {s(sWq)}, {s(sWq)}, {s(sT0)}")
    P(f"v_add_u32 {v(VW)}, {s(sWq)}, {v(VW)}")
    if ffn: P(f"s_add_u32 {s(sW3)}, {s(sW3)}, {s(sT0)}\nv_add_u32 {v(VW3)}, {s(sW3)}, {v(VW3)}")
    P(f"s_add_u32 {s(sT0)}, {s(sROT)}, {s(sHALF)}")
    for q in range(4):
        P(f"s_add_u32 {s(sT1)}, {s(sT0)}, {2*q}\ns_and_b32 {s(sT1)}, {s(sT1)}, 7\ns_mul_i32 {s(sQ[q])}, {s(sT1)}, {64*pitch}")
    P(f"s_mov_b32 {s(sT3)}, {f2u(1.0/512):#x}\ns_mov_b32 {s(sONE)}, 0x3f803f80")
    P(f"v_bfe_u32 {v(T)}, {v(vL)}, 2, 2\nv_lshrrev_b32 {v(T+1)}, 5, {v(vL)}")
    P(f"v_bfe_u32 {v(T+2)}, {v(vL)}, 4, 1\nv_lshlrev_b32 {v(T+2)}, 5, {v(T+2)}\nv_and_b32 {v(T+3)}, 3, {v(vL)}\nv_lshl_add_u32 {v(T+2)}, {v(T+3)}, 3, {v(T+2)}")
    P(f"v_and_b32 {v(T+4)}, 31, {v(vL)}\nv_bfe_u32 {v(T+5)}, {v(vL)}, 1, 3\nv_xor_b32 {v(T+5)}, {v(T+5)}, {v(T+1)}")
    P(f"s_lshl_b32 {s(sT0)}, {s(sW34)}, 12\nv_lshlrev_b32 {v(T+8)}, 7, {v(T+4)}\nv_add_u32 {v(T+8)}, {s(sT0)}, {v(T+8)}")
    P(f"v_lshl_add_u32 {v(T+9)}, {v(T+1)}, 3, {v(T)}\nv_lshl_add_u32 {v(T+10)}, {v(T+9)}, 7, {v(T+2)}\nv_lshrrev_b32 {v(T+7)}, 1, {v(T)}\nv_xor_b32 {v(T+7)}, {s(sHALF)}, {v(T+7)}\nv_lshl_add_u32 {v(T+10)}, {v(T+7)}, 6, {v(T+10)}")
    for p in range(4):
        P(f"s_xor_b32 {s(sT0)}, {s(sSIG)}, {p}\ns_lshl_b32 {s(sT1)}, {s(sT0)}, 1\nv_xor_b32 {v(T+6)}, {s(sT1)}, {v(T+5)}\nv_lshl_add_u32 {v(AX+p)}, {v(T+6)}, 4, {v(T+8)}")
        P(f"s_lshl_b32 {s(sT1)}, {s(sT0)}, 11\ns_add_u32 {s(sT1)}, {s(sT1)}, {RB}\nv_add_u32 {v(AW+p)}, {s(sT1)}, {v(T+10)}")
    if ffn:
        P(f"s_lshl_b32 {s(sT0)}, {s(sHALF)}, 5\nv_xor_b32 {v(T+7)}, {s(sT0)}, {v(T+2)}\nv_lshl_add_u32 {v(T+7)}, {v(T+9)}, 6, {v(T+7)}")
        for i, p in enumerate((0, 2)):
            P(f"s_xor_b32 {s(sT0)}, {s(sSIG)}, {p}\ns_lshl_b32 {s(sT0)}, {s(sT0)}, 10\nv_add_u32 {v(AB+i)}, {s(sT0)}, {v(T+7)}")
    P(f"v_lshlrev_b32 {v(T+4)}, 4, {v(T+4)}")
    P(f"s_lshl_b32 {s(sT0)}, {s(sHALF)}, 9\ns_add_u32 {s(sT0)}, {s(sT0)}, {L_CS}\nv_add_u32 {v(VCSA)}, {s(sT0)}, {v(T+4)}")
    P(f"s_lshl_b32 {s(sT0)}, {s(sW34)}, 9\ns_add_u32 {s(sT0)}, {s(sT0)}, {L_ST}\nv_add_u32 {v(VSTA)}, {s(sT0)}, {v(T+4)}")
    P(f"v_lshrrev_b32 {v(T+4)}, 2, {v(vL)}\nv_xor_b32 {v(T+4)}, {v(T+4)}, {v(vL)}\nv_and_b32 {v(T+4)}, 4, {v(T+4)}\nv_cmp_eq_u32 vcc, 0, {v(T+4)}\nv_mov_b32 {v(T+4)}, {s(sONE)}")
    for i in range(4): P(f"v_mov_b32 {v(PZ+i)}, -1")
    for r in (VZ, BAUG+3, AAUG+2, AAUG+3): P(f"v_mov_b32 {v(r)}, 0")
    for i in range(4): P(f"v_cndmask_b32 {v(SEL+i)}, 0, {v(T+4)}, vcc")
    P(f"s_lshl_b32 {s(sW34)}, {s(sW34)}, 2")
    if late1:
        for g_ in item1(1, pitch): P.add(g_)
    if OPT.get("stouch", "0") == "2": stouch()
    P(f"s_lshl_b32 {s(sT0)}, {s(sN)}, 7\ns_mul_i32 {s(sB2o)}, {s(sW)}, {224*1024}\ns_add_u32 {s(sB2o)}, {s(sB2o)}, {s(sT0)}")
    P(f"s_lshl_b32 {s(sBOo)}, {s(sW)}, 16\ns_add_u32 {s(sBOo)}, {s(sBOo)}, {s(sT0)}\ns_lshl_b32 {s(sM4)}, {s(sW)}, 12")
    P(f"s_lshl_b32 {s(sOo)}, {s(sM)}, 16\ns_lshl_b32 {s(sT1)}, {s(sW)}, 13\ns_add_u32 {s(sOo)}, {s(sOo)}, {s(sT1)}\ns_add_u32 {s(sOo)}, {s(sOo)}, {s(sT0)}")
    P(f"s_add_u32 {s(sR4)}, {s(sM)}, {s(sN)}\ns_and_b32 {s(sR4)}, {s(sR4)}, {0 if OPT.get('norot') else 3}\ns_and_b32 {s(sSH)}, {s(sW)}, 1\ns_lshl_b32 {s(sSH)}, {s(sSH)}, 1")
    P(f"s_lshr_b32 {s(sT0)}, {s(sM)}, 1\ns_lshl_b32 {s(sT0)}, {s(sT0)}, 4\ns_add_u32 {s(sT0)}, {s(sT0)}, {s(sW)}\ns_lshl_b32 {s(sT0)}, {s(sT0)}, 7")
    P(f"s_and_b32 {s(sT1)}, {s(sM)}, 1\ns_lshl_b32 {s(sT1)}, {s(sT1)}, 4\ns_add_u32 {s(sT0)}, {s(sT0)}, {s(sT1)}\ns_add_u32 {s(sFL)}, {s(sT0)}, {WS_FLG}")
    P(f"s_mul_i32 {s(sA0)}, {s(sM)}, {2*HF_RB}\ns_mul_i32 {s(sT0)}, {s(sW)}, {14*1024}\ns_add_u32 {s(sA1)}, {s(sA0)}, {s(sM4)}\ns_add_u32 {s(sA1)}, {s(sA1)}, {112*1024}\ns_add_u32 {s(sA0)}, {s(sA0)}, {s(sT0)}")

class Sched:
    def __init__(self, n):
        self.n = n; self.pre = [[] for _ in range(n)]; self.post = [[] for _ in range(n)]
        self.fill = [[] for _ in range(n)]; self.dma = [[] for _ in range(n)]; self.blk = {}
    def spread(self, lst, a, b):
        for i in range(a, b): self.fill[i] += lst[len(lst)*(i-a)//(b-a): len(lst)*(i+1-a)//(b-a)]
    def dmas(self, groups, a, step=1):
        for i, g in enumerate(groups): self.dma[a + i*step] += g

def rd(G):
    b = WF + 4 * (G & 3)
    if G < 96:
        ks = G & 31; st, p = ks >> 2, ks & 3
        L = [f"ds_read_b128 {v(XF+4*ks,4)}, {v(AX+p)} offset:{RA+(st&3)*16384}"] if G < 32 else []
        if ks < 4 and G >= 32: L.append(f"v_xor_b32 {v(AW+p)}, {RB}, {v(AW+p)}")
        return L + [f"ds_read_b64_tr_b16 {v(b+2*t,2)}, {v(AW+p)} offset:{8192*st+512*t}" for t in range(2)]
    i = G - 96
    return [f"ds_read_b64_tr_b16 {v(b+2*t,2)}, {v(AB+(i&1))} offset:{4096*(i>>1)+256*t}" for t in range(2)]
def xq(G): return XF + 4 * (G & 31) if G < 96 else XF + 8 * (G - 96)

def common_sched(S, ffn, accs, MC):
    pitch = 3584 if ffn else 3072
    tp = "f" if ffn else "a"
    c1, c2 = (128, 256) if ffn else (2048, 0)
    S.dmas(item1(2, pitch), 0, 0)
    for st in range(8):
        G = 4 * st + 2
        S.pre[G] += [f".waitvm it{st+1}" if st < 7 else ".waitvm w1q0 lgkm0", "s_barrier"]
        if st <= 4: S.dmas(item1(st + 3, pitch), G)
        else: S.dmas(wquarter(RA, st - 5, c1, pitch, f"w1q{st-5}"), G)
    def m4(d, r, c=None): return f"v_mfma_f32_4x4x4_16b_bf16 {v(d,4)}, {v(r,2)}, {v(r,2)}, {v(d,4) if c is None else c}"
    Q0, Q1 = T + 8, T + 16
    for f in range(0, 32, 2):
        x = XF + 4 * f; a = max(f - 1, 0); c = "0" if f == 0 else None
        S.post[a] += [m4(Q0, x, c), m4(Q1, x + 2, c), m16(MS, SEL, x, c)]
    S.post[28] += [f"v_and_b32 {v(S1)}, 3, {v(vL)}", f"v_cmp_eq_u32 {s(sEX,2)}, 1, {v(S1)}", f"s_lshl_b32 {s(sT0)}, {s(sHALF)}, 3",
                   f"v_add_u32 {v(T)}, {s(sT0)}, {v(VSTA)}"]
    S.post[29] += [f"v_add_f32 {v(Q0+i)}, {v(Q0+i)}, {v(Q1+i)}" for i in range(4)]
    S.post[29] += [f"v_cmp_eq_u32 vcc, 2, {v(S1)}", f"v_cndmask_b32 {v(S2)}, {v(Q0)}, {v(Q0+1)}, {s(sEX,2)}", f"v_cmp_eq_u32 {s(sEX,2)}, 3, {v(S1)}",
                   f"v_cndmask_b32 {v(S2)}, {v(S2)}, {v(Q0+2)}, vcc", f"v_cndmask_b32 {v(S2)}, {v(S2)}, {v(Q0+3)}, {s(sEX,2)}",
                   f"v_mov_b32 {v(S1)}, {v(S2)}", f"v_permlane32_swap_b32 {v(S1)}, {v(S2)}",
                   f"v_add_f32 {v(MS+1)}, {v(S1)}, {v(S2)}", f"ds_write_b64 {v(T)}, {v(MS,2)}"]
    S.post[30] += [f"ds_read_b128 {v(MS,4)}, {v(VSTA)}"]
    for ps in range(3):
        for st in range(8):
            G = 32 * ps + 4 * st
            S.post[G] += [m16(MC, SEL, WF + 4 * (G & 3), "0" if st == 0 else None)]
        S.post[32*ps + 29] += [f"v_add_u32 {v(MC+1)}, {s(sW34)}, {v(VCSA)}", f"ds_write_b32 {v(MC+1)}, {v(MC)} offset:{1024*ps}"]
    for q in (1, 2, 3): S.pre[32 + 8*q - 2] += [f".waitvm w1q{q}", "s_barrier"]
    w2 = sum([wquarter(RB, q, c2, pitch, "w2") for q in range(4)], [])
    for g_, G in zip(w2[:4] + wquarter(RA, 3, c1, pitch, "w1q3") + w2[4:], (32, 34, 35, 37, 38, 40, 41, 43, 44, 46)): S.dma[G] += g_
    S.pre[62] += [".waitvm w2 lgkm0", "s_barrier"]
    for G in (78, 86): S.pre[G] += ["s_barrier"]
    if ffn:
        S.post[int(OPT.get("f1", 90))] += flag(1, "h1"); S.post[int(OPT.get("f2", 110))] += flag(2, "h2")
        S.post[101] += [spoll(0)]; S.blk[("e", 105)] = lambda: sneed(1, 0)
    else:
        S.post[70] += flag(1, "pz")
    if OPT.get("l2t", "1") == "1":
        tg = [int(x) for x in OPT.get("l2gf" if ffn else "l2ga", "52,62,66,70,74" if ffn else "48,52,56,60,64").split(",")]
        DUM = VX0 if False else VW0
        for j in range(5):
            if j < 3:
                L = [f"s_lshr_b32 {s(sT0)}, s2, 3", f"s_mul_i32 {s(sT0)}, {s(sT0)}, 3", f"s_lshl_b32 {s(sT1)}, {s(sSH)}, 4", f"s_add_u32 {s(sT0)}, {s(sT0)}, {s(sT1)}",
                     f"s_add_u32 {s(sT0)}, {s(sT0)}, {128+j}", f"s_sub_u32 {s(sT1)}, {s(sT0)}, 224", f"s_min_u32 {s(sT0)}, {s(sT0)}, {s(sT1)}",
                     f"s_mul_i32 {s(sT1)}, {s(sW)}, 224", f"s_add_u32 {s(sT0)}, {s(sT0)}, {s(sT1)}", f"s_lshl_b32 {s(sT0)}, {s(sT0)}, 10",
                     f"buffer_load_dword {v(VTD)}, {v(VL16)}, {s(SW2,4)}, {s(sT0)} offen ; nodef"]
            else:
                L = [f"s_lshr_b32 {s(sT0)}, s2, 3", f"s_lshl_b32 {s(sT0)}, {s(sT0)}, 11", f"s_lshl_b32 {s(sT1)}, {s(sW)}, 16", f"s_add_u32 {s(sT0)}, {s(sT0)}, {s(sT1)}",
                     f"buffer_load_dword {v(VTD)}, {v(VL16)}, {s(SWO,4)}, {s(sT0)} offen offset:{1024*(j-3)} ; nodef"]
            S.dma[tg[j]] += L
    def announce():
        P(f"s_lshl_b32 {s(sT0)}, {s(sW)}, 8\ns_add_u32 {s(sT0)}, {s(sT0)}, s2\ns_sub_u32 {s(sT0)}, {s(sT0)}, 256\ns_cmp_lt_u32 {s(sT0)}, 8")
        P(f"s_cbranch_scc0 L_nd")
        P.cond_begin("zw")
        P(".waitvm zf")
        P(f"s_lshl_b32 {s(sT0)}, s2, 2\nv_mov_b32 {v(VFV)}, 1")
        P(f"buffer_store_dword {v(VFV)}, {v(VZ)}, {s(SDBG,4)}, {s(sT0)} offen sc1")
        P.cond_end()
        P(f"L_nd:")
    if not ffn: S.blk[3] = announce
    ld = f"v_and_b32 {v(VX0)}, 28, {v(vL)}\nbuffer_load_dword {v(VX0)}, {v(VX0)}, {s(SDBG,4)}, 0 offen sc1"
    def poll0():
        P(f"s_cmp_eq_u32 {s(sW)}, 7"); P(f"s_cbranch_scc0 L_np{tp}")
        P.cond_begin("w7")
        P(ld)
        P.cond_end(); P(f"L_np{tp}:")
    def check0():
        P(f"s_cmp_eq_u32 {s(sW)}, 7"); P(f"s_cbranch_scc0 L_nc{tp}")
        P.cond_begin("w7")
        P(f"v_mov_b32 {v(VX0)}, {v(VX0)}")
        spin(f"L_ncs{tp}", ld, f"v_cmp_ne_u32 vcc, 1, {v(VX0)}")
        P.cond_end(); P(f"L_nc{tp}:")
    S.blk[39] = poll0; S.blk[62] = check0

def run_sched(S, accs):
    P(".waitvm it0")
    P("s_barrier")
    stamp("it0")
    P.add(rd(0)); P.add(rd(1))
    for G in range(S.n):
        stamp(f"g{G}")
        if G in S.blk: S.blk[G]()
        late = OPT.get("bam", "1") == "1" and G >= 32
        if not late: P.add(S.pre[G])
        if OPT.get("prio", "1") == "1": P(f"s_setprio {3 - ((G + 2) & 3)}")
        first = G in (0, 32, 64, 96)
        P(mfma(accs[G >> 5], WF + 4 * (G & 3), xq(G), "0" if first else None))
        if late: P.add(S.pre[G])
        if G + 2 < S.n: P.add(rd(G + 2))
        P.add(S.post[G]); P.add(S.fill[G]); P.add(S.dma[G])
        if ("e", G) in S.blk: S.blk[("e", G)]()
    P("s_setprio 0")

AC = 64; NAF = 8
def AFq(kk, rb): return XF + 4 + 8 * (2 * (kk % NAF) + rb)
def BTq(kk, nb): return XF + 8 * (2 * (kk & 1) + nb)
BA = 2
VXR, VRED = 9, 10
VWR = 20
XR, B2R = 32, 36
def a_jobs(kk):
    so = sA0 if kk < 14 else sA1
    return [rot_k(kk, sD1) + [f"s_lshl_b32 {s(sD1)}, {s(sD1)}, 10", f"s_add_u32 {s(sD1)}, {s(sD1)}, {s(so)}",
             f"buffer_load_dwordx4 {v(AFq(kk,0),4)}, {v(VL16)}, {s(SWS,4)}, {s(sD1)} offen sc1"],
            [f"s_add_u32 {s(sD1)}, {s(sD1)}, {HF_RB}",
             f"buffer_load_dwordx4 {v(AFq(kk,1),4)}, {v(VL16)}, {s(SWS,4)}, {s(sD1)} offen sc1"]]
def vcheck(regs, t):
    L = [f"v_max3_u32 {v(t)}, {v(regs[0])}, {v(regs[1])}, {v(regs[2])}"]; r = regs[3:]
    while len(r) >= 2: L.append(f"v_max3_u32 {v(t)}, {v(t)}, {v(r[0])}, {v(r[1])}"); r = r[2:]
    if r: L.append(f"v_max_u32 {v(t)}, {v(t)}, {v(r[0])}")
    return L + [f"v_cmp_eq_u32 vcc, -1, {v(t)}"]
SLOW = []
def validate(regs, t, reload):
    lb = P.lab("L_v")
    P.add(vcheck(regs, t))
    P(f"s_cbranch_vccnz {lb}_slow")
    P(f"{lb}_back:")
    SLOW.append([f"{lb}_slow:", f"s_mov_b32 {s(sCNT)}, 0", f"{lb}_loop:", "s_sleep 2"] + reload + ["s_waitcnt vmcnt(0)"] + vcheck(regs, t) +
                [f"s_add_u32 {s(sCNT)}, {s(sCNT)}, 1", f"s_cbranch_vccz {lb}_back", f"s_cmp_gt_u32 {s(sCNT)}, {SPIN_MAX}",
                 f"s_cbranch_scc0 {lb}_loop", f"s_branch {lb}_back"])
def flush_slow():
    for blk in SLOW:
        P(".reset"); P.add(blk)
    SLOW.clear()
def spoll(o): return f"s_buffer_load_dwordx4 {s(sPL,4)}, {s(SWS,4)}, {s(sFL)} offset:{0 if o else 1024} glc"
def sneed(level, o):
    lb = P.lab("L_sp")
    P(f"s_mov_b32 {s(sCNT)}, 0")
    P(f"{lb}:")
    P("s_waitcnt lgkmcnt(0)")
    P(f"s_min_u32 {s(sPL)}, {s(sPL)}, {s(sPL+1)}\ns_min_u32 {s(sPL+2)}, {s(sPL+2)}, {s(sPL+3)}\ns_min_u32 {s(sPL)}, {s(sPL)}, {s(sPL+2)}")
    P(f"s_cmp_ge_u32 {s(sPL)}, {level}")
    P(f"s_cbranch_scc1 {lb}_ok")
    P(f"s_add_u32 {s(sCNT)}, {s(sCNT)}, 1\ns_cmp_gt_u32 {s(sCNT)}, {SPIN_MAX}")
    P(f"s_cbranch_scc1 {lb}_ok")
    P("s_sleep 1")
    I = Ins(spoll(o)); I.kind = "salu"; P.ins.append(I)
    P(f"s_branch {lb}")
    P(f"{lb}_ok:")
def b_reads(kk):
    slot = kk % 9
    var, off = (KAREA[slot] >> 16), KAREA[slot] & 0xffff
    return [f".waitvm b{kk}"] + [f"ds_read_b64_tr_b16 {v(BTq(kk,nb)+2*tt,2)}, {v(BA+2*var+nb)} offset:{off+1024*tt}" for nb in range(2) for tt in range(2)]
def phase2(done=(), ordr="B6 B7 B8 B9 A4 A5 A6 A7 B10 A8 B11 A9 A10 B12 A11 B13 A12 B14 A13 B15 B16 B17 A14 A15 A16 A17"):
    P(f"v_bfe_u32 {v(T+8)}, {v(vL)}, 2, 2\nv_lshrrev_b32 {v(T+9)}, 5, {v(vL)}\nv_and_b32 {v(T+10)}, 63, {v(AW)}")
    P(f"v_lshl_add_u32 {v(T+12)}, {v(T+9)}, 2, {v(T+8)}\nv_lshl_add_u32 {v(T+12)}, {v(T+12)}, 7, {v(T+10)}\nv_lshrrev_b32 {v(T+13)}, 1, {v(T+8)}")
    P(f"v_lshl_add_u32 {v(T+12)}, {v(T+13)}, 6, {v(T+12)}\nv_xor_b32 {v(T+13)}, 64, {v(T+12)}")
    P(f"s_add_u32 {s(sT0)}, {s(sM0x)}, 65536\ns_add_u32 {s(sT1)}, {s(sM0x)}, {RC}")
    for nb in range(2):
        P(f"v_add_u32 {v(BA+nb)}, {s(sM0x)}, {v(T+12+nb)}\nv_add_u32 {v(BA+2+nb)}, {s(sT0)}, {v(T+12+nb)}\nv_add_u32 {v(BA+4+nb)}, {s(sT1)}, {v(T+12+nb)}")
    P.add(b_reads(0))
    if OPT.get("p2prio") == "y":
        lb = P.lab("L_pr"); P(f"s_cmp_lt_u32 {s(sW)}, 4\ns_cbranch_scc1 {lb}\ns_setprio 1\n{lb}:")
    stamp("hseen")
    order = [j for j in ordr.split() if j not in done]
    jobs = []
    for j in order:
        k2 = int(j[1:]); gs = a_jobs(k2) if j[0] == "A" else b_dma(k2)
        jobs += [(j, gs[0]), (None, gs[1])]
    for kk in range(18):
        rem = [x for x, _ in jobs if x]
        assert f"A{kk+1}" not in rem and f"B{kk+2}" not in rem, (kk, rem)
        if OPT.get("v"): print(kk, rem, file=sys.stderr)
        pm = OPT.get("p2prio", "c")
        if pm == "c": P(f"s_setprio {3 - ((kk // int(OPT.get('p2per', 1))) & 3)}")
        br = b_reads(kk + 1) if kk + 1 < 18 else []
        for nb in range(2):
            for rb in range(2):
                mi = 2 * nb + rb
                P(mfma(AC + 16 * mi, BTq(kk, nb), AFq(kk, rb), "0" if kk == 0 else None))
                if mi == 0: P.add(br[:3])
                if mi == 1: P.add(br[3:])
                if mi == 2 and 8 <= kk + 1 < 18:
                    if jobs and jobs[0][0] is None: P.add(jobs.pop(0)[1])
                    validate([AFq(kk + 1, r2) + i for r2 in range(2) for i in range(4)], T + 16, sum(a_jobs(kk + 1), []))
                for rep in range(2 if kk < int(OPT.get("dbl", 0)) else 1):
                    if not jobs: continue
                    j, g_ = jobs[0]
                    if j:
                        k2 = int(j[1:]); last = (nb, rb) == (1, 1)
                        free = k2 - (8 if j[0] == "A" else 9)
                        if free > kk or (free == kk and not last): continue
                        if j == "A4": sneed(2, 0); P(spoll(1))
                        if j == "A14": sneed(1, 1)
                    jobs.pop(0); P.add(g_)
        stamp(f"k{kk}")
        if kk == 8:
            P(f"v_lshrrev_b32 {v(T+17)}, 3, {v(vL)}\nv_and_b32 {v(T+18)}, 7, {v(vL)}\nv_lshlrev_b32 {v(T+18)}, 4, {v(T+18)}\nv_lshl_add_u32 {v(VXR)}, {v(T+17)}, 10, {v(T+18)}")
            P(f"s_lshl_b32 {s(sT0)}, {s(sN)}, 7")
            P(f"buffer_load_dwordx4 {v(XR,4)}, {v(VXR)}, {s(SX,4)}, {s(sOo)} offen")
            P(f"buffer_load_dwordx4 {v(B2R,4)}, {v(T+18)}, {s(SB2,4)}, {s(sT0)} offen")
        if kk == 3:
            for q in range(4):
                P(f"v_xor_b32 {v(VWR+q)}, {64*q}, {v(VL16)}\nv_add_u32 {v(VWR+q)}, {s(sM0x)}, {v(VWR+q)}")
                P(f"v_add_u32 {v(T+q)}, 65536, {v(VWR+q)}")
            P(f"v_lshrrev_b32 {v(T+4)}, 3, {v(vL)}\ns_lshl_b32 {s(sT0)}, {s(sW34)}, 1\nv_add_u32 {v(T+4)}, {s(sT0)}, {v(T+4)}")
            P(f"v_and_b32 {v(T+5)}, 3, {v(vL)}\nv_lshlrev_b32 {v(T+6)}, 2, {v(T+5)}\nv_xor_b32 {v(T+4)}, {v(T+4)}, {v(T+6)}\nv_lshlrev_b32 {v(T+4)}, 4, {v(T+4)}\nv_and_b32 {v(T+6)}, 1, {v(T+5)}\nv_lshl_add_u32 {v(T+4)}, {v(T+6)}, 10, {v(T+4)}\nv_lshrrev_b32 {v(T+6)}, 1, {v(T+5)}\nv_lshl_add_u32 {v(T+4)}, {v(T+6)}, 14, {v(T+4)}")
            P(f"v_bfe_u32 {v(T+5)}, {v(vL)}, 2, 1\nv_lshl_add_u32 {v(T+4)}, {v(T+5)}, 16, {v(T+4)}\ns_lshl_b32 {s(sT0)}, {s(sHALF)}, 15\nv_add_u32 {v(VRED)}, {s(sT0)}, {v(T+4)}")
        F = T + 8
        if kk == 14:
            for i in range(4):
                P(f"v_lshlrev_b32 {v(F+2*i)}, 16, {v(XR+i)}\nv_and_b32 {v(F+2*i+1)}, 0xffff0000, {v(XR+i)}")
                P(f"v_lshlrev_b32 {v(T+4)}, 16, {v(B2R+i)}\nv_and_b32 {v(T+5)}, 0xffff0000, {v(B2R+i)}")
                P(f"v_add_f32 {v(F+2*i)}, {v(F+2*i)}, {v(T+4)}\nv_add_f32 {v(F+2*i+1)}, {v(F+2*i+1)}, {v(T+5)}")
    stamp("p2mm")
    for blk in range(4):
        for q in range(4):
            ad = VWR + q if blk < 2 else T + q
            P(f"ds_write_b128 {v(ad)}, {v(AC+16*blk+4*q,4)} offset:{(blk&1)*32768+(q>>1)*16384+(q&1)*1024}")
    P("s_waitcnt lgkmcnt(0)")
    stamp("rw")
    P("s_barrier")
    stamp("rb")
    R = XF
    for ww in range(8):
        for hf in range(2): P(f"ds_read_b128 {v(R+8*ww+4*hf,4)}, {v(VRED)} offset:{2048*ww+512*hf}")
    for ww in range(8):
        for i in range(0, 8, 2): P(f"v_pk_add_f32 {v(F+i,2)}, {v(F+i,2)}, {v(R+8*ww+i,2)}")
    for i in range(4): P(f"v_cvt_pk_bf16_f32 {v(XR+i)}, {v(F+2*i)}, {v(F+2*i+1)}")
    P(f"buffer_store_dwordx4 {v(XR,4)}, {v(VXR)}, {s(SOUT,4)}, {s(sOo)} offen {OPT.get('om', '').replace('+', ' ')}")
    if STAMP:
        stamp("end")
        P("s_waitcnt lgkmcnt(0)")
        P(f"s_lshl_b32 {s(sT0)}, s2, 3\ns_add_u32 {s(sT0)}, {s(sT0)}, {s(sW)}\ns_lshl_b32 {s(sT0)}, {s(sT0)}, 6\ns_add_u32 {s(sT0)}, {s(sT0)}, {WS_STAMP}")
        P(f"v_mov_b32 v2, 0\ns_mov_b64 exec, 1")
        for i in range(12):
            P(f"v_mov_b32 v3, {s(sST+2*i)}\nbuffer_store_dword v3, v2, {s(SWS,4)}, {s(sT0)} offen offset:{4*i}")
    P("s_endpgm")
    flush_slow()

def softmax(p, out, LS):
    t = T + 16
    L = [f"v_max3_f32 {v(t)}, {v(p)}, {v(p+1)}, {v(p+2)}", f"v_max3_f32 {v(t+1)}, {v(p+3)}, {v(p+4)}, {v(p+5)}",
         f"v_max3_f32 {v(t)}, {v(t)}, {v(p+6)}, {v(p+7)}", f"v_max3_f32 {v(t+1)}, {v(t+1)}, {v(p+8)}, {v(p+9)}",
         f"v_max3_f32 {v(t)}, {v(t)}, {v(p+10)}, {v(p+11)}", f"v_max3_f32 {v(t+1)}, {v(t+1)}, {v(p+12)}, {v(p+13)}",
         f"v_max3_f32 {v(t)}, {v(t)}, {v(p+14)}, {v(p+15)}", f"v_max_f32 {v(t)}, {v(t)}, {v(t+1)}",
         f"v_mul_f32 {v(t)}, {v(t)}, {v(LS)}"]
    L += [f"v_fma_f32 {v(p+i)}, {v(p+i)}, {v(LS)}, -{v(t)}" for i in range(16)]
    L += [f"v_exp_f32 {v(p+i)}, {v(p+i)}" for i in range(16)]
    L += [f"v_add_f32 {v(t)}, {v(p)}, {v(p+1)}", f"v_add_f32 {v(t+1)}, {v(p+2)}, {v(p+3)}"]
    for i in range(4, 16, 2):
        L += [f"v_add_f32 {v(t)}, {v(t)}, {v(p+i)}", f"v_add_f32 {v(t+1)}, {v(t+1)}, {v(p+i+1)}"]
    L += [f"v_add_f32 {v(t)}, {v(t)}, {v(t+1)}", f"v_rcp_f32 {v(t)}, {v(t)}"]
    L += [f"v_mul_f32 {v(p+i)}, {v(p+i)}, {v(t)}" for i in range(16)]
    L += [f"v_cvt_pk_bf16_f32 {v(out+i)}, {v(p+2*i)}, {v(p+2*i+1)}" for i in range(8)]
    return L

setup(False)
KAREA[:] = [RC, RA+3*Q, RB, RA, RA+Q, RA+2*Q, RB+Q, RB+2*Q, RB+3*Q]
LS = K1; VPK = K2; VV = VW3; MC = BIAS
PHI0, PHI1 = AX, AAUG
PHI0 = AX
PHI1 = S1
PHI1 = T + 12
t = T + 16
P(f"v_bfe_u32 {v(t)}, {v(vL)}, 2, 2\nv_lshrrev_b32 {v(t+1)}, 5, {v(vL)}\nv_lshl_add_u32 {v(t)}, {v(t+1)}, 2, {v(t)}\nv_lshlrev_b32 {v(t)}, 5, {v(t)}")
P(f"v_bfe_u32 {v(t+2)}, {v(vL)}, 1, 1\nv_lshl_add_u32 {v(t)}, {v(t+2)}, 3, {v(t)}\nv_bfe_u32 {v(t+2)}, {v(vL)}, 4, 1\nv_lshl_add_u32 {v(t)}, {v(t+2)}, 4, {v(t)}")
P(f"s_lshl_b32 {s(sT1)}, {s(sHALF)}, 10\ns_add_u32 {s(sT1)}, {s(sT1)}, {L_WPHI}\nv_add_u32 {v(AB)}, {s(sT1)}, {v(t)}")
P(f"v_bfe_u32 {v(t)}, {v(vL)}, 2, 1\nv_mul_u32_u24 {v(t)}, 0x8000, {v(t)}\nv_lshl_or_b32 {v(AB+1)}, {v(t)}, 16, {v(t)}")
P(f"v_and_b32 {v(t)}, 31, {v(vL)}\nv_lshlrev_b32 {v(t)}, 6, {v(t)}\ns_lshl_b32 {s(sT1)}, {s(sW34)}, 9\nv_bfe_u32 {v(t+2)}, {v(vL)}, 1, 2")
P(f"v_lshlrev_b32 {v(t+3)}, 1, {v(t+1)}\nv_xor_b32 {v(t+3)}, {v(t+3)}, {v(t+2)}")
P(f"s_lshl_b32 {s(sT2)}, {s(sHALF)}, 14\ns_add_u32 {s(sT2)}, {s(sT2)}, {s(sT1)}\nv_lshl_add_u32 {v(VPK)}, {v(t+3)}, 4, {v(t)}\nv_add_u32 {v(VPK)}, {s(sT2)}, {v(VPK)}")
P(f"v_xor_b32 {v(t+3)}, {v(t+1)}, {v(t+2)}")
P(f"s_lshl_b32 {s(sT2)}, {s(sHALF)}, 13\ns_add_u32 {s(sT2)}, {s(sT2)}, {s(sT1)}\ns_add_u32 {s(sT2)}, {s(sT2)}, {RA+32768}\nv_lshl_add_u32 {v(VV)}, {v(t+3)}, 4, {v(t)}\nv_add_u32 {v(VV)}, {s(sT2)}, {v(VV)}")
def phi_load(hl, dst):
    return [f"ds_read_b64_tr_b16 {v(dst+2*tt,2)}, {v(AB)} offset:{512*hl+256*tt}" for tt in range(2)] + \
           [f"v_xor_b32 {v(dst+i)}, {v(AB+1)}, {v(dst+i)}" for i in range(4)]
S = Sched(96)
common_sched(S, False, None, MC)
S.post[30] += [f"ds_read_b128 {v(CSR,4)}, {v(VCSA)}"]
sKV, sOS = sH0, sH3
P(f"s_lshl_b32 {s(sT0)}, {s(sG)}, 4\ns_add_u32 {s(sT0)}, {s(sT0)}, {s(sRT)}\ns_mul_i32 {s(sT0)}, {s(sT0)}, {KVP_SZ}\ns_mul_i32 {s(sT1)}, {s(sW)}, 1152\ns_add_u32 {s(sT0)}, {s(sT0)}, {s(sT1)}\ns_add_u32 {s(sT0)}, {s(sT0)}, {WS_KVP}")
P(f"s_cmp_lt_u32 {s(sW)}, 4\ns_cselect_b32 {s(sKV)}, {s(sT0)}, 0x7f000000")
P(f"s_lshl_b32 {s(sT0)}, {s(sG)}, 2\ns_lshl_b32 {s(sT1)}, {s(sHALF)}, 1\ns_add_u32 {s(sT0)}, {s(sT0)}, {s(sT1)}\ns_add_u32 {s(sT0)}, {s(sT0)}, 112\ns_lshl_b32 {s(sT0)}, {s(sT0)}, 10\ns_add_u32 {s(sOS)}, {s(sT0)}, {s(sHo)}")
PA = AAUG
S.post[46] += [f"v_mov_b32 {v(PA+i)}, -1" for i in range(4)] + [f"v_lshrrev_b32 {v(S2)}, 2, {v(vL)}", f"v_lshl_add_u32 {v(S2)}, {v(S2)}, 26, {v(VL16)}"]
S.post[47] += [f"buffer_store_dwordx4 {v(PA,4)}, {v(VL16)}, {s(SWS,4)}, {s(sKV)} offen sc1"]
S.post[48] += [f"buffer_store_dwordx4 {v(PA,4)}, {v(S2)}, {s(SWS,4)}, {s(sKV)} offen offset:1024 sc1"]
S.post[50] += [f"buffer_store_dwordx4 {v(PA,4)}, {v(VL16)}, {s(SWS,4)}, {s(sOS)} offen sc1"]
S.post[53] += [f"buffer_store_dwordx4 {v(PA,4)}, {v(VL16)}, {s(SWS,4)}, {s(sOS)} offen offset:1024 sc1 ; tag=pz"]
S.post[55] += [f"v_mov_b32 {v(PA+2)}, 0", f"v_mov_b32 {v(PA+3)}, 0"]
def ltouch():
    P(f"s_sub_u32 {s(sT0)}, {s(sW)}, 4\ns_cmp_lt_u32 {s(sT0)}, 3")
    P(f"s_cbranch_scc0 L_nlt")
    P.cond_begin("w456")
    P(f"v_lshlrev_b32 {v(S1)}, 7, {v(vL)}\ns_lshl_b32 {s(sT1)}, {s(sRT)}, 3\ns_add_u32 {s(sT1)}, {s(sT1)}, {s(sG)}")
    P(f"s_cmp_eq_u32 {s(sT0)}, 2\ns_cbranch_scc1 L_lt2")
    P(f"s_lshl_b32 {s(sT1)}, {s(sT1)}, 1\ns_add_u32 {s(sT1)}, {s(sT1)}, {s(sT0)}\ns_mul_i32 {s(sT1)}, {s(sT1)}, 7168")
    P(f"buffer_load_dword {v(VX0)}, {v(S1)}, {s(SW2,4)}, {s(sT1)} offen")
    P("s_branch L_nlt")
    P("L_lt2:")
    P(f"v_and_b32 {v(S1)}, 4095, {v(S1)}\ns_lshl_b32 {s(sT1)}, {s(sT1)}, 12")
    P(f"buffer_load_dword {v(VX0)}, {v(S1)}, {s(SWO,4)}, {s(sT1)} offen")
    P(f"buffer_load_dword {v(VX1)}, {v(S1)}, {s(SB2,4)}, 0 offen")
    P.cond_end()
    for I in P.ins[-12:]:
        if I.kind == "vld": I.defs = []
    P("L_nlt:")
if OPT.get("touch", "0") == "2": S.blk[("e", int(OPT.get("tg", 54)))] = ltouch
S.post[31] += stamp_i("pass1")
fill = stats_final() + aug(ACC0, CSR, None) + phi_load(0, AX) + phi_load(1, T + 8) + [f"v_mul_f32 {v(LS)}, {f2u(LOG2E):#x}, {v(RSTD)}"]
fill += [f"v_cvt_pk_bf16_f32 {v(T+i)}, {v(ACC0+2*i)}, {v(ACC0+2*i+1)}" for i in range(8)]
fill += [mfma(ACC2, AX, T, "0"), mfma(ACC0, T + 8, T + 4, "0")]
S.spread(fill, 32, 40)
S.spread(softmax(ACC2, T + 8, LS) + softmax(ACC0, T, LS), 41, 64)
S.post[56] += [f"ds_write_b128 {v(VPK)}, {v(T+8,4)}", f"v_xor_b32 {v(VSTA)}, 16, {v(VPK)}"]
S.post[57] += [f"ds_write_b128 {v(VSTA)}, {v(T+12,4)}"]
S.post[62] += [f"ds_read_b128 {v(MC,4)}, {v(VCSA)} offset:1024"]
S.post[63] += stamp_i("sub1")
S.pre[64] += sum4(CS0, MC)
S.fill[64] += aug(ACC1, MC, None)[3:]
S.post[65] += [f"ds_write_b128 {v(VPK)}, {v(T,4)} offset:8192"]
S.post[66] += [f"ds_write_b128 {v(VSTA)}, {v(T+4,4)} offset:8192"]
fill = []
fill += [f"v_mul_f32 {v(ACC1+i)}, {v(ACC1+i)}, {v(RSTD)}" for i in range(16)]
fill += [f"v_cvt_pk_bf16_f32 {v(ACC1+i)}, {v(ACC1+2*i)}, {v(ACC1+2*i+1)}" for i in range(8)]
fill += [f"ds_write_b128 {v(VV)}, {v(ACC1,4)}", f"v_xor_b32 {v(VV)}, 32, {v(VV)}", f"ds_write_b128 {v(VV)}, {v(ACC1+4,4)}"]
S.spread(fill, 66, 70)
S.dmas(b_dma(0), 58, 3)
S.dmas(b_dma(1), 72, 3); S.dmas(b_dma(2), 78, 3); S.dmas(b_dma(3) + b_dma(4), 86, 2)
def kvblock():
    P(".waitvm pz lgkm0")
    P("s_barrier")
    kvflag()
    stamp("kv0"); stamp("kv1")
    P(f"s_cmp_lt_u32 {s(sW)}, 4")
    P("s_cbranch_scc0 L_nkv")
    P.cond_begin("lo4")
    t = T + 16; u = S1
    P(f"v_bfe_u32 {v(u)}, {v(vL)}, 2, 2\nv_lshrrev_b32 {v(u+1)}, 5, {v(vL)}\nv_lshl_add_u32 {v(u)}, {v(u+1)}, 3, {v(u)}\nv_lshlrev_b32 {v(u)}, 6, {v(u)}")
    P(f"v_bfe_u32 {v(u+1)}, {v(vL)}, 1, 1\nv_lshl_add_u32 {v(u)}, {v(u+1)}, 3, {v(u)}\nv_bfe_u32 {v(u+1)}, {v(vL)}, 3, 1\nv_and_b32 {v(VSTA)}, 1, {v(vL)}")
    P(f"v_or_b32 {v(t)}, {s(sSH)}, {v(VSTA)}\nv_xor_b32 {v(t)}, {v(t)}, {v(u+1)}\nv_lshl_add_u32 {v(t)}, {v(t)}, 4, {v(u)}")
    P(f"s_lshr_b32 {s(sT0)}, {s(sW)}, 1\ns_lshl_b32 {s(sT0)}, {s(sT0)}, 13\ns_add_u32 {s(sT0)}, {s(sT0)}, {RA+32768}\nv_add_u32 {v(t)}, {s(sT0)}, {v(t)}\nv_xor_b32 {v(t+1)}, 32, {v(t)}")
    P(f"v_bfe_u32 {v(t+2)}, {v(vL)}, 4, 1\nv_lshl_add_u32 {v(t+2)}, {v(VSTA)}, 1, {v(t+2)}\nv_xor_b32 {v(t+2)}, {v(t+2)}, {v(u+1)}\nv_lshl_add_u32 {v(t+2)}, {v(t+2)}, 4, {v(u)}")
    P(f"s_lshl_b32 {s(sT0)}, {s(sW)}, 13\nv_add_u32 {v(t+2)}, {s(sT0)}, {v(t+2)}\nv_xor_b32 {v(t+3)}, 32, {v(t+2)}")
    P(f"v_and_b32 {v(u)}, 16, {v(vL)}\nv_cmp_eq_u32 vcc, 0, {v(u)}\nv_mov_b32 {v(u+1)}, {s(sONE)}")
    KB = [T, T + 8, ACC1, ACC1 + 8]
    def kr(J):
        for tt in range(2):
            P(f"ds_read_b64_tr_b16 {v(KB[J&3]+2*tt,2)}, {v(t+tt)} offset:{1024*J+256*tt}")
            P(f"ds_read_b64_tr_b16 {v(KB[J&3]+4+2*tt,2)}, {v(t+2+tt)} offset:{1024*J+256*tt}")
    kr(0); kr(1); kr(2)
    for J in range(8):
        for i in range(4): P(f"v_cndmask_b32 {v(KB[J&3]+i)}, {v(u+1)}, {v(KB[J&3]+i)}, vcc")
        if J + 3 < 8: kr(J + 3)
        P(mfma(ACC0, KB[J&3] + 4, KB[J&3], "0" if J == 0 else None))
    P(f"v_lshrrev_b32 {v(u)}, 5, {v(vL)}\nv_and_b32 {v(t+2)}, 15, {v(vL)}\nv_lshlrev_b32 {v(t)}, 4, {v(t+2)}\nv_lshl_add_u32 {v(t)}, {v(u)}, 8, {v(t)}\nv_add_u32 {v(t+1)}, 512, {v(t)}")
    P(f"v_lshlrev_b32 {v(u)}, 4, {v(u)}\nv_add_u32 {v(u)}, 1024, {v(u)}\nv_lshl_add_u32 {v(u)}, {v(t+2)}, 26, {v(u)}\nv_add_u32 {v(u+1)}, 32, {v(u)}")
    P(f"v_cndmask_b32 {v(t)}, {v(u)}, {v(t)}, vcc\nv_cndmask_b32 {v(t+1)}, {v(u+1)}, {v(t+1)}, vcc")
    for i in range(8): P(f"v_cvt_pk_bf16_f32 {v(T+i)}, {v(ACC0+2*i)}, {v(ACC0+2*i+1)}")
    stamp("kv1")
    for j in range(2): P(f"buffer_store_dwordx4 {v(T+4*j,4)}, {v(t+j)}, {s(SWS,4)}, {s(sKV)} offen sc1")
    P.cond_end()
    P("L_nkv:")
    stamp("kv2")
S.blk[70] = kvblock
S.pre[94] += ["s_waitcnt lgkmcnt(0)", "s_barrier"]
def kvflag():
    P(f"s_cmp_eq_u32 {s(sW)}, 7")
    P("s_cbranch_scc0 L_nkf")
    P.cond_begin("w0")
    P(f"s_lshl_b32 {s(sT0)}, {s(sG)}, 8\ns_lshl_b32 {s(sT1)}, {s(sRT)}, 2\ns_add_u32 {s(sT0)}, {s(sT0)}, {s(sT1)}\ns_add_u32 {s(sT0)}, {s(sT0)}, {WS_KVF}")
    P(f"v_mov_b32 {v(VFV)}, 1")
    P(f"buffer_store_dword {v(VFV)}, {v(VZ)}, {s(SWS,4)}, {s(sT0)} offen sc1")
    P.cond_end()
    P("L_nkf:")
def kvpoll():
    P(f"s_cmp_eq_u32 {s(sW)}, 7")
    P("s_cbranch_scc0 L_nkp")
    n0 = len(P.ins)
    P(f"s_lshl_b32 {s(sT2)}, {s(sG)}, 8\ns_add_u32 {s(sT2)}, {s(sT2)}, {WS_KVF}\ns_mov_b32 {s(sCNT)}, 0")
    P("s_branch L_spkv1")
    P("L_spkv:")
    P(f"s_buffer_load_dwordx16 s[20:35], {s(SWS,4)}, {s(sT2)} glc")
    P("L_spkv1:")
    P(f"s_add_u32 {s(sCNT)}, {s(sCNT)}, 1")
    P("s_waitcnt lgkmcnt(0)")
    for i in range(22, 36, 2): P(f"s_and_b64 s[20:21], s[20:21], s[{i}:{i+1}]")
    P("s_and_b32 s20, s20, s21")
    P("s_cbranch_scc1 L_nkp")
    P(f"s_cmp_gt_u32 {s(sCNT)}, {SPIN_MAX}")
    P("s_cbranch_scc1 L_nkp")
    P("s_sleep 1")
    P("s_branch L_spkv")
    for I in P.ins[n0:]:
        I.cond = "kvp"
        if I.kind == "smem": I.kind = "opaque"
    P("L_nkp:")
def kvreq():
    P(f"s_cmp_eq_u32 {s(sW)}, 7")
    P("s_cbranch_scc0 L_nkr")
    n0 = len(P.ins)
    P(f"s_lshl_b32 {s(sT2)}, {s(sG)}, 8\ns_add_u32 {s(sT2)}, {s(sT2)}, {WS_KVF}")
    P(f"s_buffer_load_dwordx16 s[20:35], {s(SWS,4)}, {s(sT2)} glc")
    for I in P.ins[n0:]:
        I.cond = "kvp"
        if I.kind == "smem": I.kind = "opaque"
    P("L_nkr:")
S.blk[87] = kvreq; S.blk[94] = kvpoll
S.post[94] += [f"ds_read_b128 {v(CSR,4)}, {v(VCSA)} offset:2048"] + phi_load(1, T + 8)
run_sched(S, [ACC0, ACC1, ACC2])
stamp("sub2")
PQ = WF
def Gq(r): return XF + 8 * r
Z = XF + 80; GA = XF + 64
VG, VGZ = S1, S2
P(f"s_mul_i32 {s(sT2)}, {s(sG)}, {16*KVP_SZ}\ns_lshr_b32 {s(sT0)}, {s(sW)}, 1\ns_mul_i32 {s(sT0)}, {s(sT0)}, 1152\ns_add_u32 {s(sT2)}, {s(sT2)}, {s(sT0)}\ns_add_u32 {s(sT2)}, {s(sT2)}, {WS_KVP}")
P(f"v_and_b32 {v(VGZ)}, 15, {v(vL)}\nv_mul_u32_u24 {v(VGZ)}, {KVP_SZ}, {v(VGZ)}\nv_and_b32 {v(VG)}, 16, {v(vL)}\nv_add_u32 {v(VGZ)}, {v(VGZ)}, {v(VG)}\ns_lshl_b32 {s(sT0)}, {s(sSH)}, 4\nv_add_u32 {v(VGZ)}, {s(sT0)}, {v(VGZ)}")
P(f"v_lshrrev_b32 {v(VG)}, 5, {v(vL)}\nv_mul_u32_u24 {v(VG)}, {8*KVP_SZ - 512}, {v(VG)}\nv_add_u32 {v(VG)}, {v(VG)}, {v(VL16)}\ns_lshl_b32 {s(sT0)}, {s(sSH)}, 8\nv_add_u32 {v(VG)}, {s(sT0)}, {v(VG)}")
gl = [[f"buffer_load_dwordx4 {v(Z,4)}, {v(VGZ)}, {s(SWS,4)}, {s(sT2)} offen offset:1024 sc1"]]
for r in range(8):
    gl.append(lines(f"s_add_u32 {s(sD1)}, {s(sRT)}, {r}\ns_and_b32 {s(sD1)}, {s(sD1)}, 7\ns_mul_i32 {s(sD1)}, {s(sD1)}, {KVP_SZ}\ns_add_u32 {s(sD1)}, {s(sD1)}, {s(sT2)}") +
              [f"buffer_load_dwordx4 {v(Gq(r),4)}, {v(VG)}, {s(SWS,4)}, {s(sD1)} offen sc1"])
P.add(aug(ACC2, CSR, None))
bd = sum([b_dma(kk) for kk in (5, 6, 7)], [])
GD = int(OPT.get("gd", 2))
for g_ in bd[:GD]: P.add(g_)
for i in range(8): P(f"v_cvt_pk_bf16_f32 {v(T+i)}, {v(ACC2+2*i)}, {v(ACC2+2*i+1)}")
P(mfma(ACC1, AX, T, "0"))
P(mfma(ACC2, T + 8, T + 4, "0"))
P.add(interleave(gl, softmax(ACC1, PQ, LS)))
stamp("qsm")
P(spoll(0))
P.add(interleave(bd[GD:], softmax(ACC2, PQ + 8, LS)))
stamp("sm2")
sneed(1, 0)
validate([Z + i for i in range(4)] + [Gq(r) + i for r in range(8) for i in range(4)], T + 16, sum(gl, []))
stamp("kvseen")
aj = sum([a_jobs(kk) for kk in range(4)], [])
n_o0 = len(P.ins)
P(f"v_lshrrev_b32 {v(T+1)}, 5, {v(vL)}")
P(f"v_bfe_u32 {v(T+2)}, {v(vL)}, 4, 1\nv_lshlrev_b32 {v(T+2)}, 9, {v(T+2)}\nv_lshl_add_u32 {v(T+2)}, {v(T+1)}, 3, {v(T+2)}")
P(f"s_lshl_b32 {s(sT0)}, {s(sW)}, 10\ns_add_u32 {s(sT0)}, {s(sT0)}, {L_KVB}\nv_add_u32 {v(T+2)}, {s(sT0)}, {v(T+2)}")
P(f"v_and_b32 {v(T+3)}, 15, {v(vL)}\nv_lshl_add_u32 {v(T+3)}, {v(T+3)}, 4, {v(T+2)}")
P(f"v_cmp_gt_u32 vcc, 32, {v(vL)}\ns_mov_b32 {s(sT0)}, 0x3f80\ns_mov_b32 {s(sT1)}, 0x3f800000")
P(f"v_cndmask_b32 {v(Z)}, {v(Z+2)}, {v(Z)}, vcc\nv_cndmask_b32 {v(Z+1)}, {v(Z+3)}, {v(Z+1)}, vcc")
P(f"v_lshlrev_b32 {v(Z+8)}, 16, {v(Z)}\nv_and_b32 {v(Z+9)}, 0xffff0000, {v(Z)}\nv_lshlrev_b32 {v(Z+10)}, 16, {v(Z+1)}\nv_and_b32 {v(Z+11)}, 0xffff0000, {v(Z+1)}")
for ror in (8, 4, 2, 1):
    for i in range(4): P(f"v_add_f32_dpp {v(Z+8+i)}, {v(Z+8+i)}, {v(Z+8+i)} row_ror:{ror} row_mask:0xf bank_mask:0xf")
P(f"v_cvt_pk_bf16_f32 {v(Z)}, {v(Z+8)}, {v(Z+9)}\nv_cvt_pk_bf16_f32 {v(Z+1)}, {v(Z+10)}, {v(Z+11)}")
P(f"ds_write_b64 {v(T+2)}, {v(Z,2)} offset:256")
def ga(i): return GA + (i & 3) + 8 * (i >> 2)
for i in range(4):
    P(f"v_lshlrev_b32 {v(ga(2*i))}, 16, {v(Gq(0)+i)}\nv_and_b32 {v(ga(2*i+1))}, 0xffff0000, {v(Gq(0)+i)}")
for r in range(1, 8):
    for i in range(4):
        P(f"v_dot2c_f32_bf16 {v(ga(2*i))}, {s(sT0)}, {v(Gq(r)+i)}\nv_dot2c_f32_bf16 {v(ga(2*i+1))}, {s(sT1)}, {v(Gq(r)+i)}")
for i in range(4): P(f"v_permlane32_swap_b32 {v(ga(i))}, {v(ga(i+4))}")
for i in range(4): P(f"v_add_f32 {v(ga(i))}, {v(ga(i))}, {v(ga(i+4))}")
P(f"v_cvt_pk_bf16_f32 {v(GA)}, {v(GA)}, {v(GA+1)}\nv_cvt_pk_bf16_f32 {v(GA+1)}, {v(GA+2)}, {v(GA+3)}")
P(f"ds_write_b64 {v(T+3)}, {v(GA,2)}")
stamp("gsum")
P(f"v_and_b32 {v(T)}, 31, {v(vL)}\nv_min_u32 {v(T)}, 16, {v(T)}\nv_and_b32 {v(T+1)}, 32, {v(vL)}\nv_add_u32 {v(T)}, {v(T)}, {v(T+1)}\nv_lshlrev_b32 {v(T)}, 4, {v(T)}")
P(f"s_lshl_b32 {s(sT0)}, {s(sHALF)}, 12\ns_add_u32 {s(sT0)}, {s(sT0)}, {L_KVB}\nv_add_u32 {v(T)}, {s(sT0)}, {v(T)}")
P("s_waitcnt lgkmcnt(0)")
P("s_barrier")
for i in range(4): P(f"ds_read_b128 {v(Gq(i),4)}, {v(T)} offset:{1024*i}")
P(mfma(ACC0, Gq(0), PQ, "0")); P(mfma(ACC1, Gq(2), PQ + 8, "0"))
P(mfma(ACC0, Gq(1), PQ + 4)); P(mfma(ACC1, Gq(3), PQ + 12))
body = P.ins[n_o0:]; del P.ins[n_o0:]
for i, g_ in enumerate(aj):
    P.add(g_); P.ins += body[len(body)*i//8: len(body)*(i+1)//8]
P(spoll(0))
for hl, acc in enumerate((ACC0, ACC1)):
    P(f"v_add_f32 {v(acc+8)}, {f2u(1e-6):#x}, {v(acc+8)}\nv_rcp_f32 {v(acc+8)}, {v(acc+8)}")
    for i in range(8): P(f"v_mul_f32 {v(acc+i)}, {v(acc+i)}, {v(acc+8)}")
    for i in range(4): P(f"v_cvt_pk_bf16_f32 {v(T+4*hl+i)}, {v(acc+2*i)}, {v(acc+2*i+1)}")
    P(f"buffer_store_dwordx4 {v(T+4*hl,4)}, {v(VL16)}, {s(SWS,4)}, {s(sOS)} offen offset:{1024*hl} sc1")
stamp("p1end")
phase2(("B6", "B7"), "B8 A4 A5 B9 A6 A7 A8 B10 A9 B11 A10 B12 A11 B13 A12 B14 A13 B15 B16 B17 A14 A15 A16 A17")

P("L_ffn:")
P(".reset")
setup(True)
KAREA[:] = [RC, RA+2*Q, RA+3*Q, RB, RB+Q, RB+2*Q, RA, RA+Q, RB+3*Q]
MC = ACC2; CSF = ACC2 + 4
S = Sched(112)
common_sched(S, True, None, MC)
S.post[30] += [f"ds_read_b128 {v(CSF,4)}, {v(VCSA)}"]
pzs = [[f"s_add_u32 {s(sT2)}, {s(sH0)}, 8192", f"buffer_store_dwordx4 {v(PZ,4)}, {v(VL16)}, {s(SWS,4)}, {s(sT2)} offen sc1"],
       [f"buffer_store_dwordx4 {v(PZ,4)}, {v(VL16)}, {s(SWS,4)}, {s(sT2)} offen offset:1024 sc1"],
       [f"buffer_store_dwordx4 {v(PZ,4)}, {v(VL16)}, {s(SWS,4)}, {s(sH3)} offen sc1 ; tag=h1"]]
for g_, G in zip(pzs, [int(x) for x in OPT.get("pz", "50,57,68").split(",")]): S.post[G] += g_
S.post[31] += stamp_i("pass1")
fill = stats_final() + aug(ACC0, CSF, BIAS)
fill += [f"v_mul_f32 {v(K1)}, {f2u(GC1):#x}, {v(RSTD)}", f"v_mul_f32 {v(K2)}, {v(RSTD)}, {v(RSTD)}",
         f"v_mul_f32 {v(K2)}, {v(K2)}, {v(RSTD)}", f"v_mul_f32 {v(K2)}, {f2u(GC2):#x}, {v(K2)}"]
S.spread(fill, 32, 39)
S.spread(gelu(ACC0, 16) + hstore(sH0, 2, "h1") + [f"s_add_u32 {s(sH0)}, {s(sH0)}, 4096"], 39, 64)
S.post[62] += [f"ds_read_b128 {v(CSF,4)}, {v(VCSA)} offset:1024"]
S.post[63] += stamp_i("sub1")
S.spread(aug(ACC1, CSF, BIAS + 1), 64, 66)
S.spread(gelu(ACC1, 16) + hstore(sH0, 2, "h2") + [f"s_add_u32 {s(sH0)}, {s(sH0)}, 4096"], 67, 96)
w3 = sum([w3quarter(q, 3584) for q in range(4)], [])
for g_, G in zip(w3 + b_dma(0), [int(x) for x in OPT.get("w3", "48,54,60,72,75,76").split(",")]): S.dma[G] += g_
S.dmas(b_dma(1), 78, 2); S.dmas(b_dma(2), 82, 2); S.dmas(b_dma(3), 86, 2); S.dmas(b_dma(4), 90, 2); S.dmas(b_dma(5), 100, 2)
S.pre[94] += [".waitvm w3 lgkm0", "s_barrier"]
S.post[94] += [f"ds_read_b128 {v(CSF,4)}, {v(VCSA)} offset:2048"]
S.post[95] += stamp_i("sub2")
S.fill[96] += aug(ACC0, CSF, BIAS + 2)
S.spread(gelu(ACC0, 16), 98, 112)
S.pre[100] += ["s_barrier"]
aj = sum([a_jobs(kk) for kk in range(4)], [])
S.dmas(aj[:4], 106)
for i in range(0, 16, 2): S.post[96 + i] += [m16(MC, SEL, WF + 4 * (i & 3), "0" if i == 0 else None)]
run_sched(S, [ACC0, ACC1, ACC0, ACC1])
t = T + 16
P(f"v_and_b32 {v(t)}, 31, {v(vL)}\ns_lshl_b32 {s(sT0)}, {s(sHALF)}, 4\nv_xor_b32 {v(t)}, {s(sT0)}, {v(t)}\nv_lshlrev_b32 {v(t)}, 4, {v(t)}\nv_add_u32 {v(t)}, {L_CS+3072}, {v(t)}")
P(f"v_add_u32 {v(t+1)}, {s(sW34)}, {v(VCSA)}")
P(f"ds_write_b32 {v(t+1)}, {v(MC)} offset:3072")
P.add(aj[4])
P(f"s_add_u32 {s(sT1)}, {s(sM0x)}, {KAREA[8]}\ns_xor_b32 {s(sT0)}, {s(sT1)}, 8192\nv_add_u32 {v(t+1)}, {s(sT0)}, {v(VL16)}\nv_add_u32 {v(AB)}, {s(sT1)}, {v(VL16)}")
P(f"ds_write_b128 {v(t+1)}, {v(ACC1+8,4)}\nds_write_b128 {v(t+1)}, {v(ACC1+12,4)} offset:1024")
P("s_waitcnt lgkmcnt(0)")
P("s_barrier")
stamp("sub3")
P(f"ds_read_b128 {v(CSF,4)}, {v(t)}")
P(f"ds_read_b128 {v(ACC0,4)}, {v(AB)}\nds_read_b128 {v(ACC0+4,4)}, {v(AB)} offset:1024")
P.add(aj[5])
P.add(aug(ACC1, CSF, BIAS + 3))
P.add(aj[6] + aj[7])
for i in range(0, 8, 2): P(f"v_pk_add_f32 {v(ACC1+i,2)}, {v(ACC1+i,2)}, {v(ACC0+i,2)}")
stamp("x7")
gt = gelu(ACC1, 8, True, out=BIAS); h3 = hstore(sH0, 2, "h3")
P.add([h3[0]] + gt[:20] + [h3[1], spoll(0)] + gt[20:] + hstore(sH3, 1, "h4", BIAS))
stamp("p1end")
phase2(())

P("L_end:")
P("s_endpgm")

ins = P.ins
for I in ins:
    if "; nodef" in I.text: I.defs = []
if OPT.get("nodma"): ins = [I for I in ins if I.kind != "dma"]
if OPT.get("notr"): ins = [I for I in ins if not I.op.startswith("ds_read_b64_tr")]
if OPT.get("nofmac"): ins = [I for I in ins if not (I.op.startswith("v_fmac") or (I.op == "v_and_b32" and "0xffff0000" in I.text) or (I.op == "v_lshlrev_b32" and I.ops[1] == "16"))]
if OPT.get("nom16"): ins = [I for I in ins if "16x16x32" not in I.op]
if OPT.get("notrans"): ins = [I for I in ins if not I.op.startswith(("v_exp", "v_rcp"))]
if OPT.get("novalu"): ins = [I for I in ins if not I.op.startswith(("v_exp", "v_rcp", "v_mul_f32", "v_fma_f32", "v_cvt_pk", "v_max3", "v_add_f32"))]
if OPT.get("nost"): ins = [I for I in ins if not (I.kind == "vst" and "x4" in I.op and "tag=h" in I.text)]
if OPT.get("nomfma"): ins = [I for I in ins if I.kind != "mfma"]
if STAMP:
    for I in ins:
        if I.op in ("s_memrealtime", "s_memtime"): I.kind = "salu"
ins = auto_wait(ins)
st = []
ins = hazards(ins, st)
hdr = open("parallel_sum__linear_kernel_hedgehog__dense_activation_gelu__prompt.s.ref").read().split("; Override")[0]
out = hdr + f"; @launch grid=(256,1,1) block=(512,1,1) lds={LDS_SIZE}\n"
out += f'.amdgcn_target "amdgcn-amd-amdhsa--gfx950"\n.text\n.globl {NAME}\n.p2align 8\n.type {NAME},@function\n{NAME}:\n'
out += render(ins)
out += f""".section .rodata,"a"
.p2align 6
.amdhsa_kernel {NAME}
  .amdhsa_next_free_vgpr 256
  .amdhsa_next_free_sgpr 102
  .amdhsa_accum_offset 256
  .amdhsa_group_segment_fixed_size 0
  .amdhsa_kernarg_size 96
  .amdhsa_user_sgpr_count 2
  .amdhsa_user_sgpr_kernarg_segment_ptr 1
  .amdhsa_system_sgpr_workgroup_id_x 1
.end_amdhsa_kernel
"""
open(sys.argv[1], "w").write(out)
print(f"instrs={sum(1 for I in ins if I.kind not in ('label','dir'))} nop-sites={len(st)} nop-states={sum(n for n,_ in st)}", file=sys.stderr)
if OPT.get("nops"):
    for n, tx in st: print(n, tx, file=sys.stderr)
```

```python
import sys, math, struct
from ir import *

NAME = "parallel_sum__linear_kernel_hedgehog__dense_activation_gelu__prompt_kernel"
OPT = dict(a.split("=") for a in sys.argv[2:] if "=" in a)
STAMP = int(OPT.get("stamp", 0))

def f2u(x): return struct.unpack("<I", struct.pack("<f", x))[0]
LOG2E = 1.4426950408889634
GC1 = -2.0 * LOG2E * math.sqrt(2.0 / math.pi)
GC2 = GC1 * 0.044715

HF_RB = 144 * 1024
WS_KVP = 0xA00000
KVP_SZ = 4608
WS_FLG = 0xC00000
WS_KVF = 0xC08000
WS_STAMP = 0xD00000
WS_SIZE = 0x1000000
RA, RB, RC = 0, 65536, 131072
L_KVB = 147456
L_CS = 155648
L_ST = L_CS + 4096
L_WPHI = L_CS + 6144
LDS_SIZE = 163840
SPIN_MAX = 1 << 15

sW, sRT, sG, sM, sN = 3, 4, 5, 6, 7
SX, SW2, SWS, SWT, SAUX, SDBG, SWO, SOUT = 8, 12, 16, 20, 24, 28, 36, 40
sXo, sWo, sROT, sC1 = 32, 33, 34, 35
SB2 = 92
sFL, sOo, sM0x, sT0, sT1, sSIG, sONE, sFO, sHALF, sHo, sWq, sW3, sT2, sCNT, sW34, sT3 = range(44, 60)
sEX = 60
sH0, sH3, sM4, sK = 62, 63, 64, 65
sST = 66
sB2o, sBOo = 90, 91
sA0, sA1, sR4, sSH, sD0, sD1 = range(96, 102)
sOK = sSIG
sQ = [sXo, sWo, sROT, sC1]
sPL = 28
VCSA = 0; vL = 1
AX = 2; AW = 6; AB = 10; VZ, VFV = 12, 13
VX0, VX1, VW, VB, VW3 = 14, 15, 16, 17, 18
VSTA, S1, S2, CS0 = 19, 20, 21, 22
VW0 = 22
RSTD, STD, K1, K2, VL16 = 23, 24, 25, 26, 27
BAUG, AAUG, SEL, BIAS = 28, 32, 36, 40
T = 44
WF = 64
ACC0, ACC1, ACC2 = 80, 96, 112
XF = 128
VTD = 15
PZ = ACC2 + 8

P = Prog()
STI = dict(start=0, kernarg=1, it0=2, pass1=3, sub1=4, sub2=5, qsm=6, sub3=6, kvseen=7, x7=7, p1end=8, hseen=9, p2mm=10, end=11)
if OPT.get("sp") == "p2": STI = dict(start=0, p1end=1, k1=2, k3=3, k5=4, k7=5, k9=6, k11=7, k13=8, k15=9, p2mm=10, end=11)
if OPT.get("sp") == "att": STI = dict(start=0, sub1=1, kv0=2, kv1=3, kv2=4, sub2=5, qsm=6, kvseen=7, sm2=8, gsum=9, p1end=10, end=11)
if OPT.get("sp", "").startswith("l:"): STI = {n: i for i, n in enumerate(["start"] + OPT["sp"][2:].split(","))}
def stamp_i(name):
    if not STAMP or name not in STI: return []
    i = STI[name]
    return [f"{'s_memrealtime' if STAMP == 1 else 's_memtime'} {s(sST + 2*i, 2)} ; stamp {i} {name}"]
def stamp(name): P.add(stamp_i(name))

def mfma(d, a, b, c=None):
    return f"v_mfma_f32_32x32x16_bf16 {v(d,16)}, {v(a,4)}, {v(b,4)}, {v(d,16) if c is None else c}"
def m16(d, a, b, c=None):
    return f"v_mfma_f32_16x16x32_bf16 {v(d,4)}, {v(a,4)}, {v(b,4)}, {v(d,4) if c is None else c}"
def srd(base, nbytes):
    P(f"s_mov_b32 {s(base+2)}, {nbytes}\ns_mov_b32 {s(base+3)}, 0x20000")
def lines(t): return [l for l in t.split("\n") if l.strip()]

P("s_cmp_ge_u32 s2, 256")
P("s_cbranch_scc1 L_end")
stamp("start")
if OPT.get("exit0"): P("s_endpgm")
if OPT.get("cpf", "1") == "3":
    P(f"s_getpc_b64 {s(sEX,2)}")
    P("L_pc0:")
    P(f"v_subrev_u32 v3, 320, v0\nv_cmp_gt_u32 vcc, 16, v3\ns_lshr_b32 {s(sT0)}, s2, 3\ns_lshl_b32 {s(sT0)}, {s(sT0)}, 11")
    P("s_cbranch_vccz L_ncp0")
    P.cond_begin("cp0")
    P(f"v_and_b32 v3, 15, v3\nv_lshlrev_b32 v3, 7, v3\nv_add_u32 v3, {s(sT0)}, v3\nv_min_u32 v3, L_end-L_pc0, v3")
    P(f"global_load_dword v253, v3, {s(sEX,2)}")
    P.cond_end()
    P("L_ncp0:")
if OPT.get("cpf", "1") == "2":
    P(f"s_getpc_b64 {s(sEX,2)}")
    P("L_pc0:")
    P(f"v_lshlrev_b32 v3, 7, v0")
    P(f"v_min_u32 v3, L_end-L_pc0, v3")
    P(f"global_load_dword v253, v3, {s(sEX,2)}")
P(f"s_load_dwordx2 {s(SX,2)}, s[0:1], 0")
P(f"s_load_dwordx2 {s(SWS,2)}, s[0:1], 88")
P(f"s_load_dwordx2 {s(SDBG,2)}, s[0:1], 80")
P(f"s_load_dwordx2 {s(SW2,2)}, s[0:1], 56")
P(f"s_load_dwordx2 {s(SWO,2)}, s[0:1], 24")
P(f"s_load_dwordx2 {s(SOUT,2)}, s[0:1], 72")
P(f"s_load_dwordx2 {s(SB2,2)}, s[0:1], 64")
if OPT.get("stouch", "0") != "0":
    P(f"s_load_dwordx2 {s(sEX,2)}, s[0:1], 8")
    P(f"s_load_dwordx2 {s(sA0,2)}, s[0:1], 40")
P(f"v_lshrrev_b32 v2, 6, v0")
P(f"v_and_b32 {v(vL)}, 63, v0")
P(f"s_and_b32 {s(sT0)}, s2, 7")
P(f"s_lshr_b32 {s(sT1)}, s2, 3")
P(f"v_readfirstlane_b32 {s(sW)}, v2")
P(f"s_lshr_b32 {s(sRT)}, {s(sT0)}, 2\ns_lshl_b32 {s(sRT)}, {s(sRT)}, 3\ns_and_b32 {s(sT2)}, {s(sT1)}, 7\ns_add_u32 {s(sRT)}, {s(sRT)}, {s(sT2)}")
P(f"s_and_b32 {s(sG)}, {s(sT0)}, 3\ns_lshl_b32 {s(sG)}, {s(sG)}, 1\ns_lshr_b32 {s(sT2)}, {s(sT1)}, 4\ns_add_u32 {s(sG)}, {s(sG)}, {s(sT2)}")
P(f"s_lshl_b32 {s(sM)}, {s(sT0)}, 2\ns_and_b32 {s(sT2)}, {s(sT1)}, 3\ns_add_u32 {s(sM)}, {s(sM)}, {s(sT2)}")
P(f"s_lshr_b32 {s(sN)}, {s(sT1)}, 2")
srd(SX, 2097152)
P(f"s_lshl_b32 {s(sM0x)}, {s(sW)}, 11")
P(f"v_lshrrev_b32 v2, 3, {v(vL)}\nv_and_b32 v3, 7, {v(vL)}\nv_lshrrev_b32 v4, 4, {v(vL)}")
P(f"v_xor_b32 v5, v3, v4\nv_lshlrev_b32 v5, 4, v5\nv_lshl_add_u32 {v(VX0)}, v2, 10, v5")
P(f"v_xor_b32 v5, 64, {v(VX0)}\nv_add_u32 {v(VX1)}, {8192-1024}, v5")
P(f"v_and_b32 v4, 1, v4\nv_lshlrev_b32 v4, 2, v4\nv_xor_b32 v4, v3, v4\nv_lshlrev_b32 v4, 4, v4")
P(f"v_lshl_add_u32 {v(VB)}, v2, 10, v4")
P(f"s_lshl_b32 {s(sXo)}, {s(sRT)}, 17\ns_lshl_b32 {s(sT2)}, {s(sW)}, 14\ns_add_u32 {s(sXo)}, {s(sXo)}, {s(sT2)}")
P(f"s_lshr_b32 {s(sT2)}, {s(sT1)}, 3\ns_lshl_b32 {s(sT2)}, {s(sT2)}, 1\ns_add_u32 {s(sROT)}, {s(sRT)}, {s(sT2)}\ns_and_b32 {s(sROT)}, {s(sROT)}, {OPT.get('rm', 7)}")
if OPT.get("norot"): P(f"s_mov_b32 {s(sROT)}, 0")
P(f"s_lshl_b32 {s(sK)}, {s(sROT)}, 7")
P(f"v_add_u32 {v(VX0)}, {s(sXo)}, {v(VX0)}\nv_add_u32 {v(VX1)}, {s(sXo)}, {v(VX1)}")
P(f"s_lshr_b32 {s(sD0)}, {s(sM0x)}, 1")
P(f"s_bitcmp1_b32 {s(sT1)}, 3")
P("s_cbranch_scc1 L_ffn")

def item1(it, pitch):
    q = it & 3
    return [[f"s_add_u32 m0, {s(sM0x)}, {RA+q*16384}", f"s_mul_i32 {s(sD1)}, {s(sK)}, {pitch//2}",
             f"buffer_load_dwordx4 {v(VX0)}, {s(SX,4)}, {s(sK)} offen lds"],
            [f"buffer_load_dwordx4 {v(VX1)}, {s(SX,4)}, {s(sK)} offen offset:1024 lds"],
            [f"s_add_u32 m0, {s(sD0)}, {RB+it*8192}", f"s_add_u32 {s(sK)}, {s(sK)}, 128",
             f"buffer_load_dwordx4 {v(VW0)}, {s(SWT,4)}, {s(sD1)} offen lds ; tag=it{it}",
             f"s_and_b32 {s(sK)}, {s(sK)}, 1023"]]
def wquarter(region, q, coloff, pitch, tag):
    return [[f"s_add_u32 m0, {s(sM0x)}, {region+q*16384}", f"s_add_u32 {s(sD1)}, {s(sQ[q])}, {coloff}",
             f"buffer_load_dwordx4 {v(VW)}, {s(SWT,4)}, {s(sD1)} offen lds"],
            [f"s_add_u32 {s(sD1)}, {s(sD1)}, {8*pitch-1024}",
             f"buffer_load_dwordx4 {v(VW)}, {s(SWT,4)}, {s(sD1)} offen offset:1024 lds ; tag={tag}"]]
def w3quarter(q, pitch):
    return [[f"s_lshr_b32 {s(sD1)}, {s(sM0x)}, 1", f"s_add_u32 m0, {s(sD1)}, {RA+q*8192}", "s_nop 0",
             f"buffer_load_dwordx4 {v(VW3)}, {s(SWT,4)}, {s(sQ[q])} offen lds ; tag=w3"]]

def spin(label, load, cmp):
    P(f"s_mov_b32 {s(sCNT)}, 0")
    P(f"{label}:")
    P(cmp)
    P(f"s_add_u32 {s(sCNT)}, {s(sCNT)}, 1")
    P(f"s_cbranch_vccz {label}_ok")
    P(f"s_cmp_gt_u32 {s(sCNT)}, {SPIN_MAX}")
    P(f"s_cbranch_scc1 {label}_ok")
    P("s_sleep 1")
    old = P._cond; P._cond = label
    P(load)
    P("s_waitcnt vmcnt(0)")
    P._cond = old
    P(f"s_branch {label}")
    P(f"{label}_ok:")

def gelu(acc, n, pk=False, t0=T, out=T):
    L = []
    for g4 in range(0, n, 4):
        t = t0 + 8 + (g4 & 4)
        a = [acc + g4 + i for i in range(4)]
        if pk:
            L += [f"v_pk_mul_f32 {v(t+i,2)}, {v(a[i],2)}, {v(a[i],2)}" for i in (0, 2)]
            L += [f"v_pk_fma_f32 {v(t+i,2)}, {v(t+i,2)}, {v(K2,2)}, {v(STD,2)} op_sel:[0,0,1] op_sel_hi:[1,0,1]" for i in (0, 2)]
            L += [f"v_pk_mul_f32 {v(t+i,2)}, {v(a[i],2)}, {v(t+i,2)}" for i in (0, 2)]
        else:
            L += [f"v_mul_f32 {v(t+i)}, {v(a[i])}, {v(a[i])}" for i in range(4)]
            L += [f"v_fma_f32 {v(t+i)}, {v(t+i)}, {v(K2)}, {v(K1)}" for i in range(4)]
            L += [f"v_mul_f32 {v(t+i)}, {v(a[i])}, {v(t+i)}" for i in range(4)]
        L += [f"v_exp_f32 {v(t+i)}, {v(t+i)}" for i in range(4)]
        if pk: L += [f"v_pk_fma_f32 {v(t+i,2)}, {v(t+i,2)}, {v(STD,2)}, {v(STD,2)} op_sel_hi:[1,0,0]" for i in (0, 2)]
        else: L += [f"v_fma_f32 {v(t+i)}, {v(t+i)}, {v(STD)}, {v(STD)}" for i in range(4)]
        L += [f"v_rcp_f32 {v(t+i)}, {v(t+i)}" for i in range(4)]
        if pk: L += [f"v_pk_mul_f32 {v(t+i,2)}, {v(a[i],2)}, {v(t+i,2)}" for i in (0, 2)]
        else: L += [f"v_mul_f32 {v(t+i)}, {v(a[i])}, {v(t+i)}" for i in range(4)]
        pr = out + (g4 >> 1)
        L += [f"v_cvt_pk_bf16_f32 {v(pr)}, {v(t)}, {v(t+1)}", f"v_cvt_pk_bf16_f32 {v(pr+1)}, {v(t+2)}, {v(t+3)}"]
    return L
def hstore(soff, n, tagn, src=T):
    return [f"buffer_store_dwordx4 {v(src+4*j,4)}, {v(VL16)}, {s(SWS,4)}, {s(soff)} offen offset:{1024*j} sc1 ; tag={tagn}" for j in range(n)]
assert K1 == STD + 1

def sum4(d, r):
    return [f"v_add_f32 {v(d)}, {v(r)}, {v(r+1)}", f"v_add_f32 {v(r+2)}, {v(r+2)}, {v(r+3)}", f"v_add_f32 {v(d)}, {v(d)}, {v(r+2)}"]

MS, U = T + 4, T + 16
CSR = T + 12
MC = AAUG

def stats_final():
    t = T + 16
    return [f"v_add_f32 {v(S1)}, {v(MS)}, {v(MS+2)}", f"v_add_f32 {v(S2)}, {v(MS+1)}, {v(MS+3)}",
          f"v_mul_f32 {v(S1)}, {f2u(-1.0/512):#x}, {v(S1)}",
          f"v_mul_f32 {v(t)}, {v(S1)}, {v(S1)}",
          f"v_fma_f32 {v(S2)}, {v(S2)}, {s(sT3)}, -{v(t)}",
          f"v_max_f32 {v(S2)}, 0, {v(S2)}",
          f"v_add_f32 {v(S2)}, {f2u(1e-5):#x}, {v(S2)}",
          f"v_rsq_f32 {v(RSTD)}, {v(S2)}",
          f"v_cvt_pk_bf16_f32 {v(t)}, {v(S1)}, {v(S1)}",
          f"v_mul_f32 {v(STD)}, {v(S2)}, {v(RSTD)}",
          f"v_and_b32 {v(t+1)}, 0xffff0000, {v(t)}",
          f"v_sub_f32 {v(t+1)}, {v(S1)}, {v(t+1)}",
          f"v_cvt_pk_bf16_f32 {v(BAUG)}, {v(S1)}, {v(t+1)}",
          f"v_cvt_pk_bf16_f32 {v(BAUG+1)}, {v(S1)}, {v(STD)}",
          f"v_and_b32 {v(t+1)}, 0xffff0000, {v(BAUG+1)}",
          f"v_sub_f32 {v(t+1)}, {v(STD)}, {v(t+1)}",
          f"v_cmp_gt_u32 vcc, 32, {v(vL)}",
          f"v_cvt_pk_bf16_f32 {v(BAUG+2)}, {v(t+1)}, 0",
          f"v_cndmask_b32 {v(BAUG)}, 0, {v(BAUG)}, vcc",
          f"v_cndmask_b32 {v(BAUG+1)}, 0, {v(BAUG+1)}, vcc",
          f"v_cndmask_b32 {v(BAUG+2)}, 0, {v(BAUG+2)}, vcc"]

def aug(acc, part, bias):
    t = T + 18; dst = AAUG
    L = sum4(CS0, part) + [f"v_cvt_pk_bf16_f32 {v(dst)}, {v(CS0)}, {v(CS0)}",
         f"v_and_b32 {v(t)}, 0xffff0000, {v(dst)}",
         f"v_sub_f32 {v(t)}, {v(CS0)}, {v(t)}"]
    if bias is None:
        L += [f"v_cvt_pk_bf16_f32 {v(dst+1)}, {v(t)}, 0"]
    else:
        L += [f"v_cvt_pk_bf16_f32 {v(t)}, {v(t)}, 0", f"v_mov_b32 {v(dst+2)}, {v(bias)}",
              f"v_lshl_or_b32 {v(dst+1)}, {v(bias)}, 16, {v(t)}"]
    return L + [mfma(acc, dst, BAUG)]

def flag(level, tag):
    return [f".waitvm {tag}", f"v_mov_b32 {v(VFV)}, {level}",
            f"buffer_store_dword {v(VFV)}, {v(VZ)}, {s(SWS,4)}, {s(sFO)} offen sc1"]

Q = 16384
KAREA = []
def rot_k(kk, dst):
    if kk < 12: return [f"s_add_u32 {s(dst)}, {s(sR4)}, {kk}", f"s_and_b32 {s(dst)}, {s(dst)}, 3", f"s_add_u32 {s(dst)}, {s(dst)}, {s(sSH)}"] + \
                       ([f"s_add_u32 {s(dst)}, {s(dst)}, {kk & ~3}"] if kk & ~3 else [])
    if kk < 14: return [f"s_mul_i32 {s(dst)}, {s(sSH)}, 6", f"s_sub_u32 {s(dst)}, {kk}, {s(dst)}"]
    return [f"s_add_u32 {s(dst)}, {s(sR4)}, {kk-14}", f"s_and_b32 {s(dst)}, {s(dst)}, 3"]
def b_dma(kk):
    slot = kk % 9
    m0 = f"s_add_u32 m0, {s(sM0x)}, {KAREA[slot]}"
    sr, so = (SW2, sB2o) if kk < 14 else (SWO, sBOo)
    return [rot_k(kk, sD0) + [f"s_lshl_b32 {s(sD0)}, {s(sD0)}, 14", m0, f"s_add_u32 {s(sD0)}, {s(sD0)}, {s(so)}",
             f"buffer_load_dwordx4 {v(VB)}, {s(sr,4)}, {s(sD0)} offen lds"],
            [f"s_add_u32 {s(sD0)}, {s(sD0)}, {8192 - 1024}",
             f"buffer_load_dwordx4 {v(VB)}, {s(sr,4)}, {s(sD0)} offen offset:1024 lds ; tag=b{kk}"]]

def setup(ffn):
    pitch = 3584 if ffn else 3072
    tp = "f" if ffn else "a"
    P(f"s_load_dwordx2 {s(SWT,2)}, s[0:1], {40 if ffn else 8}")
    P(f"s_load_dwordx2 {s(SAUX,2)}, s[0:1], {48 if ffn else 16}")
    srd(SWT, 1835008 if ffn else 1572864)
    P(f"v_mul_u32_u24 {v(VW)}, {pitch}, v2\nv_add_u32 {v(VW)}, {v(VW)}, v4")
    if ffn:
        P(f"s_mul_i32 {s(sT0)}, {s(sG)}, 448\ns_and_b32 {s(sT1)}, {s(sG)}, 1\ns_lshl_b32 {s(sT2)}, {s(sT1)}, 6\ns_add_u32 {s(sWq)}, {s(sT0)}, {s(sT2)}")
        P(f"s_mul_i32 {s(sWo)}, {s(sW)}, {8*pitch}\ns_add_u32 {s(sWo)}, {s(sWo)}, {s(sWq)}")
    else:
        P(f"s_lshl_b32 {s(sWq)}, {s(sG)}, 7")
        P(f"s_mul_i32 {s(sWo)}, {s(sW)}, {8*pitch}\ns_add_u32 {s(sWo)}, {s(sWo)}, {s(sWq)}\ns_add_u32 {s(sWo)}, {s(sWo)}, 1024")
    P(f"v_add_u32 {v(VW0)}, {s(sWo)}, {v(VW)}")
    P("s_waitcnt lgkmcnt(0)")
    stamp("kernarg")
    for g_ in item1(0, pitch): P.add(g_)
    srd(SWS, WS_SIZE); srd(SDBG, 256); srd(SW2, 1835008); srd(SWO, 524288); srd(SOUT, 2097152); srd(SB2, 1024); srd(SAUX, 3584 if ffn else 16384)
    P(f"v_lshlrev_b32 {v(VL16)}, 4, {v(vL)}")
    P(f"s_lshr_b32 {s(sHALF)}, {s(sW)}, 2")
    P(f"s_and_b32 {s(sW34)}, {s(sW)}, 3\ns_xor_b32 {s(sSIG)}, {s(sW34)}, {s(sHALF)}")
    if not ffn:
        for i in range(4): P(f"v_mov_b32 {v(T+i)}, 0")
        P(f"s_lshl_b32 {s(sT0)}, {s(sW)}, 8\ns_add_u32 {s(sT0)}, {s(sT0)}, s2\ns_sub_u32 {s(sT0)}, {s(sT0)}, 256\ns_cmp_lt_u32 {s(sT0)}, 8")
        P(f"s_cbranch_scc0 L_nzero")
        P.cond_begin("zw")
        P(f"s_lshl_b32 {s(sT0)}, s2, 12\ns_add_u32 {s(sT0)}, {s(sT0)}, {WS_FLG}")
        for i in range(4): P(f"buffer_store_dwordx4 {v(T,4)}, {v(VL16)}, {s(SWS,4)}, {s(sT0)} offen offset:{1024*i} sc1")
        P(f"s_lshl_b32 {s(sT0)}, s2, 8\ns_add_u32 {s(sT0)}, {s(sT0)}, {WS_KVF}\nv_lshlrev_b32 v3, 2, {v(vL)}")
        P(f"buffer_store_dword {v(T)}, v3, {s(SWS,4)}, {s(sT0)} offen sc1 ; tag=zf")
        P.cond_end()
        P(f"L_nzero:")
    if OPT.get("touch", "1") == "1":
        P(f"s_cmp_lt_u32 {s(sW)}, 6")
        P(f"s_cbranch_scc1 L_nt{tp}")
        P.cond_begin("w67")
        P(f"v_lshlrev_b32 v3, 7, {v(vL)}\ns_mul_i32 {s(sT0)}, s2, 7168\ns_lshl_b32 {s(sT1)}, s2, 11")
        P(f"s_cmp_eq_u32 {s(sW)}, 6\ns_cbranch_scc0 L_nta{tp}")
        P(f"buffer_load_dword v255, v3, {s(SW2,4)}, {s(sT0)} offen")
        P(f"s_branch L_nt{tp}")
        P(f"L_nta{tp}:")
        P(f"v_and_b32 v3, 2047, v3")
        P(f"buffer_load_dword v255, v3, {s(SWO,4)}, {s(sT1)} offen")
        P(f"buffer_load_dword v254, v3, {s(SB2,4)}, 0 offen")
        P.cond_end()
        P(f"L_nt{tp}:")
    def wtouch():
        P(f"s_sub_u32 {s(sT0)}, {s(sW)}, 2\ns_cmp_lt_u32 {s(sT0)}, {3 if ffn else 2}")
        P(f"s_cbranch_scc0 L_nw{tp}")
        P.cond_begin("w234")
        P(f"v_mul_u32_u24 v3, {pitch}, {v(vL)}\ns_mul_i32 {s(sT1)}, {s(sROT)}, {64*pitch}\ns_add_u32 {s(sT1)}, {s(sT1)}, {s(sWq)}")
        if ffn:
            P(f"s_lshl_b32 {s(sT2)}, {s(sT0)}, 7\ns_add_u32 {s(sT1)}, {s(sT1)}, {s(sT2)}\ns_add_u32 {s(sT1)}, {s(sT1)}, 128")
            P(f"s_lshr_b32 {s(sT0)}, {s(sT0)}, 1\ns_and_b32 {s(sT0)}, {s(sT0)}, {s(sG)}\ns_mul_i32 {s(sT0)}, {s(sT0)}, 448\ns_sub_u32 {s(sT1)}, {s(sT1)}, {s(sT0)}")
        else:
            P(f"s_xor_b32 {s(sT0)}, {s(sT0)}, 1\ns_lshl_b32 {s(sT0)}, {s(sT0)}, 11\ns_add_u32 {s(sT1)}, {s(sT1)}, {s(sT0)}")
        P(f"buffer_load_dword v250, v3, {s(SWT,4)}, {s(sT1)} offen")
        P.cond_end()
        P(f"L_nw{tp}:")
    if OPT.get("wt", "0") == "1": wtouch()
    if OPT.get("cpf", "1") == "1":
        P(f"s_cmp_eq_u32 {s(sW)}, 5")
        P(f"s_cbranch_scc0 L_ncp{tp}")
        P.cond_begin("w5")
        P(f"s_getpc_b64 {s(sEX,2)}")
        P(f"L_pc{tp}:")
        P(f"s_sub_u32 {s(sEX)}, {s(sEX)}, L_pc{tp}-{NAME}\ns_subb_u32 {s(sEX+1)}, {s(sEX+1)}, 0")
        P(f"s_lshr_b32 {s(sT0)}, s2, 3\ns_lshl_b32 {s(sT0)}, {s(sT0)}, 11\nv_and_b32 v3, 15, {v(vL)}\nv_lshlrev_b32 v3, 7, v3\nv_add_u32 v3, {s(sT0)}, v3")
        P(f"v_min_u32 v3, L_end-{NAME}, v3")
        P(f"global_load_dword v253, v3, {s(sEX,2)}")
        P.cond_end()
        P(f"L_ncp{tp}:")
    if OPT.get("pt"):
        P(f"s_cmp_eq_u32 {s(sW)}, 4")
        P(f"s_cbranch_scc0 L_npt{tp}")
        n0 = len(P.ins)
        P(f"v_lshlrev_b32 v3, 21, {v(vL)}")
        P(f"buffer_load_dword v252, v3, {s(SWS,4)}, 0 offen")
        P(f"buffer_load_dword v251, v3, {s(SOUT,4)}, 0 offen")
        for I in P.ins[n0:]: I.cond = "w4"
        P(f"L_npt{tp}:")
    def stouch():
        n0 = len(P.ins)
        P(f"s_lshl_b32 {s(sT0)}, s2, 3\ns_add_u32 {s(sT0)}, {s(sT0)}, {s(sW)}\ns_mul_i32 {s(sT1)}, {s(sT0)}, 768\ns_mul_i32 {s(sT0)}, {s(sT0)}, 896")
        for i in range(6): P(f"s_load_dword {s(sCNT)}, {s(sEX,2)}, {s(sT1)} offset:{128*i}")
        for i in range(7): P(f"s_load_dword {s(sCNT)}, {s(sA0,2)}, {s(sT0)} offset:{128*i}")
    if OPT.get("stouch", "0") == "1": stouch()
    late1 = OPT.get("late1", "1") == "1"
    if not late1:
        for g_ in item1(1, pitch): P.add(g_)
    P(f"s_lshl_b32 {s(sT0)}, {s(sRT)}, 4\ns_add_u32 {s(sT0)}, {s(sT0)}, {s(sG)}\ns_lshl_b32 {s(sT0)}, {s(sT0)}, 7")
    P(f"s_and_b32 {s(sT1)}, {s(sW)}, 2\ns_lshl_b32 {s(sT1)}, {s(sT1)}, 3\ns_add_u32 {s(sT0)}, {s(sT0)}, {s(sT1)}\ns_and_b32 {s(sT1)}, {s(sW)}, 1\ns_lshl_b32 {s(sT1)}, {s(sT1)}, 2\ns_add_u32 {s(sT0)}, {s(sT0)}, {s(sT1)}\ns_lshl_b32 {s(sT1)}, {s(sHALF)}, 3\ns_add_u32 {s(sT0)}, {s(sT0)}, {s(sT1)}")
    P(f"s_add_u32 {s(sFO)}, {s(sT0)}, {WS_FLG + (1024 if ffn else 0)}")
    P(f"s_lshl_b32 {s(sT0)}, {s(sRT)}, 2\ns_add_u32 {s(sT0)}, {s(sT0)}, {s(sW34)}\ns_mul_i32 {s(sHo)}, {s(sT0)}, {HF_RB}")
    if ffn:
        P(f"v_and_b32 v5, 31, {v(vL)}\nv_lshlrev_b32 v5, 1, v5")
        P(f"s_lshl_b32 {s(sT0)}, {s(sHALF)}, 6\ns_add_u32 {s(sT0)}, {s(sT0)}, {s(sWq)}")
        for i in range(3): P(f"buffer_load_ushort {v(BIAS+i)}, v5, {s(SAUX,4)}, {s(sT0)} offen offset:{128*i}")
        P(f"s_lshl_b32 {s(sT0)}, {s(sT0)}, 5\ns_add_u32 {s(sH0)}, {s(sHo)}, {s(sT0)}")
        P(f"s_mul_i32 {s(sW3)}, {s(sG)}, 448\ns_add_u32 {s(sT0)}, {s(sW3)}, 384\ns_bitcmp1_b32 {s(sG)}, 0\ns_cselect_b32 {s(sW3)}, {s(sW3)}, {s(sT0)}")
        P(f"s_lshl_b32 {s(sT0)}, {s(sHALF)}, 5\nv_xor_b32 v5, {s(sT0)}, v5")
        P(f"buffer_load_ushort {v(BIAS+3)}, v5, {s(SAUX,4)}, {s(sW3)} offen")
        P(f"s_add_u32 {s(sT0)}, {s(sT0)}, {s(sW3)}\ns_lshl_b32 {s(sT0)}, {s(sT0)}, 5\ns_add_u32 {s(sH3)}, {s(sHo)}, {s(sT0)}")
        P(f"v_lshrrev_b32 v2, 2, {v(vL)}\nv_and_b32 v4, 3, {v(vL)}\nv_lshlrev_b32 v4, 4, v4\nv_mul_u32_u24 {v(VW3)}, {pitch}, v2\nv_add_u32 {v(VW3)}, {v(VW3)}, v4")
    else:
        P(f"s_cmp_lt_u32 {s(sW)}, 2")
        P(f"s_cbranch_scc0 L_nphi")
        P.cond_begin("w01")
        P(f"s_lshl_b32 {s(sT0)}, {s(sG)}, 11\ns_lshl_b32 {s(sT1)}, {s(sW)}, 10\ns_add_u32 {s(sT0)}, {s(sT0)}, {s(sT1)}\ns_add_u32 m0, {s(sT1)}, {L_WPHI}\ns_nop 0")
        P(f"buffer_load_dwordx4 {v(VL16)}, {s(SAUX,4)}, {s(sT0)} offen lds")
        P.cond_end()
        P("L_nphi:")
    P(f"s_mul_i32 {s(sT0)}, {s(sW34)}, {16*pitch}\ns_add_u32 {s(sWq)}, {s(sWq)}, {s(sT0)}")
    P(f"v_add_u32 {v(VW)}, {s(sWq)}, {v(VW)}")
    if ffn: P(f"s_add_u32 {s(sW3)}, {s(sW3)}, {s(sT0)}\nv_add_u32 {v(VW3)}, {s(sW3)}, {v(VW3)}")
    P(f"s_add_u32 {s(sT0)}, {s(sROT)}, {s(sHALF)}")
    for q in range(4):
        P(f"s_add_u32 {s(sT1)}, {s(sT0)}, {2*q}\ns_and_b32 {s(sT1)}, {s(sT1)}, 7\ns_mul_i32 {s(sQ[q])}, {s(sT1)}, {64*pitch}")
    P(f"s_mov_b32 {s(sT3)}, {f2u(1.0/512):#x}\ns_mov_b32 {s(sONE)}, 0x3f803f80")
    P(f"v_bfe_u32 {v(T)}, {v(vL)}, 2, 2\nv_lshrrev_b32 {v(T+1)}, 5, {v(vL)}")
    P(f"v_bfe_u32 {v(T+2)}, {v(vL)}, 4, 1\nv_lshlrev_b32 {v(T+2)}, 5, {v(T+2)}\nv_and_b32 {v(T+3)}, 3, {v(vL)}\nv_lshl_add_u32 {v(T+2)}, {v(T+3)}, 3, {v(T+2)}")
    P(f"v_and_b32 {v(T+4)}, 31, {v(vL)}\nv_bfe_u32 {v(T+5)}, {v(vL)}, 1, 3\nv_xor_b32 {v(T+5)}, {v(T+5)}, {v(T+1)}")
    P(f"s_lshl_b32 {s(sT0)}, {s(sW34)}, 12\nv_lshlrev_b32 {v(T+8)}, 7, {v(T+4)}\nv_add_u32 {v(T+8)}, {s(sT0)}, {v(T+8)}")
    P(f"v_lshl_add_u32 {v(T+9)}, {v(T+1)}, 3, {v(T)}\nv_lshl_add_u32 {v(T+10)}, {v(T+9)}, 7, {v(T+2)}\nv_lshrrev_b32 {v(T+7)}, 1, {v(T)}\nv_xor_b32 {v(T+7)}, {s(sHALF)}, {v(T+7)}\nv_lshl_add_u32 {v(T+10)}, {v(T+7)}, 6, {v(T+10)}")
    for p in range(4):
        P(f"s_xor_b32 {s(sT0)}, {s(sSIG)}, {p}\ns_lshl_b32 {s(sT1)}, {s(sT0)}, 1\nv_xor_b32 {v(T+6)}, {s(sT1)}, {v(T+5)}\nv_lshl_add_u32 {v(AX+p)}, {v(T+6)}, 4, {v(T+8)}")
        P(f"s_lshl_b32 {s(sT1)}, {s(sT0)}, 11\ns_add_u32 {s(sT1)}, {s(sT1)}, {RB}\nv_add_u32 {v(AW+p)}, {s(sT1)}, {v(T+10)}")
    if ffn:
        P(f"s_lshl_b32 {s(sT0)}, {s(sHALF)}, 5\nv_xor_b32 {v(T+7)}, {s(sT0)}, {v(T+2)}\nv_lshl_add_u32 {v(T+7)}, {v(T+9)}, 6, {v(T+7)}")
        for i, p in enumerate((0, 2)):
            P(f"s_xor_b32 {s(sT0)}, {s(sSIG)}, {p}\ns_lshl_b32 {s(sT0)}, {s(sT0)}, 10\nv_add_u32 {v(AB+i)}, {s(sT0)}, {v(T+7)}")
    P(f"v_lshlrev_b32 {v(T+4)}, 4, {v(T+4)}")
    P(f"s_lshl_b32 {s(sT0)}, {s(sHALF)}, 9\ns_add_u32 {s(sT0)}, {s(sT0)}, {L_CS}\nv_add_u32 {v(VCSA)}, {s(sT0)}, {v(T+4)}")
    P(f"s_lshl_b32 {s(sT0)}, {s(sW34)}, 9\ns_add_u32 {s(sT0)}, {s(sT0)}, {L_ST}\nv_add_u32 {v(VSTA)}, {s(sT0)}, {v(T+4)}")
    P(f"v_lshrrev_b32 {v(T+4)}, 2, {v(vL)}\nv_xor_b32 {v(T+4)}, {v(T+4)}, {v(vL)}\nv_and_b32 {v(T+4)}, 4, {v(T+4)}\nv_cmp_eq_u32 vcc, 0, {v(T+4)}\nv_mov_b32 {v(T+4)}, {s(sONE)}")
    for i in range(4): P(f"v_mov_b32 {v(PZ+i)}, -1")
    for r in (VZ, BAUG+3, AAUG+2, AAUG+3): P(f"v_mov_b32 {v(r)}, 0")
    for i in range(4): P(f"v_cndmask_b32 {v(SEL+i)}, 0, {v(T+4)}, vcc")
    P(f"s_lshl_b32 {s(sW34)}, {s(sW34)}, 2")
    if late1:
        for g_ in item1(1, pitch): P.add(g_)
    if OPT.get("stouch", "0") == "2": stouch()
    P(f"s_lshl_b32 {s(sT0)}, {s(sN)}, 7\ns_mul_i32 {s(sB2o)}, {s(sW)}, {224*1024}\ns_add_u32 {s(sB2o)}, {s(sB2o)}, {s(sT0)}")
    P(f"s_lshl_b32 {s(sBOo)}, {s(sW)}, 16\ns_add_u32 {s(sBOo)}, {s(sBOo)}, {s(sT0)}\ns_lshl_b32 {s(sM4)}, {s(sW)}, 12")
    P(f"s_lshl_b32 {s(sOo)}, {s(sM)}, 16\ns_lshl_b32 {s(sT1)}, {s(sW)}, 13\ns_add_u32 {s(sOo)}, {s(sOo)}, {s(sT1)}\ns_add_u32 {s(sOo)}, {s(sOo)}, {s(sT0)}")
    P(f"s_add_u32 {s(sR4)}, {s(sM)}, {s(sN)}\ns_and_b32 {s(sR4)}, {s(sR4)}, {0 if OPT.get('norot') else 3}\ns_and_b32 {s(sSH)}, {s(sW)}, 1\ns_lshl_b32 {s(sSH)}, {s(sSH)}, 1")
    P(f"s_lshr_b32 {s(sT0)}, {s(sM)}, 1\ns_lshl_b32 {s(sT0)}, {s(sT0)}, 4\ns_add_u32 {s(sT0)}, {s(sT0)}, {s(sW)}\ns_lshl_b32 {s(sT0)}, {s(sT0)}, 7")
    P(f"s_and_b32 {s(sT1)}, {s(sM)}, 1\ns_lshl_b32 {s(sT1)}, {s(sT1)}, 4\ns_add_u32 {s(sT0)}, {s(sT0)}, {s(sT1)}\ns_add_u32 {s(sFL)}, {s(sT0)}, {WS_FLG}")
    P(f"s_mul_i32 {s(sA0)}, {s(sM)}, {2*HF_RB}\ns_mul_i32 {s(sT0)}, {s(sW)}, {14*1024}\ns_add_u32 {s(sA1)}, {s(sA0)}, {s(sM4)}\ns_add_u32 {s(sA1)}, {s(sA1)}, {112*1024}\ns_add_u32 {s(sA0)}, {s(sA0)}, {s(sT0)}")

class Sched:
    def __init__(self, n):
        self.n = n; self.pre = [[] for _ in range(n)]; self.post = [[] for _ in range(n)]
        self.fill = [[] for _ in range(n)]; self.dma = [[] for _ in range(n)]; self.blk = {}
    def spread(self, lst, a, b):
        for i in range(a, b): self.fill[i] += lst[len(lst)*(i-a)//(b-a): len(lst)*(i+1-a)//(b-a)]
    def dmas(self, groups, a, step=1):
        for i, g in enumerate(groups): self.dma[a + i*step] += g

def rd(G):
    b = WF + 4 * (G & 3)
    if G < 96:
        ks = G & 31; st, p = ks >> 2, ks & 3
        L = [f"ds_read_b128 {v(XF+4*ks,4)}, {v(AX+p)} offset:{RA+(st&3)*16384}"] if G < 32 else []
        if ks < 4 and G >= 32: L.append(f"v_xor_b32 {v(AW+p)}, {RB}, {v(AW+p)}")
        return L + [f"ds_read_b64_tr_b16 {v(b+2*t,2)}, {v(AW+p)} offset:{8192*st+512*t}" for t in range(2)]
    i = G - 96
    return [f"ds_read_b64_tr_b16 {v(b+2*t,2)}, {v(AB+(i&1))} offset:{4096*(i>>1)+256*t}" for t in range(2)]
def xq(G): return XF + 4 * (G & 31) if G < 96 else XF + 8 * (G - 96)

def common_sched(S, ffn, accs, MC):
    pitch = 3584 if ffn else 3072
    tp = "f" if ffn else "a"
    c1, c2 = (128, 256) if ffn else (2048, 0)
    S.dmas(item1(2, pitch), 0, 0)
    for st in range(8):
        G = 4 * st + 2
        S.pre[G] += [f".waitvm it{st+1}" if st < 7 else ".waitvm w1q0 lgkm0", "s_barrier"]
        if st <= 4: S.dmas(item1(st + 3, pitch), G)
        else: S.dmas(wquarter(RA, st - 5, c1, pitch, f"w1q{st-5}"), G)
    def m4(d, r, c=None): return f"v_mfma_f32_4x4x4_16b_bf16 {v(d,4)}, {v(r,2)}, {v(r,2)}, {v(d,4) if c is None else c}"
    Q0, Q1 = T + 8, T + 16
    for f in range(0, 32, 2):
        x = XF + 4 * f; a = max(f - 1, 0); c = "0" if f == 0 else None
        S.post[a] += [m4(Q0, x, c), m4(Q1, x + 2, c), m16(MS, SEL, x, c)]
    S.post[28] += [f"v_and_b32 {v(S1)}, 3, {v(vL)}", f"v_cmp_eq_u32 {s(sEX,2)}, 1, {v(S1)}", f"s_lshl_b32 {s(sT0)}, {s(sHALF)}, 3",
                   f"v_add_u32 {v(T)}, {s(sT0)}, {v(VSTA)}"]
    S.post[29] += [f"v_add_f32 {v(Q0+i)}, {v(Q0+i)}, {v(Q1+i)}" for i in range(4)]
    S.post[29] += [f"v_cmp_eq_u32 vcc, 2, {v(S1)}", f"v_cndmask_b32 {v(S2)}, {v(Q0)}, {v(Q0+1)}, {s(sEX,2)}", f"v_cmp_eq_u32 {s(sEX,2)}, 3, {v(S1)}",
                   f"v_cndmask_b32 {v(S2)}, {v(S2)}, {v(Q0+2)}, vcc", f"v_cndmask_b32 {v(S2)}, {v(S2)}, {v(Q0+3)}, {s(sEX,2)}",
                   f"v_mov_b32 {v(S1)}, {v(S2)}", f"v_permlane32_swap_b32 {v(S1)}, {v(S2)}",
                   f"v_add_f32 {v(MS+1)}, {v(S1)}, {v(S2)}", f"ds_write_b64 {v(T)}, {v(MS,2)}"]
    S.post[30] += [f"ds_read_b128 {v(MS,4)}, {v(VSTA)}"]
    for ps in range(3):
        for st in range(8):
            G = 32 * ps + 4 * st
            S.post[G] += [m16(MC, SEL, WF + 4 * (G & 3), "0" if st == 0 else None)]
        S.post[32*ps + 29] += [f"v_add_u32 {v(MC+1)}, {s(sW34)}, {v(VCSA)}", f"ds_write_b32 {v(MC+1)}, {v(MC)} offset:{1024*ps}"]
    for q in (1, 2, 3): S.pre[32 + 8*q - 2] += [f".waitvm w1q{q}", "s_barrier"]
    w2 = sum([wquarter(RB, q, c2, pitch, "w2") for q in range(4)], [])
    for g_, G in zip(w2[:4] + wquarter(RA, 3, c1, pitch, "w1q3") + w2[4:], (32, 34, 35, 37, 38, 40, 41, 43, 44, 46)): S.dma[G] += g_
    S.pre[62] += [".waitvm w2 lgkm0", "s_barrier"]
    for G in (78, 86): S.pre[G] += ["s_barrier"]
    if ffn:
        S.post[int(OPT.get("f1", 90))] += flag(1, "h1"); S.post[int(OPT.get("f2", 110))] += flag(2, "h2")
        S.post[101] += [spoll(0)]; S.blk[("e", 105)] = lambda: sneed(1, 0)
    else:
        S.post[70] += flag(1, "pz")
    if OPT.get("l2t", "0") == "1":
        tg = [int(x) for x in OPT.get("l2gf" if ffn else "l2ga", "52,62,66,70,74" if ffn else "48,52,56,60,64").split(",")]
        DUM = VX0 if False else VW0
        for j in range(5):
            if j < 3:
                L = [f"s_lshr_b32 {s(sT0)}, s2, 3", f"s_mul_i32 {s(sT0)}, {s(sT0)}, 3", f"s_lshl_b32 {s(sT1)}, {s(sSH)}, 4", f"s_add_u32 {s(sT0)}, {s(sT0)}, {s(sT1)}",
                     f"s_add_u32 {s(sT0)}, {s(sT0)}, {128+j}", f"s_sub_u32 {s(sT1)}, {s(sT0)}, 224", f"s_min_u32 {s(sT0)}, {s(sT0)}, {s(sT1)}",
                     f"s_mul_i32 {s(sT1)}, {s(sW)}, 224", f"s_add_u32 {s(sT0)}, {s(sT0)}, {s(sT1)}", f"s_lshl_b32 {s(sT0)}, {s(sT0)}, 10",
                     f"buffer_load_dword {v(VTD)}, {v(VL16)}, {s(SW2,4)}, {s(sT0)} offen ; nodef"]
            else:
                L = [f"s_lshr_b32 {s(sT0)}, s2, 3", f"s_lshl_b32 {s(sT0)}, {s(sT0)}, 11", f"s_lshl_b32 {s(sT1)}, {s(sW)}, 16", f"s_add_u32 {s(sT0)}, {s(sT0)}, {s(sT1)}",
                     f"buffer_load_dword {v(VTD)}, {v(VL16)}, {s(SWO,4)}, {s(sT0)} offen offset:{1024*(j-3)} ; nodef"]
            S.dma[tg[j]] += L
    def announce():
        P(f"s_lshl_b32 {s(sT0)}, {s(sW)}, 8\ns_add_u32 {s(sT0)}, {s(sT0)}, s2\ns_sub_u32 {s(sT0)}, {s(sT0)}, 256\ns_cmp_lt_u32 {s(sT0)}, 8")
        P(f"s_cbranch_scc0 L_nd")
        P.cond_begin("zw")
        P(".waitvm zf")
        P(f"s_lshl_b32 {s(sT0)}, s2, 2\nv_mov_b32 {v(VFV)}, 1")
        P(f"buffer_store_dword {v(VFV)}, {v(VZ)}, {s(SDBG,4)}, {s(sT0)} offen sc1")
        P.cond_end()
        P(f"L_nd:")
    if not ffn: S.blk[3] = announce
    ld = f"v_and_b32 {v(VX0)}, 28, {v(vL)}\nbuffer_load_dword {v(VX0)}, {v(VX0)}, {s(SDBG,4)}, 0 offen sc1"
    def poll0():
        P(f"s_cmp_eq_u32 {s(sW)}, 7"); P(f"s_cbranch_scc0 L_np{tp}")
        P.cond_begin("w7")
        P(ld)
        P.cond_end(); P(f"L_np{tp}:")
    def check0():
        P(f"s_cmp_eq_u32 {s(sW)}, 7"); P(f"s_cbranch_scc0 L_nc{tp}")
        P.cond_begin("w7")
        P(f"v_mov_b32 {v(VX0)}, {v(VX0)}")
        spin(f"L_ncs{tp}", ld, f"v_cmp_ne_u32 vcc, 1, {v(VX0)}")
        P.cond_end(); P(f"L_nc{tp}:")
    S.blk[39] = poll0; S.blk[62] = check0

def run_sched(S, accs):
    P(".waitvm it0")
    P("s_barrier")
    stamp("it0")
    P.add(rd(0)); P.add(rd(1))
    for G in range(S.n):
        stamp(f"g{G}")
        if G in S.blk: S.blk[G]()
        late = OPT.get("bam", "1") == "1" and G >= 32
        if not late: P.add(S.pre[G])
        if OPT.get("prio", "1") == "1": P(f"s_setprio {3 - ((G + 2) & 3)}")
        first = G in (0, 32, 64, 96)
        P(mfma(accs[G >> 5], WF + 4 * (G & 3), xq(G), "0" if first else None))
        if late: P.add(S.pre[G])
        if G + 2 < S.n: P.add(rd(G + 2))
        P.add(S.post[G]); P.add(S.fill[G]); P.add(S.dma[G])
        if ("e", G) in S.blk: S.blk[("e", G)]()
    P("s_setprio 0")

AC = 64; NAF = 8
def AFq(kk, rb): return XF + 4 + 8 * (2 * (kk % NAF) + rb)
def BTq(kk, nb): return XF + 8 * (2 * (kk & 1) + nb)
BA = 2
VXR, VRED = 9, 10
VWR = 20
XR, B2R = 32, 36
def a_jobs(kk):
    so = sA0 if kk < 14 else sA1
    return [rot_k(kk, sD1) + [f"s_lshl_b32 {s(sD1)}, {s(sD1)}, 10", f"s_add_u32 {s(sD1)}, {s(sD1)}, {s(so)}",
             f"buffer_load_dwordx4 {v(AFq(kk,0),4)}, {v(VL16)}, {s(SWS,4)}, {s(sD1)} offen sc1"],
            [f"s_add_u32 {s(sD1)}, {s(sD1)}, {HF_RB}",
             f"buffer_load_dwordx4 {v(AFq(kk,1),4)}, {v(VL16)}, {s(SWS,4)}, {s(sD1)} offen sc1"]]
def vcheck(regs, t):
    L = [f"v_max3_u32 {v(t)}, {v(regs[0])}, {v(regs[1])}, {v(regs[2])}"]; r = regs[3:]
    while len(r) >= 2: L.append(f"v_max3_u32 {v(t)}, {v(t)}, {v(r[0])}, {v(r[1])}"); r = r[2:]
    if r: L.append(f"v_max_u32 {v(t)}, {v(t)}, {v(r[0])}")
    return L + [f"v_cmp_eq_u32 vcc, -1, {v(t)}"]
SLOW = []
def validate(regs, t, reload):
    lb = P.lab("L_v")
    P.add(vcheck(regs, t))
    P(f"s_cbranch_vccnz {lb}_slow")
    P(f"{lb}_back:")
    SLOW.append([f"{lb}_slow:", f"s_mov_b32 {s(sCNT)}, 0", f"{lb}_loop:", "s_sleep 2"] + reload + ["s_waitcnt vmcnt(0)"] + vcheck(regs, t) +
                [f"s_add_u32 {s(sCNT)}, {s(sCNT)}, 1", f"s_cbranch_vccz {lb}_back", f"s_cmp_gt_u32 {s(sCNT)}, {SPIN_MAX}",
                 f"s_cbranch_scc0 {lb}_loop", f"s_branch {lb}_back"])
def flush_slow():
    for blk in SLOW:
        P(".reset"); P.add(blk)
    SLOW.clear()
def spoll(o): return f"s_buffer_load_dwordx4 {s(sPL,4)}, {s(SWS,4)}, {s(sFL)} offset:{0 if o else 1024} glc"
def sneed(level, o):
    lb = P.lab("L_sp")
    P(f"s_mov_b32 {s(sCNT)}, 0")
    P(f"{lb}:")
    P("s_waitcnt lgkmcnt(0)")
    P(f"s_min_u32 {s(sPL)}, {s(sPL)}, {s(sPL+1)}\ns_min_u32 {s(sPL+2)}, {s(sPL+2)}, {s(sPL+3)}\ns_min_u32 {s(sPL)}, {s(sPL)}, {s(sPL+2)}")
    P(f"s_cmp_ge_u32 {s(sPL)}, {level}")
    P(f"s_cbranch_scc1 {lb}_ok")
    P(f"s_add_u32 {s(sCNT)}, {s(sCNT)}, 1\ns_cmp_gt_u32 {s(sCNT)}, {SPIN_MAX}")
    P(f"s_cbranch_scc1 {lb}_ok")
    P("s_sleep 1")
    I = Ins(spoll(o)); I.kind = "salu"; P.ins.append(I)
    P(f"s_branch {lb}")
    P(f"{lb}_ok:")
def b_reads(kk):
    slot = kk % 9
    var, off = (KAREA[slot] >> 16), KAREA[slot] & 0xffff
    return [f".waitvm b{kk}"] + [f"ds_read_b64_tr_b16 {v(BTq(kk,nb)+2*tt,2)}, {v(BA+2*var+nb)} offset:{off+1024*tt}" for nb in range(2) for tt in range(2)]
def phase2(done=(), ordr="B6 B7 B8 B9 A4 A5 A6 A7 B10 A8 B11 A9 A10 B12 A11 B13 A12 B14 A13 B15 B16 B17 A14 A15 A16 A17"):
    P(f"v_bfe_u32 {v(T+8)}, {v(vL)}, 2, 2\nv_lshrrev_b32 {v(T+9)}, 5, {v(vL)}\nv_and_b32 {v(T+10)}, 63, {v(AW)}")
    P(f"v_lshl_add_u32 {v(T+12)}, {v(T+9)}, 2, {v(T+8)}\nv_lshl_add_u32 {v(T+12)}, {v(T+12)}, 7, {v(T+10)}\nv_lshrrev_b32 {v(T+13)}, 1, {v(T+8)}")
    P(f"v_lshl_add_u32 {v(T+12)}, {v(T+13)}, 6, {v(T+12)}\nv_xor_b32 {v(T+13)}, 64, {v(T+12)}")
    P(f"s_add_u32 {s(sT0)}, {s(sM0x)}, 65536\ns_add_u32 {s(sT1)}, {s(sM0x)}, {RC}")
    for nb in range(2):
        P(f"v_add_u32 {v(BA+nb)}, {s(sM0x)}, {v(T+12+nb)}\nv_add_u32 {v(BA+2+nb)}, {s(sT0)}, {v(T+12+nb)}\nv_add_u32 {v(BA+4+nb)}, {s(sT1)}, {v(T+12+nb)}")
    P.add(b_reads(0))
    if OPT.get("p2prio") == "y":
        lb = P.lab("L_pr"); P(f"s_cmp_lt_u32 {s(sW)}, 4\ns_cbranch_scc1 {lb}\ns_setprio 1\n{lb}:")
    stamp("hseen")
    order = [j for j in ordr.split() if j not in done]
    jobs = []
    for j in order:
        k2 = int(j[1:]); gs = a_jobs(k2) if j[0] == "A" else b_dma(k2)
        jobs += [(j, gs[0]), (None, gs[1])]
    for kk in range(18):
        rem = [x for x, _ in jobs if x]
        assert f"A{kk+1}" not in rem and f"B{kk+2}" not in rem, (kk, rem)
        if OPT.get("v"): print(kk, rem, file=sys.stderr)
        pm = OPT.get("p2prio", "c")
        if pm == "c": P(f"s_setprio {3 - ((kk // int(OPT.get('p2per', 1))) & 3)}")
        br = b_reads(kk + 1) if kk + 1 < 18 else []
        for nb in range(2):
            for rb in range(2):
                mi = 2 * nb + rb
                P(mfma(AC + 16 * mi, BTq(kk, nb), AFq(kk, rb), "0" if kk == 0 else None))
                if mi == 0: P.add(br[:3])
                if mi == 1: P.add(br[3:])
                if mi == 2 and 8 <= kk + 1 < 18:
                    if jobs and jobs[0][0] is None: P.add(jobs.pop(0)[1])
                    validate([AFq(kk + 1, r2) + i for r2 in range(2) for i in range(4)], T + 16, sum(a_jobs(kk + 1), []))
                for rep in range(2 if kk < int(OPT.get("dbl", 0)) else 1):
                    if not jobs: continue
                    j, g_ = jobs[0]
                    if j:
                        k2 = int(j[1:]); last = (nb, rb) == (1, 1)
                        free = k2 - (8 if j[0] == "A" else 9)
                        if free > kk or (free == kk and not last): continue
                        if j == "A4": sneed(2, 0); P(spoll(1))
                        if j == "A14": sneed(1, 1)
                    jobs.pop(0); P.add(g_)
        stamp(f"k{kk}")
        if kk == 8:
            P(f"v_lshrrev_b32 {v(T+17)}, 3, {v(vL)}\nv_and_b32 {v(T+18)}, 7, {v(vL)}\nv_lshlrev_b32 {v(T+18)}, 4, {v(T+18)}\nv_lshl_add_u32 {v(VXR)}, {v(T+17)}, 10, {v(T+18)}")
            P(f"s_lshl_b32 {s(sT0)}, {s(sN)}, 7")
            P(f"buffer_load_dwordx4 {v(XR,4)}, {v(VXR)}, {s(SX,4)}, {s(sOo)} offen")
            P(f"buffer_load_dwordx4 {v(B2R,4)}, {v(T+18)}, {s(SB2,4)}, {s(sT0)} offen")
        if kk == 3:
            for q in range(4):
                P(f"v_xor_b32 {v(VWR+q)}, {64*q}, {v(VL16)}\nv_add_u32 {v(VWR+q)}, {s(sM0x)}, {v(VWR+q)}")
                P(f"v_add_u32 {v(T+q)}, 65536, {v(VWR+q)}")
            P(f"v_lshrrev_b32 {v(T+4)}, 3, {v(vL)}\ns_lshl_b32 {s(sT0)}, {s(sW34)}, 1\nv_add_u32 {v(T+4)}, {s(sT0)}, {v(T+4)}")
            P(f"v_and_b32 {v(T+5)}, 3, {v(vL)}\nv_lshlrev_b32 {v(T+6)}, 2, {v(T+5)}\nv_xor_b32 {v(T+4)}, {v(T+4)}, {v(T+6)}\nv_lshlrev_b32 {v(T+4)}, 4, {v(T+4)}\nv_and_b32 {v(T+6)}, 1, {v(T+5)}\nv_lshl_add_u32 {v(T+4)}, {v(T+6)}, 10, {v(T+4)}\nv_lshrrev_b32 {v(T+6)}, 1, {v(T+5)}\nv_lshl_add_u32 {v(T+4)}, {v(T+6)}, 14, {v(T+4)}")
            P(f"v_bfe_u32 {v(T+5)}, {v(vL)}, 2, 1\nv_lshl_add_u32 {v(T+4)}, {v(T+5)}, 16, {v(T+4)}\ns_lshl_b32 {s(sT0)}, {s(sHALF)}, 15\nv_add_u32 {v(VRED)}, {s(sT0)}, {v(T+4)}")
        F = T + 8
        if kk == 14:
            for i in range(4):
                P(f"v_lshlrev_b32 {v(F+2*i)}, 16, {v(XR+i)}\nv_and_b32 {v(F+2*i+1)}, 0xffff0000, {v(XR+i)}")
                P(f"v_lshlrev_b32 {v(T+4)}, 16, {v(B2R+i)}\nv_and_b32 {v(T+5)}, 0xffff0000, {v(B2R+i)}")
                P(f"v_add_f32 {v(F+2*i)}, {v(F+2*i)}, {v(T+4)}\nv_add_f32 {v(F+2*i+1)}, {v(F+2*i+1)}, {v(T+5)}")
    stamp("p2mm")
    for blk in range(4):
        for q in range(4):
            ad = VWR + q if blk < 2 else T + q
            P(f"ds_write_b128 {v(ad)}, {v(AC+16*blk+4*q,4)} offset:{(blk&1)*32768+(q>>1)*16384+(q&1)*1024}")
    P("s_waitcnt lgkmcnt(0)")
    stamp("rw")
    P("s_barrier")
    stamp("rb")
    R = XF
    for ww in range(8):
        for hf in range(2): P(f"ds_read_b128 {v(R+8*ww+4*hf,4)}, {v(VRED)} offset:{2048*ww+512*hf}")
    for ww in range(8):
        for i in range(0, 8, 2): P(f"v_pk_add_f32 {v(F+i,2)}, {v(F+i,2)}, {v(R+8*ww+i,2)}")
    for i in range(4): P(f"v_cvt_pk_bf16_f32 {v(XR+i)}, {v(F+2*i)}, {v(F+2*i+1)}")
    P(f"buffer_store_dwordx4 {v(XR,4)}, {v(VXR)}, {s(SOUT,4)}, {s(sOo)} offen {OPT.get('om', '').replace('+', ' ')}")
    if STAMP:
        stamp("end")
        P("s_waitcnt lgkmcnt(0)")
        P(f"s_lshl_b32 {s(sT0)}, s2, 3\ns_add_u32 {s(sT0)}, {s(sT0)}, {s(sW)}\ns_lshl_b32 {s(sT0)}, {s(sT0)}, 6\ns_add_u32 {s(sT0)}, {s(sT0)}, {WS_STAMP}")
        P(f"v_mov_b32 v2, 0\ns_mov_b64 exec, 1")
        for i in range(12):
            P(f"v_mov_b32 v3, {s(sST+2*i)}\nbuffer_store_dword v3, v2, {s(SWS,4)}, {s(sT0)} offen offset:{4*i}")
    P("s_endpgm")
    flush_slow()

def softmax(p, out, LS):
    t = T + 16
    L = [f"v_max3_f32 {v(t)}, {v(p)}, {v(p+1)}, {v(p+2)}", f"v_max3_f32 {v(t+1)}, {v(p+3)}, {v(p+4)}, {v(p+5)}",
         f"v_max3_f32 {v(t)}, {v(t)}, {v(p+6)}, {v(p+7)}", f"v_max3_f32 {v(t+1)}, {v(t+1)}, {v(p+8)}, {v(p+9)}",
         f"v_max3_f32 {v(t)}, {v(t)}, {v(p+10)}, {v(p+11)}", f"v_max3_f32 {v(t+1)}, {v(t+1)}, {v(p+12)}, {v(p+13)}",
         f"v_max3_f32 {v(t)}, {v(t)}, {v(p+14)}, {v(p+15)}", f"v_max_f32 {v(t)}, {v(t)}, {v(t+1)}",
         f"v_mul_f32 {v(t)}, {v(t)}, {v(LS)}"]
    L += [f"v_fma_f32 {v(p+i)}, {v(p+i)}, {v(LS)}, -{v(t)}" for i in range(16)]
    L += [f"v_exp_f32 {v(p+i)}, {v(p+i)}" for i in range(16)]
    L += [f"v_add_f32 {v(t)}, {v(p)}, {v(p+1)}", f"v_add_f32 {v(t+1)}, {v(p+2)}, {v(p+3)}"]
    for i in range(4, 16, 2):
        L += [f"v_add_f32 {v(t)}, {v(t)}, {v(p+i)}", f"v_add_f32 {v(t+1)}, {v(t+1)}, {v(p+i+1)}"]
    L += [f"v_add_f32 {v(t)}, {v(t)}, {v(t+1)}", f"v_rcp_f32 {v(t)}, {v(t)}"]
    L += [f"v_mul_f32 {v(p+i)}, {v(p+i)}, {v(t)}" for i in range(16)]
    L += [f"v_cvt_pk_bf16_f32 {v(out+i)}, {v(p+2*i)}, {v(p+2*i+1)}" for i in range(8)]
    return L

setup(False)
KAREA[:] = [RC, RA+3*Q, RB, RA, RA+Q, RA+2*Q, RB+Q, RB+2*Q, RB+3*Q]
LS = K1; VPK = K2; VV = VW3; MC = BIAS
PHI0, PHI1 = AX, AAUG
PHI0 = AX
PHI1 = S1
PHI1 = T + 12
t = T + 16
P(f"v_bfe_u32 {v(t)}, {v(vL)}, 2, 2\nv_lshrrev_b32 {v(t+1)}, 5, {v(vL)}\nv_lshl_add_u32 {v(t)}, {v(t+1)}, 2, {v(t)}\nv_lshlrev_b32 {v(t)}, 5, {v(t)}")
P(f"v_bfe_u32 {v(t+2)}, {v(vL)}, 1, 1\nv_lshl_add_u32 {v(t)}, {v(t+2)}, 3, {v(t)}\nv_bfe_u32 {v(t+2)}, {v(vL)}, 4, 1\nv_lshl_add_u32 {v(t)}, {v(t+2)}, 4, {v(t)}")
P(f"s_lshl_b32 {s(sT1)}, {s(sHALF)}, 10\ns_add_u32 {s(sT1)}, {s(sT1)}, {L_WPHI}\nv_add_u32 {v(AB)}, {s(sT1)}, {v(t)}")
P(f"v_bfe_u32 {v(t)}, {v(vL)}, 2, 1\nv_mul_u32_u24 {v(t)}, 0x8000, {v(t)}\nv_lshl_or_b32 {v(AB+1)}, {v(t)}, 16, {v(t)}")
P(f"v_and_b32 {v(t)}, 31, {v(vL)}\nv_lshlrev_b32 {v(t)}, 6, {v(t)}\ns_lshl_b32 {s(sT1)}, {s(sW34)}, 9\nv_bfe_u32 {v(t+2)}, {v(vL)}, 1, 2")
P(f"v_lshlrev_b32 {v(t+3)}, 1, {v(t+1)}\nv_xor_b32 {v(t+3)}, {v(t+3)}, {v(t+2)}")
P(f"s_lshl_b32 {s(sT2)}, {s(sHALF)}, 14\ns_add_u32 {s(sT2)}, {s(sT2)}, {s(sT1)}\nv_lshl_add_u32 {v(VPK)}, {v(t+3)}, 4, {v(t)}\nv_add_u32 {v(VPK)}, {s(sT2)}, {v(VPK)}")
P(f"v_xor_b32 {v(t+3)}, {v(t+1)}, {v(t+2)}")
P(f"s_lshl_b32 {s(sT2)}, {s(sHALF)}, 13\ns_add_u32 {s(sT2)}, {s(sT2)}, {s(sT1)}\ns_add_u32 {s(sT2)}, {s(sT2)}, {RA+32768}\nv_lshl_add_u32 {v(VV)}, {v(t+3)}, 4, {v(t)}\nv_add_u32 {v(VV)}, {s(sT2)}, {v(VV)}")
def phi_load(hl, dst):
    return [f"ds_read_b64_tr_b16 {v(dst+2*tt,2)}, {v(AB)} offset:{512*hl+256*tt}" for tt in range(2)] + \
           [f"v_xor_b32 {v(dst+i)}, {v(AB+1)}, {v(dst+i)}" for i in range(4)]
S = Sched(96)
common_sched(S, False, None, MC)
S.post[30] += [f"ds_read_b128 {v(CSR,4)}, {v(VCSA)}"]
sKV, sOS = sH0, sH3
P(f"s_lshl_b32 {s(sT0)}, {s(sG)}, 4\ns_add_u32 {s(sT0)}, {s(sT0)}, {s(sRT)}\ns_mul_i32 {s(sT0)}, {s(sT0)}, {KVP_SZ}\ns_mul_i32 {s(sT1)}, {s(sW)}, 1152\ns_add_u32 {s(sT0)}, {s(sT0)}, {s(sT1)}\ns_add_u32 {s(sT0)}, {s(sT0)}, {WS_KVP}")
P(f"s_cmp_lt_u32 {s(sW)}, 4\ns_cselect_b32 {s(sKV)}, {s(sT0)}, 0x7f000000")
P(f"s_lshl_b32 {s(sT0)}, {s(sG)}, 2\ns_lshl_b32 {s(sT1)}, {s(sHALF)}, 1\ns_add_u32 {s(sT0)}, {s(sT0)}, {s(sT1)}\ns_add_u32 {s(sT0)}, {s(sT0)}, 112\ns_lshl_b32 {s(sT0)}, {s(sT0)}, 10\ns_add_u32 {s(sOS)}, {s(sT0)}, {s(sHo)}")
PA = AAUG
S.post[46] += [f"v_mov_b32 {v(PA+i)}, -1" for i in range(4)] + [f"v_lshrrev_b32 {v(S2)}, 2, {v(vL)}", f"v_lshl_add_u32 {v(S2)}, {v(S2)}, 26, {v(VL16)}"]
S.post[47] += [f"buffer_store_dwordx4 {v(PA,4)}, {v(VL16)}, {s(SWS,4)}, {s(sKV)} offen sc1"]
S.post[48] += [f"buffer_store_dwordx4 {v(PA,4)}, {v(S2)}, {s(SWS,4)}, {s(sKV)} offen offset:1024 sc1"]
S.post[50] += [f"buffer_store_dwordx4 {v(PA,4)}, {v(VL16)}, {s(SWS,4)}, {s(sOS)} offen sc1"]
S.post[53] += [f"buffer_store_dwordx4 {v(PA,4)}, {v(VL16)}, {s(SWS,4)}, {s(sOS)} offen offset:1024 sc1 ; tag=pz"]
S.post[55] += [f"v_mov_b32 {v(PA+2)}, 0", f"v_mov_b32 {v(PA+3)}, 0"]
def ltouch():
    P(f"s_sub_u32 {s(sT0)}, {s(sW)}, 4\ns_cmp_lt_u32 {s(sT0)}, 3")
    P(f"s_cbranch_scc0 L_nlt")
    P.cond_begin("w456")
    P(f"v_lshlrev_b32 {v(S1)}, 7, {v(vL)}\ns_lshl_b32 {s(sT1)}, {s(sRT)}, 3\ns_add_u32 {s(sT1)}, {s(sT1)}, {s(sG)}")
    P(f"s_cmp_eq_u32 {s(sT0)}, 2\ns_cbranch_scc1 L_lt2")
    P(f"s_lshl_b32 {s(sT1)}, {s(sT1)}, 1\ns_add_u32 {s(sT1)}, {s(sT1)}, {s(sT0)}\ns_mul_i32 {s(sT1)}, {s(sT1)}, 7168")
    P(f"buffer_load_dword {v(VX0)}, {v(S1)}, {s(SW2,4)}, {s(sT1)} offen")
    P("s_branch L_nlt")
    P("L_lt2:")
    P(f"v_and_b32 {v(S1)}, 4095, {v(S1)}\ns_lshl_b32 {s(sT1)}, {s(sT1)}, 12")
    P(f"buffer_load_dword {v(VX0)}, {v(S1)}, {s(SWO,4)}, {s(sT1)} offen")
    P(f"buffer_load_dword {v(VX1)}, {v(S1)}, {s(SB2,4)}, 0 offen")
    P.cond_end()
    for I in P.ins[-12:]:
        if I.kind == "vld": I.defs = []
    P("L_nlt:")
if OPT.get("touch", "1") == "2": S.blk[("e", int(OPT.get("tg", 54)))] = ltouch
S.post[31] += stamp_i("pass1")
fill = stats_final() + aug(ACC0, CSR, None) + phi_load(0, AX) + phi_load(1, T + 8) + [f"v_mul_f32 {v(LS)}, {f2u(LOG2E):#x}, {v(RSTD)}"]
fill += [f"v_cvt_pk_bf16_f32 {v(T+i)}, {v(ACC0+2*i)}, {v(ACC0+2*i+1)}" for i in range(8)]
fill += [mfma(ACC2, AX, T, "0"), mfma(ACC0, T + 8, T + 4, "0")]
S.spread(fill, 32, 40)
S.spread(softmax(ACC2, T + 8, LS) + softmax(ACC0, T, LS), 41, 64)
S.post[56] += [f"ds_write_b128 {v(VPK)}, {v(T+8,4)}", f"v_xor_b32 {v(VSTA)}, 16, {v(VPK)}"]
S.post[57] += [f"ds_write_b128 {v(VSTA)}, {v(T+12,4)}"]
S.post[62] += [f"ds_read_b128 {v(MC,4)}, {v(VCSA)} offset:1024"]
S.post[63] += stamp_i("sub1")
S.pre[64] += sum4(CS0, MC)
S.fill[64] += aug(ACC1, MC, None)[3:]
S.post[65] += [f"ds_write_b128 {v(VPK)}, {v(T,4)} offset:8192"]
S.post[66] += [f"ds_write_b128 {v(VSTA)}, {v(T+4,4)} offset:8192"]
fill = []
fill += [f"v_mul_f32 {v(ACC1+i)}, {v(ACC1+i)}, {v(RSTD)}" for i in range(16)]
fill += [f"v_cvt_pk_bf16_f32 {v(ACC1+i)}, {v(ACC1+2*i)}, {v(ACC1+2*i+1)}" for i in range(8)]
fill += [f"ds_write_b128 {v(VV)}, {v(ACC1,4)}", f"v_xor_b32 {v(VV)}, 32, {v(VV)}", f"ds_write_b128 {v(VV)}, {v(ACC1+4,4)}"]
S.spread(fill, 66, 70)
S.dmas(b_dma(0), 58, 3)
S.dmas(b_dma(1), 72, 3); S.dmas(b_dma(2), 78, 3); S.dmas(b_dma(3) + b_dma(4), 86, 2)
def kvblock():
    P(".waitvm pz lgkm0")
    P("s_barrier")
    kvflag()
    stamp("kv0"); stamp("kv1")
    P(f"s_cmp_lt_u32 {s(sW)}, 4")
    P("s_cbranch_scc0 L_nkv")
    P.cond_begin("lo4")
    t = T + 16; u = S1
    P(f"v_bfe_u32 {v(u)}, {v(vL)}, 2, 2\nv_lshrrev_b32 {v(u+1)}, 5, {v(vL)}\nv_lshl_add_u32 {v(u)}, {v(u+1)}, 3, {v(u)}\nv_lshlrev_b32 {v(u)}, 6, {v(u)}")
    P(f"v_bfe_u32 {v(u+1)}, {v(vL)}, 1, 1\nv_lshl_add_u32 {v(u)}, {v(u+1)}, 3, {v(u)}\nv_bfe_u32 {v(u+1)}, {v(vL)}, 3, 1\nv_and_b32 {v(VSTA)}, 1, {v(vL)}")
    P(f"v_or_b32 {v(t)}, {s(sSH)}, {v(VSTA)}\nv_xor_b32 {v(t)}, {v(t)}, {v(u+1)}\nv_lshl_add_u32 {v(t)}, {v(t)}, 4, {v(u)}")
    P(f"s_lshr_b32 {s(sT0)}, {s(sW)}, 1\ns_lshl_b32 {s(sT0)}, {s(sT0)}, 13\ns_add_u32 {s(sT0)}, {s(sT0)}, {RA+32768}\nv_add_u32 {v(t)}, {s(sT0)}, {v(t)}\nv_xor_b32 {v(t+1)}, 32, {v(t)}")
    P(f"v_bfe_u32 {v(t+2)}, {v(vL)}, 4, 1\nv_lshl_add_u32 {v(t+2)}, {v(VSTA)}, 1, {v(t+2)}\nv_xor_b32 {v(t+2)}, {v(t+2)}, {v(u+1)}\nv_lshl_add_u32 {v(t+2)}, {v(t+2)}, 4, {v(u)}")
    P(f"s_lshl_b32 {s(sT0)}, {s(sW)}, 13\nv_add_u32 {v(t+2)}, {s(sT0)}, {v(t+2)}\nv_xor_b32 {v(t+3)}, 32, {v(t+2)}")
    P(f"v_and_b32 {v(u)}, 16, {v(vL)}\nv_cmp_eq_u32 vcc, 0, {v(u)}\nv_mov_b32 {v(u+1)}, {s(sONE)}")
    KB = [T, T + 8, ACC1, ACC1 + 8]
    def kr(J):
        for tt in range(2):
            P(f"ds_read_b64_tr_b16 {v(KB[J&3]+2*tt,2)}, {v(t+tt)} offset:{1024*J+256*tt}")
            P(f"ds_read_b64_tr_b16 {v(KB[J&3]+4+2*tt,2)}, {v(t+2+tt)} offset:{1024*J+256*tt}")
    kr(0); kr(1); kr(2)
    for J in range(8):
        for i in range(4): P(f"v_cndmask_b32 {v(KB[J&3]+i)}, {v(u+1)}, {v(KB[J&3]+i)}, vcc")
        if J + 3 < 8: kr(J + 3)
        P(mfma(ACC0, KB[J&3] + 4, KB[J&3], "0" if J == 0 else None))
    P(f"v_lshrrev_b32 {v(u)}, 5, {v(vL)}\nv_and_b32 {v(t+2)}, 15, {v(vL)}\nv_lshlrev_b32 {v(t)}, 4, {v(t+2)}\nv_lshl_add_u32 {v(t)}, {v(u)}, 8, {v(t)}\nv_add_u32 {v(t+1)}, 512, {v(t)}")
    P(f"v_lshlrev_b32 {v(u)}, 4, {v(u)}\nv_add_u32 {v(u)}, 1024, {v(u)}\nv_lshl_add_u32 {v(u)}, {v(t+2)}, 26, {v(u)}\nv_add_u32 {v(u+1)}, 32, {v(u)}")
    P(f"v_cndmask_b32 {v(t)}, {v(u)}, {v(t)}, vcc\nv_cndmask_b32 {v(t+1)}, {v(u+1)}, {v(t+1)}, vcc")
    for i in range(8): P(f"v_cvt_pk_bf16_f32 {v(T+i)}, {v(ACC0+2*i)}, {v(ACC0+2*i+1)}")
    stamp("kv1")
    for j in range(2): P(f"buffer_store_dwordx4 {v(T+4*j,4)}, {v(t+j)}, {s(SWS,4)}, {s(sKV)} offen sc1")
    P.cond_end()
    P("L_nkv:")
    stamp("kv2")
S.blk[70] = kvblock
S.pre[94] += ["s_waitcnt lgkmcnt(0)", "s_barrier"]
def kvflag():
    P(f"s_cmp_eq_u32 {s(sW)}, 7")
    P("s_cbranch_scc0 L_nkf")
    P.cond_begin("w0")
    P(f"s_lshl_b32 {s(sT0)}, {s(sG)}, 8\ns_lshl_b32 {s(sT1)}, {s(sRT)}, 2\ns_add_u32 {s(sT0)}, {s(sT0)}, {s(sT1)}\ns_add_u32 {s(sT0)}, {s(sT0)}, {WS_KVF}")
    P(f"v_mov_b32 {v(VFV)}, 1")
    P(f"buffer_store_dword {v(VFV)}, {v(VZ)}, {s(SWS,4)}, {s(sT0)} offen sc1")
    P.cond_end()
    P("L_nkf:")
def kvpoll():
    P(f"s_cmp_eq_u32 {s(sW)}, 7")
    P("s_cbranch_scc0 L_nkp")
    n0 = len(P.ins)
    P(f"s_lshl_b32 {s(sT2)}, {s(sG)}, 8\ns_add_u32 {s(sT2)}, {s(sT2)}, {WS_KVF}\ns_mov_b32 {s(sCNT)}, 0")
    P("s_branch L_spkv1")
    P("L_spkv:")
    P(f"s_buffer_load_dwordx16 s[20:35], {s(SWS,4)}, {s(sT2)} glc")
    P("L_spkv1:")
    P(f"s_add_u32 {s(sCNT)}, {s(sCNT)}, 1")
    P("s_waitcnt lgkmcnt(0)")
    for i in range(22, 36, 2): P(f"s_and_b64 s[20:21], s[20:21], s[{i}:{i+1}]")
    P("s_and_b32 s20, s20, s21")
    P("s_cbranch_scc1 L_nkp")
    P(f"s_cmp_gt_u32 {s(sCNT)}, {SPIN_MAX}")
    P("s_cbranch_scc1 L_nkp")
    P("s_sleep 1")
    P("s_branch L_spkv")
    for I in P.ins[n0:]:
        I.cond = "kvp"
        if I.kind == "smem": I.kind = "opaque"
    P("L_nkp:")
def kvreq():
    P(f"s_cmp_eq_u32 {s(sW)}, 7")
    P("s_cbranch_scc0 L_nkr")
    n0 = len(P.ins)
    P(f"s_lshl_b32 {s(sT2)}, {s(sG)}, 8\ns_add_u32 {s(sT2)}, {s(sT2)}, {WS_KVF}")
    P(f"s_buffer_load_dwordx16 s[20:35], {s(SWS,4)}, {s(sT2)} glc")
    for I in P.ins[n0:]:
        I.cond = "kvp"
        if I.kind == "smem": I.kind = "opaque"
    P("L_nkr:")
S.blk[87] = kvreq; S.blk[94] = kvpoll
S.post[94] += [f"ds_read_b128 {v(CSR,4)}, {v(VCSA)} offset:2048"] + phi_load(1, T + 8)
run_sched(S, [ACC0, ACC1, ACC2])
stamp("sub2")
PQ = WF
def Gq(r): return XF + 8 * r
Z = XF + 80; GA = XF + 64
VG, VGZ = S1, S2
P(f"s_mul_i32 {s(sT2)}, {s(sG)}, {16*KVP_SZ}\ns_lshr_b32 {s(sT0)}, {s(sW)}, 1\ns_mul_i32 {s(sT0)}, {s(sT0)}, 1152\ns_add_u32 {s(sT2)}, {s(sT2)}, {s(sT0)}\ns_add_u32 {s(sT2)}, {s(sT2)}, {WS_KVP}")
P(f"v_and_b32 {v(VGZ)}, 15, {v(vL)}\nv_mul_u32_u24 {v(VGZ)}, {KVP_SZ}, {v(VGZ)}\nv_and_b32 {v(VG)}, 16, {v(vL)}\nv_add_u32 {v(VGZ)}, {v(VGZ)}, {v(VG)}\ns_lshl_b32 {s(sT0)}, {s(sSH)}, 4\nv_add_u32 {v(VGZ)}, {s(sT0)}, {v(VGZ)}")
P(f"v_lshrrev_b32 {v(VG)}, 5, {v(vL)}\nv_mul_u32_u24 {v(VG)}, {8*KVP_SZ - 512}, {v(VG)}\nv_add_u32 {v(VG)}, {v(VG)}, {v(VL16)}\ns_lshl_b32 {s(sT0)}, {s(sSH)}, 8\nv_add_u32 {v(VG)}, {s(sT0)}, {v(VG)}")
gl = [[f"buffer_load_dwordx4 {v(Z,4)}, {v(VGZ)}, {s(SWS,4)}, {s(sT2)} offen offset:1024 sc1"]]
for r in range(8):
    gl.append(lines(f"s_add_u32 {s(sD1)}, {s(sRT)}, {r}\ns_and_b32 {s(sD1)}, {s(sD1)}, 7\ns_mul_i32 {s(sD1)}, {s(sD1)}, {KVP_SZ}\ns_add_u32 {s(sD1)}, {s(sD1)}, {s(sT2)}") +
              [f"buffer_load_dwordx4 {v(Gq(r),4)}, {v(VG)}, {s(SWS,4)}, {s(sD1)} offen sc1"])
P.add(aug(ACC2, CSR, None))
bd = sum([b_dma(kk) for kk in (5, 6, 7)], [])
GD = int(OPT.get("gd", 2))
for g_ in bd[:GD]: P.add(g_)
for i in range(8): P(f"v_cvt_pk_bf16_f32 {v(T+i)}, {v(ACC2+2*i)}, {v(ACC2+2*i+1)}")
P(mfma(ACC1, AX, T, "0"))
P(mfma(ACC2, T + 8, T + 4, "0"))
P.add(interleave(gl, softmax(ACC1, PQ, LS)))
stamp("qsm")
P(spoll(0))
P.add(interleave(bd[GD:], softmax(ACC2, PQ + 8, LS)))
stamp("sm2")
sneed(1, 0)
validate([Z + i for i in range(4)] + [Gq(r) + i for r in range(8) for i in range(4)], T + 16, sum(gl, []))
stamp("kvseen")
aj = sum([a_jobs(kk) for kk in range(4)], [])
n_o0 = len(P.ins)
P(f"v_lshrrev_b32 {v(T+1)}, 5, {v(vL)}")
P(f"v_bfe_u32 {v(T+2)}, {v(vL)}, 4, 1\nv_lshlrev_b32 {v(T+2)}, 9, {v(T+2)}\nv_lshl_add_u32 {v(T+2)}, {v(T+1)}, 3, {v(T+2)}")
P(f"s_lshl_b32 {s(sT0)}, {s(sW)}, 10\ns_add_u32 {s(sT0)}, {s(sT0)}, {L_KVB}\nv_add_u32 {v(T+2)}, {s(sT0)}, {v(T+2)}")
P(f"v_and_b32 {v(T+3)}, 15, {v(vL)}\nv_lshl_add_u32 {v(T+3)}, {v(T+3)}, 4, {v(T+2)}")
P(f"v_cmp_gt_u32 vcc, 32, {v(vL)}\ns_mov_b32 {s(sT0)}, 0x3f80\ns_mov_b32 {s(sT1)}, 0x3f800000")
P(f"v_cndmask_b32 {v(Z)}, {v(Z+2)}, {v(Z)}, vcc\nv_cndmask_b32 {v(Z+1)}, {v(Z+3)}, {v(Z+1)}, vcc")
P(f"v_lshlrev_b32 {v(Z+8)}, 16, {v(Z)}\nv_and_b32 {v(Z+9)}, 0xffff0000, {v(Z)}\nv_lshlrev_b32 {v(Z+10)}, 16, {v(Z+1)}\nv_and_b32 {v(Z+11)}, 0xffff0000, {v(Z+1)}")
for ror in (8, 4, 2, 1):
    for i in range(4): P(f"v_add_f32_dpp {v(Z+8+i)}, {v(Z+8+i)}, {v(Z+8+i)} row_ror:{ror} row_mask:0xf bank_mask:0xf")
P(f"v_cvt_pk_bf16_f32 {v(Z)}, {v(Z+8)}, {v(Z+9)}\nv_cvt_pk_bf16_f32 {v(Z+1)}, {v(Z+10)}, {v(Z+11)}")
P(f"ds_write_b64 {v(T+2)}, {v(Z,2)} offset:256")
def ga(i): return GA + (i & 3) + 8 * (i >> 2)
for i in range(4):
    P(f"v_lshlrev_b32 {v(ga(2*i))}, 16, {v(Gq(0)+i)}\nv_and_b32 {v(ga(2*i+1))}, 0xffff0000, {v(Gq(0)+i)}")
for r in range(1, 8):
    for i in range(4):
        P(f"v_dot2c_f32_bf16 {v(ga(2*i))}, {s(sT0)}, {v(Gq(r)+i)}\nv_dot2c_f32_bf16 {v(ga(2*i+1))}, {s(sT1)}, {v(Gq(r)+i)}")
for i in range(4): P(f"v_permlane32_swap_b32 {v(ga(i))}, {v(ga(i+4))}")
for i in range(4): P(f"v_add_f32 {v(ga(i))}, {v(ga(i))}, {v(ga(i+4))}")
P(f"v_cvt_pk_bf16_f32 {v(GA)}, {v(GA)}, {v(GA+1)}\nv_cvt_pk_bf16_f32 {v(GA+1)}, {v(GA+2)}, {v(GA+3)}")
P(f"ds_write_b64 {v(T+3)}, {v(GA,2)}")
stamp("gsum")
P(f"v_and_b32 {v(T)}, 31, {v(vL)}\nv_min_u32 {v(T)}, 16, {v(T)}\nv_and_b32 {v(T+1)}, 32, {v(vL)}\nv_add_u32 {v(T)}, {v(T)}, {v(T+1)}\nv_lshlrev_b32 {v(T)}, 4, {v(T)}")
P(f"s_lshl_b32 {s(sT0)}, {s(sHALF)}, 12\ns_add_u32 {s(sT0)}, {s(sT0)}, {L_KVB}\nv_add_u32 {v(T)}, {s(sT0)}, {v(T)}")
P("s_waitcnt lgkmcnt(0)")
P("s_barrier")
for i in range(4): P(f"ds_read_b128 {v(Gq(i),4)}, {v(T)} offset:{1024*i}")
P(mfma(ACC0, Gq(0), PQ, "0")); P(mfma(ACC1, Gq(2), PQ + 8, "0"))
P(mfma(ACC0, Gq(1), PQ + 4)); P(mfma(ACC1, Gq(3), PQ + 12))
body = P.ins[n_o0:]; del P.ins[n_o0:]
for i, g_ in enumerate(aj):
    P.add(g_); P.ins += body[len(body)*i//8: len(body)*(i+1)//8]
P(spoll(0))
for hl, acc in enumerate((ACC0, ACC1)):
    P(f"v_add_f32 {v(acc+8)}, {f2u(1e-6):#x}, {v(acc+8)}\nv_rcp_f32 {v(acc+8)}, {v(acc+8)}")
    for i in range(8): P(f"v_mul_f32 {v(acc+i)}, {v(acc+i)}, {v(acc+8)}")
    for i in range(4): P(f"v_cvt_pk_bf16_f32 {v(T+4*hl+i)}, {v(acc+2*i)}, {v(acc+2*i+1)}")
    P(f"buffer_store_dwordx4 {v(T+4*hl,4)}, {v(VL16)}, {s(SWS,4)}, {s(sOS)} offen offset:{1024*hl} sc1")
stamp("p1end")
phase2(("B6", "B7"), "B8 A4 A5 B9 A6 A7 A8 B10 A9 B11 A10 B12 A11 B13 A12 B14 A13 B15 B16 B17 A14 A15 A16 A17")

P("L_ffn:")
P(".reset")
setup(True)
KAREA[:] = [RC, RA+2*Q, RA+3*Q, RB, RB+Q, RB+2*Q, RA, RA+Q, RB+3*Q]
MC = ACC2; CSF = ACC2 + 4
S = Sched(112)
common_sched(S, True, None, MC)
S.post[30] += [f"ds_read_b128 {v(CSF,4)}, {v(VCSA)}"]
pzs = [[f"s_add_u32 {s(sT2)}, {s(sH0)}, 8192", f"buffer_store_dwordx4 {v(PZ,4)}, {v(VL16)}, {s(SWS,4)}, {s(sT2)} offen sc1"],
       [f"buffer_store_dwordx4 {v(PZ,4)}, {v(VL16)}, {s(SWS,4)}, {s(sT2)} offen offset:1024 sc1"],
       [f"buffer_store_dwordx4 {v(PZ,4)}, {v(VL16)}, {s(SWS,4)}, {s(sH3)} offen sc1 ; tag=h1"]]
for g_, G in zip(pzs, [int(x) for x in OPT.get("pz", "50,57,68").split(",")]): S.post[G] += g_
S.post[31] += stamp_i("pass1")
fill = stats_final() + aug(ACC0, CSF, BIAS)
fill += [f"v_mul_f32 {v(K1)}, {f2u(GC1):#x}, {v(RSTD)}", f"v_mul_f32 {v(K2)}, {v(RSTD)}, {v(RSTD)}",
         f"v_mul_f32 {v(K2)}, {v(K2)}, {v(RSTD)}", f"v_mul_f32 {v(K2)}, {f2u(GC2):#x}, {v(K2)}"]
S.spread(fill, 32, 39)
S.spread(gelu(ACC0, 16) + hstore(sH0, 2, "h1") + [f"s_add_u32 {s(sH0)}, {s(sH0)}, 4096"], 39, 64)
S.post[62] += [f"ds_read_b128 {v(CSF,4)}, {v(VCSA)} offset:1024"]
S.post[63] += stamp_i("sub1")
S.spread(aug(ACC1, CSF, BIAS + 1), 64, 66)
S.spread(gelu(ACC1, 16) + hstore(sH0, 2, "h2") + [f"s_add_u32 {s(sH0)}, {s(sH0)}, 4096"], 67, 96)
w3 = sum([w3quarter(q, 3584) for q in range(4)], [])
for g_, G in zip(w3 + b_dma(0), [int(x) for x in OPT.get("w3", "48,54,60,72,75,76").split(",")]): S.dma[G] += g_
S.dmas(b_dma(1), 78, 2); S.dmas(b_dma(2), 82, 2); S.dmas(b_dma(3), 86, 2); S.dmas(b_dma(4), 90, 2); S.dmas(b_dma(5), 100, 2)
S.pre[94] += [".waitvm w3 lgkm0", "s_barrier"]
S.post[94] += [f"ds_read_b128 {v(CSF,4)}, {v(VCSA)} offset:2048"]
S.post[95] += stamp_i("sub2")
S.fill[96] += aug(ACC0, CSF, BIAS + 2)
S.spread(gelu(ACC0, 16), 98, 112)
S.pre[100] += ["s_barrier"]
aj = sum([a_jobs(kk) for kk in range(4)], [])
S.dmas(aj[:4], 106)
for i in range(0, 16, 2): S.post[96 + i] += [m16(MC, SEL, WF + 4 * (i & 3), "0" if i == 0 else None)]
run_sched(S, [ACC0, ACC1, ACC0, ACC1])
t = T + 16
P(f"v_and_b32 {v(t)}, 31, {v(vL)}\ns_lshl_b32 {s(sT0)}, {s(sHALF)}, 4\nv_xor_b32 {v(t)}, {s(sT0)}, {v(t)}\nv_lshlrev_b32 {v(t)}, 4, {v(t)}\nv_add_u32 {v(t)}, {L_CS+3072}, {v(t)}")
P(f"v_add_u32 {v(t+1)}, {s(sW34)}, {v(VCSA)}")
P(f"ds_write_b32 {v(t+1)}, {v(MC)} offset:3072")
P.add(aj[4])
P(f"s_add_u32 {s(sT1)}, {s(sM0x)}, {KAREA[8]}\ns_xor_b32 {s(sT0)}, {s(sT1)}, 8192\nv_add_u32 {v(t+1)}, {s(sT0)}, {v(VL16)}\nv_add_u32 {v(AB)}, {s(sT1)}, {v(VL16)}")
P(f"ds_write_b128 {v(t+1)}, {v(ACC1+8,4)}\nds_write_b128 {v(t+1)}, {v(ACC1+12,4)} offset:1024")
P("s_waitcnt lgkmcnt(0)")
P("s_barrier")
stamp("sub3")
P(f"ds_read_b128 {v(CSF,4)}, {v(t)}")
P(f"ds_read_b128 {v(ACC0,4)}, {v(AB)}\nds_read_b128 {v(ACC0+4,4)}, {v(AB)} offset:1024")
P.add(aj[5])
P.add(aug(ACC1, CSF, BIAS + 3))
P.add(aj[6] + aj[7])
for i in range(0, 8, 2): P(f"v_pk_add_f32 {v(ACC1+i,2)}, {v(ACC1+i,2)}, {v(ACC0+i,2)}")
stamp("x7")
gt = gelu(ACC1, 8, True, out=BIAS); h3 = hstore(sH0, 2, "h3")
P.add([h3[0]] + gt[:20] + [h3[1], spoll(0)] + gt[20:] + hstore(sH3, 1, "h4", BIAS))
stamp("p1end")
phase2(())

P("L_end:")
P("s_endpgm")

ins = P.ins
for I in ins:
    if "; nodef" in I.text: I.defs = []
if OPT.get("nodma"): ins = [I for I in ins if I.kind != "dma"]
if OPT.get("notr"): ins = [I for I in ins if not I.op.startswith("ds_read_b64_tr")]
if OPT.get("nofmac"): ins = [I for I in ins if not (I.op.startswith("v_fmac") or (I.op == "v_and_b32" and "0xffff0000" in I.text) or (I.op == "v_lshlrev_b32" and I.ops[1] == "16"))]
if OPT.get("nom16"): ins = [I for I in ins if "16x16x32" not in I.op]
if OPT.get("notrans"): ins = [I for I in ins if not I.op.startswith(("v_exp", "v_rcp"))]
if OPT.get("novalu"): ins = [I for I in ins if not I.op.startswith(("v_exp", "v_rcp", "v_mul_f32", "v_fma_f32", "v_cvt_pk", "v_max3", "v_add_f32"))]
if OPT.get("nost"): ins = [I for I in ins if not (I.kind == "vst" and "x4" in I.op and "tag=h" in I.text)]
if OPT.get("nomfma"): ins = [I for I in ins if I.kind != "mfma"]
if STAMP:
    for I in ins:
        if I.op in ("s_memrealtime", "s_memtime"): I.kind = "salu"
ins = auto_wait(ins)
st = []
ins = hazards(ins, st)
hdr = open("parallel_sum__linear_kernel_hedgehog__dense_activation_gelu__prompt.s.ref").read().split("; Override")[0]
out = hdr + f"; @launch grid=(256,1,1) block=(512,1,1) lds={LDS_SIZE}\n"
out += f'.amdgcn_target "amdgcn-amd-amdhsa--gfx950"\n.text\n.globl {NAME}\n.p2align 8\n.type {NAME},@function\n{NAME}:\n'
out += render(ins)
out += f""".section .rodata,"a"
.p2align 6
.amdhsa_kernel {NAME}
  .amdhsa_next_free_vgpr 256
  .amdhsa_next_free_sgpr 102
  .amdhsa_accum_offset 256
  .amdhsa_group_segment_fixed_size 0
  .amdhsa_kernarg_size 96
  .amdhsa_user_sgpr_count 2
  .amdhsa_user_sgpr_kernarg_segment_ptr 1
  .amdhsa_system_sgpr_workgroup_id_x 1
.end_amdhsa_kernel
"""
open(sys.argv[1], "w").write(out)
print(f"instrs={sum(1 for I in ins if I.kind not in ('label','dir'))} nop-sites={len(st)} nop-states={sum(n for n,_ in st)}", file=sys.stderr)
if OPT.get("nops"):
    for n, tx in st: print(n, tx, file=sys.stderr)
```

```python
import sys, math, struct
from ir import *

NAME = "parallel_sum__linear_kernel_hedgehog__dense_activation_gelu__prompt_kernel"
OPT = dict(a.split("=") for a in sys.argv[2:] if "=" in a)
STAMP = int(OPT.get("stamp", 0))

def f2u(x): return struct.unpack("<I", struct.pack("<f", x))[0]
LOG2E = 1.4426950408889634
GC1 = -2.0 * LOG2E * math.sqrt(2.0 / math.pi)
GC2 = GC1 * 0.044715

HF_RB = 144 * 1024
WS_KVP = 0xA00000
KVP_SZ = 4608
WS_FLG = 0xC00000
WS_KVF = 0xC08000
WS_STAMP = 0xD00000
WS_SIZE = 0x1000000
RA, RB, RC = 0, 65536, 131072
L_KVB = 147456
L_CS = 155648
L_ST = L_CS + 4096
L_WPHI = L_CS + 6144
LDS_SIZE = 163840
SPIN_MAX = 1 << 15

sW, sRT, sG, sM, sN = 3, 4, 5, 6, 7
SX, SW2, SWS, SWT, SAUX, SDBG, SWO, SOUT = 8, 12, 16, 20, 24, 28, 36, 40
sXo, sWo, sROT, sC1 = 32, 33, 34, 35
SB2 = 92
sFL, sOo, sM0x, sT0, sT1, sSIG, sONE, sFO, sHALF, sHo, sWq, sW3, sT2, sCNT, sW34, sT3 = range(44, 60)
sEX = 60
sH0, sH3, sM4, sK = 62, 63, 64, 65
sST = 66
sB2o, sBOo = 90, 91
sA0, sA1, sR4, sSH, sD0, sD1 = range(96, 102)
sOK = sSIG
sQ = [sXo, sWo, sROT, sC1]
sPL = 28
VCSA = 0; vL = 1
AX = 2; AW = 6; AB = 10; VZ, VFV = 12, 13
VX0, VX1, VW, VB, VW3 = 14, 15, 16, 17, 18
VSTA, S1, S2, CS0 = 19, 20, 21, 22
VW0 = 22
RSTD, STD, K1, K2, VL16 = 23, 24, 25, 26, 27
BAUG, AAUG, SEL, BIAS = 28, 32, 36, 40
T = 44
WF = 64
ACC0, ACC1, ACC2 = 80, 96, 112
XF = 128
VTD = 15
PZ = ACC2 + 8

P = Prog()
STI = dict(start=0, kernarg=1, it0=2, pass1=3, sub1=4, sub2=5, qsm=6, sub3=6, kvseen=7, x7=7, p1end=8, hseen=9, p2mm=10, end=11)
if OPT.get("sp") == "p2": STI = dict(start=0, p1end=1, k1=2, k3=3, k5=4, k7=5, k9=6, k11=7, k13=8, k15=9, p2mm=10, end=11)
if OPT.get("sp") == "att": STI = dict(start=0, sub1=1, kv0=2, kv1=3, kv2=4, sub2=5, qsm=6, kvseen=7, sm2=8, gsum=9, p1end=10, end=11)
if OPT.get("sp", "").startswith("l:"): STI = {n: i for i, n in enumerate(["start"] + OPT["sp"][2:].split(","))}
def stamp_i(name):
    if not STAMP or name not in STI: return []
    i = STI[name]
    return [f"{'s_memrealtime' if STAMP == 1 else 's_memtime'} {s(sST + 2*i, 2)} ; stamp {i} {name}"]
def stamp(name): P.add(stamp_i(name))

def mfma(d, a, b, c=None):
    return f"v_mfma_f32_32x32x16_bf16 {v(d,16)}, {v(a,4)}, {v(b,4)}, {v(d,16) if c is None else c}"
def m16(d, a, b, c=None):
    return f"v_mfma_f32_16x16x32_bf16 {v(d,4)}, {v(a,4)}, {v(b,4)}, {v(d,4) if c is None else c}"
def srd(base, nbytes):
    P(f"s_mov_b32 {s(base+2)}, {nbytes}\ns_mov_b32 {s(base+3)}, 0x20000")
def lines(t): return [l for l in t.split("\n") if l.strip()]

P("s_cmp_ge_u32 s2, 256")
P("s_cbranch_scc1 L_end")
stamp("start")
if OPT.get("exit0"): P("s_endpgm")
if OPT.get("cpf", "1") == "3":
    P(f"s_getpc_b64 {s(sEX,2)}")
    P("L_pc0:")
    P(f"v_subrev_u32 v3, 320, v0\nv_cmp_gt_u32 vcc, 16, v3\ns_lshr_b32 {s(sT0)}, s2, 3\ns_lshl_b32 {s(sT0)}, {s(sT0)}, 11")
    P("s_cbranch_vccz L_ncp0")
    P.cond_begin("cp0")
    P(f"v_and_b32 v3, 15, v3\nv_lshlrev_b32 v3, 7, v3\nv_add_u32 v3, {s(sT0)}, v3\nv_min_u32 v3, L_end-L_pc0, v3")
    P(f"global_load_dword v253, v3, {s(sEX,2)}")
    P.cond_end()
    P("L_ncp0:")
if OPT.get("cpf", "1") == "2":
    P(f"s_getpc_b64 {s(sEX,2)}")
    P("L_pc0:")
    P(f"v_lshlrev_b32 v3, 7, v0")
    P(f"v_min_u32 v3, L_end-L_pc0, v3")
    P(f"global_load_dword v253, v3, {s(sEX,2)}")
P(f"s_load_dwordx2 {s(SX,2)}, s[0:1], 0")
P(f"s_load_dwordx2 {s(SWS,2)}, s[0:1], 88")
P(f"s_load_dwordx2 {s(SDBG,2)}, s[0:1], 80")
P(f"s_load_dwordx2 {s(SW2,2)}, s[0:1], 56")
P(f"s_load_dwordx2 {s(SWO,2)}, s[0:1], 24")
P(f"s_load_dwordx2 {s(SOUT,2)}, s[0:1], 72")
P(f"s_load_dwordx2 {s(SB2,2)}, s[0:1], 64")
if OPT.get("stouch", "0") != "0":
    P(f"s_load_dwordx2 {s(sEX,2)}, s[0:1], 8")
    P(f"s_load_dwordx2 {s(sA0,2)}, s[0:1], 40")
P(f"v_lshrrev_b32 v2, 6, v0")
P(f"v_and_b32 {v(vL)}, 63, v0")
P(f"s_and_b32 {s(sT0)}, s2, 7")
P(f"s_lshr_b32 {s(sT1)}, s2, 3")
P(f"v_readfirstlane_b32 {s(sW)}, v2")
P(f"s_lshr_b32 {s(sRT)}, {s(sT0)}, 2\ns_lshl_b32 {s(sRT)}, {s(sRT)}, 3\ns_and_b32 {s(sT2)}, {s(sT1)}, 7\ns_add_u32 {s(sRT)}, {s(sRT)}, {s(sT2)}")
P(f"s_and_b32 {s(sG)}, {s(sT0)}, 3\ns_lshl_b32 {s(sG)}, {s(sG)}, 1\ns_lshr_b32 {s(sT2)}, {s(sT1)}, 4\ns_add_u32 {s(sG)}, {s(sG)}, {s(sT2)}")
P(f"s_lshl_b32 {s(sM)}, {s(sT0)}, 2\ns_and_b32 {s(sT2)}, {s(sT1)}, 3\ns_add_u32 {s(sM)}, {s(sM)}, {s(sT2)}")
P(f"s_lshr_b32 {s(sN)}, {s(sT1)}, 2")
srd(SX, 2097152)
P(f"s_lshl_b32 {s(sM0x)}, {s(sW)}, 11")
P(f"v_lshrrev_b32 v2, 3, {v(vL)}\nv_and_b32 v3, 7, {v(vL)}\nv_lshrrev_b32 v4, 4, {v(vL)}")
P(f"v_xor_b32 v5, v3, v4\nv_lshlrev_b32 v5, 4, v5\nv_lshl_add_u32 {v(VX0)}, v2, 10, v5")
P(f"v_xor_b32 v5, 64, {v(VX0)}\nv_add_u32 {v(VX1)}, {8192-1024}, v5")
P(f"v_and_b32 v4, 1, v4\nv_lshlrev_b32 v4, 2, v4\nv_xor_b32 v4, v3, v4\nv_lshlrev_b32 v4, 4, v4")
P(f"v_lshl_add_u32 {v(VB)}, v2, 10, v4")
P(f"s_lshl_b32 {s(sXo)}, {s(sRT)}, 17\ns_lshl_b32 {s(sT2)}, {s(sW)}, 14\ns_add_u32 {s(sXo)}, {s(sXo)}, {s(sT2)}")
P(f"s_lshr_b32 {s(sT2)}, {s(sT1)}, 3\ns_lshl_b32 {s(sT2)}, {s(sT2)}, 1\ns_add_u32 {s(sROT)}, {s(sRT)}, {s(sT2)}\ns_and_b32 {s(sROT)}, {s(sROT)}, {OPT.get('rm', 7)}")
if OPT.get("norot"): P(f"s_mov_b32 {s(sROT)}, 0")
P(f"s_lshl_b32 {s(sK)}, {s(sROT)}, 7")
P(f"v_add_u32 {v(VX0)}, {s(sXo)}, {v(VX0)}\nv_add_u32 {v(VX1)}, {s(sXo)}, {v(VX1)}")
P(f"s_lshr_b32 {s(sD0)}, {s(sM0x)}, 1")
P(f"s_bitcmp1_b32 {s(sT1)}, 3")
P("s_cbranch_scc1 L_ffn")

def item1(it, pitch):
    q = it & 3
    return [[f"s_add_u32 m0, {s(sM0x)}, {RA+q*16384}", f"s_mul_i32 {s(sD1)}, {s(sK)}, {pitch//2}",
             f"buffer_load_dwordx4 {v(VX0)}, {s(SX,4)}, {s(sK)} offen lds"],
            [f"buffer_load_dwordx4 {v(VX1)}, {s(SX,4)}, {s(sK)} offen offset:1024 lds"],
            [f"s_add_u32 m0, {s(sD0)}, {RB+it*8192}", f"s_add_u32 {s(sK)}, {s(sK)}, 128",
             f"buffer_load_dwordx4 {v(VW0)}, {s(SWT,4)}, {s(sD1)} offen lds ; tag=it{it}",
             f"s_and_b32 {s(sK)}, {s(sK)}, 1023"]]
def wquarter(region, q, coloff, pitch, tag):
    return [[f"s_add_u32 m0, {s(sM0x)}, {region+q*16384}", f"s_add_u32 {s(sD1)}, {s(sQ[q])}, {coloff}",
             f"buffer_load_dwordx4 {v(VW)}, {s(SWT,4)}, {s(sD1)} offen lds"],
            [f"s_add_u32 {s(sD1)}, {s(sD1)}, {8*pitch-1024}",
             f"buffer_load_dwordx4 {v(VW)}, {s(SWT,4)}, {s(sD1)} offen offset:1024 lds ; tag={tag}"]]
def w3quarter(q, pitch):
    return [[f"s_lshr_b32 {s(sD1)}, {s(sM0x)}, 1", f"s_add_u32 m0, {s(sD1)}, {RA+q*8192}", "s_nop 0",
             f"buffer_load_dwordx4 {v(VW3)}, {s(SWT,4)}, {s(sQ[q])} offen lds ; tag=w3"]]

def spin(label, load, cmp):
    P(f"s_mov_b32 {s(sCNT)}, 0")
    P(f"{label}:")
    P(cmp)
    P(f"s_add_u32 {s(sCNT)}, {s(sCNT)}, 1")
    P(f"s_cbranch_vccz {label}_ok")
    P(f"s_cmp_gt_u32 {s(sCNT)}, {SPIN_MAX}")
    P(f"s_cbranch_scc1 {label}_ok")
    P("s_sleep 1")
    old = P._cond; P._cond = label
    P(load)
    P("s_waitcnt vmcnt(0)")
    P._cond = old
    P(f"s_branch {label}")
    P(f"{label}_ok:")

def gelu(acc, n, pk=False, t0=T, out=T):
    L = []
    for g4 in range(0, n, 4):
        t = t0 + 8 + (g4 & 4)
        a = [acc + g4 + i for i in range(4)]
        if pk:
            L += [f"v_pk_mul_f32 {v(t+i,2)}, {v(a[i],2)}, {v(a[i],2)}" for i in (0, 2)]
            L += [f"v_pk_fma_f32 {v(t+i,2)}, {v(t+i,2)}, {v(K2,2)}, {v(STD,2)} op_sel:[0,0,1] op_sel_hi:[1,0,1]" for i in (0, 2)]
            L += [f"v_pk_mul_f32 {v(t+i,2)}, {v(a[i],2)}, {v(t+i,2)}" for i in (0, 2)]
        else:
            L += [f"v_mul_f32 {v(t+i)}, {v(a[i])}, {v(a[i])}" for i in range(4)]
            L += [f"v_fma_f32 {v(t+i)}, {v(t+i)}, {v(K2)}, {v(K1)}" for i in range(4)]
            L += [f"v_mul_f32 {v(t+i)}, {v(a[i])}, {v(t+i)}" for i in range(4)]
        L += [f"v_exp_f32 {v(t+i)}, {v(t+i)}" for i in range(4)]
        if pk: L += [f"v_pk_fma_f32 {v(t+i,2)}, {v(t+i,2)}, {v(STD,2)}, {v(STD,2)} op_sel_hi:[1,0,0]" for i in (0, 2)]
        else: L += [f"v_fma_f32 {v(t+i)}, {v(t+i)}, {v(STD)}, {v(STD)}" for i in range(4)]
        L += [f"v_rcp_f32 {v(t+i)}, {v(t+i)}" for i in range(4)]
        if pk: L += [f"v_pk_mul_f32 {v(t+i,2)}, {v(a[i],2)}, {v(t+i,2)}" for i in (0, 2)]
        else: L += [f"v_mul_f32 {v(t+i)}, {v(a[i])}, {v(t+i)}" for i in range(4)]
        pr = out + (g4 >> 1)
        L += [f"v_cvt_pk_bf16_f32 {v(pr)}, {v(t)}, {v(t+1)}", f"v_cvt_pk_bf16_f32 {v(pr+1)}, {v(t+2)}, {v(t+3)}"]
    return L
def hstore(soff, n, tagn, src=T):
    return [f"buffer_store_dwordx4 {v(src+4*j,4)}, {v(VL16)}, {s(SWS,4)}, {s(soff)} offen offset:{1024*j} sc1 ; tag={tagn}" for j in range(n)]
assert K1 == STD + 1

def sum4(d, r):
    return [f"v_add_f32 {v(d)}, {v(r)}, {v(r+1)}", f"v_add_f32 {v(r+2)}, {v(r+2)}, {v(r+3)}", f"v_add_f32 {v(d)}, {v(d)}, {v(r+2)}"]

MS, U = T + 4, T + 16
CSR = T + 12
MC = AAUG

def stats_final():
    t = T + 16
    return [f"v_add_f32 {v(S1)}, {v(MS)}, {v(MS+2)}", f"v_add_f32 {v(S2)}, {v(MS+1)}, {v(MS+3)}",
          f"v_mul_f32 {v(S1)}, {f2u(-1.0/512):#x}, {v(S1)}",
          f"v_mul_f32 {v(t)}, {v(S1)}, {v(S1)}",
          f"v_fma_f32 {v(S2)}, {v(S2)}, {s(sT3)}, -{v(t)}",
          f"v_max_f32 {v(S2)}, 0, {v(S2)}",
          f"v_add_f32 {v(S2)}, {f2u(1e-5):#x}, {v(S2)}",
          f"v_rsq_f32 {v(RSTD)}, {v(S2)}",
          f"v_cvt_pk_bf16_f32 {v(t)}, {v(S1)}, {v(S1)}",
          f"v_mul_f32 {v(STD)}, {v(S2)}, {v(RSTD)}",
          f"v_and_b32 {v(t+1)}, 0xffff0000, {v(t)}",
          f"v_sub_f32 {v(t+1)}, {v(S1)}, {v(t+1)}",
          f"v_cvt_pk_bf16_f32 {v(BAUG)}, {v(S1)}, {v(t+1)}",
          f"v_cvt_pk_bf16_f32 {v(BAUG+1)}, {v(S1)}, {v(STD)}",
          f"v_and_b32 {v(t+1)}, 0xffff0000, {v(BAUG+1)}",
          f"v_sub_f32 {v(t+1)}, {v(STD)}, {v(t+1)}",
          f"v_cmp_gt_u32 vcc, 32, {v(vL)}",
          f"v_cvt_pk_bf16_f32 {v(BAUG+2)}, {v(t+1)}, 0",
          f"v_cndmask_b32 {v(BAUG)}, 0, {v(BAUG)}, vcc",
          f"v_cndmask_b32 {v(BAUG+1)}, 0, {v(BAUG+1)}, vcc",
          f"v_cndmask_b32 {v(BAUG+2)}, 0, {v(BAUG+2)}, vcc"]

def aug(acc, part, bias):
    t = T + 18; dst = AAUG
    L = sum4(CS0, part) + [f"v_cvt_pk_bf16_f32 {v(dst)}, {v(CS0)}, {v(CS0)}",
         f"v_and_b32 {v(t)}, 0xffff0000, {v(dst)}",
         f"v_sub_f32 {v(t)}, {v(CS0)}, {v(t)}"]
    if bias is None:
        L += [f"v_cvt_pk_bf16_f32 {v(dst+1)}, {v(t)}, 0"]
    else:
        L += [f"v_cvt_pk_bf16_f32 {v(t)}, {v(t)}, 0", f"v_mov_b32 {v(dst+2)}, {v(bias)}",
              f"v_lshl_or_b32 {v(dst+1)}, {v(bias)}, 16, {v(t)}"]
    return L + [mfma(acc, dst, BAUG)]

def flag(level, tag):
    return [f".waitvm {tag}", f"v_mov_b32 {v(VFV)}, {level}",
            f"buffer_store_dword {v(VFV)}, {v(VZ)}, {s(SWS,4)}, {s(sFO)} offen sc1"]

Q = 16384
KAREA = []
def rot_k(kk, dst):
    if kk < 12: return [f"s_add_u32 {s(dst)}, {s(sR4)}, {kk}", f"s_and_b32 {s(dst)}, {s(dst)}, 3", f"s_add_u32 {s(dst)}, {s(dst)}, {s(sSH)}"] + \
                       ([f"s_add_u32 {s(dst)}, {s(dst)}, {kk & ~3}"] if kk & ~3 else [])
    if kk < 14: return [f"s_mul_i32 {s(dst)}, {s(sSH)}, 6", f"s_sub_u32 {s(dst)}, {kk}, {s(dst)}"]
    return [f"s_add_u32 {s(dst)}, {s(sR4)}, {kk-14}", f"s_and_b32 {s(dst)}, {s(dst)}, 3"]
def b_dma(kk):
    slot = kk % 9
    m0 = f"s_add_u32 m0, {s(sM0x)}, {KAREA[slot]}"
    sr, so = (SW2, sB2o) if kk < 14 else (SWO, sBOo)
    return [rot_k(kk, sD0) + [f"s_lshl_b32 {s(sD0)}, {s(sD0)}, 14", m0, f"s_add_u32 {s(sD0)}, {s(sD0)}, {s(so)}",
             f"buffer_load_dwordx4 {v(VB)}, {s(sr,4)}, {s(sD0)} offen lds"],
            [f"s_add_u32 {s(sD0)}, {s(sD0)}, {8192 - 1024}",
             f"buffer_load_dwordx4 {v(VB)}, {s(sr,4)}, {s(sD0)} offen offset:1024 lds ; tag=b{kk}"]]

def setup(ffn):
    pitch = 3584 if ffn else 3072
    tp = "f" if ffn else "a"
    P(f"s_load_dwordx2 {s(SWT,2)}, s[0:1], {40 if ffn else 8}")
    P(f"s_load_dwordx2 {s(SAUX,2)}, s[0:1], {48 if ffn else 16}")
    srd(SWT, 1835008 if ffn else 1572864)
    P(f"v_mul_u32_u24 {v(VW)}, {pitch}, v2\nv_add_u32 {v(VW)}, {v(VW)}, v4")
    if ffn:
        P(f"s_mul_i32 {s(sT0)}, {s(sG)}, 448\ns_and_b32 {s(sT1)}, {s(sG)}, 1\ns_lshl_b32 {s(sT2)}, {s(sT1)}, 6\ns_add_u32 {s(sWq)}, {s(sT0)}, {s(sT2)}")
        P(f"s_mul_i32 {s(sWo)}, {s(sW)}, {8*pitch}\ns_add_u32 {s(sWo)}, {s(sWo)}, {s(sWq)}")
    else:
        P(f"s_lshl_b32 {s(sWq)}, {s(sG)}, 7")
        P(f"s_mul_i32 {s(sWo)}, {s(sW)}, {8*pitch}\ns_add_u32 {s(sWo)}, {s(sWo)}, {s(sWq)}\ns_add_u32 {s(sWo)}, {s(sWo)}, 1024")
    P(f"v_add_u32 {v(VW0)}, {s(sWo)}, {v(VW)}")
    P("s_waitcnt lgkmcnt(0)")
    stamp("kernarg")
    for g_ in item1(0, pitch): P.add(g_)
    srd(SWS, WS_SIZE); srd(SDBG, 256); srd(SW2, 1835008); srd(SWO, 524288); srd(SOUT, 2097152); srd(SB2, 1024); srd(SAUX, 3584 if ffn else 16384)
    P(f"v_lshlrev_b32 {v(VL16)}, 4, {v(vL)}")
    P(f"s_lshr_b32 {s(sHALF)}, {s(sW)}, 2")
    P(f"s_and_b32 {s(sW34)}, {s(sW)}, 3\ns_xor_b32 {s(sSIG)}, {s(sW34)}, {s(sHALF)}")
    if not ffn:
        for i in range(4): P(f"v_mov_b32 {v(T+i)}, 0")
        P(f"s_lshl_b32 {s(sT0)}, {s(sW)}, 8\ns_add_u32 {s(sT0)}, {s(sT0)}, s2\ns_sub_u32 {s(sT0)}, {s(sT0)}, 256\ns_cmp_lt_u32 {s(sT0)}, 8")
        P(f"s_cbranch_scc0 L_nzero")
        P.cond_begin("zw")
        P(f"s_lshl_b32 {s(sT0)}, s2, 12\ns_add_u32 {s(sT0)}, {s(sT0)}, {WS_FLG}")
        for i in range(4): P(f"buffer_store_dwordx4 {v(T,4)}, {v(VL16)}, {s(SWS,4)}, {s(sT0)} offen offset:{1024*i} sc1")
        P(f"s_lshl_b32 {s(sT0)}, s2, 8\ns_add_u32 {s(sT0)}, {s(sT0)}, {WS_KVF}\nv_lshlrev_b32 v3, 2, {v(vL)}")
        P(f"buffer_store_dword {v(T)}, v3, {s(SWS,4)}, {s(sT0)} offen sc1 ; tag=zf")
        P.cond_end()
        P(f"L_nzero:")
    if OPT.get("touch", "1") == "1":
        P(f"s_cmp_lt_u32 {s(sW)}, 6")
        P(f"s_cbranch_scc1 L_nt{tp}")
        P.cond_begin("w67")
        P(f"v_lshlrev_b32 v3, 7, {v(vL)}\ns_mul_i32 {s(sT0)}, s2, 7168\ns_lshl_b32 {s(sT1)}, s2, 11")
        P(f"s_cmp_eq_u32 {s(sW)}, 6\ns_cbranch_scc0 L_nta{tp}")
        P(f"buffer_load_dword v255, v3, {s(SW2,4)}, {s(sT0)} offen")
        P(f"s_branch L_nt{tp}")
        P(f"L_nta{tp}:")
        P(f"v_and_b32 v3, 2047, v3")
        P(f"buffer_load_dword v255, v3, {s(SWO,4)}, {s(sT1)} offen")
        P(f"buffer_load_dword v254, v3, {s(SB2,4)}, 0 offen")
        P.cond_end()
        P(f"L_nt{tp}:")
    def wtouch():
        P(f"s_sub_u32 {s(sT0)}, {s(sW)}, 2\ns_cmp_lt_u32 {s(sT0)}, {3 if ffn else 2}")
        P(f"s_cbranch_scc0 L_nw{tp}")
        P.cond_begin("w234")
        P(f"v_mul_u32_u24 v3, {pitch}, {v(vL)}\ns_mul_i32 {s(sT1)}, {s(sROT)}, {64*pitch}\ns_add_u32 {s(sT1)}, {s(sT1)}, {s(sWq)}")
        if ffn:
            P(f"s_lshl_b32 {s(sT2)}, {s(sT0)}, 7\ns_add_u32 {s(sT1)}, {s(sT1)}, {s(sT2)}\ns_add_u32 {s(sT1)}, {s(sT1)}, 128")
            P(f"s_lshr_b32 {s(sT0)}, {s(sT0)}, 1\ns_and_b32 {s(sT0)}, {s(sT0)}, {s(sG)}\ns_mul_i32 {s(sT0)}, {s(sT0)}, 448\ns_sub_u32 {s(sT1)}, {s(sT1)}, {s(sT0)}")
        else:
            P(f"s_xor_b32 {s(sT0)}, {s(sT0)}, 1\ns_lshl_b32 {s(sT0)}, {s(sT0)}, 11\ns_add_u32 {s(sT1)}, {s(sT1)}, {s(sT0)}")
        P(f"buffer_load_dword v250, v3, {s(SWT,4)}, {s(sT1)} offen")
        P.cond_end()
        P(f"L_nw{tp}:")
    if OPT.get("wt", "0") == "1": wtouch()
    if OPT.get("cpf", "1") == "1":
        P(f"s_cmp_eq_u32 {s(sW)}, 5")
        P(f"s_cbranch_scc0 L_ncp{tp}")
        P.cond_begin("w5")
        P(f"s_getpc_b64 {s(sEX,2)}")
        P(f"L_pc{tp}:")
        P(f"s_sub_u32 {s(sEX)}, {s(sEX)}, L_pc{tp}-{NAME}\ns_subb_u32 {s(sEX+1)}, {s(sEX+1)}, 0")
        P(f"s_lshr_b32 {s(sT0)}, s2, 3\ns_lshl_b32 {s(sT0)}, {s(sT0)}, 11\nv_and_b32 v3, 15, {v(vL)}\nv_lshlrev_b32 v3, 7, v3\nv_add_u32 v3, {s(sT0)}, v3")
        P(f"v_min_u32 v3, L_end-{NAME}, v3")
        P(f"global_load_dword v253, v3, {s(sEX,2)}")
        P.cond_end()
        P(f"L_ncp{tp}:")
    if OPT.get("pt"):
        P(f"s_cmp_eq_u32 {s(sW)}, 4")
        P(f"s_cbranch_scc0 L_npt{tp}")
        n0 = len(P.ins)
        P(f"v_lshlrev_b32 v3, 21, {v(vL)}")
        P(f"buffer_load_dword v252, v3, {s(SWS,4)}, 0 offen")
        P(f"buffer_load_dword v251, v3, {s(SOUT,4)}, 0 offen")
        for I in P.ins[n0:]: I.cond = "w4"
        P(f"L_npt{tp}:")
    def stouch():
        n0 = len(P.ins)
        P(f"s_lshl_b32 {s(sT0)}, s2, 3\ns_add_u32 {s(sT0)}, {s(sT0)}, {s(sW)}\ns_mul_i32 {s(sT1)}, {s(sT0)}, 768\ns_mul_i32 {s(sT0)}, {s(sT0)}, 896")
        for i in range(6): P(f"s_load_dword {s(sCNT)}, {s(sEX,2)}, {s(sT1)} offset:{128*i}")
        for i in range(7): P(f"s_load_dword {s(sCNT)}, {s(sA0,2)}, {s(sT0)} offset:{128*i}")
    if OPT.get("stouch", "0") == "1": stouch()
    late1 = OPT.get("late1", "1") == "1"
    if not late1:
        for g_ in item1(1, pitch): P.add(g_)
    P(f"s_lshl_b32 {s(sT0)}, {s(sRT)}, 4\ns_add_u32 {s(sT0)}, {s(sT0)}, {s(sG)}\ns_lshl_b32 {s(sT0)}, {s(sT0)}, 7")
    P(f"s_and_b32 {s(sT1)}, {s(sW)}, 2\ns_lshl_b32 {s(sT1)}, {s(sT1)}, 3\ns_add_u32 {s(sT0)}, {s(sT0)}, {s(sT1)}\ns_and_b32 {s(sT1)}, {s(sW)}, 1\ns_lshl_b32 {s(sT1)}, {s(sT1)}, 2\ns_add_u32 {s(sT0)}, {s(sT0)}, {s(sT1)}\ns_lshl_b32 {s(sT1)}, {s(sHALF)}, 3\ns_add_u32 {s(sT0)}, {s(sT0)}, {s(sT1)}")
    P(f"s_add_u32 {s(sFO)}, {s(sT0)}, {WS_FLG + (1024 if ffn else 0)}")
    P(f"s_lshl_b32 {s(sT0)}, {s(sRT)}, 2\ns_add_u32 {s(sT0)}, {s(sT0)}, {s(sW34)}\ns_mul_i32 {s(sHo)}, {s(sT0)}, {HF_RB}")
    if ffn:
        P(f"v_and_b32 v5, 31, {v(vL)}\nv_lshlrev_b32 v5, 1, v5")
        P(f"s_lshl_b32 {s(sT0)}, {s(sHALF)}, 6\ns_add_u32 {s(sT0)}, {s(sT0)}, {s(sWq)}")
        for i in range(3): P(f"buffer_load_ushort {v(BIAS+i)}, v5, {s(SAUX,4)}, {s(sT0)} offen offset:{128*i}")
        P(f"s_lshl_b32 {s(sT0)}, {s(sT0)}, 5\ns_add_u32 {s(sH0)}, {s(sHo)}, {s(sT0)}")
        P(f"s_mul_i32 {s(sW3)}, {s(sG)}, 448\ns_add_u32 {s(sT0)}, {s(sW3)}, 384\ns_bitcmp1_b32 {s(sG)}, 0\ns_cselect_b32 {s(sW3)}, {s(sW3)}, {s(sT0)}")
        P(f"s_lshl_b32 {s(sT0)}, {s(sHALF)}, 5\nv_xor_b32 v5, {s(sT0)}, v5")
        P(f"buffer_load_ushort {v(BIAS+3)}, v5, {s(SAUX,4)}, {s(sW3)} offen")
        P(f"s_add_u32 {s(sT0)}, {s(sT0)}, {s(sW3)}\ns_lshl_b32 {s(sT0)}, {s(sT0)}, 5\ns_add_u32 {s(sH3)}, {s(sHo)}, {s(sT0)}")
        P(f"v_lshrrev_b32 v2, 2, {v(vL)}\nv_and_b32 v4, 3, {v(vL)}\nv_lshlrev_b32 v4, 4, v4\nv_mul_u32_u24 {v(VW3)}, {pitch}, v2\nv_add_u32 {v(VW3)}, {v(VW3)}, v4")
    else:
        P(f"s_cmp_lt_u32 {s(sW)}, 2")
        P(f"s_cbranch_scc0 L_nphi")
        P.cond_begin("w01")
        P(f"s_lshl_b32 {s(sT0)}, {s(sG)}, 11\ns_lshl_b32 {s(sT1)}, {s(sW)}, 10\ns_add_u32 {s(sT0)}, {s(sT0)}, {s(sT1)}\ns_add_u32 m0, {s(sT1)}, {L_WPHI}\ns_nop 0")
        P(f"buffer_load_dwordx4 {v(VL16)}, {s(SAUX,4)}, {s(sT0)} offen lds")
        P.cond_end()
        P("L_nphi:")
    P(f"s_mul_i32 {s(sT0)}, {s(sW34)}, {16*pitch}\ns_add_u32 {s(sWq)}, {s(sWq)}, {s(sT0)}")
    P(f"v_add_u32 {v(VW)}, {s(sWq)}, {v(VW)}")
    if ffn: P(f"s_add_u32 {s(sW3)}, {s(sW3)}, {s(sT0)}\nv_add_u32 {v(VW3)}, {s(sW3)}, {v(VW3)}")
    P(f"s_add_u32 {s(sT0)}, {s(sROT)}, {s(sHALF)}")
    for q in range(4):
        P(f"s_add_u32 {s(sT1)}, {s(sT0)}, {2*q}\ns_and_b32 {s(sT1)}, {s(sT1)}, 7\ns_mul_i32 {s(sQ[q])}, {s(sT1)}, {64*pitch}")
    P(f"s_mov_b32 {s(sT3)}, {f2u(1.0/512):#x}\ns_mov_b32 {s(sONE)}, 0x3f803f80")
    P(f"v_bfe_u32 {v(T)}, {v(vL)}, 2, 2\nv_lshrrev_b32 {v(T+1)}, 5, {v(vL)}")
    P(f"v_bfe_u32 {v(T+2)}, {v(vL)}, 4, 1\nv_lshlrev_b32 {v(T+2)}, 5, {v(T+2)}\nv_and_b32 {v(T+3)}, 3, {v(vL)}\nv_lshl_add_u32 {v(T+2)}, {v(T+3)}, 3, {v(T+2)}")
    P(f"v_and_b32 {v(T+4)}, 31, {v(vL)}\nv_bfe_u32 {v(T+5)}, {v(vL)}, 1, 3\nv_xor_b32 {v(T+5)}, {v(T+5)}, {v(T+1)}")
    P(f"s_lshl_b32 {s(sT0)}, {s(sW34)}, 12\nv_lshlrev_b32 {v(T+8)}, 7, {v(T+4)}\nv_add_u32 {v(T+8)}, {s(sT0)}, {v(T+8)}")
    P(f"v_lshl_add_u32 {v(T+9)}, {v(T+1)}, 3, {v(T)}\nv_lshl_add_u32 {v(T+10)}, {v(T+9)}, 7, {v(T+2)}\nv_lshrrev_b32 {v(T+7)}, 1, {v(T)}\nv_xor_b32 {v(T+7)}, {s(sHALF)}, {v(T+7)}\nv_lshl_add_u32 {v(T+10)}, {v(T+7)}, 6, {v(T+10)}")
    for p in range(4):
        P(f"s_xor_b32 {s(sT0)}, {s(sSIG)}, {p}\ns_lshl_b32 {s(sT1)}, {s(sT0)}, 1\nv_xor_b32 {v(T+6)}, {s(sT1)}, {v(T+5)}\nv_lshl_add_u32 {v(AX+p)}, {v(T+6)}, 4, {v(T+8)}")
        P(f"s_lshl_b32 {s(sT1)}, {s(sT0)}, 11\ns_add_u32 {s(sT1)}, {s(sT1)}, {RB}\nv_add_u32 {v(AW+p)}, {s(sT1)}, {v(T+10)}")
    if ffn:
        P(f"s_lshl_b32 {s(sT0)}, {s(sHALF)}, 5\nv_xor_b32 {v(T+7)}, {s(sT0)}, {v(T+2)}\nv_lshl_add_u32 {v(T+7)}, {v(T+9)}, 6, {v(T+7)}")
        for i, p in enumerate((0, 2)):
            P(f"s_xor_b32 {s(sT0)}, {s(sSIG)}, {p}\ns_lshl_b32 {s(sT0)}, {s(sT0)}, 10\nv_add_u32 {v(AB+i)}, {s(sT0)}, {v(T+7)}")
    P(f"v_lshlrev_b32 {v(T+4)}, 4, {v(T+4)}")
    P(f"s_lshl_b32 {s(sT0)}, {s(sHALF)}, 9\ns_add_u32 {s(sT0)}, {s(sT0)}, {L_CS}\nv_add_u32 {v(VCSA)}, {s(sT0)}, {v(T+4)}")
    P(f"s_lshl_b32 {s(sT0)}, {s(sW34)}, 9\ns_add_u32 {s(sT0)}, {s(sT0)}, {L_ST}\nv_add_u32 {v(VSTA)}, {s(sT0)}, {v(T+4)}")
    P(f"v_lshrrev_b32 {v(T+4)}, 2, {v(vL)}\nv_xor_b32 {v(T+4)}, {v(T+4)}, {v(vL)}\nv_and_b32 {v(T+4)}, 4, {v(T+4)}\nv_cmp_eq_u32 vcc, 0, {v(T+4)}\nv_mov_b32 {v(T+4)}, {s(sONE)}")
    for i in range(4): P(f"v_mov_b32 {v(PZ+i)}, -1")
    for r in (VZ, BAUG+3, AAUG+2, AAUG+3): P(f"v_mov_b32 {v(r)}, 0")
    for i in range(4): P(f"v_cndmask_b32 {v(SEL+i)}, 0, {v(T+4)}, vcc")
    P(f"s_lshl_b32 {s(sW34)}, {s(sW34)}, 2")
    if late1:
        for g_ in item1(1, pitch): P.add(g_)
    if OPT.get("stouch", "0") == "2": stouch()
    P(f"s_lshl_b32 {s(sT0)}, {s(sN)}, 7\ns_mul_i32 {s(sB2o)}, {s(sW)}, {224*1024}\ns_add_u32 {s(sB2o)}, {s(sB2o)}, {s(sT0)}")
    P(f"s_lshl_b32 {s(sBOo)}, {s(sW)}, 16\ns_add_u32 {s(sBOo)}, {s(sBOo)}, {s(sT0)}\ns_lshl_b32 {s(sM4)}, {s(sW)}, 12")
    P(f"s_lshl_b32 {s(sOo)}, {s(sM)}, 16\ns_lshl_b32 {s(sT1)}, {s(sW)}, 13\ns_add_u32 {s(sOo)}, {s(sOo)}, {s(sT1)}\ns_add_u32 {s(sOo)}, {s(sOo)}, {s(sT0)}")
    P(f"s_add_u32 {s(sR4)}, {s(sM)}, {s(sN)}\ns_and_b32 {s(sR4)}, {s(sR4)}, {0 if OPT.get('norot') else 3}\ns_and_b32 {s(sSH)}, {s(sW)}, 1\ns_lshl_b32 {s(sSH)}, {s(sSH)}, 1")
    P(f"s_lshr_b32 {s(sT0)}, {s(sM)}, 1\ns_lshl_b32 {s(sT0)}, {s(sT0)}, 4\ns_add_u32 {s(sT0)}, {s(sT0)}, {s(sW)}\ns_lshl_b32 {s(sT0)}, {s(sT0)}, 7")
    P(f"s_and_b32 {s(sT1)}, {s(sM)}, 1\ns_lshl_b32 {s(sT1)}, {s(sT1)}, 4\ns_add_u32 {s(sT0)}, {s(sT0)}, {s(sT1)}\ns_add_u32 {s(sFL)}, {s(sT0)}, {WS_FLG}")
    P(f"s_mul_i32 {s(sA0)}, {s(sM)}, {2*HF_RB}\ns_mul_i32 {s(sT0)}, {s(sW)}, {14*1024}\ns_add_u32 {s(sA1)}, {s(sA0)}, {s(sM4)}\ns_add_u32 {s(sA1)}, {s(sA1)}, {112*1024}\ns_add_u32 {s(sA0)}, {s(sA0)}, {s(sT0)}")

class Sched:
    def __init__(self, n):
        self.n = n; self.pre = [[] for _ in range(n)]; self.post = [[] for _ in range(n)]
        self.fill = [[] for _ in range(n)]; self.dma = [[] for _ in range(n)]; self.blk = {}
    def spread(self, lst, a, b):
        for i in range(a, b): self.fill[i] += lst[len(lst)*(i-a)//(b-a): len(lst)*(i+1-a)//(b-a)]
    def dmas(self, groups, a, step=1):
        for i, g in enumerate(groups): self.dma[a + i*step] += g

def rd(G):
    b = WF + 4 * (G & 3)
    if G < 96:
        ks = G & 31; st, p = ks >> 2, ks & 3
        L = [f"ds_read_b128 {v(XF+4*ks,4)}, {v(AX+p)} offset:{RA+(st&3)*16384}"] if G < 32 else []
        if ks < 4 and G >= 32: L.append(f"v_xor_b32 {v(AW+p)}, {RB}, {v(AW+p)}")
        return L + [f"ds_read_b64_tr_b16 {v(b+2*t,2)}, {v(AW+p)} offset:{8192*st+512*t}" for t in range(2)]
    i = G - 96
    return [f"ds_read_b64_tr_b16 {v(b+2*t,2)}, {v(AB+(i&1))} offset:{4096*(i>>1)+256*t}" for t in range(2)]
def xq(G): return XF + 4 * (G & 31) if G < 96 else XF + 8 * (G - 96)

def common_sched(S, ffn, accs, MC):
    pitch = 3584 if ffn else 3072
    tp = "f" if ffn else "a"
    c1, c2 = (128, 256) if ffn else (2048, 0)
    S.dmas(item1(2, pitch), 0, 0)
    for st in range(8):
        G = 4 * st + 2
        S.pre[G] += [f".waitvm it{st+1}" if st < 7 else ".waitvm w1q0 lgkm0", "s_barrier"]
        if st <= 4: S.dmas(item1(st + 3, pitch), G)
        else: S.dmas(wquarter(RA, st - 5, c1, pitch, f"w1q{st-5}"), G)
    def m4(d, r, c=None): return f"v_mfma_f32_4x4x4_16b_bf16 {v(d,4)}, {v(r,2)}, {v(r,2)}, {v(d,4) if c is None else c}"
    Q0, Q1 = T + 8, T + 16
    for f in range(0, 32, 2):
        x = XF + 4 * f; a = max(f - 1, 0); c = "0" if f == 0 else None
        S.post[a] += [m4(Q0, x, c), m4(Q1, x + 2, c), m16(MS, SEL, x, c)]
    S.post[28] += [f"v_and_b32 {v(S1)}, 3, {v(vL)}", f"v_cmp_eq_u32 {s(sEX,2)}, 1, {v(S1)}", f"s_lshl_b32 {s(sT0)}, {s(sHALF)}, 3",
                   f"v_add_u32 {v(T)}, {s(sT0)}, {v(VSTA)}"]
    S.post[29] += [f"v_add_f32 {v(Q0+i)}, {v(Q0+i)}, {v(Q1+i)}" for i in range(4)]
    S.post[29] += [f"v_cmp_eq_u32 vcc, 2, {v(S1)}", f"v_cndmask_b32 {v(S2)}, {v(Q0)}, {v(Q0+1)}, {s(sEX,2)}", f"v_cmp_eq_u32 {s(sEX,2)}, 3, {v(S1)}",
                   f"v_cndmask_b32 {v(S2)}, {v(S2)}, {v(Q0+2)}, vcc", f"v_cndmask_b32 {v(S2)}, {v(S2)}, {v(Q0+3)}, {s(sEX,2)}",
                   f"v_mov_b32 {v(S1)}, {v(S2)}", f"v_permlane32_swap_b32 {v(S1)}, {v(S2)}",
                   f"v_add_f32 {v(MS+1)}, {v(S1)}, {v(S2)}", f"ds_write_b64 {v(T)}, {v(MS,2)}"]
    S.post[30] += [f"ds_read_b128 {v(MS,4)}, {v(VSTA)}"]
    for ps in range(3):
        for st in range(8):
            G = 32 * ps + 4 * st
            S.post[G] += [m16(MC, SEL, WF + 4 * (G & 3), "0" if st == 0 else None)]
        S.post[32*ps + 29] += [f"v_add_u32 {v(MC+1)}, {s(sW34)}, {v(VCSA)}", f"ds_write_b32 {v(MC+1)}, {v(MC)} offset:{1024*ps}"]
    for q in (1, 2, 3): S.pre[32 + 8*q - 2] += [f".waitvm w1q{q}", "s_barrier"]
    w2 = sum([wquarter(RB, q, c2, pitch, "w2") for q in range(4)], [])
    for g_, G in zip(w2[:4] + wquarter(RA, 3, c1, pitch, "w1q3") + w2[4:], (32, 34, 35, 37, 38, 40, 41, 43, 44, 46)): S.dma[G] += g_
    S.pre[62] += [".waitvm w2 lgkm0", "s_barrier"]
    for G in (78, 86): S.pre[G] += ["s_barrier"]
    if ffn:
        S.post[int(OPT.get("f1", 90))] += flag(1, "h1"); S.post[int(OPT.get("f2", 110))] += flag(2, "h2")
        S.post[101] += [spoll(0)]; S.blk[("e", 105)] = lambda: sneed(1, 0)
    else:
        S.post[70] += flag(1, "pz")
    if OPT.get("l2t", "0") == "1":
        tg = [int(x) for x in OPT.get("l2gf" if ffn else "l2ga", "52,62,66,70,74" if ffn else "48,52,56,60,64").split(",")]
        DUM = VX0 if False else VW0
        for j in range(5):
            if j < 3:
                L = [f"s_lshr_b32 {s(sT0)}, s2, 3", f"s_mul_i32 {s(sT0)}, {s(sT0)}, 3", f"s_lshl_b32 {s(sT1)}, {s(sSH)}, 4", f"s_add_u32 {s(sT0)}, {s(sT0)}, {s(sT1)}",
                     f"s_add_u32 {s(sT0)}, {s(sT0)}, {128+j}", f"s_sub_u32 {s(sT1)}, {s(sT0)}, 224", f"s_min_u32 {s(sT0)}, {s(sT0)}, {s(sT1)}",
                     f"s_mul_i32 {s(sT1)}, {s(sW)}, 224", f"s_add_u32 {s(sT0)}, {s(sT0)}, {s(sT1)}", f"s_lshl_b32 {s(sT0)}, {s(sT0)}, 10",
                     f"buffer_load_dword {v(VTD)}, {v(VL16)}, {s(SW2,4)}, {s(sT0)} offen ; nodef"]
            else:
                L = [f"s_lshr_b32 {s(sT0)}, s2, 3", f"s_lshl_b32 {s(sT0)}, {s(sT0)}, 11", f"s_lshl_b32 {s(sT1)}, {s(sW)}, 16", f"s_add_u32 {s(sT0)}, {s(sT0)}, {s(sT1)}",
                     f"buffer_load_dword {v(VTD)}, {v(VL16)}, {s(SWO,4)}, {s(sT0)} offen offset:{1024*(j-3)} ; nodef"]
            S.dma[tg[j]] += L
    def announce():
        P(f"s_lshl_b32 {s(sT0)}, {s(sW)}, 8\ns_add_u32 {s(sT0)}, {s(sT0)}, s2\ns_sub_u32 {s(sT0)}, {s(sT0)}, 256\ns_cmp_lt_u32 {s(sT0)}, 8")
        P(f"s_cbranch_scc0 L_nd")
        P.cond_begin("zw")
        P(".waitvm zf")
        P(f"s_lshl_b32 {s(sT0)}, s2, 2\nv_mov_b32 {v(VFV)}, 1")
        P(f"buffer_store_dword {v(VFV)}, {v(VZ)}, {s(SDBG,4)}, {s(sT0)} offen sc1")
        P.cond_end()
        P(f"L_nd:")
    if not ffn: S.blk[3] = announce
    ld = f"v_and_b32 {v(VX0)}, 28, {v(vL)}\nbuffer_load_dword {v(VX0)}, {v(VX0)}, {s(SDBG,4)}, 0 offen sc1"
    def poll0():
        P(f"s_cmp_eq_u32 {s(sW)}, 7"); P(f"s_cbranch_scc0 L_np{tp}")
        P.cond_begin("w7")
        P(ld)
        P.cond_end(); P(f"L_np{tp}:")
    def check0():
        P(f"s_cmp_eq_u32 {s(sW)}, 7"); P(f"s_cbranch_scc0 L_nc{tp}")
        P.cond_begin("w7")
        P(f"v_mov_b32 {v(VX0)}, {v(VX0)}")
        spin(f"L_ncs{tp}", ld, f"v_cmp_ne_u32 vcc, 1, {v(VX0)}")
        P.cond_end(); P(f"L_nc{tp}:")
    S.blk[39] = poll0; S.blk[62] = check0

def run_sched(S, accs):
    P(".waitvm it0")
    P("s_barrier")
    stamp("it0")
    P.add(rd(0)); P.add(rd(1))
    for G in range(S.n):
        stamp(f"g{G}")
        if G in S.blk: S.blk[G]()
        late = OPT.get("bam", "1") == "1" and G >= 32
        if not late: P.add(S.pre[G])
        if OPT.get("prio", "1") == "1": P(f"s_setprio {3 - ((G + 2) & 3)}")
        first = G in (0, 32, 64, 96)
        P(mfma(accs[G >> 5], WF + 4 * (G & 3), xq(G), "0" if first else None))
        if late: P.add(S.pre[G])
        if G + 2 < S.n: P.add(rd(G + 2))
        P.add(S.post[G]); P.add(S.fill[G]); P.add(S.dma[G])
        if ("e", G) in S.blk: S.blk[("e", G)]()
    P("s_setprio 0")

AC = 64; NAF = 8
def AFq(kk, rb): return XF + 4 + 8 * (2 * (kk % NAF) + rb)
def BTq(kk, nb): return XF + 8 * (2 * (kk & 1) + nb)
BA = 2
VXR, VRED = 9, 10
VWR = 20
XR, B2R = 32, 36
def a_jobs(kk):
    so = sA0 if kk < 14 else sA1
    return [rot_k(kk, sD1) + [f"s_lshl_b32 {s(sD1)}, {s(sD1)}, 10", f"s_add_u32 {s(sD1)}, {s(sD1)}, {s(so)}",
             f"buffer_load_dwordx4 {v(AFq(kk,0),4)}, {v(VL16)}, {s(SWS,4)}, {s(sD1)} offen sc1"],
            [f"s_add_u32 {s(sD1)}, {s(sD1)}, {HF_RB}",
             f"buffer_load_dwordx4 {v(AFq(kk,1),4)}, {v(VL16)}, {s(SWS,4)}, {s(sD1)} offen sc1"]]
def vcheck(regs, t):
    L = [f"v_max3_u32 {v(t)}, {v(regs[0])}, {v(regs[1])}, {v(regs[2])}"]; r = regs[3:]
    while len(r) >= 2: L.append(f"v_max3_u32 {v(t)}, {v(t)}, {v(r[0])}, {v(r[1])}"); r = r[2:]
    if r: L.append(f"v_max_u32 {v(t)}, {v(t)}, {v(r[0])}")
    return L + [f"v_cmp_eq_u32 vcc, -1, {v(t)}"]
SLOW = []
def validate(regs, t, reload):
    lb = P.lab("L_v")
    P.add(vcheck(regs, t))
    P(f"s_cbranch_vccnz {lb}_slow")
    P(f"{lb}_back:")
    SLOW.append([f"{lb}_slow:", f"s_mov_b32 {s(sCNT)}, 0", f"{lb}_loop:", "s_sleep 2"] + reload + ["s_waitcnt vmcnt(0)"] + vcheck(regs, t) +
                [f"s_add_u32 {s(sCNT)}, {s(sCNT)}, 1", f"s_cbranch_vccz {lb}_back", f"s_cmp_gt_u32 {s(sCNT)}, {SPIN_MAX}",
                 f"s_cbranch_scc0 {lb}_loop", f"s_branch {lb}_back"])
def flush_slow():
    for blk in SLOW:
        P(".reset"); P.add(blk)
    SLOW.clear()
def spoll(o): return f"s_buffer_load_dwordx4 {s(sPL,4)}, {s(SWS,4)}, {s(sFL)} offset:{0 if o else 1024} glc"
def sneed(level, o):
    lb = P.lab("L_sp")
    P(f"s_mov_b32 {s(sCNT)}, 0")
    P(f"{lb}:")
    P("s_waitcnt lgkmcnt(0)")
    P(f"s_min_u32 {s(sPL)}, {s(sPL)}, {s(sPL+1)}\ns_min_u32 {s(sPL+2)}, {s(sPL+2)}, {s(sPL+3)}\ns_min_u32 {s(sPL)}, {s(sPL)}, {s(sPL+2)}")
    P(f"s_cmp_ge_u32 {s(sPL)}, {level}")
    P(f"s_cbranch_scc1 {lb}_ok")
    P(f"s_add_u32 {s(sCNT)}, {s(sCNT)}, 1\ns_cmp_gt_u32 {s(sCNT)}, {SPIN_MAX}")
    P(f"s_cbranch_scc1 {lb}_ok")
    P("s_sleep 1")
    I = Ins(spoll(o)); I.kind = "salu"; P.ins.append(I)
    P(f"s_branch {lb}")
    P(f"{lb}_ok:")
def b_reads(kk):
    slot = kk % 9
    var, off = (KAREA[slot] >> 16), KAREA[slot] & 0xffff
    return [f".waitvm b{kk}"] + [f"ds_read_b64_tr_b16 {v(BTq(kk,nb)+2*tt,2)}, {v(BA+2*var+nb)} offset:{off+1024*tt}" for nb in range(2) for tt in range(2)]
def phase2(done=(), ordr="B6 B7 B8 B9 A4 A5 A6 A7 B10 A8 B11 A9 A10 B12 A11 B13 A12 B14 A13 B15 B16 B17 A14 A15 A16 A17"):
    P(f"v_bfe_u32 {v(T+8)}, {v(vL)}, 2, 2\nv_lshrrev_b32 {v(T+9)}, 5, {v(vL)}\nv_and_b32 {v(T+10)}, 63, {v(AW)}")
    P(f"v_lshl_add_u32 {v(T+12)}, {v(T+9)}, 2, {v(T+8)}\nv_lshl_add_u32 {v(T+12)}, {v(T+12)}, 7, {v(T+10)}\nv_lshrrev_b32 {v(T+13)}, 1, {v(T+8)}")
    P(f"v_lshl_add_u32 {v(T+12)}, {v(T+13)}, 6, {v(T+12)}\nv_xor_b32 {v(T+13)}, 64, {v(T+12)}")
    P(f"s_add_u32 {s(sT0)}, {s(sM0x)}, 65536\ns_add_u32 {s(sT1)}, {s(sM0x)}, {RC}")
    for nb in range(2):
        P(f"v_add_u32 {v(BA+nb)}, {s(sM0x)}, {v(T+12+nb)}\nv_add_u32 {v(BA+2+nb)}, {s(sT0)}, {v(T+12+nb)}\nv_add_u32 {v(BA+4+nb)}, {s(sT1)}, {v(T+12+nb)}")
    P.add(b_reads(0))
    if OPT.get("p2prio") == "y":
        lb = P.lab("L_pr"); P(f"s_cmp_lt_u32 {s(sW)}, 4\ns_cbranch_scc1 {lb}\ns_setprio 1\n{lb}:")
    stamp("hseen")
    order = [j for j in ordr.split() if j not in done]
    jobs = []
    for j in order:
        k2 = int(j[1:]); gs = a_jobs(k2) if j[0] == "A" else b_dma(k2)
        jobs += [(j, gs[0]), (None, gs[1])]
    for kk in range(18):
        rem = [x for x, _ in jobs if x]
        assert f"A{kk+1}" not in rem and f"B{kk+2}" not in rem, (kk, rem)
        if OPT.get("v"): print(kk, rem, file=sys.stderr)
        pm = OPT.get("p2prio", "c")
        if pm == "c": P(f"s_setprio {3 - ((kk // int(OPT.get('p2per', 1))) & 3)}")
        br = b_reads(kk + 1) if kk + 1 < 18 else []
        for nb in range(2):
            for rb in range(2):
                mi = 2 * nb + rb
                P(mfma(AC + 16 * mi, BTq(kk, nb), AFq(kk, rb), "0" if kk == 0 else None))
                if mi == 0: P.add(br[:3])
                if mi == 1: P.add(br[3:])
                if mi == 2 and 8 <= kk + 1 < 18:
                    if jobs and jobs[0][0] is None: P.add(jobs.pop(0)[1])
                    validate([AFq(kk + 1, r2) + i for r2 in range(2) for i in range(4)], T + 16, sum(a_jobs(kk + 1), []))
                for rep in range(2 if kk < int(OPT.get("dbl", 0)) else 1):
                    if not jobs: continue
                    j, g_ = jobs[0]
                    if j:
                        k2 = int(j[1:]); last = (nb, rb) == (1, 1)
                        free = k2 - (8 if j[0] == "A" else 9)
                        if free > kk or (free == kk and not last): continue
                        if j == "A4": sneed(2, 0); P(spoll(1))
                        if j == "A14": sneed(1, 1)
                    jobs.pop(0); P.add(g_)
        stamp(f"k{kk}")
        if kk == 8:
            P(f"v_lshrrev_b32 {v(T+17)}, 3, {v(vL)}\nv_and_b32 {v(T+18)}, 7, {v(vL)}\nv_lshlrev_b32 {v(T+18)}, 4, {v(T+18)}\nv_lshl_add_u32 {v(VXR)}, {v(T+17)}, 10, {v(T+18)}")
            P(f"s_lshl_b32 {s(sT0)}, {s(sN)}, 7")
            P(f"buffer_load_dwordx4 {v(XR,4)}, {v(VXR)}, {s(SX,4)}, {s(sOo)} offen")
            P(f"buffer_load_dwordx4 {v(B2R,4)}, {v(T+18)}, {s(SB2,4)}, {s(sT0)} offen")
        if kk == 3:
            for q in range(4):
                P(f"v_xor_b32 {v(VWR+q)}, {64*q}, {v(VL16)}\nv_add_u32 {v(VWR+q)}, {s(sM0x)}, {v(VWR+q)}")
                P(f"v_add_u32 {v(T+q)}, 65536, {v(VWR+q)}")
            P(f"v_lshrrev_b32 {v(T+4)}, 3, {v(vL)}\ns_lshl_b32 {s(sT0)}, {s(sW34)}, 1\nv_add_u32 {v(T+4)}, {s(sT0)}, {v(T+4)}")
            P(f"v_and_b32 {v(T+5)}, 3, {v(vL)}\nv_lshlrev_b32 {v(T+6)}, 2, {v(T+5)}\nv_xor_b32 {v(T+4)}, {v(T+4)}, {v(T+6)}\nv_lshlrev_b32 {v(T+4)}, 4, {v(T+4)}\nv_and_b32 {v(T+6)}, 1, {v(T+5)}\nv_lshl_add_u32 {v(T+4)}, {v(T+6)}, 10, {v(T+4)}\nv_lshrrev_b32 {v(T+6)}, 1, {v(T+5)}\nv_lshl_add_u32 {v(T+4)}, {v(T+6)}, 14, {v(T+4)}")
            P(f"v_bfe_u32 {v(T+5)}, {v(vL)}, 2, 1\nv_lshl_add_u32 {v(T+4)}, {v(T+5)}, 16, {v(T+4)}\ns_lshl_b32 {s(sT0)}, {s(sHALF)}, 15\nv_add_u32 {v(VRED)}, {s(sT0)}, {v(T+4)}")
        F = T + 8
        if kk == 14:
            for i in range(4):
                P(f"v_lshlrev_b32 {v(F+2*i)}, 16, {v(XR+i)}\nv_and_b32 {v(F+2*i+1)}, 0xffff0000, {v(XR+i)}")
                P(f"v_lshlrev_b32 {v(T+4)}, 16, {v(B2R+i)}\nv_and_b32 {v(T+5)}, 0xffff0000, {v(B2R+i)}")
                P(f"v_add_f32 {v(F+2*i)}, {v(F+2*i)}, {v(T+4)}\nv_add_f32 {v(F+2*i+1)}, {v(F+2*i+1)}, {v(T+5)}")
    stamp("p2mm")
    for blk in range(4):
        for q in range(4):
            ad = VWR + q if blk < 2 else T + q
            P(f"ds_write_b128 {v(ad)}, {v(AC+16*blk+4*q,4)} offset:{(blk&1)*32768+(q>>1)*16384+(q&1)*1024}")
    P("s_waitcnt lgkmcnt(0)")
    stamp("rw")
    P("s_barrier")
    stamp("rb")
    R = XF
    for ww in range(8):
        for hf in range(2): P(f"ds_read_b128 {v(R+8*ww+4*hf,4)}, {v(VRED)} offset:{2048*ww+512*hf}")
    for ww in range(8):
        for i in range(0, 8, 2): P(f"v_pk_add_f32 {v(F+i,2)}, {v(F+i,2)}, {v(R+8*ww+i,2)}")
    for i in range(4): P(f"v_cvt_pk_bf16_f32 {v(XR+i)}, {v(F+2*i)}, {v(F+2*i+1)}")
    P(f"buffer_store_dwordx4 {v(XR,4)}, {v(VXR)}, {s(SOUT,4)}, {s(sOo)} offen {OPT.get('om', '').replace('+', ' ')}")
    if OPT.get("echo") and OPT.get("echot", "fa").find("a" if done else "f") < 0: pass
    elif OPT.get("echo"):
        a_, b_ = [STI[x] for x in OPT["echo"].split(",")]
        lb = P.lab("L_echo")
        stamp("end")
        P("s_waitcnt lgkmcnt(0)")
        P(f"s_sub_u32 {s(sT0)}, {s(sST+2*b_)}, {s(sST+2*a_)}\ns_min_u32 {s(sT0)}, {s(sT0)}, 10000")
        P(f"{lb}:")
        P(f"s_memrealtime {s(sEX,2)}")
        P("s_waitcnt lgkmcnt(0)")
        P(f"s_sub_u32 {s(sT1)}, {s(sEX)}, {s(sST+22)}\ns_cmp_lt_u32 {s(sT1)}, {s(sT0)}\ns_cbranch_scc1 {lb}")
    elif STAMP:
        stamp("end")
        P("s_waitcnt lgkmcnt(0)")
        P(f"s_lshl_b32 {s(sT0)}, s2, 3\ns_add_u32 {s(sT0)}, {s(sT0)}, {s(sW)}\ns_lshl_b32 {s(sT0)}, {s(sT0)}, 6\ns_add_u32 {s(sT0)}, {s(sT0)}, {WS_STAMP}")
        P(f"v_mov_b32 v2, 0\ns_mov_b64 exec, 1")
        for i in range(12):
            P(f"v_mov_b32 v3, {s(sST+2*i)}\nbuffer_store_dword v3, v2, {s(SWS,4)}, {s(sT0)} offen offset:{4*i}")
    P("s_endpgm")
    flush_slow()

def softmax(p, out, LS):
    t = T + 16
    L = [f"v_max3_f32 {v(t)}, {v(p)}, {v(p+1)}, {v(p+2)}", f"v_max3_f32 {v(t+1)}, {v(p+3)}, {v(p+4)}, {v(p+5)}",
         f"v_max3_f32 {v(t)}, {v(t)}, {v(p+6)}, {v(p+7)}", f"v_max3_f32 {v(t+1)}, {v(t+1)}, {v(p+8)}, {v(p+9)}",
         f"v_max3_f32 {v(t)}, {v(t)}, {v(p+10)}, {v(p+11)}", f"v_max3_f32 {v(t+1)}, {v(t+1)}, {v(p+12)}, {v(p+13)}",
         f"v_max3_f32 {v(t)}, {v(t)}, {v(p+14)}, {v(p+15)}", f"v_max_f32 {v(t)}, {v(t)}, {v(t+1)}",
         f"v_mul_f32 {v(t)}, {v(t)}, {v(LS)}"]
    L += [f"v_fma_f32 {v(p+i)}, {v(p+i)}, {v(LS)}, -{v(t)}" for i in range(16)]
    L += [f"v_exp_f32 {v(p+i)}, {v(p+i)}" for i in range(16)]
    L += [f"v_add_f32 {v(t)}, {v(p)}, {v(p+1)}", f"v_add_f32 {v(t+1)}, {v(p+2)}, {v(p+3)}"]
    for i in range(4, 16, 2):
        L += [f"v_add_f32 {v(t)}, {v(t)}, {v(p+i)}", f"v_add_f32 {v(t+1)}, {v(t+1)}, {v(p+i+1)}"]
    L += [f"v_add_f32 {v(t)}, {v(t)}, {v(t+1)}", f"v_rcp_f32 {v(t)}, {v(t)}"]
    L += [f"v_mul_f32 {v(p+i)}, {v(p+i)}, {v(t)}" for i in range(16)]
    L += [f"v_cvt_pk_bf16_f32 {v(out+i)}, {v(p+2*i)}, {v(p+2*i+1)}" for i in range(8)]
    return L

setup(False)
KAREA[:] = [RC, RA+3*Q, RB, RA, RA+Q, RA+2*Q, RB+Q, RB+2*Q, RB+3*Q]
LS = K1; VPK = K2; VV = VW3; MC = BIAS
PHI0, PHI1 = AX, AAUG
PHI0 = AX
PHI1 = S1
PHI1 = T + 12
t = T + 16
P(f"v_bfe_u32 {v(t)}, {v(vL)}, 2, 2\nv_lshrrev_b32 {v(t+1)}, 5, {v(vL)}\nv_lshl_add_u32 {v(t)}, {v(t+1)}, 2, {v(t)}\nv_lshlrev_b32 {v(t)}, 5, {v(t)}")
P(f"v_bfe_u32 {v(t+2)}, {v(vL)}, 1, 1\nv_lshl_add_u32 {v(t)}, {v(t+2)}, 3, {v(t)}\nv_bfe_u32 {v(t+2)}, {v(vL)}, 4, 1\nv_lshl_add_u32 {v(t)}, {v(t+2)}, 4, {v(t)}")
P(f"s_lshl_b32 {s(sT1)}, {s(sHALF)}, 10\ns_add_u32 {s(sT1)}, {s(sT1)}, {L_WPHI}\nv_add_u32 {v(AB)}, {s(sT1)}, {v(t)}")
P(f"v_bfe_u32 {v(t)}, {v(vL)}, 2, 1\nv_mul_u32_u24 {v(t)}, 0x8000, {v(t)}\nv_lshl_or_b32 {v(AB+1)}, {v(t)}, 16, {v(t)}")
P(f"v_and_b32 {v(t)}, 31, {v(vL)}\nv_lshlrev_b32 {v(t)}, 6, {v(t)}\ns_lshl_b32 {s(sT1)}, {s(sW34)}, 9\nv_bfe_u32 {v(t+2)}, {v(vL)}, 1, 2")
P(f"v_lshlrev_b32 {v(t+3)}, 1, {v(t+1)}\nv_xor_b32 {v(t+3)}, {v(t+3)}, {v(t+2)}")
P(f"s_lshl_b32 {s(sT2)}, {s(sHALF)}, 14\ns_add_u32 {s(sT2)}, {s(sT2)}, {s(sT1)}\nv_lshl_add_u32 {v(VPK)}, {v(t+3)}, 4, {v(t)}\nv_add_u32 {v(VPK)}, {s(sT2)}, {v(VPK)}")
P(f"v_xor_b32 {v(t+3)}, {v(t+1)}, {v(t+2)}")
P(f"s_lshl_b32 {s(sT2)}, {s(sHALF)}, 13\ns_add_u32 {s(sT2)}, {s(sT2)}, {s(sT1)}\ns_add_u32 {s(sT2)}, {s(sT2)}, {RA+32768}\nv_lshl_add_u32 {v(VV)}, {v(t+3)}, 4, {v(t)}\nv_add_u32 {v(VV)}, {s(sT2)}, {v(VV)}")
def phi_load(hl, dst):
    return [f"ds_read_b64_tr_b16 {v(dst+2*tt,2)}, {v(AB)} offset:{512*hl+256*tt}" for tt in range(2)] + \
           [f"v_xor_b32 {v(dst+i)}, {v(AB+1)}, {v(dst+i)}" for i in range(4)]
S = Sched(96)
common_sched(S, False, None, MC)
S.post[30] += [f"ds_read_b128 {v(CSR,4)}, {v(VCSA)}"]
sKV, sOS = sH0, sH3
P(f"s_lshl_b32 {s(sT0)}, {s(sG)}, 4\ns_add_u32 {s(sT0)}, {s(sT0)}, {s(sRT)}\ns_mul_i32 {s(sT0)}, {s(sT0)}, {KVP_SZ}\ns_mul_i32 {s(sT1)}, {s(sW)}, 1152\ns_add_u32 {s(sT0)}, {s(sT0)}, {s(sT1)}\ns_add_u32 {s(sT0)}, {s(sT0)}, {WS_KVP}")
P(f"s_cmp_lt_u32 {s(sW)}, 4\ns_cselect_b32 {s(sKV)}, {s(sT0)}, 0x7f000000")
P(f"s_lshl_b32 {s(sT0)}, {s(sG)}, 2\ns_lshl_b32 {s(sT1)}, {s(sHALF)}, 1\ns_add_u32 {s(sT0)}, {s(sT0)}, {s(sT1)}\ns_add_u32 {s(sT0)}, {s(sT0)}, 112\ns_lshl_b32 {s(sT0)}, {s(sT0)}, 10\ns_add_u32 {s(sOS)}, {s(sT0)}, {s(sHo)}")
PA = AAUG
S.post[46] += [f"v_mov_b32 {v(PA+i)}, -1" for i in range(4)] + [f"v_lshrrev_b32 {v(S2)}, 2, {v(vL)}", f"v_lshl_add_u32 {v(S2)}, {v(S2)}, 26, {v(VL16)}"]
S.post[47] += [f"buffer_store_dwordx4 {v(PA,4)}, {v(VL16)}, {s(SWS,4)}, {s(sKV)} offen sc1"]
S.post[48] += [f"buffer_store_dwordx4 {v(PA,4)}, {v(S2)}, {s(SWS,4)}, {s(sKV)} offen offset:1024 sc1"]
S.post[50] += [f"buffer_store_dwordx4 {v(PA,4)}, {v(VL16)}, {s(SWS,4)}, {s(sOS)} offen sc1"]
S.post[53] += [f"buffer_store_dwordx4 {v(PA,4)}, {v(VL16)}, {s(SWS,4)}, {s(sOS)} offen offset:1024 sc1 ; tag=pz"]
S.post[55] += [f"v_mov_b32 {v(PA+2)}, 0", f"v_mov_b32 {v(PA+3)}, 0"]
def ltouch():
    P(f"s_sub_u32 {s(sT0)}, {s(sW)}, 4\ns_cmp_lt_u32 {s(sT0)}, 3")
    P(f"s_cbranch_scc0 L_nlt")
    P.cond_begin("w456")
    P(f"v_lshlrev_b32 {v(S1)}, 7, {v(vL)}\ns_lshl_b32 {s(sT1)}, {s(sRT)}, 3\ns_add_u32 {s(sT1)}, {s(sT1)}, {s(sG)}")
    P(f"s_cmp_eq_u32 {s(sT0)}, 2\ns_cbranch_scc1 L_lt2")
    P(f"s_lshl_b32 {s(sT1)}, {s(sT1)}, 1\ns_add_u32 {s(sT1)}, {s(sT1)}, {s(sT0)}\ns_mul_i32 {s(sT1)}, {s(sT1)}, 7168")
    P(f"buffer_load_dword {v(VX0)}, {v(S1)}, {s(SW2,4)}, {s(sT1)} offen")
    P("s_branch L_nlt")
    P("L_lt2:")
    P(f"v_and_b32 {v(S1)}, 4095, {v(S1)}\ns_lshl_b32 {s(sT1)}, {s(sT1)}, 12")
    P(f"buffer_load_dword {v(VX0)}, {v(S1)}, {s(SWO,4)}, {s(sT1)} offen")
    P(f"buffer_load_dword {v(VX1)}, {v(S1)}, {s(SB2,4)}, 0 offen")
    P.cond_end()
    for I in P.ins[-12:]:
        if I.kind == "vld": I.defs = []
    P("L_nlt:")
if OPT.get("touch", "1") == "2": S.blk[("e", int(OPT.get("tg", 54)))] = ltouch
S.post[31] += stamp_i("pass1")
fill = stats_final() + aug(ACC0, CSR, None) + phi_load(0, AX) + phi_load(1, T + 8) + [f"v_mul_f32 {v(LS)}, {f2u(LOG2E):#x}, {v(RSTD)}"]
fill += [f"v_cvt_pk_bf16_f32 {v(T+i)}, {v(ACC0+2*i)}, {v(ACC0+2*i+1)}" for i in range(8)]
fill += [mfma(ACC2, AX, T, "0"), mfma(ACC0, T + 8, T + 4, "0")]
S.spread(fill, 32, 40)
S.spread(softmax(ACC2, T + 8, LS) + softmax(ACC0, T, LS), 41, 64)
S.post[56] += [f"ds_write_b128 {v(VPK)}, {v(T+8,4)}", f"v_xor_b32 {v(VSTA)}, 16, {v(VPK)}"]
S.post[57] += [f"ds_write_b128 {v(VSTA)}, {v(T+12,4)}"]
S.post[62] += [f"ds_read_b128 {v(MC,4)}, {v(VCSA)} offset:1024"]
S.post[63] += stamp_i("sub1")
S.pre[64] += sum4(CS0, MC)
S.fill[64] += aug(ACC1, MC, None)[3:]
S.post[65] += [f"ds_write_b128 {v(VPK)}, {v(T,4)} offset:8192"]
S.post[66] += [f"ds_write_b128 {v(VSTA)}, {v(T+4,4)} offset:8192"]
fill = []
fill += [f"v_mul_f32 {v(ACC1+i)}, {v(ACC1+i)}, {v(RSTD)}" for i in range(16)]
fill += [f"v_cvt_pk_bf16_f32 {v(ACC1+i)}, {v(ACC1+2*i)}, {v(ACC1+2*i+1)}" for i in range(8)]
fill += [f"ds_write_b128 {v(VV)}, {v(ACC1,4)}", f"v_xor_b32 {v(VV)}, 32, {v(VV)}", f"ds_write_b128 {v(VV)}, {v(ACC1+4,4)}"]
S.spread(fill, 66, 70)
S.dmas(b_dma(0), 58, 3)
S.dmas(b_dma(1), 72, 3); S.dmas(b_dma(2), 78, 3); S.dmas(b_dma(3) + b_dma(4), 86, 2)
def kvblock():
    P(".waitvm pz lgkm0")
    P("s_barrier")
    kvflag()
    stamp("kv0"); stamp("kv1")
    P(f"s_cmp_lt_u32 {s(sW)}, 4")
    P("s_cbranch_scc0 L_nkv")
    P.cond_begin("lo4")
    t = T + 16; u = S1
    P(f"v_bfe_u32 {v(u)}, {v(vL)}, 2, 2\nv_lshrrev_b32 {v(u+1)}, 5, {v(vL)}\nv_lshl_add_u32 {v(u)}, {v(u+1)}, 3, {v(u)}\nv_lshlrev_b32 {v(u)}, 6, {v(u)}")
    P(f"v_bfe_u32 {v(u+1)}, {v(vL)}, 1, 1\nv_lshl_add_u32 {v(u)}, {v(u+1)}, 3, {v(u)}\nv_bfe_u32 {v(u+1)}, {v(vL)}, 3, 1\nv_and_b32 {v(VSTA)}, 1, {v(vL)}")
    P(f"v_or_b32 {v(t)}, {s(sSH)}, {v(VSTA)}\nv_xor_b32 {v(t)}, {v(t)}, {v(u+1)}\nv_lshl_add_u32 {v(t)}, {v(t)}, 4, {v(u)}")
    P(f"s_lshr_b32 {s(sT0)}, {s(sW)}, 1\ns_lshl_b32 {s(sT0)}, {s(sT0)}, 13\ns_add_u32 {s(sT0)}, {s(sT0)}, {RA+32768}\nv_add_u32 {v(t)}, {s(sT0)}, {v(t)}\nv_xor_b32 {v(t+1)}, 32, {v(t)}")
    P(f"v_bfe_u32 {v(t+2)}, {v(vL)}, 4, 1\nv_lshl_add_u32 {v(t+2)}, {v(VSTA)}, 1, {v(t+2)}\nv_xor_b32 {v(t+2)}, {v(t+2)}, {v(u+1)}\nv_lshl_add_u32 {v(t+2)}, {v(t+2)}, 4, {v(u)}")
    P(f"s_lshl_b32 {s(sT0)}, {s(sW)}, 13\nv_add_u32 {v(t+2)}, {s(sT0)}, {v(t+2)}\nv_xor_b32 {v(t+3)}, 32, {v(t+2)}")
    P(f"v_and_b32 {v(u)}, 16, {v(vL)}\nv_cmp_eq_u32 vcc, 0, {v(u)}\nv_mov_b32 {v(u+1)}, {s(sONE)}")
    KB = [T, T + 8, ACC1, ACC1 + 8]
    def kr(J):
        for tt in range(2):
            P(f"ds_read_b64_tr_b16 {v(KB[J&3]+2*tt,2)}, {v(t+tt)} offset:{1024*J+256*tt}")
            P(f"ds_read_b64_tr_b16 {v(KB[J&3]+4+2*tt,2)}, {v(t+2+tt)} offset:{1024*J+256*tt}")
    kr(0); kr(1); kr(2)
    for J in range(8):
        for i in range(4): P(f"v_cndmask_b32 {v(KB[J&3]+i)}, {v(u+1)}, {v(KB[J&3]+i)}, vcc")
        if J + 3 < 8: kr(J + 3)
        P(mfma(ACC0, KB[J&3] + 4, KB[J&3], "0" if J == 0 else None))
    P(f"v_lshrrev_b32 {v(u)}, 5, {v(vL)}\nv_and_b32 {v(t+2)}, 15, {v(vL)}\nv_lshlrev_b32 {v(t)}, 4, {v(t+2)}\nv_lshl_add_u32 {v(t)}, {v(u)}, 8, {v(t)}\nv_add_u32 {v(t+1)}, 512, {v(t)}")
    P(f"v_lshlrev_b32 {v(u)}, 4, {v(u)}\nv_add_u32 {v(u)}, 1024, {v(u)}\nv_lshl_add_u32 {v(u)}, {v(t+2)}, 26, {v(u)}\nv_add_u32 {v(u+1)}, 32, {v(u)}")
    P(f"v_cndmask_b32 {v(t)}, {v(u)}, {v(t)}, vcc\nv_cndmask_b32 {v(t+1)}, {v(u+1)}, {v(t+1)}, vcc")
    for i in range(8): P(f"v_cvt_pk_bf16_f32 {v(T+i)}, {v(ACC0+2*i)}, {v(ACC0+2*i+1)}")
    stamp("kv1")
    for j in range(2): P(f"buffer_store_dwordx4 {v(T+4*j,4)}, {v(t+j)}, {s(SWS,4)}, {s(sKV)} offen sc1")
    P.cond_end()
    P("L_nkv:")
    stamp("kv2")
S.blk[70] = kvblock
S.pre[94] += ["s_waitcnt lgkmcnt(0)", "s_barrier"]
def kvflag():
    P(f"s_cmp_eq_u32 {s(sW)}, 7")
    P("s_cbranch_scc0 L_nkf")
    P.cond_begin("w0")
    P(f"s_lshl_b32 {s(sT0)}, {s(sG)}, 8\ns_lshl_b32 {s(sT1)}, {s(sRT)}, 2\ns_add_u32 {s(sT0)}, {s(sT0)}, {s(sT1)}\ns_add_u32 {s(sT0)}, {s(sT0)}, {WS_KVF}")
    P(f"v_mov_b32 {v(VFV)}, 1")
    P(f"buffer_store_dword {v(VFV)}, {v(VZ)}, {s(SWS,4)}, {s(sT0)} offen sc1")
    P.cond_end()
    P("L_nkf:")
def kvpoll():
    P(f"s_cmp_eq_u32 {s(sW)}, 7")
    P("s_cbranch_scc0 L_nkp")
    n0 = len(P.ins)
    P(f"s_lshl_b32 {s(sT2)}, {s(sG)}, 8\ns_add_u32 {s(sT2)}, {s(sT2)}, {WS_KVF}\ns_mov_b32 {s(sCNT)}, 0")
    P("s_branch L_spkv1")
    P("L_spkv:")
    P(f"s_buffer_load_dwordx16 s[20:35], {s(SWS,4)}, {s(sT2)} glc")
    P("L_spkv1:")
    P(f"s_add_u32 {s(sCNT)}, {s(sCNT)}, 1")
    P("s_waitcnt lgkmcnt(0)")
    for i in range(22, 36, 2): P(f"s_and_b64 s[20:21], s[20:21], s[{i}:{i+1}]")
    P("s_and_b32 s20, s20, s21")
    P("s_cbranch_scc1 L_nkp")
    P(f"s_cmp_gt_u32 {s(sCNT)}, {SPIN_MAX}")
    P("s_cbranch_scc1 L_nkp")
    P("s_sleep 1")
    P("s_branch L_spkv")
    for I in P.ins[n0:]:
        I.cond = "kvp"
        if I.kind == "smem": I.kind = "opaque"
    P("L_nkp:")
def kvreq():
    P(f"s_cmp_eq_u32 {s(sW)}, 7")
    P("s_cbranch_scc0 L_nkr")
    n0 = len(P.ins)
    P(f"s_lshl_b32 {s(sT2)}, {s(sG)}, 8\ns_add_u32 {s(sT2)}, {s(sT2)}, {WS_KVF}")
    P(f"s_buffer_load_dwordx16 s[20:35], {s(SWS,4)}, {s(sT2)} glc")
    for I in P.ins[n0:]:
        I.cond = "kvp"
        if I.kind == "smem": I.kind = "opaque"
    P("L_nkr:")
S.blk[87] = kvreq; S.blk[94] = kvpoll
S.post[94] += [f"ds_read_b128 {v(CSR,4)}, {v(VCSA)} offset:2048"] + phi_load(1, T + 8)
run_sched(S, [ACC0, ACC1, ACC2])
stamp("sub2")
PQ = WF
def Gq(r): return XF + 8 * r
Z = XF + 80; GA = XF + 64
VG, VGZ = S1, S2
P(f"s_mul_i32 {s(sT2)}, {s(sG)}, {16*KVP_SZ}\ns_lshr_b32 {s(sT0)}, {s(sW)}, 1\ns_mul_i32 {s(sT0)}, {s(sT0)}, 1152\ns_add_u32 {s(sT2)}, {s(sT2)}, {s(sT0)}\ns_add_u32 {s(sT2)}, {s(sT2)}, {WS_KVP}")
P(f"v_and_b32 {v(VGZ)}, 15, {v(vL)}\nv_mul_u32_u24 {v(VGZ)}, {KVP_SZ}, {v(VGZ)}\nv_and_b32 {v(VG)}, 16, {v(vL)}\nv_add_u32 {v(VGZ)}, {v(VGZ)}, {v(VG)}\ns_lshl_b32 {s(sT0)}, {s(sSH)}, 4\nv_add_u32 {v(VGZ)}, {s(sT0)}, {v(VGZ)}")
P(f"v_lshrrev_b32 {v(VG)}, 5, {v(vL)}\nv_mul_u32_u24 {v(VG)}, {8*KVP_SZ - 512}, {v(VG)}\nv_add_u32 {v(VG)}, {v(VG)}, {v(VL16)}\ns_lshl_b32 {s(sT0)}, {s(sSH)}, 8\nv_add_u32 {v(VG)}, {s(sT0)}, {v(VG)}")
gl = [[f"buffer_load_dwordx4 {v(Z,4)}, {v(VGZ)}, {s(SWS,4)}, {s(sT2)} offen offset:1024 sc1"]]
for r in range(8):
    gl.append(lines(f"s_add_u32 {s(sD1)}, {s(sRT)}, {r}\ns_and_b32 {s(sD1)}, {s(sD1)}, 7\ns_mul_i32 {s(sD1)}, {s(sD1)}, {KVP_SZ}\ns_add_u32 {s(sD1)}, {s(sD1)}, {s(sT2)}") +
              [f"buffer_load_dwordx4 {v(Gq(r),4)}, {v(VG)}, {s(SWS,4)}, {s(sD1)} offen sc1"])
P.add(aug(ACC2, CSR, None))
bd = sum([b_dma(kk) for kk in (5, 6, 7)], [])
GD = int(OPT.get("gd", 2))
for g_ in bd[:GD]: P.add(g_)
for i in range(8): P(f"v_cvt_pk_bf16_f32 {v(T+i)}, {v(ACC2+2*i)}, {v(ACC2+2*i+1)}")
P(mfma(ACC1, AX, T, "0"))
P(mfma(ACC2, T + 8, T + 4, "0"))
P.add(interleave(gl, softmax(ACC1, PQ, LS)))
stamp("qsm")
P(spoll(0))
P.add(interleave(bd[GD:], softmax(ACC2, PQ + 8, LS)))
stamp("sm2")
sneed(1, 0)
validate([Z + i for i in range(4)] + [Gq(r) + i for r in range(8) for i in range(4)], T + 16, sum(gl, []))
stamp("kvseen")
aj = sum([a_jobs(kk) for kk in range(4)], [])
n_o0 = len(P.ins)
P(f"v_lshrrev_b32 {v(T+1)}, 5, {v(vL)}")
P(f"v_bfe_u32 {v(T+2)}, {v(vL)}, 4, 1\nv_lshlrev_b32 {v(T+2)}, 9, {v(T+2)}\nv_lshl_add_u32 {v(T+2)}, {v(T+1)}, 3, {v(T+2)}")
P(f"s_lshl_b32 {s(sT0)}, {s(sW)}, 10\ns_add_u32 {s(sT0)}, {s(sT0)}, {L_KVB}\nv_add_u32 {v(T+2)}, {s(sT0)}, {v(T+2)}")
P(f"v_and_b32 {v(T+3)}, 15, {v(vL)}\nv_lshl_add_u32 {v(T+3)}, {v(T+3)}, 4, {v(T+2)}")
P(f"v_cmp_gt_u32 vcc, 32, {v(vL)}\ns_mov_b32 {s(sT0)}, 0x3f80\ns_mov_b32 {s(sT1)}, 0x3f800000")
P(f"v_cndmask_b32 {v(Z)}, {v(Z+2)}, {v(Z)}, vcc\nv_cndmask_b32 {v(Z+1)}, {v(Z+3)}, {v(Z+1)}, vcc")
P(f"v_lshlrev_b32 {v(Z+8)}, 16, {v(Z)}\nv_and_b32 {v(Z+9)}, 0xffff0000, {v(Z)}\nv_lshlrev_b32 {v(Z+10)}, 16, {v(Z+1)}\nv_and_b32 {v(Z+11)}, 0xffff0000, {v(Z+1)}")
for ror in (8, 4, 2, 1):
    for i in range(4): P(f"v_add_f32_dpp {v(Z+8+i)}, {v(Z+8+i)}, {v(Z+8+i)} row_ror:{ror} row_mask:0xf bank_mask:0xf")
P(f"v_cvt_pk_bf16_f32 {v(Z)}, {v(Z+8)}, {v(Z+9)}\nv_cvt_pk_bf16_f32 {v(Z+1)}, {v(Z+10)}, {v(Z+11)}")
P(f"ds_write_b64 {v(T+2)}, {v(Z,2)} offset:256")
def ga(i): return GA + (i & 3) + 8 * (i >> 2)
for i in range(4):
    P(f"v_lshlrev_b32 {v(ga(2*i))}, 16, {v(Gq(0)+i)}\nv_and_b32 {v(ga(2*i+1))}, 0xffff0000, {v(Gq(0)+i)}")
for r in range(1, 8):
    for i in range(4):
        P(f"v_dot2c_f32_bf16 {v(ga(2*i))}, {s(sT0)}, {v(Gq(r)+i)}\nv_dot2c_f32_bf16 {v(ga(2*i+1))}, {s(sT1)}, {v(Gq(r)+i)}")
for i in range(4): P(f"v_permlane32_swap_b32 {v(ga(i))}, {v(ga(i+4))}")
for i in range(4): P(f"v_add_f32 {v(ga(i))}, {v(ga(i))}, {v(ga(i+4))}")
P(f"v_cvt_pk_bf16_f32 {v(GA)}, {v(GA)}, {v(GA+1)}\nv_cvt_pk_bf16_f32 {v(GA+1)}, {v(GA+2)}, {v(GA+3)}")
P(f"ds_write_b64 {v(T+3)}, {v(GA,2)}")
stamp("gsum")
P(f"v_and_b32 {v(T)}, 31, {v(vL)}\nv_min_u32 {v(T)}, 16, {v(T)}\nv_and_b32 {v(T+1)}, 32, {v(vL)}\nv_add_u32 {v(T)}, {v(T)}, {v(T+1)}\nv_lshlrev_b32 {v(T)}, 4, {v(T)}")
P(f"s_lshl_b32 {s(sT0)}, {s(sHALF)}, 12\ns_add_u32 {s(sT0)}, {s(sT0)}, {L_KVB}\nv_add_u32 {v(T)}, {s(sT0)}, {v(T)}")
P("s_waitcnt lgkmcnt(0)")
P("s_barrier")
for i in range(4): P(f"ds_read_b128 {v(Gq(i),4)}, {v(T)} offset:{1024*i}")
P(mfma(ACC0, Gq(0), PQ, "0")); P(mfma(ACC1, Gq(2), PQ + 8, "0"))
P(mfma(ACC0, Gq(1), PQ + 4)); P(mfma(ACC1, Gq(3), PQ + 12))
body = P.ins[n_o0:]; del P.ins[n_o0:]
for i, g_ in enumerate(aj):
    P.add(g_); P.ins += body[len(body)*i//8: len(body)*(i+1)//8]
P(spoll(0))
for hl, acc in enumerate((ACC0, ACC1)):
    P(f"v_add_f32 {v(acc+8)}, {f2u(1e-6):#x}, {v(acc+8)}\nv_rcp_f32 {v(acc+8)}, {v(acc+8)}")
    for i in range(8): P(f"v_mul_f32 {v(acc+i)}, {v(acc+i)}, {v(acc+8)}")
    for i in range(4): P(f"v_cvt_pk_bf16_f32 {v(T+4*hl+i)}, {v(acc+2*i)}, {v(acc+2*i+1)}")
    P(f"buffer_store_dwordx4 {v(T+4*hl,4)}, {v(VL16)}, {s(SWS,4)}, {s(sOS)} offen offset:{1024*hl} sc1")
stamp("p1end")
phase2(("B6", "B7"), "B8 A4 A5 B9 A6 A7 A8 B10 A9 B11 A10 B12 A11 B13 A12 B14 A13 B15 B16 B17 A14 A15 A16 A17")

P("L_ffn:")
P(".reset")
setup(True)
KAREA[:] = [RC, RA+2*Q, RA+3*Q, RB, RB+Q, RB+2*Q, RA, RA+Q, RB+3*Q]
MC = ACC2; CSF = ACC2 + 4
S = Sched(112)
common_sched(S, True, None, MC)
S.post[30] += [f"ds_read_b128 {v(CSF,4)}, {v(VCSA)}"]
pzs = [[f"s_add_u32 {s(sT2)}, {s(sH0)}, 8192", f"buffer_store_dwordx4 {v(PZ,4)}, {v(VL16)}, {s(SWS,4)}, {s(sT2)} offen sc1"],
       [f"buffer_store_dwordx4 {v(PZ,4)}, {v(VL16)}, {s(SWS,4)}, {s(sT2)} offen offset:1024 sc1"],
       [f"buffer_store_dwordx4 {v(PZ,4)}, {v(VL16)}, {s(SWS,4)}, {s(sH3)} offen sc1 ; tag=h1"]]
for g_, G in zip(pzs, [int(x) for x in OPT.get("pz", "50,57,68").split(",")]): S.post[G] += g_
S.post[31] += stamp_i("pass1")
fill = stats_final() + aug(ACC0, CSF, BIAS)
fill += [f"v_mul_f32 {v(K1)}, {f2u(GC1):#x}, {v(RSTD)}", f"v_mul_f32 {v(K2)}, {v(RSTD)}, {v(RSTD)}",
         f"v_mul_f32 {v(K2)}, {v(K2)}, {v(RSTD)}", f"v_mul_f32 {v(K2)}, {f2u(GC2):#x}, {v(K2)}"]
S.spread(fill, 32, 39)
S.spread(gelu(ACC0, 16) + hstore(sH0, 2, "h1") + [f"s_add_u32 {s(sH0)}, {s(sH0)}, 4096"], 39, 64)
S.post[62] += [f"ds_read_b128 {v(CSF,4)}, {v(VCSA)} offset:1024"]
S.post[63] += stamp_i("sub1")
S.spread(aug(ACC1, CSF, BIAS + 1), 64, 66)
S.spread(gelu(ACC1, 16) + hstore(sH0, 2, "h2") + [f"s_add_u32 {s(sH0)}, {s(sH0)}, 4096"], 67, 96)
w3 = sum([w3quarter(q, 3584) for q in range(4)], [])
for g_, G in zip(w3 + b_dma(0), [int(x) for x in OPT.get("w3", "48,54,60,72,75,76").split(",")]): S.dma[G] += g_
S.dmas(b_dma(1), 78, 2); S.dmas(b_dma(2), 82, 2); S.dmas(b_dma(3), 86, 2); S.dmas(b_dma(4), 90, 2); S.dmas(b_dma(5), 100, 2)
S.pre[94] += [".waitvm w3 lgkm0", "s_barrier"]
S.post[94] += [f"ds_read_b128 {v(CSF,4)}, {v(VCSA)} offset:2048"]
S.post[95] += stamp_i("sub2")
S.fill[96] += aug(ACC0, CSF, BIAS + 2)
S.spread(gelu(ACC0, 16), 98, 112)
S.pre[100] += ["s_barrier"]
aj = sum([a_jobs(kk) for kk in range(4)], [])
S.dmas(aj[:4], 106)
for i in range(0, 16, 2): S.post[96 + i] += [m16(MC, SEL, WF + 4 * (i & 3), "0" if i == 0 else None)]
run_sched(S, [ACC0, ACC1, ACC0, ACC1])
t = T + 16
P(f"v_and_b32 {v(t)}, 31, {v(vL)}\ns_lshl_b32 {s(sT0)}, {s(sHALF)}, 4\nv_xor_b32 {v(t)}, {s(sT0)}, {v(t)}\nv_lshlrev_b32 {v(t)}, 4, {v(t)}\nv_add_u32 {v(t)}, {L_CS+3072}, {v(t)}")
P(f"v_add_u32 {v(t+1)}, {s(sW34)}, {v(VCSA)}")
P(f"ds_write_b32 {v(t+1)}, {v(MC)} offset:3072")
P.add(aj[4])
P(f"s_add_u32 {s(sT1)}, {s(sM0x)}, {KAREA[8]}\ns_xor_b32 {s(sT0)}, {s(sT1)}, 8192\nv_add_u32 {v(t+1)}, {s(sT0)}, {v(VL16)}\nv_add_u32 {v(AB)}, {s(sT1)}, {v(VL16)}")
P(f"ds_write_b128 {v(t+1)}, {v(ACC1+8,4)}\nds_write_b128 {v(t+1)}, {v(ACC1+12,4)} offset:1024")
P("s_waitcnt lgkmcnt(0)")
P("s_barrier")
stamp("sub3")
P(f"ds_read_b128 {v(CSF,4)}, {v(t)}")
P(f"ds_read_b128 {v(ACC0,4)}, {v(AB)}\nds_read_b128 {v(ACC0+4,4)}, {v(AB)} offset:1024")
P.add(aj[5])
P.add(aug(ACC1, CSF, BIAS + 3))
P.add(aj[6] + aj[7])
for i in range(0, 8, 2): P(f"v_pk_add_f32 {v(ACC1+i,2)}, {v(ACC1+i,2)}, {v(ACC0+i,2)}")
stamp("x7")
gt = gelu(ACC1, 8, True, out=BIAS); h3 = hstore(sH0, 2, "h3")
P.add([h3[0]] + gt[:20] + [h3[1], spoll(0)] + gt[20:] + hstore(sH3, 1, "h4", BIAS))
stamp("p1end")
phase2(())

P("L_end:")
P("s_endpgm")

ins = P.ins
for I in ins:
    if "; nodef" in I.text: I.defs = []
if OPT.get("nodma"): ins = [I for I in ins if I.kind != "dma"]
if OPT.get("notr"): ins = [I for I in ins if not I.op.startswith("ds_read_b64_tr")]
if OPT.get("nofmac"): ins = [I for I in ins if not (I.op.startswith("v_fmac") or (I.op == "v_and_b32" and "0xffff0000" in I.text) or (I.op == "v_lshlrev_b32" and I.ops[1] == "16"))]
if OPT.get("nom16"): ins = [I for I in ins if "16x16x32" not in I.op]
if OPT.get("notrans"): ins = [I for I in ins if not I.op.startswith(("v_exp", "v_rcp"))]
if OPT.get("novalu"): ins = [I for I in ins if not I.op.startswith(("v_exp", "v_rcp", "v_mul_f32", "v_fma_f32", "v_cvt_pk", "v_max3", "v_add_f32"))]
if OPT.get("nost"): ins = [I for I in ins if not (I.kind == "vst" and "x4" in I.op and "tag=h" in I.text)]
if OPT.get("nomfma"): ins = [I for I in ins if I.kind != "mfma"]
if STAMP:
    for I in ins:
        if I.op in ("s_memrealtime", "s_memtime"): I.kind = "salu"
ins = auto_wait(ins)
st = []
ins = hazards(ins, st)
hdr = open("parallel_sum__linear_kernel_hedgehog__dense_activation_gelu__prompt.s.ref").read().split("; Override")[0]
out = hdr + f"; @launch grid=(256,1,1) block=(512,1,1) lds={LDS_SIZE}\n"
out += f'.amdgcn_target "amdgcn-amd-amdhsa--gfx950"\n.text\n.globl {NAME}\n.p2align 8\n.type {NAME},@function\n{NAME}:\n'
out += render(ins)
out += f""".section .rodata,"a"
.p2align 6
.amdhsa_kernel {NAME}
  .amdhsa_next_free_vgpr 256
  .amdhsa_next_free_sgpr 102
  .amdhsa_accum_offset 256
  .amdhsa_group_segment_fixed_size 0
  .amdhsa_kernarg_size 96
  .amdhsa_user_sgpr_count 2
  .amdhsa_user_sgpr_kernarg_segment_ptr 1
  .amdhsa_system_sgpr_workgroup_id_x 1
.end_amdhsa_kernel
"""
open(sys.argv[1], "w").write(out)
print(f"instrs={sum(1 for I in ins if I.kind not in ('label','dir'))} nop-sites={len(st)} nop-states={sum(n for n,_ in st)}", file=sys.stderr)
if OPT.get("nops"):
    for n, tx in st: print(n, tx, file=sys.stderr)
```

```python
import sys, math, struct
from ir import *

NAME = "parallel_sum__linear_kernel_hedgehog__dense_activation_gelu__prompt_kernel"
OPT = dict(a.split("=") for a in sys.argv[2:] if "=" in a)
STAMP = int(OPT.get("stamp", 0))

def f2u(x): return struct.unpack("<I", struct.pack("<f", x))[0]
LOG2E = 1.4426950408889634
GC1 = -2.0 * LOG2E * math.sqrt(2.0 / math.pi)
GC2 = GC1 * 0.044715

HF_RB = 144 * 1024
WS_KVP = 0xA00000
KVP_SZ = 4608
WS_FLG = 0xC00000
WS_KVF = 0xC08000
WS_STAMP = 0xD00000
WS_SIZE = 0x1000000
RA, RB, RC = 0, 65536, 131072
L_KVB = 147456
L_CS = 155648
L_ST = L_CS + 4096
L_WPHI = L_CS + 6144
LDS_SIZE = 163840
SPIN_MAX = 1 << 15

sW, sRT, sG, sM, sN = 3, 4, 5, 6, 7
SX, SW2, SWS, SWT, SAUX, SDBG, SWO, SOUT = 8, 12, 16, 20, 24, 28, 36, 40
sXo, sWo, sROT, sC1 = 32, 33, 34, 35
SB2 = 92
sFL, sOo, sM0x, sT0, sT1, sSIG, sONE, sFO, sHALF, sHo, sWq, sW3, sT2, sCNT, sW34, sT3 = range(44, 60)
sEX = 60
sH0, sH3, sM4, sK = 62, 63, 64, 65
sST = 66
sB2o, sBOo = 90, 91
sA0, sA1, sR4, sSH, sD0, sD1 = range(96, 102)
sOK = sSIG
sQ = [sXo, sWo, sROT, sC1]
sPL = 28
VCSA = 0; vL = 1
AX = 2; AW = 6; AB = 10; VZ, VFV = 12, 13
VX0, VX1, VW, VB, VW3 = 14, 15, 16, 17, 18
VSTA, S1, S2, CS0 = 19, 20, 21, 22
VW0 = 22
RSTD, STD, K1, K2, VL16 = 23, 24, 25, 26, 27
BAUG, AAUG, SEL, BIAS = 28, 32, 36, 40
T = 44
WF = 64
ACC0, ACC1, ACC2 = 80, 96, 112
XF = 128
VTD = 15
PZ = ACC2 + 8

P = Prog()
STI = dict(start=0, kernarg=1, it0=2, pass1=3, sub1=4, sub2=5, qsm=6, sub3=6, kvseen=7, x7=7, p1end=8, hseen=9, p2mm=10, end=11)
if OPT.get("sp") == "p2": STI = dict(start=0, p1end=1, k1=2, k3=3, k5=4, k7=5, k9=6, k11=7, k13=8, k15=9, p2mm=10, end=11)
if OPT.get("sp") == "att": STI = dict(start=0, sub1=1, kv0=2, kv1=3, kv2=4, sub2=5, qsm=6, kvseen=7, sm2=8, gsum=9, p1end=10, end=11)
if OPT.get("sp", "").startswith("l:"): STI = {n: i for i, n in enumerate(["start"] + OPT["sp"][2:].split(","))}
def stamp_i(name):
    if not STAMP or name not in STI: return []
    i = STI[name]
    return [f"{'s_memrealtime' if STAMP == 1 else 's_memtime'} {s(sST + 2*i, 2)} ; stamp {i} {name}"]
def stamp(name): P.add(stamp_i(name))

def mfma(d, a, b, c=None):
    return f"v_mfma_f32_32x32x16_bf16 {v(d,16)}, {v(a,4)}, {v(b,4)}, {v(d,16) if c is None else c}"
def m16(d, a, b, c=None):
    return f"v_mfma_f32_16x16x32_bf16 {v(d,4)}, {v(a,4)}, {v(b,4)}, {v(d,4) if c is None else c}"
def srd(base, nbytes):
    P(f"s_mov_b32 {s(base+2)}, {nbytes}\ns_mov_b32 {s(base+3)}, 0x20000")
def lines(t): return [l for l in t.split("\n") if l.strip()]

P("s_cmp_ge_u32 s2, 256")
P("s_cbranch_scc1 L_end")
stamp("start")
if OPT.get("exit0"): P("s_endpgm")
if OPT.get("cpf", "1") == "3":
    P(f"s_getpc_b64 {s(sEX,2)}")
    P("L_pc0:")
    P(f"v_subrev_u32 v3, 320, v0\nv_cmp_gt_u32 vcc, 16, v3\ns_lshr_b32 {s(sT0)}, s2, 3\ns_lshl_b32 {s(sT0)}, {s(sT0)}, 11")
    P("s_cbranch_vccz L_ncp0")
    P.cond_begin("cp0")
    P(f"v_and_b32 v3, 15, v3\nv_lshlrev_b32 v3, 7, v3\nv_add_u32 v3, {s(sT0)}, v3\nv_min_u32 v3, L_end-L_pc0, v3")
    P(f"global_load_dword v253, v3, {s(sEX,2)}")
    P.cond_end()
    P("L_ncp0:")
if OPT.get("cpf", "1") == "2":
    P(f"s_getpc_b64 {s(sEX,2)}")
    P("L_pc0:")
    P(f"v_lshlrev_b32 v3, 7, v0")
    P(f"v_min_u32 v3, L_end-L_pc0, v3")
    P(f"global_load_dword v253, v3, {s(sEX,2)}")
P(f"s_load_dwordx2 {s(SX,2)}, s[0:1], 0")
P(f"s_load_dwordx2 {s(SWS,2)}, s[0:1], 88")
P(f"s_load_dwordx2 {s(SDBG,2)}, s[0:1], 80")
P(f"s_load_dwordx2 {s(SW2,2)}, s[0:1], 56")
P(f"s_load_dwordx2 {s(SWO,2)}, s[0:1], 24")
P(f"s_load_dwordx2 {s(SOUT,2)}, s[0:1], 72")
P(f"s_load_dwordx2 {s(SB2,2)}, s[0:1], 64")
if OPT.get("stouch", "0") != "0":
    P(f"s_load_dwordx2 {s(sEX,2)}, s[0:1], 8")
    P(f"s_load_dwordx2 {s(sA0,2)}, s[0:1], 40")
P(f"v_lshrrev_b32 v2, 6, v0")
P(f"v_and_b32 {v(vL)}, 63, v0")
P(f"s_and_b32 {s(sT0)}, s2, 7")
P(f"s_lshr_b32 {s(sT1)}, s2, 3")
P(f"v_readfirstlane_b32 {s(sW)}, v2")
P(f"s_lshr_b32 {s(sRT)}, {s(sT0)}, 2\ns_lshl_b32 {s(sRT)}, {s(sRT)}, 3\ns_and_b32 {s(sT2)}, {s(sT1)}, 7\ns_add_u32 {s(sRT)}, {s(sRT)}, {s(sT2)}")
P(f"s_and_b32 {s(sG)}, {s(sT0)}, 3\ns_lshl_b32 {s(sG)}, {s(sG)}, 1\ns_lshr_b32 {s(sT2)}, {s(sT1)}, 4\ns_add_u32 {s(sG)}, {s(sG)}, {s(sT2)}")
P(f"s_lshl_b32 {s(sM)}, {s(sT0)}, 2\ns_and_b32 {s(sT2)}, {s(sT1)}, 3\ns_add_u32 {s(sM)}, {s(sM)}, {s(sT2)}")
P(f"s_lshr_b32 {s(sN)}, {s(sT1)}, 2")
srd(SX, 2097152)
P(f"s_lshl_b32 {s(sM0x)}, {s(sW)}, 11")
P(f"v_lshrrev_b32 v2, 3, {v(vL)}\nv_and_b32 v3, 7, {v(vL)}\nv_lshrrev_b32 v4, 4, {v(vL)}")
P(f"v_xor_b32 v5, v3, v4\nv_lshlrev_b32 v5, 4, v5\nv_lshl_add_u32 {v(VX0)}, v2, 10, v5")
P(f"v_xor_b32 v5, 64, {v(VX0)}\nv_add_u32 {v(VX1)}, {8192-1024}, v5")
P(f"v_and_b32 v4, 1, v4\nv_lshlrev_b32 v4, 2, v4\nv_xor_b32 v4, v3, v4\nv_lshlrev_b32 v4, 4, v4")
P(f"v_lshl_add_u32 {v(VB)}, v2, 10, v4")
P(f"s_lshl_b32 {s(sXo)}, {s(sRT)}, 17\ns_lshl_b32 {s(sT2)}, {s(sW)}, 14\ns_add_u32 {s(sXo)}, {s(sXo)}, {s(sT2)}")
P(f"s_lshr_b32 {s(sT2)}, {s(sT1)}, 3\ns_lshl_b32 {s(sT2)}, {s(sT2)}, 1\ns_add_u32 {s(sROT)}, {s(sRT)}, {s(sT2)}\ns_and_b32 {s(sROT)}, {s(sROT)}, {OPT.get('rm', 7)}")
if OPT.get("norot"): P(f"s_mov_b32 {s(sROT)}, 0")
P(f"s_lshl_b32 {s(sK)}, {s(sROT)}, 7")
P(f"v_add_u32 {v(VX0)}, {s(sXo)}, {v(VX0)}\nv_add_u32 {v(VX1)}, {s(sXo)}, {v(VX1)}")
P(f"s_lshr_b32 {s(sD0)}, {s(sM0x)}, 1")
P(f"s_bitcmp1_b32 {s(sT1)}, 3")
P("s_cbranch_scc1 L_ffn")

def item1(it, pitch):
    q = it & 3
    return [[f"s_add_u32 m0, {s(sM0x)}, {RA+q*16384}", f"s_mul_i32 {s(sD1)}, {s(sK)}, {pitch//2}",
             f"buffer_load_dwordx4 {v(VX0)}, {s(SX,4)}, {s(sK)} offen lds"],
            [f"buffer_load_dwordx4 {v(VX1)}, {s(SX,4)}, {s(sK)} offen offset:1024 lds"],
            [f"s_add_u32 m0, {s(sD0)}, {RB+it*8192}", f"s_add_u32 {s(sK)}, {s(sK)}, 128",
             f"buffer_load_dwordx4 {v(VW0)}, {s(SWT,4)}, {s(sD1)} offen lds ; tag=it{it}",
             f"s_and_b32 {s(sK)}, {s(sK)}, 1023"]]
def wquarter(region, q, coloff, pitch, tag):
    return [[f"s_add_u32 m0, {s(sM0x)}, {region+q*16384}", f"s_add_u32 {s(sD1)}, {s(sQ[q])}, {coloff}",
             f"buffer_load_dwordx4 {v(VW)}, {s(SWT,4)}, {s(sD1)} offen lds"],
            [f"s_add_u32 {s(sD1)}, {s(sD1)}, {8*pitch-1024}",
             f"buffer_load_dwordx4 {v(VW)}, {s(SWT,4)}, {s(sD1)} offen offset:1024 lds ; tag={tag}"]]
def w3quarter(q, pitch):
    return [[f"s_lshr_b32 {s(sD1)}, {s(sM0x)}, 1", f"s_add_u32 m0, {s(sD1)}, {RA+q*8192}", "s_nop 0",
             f"buffer_load_dwordx4 {v(VW3)}, {s(SWT,4)}, {s(sQ[q])} offen lds ; tag=w3"]]

def spin(label, load, cmp):
    P(f"s_mov_b32 {s(sCNT)}, 0")
    P(f"{label}:")
    P(cmp)
    P(f"s_add_u32 {s(sCNT)}, {s(sCNT)}, 1")
    P(f"s_cbranch_vccz {label}_ok")
    P(f"s_cmp_gt_u32 {s(sCNT)}, {SPIN_MAX}")
    P(f"s_cbranch_scc1 {label}_ok")
    P("s_sleep 1")
    old = P._cond; P._cond = label
    P(load)
    P("s_waitcnt vmcnt(0)")
    P._cond = old
    P(f"s_branch {label}")
    P(f"{label}_ok:")

def gelu(acc, n, pk=False, t0=T, out=T):
    L = []
    for g4 in range(0, n, 4):
        t = t0 + 8 + (g4 & 4)
        a = [acc + g4 + i for i in range(4)]
        if pk:
            L += [f"v_pk_mul_f32 {v(t+i,2)}, {v(a[i],2)}, {v(a[i],2)}" for i in (0, 2)]
            L += [f"v_pk_fma_f32 {v(t+i,2)}, {v(t+i,2)}, {v(K2,2)}, {v(STD,2)} op_sel:[0,0,1] op_sel_hi:[1,0,1]" for i in (0, 2)]
            L += [f"v_pk_mul_f32 {v(t+i,2)}, {v(a[i],2)}, {v(t+i,2)}" for i in (0, 2)]
        else:
            L += [f"v_mul_f32 {v(t+i)}, {v(a[i])}, {v(a[i])}" for i in range(4)]
            L += [f"v_fma_f32 {v(t+i)}, {v(t+i)}, {v(K2)}, {v(K1)}" for i in range(4)]
            L += [f"v_mul_f32 {v(t+i)}, {v(a[i])}, {v(t+i)}" for i in range(4)]
        L += [f"v_exp_f32 {v(t+i)}, {v(t+i)}" for i in range(4)]
        if pk: L += [f"v_pk_fma_f32 {v(t+i,2)}, {v(t+i,2)}, {v(STD,2)}, {v(STD,2)} op_sel_hi:[1,0,0]" for i in (0, 2)]
        else: L += [f"v_fma_f32 {v(t+i)}, {v(t+i)}, {v(STD)}, {v(STD)}" for i in range(4)]
        L += [f"v_rcp_f32 {v(t+i)}, {v(t+i)}" for i in range(4)]
        if pk: L += [f"v_pk_mul_f32 {v(t+i,2)}, {v(a[i],2)}, {v(t+i,2)}" for i in (0, 2)]
        else: L += [f"v_mul_f32 {v(t+i)}, {v(a[i])}, {v(t+i)}" for i in range(4)]
        pr = out + (g4 >> 1)
        L += [f"v_cvt_pk_bf16_f32 {v(pr)}, {v(t)}, {v(t+1)}", f"v_cvt_pk_bf16_f32 {v(pr+1)}, {v(t+2)}, {v(t+3)}"]
    return L
def hstore(soff, n, tagn, src=T):
    return [f"buffer_store_dwordx4 {v(src+4*j,4)}, {v(VL16)}, {s(SWS,4)}, {s(soff)} offen offset:{1024*j} sc1 ; tag={tagn}" for j in range(n)]
assert K1 == STD + 1

def sum4(d, r):
    return [f"v_add_f32 {v(d)}, {v(r)}, {v(r+1)}", f"v_add_f32 {v(r+2)}, {v(r+2)}, {v(r+3)}", f"v_add_f32 {v(d)}, {v(d)}, {v(r+2)}"]

MS, U = T + 4, T + 16
CSR = T + 12
MC = AAUG

def stats_final():
    t = T + 16
    return [f"v_add_f32 {v(S1)}, {v(MS)}, {v(MS+2)}", f"v_add_f32 {v(S2)}, {v(MS+1)}, {v(MS+3)}",
          f"v_mul_f32 {v(S1)}, {f2u(-1.0/512):#x}, {v(S1)}",
          f"v_mul_f32 {v(t)}, {v(S1)}, {v(S1)}",
          f"v_fma_f32 {v(S2)}, {v(S2)}, {s(sT3)}, -{v(t)}",
          f"v_max_f32 {v(S2)}, 0, {v(S2)}",
          f"v_add_f32 {v(S2)}, {f2u(1e-5):#x}, {v(S2)}",
          f"v_rsq_f32 {v(RSTD)}, {v(S2)}",
          f"v_cvt_pk_bf16_f32 {v(t)}, {v(S1)}, {v(S1)}",
          f"v_mul_f32 {v(STD)}, {v(S2)}, {v(RSTD)}",
          f"v_and_b32 {v(t+1)}, 0xffff0000, {v(t)}",
          f"v_sub_f32 {v(t+1)}, {v(S1)}, {v(t+1)}",
          f"v_cvt_pk_bf16_f32 {v(BAUG)}, {v(S1)}, {v(t+1)}",
          f"v_cvt_pk_bf16_f32 {v(BAUG+1)}, {v(S1)}, {v(STD)}",
          f"v_and_b32 {v(t+1)}, 0xffff0000, {v(BAUG+1)}",
          f"v_sub_f32 {v(t+1)}, {v(STD)}, {v(t+1)}",
          f"v_cmp_gt_u32 vcc, 32, {v(vL)}",
          f"v_cvt_pk_bf16_f32 {v(BAUG+2)}, {v(t+1)}, 0",
          f"v_cndmask_b32 {v(BAUG)}, 0, {v(BAUG)}, vcc",
          f"v_cndmask_b32 {v(BAUG+1)}, 0, {v(BAUG+1)}, vcc",
          f"v_cndmask_b32 {v(BAUG+2)}, 0, {v(BAUG+2)}, vcc"]

def aug(acc, part, bias):
    t = T + 18; dst = AAUG
    L = sum4(CS0, part) + [f"v_cvt_pk_bf16_f32 {v(dst)}, {v(CS0)}, {v(CS0)}",
         f"v_and_b32 {v(t)}, 0xffff0000, {v(dst)}",
         f"v_sub_f32 {v(t)}, {v(CS0)}, {v(t)}"]
    if bias is None:
        L += [f"v_cvt_pk_bf16_f32 {v(dst+1)}, {v(t)}, 0"]
    else:
        L += [f"v_cvt_pk_bf16_f32 {v(t)}, {v(t)}, 0", f"v_mov_b32 {v(dst+2)}, {v(bias)}",
              f"v_lshl_or_b32 {v(dst+1)}, {v(bias)}, 16, {v(t)}"]
    return L + [mfma(acc, dst, BAUG)]

def flag(level, tag):
    return [f".waitvm {tag}", f"v_mov_b32 {v(VFV)}, {level}",
            f"buffer_store_dword {v(VFV)}, {v(VZ)}, {s(SWS,4)}, {s(sFO)} offen sc1"]

Q = 16384
KAREA = []
def rot_k(kk, dst):
    if kk < 12: return [f"s_add_u32 {s(dst)}, {s(sR4)}, {kk}", f"s_and_b32 {s(dst)}, {s(dst)}, 3", f"s_add_u32 {s(dst)}, {s(dst)}, {s(sSH)}"] + \
                       ([f"s_add_u32 {s(dst)}, {s(dst)}, {kk & ~3}"] if kk & ~3 else [])
    if kk < 14: return [f"s_mul_i32 {s(dst)}, {s(sSH)}, 6", f"s_sub_u32 {s(dst)}, {kk}, {s(dst)}"]
    return [f"s_add_u32 {s(dst)}, {s(sR4)}, {kk-14}", f"s_and_b32 {s(dst)}, {s(dst)}, 3"]
def b_dma(kk):
    slot = kk % 9
    m0 = f"s_add_u32 m0, {s(sM0x)}, {KAREA[slot]}"
    sr, so = (SW2, sB2o) if kk < 14 else (SWO, sBOo)
    return [rot_k(kk, sD0) + [f"s_lshl_b32 {s(sD0)}, {s(sD0)}, 14", m0, f"s_add_u32 {s(sD0)}, {s(sD0)}, {s(so)}",
             f"buffer_load_dwordx4 {v(VB)}, {s(sr,4)}, {s(sD0)} offen lds"],
            [f"s_add_u32 {s(sD0)}, {s(sD0)}, {8192 - 1024}",
             f"buffer_load_dwordx4 {v(VB)}, {s(sr,4)}, {s(sD0)} offen offset:1024 lds ; tag=b{kk}"]]

def setup(ffn):
    pitch = 3584 if ffn else 3072
    tp = "f" if ffn else "a"
    P(f"s_load_dwordx2 {s(SWT,2)}, s[0:1], {40 if ffn else 8}")
    P(f"s_load_dwordx2 {s(SAUX,2)}, s[0:1], {48 if ffn else 16}")
    srd(SWT, 1835008 if ffn else 1572864)
    P(f"v_mul_u32_u24 {v(VW)}, {pitch}, v2\nv_add_u32 {v(VW)}, {v(VW)}, v4")
    if ffn:
        P(f"s_mul_i32 {s(sT0)}, {s(sG)}, 448\ns_and_b32 {s(sT1)}, {s(sG)}, 1\ns_lshl_b32 {s(sT2)}, {s(sT1)}, 6\ns_add_u32 {s(sWq)}, {s(sT0)}, {s(sT2)}")
        P(f"s_mul_i32 {s(sWo)}, {s(sW)}, {8*pitch}\ns_add_u32 {s(sWo)}, {s(sWo)}, {s(sWq)}")
    else:
        P(f"s_lshl_b32 {s(sWq)}, {s(sG)}, 7")
        P(f"s_mul_i32 {s(sWo)}, {s(sW)}, {8*pitch}\ns_add_u32 {s(sWo)}, {s(sWo)}, {s(sWq)}\ns_add_u32 {s(sWo)}, {s(sWo)}, 1024")
    P(f"v_add_u32 {v(VW0)}, {s(sWo)}, {v(VW)}")
    P("s_waitcnt lgkmcnt(0)")
    stamp("kernarg")
    for g_ in item1(0, pitch): P.add(g_)
    srd(SWS, WS_SIZE); srd(SDBG, 256); srd(SW2, 1835008); srd(SWO, 524288); srd(SOUT, 2097152); srd(SB2, 1024); srd(SAUX, 3584 if ffn else 16384)
    P(f"v_lshlrev_b32 {v(VL16)}, 4, {v(vL)}")
    P(f"s_lshr_b32 {s(sHALF)}, {s(sW)}, 2")
    P(f"s_and_b32 {s(sW34)}, {s(sW)}, 3\ns_xor_b32 {s(sSIG)}, {s(sW34)}, {s(sHALF)}")
    if not ffn:
        for i in range(4): P(f"v_mov_b32 {v(T+i)}, 0")
        P(f"s_lshl_b32 {s(sT0)}, {s(sW)}, 8\ns_add_u32 {s(sT0)}, {s(sT0)}, s2\ns_sub_u32 {s(sT0)}, {s(sT0)}, 256\ns_cmp_lt_u32 {s(sT0)}, 8")
        P(f"s_cbranch_scc0 L_nzero")
        P.cond_begin("zw")
        P(f"s_lshl_b32 {s(sT0)}, s2, 12\ns_add_u32 {s(sT0)}, {s(sT0)}, {WS_FLG}")
        for i in range(4): P(f"buffer_store_dwordx4 {v(T,4)}, {v(VL16)}, {s(SWS,4)}, {s(sT0)} offen offset:{1024*i} sc1")
        P(f"s_lshl_b32 {s(sT0)}, s2, 8\ns_add_u32 {s(sT0)}, {s(sT0)}, {WS_KVF}\nv_lshlrev_b32 v3, 2, {v(vL)}")
        P(f"buffer_store_dword {v(T)}, v3, {s(SWS,4)}, {s(sT0)} offen sc1 ; tag=zf")
        P.cond_end()
        P(f"L_nzero:")
    if OPT.get("touch", "1") == "1":
        P(f"s_cmp_lt_u32 {s(sW)}, 6")
        P(f"s_cbranch_scc1 L_nt{tp}")
        P.cond_begin("w67")
        P(f"v_lshlrev_b32 v3, 7, {v(vL)}\ns_mul_i32 {s(sT0)}, s2, 7168\ns_lshl_b32 {s(sT1)}, s2, 11")
        P(f"s_cmp_eq_u32 {s(sW)}, 6\ns_cbranch_scc0 L_nta{tp}")
        P(f"buffer_load_dword v255, v3, {s(SW2,4)}, {s(sT0)} offen")
        P(f"s_branch L_nt{tp}")
        P(f"L_nta{tp}:")
        P(f"v_and_b32 v3, 2047, v3")
        P(f"buffer_load_dword v255, v3, {s(SWO,4)}, {s(sT1)} offen")
        P(f"buffer_load_dword v254, v3, {s(SB2,4)}, 0 offen")
        P.cond_end()
        P(f"L_nt{tp}:")
    def wtouch():
        P(f"s_sub_u32 {s(sT0)}, {s(sW)}, 2\ns_cmp_lt_u32 {s(sT0)}, {3 if ffn else 2}")
        P(f"s_cbranch_scc0 L_nw{tp}")
        P.cond_begin("w234")
        P(f"v_mul_u32_u24 v3, {pitch}, {v(vL)}\ns_mul_i32 {s(sT1)}, {s(sROT)}, {64*pitch}\ns_add_u32 {s(sT1)}, {s(sT1)}, {s(sWq)}")
        if ffn:
            P(f"s_lshl_b32 {s(sT2)}, {s(sT0)}, 7\ns_add_u32 {s(sT1)}, {s(sT1)}, {s(sT2)}\ns_add_u32 {s(sT1)}, {s(sT1)}, 128")
            P(f"s_lshr_b32 {s(sT0)}, {s(sT0)}, 1\ns_and_b32 {s(sT0)}, {s(sT0)}, {s(sG)}\ns_mul_i32 {s(sT0)}, {s(sT0)}, 448\ns_sub_u32 {s(sT1)}, {s(sT1)}, {s(sT0)}")
        else:
            P(f"s_xor_b32 {s(sT0)}, {s(sT0)}, 1\ns_lshl_b32 {s(sT0)}, {s(sT0)}, 11\ns_add_u32 {s(sT1)}, {s(sT1)}, {s(sT0)}")
        P(f"buffer_load_dword v250, v3, {s(SWT,4)}, {s(sT1)} offen")
        P.cond_end()
        P(f"L_nw{tp}:")
    if OPT.get("wt", "0") == "1": wtouch()
    if OPT.get("cpf", "1") == "1":
        P(f"s_cmp_eq_u32 {s(sW)}, 5")
        P(f"s_cbranch_scc0 L_ncp{tp}")
        P.cond_begin("w5")
        P(f"s_getpc_b64 {s(sEX,2)}")
        P(f"L_pc{tp}:")
        P(f"s_sub_u32 {s(sEX)}, {s(sEX)}, L_pc{tp}-{NAME}\ns_subb_u32 {s(sEX+1)}, {s(sEX+1)}, 0")
        P(f"s_lshr_b32 {s(sT0)}, s2, 3\ns_lshl_b32 {s(sT0)}, {s(sT0)}, 11\nv_and_b32 v3, 15, {v(vL)}\nv_lshlrev_b32 v3, 7, v3\nv_add_u32 v3, {s(sT0)}, v3")
        P(f"v_min_u32 v3, L_end-{NAME}, v3")
        P(f"global_load_dword v253, v3, {s(sEX,2)}")
        P.cond_end()
        P(f"L_ncp{tp}:")
    if OPT.get("pt"):
        P(f"s_cmp_eq_u32 {s(sW)}, 4")
        P(f"s_cbranch_scc0 L_npt{tp}")
        n0 = len(P.ins)
        P(f"v_lshlrev_b32 v3, 21, {v(vL)}")
        P(f"buffer_load_dword v252, v3, {s(SWS,4)}, 0 offen")
        P(f"buffer_load_dword v251, v3, {s(SOUT,4)}, 0 offen")
        for I in P.ins[n0:]: I.cond = "w4"
        P(f"L_npt{tp}:")
    def stouch():
        n0 = len(P.ins)
        P(f"s_lshl_b32 {s(sT0)}, s2, 3\ns_add_u32 {s(sT0)}, {s(sT0)}, {s(sW)}\ns_mul_i32 {s(sT1)}, {s(sT0)}, 768\ns_mul_i32 {s(sT0)}, {s(sT0)}, 896")
        for i in range(6): P(f"s_load_dword {s(sCNT)}, {s(sEX,2)}, {s(sT1)} offset:{128*i}")
        for i in range(7): P(f"s_load_dword {s(sCNT)}, {s(sA0,2)}, {s(sT0)} offset:{128*i}")
    if OPT.get("stouch", "0") == "1": stouch()
    late1 = OPT.get("late1", "1") == "1"
    if not late1:
        for g_ in item1(1, pitch): P.add(g_)
    P(f"s_lshl_b32 {s(sT0)}, {s(sRT)}, 4\ns_add_u32 {s(sT0)}, {s(sT0)}, {s(sG)}\ns_lshl_b32 {s(sT0)}, {s(sT0)}, 7")
    P(f"s_and_b32 {s(sT1)}, {s(sW)}, 2\ns_lshl_b32 {s(sT1)}, {s(sT1)}, 3\ns_add_u32 {s(sT0)}, {s(sT0)}, {s(sT1)}\ns_and_b32 {s(sT1)}, {s(sW)}, 1\ns_lshl_b32 {s(sT1)}, {s(sT1)}, 2\ns_add_u32 {s(sT0)}, {s(sT0)}, {s(sT1)}\ns_lshl_b32 {s(sT1)}, {s(sHALF)}, 3\ns_add_u32 {s(sT0)}, {s(sT0)}, {s(sT1)}")
    P(f"s_add_u32 {s(sFO)}, {s(sT0)}, {WS_FLG + (1024 if ffn else 0)}")
    P(f"s_lshl_b32 {s(sT0)}, {s(sRT)}, 2\ns_add_u32 {s(sT0)}, {s(sT0)}, {s(sW34)}\ns_mul_i32 {s(sHo)}, {s(sT0)}, {HF_RB}")
    if ffn:
        P(f"v_and_b32 v5, 31, {v(vL)}\nv_lshlrev_b32 v5, 1, v5")
        P(f"s_lshl_b32 {s(sT0)}, {s(sHALF)}, 6\ns_add_u32 {s(sT0)}, {s(sT0)}, {s(sWq)}")
        for i in range(3): P(f"buffer_load_ushort {v(BIAS+i)}, v5, {s(SAUX,4)}, {s(sT0)} offen offset:{128*i}")
        P(f"s_lshl_b32 {s(sT0)}, {s(sT0)}, 5\ns_add_u32 {s(sH0)}, {s(sHo)}, {s(sT0)}")
        P(f"s_mul_i32 {s(sW3)}, {s(sG)}, 448\ns_add_u32 {s(sT0)}, {s(sW3)}, 384\ns_bitcmp1_b32 {s(sG)}, 0\ns_cselect_b32 {s(sW3)}, {s(sW3)}, {s(sT0)}")
        P(f"s_lshl_b32 {s(sT0)}, {s(sHALF)}, 5\nv_xor_b32 v5, {s(sT0)}, v5")
        P(f"buffer_load_ushort {v(BIAS+3)}, v5, {s(SAUX,4)}, {s(sW3)} offen")
        P(f"s_add_u32 {s(sT0)}, {s(sT0)}, {s(sW3)}\ns_lshl_b32 {s(sT0)}, {s(sT0)}, 5\ns_add_u32 {s(sH3)}, {s(sHo)}, {s(sT0)}")
        P(f"v_lshrrev_b32 v2, 2, {v(vL)}\nv_and_b32 v4, 3, {v(vL)}\nv_lshlrev_b32 v4, 4, v4\nv_mul_u32_u24 {v(VW3)}, {pitch}, v2\nv_add_u32 {v(VW3)}, {v(VW3)}, v4")
    else:
        P(f"s_cmp_lt_u32 {s(sW)}, 2")
        P(f"s_cbranch_scc0 L_nphi")
        P.cond_begin("w01")
        P(f"s_lshl_b32 {s(sT0)}, {s(sG)}, 11\ns_lshl_b32 {s(sT1)}, {s(sW)}, 10\ns_add_u32 {s(sT0)}, {s(sT0)}, {s(sT1)}\ns_add_u32 m0, {s(sT1)}, {L_WPHI}\ns_nop 0")
        P(f"buffer_load_dwordx4 {v(VL16)}, {s(SAUX,4)}, {s(sT0)} offen lds")
        P.cond_end()
        P("L_nphi:")
    P(f"s_mul_i32 {s(sT0)}, {s(sW34)}, {16*pitch}\ns_add_u32 {s(sWq)}, {s(sWq)}, {s(sT0)}")
    P(f"v_add_u32 {v(VW)}, {s(sWq)}, {v(VW)}")
    if ffn: P(f"s_add_u32 {s(sW3)}, {s(sW3)}, {s(sT0)}\nv_add_u32 {v(VW3)}, {s(sW3)}, {v(VW3)}")
    P(f"s_add_u32 {s(sT0)}, {s(sROT)}, {s(sHALF)}")
    for q in range(4):
        P(f"s_add_u32 {s(sT1)}, {s(sT0)}, {2*q}\ns_and_b32 {s(sT1)}, {s(sT1)}, 7\ns_mul_i32 {s(sQ[q])}, {s(sT1)}, {64*pitch}")
    P(f"s_mov_b32 {s(sT3)}, {f2u(1.0/512):#x}\ns_mov_b32 {s(sONE)}, 0x3f803f80")
    P(f"v_bfe_u32 {v(T)}, {v(vL)}, 2, 2\nv_lshrrev_b32 {v(T+1)}, 5, {v(vL)}")
    P(f"v_bfe_u32 {v(T+2)}, {v(vL)}, 4, 1\nv_lshlrev_b32 {v(T+2)}, 5, {v(T+2)}\nv_and_b32 {v(T+3)}, 3, {v(vL)}\nv_lshl_add_u32 {v(T+2)}, {v(T+3)}, 3, {v(T+2)}")
    P(f"v_and_b32 {v(T+4)}, 31, {v(vL)}\nv_bfe_u32 {v(T+5)}, {v(vL)}, 1, 3\nv_xor_b32 {v(T+5)}, {v(T+5)}, {v(T+1)}")
    P(f"s_lshl_b32 {s(sT0)}, {s(sW34)}, 12\nv_lshlrev_b32 {v(T+8)}, 7, {v(T+4)}\nv_add_u32 {v(T+8)}, {s(sT0)}, {v(T+8)}")
    P(f"v_lshl_add_u32 {v(T+9)}, {v(T+1)}, 3, {v(T)}\nv_lshl_add_u32 {v(T+10)}, {v(T+9)}, 7, {v(T+2)}\nv_lshrrev_b32 {v(T+7)}, 1, {v(T)}\nv_xor_b32 {v(T+7)}, {s(sHALF)}, {v(T+7)}\nv_lshl_add_u32 {v(T+10)}, {v(T+7)}, 6, {v(T+10)}")
    for p in range(4):
        P(f"s_xor_b32 {s(sT0)}, {s(sSIG)}, {p}\ns_lshl_b32 {s(sT1)}, {s(sT0)}, 1\nv_xor_b32 {v(T+6)}, {s(sT1)}, {v(T+5)}\nv_lshl_add_u32 {v(AX+p)}, {v(T+6)}, 4, {v(T+8)}")
        P(f"s_lshl_b32 {s(sT1)}, {s(sT0)}, 11\ns_add_u32 {s(sT1)}, {s(sT1)}, {RB}\nv_add_u32 {v(AW+p)}, {s(sT1)}, {v(T+10)}")
    if ffn:
        P(f"s_lshl_b32 {s(sT0)}, {s(sHALF)}, 5\nv_xor_b32 {v(T+7)}, {s(sT0)}, {v(T+2)}\nv_lshl_add_u32 {v(T+7)}, {v(T+9)}, 6, {v(T+7)}")
        for i, p in enumerate((0, 2)):
            P(f"s_xor_b32 {s(sT0)}, {s(sSIG)}, {p}\ns_lshl_b32 {s(sT0)}, {s(sT0)}, 10\nv_add_u32 {v(AB+i)}, {s(sT0)}, {v(T+7)}")
    P(f"v_lshlrev_b32 {v(T+4)}, 4, {v(T+4)}")
    P(f"s_lshl_b32 {s(sT0)}, {s(sHALF)}, 9\ns_add_u32 {s(sT0)}, {s(sT0)}, {L_CS}\nv_add_u32 {v(VCSA)}, {s(sT0)}, {v(T+4)}")
    P(f"s_lshl_b32 {s(sT0)}, {s(sW34)}, 9\ns_add_u32 {s(sT0)}, {s(sT0)}, {L_ST}\nv_add_u32 {v(VSTA)}, {s(sT0)}, {v(T+4)}")
    P(f"v_lshrrev_b32 {v(T+4)}, 2, {v(vL)}\nv_xor_b32 {v(T+4)}, {v(T+4)}, {v(vL)}\nv_and_b32 {v(T+4)}, 4, {v(T+4)}\nv_cmp_eq_u32 vcc, 0, {v(T+4)}\nv_mov_b32 {v(T+4)}, {s(sONE)}")
    for i in range(4): P(f"v_mov_b32 {v(PZ+i)}, -1")
    for r in (VZ, BAUG+3, AAUG+2, AAUG+3): P(f"v_mov_b32 {v(r)}, 0")
    for i in range(4): P(f"v_cndmask_b32 {v(SEL+i)}, 0, {v(T+4)}, vcc")
    P(f"s_lshl_b32 {s(sW34)}, {s(sW34)}, 2")
    if late1:
        for g_ in item1(1, pitch): P.add(g_)
    if OPT.get("stouch", "0") == "2": stouch()
    P(f"s_lshl_b32 {s(sT0)}, {s(sN)}, 7\ns_mul_i32 {s(sB2o)}, {s(sW)}, {224*1024}\ns_add_u32 {s(sB2o)}, {s(sB2o)}, {s(sT0)}")
    P(f"s_lshl_b32 {s(sBOo)}, {s(sW)}, 16\ns_add_u32 {s(sBOo)}, {s(sBOo)}, {s(sT0)}\ns_lshl_b32 {s(sM4)}, {s(sW)}, 12")
    P(f"s_lshl_b32 {s(sOo)}, {s(sM)}, 16\ns_lshl_b32 {s(sT1)}, {s(sW)}, 13\ns_add_u32 {s(sOo)}, {s(sOo)}, {s(sT1)}\ns_add_u32 {s(sOo)}, {s(sOo)}, {s(sT0)}")
    P(f"s_add_u32 {s(sR4)}, {s(sM)}, {s(sN)}\ns_and_b32 {s(sR4)}, {s(sR4)}, {0 if OPT.get('norot') else 3}\ns_and_b32 {s(sSH)}, {s(sW)}, 1\ns_lshl_b32 {s(sSH)}, {s(sSH)}, 1")
    P(f"s_lshr_b32 {s(sT0)}, {s(sM)}, 1\ns_lshl_b32 {s(sT0)}, {s(sT0)}, 4\ns_add_u32 {s(sT0)}, {s(sT0)}, {s(sW)}\ns_lshl_b32 {s(sT0)}, {s(sT0)}, 7")
    P(f"s_and_b32 {s(sT1)}, {s(sM)}, 1\ns_lshl_b32 {s(sT1)}, {s(sT1)}, 4\ns_add_u32 {s(sT0)}, {s(sT0)}, {s(sT1)}\ns_add_u32 {s(sFL)}, {s(sT0)}, {WS_FLG}")
    P(f"s_mul_i32 {s(sA0)}, {s(sM)}, {2*HF_RB}\ns_mul_i32 {s(sT0)}, {s(sW)}, {14*1024}\ns_add_u32 {s(sA1)}, {s(sA0)}, {s(sM4)}\ns_add_u32 {s(sA1)}, {s(sA1)}, {112*1024}\ns_add_u32 {s(sA0)}, {s(sA0)}, {s(sT0)}")

class Sched:
    def __init__(self, n):
        self.n = n; self.pre = [[] for _ in range(n)]; self.post = [[] for _ in range(n)]
        self.fill = [[] for _ in range(n)]; self.dma = [[] for _ in range(n)]; self.blk = {}
    def spread(self, lst, a, b):
        for i in range(a, b): self.fill[i] += lst[len(lst)*(i-a)//(b-a): len(lst)*(i+1-a)//(b-a)]
    def dmas(self, groups, a, step=1):
        for i, g in enumerate(groups): self.dma[a + i*step] += g

def rd(G):
    b = WF + 4 * (G & 3)
    if G < 96:
        ks = G & 31; st, p = ks >> 2, ks & 3
        L = [f"ds_read_b128 {v(XF+4*ks,4)}, {v(AX+p)} offset:{RA+(st&3)*16384}"] if G < 32 else []
        if ks < 4 and G >= 32: L.append(f"v_xor_b32 {v(AW+p)}, {RB}, {v(AW+p)}")
        return L + [f"ds_read_b64_tr_b16 {v(b+2*t,2)}, {v(AW+p)} offset:{8192*st+512*t}" for t in range(2)]
    i = G - 96
    return [f"ds_read_b64_tr_b16 {v(b+2*t,2)}, {v(AB+(i&1))} offset:{4096*(i>>1)+256*t}" for t in range(2)]
def xq(G): return XF + 4 * (G & 31) if G < 96 else XF + 8 * (G - 96)

def common_sched(S, ffn, accs, MC):
    pitch = 3584 if ffn else 3072
    tp = "f" if ffn else "a"
    c1, c2 = (128, 256) if ffn else (2048, 0)
    S.dmas(item1(2, pitch), 0, 0)
    for st in range(8):
        G = 4 * st + 2
        S.pre[G] += [f".waitvm it{st+1}" if st < 7 else ".waitvm w1q0 lgkm0", "s_barrier"]
        if st <= 4: S.dmas(item1(st + 3, pitch), G)
        else: S.dmas(wquarter(RA, st - 5, c1, pitch, f"w1q{st-5}"), G)
    def m4(d, r, c=None): return f"v_mfma_f32_4x4x4_16b_bf16 {v(d,4)}, {v(r,2)}, {v(r,2)}, {v(d,4) if c is None else c}"
    Q0, Q1 = T + 8, T + 16
    for f in range(0, 32, 2):
        x = XF + 4 * f; a = max(f - 1, 0); c = "0" if f == 0 else None
        S.post[a] += [m4(Q0, x, c), m4(Q1, x + 2, c), m16(MS, SEL, x, c)]
    S.post[28] += [f"v_and_b32 {v(S1)}, 3, {v(vL)}", f"v_cmp_eq_u32 {s(sEX,2)}, 1, {v(S1)}", f"s_lshl_b32 {s(sT0)}, {s(sHALF)}, 3",
                   f"v_add_u32 {v(T)}, {s(sT0)}, {v(VSTA)}"]
    S.post[29] += [f"v_add_f32 {v(Q0+i)}, {v(Q0+i)}, {v(Q1+i)}" for i in range(4)]
    S.post[29] += [f"v_cmp_eq_u32 vcc, 2, {v(S1)}", f"v_cndmask_b32 {v(S2)}, {v(Q0)}, {v(Q0+1)}, {s(sEX,2)}", f"v_cmp_eq_u32 {s(sEX,2)}, 3, {v(S1)}",
                   f"v_cndmask_b32 {v(S2)}, {v(S2)}, {v(Q0+2)}, vcc", f"v_cndmask_b32 {v(S2)}, {v(S2)}, {v(Q0+3)}, {s(sEX,2)}",
                   f"v_mov_b32 {v(S1)}, {v(S2)}", f"v_permlane32_swap_b32 {v(S1)}, {v(S2)}",
                   f"v_add_f32 {v(MS+1)}, {v(S1)}, {v(S2)}", f"ds_write_b64 {v(T)}, {v(MS,2)}"]
    S.post[30] += [f"ds_read_b128 {v(MS,4)}, {v(VSTA)}"]
    for ps in range(3):
        for st in range(8):
            G = 32 * ps + 4 * st
            S.post[G] += [m16(MC, SEL, WF + 4 * (G & 3), "0" if st == 0 else None)]
        S.post[32*ps + 29] += [f"v_add_u32 {v(MC+1)}, {s(sW34)}, {v(VCSA)}", f"ds_write_b32 {v(MC+1)}, {v(MC)} offset:{1024*ps}"]
    for q in (1, 2, 3): S.pre[32 + 8*q - 2] += [f".waitvm w1q{q}", "s_barrier"]
    w2 = sum([wquarter(RB, q, c2, pitch, "w2") for q in range(4)], [])
    for g_, G in zip(w2[:4] + wquarter(RA, 3, c1, pitch, "w1q3") + w2[4:], (32, 34, 35, 37, 38, 40, 41, 43, 44, 46)): S.dma[G] += g_
    S.pre[62] += [".waitvm w2 lgkm0", "s_barrier"]
    for G in (78, 86): S.pre[G] += ["s_barrier"]
    if ffn:
        S.post[int(OPT.get("f1", 90))] += flag(1, "h1"); S.post[int(OPT.get("f2", 110))] += flag(2, "h2")
        S.post[101] += [spoll(0)]; S.blk[("e", 105)] = lambda: sneed(1, 0)
    else:
        S.post[70] += flag(1, "pz")
    if OPT.get("l2t", "0") == "1":
        tg = [int(x) for x in OPT.get("l2gf" if ffn else "l2ga", "52,62,66,70,74" if ffn else "48,52,56,60,64").split(",")]
        DUM = VX0 if False else VW0
        for j in range(5):
            if j < 3:
                L = [f"s_lshr_b32 {s(sT0)}, s2, 3", f"s_mul_i32 {s(sT0)}, {s(sT0)}, 3", f"s_lshl_b32 {s(sT1)}, {s(sSH)}, 4", f"s_add_u32 {s(sT0)}, {s(sT0)}, {s(sT1)}",
                     f"s_add_u32 {s(sT0)}, {s(sT0)}, {128+j}", f"s_sub_u32 {s(sT1)}, {s(sT0)}, 224", f"s_min_u32 {s(sT0)}, {s(sT0)}, {s(sT1)}",
                     f"s_mul_i32 {s(sT1)}, {s(sW)}, 224", f"s_add_u32 {s(sT0)}, {s(sT0)}, {s(sT1)}", f"s_lshl_b32 {s(sT0)}, {s(sT0)}, 10",
                     f"buffer_load_dword {v(VTD)}, {v(VL16)}, {s(SW2,4)}, {s(sT0)} offen ; nodef"]
            else:
                L = [f"s_lshr_b32 {s(sT0)}, s2, 3", f"s_lshl_b32 {s(sT0)}, {s(sT0)}, 11", f"s_lshl_b32 {s(sT1)}, {s(sW)}, 16", f"s_add_u32 {s(sT0)}, {s(sT0)}, {s(sT1)}",
                     f"buffer_load_dword {v(VTD)}, {v(VL16)}, {s(SWO,4)}, {s(sT0)} offen offset:{1024*(j-3)} ; nodef"]
            S.dma[tg[j]] += L
    def announce():
        P(f"s_lshl_b32 {s(sT0)}, {s(sW)}, 8\ns_add_u32 {s(sT0)}, {s(sT0)}, s2\ns_sub_u32 {s(sT0)}, {s(sT0)}, 256\ns_cmp_lt_u32 {s(sT0)}, 8")
        P(f"s_cbranch_scc0 L_nd")
        P.cond_begin("zw")
        P(".waitvm zf")
        P(f"s_lshl_b32 {s(sT0)}, s2, 2\nv_mov_b32 {v(VFV)}, 1")
        P(f"buffer_store_dword {v(VFV)}, {v(VZ)}, {s(SDBG,4)}, {s(sT0)} offen sc1")
        P.cond_end()
        P(f"L_nd:")
    if not ffn: S.blk[3] = announce
    ld = f"v_and_b32 {v(VX0)}, 28, {v(vL)}\nbuffer_load_dword {v(VX0)}, {v(VX0)}, {s(SDBG,4)}, 0 offen sc1"
    def poll0():
        P(f"s_cmp_eq_u32 {s(sW)}, 7"); P(f"s_cbranch_scc0 L_np{tp}")
        P.cond_begin("w7")
        P(ld)
        P.cond_end(); P(f"L_np{tp}:")
    def check0():
        P(f"s_cmp_eq_u32 {s(sW)}, 7"); P(f"s_cbranch_scc0 L_nc{tp}")
        P.cond_begin("w7")
        P(f"v_mov_b32 {v(VX0)}, {v(VX0)}")
        spin(f"L_ncs{tp}", ld, f"v_cmp_ne_u32 vcc, 1, {v(VX0)}")
        P.cond_end(); P(f"L_nc{tp}:")
    S.blk[39] = poll0; S.blk[62] = check0

def run_sched(S, accs):
    P(".waitvm it0")
    P("s_barrier")
    stamp("it0")
    P.add(rd(0)); P.add(rd(1))
    for G in range(S.n):
        stamp(f"g{G}")
        if G in S.blk: S.blk[G]()
        late = OPT.get("bam", "1") == "1" and G >= 32
        if not late: P.add(S.pre[G])
        if OPT.get("prio", "1") == "1": P(f"s_setprio {3 - ((G + 2) & 3)}")
        first = G in (0, 32, 64, 96)
        P(mfma(accs[G >> 5], WF + 4 * (G & 3), xq(G), "0" if first else None))
        if late: P.add(S.pre[G])
        if G + 2 < S.n: P.add(rd(G + 2))
        P.add(S.post[G]); P.add(S.fill[G]); P.add(S.dma[G])
        if ("e", G) in S.blk: S.blk[("e", G)]()
    P("s_setprio 0")

AC = 64; NAF = 8
def AFq(kk, rb): return XF + 4 + 8 * (2 * (kk % NAF) + rb)
def BTq(kk, nb): return XF + 8 * (2 * (kk & 1) + nb)
BA = 2
VXR, VRED = 9, 10
VWR = 20
XR, B2R = 32, 36
def a_jobs(kk):
    so = sA0 if kk < 14 else sA1
    return [rot_k(kk, sD1) + [f"s_lshl_b32 {s(sD1)}, {s(sD1)}, 10", f"s_add_u32 {s(sD1)}, {s(sD1)}, {s(so)}",
             f"buffer_load_dwordx4 {v(AFq(kk,0),4)}, {v(VL16)}, {s(SWS,4)}, {s(sD1)} offen sc1"],
            [f"s_add_u32 {s(sD1)}, {s(sD1)}, {HF_RB}",
             f"buffer_load_dwordx4 {v(AFq(kk,1),4)}, {v(VL16)}, {s(SWS,4)}, {s(sD1)} offen sc1"]]
def vcheck(regs, t):
    L = [f"v_max3_u32 {v(t)}, {v(regs[0])}, {v(regs[1])}, {v(regs[2])}"]; r = regs[3:]
    while len(r) >= 2: L.append(f"v_max3_u32 {v(t)}, {v(t)}, {v(r[0])}, {v(r[1])}"); r = r[2:]
    if r: L.append(f"v_max_u32 {v(t)}, {v(t)}, {v(r[0])}")
    return L + [f"v_cmp_eq_u32 vcc, -1, {v(t)}"]
SLOW = []
def validate(regs, t, reload):
    lb = P.lab("L_v")
    P.add(vcheck(regs, t))
    P(f"s_cbranch_vccnz {lb}_slow")
    P(f"{lb}_back:")
    SLOW.append([f"{lb}_slow:", f"s_mov_b32 {s(sCNT)}, 0", f"{lb}_loop:", "s_sleep 2"] + reload + ["s_waitcnt vmcnt(0)"] + vcheck(regs, t) +
                [f"s_add_u32 {s(sCNT)}, {s(sCNT)}, 1", f"s_cbranch_vccz {lb}_back", f"s_cmp_gt_u32 {s(sCNT)}, {SPIN_MAX}",
                 f"s_cbranch_scc0 {lb}_loop", f"s_branch {lb}_back"])
def flush_slow():
    for blk in SLOW:
        P(".reset"); P.add(blk)
    SLOW.clear()
def spoll(o): return f"s_buffer_load_dwordx4 {s(sPL,4)}, {s(SWS,4)}, {s(sFL)} offset:{0 if o else 1024} glc"
def sneed(level, o):
    lb = P.lab("L_sp")
    P(f"s_mov_b32 {s(sCNT)}, 0")
    P(f"{lb}:")
    P("s_waitcnt lgkmcnt(0)")
    P(f"s_min_u32 {s(sPL)}, {s(sPL)}, {s(sPL+1)}\ns_min_u32 {s(sPL+2)}, {s(sPL+2)}, {s(sPL+3)}\ns_min_u32 {s(sPL)}, {s(sPL)}, {s(sPL+2)}")
    P(f"s_cmp_ge_u32 {s(sPL)}, {level}")
    P(f"s_cbranch_scc1 {lb}_ok")
    P(f"s_add_u32 {s(sCNT)}, {s(sCNT)}, 1\ns_cmp_gt_u32 {s(sCNT)}, {SPIN_MAX}")
    P(f"s_cbranch_scc1 {lb}_ok")
    P("s_sleep 1")
    I = Ins(spoll(o)); I.kind = "salu"; P.ins.append(I)
    P(f"s_branch {lb}")
    P(f"{lb}_ok:")
def b_reads(kk):
    slot = kk % 9
    var, off = (KAREA[slot] >> 16), KAREA[slot] & 0xffff
    return [f".waitvm b{kk}"] + [f"ds_read_b64_tr_b16 {v(BTq(kk,nb)+2*tt,2)}, {v(BA+2*var+nb)} offset:{off+1024*tt}" for nb in range(2) for tt in range(2)]
def phase2(done=(), ordr="B6 B7 B8 B9 A4 A5 A6 A7 B10 A8 B11 A9 A10 B12 A11 B13 A12 B14 A13 B15 B16 B17 A14 A15 A16 A17"):
    P(f"v_bfe_u32 {v(T+8)}, {v(vL)}, 2, 2\nv_lshrrev_b32 {v(T+9)}, 5, {v(vL)}\nv_and_b32 {v(T+10)}, 63, {v(AW)}")
    P(f"v_lshl_add_u32 {v(T+12)}, {v(T+9)}, 2, {v(T+8)}\nv_lshl_add_u32 {v(T+12)}, {v(T+12)}, 7, {v(T+10)}\nv_lshrrev_b32 {v(T+13)}, 1, {v(T+8)}")
    P(f"v_lshl_add_u32 {v(T+12)}, {v(T+13)}, 6, {v(T+12)}\nv_xor_b32 {v(T+13)}, 64, {v(T+12)}")
    P(f"s_add_u32 {s(sT0)}, {s(sM0x)}, 65536\ns_add_u32 {s(sT1)}, {s(sM0x)}, {RC}")
    for nb in range(2):
        P(f"v_add_u32 {v(BA+nb)}, {s(sM0x)}, {v(T+12+nb)}\nv_add_u32 {v(BA+2+nb)}, {s(sT0)}, {v(T+12+nb)}\nv_add_u32 {v(BA+4+nb)}, {s(sT1)}, {v(T+12+nb)}")
    P.add(b_reads(0))
    if OPT.get("p2prio") == "y":
        lb = P.lab("L_pr"); P(f"s_cmp_lt_u32 {s(sW)}, 4\ns_cbranch_scc1 {lb}\ns_setprio 1\n{lb}:")
    stamp("hseen")
    order = [j for j in ordr.split() if j not in done]
    jobs = []
    for j in order:
        k2 = int(j[1:]); gs = a_jobs(k2) if j[0] == "A" else b_dma(k2)
        jobs += [(j, gs[0]), (None, gs[1])]
    for kk in range(18):
        rem = [x for x, _ in jobs if x]
        assert f"A{kk+1}" not in rem and f"B{kk+2}" not in rem, (kk, rem)
        if OPT.get("v"): print(kk, rem, file=sys.stderr)
        pm = OPT.get("p2prio", "c")
        if pm == "c": P(f"s_setprio {3 - ((kk // int(OPT.get('p2per', 1))) & 3)}")
        br = b_reads(kk + 1) if kk + 1 < 18 else []
        for nb in range(2):
            for rb in range(2):
                mi = 2 * nb + rb
                P(mfma(AC + 16 * mi, BTq(kk, nb), AFq(kk, rb), "0" if kk == 0 else None))
                if mi == 0: P.add(br[:3])
                if mi == 1: P.add(br[3:])
                if mi == 2 and 8 <= kk + 1 < 18:
                    if jobs and jobs[0][0] is None: P.add(jobs.pop(0)[1])
                    validate([AFq(kk + 1, r2) + i for r2 in range(2) for i in range(4)], T + 16, sum(a_jobs(kk + 1), []))
                for rep in range(2 if kk < int(OPT.get("dbl", 0)) else 1):
                    if not jobs: continue
                    j, g_ = jobs[0]
                    if j:
                        k2 = int(j[1:]); last = (nb, rb) == (1, 1)
                        free = k2 - (8 if j[0] == "A" else 9)
                        if free > kk or (free == kk and not last): continue
                        if j == "A4": sneed(2, 0); P(spoll(1))
                        if j == "A14": sneed(1, 1)
                    jobs.pop(0); P.add(g_)
        stamp(f"k{kk}")
        if kk == 8:
            P(f"v_lshrrev_b32 {v(T+17)}, 3, {v(vL)}\nv_and_b32 {v(T+18)}, 7, {v(vL)}\nv_lshlrev_b32 {v(T+18)}, 4, {v(T+18)}\nv_lshl_add_u32 {v(VXR)}, {v(T+17)}, 10, {v(T+18)}")
            P(f"s_lshl_b32 {s(sT0)}, {s(sN)}, 7")
            P(f"buffer_load_dwordx4 {v(XR,4)}, {v(VXR)}, {s(SX,4)}, {s(sOo)} offen")
            P(f"buffer_load_dwordx4 {v(B2R,4)}, {v(T+18)}, {s(SB2,4)}, {s(sT0)} offen")
        if kk == 3:
            for q in range(4):
                P(f"v_xor_b32 {v(VWR+q)}, {64*q}, {v(VL16)}\nv_add_u32 {v(VWR+q)}, {s(sM0x)}, {v(VWR+q)}")
                P(f"v_add_u32 {v(T+q)}, 65536, {v(VWR+q)}")
            P(f"v_lshrrev_b32 {v(T+4)}, 3, {v(vL)}\ns_lshl_b32 {s(sT0)}, {s(sW34)}, 1\nv_add_u32 {v(T+4)}, {s(sT0)}, {v(T+4)}")
            P(f"v_and_b32 {v(T+5)}, 3, {v(vL)}\nv_lshlrev_b32 {v(T+6)}, 2, {v(T+5)}\nv_xor_b32 {v(T+4)}, {v(T+4)}, {v(T+6)}\nv_lshlrev_b32 {v(T+4)}, 4, {v(T+4)}\nv_and_b32 {v(T+6)}, 1, {v(T+5)}\nv_lshl_add_u32 {v(T+4)}, {v(T+6)}, 10, {v(T+4)}\nv_lshrrev_b32 {v(T+6)}, 1, {v(T+5)}\nv_lshl_add_u32 {v(T+4)}, {v(T+6)}, 14, {v(T+4)}")
            P(f"v_bfe_u32 {v(T+5)}, {v(vL)}, 2, 1\nv_lshl_add_u32 {v(T+4)}, {v(T+5)}, 16, {v(T+4)}\ns_lshl_b32 {s(sT0)}, {s(sHALF)}, 15\nv_add_u32 {v(VRED)}, {s(sT0)}, {v(T+4)}")
        F = T + 8
        if kk == 14:
            for i in range(4):
                P(f"v_lshlrev_b32 {v(F+2*i)}, 16, {v(XR+i)}\nv_and_b32 {v(F+2*i+1)}, 0xffff0000, {v(XR+i)}")
                P(f"v_lshlrev_b32 {v(T+4)}, 16, {v(B2R+i)}\nv_and_b32 {v(T+5)}, 0xffff0000, {v(B2R+i)}")
                P(f"v_add_f32 {v(F+2*i)}, {v(F+2*i)}, {v(T+4)}\nv_add_f32 {v(F+2*i+1)}, {v(F+2*i+1)}, {v(T+5)}")
    stamp("p2mm")
    for blk in range(4):
        for q in range(4):
            ad = VWR + q if blk < 2 else T + q
            P(f"ds_write_b128 {v(ad)}, {v(AC+16*blk+4*q,4)} offset:{(blk&1)*32768+(q>>1)*16384+(q&1)*1024}")
    P("s_waitcnt lgkmcnt(0)")
    stamp("rw")
    P("s_barrier")
    stamp("rb")
    R = XF
    for ww in range(8):
        for hf in range(2): P(f"ds_read_b128 {v(R+8*ww+4*hf,4)}, {v(VRED)} offset:{2048*ww+512*hf}")
    for ww in range(8):
        for i in range(0, 8, 2): P(f"v_pk_add_f32 {v(F+i,2)}, {v(F+i,2)}, {v(R+8*ww+i,2)}")
    for i in range(4): P(f"v_cvt_pk_bf16_f32 {v(XR+i)}, {v(F+2*i)}, {v(F+2*i+1)}")
    P(f"buffer_store_dwordx4 {v(XR,4)}, {v(VXR)}, {s(SOUT,4)}, {s(sOo)} offen {OPT.get('om', '').replace('+', ' ')}")
    if OPT.get("echo") and OPT.get("echot", "fa").find("a" if done else "f") < 0: pass
    elif OPT.get("echo"):
        a_, b_ = [STI[x] for x in OPT["echo"].split(",")]
        lb = P.lab("L_echo")
        stamp("end")
        P("s_waitcnt lgkmcnt(0)")
        P(f"s_sub_u32 {s(sT0)}, {s(sST+2*b_)}, {s(sST+2*a_)}")
        if STAMP == 2:
            P(f"s_lshr_b32 {s(sT0)}, {s(sT0)}, 4\ns_memrealtime {s(sST+22,2)}\ns_waitcnt lgkmcnt(0)")
        P(f"s_min_u32 {s(sT0)}, {s(sT0)}, 10000")
        P(f"{lb}:")
        P(f"s_memrealtime {s(sEX,2)}")
        P("s_waitcnt lgkmcnt(0)")
        P(f"s_sub_u32 {s(sT1)}, {s(sEX)}, {s(sST+22)}\ns_cmp_lt_u32 {s(sT1)}, {s(sT0)}\ns_cbranch_scc1 {lb}")
    elif STAMP:
        stamp("end")
        P("s_waitcnt lgkmcnt(0)")
        P(f"s_lshl_b32 {s(sT0)}, s2, 3\ns_add_u32 {s(sT0)}, {s(sT0)}, {s(sW)}\ns_lshl_b32 {s(sT0)}, {s(sT0)}, 6\ns_add_u32 {s(sT0)}, {s(sT0)}, {WS_STAMP}")
        P(f"v_mov_b32 v2, 0\ns_mov_b64 exec, 1")
        for i in range(12):
            P(f"v_mov_b32 v3, {s(sST+2*i)}\nbuffer_store_dword v3, v2, {s(SWS,4)}, {s(sT0)} offen offset:{4*i}")
    P("s_endpgm")
    flush_slow()

def softmax(p, out, LS):
    t = T + 16
    L = [f"v_max3_f32 {v(t)}, {v(p)}, {v(p+1)}, {v(p+2)}", f"v_max3_f32 {v(t+1)}, {v(p+3)}, {v(p+4)}, {v(p+5)}",
         f"v_max3_f32 {v(t)}, {v(t)}, {v(p+6)}, {v(p+7)}", f"v_max3_f32 {v(t+1)}, {v(t+1)}, {v(p+8)}, {v(p+9)}",
         f"v_max3_f32 {v(t)}, {v(t)}, {v(p+10)}, {v(p+11)}", f"v_max3_f32 {v(t+1)}, {v(t+1)}, {v(p+12)}, {v(p+13)}",
         f"v_max3_f32 {v(t)}, {v(t)}, {v(p+14)}, {v(p+15)}", f"v_max_f32 {v(t)}, {v(t)}, {v(t+1)}",
         f"v_mul_f32 {v(t)}, {v(t)}, {v(LS)}"]
    L += [f"v_fma_f32 {v(p+i)}, {v(p+i)}, {v(LS)}, -{v(t)}" for i in range(16)]
    L += [f"v_exp_f32 {v(p+i)}, {v(p+i)}" for i in range(16)]
    L += [f"v_add_f32 {v(t)}, {v(p)}, {v(p+1)}", f"v_add_f32 {v(t+1)}, {v(p+2)}, {v(p+3)}"]
    for i in range(4, 16, 2):
        L += [f"v_add_f32 {v(t)}, {v(t)}, {v(p+i)}", f"v_add_f32 {v(t+1)}, {v(t+1)}, {v(p+i+1)}"]
    L += [f"v_add_f32 {v(t)}, {v(t)}, {v(t+1)}", f"v_rcp_f32 {v(t)}, {v(t)}"]
    L += [f"v_mul_f32 {v(p+i)}, {v(p+i)}, {v(t)}" for i in range(16)]
    L += [f"v_cvt_pk_bf16_f32 {v(out+i)}, {v(p+2*i)}, {v(p+2*i+1)}" for i in range(8)]
    return L

setup(False)
KAREA[:] = [RC, RA+3*Q, RB, RA, RA+Q, RA+2*Q, RB+Q, RB+2*Q, RB+3*Q]
LS = K1; VPK = K2; VV = VW3; MC = BIAS
PHI0, PHI1 = AX, AAUG
PHI0 = AX
PHI1 = S1
PHI1 = T + 12
t = T + 16
P(f"v_bfe_u32 {v(t)}, {v(vL)}, 2, 2\nv_lshrrev_b32 {v(t+1)}, 5, {v(vL)}\nv_lshl_add_u32 {v(t)}, {v(t+1)}, 2, {v(t)}\nv_lshlrev_b32 {v(t)}, 5, {v(t)}")
P(f"v_bfe_u32 {v(t+2)}, {v(vL)}, 1, 1\nv_lshl_add_u32 {v(t)}, {v(t+2)}, 3, {v(t)}\nv_bfe_u32 {v(t+2)}, {v(vL)}, 4, 1\nv_lshl_add_u32 {v(t)}, {v(t+2)}, 4, {v(t)}")
P(f"s_lshl_b32 {s(sT1)}, {s(sHALF)}, 10\ns_add_u32 {s(sT1)}, {s(sT1)}, {L_WPHI}\nv_add_u32 {v(AB)}, {s(sT1)}, {v(t)}")
P(f"v_bfe_u32 {v(t)}, {v(vL)}, 2, 1\nv_mul_u32_u24 {v(t)}, 0x8000, {v(t)}\nv_lshl_or_b32 {v(AB+1)}, {v(t)}, 16, {v(t)}")
P(f"v_and_b32 {v(t)}, 31, {v(vL)}\nv_lshlrev_b32 {v(t)}, 6, {v(t)}\ns_lshl_b32 {s(sT1)}, {s(sW34)}, 9\nv_bfe_u32 {v(t+2)}, {v(vL)}, 1, 2")
P(f"v_lshlrev_b32 {v(t+3)}, 1, {v(t+1)}\nv_xor_b32 {v(t+3)}, {v(t+3)}, {v(t+2)}")
P(f"s_lshl_b32 {s(sT2)}, {s(sHALF)}, 14\ns_add_u32 {s(sT2)}, {s(sT2)}, {s(sT1)}\nv_lshl_add_u32 {v(VPK)}, {v(t+3)}, 4, {v(t)}\nv_add_u32 {v(VPK)}, {s(sT2)}, {v(VPK)}")
P(f"v_xor_b32 {v(t+3)}, {v(t+1)}, {v(t+2)}")
P(f"s_lshl_b32 {s(sT2)}, {s(sHALF)}, 13\ns_add_u32 {s(sT2)}, {s(sT2)}, {s(sT1)}\ns_add_u32 {s(sT2)}, {s(sT2)}, {RA+32768}\nv_lshl_add_u32 {v(VV)}, {v(t+3)}, 4, {v(t)}\nv_add_u32 {v(VV)}, {s(sT2)}, {v(VV)}")
def phi_load(hl, dst):
    return [f"ds_read_b64_tr_b16 {v(dst+2*tt,2)}, {v(AB)} offset:{512*hl+256*tt}" for tt in range(2)] + \
           [f"v_xor_b32 {v(dst+i)}, {v(AB+1)}, {v(dst+i)}" for i in range(4)]
S = Sched(96)
common_sched(S, False, None, MC)
S.post[30] += [f"ds_read_b128 {v(CSR,4)}, {v(VCSA)}"]
sKV, sOS = sH0, sH3
P(f"s_lshl_b32 {s(sT0)}, {s(sG)}, 4\ns_add_u32 {s(sT0)}, {s(sT0)}, {s(sRT)}\ns_mul_i32 {s(sT0)}, {s(sT0)}, {KVP_SZ}\ns_mul_i32 {s(sT1)}, {s(sW)}, 1152\ns_add_u32 {s(sT0)}, {s(sT0)}, {s(sT1)}\ns_add_u32 {s(sT0)}, {s(sT0)}, {WS_KVP}")
P(f"s_cmp_lt_u32 {s(sW)}, 4\ns_cselect_b32 {s(sKV)}, {s(sT0)}, 0x7f000000")
P(f"s_lshl_b32 {s(sT0)}, {s(sG)}, 2\ns_lshl_b32 {s(sT1)}, {s(sHALF)}, 1\ns_add_u32 {s(sT0)}, {s(sT0)}, {s(sT1)}\ns_add_u32 {s(sT0)}, {s(sT0)}, 112\ns_lshl_b32 {s(sT0)}, {s(sT0)}, 10\ns_add_u32 {s(sOS)}, {s(sT0)}, {s(sHo)}")
PA = AAUG
S.post[46] += [f"v_mov_b32 {v(PA+i)}, -1" for i in range(4)] + [f"v_lshrrev_b32 {v(S2)}, 2, {v(vL)}", f"v_lshl_add_u32 {v(S2)}, {v(S2)}, 26, {v(VL16)}"]
S.post[47] += [f"buffer_store_dwordx4 {v(PA,4)}, {v(VL16)}, {s(SWS,4)}, {s(sKV)} offen sc1"]
S.post[48] += [f"buffer_store_dwordx4 {v(PA,4)}, {v(S2)}, {s(SWS,4)}, {s(sKV)} offen offset:1024 sc1"]
S.post[50] += [f"buffer_store_dwordx4 {v(PA,4)}, {v(VL16)}, {s(SWS,4)}, {s(sOS)} offen sc1"]
S.post[53] += [f"buffer_store_dwordx4 {v(PA,4)}, {v(VL16)}, {s(SWS,4)}, {s(sOS)} offen offset:1024 sc1 ; tag=pz"]
S.post[55] += [f"v_mov_b32 {v(PA+2)}, 0", f"v_mov_b32 {v(PA+3)}, 0"]
def ltouch():
    P(f"s_sub_u32 {s(sT0)}, {s(sW)}, 4\ns_cmp_lt_u32 {s(sT0)}, 3")
    P(f"s_cbranch_scc0 L_nlt")
    P.cond_begin("w456")
    P(f"v_lshlrev_b32 {v(S1)}, 7, {v(vL)}\ns_lshl_b32 {s(sT1)}, {s(sRT)}, 3\ns_add_u32 {s(sT1)}, {s(sT1)}, {s(sG)}")
    P(f"s_cmp_eq_u32 {s(sT0)}, 2\ns_cbranch_scc1 L_lt2")
    P(f"s_lshl_b32 {s(sT1)}, {s(sT1)}, 1\ns_add_u32 {s(sT1)}, {s(sT1)}, {s(sT0)}\ns_mul_i32 {s(sT1)}, {s(sT1)}, 7168")
    P(f"buffer_load_dword {v(VX0)}, {v(S1)}, {s(SW2,4)}, {s(sT1)} offen")
    P("s_branch L_nlt")
    P("L_lt2:")
    P(f"v_and_b32 {v(S1)}, 4095, {v(S1)}\ns_lshl_b32 {s(sT1)}, {s(sT1)}, 12")
    P(f"buffer_load_dword {v(VX0)}, {v(S1)}, {s(SWO,4)}, {s(sT1)} offen")
    P(f"buffer_load_dword {v(VX1)}, {v(S1)}, {s(SB2,4)}, 0 offen")
    P.cond_end()
    for I in P.ins[-12:]:
        if I.kind == "vld": I.defs = []
    P("L_nlt:")
if OPT.get("touch", "1") == "2": S.blk[("e", int(OPT.get("tg", 54)))] = ltouch
S.post[31] += stamp_i("pass1")
fill = stats_final() + aug(ACC0, CSR, None) + phi_load(0, AX) + phi_load(1, T + 8) + [f"v_mul_f32 {v(LS)}, {f2u(LOG2E):#x}, {v(RSTD)}"]
fill += [f"v_cvt_pk_bf16_f32 {v(T+i)}, {v(ACC0+2*i)}, {v(ACC0+2*i+1)}" for i in range(8)]
fill += [mfma(ACC2, AX, T, "0"), mfma(ACC0, T + 8, T + 4, "0")]
S.spread(fill, 32, 40)
S.spread(softmax(ACC2, T + 8, LS) + softmax(ACC0, T, LS), 41, 64)
S.post[56] += [f"ds_write_b128 {v(VPK)}, {v(T+8,4)}", f"v_xor_b32 {v(VSTA)}, 16, {v(VPK)}"]
S.post[57] += [f"ds_write_b128 {v(VSTA)}, {v(T+12,4)}"]
S.post[62] += [f"ds_read_b128 {v(MC,4)}, {v(VCSA)} offset:1024"]
S.post[63] += stamp_i("sub1")
S.pre[64] += sum4(CS0, MC)
S.fill[64] += aug(ACC1, MC, None)[3:]
S.post[65] += [f"ds_write_b128 {v(VPK)}, {v(T,4)} offset:8192"]
S.post[66] += [f"ds_write_b128 {v(VSTA)}, {v(T+4,4)} offset:8192"]
fill = []
fill += [f"v_mul_f32 {v(ACC1+i)}, {v(ACC1+i)}, {v(RSTD)}" for i in range(16)]
fill += [f"v_cvt_pk_bf16_f32 {v(ACC1+i)}, {v(ACC1+2*i)}, {v(ACC1+2*i+1)}" for i in range(8)]
fill += [f"ds_write_b128 {v(VV)}, {v(ACC1,4)}", f"v_xor_b32 {v(VV)}, 32, {v(VV)}", f"ds_write_b128 {v(VV)}, {v(ACC1+4,4)}"]
S.spread(fill, 66, 70)
S.dmas(b_dma(0), 58, 3)
S.dmas(b_dma(1), 72, 3); S.dmas(b_dma(2), 78, 3); S.dmas(b_dma(3) + b_dma(4), 86, 2)
def kvblock():
    P(".waitvm pz lgkm0")
    P("s_barrier")
    kvflag()
    stamp("kv0"); stamp("kv1")
    P(f"s_cmp_lt_u32 {s(sW)}, 4")
    P("s_cbranch_scc0 L_nkv")
    P.cond_begin("lo4")
    t = T + 16; u = S1
    P(f"v_bfe_u32 {v(u)}, {v(vL)}, 2, 2\nv_lshrrev_b32 {v(u+1)}, 5, {v(vL)}\nv_lshl_add_u32 {v(u)}, {v(u+1)}, 3, {v(u)}\nv_lshlrev_b32 {v(u)}, 6, {v(u)}")
    P(f"v_bfe_u32 {v(u+1)}, {v(vL)}, 1, 1\nv_lshl_add_u32 {v(u)}, {v(u+1)}, 3, {v(u)}\nv_bfe_u32 {v(u+1)}, {v(vL)}, 3, 1\nv_and_b32 {v(VSTA)}, 1, {v(vL)}")
    P(f"v_or_b32 {v(t)}, {s(sSH)}, {v(VSTA)}\nv_xor_b32 {v(t)}, {v(t)}, {v(u+1)}\nv_lshl_add_u32 {v(t)}, {v(t)}, 4, {v(u)}")
    P(f"s_lshr_b32 {s(sT0)}, {s(sW)}, 1\ns_lshl_b32 {s(sT0)}, {s(sT0)}, 13\ns_add_u32 {s(sT0)}, {s(sT0)}, {RA+32768}\nv_add_u32 {v(t)}, {s(sT0)}, {v(t)}\nv_xor_b32 {v(t+1)}, 32, {v(t)}")
    P(f"v_bfe_u32 {v(t+2)}, {v(vL)}, 4, 1\nv_lshl_add_u32 {v(t+2)}, {v(VSTA)}, 1, {v(t+2)}\nv_xor_b32 {v(t+2)}, {v(t+2)}, {v(u+1)}\nv_lshl_add_u32 {v(t+2)}, {v(t+2)}, 4, {v(u)}")
    P(f"s_lshl_b32 {s(sT0)}, {s(sW)}, 13\nv_add_u32 {v(t+2)}, {s(sT0)}, {v(t+2)}\nv_xor_b32 {v(t+3)}, 32, {v(t+2)}")
    P(f"v_and_b32 {v(u)}, 16, {v(vL)}\nv_cmp_eq_u32 vcc, 0, {v(u)}\nv_mov_b32 {v(u+1)}, {s(sONE)}")
    KB = [T, T + 8, ACC1, ACC1 + 8]
    def kr(J):
        for tt in range(2):
            P(f"ds_read_b64_tr_b16 {v(KB[J&3]+2*tt,2)}, {v(t+tt)} offset:{1024*J+256*tt}")
            P(f"ds_read_b64_tr_b16 {v(KB[J&3]+4+2*tt,2)}, {v(t+2+tt)} offset:{1024*J+256*tt}")
    kr(0); kr(1); kr(2)
    for J in range(8):
        for i in range(4): P(f"v_cndmask_b32 {v(KB[J&3]+i)}, {v(u+1)}, {v(KB[J&3]+i)}, vcc")
        if J + 3 < 8: kr(J + 3)
        P(mfma(ACC0, KB[J&3] + 4, KB[J&3], "0" if J == 0 else None))
    P(f"v_lshrrev_b32 {v(u)}, 5, {v(vL)}\nv_and_b32 {v(t+2)}, 15, {v(vL)}\nv_lshlrev_b32 {v(t)}, 4, {v(t+2)}\nv_lshl_add_u32 {v(t)}, {v(u)}, 8, {v(t)}\nv_add_u32 {v(t+1)}, 512, {v(t)}")
    P(f"v_lshlrev_b32 {v(u)}, 4, {v(u)}\nv_add_u32 {v(u)}, 1024, {v(u)}\nv_lshl_add_u32 {v(u)}, {v(t+2)}, 26, {v(u)}\nv_add_u32 {v(u+1)}, 32, {v(u)}")
    P(f"v_cndmask_b32 {v(t)}, {v(u)}, {v(t)}, vcc\nv_cndmask_b32 {v(t+1)}, {v(u+1)}, {v(t+1)}, vcc")
    for i in range(8): P(f"v_cvt_pk_bf16_f32 {v(T+i)}, {v(ACC0+2*i)}, {v(ACC0+2*i+1)}")
    stamp("kv1")
    for j in range(2): P(f"buffer_store_dwordx4 {v(T+4*j,4)}, {v(t+j)}, {s(SWS,4)}, {s(sKV)} offen sc1")
    P.cond_end()
    P("L_nkv:")
    stamp("kv2")
S.blk[70] = kvblock
S.pre[94] += ["s_waitcnt lgkmcnt(0)", "s_barrier"]
def kvflag():
    P(f"s_cmp_eq_u32 {s(sW)}, 7")
    P("s_cbranch_scc0 L_nkf")
    P.cond_begin("w0")
    P(f"s_lshl_b32 {s(sT0)}, {s(sG)}, 8\ns_lshl_b32 {s(sT1)}, {s(sRT)}, 2\ns_add_u32 {s(sT0)}, {s(sT0)}, {s(sT1)}\ns_add_u32 {s(sT0)}, {s(sT0)}, {WS_KVF}")
    P(f"v_mov_b32 {v(VFV)}, 1")
    P(f"buffer_store_dword {v(VFV)}, {v(VZ)}, {s(SWS,4)}, {s(sT0)} offen sc1")
    P.cond_end()
    P("L_nkf:")
def kvpoll():
    P(f"s_cmp_eq_u32 {s(sW)}, 7")
    P("s_cbranch_scc0 L_nkp")
    n0 = len(P.ins)
    P(f"s_lshl_b32 {s(sT2)}, {s(sG)}, 8\ns_add_u32 {s(sT2)}, {s(sT2)}, {WS_KVF}\ns_mov_b32 {s(sCNT)}, 0")
    P("s_branch L_spkv1")
    P("L_spkv:")
    P(f"s_buffer_load_dwordx16 s[20:35], {s(SWS,4)}, {s(sT2)} glc")
    P("L_spkv1:")
    P(f"s_add_u32 {s(sCNT)}, {s(sCNT)}, 1")
    P("s_waitcnt lgkmcnt(0)")
    for i in range(22, 36, 2): P(f"s_and_b64 s[20:21], s[20:21], s[{i}:{i+1}]")
    P("s_and_b32 s20, s20, s21")
    P("s_cbranch_scc1 L_nkp")
    P(f"s_cmp_gt_u32 {s(sCNT)}, {SPIN_MAX}")
    P("s_cbranch_scc1 L_nkp")
    P("s_sleep 1")
    P("s_branch L_spkv")
    for I in P.ins[n0:]:
        I.cond = "kvp"
        if I.kind == "smem": I.kind = "opaque"
    P("L_nkp:")
def kvreq():
    P(f"s_cmp_eq_u32 {s(sW)}, 7")
    P("s_cbranch_scc0 L_nkr")
    n0 = len(P.ins)
    P(f"s_lshl_b32 {s(sT2)}, {s(sG)}, 8\ns_add_u32 {s(sT2)}, {s(sT2)}, {WS_KVF}")
    P(f"s_buffer_load_dwordx16 s[20:35], {s(SWS,4)}, {s(sT2)} glc")
    for I in P.ins[n0:]:
        I.cond = "kvp"
        if I.kind == "smem": I.kind = "opaque"
    P("L_nkr:")
S.blk[87] = kvreq; S.blk[94] = kvpoll
S.post[94] += [f"ds_read_b128 {v(CSR,4)}, {v(VCSA)} offset:2048"] + phi_load(1, T + 8)
run_sched(S, [ACC0, ACC1, ACC2])
stamp("sub2")
PQ = WF
def Gq(r): return XF + 8 * r
Z = XF + 80; GA = XF + 64
VG, VGZ = S1, S2
P(f"s_mul_i32 {s(sT2)}, {s(sG)}, {16*KVP_SZ}\ns_lshr_b32 {s(sT0)}, {s(sW)}, 1\ns_mul_i32 {s(sT0)}, {s(sT0)}, 1152\ns_add_u32 {s(sT2)}, {s(sT2)}, {s(sT0)}\ns_add_u32 {s(sT2)}, {s(sT2)}, {WS_KVP}")
P(f"v_and_b32 {v(VGZ)}, 15, {v(vL)}\nv_mul_u32_u24 {v(VGZ)}, {KVP_SZ}, {v(VGZ)}\nv_and_b32 {v(VG)}, 16, {v(vL)}\nv_add_u32 {v(VGZ)}, {v(VGZ)}, {v(VG)}\ns_lshl_b32 {s(sT0)}, {s(sSH)}, 4\nv_add_u32 {v(VGZ)}, {s(sT0)}, {v(VGZ)}")
P(f"v_lshrrev_b32 {v(VG)}, 5, {v(vL)}\nv_mul_u32_u24 {v(VG)}, {8*KVP_SZ - 512}, {v(VG)}\nv_add_u32 {v(VG)}, {v(VG)}, {v(VL16)}\ns_lshl_b32 {s(sT0)}, {s(sSH)}, 8\nv_add_u32 {v(VG)}, {s(sT0)}, {v(VG)}")
gl = [[f"buffer_load_dwordx4 {v(Z,4)}, {v(VGZ)}, {s(SWS,4)}, {s(sT2)} offen offset:1024 sc1"]]
for r in range(8):
    gl.append(lines(f"s_add_u32 {s(sD1)}, {s(sRT)}, {r}\ns_and_b32 {s(sD1)}, {s(sD1)}, 7\ns_mul_i32 {s(sD1)}, {s(sD1)}, {KVP_SZ}\ns_add_u32 {s(sD1)}, {s(sD1)}, {s(sT2)}") +
              [f"buffer_load_dwordx4 {v(Gq(r),4)}, {v(VG)}, {s(SWS,4)}, {s(sD1)} offen sc1"])
P.add(aug(ACC2, CSR, None))
bd = sum([b_dma(kk) for kk in (5, 6, 7)], [])
GD = int(OPT.get("gd", 2))
for g_ in bd[:GD]: P.add(g_)
for i in range(8): P(f"v_cvt_pk_bf16_f32 {v(T+i)}, {v(ACC2+2*i)}, {v(ACC2+2*i+1)}")
P(mfma(ACC1, AX, T, "0"))
P(mfma(ACC2, T + 8, T + 4, "0"))
P.add(interleave(gl, softmax(ACC1, PQ, LS)))
stamp("qsm")
P(spoll(0))
P.add(interleave(bd[GD:], softmax(ACC2, PQ + 8, LS)))
stamp("sm2")
sneed(1, 0)
validate([Z + i for i in range(4)] + [Gq(r) + i for r in range(8) for i in range(4)], T + 16, sum(gl, []))
stamp("kvseen")
aj = sum([a_jobs(kk) for kk in range(4)], [])
n_o0 = len(P.ins)
P(f"v_lshrrev_b32 {v(T+1)}, 5, {v(vL)}")
P(f"v_bfe_u32 {v(T+2)}, {v(vL)}, 4, 1\nv_lshlrev_b32 {v(T+2)}, 9, {v(T+2)}\nv_lshl_add_u32 {v(T+2)}, {v(T+1)}, 3, {v(T+2)}")
P(f"s_lshl_b32 {s(sT0)}, {s(sW)}, 10\ns_add_u32 {s(sT0)}, {s(sT0)}, {L_KVB}\nv_add_u32 {v(T+2)}, {s(sT0)}, {v(T+2)}")
P(f"v_and_b32 {v(T+3)}, 15, {v(vL)}\nv_lshl_add_u32 {v(T+3)}, {v(T+3)}, 4, {v(T+2)}")
P(f"v_cmp_gt_u32 vcc, 32, {v(vL)}\ns_mov_b32 {s(sT0)}, 0x3f80\ns_mov_b32 {s(sT1)}, 0x3f800000")
P(f"v_cndmask_b32 {v(Z)}, {v(Z+2)}, {v(Z)}, vcc\nv_cndmask_b32 {v(Z+1)}, {v(Z+3)}, {v(Z+1)}, vcc")
P(f"v_lshlrev_b32 {v(Z+8)}, 16, {v(Z)}\nv_and_b32 {v(Z+9)}, 0xffff0000, {v(Z)}\nv_lshlrev_b32 {v(Z+10)}, 16, {v(Z+1)}\nv_and_b32 {v(Z+11)}, 0xffff0000, {v(Z+1)}")
for ror in (8, 4, 2, 1):
    for i in range(4): P(f"v_add_f32_dpp {v(Z+8+i)}, {v(Z+8+i)}, {v(Z+8+i)} row_ror:{ror} row_mask:0xf bank_mask:0xf")
P(f"v_cvt_pk_bf16_f32 {v(Z)}, {v(Z+8)}, {v(Z+9)}\nv_cvt_pk_bf16_f32 {v(Z+1)}, {v(Z+10)}, {v(Z+11)}")
P(f"ds_write_b64 {v(T+2)}, {v(Z,2)} offset:256")
def ga(i): return GA + (i & 3) + 8 * (i >> 2)
for i in range(4):
    P(f"v_lshlrev_b32 {v(ga(2*i))}, 16, {v(Gq(0)+i)}\nv_and_b32 {v(ga(2*i+1))}, 0xffff0000, {v(Gq(0)+i)}")
for r in range(1, 8):
    for i in range(4):
        P(f"v_dot2c_f32_bf16 {v(ga(2*i))}, {s(sT0)}, {v(Gq(r)+i)}\nv_dot2c_f32_bf16 {v(ga(2*i+1))}, {s(sT1)}, {v(Gq(r)+i)}")
for i in range(4): P(f"v_permlane32_swap_b32 {v(ga(i))}, {v(ga(i+4))}")
for i in range(4): P(f"v_add_f32 {v(ga(i))}, {v(ga(i))}, {v(ga(i+4))}")
P(f"v_cvt_pk_bf16_f32 {v(GA)}, {v(GA)}, {v(GA+1)}\nv_cvt_pk_bf16_f32 {v(GA+1)}, {v(GA+2)}, {v(GA+3)}")
P(f"ds_write_b64 {v(T+3)}, {v(GA,2)}")
stamp("gsum")
P(f"v_and_b32 {v(T)}, 31, {v(vL)}\nv_min_u32 {v(T)}, 16, {v(T)}\nv_and_b32 {v(T+1)}, 32, {v(vL)}\nv_add_u32 {v(T)}, {v(T)}, {v(T+1)}\nv_lshlrev_b32 {v(T)}, 4, {v(T)}")
P(f"s_lshl_b32 {s(sT0)}, {s(sHALF)}, 12\ns_add_u32 {s(sT0)}, {s(sT0)}, {L_KVB}\nv_add_u32 {v(T)}, {s(sT0)}, {v(T)}")
P("s_waitcnt lgkmcnt(0)")
P("s_barrier")
for i in range(4): P(f"ds_read_b128 {v(Gq(i),4)}, {v(T)} offset:{1024*i}")
P(mfma(ACC0, Gq(0), PQ, "0")); P(mfma(ACC1, Gq(2), PQ + 8, "0"))
P(mfma(ACC0, Gq(1), PQ + 4)); P(mfma(ACC1, Gq(3), PQ + 12))
body = P.ins[n_o0:]; del P.ins[n_o0:]
for i, g_ in enumerate(aj):
    P.add(g_); P.ins += body[len(body)*i//8: len(body)*(i+1)//8]
P(spoll(0))
for hl, acc in enumerate((ACC0, ACC1)):
    P(f"v_add_f32 {v(acc+8)}, {f2u(1e-6):#x}, {v(acc+8)}\nv_rcp_f32 {v(acc+8)}, {v(acc+8)}")
    for i in range(8): P(f"v_mul_f32 {v(acc+i)}, {v(acc+i)}, {v(acc+8)}")
    for i in range(4): P(f"v_cvt_pk_bf16_f32 {v(T+4*hl+i)}, {v(acc+2*i)}, {v(acc+2*i+1)}")
    P(f"buffer_store_dwordx4 {v(T+4*hl,4)}, {v(VL16)}, {s(SWS,4)}, {s(sOS)} offen offset:{1024*hl} sc1")
stamp("p1end")
phase2(("B6", "B7"), "B8 A4 A5 B9 A6 A7 A8 B10 A9 B11 A10 B12 A11 B13 A12 B14 A13 B15 B16 B17 A14 A15 A16 A17")

P("L_ffn:")
P(".reset")
setup(True)
KAREA[:] = [RC, RA+2*Q, RA+3*Q, RB, RB+Q, RB+2*Q, RA, RA+Q, RB+3*Q]
MC = ACC2; CSF = ACC2 + 4
S = Sched(112)
common_sched(S, True, None, MC)
S.post[30] += [f"ds_read_b128 {v(CSF,4)}, {v(VCSA)}"]
pzs = [[f"s_add_u32 {s(sT2)}, {s(sH0)}, 8192", f"buffer_store_dwordx4 {v(PZ,4)}, {v(VL16)}, {s(SWS,4)}, {s(sT2)} offen sc1"],
       [f"buffer_store_dwordx4 {v(PZ,4)}, {v(VL16)}, {s(SWS,4)}, {s(sT2)} offen offset:1024 sc1"],
       [f"buffer_store_dwordx4 {v(PZ,4)}, {v(VL16)}, {s(SWS,4)}, {s(sH3)} offen sc1 ; tag=h1"]]
for g_, G in zip(pzs, [int(x) for x in OPT.get("pz", "50,57,68").split(",")]): S.post[G] += g_
S.post[31] += stamp_i("pass1")
fill = stats_final() + aug(ACC0, CSF, BIAS)
fill += [f"v_mul_f32 {v(K1)}, {f2u(GC1):#x}, {v(RSTD)}", f"v_mul_f32 {v(K2)}, {v(RSTD)}, {v(RSTD)}",
         f"v_mul_f32 {v(K2)}, {v(K2)}, {v(RSTD)}", f"v_mul_f32 {v(K2)}, {f2u(GC2):#x}, {v(K2)}"]
S.spread(fill, 32, 39)
S.spread(gelu(ACC0, 16) + hstore(sH0, 2, "h1") + [f"s_add_u32 {s(sH0)}, {s(sH0)}, 4096"], 39, 64)
S.post[62] += [f"ds_read_b128 {v(CSF,4)}, {v(VCSA)} offset:1024"]
S.post[63] += stamp_i("sub1")
S.spread(aug(ACC1, CSF, BIAS + 1), 64, 66)
S.spread(gelu(ACC1, 16) + hstore(sH0, 2, "h2") + [f"s_add_u32 {s(sH0)}, {s(sH0)}, 4096"], 67, 96)
w3 = sum([w3quarter(q, 3584) for q in range(4)], [])
for g_, G in zip(w3 + b_dma(0), [int(x) for x in OPT.get("w3", "48,54,60,72,75,76").split(",")]): S.dma[G] += g_
S.dmas(b_dma(1), 78, 2); S.dmas(b_dma(2), 82, 2); S.dmas(b_dma(3), 86, 2); S.dmas(b_dma(4), 90, 2); S.dmas(b_dma(5), 100, 2)
S.pre[94] += [".waitvm w3 lgkm0", "s_barrier"]
S.post[94] += [f"ds_read_b128 {v(CSF,4)}, {v(VCSA)} offset:2048"]
S.post[95] += stamp_i("sub2")
S.fill[96] += aug(ACC0, CSF, BIAS + 2)
S.spread(gelu(ACC0, 16), 98, 112)
S.pre[100] += ["s_barrier"]
aj = sum([a_jobs(kk) for kk in range(4)], [])
S.dmas(aj[:4], 106)
for i in range(0, 16, 2): S.post[96 + i] += [m16(MC, SEL, WF + 4 * (i & 3), "0" if i == 0 else None)]
run_sched(S, [ACC0, ACC1, ACC0, ACC1])
t = T + 16
P(f"v_and_b32 {v(t)}, 31, {v(vL)}\ns_lshl_b32 {s(sT0)}, {s(sHALF)}, 4\nv_xor_b32 {v(t)}, {s(sT0)}, {v(t)}\nv_lshlrev_b32 {v(t)}, 4, {v(t)}\nv_add_u32 {v(t)}, {L_CS+3072}, {v(t)}")
P(f"v_add_u32 {v(t+1)}, {s(sW34)}, {v(VCSA)}")
P(f"ds_write_b32 {v(t+1)}, {v(MC)} offset:3072")
P.add(aj[4])
P(f"s_add_u32 {s(sT1)}, {s(sM0x)}, {KAREA[8]}\ns_xor_b32 {s(sT0)}, {s(sT1)}, 8192\nv_add_u32 {v(t+1)}, {s(sT0)}, {v(VL16)}\nv_add_u32 {v(AB)}, {s(sT1)}, {v(VL16)}")
P(f"ds_write_b128 {v(t+1)}, {v(ACC1+8,4)}\nds_write_b128 {v(t+1)}, {v(ACC1+12,4)} offset:1024")
P("s_waitcnt lgkmcnt(0)")
P("s_barrier")
stamp("sub3")
P(f"ds_read_b128 {v(CSF,4)}, {v(t)}")
P(f"ds_read_b128 {v(ACC0,4)}, {v(AB)}\nds_read_b128 {v(ACC0+4,4)}, {v(AB)} offset:1024")
P.add(aj[5])
P.add(aug(ACC1, CSF, BIAS + 3))
P.add(aj[6] + aj[7])
for i in range(0, 8, 2): P(f"v_pk_add_f32 {v(ACC1+i,2)}, {v(ACC1+i,2)}, {v(ACC0+i,2)}")
stamp("x7")
gt = gelu(ACC1, 8, True, out=BIAS); h3 = hstore(sH0, 2, "h3")
P.add([h3[0]] + gt[:20] + [h3[1], spoll(0)] + gt[20:] + hstore(sH3, 1, "h4", BIAS))
stamp("p1end")
phase2(())

P("L_end:")
P("s_endpgm")

ins = P.ins
for I in ins:
    if "; nodef" in I.text: I.defs = []
if OPT.get("nodma"): ins = [I for I in ins if I.kind != "dma"]
if OPT.get("notr"): ins = [I for I in ins if not I.op.startswith("ds_read_b64_tr")]
if OPT.get("nofmac"): ins = [I for I in ins if not (I.op.startswith("v_fmac") or (I.op == "v_and_b32" and "0xffff0000" in I.text) or (I.op == "v_lshlrev_b32" and I.ops[1] == "16"))]
if OPT.get("nom16"): ins = [I for I in ins if "16x16x32" not in I.op]
if OPT.get("notrans"): ins = [I for I in ins if not I.op.startswith(("v_exp", "v_rcp"))]
if OPT.get("novalu"): ins = [I for I in ins if not I.op.startswith(("v_exp", "v_rcp", "v_mul_f32", "v_fma_f32", "v_cvt_pk", "v_max3", "v_add_f32"))]
if OPT.get("nost"): ins = [I for I in ins if not (I.kind == "vst" and "x4" in I.op and "tag=h" in I.text)]
if OPT.get("nomfma"): ins = [I for I in ins if I.kind != "mfma"]
if STAMP:
    for I in ins:
        if I.op in ("s_memrealtime", "s_memtime"): I.kind = "salu"
ins = auto_wait(ins)
st = []
ins = hazards(ins, st)
hdr = open("parallel_sum__linear_kernel_hedgehog__dense_activation_gelu__prompt.s.ref").read().split("; Override")[0]
out = hdr + f"; @launch grid=(256,1,1) block=(512,1,1) lds={LDS_SIZE}\n"
out += f'.amdgcn_target "amdgcn-amd-amdhsa--gfx950"\n.text\n.globl {NAME}\n.p2align 8\n.type {NAME},@function\n{NAME}:\n'
out += render(ins)
out += f""".section .rodata,"a"
.p2align 6
.amdhsa_kernel {NAME}
  .amdhsa_next_free_vgpr 256
  .amdhsa_next_free_sgpr 102
  .amdhsa_accum_offset 256
  .amdhsa_group_segment_fixed_size 0
  .amdhsa_kernarg_size 96
  .amdhsa_user_sgpr_count 2
  .amdhsa_user_sgpr_kernarg_segment_ptr 1
  .amdhsa_system_sgpr_workgroup_id_x 1
.end_amdhsa_kernel
"""
open(sys.argv[1], "w").write(out)
print(f"instrs={sum(1 for I in ins if I.kind not in ('label','dir'))} nop-sites={len(st)} nop-states={sum(n for n,_ in st)}", file=sys.stderr)
if OPT.get("nops"):
    for n, tx in st: print(n, tx, file=sys.stderr)
```

```python
import sys, math, struct
from ir import *

NAME = "parallel_sum__linear_kernel_hedgehog__dense_activation_gelu__prompt_kernel"
OPT = dict(a.split("=") for a in sys.argv[2:] if "=" in a)
STAMP = int(OPT.get("stamp", 0))

def f2u(x): return struct.unpack("<I", struct.pack("<f", x))[0]
LOG2E = 1.4426950408889634
GC1 = -2.0 * LOG2E * math.sqrt(2.0 / math.pi)
GC2 = GC1 * 0.044715

HF_RB = 144 * 1024
WS_KVP = 0xA00000
KVP_SZ = 4608
WS_FLG = 0xC00000
WS_KVF = 0xC08000
WS_STAMP = 0xD00000
WS_SIZE = 0x1000000
RA, RB, RC = 0, 65536, 131072
L_KVB = 147456
L_CS = 155648
L_ST = L_CS + 4096
L_WPHI = L_CS + 6144
LDS_SIZE = 163840
SPIN_MAX = 1 << 15

sW, sRT, sG, sM, sN = 3, 4, 5, 6, 7
SX, SW2, SWS, SWT, SAUX, SDBG, SWO, SOUT = 8, 12, 16, 20, 24, 28, 36, 40
sXo, sWo, sROT, sC1 = 32, 33, 34, 35
SB2 = 92
sFL, sOo, sM0x, sT0, sT1, sSIG, sONE, sFO, sHALF, sHo, sWq, sW3, sT2, sCNT, sW34, sT3 = range(44, 60)
sEX = 60
sH0, sH3, sM4, sK = 62, 63, 64, 65
sST = 66
sB2o, sBOo = 90, 91
sA0, sA1, sR4, sSH, sD0, sD1 = range(96, 102)
sOK = sSIG
sQ = [sXo, sWo, sROT, sC1]
sPL = 28
VCSA = 0; vL = 1
AX = 2; AW = 6; AB = 10; VZ, VFV = 12, 13
VX0, VX1, VW, VB, VW3 = 14, 15, 16, 17, 18
VSTA, S1, S2, CS0 = 19, 20, 21, 22
VW0 = 22
RSTD, STD, K1, K2, VL16 = 23, 24, 25, 26, 27
BAUG, AAUG, SEL, BIAS = 28, 32, 36, 40
T = 44
WF = 64
ACC0, ACC1, ACC2 = 80, 96, 112
XF = 128
VTD = 15
PZ = ACC2 + 8

P = Prog()
STI = dict(start=0, kernarg=1, it0=2, pass1=3, sub1=4, sub2=5, qsm=6, sub3=6, kvseen=7, x7=7, p1end=8, hseen=9, p2mm=10, end=11)
if OPT.get("sp") == "p2": STI = dict(start=0, p1end=1, k1=2, k3=3, k5=4, k7=5, k9=6, k11=7, k13=8, k15=9, p2mm=10, end=11)
if OPT.get("sp") == "att": STI = dict(start=0, sub1=1, kv0=2, kv1=3, kv2=4, sub2=5, qsm=6, kvseen=7, sm2=8, gsum=9, p1end=10, end=11)
if OPT.get("sp", "").startswith("l:"): STI = {n: i for i, n in enumerate(["start"] + OPT["sp"][2:].split(","))}
def stamp_i(name):
    if not STAMP or name not in STI: return []
    i = STI[name]
    return [f"{'s_memrealtime' if STAMP == 1 else 's_memtime'} {s(sST + 2*i, 2)} ; stamp {i} {name}"]
def stamp(name): P.add(stamp_i(name))

def mfma(d, a, b, c=None):
    return f"v_mfma_f32_32x32x16_bf16 {v(d,16)}, {v(a,4)}, {v(b,4)}, {v(d,16) if c is None else c}"
def m16(d, a, b, c=None):
    return f"v_mfma_f32_16x16x32_bf16 {v(d,4)}, {v(a,4)}, {v(b,4)}, {v(d,4) if c is None else c}"
def srd(base, nbytes):
    P(f"s_mov_b32 {s(base+2)}, {nbytes}\ns_mov_b32 {s(base+3)}, 0x20000")
def lines(t): return [l for l in t.split("\n") if l.strip()]

P("s_cmp_ge_u32 s2, 256")
P("s_cbranch_scc1 L_end")
stamp("start")
if OPT.get("exit0"): P("s_endpgm")
if OPT.get("cpf", "1") == "3":
    P(f"s_getpc_b64 {s(sEX,2)}")
    P("L_pc0:")
    P(f"v_subrev_u32 v3, 320, v0\nv_cmp_gt_u32 vcc, 16, v3\ns_lshr_b32 {s(sT0)}, s2, 3\ns_lshl_b32 {s(sT0)}, {s(sT0)}, 11")
    P("s_cbranch_vccz L_ncp0")
    P.cond_begin("cp0")
    P(f"v_and_b32 v3, 15, v3\nv_lshlrev_b32 v3, 7, v3\nv_add_u32 v3, {s(sT0)}, v3\nv_min_u32 v3, L_end-L_pc0, v3")
    P(f"global_load_dword v253, v3, {s(sEX,2)}")
    P.cond_end()
    P("L_ncp0:")
if OPT.get("cpf", "1") == "2":
    P(f"s_getpc_b64 {s(sEX,2)}")
    P("L_pc0:")
    P(f"v_lshlrev_b32 v3, 7, v0")
    P(f"v_min_u32 v3, L_end-L_pc0, v3")
    P(f"global_load_dword v253, v3, {s(sEX,2)}")
P(f"s_load_dwordx2 {s(SX,2)}, s[0:1], 0")
P(f"s_load_dwordx2 {s(SWS,2)}, s[0:1], 88")
P(f"s_load_dwordx2 {s(SDBG,2)}, s[0:1], 80")
P(f"s_load_dwordx2 {s(SW2,2)}, s[0:1], 56")
P(f"s_load_dwordx2 {s(SWO,2)}, s[0:1], 24")
P(f"s_load_dwordx2 {s(SOUT,2)}, s[0:1], 72")
P(f"s_load_dwordx2 {s(SB2,2)}, s[0:1], 64")
if OPT.get("stouch", "0") != "0":
    P(f"s_load_dwordx2 {s(sEX,2)}, s[0:1], 8")
    P(f"s_load_dwordx2 {s(sA0,2)}, s[0:1], 40")
P(f"v_lshrrev_b32 v2, 6, v0")
P(f"v_and_b32 {v(vL)}, 63, v0")
P(f"s_and_b32 {s(sT0)}, s2, 7")
P(f"s_lshr_b32 {s(sT1)}, s2, 3")
P(f"v_readfirstlane_b32 {s(sW)}, v2")
P(f"s_lshr_b32 {s(sRT)}, {s(sT0)}, 2\ns_lshl_b32 {s(sRT)}, {s(sRT)}, 3\ns_and_b32 {s(sT2)}, {s(sT1)}, 7\ns_add_u32 {s(sRT)}, {s(sRT)}, {s(sT2)}")
P(f"s_and_b32 {s(sG)}, {s(sT0)}, 3\ns_lshl_b32 {s(sG)}, {s(sG)}, 1\ns_lshr_b32 {s(sT2)}, {s(sT1)}, 4\ns_add_u32 {s(sG)}, {s(sG)}, {s(sT2)}")
P(f"s_lshl_b32 {s(sM)}, {s(sT0)}, 2\ns_and_b32 {s(sT2)}, {s(sT1)}, 3\ns_add_u32 {s(sM)}, {s(sM)}, {s(sT2)}")
P(f"s_lshr_b32 {s(sN)}, {s(sT1)}, 2")
srd(SX, 2097152)
P(f"s_lshl_b32 {s(sM0x)}, {s(sW)}, 11")
P(f"v_lshrrev_b32 v2, 3, {v(vL)}\nv_and_b32 v3, 7, {v(vL)}\nv_lshrrev_b32 v4, 4, {v(vL)}")
P(f"v_xor_b32 v5, v3, v4\nv_lshlrev_b32 v5, 4, v5\nv_lshl_add_u32 {v(VX0)}, v2, 10, v5")
P(f"v_xor_b32 v5, 64, {v(VX0)}\nv_add_u32 {v(VX1)}, {8192-1024}, v5")
P(f"v_and_b32 v4, 1, v4\nv_lshlrev_b32 v4, 2, v4\nv_xor_b32 v4, v3, v4\nv_lshlrev_b32 v4, 4, v4")
P(f"v_lshl_add_u32 {v(VB)}, v2, 10, v4")
P(f"s_lshl_b32 {s(sXo)}, {s(sRT)}, 17\ns_lshl_b32 {s(sT2)}, {s(sW)}, 14\ns_add_u32 {s(sXo)}, {s(sXo)}, {s(sT2)}")
P(f"s_lshr_b32 {s(sT2)}, {s(sT1)}, 3\ns_lshl_b32 {s(sT2)}, {s(sT2)}, 1\ns_add_u32 {s(sROT)}, {s(sRT)}, {s(sT2)}\ns_and_b32 {s(sROT)}, {s(sROT)}, {OPT.get('rm', 7)}")
if OPT.get("norot"): P(f"s_mov_b32 {s(sROT)}, 0")
P(f"s_lshl_b32 {s(sK)}, {s(sROT)}, 7")
P(f"v_add_u32 {v(VX0)}, {s(sXo)}, {v(VX0)}\nv_add_u32 {v(VX1)}, {s(sXo)}, {v(VX1)}")
P(f"s_lshr_b32 {s(sD0)}, {s(sM0x)}, 1")
P(f"s_bitcmp1_b32 {s(sT1)}, 3")
P("s_cbranch_scc1 L_ffn")

def item1(it, pitch):
    q = it & 3
    return [[f"s_add_u32 m0, {s(sM0x)}, {RA+q*16384}", f"s_mul_i32 {s(sD1)}, {s(sK)}, {pitch//2}",
             f"buffer_load_dwordx4 {v(VX0)}, {s(SX,4)}, {s(sK)} offen lds"],
            [f"buffer_load_dwordx4 {v(VX1)}, {s(SX,4)}, {s(sK)} offen offset:1024 lds"],
            [f"s_add_u32 m0, {s(sD0)}, {RB+it*8192}", f"s_add_u32 {s(sK)}, {s(sK)}, 128",
             f"buffer_load_dwordx4 {v(VW0)}, {s(SWT,4)}, {s(sD1)} offen lds ; tag=it{it}",
             f"s_and_b32 {s(sK)}, {s(sK)}, 1023"]]
def wquarter(region, q, coloff, pitch, tag):
    return [[f"s_add_u32 m0, {s(sM0x)}, {region+q*16384}", f"s_add_u32 {s(sD1)}, {s(sQ[q])}, {coloff}",
             f"buffer_load_dwordx4 {v(VW)}, {s(SWT,4)}, {s(sD1)} offen lds"],
            [f"s_add_u32 {s(sD1)}, {s(sD1)}, {8*pitch-1024}",
             f"buffer_load_dwordx4 {v(VW)}, {s(SWT,4)}, {s(sD1)} offen offset:1024 lds ; tag={tag}"]]
def w3quarter(q, pitch):
    return [[f"s_lshr_b32 {s(sD1)}, {s(sM0x)}, 1", f"s_add_u32 m0, {s(sD1)}, {RA+q*8192}", "s_nop 0",
             f"buffer_load_dwordx4 {v(VW3)}, {s(SWT,4)}, {s(sQ[q])} offen lds ; tag=w3"]]

def spin(label, load, cmp):
    P(f"s_mov_b32 {s(sCNT)}, 0")
    P(f"{label}:")
    P(cmp)
    P(f"s_add_u32 {s(sCNT)}, {s(sCNT)}, 1")
    P(f"s_cbranch_vccz {label}_ok")
    P(f"s_cmp_gt_u32 {s(sCNT)}, {SPIN_MAX}")
    P(f"s_cbranch_scc1 {label}_ok")
    P("s_sleep 1")
    old = P._cond; P._cond = label
    P(load)
    P("s_waitcnt vmcnt(0)")
    P._cond = old
    P(f"s_branch {label}")
    P(f"{label}_ok:")

def gelu(acc, n, pk=False, t0=T, out=T):
    L = []
    for g4 in range(0, n, 4):
        t = t0 + 8 + (g4 & 4)
        a = [acc + g4 + i for i in range(4)]
        if pk:
            L += [f"v_pk_mul_f32 {v(t+i,2)}, {v(a[i],2)}, {v(a[i],2)}" for i in (0, 2)]
            L += [f"v_pk_fma_f32 {v(t+i,2)}, {v(t+i,2)}, {v(K2,2)}, {v(STD,2)} op_sel:[0,0,1] op_sel_hi:[1,0,1]" for i in (0, 2)]
            L += [f"v_pk_mul_f32 {v(t+i,2)}, {v(a[i],2)}, {v(t+i,2)}" for i in (0, 2)]
        else:
            L += [f"v_mul_f32 {v(t+i)}, {v(a[i])}, {v(a[i])}" for i in range(4)]
            L += [f"v_fma_f32 {v(t+i)}, {v(t+i)}, {v(K2)}, {v(K1)}" for i in range(4)]
            L += [f"v_mul_f32 {v(t+i)}, {v(a[i])}, {v(t+i)}" for i in range(4)]
        L += [f"v_exp_f32 {v(t+i)}, {v(t+i)}" for i in range(4)]
        if pk: L += [f"v_pk_fma_f32 {v(t+i,2)}, {v(t+i,2)}, {v(STD,2)}, {v(STD,2)} op_sel_hi:[1,0,0]" for i in (0, 2)]
        else: L += [f"v_fma_f32 {v(t+i)}, {v(t+i)}, {v(STD)}, {v(STD)}" for i in range(4)]
        L += [f"v_rcp_f32 {v(t+i)}, {v(t+i)}" for i in range(4)]
        if pk: L += [f"v_pk_mul_f32 {v(t+i,2)}, {v(a[i],2)}, {v(t+i,2)}" for i in (0, 2)]
        else: L += [f"v_mul_f32 {v(t+i)}, {v(a[i])}, {v(t+i)}" for i in range(4)]
        pr = out + (g4 >> 1)
        L += [f"v_cvt_pk_bf16_f32 {v(pr)}, {v(t)}, {v(t+1)}", f"v_cvt_pk_bf16_f32 {v(pr+1)}, {v(t+2)}, {v(t+3)}"]
    return L
def hstore(soff, n, tagn, src=T):
    return [f"buffer_store_dwordx4 {v(src+4*j,4)}, {v(VL16)}, {s(SWS,4)}, {s(soff)} offen offset:{1024*j} sc1 ; tag={tagn}" for j in range(n)]
assert K1 == STD + 1

def sum4(d, r):
    return [f"v_add_f32 {v(d)}, {v(r)}, {v(r+1)}", f"v_add_f32 {v(r+2)}, {v(r+2)}, {v(r+3)}", f"v_add_f32 {v(d)}, {v(d)}, {v(r+2)}"]

MS, U = T + 4, T + 16
CSR = T + 12
MC = AAUG

def stats_final():
    t = T + 16
    return [f"v_add_f32 {v(S1)}, {v(MS)}, {v(MS+2)}", f"v_add_f32 {v(S2)}, {v(MS+1)}, {v(MS+3)}",
          f"v_mul_f32 {v(S1)}, {f2u(-1.0/512):#x}, {v(S1)}",
          f"v_mul_f32 {v(t)}, {v(S1)}, {v(S1)}",
          f"v_fma_f32 {v(S2)}, {v(S2)}, {s(sT3)}, -{v(t)}",
          f"v_max_f32 {v(S2)}, 0, {v(S2)}",
          f"v_add_f32 {v(S2)}, {f2u(1e-5):#x}, {v(S2)}",
          f"v_rsq_f32 {v(RSTD)}, {v(S2)}",
          f"v_cvt_pk_bf16_f32 {v(t)}, {v(S1)}, {v(S1)}",
          f"v_mul_f32 {v(STD)}, {v(S2)}, {v(RSTD)}",
          f"v_and_b32 {v(t+1)}, 0xffff0000, {v(t)}",
          f"v_sub_f32 {v(t+1)}, {v(S1)}, {v(t+1)}",
          f"v_cvt_pk_bf16_f32 {v(BAUG)}, {v(S1)}, {v(t+1)}",
          f"v_cvt_pk_bf16_f32 {v(BAUG+1)}, {v(S1)}, {v(STD)}",
          f"v_and_b32 {v(t+1)}, 0xffff0000, {v(BAUG+1)}",
          f"v_sub_f32 {v(t+1)}, {v(STD)}, {v(t+1)}",
          f"v_cmp_gt_u32 vcc, 32, {v(vL)}",
          f"v_cvt_pk_bf16_f32 {v(BAUG+2)}, {v(t+1)}, 0",
          f"v_cndmask_b32 {v(BAUG)}, 0, {v(BAUG)}, vcc",
          f"v_cndmask_b32 {v(BAUG+1)}, 0, {v(BAUG+1)}, vcc",
          f"v_cndmask_b32 {v(BAUG+2)}, 0, {v(BAUG+2)}, vcc"]

def aug(acc, part, bias):
    t = T + 18; dst = AAUG
    L = sum4(CS0, part) + [f"v_cvt_pk_bf16_f32 {v(dst)}, {v(CS0)}, {v(CS0)}",
         f"v_and_b32 {v(t)}, 0xffff0000, {v(dst)}",
         f"v_sub_f32 {v(t)}, {v(CS0)}, {v(t)}"]
    if bias is None:
        L += [f"v_cvt_pk_bf16_f32 {v(dst+1)}, {v(t)}, 0"]
    else:
        L += [f"v_cvt_pk_bf16_f32 {v(t)}, {v(t)}, 0", f"v_mov_b32 {v(dst+2)}, {v(bias)}",
              f"v_lshl_or_b32 {v(dst+1)}, {v(bias)}, 16, {v(t)}"]
    return L + [mfma(acc, dst, BAUG)]

def flag(level, tag):
    return [f".waitvm {tag}", f"v_mov_b32 {v(VFV)}, {level}",
            f"buffer_store_dword {v(VFV)}, {v(VZ)}, {s(SWS,4)}, {s(sFO)} offen sc1"]

Q = 16384
KAREA = []
def rot_k(kk, dst):
    if kk < 8 and OPT.get("r8", "1") == "1": return [f"s_add_u32 {s(dst)}, {s(sR4)}, {kk}", f"s_and_b32 {s(dst)}, {s(dst)}, 7", f"s_add_u32 {s(dst)}, {s(dst)}, {s(sSH)}"]
    if kk < 12: return [f"s_add_u32 {s(dst)}, {s(sR4)}, {kk}", f"s_and_b32 {s(dst)}, {s(dst)}, 3", f"s_add_u32 {s(dst)}, {s(dst)}, {s(sSH)}"] + \
                       ([f"s_add_u32 {s(dst)}, {s(dst)}, {kk & ~3}"] if kk & ~3 else [])
    if kk < 14: return [f"s_mul_i32 {s(dst)}, {s(sSH)}, 6", f"s_sub_u32 {s(dst)}, {kk}, {s(dst)}"]
    return [f"s_add_u32 {s(dst)}, {s(sR4)}, {kk-14}", f"s_and_b32 {s(dst)}, {s(dst)}, 3"]
def b_dma(kk):
    slot = kk % 9
    m0 = f"s_add_u32 m0, {s(sM0x)}, {KAREA[slot]}"
    sr, so = (SW2, sB2o) if kk < 14 else (SWO, sBOo)
    return [rot_k(kk, sD0) + [f"s_lshl_b32 {s(sD0)}, {s(sD0)}, 14", m0, f"s_add_u32 {s(sD0)}, {s(sD0)}, {s(so)}",
             f"buffer_load_dwordx4 {v(VB)}, {s(sr,4)}, {s(sD0)} offen lds"],
            [f"s_add_u32 {s(sD0)}, {s(sD0)}, {8192 - 1024}",
             f"buffer_load_dwordx4 {v(VB)}, {s(sr,4)}, {s(sD0)} offen offset:1024 lds ; tag=b{kk}"]]

def setup(ffn):
    pitch = 3584 if ffn else 3072
    tp = "f" if ffn else "a"
    P(f"s_load_dwordx2 {s(SWT,2)}, s[0:1], {40 if ffn else 8}")
    P(f"s_load_dwordx2 {s(SAUX,2)}, s[0:1], {48 if ffn else 16}")
    srd(SWT, 1835008 if ffn else 1572864)
    P(f"v_mul_u32_u24 {v(VW)}, {pitch}, v2\nv_add_u32 {v(VW)}, {v(VW)}, v4")
    if ffn:
        P(f"s_mul_i32 {s(sT0)}, {s(sG)}, 448\ns_and_b32 {s(sT1)}, {s(sG)}, 1\ns_lshl_b32 {s(sT2)}, {s(sT1)}, 6\ns_add_u32 {s(sWq)}, {s(sT0)}, {s(sT2)}")
        P(f"s_mul_i32 {s(sWo)}, {s(sW)}, {8*pitch}\ns_add_u32 {s(sWo)}, {s(sWo)}, {s(sWq)}")
    else:
        P(f"s_lshl_b32 {s(sWq)}, {s(sG)}, 7")
        P(f"s_mul_i32 {s(sWo)}, {s(sW)}, {8*pitch}\ns_add_u32 {s(sWo)}, {s(sWo)}, {s(sWq)}\ns_add_u32 {s(sWo)}, {s(sWo)}, 1024")
    P(f"v_add_u32 {v(VW0)}, {s(sWo)}, {v(VW)}")
    P("s_waitcnt lgkmcnt(0)")
    stamp("kernarg")
    for g_ in item1(0, pitch): P.add(g_)
    srd(SWS, WS_SIZE); srd(SDBG, 256); srd(SW2, 1835008); srd(SWO, 524288); srd(SOUT, 2097152); srd(SB2, 1024); srd(SAUX, 3584 if ffn else 16384)
    P(f"v_lshlrev_b32 {v(VL16)}, 4, {v(vL)}")
    P(f"s_lshr_b32 {s(sHALF)}, {s(sW)}, 2")
    P(f"s_and_b32 {s(sW34)}, {s(sW)}, 3\ns_xor_b32 {s(sSIG)}, {s(sW34)}, {s(sHALF)}")
    if not ffn:
        for i in range(4): P(f"v_mov_b32 {v(T+i)}, 0")
        P(f"s_lshl_b32 {s(sT0)}, {s(sW)}, 8\ns_add_u32 {s(sT0)}, {s(sT0)}, s2\ns_sub_u32 {s(sT0)}, {s(sT0)}, 256\ns_cmp_lt_u32 {s(sT0)}, 8")
        P(f"s_cbranch_scc0 L_nzero")
        P.cond_begin("zw")
        P(f"s_lshl_b32 {s(sT0)}, s2, 12\ns_add_u32 {s(sT0)}, {s(sT0)}, {WS_FLG}")
        for i in range(4): P(f"buffer_store_dwordx4 {v(T,4)}, {v(VL16)}, {s(SWS,4)}, {s(sT0)} offen offset:{1024*i} sc1")
        P(f"s_lshl_b32 {s(sT0)}, s2, 8\ns_add_u32 {s(sT0)}, {s(sT0)}, {WS_KVF}\nv_lshlrev_b32 v3, 2, {v(vL)}")
        P(f"buffer_store_dword {v(T)}, v3, {s(SWS,4)}, {s(sT0)} offen sc1 ; tag=zf")
        P.cond_end()
        P(f"L_nzero:")
    if OPT.get("touch", "1") == "1":
        P(f"s_cmp_lt_u32 {s(sW)}, 6")
        P(f"s_cbranch_scc1 L_nt{tp}")
        P.cond_begin("w67")
        P(f"v_lshlrev_b32 v3, 7, {v(vL)}\ns_mul_i32 {s(sT0)}, s2, 7168\ns_lshl_b32 {s(sT1)}, s2, 11")
        P(f"s_cmp_eq_u32 {s(sW)}, 6\ns_cbranch_scc0 L_nta{tp}")
        P(f"buffer_load_dword v255, v3, {s(SW2,4)}, {s(sT0)} offen")
        P(f"s_branch L_nt{tp}")
        P(f"L_nta{tp}:")
        P(f"v_and_b32 v3, 2047, v3")
        P(f"buffer_load_dword v255, v3, {s(SWO,4)}, {s(sT1)} offen")
        P(f"buffer_load_dword v254, v3, {s(SB2,4)}, 0 offen")
        P.cond_end()
        P(f"L_nt{tp}:")
    def wtouch():
        P(f"s_sub_u32 {s(sT0)}, {s(sW)}, 2\ns_cmp_lt_u32 {s(sT0)}, {3 if ffn else 2}")
        P(f"s_cbranch_scc0 L_nw{tp}")
        P.cond_begin("w234")
        P(f"v_mul_u32_u24 v3, {pitch}, {v(vL)}\ns_mul_i32 {s(sT1)}, {s(sROT)}, {64*pitch}\ns_add_u32 {s(sT1)}, {s(sT1)}, {s(sWq)}")
        if ffn:
            P(f"s_lshl_b32 {s(sT2)}, {s(sT0)}, 7\ns_add_u32 {s(sT1)}, {s(sT1)}, {s(sT2)}\ns_add_u32 {s(sT1)}, {s(sT1)}, 128")
            P(f"s_lshr_b32 {s(sT0)}, {s(sT0)}, 1\ns_and_b32 {s(sT0)}, {s(sT0)}, {s(sG)}\ns_mul_i32 {s(sT0)}, {s(sT0)}, 448\ns_sub_u32 {s(sT1)}, {s(sT1)}, {s(sT0)}")
        else:
            P(f"s_xor_b32 {s(sT0)}, {s(sT0)}, 1\ns_lshl_b32 {s(sT0)}, {s(sT0)}, 11\ns_add_u32 {s(sT1)}, {s(sT1)}, {s(sT0)}")
        P(f"buffer_load_dword v250, v3, {s(SWT,4)}, {s(sT1)} offen")
        P.cond_end()
        P(f"L_nw{tp}:")
    if OPT.get("wt", "0") == "1": wtouch()
    if OPT.get("cpf", "1") == "1":
        P(f"s_cmp_eq_u32 {s(sW)}, 5")
        P(f"s_cbranch_scc0 L_ncp{tp}")
        P.cond_begin("w5")
        P(f"s_getpc_b64 {s(sEX,2)}")
        P(f"L_pc{tp}:")
        P(f"s_sub_u32 {s(sEX)}, {s(sEX)}, L_pc{tp}-{NAME}\ns_subb_u32 {s(sEX+1)}, {s(sEX+1)}, 0")
        P(f"s_lshr_b32 {s(sT0)}, s2, 3\ns_lshl_b32 {s(sT0)}, {s(sT0)}, 11\nv_and_b32 v3, 15, {v(vL)}\nv_lshlrev_b32 v3, 7, v3\nv_add_u32 v3, {s(sT0)}, v3")
        P(f"v_min_u32 v3, L_end-{NAME}, v3")
        P(f"global_load_dword v253, v3, {s(sEX,2)}")
        P.cond_end()
        P(f"L_ncp{tp}:")
    if OPT.get("pt"):
        P(f"s_cmp_eq_u32 {s(sW)}, 4")
        P(f"s_cbranch_scc0 L_npt{tp}")
        n0 = len(P.ins)
        P(f"v_lshlrev_b32 v3, 21, {v(vL)}")
        P(f"buffer_load_dword v252, v3, {s(SWS,4)}, 0 offen")
        P(f"buffer_load_dword v251, v3, {s(SOUT,4)}, 0 offen")
        for I in P.ins[n0:]: I.cond = "w4"
        P(f"L_npt{tp}:")
    def stouch():
        n0 = len(P.ins)
        P(f"s_lshl_b32 {s(sT0)}, s2, 3\ns_add_u32 {s(sT0)}, {s(sT0)}, {s(sW)}\ns_mul_i32 {s(sT1)}, {s(sT0)}, 768\ns_mul_i32 {s(sT0)}, {s(sT0)}, 896")
        for i in range(6): P(f"s_load_dword {s(sCNT)}, {s(sEX,2)}, {s(sT1)} offset:{128*i}")
        for i in range(7): P(f"s_load_dword {s(sCNT)}, {s(sA0,2)}, {s(sT0)} offset:{128*i}")
    if OPT.get("stouch", "0") == "1": stouch()
    late1 = OPT.get("late1", "1") == "1"
    if not late1:
        for g_ in item1(1, pitch): P.add(g_)
    P(f"s_lshl_b32 {s(sT0)}, {s(sRT)}, 4\ns_add_u32 {s(sT0)}, {s(sT0)}, {s(sG)}\ns_lshl_b32 {s(sT0)}, {s(sT0)}, 7")
    P(f"s_and_b32 {s(sT1)}, {s(sW)}, 2\ns_lshl_b32 {s(sT1)}, {s(sT1)}, 3\ns_add_u32 {s(sT0)}, {s(sT0)}, {s(sT1)}\ns_and_b32 {s(sT1)}, {s(sW)}, 1\ns_lshl_b32 {s(sT1)}, {s(sT1)}, 2\ns_add_u32 {s(sT0)}, {s(sT0)}, {s(sT1)}\ns_lshl_b32 {s(sT1)}, {s(sHALF)}, 3\ns_add_u32 {s(sT0)}, {s(sT0)}, {s(sT1)}")
    P(f"s_add_u32 {s(sFO)}, {s(sT0)}, {WS_FLG + (1024 if ffn else 0)}")
    P(f"s_lshl_b32 {s(sT0)}, {s(sRT)}, 2\ns_add_u32 {s(sT0)}, {s(sT0)}, {s(sW34)}\ns_mul_i32 {s(sHo)}, {s(sT0)}, {HF_RB}")
    if ffn:
        P(f"v_and_b32 v5, 31, {v(vL)}\nv_lshlrev_b32 v5, 1, v5")
        P(f"s_lshl_b32 {s(sT0)}, {s(sHALF)}, 6\ns_add_u32 {s(sT0)}, {s(sT0)}, {s(sWq)}")
        for i in range(3): P(f"buffer_load_ushort {v(BIAS+i)}, v5, {s(SAUX,4)}, {s(sT0)} offen offset:{128*i}")
        P(f"s_lshl_b32 {s(sT0)}, {s(sT0)}, 5\ns_add_u32 {s(sH0)}, {s(sHo)}, {s(sT0)}")
        P(f"s_mul_i32 {s(sW3)}, {s(sG)}, 448\ns_add_u32 {s(sT0)}, {s(sW3)}, 384\ns_bitcmp1_b32 {s(sG)}, 0\ns_cselect_b32 {s(sW3)}, {s(sW3)}, {s(sT0)}")
        P(f"s_lshl_b32 {s(sT0)}, {s(sHALF)}, 5\nv_xor_b32 v5, {s(sT0)}, v5")
        P(f"buffer_load_ushort {v(BIAS+3)}, v5, {s(SAUX,4)}, {s(sW3)} offen")
        P(f"s_add_u32 {s(sT0)}, {s(sT0)}, {s(sW3)}\ns_lshl_b32 {s(sT0)}, {s(sT0)}, 5\ns_add_u32 {s(sH3)}, {s(sHo)}, {s(sT0)}")
        P(f"v_lshrrev_b32 v2, 2, {v(vL)}\nv_and_b32 v4, 3, {v(vL)}\nv_lshlrev_b32 v4, 4, v4\nv_mul_u32_u24 {v(VW3)}, {pitch}, v2\nv_add_u32 {v(VW3)}, {v(VW3)}, v4")
    else:
        P(f"s_cmp_lt_u32 {s(sW)}, 2")
        P(f"s_cbranch_scc0 L_nphi")
        P.cond_begin("w01")
        P(f"s_lshl_b32 {s(sT0)}, {s(sG)}, 11\ns_lshl_b32 {s(sT1)}, {s(sW)}, 10\ns_add_u32 {s(sT0)}, {s(sT0)}, {s(sT1)}\ns_add_u32 m0, {s(sT1)}, {L_WPHI}\ns_nop 0")
        P(f"buffer_load_dwordx4 {v(VL16)}, {s(SAUX,4)}, {s(sT0)} offen lds")
        P.cond_end()
        P("L_nphi:")
    P(f"s_mul_i32 {s(sT0)}, {s(sW34)}, {16*pitch}\ns_add_u32 {s(sWq)}, {s(sWq)}, {s(sT0)}")
    P(f"v_add_u32 {v(VW)}, {s(sWq)}, {v(VW)}")
    if ffn: P(f"s_add_u32 {s(sW3)}, {s(sW3)}, {s(sT0)}\nv_add_u32 {v(VW3)}, {s(sW3)}, {v(VW3)}")
    P(f"s_add_u32 {s(sT0)}, {s(sROT)}, {s(sHALF)}")
    for q in range(4):
        P(f"s_add_u32 {s(sT1)}, {s(sT0)}, {2*q}\ns_and_b32 {s(sT1)}, {s(sT1)}, 7\ns_mul_i32 {s(sQ[q])}, {s(sT1)}, {64*pitch}")
    P(f"s_mov_b32 {s(sT3)}, {f2u(1.0/512):#x}\ns_mov_b32 {s(sONE)}, 0x3f803f80")
    P(f"v_bfe_u32 {v(T)}, {v(vL)}, 2, 2\nv_lshrrev_b32 {v(T+1)}, 5, {v(vL)}")
    P(f"v_bfe_u32 {v(T+2)}, {v(vL)}, 4, 1\nv_lshlrev_b32 {v(T+2)}, 5, {v(T+2)}\nv_and_b32 {v(T+3)}, 3, {v(vL)}\nv_lshl_add_u32 {v(T+2)}, {v(T+3)}, 3, {v(T+2)}")
    P(f"v_and_b32 {v(T+4)}, 31, {v(vL)}\nv_bfe_u32 {v(T+5)}, {v(vL)}, 1, 3\nv_xor_b32 {v(T+5)}, {v(T+5)}, {v(T+1)}")
    P(f"s_lshl_b32 {s(sT0)}, {s(sW34)}, 12\nv_lshlrev_b32 {v(T+8)}, 7, {v(T+4)}\nv_add_u32 {v(T+8)}, {s(sT0)}, {v(T+8)}")
    P(f"v_lshl_add_u32 {v(T+9)}, {v(T+1)}, 3, {v(T)}\nv_lshl_add_u32 {v(T+10)}, {v(T+9)}, 7, {v(T+2)}\nv_lshrrev_b32 {v(T+7)}, 1, {v(T)}\nv_xor_b32 {v(T+7)}, {s(sHALF)}, {v(T+7)}\nv_lshl_add_u32 {v(T+10)}, {v(T+7)}, 6, {v(T+10)}")
    for p in range(4):
        P(f"s_xor_b32 {s(sT0)}, {s(sSIG)}, {p}\ns_lshl_b32 {s(sT1)}, {s(sT0)}, 1\nv_xor_b32 {v(T+6)}, {s(sT1)}, {v(T+5)}\nv_lshl_add_u32 {v(AX+p)}, {v(T+6)}, 4, {v(T+8)}")
        P(f"s_lshl_b32 {s(sT1)}, {s(sT0)}, 11\ns_add_u32 {s(sT1)}, {s(sT1)}, {RB}\nv_add_u32 {v(AW+p)}, {s(sT1)}, {v(T+10)}")
    if ffn:
        P(f"s_lshl_b32 {s(sT0)}, {s(sHALF)}, 5\nv_xor_b32 {v(T+7)}, {s(sT0)}, {v(T+2)}\nv_lshl_add_u32 {v(T+7)}, {v(T+9)}, 6, {v(T+7)}")
        for i, p in enumerate((0, 2)):
            P(f"s_xor_b32 {s(sT0)}, {s(sSIG)}, {p}\ns_lshl_b32 {s(sT0)}, {s(sT0)}, 10\nv_add_u32 {v(AB+i)}, {s(sT0)}, {v(T+7)}")
    P(f"v_lshlrev_b32 {v(T+4)}, 4, {v(T+4)}")
    P(f"s_lshl_b32 {s(sT0)}, {s(sHALF)}, 9\ns_add_u32 {s(sT0)}, {s(sT0)}, {L_CS}\nv_add_u32 {v(VCSA)}, {s(sT0)}, {v(T+4)}")
    P(f"s_lshl_b32 {s(sT0)}, {s(sW34)}, 9\ns_add_u32 {s(sT0)}, {s(sT0)}, {L_ST}\nv_add_u32 {v(VSTA)}, {s(sT0)}, {v(T+4)}")
    P(f"v_lshrrev_b32 {v(T+4)}, 2, {v(vL)}\nv_xor_b32 {v(T+4)}, {v(T+4)}, {v(vL)}\nv_and_b32 {v(T+4)}, 4, {v(T+4)}\nv_cmp_eq_u32 vcc, 0, {v(T+4)}\nv_mov_b32 {v(T+4)}, {s(sONE)}")
    for i in range(4): P(f"v_mov_b32 {v(PZ+i)}, -1")
    for r in (VZ, BAUG+3, AAUG+2, AAUG+3): P(f"v_mov_b32 {v(r)}, 0")
    for i in range(4): P(f"v_cndmask_b32 {v(SEL+i)}, 0, {v(T+4)}, vcc")
    P(f"s_lshl_b32 {s(sW34)}, {s(sW34)}, 2")
    if late1:
        for g_ in item1(1, pitch): P.add(g_)
    if OPT.get("stouch", "0") == "2": stouch()
    P(f"s_lshl_b32 {s(sT0)}, {s(sN)}, 7\ns_mul_i32 {s(sB2o)}, {s(sW)}, {224*1024}\ns_add_u32 {s(sB2o)}, {s(sB2o)}, {s(sT0)}")
    P(f"s_lshl_b32 {s(sBOo)}, {s(sW)}, 16\ns_add_u32 {s(sBOo)}, {s(sBOo)}, {s(sT0)}\ns_lshl_b32 {s(sM4)}, {s(sW)}, 12")
    P(f"s_lshl_b32 {s(sOo)}, {s(sM)}, 16\ns_lshl_b32 {s(sT1)}, {s(sW)}, 13\ns_add_u32 {s(sOo)}, {s(sOo)}, {s(sT1)}\ns_add_u32 {s(sOo)}, {s(sOo)}, {s(sT0)}")
    if OPT.get("r8", "1") == "1":
        P(f"s_mul_i32 {s(sT0)}, {s(sM)}, 5\ns_lshr_b32 {s(sT0)}, {s(sT0)}, 1\ns_sub_u32 {s(sN)}, {s(sN)}, {s(sM)}\ns_add_u32 {s(sR4)}, {s(sN)}, {s(sT0)}\ns_add_u32 {s(sN)}, {s(sN)}, {s(sM)}")
    else: P(f"s_mov_b32 {s(sR4)}, {s(sN)}")
    P(f"s_add_u32 {s(sR4)}, {s(sM)}, {s(sR4)}\ns_and_b32 {s(sR4)}, {s(sR4)}, {0 if OPT.get('norot') else 7}\ns_and_b32 {s(sSH)}, {s(sW)}, 1\ns_lshl_b32 {s(sSH)}, {s(sSH)}, 1")
    P(f"s_lshr_b32 {s(sT0)}, {s(sM)}, 1\ns_lshl_b32 {s(sT0)}, {s(sT0)}, 4\ns_add_u32 {s(sT0)}, {s(sT0)}, {s(sW)}\ns_lshl_b32 {s(sT0)}, {s(sT0)}, 7")
    P(f"s_and_b32 {s(sT1)}, {s(sM)}, 1\ns_lshl_b32 {s(sT1)}, {s(sT1)}, 4\ns_add_u32 {s(sT0)}, {s(sT0)}, {s(sT1)}\ns_add_u32 {s(sFL)}, {s(sT0)}, {WS_FLG}")
    P(f"s_mul_i32 {s(sA0)}, {s(sM)}, {2*HF_RB}\ns_mul_i32 {s(sT0)}, {s(sW)}, {14*1024}\ns_add_u32 {s(sA1)}, {s(sA0)}, {s(sM4)}\ns_add_u32 {s(sA1)}, {s(sA1)}, {112*1024}\ns_add_u32 {s(sA0)}, {s(sA0)}, {s(sT0)}")

class Sched:
    def __init__(self, n):
        self.n = n; self.pre = [[] for _ in range(n)]; self.post = [[] for _ in range(n)]
        self.fill = [[] for _ in range(n)]; self.dma = [[] for _ in range(n)]; self.blk = {}
    def spread(self, lst, a, b):
        for i in range(a, b): self.fill[i] += lst[len(lst)*(i-a)//(b-a): len(lst)*(i+1-a)//(b-a)]
    def dmas(self, groups, a, step=1):
        for i, g in enumerate(groups): self.dma[a + i*step] += g

def rd(G):
    b = WF + 4 * (G & 3)
    if G < 96:
        ks = G & 31; st, p = ks >> 2, ks & 3
        L = [f"ds_read_b128 {v(XF+4*ks,4)}, {v(AX+p)} offset:{RA+(st&3)*16384}"] if G < 32 else []
        if ks < 4 and G >= 32: L.append(f"v_xor_b32 {v(AW+p)}, {RB}, {v(AW+p)}")
        return L + [f"ds_read_b64_tr_b16 {v(b+2*t,2)}, {v(AW+p)} offset:{8192*st+512*t}" for t in range(2)]
    i = G - 96
    return [f"ds_read_b64_tr_b16 {v(b+2*t,2)}, {v(AB+(i&1))} offset:{4096*(i>>1)+256*t}" for t in range(2)]
def xq(G): return XF + 4 * (G & 31) if G < 96 else XF + 8 * (G - 96)

def common_sched(S, ffn, accs, MC):
    pitch = 3584 if ffn else 3072
    tp = "f" if ffn else "a"
    c1, c2 = (128, 256) if ffn else (2048, 0)
    S.dmas(item1(2, pitch), 0, 0)
    for st in range(8):
        G = 4 * st + 2
        S.pre[G] += [f".waitvm it{st+1}" if st < 7 else ".waitvm w1q0 lgkm0", "s_barrier"]
        if st <= 4: S.dmas(item1(st + 3, pitch), G)
        else: S.dmas(wquarter(RA, st - 5, c1, pitch, f"w1q{st-5}"), G)
    def m4(d, r, c=None): return f"v_mfma_f32_4x4x4_16b_bf16 {v(d,4)}, {v(r,2)}, {v(r,2)}, {v(d,4) if c is None else c}"
    Q0, Q1 = T + 8, T + 16
    for f in range(0, 32, 2):
        x = XF + 4 * f; a = max(f - 1, 0); c = "0" if f == 0 else None
        if OPT.get("hyb", "0") == "1":
            b = f if f < 30 else 29
            S.post[a] += [m4(Q0, x, c), m16(MS, SEL, x, c)]
            for r, G in ((x + 2, a), (x + 3, b)):
                S.post[G] += [f"v_and_b32 {v(Q1+2)}, 0xffff0000, {v(r)}", f"v_lshlrev_b32 {v(Q1+3)}, 16, {v(r)}",
                              f"v_fmac_f32 {v(Q1)}, {v(Q1+2)}, {v(Q1+2)}", f"v_fmac_f32 {v(Q1+1)}, {v(Q1+3)}, {v(Q1+3)}"]
        else: S.post[a] += [m4(Q0, x, c), m4(Q1, x + 2, c), m16(MS, SEL, x, c)]
    S.post[28] += [f"v_and_b32 {v(S1)}, 3, {v(vL)}", f"v_cmp_eq_u32 {s(sEX,2)}, 1, {v(S1)}", f"s_lshl_b32 {s(sT0)}, {s(sHALF)}, 3",
                   f"v_add_u32 {v(T)}, {s(sT0)}, {v(VSTA)}"]
    if OPT.get("hyb", "0") == "1":
        S.pre[0] += [f"v_mov_b32 {v(Q1)}, 0", f"v_mov_b32 {v(Q1+1)}, 0"]
        S.post[29] += [f"v_add_f32 {v(Q1)}, {v(Q1)}, {v(Q1+1)}"]
    else: S.post[29] += [f"v_add_f32 {v(Q0+i)}, {v(Q0+i)}, {v(Q1+i)}" for i in range(4)]
    S.post[29] += [f"v_cmp_eq_u32 vcc, 2, {v(S1)}", f"v_cndmask_b32 {v(S2)}, {v(Q0)}, {v(Q0+1)}, {s(sEX,2)}", f"v_cmp_eq_u32 {s(sEX,2)}, 3, {v(S1)}",
                   f"v_cndmask_b32 {v(S2)}, {v(S2)}, {v(Q0+2)}, vcc", f"v_cndmask_b32 {v(S2)}, {v(S2)}, {v(Q0+3)}, {s(sEX,2)}"] + ([f"v_add_f32 {v(S2)}, {v(S2)}, {v(Q1)}"] if OPT.get("hyb", "0") == "1" else []) + [
                   f"v_mov_b32 {v(S1)}, {v(S2)}", f"v_permlane32_swap_b32 {v(S1)}, {v(S2)}",
                   f"v_add_f32 {v(MS+1)}, {v(S1)}, {v(S2)}", f"ds_write_b64 {v(T)}, {v(MS,2)}"]
    S.post[30] += [f"ds_read_b128 {v(MS,4)}, {v(VSTA)}"]
    for ps in range(3):
        for st in range(8):
            G = 32 * ps + 4 * st
            S.post[G] += [m16(MC, SEL, WF + 4 * (G & 3), "0" if st == 0 else None)]
        S.post[32*ps + 29] += [f"v_add_u32 {v(MC+1)}, {s(sW34)}, {v(VCSA)}", f"ds_write_b32 {v(MC+1)}, {v(MC)} offset:{1024*ps}"]
    for q in (1, 2, 3): S.pre[32 + 8*q - 2] += [f".waitvm w1q{q}", "s_barrier"]
    w2 = sum([wquarter(RB, q, c2, pitch, "w2") for q in range(4)], [])
    for g_, G in zip(wquarter(RA, 3, c1, pitch, "w1q3") + w2, [int(x) for x in OPT.get("w2g", "32,33,35,37,38,40,41,43,44,46").split(",")]): S.dma[G] += g_
    S.pre[62] += [".waitvm w2 lgkm0", "s_barrier"]
    for G in ((int(OPT.get("fb", 82)),) if ffn else (86,)): S.pre[G] += ["s_barrier"]
    if ffn:
        S.post[int(OPT.get("f1", 90))] += flag(1, "h1")
        S.post[int(OPT.get("p1", 99))] += [spoll(0)]; S.blk[("e", int(OPT.get("c1", 105)))] = lambda: (sneed(1, 0), P(spoll(1)))
    else:
        S.post[int(OPT.get("fa", 80))] += flag(1, "po")
        S.post[95] += [spoll(1)]
    if OPT.get("l2t", "0") == "1":
        tg = [int(x) for x in OPT.get("l2gf" if ffn else "l2ga", "52,62,66,70,74" if ffn else "48,52,56,60,64").split(",")]
        DUM = VX0 if False else VW0
        for j in range(5):
            if j < 3:
                L = [f"s_lshr_b32 {s(sT0)}, s2, 3", f"s_mul_i32 {s(sT0)}, {s(sT0)}, 3", f"s_lshl_b32 {s(sT1)}, {s(sSH)}, 4", f"s_add_u32 {s(sT0)}, {s(sT0)}, {s(sT1)}",
                     f"s_add_u32 {s(sT0)}, {s(sT0)}, {128+j}", f"s_sub_u32 {s(sT1)}, {s(sT0)}, 224", f"s_min_u32 {s(sT0)}, {s(sT0)}, {s(sT1)}",
                     f"s_mul_i32 {s(sT1)}, {s(sW)}, 224", f"s_add_u32 {s(sT0)}, {s(sT0)}, {s(sT1)}", f"s_lshl_b32 {s(sT0)}, {s(sT0)}, 10",
                     f"buffer_load_dword {v(VTD)}, {v(VL16)}, {s(SW2,4)}, {s(sT0)} offen ; nodef"]
            else:
                L = [f"s_lshr_b32 {s(sT0)}, s2, 3", f"s_lshl_b32 {s(sT0)}, {s(sT0)}, 11", f"s_lshl_b32 {s(sT1)}, {s(sW)}, 16", f"s_add_u32 {s(sT0)}, {s(sT0)}, {s(sT1)}",
                     f"buffer_load_dword {v(VTD)}, {v(VL16)}, {s(SWO,4)}, {s(sT0)} offen offset:{1024*(j-3)} ; nodef"]
            S.dma[tg[j]] += L
    if OPT.get("touch") == "3":
        def mtouch():
            n0 = len(P.ins)
            P(f"s_cmp_lt_u32 {s(sW)}, 6")
            P(f"s_cbranch_scc1 L_mt{tp}")
            P.cond_begin("w67")
            P(f"v_lshlrev_b32 {v(T+1)}, 7, {v(vL)}\ns_mul_i32 {s(sT0)}, s2, 7168\ns_lshl_b32 {s(sT1)}, s2, 11")
            P(f"s_cmp_eq_u32 {s(sW)}, 6\ns_cbranch_scc0 L_mta{tp}")
            P(f"buffer_load_dword {v(T+2)}, {v(T+1)}, {s(SW2,4)}, {s(sT0)} offen")
            P(f"s_branch L_mt{tp}")
            P(f"L_mta{tp}:")
            P(f"v_and_b32 {v(T+1)}, 2047, {v(T+1)}")
            P(f"buffer_load_dword {v(T+2)}, {v(T+1)}, {s(SWO,4)}, {s(sT1)} offen")
            P(f"buffer_load_dword {v(T+3)}, {v(T+1)}, {s(SB2,4)}, 0 offen")
            P.cond_end()
            P(f"L_mt{tp}:")
        S.blk[("e", int(OPT.get("tg", 12)))] = mtouch
    def announce():
        P(f"s_lshl_b32 {s(sT0)}, {s(sW)}, 8\ns_add_u32 {s(sT0)}, {s(sT0)}, s2\ns_sub_u32 {s(sT0)}, {s(sT0)}, 256\ns_cmp_lt_u32 {s(sT0)}, 8")
        P(f"s_cbranch_scc0 L_nd")
        P.cond_begin("zw")
        P(".waitvm zf")
        P(f"s_lshl_b32 {s(sT0)}, s2, 2\nv_mov_b32 {v(VFV)}, 1")
        P(f"buffer_store_dword {v(VFV)}, {v(VZ)}, {s(SDBG,4)}, {s(sT0)} offen sc1")
        P.cond_end()
        P(f"L_nd:")
    if not ffn: S.blk[3] = announce
    ld = f"v_and_b32 {v(VX0)}, 28, {v(vL)}\nbuffer_load_dword {v(VX0)}, {v(VX0)}, {s(SDBG,4)}, 0 offen sc1"
    def poll0():
        P(f"s_cmp_eq_u32 {s(sW)}, 7"); P(f"s_cbranch_scc0 L_np{tp}")
        P.cond_begin("w7")
        P(ld)
        P.cond_end(); P(f"L_np{tp}:")
    def check0():
        P(f"s_cmp_eq_u32 {s(sW)}, 7"); P(f"s_cbranch_scc0 L_nc{tp}")
        P.cond_begin("w7")
        P(f"v_mov_b32 {v(VX0)}, {v(VX0)}")
        spin(f"L_ncs{tp}", ld, f"v_cmp_ne_u32 vcc, 1, {v(VX0)}")
        P.cond_end(); P(f"L_nc{tp}:")
    S.blk[39] = poll0; S.blk[62] = check0

def run_sched(S, accs):
    P(".waitvm it0")
    P("s_barrier")
    stamp("it0")
    P.add(rd(0)); P.add(rd(1))
    for G in range(S.n):
        stamp(f"g{G}")
        if G in S.blk: S.blk[G]()
        late = OPT.get("bam", "1") == "1" and G >= 32
        if not late: P.add(S.pre[G])
        if OPT.get("prio", "1") == "1": P(f"s_setprio {3 - ((G + 2) & 3)}")
        first = G in (0, 32, 64, 96)
        P(mfma(accs[G >> 5], WF + 4 * (G & 3), xq(G), "0" if first else None))
        if late: P.add(S.pre[G])
        if G + 2 < S.n: P.add(rd(G + 2))
        P.add(S.post[G]); P.add(S.fill[G]); P.add(S.dma[G])
        if ("e", G) in S.blk: S.blk[("e", G)]()
    P("s_setprio 0")

AC = 64; NAF = 8
def AFq(kk, rb): return XF + 4 + 8 * (2 * (kk % NAF) + rb)
def BTq(kk, nb): return XF + 8 * (2 * (kk & 3) + nb)
BA = 2
VXR, VRED = 9, 10
VWR = 20
XR, B2R = 32, 36
def a_jobs(kk):
    so = sA0 if kk < 14 else sA1
    return [rot_k(kk, sD1) + [f"s_lshl_b32 {s(sD1)}, {s(sD1)}, 10", f"s_add_u32 {s(sD1)}, {s(sD1)}, {s(so)}",
             f"buffer_load_dwordx4 {v(AFq(kk,0),4)}, {v(VL16)}, {s(SWS,4)}, {s(sD1)} offen sc1"],
            [f"s_add_u32 {s(sD1)}, {s(sD1)}, {HF_RB}",
             f"buffer_load_dwordx4 {v(AFq(kk,1),4)}, {v(VL16)}, {s(SWS,4)}, {s(sD1)} offen sc1"]]
def vcheck(regs, t):
    L = [f"v_max3_u32 {v(t)}, {v(regs[0])}, {v(regs[1])}, {v(regs[2])}"]; r = regs[3:]
    while len(r) >= 2: L.append(f"v_max3_u32 {v(t)}, {v(t)}, {v(r[0])}, {v(r[1])}"); r = r[2:]
    if r: L.append(f"v_max_u32 {v(t)}, {v(t)}, {v(r[0])}")
    return L + [f"v_cmp_eq_u32 vcc, -1, {v(t)}"]
SLOW = []
def validate(regs, t, reload):
    lb = P.lab("L_v")
    P.add(vcheck(regs, t))
    P(f"s_cbranch_vccnz {lb}_slow")
    P(f"{lb}_back:")
    SLOW.append([f"{lb}_slow:", f"s_mov_b32 {s(sCNT)}, 0", f"{lb}_loop:", "s_sleep 2"] + reload + ["s_waitcnt vmcnt(0)"] + vcheck(regs, t) +
                [f"s_add_u32 {s(sCNT)}, {s(sCNT)}, 1", f"s_cbranch_vccz {lb}_back", f"s_cmp_gt_u32 {s(sCNT)}, {SPIN_MAX}",
                 f"s_cbranch_scc0 {lb}_loop", f"s_branch {lb}_back"])
def flush_slow():
    for blk in SLOW:
        P(".reset"); P.add(blk)
    SLOW.clear()
def spoll(o): return f"s_buffer_load_dwordx4 {s(sPL,4)}, {s(SWS,4)}, {s(sFL)} offset:{0 if o else 1024} glc"
def sneed(level, o):
    lb = P.lab("L_sp")
    P(f"s_mov_b32 {s(sCNT)}, 0")
    P(f"{lb}:")
    P("s_waitcnt lgkmcnt(0)")
    P(f"s_min_u32 {s(sPL)}, {s(sPL)}, {s(sPL+1)}\ns_min_u32 {s(sPL+2)}, {s(sPL+2)}, {s(sPL+3)}\ns_min_u32 {s(sPL)}, {s(sPL)}, {s(sPL+2)}")
    P(f"s_cmp_ge_u32 {s(sPL)}, {level}")
    P(f"s_cbranch_scc1 {lb}_ok")
    P(f"s_add_u32 {s(sCNT)}, {s(sCNT)}, 1\ns_cmp_gt_u32 {s(sCNT)}, {SPIN_MAX}")
    P(f"s_cbranch_scc1 {lb}_ok")
    P("s_sleep 1")
    I = Ins(spoll(o)); I.kind = "salu"; P.ins.append(I)
    P(f"s_branch {lb}")
    P(f"{lb}_ok:")
def own_check():
    lb = P.lab("L_oc")
    P(f"s_mov_b32 {s(sCNT)}, 0")
    P(f"{lb}:")
    P("s_waitcnt lgkmcnt(0)")
    P(f"s_cmp_ge_u32 {s(sK)}, 1")
    P(f"s_cbranch_scc1 {lb}_ok")
    P(f"s_add_u32 {s(sCNT)}, {s(sCNT)}, 1\ns_cmp_gt_u32 {s(sCNT)}, {SPIN_MAX}")
    P(f"s_cbranch_scc1 {lb}_ok")
    P("s_sleep 1")
    I = Ins(f"s_buffer_load_dword {s(sK)}, {s(SWS,4)}, {s(sT2)} glc"); I.kind = "salu"; P.ins.append(I)
    P(f"s_branch {lb}")
    P(f"{lb}_ok:")
def b_reads(kk):
    slot = kk % 9
    var, off = (KAREA[slot] >> 16), KAREA[slot] & 0xffff
    return [f".waitvm b{kk}"] + [f"ds_read_b64_tr_b16 {v(BTq(kk,nb)+2*tt,2)}, {v(BA+2*var+nb)} offset:{off+1024*tt}" for nb in range(2) for tt in range(2)]
def phase2(done=(), ordr="B6 B7 B8 B9 A4 A5 A6 A7 B10 A8 B11 A9 A10 B12 A11 B13 A12 B14 A13 B15 B16 B17 A14 A15 A16 A17", ffn=False):
    P(f"v_bfe_u32 {v(T+8)}, {v(vL)}, 2, 2\nv_lshrrev_b32 {v(T+9)}, 5, {v(vL)}\nv_and_b32 {v(T+10)}, 63, {v(AW)}")
    P(f"v_lshl_add_u32 {v(T+12)}, {v(T+9)}, 2, {v(T+8)}\nv_lshl_add_u32 {v(T+12)}, {v(T+12)}, 7, {v(T+10)}\nv_lshrrev_b32 {v(T+13)}, 1, {v(T+8)}")
    P(f"v_lshl_add_u32 {v(T+12)}, {v(T+13)}, 6, {v(T+12)}\nv_xor_b32 {v(T+13)}, 64, {v(T+12)}")
    P(f"s_add_u32 {s(sT0)}, {s(sM0x)}, 65536\ns_add_u32 {s(sT1)}, {s(sM0x)}, {RC}")
    for nb in range(2):
        P(f"v_add_u32 {v(BA+nb)}, {s(sM0x)}, {v(T+12+nb)}\nv_add_u32 {v(BA+2+nb)}, {s(sT0)}, {v(T+12+nb)}\nv_add_u32 {v(BA+4+nb)}, {s(sT1)}, {v(T+12+nb)}")
    P.add(b_reads(0))
    if OPT.get("r8", "1") == "1": validate([AFq(0, r2) + i for r2 in range(2) for i in range(4)], T + 16, sum(a_jobs(0), []))
    if OPT.get("p2prio") == "y":
        lb = P.lab("L_pr"); P(f"s_cmp_lt_u32 {s(sW)}, 4\ns_cbranch_scc1 {lb}\ns_setprio 1\n{lb}:")
    stamp("hseen")
    order = [j for j in ordr.split() if j not in done]
    jobs = []
    for j in order:
        k2 = int(j[1:]); gs = a_jobs(k2) if j[0] == "A" else b_dma(k2)
        jobs += [(j, gs[0]), (None, gs[1])]
    LEAD = int(OPT.get("lead", 3))
    first_need = min(int(j[1:]) - (0 if j[0] == "A" else 1) for j in order)
    order.sort(key=lambda j: int(j[1:]) - (0.5 if j[0] == "B" else 0)) if LEAD < 9 else None
    jobs = []
    for j in order:
        k2 = int(j[1:]); gs = a_jobs(k2) if j[0] == "A" else b_dma(k2)
        jobs += [(j, gs[0]), (None, gs[1])]
    NT = int(OPT.get("nt", 2))
    for kk in range(18 - NT):
        rem = [x for x, _ in jobs if x]
        assert f"A{kk+1}" not in rem and f"B{kk+2}" not in rem, (kk, rem)
        if OPT.get("v"): print(kk, rem, file=sys.stderr)
        pm = OPT.get("p2prio", "c")
        if pm == "c": P(f"s_setprio {3 - ((kk // int(OPT.get('p2per', 1))) & 3)}")
        br = b_reads(kk + 1) if kk + 1 < 18 else []
        for nb in range(2):
            for rb in range(2):
                mi = 2 * nb + rb
                P(mfma(AC + 16 * mi, BTq(kk, nb), AFq(kk, rb), "0" if kk == 0 else None))
                if mi == 0: P.add(br[:3])
                if mi == 1: P.add(br[3:])
                if mi == 2 and (1 if OPT.get('r8', '1') == '1' else 4) <= kk + 1 < 18:
                    if jobs and jobs[0][0] is None: P.add(jobs.pop(0)[1])
                    validate([AFq(kk + 1, r2) + i for r2 in range(2) for i in range(4)], T + 16, sum(a_jobs(kk + 1), []))
                for rep in range(2 if kk < int(OPT.get("dbl", 0)) else 1):
                    if not jobs: continue
                    j, g_ = jobs[0]
                    if j:
                        k2 = int(j[1:]); last = (nb, rb) == (1, 1)
                        free = k2 - (8 if j[0] == "A" else 9)
                        if free > kk or (free == kk and not last): continue
                        need_at = k2 - (0 if j[0] == "A" else 1)
                        if need_at > max(kk, first_need - 1) + LEAD: continue
                    jobs.pop(0); P.add(g_)
        stamp(f"k{kk}")
        if kk == 8:
            P(f"v_lshrrev_b32 {v(T+17)}, 3, {v(vL)}\nv_and_b32 {v(T+18)}, 7, {v(vL)}\nv_lshlrev_b32 {v(T+18)}, 4, {v(T+18)}\nv_lshl_add_u32 {v(VXR)}, {v(T+17)}, 10, {v(T+18)}")
            P(f"s_lshl_b32 {s(sT0)}, {s(sN)}, 7")
            P(f"buffer_load_dwordx4 {v(XR,4)}, {v(VXR)}, {s(SX,4)}, {s(sOo)} offen")
            P(f"buffer_load_dwordx4 {v(B2R,4)}, {v(T+18)}, {s(SB2,4)}, {s(sT0)} offen")
        if kk == 3:
            for q in range(4):
                P(f"v_xor_b32 {v(VWR+q)}, {64*q}, {v(VL16)}\nv_add_u32 {v(VWR+q)}, {s(sM0x)}, {v(VWR+q)}")
                P(f"v_add_u32 {v(T+q)}, 65536, {v(VWR+q)}")
            P(f"v_lshrrev_b32 {v(T+4)}, 3, {v(vL)}\ns_lshl_b32 {s(sT0)}, {s(sW34)}, 1\nv_add_u32 {v(T+4)}, {s(sT0)}, {v(T+4)}")
            P(f"v_and_b32 {v(T+5)}, 3, {v(vL)}\nv_lshlrev_b32 {v(T+6)}, 2, {v(T+5)}\nv_xor_b32 {v(T+4)}, {v(T+4)}, {v(T+6)}\nv_lshlrev_b32 {v(T+4)}, 4, {v(T+4)}\nv_and_b32 {v(T+6)}, 1, {v(T+5)}\nv_lshl_add_u32 {v(T+4)}, {v(T+6)}, 10, {v(T+4)}\nv_lshrrev_b32 {v(T+6)}, 1, {v(T+5)}\nv_lshl_add_u32 {v(T+4)}, {v(T+6)}, 14, {v(T+4)}")
            P(f"v_bfe_u32 {v(T+5)}, {v(vL)}, 2, 1\nv_lshl_add_u32 {v(T+4)}, {v(T+5)}, 16, {v(T+4)}\ns_lshl_b32 {s(sT0)}, {s(sHALF)}, 15\nv_add_u32 {v(VRED)}, {s(sT0)}, {v(T+4)}")
        F = T + 8
        if kk == 13:
            for i in range(4):
                P(f"v_lshlrev_b32 {v(F+2*i)}, 16, {v(XR+i)}\nv_and_b32 {v(F+2*i+1)}, 0xffff0000, {v(XR+i)}")
                P(f"v_lshlrev_b32 {v(T+4)}, 16, {v(B2R+i)}\nv_and_b32 {v(T+5)}, 0xffff0000, {v(B2R+i)}")
                P(f"v_add_f32 {v(F+2*i)}, {v(F+2*i)}, {v(T+4)}\nv_add_f32 {v(F+2*i+1)}, {v(F+2*i+1)}, {v(T+5)}")
    assert not jobs
    for kk in range(19 - NT, 18):
        P.add(b_reads(kk))
        validate([AFq(kk, r2) + i for r2 in range(2) for i in range(4)], T + 16, sum(a_jobs(kk), []))
    def wr(blk): return [f"ds_write_b128 {v(VWR + q if blk < 2 else T + q)}, {v(AC+16*blk+4*q,4)} offset:{(blk&1)*32768+(q>>1)*16384+(q&1)*1024}" for q in range(4)]
    pend = []
    for mi in range(4):
        for kk in range(18 - NT, 18):
            P(mfma(AC + 16 * mi, BTq(kk, mi >> 1), AFq(kk, mi & 1)))
            if kk > 18 - NT or NT == 1: P.add(pend[:2]); pend = pend[2:]
        P.add(pend); pend = wr(mi)
    stamp("p2mm")
    P.add(pend)
    P("s_waitcnt lgkmcnt(0)")
    stamp("rw")
    P("s_barrier")
    stamp("rb")
    R = XF
    for ww in range(8):
        for hf in range(2): P(f"ds_read_b128 {v(R+8*ww+4*hf,4)}, {v(VRED)} offset:{2048*ww+512*hf}")
    for ww in range(8):
        for i in range(0, 8, 2): P(f"v_pk_add_f32 {v(F+i,2)}, {v(F+i,2)}, {v(R+8*ww+i,2)}")
    for i in range(4): P(f"v_cvt_pk_bf16_f32 {v(XR+i)}, {v(F+2*i)}, {v(F+2*i+1)}")
    P(f"buffer_store_dwordx4 {v(XR,4)}, {v(VXR)}, {s(SOUT,4)}, {s(sOo)} offen {OPT.get('om', '').replace('+', ' ')}")
    if OPT.get("echo") and OPT.get("echot", "fa").find("f" if ffn else "a") < 0: pass
    elif OPT.get("echo"):
        a_, b_ = [STI[x] for x in OPT["echo"].split(",")]
        lb = P.lab("L_echo")
        stamp("end")
        P("s_waitcnt lgkmcnt(0)")
        P(f"s_sub_u32 {s(sT0)}, {s(sST+2*b_)}, {s(sST+2*a_)}")
        if STAMP == 2:
            P(f"s_lshr_b32 {s(sT0)}, {s(sT0)}, 4\ns_memrealtime {s(sST+22,2)}\ns_waitcnt lgkmcnt(0)")
        P(f"s_min_u32 {s(sT0)}, {s(sT0)}, 10000")
        P(f"{lb}:")
        P(f"s_memrealtime {s(sEX,2)}")
        P("s_waitcnt lgkmcnt(0)")
        P(f"s_sub_u32 {s(sT1)}, {s(sEX)}, {s(sST+22)}\ns_cmp_lt_u32 {s(sT1)}, {s(sT0)}\ns_cbranch_scc1 {lb}")
    elif STAMP:
        stamp("end")
        P("s_waitcnt lgkmcnt(0)")
        P(f"s_lshl_b32 {s(sT0)}, s2, 3\ns_add_u32 {s(sT0)}, {s(sT0)}, {s(sW)}\ns_lshl_b32 {s(sT0)}, {s(sT0)}, 6\ns_add_u32 {s(sT0)}, {s(sT0)}, {WS_STAMP}")
        P(f"v_mov_b32 v2, 0\ns_mov_b64 exec, 1")
        for i in range(12):
            P(f"v_mov_b32 v3, {s(sST+2*i)}\nbuffer_store_dword v3, v2, {s(SWS,4)}, {s(sT0)} offen offset:{4*i}")
    P("s_endpgm")
    flush_slow()

def softmax(p, out, LS, pk=False):
    t = T + 16
    if pk:
        assert LS == STD + 1
        L = softmax(p, out, LS)[:9]
        L += [f"v_pk_fma_f32 {v(p+i,2)}, {v(p+i,2)}, {v(STD,2)}, {v(t,2)} op_sel:[0,1,0] op_sel_hi:[1,1,0] neg_lo:[0,0,1] neg_hi:[0,0,1]" for i in range(0, 16, 2)]
        L += [f"v_exp_f32 {v(p+i)}, {v(p+i)}" for i in range(16)]
        L += [f"v_pk_add_f32 {v(t,2)}, {v(p,2)}, {v(p+2,2)}", f"v_pk_add_f32 {v(t+2,2)}, {v(p+4,2)}, {v(p+6,2)}"]
        L += [f"v_pk_add_f32 {v(t+2*(i&1),2)}, {v(t+2*(i&1),2)}, {v(p+8+2*i,2)}" for i in range(4)]
        L += [f"v_pk_add_f32 {v(t,2)}, {v(t,2)}, {v(t+2,2)}", f"v_add_f32 {v(t)}, {v(t)}, {v(t+1)}", f"v_rcp_f32 {v(t)}, {v(t)}"]
        L += [f"v_pk_mul_f32 {v(p+i,2)}, {v(p+i,2)}, {v(t,2)} op_sel_hi:[1,0]" for i in range(0, 16, 2)]
        return L + [f"v_cvt_pk_bf16_f32 {v(out+i)}, {v(p+2*i)}, {v(p+2*i+1)}" for i in range(8)]
    L = [f"v_max3_f32 {v(t)}, {v(p)}, {v(p+1)}, {v(p+2)}", f"v_max3_f32 {v(t+1)}, {v(p+3)}, {v(p+4)}, {v(p+5)}",
         f"v_max3_f32 {v(t)}, {v(t)}, {v(p+6)}, {v(p+7)}", f"v_max3_f32 {v(t+1)}, {v(t+1)}, {v(p+8)}, {v(p+9)}",
         f"v_max3_f32 {v(t)}, {v(t)}, {v(p+10)}, {v(p+11)}", f"v_max3_f32 {v(t+1)}, {v(t+1)}, {v(p+12)}, {v(p+13)}",
         f"v_max3_f32 {v(t)}, {v(t)}, {v(p+14)}, {v(p+15)}", f"v_max_f32 {v(t)}, {v(t)}, {v(t+1)}",
         f"v_mul_f32 {v(t)}, {v(t)}, {v(LS)}"]
    L += [f"v_fma_f32 {v(p+i)}, {v(p+i)}, {v(LS)}, -{v(t)}" for i in range(16)]
    L += [f"v_exp_f32 {v(p+i)}, {v(p+i)}" for i in range(16)]
    L += [f"v_add_f32 {v(t)}, {v(p)}, {v(p+1)}", f"v_add_f32 {v(t+1)}, {v(p+2)}, {v(p+3)}"]
    for i in range(4, 16, 2):
        L += [f"v_add_f32 {v(t)}, {v(t)}, {v(p+i)}", f"v_add_f32 {v(t+1)}, {v(t+1)}, {v(p+i+1)}"]
    L += [f"v_add_f32 {v(t)}, {v(t)}, {v(t+1)}", f"v_rcp_f32 {v(t)}, {v(t)}"]
    L += [f"v_mul_f32 {v(p+i)}, {v(p+i)}, {v(t)}" for i in range(16)]
    L += [f"v_cvt_pk_bf16_f32 {v(out+i)}, {v(p+2*i)}, {v(p+2*i+1)}" for i in range(8)]
    return L

setup(False)
KAREA[:] = [RC, RA+3*Q, RB, RA, RA+Q, RA+2*Q, RB+Q, RB+2*Q, RB+3*Q]
LS = K1; VPK = K2; VV = VW3; MC = BIAS
PHI0, PHI1 = AX, AAUG
PHI0 = AX
PHI1 = S1
PHI1 = T + 12
t = T + 16
P(f"v_bfe_u32 {v(t)}, {v(vL)}, 2, 2\nv_lshrrev_b32 {v(t+1)}, 5, {v(vL)}\nv_lshl_add_u32 {v(t)}, {v(t+1)}, 2, {v(t)}\nv_lshlrev_b32 {v(t)}, 5, {v(t)}")
P(f"v_bfe_u32 {v(t+2)}, {v(vL)}, 1, 1\nv_lshl_add_u32 {v(t)}, {v(t+2)}, 3, {v(t)}\nv_bfe_u32 {v(t+2)}, {v(vL)}, 4, 1\nv_lshl_add_u32 {v(t)}, {v(t+2)}, 4, {v(t)}")
P(f"s_lshl_b32 {s(sT1)}, {s(sHALF)}, 10\ns_add_u32 {s(sT1)}, {s(sT1)}, {L_WPHI}\nv_add_u32 {v(AB)}, {s(sT1)}, {v(t)}")
P(f"v_bfe_u32 {v(t)}, {v(vL)}, 2, 1\nv_mul_u32_u24 {v(t)}, 0x8000, {v(t)}\nv_lshl_or_b32 {v(AB+1)}, {v(t)}, 16, {v(t)}")
P(f"v_and_b32 {v(t)}, 31, {v(vL)}\nv_lshlrev_b32 {v(t)}, 6, {v(t)}\ns_lshl_b32 {s(sT1)}, {s(sW34)}, 9\nv_bfe_u32 {v(t+2)}, {v(vL)}, 1, 2")
P(f"v_lshlrev_b32 {v(t+3)}, 1, {v(t+1)}\nv_xor_b32 {v(t+3)}, {v(t+3)}, {v(t+2)}")
P(f"s_lshl_b32 {s(sT2)}, {s(sHALF)}, 14\ns_add_u32 {s(sT2)}, {s(sT2)}, {s(sT1)}\nv_lshl_add_u32 {v(VPK)}, {v(t+3)}, 4, {v(t)}\nv_add_u32 {v(VPK)}, {s(sT2)}, {v(VPK)}")
P(f"v_xor_b32 {v(t+3)}, {v(t+1)}, {v(t+2)}")
P(f"s_lshl_b32 {s(sT2)}, {s(sHALF)}, 13\ns_add_u32 {s(sT2)}, {s(sT2)}, {s(sT1)}\ns_add_u32 {s(sT2)}, {s(sT2)}, {RA+32768}\nv_lshl_add_u32 {v(VV)}, {v(t+3)}, 4, {v(t)}\nv_add_u32 {v(VV)}, {s(sT2)}, {v(VV)}")
def phi_load(hl, dst):
    return [f"ds_read_b64_tr_b16 {v(dst+2*tt,2)}, {v(AB)} offset:{512*hl+256*tt}" for tt in range(2)] + \
           [f"v_xor_b32 {v(dst+i)}, {v(AB+1)}, {v(dst+i)}" for i in range(4)]
S = Sched(96)
common_sched(S, False, None, MC)
S.post[30] += [f"ds_read_b128 {v(CSR,4)}, {v(VCSA)}"]
sKV, sOS = sH0, sH3
P(f"s_lshl_b32 {s(sT0)}, {s(sG)}, 4\ns_add_u32 {s(sT0)}, {s(sT0)}, {s(sRT)}\ns_mul_i32 {s(sT0)}, {s(sT0)}, {KVP_SZ}\ns_mul_i32 {s(sT1)}, {s(sW)}, 1152\ns_add_u32 {s(sT0)}, {s(sT0)}, {s(sT1)}\ns_add_u32 {s(sT0)}, {s(sT0)}, {WS_KVP}")
P(f"s_cmp_lt_u32 {s(sW)}, 4\ns_cselect_b32 {s(sKV)}, {s(sT0)}, 0x7f000000")
P(f"s_lshl_b32 {s(sT0)}, {s(sG)}, 2\ns_lshl_b32 {s(sT1)}, {s(sHALF)}, 1\ns_add_u32 {s(sT0)}, {s(sT0)}, {s(sT1)}\ns_add_u32 {s(sT0)}, {s(sT0)}, 112\ns_lshl_b32 {s(sT0)}, {s(sT0)}, 10\ns_add_u32 {s(sOS)}, {s(sT0)}, {s(sHo)}")
PA = AAUG
OFFL = OPT.get("off", "0") == "1"
if OFFL:
    P(f"s_mul_i32 {s(sT0)}, {s(sG)}, 448\ns_and_b32 {s(sT1)}, {s(sG)}, 1\ns_add_u32 {s(sT2)}, {s(sT1)}, {s(sHALF)}\ns_lshl_b32 {s(sT2)}, {s(sT2)}, 6\ns_add_u32 {s(sT2)}, {s(sT2)}, {s(sT0)}")
    P(f"s_lshl_b32 {s(sT2)}, {s(sT2)}, 5\ns_add_u32 {s(sWq)}, {s(sT2)}, {s(sHo)}\ns_add_u32 {s(sWq)}, {s(sWq)}, 8192")
    P(f"s_xor_b32 {s(sT1)}, {s(sT1)}, 1\ns_mul_i32 {s(sT1)}, {s(sT1)}, 384\ns_add_u32 {s(sT0)}, {s(sT0)}, {s(sT1)}\ns_lshl_b32 {s(sT1)}, {s(sHALF)}, 5\ns_add_u32 {s(sT0)}, {s(sT0)}, {s(sT1)}")
    P(f"s_lshl_b32 {s(sT0)}, {s(sT0)}, 5\ns_add_u32 {s(sW3)}, {s(sT0)}, {s(sHo)}")
S.post[46] += [f"v_mov_b32 {v(PA+i)}, -1" for i in range(4)] + [f"v_lshrrev_b32 {v(S2)}, 2, {v(vL)}", f"v_lshl_add_u32 {v(S2)}, {v(S2)}, 26, {v(VL16)}"]
S.post[47] += [f"buffer_store_dwordx4 {v(PA,4)}, {v(VL16)}, {s(SWS,4)}, {s(sKV)} offen sc1"]
S.post[48] += [f"buffer_store_dwordx4 {v(PA,4)}, {v(S2)}, {s(SWS,4)}, {s(sKV)} offen offset:1024 sc1 ; tag=pz"]
pl = [(sOS, 0), (sOS, 1024)] + ([(sWq, 0), (sWq, 1024), (sW3, 0)] if OFFL else [])
for (so, off), G in zip(pl, [int(x) for x in OPT.get("pza", "50,53,56,59,62").split(",")]):
    S.post[G] += [f"buffer_store_dwordx4 {v(PA,4)}, {v(VL16)}, {s(SWS,4)}, {s(so)} offen offset:{off} sc1 ; tag=po"]
S.post[63] += [f"v_mov_b32 {v(PA+2)}, 0", f"v_mov_b32 {v(PA+3)}, 0"]
def ltouch():
    P(f"s_sub_u32 {s(sT0)}, {s(sW)}, 4\ns_cmp_lt_u32 {s(sT0)}, 3")
    P(f"s_cbranch_scc0 L_nlt")
    P.cond_begin("w456")
    P(f"v_lshlrev_b32 {v(S1)}, 7, {v(vL)}\ns_lshl_b32 {s(sT1)}, {s(sRT)}, 3\ns_add_u32 {s(sT1)}, {s(sT1)}, {s(sG)}")
    P(f"s_cmp_eq_u32 {s(sT0)}, 2\ns_cbranch_scc1 L_lt2")
    P(f"s_lshl_b32 {s(sT1)}, {s(sT1)}, 1\ns_add_u32 {s(sT1)}, {s(sT1)}, {s(sT0)}\ns_mul_i32 {s(sT1)}, {s(sT1)}, 7168")
    P(f"buffer_load_dword {v(VX0)}, {v(S1)}, {s(SW2,4)}, {s(sT1)} offen")
    P("s_branch L_nlt")
    P("L_lt2:")
    P(f"v_and_b32 {v(S1)}, 4095, {v(S1)}\ns_lshl_b32 {s(sT1)}, {s(sT1)}, 12")
    P(f"buffer_load_dword {v(VX0)}, {v(S1)}, {s(SWO,4)}, {s(sT1)} offen")
    P(f"buffer_load_dword {v(VX1)}, {v(S1)}, {s(SB2,4)}, 0 offen")
    P.cond_end()
    for I in P.ins[-12:]:
        if I.kind == "vld": I.defs = []
    P("L_nlt:")
if OPT.get("touch", "1") == "2": S.blk[("e", int(OPT.get("tg", 54)))] = ltouch
S.post[31] += stamp_i("pass1")
fill = stats_final() + aug(ACC0, CSR, None) + phi_load(0, AX) + phi_load(1, T + 8) + [f"v_mul_f32 {v(LS)}, {f2u(LOG2E):#x}, {v(RSTD)}"]
fill += [f"v_cvt_pk_bf16_f32 {v(T+i)}, {v(ACC0+2*i)}, {v(ACC0+2*i+1)}" for i in range(8)]
fill += [mfma(ACC2, AX, T, "0"), mfma(ACC0, T + 8, T + 4, "0")]
S.spread(fill, 32, 40)
S.spread(softmax(ACC2, T + 8, LS) + softmax(ACC0, T, LS), 41, 64)
S.post[56] += [f"ds_write_b128 {v(VPK)}, {v(T+8,4)}", f"v_xor_b32 {v(VSTA)}, 16, {v(VPK)}"]
S.post[57] += [f"ds_write_b128 {v(VSTA)}, {v(T+12,4)}"]
S.post[62] += [f"ds_read_b128 {v(MC,4)}, {v(VCSA)} offset:1024"]
S.post[63] += stamp_i("sub1")
S.pre[64] += sum4(CS0, MC)
S.fill[64] += aug(ACC1, MC, None)[3:]
S.post[65] += [f"ds_write_b128 {v(VPK)}, {v(T,4)} offset:8192"]
S.post[66] += [f"ds_write_b128 {v(VSTA)}, {v(T+4,4)} offset:8192"]
fill = []
fill += [f"v_mul_f32 {v(ACC1+i)}, {v(ACC1+i)}, {v(RSTD)}" for i in range(16)]
fill += [f"v_cvt_pk_bf16_f32 {v(ACC1+i)}, {v(ACC1+2*i)}, {v(ACC1+2*i+1)}" for i in range(8)]
fill += [f"ds_write_b128 {v(VV)}, {v(ACC1,4)}", f"v_xor_b32 {v(VV)}, 32, {v(VV)}", f"ds_write_b128 {v(VV)}, {v(ACC1+4,4)}"]
S.spread(fill, 66, 70)
S.dmas(b_dma(0), 65, 3)
S.dmas(b_dma(1), 74, 4); S.dmas(b_dma(2) + b_dma(3) + b_dma(4), 86, 1)
def kvblock():
    P(".waitvm pz lgkm0")
    P("s_barrier")
    kvflag()
    stamp("kv0"); stamp("kv1")
    P(f"s_cmp_lt_u32 {s(sW)}, 4")
    P("s_cbranch_scc0 L_nkv")
    P.cond_begin("lo4")
    t = T + 16; u = S1
    P(f"v_bfe_u32 {v(u)}, {v(vL)}, 2, 2\nv_lshrrev_b32 {v(u+1)}, 5, {v(vL)}\nv_lshl_add_u32 {v(u)}, {v(u+1)}, 3, {v(u)}\nv_lshlrev_b32 {v(u)}, 6, {v(u)}")
    P(f"v_bfe_u32 {v(u+1)}, {v(vL)}, 1, 1\nv_lshl_add_u32 {v(u)}, {v(u+1)}, 3, {v(u)}\nv_bfe_u32 {v(u+1)}, {v(vL)}, 3, 1\nv_and_b32 {v(VSTA)}, 1, {v(vL)}")
    P(f"v_or_b32 {v(t)}, {s(sSH)}, {v(VSTA)}\nv_xor_b32 {v(t)}, {v(t)}, {v(u+1)}\nv_lshl_add_u32 {v(t)}, {v(t)}, 4, {v(u)}")
    P(f"s_lshr_b32 {s(sT0)}, {s(sW)}, 1\ns_lshl_b32 {s(sT0)}, {s(sT0)}, 13\ns_add_u32 {s(sT0)}, {s(sT0)}, {RA+32768}\nv_add_u32 {v(t)}, {s(sT0)}, {v(t)}\nv_xor_b32 {v(t+1)}, 32, {v(t)}")
    P(f"v_bfe_u32 {v(t+2)}, {v(vL)}, 4, 1\nv_lshl_add_u32 {v(t+2)}, {v(VSTA)}, 1, {v(t+2)}\nv_xor_b32 {v(t+2)}, {v(t+2)}, {v(u+1)}\nv_lshl_add_u32 {v(t+2)}, {v(t+2)}, 4, {v(u)}")
    P(f"s_lshl_b32 {s(sT0)}, {s(sW)}, 13\nv_add_u32 {v(t+2)}, {s(sT0)}, {v(t+2)}\nv_xor_b32 {v(t+3)}, 32, {v(t+2)}")
    P(f"v_and_b32 {v(u)}, 16, {v(vL)}\nv_cmp_eq_u32 vcc, 0, {v(u)}\nv_mov_b32 {v(u+1)}, {s(sONE)}")
    KB = [T, T + 8, ACC1, ACC1 + 8]
    def kr(J):
        for tt in range(2):
            P(f"ds_read_b64_tr_b16 {v(KB[J&3]+2*tt,2)}, {v(t+tt)} offset:{1024*J+256*tt}")
            P(f"ds_read_b64_tr_b16 {v(KB[J&3]+4+2*tt,2)}, {v(t+2+tt)} offset:{1024*J+256*tt}")
    kr(0); kr(1); kr(2)
    for J in range(8):
        for i in range(4): P(f"v_cndmask_b32 {v(KB[J&3]+i)}, {v(u+1)}, {v(KB[J&3]+i)}, vcc")
        if J + 3 < 8: kr(J + 3)
        P(mfma(ACC0, KB[J&3] + 4, KB[J&3], "0" if J == 0 else None))
    P(f"v_lshrrev_b32 {v(u)}, 5, {v(vL)}\nv_and_b32 {v(t+2)}, 15, {v(vL)}\nv_lshlrev_b32 {v(t)}, 4, {v(t+2)}\nv_lshl_add_u32 {v(t)}, {v(u)}, 8, {v(t)}\nv_add_u32 {v(t+1)}, 512, {v(t)}")
    P(f"v_lshlrev_b32 {v(u)}, 4, {v(u)}\nv_add_u32 {v(u)}, 1024, {v(u)}\nv_lshl_add_u32 {v(u)}, {v(t+2)}, 26, {v(u)}\nv_add_u32 {v(u+1)}, 32, {v(u)}")
    P(f"v_cndmask_b32 {v(t)}, {v(u)}, {v(t)}, vcc\nv_cndmask_b32 {v(t+1)}, {v(u+1)}, {v(t+1)}, vcc")
    for i in range(8): P(f"v_cvt_pk_bf16_f32 {v(T+i)}, {v(ACC0+2*i)}, {v(ACC0+2*i+1)}")
    stamp("kv1")
    for j in range(2): P(f"buffer_store_dwordx4 {v(T+4*j,4)}, {v(t+j)}, {s(SWS,4)}, {s(sKV)} offen sc1")
    P.cond_end()
    P("L_nkv:")
    stamp("kv2")
S.blk[70] = kvblock
S.pre[94] += ["s_waitcnt lgkmcnt(0)", "s_barrier"]
def kvflag():
    P(f"s_cmp_eq_u32 {s(sW)}, 7")
    P("s_cbranch_scc0 L_nkf")
    P.cond_begin("w0")
    P(f"s_lshl_b32 {s(sT0)}, {s(sG)}, 8\ns_lshl_b32 {s(sT1)}, {s(sRT)}, 2\ns_add_u32 {s(sT0)}, {s(sT0)}, {s(sT1)}\ns_add_u32 {s(sT0)}, {s(sT0)}, {WS_KVF}")
    P(f"v_mov_b32 {v(VFV)}, 1")
    P(f"buffer_store_dword {v(VFV)}, {v(VZ)}, {s(SWS,4)}, {s(sT0)} offen sc1")
    P.cond_end()
    P("L_nkf:")
def kvpoll():
    P(f"s_cmp_eq_u32 {s(sW)}, 7")
    P("s_cbranch_scc0 L_nkp")
    n0 = len(P.ins)
    P(f"s_lshl_b32 {s(sT2)}, {s(sG)}, 8\ns_add_u32 {s(sT2)}, {s(sT2)}, {WS_KVF}\ns_mov_b32 {s(sCNT)}, 0")
    P("s_branch L_spkv1")
    P("L_spkv:")
    P(f"s_buffer_load_dwordx16 s[20:35], {s(SWS,4)}, {s(sT2)} glc")
    P("L_spkv1:")
    P(f"s_add_u32 {s(sCNT)}, {s(sCNT)}, 1")
    P("s_waitcnt lgkmcnt(0)")
    for i in range(22, 36, 2): P(f"s_and_b64 s[20:21], s[20:21], s[{i}:{i+1}]")
    P("s_and_b32 s20, s20, s21")
    P("s_cbranch_scc1 L_nkp")
    P(f"s_cmp_gt_u32 {s(sCNT)}, {SPIN_MAX}")
    P("s_cbranch_scc1 L_nkp")
    P("s_sleep 1")
    P("s_branch L_spkv")
    for I in P.ins[n0:]:
        I.cond = "kvp"
        if I.kind == "smem": I.kind = "opaque"
    P("L_nkp:")
def kvreq():
    P(f"s_cmp_eq_u32 {s(sW)}, 7")
    P("s_cbranch_scc0 L_nkr")
    n0 = len(P.ins)
    P(f"s_lshl_b32 {s(sT2)}, {s(sG)}, 8\ns_add_u32 {s(sT2)}, {s(sT2)}, {WS_KVF}")
    P(f"s_buffer_load_dwordx16 s[20:35], {s(SWS,4)}, {s(sT2)} glc")
    for I in P.ins[n0:]:
        I.cond = "kvp"
        if I.kind == "smem": I.kind = "opaque"
    P("L_nkr:")
S.blk[87] = kvreq; S.blk[94] = kvpoll
S.post[94] += [f"ds_read_b128 {v(CSR,4)}, {v(VCSA)} offset:2048"] + phi_load(1, T + 8)
run_sched(S, [ACC0, ACC1, ACC2])
stamp("sub2")
PQ = WF
def Gq(r): return XF + 8 * r
Z = XF + 80; GA = XF + 64
VG, VGZ = S1, S2
P(f"s_mul_i32 {s(sT2)}, {s(sG)}, {16*KVP_SZ}\ns_lshr_b32 {s(sT0)}, {s(sW)}, 1\ns_mul_i32 {s(sT0)}, {s(sT0)}, 1152\ns_add_u32 {s(sT2)}, {s(sT2)}, {s(sT0)}\ns_add_u32 {s(sT2)}, {s(sT2)}, {WS_KVP}")
P(f"v_and_b32 {v(VGZ)}, 15, {v(vL)}\nv_mul_u32_u24 {v(VGZ)}, {KVP_SZ}, {v(VGZ)}\nv_and_b32 {v(VG)}, 16, {v(vL)}\nv_add_u32 {v(VGZ)}, {v(VGZ)}, {v(VG)}\ns_lshl_b32 {s(sT0)}, {s(sSH)}, 4\nv_add_u32 {v(VGZ)}, {s(sT0)}, {v(VGZ)}")
P(f"v_lshrrev_b32 {v(VG)}, 5, {v(vL)}\nv_mul_u32_u24 {v(VG)}, {8*KVP_SZ - 512}, {v(VG)}\nv_add_u32 {v(VG)}, {v(VG)}, {v(VL16)}\ns_lshl_b32 {s(sT0)}, {s(sSH)}, 8\nv_add_u32 {v(VG)}, {s(sT0)}, {v(VG)}")
gl = [[f"buffer_load_dwordx4 {v(Z,4)}, {v(VGZ)}, {s(SWS,4)}, {s(sT2)} offen offset:1024 sc1"]]
for r in range(8):
    gl.append(lines(f"s_add_u32 {s(sD1)}, {s(sRT)}, {r}\ns_and_b32 {s(sD1)}, {s(sD1)}, 7\ns_mul_i32 {s(sD1)}, {s(sD1)}, {KVP_SZ}\ns_add_u32 {s(sD1)}, {s(sD1)}, {s(sT2)}") +
              [f"buffer_load_dwordx4 {v(Gq(r),4)}, {v(VG)}, {s(SWS,4)}, {s(sD1)} offen sc1"])
P.add(aug(ACC2, CSR, None))
bd = sum([b_dma(kk) for kk in (5, 6, 7)], [])
GD = int(OPT.get("gd", 2))
for g_ in bd[:GD]: P.add(g_)
for i in range(8): P(f"v_cvt_pk_bf16_f32 {v(T+i)}, {v(ACC2+2*i)}, {v(ACC2+2*i+1)}")
P(mfma(ACC1, AX, T, "0"))
P(mfma(ACC2, T + 8, T + 4, "0"))
P.add(interleave(gl, softmax(ACC1, PQ, LS, True)))
stamp("qsm")
sneed(1, 1)
P(spoll(0))
P.add(interleave(bd[GD:], softmax(ACC2, PQ + 8, LS, True)))
stamp("sm2")
sneed(1, 0)
validate([Z + i for i in range(4)] + [Gq(r) + i for r in range(8) for i in range(4)], T + 16, sum(gl, []))
stamp("kvseen")
aj = sum([a_jobs(kk) for kk in range(4)], [])
n_o0 = len(P.ins)
P(f"v_lshrrev_b32 {v(T+1)}, 5, {v(vL)}")
P(f"v_bfe_u32 {v(T+2)}, {v(vL)}, 4, 1\nv_lshlrev_b32 {v(T+2)}, 9, {v(T+2)}\nv_lshl_add_u32 {v(T+2)}, {v(T+1)}, 3, {v(T+2)}")
P(f"s_lshl_b32 {s(sT0)}, {s(sW)}, 10\ns_add_u32 {s(sT0)}, {s(sT0)}, {L_KVB}\nv_add_u32 {v(T+2)}, {s(sT0)}, {v(T+2)}")
P(f"v_and_b32 {v(T+3)}, 15, {v(vL)}\nv_lshl_add_u32 {v(T+3)}, {v(T+3)}, 4, {v(T+2)}")
P(f"v_cmp_gt_u32 vcc, 32, {v(vL)}\ns_mov_b32 {s(sT0)}, 0x3f80\ns_mov_b32 {s(sT1)}, 0x3f800000")
P(f"v_cndmask_b32 {v(Z)}, {v(Z+2)}, {v(Z)}, vcc\nv_cndmask_b32 {v(Z+1)}, {v(Z+3)}, {v(Z+1)}, vcc")
P(f"v_lshlrev_b32 {v(Z+8)}, 16, {v(Z)}\nv_and_b32 {v(Z+9)}, 0xffff0000, {v(Z)}\nv_lshlrev_b32 {v(Z+10)}, 16, {v(Z+1)}\nv_and_b32 {v(Z+11)}, 0xffff0000, {v(Z+1)}")
for ror in (8, 4, 2, 1):
    for i in range(4): P(f"v_add_f32_dpp {v(Z+8+i)}, {v(Z+8+i)}, {v(Z+8+i)} row_ror:{ror} row_mask:0xf bank_mask:0xf")
P(f"v_cvt_pk_bf16_f32 {v(Z)}, {v(Z+8)}, {v(Z+9)}\nv_cvt_pk_bf16_f32 {v(Z+1)}, {v(Z+10)}, {v(Z+11)}")
P(f"ds_write_b64 {v(T+2)}, {v(Z,2)} offset:256")
def ga(i): return GA + (i & 3) + 8 * (i >> 2)
for i in range(4):
    P(f"v_lshlrev_b32 {v(ga(2*i))}, 16, {v(Gq(0)+i)}\nv_and_b32 {v(ga(2*i+1))}, 0xffff0000, {v(Gq(0)+i)}")
for r in range(1, 8):
    for i in range(4):
        P(f"v_dot2c_f32_bf16 {v(ga(2*i))}, {s(sT0)}, {v(Gq(r)+i)}\nv_dot2c_f32_bf16 {v(ga(2*i+1))}, {s(sT1)}, {v(Gq(r)+i)}")
for i in range(4): P(f"v_permlane32_swap_b32 {v(ga(i))}, {v(ga(i+4))}")
for i in range(4): P(f"v_add_f32 {v(ga(i))}, {v(ga(i))}, {v(ga(i+4))}")
P(f"v_cvt_pk_bf16_f32 {v(GA)}, {v(GA)}, {v(GA+1)}\nv_cvt_pk_bf16_f32 {v(GA+1)}, {v(GA+2)}, {v(GA+3)}")
P(f"ds_write_b64 {v(T+3)}, {v(GA,2)}")
stamp("gsum")
P(f"v_and_b32 {v(T)}, 31, {v(vL)}\nv_min_u32 {v(T)}, 16, {v(T)}\nv_and_b32 {v(T+1)}, 32, {v(vL)}\nv_add_u32 {v(T)}, {v(T)}, {v(T+1)}\nv_lshlrev_b32 {v(T)}, 4, {v(T)}")
P(f"s_lshl_b32 {s(sT0)}, {s(sHALF)}, 12\ns_add_u32 {s(sT0)}, {s(sT0)}, {L_KVB}\nv_add_u32 {v(T)}, {s(sT0)}, {v(T)}")
P("s_waitcnt lgkmcnt(0)")
P("s_barrier")
for i in range(4): P(f"ds_read_b128 {v(Gq(i),4)}, {v(T)} offset:{1024*i}")
P(mfma(ACC0, Gq(0), PQ, "0")); P(mfma(ACC1, Gq(2), PQ + 8, "0"))
P(mfma(ACC0, Gq(1), PQ + 4)); P(mfma(ACC1, Gq(3), PQ + 12))
body = P.ins[n_o0:]; del P.ins[n_o0:]
for i, g_ in enumerate(aj):
    P.add(g_); P.ins += body[len(body)*i//8: len(body)*(i+1)//8]
for hl, acc in enumerate((ACC0, ACC1)):
    P(f"v_add_f32 {v(acc+8)}, {f2u(1e-6):#x}, {v(acc+8)}\nv_rcp_f32 {v(acc+8)}, {v(acc+8)}")
    for i in range(8): P(f"v_mul_f32 {v(acc+i)}, {v(acc+i)}, {v(acc+8)}")
    for i in range(4): P(f"v_cvt_pk_bf16_f32 {v(T+4*hl+i)}, {v(acc+2*i)}, {v(acc+2*i+1)}")
    P(f"buffer_store_dwordx4 {v(T+4*hl,4)}, {v(VL16)}, {s(SWS,4)}, {s(sOS)} offen offset:{1024*hl} sc1")
stamp("p1end")
phase2(("B6", "B7"), "A4 A5 A6 B8 A7 B9 A8 B10 A9 B11 A10 B12 A11 B13 A12 B14 A13 B15 B16 B17 A14 A15 A16 A17")

P("L_ffn:")
P(".reset")
setup(True)
KAREA[:] = [RC, RA+2*Q, RA+3*Q, RB, RB+Q, RB+2*Q, RA, RA+Q, RB+3*Q]
MC = ACC2; CSF = ACC2 + 4
S = Sched(112)
common_sched(S, True, None, MC)
S.post[30] += [f"ds_read_b128 {v(CSF,4)}, {v(VCSA)}"]
S.post[40] += [f"s_add_u32 {s(sT2)}, {s(sH0)}, 4096", f"s_add_u32 {s(sK)}, {s(sH0)}, 8192"]
pzs = [[f"buffer_store_dwordx4 {v(PZ,4)}, {v(VL16)}, {s(SWS,4)}, {s(so)} offen offset:{off} sc1 ; tag=h1"]
       for so, off in ((sT2, 0), (sT2, 1024), (sK, 0), (sK, 1024), (sH3, 0))[:2 if OFFL else 5]]
for g_, G in zip(pzs, [int(x) for x in OPT.get("pz", "50,56,59,67,70").split(",")]): S.post[G] += g_
S.post[31] += stamp_i("pass1")
fill = stats_final() + aug(ACC0, CSF, BIAS)
fill += [f"v_mul_f32 {v(K1)}, {f2u(GC1):#x}, {v(RSTD)}", f"v_mul_f32 {v(K2)}, {v(RSTD)}, {v(RSTD)}",
         f"v_mul_f32 {v(K2)}, {v(K2)}, {v(RSTD)}", f"v_mul_f32 {v(K2)}, {f2u(GC2):#x}, {v(K2)}"]
S.spread(fill, 32, 39)
S.spread(gelu(ACC0, 16) + hstore(sH0, 2, "h1") + [f"s_add_u32 {s(sH0)}, {s(sH0)}, 4096"], 39, 64)
S.post[62] += [f"ds_read_b128 {v(CSF,4)}, {v(VCSA)} offset:1024"]
S.post[63] += stamp_i("sub1")
S.spread(aug(ACC1, CSF, BIAS + 1), 64, 66)
S.spread(gelu(ACC1, 16) + hstore(sH0, 2, "h2") + [f"s_add_u32 {s(sH0)}, {s(sH0)}, 4096"], 67, 96)
w3 = sum([w3quarter(q, 3584) for q in range(4)], [])
for g_, G in zip(w3 + b_dma(0), [int(x) for x in OPT.get("w3", "48,54,60,72,75,76").split(",")]): S.dma[G] += g_
S.dmas(b_dma(1), 78, 2); S.dmas(b_dma(2), 82, 2); S.dmas(b_dma(3), 86, 2); S.dmas(b_dma(4), 90, 2); S.dmas(b_dma(5), 98, 2)
S.pre[94] += [".waitvm w3 lgkm0", "s_barrier"]
S.post[94] += [f"ds_read_b128 {v(CSF,4)}, {v(VCSA)} offset:2048"]
S.post[95] += stamp_i("sub2")
S.fill[96] += aug(ACC0, CSF, BIAS + 2)
if OFFL: S.post[106] += [f"s_sub_u32 {s(sT2)}, {s(sFO)}, 1024", f"s_buffer_load_dword {s(sK)}, {s(SWS,4)}, {s(sT2)} glc"]
S.spread(gelu(ACC0, 16), 98, 112)
aj = sum([a_jobs(kk) for kk in range(6)], [])
S.dmas(aj[:6], 106); aj = aj[2:]
for i in range(0, 16, 2): S.post[96 + i] += [m16(MC, SEL, WF + 4 * (i & 3), "0" if i == 0 else None)]
run_sched(S, [ACC0, ACC1, ACC0, ACC1])
t = T + 16
P(f"v_and_b32 {v(t)}, 31, {v(vL)}\ns_lshl_b32 {s(sT0)}, {s(sHALF)}, 4\nv_xor_b32 {v(t)}, {s(sT0)}, {v(t)}\nv_lshlrev_b32 {v(t)}, 4, {v(t)}\nv_add_u32 {v(t)}, {L_CS+3072}, {v(t)}")
P(f"v_add_u32 {v(t+1)}, {s(sW34)}, {v(VCSA)}")
P(f"ds_write_b32 {v(t+1)}, {v(MC)} offset:3072")
P.add(aj[4])
P(f"s_add_u32 {s(sT1)}, {s(sM0x)}, {KAREA[8]}\ns_xor_b32 {s(sT0)}, {s(sT1)}, 8192\nv_add_u32 {v(t+1)}, {s(sT0)}, {v(VL16)}\nv_add_u32 {v(AB)}, {s(sT1)}, {v(VL16)}")
P(f"ds_write_b128 {v(t+1)}, {v(ACC1+8,4)}\nds_write_b128 {v(t+1)}, {v(ACC1+12,4)} offset:1024")
P("s_waitcnt lgkmcnt(0)")
P("s_barrier")
stamp("sub3")
P(f"ds_read_b128 {v(CSF,4)}, {v(t)}")
P(f"ds_read_b128 {v(ACC0,4)}, {v(AB)}\nds_read_b128 {v(ACC0+4,4)}, {v(AB)} offset:1024")
P.add(aj[5])
P.add(aug(ACC1, CSF, BIAS + 3))
P.add(aj[6] + aj[7])
for i in range(0, 8, 2): P(f"v_pk_add_f32 {v(ACC1+i,2)}, {v(ACC1+i,2)}, {v(ACC0+i,2)}")
stamp("x7")
gt = gelu(ACC1, 8, True, out=BIAS); h3 = hstore(sH0, 2, "h3")
sneed(1, 1)
if OFFL: own_check()
P.add(aj[8] + gt[:10] + aj[9] + gt[10:20] + [h3[0]] + gt[20:30] + [h3[1]] + gt[30:] + hstore(sH3, 1, "h4", BIAS))
stamp("p1end")
phase2(("A4", "A5"), "B6 A6 B7 A7 B8 B9 A8 B10 A9 B11 A10 B12 A11 B13 A12 B14 A13 B15 B16 B17 A14 A15 A16 A17", True)

P("L_end:")
P("s_endpgm")

ins = P.ins
for I in ins:
    if "; nodef" in I.text: I.defs = []
if OPT.get("nodma"): ins = [I for I in ins if I.kind != "dma"]
if OPT.get("notr"): ins = [I for I in ins if not I.op.startswith("ds_read_b64_tr")]
if OPT.get("nofmac"): ins = [I for I in ins if not (I.op.startswith("v_fmac") or (I.op == "v_and_b32" and "0xffff0000" in I.text) or (I.op == "v_lshlrev_b32" and I.ops[1] == "16"))]
if OPT.get("nom16"): ins = [I for I in ins if "16x16x32" not in I.op]
if OPT.get("notrans"): ins = [I for I in ins if not I.op.startswith(("v_exp", "v_rcp"))]
if OPT.get("novalu"): ins = [I for I in ins if not I.op.startswith(("v_exp", "v_rcp", "v_mul_f32", "v_fma_f32", "v_cvt_pk", "v_max3", "v_add_f32"))]
if OPT.get("nopk"): ins = [I for I in ins if not I.op.startswith(("v_pk_", "v_dot2c"))]
if OPT.get("noval"): ins = [I for I in ins if not (I.op == "s_cbranch_vccnz" and "_slow" in I.text)]
if OPT.get("noa"): ins = [I for I in ins if not (I.kind == "vld" and "x4" in I.op and "sc1" in I.mods)]
if OPT.get("nob"): ins = [I for I in ins if not (I.kind == "dma" and (s(SW2,4) in I.text or s(SWO,4) in I.text))]
if OPT.get("anosc"):
    for I in ins:
        if I.kind == "vld" and "x4" in I.op: I.text = I.text.replace(" sc1", " " + OPT["anosc"].replace("0", ""))
if OPT.get("nopz"): ins = [I for I in ins if not (I.kind == "vst" and "x4" in I.op and (v(PZ,4) in I.text or v(AAUG,4) in I.text) and s(SWS,4) in I.text)]
if OPT.get("nost"): ins = [I for I in ins if not (I.kind == "vst" and "x4" in I.op and "tag=h" in I.text)]
if OPT.get("nomfma"): ins = [I for I in ins if I.kind != "mfma"]
if STAMP:
    for I in ins:
        if I.op in ("s_memrealtime", "s_memtime"): I.kind = "salu"
ins = auto_wait(ins)
st = []
ins = hazards(ins, st)
hdr = open("parallel_sum__linear_kernel_hedgehog__dense_activation_gelu__prompt.s.ref").read().split("; Override")[0]
out = hdr + f"; @launch grid=(256,1,1) block=(512,1,1) lds={LDS_SIZE}\n"
out += f'.amdgcn_target "amdgcn-amd-amdhsa--gfx950"\n.text\n.globl {NAME}\n.p2align 8\n.type {NAME},@function\n{NAME}:\n'
out += render(ins)
out += f""".section .rodata,"a"
.p2align 6
.amdhsa_kernel {NAME}
  .amdhsa_next_free_vgpr 256
  .amdhsa_next_free_sgpr 102
  .amdhsa_accum_offset 256
  .amdhsa_group_segment_fixed_size 0
  .amdhsa_kernarg_size 96
  .amdhsa_user_sgpr_count 2
  .amdhsa_user_sgpr_kernarg_segment_ptr 1
  .amdhsa_system_sgpr_workgroup_id_x 1
.end_amdhsa_kernel
"""
open(sys.argv[1], "w").write(out)
print(f"instrs={sum(1 for I in ins if I.kind not in ('label','dir'))} nop-sites={len(st)} nop-states={sum(n for n,_ in st)}", file=sys.stderr)
if OPT.get("nops"):
    for n, tx in st: print(n, tx, file=sys.stderr)
```

```python
import sys, math, struct
from ir import *

NAME = "parallel_sum__linear_kernel_hedgehog__dense_activation_gelu__prompt_kernel"
OPT = dict(a.split("=") for a in sys.argv[2:] if "=" in a)
STAMP = int(OPT.get("stamp", 0))

def f2u(x): return struct.unpack("<I", struct.pack("<f", x))[0]
LOG2E = 1.4426950408889634
GC1 = -2.0 * LOG2E * math.sqrt(2.0 / math.pi)
GC2 = GC1 * 0.044715

HF_RB = 144 * 1024
WS_KVP = 0xA00000
KVP_SZ = 4608
WS_FLG = 0xC00000
WS_KVF = 0xC08000
WS_STAMP = 0xD00000
WS_X = 0x1000000
WS_SIZE = 0x1800000
V2 = OPT.get('p2', '2') == '2'
RA, RB, RC = 0, 65536, 131072
L_KVB = 147456
L_CS = 155648
L_ST = L_CS + 4096
L_WPHI = L_CS + 6144
LDS_SIZE = 163840
SPIN_MAX = 1 << 15

sW, sRT, sG, sM, sN = 3, 4, 5, 6, 7
SX, SW2, SWS, SWT, SAUX, SDBG, SWO, SOUT = 8, 12, 16, 20, 24, 28, 36, 40
sXo, sWo, sROT, sC1 = 32, 33, 34, 35
SB2 = 92
sFL, sOo, sM0x, sT0, sT1, sSIG, sONE, sFO, sHALF, sHo, sWq, sW3, sT2, sCNT, sW34, sT3 = range(44, 60)
sEX = 60
sH0, sH3, sM4, sK = 62, 63, 64, 65
sST = 66
sB2o, sBOo = 90, 91
sA0, sA1, sR4, sSH, sD0, sD1 = range(96, 102)
sOK = sSIG
sQ = [sXo, sWo, sROT, sC1]
sPL = 28
VCSA = 0; vL = 1
AX = 2; AW = 6; AB = 10; VZ, VFV = 12, 13
VX0, VX1, VW, VB, VW3 = 14, 15, 16, 17, 18
VSTA, S1, S2, CS0 = 19, 20, 21, 22
VW0 = 22
RSTD, STD, K1, K2, VL16 = 23, 24, 25, 26, 27
BAUG, AAUG, SEL, BIAS = 28, 32, 36, 40
T = 44
WF = 64
ACC0, ACC1, ACC2 = 80, 96, 112
XF = 128
VTD = 15
PZ = ACC2 + 8

P = Prog()
STI = dict(start=0, kernarg=1, it0=2, pass1=3, sub1=4, sub2=5, qsm=6, sub3=6, kvseen=7, x7=7, p1end=8, hseen=9, p2mm=10, end=11)
if OPT.get("sp") == "p2": STI = dict(start=0, p1end=1, k1=2, k3=3, k5=4, k7=5, k9=6, k11=7, k13=8, k15=9, p2mm=10, end=11)
if OPT.get("sp") == "att": STI = dict(start=0, sub1=1, kv0=2, kv1=3, kv2=4, sub2=5, qsm=6, kvseen=7, sm2=8, gsum=9, p1end=10, end=11)
if OPT.get("sp", "").startswith("l:"): STI = {n: i for i, n in enumerate(["start"] + OPT["sp"][2:].split(","))}
def stamp_i(name):
    if not STAMP or name not in STI: return []
    i = STI[name]
    return [f"{'s_memrealtime' if STAMP == 1 else 's_memtime'} {s(sST + 2*i, 2)} ; stamp {i} {name}"]
def stamp(name): P.add(stamp_i(name))

def mfma(d, a, b, c=None):
    return f"v_mfma_f32_32x32x16_bf16 {v(d,16)}, {v(a,4)}, {v(b,4)}, {v(d,16) if c is None else c}"
def m16(d, a, b, c=None):
    return f"v_mfma_f32_16x16x32_bf16 {v(d,4)}, {v(a,4)}, {v(b,4)}, {v(d,4) if c is None else c}"
def srd(base, nbytes):
    P(f"s_mov_b32 {s(base+2)}, {nbytes}\ns_mov_b32 {s(base+3)}, 0x20000")
def lines(t): return [l for l in t.split("\n") if l.strip()]

P("s_cmp_ge_u32 s2, 256")
P("s_cbranch_scc1 L_end")
stamp("start")
if OPT.get("exit0"): P("s_endpgm")
if OPT.get("cpf", "1") == "3":
    P(f"s_getpc_b64 {s(sEX,2)}")
    P("L_pc0:")
    P(f"v_subrev_u32 v3, 320, v0\nv_cmp_gt_u32 vcc, 16, v3\ns_lshr_b32 {s(sT0)}, s2, 3\ns_lshl_b32 {s(sT0)}, {s(sT0)}, 11")
    P("s_cbranch_vccz L_ncp0")
    P.cond_begin("cp0")
    P(f"v_and_b32 v3, 15, v3\nv_lshlrev_b32 v3, 7, v3\nv_add_u32 v3, {s(sT0)}, v3\nv_min_u32 v3, L_end-L_pc0, v3")
    P(f"global_load_dword v253, v3, {s(sEX,2)}")
    P.cond_end()
    P("L_ncp0:")
if OPT.get("cpf", "1") == "2":
    P(f"s_getpc_b64 {s(sEX,2)}")
    P("L_pc0:")
    P(f"v_lshlrev_b32 v3, 7, v0")
    P(f"v_min_u32 v3, L_end-L_pc0, v3")
    P(f"global_load_dword v253, v3, {s(sEX,2)}")
P(f"s_load_dwordx2 {s(SX,2)}, s[0:1], 0")
P(f"s_load_dwordx2 {s(SWS,2)}, s[0:1], 88")
P(f"s_load_dwordx2 {s(SDBG,2)}, s[0:1], 80")
P(f"s_load_dwordx2 {s(SW2,2)}, s[0:1], 56")
P(f"s_load_dwordx2 {s(SWO,2)}, s[0:1], 24")
P(f"s_load_dwordx2 {s(SOUT,2)}, s[0:1], 72")
P(f"s_load_dwordx2 {s(SB2,2)}, s[0:1], 64")
if OPT.get("stouch", "0") != "0":
    P(f"s_load_dwordx2 {s(sEX,2)}, s[0:1], 8")
    P(f"s_load_dwordx2 {s(sA0,2)}, s[0:1], 40")
P(f"v_lshrrev_b32 v2, 6, v0")
P(f"v_and_b32 {v(vL)}, 63, v0")
P(f"s_and_b32 {s(sT0)}, s2, 7")
P(f"s_lshr_b32 {s(sT1)}, s2, 3")
P(f"v_readfirstlane_b32 {s(sW)}, v2")
OWN = OPT.get("own") == "1"
if OWN:
    P(f"s_lshl_b32 {s(sRT)}, {s(sT0)}, 1\ns_and_b32 {s(sT2)}, {s(sT1)}, 1\ns_add_u32 {s(sRT)}, {s(sRT)}, {s(sT2)}\ns_lshr_b32 {s(sG)}, {s(sT1)}, 2")
else:
    P(f"s_lshr_b32 {s(sRT)}, {s(sT0)}, 2\ns_lshl_b32 {s(sRT)}, {s(sRT)}, 3\ns_and_b32 {s(sT2)}, {s(sT1)}, 7\ns_add_u32 {s(sRT)}, {s(sRT)}, {s(sT2)}")
    P(f"s_and_b32 {s(sG)}, {s(sT0)}, 3\ns_lshl_b32 {s(sG)}, {s(sG)}, 1\ns_lshr_b32 {s(sT2)}, {s(sT1)}, 4\ns_add_u32 {s(sG)}, {s(sG)}, {s(sT2)}")
P(f"s_lshl_b32 {s(sM)}, {s(sT0)}, 2\ns_and_b32 {s(sT2)}, {s(sT1)}, 3\ns_add_u32 {s(sM)}, {s(sM)}, {s(sT2)}")
P(f"s_lshr_b32 {s(sN)}, {s(sT1)}, 2")
if V2: P(f"s_and_b32 {s(sM)}, s2, 3\ns_lshr_b32 {s(sN)}, {s(sT1)}, 3")
srd(SX, 2097152)
P(f"s_lshl_b32 {s(sM0x)}, {s(sW)}, 11")
P(f"v_lshrrev_b32 v2, 3, {v(vL)}\nv_and_b32 v3, 7, {v(vL)}\nv_lshrrev_b32 v4, 4, {v(vL)}")
P(f"v_xor_b32 v5, v3, v4\nv_lshlrev_b32 v5, 4, v5\nv_lshl_add_u32 {v(VX0)}, v2, 10, v5")
P(f"v_xor_b32 v5, 64, {v(VX0)}\nv_add_u32 {v(VX1)}, {8192-1024}, v5")
P(f"v_and_b32 v4, 1, v4\nv_lshlrev_b32 v4, 2, v4\nv_xor_b32 v4, v3, v4\nv_lshlrev_b32 v4, 4, v4")
P(f"v_lshl_add_u32 {v(VB)}, v2, 10, v4")
P(f"s_lshl_b32 {s(sXo)}, {s(sRT)}, 17\ns_lshl_b32 {s(sT2)}, {s(sW)}, 14\ns_add_u32 {s(sXo)}, {s(sXo)}, {s(sT2)}")
P(f"s_lshr_b32 {s(sT2)}, {s(sT1)}, 3\ns_lshl_b32 {s(sT2)}, {s(sT2)}, 1\ns_add_u32 {s(sROT)}, {s(sRT)}, {s(sT2)}\ns_and_b32 {s(sROT)}, {s(sROT)}, {OPT.get('rm', 7)}")
if OWN: P(f"s_lshr_b32 {s(sT2)}, {s(sT1)}, 1\ns_lshl_b32 {s(sROT)}, {s(sT1)}, 2\ns_add_u32 {s(sROT)}, {s(sROT)}, {s(sT2)}\ns_add_u32 {s(sROT)}, {s(sROT)}, {s(sT0)}\ns_and_b32 {s(sROT)}, {s(sROT)}, 7")
if OPT.get("norot"): P(f"s_mov_b32 {s(sROT)}, 0")
P(f"s_lshl_b32 {s(sK)}, {s(sROT)}, 7")
P(f"v_add_u32 {v(VX0)}, {s(sXo)}, {v(VX0)}\nv_add_u32 {v(VX1)}, {s(sXo)}, {v(VX1)}")
P(f"s_lshr_b32 {s(sD0)}, {s(sM0x)}, 1")
P(f"s_bitcmp1_b32 {s(sT1)}, {1 if OWN else 3}")
P("s_cbranch_scc1 L_ffn")

def item1(it, pitch):
    q = it & 3
    return [[f"s_add_u32 m0, {s(sM0x)}, {RA+q*16384}", f"s_mul_i32 {s(sD1)}, {s(sK)}, {pitch//2}",
             f"buffer_load_dwordx4 {v(VX0)}, {s(SX,4)}, {s(sK)} offen lds"],
            [f"buffer_load_dwordx4 {v(VX1)}, {s(SX,4)}, {s(sK)} offen offset:1024 lds"],
            [f"s_add_u32 m0, {s(sD0)}, {RB+it*8192}", f"s_add_u32 {s(sK)}, {s(sK)}, 128",
             f"buffer_load_dwordx4 {v(VW0)}, {s(SWT,4)}, {s(sD1)} offen lds ; tag=it{it}",
             f"s_and_b32 {s(sK)}, {s(sK)}, 1023"]]
def wquarter(region, q, coloff, pitch, tag):
    return [[f"s_add_u32 m0, {s(sM0x)}, {region+q*16384}", f"s_add_u32 {s(sD1)}, {s(sQ[q])}, {coloff}",
             f"buffer_load_dwordx4 {v(VW)}, {s(SWT,4)}, {s(sD1)} offen lds"],
            [f"s_add_u32 {s(sD1)}, {s(sD1)}, {8*pitch-1024}",
             f"buffer_load_dwordx4 {v(VW)}, {s(SWT,4)}, {s(sD1)} offen offset:1024 lds ; tag={tag}"]]
def w3quarter(q, pitch):
    return [[f"s_lshr_b32 {s(sD1)}, {s(sM0x)}, 1", f"s_add_u32 m0, {s(sD1)}, {RA+q*8192}", "s_nop 0",
             f"buffer_load_dwordx4 {v(VW3)}, {s(SWT,4)}, {s(sQ[q])} offen lds ; tag=w3"]]

def spin(label, load, cmp):
    P(f"s_mov_b32 {s(sCNT)}, 0")
    P(f"{label}:")
    P(cmp)
    P(f"s_add_u32 {s(sCNT)}, {s(sCNT)}, 1")
    P(f"s_cbranch_vccz {label}_ok")
    P(f"s_cmp_gt_u32 {s(sCNT)}, {SPIN_MAX}")
    P(f"s_cbranch_scc1 {label}_ok")
    P("s_sleep 1")
    old = P._cond; P._cond = label
    P(load)
    P("s_waitcnt vmcnt(0)")
    P._cond = old
    P(f"s_branch {label}")
    P(f"{label}_ok:")

def gelu(acc, n, pk=False, t0=T, out=T):
    L = []
    for g4 in range(0, n, 4):
        t = t0 + 8 + (g4 & 4)
        a = [acc + g4 + i for i in range(4)]
        if pk:
            L += [f"v_pk_mul_f32 {v(t+i,2)}, {v(a[i],2)}, {v(a[i],2)}" for i in (0, 2)]
            L += [f"v_pk_fma_f32 {v(t+i,2)}, {v(t+i,2)}, {v(K2,2)}, {v(STD,2)} op_sel:[0,0,1] op_sel_hi:[1,0,1]" for i in (0, 2)]
            L += [f"v_pk_mul_f32 {v(t+i,2)}, {v(a[i],2)}, {v(t+i,2)}" for i in (0, 2)]
        else:
            L += [f"v_mul_f32 {v(t+i)}, {v(a[i])}, {v(a[i])}" for i in range(4)]
            L += [f"v_fma_f32 {v(t+i)}, {v(t+i)}, {v(K2)}, {v(K1)}" for i in range(4)]
            L += [f"v_mul_f32 {v(t+i)}, {v(a[i])}, {v(t+i)}" for i in range(4)]
        L += [f"v_exp_f32 {v(t+i)}, {v(t+i)}" for i in range(4)]
        if pk: L += [f"v_pk_fma_f32 {v(t+i,2)}, {v(t+i,2)}, {v(STD,2)}, {v(STD,2)} op_sel_hi:[1,0,0]" for i in (0, 2)]
        else: L += [f"v_fma_f32 {v(t+i)}, {v(t+i)}, {v(STD)}, {v(STD)}" for i in range(4)]
        L += [f"v_rcp_f32 {v(t+i)}, {v(t+i)}" for i in range(4)]
        if pk: L += [f"v_pk_mul_f32 {v(t+i,2)}, {v(a[i],2)}, {v(t+i,2)}" for i in (0, 2)]
        else: L += [f"v_mul_f32 {v(t+i)}, {v(a[i])}, {v(t+i)}" for i in range(4)]
        pr = out + (g4 >> 1)
        L += [f"v_cvt_pk_bf16_f32 {v(pr)}, {v(t)}, {v(t+1)}", f"v_cvt_pk_bf16_f32 {v(pr+1)}, {v(t+2)}, {v(t+3)}"]
    return L
def hstore(soff, n, tagn, src=T):
    return [f"buffer_store_dwordx4 {v(src+4*j,4)}, {v(VL16)}, {s(SWS,4)}, {s(soff)} offen offset:{1024*j} sc1 ; tag={tagn}" for j in range(n)]
assert K1 == STD + 1

def sum4(d, r):
    return [f"v_add_f32 {v(d)}, {v(r)}, {v(r+1)}", f"v_add_f32 {v(r+2)}, {v(r+2)}, {v(r+3)}", f"v_add_f32 {v(d)}, {v(d)}, {v(r+2)}"]

MS, U = T + 4, T + 16
CSR = T + 12
MC = AAUG

def stats_final():
    t = T + 16
    return [f"v_add_f32 {v(S1)}, {v(MS)}, {v(MS+2)}", f"v_add_f32 {v(S2)}, {v(MS+1)}, {v(MS+3)}",
          f"v_mul_f32 {v(S1)}, {f2u(-1.0/512):#x}, {v(S1)}",
          f"v_mul_f32 {v(t)}, {v(S1)}, {v(S1)}",
          f"v_fma_f32 {v(S2)}, {v(S2)}, {s(sT3)}, -{v(t)}",
          f"v_max_f32 {v(S2)}, 0, {v(S2)}",
          f"v_add_f32 {v(S2)}, {f2u(1e-5):#x}, {v(S2)}",
          f"v_rsq_f32 {v(RSTD)}, {v(S2)}",
          f"v_cvt_pk_bf16_f32 {v(t)}, {v(S1)}, {v(S1)}",
          f"v_mul_f32 {v(STD)}, {v(S2)}, {v(RSTD)}",
          f"v_and_b32 {v(t+1)}, 0xffff0000, {v(t)}",
          f"v_sub_f32 {v(t+1)}, {v(S1)}, {v(t+1)}",
          f"v_cvt_pk_bf16_f32 {v(BAUG)}, {v(S1)}, {v(t+1)}",
          f"v_cvt_pk_bf16_f32 {v(BAUG+1)}, {v(S1)}, {v(STD)}",
          f"v_and_b32 {v(t+1)}, 0xffff0000, {v(BAUG+1)}",
          f"v_sub_f32 {v(t+1)}, {v(STD)}, {v(t+1)}",
          f"v_cmp_gt_u32 vcc, 32, {v(vL)}",
          f"v_cvt_pk_bf16_f32 {v(BAUG+2)}, {v(t+1)}, 0",
          f"v_cndmask_b32 {v(BAUG)}, 0, {v(BAUG)}, vcc",
          f"v_cndmask_b32 {v(BAUG+1)}, 0, {v(BAUG+1)}, vcc",
          f"v_cndmask_b32 {v(BAUG+2)}, 0, {v(BAUG+2)}, vcc"]

def aug(acc, part, bias):
    t = T + 18; dst = AAUG
    L = sum4(CS0, part) + [f"v_cvt_pk_bf16_f32 {v(dst)}, {v(CS0)}, {v(CS0)}",
         f"v_and_b32 {v(t)}, 0xffff0000, {v(dst)}",
         f"v_sub_f32 {v(t)}, {v(CS0)}, {v(t)}"]
    if bias is None:
        L += [f"v_cvt_pk_bf16_f32 {v(dst+1)}, {v(t)}, 0"]
    else:
        L += [f"v_cvt_pk_bf16_f32 {v(t)}, {v(t)}, 0", f"v_mov_b32 {v(dst+2)}, {v(bias)}",
              f"v_lshl_or_b32 {v(dst+1)}, {v(bias)}, 16, {v(t)}"]
    return L + [mfma(acc, dst, BAUG)]

def flag(level, tag):
    return [f".waitvm {tag}", f"v_mov_b32 {v(VFV)}, {level}",
            f"buffer_store_dword {v(VFV)}, {v(VZ)}, {s(SWS,4)}, {s(sFO)} offen sc1"]

Q = 16384
KAREA = []
sSK = sM4 if V2 else sSH
sMB = sSIG
def rot_k(kk, dst):
    if kk < 8 and OPT.get("r8", "1") == "1": return [f"s_add_u32 {s(dst)}, {s(sR4)}, {kk}", f"s_and_b32 {s(dst)}, {s(dst)}, 7", f"s_add_u32 {s(dst)}, {s(dst)}, {s(sSK)}"]
    if kk < 12: return [f"s_add_u32 {s(dst)}, {s(sR4)}, {kk}", f"s_and_b32 {s(dst)}, {s(dst)}, 3", f"s_add_u32 {s(dst)}, {s(dst)}, {s(sSK)}"] + \
                       ([f"s_add_u32 {s(dst)}, {s(dst)}, {kk & ~3}"] if kk & ~3 else [])
    if kk < 14: return [f"s_mul_i32 {s(dst)}, {s(sSK)}, 6", f"s_sub_u32 {s(dst)}, {kk}, {s(dst)}"]
    return [f"s_add_u32 {s(dst)}, {s(sR4)}, {kk-14}", f"s_and_b32 {s(dst)}, {s(dst)}, 3"]
def b_dma(kk):
    if V2:
        G_ = []
        for pos in (2 * kk, 2 * kk + 1):
            sr, so = (SW2, sB2o) if pos < 14 else (SWO, sBOo)
            G_.append(rot_k(pos, sD0) + [f"s_lshl_b32 {s(sD0)}, {s(sD0)}, 14", f"s_add_u32 m0, {s(sMB)}, {KAREA[kk] + (pos & 1) * 4096}", f"s_add_u32 {s(sD0)}, {s(sD0)}, {s(so)}",
                      f"buffer_load_dwordx4 {v(VB)}, {s(sr,4)}, {s(sD0)} offen lds ; tag=b{kk}"])
        return G_
    slot = kk % 9
    m0 = f"s_add_u32 m0, {s(sM0x)}, {KAREA[slot]}"
    sr, so = (SW2, sB2o) if kk < 14 else (SWO, sBOo)
    return [rot_k(kk, sD0) + [f"s_lshl_b32 {s(sD0)}, {s(sD0)}, 14", m0, f"s_add_u32 {s(sD0)}, {s(sD0)}, {s(so)}",
             f"buffer_load_dwordx4 {v(VB)}, {s(sr,4)}, {s(sD0)} offen lds"],
            [f"s_add_u32 {s(sD0)}, {s(sD0)}, {8192 - 1024}",
             f"buffer_load_dwordx4 {v(VB)}, {s(sr,4)}, {s(sD0)} offen offset:1024 lds ; tag=b{kk}"]]

def setup(ffn):
    pitch = 3584 if ffn else 3072
    tp = "f" if ffn else "a"
    P(f"s_load_dwordx2 {s(SWT,2)}, s[0:1], {40 if ffn else 8}")
    P(f"s_load_dwordx2 {s(SAUX,2)}, s[0:1], {48 if ffn else 16}")
    srd(SWT, 1835008 if ffn else 1572864)
    P(f"v_mul_u32_u24 {v(VW)}, {pitch}, v2\nv_add_u32 {v(VW)}, {v(VW)}, v4")
    if ffn:
        P(f"s_mul_i32 {s(sT0)}, {s(sG)}, 448\ns_and_b32 {s(sT1)}, {s(sG)}, 1\ns_lshl_b32 {s(sT2)}, {s(sT1)}, 6\ns_add_u32 {s(sWq)}, {s(sT0)}, {s(sT2)}")
        P(f"s_mul_i32 {s(sWo)}, {s(sW)}, {8*pitch}\ns_add_u32 {s(sWo)}, {s(sWo)}, {s(sWq)}")
    else:
        P(f"s_lshl_b32 {s(sWq)}, {s(sG)}, 7")
        P(f"s_mul_i32 {s(sWo)}, {s(sW)}, {8*pitch}\ns_add_u32 {s(sWo)}, {s(sWo)}, {s(sWq)}\ns_add_u32 {s(sWo)}, {s(sWo)}, 1024")
    P(f"v_add_u32 {v(VW0)}, {s(sWo)}, {v(VW)}")
    P("s_waitcnt lgkmcnt(0)")
    stamp("kernarg")
    if STAMP and "slow" in STI: P(f"s_mov_b32 {s(sST+2*STI['slow'])}, {s(sST)}")
    for g_ in item1(0, pitch): P.add(g_)
    srd(SWS, WS_SIZE); srd(SDBG, 256); srd(SW2, 1835008); srd(SWO, 524288); srd(SOUT, 2097152); srd(SB2, 1024); srd(SAUX, 3584 if ffn else 16384)
    P(f"v_lshlrev_b32 {v(VL16)}, 4, {v(vL)}")
    P(f"s_lshr_b32 {s(sHALF)}, {s(sW)}, 2")
    P(f"s_and_b32 {s(sW34)}, {s(sW)}, 3\ns_xor_b32 {s(sSIG)}, {s(sW34)}, {s(sHALF)}")
    if not ffn:
        for i in range(4): P(f"v_mov_b32 {v(T+i)}, 0")
        P(f"s_lshl_b32 {s(sT0)}, {s(sW)}, 8\ns_add_u32 {s(sT0)}, {s(sT0)}, s2\ns_sub_u32 {s(sT0)}, {s(sT0)}, 256\ns_cmp_lt_u32 {s(sT0)}, 8")
        P(f"s_cbranch_scc0 L_nzero")
        P.cond_begin("zw")
        P(f"s_lshl_b32 {s(sT0)}, s2, 12\ns_add_u32 {s(sT0)}, {s(sT0)}, {WS_FLG}")
        for i in range(4): P(f"buffer_store_dwordx4 {v(T,4)}, {v(VL16)}, {s(SWS,4)}, {s(sT0)} offen offset:{1024*i} sc1")
        P(f"s_lshl_b32 {s(sT0)}, s2, 8\ns_add_u32 {s(sT0)}, {s(sT0)}, {WS_KVF}\nv_lshlrev_b32 v3, 2, {v(vL)}")
        P(f"buffer_store_dword {v(T)}, v3, {s(SWS,4)}, {s(sT0)} offen sc1 ; tag=zf")
        P.cond_end()
        P(f"L_nzero:")
    if OPT.get("touch", "3") == "1":
        P(f"s_cmp_lt_u32 {s(sW)}, 6")
        P(f"s_cbranch_scc1 L_nt{tp}")
        P.cond_begin("w67")
        P(f"v_lshlrev_b32 v3, 7, {v(vL)}\ns_mul_i32 {s(sT0)}, s2, 7168\ns_lshl_b32 {s(sT1)}, s2, 11")
        P(f"s_cmp_eq_u32 {s(sW)}, 6\ns_cbranch_scc0 L_nta{tp}")
        P(f"buffer_load_dword v255, v3, {s(SW2,4)}, {s(sT0)} offen")
        P(f"s_branch L_nt{tp}")
        P(f"L_nta{tp}:")
        P(f"v_and_b32 v3, 2047, v3")
        P(f"buffer_load_dword v255, v3, {s(SWO,4)}, {s(sT1)} offen")
        P(f"buffer_load_dword v254, v3, {s(SB2,4)}, 0 offen")
        P.cond_end()
        P(f"L_nt{tp}:")
    def wtouch():
        P(f"s_sub_u32 {s(sT0)}, {s(sW)}, 2\ns_cmp_lt_u32 {s(sT0)}, {3 if ffn else 2}")
        P(f"s_cbranch_scc0 L_nw{tp}")
        P.cond_begin("w234")
        P(f"v_mul_u32_u24 v3, {pitch}, {v(vL)}\ns_mul_i32 {s(sT1)}, {s(sROT)}, {64*pitch}\ns_add_u32 {s(sT1)}, {s(sT1)}, {s(sWq)}")
        if ffn:
            P(f"s_lshl_b32 {s(sT2)}, {s(sT0)}, 7\ns_add_u32 {s(sT1)}, {s(sT1)}, {s(sT2)}\ns_add_u32 {s(sT1)}, {s(sT1)}, 128")
            P(f"s_lshr_b32 {s(sT0)}, {s(sT0)}, 1\ns_and_b32 {s(sT0)}, {s(sT0)}, {s(sG)}\ns_mul_i32 {s(sT0)}, {s(sT0)}, 448\ns_sub_u32 {s(sT1)}, {s(sT1)}, {s(sT0)}")
        else:
            P(f"s_xor_b32 {s(sT0)}, {s(sT0)}, 1\ns_lshl_b32 {s(sT0)}, {s(sT0)}, 11\ns_add_u32 {s(sT1)}, {s(sT1)}, {s(sT0)}")
        P(f"buffer_load_dword v250, v3, {s(SWT,4)}, {s(sT1)} offen")
        P.cond_end()
        P(f"L_nw{tp}:")
    if OPT.get("wt", "0") == "1": wtouch()
    if OPT.get("cpf", "1") == "1":
        P(f"s_cmp_eq_u32 {s(sW)}, 5")
        P(f"s_cbranch_scc0 L_ncp{tp}")
        P.cond_begin("w5")
        P(f"s_getpc_b64 {s(sEX,2)}")
        P(f"L_pc{tp}:")
        P(f"s_sub_u32 {s(sEX)}, {s(sEX)}, L_pc{tp}-{NAME}\ns_subb_u32 {s(sEX+1)}, {s(sEX+1)}, 0")
        P(f"s_lshr_b32 {s(sT0)}, s2, 3\ns_lshl_b32 {s(sT0)}, {s(sT0)}, 11\nv_and_b32 v3, 15, {v(vL)}\nv_lshlrev_b32 v3, 7, v3\nv_add_u32 v3, {s(sT0)}, v3")
        P(f"v_min_u32 v3, L_end-{NAME}, v3")
        P(f"global_load_dword v253, v3, {s(sEX,2)}")
        P.cond_end()
        P(f"L_ncp{tp}:")
    if OPT.get("pt"):
        P(f"s_cmp_eq_u32 {s(sW)}, 4")
        P(f"s_cbranch_scc0 L_npt{tp}")
        n0 = len(P.ins)
        P(f"v_lshlrev_b32 v3, 21, {v(vL)}")
        P(f"buffer_load_dword v252, v3, {s(SWS,4)}, 0 offen")
        P(f"buffer_load_dword v251, v3, {s(SOUT,4)}, 0 offen")
        for I in P.ins[n0:]: I.cond = "w4"
        P(f"L_npt{tp}:")
    def stouch():
        n0 = len(P.ins)
        P(f"s_lshl_b32 {s(sT0)}, s2, 3\ns_add_u32 {s(sT0)}, {s(sT0)}, {s(sW)}\ns_mul_i32 {s(sT1)}, {s(sT0)}, 768\ns_mul_i32 {s(sT0)}, {s(sT0)}, 896")
        for i in range(6): P(f"s_load_dword {s(sCNT)}, {s(sEX,2)}, {s(sT1)} offset:{128*i}")
        for i in range(7): P(f"s_load_dword {s(sCNT)}, {s(sA0,2)}, {s(sT0)} offset:{128*i}")
    if OPT.get("stouch", "0") == "1": stouch()
    late1 = OPT.get("late1", "1") == "1"
    if not late1:
        for g_ in item1(1, pitch): P.add(g_)
    P(f"s_lshl_b32 {s(sT0)}, {s(sRT)}, 4\ns_add_u32 {s(sT0)}, {s(sT0)}, {s(sG)}\ns_lshl_b32 {s(sT0)}, {s(sT0)}, 7")
    P(f"s_and_b32 {s(sT1)}, {s(sW)}, 2\ns_lshl_b32 {s(sT1)}, {s(sT1)}, 3\ns_add_u32 {s(sT0)}, {s(sT0)}, {s(sT1)}\ns_and_b32 {s(sT1)}, {s(sW)}, 1\ns_lshl_b32 {s(sT1)}, {s(sT1)}, 2\ns_add_u32 {s(sT0)}, {s(sT0)}, {s(sT1)}\ns_lshl_b32 {s(sT1)}, {s(sHALF)}, 3\ns_add_u32 {s(sT0)}, {s(sT0)}, {s(sT1)}")
    P(f"s_add_u32 {s(sFO)}, {s(sT0)}, {WS_FLG + (1024 if ffn else 0)}")
    P(f"s_lshl_b32 {s(sT0)}, {s(sRT)}, 2\ns_add_u32 {s(sT0)}, {s(sT0)}, {s(sW34)}\ns_mul_i32 {s(sHo)}, {s(sT0)}, {HF_RB}")
    if ffn:
        P(f"v_and_b32 v5, 31, {v(vL)}\nv_lshlrev_b32 v5, 1, v5")
        P(f"s_lshl_b32 {s(sT0)}, {s(sHALF)}, 6\ns_add_u32 {s(sT0)}, {s(sT0)}, {s(sWq)}")
        for i in range(3): P(f"buffer_load_ushort {v(BIAS+i)}, v5, {s(SAUX,4)}, {s(sT0)} offen offset:{128*i}")
        P(f"s_lshl_b32 {s(sT0)}, {s(sT0)}, 5\ns_add_u32 {s(sH0)}, {s(sHo)}, {s(sT0)}")
        P(f"s_mul_i32 {s(sW3)}, {s(sG)}, 448\ns_add_u32 {s(sT0)}, {s(sW3)}, 384\ns_bitcmp1_b32 {s(sG)}, 0\ns_cselect_b32 {s(sW3)}, {s(sW3)}, {s(sT0)}")
        P(f"s_lshl_b32 {s(sT0)}, {s(sHALF)}, 5\nv_xor_b32 v5, {s(sT0)}, v5")
        P(f"buffer_load_ushort {v(BIAS+3)}, v5, {s(SAUX,4)}, {s(sW3)} offen")
        P(f"s_add_u32 {s(sT0)}, {s(sT0)}, {s(sW3)}\ns_lshl_b32 {s(sT0)}, {s(sT0)}, 5\ns_add_u32 {s(sH3)}, {s(sHo)}, {s(sT0)}")
        P(f"v_lshrrev_b32 v2, 2, {v(vL)}\nv_and_b32 v4, 3, {v(vL)}\nv_lshlrev_b32 v4, 4, v4\nv_mul_u32_u24 {v(VW3)}, {pitch}, v2\nv_add_u32 {v(VW3)}, {v(VW3)}, v4")
    else:
        P(f"s_cmp_lt_u32 {s(sW)}, 2")
        P(f"s_cbranch_scc0 L_nphi")
        P.cond_begin("w01")
        P(f"s_lshl_b32 {s(sT0)}, {s(sG)}, 11\ns_lshl_b32 {s(sT1)}, {s(sW)}, 10\ns_add_u32 {s(sT0)}, {s(sT0)}, {s(sT1)}\ns_add_u32 m0, {s(sT1)}, {L_WPHI}\ns_nop 0")
        P(f"buffer_load_dwordx4 {v(VL16)}, {s(SAUX,4)}, {s(sT0)} offen lds")
        P.cond_end()
        P("L_nphi:")
    P(f"s_mul_i32 {s(sT0)}, {s(sW34)}, {16*pitch}\ns_add_u32 {s(sWq)}, {s(sWq)}, {s(sT0)}")
    P(f"v_add_u32 {v(VW)}, {s(sWq)}, {v(VW)}")
    if ffn: P(f"s_add_u32 {s(sW3)}, {s(sW3)}, {s(sT0)}\nv_add_u32 {v(VW3)}, {s(sW3)}, {v(VW3)}")
    P(f"s_add_u32 {s(sT0)}, {s(sROT)}, {s(sHALF)}")
    for q in range(4):
        P(f"s_add_u32 {s(sT1)}, {s(sT0)}, {2*q}\ns_and_b32 {s(sT1)}, {s(sT1)}, 7\ns_mul_i32 {s(sQ[q])}, {s(sT1)}, {64*pitch}")
    P(f"s_mov_b32 {s(sT3)}, {f2u(1.0/512):#x}\ns_mov_b32 {s(sONE)}, 0x3f803f80")
    P(f"v_bfe_u32 {v(T)}, {v(vL)}, 2, 2\nv_lshrrev_b32 {v(T+1)}, 5, {v(vL)}")
    P(f"v_bfe_u32 {v(T+2)}, {v(vL)}, 4, 1\nv_lshlrev_b32 {v(T+2)}, 5, {v(T+2)}\nv_and_b32 {v(T+3)}, 3, {v(vL)}\nv_lshl_add_u32 {v(T+2)}, {v(T+3)}, 3, {v(T+2)}")
    P(f"v_and_b32 {v(T+4)}, 31, {v(vL)}\nv_bfe_u32 {v(T+5)}, {v(vL)}, 1, 3\nv_xor_b32 {v(T+5)}, {v(T+5)}, {v(T+1)}")
    P(f"s_lshl_b32 {s(sT0)}, {s(sW34)}, 12\nv_lshlrev_b32 {v(T+8)}, 7, {v(T+4)}\nv_add_u32 {v(T+8)}, {s(sT0)}, {v(T+8)}")
    P(f"v_lshl_add_u32 {v(T+9)}, {v(T+1)}, 3, {v(T)}\nv_lshl_add_u32 {v(T+10)}, {v(T+9)}, 7, {v(T+2)}\nv_lshrrev_b32 {v(T+7)}, 1, {v(T)}\nv_xor_b32 {v(T+7)}, {s(sHALF)}, {v(T+7)}\nv_lshl_add_u32 {v(T+10)}, {v(T+7)}, 6, {v(T+10)}")
    for p in range(4):
        P(f"s_xor_b32 {s(sT0)}, {s(sSIG)}, {p}\ns_lshl_b32 {s(sT1)}, {s(sT0)}, 1\nv_xor_b32 {v(T+6)}, {s(sT1)}, {v(T+5)}\nv_lshl_add_u32 {v(AX+p)}, {v(T+6)}, 4, {v(T+8)}")
        P(f"s_lshl_b32 {s(sT1)}, {s(sT0)}, 11\ns_add_u32 {s(sT1)}, {s(sT1)}, {RB}\nv_add_u32 {v(AW+p)}, {s(sT1)}, {v(T+10)}")
    if ffn:
        P(f"s_lshl_b32 {s(sT0)}, {s(sHALF)}, 5\nv_xor_b32 {v(T+7)}, {s(sT0)}, {v(T+2)}\nv_lshl_add_u32 {v(T+7)}, {v(T+9)}, 6, {v(T+7)}")
        for i, p in enumerate((0, 2)):
            P(f"s_xor_b32 {s(sT0)}, {s(sSIG)}, {p}\ns_lshl_b32 {s(sT0)}, {s(sT0)}, 10\nv_add_u32 {v(AB+i)}, {s(sT0)}, {v(T+7)}")
    P(f"v_lshlrev_b32 {v(T+4)}, 4, {v(T+4)}")
    P(f"s_lshl_b32 {s(sT0)}, {s(sHALF)}, 9\ns_add_u32 {s(sT0)}, {s(sT0)}, {L_CS}\nv_add_u32 {v(VCSA)}, {s(sT0)}, {v(T+4)}")
    P(f"s_lshl_b32 {s(sT0)}, {s(sW34)}, 9\ns_add_u32 {s(sT0)}, {s(sT0)}, {L_ST}\nv_add_u32 {v(VSTA)}, {s(sT0)}, {v(T+4)}")
    P(f"v_lshrrev_b32 {v(T+4)}, 2, {v(vL)}\nv_xor_b32 {v(T+4)}, {v(T+4)}, {v(vL)}\nv_and_b32 {v(T+4)}, 4, {v(T+4)}\nv_cmp_eq_u32 vcc, 0, {v(T+4)}\nv_mov_b32 {v(T+4)}, {s(sONE)}")
    for i in range(4): P(f"v_mov_b32 {v(PZ+i)}, -1")
    for r in (VZ, BAUG+3, AAUG+2, AAUG+3): P(f"v_mov_b32 {v(r)}, 0")
    for i in range(4): P(f"v_cndmask_b32 {v(SEL+i)}, 0, {v(T+4)}, vcc")
    P(f"s_lshl_b32 {s(sW34)}, {s(sW34)}, 2")
    if late1:
        for g_ in item1(1, pitch): P.add(g_)
    if OPT.get("stouch", "0") == "2": stouch()
    if V2:
        P(f"v_lshrrev_b32 {v(T)}, 4, {v(vL)}\nv_lshlrev_b32 {v(T+1)}, 2, {v(T)}\nv_and_b32 {v(T+2)}, 15, {v(vL)}\nv_xor_b32 {v(T+2)}, {v(T+2)}, {v(T+1)}\nv_lshlrev_b32 {v(T+2)}, 4, {v(T+2)}\nv_lshl_add_u32 {v(VB)}, {v(T)}, 10, {v(T+2)}")
        P(f"s_lshl_b32 {s(sT2)}, {s(sM)}, 1\ns_add_u32 {s(sT2)}, {s(sT2)}, {s(sHALF)}")
        P(f"s_lshl_b32 {s(sT0)}, {s(sN)}, 8\ns_lshl_b32 {s(sT1)}, {s(sW34)}, 10\ns_add_u32 {s(sT1)}, {s(sT1)}, {s(sT0)}")
        P(f"s_mul_i32 {s(sB2o)}, {s(sT2)}, {224*1024}\ns_add_u32 {s(sB2o)}, {s(sB2o)}, {s(sT1)}\ns_lshl_b32 {s(sBOo)}, {s(sT2)}, 16\ns_add_u32 {s(sBOo)}, {s(sBOo)}, {s(sT1)}")
        P(f"s_mul_i32 {s(sA0)}, {s(sT2)}, {14*1024}\ns_add_u32 {s(sA0)}, {s(sA0)}, {s(sHo)}\ns_lshl_b32 {s(sA1)}, {s(sT2)}, 12\ns_add_u32 {s(sA1)}, {s(sA1)}, {s(sHo)}\ns_add_u32 {s(sA1)}, {s(sA1)}, {112*1024}")
        P(f"s_lshl_b32 {s(sT1)}, {s(sRT)}, 4\ns_add_u32 {s(sT1)}, {s(sT1)}, {s(sT2)}\ns_lshl_b32 {s(sT1)}, {s(sT1)}, 7\ns_and_b32 {s(sFL)}, {s(sW)}, 2\ns_lshl_b32 {s(sFL)}, {s(sFL)}, 3\ns_add_u32 {s(sFL)}, {s(sFL)}, {s(sT1)}\ns_add_u32 {s(sFL)}, {s(sFL)}, {WS_FLG}")
        P(f"s_mul_i32 {s(sR4)}, {s(sN)}, 5\ns_lshr_b32 {s(sR4)}, {s(sR4)}, 1\ns_add_u32 {s(sR4)}, {s(sR4)}, {s(sRT)}\ns_and_b32 {s(sR4)}, {s(sR4)}, 7")
        P(f"s_lshl_b32 {s(sT2)}, {s(sT2)}, 5\ns_add_u32 {s(sN)}, {s(sT0)}, {s(sT2)}")
        P(f"s_lshl_b32 {s(sOo)}, {s(sRT)}, 17\ns_lshl_b32 {s(sT1)}, {s(sW34)}, 13\ns_add_u32 {s(sOo)}, {s(sOo)}, {s(sT1)}\ns_add_u32 {s(sOo)}, {s(sOo)}, {s(sN)}")
        P(f"s_and_b32 {s(sSH)}, {s(sW)}, 1\ns_lshl_b32 {s(sSH)}, {s(sSH)}, 1\ns_lshl_b32 {s(sSK)}, {s(sHALF)}, 1")
        P(f"s_lshl_b32 {s(sMB)}, {s(sHALF)}, 13\ns_lshl_b32 {s(sT1)}, {s(sW34)}, 8\ns_add_u32 {s(sMB)}, {s(sMB)}, {s(sT1)}")
        return
    P(f"s_lshl_b32 {s(sT0)}, {s(sN)}, 7\ns_mul_i32 {s(sB2o)}, {s(sW)}, {224*1024}\ns_add_u32 {s(sB2o)}, {s(sB2o)}, {s(sT0)}")
    P(f"s_lshl_b32 {s(sBOo)}, {s(sW)}, 16\ns_add_u32 {s(sBOo)}, {s(sBOo)}, {s(sT0)}\ns_lshl_b32 {s(sM4)}, {s(sW)}, 12")
    P(f"s_lshl_b32 {s(sOo)}, {s(sM)}, 16\ns_lshl_b32 {s(sT1)}, {s(sW)}, 13\ns_add_u32 {s(sOo)}, {s(sOo)}, {s(sT1)}\ns_add_u32 {s(sOo)}, {s(sOo)}, {s(sT0)}")
    if OPT.get("r8", "1") == "1":
        P(f"s_mul_i32 {s(sT0)}, {s(sM)}, 5\ns_lshr_b32 {s(sT0)}, {s(sT0)}, 1\ns_sub_u32 {s(sN)}, {s(sN)}, {s(sM)}\ns_add_u32 {s(sR4)}, {s(sN)}, {s(sT0)}\ns_add_u32 {s(sN)}, {s(sN)}, {s(sM)}")
    else: P(f"s_mov_b32 {s(sR4)}, {s(sN)}")
    P(f"s_add_u32 {s(sR4)}, {s(sM)}, {s(sR4)}\ns_and_b32 {s(sR4)}, {s(sR4)}, {0 if OPT.get('norot') else 7}\ns_and_b32 {s(sSH)}, {s(sW)}, 1\ns_lshl_b32 {s(sSH)}, {s(sSH)}, 1")
    P(f"s_lshr_b32 {s(sT0)}, {s(sM)}, 1\ns_lshl_b32 {s(sT0)}, {s(sT0)}, 4\ns_add_u32 {s(sT0)}, {s(sT0)}, {s(sW)}\ns_lshl_b32 {s(sT0)}, {s(sT0)}, 7")
    P(f"s_and_b32 {s(sT1)}, {s(sM)}, 1\ns_lshl_b32 {s(sT1)}, {s(sT1)}, 4\ns_add_u32 {s(sT0)}, {s(sT0)}, {s(sT1)}\ns_add_u32 {s(sFL)}, {s(sT0)}, {WS_FLG}")
    P(f"s_mul_i32 {s(sA0)}, {s(sM)}, {2*HF_RB}\ns_mul_i32 {s(sT0)}, {s(sW)}, {14*1024}\ns_add_u32 {s(sA1)}, {s(sA0)}, {s(sM4)}\ns_add_u32 {s(sA1)}, {s(sA1)}, {112*1024}\ns_add_u32 {s(sA0)}, {s(sA0)}, {s(sT0)}")

class Sched:
    def __init__(self, n):
        self.n = n; self.pre = [[] for _ in range(n)]; self.post = [[] for _ in range(n)]
        self.fill = [[] for _ in range(n)]; self.dma = [[] for _ in range(n)]; self.blk = {}
    def spread(self, lst, a, b):
        for i in range(a, b): self.fill[i] += lst[len(lst)*(i-a)//(b-a): len(lst)*(i+1-a)//(b-a)]
    def dmas(self, groups, a, step=1):
        for i, g in enumerate(groups): self.dma[a + i*step] += g

def rd(G):
    b = WF + 4 * (G & 3)
    if G < 96:
        ks = G & 31; st, p = ks >> 2, ks & 3
        L = [f"ds_read_b128 {v(XF+4*ks,4)}, {v(AX+p)} offset:{RA+(st&3)*16384}"] if G < 32 else []
        if ks < 4 and G >= 32: L.append(f"v_xor_b32 {v(AW+p)}, {RB}, {v(AW+p)}")
        return L + [f"ds_read_b64_tr_b16 {v(b+2*t,2)}, {v(AW+p)} offset:{8192*st+512*t}" for t in range(2)]
    i = G - 96
    return [f"ds_read_b64_tr_b16 {v(b+2*t,2)}, {v(AB+(i&1))} offset:{4096*(i>>1)+256*t}" for t in range(2)]
def xq(G): return XF + 4 * (G & 31) if G < 96 else XF + 8 * (G - 96)

def common_sched(S, ffn, accs, MC):
    pitch = 3584 if ffn else 3072
    tp = "f" if ffn else "a"
    c1, c2 = (128, 256) if ffn else (2048, 0)
    S.dmas(item1(2, pitch), 0, 0)
    for st in range(8):
        G = 4 * st + 2
        S.pre[G] += [f".waitvm it{st+1}" if st < 7 else ".waitvm w1q0 lgkm0", "s_barrier"]
        if st <= 4: S.dmas(item1(st + 3, pitch), G)
        else: S.dmas(wquarter(RA, st - 5, c1, pitch, f"w1q{st-5}"), G)
    def m4(d, r, c=None): return f"v_mfma_f32_4x4x4_16b_bf16 {v(d,4)}, {v(r,2)}, {v(r,2)}, {v(d,4) if c is None else c}"
    Q0, Q1 = T + 8, T + 16
    for f in range(0, 32, 2):
        x = XF + 4 * f; a = max(f - 1, 0); c = "0" if f == 0 else None
        if OPT.get("hyb", "0") == "1":
            b = f if f < 30 else 29
            S.post[a] += [m4(Q0, x, c), m16(MS, SEL, x, c)]
            for r, G in ((x + 2, a), (x + 3, b)):
                S.post[G] += [f"v_and_b32 {v(Q1+2)}, 0xffff0000, {v(r)}", f"v_lshlrev_b32 {v(Q1+3)}, 16, {v(r)}",
                              f"v_fmac_f32 {v(Q1)}, {v(Q1+2)}, {v(Q1+2)}", f"v_fmac_f32 {v(Q1+1)}, {v(Q1+3)}, {v(Q1+3)}"]
        else: S.post[a] += [m4(Q0, x, c), m4(Q1, x + 2, c), m16(MS, SEL, x, c)]
    S.post[28] += [f"v_and_b32 {v(S1)}, 3, {v(vL)}", f"v_cmp_eq_u32 {s(sEX,2)}, 1, {v(S1)}", f"s_lshl_b32 {s(sT0)}, {s(sHALF)}, 3",
                   f"v_add_u32 {v(T)}, {s(sT0)}, {v(VSTA)}"]
    if OPT.get("hyb", "0") == "1":
        S.pre[0] += [f"v_mov_b32 {v(Q1)}, 0", f"v_mov_b32 {v(Q1+1)}, 0"]
        S.post[29] += [f"v_add_f32 {v(Q1)}, {v(Q1)}, {v(Q1+1)}"]
    else: S.post[29] += [f"v_add_f32 {v(Q0+i)}, {v(Q0+i)}, {v(Q1+i)}" for i in range(4)]
    S.post[29] += [f"v_cmp_eq_u32 vcc, 2, {v(S1)}", f"v_cndmask_b32 {v(S2)}, {v(Q0)}, {v(Q0+1)}, {s(sEX,2)}", f"v_cmp_eq_u32 {s(sEX,2)}, 3, {v(S1)}",
                   f"v_cndmask_b32 {v(S2)}, {v(S2)}, {v(Q0+2)}, vcc", f"v_cndmask_b32 {v(S2)}, {v(S2)}, {v(Q0+3)}, {s(sEX,2)}"] + ([f"v_add_f32 {v(S2)}, {v(S2)}, {v(Q1)}"] if OPT.get("hyb", "0") == "1" else []) + [
                   f"v_mov_b32 {v(S1)}, {v(S2)}", f"v_permlane32_swap_b32 {v(S1)}, {v(S2)}",
                   f"v_add_f32 {v(MS+1)}, {v(S1)}, {v(S2)}", f"ds_write_b64 {v(T)}, {v(MS,2)}"]
    S.post[30] += [f"ds_read_b128 {v(MS,4)}, {v(VSTA)}"]
    for ps in range(3):
        for st in range(8):
            G = 32 * ps + 4 * st
            S.post[G] += [m16(MC, SEL, WF + 4 * (G & 3), "0" if st == 0 else None)]
        S.post[32*ps + 29] += [f"v_add_u32 {v(MC+1)}, {s(sW34)}, {v(VCSA)}", f"ds_write_b32 {v(MC+1)}, {v(MC)} offset:{1024*ps}"]
    for q in (1, 2, 3): S.pre[32 + 8*q - 2] += [f".waitvm w1q{q}", "s_barrier"]
    w2 = sum([wquarter(RB, q, c2, pitch, "w2") for q in range(4)], [])
    for g_, G in zip(wquarter(RA, 3, c1, pitch, "w1q3") + w2, [int(x) for x in OPT.get("w2g", "32,33,35,37,38,40,41,43,44,46").split(",")]): S.dma[G] += g_
    S.pre[62] += [".waitvm w2 lgkm0", "s_barrier"]
    for G in ((int(OPT.get("fb", 82)),) if ffn else (86,)): S.pre[G] += ["s_barrier"]
    if ffn:
        S.post[int(OPT.get("f1", 90))] += flag(1, "h1")
        S.post[int(OPT.get("p1", 99))] += [spoll(0)]; S.blk[("e", int(OPT.get("c1", 105)))] = lambda: (sneed(1, 0), P(spoll(1)))
    else:
        S.post[int(OPT.get("fa", 80))] += flag(1, "po")
        S.post[95] += [spoll(1)]
    if OPT.get("l2t", "0") == "1":
        tg = [int(x) for x in OPT.get("l2gf" if ffn else "l2ga", "52,62,66,70,74" if ffn else "48,52,56,60,64").split(",")]
        DUM = VX0 if False else VW0
        for j in range(5):
            if j < 3:
                L = [f"s_lshr_b32 {s(sT0)}, s2, 3", f"s_mul_i32 {s(sT0)}, {s(sT0)}, 3", f"s_lshl_b32 {s(sT1)}, {s(sSH)}, 4", f"s_add_u32 {s(sT0)}, {s(sT0)}, {s(sT1)}",
                     f"s_add_u32 {s(sT0)}, {s(sT0)}, {128+j}", f"s_sub_u32 {s(sT1)}, {s(sT0)}, 224", f"s_min_u32 {s(sT0)}, {s(sT0)}, {s(sT1)}",
                     f"s_mul_i32 {s(sT1)}, {s(sW)}, 224", f"s_add_u32 {s(sT0)}, {s(sT0)}, {s(sT1)}", f"s_lshl_b32 {s(sT0)}, {s(sT0)}, 10",
                     f"buffer_load_dword {v(VTD)}, {v(VL16)}, {s(SW2,4)}, {s(sT0)} offen ; nodef"]
            else:
                L = [f"s_lshr_b32 {s(sT0)}, s2, 3", f"s_lshl_b32 {s(sT0)}, {s(sT0)}, 11", f"s_lshl_b32 {s(sT1)}, {s(sW)}, 16", f"s_add_u32 {s(sT0)}, {s(sT0)}, {s(sT1)}",
                     f"buffer_load_dword {v(VTD)}, {v(VL16)}, {s(SWO,4)}, {s(sT0)} offen offset:{1024*(j-3)} ; nodef"]
            S.dma[tg[j]] += L
    if OPT.get("touch", "3") == "3":
        def mtouch():
            n0 = len(P.ins)
            P(f"s_cmp_lt_u32 {s(sW)}, 6")
            P(f"s_cbranch_scc1 L_mt{tp}")
            P.cond_begin("w67")
            P(f"v_lshlrev_b32 {v(T+1)}, 7, {v(vL)}\ns_mul_i32 {s(sT0)}, s2, 7168\ns_lshl_b32 {s(sT1)}, s2, 11")
            P(f"s_cmp_eq_u32 {s(sW)}, 6\ns_cbranch_scc0 L_mta{tp}")
            P(f"buffer_load_dword {v(T+2)}, {v(T+1)}, {s(SW2,4)}, {s(sT0)} offen")
            P(f"s_branch L_mt{tp}")
            P(f"L_mta{tp}:")
            P(f"v_and_b32 {v(T+1)}, 2047, {v(T+1)}")
            P(f"buffer_load_dword {v(T+2)}, {v(T+1)}, {s(SWO,4)}, {s(sT1)} offen")
            P(f"buffer_load_dword {v(T+3)}, {v(T+1)}, {s(SB2,4)}, 0 offen")
            P.cond_end()
            P(f"L_mt{tp}:")
        S.blk[("e", int(OPT.get("tg", 5)))] = mtouch
    def announce():
        P(f"s_lshl_b32 {s(sT0)}, {s(sW)}, 8\ns_add_u32 {s(sT0)}, {s(sT0)}, s2\ns_sub_u32 {s(sT0)}, {s(sT0)}, 256\ns_cmp_lt_u32 {s(sT0)}, 8")
        P(f"s_cbranch_scc0 L_nd")
        P.cond_begin("zw")
        P(".waitvm zf")
        P(f"s_lshl_b32 {s(sT0)}, s2, 2\nv_mov_b32 {v(VFV)}, 1")
        P(f"buffer_store_dword {v(VFV)}, {v(VZ)}, {s(SDBG,4)}, {s(sT0)} offen sc1")
        P.cond_end()
        P(f"L_nd:")
    if not ffn: S.blk[3] = announce
    ld = f"v_and_b32 {v(VX0)}, 28, {v(vL)}\nbuffer_load_dword {v(VX0)}, {v(VX0)}, {s(SDBG,4)}, 0 offen sc1"
    def poll0():
        P(f"s_cmp_eq_u32 {s(sW)}, 7"); P(f"s_cbranch_scc0 L_np{tp}")
        P.cond_begin("w7")
        P(ld)
        P.cond_end(); P(f"L_np{tp}:")
    def check0():
        P(f"s_cmp_eq_u32 {s(sW)}, 7"); P(f"s_cbranch_scc0 L_nc{tp}")
        P.cond_begin("w7")
        P(f"v_mov_b32 {v(VX0)}, {v(VX0)}")
        spin(f"L_ncs{tp}", ld, f"v_cmp_ne_u32 vcc, 1, {v(VX0)}")
        P.cond_end(); P(f"L_nc{tp}:")
    S.blk[39] = poll0; S.blk[62] = check0

def run_sched(S, accs):
    P(".waitvm it0")
    P("s_barrier")
    stamp("it0")
    P.add(rd(0)); P.add(rd(1))
    for G in range(S.n):
        stamp(f"g{G}")
        if G in S.blk: S.blk[G]()
        late = OPT.get("bam", "1") == "1" and G >= 32
        if not late: P.add(S.pre[G])
        if OPT.get("prio", "1") == "1": P(f"s_setprio {3 - ((G + 2) & 3)}")
        first = G in (0, 32, 64, 96)
        P(mfma(accs[G >> 5], WF + 4 * (G & 3), xq(G), "0" if first else None))
        if late: P.add(S.pre[G])
        if G + 2 < S.n: P.add(rd(G + 2))
        P.add(S.post[G]); P.add(S.fill[G]); P.add(S.dma[G])
        if ("e", G) in S.blk: S.blk[("e", G)]()
    P("s_setprio 0")

AC = 64; NAF = 8
def AFq(kk, rb): return XF + 4 + 8 * (2 * (kk % NAF) + rb)
def BTq(kk, nb): return XF + 8 * (2 * (kk & 3) + nb)
BA = 2
VXR, VRED = 9, 10
VWR = 20
XR, B2R = 32, 36
def AF2(kk): return XF + 4 + 8 * (kk % 16)
def BT2(kk, nb): return XF + 8 * (4 * (kk & 1) + nb)
def xoff(j, send):
    return ([f"s_xor_b32 {s(sT0)}, s2, {j}", f"s_mul_i32 {s(sT0)}, {s(sT0)}, {3*8192}"] if send else [f"s_mul_i32 {s(sT0)}, s2, {3*8192}"]) + \
           [f"s_lshl_b32 {s(sT1)}, {s(sW)}, 10", f"s_add_u32 {s(sT0)}, {s(sT0)}, {s(sT1)}", f"s_add_u32 {s(sT0)}, {s(sT0)}, {WS_X + (j-1)*8192}"]
def a_jobs(kk):
    so = sA0 if kk < 14 else sA1
    if V2: return [rot_k(kk, sD1) + [f"s_lshl_b32 {s(sD1)}, {s(sD1)}, 10", f"s_add_u32 {s(sD1)}, {s(sD1)}, {s(so)}",
             f"buffer_load_dwordx4 {v(AF2(kk),4)}, {v(VL16)}, {s(SWS,4)}, {s(sD1)} offen sc1"]]
    return [rot_k(kk, sD1) + [f"s_lshl_b32 {s(sD1)}, {s(sD1)}, 10", f"s_add_u32 {s(sD1)}, {s(sD1)}, {s(so)}",
             f"buffer_load_dwordx4 {v(AFq(kk,0),4)}, {v(VL16)}, {s(SWS,4)}, {s(sD1)} offen sc1"],
            [f"s_add_u32 {s(sD1)}, {s(sD1)}, {HF_RB}",
             f"buffer_load_dwordx4 {v(AFq(kk,1),4)}, {v(VL16)}, {s(SWS,4)}, {s(sD1)} offen sc1"]]
def vcheck(regs, t):
    L = [f"v_max3_u32 {v(t)}, {v(regs[0])}, {v(regs[1])}, {v(regs[2])}"]; r = regs[3:]
    while len(r) >= 2: L.append(f"v_max3_u32 {v(t)}, {v(t)}, {v(r[0])}, {v(r[1])}"); r = r[2:]
    if r: L.append(f"v_max_u32 {v(t)}, {v(t)}, {v(r[0])}")
    return L + [f"v_cmp_eq_u32 vcc, -1, {v(t)}"]
SLOW = []
def validate(regs, t, reload):
    lb = P.lab("L_v")
    P.add(vcheck(regs, t))
    P(f"s_cbranch_vccnz {lb}_slow")
    P(f"{lb}_back:")
    dbg = [f"s_add_u32 {s(sST+2*STI['slow'])}, {s(sST+2*STI['slow'])}, {1 << len(SLOW)}"] if STAMP and "slow" in STI else []
    SLOW.append([f"{lb}_slow:"] + dbg + [f"s_mov_b32 {s(sCNT)}, 0", f"{lb}_loop:", "s_sleep 2"] + reload + ["s_waitcnt vmcnt(0)"] + vcheck(regs, t) +
                [f"s_add_u32 {s(sCNT)}, {s(sCNT)}, 1", f"s_cbranch_vccz {lb}_back", f"s_cmp_gt_u32 {s(sCNT)}, {SPIN_MAX}",
                 f"s_cbranch_scc0 {lb}_loop", f"s_branch {lb}_back"])
def flush_slow():
    for blk in SLOW:
        P(".reset"); P.add(blk)
    SLOW.clear()
def spoll(o): return f"s_buffer_load_dwordx4 {s(sPL,4)}, {s(SWS,4)}, {s(sFL)} offset:{0 if o else 1024} glc"
def sneed(level, o):
    lb = P.lab("L_sp")
    P(f"s_mov_b32 {s(sCNT)}, 0")
    P(f"{lb}:")
    P("s_waitcnt lgkmcnt(0)")
    P(f"s_min_u32 {s(sPL)}, {s(sPL)}, {s(sPL+1)}\ns_min_u32 {s(sPL+2)}, {s(sPL+2)}, {s(sPL+3)}\ns_min_u32 {s(sPL)}, {s(sPL)}, {s(sPL+2)}")
    P(f"s_cmp_ge_u32 {s(sPL)}, {level}")
    P(f"s_cbranch_scc1 {lb}_ok")
    P(f"s_add_u32 {s(sCNT)}, {s(sCNT)}, 1\ns_cmp_gt_u32 {s(sCNT)}, {SPIN_MAX}")
    P(f"s_cbranch_scc1 {lb}_ok")
    P("s_sleep 1")
    I = Ins(spoll(o)); I.kind = "salu"; P.ins.append(I)
    P(f"s_branch {lb}")
    P(f"{lb}_ok:")
def own_check():
    lb = P.lab("L_oc")
    P(f"s_mov_b32 {s(sCNT)}, 0")
    P(f"{lb}:")
    P("s_waitcnt lgkmcnt(0)")
    P(f"s_cmp_ge_u32 {s(sK)}, 1")
    P(f"s_cbranch_scc1 {lb}_ok")
    P(f"s_add_u32 {s(sCNT)}, {s(sCNT)}, 1\ns_cmp_gt_u32 {s(sCNT)}, {SPIN_MAX}")
    P(f"s_cbranch_scc1 {lb}_ok")
    P("s_sleep 1")
    I = Ins(f"s_buffer_load_dword {s(sK)}, {s(SWS,4)}, {s(sT2)} glc"); I.kind = "salu"; P.ins.append(I)
    P(f"s_branch {lb}")
    P(f"{lb}_ok:")
def b_reads(kk):
    slot = kk % 9
    var, off = (KAREA[slot] >> 16), KAREA[slot] & 0xffff
    return [f".waitvm b{kk}"] + [f"ds_read_b64_tr_b16 {v(BTq(kk,nb)+2*tt,2)}, {v(BA+2*var+nb)} offset:{off+1024*tt}" for nb in range(2) for tt in range(2)]
def finish(ffn):
    if OPT.get("echo") and OPT.get("echot", "fa").find("f" if ffn else "a") < 0: pass
    elif OPT.get("echo"):
        a_, b_ = [STI[x] for x in OPT["echo"].split(",")]
        lb = P.lab("L_echo")
        stamp("end")
        P("s_waitcnt lgkmcnt(0)")
        P(f"s_sub_u32 {s(sT0)}, {s(sST+2*b_)}, {s(sST+2*a_)}")
        if STAMP == 2:
            P(f"s_lshr_b32 {s(sT0)}, {s(sT0)}, 4\ns_memrealtime {s(sST+22,2)}\ns_waitcnt lgkmcnt(0)")
        P(f"s_min_u32 {s(sT0)}, {s(sT0)}, 10000")
        P(f"{lb}:")
        P(f"s_memrealtime {s(sEX,2)}")
        P("s_waitcnt lgkmcnt(0)")
        P(f"s_sub_u32 {s(sT1)}, {s(sEX)}, {s(sST+22)}\ns_cmp_lt_u32 {s(sT1)}, {s(sT0)}\ns_cbranch_scc1 {lb}")
    elif STAMP:
        stamp("end")
        P("s_waitcnt lgkmcnt(0)")
        P(f"s_lshl_b32 {s(sT0)}, s2, 3\ns_add_u32 {s(sT0)}, {s(sT0)}, {s(sW)}\ns_lshl_b32 {s(sT0)}, {s(sT0)}, 6\ns_add_u32 {s(sT0)}, {s(sT0)}, {WS_STAMP}")
        P(f"v_mov_b32 v2, 0\ns_mov_b64 exec, 1")
        for i in range(12):
            P(f"v_mov_b32 v3, {s(sST+2*i)}\nbuffer_store_dword v3, v2, {s(SWS,4)}, {s(sT0)} offen offset:{4*i}")
    P("s_endpgm")
    flush_slow()

def phase2_v2(bleft, ffn):
    BAR = [2, 3, 4, 5, 6, 7, 8, 9, 10, 11, 14, 15]; VX = 16
    WB = [20, 21, 22]; RBs = [23, 24, 25]; PX = BAUG
    t = T + 8
    P(f"v_bfe_u32 {v(t)}, {v(vL)}, 2, 2\nv_lshrrev_b32 {v(t+1)}, 5, {v(vL)}\nv_and_b32 {v(t+2)}, 63, {v(AW)}\ns_lshl_b32 {s(sT0)}, {s(sHALF)}, 5\nv_xor_b32 {v(t+2)}, {s(sT0)}, {v(t+2)}")
    P(f"v_lshl_add_u32 {v(t+3)}, {v(t+1)}, 2, {v(t)}\nv_lshl_add_u32 {v(t+3)}, {v(t+3)}, 8, {v(t+2)}\ns_lshl_b32 {s(sT0)}, {s(sHALF)}, 13\nv_add_u32 {v(t+3)}, {s(sT0)}, {v(t+3)}")
    P(f"v_xor_b32 {v(t)}, {s(sM)}, {v(t)}\nv_lshl_add_u32 {v(BAR[0])}, {v(t)}, 6, {v(t+3)}")
    for nb in range(1, 4): P(f"v_xor_b32 {v(BAR[nb])}, {64*nb}, {v(BAR[0])}")
    for rg in (2, 1):
        for nb in range(4): P(f"v_add_u32 {v(BAR[4*rg+nb])}, {65536*rg}, {v(BAR[nb])}")
    LP = int(OPT.get("lp", 8))
    SQ = int(OPT.get("sq", 12))
    seq = [(kk, nb) for kk in range(SQ) for nb in range(4) if nb or kk < LP]
    done_at = {}
    for nb in (1, 2, 3):
        seq += [(kk, nb) for kk in range(SQ, 18)]; done_at[nb] = len(seq)
    seq += [(kk, 0) for kk in range(LP, 18)]
    D = 4
    def bq(i): return XF + 8 * (i & 7)
    def br(i):
        kk, nb = seq[i]; a = KAREA[kk >> 1]
        return [f"ds_read_b64_tr_b16 {v(bq(i)+2*tt,2)}, {v(BAR[4*(a>>16)+nb])} offset:{(a&0xffff)+(kk&1)*4096+2048*tt}" for tt in range(2)]
    def val(kk): validate([AF2(kk) + i for i in range(4)], T + 16, a_jobs(kk)[0])
    for i in range(D): P.add(br(i))
    val(0)
    stamp("hseen")
    first = {}
    for i, (kk, nb) in enumerate(seq): first.setdefault(kk, i)
    ev = {}
    def at(i, x): ev.setdefault(i, []).append(x)
    a8, a14 = int(OPT.get("a8", 14)), int(OPT.get("a14", 30))
    for i, g_ in enumerate(sum([b_dma(k2) for k2 in bleft], [])): at(int(OPT.get('bst', 1)) * i, g_)
    ast = int(OPT.get('ast', 1))
    for k2 in range(8, 14): at(a8 + ast * (k2 - 8), a_jobs(k2)[0])
    for k2 in range(14, 18): at(a14 + ast * (k2 - 14), a_jobs(k2)[0])
    F = T + 8
    at(9, lines(f"v_and_b32 {v(T+17)}, 31, {v(vL)}\nv_lshrrev_b32 {v(T+18)}, 5, {v(vL)}\nv_lshlrev_b32 {v(T+18)}, 4, {v(T+18)}\nv_lshl_add_u32 {v(VX)}, {v(T+17)}, 10, {v(T+18)}") +
          [f"buffer_load_dwordx4 {v(XR,4)}, {v(VX)}, {s(SX,4)}, {s(sOo)} offen", f"buffer_load_dwordx4 {v(B2R,4)}, {v(T+18)}, {s(SB2,4)}, {s(sN)} offen"])
    at(24, lines(f"v_add_u32 {v(WB[0])}, {s(sM0x)}, {v(VL16)}\nv_xor_b32 {v(RBs[0])}, 8192, {v(WB[0])}") +
           sum([[f"v_add_u32 {v(WB[rg])}, {65536*rg}, {v(WB[0])}", f"v_add_u32 {v(RBs[rg])}, {65536*rg}, {v(RBs[0])}"] for rg in (1, 2)], []))
    for i in range(4):
        at(40 + i, lines(f"v_lshlrev_b32 {v(F+2*i)}, 16, {v(XR+i)}\nv_and_b32 {v(F+2*i+1)}, 0xffff0000, {v(XR+i)}\nv_lshlrev_b32 {v(T+4)}, 16, {v(B2R+i)}\nv_and_b32 {v(T+5)}, 0xffff0000, {v(B2R+i)}\nv_add_f32 {v(F+2*i)}, {v(F+2*i)}, {v(T+4)}\nv_add_f32 {v(F+2*i+1)}, {v(F+2*i+1)}, {v(T+5)}"))
    px1 = OPT.get("px1") == "1"
    if not px1:
        pxi = int(OPT.get("pxi", a8 + 6))
        at(pxi - 1, [f"v_mov_b32 {v(PX+i)}, -1" for i in range(4)])
        for j in (1, 2, 3): at(pxi + (j - 1) * int(OPT.get("pxs", 1)), xoff(j, True) + [f"buffer_store_dwordx4 {v(PX,4)}, {v(VL16)}, {s(SWS,4)}, {s(sT0)} offen sc1 ; tag=px"])
    at(int(OPT.get("fx", 8 if px1 else 48)), flag(2, "px"))
    bar_i = first[12] - D
    def wr(nb): a = KAREA[nb]; return [f"ds_write_b128 {v(WB[a>>16])}, {v(AC+16*nb+8+4*q,4)} offset:{(a&0xffff)+1024*q}" for q in range(2)]
    def rdp(nb): a = KAREA[nb]; return [f"ds_read_b128 {v(AC+16*nb+8+4*q,4)}, {v(RBs[a>>16])} offset:{(a&0xffff)+1024*q}" for q in range(2)]
    def add(nb, pk): c = AC + 16 * nb; return [f"v_pk_add_f32 {v(c+i,2)}, {v(c+i,2)}, {v(c+8+i,2)}" for i in range(0, 8, 2)] if pk else [f"v_add_f32 {v(c+i)}, {v(c+i)}, {v(c+8+i)}" for i in range(8)]
    def snd(nb): c = AC + 16 * nb; return [f"v_cvt_pk_bf16_f32 {v(c+8+i)}, {v(c+2*i)}, {v(c+2*i+1)}" for i in range(4)] + xoff(nb, True) + [f"buffer_store_dwordx4 {v(c+8,4)}, {v(VL16)}, {s(SWS,4)}, {s(sT0)} offen sc1"]
    VPF, VPA = PX, PX + 1
    pf = f"buffer_load_dword {v(VPF)}, {v(VPA)}, {s(SWS,4)}, 0 offen sc1"
    at(38 if px1 else done_at[3] + 3, lines(f"v_and_b32 {v(VPA)}, 3, {v(vL)}\nv_lshlrev_b32 {v(VPA)}, 8, {v(VPA)}\nv_xor_b32 {v(VPA)}, {s(sFO)}, {v(VPA)}") + [pf])
    if SQ < 18:
        for nb in (1, 2, 3):
            e = done_at[nb]
            at(e + 1, wr(nb)); at(e + 2, ["s_waitcnt lgkmcnt(2)", "s_barrier"] + rdp(nb)); at(e + 4, add(nb, False) + snd(nb))
        at(done_at[3] + 4, stamp_i("xs"))
    else:
        e = done_at[3]
        at(e, wr(1) + wr(2)); at(e + 1, wr(3) + ["s_waitcnt lgkmcnt(0)", "s_barrier"] + rdp(1) + rdp(2) + rdp(3))
        for nb in (1, 2, 3): at(e + 1 + nb, add(nb, False) + snd(nb))
        at(e + 4, stamp_i("xs"))
    seen = set()
    for i, (kk, nb) in enumerate(seq):
        if i % 4 == 0: P(f"s_setprio {3 - ((i >> 2) & 3)}")
        P(mfma(AC + 16 * nb, bq(i), AF2(kk), None if nb in seen else "0")); seen.add(nb)
        if i == bar_i: P(".waitvm b8"); P("s_barrier")
        if i + D < len(seq): P.add(br(i + D))
        if i + 2 < len(seq) and first[seq[i + 2][0]] == i + 2: val(seq[i + 2][0])
        for x in ev.pop(i, []): P.add(x)
        if i + 1 < len(seq) and first[seq[i + 1][0]] == i + 1: stamp(f"k{kk}")
    assert not ev, ev.keys()
    stamp("p2mm")
    P("s_setprio 0")
    P.add(wr(0))
    P(f"v_mov_b32 {v(VPF)}, {v(VPF)}")
    spin(P.lab("L_pf"), pf, f"v_cmp_gt_u32 vcc, 2, {v(VPF)}")
    P("s_waitcnt lgkmcnt(0)")
    R = XF
    rl = sum([xoff(j, False) + [f"buffer_load_dwordx4 {v(R+4*j,4)}, {v(VL16)}, {s(SWS,4)}, {s(sT0)} offen sc1"] for j in range(1, 4)], [])
    P("s_barrier")
    P.add(rdp(0))
    P.add(rl)
    P.add(add(0, True))
    validate([R + 4 + i for i in range(12)], T + 16, rl)
    stamp("xr")
    P(f"s_mov_b32 {s(sT0)}, 0x3f80\ns_mov_b32 {s(sT1)}, 0x3f800000")
    for j in range(1, 4):
        for i in range(4): P(f"v_dot2c_f32_bf16 {v(AC+2*i)}, {s(sT0)}, {v(R+4*j+i)}\nv_dot2c_f32_bf16 {v(AC+2*i+1)}, {s(sT1)}, {v(R+4*j+i)}")
    for i in range(4): P(f"v_permlane32_swap_b32 {v(AC+i)}, {v(AC+4+i)}")
    for i in range(0, 8, 2): P(f"v_pk_add_f32 {v(F+i,2)}, {v(F+i,2)}, {v(AC+i,2)}")
    for i in range(4): P(f"v_cvt_pk_bf16_f32 {v(XR+i)}, {v(F+2*i)}, {v(F+2*i+1)}")
    P(f"buffer_store_dwordx4 {v(XR,4)}, {v(VX)}, {s(SOUT,4)}, {s(sOo)} offen")
    finish(ffn)

def phase2(done=(), ordr="B6 B7 B8 B9 A4 A5 A6 A7 B10 A8 B11 A9 A10 B12 A11 B13 A12 B14 A13 B15 B16 B17 A14 A15 A16 A17", ffn=False):
    P(f"v_bfe_u32 {v(T+8)}, {v(vL)}, 2, 2\nv_lshrrev_b32 {v(T+9)}, 5, {v(vL)}\nv_and_b32 {v(T+10)}, 63, {v(AW)}")
    P(f"v_lshl_add_u32 {v(T+12)}, {v(T+9)}, 2, {v(T+8)}\nv_lshl_add_u32 {v(T+12)}, {v(T+12)}, 7, {v(T+10)}\nv_lshrrev_b32 {v(T+13)}, 1, {v(T+8)}")
    P(f"v_lshl_add_u32 {v(T+12)}, {v(T+13)}, 6, {v(T+12)}\nv_xor_b32 {v(T+13)}, 64, {v(T+12)}")
    P(f"s_add_u32 {s(sT0)}, {s(sM0x)}, 65536\ns_add_u32 {s(sT1)}, {s(sM0x)}, {RC}")
    for nb in range(2):
        P(f"v_add_u32 {v(BA+nb)}, {s(sM0x)}, {v(T+12+nb)}\nv_add_u32 {v(BA+2+nb)}, {s(sT0)}, {v(T+12+nb)}\nv_add_u32 {v(BA+4+nb)}, {s(sT1)}, {v(T+12+nb)}")
    P.add(b_reads(0))
    if OPT.get("r8", "1") == "1": validate([AFq(0, r2) + i for r2 in range(2) for i in range(4)], T + 16, sum(a_jobs(0), []))
    if OPT.get("p2prio") == "y":
        lb = P.lab("L_pr"); P(f"s_cmp_lt_u32 {s(sW)}, 4\ns_cbranch_scc1 {lb}\ns_setprio 1\n{lb}:")
    stamp("hseen")
    order = [j for j in ordr.split() if j not in done]
    jobs = []
    for j in order:
        k2 = int(j[1:]); gs = a_jobs(k2) if j[0] == "A" else b_dma(k2)
        jobs += [(j, gs[0]), (None, gs[1])]
    LEAD = int(OPT.get("lead", 3))
    first_need = min(int(j[1:]) - (0 if j[0] == "A" else 1) for j in order)
    order.sort(key=lambda j: int(j[1:]) - (0.5 if j[0] == "B" else 0)) if LEAD < 9 else None
    jobs = []
    for j in order:
        k2 = int(j[1:]); gs = a_jobs(k2) if j[0] == "A" else b_dma(k2)
        jobs += [(j, gs[0]), (None, gs[1])]
    NT = int(OPT.get("nt", 2))
    for kk in range(18 - NT):
        rem = [x for x, _ in jobs if x]
        assert f"A{kk+1}" not in rem and f"B{kk+2}" not in rem, (kk, rem)
        if OPT.get("v"): print(kk, rem, file=sys.stderr)
        pm = OPT.get("p2prio", "c")
        if pm == "c": P(f"s_setprio {3 - ((kk // int(OPT.get('p2per', 1))) & 3)}")
        br = b_reads(kk + 1) if kk + 1 < 18 else []
        for nb in range(2):
            for rb in range(2):
                mi = 2 * nb + rb
                P(mfma(AC + 16 * mi, BTq(kk, nb), AFq(kk, rb), "0" if kk == 0 else None))
                if mi == 0: P.add(br[:3])
                if mi == 1: P.add(br[3:])
                if mi == 2 and (1 if OPT.get('r8', '1') == '1' else 4) <= kk + 1 < 18:
                    if jobs and jobs[0][0] is None: P.add(jobs.pop(0)[1])
                    validate([AFq(kk + 1, r2) + i for r2 in range(2) for i in range(4)], T + 16, sum(a_jobs(kk + 1), []))
                for rep in range(2 if kk < int(OPT.get("dbl", 0)) else 1):
                    if not jobs: continue
                    j, g_ = jobs[0]
                    if j:
                        k2 = int(j[1:]); last = (nb, rb) == (1, 1)
                        free = k2 - (8 if j[0] == "A" else 9)
                        if free > kk or (free == kk and not last): continue
                        need_at = k2 - (0 if j[0] == "A" else 1)
                        if need_at > max(kk, first_need - 1) + LEAD: continue
                    jobs.pop(0); P.add(g_)
        stamp(f"k{kk}")
        if kk == 8:
            P(f"v_lshrrev_b32 {v(T+17)}, 3, {v(vL)}\nv_and_b32 {v(T+18)}, 7, {v(vL)}\nv_lshlrev_b32 {v(T+18)}, 4, {v(T+18)}\nv_lshl_add_u32 {v(VXR)}, {v(T+17)}, 10, {v(T+18)}")
            P(f"s_lshl_b32 {s(sT0)}, {s(sN)}, 7")
            P(f"buffer_load_dwordx4 {v(XR,4)}, {v(VXR)}, {s(SX,4)}, {s(sOo)} offen")
            P(f"buffer_load_dwordx4 {v(B2R,4)}, {v(T+18)}, {s(SB2,4)}, {s(sT0)} offen")
        if kk == 3:
            for q in range(4):
                P(f"v_xor_b32 {v(VWR+q)}, {64*q}, {v(VL16)}\nv_add_u32 {v(VWR+q)}, {s(sM0x)}, {v(VWR+q)}")
                P(f"v_add_u32 {v(T+q)}, 65536, {v(VWR+q)}")
            P(f"v_lshrrev_b32 {v(T+4)}, 3, {v(vL)}\ns_lshl_b32 {s(sT0)}, {s(sW34)}, 1\nv_add_u32 {v(T+4)}, {s(sT0)}, {v(T+4)}")
            P(f"v_and_b32 {v(T+5)}, 3, {v(vL)}\nv_lshlrev_b32 {v(T+6)}, 2, {v(T+5)}\nv_xor_b32 {v(T+4)}, {v(T+4)}, {v(T+6)}\nv_lshlrev_b32 {v(T+4)}, 4, {v(T+4)}\nv_and_b32 {v(T+6)}, 1, {v(T+5)}\nv_lshl_add_u32 {v(T+4)}, {v(T+6)}, 10, {v(T+4)}\nv_lshrrev_b32 {v(T+6)}, 1, {v(T+5)}\nv_lshl_add_u32 {v(T+4)}, {v(T+6)}, 14, {v(T+4)}")
            P(f"v_bfe_u32 {v(T+5)}, {v(vL)}, 2, 1\nv_lshl_add_u32 {v(T+4)}, {v(T+5)}, 16, {v(T+4)}\ns_lshl_b32 {s(sT0)}, {s(sHALF)}, 15\nv_add_u32 {v(VRED)}, {s(sT0)}, {v(T+4)}")
        F = T + 8
        if kk == 13:
            for i in range(4):
                P(f"v_lshlrev_b32 {v(F+2*i)}, 16, {v(XR+i)}\nv_and_b32 {v(F+2*i+1)}, 0xffff0000, {v(XR+i)}")
                P(f"v_lshlrev_b32 {v(T+4)}, 16, {v(B2R+i)}\nv_and_b32 {v(T+5)}, 0xffff0000, {v(B2R+i)}")
                P(f"v_add_f32 {v(F+2*i)}, {v(F+2*i)}, {v(T+4)}\nv_add_f32 {v(F+2*i+1)}, {v(F+2*i+1)}, {v(T+5)}")
    assert not jobs
    for kk in range(19 - NT, 18):
        P.add(b_reads(kk))
        validate([AFq(kk, r2) + i for r2 in range(2) for i in range(4)], T + 16, sum(a_jobs(kk), []))
    def wr(blk): return [f"ds_write_b128 {v(VWR + q if blk < 2 else T + q)}, {v(AC+16*blk+4*q,4)} offset:{(blk&1)*32768+(q>>1)*16384+(q&1)*1024}" for q in range(4)]
    pend = []
    for mi in range(4):
        for kk in range(18 - NT, 18):
            P(mfma(AC + 16 * mi, BTq(kk, mi >> 1), AFq(kk, mi & 1)))
            if kk > 18 - NT or NT == 1: P.add(pend[:2]); pend = pend[2:]
        P.add(pend); pend = wr(mi)
    stamp("p2mm")
    P.add(pend)
    P("s_waitcnt lgkmcnt(0)")
    stamp("rw")
    P("s_barrier")
    stamp("rb")
    R = XF
    for ww in range(8):
        for hf in range(2): P(f"ds_read_b128 {v(R+8*ww+4*hf,4)}, {v(VRED)} offset:{2048*ww+512*hf}")
    for ww in range(8):
        for i in range(0, 8, 2): P(f"v_pk_add_f32 {v(F+i,2)}, {v(F+i,2)}, {v(R+8*ww+i,2)}")
    for i in range(4): P(f"v_cvt_pk_bf16_f32 {v(XR+i)}, {v(F+2*i)}, {v(F+2*i+1)}")
    P(f"buffer_store_dwordx4 {v(XR,4)}, {v(VXR)}, {s(SOUT,4)}, {s(sOo)} offen {OPT.get('om', '').replace('+', ' ')}")
    finish(ffn)

def softmax(p, out, LS, pk=False):
    t = T + 16
    if pk:
        assert LS == STD + 1
        L = softmax(p, out, LS)[:9]
        L += [f"v_pk_fma_f32 {v(p+i,2)}, {v(p+i,2)}, {v(STD,2)}, {v(t,2)} op_sel:[0,1,0] op_sel_hi:[1,1,0] neg_lo:[0,0,1] neg_hi:[0,0,1]" for i in range(0, 16, 2)]
        L += [f"v_exp_f32 {v(p+i)}, {v(p+i)}" for i in range(16)]
        L += [f"v_pk_add_f32 {v(t,2)}, {v(p,2)}, {v(p+2,2)}", f"v_pk_add_f32 {v(t+2,2)}, {v(p+4,2)}, {v(p+6,2)}"]
        L += [f"v_pk_add_f32 {v(t+2*(i&1),2)}, {v(t+2*(i&1),2)}, {v(p+8+2*i,2)}" for i in range(4)]
        L += [f"v_pk_add_f32 {v(t,2)}, {v(t,2)}, {v(t+2,2)}", f"v_add_f32 {v(t)}, {v(t)}, {v(t+1)}", f"v_rcp_f32 {v(t)}, {v(t)}"]
        L += [f"v_pk_mul_f32 {v(p+i,2)}, {v(p+i,2)}, {v(t,2)} op_sel_hi:[1,0]" for i in range(0, 16, 2)]
        return L + [f"v_cvt_pk_bf16_f32 {v(out+i)}, {v(p+2*i)}, {v(p+2*i+1)}" for i in range(8)]
    L = [f"v_max3_f32 {v(t)}, {v(p)}, {v(p+1)}, {v(p+2)}", f"v_max3_f32 {v(t+1)}, {v(p+3)}, {v(p+4)}, {v(p+5)}",
         f"v_max3_f32 {v(t)}, {v(t)}, {v(p+6)}, {v(p+7)}", f"v_max3_f32 {v(t+1)}, {v(t+1)}, {v(p+8)}, {v(p+9)}",
         f"v_max3_f32 {v(t)}, {v(t)}, {v(p+10)}, {v(p+11)}", f"v_max3_f32 {v(t+1)}, {v(t+1)}, {v(p+12)}, {v(p+13)}",
         f"v_max3_f32 {v(t)}, {v(t)}, {v(p+14)}, {v(p+15)}", f"v_max_f32 {v(t)}, {v(t)}, {v(t+1)}",
         f"v_mul_f32 {v(t)}, {v(t)}, {v(LS)}"]
    L += [f"v_fma_f32 {v(p+i)}, {v(p+i)}, {v(LS)}, -{v(t)}" for i in range(16)]
    L += [f"v_exp_f32 {v(p+i)}, {v(p+i)}" for i in range(16)]
    L += [f"v_add_f32 {v(t)}, {v(p)}, {v(p+1)}", f"v_add_f32 {v(t+1)}, {v(p+2)}, {v(p+3)}"]
    for i in range(4, 16, 2):
        L += [f"v_add_f32 {v(t)}, {v(t)}, {v(p+i)}", f"v_add_f32 {v(t+1)}, {v(t+1)}, {v(p+i+1)}"]
    L += [f"v_add_f32 {v(t)}, {v(t)}, {v(t+1)}", f"v_rcp_f32 {v(t)}, {v(t)}"]
    L += [f"v_mul_f32 {v(p+i)}, {v(p+i)}, {v(t)}" for i in range(16)]
    L += [f"v_cvt_pk_bf16_f32 {v(out+i)}, {v(p+2*i)}, {v(p+2*i+1)}" for i in range(8)]
    return L

setup(False)
KAREA[:] = [RC, RA+3*Q, RB, RA, RA+Q, RA+2*Q, RB+Q, RB+2*Q, RB+3*Q]
LS = K1; VPK = K2; VV = VW3; MC = BIAS
PHI0, PHI1 = AX, AAUG
PHI0 = AX
PHI1 = S1
PHI1 = T + 12
t = T + 16
P(f"v_bfe_u32 {v(t)}, {v(vL)}, 2, 2\nv_lshrrev_b32 {v(t+1)}, 5, {v(vL)}\nv_lshl_add_u32 {v(t)}, {v(t+1)}, 2, {v(t)}\nv_lshlrev_b32 {v(t)}, 5, {v(t)}")
P(f"v_bfe_u32 {v(t+2)}, {v(vL)}, 1, 1\nv_lshl_add_u32 {v(t)}, {v(t+2)}, 3, {v(t)}\nv_bfe_u32 {v(t+2)}, {v(vL)}, 4, 1\nv_lshl_add_u32 {v(t)}, {v(t+2)}, 4, {v(t)}")
P(f"s_lshl_b32 {s(sT1)}, {s(sHALF)}, 10\ns_add_u32 {s(sT1)}, {s(sT1)}, {L_WPHI}\nv_add_u32 {v(AB)}, {s(sT1)}, {v(t)}")
P(f"v_bfe_u32 {v(t)}, {v(vL)}, 2, 1\nv_mul_u32_u24 {v(t)}, 0x8000, {v(t)}\nv_lshl_or_b32 {v(AB+1)}, {v(t)}, 16, {v(t)}")
P(f"v_and_b32 {v(t)}, 31, {v(vL)}\nv_lshlrev_b32 {v(t)}, 6, {v(t)}\ns_lshl_b32 {s(sT1)}, {s(sW34)}, 9\nv_bfe_u32 {v(t+2)}, {v(vL)}, 1, 2")
P(f"v_lshlrev_b32 {v(t+3)}, 1, {v(t+1)}\nv_xor_b32 {v(t+3)}, {v(t+3)}, {v(t+2)}")
P(f"s_lshl_b32 {s(sT2)}, {s(sHALF)}, 14\ns_add_u32 {s(sT2)}, {s(sT2)}, {s(sT1)}\nv_lshl_add_u32 {v(VPK)}, {v(t+3)}, 4, {v(t)}\nv_add_u32 {v(VPK)}, {s(sT2)}, {v(VPK)}")
P(f"v_xor_b32 {v(t+3)}, {v(t+1)}, {v(t+2)}")
P(f"s_lshl_b32 {s(sT2)}, {s(sHALF)}, 13\ns_add_u32 {s(sT2)}, {s(sT2)}, {s(sT1)}\ns_add_u32 {s(sT2)}, {s(sT2)}, {RA+32768}\nv_lshl_add_u32 {v(VV)}, {v(t+3)}, 4, {v(t)}\nv_add_u32 {v(VV)}, {s(sT2)}, {v(VV)}")
def phi_load(hl, dst):
    return [f"ds_read_b64_tr_b16 {v(dst+2*tt,2)}, {v(AB)} offset:{512*hl+256*tt}" for tt in range(2)] + \
           [f"v_xor_b32 {v(dst+i)}, {v(AB+1)}, {v(dst+i)}" for i in range(4)]
S = Sched(96)
common_sched(S, False, None, MC)
S.post[30] += [f"ds_read_b128 {v(CSR,4)}, {v(VCSA)}"]
sKV, sOS = sH0, sH3
P(f"s_lshl_b32 {s(sT0)}, {s(sG)}, 4\ns_add_u32 {s(sT0)}, {s(sT0)}, {s(sRT)}\ns_mul_i32 {s(sT0)}, {s(sT0)}, {KVP_SZ}\ns_mul_i32 {s(sT1)}, {s(sW)}, 1152\ns_add_u32 {s(sT0)}, {s(sT0)}, {s(sT1)}\ns_add_u32 {s(sT0)}, {s(sT0)}, {WS_KVP}")
P(f"s_cmp_lt_u32 {s(sW)}, 4\ns_cselect_b32 {s(sKV)}, {s(sT0)}, 0x7f000000")
P(f"s_lshl_b32 {s(sT0)}, {s(sG)}, 2\ns_lshl_b32 {s(sT1)}, {s(sHALF)}, 1\ns_add_u32 {s(sT0)}, {s(sT0)}, {s(sT1)}\ns_add_u32 {s(sT0)}, {s(sT0)}, 112\ns_lshl_b32 {s(sT0)}, {s(sT0)}, 10\ns_add_u32 {s(sOS)}, {s(sT0)}, {s(sHo)}")
PA = AAUG
OFFL = OPT.get("off", "0") == "1"
if OFFL:
    P(f"s_mul_i32 {s(sT0)}, {s(sG)}, 448\ns_and_b32 {s(sT1)}, {s(sG)}, 1\ns_add_u32 {s(sT2)}, {s(sT1)}, {s(sHALF)}\ns_lshl_b32 {s(sT2)}, {s(sT2)}, 6\ns_add_u32 {s(sT2)}, {s(sT2)}, {s(sT0)}")
    P(f"s_lshl_b32 {s(sT2)}, {s(sT2)}, 5\ns_add_u32 {s(sWq)}, {s(sT2)}, {s(sHo)}\ns_add_u32 {s(sWq)}, {s(sWq)}, 8192")
    P(f"s_xor_b32 {s(sT1)}, {s(sT1)}, 1\ns_mul_i32 {s(sT1)}, {s(sT1)}, 384\ns_add_u32 {s(sT0)}, {s(sT0)}, {s(sT1)}\ns_lshl_b32 {s(sT1)}, {s(sHALF)}, 5\ns_add_u32 {s(sT0)}, {s(sT0)}, {s(sT1)}")
    P(f"s_lshl_b32 {s(sT0)}, {s(sT0)}, 5\ns_add_u32 {s(sW3)}, {s(sT0)}, {s(sHo)}")
S.post[46] += [f"v_mov_b32 {v(PA+i)}, -1" for i in range(4)] + [f"v_lshrrev_b32 {v(S2)}, 2, {v(vL)}", f"v_lshl_add_u32 {v(S2)}, {v(S2)}, 26, {v(VL16)}"]
S.post[47] += [f"buffer_store_dwordx4 {v(PA,4)}, {v(VL16)}, {s(SWS,4)}, {s(sKV)} offen sc1"]
S.post[48] += [f"buffer_store_dwordx4 {v(PA,4)}, {v(S2)}, {s(SWS,4)}, {s(sKV)} offen offset:1024 sc1 ; tag=pz"]
pl = [(sOS, 0), (sOS, 1024)] + ([(sWq, 0), (sWq, 1024), (sW3, 0)] if OFFL else [])
for (so, off), G in zip(pl, [int(x) for x in OPT.get("pza", "50,53,56,59,62").split(",")]):
    S.post[G] += [f"buffer_store_dwordx4 {v(PA,4)}, {v(VL16)}, {s(SWS,4)}, {s(so)} offen offset:{off} sc1 ; tag=po"]
PX1 = OPT.get("px1") == "1"
if V2 and PX1:
    for j, G in zip((1, 2, 3), (56, 59, 62)): S.post[G] += xoff(j, True) + [f"buffer_store_dwordx4 {v(PA,4)}, {v(VL16)}, {s(SWS,4)}, {s(sT0)} offen sc1 ; tag=px"]
S.post[63] += [f"v_mov_b32 {v(PA+2)}, 0", f"v_mov_b32 {v(PA+3)}, 0"]
def ltouch():
    P(f"s_sub_u32 {s(sT0)}, {s(sW)}, 4\ns_cmp_lt_u32 {s(sT0)}, 3")
    P(f"s_cbranch_scc0 L_nlt")
    P.cond_begin("w456")
    P(f"v_lshlrev_b32 {v(S1)}, 7, {v(vL)}\ns_lshl_b32 {s(sT1)}, {s(sRT)}, 3\ns_add_u32 {s(sT1)}, {s(sT1)}, {s(sG)}")
    P(f"s_cmp_eq_u32 {s(sT0)}, 2\ns_cbranch_scc1 L_lt2")
    P(f"s_lshl_b32 {s(sT1)}, {s(sT1)}, 1\ns_add_u32 {s(sT1)}, {s(sT1)}, {s(sT0)}\ns_mul_i32 {s(sT1)}, {s(sT1)}, 7168")
    P(f"buffer_load_dword {v(VX0)}, {v(S1)}, {s(SW2,4)}, {s(sT1)} offen")
    P("s_branch L_nlt")
    P("L_lt2:")
    P(f"v_and_b32 {v(S1)}, 4095, {v(S1)}\ns_lshl_b32 {s(sT1)}, {s(sT1)}, 12")
    P(f"buffer_load_dword {v(VX0)}, {v(S1)}, {s(SWO,4)}, {s(sT1)} offen")
    P(f"buffer_load_dword {v(VX1)}, {v(S1)}, {s(SB2,4)}, 0 offen")
    P.cond_end()
    for I in P.ins[-12:]:
        if I.kind == "vld": I.defs = []
    P("L_nlt:")
if OPT.get("touch", "3") == "2": S.blk[("e", int(OPT.get("tg", 54)))] = ltouch
S.post[31] += stamp_i("pass1")
fill = stats_final() + aug(ACC0, CSR, None) + phi_load(0, AX) + phi_load(1, T + 8) + [f"v_mul_f32 {v(LS)}, {f2u(LOG2E):#x}, {v(RSTD)}"]
fill += [f"v_cvt_pk_bf16_f32 {v(T+i)}, {v(ACC0+2*i)}, {v(ACC0+2*i+1)}" for i in range(8)]
fill += [mfma(ACC2, AX, T, "0"), mfma(ACC0, T + 8, T + 4, "0")]
S.spread(fill, 32, 40)
S.spread(softmax(ACC2, T + 8, LS) + softmax(ACC0, T, LS), 41, 64)
S.post[56] += [f"ds_write_b128 {v(VPK)}, {v(T+8,4)}", f"v_xor_b32 {v(VSTA)}, 16, {v(VPK)}"]
S.post[57] += [f"ds_write_b128 {v(VSTA)}, {v(T+12,4)}"]
S.post[62] += [f"ds_read_b128 {v(MC,4)}, {v(VCSA)} offset:1024"]
S.post[63] += stamp_i("sub1")
S.pre[64] += sum4(CS0, MC)
S.fill[64] += aug(ACC1, MC, None)[3:]
S.post[65] += [f"ds_write_b128 {v(VPK)}, {v(T,4)} offset:8192"]
S.post[66] += [f"ds_write_b128 {v(VSTA)}, {v(T+4,4)} offset:8192"]
fill = []
fill += [f"v_mul_f32 {v(ACC1+i)}, {v(ACC1+i)}, {v(RSTD)}" for i in range(16)]
fill += [f"v_cvt_pk_bf16_f32 {v(ACC1+i)}, {v(ACC1+2*i)}, {v(ACC1+2*i+1)}" for i in range(8)]
fill += [f"ds_write_b128 {v(VV)}, {v(ACC1,4)}", f"v_xor_b32 {v(VV)}, 32, {v(VV)}", f"ds_write_b128 {v(VV)}, {v(ACC1+4,4)}"]
S.spread(fill, 66, 70)
S.dmas(b_dma(0), 65, 3)
S.dmas(b_dma(1), 74, 4); S.dmas(b_dma(2) + b_dma(3) + b_dma(4), 86, 1)
def kvblock():
    P(".waitvm pz lgkm0")
    P("s_barrier")
    kvflag()
    stamp("kv0"); stamp("kv1")
    P(f"s_cmp_lt_u32 {s(sW)}, 4")
    P("s_cbranch_scc0 L_nkv")
    P.cond_begin("lo4")
    t = T + 16; u = S1
    P(f"v_bfe_u32 {v(u)}, {v(vL)}, 2, 2\nv_lshrrev_b32 {v(u+1)}, 5, {v(vL)}\nv_lshl_add_u32 {v(u)}, {v(u+1)}, 3, {v(u)}\nv_lshlrev_b32 {v(u)}, 6, {v(u)}")
    P(f"v_bfe_u32 {v(u+1)}, {v(vL)}, 1, 1\nv_lshl_add_u32 {v(u)}, {v(u+1)}, 3, {v(u)}\nv_bfe_u32 {v(u+1)}, {v(vL)}, 3, 1\nv_and_b32 {v(VSTA)}, 1, {v(vL)}")
    P(f"v_or_b32 {v(t)}, {s(sSH)}, {v(VSTA)}\nv_xor_b32 {v(t)}, {v(t)}, {v(u+1)}\nv_lshl_add_u32 {v(t)}, {v(t)}, 4, {v(u)}")
    P(f"s_lshr_b32 {s(sT0)}, {s(sW)}, 1\ns_lshl_b32 {s(sT0)}, {s(sT0)}, 13\ns_add_u32 {s(sT0)}, {s(sT0)}, {RA+32768}\nv_add_u32 {v(t)}, {s(sT0)}, {v(t)}\nv_xor_b32 {v(t+1)}, 32, {v(t)}")
    P(f"v_bfe_u32 {v(t+2)}, {v(vL)}, 4, 1\nv_lshl_add_u32 {v(t+2)}, {v(VSTA)}, 1, {v(t+2)}\nv_xor_b32 {v(t+2)}, {v(t+2)}, {v(u+1)}\nv_lshl_add_u32 {v(t+2)}, {v(t+2)}, 4, {v(u)}")
    P(f"s_lshl_b32 {s(sT0)}, {s(sW)}, 13\nv_add_u32 {v(t+2)}, {s(sT0)}, {v(t+2)}\nv_xor_b32 {v(t+3)}, 32, {v(t+2)}")
    P(f"v_and_b32 {v(u)}, 16, {v(vL)}\nv_cmp_eq_u32 vcc, 0, {v(u)}\nv_mov_b32 {v(u+1)}, {s(sONE)}")
    KB = [T, T + 8, ACC1, ACC1 + 8]
    def kr(J):
        for tt in range(2):
            P(f"ds_read_b64_tr_b16 {v(KB[J&3]+2*tt,2)}, {v(t+tt)} offset:{1024*J+256*tt}")
            P(f"ds_read_b64_tr_b16 {v(KB[J&3]+4+2*tt,2)}, {v(t+2+tt)} offset:{1024*J+256*tt}")
    kr(0); kr(1); kr(2)
    for J in range(8):
        for i in range(4): P(f"v_cndmask_b32 {v(KB[J&3]+i)}, {v(u+1)}, {v(KB[J&3]+i)}, vcc")
        if J + 3 < 8: kr(J + 3)
        P(mfma(ACC0, KB[J&3] + 4, KB[J&3], "0" if J == 0 else None))
    P(f"v_lshrrev_b32 {v(u)}, 5, {v(vL)}\nv_and_b32 {v(t+2)}, 15, {v(vL)}\nv_lshlrev_b32 {v(t)}, 4, {v(t+2)}\nv_lshl_add_u32 {v(t)}, {v(u)}, 8, {v(t)}\nv_add_u32 {v(t+1)}, 512, {v(t)}")
    P(f"v_lshlrev_b32 {v(u)}, 4, {v(u)}\nv_add_u32 {v(u)}, 1024, {v(u)}\nv_lshl_add_u32 {v(u)}, {v(t+2)}, 26, {v(u)}\nv_add_u32 {v(u+1)}, 32, {v(u)}")
    P(f"v_cndmask_b32 {v(t)}, {v(u)}, {v(t)}, vcc\nv_cndmask_b32 {v(t+1)}, {v(u+1)}, {v(t+1)}, vcc")
    for i in range(8): P(f"v_cvt_pk_bf16_f32 {v(T+i)}, {v(ACC0+2*i)}, {v(ACC0+2*i+1)}")
    stamp("kv1")
    for j in range(2): P(f"buffer_store_dwordx4 {v(T+4*j,4)}, {v(t+j)}, {s(SWS,4)}, {s(sKV)} offen sc1")
    P.cond_end()
    P("L_nkv:")
    stamp("kv2")
S.blk[70] = kvblock
S.pre[94] += ["s_waitcnt lgkmcnt(0)", "s_barrier"]
def kvflag():
    P(f"s_cmp_eq_u32 {s(sW)}, 7")
    P("s_cbranch_scc0 L_nkf")
    P.cond_begin("w0")
    P(f"s_lshl_b32 {s(sT0)}, {s(sG)}, 8\ns_lshl_b32 {s(sT1)}, {s(sRT)}, 2\ns_add_u32 {s(sT0)}, {s(sT0)}, {s(sT1)}\ns_add_u32 {s(sT0)}, {s(sT0)}, {WS_KVF}")
    P(f"v_mov_b32 {v(VFV)}, 1")
    P(f"buffer_store_dword {v(VFV)}, {v(VZ)}, {s(SWS,4)}, {s(sT0)} offen sc1")
    P.cond_end()
    P("L_nkf:")
def kvpoll():
    P(f"s_cmp_eq_u32 {s(sW)}, 7")
    P("s_cbranch_scc0 L_nkp")
    n0 = len(P.ins)
    P(f"s_lshl_b32 {s(sT2)}, {s(sG)}, 8\ns_add_u32 {s(sT2)}, {s(sT2)}, {WS_KVF}\ns_mov_b32 {s(sCNT)}, 0")
    P("s_branch L_spkv1")
    P("L_spkv:")
    P(f"s_buffer_load_dwordx16 s[20:35], {s(SWS,4)}, {s(sT2)} glc")
    P("L_spkv1:")
    P(f"s_add_u32 {s(sCNT)}, {s(sCNT)}, 1")
    P("s_waitcnt lgkmcnt(0)")
    for i in range(22, 36, 2): P(f"s_and_b64 s[20:21], s[20:21], s[{i}:{i+1}]")
    P("s_and_b32 s20, s20, s21")
    P("s_cbranch_scc1 L_nkp")
    P(f"s_cmp_gt_u32 {s(sCNT)}, {SPIN_MAX}")
    P("s_cbranch_scc1 L_nkp")
    P("s_sleep 1")
    P("s_branch L_spkv")
    for I in P.ins[n0:]:
        I.cond = "kvp"
        if I.kind == "smem": I.kind = "opaque"
    P("L_nkp:")
def kvreq():
    P(f"s_cmp_eq_u32 {s(sW)}, 7")
    P("s_cbranch_scc0 L_nkr")
    n0 = len(P.ins)
    P(f"s_lshl_b32 {s(sT2)}, {s(sG)}, 8\ns_add_u32 {s(sT2)}, {s(sT2)}, {WS_KVF}")
    P(f"s_buffer_load_dwordx16 s[20:35], {s(SWS,4)}, {s(sT2)} glc")
    for I in P.ins[n0:]:
        I.cond = "kvp"
        if I.kind == "smem": I.kind = "opaque"
    P("L_nkr:")
S.blk[87] = kvreq; S.blk[94] = kvpoll
S.post[94] += [f"ds_read_b128 {v(CSR,4)}, {v(VCSA)} offset:2048"] + phi_load(1, T + 8)
run_sched(S, [ACC0, ACC1, ACC2])
stamp("sub2")
PQ = WF
def Gq(r): return XF + 8 * r
Z = XF + 80; GA = XF + 64
VG, VGZ = S1, S2
P(f"s_mul_i32 {s(sT2)}, {s(sG)}, {16*KVP_SZ}\ns_lshr_b32 {s(sT0)}, {s(sW)}, 1\ns_mul_i32 {s(sT0)}, {s(sT0)}, 1152\ns_add_u32 {s(sT2)}, {s(sT2)}, {s(sT0)}\ns_add_u32 {s(sT2)}, {s(sT2)}, {WS_KVP}")
P(f"v_and_b32 {v(VGZ)}, 15, {v(vL)}\nv_mul_u32_u24 {v(VGZ)}, {KVP_SZ}, {v(VGZ)}\nv_and_b32 {v(VG)}, 16, {v(vL)}\nv_add_u32 {v(VGZ)}, {v(VGZ)}, {v(VG)}\ns_lshl_b32 {s(sT0)}, {s(sSH)}, 4\nv_add_u32 {v(VGZ)}, {s(sT0)}, {v(VGZ)}")
P(f"v_lshrrev_b32 {v(VG)}, 5, {v(vL)}\nv_mul_u32_u24 {v(VG)}, {8*KVP_SZ - 512}, {v(VG)}\nv_add_u32 {v(VG)}, {v(VG)}, {v(VL16)}\ns_lshl_b32 {s(sT0)}, {s(sSH)}, 8\nv_add_u32 {v(VG)}, {s(sT0)}, {v(VG)}")
gl = [[f"buffer_load_dwordx4 {v(Z,4)}, {v(VGZ)}, {s(SWS,4)}, {s(sT2)} offen offset:1024 sc1"]]
for r in range(8):
    gl.append(lines(f"s_add_u32 {s(sD1)}, {s(sRT)}, {r}\ns_and_b32 {s(sD1)}, {s(sD1)}, 7\ns_mul_i32 {s(sD1)}, {s(sD1)}, {KVP_SZ}\ns_add_u32 {s(sD1)}, {s(sD1)}, {s(sT2)}") +
              [f"buffer_load_dwordx4 {v(Gq(r),4)}, {v(VG)}, {s(SWS,4)}, {s(sD1)} offen sc1"])
P.add(aug(ACC2, CSR, None))
bd = sum([b_dma(kk) for kk in (5, 6, 7)], [])
GD = int(OPT.get("gd", 2))
for g_ in bd[:GD]: P.add(g_)
for i in range(8): P(f"v_cvt_pk_bf16_f32 {v(T+i)}, {v(ACC2+2*i)}, {v(ACC2+2*i+1)}")
P(mfma(ACC1, AX, T, "0"))
P(mfma(ACC2, T + 8, T + 4, "0"))
P.add(interleave(gl, softmax(ACC1, PQ, LS, True)))
stamp("qsm")
sneed(1, 1)
P(spoll(0))
P.add(interleave(bd[GD:], softmax(ACC2, PQ + 8, LS, True)))
stamp("sm2")
sneed(1, 0)
validate([Z + i for i in range(4)] + [Gq(r) + i for r in range(8) for i in range(4)], T + 16, sum(gl, []))
stamp("kvseen")
aj = sum([a_jobs(kk) for kk in range(8 if V2 else 4)], [])
n_o0 = len(P.ins)
P(f"v_lshrrev_b32 {v(T+1)}, 5, {v(vL)}")
P(f"v_bfe_u32 {v(T+2)}, {v(vL)}, 4, 1\nv_lshlrev_b32 {v(T+2)}, 9, {v(T+2)}\nv_lshl_add_u32 {v(T+2)}, {v(T+1)}, 3, {v(T+2)}")
P(f"s_lshl_b32 {s(sT0)}, {s(sW)}, 10\ns_add_u32 {s(sT0)}, {s(sT0)}, {L_KVB}\nv_add_u32 {v(T+2)}, {s(sT0)}, {v(T+2)}")
P(f"v_and_b32 {v(T+3)}, 15, {v(vL)}\nv_lshl_add_u32 {v(T+3)}, {v(T+3)}, 4, {v(T+2)}")
P(f"v_cmp_gt_u32 vcc, 32, {v(vL)}\ns_mov_b32 {s(sT0)}, 0x3f80\ns_mov_b32 {s(sT1)}, 0x3f800000")
P(f"v_cndmask_b32 {v(Z)}, {v(Z+2)}, {v(Z)}, vcc\nv_cndmask_b32 {v(Z+1)}, {v(Z+3)}, {v(Z+1)}, vcc")
P(f"v_lshlrev_b32 {v(Z+8)}, 16, {v(Z)}\nv_and_b32 {v(Z+9)}, 0xffff0000, {v(Z)}\nv_lshlrev_b32 {v(Z+10)}, 16, {v(Z+1)}\nv_and_b32 {v(Z+11)}, 0xffff0000, {v(Z+1)}")
for ror in (8, 4, 2, 1):
    for i in range(4): P(f"v_add_f32_dpp {v(Z+8+i)}, {v(Z+8+i)}, {v(Z+8+i)} row_ror:{ror} row_mask:0xf bank_mask:0xf")
P(f"v_cvt_pk_bf16_f32 {v(Z)}, {v(Z+8)}, {v(Z+9)}\nv_cvt_pk_bf16_f32 {v(Z+1)}, {v(Z+10)}, {v(Z+11)}")
P(f"ds_write_b64 {v(T+2)}, {v(Z,2)} offset:256")
def ga(i): return GA + (i & 3) + 8 * (i >> 2)
for i in range(4):
    P(f"v_lshlrev_b32 {v(ga(2*i))}, 16, {v(Gq(0)+i)}\nv_and_b32 {v(ga(2*i+1))}, 0xffff0000, {v(Gq(0)+i)}")
for r in range(1, 8):
    for i in range(4):
        P(f"v_dot2c_f32_bf16 {v(ga(2*i))}, {s(sT0)}, {v(Gq(r)+i)}\nv_dot2c_f32_bf16 {v(ga(2*i+1))}, {s(sT1)}, {v(Gq(r)+i)}")
for i in range(4): P(f"v_permlane32_swap_b32 {v(ga(i))}, {v(ga(i+4))}")
for i in range(4): P(f"v_add_f32 {v(ga(i))}, {v(ga(i))}, {v(ga(i+4))}")
P(f"v_cvt_pk_bf16_f32 {v(GA)}, {v(GA)}, {v(GA+1)}\nv_cvt_pk_bf16_f32 {v(GA+1)}, {v(GA+2)}, {v(GA+3)}")
P(f"ds_write_b64 {v(T+3)}, {v(GA,2)}")
stamp("gsum")
P(f"v_and_b32 {v(T)}, 31, {v(vL)}\nv_min_u32 {v(T)}, 16, {v(T)}\nv_and_b32 {v(T+1)}, 32, {v(vL)}\nv_add_u32 {v(T)}, {v(T)}, {v(T+1)}\nv_lshlrev_b32 {v(T)}, 4, {v(T)}")
P(f"s_lshl_b32 {s(sT0)}, {s(sHALF)}, 12\ns_add_u32 {s(sT0)}, {s(sT0)}, {L_KVB}\nv_add_u32 {v(T)}, {s(sT0)}, {v(T)}")
P(".waitvm b7 lgkm0")
P("s_barrier")
for i in range(4): P(f"ds_read_b128 {v(Gq(i),4)}, {v(T)} offset:{1024*i}")
P(mfma(ACC0, Gq(0), PQ, "0")); P(mfma(ACC1, Gq(2), PQ + 8, "0"))
P(mfma(ACC0, Gq(1), PQ + 4)); P(mfma(ACC1, Gq(3), PQ + 12))
body = P.ins[n_o0:]; del P.ins[n_o0:]
for i, g_ in enumerate(aj):
    P.add(g_); P.ins += body[len(body)*i//8: len(body)*(i+1)//8]
for hl, acc in enumerate((ACC0, ACC1)):
    P(f"v_add_f32 {v(acc+8)}, {f2u(1e-6):#x}, {v(acc+8)}\nv_rcp_f32 {v(acc+8)}, {v(acc+8)}")
    for i in range(8): P(f"v_mul_f32 {v(acc+i)}, {v(acc+i)}, {v(acc+8)}")
    for i in range(4): P(f"v_cvt_pk_bf16_f32 {v(T+4*hl+i)}, {v(acc+2*i)}, {v(acc+2*i+1)}")
    P(f"buffer_store_dwordx4 {v(T+4*hl,4)}, {v(VL16)}, {s(SWS,4)}, {s(sOS)} offen offset:{1024*hl} sc1 ; ost")
stamp("p1end")
if V2: phase2_v2((8,), False)
else: phase2(("B6", "B7"), "A4 A5 A6 B8 A7 B9 A8 B10 A9 B11 A10 B12 A11 B13 A12 B14 A13 B15 B16 B17 A14 A15 A16 A17")

P("L_ffn:")
P(".reset")
setup(True)
KAREA[:] = [RC, RA+2*Q, RA+3*Q, RB, RB+Q, RB+2*Q, RA, RA+Q, RB+3*Q]
MC = ACC2; CSF = ACC2 + 4
S = Sched(112)
common_sched(S, True, None, MC)
S.post[30] += [f"ds_read_b128 {v(CSF,4)}, {v(VCSA)}"]
S.post[40] += [f"s_add_u32 {s(sT2)}, {s(sH0)}, 4096", f"s_add_u32 {s(sK)}, {s(sH0)}, 8192"]
pzs = [[f"buffer_store_dwordx4 {v(PZ,4)}, {v(VL16)}, {s(SWS,4)}, {s(so)} offen offset:{off} sc1 ; tag=h1"]
       for so, off in ((sT2, 0), (sT2, 1024), (sK, 0), (sK, 1024), (sH3, 0))[:2 if OFFL else 5]]
for g_, G in zip(pzs, [int(x) for x in OPT.get("pz", "50,56,59,67,70").split(",")]): S.post[G] += g_
S.post[31] += stamp_i("pass1")
fill = stats_final() + aug(ACC0, CSF, BIAS)
fill += [f"v_mul_f32 {v(K1)}, {f2u(GC1):#x}, {v(RSTD)}", f"v_mul_f32 {v(K2)}, {v(RSTD)}, {v(RSTD)}",
         f"v_mul_f32 {v(K2)}, {v(K2)}, {v(RSTD)}", f"v_mul_f32 {v(K2)}, {f2u(GC2):#x}, {v(K2)}"]
S.spread(fill, 32, 39)
S.spread(gelu(ACC0, 16) + hstore(sH0, 2, "h1") + [f"s_add_u32 {s(sH0)}, {s(sH0)}, 4096"], 39, 64)
S.post[62] += [f"ds_read_b128 {v(CSF,4)}, {v(VCSA)} offset:1024"]
S.post[63] += stamp_i("sub1")
S.spread(aug(ACC1, CSF, BIAS + 1), 64, 66)
S.spread(gelu(ACC1, 16) + hstore(sH0, 2, "h2") + [f"s_add_u32 {s(sH0)}, {s(sH0)}, 4096"], 67, 96)
w3 = sum([w3quarter(q, 3584) for q in range(4)], [])
for g_, G in zip(w3 + b_dma(0), [int(x) for x in OPT.get("w3", "48,54,60,72,75,76").split(",")]): S.dma[G] += g_
S.dmas(b_dma(1), 78, 2); S.dmas(b_dma(2), 82, 2); S.dmas(b_dma(3), 86, 2); S.dmas(b_dma(4), 90, 2); S.dmas(b_dma(5), 98, 2)
S.pre[94] += [".waitvm w3 lgkm0", "s_barrier"]
S.post[94] += [f"ds_read_b128 {v(CSF,4)}, {v(VCSA)} offset:2048"]
S.post[95] += stamp_i("sub2")
if V2 and PX1:
    for j, G in zip((1, 2, 3), [int(x) for x in OPT.get("pxg", "91,93,102").split(",")]): S.post[G] += xoff(j, True) + [f"buffer_store_dwordx4 {v(PZ,4)}, {v(VL16)}, {s(SWS,4)}, {s(sT0)} offen sc1 ; tag=px"]
S.fill[96] += aug(ACC0, CSF, BIAS + 2)
if OFFL: S.post[106] += [f"s_sub_u32 {s(sT2)}, {s(sFO)}, 1024", f"s_buffer_load_dword {s(sK)}, {s(SWS,4)}, {s(sT2)} glc"]
S.spread(gelu(ACC0, 16), 98, 112)
aj = sum([a_jobs(kk) for kk in range(8 if V2 else 6)], []) + [[]] * 4
S.dmas(aj[:6], 106); aj = aj[2:]
for i in range(0, 16, 2): S.post[96 + i] += [m16(MC, SEL, WF + 4 * (i & 3), "0" if i == 0 else None)]
run_sched(S, [ACC0, ACC1, ACC0, ACC1])
t = T + 16
P(f"v_and_b32 {v(t)}, 31, {v(vL)}\ns_lshl_b32 {s(sT0)}, {s(sHALF)}, 4\nv_xor_b32 {v(t)}, {s(sT0)}, {v(t)}\nv_lshlrev_b32 {v(t)}, 4, {v(t)}\nv_add_u32 {v(t)}, {L_CS+3072}, {v(t)}")
P(f"v_add_u32 {v(t+1)}, {s(sW34)}, {v(VCSA)}")
P(f"ds_write_b32 {v(t+1)}, {v(MC)} offset:3072")
P.add(aj[4])
XO = 4096 if V2 else 1024
P(f"s_add_u32 {s(sT1)}, {s(sMB if V2 else sM0x)}, {KAREA[8]}\ns_xor_b32 {s(sT0)}, {s(sT1)}, 8192\nv_add_u32 {v(t+1)}, {s(sT0)}, {v(VL16)}\nv_add_u32 {v(AB)}, {s(sT1)}, {v(VL16)}")
P(f"ds_write_b128 {v(t+1)}, {v(ACC1+8,4)}\nds_write_b128 {v(t+1)}, {v(ACC1+12,4)} offset:{XO}")
P(".waitvm b5 lgkm0")
P("s_barrier")
stamp("sub3")
P(f"ds_read_b128 {v(CSF,4)}, {v(t)}")
P(f"ds_read_b128 {v(ACC0,4)}, {v(AB)}\nds_read_b128 {v(ACC0+4,4)}, {v(AB)} offset:{XO}")
P.add(aj[5])
P.add(aug(ACC1, CSF, BIAS + 3))
P.add(aj[6] + aj[7])
for i in range(0, 8, 2): P(f"v_pk_add_f32 {v(ACC1+i,2)}, {v(ACC1+i,2)}, {v(ACC0+i,2)}")
stamp("x7")
gt = gelu(ACC1, 8, True, out=BIAS); h3 = hstore(sH0, 2, "h3")
sneed(1, 1)
if OFFL: own_check()
P.add(aj[8] + gt[:10] + aj[9] + gt[10:20] + [h3[0]] + gt[20:30] + [h3[1]] + gt[30:] + hstore(sH3, 1, "h4", BIAS))
stamp("p1end")
if V2: phase2_v2((6, 7, 8), True)
else: phase2(("A4", "A5"), "B6 A6 B7 A7 B8 B9 A8 B10 A9 B11 A10 B12 A11 B13 A12 B14 A13 B15 B16 B17 A14 A15 A16 A17", True)

P("L_end:")
P("s_endpgm")

ins = P.ins
for I in ins:
    if "; nodef" in I.text: I.defs = []
if OPT.get("nodma"): ins = [I for I in ins if I.kind != "dma"]
if OPT.get("notr"): ins = [I for I in ins if not I.op.startswith("ds_read_b64_tr")]
if OPT.get("nofmac"): ins = [I for I in ins if not (I.op.startswith("v_fmac") or (I.op == "v_and_b32" and "0xffff0000" in I.text) or (I.op == "v_lshlrev_b32" and I.ops[1] == "16"))]
if OPT.get("nom16"): ins = [I for I in ins if "16x16x32" not in I.op]
if OPT.get("notrans"): ins = [I for I in ins if not I.op.startswith(("v_exp", "v_rcp"))]
if OPT.get("novalu"): ins = [I for I in ins if not I.op.startswith(("v_exp", "v_rcp", "v_mul_f32", "v_fma_f32", "v_cvt_pk", "v_max3", "v_add_f32"))]
if OPT.get("nopk"): ins = [I for I in ins if not I.op.startswith(("v_pk_", "v_dot2c"))]
if OPT.get("noval"): ins = [I for I in ins if not (I.op == "s_cbranch_vccnz" and "_slow" in I.text)]
if OPT.get("noa"): ins = [I for I in ins if not (I.kind == "vld" and "x4" in I.op and "sc1" in I.mods)]
if OPT.get("nob"): ins = [I for I in ins if not (I.kind == "dma" and (s(SW2,4) in I.text or s(SWO,4) in I.text))]
if OPT.get("anosc"):
    for I in ins:
        if I.kind == "vld" and "x4" in I.op: I.text = I.text.replace(" sc1", " " + OPT["anosc"].replace("0", ""))
if OPT.get("nopz"): ins = [I for I in ins if not (I.kind == "vst" and "x4" in I.op and (v(PZ,4) in I.text or v(AAUG,4) in I.text) and s(SWS,4) in I.text)]
if OPT.get("plain"):
    for I in ins:
        if I.kind == "vst" and "x4" in I.op and s(SWS,4) in I.text and ("tag=h" in I.text or "tag=po" in I.text or "; ost" in I.text): I.text = I.text.replace(" sc1", "")
if OPT.get("nohs"):
    ins = [I for I in ins if not (I.op.startswith("s_buffer_load") or I.text.startswith((".waitvm h", ".waitvm po", ".waitvm zf")) or (I.op == "s_branch" and ("L_sp" in I.text or "L_ncs" in I.text or "L_oc" in I.text) and "spkv1" not in I.text))]
    for I in ins:
        if I.text.startswith(".waitvm pz"): I.text = ".waitvm none lgkm0"
if OPT.get("nost"): ins = [I for I in ins if not (I.kind == "vst" and "x4" in I.op and "tag=h" in I.text)]
if OPT.get("nomfma"): ins = [I for I in ins if I.kind != "mfma"]
if STAMP:
    for I in ins:
        if I.op in ("s_memrealtime", "s_memtime"): I.kind = "salu"
ins = auto_wait(ins)
st = []
ins = hazards(ins, st)
hdr = open("parallel_sum__linear_kernel_hedgehog__dense_activation_gelu__prompt.s.ref").read().split("; Override")[0]
out = hdr + f"; @launch grid=(256,1,1) block=(512,1,1) lds={LDS_SIZE}\n"
out += f'.amdgcn_target "amdgcn-amd-amdhsa--gfx950"\n.text\n.globl {NAME}\n.p2align 8\n.type {NAME},@function\n{NAME}:\n'
out += render(ins)
out += f""".section .rodata,"a"
.p2align 6
.amdhsa_kernel {NAME}
  .amdhsa_next_free_vgpr 256
  .amdhsa_next_free_sgpr 102
  .amdhsa_accum_offset 256
  .amdhsa_group_segment_fixed_size 0
  .amdhsa_kernarg_size 96
  .amdhsa_user_sgpr_count 2
  .amdhsa_user_sgpr_kernarg_segment_ptr 1
  .amdhsa_system_sgpr_workgroup_id_x 1
.end_amdhsa_kernel
"""
open(sys.argv[1], "w").write(out)
print(f"instrs={sum(1 for I in ins if I.kind not in ('label','dir'))} nop-sites={len(st)} nop-states={sum(n for n,_ in st)}", file=sys.stderr)
if OPT.get("nops"):
    for n, tx in st: print(n, tx, file=sys.stderr)
```

```python
import sys, math, struct
from ir import *

NAME = "parallel_sum__linear_kernel_hedgehog__dense_activation_gelu__prompt_kernel"
OPT = dict(a.split("=") for a in sys.argv[2:] if "=" in a)
STAMP = int(OPT.get("stamp", 0))

def f2u(x): return struct.unpack("<I", struct.pack("<f", x))[0]
LOG2E = 1.4426950408889634
GC1 = -2.0 * LOG2E * math.sqrt(2.0 / math.pi)
GC2 = GC1 * 0.044715

HF_RB = 144 * 1024
WS_KVP = 0xA00000
KVP_SZ = 4608
WS_FLG = 0xC00000
WS_KVF = 0xC08000
WS_STAMP = 0xD00000
WS_X = 0x1000000
WS_SIZE = 0x1800000
V2 = OPT.get('p2', '2') == '2'
RA, RB, RC = 0, 65536, 131072
L_KVB = 147456
L_CS = 155648
L_ST = L_CS + 4096
L_WPHI = L_CS + 6144
LDS_SIZE = 163840
SPIN_MAX = 1 << 15

sW, sRT, sG, sM, sN = 3, 4, 5, 6, 7
SX, SW2, SWS, SWT, SAUX, SDBG, SWO, SOUT = 8, 12, 16, 20, 24, 28, 36, 40
sXo, sWo, sROT, sC1 = 32, 33, 34, 35
SB2 = 92
sFL, sOo, sM0x, sT0, sT1, sSIG, sONE, sFO, sHALF, sHo, sWq, sW3, sT2, sCNT, sW34, sT3 = range(44, 60)
sEX = 60
sH0, sH3, sM4, sK = 62, 63, 64, 65
sST = 66
sB2o, sBOo = 90, 91
sA0, sA1, sR4, sSH, sD0, sD1 = range(96, 102)
sOK = sSIG
sQ = [sXo, sWo, sROT, sC1]
sPL = 28
VCSA = 0; vL = 1
AX = 2; AW = 6; AB = 10; VZ, VFV = 12, 13
VX0, VX1, VW, VB, VW3 = 14, 15, 16, 17, 18
VSTA, S1, S2, CS0 = 19, 20, 21, 22
VW0 = 22
RSTD, STD, K1, K2, VL16 = 23, 24, 25, 26, 27
BAUG, AAUG, SEL, BIAS = 28, 32, 36, 40
T = 44
WF = 64
ACC0, ACC1, ACC2 = 80, 96, 112
XF = 128
VTD = 15
PZ = ACC2 + 8

P = Prog()
STI = dict(start=0, kernarg=1, it0=2, pass1=3, sub1=4, sub2=5, qsm=6, sub3=6, kvseen=7, x7=7, p1end=8, hseen=9, p2mm=10, end=11)
if OPT.get("sp") == "p2": STI = dict(start=0, p1end=1, k1=2, k3=3, k5=4, k7=5, k9=6, k11=7, k13=8, k15=9, p2mm=10, end=11)
if OPT.get("sp") == "att": STI = dict(start=0, sub1=1, kv0=2, kv1=3, kv2=4, sub2=5, qsm=6, kvseen=7, sm2=8, gsum=9, p1end=10, end=11)
if OPT.get("sp", "").startswith("l:"): STI = {n: i for i, n in enumerate(["start"] + OPT["sp"][2:].split(","))}
def stamp_i(name):
    if not STAMP or name not in STI: return []
    i = STI[name]
    return [f"{'s_memrealtime' if STAMP == 1 else 's_memtime'} {s(sST + 2*i, 2)} ; stamp {i} {name}"]
def stamp(name): P.add(stamp_i(name))

def mfma(d, a, b, c=None):
    return f"v_mfma_f32_32x32x16_bf16 {v(d,16)}, {v(a,4)}, {v(b,4)}, {v(d,16) if c is None else c}"
def m16(d, a, b, c=None):
    return f"v_mfma_f32_16x16x32_bf16 {v(d,4)}, {v(a,4)}, {v(b,4)}, {v(d,4) if c is None else c}"
def srd(base, nbytes):
    P(f"s_mov_b32 {s(base+2)}, {nbytes}\ns_mov_b32 {s(base+3)}, 0x20000")
def lines(t): return [l for l in t.split("\n") if l.strip()]

P("s_cmp_ge_u32 s2, 256")
P("s_cbranch_scc1 L_end")
stamp("start")
if OPT.get("exit0"): P("s_endpgm")
if OPT.get("cpf", "1") == "3":
    P(f"s_getpc_b64 {s(sEX,2)}")
    P("L_pc0:")
    P(f"v_subrev_u32 v3, 320, v0\nv_cmp_gt_u32 vcc, 16, v3\ns_lshr_b32 {s(sT0)}, s2, 3\ns_lshl_b32 {s(sT0)}, {s(sT0)}, 11")
    P("s_cbranch_vccz L_ncp0")
    P.cond_begin("cp0")
    P(f"v_and_b32 v3, 15, v3\nv_lshlrev_b32 v3, 7, v3\nv_add_u32 v3, {s(sT0)}, v3\nv_min_u32 v3, L_end-L_pc0, v3")
    P(f"global_load_dword v253, v3, {s(sEX,2)}")
    P.cond_end()
    P("L_ncp0:")
if OPT.get("cpf", "1") == "2":
    P(f"s_getpc_b64 {s(sEX,2)}")
    P("L_pc0:")
    P(f"v_lshlrev_b32 v3, 7, v0")
    P(f"v_min_u32 v3, L_end-L_pc0, v3")
    P(f"global_load_dword v253, v3, {s(sEX,2)}")
P(f"s_load_dwordx2 {s(SX,2)}, s[0:1], 0")
P(f"s_load_dwordx2 {s(SWS,2)}, s[0:1], 88")
P(f"s_load_dwordx2 {s(SDBG,2)}, s[0:1], 80")
P(f"s_load_dwordx2 {s(SW2,2)}, s[0:1], 56")
P(f"s_load_dwordx2 {s(SWO,2)}, s[0:1], 24")
P(f"s_load_dwordx2 {s(SOUT,2)}, s[0:1], 72")
P(f"s_load_dwordx2 {s(SB2,2)}, s[0:1], 64")
if OPT.get("stouch", "0") != "0":
    P(f"s_load_dwordx2 {s(sEX,2)}, s[0:1], 8")
    P(f"s_load_dwordx2 {s(sA0,2)}, s[0:1], 40")
P(f"v_lshrrev_b32 v2, 6, v0")
P(f"v_and_b32 {v(vL)}, 63, v0")
P(f"s_and_b32 {s(sT0)}, s2, 7")
P(f"s_lshr_b32 {s(sT1)}, s2, 3")
P(f"v_readfirstlane_b32 {s(sW)}, v2")
OWN = OPT.get("own") == "1"
if OWN:
    P(f"s_lshl_b32 {s(sRT)}, {s(sT0)}, 1\ns_and_b32 {s(sT2)}, {s(sT1)}, 1\ns_add_u32 {s(sRT)}, {s(sRT)}, {s(sT2)}\ns_lshr_b32 {s(sG)}, {s(sT1)}, 2")
else:
    P(f"s_lshr_b32 {s(sRT)}, {s(sT0)}, 2\ns_lshl_b32 {s(sRT)}, {s(sRT)}, 3\ns_and_b32 {s(sT2)}, {s(sT1)}, 7\ns_add_u32 {s(sRT)}, {s(sRT)}, {s(sT2)}")
    P(f"s_and_b32 {s(sG)}, {s(sT0)}, 3\ns_lshl_b32 {s(sG)}, {s(sG)}, 1\ns_lshr_b32 {s(sT2)}, {s(sT1)}, 4\ns_add_u32 {s(sG)}, {s(sG)}, {s(sT2)}")
P(f"s_lshl_b32 {s(sM)}, {s(sT0)}, 2\ns_and_b32 {s(sT2)}, {s(sT1)}, 3\ns_add_u32 {s(sM)}, {s(sM)}, {s(sT2)}")
P(f"s_lshr_b32 {s(sN)}, {s(sT1)}, 2")
if V2: P(f"s_and_b32 {s(sM)}, s2, 3\ns_lshr_b32 {s(sN)}, {s(sT1)}, 3")
srd(SX, 2097152)
P(f"s_lshl_b32 {s(sM0x)}, {s(sW)}, 11")
P(f"v_lshrrev_b32 v2, 3, {v(vL)}\nv_and_b32 v3, 7, {v(vL)}\nv_lshrrev_b32 v4, 4, {v(vL)}")
P(f"v_xor_b32 v5, v3, v4\nv_lshlrev_b32 v5, 4, v5\nv_lshl_add_u32 {v(VX0)}, v2, 10, v5")
P(f"v_xor_b32 v5, 64, {v(VX0)}\nv_add_u32 {v(VX1)}, {8192-1024}, v5")
P(f"v_and_b32 v4, 1, v4\nv_lshlrev_b32 v4, 2, v4\nv_xor_b32 v4, v3, v4\nv_lshlrev_b32 v4, 4, v4")
P(f"v_lshl_add_u32 {v(VB)}, v2, 10, v4")
P(f"s_lshl_b32 {s(sXo)}, {s(sRT)}, 17\ns_lshl_b32 {s(sT2)}, {s(sW)}, 14\ns_add_u32 {s(sXo)}, {s(sXo)}, {s(sT2)}")
P(f"s_lshr_b32 {s(sT2)}, {s(sT1)}, 3\ns_lshl_b32 {s(sT2)}, {s(sT2)}, 1\ns_add_u32 {s(sROT)}, {s(sRT)}, {s(sT2)}\ns_and_b32 {s(sROT)}, {s(sROT)}, {OPT.get('rm', 7)}")
if OWN: P(f"s_lshr_b32 {s(sT2)}, {s(sT1)}, 1\ns_lshl_b32 {s(sROT)}, {s(sT1)}, 2\ns_add_u32 {s(sROT)}, {s(sROT)}, {s(sT2)}\ns_add_u32 {s(sROT)}, {s(sROT)}, {s(sT0)}\ns_and_b32 {s(sROT)}, {s(sROT)}, 7")
if OPT.get("norot"): P(f"s_mov_b32 {s(sROT)}, 0")
P(f"s_lshl_b32 {s(sK)}, {s(sROT)}, 7")
P(f"v_add_u32 {v(VX0)}, {s(sXo)}, {v(VX0)}\nv_add_u32 {v(VX1)}, {s(sXo)}, {v(VX1)}")
P(f"s_lshr_b32 {s(sD0)}, {s(sM0x)}, 1")
P(f"s_bitcmp1_b32 {s(sT1)}, {1 if OWN else 3}")
P("s_cbranch_scc1 L_ffn")

def item1(it, pitch):
    q = it & 3
    return [[f"s_add_u32 m0, {s(sM0x)}, {RA+q*16384}", f"s_mul_i32 {s(sD1)}, {s(sK)}, {pitch//2}",
             f"buffer_load_dwordx4 {v(VX0)}, {s(SX,4)}, {s(sK)} offen lds"],
            [f"buffer_load_dwordx4 {v(VX1)}, {s(SX,4)}, {s(sK)} offen offset:1024 lds"],
            [f"s_add_u32 m0, {s(sD0)}, {RB+it*8192}", f"s_add_u32 {s(sK)}, {s(sK)}, 128",
             f"buffer_load_dwordx4 {v(VW0)}, {s(SWT,4)}, {s(sD1)} offen lds ; tag=it{it}",
             f"s_and_b32 {s(sK)}, {s(sK)}, 1023"]]
def wquarter(region, q, coloff, pitch, tag):
    return [[f"s_add_u32 m0, {s(sM0x)}, {region+q*16384}", f"s_add_u32 {s(sD1)}, {s(sQ[q])}, {coloff}",
             f"buffer_load_dwordx4 {v(VW)}, {s(SWT,4)}, {s(sD1)} offen lds"],
            [f"s_add_u32 {s(sD1)}, {s(sD1)}, {8*pitch-1024}",
             f"buffer_load_dwordx4 {v(VW)}, {s(SWT,4)}, {s(sD1)} offen offset:1024 lds ; tag={tag}"]]
def w3quarter(q, pitch):
    return [[f"s_lshr_b32 {s(sD1)}, {s(sM0x)}, 1", f"s_add_u32 m0, {s(sD1)}, {RA+q*8192}", "s_nop 0",
             f"buffer_load_dwordx4 {v(VW3)}, {s(SWT,4)}, {s(sQ[q])} offen lds ; tag=w3"]]

def spin(label, load, cmp):
    P(f"s_mov_b32 {s(sCNT)}, 0")
    P(f"{label}:")
    P(cmp)
    P(f"s_add_u32 {s(sCNT)}, {s(sCNT)}, 1")
    P(f"s_cbranch_vccz {label}_ok")
    P(f"s_cmp_gt_u32 {s(sCNT)}, {SPIN_MAX}")
    P(f"s_cbranch_scc1 {label}_ok")
    P("s_sleep 1")
    old = P._cond; P._cond = label
    P(load)
    P("s_waitcnt vmcnt(0)")
    P._cond = old
    P(f"s_branch {label}")
    P(f"{label}_ok:")

def gelu(acc, n, pk=False, t0=T, out=T):
    L = []
    for g4 in range(0, n, 4):
        t = t0 + 8 + (g4 & 4)
        a = [acc + g4 + i for i in range(4)]
        if pk:
            L += [f"v_pk_mul_f32 {v(t+i,2)}, {v(a[i],2)}, {v(a[i],2)}" for i in (0, 2)]
            L += [f"v_pk_fma_f32 {v(t+i,2)}, {v(t+i,2)}, {v(K2,2)}, {v(STD,2)} op_sel:[0,0,1] op_sel_hi:[1,0,1]" for i in (0, 2)]
            L += [f"v_pk_mul_f32 {v(t+i,2)}, {v(a[i],2)}, {v(t+i,2)}" for i in (0, 2)]
        else:
            L += [f"v_mul_f32 {v(t+i)}, {v(a[i])}, {v(a[i])}" for i in range(4)]
            L += [f"v_fma_f32 {v(t+i)}, {v(t+i)}, {v(K2)}, {v(K1)}" for i in range(4)]
            L += [f"v_mul_f32 {v(t+i)}, {v(a[i])}, {v(t+i)}" for i in range(4)]
        L += [f"v_exp_f32 {v(t+i)}, {v(t+i)}" for i in range(4)]
        if pk: L += [f"v_pk_fma_f32 {v(t+i,2)}, {v(t+i,2)}, {v(STD,2)}, {v(STD,2)} op_sel_hi:[1,0,0]" for i in (0, 2)]
        else: L += [f"v_fma_f32 {v(t+i)}, {v(t+i)}, {v(STD)}, {v(STD)}" for i in range(4)]
        L += [f"v_rcp_f32 {v(t+i)}, {v(t+i)}" for i in range(4)]
        if pk: L += [f"v_pk_mul_f32 {v(t+i,2)}, {v(a[i],2)}, {v(t+i,2)}" for i in (0, 2)]
        else: L += [f"v_mul_f32 {v(t+i)}, {v(a[i])}, {v(t+i)}" for i in range(4)]
        pr = out + (g4 >> 1)
        L += [f"v_cvt_pk_bf16_f32 {v(pr)}, {v(t)}, {v(t+1)}", f"v_cvt_pk_bf16_f32 {v(pr+1)}, {v(t+2)}, {v(t+3)}"]
    return L
def hstore(soff, n, tagn, src=T):
    return [f"buffer_store_dwordx4 {v(src+4*j,4)}, {v(VL16)}, {s(SWS,4)}, {s(soff)} offen offset:{1024*j} sc1 ; tag={tagn}" for j in range(n)]
assert K1 == STD + 1

def sum4(d, r):
    return [f"v_add_f32 {v(d)}, {v(r)}, {v(r+1)}", f"v_add_f32 {v(r+2)}, {v(r+2)}, {v(r+3)}", f"v_add_f32 {v(d)}, {v(d)}, {v(r+2)}"]

MS, U = T + 4, T + 16
CSR = T + 12
MC = AAUG

def stats_final():
    t = T + 16
    return [f"v_add_f32 {v(S1)}, {v(MS)}, {v(MS+2)}", f"v_add_f32 {v(S2)}, {v(MS+1)}, {v(MS+3)}",
          f"v_mul_f32 {v(S1)}, {f2u(-1.0/512):#x}, {v(S1)}",
          f"v_mul_f32 {v(t)}, {v(S1)}, {v(S1)}",
          f"v_fma_f32 {v(S2)}, {v(S2)}, {s(sT3)}, -{v(t)}",
          f"v_max_f32 {v(S2)}, 0, {v(S2)}",
          f"v_add_f32 {v(S2)}, {f2u(1e-5):#x}, {v(S2)}",
          f"v_rsq_f32 {v(RSTD)}, {v(S2)}",
          f"v_cvt_pk_bf16_f32 {v(t)}, {v(S1)}, {v(S1)}",
          f"v_mul_f32 {v(STD)}, {v(S2)}, {v(RSTD)}",
          f"v_and_b32 {v(t+1)}, 0xffff0000, {v(t)}",
          f"v_sub_f32 {v(t+1)}, {v(S1)}, {v(t+1)}",
          f"v_cvt_pk_bf16_f32 {v(BAUG)}, {v(S1)}, {v(t+1)}",
          f"v_cvt_pk_bf16_f32 {v(BAUG+1)}, {v(S1)}, {v(STD)}",
          f"v_and_b32 {v(t+1)}, 0xffff0000, {v(BAUG+1)}",
          f"v_sub_f32 {v(t+1)}, {v(STD)}, {v(t+1)}",
          f"v_cmp_gt_u32 vcc, 32, {v(vL)}",
          f"v_cvt_pk_bf16_f32 {v(BAUG+2)}, {v(t+1)}, 0",
          f"v_cndmask_b32 {v(BAUG)}, 0, {v(BAUG)}, vcc",
          f"v_cndmask_b32 {v(BAUG+1)}, 0, {v(BAUG+1)}, vcc",
          f"v_cndmask_b32 {v(BAUG+2)}, 0, {v(BAUG+2)}, vcc"]

def aug(acc, part, bias):
    t = T + 18; dst = AAUG
    L = sum4(CS0, part) + [f"v_cvt_pk_bf16_f32 {v(dst)}, {v(CS0)}, {v(CS0)}",
         f"v_and_b32 {v(t)}, 0xffff0000, {v(dst)}",
         f"v_sub_f32 {v(t)}, {v(CS0)}, {v(t)}"]
    if bias is None:
        L += [f"v_cvt_pk_bf16_f32 {v(dst+1)}, {v(t)}, 0"]
    else:
        L += [f"v_cvt_pk_bf16_f32 {v(t)}, {v(t)}, 0", f"v_mov_b32 {v(dst+2)}, {v(bias)}",
              f"v_lshl_or_b32 {v(dst+1)}, {v(bias)}, 16, {v(t)}"]
    return L + [mfma(acc, dst, BAUG)]

def flag(level, tag):
    return [f".waitvm {tag}", f"v_mov_b32 {v(VFV)}, {level}",
            f"buffer_store_dword {v(VFV)}, {v(VZ)}, {s(SWS,4)}, {s(sFO)} offen sc1"]

Q = 16384
KAREA = []
sSK = sM4 if V2 else sSH
sMB = sSIG
def rot_k(kk, dst):
    if kk < 8 and OPT.get("r8", "1") == "1": return [f"s_add_u32 {s(dst)}, {s(sR4)}, {kk}", f"s_and_b32 {s(dst)}, {s(dst)}, 7", f"s_add_u32 {s(dst)}, {s(dst)}, {s(sSK)}"]
    if kk < 12: return [f"s_add_u32 {s(dst)}, {s(sR4)}, {kk}", f"s_and_b32 {s(dst)}, {s(dst)}, 3", f"s_add_u32 {s(dst)}, {s(dst)}, {s(sSK)}"] + \
                       ([f"s_add_u32 {s(dst)}, {s(dst)}, {kk & ~3}"] if kk & ~3 else [])
    if kk < 14: return [f"s_mul_i32 {s(dst)}, {s(sSK)}, 6", f"s_sub_u32 {s(dst)}, {kk}, {s(dst)}"]
    return [f"s_add_u32 {s(dst)}, {s(sR4)}, {kk-14}", f"s_and_b32 {s(dst)}, {s(dst)}, 3"]
def b_dma(kk):
    if V2:
        G_ = []
        for pos in (2 * kk, 2 * kk + 1):
            sr, so = (SW2, sB2o) if pos < 14 else (SWO, sBOo)
            G_.append(rot_k(pos, sD0) + [f"s_lshl_b32 {s(sD0)}, {s(sD0)}, 14", f"s_add_u32 m0, {s(sMB)}, {KAREA[kk] + (pos & 1) * 4096}", f"s_add_u32 {s(sD0)}, {s(sD0)}, {s(so)}",
                      f"buffer_load_dwordx4 {v(VB)}, {s(sr,4)}, {s(sD0)} offen lds ; tag=b{kk}"])
        return G_
    slot = kk % 9
    m0 = f"s_add_u32 m0, {s(sM0x)}, {KAREA[slot]}"
    sr, so = (SW2, sB2o) if kk < 14 else (SWO, sBOo)
    return [rot_k(kk, sD0) + [f"s_lshl_b32 {s(sD0)}, {s(sD0)}, 14", m0, f"s_add_u32 {s(sD0)}, {s(sD0)}, {s(so)}",
             f"buffer_load_dwordx4 {v(VB)}, {s(sr,4)}, {s(sD0)} offen lds"],
            [f"s_add_u32 {s(sD0)}, {s(sD0)}, {8192 - 1024}",
             f"buffer_load_dwordx4 {v(VB)}, {s(sr,4)}, {s(sD0)} offen offset:1024 lds ; tag=b{kk}"]]

def setup(ffn):
    pitch = 3584 if ffn else 3072
    tp = "f" if ffn else "a"
    P(f"s_load_dwordx2 {s(SWT,2)}, s[0:1], {40 if ffn else 8}")
    P(f"s_load_dwordx2 {s(SAUX,2)}, s[0:1], {48 if ffn else 16}")
    srd(SWT, 1835008 if ffn else 1572864)
    P(f"v_mul_u32_u24 {v(VW)}, {pitch}, v2\nv_add_u32 {v(VW)}, {v(VW)}, v4")
    if ffn:
        P(f"s_mul_i32 {s(sT0)}, {s(sG)}, 448\ns_and_b32 {s(sT1)}, {s(sG)}, 1\ns_lshl_b32 {s(sT2)}, {s(sT1)}, 6\ns_add_u32 {s(sWq)}, {s(sT0)}, {s(sT2)}")
        P(f"s_mul_i32 {s(sWo)}, {s(sW)}, {8*pitch}\ns_add_u32 {s(sWo)}, {s(sWo)}, {s(sWq)}")
    else:
        P(f"s_lshl_b32 {s(sWq)}, {s(sG)}, 7")
        P(f"s_mul_i32 {s(sWo)}, {s(sW)}, {8*pitch}\ns_add_u32 {s(sWo)}, {s(sWo)}, {s(sWq)}\ns_add_u32 {s(sWo)}, {s(sWo)}, 1024")
    P(f"v_add_u32 {v(VW0)}, {s(sWo)}, {v(VW)}")
    P("s_waitcnt lgkmcnt(0)")
    stamp("kernarg")
    if STAMP and "slow" in STI: P(f"s_mov_b32 {s(sST+2*STI['slow'])}, {s(sST)}")
    for g_ in item1(0, pitch): P.add(g_)
    srd(SWS, WS_SIZE); srd(SDBG, 256); srd(SW2, 1835008); srd(SWO, 524288); srd(SOUT, 2097152); srd(SB2, 1024); srd(SAUX, 3584 if ffn else 16384)
    P(f"v_lshlrev_b32 {v(VL16)}, 4, {v(vL)}")
    P(f"s_lshr_b32 {s(sHALF)}, {s(sW)}, 2")
    P(f"s_and_b32 {s(sW34)}, {s(sW)}, 3\ns_xor_b32 {s(sSIG)}, {s(sW34)}, {s(sHALF)}")
    if not ffn:
        for i in range(4): P(f"v_mov_b32 {v(T+i)}, 0")
        P(f"s_lshl_b32 {s(sT0)}, {s(sW)}, 8\ns_add_u32 {s(sT0)}, {s(sT0)}, s2\ns_sub_u32 {s(sT0)}, {s(sT0)}, 256\ns_cmp_lt_u32 {s(sT0)}, 8")
        P(f"s_cbranch_scc0 L_nzero")
        P.cond_begin("zw")
        P(f"s_lshl_b32 {s(sT0)}, s2, 12\ns_add_u32 {s(sT0)}, {s(sT0)}, {WS_FLG}")
        for i in range(4): P(f"buffer_store_dwordx4 {v(T,4)}, {v(VL16)}, {s(SWS,4)}, {s(sT0)} offen offset:{1024*i} sc1")
        P(f"s_lshl_b32 {s(sT0)}, s2, 8\ns_add_u32 {s(sT0)}, {s(sT0)}, {WS_KVF}\nv_lshlrev_b32 v3, 2, {v(vL)}")
        P(f"buffer_store_dword {v(T)}, v3, {s(SWS,4)}, {s(sT0)} offen sc1 ; tag=zf")
        P.cond_end()
        P(f"L_nzero:")
    if OPT.get("touch", "3") == "1":
        P(f"s_cmp_lt_u32 {s(sW)}, 6")
        P(f"s_cbranch_scc1 L_nt{tp}")
        P.cond_begin("w67")
        P(f"v_lshlrev_b32 v3, 7, {v(vL)}\ns_mul_i32 {s(sT0)}, s2, 7168\ns_lshl_b32 {s(sT1)}, s2, 11")
        P(f"s_cmp_eq_u32 {s(sW)}, 6\ns_cbranch_scc0 L_nta{tp}")
        P(f"buffer_load_dword v255, v3, {s(SW2,4)}, {s(sT0)} offen")
        P(f"s_branch L_nt{tp}")
        P(f"L_nta{tp}:")
        P(f"v_and_b32 v3, 2047, v3")
        P(f"buffer_load_dword v255, v3, {s(SWO,4)}, {s(sT1)} offen")
        P(f"buffer_load_dword v254, v3, {s(SB2,4)}, 0 offen")
        P.cond_end()
        P(f"L_nt{tp}:")
    def wtouch():
        P(f"s_sub_u32 {s(sT0)}, {s(sW)}, 2\ns_cmp_lt_u32 {s(sT0)}, {3 if ffn else 2}")
        P(f"s_cbranch_scc0 L_nw{tp}")
        P.cond_begin("w234")
        P(f"v_mul_u32_u24 v3, {pitch}, {v(vL)}\ns_mul_i32 {s(sT1)}, {s(sROT)}, {64*pitch}\ns_add_u32 {s(sT1)}, {s(sT1)}, {s(sWq)}")
        if ffn:
            P(f"s_lshl_b32 {s(sT2)}, {s(sT0)}, 7\ns_add_u32 {s(sT1)}, {s(sT1)}, {s(sT2)}\ns_add_u32 {s(sT1)}, {s(sT1)}, 128")
            P(f"s_lshr_b32 {s(sT0)}, {s(sT0)}, 1\ns_and_b32 {s(sT0)}, {s(sT0)}, {s(sG)}\ns_mul_i32 {s(sT0)}, {s(sT0)}, 448\ns_sub_u32 {s(sT1)}, {s(sT1)}, {s(sT0)}")
        else:
            P(f"s_xor_b32 {s(sT0)}, {s(sT0)}, 1\ns_lshl_b32 {s(sT0)}, {s(sT0)}, 11\ns_add_u32 {s(sT1)}, {s(sT1)}, {s(sT0)}")
        P(f"buffer_load_dword v250, v3, {s(SWT,4)}, {s(sT1)} offen")
        P.cond_end()
        P(f"L_nw{tp}:")
    if OPT.get("wt", "0") == "1": wtouch()
    if OPT.get("cpf", "1") == "1":
        P(f"s_cmp_eq_u32 {s(sW)}, 5")
        P(f"s_cbranch_scc0 L_ncp{tp}")
        P.cond_begin("w5")
        P(f"s_getpc_b64 {s(sEX,2)}")
        P(f"L_pc{tp}:")
        P(f"s_sub_u32 {s(sEX)}, {s(sEX)}, L_pc{tp}-{NAME}\ns_subb_u32 {s(sEX+1)}, {s(sEX+1)}, 0")
        P(f"s_lshr_b32 {s(sT0)}, s2, 3\ns_lshl_b32 {s(sT0)}, {s(sT0)}, 11\nv_and_b32 v3, 15, {v(vL)}\nv_lshlrev_b32 v3, 7, v3\nv_add_u32 v3, {s(sT0)}, v3")
        P(f"v_min_u32 v3, L_end-{NAME}, v3")
        P(f"global_load_dword v253, v3, {s(sEX,2)}")
        P.cond_end()
        P(f"L_ncp{tp}:")
    if OPT.get("pt", "1") == "1":
        P(f"s_cmp_eq_u32 {s(sW)}, 4")
        P(f"s_cbranch_scc0 L_npt{tp}")
        n0 = len(P.ins)
        P(f"v_lshlrev_b32 v3, 21, {v(vL)}")
        P(f"buffer_load_dword v252, v3, {s(SWS,4)}, 0 offen")
        for i_, sr_ in enumerate((SOUT, SW2, SWO, SB2)): P(f"buffer_load_dword v{248+i_}, v3, {s(sr_,4)}, 0 offen")
        for I in P.ins[n0:]: I.cond = "w4"
        P(f"L_npt{tp}:")
    def stouch():
        n0 = len(P.ins)
        P(f"s_lshl_b32 {s(sT0)}, s2, 3\ns_add_u32 {s(sT0)}, {s(sT0)}, {s(sW)}\ns_mul_i32 {s(sT1)}, {s(sT0)}, 768\ns_mul_i32 {s(sT0)}, {s(sT0)}, 896")
        for i in range(6): P(f"s_load_dword {s(sCNT)}, {s(sEX,2)}, {s(sT1)} offset:{128*i}")
        for i in range(7): P(f"s_load_dword {s(sCNT)}, {s(sA0,2)}, {s(sT0)} offset:{128*i}")
    if OPT.get("stouch", "0") == "1": stouch()
    late1 = OPT.get("late1", "1") == "1"
    if not late1:
        for g_ in item1(1, pitch): P.add(g_)
    P(f"s_lshl_b32 {s(sT0)}, {s(sRT)}, 4\ns_add_u32 {s(sT0)}, {s(sT0)}, {s(sG)}\ns_lshl_b32 {s(sT0)}, {s(sT0)}, 7")
    P(f"s_and_b32 {s(sT1)}, {s(sW)}, 2\ns_lshl_b32 {s(sT1)}, {s(sT1)}, 3\ns_add_u32 {s(sT0)}, {s(sT0)}, {s(sT1)}\ns_and_b32 {s(sT1)}, {s(sW)}, 1\ns_lshl_b32 {s(sT1)}, {s(sT1)}, 2\ns_add_u32 {s(sT0)}, {s(sT0)}, {s(sT1)}\ns_lshl_b32 {s(sT1)}, {s(sHALF)}, 3\ns_add_u32 {s(sT0)}, {s(sT0)}, {s(sT1)}")
    P(f"s_add_u32 {s(sFO)}, {s(sT0)}, {WS_FLG + (1024 if ffn else 0)}")
    P(f"s_lshl_b32 {s(sT0)}, {s(sRT)}, 2\ns_add_u32 {s(sT0)}, {s(sT0)}, {s(sW34)}\ns_mul_i32 {s(sHo)}, {s(sT0)}, {HF_RB}")
    if ffn:
        P(f"v_and_b32 v5, 31, {v(vL)}\nv_lshlrev_b32 v5, 1, v5")
        P(f"s_lshl_b32 {s(sT0)}, {s(sHALF)}, 6\ns_add_u32 {s(sT0)}, {s(sT0)}, {s(sWq)}")
        for i in range(3): P(f"buffer_load_ushort {v(BIAS+i)}, v5, {s(SAUX,4)}, {s(sT0)} offen offset:{128*i}")
        P(f"s_lshl_b32 {s(sT0)}, {s(sT0)}, 5\ns_add_u32 {s(sH0)}, {s(sHo)}, {s(sT0)}")
        P(f"s_mul_i32 {s(sW3)}, {s(sG)}, 448\ns_add_u32 {s(sT0)}, {s(sW3)}, 384\ns_bitcmp1_b32 {s(sG)}, 0\ns_cselect_b32 {s(sW3)}, {s(sW3)}, {s(sT0)}")
        P(f"s_lshl_b32 {s(sT0)}, {s(sHALF)}, 5\nv_xor_b32 v5, {s(sT0)}, v5")
        P(f"buffer_load_ushort {v(BIAS+3)}, v5, {s(SAUX,4)}, {s(sW3)} offen")
        P(f"s_add_u32 {s(sT0)}, {s(sT0)}, {s(sW3)}\ns_lshl_b32 {s(sT0)}, {s(sT0)}, 5\ns_add_u32 {s(sH3)}, {s(sHo)}, {s(sT0)}")
        P(f"v_lshrrev_b32 v2, 2, {v(vL)}\nv_and_b32 v4, 3, {v(vL)}\nv_lshlrev_b32 v4, 4, v4\nv_mul_u32_u24 {v(VW3)}, {pitch}, v2\nv_add_u32 {v(VW3)}, {v(VW3)}, v4")
    else:
        P(f"s_cmp_lt_u32 {s(sW)}, 2")
        P(f"s_cbranch_scc0 L_nphi")
        P.cond_begin("w01")
        P(f"s_lshl_b32 {s(sT0)}, {s(sG)}, 11\ns_lshl_b32 {s(sT1)}, {s(sW)}, 10\ns_add_u32 {s(sT0)}, {s(sT0)}, {s(sT1)}\ns_add_u32 m0, {s(sT1)}, {L_WPHI}\ns_nop 0")
        P(f"buffer_load_dwordx4 {v(VL16)}, {s(SAUX,4)}, {s(sT0)} offen lds")
        P.cond_end()
        P("L_nphi:")
    P(f"s_mul_i32 {s(sT0)}, {s(sW34)}, {16*pitch}\ns_add_u32 {s(sWq)}, {s(sWq)}, {s(sT0)}")
    P(f"v_add_u32 {v(VW)}, {s(sWq)}, {v(VW)}")
    if ffn: P(f"s_add_u32 {s(sW3)}, {s(sW3)}, {s(sT0)}\nv_add_u32 {v(VW3)}, {s(sW3)}, {v(VW3)}")
    P(f"s_add_u32 {s(sT0)}, {s(sROT)}, {s(sHALF)}")
    for q in range(4):
        P(f"s_add_u32 {s(sT1)}, {s(sT0)}, {2*q}\ns_and_b32 {s(sT1)}, {s(sT1)}, 7\ns_mul_i32 {s(sQ[q])}, {s(sT1)}, {64*pitch}")
    P(f"s_mov_b32 {s(sT3)}, {f2u(1.0/512):#x}\ns_mov_b32 {s(sONE)}, 0x3f803f80")
    P(f"v_bfe_u32 {v(T)}, {v(vL)}, 2, 2\nv_lshrrev_b32 {v(T+1)}, 5, {v(vL)}")
    P(f"v_bfe_u32 {v(T+2)}, {v(vL)}, 4, 1\nv_lshlrev_b32 {v(T+2)}, 5, {v(T+2)}\nv_and_b32 {v(T+3)}, 3, {v(vL)}\nv_lshl_add_u32 {v(T+2)}, {v(T+3)}, 3, {v(T+2)}")
    P(f"v_and_b32 {v(T+4)}, 31, {v(vL)}\nv_bfe_u32 {v(T+5)}, {v(vL)}, 1, 3\nv_xor_b32 {v(T+5)}, {v(T+5)}, {v(T+1)}")
    P(f"s_lshl_b32 {s(sT0)}, {s(sW34)}, 12\nv_lshlrev_b32 {v(T+8)}, 7, {v(T+4)}\nv_add_u32 {v(T+8)}, {s(sT0)}, {v(T+8)}")
    P(f"v_lshl_add_u32 {v(T+9)}, {v(T+1)}, 3, {v(T)}\nv_lshl_add_u32 {v(T+10)}, {v(T+9)}, 7, {v(T+2)}\nv_lshrrev_b32 {v(T+7)}, 1, {v(T)}\nv_xor_b32 {v(T+7)}, {s(sHALF)}, {v(T+7)}\nv_lshl_add_u32 {v(T+10)}, {v(T+7)}, 6, {v(T+10)}")
    for p in range(4):
        P(f"s_xor_b32 {s(sT0)}, {s(sSIG)}, {p}\ns_lshl_b32 {s(sT1)}, {s(sT0)}, 1\nv_xor_b32 {v(T+6)}, {s(sT1)}, {v(T+5)}\nv_lshl_add_u32 {v(AX+p)}, {v(T+6)}, 4, {v(T+8)}")
        P(f"s_lshl_b32 {s(sT1)}, {s(sT0)}, 11\ns_add_u32 {s(sT1)}, {s(sT1)}, {RB}\nv_add_u32 {v(AW+p)}, {s(sT1)}, {v(T+10)}")
    if ffn:
        P(f"s_lshl_b32 {s(sT0)}, {s(sHALF)}, 5\nv_xor_b32 {v(T+7)}, {s(sT0)}, {v(T+2)}\nv_lshl_add_u32 {v(T+7)}, {v(T+9)}, 6, {v(T+7)}")
        for i, p in enumerate((0, 2)):
            P(f"s_xor_b32 {s(sT0)}, {s(sSIG)}, {p}\ns_lshl_b32 {s(sT0)}, {s(sT0)}, 10\nv_add_u32 {v(AB+i)}, {s(sT0)}, {v(T+7)}")
    P(f"v_lshlrev_b32 {v(T+4)}, 4, {v(T+4)}")
    P(f"s_lshl_b32 {s(sT0)}, {s(sHALF)}, 9\ns_add_u32 {s(sT0)}, {s(sT0)}, {L_CS}\nv_add_u32 {v(VCSA)}, {s(sT0)}, {v(T+4)}")
    P(f"s_lshl_b32 {s(sT0)}, {s(sW34)}, 9\ns_add_u32 {s(sT0)}, {s(sT0)}, {L_ST}\nv_add_u32 {v(VSTA)}, {s(sT0)}, {v(T+4)}")
    P(f"v_lshrrev_b32 {v(T+4)}, 2, {v(vL)}\nv_xor_b32 {v(T+4)}, {v(T+4)}, {v(vL)}\nv_and_b32 {v(T+4)}, 4, {v(T+4)}\nv_cmp_eq_u32 vcc, 0, {v(T+4)}\nv_mov_b32 {v(T+4)}, {s(sONE)}")
    for i in range(4): P(f"v_mov_b32 {v(PZ+i)}, -1")
    for r in (VZ, BAUG+3, AAUG+2, AAUG+3): P(f"v_mov_b32 {v(r)}, 0")
    for i in range(4): P(f"v_cndmask_b32 {v(SEL+i)}, 0, {v(T+4)}, vcc")
    P(f"s_lshl_b32 {s(sW34)}, {s(sW34)}, 2")
    if late1:
        for g_ in item1(1, pitch): P.add(g_)
    if OPT.get("stouch", "0") == "2": stouch()
    if V2:
        P(f"v_lshrrev_b32 {v(T)}, 4, {v(vL)}\nv_lshlrev_b32 {v(T+1)}, 2, {v(T)}\nv_and_b32 {v(T+2)}, 15, {v(vL)}\nv_xor_b32 {v(T+2)}, {v(T+2)}, {v(T+1)}\nv_lshlrev_b32 {v(T+2)}, 4, {v(T+2)}\nv_lshl_add_u32 {v(VB)}, {v(T)}, 10, {v(T+2)}")
        P(f"s_lshl_b32 {s(sT2)}, {s(sM)}, 1\ns_add_u32 {s(sT2)}, {s(sT2)}, {s(sHALF)}")
        P(f"s_lshl_b32 {s(sT0)}, {s(sN)}, 8\ns_lshl_b32 {s(sT1)}, {s(sW34)}, 10\ns_add_u32 {s(sT1)}, {s(sT1)}, {s(sT0)}")
        P(f"s_mul_i32 {s(sB2o)}, {s(sT2)}, {224*1024}\ns_add_u32 {s(sB2o)}, {s(sB2o)}, {s(sT1)}\ns_lshl_b32 {s(sBOo)}, {s(sT2)}, 16\ns_add_u32 {s(sBOo)}, {s(sBOo)}, {s(sT1)}")
        P(f"s_mul_i32 {s(sA0)}, {s(sT2)}, {14*1024}\ns_add_u32 {s(sA0)}, {s(sA0)}, {s(sHo)}\ns_lshl_b32 {s(sA1)}, {s(sT2)}, 12\ns_add_u32 {s(sA1)}, {s(sA1)}, {s(sHo)}\ns_add_u32 {s(sA1)}, {s(sA1)}, {112*1024}")
        P(f"s_lshl_b32 {s(sT1)}, {s(sRT)}, 4\ns_add_u32 {s(sT1)}, {s(sT1)}, {s(sT2)}\ns_lshl_b32 {s(sT1)}, {s(sT1)}, 7\ns_and_b32 {s(sFL)}, {s(sW)}, 2\ns_lshl_b32 {s(sFL)}, {s(sFL)}, 3\ns_add_u32 {s(sFL)}, {s(sFL)}, {s(sT1)}\ns_add_u32 {s(sFL)}, {s(sFL)}, {WS_FLG}")
        P(f"s_mul_i32 {s(sR4)}, {s(sN)}, 5\ns_lshr_b32 {s(sR4)}, {s(sR4)}, 1\ns_add_u32 {s(sR4)}, {s(sR4)}, {s(sRT)}\ns_and_b32 {s(sR4)}, {s(sR4)}, 7")
        P(f"s_lshl_b32 {s(sT2)}, {s(sT2)}, 5\ns_add_u32 {s(sN)}, {s(sT0)}, {s(sT2)}")
        P(f"s_lshl_b32 {s(sOo)}, {s(sRT)}, 17\ns_lshl_b32 {s(sT1)}, {s(sW34)}, 13\ns_add_u32 {s(sOo)}, {s(sOo)}, {s(sT1)}\ns_add_u32 {s(sOo)}, {s(sOo)}, {s(sN)}")
        P(f"s_and_b32 {s(sSH)}, {s(sW)}, 1\ns_lshl_b32 {s(sSH)}, {s(sSH)}, 1\ns_lshl_b32 {s(sSK)}, {s(sHALF)}, 1")
        P(f"s_lshl_b32 {s(sMB)}, {s(sHALF)}, 13\ns_lshl_b32 {s(sT1)}, {s(sW34)}, 8\ns_add_u32 {s(sMB)}, {s(sMB)}, {s(sT1)}")
        return
    P(f"s_lshl_b32 {s(sT0)}, {s(sN)}, 7\ns_mul_i32 {s(sB2o)}, {s(sW)}, {224*1024}\ns_add_u32 {s(sB2o)}, {s(sB2o)}, {s(sT0)}")
    P(f"s_lshl_b32 {s(sBOo)}, {s(sW)}, 16\ns_add_u32 {s(sBOo)}, {s(sBOo)}, {s(sT0)}\ns_lshl_b32 {s(sM4)}, {s(sW)}, 12")
    P(f"s_lshl_b32 {s(sOo)}, {s(sM)}, 16\ns_lshl_b32 {s(sT1)}, {s(sW)}, 13\ns_add_u32 {s(sOo)}, {s(sOo)}, {s(sT1)}\ns_add_u32 {s(sOo)}, {s(sOo)}, {s(sT0)}")
    if OPT.get("r8", "1") == "1":
        P(f"s_mul_i32 {s(sT0)}, {s(sM)}, 5\ns_lshr_b32 {s(sT0)}, {s(sT0)}, 1\ns_sub_u32 {s(sN)}, {s(sN)}, {s(sM)}\ns_add_u32 {s(sR4)}, {s(sN)}, {s(sT0)}\ns_add_u32 {s(sN)}, {s(sN)}, {s(sM)}")
    else: P(f"s_mov_b32 {s(sR4)}, {s(sN)}")
    P(f"s_add_u32 {s(sR4)}, {s(sM)}, {s(sR4)}\ns_and_b32 {s(sR4)}, {s(sR4)}, {0 if OPT.get('norot') else 7}\ns_and_b32 {s(sSH)}, {s(sW)}, 1\ns_lshl_b32 {s(sSH)}, {s(sSH)}, 1")
    P(f"s_lshr_b32 {s(sT0)}, {s(sM)}, 1\ns_lshl_b32 {s(sT0)}, {s(sT0)}, 4\ns_add_u32 {s(sT0)}, {s(sT0)}, {s(sW)}\ns_lshl_b32 {s(sT0)}, {s(sT0)}, 7")
    P(f"s_and_b32 {s(sT1)}, {s(sM)}, 1\ns_lshl_b32 {s(sT1)}, {s(sT1)}, 4\ns_add_u32 {s(sT0)}, {s(sT0)}, {s(sT1)}\ns_add_u32 {s(sFL)}, {s(sT0)}, {WS_FLG}")
    P(f"s_mul_i32 {s(sA0)}, {s(sM)}, {2*HF_RB}\ns_mul_i32 {s(sT0)}, {s(sW)}, {14*1024}\ns_add_u32 {s(sA1)}, {s(sA0)}, {s(sM4)}\ns_add_u32 {s(sA1)}, {s(sA1)}, {112*1024}\ns_add_u32 {s(sA0)}, {s(sA0)}, {s(sT0)}")

class Sched:
    def __init__(self, n):
        self.n = n; self.pre = [[] for _ in range(n)]; self.post = [[] for _ in range(n)]
        self.fill = [[] for _ in range(n)]; self.dma = [[] for _ in range(n)]; self.blk = {}
    def spread(self, lst, a, b):
        for i in range(a, b): self.fill[i] += lst[len(lst)*(i-a)//(b-a): len(lst)*(i+1-a)//(b-a)]
    def dmas(self, groups, a, step=1):
        for i, g in enumerate(groups): self.dma[a + i*step] += g

def rd(G):
    b = WF + 4 * (G & 3)
    if G < 96:
        ks = G & 31; st, p = ks >> 2, ks & 3
        L = [f"ds_read_b128 {v(XF+4*ks,4)}, {v(AX+p)} offset:{RA+(st&3)*16384}"] if G < 32 else []
        if ks < 4 and G >= 32: L.append(f"v_xor_b32 {v(AW+p)}, {RB}, {v(AW+p)}")
        return L + [f"ds_read_b64_tr_b16 {v(b+2*t,2)}, {v(AW+p)} offset:{8192*st+512*t}" for t in range(2)]
    i = G - 96
    return [f"ds_read_b64_tr_b16 {v(b+2*t,2)}, {v(AB+(i&1))} offset:{4096*(i>>1)+256*t}" for t in range(2)]
def xq(G): return XF + 4 * (G & 31) if G < 96 else XF + 8 * (G - 96)

def common_sched(S, ffn, accs, MC):
    pitch = 3584 if ffn else 3072
    tp = "f" if ffn else "a"
    c1, c2 = (128, 256) if ffn else (2048, 0)
    S.dmas(item1(2, pitch), 0, 0)
    for st in range(8):
        G = 4 * st + 2
        S.pre[G] += [f".waitvm it{st+1}" if st < 7 else ".waitvm w1q0 lgkm0", "s_barrier"]
        if st <= 4: S.dmas(item1(st + 3, pitch), G)
        else: S.dmas(wquarter(RA, st - 5, c1, pitch, f"w1q{st-5}"), G)
    def m4(d, r, c=None): return f"v_mfma_f32_4x4x4_16b_bf16 {v(d,4)}, {v(r,2)}, {v(r,2)}, {v(d,4) if c is None else c}"
    Q0, Q1 = T + 8, T + 16
    for f in range(0, 32, 2):
        x = XF + 4 * f; a = max(f - 1, 0); c = "0" if f == 0 else None
        if OPT.get("hyb", "0") == "1":
            b = f if f < 30 else 29
            S.post[a] += [m4(Q0, x, c), m16(MS, SEL, x, c)]
            for r, G in ((x + 2, a), (x + 3, b)):
                S.post[G] += [f"v_and_b32 {v(Q1+2)}, 0xffff0000, {v(r)}", f"v_lshlrev_b32 {v(Q1+3)}, 16, {v(r)}",
                              f"v_fmac_f32 {v(Q1)}, {v(Q1+2)}, {v(Q1+2)}", f"v_fmac_f32 {v(Q1+1)}, {v(Q1+3)}, {v(Q1+3)}"]
        else: S.post[a] += [m4(Q0, x, c), m4(Q1, x + 2, c), m16(MS, SEL, x, c)]
    S.post[28] += [f"v_and_b32 {v(S1)}, 3, {v(vL)}", f"v_cmp_eq_u32 {s(sEX,2)}, 1, {v(S1)}", f"s_lshl_b32 {s(sT0)}, {s(sHALF)}, 3",
                   f"v_add_u32 {v(T)}, {s(sT0)}, {v(VSTA)}"]
    if OPT.get("hyb", "0") == "1":
        S.pre[0] += [f"v_mov_b32 {v(Q1)}, 0", f"v_mov_b32 {v(Q1+1)}, 0"]
        S.post[29] += [f"v_add_f32 {v(Q1)}, {v(Q1)}, {v(Q1+1)}"]
    else: S.post[29] += [f"v_add_f32 {v(Q0+i)}, {v(Q0+i)}, {v(Q1+i)}" for i in range(4)]
    S.post[29] += [f"v_cmp_eq_u32 vcc, 2, {v(S1)}", f"v_cndmask_b32 {v(S2)}, {v(Q0)}, {v(Q0+1)}, {s(sEX,2)}", f"v_cmp_eq_u32 {s(sEX,2)}, 3, {v(S1)}",
                   f"v_cndmask_b32 {v(S2)}, {v(S2)}, {v(Q0+2)}, vcc", f"v_cndmask_b32 {v(S2)}, {v(S2)}, {v(Q0+3)}, {s(sEX,2)}"] + ([f"v_add_f32 {v(S2)}, {v(S2)}, {v(Q1)}"] if OPT.get("hyb", "0") == "1" else []) + [
                   f"v_mov_b32 {v(S1)}, {v(S2)}", f"v_permlane32_swap_b32 {v(S1)}, {v(S2)}",
                   f"v_add_f32 {v(MS+1)}, {v(S1)}, {v(S2)}", f"ds_write_b64 {v(T)}, {v(MS,2)}"]
    S.post[30] += [f"ds_read_b128 {v(MS,4)}, {v(VSTA)}"]
    for ps in range(3):
        for st in range(8):
            G = 32 * ps + 4 * st
            S.post[G] += [m16(MC, SEL, WF + 4 * (G & 3), "0" if st == 0 else None)]
        S.post[32*ps + 29] += [f"v_add_u32 {v(MC+1)}, {s(sW34)}, {v(VCSA)}", f"ds_write_b32 {v(MC+1)}, {v(MC)} offset:{1024*ps}"]
    FEW = OPT.get("few", "1") == "1"
    if FEW: S.pre[38] += [".waitvm w1q3", "s_barrier"]
    else:
        for q in (1, 2, 3): S.pre[32 + 8*q - 2] += [f".waitvm w1q{q}", "s_barrier"]
    w2 = sum([wquarter(RB, q, c2, pitch, "w2") for q in range(4)], [])
    for g_, G in zip(wquarter(RA, 3, c1, pitch, "w1q3") + w2, [int(x) for x in OPT.get("w2g", "32,33,35,37,38,40,41,43,44,46").split(",")]): S.dma[G] += g_
    S.pre[62] += [".waitvm w2 lgkm0", "s_barrier"]
    for G in ((int(OPT.get("fb", 82)),) if ffn else (86,)): S.pre[G] += ["s_barrier"]
    if ffn:
        S.post[int(OPT.get("f1", 90))] += flag(1, "h1")
        S.post[int(OPT.get("p1", 99))] += [spoll(0)]; S.blk[("e", int(OPT.get("c1", 105)))] = lambda: (sneed(1, 0), P(spoll(1)))
    else:
        S.post[int(OPT.get("fa", 80))] += flag(1, "po")
        S.post[95] += [spoll(1)]
    if OPT.get("l2t", "0") == "1":
        tg = [int(x) for x in OPT.get("l2gf" if ffn else "l2ga", "52,62,66,70,74" if ffn else "48,52,56,60,64").split(",")]
        DUM = VX0 if False else VW0
        for j in range(5):
            if j < 3:
                L = [f"s_lshr_b32 {s(sT0)}, s2, 3", f"s_mul_i32 {s(sT0)}, {s(sT0)}, 3", f"s_lshl_b32 {s(sT1)}, {s(sSH)}, 4", f"s_add_u32 {s(sT0)}, {s(sT0)}, {s(sT1)}",
                     f"s_add_u32 {s(sT0)}, {s(sT0)}, {128+j}", f"s_sub_u32 {s(sT1)}, {s(sT0)}, 224", f"s_min_u32 {s(sT0)}, {s(sT0)}, {s(sT1)}",
                     f"s_mul_i32 {s(sT1)}, {s(sW)}, 224", f"s_add_u32 {s(sT0)}, {s(sT0)}, {s(sT1)}", f"s_lshl_b32 {s(sT0)}, {s(sT0)}, 10",
                     f"buffer_load_dword {v(VTD)}, {v(VL16)}, {s(SW2,4)}, {s(sT0)} offen ; nodef"]
            else:
                L = [f"s_lshr_b32 {s(sT0)}, s2, 3", f"s_lshl_b32 {s(sT0)}, {s(sT0)}, 11", f"s_lshl_b32 {s(sT1)}, {s(sW)}, 16", f"s_add_u32 {s(sT0)}, {s(sT0)}, {s(sT1)}",
                     f"buffer_load_dword {v(VTD)}, {v(VL16)}, {s(SWO,4)}, {s(sT0)} offen offset:{1024*(j-3)} ; nodef"]
            S.dma[tg[j]] += L
    if OPT.get("touch") == "5" and not ffn:
        tg = [int(x) for x in OPT.get("tgs", "54,56,58,60,62").split(",")]
        gw = [f"s_and_b32 {s(sT0)}, {s(sRT)}, 7", f"s_lshl_b32 {s(sT0)}, {s(sT0)}, 1", f"s_and_b32 {s(sT1)}, {s(sG)}, 1", f"s_add_u32 {s(sT0)}, {s(sT0)}, {s(sT1)}",
              f"s_lshl_b32 {s(sT0)}, {s(sT0)}, 3", f"s_add_u32 {s(sK)}, {s(sT0)}, {s(sW)}"]
        for j in range(4):
            S.dma[tg[j]] += (gw if j == 0 else []) + [f"s_add_u32 {s(sT0)}, {s(sK)}, {128*j}", f"s_min_u32 {s(sT0)}, {s(sT0)}, 447", f"s_mul_i32 {s(sT1)}, {s(sM)}, 448", f"s_add_u32 {s(sT0)}, {s(sT0)}, {s(sT1)}",
                                  f"s_lshl_b32 {s(sT0)}, {s(sT0)}, 10", f"buffer_load_dword {v(VTD)}, {v(VL16)}, {s(SW2,4)}, {s(sT0)} offen ; nodef"]
        S.dma[tg[4]] += [f"s_lshl_b32 {s(sT1)}, {s(sM)}, 7", f"s_add_u32 {s(sT0)}, {s(sK)}, {s(sT1)}",
                         f"s_lshl_b32 {s(sT0)}, {s(sT0)}, 10", f"buffer_load_dword {v(VTD)}, {v(VL16)}, {s(SWO,4)}, {s(sT0)} offen ; nodef"]
    if OPT.get("touch") == "4":
        tg = [int(x) for x in OPT.get("tgs", "47,49,52").split(",")]
        gw = [f"s_and_b32 {s(sT0)}, s2, 0xf8", f"s_add_u32 {s(sT0)}, {s(sT0)}, {s(sW)}"]
        for j in range(2):
            S.dma[tg[j]] += gw + [f"s_add_u32 {s(sT0)}, {s(sT0)}, {256*j}", f"s_min_u32 {s(sT0)}, {s(sT0)}, 447", f"s_mul_i32 {s(sT1)}, {s(sM)}, 448", f"s_add_u32 {s(sT0)}, {s(sT0)}, {s(sT1)}",
                                  f"s_lshl_b32 {s(sT0)}, {s(sT0)}, 10", f"buffer_load_dword {v(VTD)}, {v(VL16)}, {s(SW2,4)}, {s(sT0)} offen ; nodef"]
        S.dma[tg[2]] += gw + [f"s_lshr_b32 {s(sT0)}, {s(sT0)}, 1", f"s_lshl_b32 {s(sT1)}, {s(sM)}, 7", f"s_add_u32 {s(sT0)}, {s(sT0)}, {s(sT1)}",
                              f"s_lshl_b32 {s(sT0)}, {s(sT0)}, 10", f"buffer_load_dword {v(VTD)}, {v(VL16)}, {s(SWO,4)}, {s(sT0)} offen ; nodef"]
    if OPT.get("touch", "3") == "3":
        def mtouch():
            n0 = len(P.ins)
            P(f"s_cmp_lt_u32 {s(sW)}, 6")
            P(f"s_cbranch_scc1 L_mt{tp}")
            P.cond_begin("w67")
            P(f"v_lshlrev_b32 {v(T+1)}, 7, {v(vL)}\ns_mul_i32 {s(sT0)}, s2, 7168\ns_lshl_b32 {s(sT1)}, s2, 11")
            P(f"s_cmp_eq_u32 {s(sW)}, 6\ns_cbranch_scc0 L_mta{tp}")
            P(f"buffer_load_dword {v(T+2)}, {v(T+1)}, {s(SW2,4)}, {s(sT0)} offen")
            P(f"s_branch L_mt{tp}")
            P(f"L_mta{tp}:")
            P(f"v_and_b32 {v(T+1)}, 2047, {v(T+1)}")
            P(f"buffer_load_dword {v(T+2)}, {v(T+1)}, {s(SWO,4)}, {s(sT1)} offen")
            P(f"buffer_load_dword {v(T+3)}, {v(T+1)}, {s(SB2,4)}, 0 offen")
            P.cond_end()
            P(f"L_mt{tp}:")
        S.blk[("e", int(OPT.get("tg", 5)))] = mtouch
    def announce():
        P(f"s_lshl_b32 {s(sT0)}, {s(sW)}, 8\ns_add_u32 {s(sT0)}, {s(sT0)}, s2\ns_sub_u32 {s(sT0)}, {s(sT0)}, 256\ns_cmp_lt_u32 {s(sT0)}, 8")
        P(f"s_cbranch_scc0 L_nd")
        P.cond_begin("zw")
        P(".waitvm zf")
        P(f"s_lshl_b32 {s(sT0)}, s2, 2\nv_mov_b32 {v(VFV)}, 1")
        P(f"buffer_store_dword {v(VFV)}, {v(VZ)}, {s(SDBG,4)}, {s(sT0)} offen sc1")
        P.cond_end()
        P(f"L_nd:")
    if not ffn: S.blk[3] = announce
    ld = f"v_and_b32 {v(VX0)}, 28, {v(vL)}\nbuffer_load_dword {v(VX0)}, {v(VX0)}, {s(SDBG,4)}, 0 offen sc1"
    def poll0():
        P(f"s_cmp_eq_u32 {s(sW)}, 7"); P(f"s_cbranch_scc0 L_np{tp}")
        P.cond_begin("w7")
        P(ld)
        P.cond_end(); P(f"L_np{tp}:")
    def check0():
        P(f"s_cmp_eq_u32 {s(sW)}, 7"); P(f"s_cbranch_scc0 L_nc{tp}")
        P.cond_begin("w7")
        P(f"v_mov_b32 {v(VX0)}, {v(VX0)}")
        spin(f"L_ncs{tp}", ld, f"v_cmp_ne_u32 vcc, 1, {v(VX0)}")
        P.cond_end(); P(f"L_nc{tp}:")
    S.blk[39] = poll0; S.blk[62] = check0

def run_sched(S, accs):
    P(".waitvm it0")
    P("s_barrier")
    stamp("it0")
    P.add(rd(0)); P.add(rd(1))
    for G in range(S.n):
        stamp(f"g{G}")
        if G in S.blk: S.blk[G]()
        late = OPT.get("bam", "1") == "1" and G >= 32
        if not late: P.add(S.pre[G])
        if OPT.get("prio", "1") == "1": P(f"s_setprio {3 - ((G + 2) & 3)}")
        if OPT.get("prio") == "2" and (G < 32 or G % 2 == 0): P(f"s_setprio {3 - ((G + 2) & 3) if G < 32 else 3 - ((G >> 1) & 3)}")
        first = G in (0, 32, 64, 96)
        P(mfma(accs[G >> 5], WF + 4 * (G & 3), xq(G), "0" if first else None))
        if late: P.add(S.pre[G])
        if G + 2 < S.n: P.add(rd(G + 2))
        P.add(S.post[G]); P.add(S.fill[G]); P.add(S.dma[G])
        if ("e", G) in S.blk: S.blk[("e", G)]()
    P("s_setprio 0")

AC = 64; NAF = 8
def AFq(kk, rb): return XF + 4 + 8 * (2 * (kk % NAF) + rb)
def BTq(kk, nb): return XF + 8 * (2 * (kk & 3) + nb)
BA = 2
VXR, VRED = 9, 10
VWR = 20
XR, B2R = 32, 36
def AF2(kk): return XF + 4 + 8 * (kk % 16)
def BT2(kk, nb): return XF + 8 * (4 * (kk & 1) + nb)
def xoff(j, send):
    return ([f"s_xor_b32 {s(sT0)}, s2, {j}", f"s_mul_i32 {s(sT0)}, {s(sT0)}, {3*8192}"] if send else [f"s_mul_i32 {s(sT0)}, s2, {3*8192}"]) + \
           [f"s_lshl_b32 {s(sT1)}, {s(sW)}, 10", f"s_add_u32 {s(sT0)}, {s(sT0)}, {s(sT1)}", f"s_add_u32 {s(sT0)}, {s(sT0)}, {WS_X + (j-1)*8192}"]
def a_jobs(kk):
    so = sA0 if kk < 14 else sA1
    if V2: return [rot_k(kk, sD1) + [f"s_lshl_b32 {s(sD1)}, {s(sD1)}, 10", f"s_add_u32 {s(sD1)}, {s(sD1)}, {s(so)}",
             f"buffer_load_dwordx4 {v(AF2(kk),4)}, {v(VL16)}, {s(SWS,4)}, {s(sD1)} offen sc1"]]
    return [rot_k(kk, sD1) + [f"s_lshl_b32 {s(sD1)}, {s(sD1)}, 10", f"s_add_u32 {s(sD1)}, {s(sD1)}, {s(so)}",
             f"buffer_load_dwordx4 {v(AFq(kk,0),4)}, {v(VL16)}, {s(SWS,4)}, {s(sD1)} offen sc1"],
            [f"s_add_u32 {s(sD1)}, {s(sD1)}, {HF_RB}",
             f"buffer_load_dwordx4 {v(AFq(kk,1),4)}, {v(VL16)}, {s(SWS,4)}, {s(sD1)} offen sc1"]]
def vcheck(regs, t):
    L = [f"v_max3_u32 {v(t)}, {v(regs[0])}, {v(regs[1])}, {v(regs[2])}"]; r = regs[3:]
    while len(r) >= 2: L.append(f"v_max3_u32 {v(t)}, {v(t)}, {v(r[0])}, {v(r[1])}"); r = r[2:]
    if r: L.append(f"v_max_u32 {v(t)}, {v(t)}, {v(r[0])}")
    return L + [f"v_cmp_eq_u32 vcc, -1, {v(t)}"]
SLOW = []
def validate(regs, t, reload):
    lb = P.lab("L_v")
    P.add(vcheck(regs, t))
    P(f"s_cbranch_vccnz {lb}_slow")
    P(f"{lb}_back:")
    dbg = [f"s_add_u32 {s(sST+2*STI['slow'])}, {s(sST+2*STI['slow'])}, {1 << len(SLOW)}"] if STAMP and "slow" in STI else []
    SLOW.append([f"{lb}_slow:"] + dbg + [f"s_mov_b32 {s(sCNT)}, 0", f"{lb}_loop:", "s_sleep 2"] + reload + ["s_waitcnt vmcnt(0)"] + vcheck(regs, t) +
                [f"s_add_u32 {s(sCNT)}, {s(sCNT)}, 1", f"s_cbranch_vccz {lb}_back", f"s_cmp_gt_u32 {s(sCNT)}, {SPIN_MAX}",
                 f"s_cbranch_scc0 {lb}_loop", f"s_branch {lb}_back"])
def flush_slow():
    for blk in SLOW:
        P(".reset"); P.add(blk)
    SLOW.clear()
def spoll(o): return f"s_buffer_load_dwordx4 {s(sPL,4)}, {s(SWS,4)}, {s(sFL)} offset:{0 if o else 1024} glc"
def sneed(level, o):
    lb = P.lab("L_sp")
    P(f"s_mov_b32 {s(sCNT)}, 0")
    P(f"{lb}:")
    P("s_waitcnt lgkmcnt(0)")
    P(f"s_min_u32 {s(sPL)}, {s(sPL)}, {s(sPL+1)}\ns_min_u32 {s(sPL+2)}, {s(sPL+2)}, {s(sPL+3)}\ns_min_u32 {s(sPL)}, {s(sPL)}, {s(sPL+2)}")
    P(f"s_cmp_ge_u32 {s(sPL)}, {level}")
    P(f"s_cbranch_scc1 {lb}_ok")
    P(f"s_add_u32 {s(sCNT)}, {s(sCNT)}, 1\ns_cmp_gt_u32 {s(sCNT)}, {SPIN_MAX}")
    P(f"s_cbranch_scc1 {lb}_ok")
    P("s_sleep 1")
    I = Ins(spoll(o)); I.kind = "salu"; P.ins.append(I)
    P(f"s_branch {lb}")
    P(f"{lb}_ok:")
def own_check():
    lb = P.lab("L_oc")
    P(f"s_mov_b32 {s(sCNT)}, 0")
    P(f"{lb}:")
    P("s_waitcnt lgkmcnt(0)")
    P(f"s_cmp_ge_u32 {s(sK)}, 1")
    P(f"s_cbranch_scc1 {lb}_ok")
    P(f"s_add_u32 {s(sCNT)}, {s(sCNT)}, 1\ns_cmp_gt_u32 {s(sCNT)}, {SPIN_MAX}")
    P(f"s_cbranch_scc1 {lb}_ok")
    P("s_sleep 1")
    I = Ins(f"s_buffer_load_dword {s(sK)}, {s(SWS,4)}, {s(sT2)} glc"); I.kind = "salu"; P.ins.append(I)
    P(f"s_branch {lb}")
    P(f"{lb}_ok:")
def b_reads(kk):
    slot = kk % 9
    var, off = (KAREA[slot] >> 16), KAREA[slot] & 0xffff
    return [f".waitvm b{kk}"] + [f"ds_read_b64_tr_b16 {v(BTq(kk,nb)+2*tt,2)}, {v(BA+2*var+nb)} offset:{off+1024*tt}" for nb in range(2) for tt in range(2)]
def finish(ffn):
    if OPT.get("echo") and OPT.get("echot", "fa").find("f" if ffn else "a") < 0: pass
    elif OPT.get("echo"):
        a_, b_ = [STI[x] for x in OPT["echo"].split(",")]
        lb = P.lab("L_echo")
        stamp("end")
        P("s_waitcnt lgkmcnt(0)")
        P(f"s_sub_u32 {s(sT0)}, {s(sST+2*b_)}, {s(sST+2*a_)}")
        if STAMP == 2:
            P(f"s_lshr_b32 {s(sT0)}, {s(sT0)}, 4\ns_memrealtime {s(sST+22,2)}\ns_waitcnt lgkmcnt(0)")
        P(f"s_min_u32 {s(sT0)}, {s(sT0)}, 10000")
        P(f"{lb}:")
        P(f"s_memrealtime {s(sEX,2)}")
        P("s_waitcnt lgkmcnt(0)")
        P(f"s_sub_u32 {s(sT1)}, {s(sEX)}, {s(sST+22)}\ns_cmp_lt_u32 {s(sT1)}, {s(sT0)}\ns_cbranch_scc1 {lb}")
    elif STAMP:
        stamp("end")
        P("s_waitcnt lgkmcnt(0)")
        P(f"s_lshl_b32 {s(sT0)}, s2, 3\ns_add_u32 {s(sT0)}, {s(sT0)}, {s(sW)}\ns_lshl_b32 {s(sT0)}, {s(sT0)}, 6\ns_add_u32 {s(sT0)}, {s(sT0)}, {WS_STAMP}")
        P(f"v_mov_b32 v2, 0\ns_mov_b64 exec, 1")
        for i in range(12):
            P(f"v_mov_b32 v3, {s(sST+2*i)}\nbuffer_store_dword v3, v2, {s(SWS,4)}, {s(sT0)} offen offset:{4*i}")
    P("s_endpgm")
    flush_slow()

def phase2_v2(bleft, ffn):
    BAR = [2, 3, 4, 5, 6, 7, 8, 9, 10, 11, 14, 15]; VX = 16
    WB = [20, 21, 22]; RBs = [23, 24, 25]; PX = BAUG
    t = T + 8
    P(f"v_bfe_u32 {v(t)}, {v(vL)}, 2, 2\nv_lshrrev_b32 {v(t+1)}, 5, {v(vL)}\nv_and_b32 {v(t+2)}, 63, {v(AW)}\ns_lshl_b32 {s(sT0)}, {s(sHALF)}, 5\nv_xor_b32 {v(t+2)}, {s(sT0)}, {v(t+2)}")
    P(f"v_lshl_add_u32 {v(t+3)}, {v(t+1)}, 2, {v(t)}\nv_lshl_add_u32 {v(t+3)}, {v(t+3)}, 8, {v(t+2)}\ns_lshl_b32 {s(sT0)}, {s(sHALF)}, 13\nv_add_u32 {v(t+3)}, {s(sT0)}, {v(t+3)}")
    P(f"v_xor_b32 {v(t)}, {s(sM)}, {v(t)}\nv_lshl_add_u32 {v(BAR[0])}, {v(t)}, 6, {v(t+3)}")
    for nb in range(1, 4): P(f"v_xor_b32 {v(BAR[nb])}, {64*nb}, {v(BAR[0])}")
    for rg in (2, 1):
        for nb in range(4): P(f"v_add_u32 {v(BAR[4*rg+nb])}, {65536*rg}, {v(BAR[nb])}")
    LP = int(OPT.get("lp", 8))
    SQ = int(OPT.get("sq", 12))
    seq = [(kk, nb) for kk in range(SQ) for nb in range(4) if nb or kk < LP]
    done_at = {}
    for nb in (1, 2, 3):
        seq += [(kk, nb) for kk in range(SQ, 18)]; done_at[nb] = len(seq)
    seq += [(kk, 0) for kk in range(LP, 18)]
    D = 4
    def bq(i): return XF + 8 * (i & 7)
    def br(i):
        kk, nb = seq[i]; a = KAREA[kk >> 1]
        return [f"ds_read_b64_tr_b16 {v(bq(i)+2*tt,2)}, {v(BAR[4*(a>>16)+nb])} offset:{(a&0xffff)+(kk&1)*4096+2048*tt}" for tt in range(2)]
    def val(kk): validate([AF2(kk) + i for i in range(4)], T + 16, a_jobs(kk)[0])
    for i in range(D): P.add(br(i))
    val(0)
    stamp("hseen")
    first = {}
    for i, (kk, nb) in enumerate(seq): first.setdefault(kk, i)
    ev = {}
    def at(i, x): ev.setdefault(i, []).append(x)
    a8, a14 = int(OPT.get("a8", 14)), int(OPT.get("a14", 30))
    for i, g_ in enumerate(sum([b_dma(k2) for k2 in bleft], [])): at(int(OPT.get('bst', 1)) * i, g_)
    ast = int(OPT.get('ast', 1))
    for k2 in range(8, 14): at(a8 + ast * (k2 - 8), a_jobs(k2)[0])
    for k2 in range(14, 18): at(a14 + ast * (k2 - 14), a_jobs(k2)[0])
    F = T + 8
    at(9, lines(f"v_and_b32 {v(T+17)}, 31, {v(vL)}\nv_lshrrev_b32 {v(T+18)}, 5, {v(vL)}\nv_lshlrev_b32 {v(T+18)}, 4, {v(T+18)}\nv_lshl_add_u32 {v(VX)}, {v(T+17)}, 10, {v(T+18)}") +
          [f"buffer_load_dwordx4 {v(XR,4)}, {v(VX)}, {s(SX,4)}, {s(sOo)} offen", f"buffer_load_dwordx4 {v(B2R,4)}, {v(T+18)}, {s(SB2,4)}, {s(sN)} offen"])
    at(24, lines(f"v_add_u32 {v(WB[0])}, {s(sM0x)}, {v(VL16)}\nv_xor_b32 {v(RBs[0])}, 8192, {v(WB[0])}") +
           sum([[f"v_add_u32 {v(WB[rg])}, {65536*rg}, {v(WB[0])}", f"v_add_u32 {v(RBs[rg])}, {65536*rg}, {v(RBs[0])}"] for rg in (1, 2)], []))
    for i in range(4):
        at(40 + i, lines(f"v_lshlrev_b32 {v(F+2*i)}, 16, {v(XR+i)}\nv_and_b32 {v(F+2*i+1)}, 0xffff0000, {v(XR+i)}\nv_lshlrev_b32 {v(T+4)}, 16, {v(B2R+i)}\nv_and_b32 {v(T+5)}, 0xffff0000, {v(B2R+i)}\nv_add_f32 {v(F+2*i)}, {v(F+2*i)}, {v(T+4)}\nv_add_f32 {v(F+2*i+1)}, {v(F+2*i+1)}, {v(T+5)}"))
    px1 = OPT.get("px1") == "1"
    if not px1:
        pxi = int(OPT.get("pxi", a8 + 6))
        at(pxi - 1, [f"v_mov_b32 {v(PX+i)}, -1" for i in range(4)])
        for j in (1, 2, 3): at(pxi + (j - 1) * int(OPT.get("pxs", 1)), xoff(j, True) + [f"buffer_store_dwordx4 {v(PX,4)}, {v(VL16)}, {s(SWS,4)}, {s(sT0)} offen sc1 ; tag=px"])
    at(int(OPT.get("fx", 8 if px1 else 48)), flag(2, "px"))
    bar_i = first[12] - D
    def wr(nb): a = KAREA[nb]; return [f"ds_write_b128 {v(WB[a>>16])}, {v(AC+16*nb+8+4*q,4)} offset:{(a&0xffff)+1024*q}" for q in range(2)]
    def rdp(nb): a = KAREA[nb]; return [f"ds_read_b128 {v(AC+16*nb+8+4*q,4)}, {v(RBs[a>>16])} offset:{(a&0xffff)+1024*q}" for q in range(2)]
    def add(nb, pk): c = AC + 16 * nb; return [f"v_pk_add_f32 {v(c+i,2)}, {v(c+i,2)}, {v(c+8+i,2)}" for i in range(0, 8, 2)] if pk else [f"v_add_f32 {v(c+i)}, {v(c+i)}, {v(c+8+i)}" for i in range(8)]
    def snd(nb): c = AC + 16 * nb; return [f"v_cvt_pk_bf16_f32 {v(c+8+i)}, {v(c+2*i)}, {v(c+2*i+1)}" for i in range(4)] + xoff(nb, True) + [f"buffer_store_dwordx4 {v(c+8,4)}, {v(VL16)}, {s(SWS,4)}, {s(sT0)} offen sc1"]
    VPF, VPA = PX, PX + 1
    pf = f"buffer_load_dword {v(VPF)}, {v(VPA)}, {s(SWS,4)}, 0 offen sc1"
    at(38 if px1 else done_at[3] + 3, lines(f"v_and_b32 {v(VPA)}, 3, {v(vL)}\nv_lshlrev_b32 {v(VPA)}, 8, {v(VPA)}\nv_xor_b32 {v(VPA)}, {s(sFO)}, {v(VPA)}") + [pf])
    if SQ < 18:
        for nb in (1, 2, 3):
            e = done_at[nb]
            at(e + 1, wr(nb)); at(e + 2, ["s_waitcnt lgkmcnt(2)", "s_barrier"] + rdp(nb)); at(e + 4, add(nb, False) + snd(nb))
        at(done_at[3] + 4, stamp_i("xs"))
    else:
        e = done_at[3]
        at(e, wr(1) + wr(2)); at(e + 1, wr(3) + ["s_waitcnt lgkmcnt(0)", "s_barrier"] + rdp(1) + rdp(2) + rdp(3))
        for nb in (1, 2, 3): at(e + 1 + nb, add(nb, False) + snd(nb))
        at(e + 4, stamp_i("xs"))
    seen = set()
    for i, (kk, nb) in enumerate(seq):
        if i % 4 == 0: P(f"s_setprio {3 - ((i >> 2) & 3)}")
        P(mfma(AC + 16 * nb, bq(i), AF2(kk), None if nb in seen else "0")); seen.add(nb)
        if i == bar_i: P(".waitvm b8"); P("s_barrier")
        if i + D < len(seq): P.add(br(i + D))
        if i + 2 < len(seq) and first[seq[i + 2][0]] == i + 2: val(seq[i + 2][0])
        for x in ev.pop(i, []): P.add(x)
        if i + 1 < len(seq) and first[seq[i + 1][0]] == i + 1: stamp(f"k{kk}")
    assert not ev, ev.keys()
    stamp("p2mm")
    P("s_setprio 0")
    P.add(wr(0))
    P(f"v_mov_b32 {v(VPF)}, {v(VPF)}")
    spin(P.lab("L_pf"), pf, f"v_cmp_gt_u32 vcc, 2, {v(VPF)}")
    P("s_waitcnt lgkmcnt(0)")
    R = XF
    rl = sum([xoff(j, False) + [f"buffer_load_dwordx4 {v(R+4*j,4)}, {v(VL16)}, {s(SWS,4)}, {s(sT0)} offen sc1"] for j in range(1, 4)], [])
    P("s_barrier")
    P.add(rdp(0))
    P.add(rl)
    P.add(add(0, True))
    validate([R + 4 + i for i in range(12)], T + 16, rl)
    stamp("xr")
    P(f"s_mov_b32 {s(sT0)}, 0x3f80\ns_mov_b32 {s(sT1)}, 0x3f800000")
    for j in range(1, 4):
        for i in range(4): P(f"v_dot2c_f32_bf16 {v(AC+2*i)}, {s(sT0)}, {v(R+4*j+i)}\nv_dot2c_f32_bf16 {v(AC+2*i+1)}, {s(sT1)}, {v(R+4*j+i)}")
    for i in range(4): P(f"v_permlane32_swap_b32 {v(AC+i)}, {v(AC+4+i)}")
    for i in range(0, 8, 2): P(f"v_pk_add_f32 {v(F+i,2)}, {v(F+i,2)}, {v(AC+i,2)}")
    for i in range(4): P(f"v_cvt_pk_bf16_f32 {v(XR+i)}, {v(F+2*i)}, {v(F+2*i+1)}")
    P(f"buffer_store_dwordx4 {v(XR,4)}, {v(VX)}, {s(SOUT,4)}, {s(sOo)} offen")
    finish(ffn)

def phase2(done=(), ordr="B6 B7 B8 B9 A4 A5 A6 A7 B10 A8 B11 A9 A10 B12 A11 B13 A12 B14 A13 B15 B16 B17 A14 A15 A16 A17", ffn=False):
    P(f"v_bfe_u32 {v(T+8)}, {v(vL)}, 2, 2\nv_lshrrev_b32 {v(T+9)}, 5, {v(vL)}\nv_and_b32 {v(T+10)}, 63, {v(AW)}")
    P(f"v_lshl_add_u32 {v(T+12)}, {v(T+9)}, 2, {v(T+8)}\nv_lshl_add_u32 {v(T+12)}, {v(T+12)}, 7, {v(T+10)}\nv_lshrrev_b32 {v(T+13)}, 1, {v(T+8)}")
    P(f"v_lshl_add_u32 {v(T+12)}, {v(T+13)}, 6, {v(T+12)}\nv_xor_b32 {v(T+13)}, 64, {v(T+12)}")
    P(f"s_add_u32 {s(sT0)}, {s(sM0x)}, 65536\ns_add_u32 {s(sT1)}, {s(sM0x)}, {RC}")
    for nb in range(2):
        P(f"v_add_u32 {v(BA+nb)}, {s(sM0x)}, {v(T+12+nb)}\nv_add_u32 {v(BA+2+nb)}, {s(sT0)}, {v(T+12+nb)}\nv_add_u32 {v(BA+4+nb)}, {s(sT1)}, {v(T+12+nb)}")
    P.add(b_reads(0))
    if OPT.get("r8", "1") == "1": validate([AFq(0, r2) + i for r2 in range(2) for i in range(4)], T + 16, sum(a_jobs(0), []))
    if OPT.get("p2prio") == "y":
        lb = P.lab("L_pr"); P(f"s_cmp_lt_u32 {s(sW)}, 4\ns_cbranch_scc1 {lb}\ns_setprio 1\n{lb}:")
    stamp("hseen")
    order = [j for j in ordr.split() if j not in done]
    jobs = []
    for j in order:
        k2 = int(j[1:]); gs = a_jobs(k2) if j[0] == "A" else b_dma(k2)
        jobs += [(j, gs[0]), (None, gs[1])]
    LEAD = int(OPT.get("lead", 3))
    first_need = min(int(j[1:]) - (0 if j[0] == "A" else 1) for j in order)
    order.sort(key=lambda j: int(j[1:]) - (0.5 if j[0] == "B" else 0)) if LEAD < 9 else None
    jobs = []
    for j in order:
        k2 = int(j[1:]); gs = a_jobs(k2) if j[0] == "A" else b_dma(k2)
        jobs += [(j, gs[0]), (None, gs[1])]
    NT = int(OPT.get("nt", 2))
    for kk in range(18 - NT):
        rem = [x for x, _ in jobs if x]
        assert f"A{kk+1}" not in rem and f"B{kk+2}" not in rem, (kk, rem)
        if OPT.get("v"): print(kk, rem, file=sys.stderr)
        pm = OPT.get("p2prio", "c")
        if pm == "c": P(f"s_setprio {3 - ((kk // int(OPT.get('p2per', 1))) & 3)}")
        br = b_reads(kk + 1) if kk + 1 < 18 else []
        for nb in range(2):
            for rb in range(2):
                mi = 2 * nb + rb
                P(mfma(AC + 16 * mi, BTq(kk, nb), AFq(kk, rb), "0" if kk == 0 else None))
                if mi == 0: P.add(br[:3])
                if mi == 1: P.add(br[3:])
                if mi == 2 and (1 if OPT.get('r8', '1') == '1' else 4) <= kk + 1 < 18:
                    if jobs and jobs[0][0] is None: P.add(jobs.pop(0)[1])
                    validate([AFq(kk + 1, r2) + i for r2 in range(2) for i in range(4)], T + 16, sum(a_jobs(kk + 1), []))
                for rep in range(2 if kk < int(OPT.get("dbl", 0)) else 1):
                    if not jobs: continue
                    j, g_ = jobs[0]
                    if j:
                        k2 = int(j[1:]); last = (nb, rb) == (1, 1)
                        free = k2 - (8 if j[0] == "A" else 9)
                        if free > kk or (free == kk and not last): continue
                        need_at = k2 - (0 if j[0] == "A" else 1)
                        if need_at > max(kk, first_need - 1) + LEAD: continue
                    jobs.pop(0); P.add(g_)
        stamp(f"k{kk}")
        if kk == 8:
            P(f"v_lshrrev_b32 {v(T+17)}, 3, {v(vL)}\nv_and_b32 {v(T+18)}, 7, {v(vL)}\nv_lshlrev_b32 {v(T+18)}, 4, {v(T+18)}\nv_lshl_add_u32 {v(VXR)}, {v(T+17)}, 10, {v(T+18)}")
            P(f"s_lshl_b32 {s(sT0)}, {s(sN)}, 7")
            P(f"buffer_load_dwordx4 {v(XR,4)}, {v(VXR)}, {s(SX,4)}, {s(sOo)} offen")
            P(f"buffer_load_dwordx4 {v(B2R,4)}, {v(T+18)}, {s(SB2,4)}, {s(sT0)} offen")
        if kk == 3:
            for q in range(4):
                P(f"v_xor_b32 {v(VWR+q)}, {64*q}, {v(VL16)}\nv_add_u32 {v(VWR+q)}, {s(sM0x)}, {v(VWR+q)}")
                P(f"v_add_u32 {v(T+q)}, 65536, {v(VWR+q)}")
            P(f"v_lshrrev_b32 {v(T+4)}, 3, {v(vL)}\ns_lshl_b32 {s(sT0)}, {s(sW34)}, 1\nv_add_u32 {v(T+4)}, {s(sT0)}, {v(T+4)}")
            P(f"v_and_b32 {v(T+5)}, 3, {v(vL)}\nv_lshlrev_b32 {v(T+6)}, 2, {v(T+5)}\nv_xor_b32 {v(T+4)}, {v(T+4)}, {v(T+6)}\nv_lshlrev_b32 {v(T+4)}, 4, {v(T+4)}\nv_and_b32 {v(T+6)}, 1, {v(T+5)}\nv_lshl_add_u32 {v(T+4)}, {v(T+6)}, 10, {v(T+4)}\nv_lshrrev_b32 {v(T+6)}, 1, {v(T+5)}\nv_lshl_add_u32 {v(T+4)}, {v(T+6)}, 14, {v(T+4)}")
            P(f"v_bfe_u32 {v(T+5)}, {v(vL)}, 2, 1\nv_lshl_add_u32 {v(T+4)}, {v(T+5)}, 16, {v(T+4)}\ns_lshl_b32 {s(sT0)}, {s(sHALF)}, 15\nv_add_u32 {v(VRED)}, {s(sT0)}, {v(T+4)}")
        F = T + 8
        if kk == 13:
            for i in range(4):
                P(f"v_lshlrev_b32 {v(F+2*i)}, 16, {v(XR+i)}\nv_and_b32 {v(F+2*i+1)}, 0xffff0000, {v(XR+i)}")
                P(f"v_lshlrev_b32 {v(T+4)}, 16, {v(B2R+i)}\nv_and_b32 {v(T+5)}, 0xffff0000, {v(B2R+i)}")
                P(f"v_add_f32 {v(F+2*i)}, {v(F+2*i)}, {v(T+4)}\nv_add_f32 {v(F+2*i+1)}, {v(F+2*i+1)}, {v(T+5)}")
    assert not jobs
    for kk in range(19 - NT, 18):
        P.add(b_reads(kk))
        validate([AFq(kk, r2) + i for r2 in range(2) for i in range(4)], T + 16, sum(a_jobs(kk), []))
    def wr(blk): return [f"ds_write_b128 {v(VWR + q if blk < 2 else T + q)}, {v(AC+16*blk+4*q,4)} offset:{(blk&1)*32768+(q>>1)*16384+(q&1)*1024}" for q in range(4)]
    pend = []
    for mi in range(4):
        for kk in range(18 - NT, 18):
            P(mfma(AC + 16 * mi, BTq(kk, mi >> 1), AFq(kk, mi & 1)))
            if kk > 18 - NT or NT == 1: P.add(pend[:2]); pend = pend[2:]
        P.add(pend); pend = wr(mi)
    stamp("p2mm")
    P.add(pend)
    P("s_waitcnt lgkmcnt(0)")
    stamp("rw")
    P("s_barrier")
    stamp("rb")
    R = XF
    for ww in range(8):
        for hf in range(2): P(f"ds_read_b128 {v(R+8*ww+4*hf,4)}, {v(VRED)} offset:{2048*ww+512*hf}")
    for ww in range(8):
        for i in range(0, 8, 2): P(f"v_pk_add_f32 {v(F+i,2)}, {v(F+i,2)}, {v(R+8*ww+i,2)}")
    for i in range(4): P(f"v_cvt_pk_bf16_f32 {v(XR+i)}, {v(F+2*i)}, {v(F+2*i+1)}")
    P(f"buffer_store_dwordx4 {v(XR,4)}, {v(VXR)}, {s(SOUT,4)}, {s(sOo)} offen {OPT.get('om', '').replace('+', ' ')}")
    finish(ffn)

def softmax(p, out, LS, pk=False):
    t = T + 16
    if pk:
        assert LS == STD + 1
        L = softmax(p, out, LS)[:9]
        L += [f"v_pk_fma_f32 {v(p+i,2)}, {v(p+i,2)}, {v(STD,2)}, {v(t,2)} op_sel:[0,1,0] op_sel_hi:[1,1,0] neg_lo:[0,0,1] neg_hi:[0,0,1]" for i in range(0, 16, 2)]
        L += [f"v_exp_f32 {v(p+i)}, {v(p+i)}" for i in range(16)]
        L += [f"v_pk_add_f32 {v(t,2)}, {v(p,2)}, {v(p+2,2)}", f"v_pk_add_f32 {v(t+2,2)}, {v(p+4,2)}, {v(p+6,2)}"]
        L += [f"v_pk_add_f32 {v(t+2*(i&1),2)}, {v(t+2*(i&1),2)}, {v(p+8+2*i,2)}" for i in range(4)]
        L += [f"v_pk_add_f32 {v(t,2)}, {v(t,2)}, {v(t+2,2)}", f"v_add_f32 {v(t)}, {v(t)}, {v(t+1)}", f"v_rcp_f32 {v(t)}, {v(t)}"]
        L += [f"v_pk_mul_f32 {v(p+i,2)}, {v(p+i,2)}, {v(t,2)} op_sel_hi:[1,0]" for i in range(0, 16, 2)]
        return L + [f"v_cvt_pk_bf16_f32 {v(out+i)}, {v(p+2*i)}, {v(p+2*i+1)}" for i in range(8)]
    L = [f"v_max3_f32 {v(t)}, {v(p)}, {v(p+1)}, {v(p+2)}", f"v_max3_f32 {v(t+1)}, {v(p+3)}, {v(p+4)}, {v(p+5)}",
         f"v_max3_f32 {v(t)}, {v(t)}, {v(p+6)}, {v(p+7)}", f"v_max3_f32 {v(t+1)}, {v(t+1)}, {v(p+8)}, {v(p+9)}",
         f"v_max3_f32 {v(t)}, {v(t)}, {v(p+10)}, {v(p+11)}", f"v_max3_f32 {v(t+1)}, {v(t+1)}, {v(p+12)}, {v(p+13)}",
         f"v_max3_f32 {v(t)}, {v(t)}, {v(p+14)}, {v(p+15)}", f"v_max_f32 {v(t)}, {v(t)}, {v(t+1)}",
         f"v_mul_f32 {v(t)}, {v(t)}, {v(LS)}"]
    L += [f"v_fma_f32 {v(p+i)}, {v(p+i)}, {v(LS)}, -{v(t)}" for i in range(16)]
    L += [f"v_exp_f32 {v(p+i)}, {v(p+i)}" for i in range(16)]
    L += [f"v_add_f32 {v(t)}, {v(p)}, {v(p+1)}", f"v_add_f32 {v(t+1)}, {v(p+2)}, {v(p+3)}"]
    for i in range(4, 16, 2):
        L += [f"v_add_f32 {v(t)}, {v(t)}, {v(p+i)}", f"v_add_f32 {v(t+1)}, {v(t+1)}, {v(p+i+1)}"]
    L += [f"v_add_f32 {v(t)}, {v(t)}, {v(t+1)}", f"v_rcp_f32 {v(t)}, {v(t)}"]
    L += [f"v_mul_f32 {v(p+i)}, {v(p+i)}, {v(t)}" for i in range(16)]
    L += [f"v_cvt_pk_bf16_f32 {v(out+i)}, {v(p+2*i)}, {v(p+2*i+1)}" for i in range(8)]
    return L

setup(False)
KAREA[:] = [RC, RA+3*Q, RB, RA, RA+Q, RA+2*Q, RB+Q, RB+2*Q, RB+3*Q]
LS = K1; VPK = K2; VV = VW3; MC = BIAS
PHI0, PHI1 = AX, AAUG
PHI0 = AX
PHI1 = S1
PHI1 = T + 12
t = T + 16
P(f"v_bfe_u32 {v(t)}, {v(vL)}, 2, 2\nv_lshrrev_b32 {v(t+1)}, 5, {v(vL)}\nv_lshl_add_u32 {v(t)}, {v(t+1)}, 2, {v(t)}\nv_lshlrev_b32 {v(t)}, 5, {v(t)}")
P(f"v_bfe_u32 {v(t+2)}, {v(vL)}, 1, 1\nv_lshl_add_u32 {v(t)}, {v(t+2)}, 3, {v(t)}\nv_bfe_u32 {v(t+2)}, {v(vL)}, 4, 1\nv_lshl_add_u32 {v(t)}, {v(t+2)}, 4, {v(t)}")
P(f"s_lshl_b32 {s(sT1)}, {s(sHALF)}, 10\ns_add_u32 {s(sT1)}, {s(sT1)}, {L_WPHI}\nv_add_u32 {v(AB)}, {s(sT1)}, {v(t)}")
P(f"v_bfe_u32 {v(t)}, {v(vL)}, 2, 1\nv_mul_u32_u24 {v(t)}, 0x8000, {v(t)}\nv_lshl_or_b32 {v(AB+1)}, {v(t)}, 16, {v(t)}")
P(f"v_and_b32 {v(t)}, 31, {v(vL)}\nv_lshlrev_b32 {v(t)}, 6, {v(t)}\ns_lshl_b32 {s(sT1)}, {s(sW34)}, 9\nv_bfe_u32 {v(t+2)}, {v(vL)}, 1, 2")
P(f"v_lshlrev_b32 {v(t+3)}, 1, {v(t+1)}\nv_xor_b32 {v(t+3)}, {v(t+3)}, {v(t+2)}")
P(f"s_lshl_b32 {s(sT2)}, {s(sHALF)}, 14\ns_add_u32 {s(sT2)}, {s(sT2)}, {s(sT1)}\nv_lshl_add_u32 {v(VPK)}, {v(t+3)}, 4, {v(t)}\nv_add_u32 {v(VPK)}, {s(sT2)}, {v(VPK)}")
P(f"v_xor_b32 {v(t+3)}, {v(t+1)}, {v(t+2)}")
P(f"s_lshl_b32 {s(sT2)}, {s(sHALF)}, 13\ns_add_u32 {s(sT2)}, {s(sT2)}, {s(sT1)}\ns_add_u32 {s(sT2)}, {s(sT2)}, {RA+32768}\nv_lshl_add_u32 {v(VV)}, {v(t+3)}, 4, {v(t)}\nv_add_u32 {v(VV)}, {s(sT2)}, {v(VV)}")
def phi_load(hl, dst):
    return [f"ds_read_b64_tr_b16 {v(dst+2*tt,2)}, {v(AB)} offset:{512*hl+256*tt}" for tt in range(2)] + \
           [f"v_xor_b32 {v(dst+i)}, {v(AB+1)}, {v(dst+i)}" for i in range(4)]
S = Sched(96)
common_sched(S, False, None, MC)
S.post[30] += [f"ds_read_b128 {v(CSR,4)}, {v(VCSA)}"]
sKV, sOS = sH0, sH3
P(f"s_lshl_b32 {s(sT0)}, {s(sG)}, 4\ns_add_u32 {s(sT0)}, {s(sT0)}, {s(sRT)}\ns_mul_i32 {s(sT0)}, {s(sT0)}, {KVP_SZ}\ns_mul_i32 {s(sT1)}, {s(sW)}, 1152\ns_add_u32 {s(sT0)}, {s(sT0)}, {s(sT1)}\ns_add_u32 {s(sT0)}, {s(sT0)}, {WS_KVP}")
P(f"s_cmp_lt_u32 {s(sW)}, 4\ns_cselect_b32 {s(sKV)}, {s(sT0)}, 0x7f000000")
P(f"s_lshl_b32 {s(sT0)}, {s(sG)}, 2\ns_lshl_b32 {s(sT1)}, {s(sHALF)}, 1\ns_add_u32 {s(sT0)}, {s(sT0)}, {s(sT1)}\ns_add_u32 {s(sT0)}, {s(sT0)}, 112\ns_lshl_b32 {s(sT0)}, {s(sT0)}, 10\ns_add_u32 {s(sOS)}, {s(sT0)}, {s(sHo)}")
PA = AAUG
OFFL = OPT.get("off", "0") == "1"
if OFFL:
    P(f"s_mul_i32 {s(sT0)}, {s(sG)}, 448\ns_and_b32 {s(sT1)}, {s(sG)}, 1\ns_add_u32 {s(sT2)}, {s(sT1)}, {s(sHALF)}\ns_lshl_b32 {s(sT2)}, {s(sT2)}, 6\ns_add_u32 {s(sT2)}, {s(sT2)}, {s(sT0)}")
    P(f"s_lshl_b32 {s(sT2)}, {s(sT2)}, 5\ns_add_u32 {s(sWq)}, {s(sT2)}, {s(sHo)}\ns_add_u32 {s(sWq)}, {s(sWq)}, 8192")
    P(f"s_xor_b32 {s(sT1)}, {s(sT1)}, 1\ns_mul_i32 {s(sT1)}, {s(sT1)}, 384\ns_add_u32 {s(sT0)}, {s(sT0)}, {s(sT1)}\ns_lshl_b32 {s(sT1)}, {s(sHALF)}, 5\ns_add_u32 {s(sT0)}, {s(sT0)}, {s(sT1)}")
    P(f"s_lshl_b32 {s(sT0)}, {s(sT0)}, 5\ns_add_u32 {s(sW3)}, {s(sT0)}, {s(sHo)}")
S.post[46] += [f"v_mov_b32 {v(PA+i)}, -1" for i in range(4)] + [f"v_lshrrev_b32 {v(S2)}, 2, {v(vL)}", f"v_lshl_add_u32 {v(S2)}, {v(S2)}, 26, {v(VL16)}"]
S.post[47] += [f"buffer_store_dwordx4 {v(PA,4)}, {v(VL16)}, {s(SWS,4)}, {s(sKV)} offen sc1"]
S.post[48] += [f"buffer_store_dwordx4 {v(PA,4)}, {v(S2)}, {s(SWS,4)}, {s(sKV)} offen offset:1024 sc1 ; tag=pz"]
pl = [(sOS, 0), (sOS, 1024)] + ([(sWq, 0), (sWq, 1024), (sW3, 0)] if OFFL else [])
for (so, off), G in zip(pl, [int(x) for x in OPT.get("pza", "50,53,56,59,62").split(",")]):
    S.post[G] += [f"buffer_store_dwordx4 {v(PA,4)}, {v(VL16)}, {s(SWS,4)}, {s(so)} offen offset:{off} sc1 ; tag=po"]
PX1 = OPT.get("px1") == "1"
if V2 and PX1:
    for j, G in zip((1, 2, 3), (56, 59, 62)): S.post[G] += xoff(j, True) + [f"buffer_store_dwordx4 {v(PA,4)}, {v(VL16)}, {s(SWS,4)}, {s(sT0)} offen sc1 ; tag=px"]
S.post[63] += [f"v_mov_b32 {v(PA+2)}, 0", f"v_mov_b32 {v(PA+3)}, 0"]
def ltouch():
    P(f"s_sub_u32 {s(sT0)}, {s(sW)}, 4\ns_cmp_lt_u32 {s(sT0)}, 3")
    P(f"s_cbranch_scc0 L_nlt")
    P.cond_begin("w456")
    P(f"v_lshlrev_b32 {v(S1)}, 7, {v(vL)}\ns_lshl_b32 {s(sT1)}, {s(sRT)}, 3\ns_add_u32 {s(sT1)}, {s(sT1)}, {s(sG)}")
    P(f"s_cmp_eq_u32 {s(sT0)}, 2\ns_cbranch_scc1 L_lt2")
    P(f"s_lshl_b32 {s(sT1)}, {s(sT1)}, 1\ns_add_u32 {s(sT1)}, {s(sT1)}, {s(sT0)}\ns_mul_i32 {s(sT1)}, {s(sT1)}, 7168")
    P(f"buffer_load_dword {v(VX0)}, {v(S1)}, {s(SW2,4)}, {s(sT1)} offen")
    P("s_branch L_nlt")
    P("L_lt2:")
    P(f"v_and_b32 {v(S1)}, 4095, {v(S1)}\ns_lshl_b32 {s(sT1)}, {s(sT1)}, 12")
    P(f"buffer_load_dword {v(VX0)}, {v(S1)}, {s(SWO,4)}, {s(sT1)} offen")
    P(f"buffer_load_dword {v(VX1)}, {v(S1)}, {s(SB2,4)}, 0 offen")
    P.cond_end()
    for I in P.ins[-12:]:
        if I.kind == "vld": I.defs = []
    P("L_nlt:")
if OPT.get("touch", "3") == "2": S.blk[("e", int(OPT.get("tg", 54)))] = ltouch
S.post[31] += stamp_i("pass1")
fill = stats_final() + aug(ACC0, CSR, None) + phi_load(0, AX) + phi_load(1, T + 8) + [f"v_mul_f32 {v(LS)}, {f2u(LOG2E):#x}, {v(RSTD)}"]
fill += [f"v_cvt_pk_bf16_f32 {v(T+i)}, {v(ACC0+2*i)}, {v(ACC0+2*i+1)}" for i in range(8)]
fill += [mfma(ACC2, AX, T, "0"), mfma(ACC0, T + 8, T + 4, "0")]
S.spread(fill, 32, 40)
S.spread(softmax(ACC2, T + 8, LS) + softmax(ACC0, T, LS), 41, 64)
pkg = 62 if OPT.get("few", "1") == "1" else 56
S.post[pkg] += [f"ds_write_b128 {v(VPK)}, {v(T+8,4)}", f"v_xor_b32 {v(VSTA)}, 16, {v(VPK)}"]
S.post[pkg+1] += [f"ds_write_b128 {v(VSTA)}, {v(T+12,4)}"]
S.post[62] += [f"ds_read_b128 {v(MC,4)}, {v(VCSA)} offset:1024"]
S.post[63] += stamp_i("sub1")
S.pre[64] += sum4(CS0, MC)
S.fill[64] += aug(ACC1, MC, None)[3:]
S.post[65] += [f"ds_write_b128 {v(VPK)}, {v(T,4)} offset:8192"]
S.post[66] += [f"ds_write_b128 {v(VSTA)}, {v(T+4,4)} offset:8192"]
fill = []
fill += [f"v_mul_f32 {v(ACC1+i)}, {v(ACC1+i)}, {v(RSTD)}" for i in range(16)]
fill += [f"v_cvt_pk_bf16_f32 {v(ACC1+i)}, {v(ACC1+2*i)}, {v(ACC1+2*i+1)}" for i in range(8)]
fill += [f"ds_write_b128 {v(VV)}, {v(ACC1,4)}", f"v_xor_b32 {v(VV)}, 32, {v(VV)}", f"ds_write_b128 {v(VV)}, {v(ACC1+4,4)}"]
S.spread(fill, 66, 70)
S.dmas(b_dma(0), 65, 3)
S.dmas(b_dma(1), 74, 4); S.dmas(b_dma(2) + b_dma(3) + b_dma(4), 86, 1)
def kvblock():
    P(".waitvm pz lgkm0")
    P("s_barrier")
    kvflag()
    stamp("kv0"); stamp("kv1")
    P(f"s_cmp_lt_u32 {s(sW)}, 4")
    P("s_cbranch_scc0 L_nkv")
    P.cond_begin("lo4")
    t = T + 16; u = S1
    P(f"v_bfe_u32 {v(u)}, {v(vL)}, 2, 2\nv_lshrrev_b32 {v(u+1)}, 5, {v(vL)}\nv_lshl_add_u32 {v(u)}, {v(u+1)}, 3, {v(u)}\nv_lshlrev_b32 {v(u)}, 6, {v(u)}")
    P(f"v_bfe_u32 {v(u+1)}, {v(vL)}, 1, 1\nv_lshl_add_u32 {v(u)}, {v(u+1)}, 3, {v(u)}\nv_bfe_u32 {v(u+1)}, {v(vL)}, 3, 1\nv_and_b32 {v(VSTA)}, 1, {v(vL)}")
    P(f"v_or_b32 {v(t)}, {s(sSH)}, {v(VSTA)}\nv_xor_b32 {v(t)}, {v(t)}, {v(u+1)}\nv_lshl_add_u32 {v(t)}, {v(t)}, 4, {v(u)}")
    P(f"s_lshr_b32 {s(sT0)}, {s(sW)}, 1\ns_lshl_b32 {s(sT0)}, {s(sT0)}, 13\ns_add_u32 {s(sT0)}, {s(sT0)}, {RA+32768}\nv_add_u32 {v(t)}, {s(sT0)}, {v(t)}\nv_xor_b32 {v(t+1)}, 32, {v(t)}")
    P(f"v_bfe_u32 {v(t+2)}, {v(vL)}, 4, 1\nv_lshl_add_u32 {v(t+2)}, {v(VSTA)}, 1, {v(t+2)}\nv_xor_b32 {v(t+2)}, {v(t+2)}, {v(u+1)}\nv_lshl_add_u32 {v(t+2)}, {v(t+2)}, 4, {v(u)}")
    P(f"s_lshl_b32 {s(sT0)}, {s(sW)}, 13\nv_add_u32 {v(t+2)}, {s(sT0)}, {v(t+2)}\nv_xor_b32 {v(t+3)}, 32, {v(t+2)}")
    P(f"v_and_b32 {v(u)}, 16, {v(vL)}\nv_cmp_eq_u32 vcc, 0, {v(u)}\nv_mov_b32 {v(u+1)}, {s(sONE)}")
    KB = [T, T + 8, ACC1, ACC1 + 8]
    def kr(J):
        for tt in range(2):
            P(f"ds_read_b64_tr_b16 {v(KB[J&3]+2*tt,2)}, {v(t+tt)} offset:{1024*J+256*tt}")
            P(f"ds_read_b64_tr_b16 {v(KB[J&3]+4+2*tt,2)}, {v(t+2+tt)} offset:{1024*J+256*tt}")
    kr(0); kr(1); kr(2)
    for J in range(8):
        for i in range(4): P(f"v_cndmask_b32 {v(KB[J&3]+i)}, {v(u+1)}, {v(KB[J&3]+i)}, vcc")
        if J + 3 < 8: kr(J + 3)
        P(mfma(ACC0, KB[J&3] + 4, KB[J&3], "0" if J == 0 else None))
    P(f"v_lshrrev_b32 {v(u)}, 5, {v(vL)}\nv_and_b32 {v(t+2)}, 15, {v(vL)}\nv_lshlrev_b32 {v(t)}, 4, {v(t+2)}\nv_lshl_add_u32 {v(t)}, {v(u)}, 8, {v(t)}\nv_add_u32 {v(t+1)}, 512, {v(t)}")
    P(f"v_lshlrev_b32 {v(u)}, 4, {v(u)}\nv_add_u32 {v(u)}, 1024, {v(u)}\nv_lshl_add_u32 {v(u)}, {v(t+2)}, 26, {v(u)}\nv_add_u32 {v(u+1)}, 32, {v(u)}")
    P(f"v_cndmask_b32 {v(t)}, {v(u)}, {v(t)}, vcc\nv_cndmask_b32 {v(t+1)}, {v(u+1)}, {v(t+1)}, vcc")
    for i in range(8): P(f"v_cvt_pk_bf16_f32 {v(T+i)}, {v(ACC0+2*i)}, {v(ACC0+2*i+1)}")
    stamp("kv1")
    for j in range(2): P(f"buffer_store_dwordx4 {v(T+4*j,4)}, {v(t+j)}, {s(SWS,4)}, {s(sKV)} offen sc1")
    P.cond_end()
    P("L_nkv:")
    stamp("kv2")
S.blk[70] = kvblock
S.pre[94] += ["s_waitcnt lgkmcnt(0)", "s_barrier"]
def kvflag():
    P(f"s_cmp_eq_u32 {s(sW)}, 7")
    P("s_cbranch_scc0 L_nkf")
    P.cond_begin("w0")
    P(f"s_lshl_b32 {s(sT0)}, {s(sG)}, 8\ns_lshl_b32 {s(sT1)}, {s(sRT)}, 2\ns_add_u32 {s(sT0)}, {s(sT0)}, {s(sT1)}\ns_add_u32 {s(sT0)}, {s(sT0)}, {WS_KVF}")
    P(f"v_mov_b32 {v(VFV)}, 1")
    P(f"buffer_store_dword {v(VFV)}, {v(VZ)}, {s(SWS,4)}, {s(sT0)} offen sc1")
    P.cond_end()
    P("L_nkf:")
def kvpoll():
    P(f"s_cmp_eq_u32 {s(sW)}, 7")
    P("s_cbranch_scc0 L_nkp")
    n0 = len(P.ins)
    P(f"s_lshl_b32 {s(sT2)}, {s(sG)}, 8\ns_add_u32 {s(sT2)}, {s(sT2)}, {WS_KVF}\ns_mov_b32 {s(sCNT)}, 0")
    P("s_branch L_spkv1")
    P("L_spkv:")
    P(f"s_buffer_load_dwordx16 s[20:35], {s(SWS,4)}, {s(sT2)} glc")
    P("L_spkv1:")
    P(f"s_add_u32 {s(sCNT)}, {s(sCNT)}, 1")
    P("s_waitcnt lgkmcnt(0)")
    for i in range(22, 36, 2): P(f"s_and_b64 s[20:21], s[20:21], s[{i}:{i+1}]")
    P("s_and_b32 s20, s20, s21")
    P("s_cbranch_scc1 L_nkp")
    P(f"s_cmp_gt_u32 {s(sCNT)}, {SPIN_MAX}")
    P("s_cbranch_scc1 L_nkp")
    P("s_sleep 1")
    P("s_branch L_spkv")
    for I in P.ins[n0:]:
        I.cond = "kvp"
        if I.kind == "smem": I.kind = "opaque"
    P("L_nkp:")
def kvreq():
    P(f"s_cmp_eq_u32 {s(sW)}, 7")
    P("s_cbranch_scc0 L_nkr")
    n0 = len(P.ins)
    P(f"s_lshl_b32 {s(sT2)}, {s(sG)}, 8\ns_add_u32 {s(sT2)}, {s(sT2)}, {WS_KVF}")
    P(f"s_buffer_load_dwordx16 s[20:35], {s(SWS,4)}, {s(sT2)} glc")
    for I in P.ins[n0:]:
        I.cond = "kvp"
        if I.kind == "smem": I.kind = "opaque"
    P("L_nkr:")
S.blk[87] = kvreq; S.blk[94] = kvpoll
S.post[94] += [f"ds_read_b128 {v(CSR,4)}, {v(VCSA)} offset:2048"] + phi_load(1, T + 8)
run_sched(S, [ACC0, ACC1, ACC2])
stamp("sub2")
PQ = WF
def Gq(r): return XF + 8 * r
Z = XF + 80; GA = XF + 64
VG, VGZ = S1, S2
P(f"s_mul_i32 {s(sT2)}, {s(sG)}, {16*KVP_SZ}\ns_lshr_b32 {s(sT0)}, {s(sW)}, 1\ns_mul_i32 {s(sT0)}, {s(sT0)}, 1152\ns_add_u32 {s(sT2)}, {s(sT2)}, {s(sT0)}\ns_add_u32 {s(sT2)}, {s(sT2)}, {WS_KVP}")
P(f"v_and_b32 {v(VGZ)}, 15, {v(vL)}\nv_mul_u32_u24 {v(VGZ)}, {KVP_SZ}, {v(VGZ)}\nv_and_b32 {v(VG)}, 16, {v(vL)}\nv_add_u32 {v(VGZ)}, {v(VGZ)}, {v(VG)}\ns_lshl_b32 {s(sT0)}, {s(sSH)}, 4\nv_add_u32 {v(VGZ)}, {s(sT0)}, {v(VGZ)}")
P(f"v_lshrrev_b32 {v(VG)}, 5, {v(vL)}\nv_mul_u32_u24 {v(VG)}, {8*KVP_SZ - 512}, {v(VG)}\nv_add_u32 {v(VG)}, {v(VG)}, {v(VL16)}\ns_lshl_b32 {s(sT0)}, {s(sSH)}, 8\nv_add_u32 {v(VG)}, {s(sT0)}, {v(VG)}")
gl = [[f"buffer_load_dwordx4 {v(Z,4)}, {v(VGZ)}, {s(SWS,4)}, {s(sT2)} offen offset:1024 sc1"]]
for r in range(8):
    gl.append(lines(f"s_add_u32 {s(sD1)}, {s(sRT)}, {r}\ns_and_b32 {s(sD1)}, {s(sD1)}, 7\ns_mul_i32 {s(sD1)}, {s(sD1)}, {KVP_SZ}\ns_add_u32 {s(sD1)}, {s(sD1)}, {s(sT2)}") +
              [f"buffer_load_dwordx4 {v(Gq(r),4)}, {v(VG)}, {s(SWS,4)}, {s(sD1)} offen sc1"])
P.add(aug(ACC2, CSR, None))
bd = sum([b_dma(kk) for kk in (5, 6, 7)], [])
GD = int(OPT.get("gd", 2))
for g_ in bd[:GD]: P.add(g_)
for i in range(8): P(f"v_cvt_pk_bf16_f32 {v(T+i)}, {v(ACC2+2*i)}, {v(ACC2+2*i+1)}")
P(mfma(ACC1, AX, T, "0"))
P(mfma(ACC2, T + 8, T + 4, "0"))
P.add(interleave(gl, softmax(ACC1, PQ, LS, True)))
stamp("qsm")
sneed(1, 1)
P(spoll(0))
P.add(interleave(bd[GD:], softmax(ACC2, PQ + 8, LS, True)))
stamp("sm2")
sneed(1, 0)
validate([Z + i for i in range(4)] + [Gq(r) + i for r in range(8) for i in range(4)], T + 16, sum(gl, []))
stamp("kvseen")
aj = sum([a_jobs(kk) for kk in range(8 if V2 else 4)], [])
n_o0 = len(P.ins)
P(f"v_lshrrev_b32 {v(T+1)}, 5, {v(vL)}")
P(f"v_bfe_u32 {v(T+2)}, {v(vL)}, 4, 1\nv_lshlrev_b32 {v(T+2)}, 9, {v(T+2)}\nv_lshl_add_u32 {v(T+2)}, {v(T+1)}, 3, {v(T+2)}")
P(f"s_lshl_b32 {s(sT0)}, {s(sW)}, 10\ns_add_u32 {s(sT0)}, {s(sT0)}, {L_KVB}\nv_add_u32 {v(T+2)}, {s(sT0)}, {v(T+2)}")
P(f"v_and_b32 {v(T+3)}, 15, {v(vL)}\nv_lshl_add_u32 {v(T+3)}, {v(T+3)}, 4, {v(T+2)}")
P(f"v_cmp_gt_u32 vcc, 32, {v(vL)}\ns_mov_b32 {s(sT0)}, 0x3f80\ns_mov_b32 {s(sT1)}, 0x3f800000")
P(f"v_cndmask_b32 {v(Z)}, {v(Z+2)}, {v(Z)}, vcc\nv_cndmask_b32 {v(Z+1)}, {v(Z+3)}, {v(Z+1)}, vcc")
P(f"v_lshlrev_b32 {v(Z+8)}, 16, {v(Z)}\nv_and_b32 {v(Z+9)}, 0xffff0000, {v(Z)}\nv_lshlrev_b32 {v(Z+10)}, 16, {v(Z+1)}\nv_and_b32 {v(Z+11)}, 0xffff0000, {v(Z+1)}")
for ror in (8, 4, 2, 1):
    for i in range(4): P(f"v_add_f32_dpp {v(Z+8+i)}, {v(Z+8+i)}, {v(Z+8+i)} row_ror:{ror} row_mask:0xf bank_mask:0xf")
P(f"v_cvt_pk_bf16_f32 {v(Z)}, {v(Z+8)}, {v(Z+9)}\nv_cvt_pk_bf16_f32 {v(Z+1)}, {v(Z+10)}, {v(Z+11)}")
P(f"ds_write_b64 {v(T+2)}, {v(Z,2)} offset:256")
def ga(i): return GA + (i & 3) + 8 * (i >> 2)
for i in range(4):
    P(f"v_lshlrev_b32 {v(ga(2*i))}, 16, {v(Gq(0)+i)}\nv_and_b32 {v(ga(2*i+1))}, 0xffff0000, {v(Gq(0)+i)}")
for r in range(1, 8):
    for i in range(4):
        P(f"v_dot2c_f32_bf16 {v(ga(2*i))}, {s(sT0)}, {v(Gq(r)+i)}\nv_dot2c_f32_bf16 {v(ga(2*i+1))}, {s(sT1)}, {v(Gq(r)+i)}")
for i in range(4): P(f"v_permlane32_swap_b32 {v(ga(i))}, {v(ga(i+4))}")
for i in range(4): P(f"v_add_f32 {v(ga(i))}, {v(ga(i))}, {v(ga(i+4))}")
P(f"v_cvt_pk_bf16_f32 {v(GA)}, {v(GA)}, {v(GA+1)}\nv_cvt_pk_bf16_f32 {v(GA+1)}, {v(GA+2)}, {v(GA+3)}")
P(f"ds_write_b64 {v(T+3)}, {v(GA,2)}")
stamp("gsum")
P(f"v_and_b32 {v(T)}, 31, {v(vL)}\nv_min_u32 {v(T)}, 16, {v(T)}\nv_and_b32 {v(T+1)}, 32, {v(vL)}\nv_add_u32 {v(T)}, {v(T)}, {v(T+1)}\nv_lshlrev_b32 {v(T)}, 4, {v(T)}")
P(f"s_lshl_b32 {s(sT0)}, {s(sHALF)}, 12\ns_add_u32 {s(sT0)}, {s(sT0)}, {L_KVB}\nv_add_u32 {v(T)}, {s(sT0)}, {v(T)}")
P(".waitvm b7 lgkm0")
P("s_barrier")
for i in range(4): P(f"ds_read_b128 {v(Gq(i),4)}, {v(T)} offset:{1024*i}")
P(mfma(ACC0, Gq(0), PQ, "0")); P(mfma(ACC1, Gq(2), PQ + 8, "0"))
P(mfma(ACC0, Gq(1), PQ + 4)); P(mfma(ACC1, Gq(3), PQ + 12))
body = P.ins[n_o0:]; del P.ins[n_o0:]
for i, g_ in enumerate(aj):
    P.add(g_); P.ins += body[len(body)*i//8: len(body)*(i+1)//8]
for hl, acc in enumerate((ACC0, ACC1)):
    P(f"v_add_f32 {v(acc+8)}, {f2u(1e-6):#x}, {v(acc+8)}\nv_rcp_f32 {v(acc+8)}, {v(acc+8)}")
    for i in range(8): P(f"v_mul_f32 {v(acc+i)}, {v(acc+i)}, {v(acc+8)}")
    for i in range(4): P(f"v_cvt_pk_bf16_f32 {v(T+4*hl+i)}, {v(acc+2*i)}, {v(acc+2*i+1)}")
    P(f"buffer_store_dwordx4 {v(T+4*hl,4)}, {v(VL16)}, {s(SWS,4)}, {s(sOS)} offen offset:{1024*hl} sc1 ; ost")
stamp("p1end")
if V2: phase2_v2((8,), False)
else: phase2(("B6", "B7"), "A4 A5 A6 B8 A7 B9 A8 B10 A9 B11 A10 B12 A11 B13 A12 B14 A13 B15 B16 B17 A14 A15 A16 A17")

P("L_ffn:")
P(".reset")
setup(True)
KAREA[:] = [RC, RA+2*Q, RA+3*Q, RB, RB+Q, RB+2*Q, RA, RA+Q, RB+3*Q]
MC = ACC2; CSF = ACC2 + 4
S = Sched(112)
common_sched(S, True, None, MC)
S.post[30] += [f"ds_read_b128 {v(CSF,4)}, {v(VCSA)}"]
S.post[40] += [f"s_add_u32 {s(sT2)}, {s(sH0)}, 4096", f"s_add_u32 {s(sK)}, {s(sH0)}, 8192"]
pzs = [[f"buffer_store_dwordx4 {v(PZ,4)}, {v(VL16)}, {s(SWS,4)}, {s(so)} offen offset:{off} sc1 ; tag=h1"]
       for so, off in ((sT2, 0), (sT2, 1024), (sK, 0), (sK, 1024), (sH3, 0))[:2 if OFFL else 5]]
for g_, G in zip(pzs, [int(x) for x in OPT.get("pz", "50,56,59,67,70").split(",")]): S.post[G] += g_
S.post[31] += stamp_i("pass1")
fill = stats_final() + aug(ACC0, CSF, BIAS)
fill += [f"v_mul_f32 {v(K1)}, {f2u(GC1):#x}, {v(RSTD)}", f"v_mul_f32 {v(K2)}, {v(RSTD)}, {v(RSTD)}",
         f"v_mul_f32 {v(K2)}, {v(K2)}, {v(RSTD)}", f"v_mul_f32 {v(K2)}, {f2u(GC2):#x}, {v(K2)}"]
S.spread(fill, 32, 39)
S.spread(gelu(ACC0, 16) + hstore(sH0, 2, "h1") + [f"s_add_u32 {s(sH0)}, {s(sH0)}, 4096"], 39, 64)
S.post[62] += [f"ds_read_b128 {v(CSF,4)}, {v(VCSA)} offset:1024"]
S.post[63] += stamp_i("sub1")
S.spread(aug(ACC1, CSF, BIAS + 1), 64, 66)
S.spread(gelu(ACC1, 16) + hstore(sH0, 2, "h2") + [f"s_add_u32 {s(sH0)}, {s(sH0)}, 4096"], 67, 96)
w3 = sum([w3quarter(q, 3584) for q in range(4)], [])
for g_, G in zip(w3 + b_dma(0), [int(x) for x in OPT.get("w3", "64,68,72,76,52,54" if OPT.get("few", "1") == "1" else "48,54,60,72,75,76").split(",")]): S.dma[G] += g_
S.dmas(b_dma(1), 78, 2); S.dmas(b_dma(2), 82, 2); S.dmas(b_dma(3), 86, 2); S.dmas(b_dma(4), 90, 2); S.dmas(b_dma(5), 98, 2)
S.pre[94] += [".waitvm w3 lgkm0", "s_barrier"]
S.post[94] += [f"ds_read_b128 {v(CSF,4)}, {v(VCSA)} offset:2048"]
S.post[95] += stamp_i("sub2")
if V2 and PX1:
    for j, G in zip((1, 2, 3), [int(x) for x in OPT.get("pxg", "91,93,102").split(",")]): S.post[G] += xoff(j, True) + [f"buffer_store_dwordx4 {v(PZ,4)}, {v(VL16)}, {s(SWS,4)}, {s(sT0)} offen sc1 ; tag=px"]
S.fill[96] += aug(ACC0, CSF, BIAS + 2)
if OFFL: S.post[106] += [f"s_sub_u32 {s(sT2)}, {s(sFO)}, 1024", f"s_buffer_load_dword {s(sK)}, {s(SWS,4)}, {s(sT2)} glc"]
S.spread(gelu(ACC0, 16), 98, 112)
aj = sum([a_jobs(kk) for kk in range(8 if V2 else 6)], []) + [[]] * 4
S.dmas(aj[:6], 106); aj = aj[2:]
for i in range(0, 16, 2): S.post[96 + i] += [m16(MC, SEL, WF + 4 * (i & 3), "0" if i == 0 else None)]
run_sched(S, [ACC0, ACC1, ACC0, ACC1])
t = T + 16
P(f"v_and_b32 {v(t)}, 31, {v(vL)}\ns_lshl_b32 {s(sT0)}, {s(sHALF)}, 4\nv_xor_b32 {v(t)}, {s(sT0)}, {v(t)}\nv_lshlrev_b32 {v(t)}, 4, {v(t)}\nv_add_u32 {v(t)}, {L_CS+3072}, {v(t)}")
P(f"v_add_u32 {v(t+1)}, {s(sW34)}, {v(VCSA)}")
P(f"ds_write_b32 {v(t+1)}, {v(MC)} offset:3072")
P.add(aj[4])
XO = 4096 if V2 else 1024
P(f"s_add_u32 {s(sT1)}, {s(sMB if V2 else sM0x)}, {KAREA[8]}\ns_xor_b32 {s(sT0)}, {s(sT1)}, 8192\nv_add_u32 {v(t+1)}, {s(sT0)}, {v(VL16)}\nv_add_u32 {v(AB)}, {s(sT1)}, {v(VL16)}")
P(f"ds_write_b128 {v(t+1)}, {v(ACC1+8,4)}\nds_write_b128 {v(t+1)}, {v(ACC1+12,4)} offset:{XO}")
P(".waitvm b5 lgkm0")
P("s_barrier")
stamp("sub3")
P(f"ds_read_b128 {v(CSF,4)}, {v(t)}")
P(f"ds_read_b128 {v(ACC0,4)}, {v(AB)}\nds_read_b128 {v(ACC0+4,4)}, {v(AB)} offset:{XO}")
P.add(aj[5])
P.add(aug(ACC1, CSF, BIAS + 3))
P.add(aj[6] + aj[7])
for i in range(0, 8, 2): P(f"v_pk_add_f32 {v(ACC1+i,2)}, {v(ACC1+i,2)}, {v(ACC0+i,2)}")
stamp("x7")
gt = gelu(ACC1, 8, True, out=BIAS); h3 = hstore(sH0, 2, "h3")
sneed(1, 1)
if OFFL: own_check()
P.add(aj[8] + gt[:10] + aj[9] + gt[10:20] + [h3[0]] + gt[20:30] + [h3[1]] + gt[30:] + hstore(sH3, 1, "h4", BIAS))
stamp("p1end")
if V2: phase2_v2((6, 7, 8), True)
else: phase2(("A4", "A5"), "B6 A6 B7 A7 B8 B9 A8 B10 A9 B11 A10 B12 A11 B13 A12 B14 A13 B15 B16 B17 A14 A15 A16 A17", True)

P("L_end:")
P("s_endpgm")

ins = P.ins
for I in ins:
    if "; nodef" in I.text: I.defs = []
if OPT.get("nodma"): ins = [I for I in ins if I.kind != "dma"]
if OPT.get("notr"): ins = [I for I in ins if not I.op.startswith("ds_read_b64_tr")]
if OPT.get("nofmac"): ins = [I for I in ins if not (I.op.startswith("v_fmac") or (I.op == "v_and_b32" and "0xffff0000" in I.text) or (I.op == "v_lshlrev_b32" and I.ops[1] == "16"))]
if OPT.get("nom16"): ins = [I for I in ins if "16x16x32" not in I.op]
if OPT.get("notrans"): ins = [I for I in ins if not I.op.startswith(("v_exp", "v_rcp"))]
if OPT.get("novalu"): ins = [I for I in ins if not I.op.startswith(("v_exp", "v_rcp", "v_mul_f32", "v_fma_f32", "v_cvt_pk", "v_max3", "v_add_f32"))]
if OPT.get("nopk"): ins = [I for I in ins if not I.op.startswith(("v_pk_", "v_dot2c"))]
if OPT.get("noval"): ins = [I for I in ins if not (I.op == "s_cbranch_vccnz" and "_slow" in I.text)]
if OPT.get("noa"): ins = [I for I in ins if not (I.kind == "vld" and "x4" in I.op and "sc1" in I.mods)]
if OPT.get("nob"): ins = [I for I in ins if not (I.kind == "dma" and (s(SW2,4) in I.text or s(SWO,4) in I.text))]
if OPT.get("anosc"):
    for I in ins:
        if I.kind == "vld" and "x4" in I.op: I.text = I.text.replace(" sc1", " " + OPT["anosc"].replace("0", ""))
if OPT.get("nopz"): ins = [I for I in ins if not (I.kind == "vst" and "x4" in I.op and (v(PZ,4) in I.text or v(AAUG,4) in I.text) and s(SWS,4) in I.text)]
if OPT.get("plain"):
    for I in ins:
        if I.kind == "vst" and "x4" in I.op and s(SWS,4) in I.text and ("tag=h" in I.text or "tag=po" in I.text or "; ost" in I.text): I.text = I.text.replace(" sc1", "")
if OPT.get("nohs"):
    ins = [I for I in ins if not (I.op.startswith("s_buffer_load") or I.text.startswith((".waitvm h", ".waitvm po", ".waitvm zf")) or (I.op == "s_branch" and ("L_sp" in I.text or "L_ncs" in I.text or "L_oc" in I.text) and "spkv1" not in I.text))]
    for I in ins:
        if I.text.startswith(".waitvm pz"): I.text = ".waitvm none lgkm0"
if OPT.get("nost"): ins = [I for I in ins if not (I.kind == "vst" and "x4" in I.op and "tag=h" in I.text)]
if OPT.get("nomfma"): ins = [I for I in ins if I.kind != "mfma"]
if STAMP:
    for I in ins:
        if I.op in ("s_memrealtime", "s_memtime"): I.kind = "salu"
ins = auto_wait(ins)
st = []
ins = hazards(ins, st)
hdr = open("parallel_sum__linear_kernel_hedgehog__dense_activation_gelu__prompt.s.ref").read().split("; Override")[0]
out = hdr + f"; @launch grid=(256,1,1) block=(512,1,1) lds={LDS_SIZE}\n"
out += f'.amdgcn_target "amdgcn-amd-amdhsa--gfx950"\n.text\n.globl {NAME}\n.p2align 8\n.type {NAME},@function\n{NAME}:\n'
out += render(ins)
out += f""".section .rodata,"a"
.p2align 6
.amdhsa_kernel {NAME}
  .amdhsa_next_free_vgpr 256
  .amdhsa_next_free_sgpr 102
  .amdhsa_accum_offset 256
  .amdhsa_group_segment_fixed_size 0
  .amdhsa_kernarg_size 96
  .amdhsa_user_sgpr_count 2
  .amdhsa_user_sgpr_kernarg_segment_ptr 1
  .amdhsa_system_sgpr_workgroup_id_x 1
.end_amdhsa_kernel
"""
open(sys.argv[1], "w").write(out)
print(f"instrs={sum(1 for I in ins if I.kind not in ('label','dir'))} nop-sites={len(st)} nop-states={sum(n for n,_ in st)}", file=sys.stderr)
if OPT.get("nops"):
    for n, tx in st: print(n, tx, file=sys.stderr)
```

```python
import sys, math, struct
from ir import *

NAME = "parallel_sum__linear_kernel_hedgehog__dense_activation_gelu__prompt_kernel"
OPT = dict(a.split("=") for a in sys.argv[2:] if "=" in a)
STAMP = int(OPT.get("stamp", 0))

def f2u(x): return struct.unpack("<I", struct.pack("<f", x))[0]
LOG2E = 1.4426950408889634
GC1 = -2.0 * LOG2E * math.sqrt(2.0 / math.pi)
GC2 = GC1 * 0.044715

HF_RB = 144 * 1024
WS_KVP = 0xA00000
KVP_SZ = 4608
WS_FLG = 0xC00000
WS_KVF = 0xC08000
WS_STAMP = 0xD00000
WS_X = 0x1000000
WS_SIZE = 0x1800000
V2 = OPT.get('p2', '2') == '2'
RA, RB, RC = 0, 65536, 131072
L_KVB = 147456
L_CS = 155648
L_ST = L_CS + 4096
L_WPHI = L_CS + 6144
LDS_SIZE = 163840
SPIN_MAX = 1 << 15

sW, sRT, sG, sM, sN = 3, 4, 5, 6, 7
SX, SW2, SWS, SWT, SAUX, SDBG, SWO, SOUT = 8, 12, 16, 20, 24, 28, 36, 40
sXo, sWo, sROT, sC1 = 32, 33, 34, 35
SB2 = 92
sFL, sOo, sM0x, sT0, sT1, sSIG, sONE, sFO, sHALF, sHo, sWq, sW3, sT2, sCNT, sW34, sT3 = range(44, 60)
sEX = 60
sH0, sH3, sM4, sK = 62, 63, 64, 65
sST = 66
sB2o, sBOo = 90, 91
sA0, sA1, sR4, sSH, sD0, sD1 = range(96, 102)
sOK = sSIG
sQ = [sXo, sWo, sROT, sC1]
sPL = 28
VCSA = 0; vL = 1
AX = 2; AW = 6; AB = 10; VZ, VFV = 12, 13
VX0, VX1, VW, VB, VW3 = 14, 15, 16, 17, 18
VSTA, S1, S2, CS0 = 19, 20, 21, 22
VW0 = 22
RSTD, STD, K1, K2, VL16 = 23, 24, 25, 26, 27
BAUG, AAUG, SEL, BIAS = 28, 32, 36, 40
T = 44
WF = 64
ACC0, ACC1, ACC2 = 80, 96, 112
XF = 128
VTD = 15
PZ = ACC2 + 8

P = Prog()
STI = dict(start=0, kernarg=1, it0=2, pass1=3, sub1=4, sub2=5, qsm=6, sub3=6, kvseen=7, x7=7, p1end=8, hseen=9, p2mm=10, end=11)
if OPT.get("sp") == "p2": STI = dict(start=0, p1end=1, k1=2, k3=3, k5=4, k7=5, k9=6, k11=7, k13=8, k15=9, p2mm=10, end=11)
if OPT.get("sp") == "att": STI = dict(start=0, sub1=1, kv0=2, kv1=3, kv2=4, sub2=5, qsm=6, kvseen=7, sm2=8, gsum=9, p1end=10, end=11)
if OPT.get("sp", "").startswith("l:"): STI = {n: i for i, n in enumerate(["start"] + OPT["sp"][2:].split(","))}
def stamp_i(name):
    if not STAMP or name not in STI: return []
    i = STI[name]
    return [f"{'s_memrealtime' if STAMP == 1 else 's_memtime'} {s(sST + 2*i, 2)} ; stamp {i} {name}"]
def stamp(name): P.add(stamp_i(name))

def mfma(d, a, b, c=None):
    return f"v_mfma_f32_32x32x16_bf16 {v(d,16)}, {v(a,4)}, {v(b,4)}, {v(d,16) if c is None else c}"
def m16(d, a, b, c=None):
    return f"v_mfma_f32_16x16x32_bf16 {v(d,4)}, {v(a,4)}, {v(b,4)}, {v(d,4) if c is None else c}"
def srd(base, nbytes):
    P(f"s_mov_b32 {s(base+2)}, {nbytes}\ns_mov_b32 {s(base+3)}, 0x20000")
def lines(t): return [l for l in t.split("\n") if l.strip()]

P("s_cmp_ge_u32 s2, 256")
P("s_cbranch_scc1 L_end")
stamp("start")
if OPT.get("exit0"): P("s_endpgm")
if OPT.get("cpf", "1") == "3":
    P(f"s_getpc_b64 {s(sEX,2)}")
    P("L_pc0:")
    P(f"v_subrev_u32 v3, 320, v0\nv_cmp_gt_u32 vcc, 16, v3\ns_lshr_b32 {s(sT0)}, s2, 3\ns_lshl_b32 {s(sT0)}, {s(sT0)}, 11")
    P("s_cbranch_vccz L_ncp0")
    P.cond_begin("cp0")
    P(f"v_and_b32 v3, 15, v3\nv_lshlrev_b32 v3, 7, v3\nv_add_u32 v3, {s(sT0)}, v3\nv_min_u32 v3, L_end-L_pc0, v3")
    P(f"global_load_dword v253, v3, {s(sEX,2)}")
    P.cond_end()
    P("L_ncp0:")
if OPT.get("cpf", "1") == "2":
    P(f"s_getpc_b64 {s(sEX,2)}")
    P("L_pc0:")
    P(f"v_lshlrev_b32 v3, 7, v0")
    P(f"v_min_u32 v3, L_end-L_pc0, v3")
    P(f"global_load_dword v253, v3, {s(sEX,2)}")
P(f"s_load_dwordx2 {s(SX,2)}, s[0:1], 0")
P(f"s_load_dwordx2 {s(SWS,2)}, s[0:1], 88")
P(f"s_load_dwordx2 {s(SDBG,2)}, s[0:1], 80")
P(f"s_load_dwordx2 {s(SW2,2)}, s[0:1], 56")
P(f"s_load_dwordx2 {s(SWO,2)}, s[0:1], 24")
P(f"s_load_dwordx2 {s(SOUT,2)}, s[0:1], 72")
P(f"s_load_dwordx2 {s(SB2,2)}, s[0:1], 64")
if OPT.get("stouch", "0") != "0":
    P(f"s_load_dwordx2 {s(sEX,2)}, s[0:1], 8")
    P(f"s_load_dwordx2 {s(sA0,2)}, s[0:1], 40")
P(f"v_lshrrev_b32 v2, 6, v0")
P(f"v_and_b32 {v(vL)}, 63, v0")
P(f"s_and_b32 {s(sT0)}, s2, 7")
P(f"s_lshr_b32 {s(sT1)}, s2, 3")
P(f"v_readfirstlane_b32 {s(sW)}, v2")
OWN = OPT.get("own") == "1"
if OWN:
    P(f"s_lshl_b32 {s(sRT)}, {s(sT0)}, 1\ns_and_b32 {s(sT2)}, {s(sT1)}, 1\ns_add_u32 {s(sRT)}, {s(sRT)}, {s(sT2)}\ns_lshr_b32 {s(sG)}, {s(sT1)}, 2")
else:
    P(f"s_lshr_b32 {s(sRT)}, {s(sT0)}, 2\ns_lshl_b32 {s(sRT)}, {s(sRT)}, 3\ns_and_b32 {s(sT2)}, {s(sT1)}, 7\ns_add_u32 {s(sRT)}, {s(sRT)}, {s(sT2)}")
    P(f"s_and_b32 {s(sG)}, {s(sT0)}, 3\ns_lshl_b32 {s(sG)}, {s(sG)}, 1\ns_lshr_b32 {s(sT2)}, {s(sT1)}, 4\ns_add_u32 {s(sG)}, {s(sG)}, {s(sT2)}")
P(f"s_lshl_b32 {s(sM)}, {s(sT0)}, 2\ns_and_b32 {s(sT2)}, {s(sT1)}, 3\ns_add_u32 {s(sM)}, {s(sM)}, {s(sT2)}")
P(f"s_lshr_b32 {s(sN)}, {s(sT1)}, 2")
if V2: P(f"s_and_b32 {s(sM)}, s2, 3\ns_lshr_b32 {s(sN)}, {s(sT1)}, 3")
srd(SX, 2097152)
P(f"s_lshl_b32 {s(sM0x)}, {s(sW)}, 11")
P(f"v_lshrrev_b32 v2, 3, {v(vL)}\nv_and_b32 v3, 7, {v(vL)}\nv_lshrrev_b32 v4, 4, {v(vL)}")
P(f"v_xor_b32 v5, v3, v4\nv_lshlrev_b32 v5, 4, v5\nv_lshl_add_u32 {v(VX0)}, v2, 10, v5")
P(f"v_xor_b32 v5, 64, {v(VX0)}\nv_add_u32 {v(VX1)}, {8192-1024}, v5")
P(f"v_and_b32 v4, 1, v4\nv_lshlrev_b32 v4, 2, v4\nv_xor_b32 v4, v3, v4\nv_lshlrev_b32 v4, 4, v4")
P(f"v_lshl_add_u32 {v(VB)}, v2, 10, v4")
P(f"s_lshl_b32 {s(sXo)}, {s(sRT)}, 17\ns_lshl_b32 {s(sT2)}, {s(sW)}, 14\ns_add_u32 {s(sXo)}, {s(sXo)}, {s(sT2)}")
P(f"s_lshr_b32 {s(sT2)}, {s(sT1)}, 3\ns_lshl_b32 {s(sT2)}, {s(sT2)}, 1\ns_add_u32 {s(sROT)}, {s(sRT)}, {s(sT2)}\ns_and_b32 {s(sROT)}, {s(sROT)}, {OPT.get('rm', 7)}")
if OWN: P(f"s_lshr_b32 {s(sT2)}, {s(sT1)}, 1\ns_lshl_b32 {s(sROT)}, {s(sT1)}, 2\ns_add_u32 {s(sROT)}, {s(sROT)}, {s(sT2)}\ns_add_u32 {s(sROT)}, {s(sROT)}, {s(sT0)}\ns_and_b32 {s(sROT)}, {s(sROT)}, 7")
if OPT.get("norot"): P(f"s_mov_b32 {s(sROT)}, 0")
P(f"s_lshl_b32 {s(sK)}, {s(sROT)}, 7")
P(f"v_add_u32 {v(VX0)}, {s(sXo)}, {v(VX0)}\nv_add_u32 {v(VX1)}, {s(sXo)}, {v(VX1)}")
P(f"s_lshr_b32 {s(sD0)}, {s(sM0x)}, 1")
P(f"s_bitcmp1_b32 {s(sT1)}, {1 if OWN else 3}")
P("s_cbranch_scc1 L_ffn")

def item1(it, pitch):
    q = it & 3
    return [[f"s_add_u32 m0, {s(sM0x)}, {RA+q*16384}", f"s_mul_i32 {s(sD1)}, {s(sK)}, {pitch//2}",
             f"buffer_load_dwordx4 {v(VX0)}, {s(SX,4)}, {s(sK)} offen lds"],
            [f"buffer_load_dwordx4 {v(VX1)}, {s(SX,4)}, {s(sK)} offen offset:1024 lds"],
            [f"s_add_u32 m0, {s(sD0)}, {RB+it*8192}", f"s_add_u32 {s(sK)}, {s(sK)}, 128",
             f"buffer_load_dwordx4 {v(VW0)}, {s(SWT,4)}, {s(sD1)} offen lds ; tag=it{it}",
             f"s_and_b32 {s(sK)}, {s(sK)}, 1023"]]
def wquarter(region, q, coloff, pitch, tag):
    return [[f"s_add_u32 m0, {s(sM0x)}, {region+q*16384}", f"s_add_u32 {s(sD1)}, {s(sQ[q])}, {coloff}",
             f"buffer_load_dwordx4 {v(VW)}, {s(SWT,4)}, {s(sD1)} offen lds"],
            [f"s_add_u32 {s(sD1)}, {s(sD1)}, {8*pitch-1024}",
             f"buffer_load_dwordx4 {v(VW)}, {s(SWT,4)}, {s(sD1)} offen offset:1024 lds ; tag={tag}"]]
def w3quarter(q, pitch):
    return [[f"s_lshr_b32 {s(sD1)}, {s(sM0x)}, 1", f"s_add_u32 m0, {s(sD1)}, {RA+q*8192}", "s_nop 0",
             f"buffer_load_dwordx4 {v(VW3)}, {s(SWT,4)}, {s(sQ[q])} offen lds ; tag=w3"]]

def spin(label, load, cmp):
    P(f"s_mov_b32 {s(sCNT)}, 0")
    P(f"{label}:")
    P(cmp)
    P(f"s_add_u32 {s(sCNT)}, {s(sCNT)}, 1")
    P(f"s_cbranch_vccz {label}_ok")
    P(f"s_cmp_gt_u32 {s(sCNT)}, {SPIN_MAX}")
    P(f"s_cbranch_scc1 {label}_ok")
    P("s_sleep 1")
    old = P._cond; P._cond = label
    P(load)
    P("s_waitcnt vmcnt(0)")
    P._cond = old
    P(f"s_branch {label}")
    P(f"{label}_ok:")

def gelu(acc, n, pk=False, t0=T, out=T):
    L = []
    for g4 in range(0, n, 4):
        t = t0 + 8 + (g4 & 4)
        a = [acc + g4 + i for i in range(4)]
        if pk:
            L += [f"v_pk_mul_f32 {v(t+i,2)}, {v(a[i],2)}, {v(a[i],2)}" for i in (0, 2)]
            L += [f"v_pk_fma_f32 {v(t+i,2)}, {v(t+i,2)}, {v(K2,2)}, {v(STD,2)} op_sel:[0,0,1] op_sel_hi:[1,0,1]" for i in (0, 2)]
            L += [f"v_pk_mul_f32 {v(t+i,2)}, {v(a[i],2)}, {v(t+i,2)}" for i in (0, 2)]
        else:
            L += [f"v_mul_f32 {v(t+i)}, {v(a[i])}, {v(a[i])}" for i in range(4)]
            L += [f"v_fma_f32 {v(t+i)}, {v(t+i)}, {v(K2)}, {v(K1)}" for i in range(4)]
            L += [f"v_mul_f32 {v(t+i)}, {v(a[i])}, {v(t+i)}" for i in range(4)]
        L += [f"v_exp_f32 {v(t+i)}, {v(t+i)}" for i in range(4)]
        if pk: L += [f"v_pk_fma_f32 {v(t+i,2)}, {v(t+i,2)}, {v(STD,2)}, {v(STD,2)} op_sel_hi:[1,0,0]" for i in (0, 2)]
        else: L += [f"v_fma_f32 {v(t+i)}, {v(t+i)}, {v(STD)}, {v(STD)}" for i in range(4)]
        L += [f"v_rcp_f32 {v(t+i)}, {v(t+i)}" for i in range(4)]
        if pk: L += [f"v_pk_mul_f32 {v(t+i,2)}, {v(a[i],2)}, {v(t+i,2)}" for i in (0, 2)]
        else: L += [f"v_mul_f32 {v(t+i)}, {v(a[i])}, {v(t+i)}" for i in range(4)]
        pr = out + (g4 >> 1)
        L += [f"v_cvt_pk_bf16_f32 {v(pr)}, {v(t)}, {v(t+1)}", f"v_cvt_pk_bf16_f32 {v(pr+1)}, {v(t+2)}, {v(t+3)}"]
    return L
def hstore(soff, n, tagn, src=T):
    return [f"buffer_store_dwordx4 {v(src+4*j,4)}, {v(VL16)}, {s(SWS,4)}, {s(soff)} offen offset:{1024*j} sc1 ; tag={tagn}" for j in range(n)]
assert K1 == STD + 1

def sum4(d, r):
    return [f"v_add_f32 {v(d)}, {v(r)}, {v(r+1)}", f"v_add_f32 {v(r+2)}, {v(r+2)}, {v(r+3)}", f"v_add_f32 {v(d)}, {v(d)}, {v(r+2)}"]

MS, U = T + 4, T + 16
CSR = T + 12
MC = AAUG

def stats_final():
    t = T + 16
    return [f"v_add_f32 {v(S1)}, {v(MS)}, {v(MS+2)}", f"v_add_f32 {v(S2)}, {v(MS+1)}, {v(MS+3)}",
          f"v_mul_f32 {v(S1)}, {f2u(-1.0/512):#x}, {v(S1)}",
          f"v_mul_f32 {v(t)}, {v(S1)}, {v(S1)}",
          f"v_fma_f32 {v(S2)}, {v(S2)}, {s(sT3)}, -{v(t)}",
          f"v_max_f32 {v(S2)}, 0, {v(S2)}",
          f"v_add_f32 {v(S2)}, {f2u(1e-5):#x}, {v(S2)}",
          f"v_rsq_f32 {v(RSTD)}, {v(S2)}",
          f"v_cvt_pk_bf16_f32 {v(t)}, {v(S1)}, {v(S1)}",
          f"v_mul_f32 {v(STD)}, {v(S2)}, {v(RSTD)}",
          f"v_and_b32 {v(t+1)}, 0xffff0000, {v(t)}",
          f"v_sub_f32 {v(t+1)}, {v(S1)}, {v(t+1)}",
          f"v_cvt_pk_bf16_f32 {v(BAUG)}, {v(S1)}, {v(t+1)}",
          f"v_cvt_pk_bf16_f32 {v(BAUG+1)}, {v(S1)}, {v(STD)}",
          f"v_and_b32 {v(t+1)}, 0xffff0000, {v(BAUG+1)}",
          f"v_sub_f32 {v(t+1)}, {v(STD)}, {v(t+1)}",
          f"v_cmp_gt_u32 vcc, 32, {v(vL)}",
          f"v_cvt_pk_bf16_f32 {v(BAUG+2)}, {v(t+1)}, 0",
          f"v_cndmask_b32 {v(BAUG)}, 0, {v(BAUG)}, vcc",
          f"v_cndmask_b32 {v(BAUG+1)}, 0, {v(BAUG+1)}, vcc",
          f"v_cndmask_b32 {v(BAUG+2)}, 0, {v(BAUG+2)}, vcc"]

def aug(acc, part, bias):
    t = T + 18; dst = AAUG
    L = sum4(CS0, part) + [f"v_cvt_pk_bf16_f32 {v(dst)}, {v(CS0)}, {v(CS0)}",
         f"v_and_b32 {v(t)}, 0xffff0000, {v(dst)}",
         f"v_sub_f32 {v(t)}, {v(CS0)}, {v(t)}"]
    if bias is None:
        L += [f"v_cvt_pk_bf16_f32 {v(dst+1)}, {v(t)}, 0"]
    else:
        L += [f"v_cvt_pk_bf16_f32 {v(t)}, {v(t)}, 0", f"v_mov_b32 {v(dst+2)}, {v(bias)}",
              f"v_lshl_or_b32 {v(dst+1)}, {v(bias)}, 16, {v(t)}"]
    return L + [mfma(acc, dst, BAUG)]

def flag(level, tag):
    return [f".waitvm {tag}", f"v_mov_b32 {v(VFV)}, {level}",
            f"buffer_store_dword {v(VFV)}, {v(VZ)}, {s(SWS,4)}, {s(sFO)} offen sc1"]

Q = 16384
KAREA = []
sSK = sM4 if V2 else sSH
sMB = sSIG
def rot_k(kk, dst):
    if kk < 8 and OPT.get("r8", "1") == "1": return [f"s_add_u32 {s(dst)}, {s(sR4)}, {kk}", f"s_and_b32 {s(dst)}, {s(dst)}, 7", f"s_add_u32 {s(dst)}, {s(dst)}, {s(sSK)}"]
    if kk < 12: return [f"s_add_u32 {s(dst)}, {s(sR4)}, {kk}", f"s_and_b32 {s(dst)}, {s(dst)}, 3", f"s_add_u32 {s(dst)}, {s(dst)}, {s(sSK)}"] + \
                       ([f"s_add_u32 {s(dst)}, {s(dst)}, {kk & ~3}"] if kk & ~3 else [])
    if kk < 14: return [f"s_mul_i32 {s(dst)}, {s(sSK)}, 6", f"s_sub_u32 {s(dst)}, {kk}, {s(dst)}"]
    return [f"s_add_u32 {s(dst)}, {s(sR4)}, {kk-14}", f"s_and_b32 {s(dst)}, {s(dst)}, 3"]
def b_dma(kk):
    if V2:
        G_ = []
        for pos in (2 * kk, 2 * kk + 1):
            sr, so = (SW2, sB2o) if pos < 14 else (SWO, sBOo)
            G_.append(rot_k(pos, sD0) + [f"s_lshl_b32 {s(sD0)}, {s(sD0)}, 14", f"s_add_u32 m0, {s(sMB)}, {KAREA[kk] + (pos & 1) * 4096}", f"s_add_u32 {s(sD0)}, {s(sD0)}, {s(so)}",
                      f"buffer_load_dwordx4 {v(VB)}, {s(sr,4)}, {s(sD0)} offen lds ; tag=b{kk}"])
        return G_
    slot = kk % 9
    m0 = f"s_add_u32 m0, {s(sM0x)}, {KAREA[slot]}"
    sr, so = (SW2, sB2o) if kk < 14 else (SWO, sBOo)
    return [rot_k(kk, sD0) + [f"s_lshl_b32 {s(sD0)}, {s(sD0)}, 14", m0, f"s_add_u32 {s(sD0)}, {s(sD0)}, {s(so)}",
             f"buffer_load_dwordx4 {v(VB)}, {s(sr,4)}, {s(sD0)} offen lds"],
            [f"s_add_u32 {s(sD0)}, {s(sD0)}, {8192 - 1024}",
             f"buffer_load_dwordx4 {v(VB)}, {s(sr,4)}, {s(sD0)} offen offset:1024 lds ; tag=b{kk}"]]

def setup(ffn):
    pitch = 3584 if ffn else 3072
    tp = "f" if ffn else "a"
    P(f"s_load_dwordx2 {s(SWT,2)}, s[0:1], {40 if ffn else 8}")
    P(f"s_load_dwordx2 {s(SAUX,2)}, s[0:1], {48 if ffn else 16}")
    srd(SWT, 1835008 if ffn else 1572864)
    P(f"v_mul_u32_u24 {v(VW)}, {pitch}, v2\nv_add_u32 {v(VW)}, {v(VW)}, v4")
    if ffn:
        P(f"s_mul_i32 {s(sT0)}, {s(sG)}, 448\ns_and_b32 {s(sT1)}, {s(sG)}, 1\ns_lshl_b32 {s(sT2)}, {s(sT1)}, 6\ns_add_u32 {s(sWq)}, {s(sT0)}, {s(sT2)}")
        P(f"s_mul_i32 {s(sWo)}, {s(sW)}, {8*pitch}\ns_add_u32 {s(sWo)}, {s(sWo)}, {s(sWq)}")
    else:
        P(f"s_lshl_b32 {s(sWq)}, {s(sG)}, 7")
        P(f"s_mul_i32 {s(sWo)}, {s(sW)}, {8*pitch}\ns_add_u32 {s(sWo)}, {s(sWo)}, {s(sWq)}\ns_add_u32 {s(sWo)}, {s(sWo)}, 1024")
    P(f"v_add_u32 {v(VW0)}, {s(sWo)}, {v(VW)}")
    P("s_waitcnt lgkmcnt(0)")
    stamp("kernarg")
    if STAMP and "slow" in STI: P(f"s_mov_b32 {s(sST+2*STI['slow'])}, {s(sST)}")
    for g_ in item1(0, pitch): P.add(g_)
    srd(SWS, WS_SIZE); srd(SDBG, 256); srd(SW2, 1835008); srd(SWO, 524288); srd(SOUT, 2097152); srd(SB2, 1024); srd(SAUX, 3584 if ffn else 16384)
    P(f"v_lshlrev_b32 {v(VL16)}, 4, {v(vL)}")
    P(f"s_lshr_b32 {s(sHALF)}, {s(sW)}, 2")
    P(f"s_and_b32 {s(sW34)}, {s(sW)}, 3\ns_xor_b32 {s(sSIG)}, {s(sW34)}, {s(sHALF)}")
    if not ffn:
        for i in range(4): P(f"v_mov_b32 {v(T+i)}, 0")
        P(f"s_lshl_b32 {s(sT0)}, {s(sW)}, 8\ns_add_u32 {s(sT0)}, {s(sT0)}, s2\ns_sub_u32 {s(sT0)}, {s(sT0)}, 256\ns_cmp_lt_u32 {s(sT0)}, 8")
        P(f"s_cbranch_scc0 L_nzero")
        P.cond_begin("zw")
        P(f"s_lshl_b32 {s(sT0)}, s2, 12\ns_add_u32 {s(sT0)}, {s(sT0)}, {WS_FLG}")
        for i in range(4): P(f"buffer_store_dwordx4 {v(T,4)}, {v(VL16)}, {s(SWS,4)}, {s(sT0)} offen offset:{1024*i} sc1")
        P(f"s_lshl_b32 {s(sT0)}, s2, 8\ns_add_u32 {s(sT0)}, {s(sT0)}, {WS_KVF}\nv_lshlrev_b32 v3, 2, {v(vL)}")
        P(f"buffer_store_dword {v(T)}, v3, {s(SWS,4)}, {s(sT0)} offen sc1 ; tag=zf")
        P.cond_end()
        P(f"L_nzero:")
    if OPT.get("touch", "5") == "1":
        P(f"s_cmp_lt_u32 {s(sW)}, 6")
        P(f"s_cbranch_scc1 L_nt{tp}")
        P.cond_begin("w67")
        P(f"v_lshlrev_b32 v3, 7, {v(vL)}\ns_mul_i32 {s(sT0)}, s2, 7168\ns_lshl_b32 {s(sT1)}, s2, 11")
        P(f"s_cmp_eq_u32 {s(sW)}, 6\ns_cbranch_scc0 L_nta{tp}")
        P(f"buffer_load_dword v255, v3, {s(SW2,4)}, {s(sT0)} offen")
        P(f"s_branch L_nt{tp}")
        P(f"L_nta{tp}:")
        P(f"v_and_b32 v3, 2047, v3")
        P(f"buffer_load_dword v255, v3, {s(SWO,4)}, {s(sT1)} offen")
        P(f"buffer_load_dword v254, v3, {s(SB2,4)}, 0 offen")
        P.cond_end()
        P(f"L_nt{tp}:")
    def wtouch():
        P(f"s_sub_u32 {s(sT0)}, {s(sW)}, 2\ns_cmp_lt_u32 {s(sT0)}, {3 if ffn else 2}")
        P(f"s_cbranch_scc0 L_nw{tp}")
        P.cond_begin("w234")
        P(f"v_mul_u32_u24 v3, {pitch}, {v(vL)}\ns_mul_i32 {s(sT1)}, {s(sROT)}, {64*pitch}\ns_add_u32 {s(sT1)}, {s(sT1)}, {s(sWq)}")
        if ffn:
            P(f"s_lshl_b32 {s(sT2)}, {s(sT0)}, 7\ns_add_u32 {s(sT1)}, {s(sT1)}, {s(sT2)}\ns_add_u32 {s(sT1)}, {s(sT1)}, 128")
            P(f"s_lshr_b32 {s(sT0)}, {s(sT0)}, 1\ns_and_b32 {s(sT0)}, {s(sT0)}, {s(sG)}\ns_mul_i32 {s(sT0)}, {s(sT0)}, 448\ns_sub_u32 {s(sT1)}, {s(sT1)}, {s(sT0)}")
        else:
            P(f"s_xor_b32 {s(sT0)}, {s(sT0)}, 1\ns_lshl_b32 {s(sT0)}, {s(sT0)}, 11\ns_add_u32 {s(sT1)}, {s(sT1)}, {s(sT0)}")
        P(f"buffer_load_dword v250, v3, {s(SWT,4)}, {s(sT1)} offen")
        P.cond_end()
        P(f"L_nw{tp}:")
    if OPT.get("wt", "0") == "1": wtouch()
    if OPT.get("sw", "0") != "0":
        c1_, c2_ = (128, 256) if ffn else (1024, -1024)
        P(f"s_mul_i32 {s(sT0)}, {s(sROT)}, {64*pitch}\ns_add_u32 {s(sT0)}, {s(sT0)}, {s(sWo)}")
        for cc, n_ in ((c1_, 8), (c2_, int(OPT["sw"]) - 8)):
            if n_ <= 0: continue
            P(f"s_add_u32 {s(sT1)}, {s(sT0)}, {cc}")
            for j in range(n_): P(f"s_buffer_load_dword {s(sCNT)}, {s(SWT,4)}, {s(sT1)} offset:{j*pitch} ; nodef")
    if OPT.get("cpf", "1") == "1":
        P(f"s_cmp_eq_u32 {s(sW)}, 5")
        P(f"s_cbranch_scc0 L_ncp{tp}")
        P.cond_begin("w5")
        P(f"s_getpc_b64 {s(sEX,2)}")
        P(f"L_pc{tp}:")
        P(f"s_sub_u32 {s(sEX)}, {s(sEX)}, L_pc{tp}-{NAME}\ns_subb_u32 {s(sEX+1)}, {s(sEX+1)}, 0")
        P(f"s_lshr_b32 {s(sT0)}, s2, 3\ns_lshl_b32 {s(sT0)}, {s(sT0)}, 11\nv_and_b32 v3, 15, {v(vL)}\nv_lshlrev_b32 v3, 7, v3\nv_add_u32 v3, {s(sT0)}, v3")
        P(f"v_min_u32 v3, L_end-{NAME}, v3")
        P(f"global_load_dword v253, v3, {s(sEX,2)}")
        P.cond_end()
        P(f"L_ncp{tp}:")
    if OPT.get("pt", "0") == "1":
        P(f"s_cmp_eq_u32 {s(sW)}, 4")
        P(f"s_cbranch_scc0 L_npt{tp}")
        n0 = len(P.ins)
        P(f"v_lshlrev_b32 v3, 21, {v(vL)}")
        P(f"buffer_load_dword v252, v3, {s(SWS,4)}, 0 offen")
        for i_, sr_ in enumerate((SOUT, SW2, SWO, SB2)): P(f"buffer_load_dword v{248+i_}, v3, {s(sr_,4)}, 0 offen")
        for I in P.ins[n0:]: I.cond = "w4"
        P(f"L_npt{tp}:")
    def stouch():
        n0 = len(P.ins)
        P(f"s_lshl_b32 {s(sT0)}, s2, 3\ns_add_u32 {s(sT0)}, {s(sT0)}, {s(sW)}\ns_mul_i32 {s(sT1)}, {s(sT0)}, 768\ns_mul_i32 {s(sT0)}, {s(sT0)}, 896")
        for i in range(6): P(f"s_load_dword {s(sCNT)}, {s(sEX,2)}, {s(sT1)} offset:{128*i}")
        for i in range(7): P(f"s_load_dword {s(sCNT)}, {s(sA0,2)}, {s(sT0)} offset:{128*i}")
    if OPT.get("stouch", "0") == "1": stouch()
    late1 = OPT.get("late1", "1") == "1"
    if not late1:
        for g_ in item1(1, pitch): P.add(g_)
    P(f"s_lshl_b32 {s(sT0)}, {s(sRT)}, 4\ns_add_u32 {s(sT0)}, {s(sT0)}, {s(sG)}\ns_lshl_b32 {s(sT0)}, {s(sT0)}, 7")
    P(f"s_and_b32 {s(sT1)}, {s(sW)}, 2\ns_lshl_b32 {s(sT1)}, {s(sT1)}, 3\ns_add_u32 {s(sT0)}, {s(sT0)}, {s(sT1)}\ns_and_b32 {s(sT1)}, {s(sW)}, 1\ns_lshl_b32 {s(sT1)}, {s(sT1)}, 2\ns_add_u32 {s(sT0)}, {s(sT0)}, {s(sT1)}\ns_lshl_b32 {s(sT1)}, {s(sHALF)}, 3\ns_add_u32 {s(sT0)}, {s(sT0)}, {s(sT1)}")
    P(f"s_add_u32 {s(sFO)}, {s(sT0)}, {WS_FLG + (1024 if ffn else 0)}")
    P(f"s_lshl_b32 {s(sT0)}, {s(sRT)}, 2\ns_add_u32 {s(sT0)}, {s(sT0)}, {s(sW34)}\ns_mul_i32 {s(sHo)}, {s(sT0)}, {HF_RB}")
    if ffn:
        P(f"v_and_b32 v5, 31, {v(vL)}\nv_lshlrev_b32 v5, 1, v5")
        P(f"s_lshl_b32 {s(sT0)}, {s(sHALF)}, 6\ns_add_u32 {s(sT0)}, {s(sT0)}, {s(sWq)}")
        for i in range(3): P(f"buffer_load_ushort {v(BIAS+i)}, v5, {s(SAUX,4)}, {s(sT0)} offen offset:{128*i}")
        P(f"s_lshl_b32 {s(sT0)}, {s(sT0)}, 5\ns_add_u32 {s(sH0)}, {s(sHo)}, {s(sT0)}")
        P(f"s_mul_i32 {s(sW3)}, {s(sG)}, 448\ns_add_u32 {s(sT0)}, {s(sW3)}, 384\ns_bitcmp1_b32 {s(sG)}, 0\ns_cselect_b32 {s(sW3)}, {s(sW3)}, {s(sT0)}")
        P(f"s_lshl_b32 {s(sT0)}, {s(sHALF)}, 5\nv_xor_b32 v5, {s(sT0)}, v5")
        P(f"buffer_load_ushort {v(BIAS+3)}, v5, {s(SAUX,4)}, {s(sW3)} offen")
        P(f"s_add_u32 {s(sT0)}, {s(sT0)}, {s(sW3)}\ns_lshl_b32 {s(sT0)}, {s(sT0)}, 5\ns_add_u32 {s(sH3)}, {s(sHo)}, {s(sT0)}")
        P(f"v_lshrrev_b32 v2, 2, {v(vL)}\nv_and_b32 v4, 3, {v(vL)}\nv_lshlrev_b32 v4, 4, v4\nv_mul_u32_u24 {v(VW3)}, {pitch}, v2\nv_add_u32 {v(VW3)}, {v(VW3)}, v4")
    else:
        P(f"s_cmp_lt_u32 {s(sW)}, 2")
        P(f"s_cbranch_scc0 L_nphi")
        P.cond_begin("w01")
        P(f"s_lshl_b32 {s(sT0)}, {s(sG)}, 11\ns_lshl_b32 {s(sT1)}, {s(sW)}, 10\ns_add_u32 {s(sT0)}, {s(sT0)}, {s(sT1)}\ns_add_u32 m0, {s(sT1)}, {L_WPHI}\ns_nop 0")
        P(f"buffer_load_dwordx4 {v(VL16)}, {s(SAUX,4)}, {s(sT0)} offen lds")
        P.cond_end()
        P("L_nphi:")
    P(f"s_mul_i32 {s(sT0)}, {s(sW34)}, {16*pitch}\ns_add_u32 {s(sWq)}, {s(sWq)}, {s(sT0)}")
    P(f"v_add_u32 {v(VW)}, {s(sWq)}, {v(VW)}")
    if ffn: P(f"s_add_u32 {s(sW3)}, {s(sW3)}, {s(sT0)}\nv_add_u32 {v(VW3)}, {s(sW3)}, {v(VW3)}")
    P(f"s_add_u32 {s(sT0)}, {s(sROT)}, {s(sHALF)}")
    for q in range(4):
        P(f"s_add_u32 {s(sT1)}, {s(sT0)}, {2*q}\ns_and_b32 {s(sT1)}, {s(sT1)}, 7\ns_mul_i32 {s(sQ[q])}, {s(sT1)}, {64*pitch}")
    P(f"s_mov_b32 {s(sT3)}, {f2u(1.0/512):#x}\ns_mov_b32 {s(sONE)}, 0x3f803f80")
    P(f"v_bfe_u32 {v(T)}, {v(vL)}, 2, 2\nv_lshrrev_b32 {v(T+1)}, 5, {v(vL)}")
    P(f"v_bfe_u32 {v(T+2)}, {v(vL)}, 4, 1\nv_lshlrev_b32 {v(T+2)}, 5, {v(T+2)}\nv_and_b32 {v(T+3)}, 3, {v(vL)}\nv_lshl_add_u32 {v(T+2)}, {v(T+3)}, 3, {v(T+2)}")
    P(f"v_and_b32 {v(T+4)}, 31, {v(vL)}\nv_bfe_u32 {v(T+5)}, {v(vL)}, 1, 3\nv_xor_b32 {v(T+5)}, {v(T+5)}, {v(T+1)}")
    P(f"s_lshl_b32 {s(sT0)}, {s(sW34)}, 12\nv_lshlrev_b32 {v(T+8)}, 7, {v(T+4)}\nv_add_u32 {v(T+8)}, {s(sT0)}, {v(T+8)}")
    P(f"v_lshl_add_u32 {v(T+9)}, {v(T+1)}, 3, {v(T)}\nv_lshl_add_u32 {v(T+10)}, {v(T+9)}, 7, {v(T+2)}\nv_lshrrev_b32 {v(T+7)}, 1, {v(T)}\nv_xor_b32 {v(T+7)}, {s(sHALF)}, {v(T+7)}\nv_lshl_add_u32 {v(T+10)}, {v(T+7)}, 6, {v(T+10)}")
    for p in range(4):
        P(f"s_xor_b32 {s(sT0)}, {s(sSIG)}, {p}\ns_lshl_b32 {s(sT1)}, {s(sT0)}, 1\nv_xor_b32 {v(T+6)}, {s(sT1)}, {v(T+5)}\nv_lshl_add_u32 {v(AX+p)}, {v(T+6)}, 4, {v(T+8)}")
        P(f"s_lshl_b32 {s(sT1)}, {s(sT0)}, 11\ns_add_u32 {s(sT1)}, {s(sT1)}, {RB}\nv_add_u32 {v(AW+p)}, {s(sT1)}, {v(T+10)}")
    if ffn:
        P(f"s_lshl_b32 {s(sT0)}, {s(sHALF)}, 5\nv_xor_b32 {v(T+7)}, {s(sT0)}, {v(T+2)}\nv_lshl_add_u32 {v(T+7)}, {v(T+9)}, 6, {v(T+7)}")
        for i, p in enumerate((0, 2)):
            P(f"s_xor_b32 {s(sT0)}, {s(sSIG)}, {p}\ns_lshl_b32 {s(sT0)}, {s(sT0)}, 10\nv_add_u32 {v(AB+i)}, {s(sT0)}, {v(T+7)}")
    P(f"v_lshlrev_b32 {v(T+4)}, 4, {v(T+4)}")
    P(f"s_lshl_b32 {s(sT0)}, {s(sHALF)}, 9\ns_add_u32 {s(sT0)}, {s(sT0)}, {L_CS}\nv_add_u32 {v(VCSA)}, {s(sT0)}, {v(T+4)}")
    P(f"s_lshl_b32 {s(sT0)}, {s(sW34)}, 9\ns_add_u32 {s(sT0)}, {s(sT0)}, {L_ST}\nv_add_u32 {v(VSTA)}, {s(sT0)}, {v(T+4)}")
    P(f"v_lshrrev_b32 {v(T+4)}, 2, {v(vL)}\nv_xor_b32 {v(T+4)}, {v(T+4)}, {v(vL)}\nv_and_b32 {v(T+4)}, 4, {v(T+4)}\nv_cmp_eq_u32 vcc, 0, {v(T+4)}\nv_mov_b32 {v(T+4)}, {s(sONE)}")
    for i in range(4): P(f"v_mov_b32 {v(PZ+i)}, -1")
    for r in (VZ, BAUG+3, AAUG+2, AAUG+3): P(f"v_mov_b32 {v(r)}, 0")
    for i in range(4): P(f"v_cndmask_b32 {v(SEL+i)}, 0, {v(T+4)}, vcc")
    P(f"s_lshl_b32 {s(sW34)}, {s(sW34)}, 2")
    if late1:
        for g_ in item1(1, pitch): P.add(g_)
    if OPT.get("stouch", "0") == "2": stouch()
    if V2:
        P(f"v_lshrrev_b32 {v(T)}, 4, {v(vL)}\nv_lshlrev_b32 {v(T+1)}, 2, {v(T)}\nv_and_b32 {v(T+2)}, 15, {v(vL)}\nv_xor_b32 {v(T+2)}, {v(T+2)}, {v(T+1)}\nv_lshlrev_b32 {v(T+2)}, 4, {v(T+2)}\nv_lshl_add_u32 {v(VB)}, {v(T)}, 10, {v(T+2)}")
        P(f"s_lshl_b32 {s(sT2)}, {s(sM)}, 1\ns_add_u32 {s(sT2)}, {s(sT2)}, {s(sHALF)}")
        P(f"s_lshl_b32 {s(sT0)}, {s(sN)}, 8\ns_lshl_b32 {s(sT1)}, {s(sW34)}, 10\ns_add_u32 {s(sT1)}, {s(sT1)}, {s(sT0)}")
        P(f"s_mul_i32 {s(sB2o)}, {s(sT2)}, {224*1024}\ns_add_u32 {s(sB2o)}, {s(sB2o)}, {s(sT1)}\ns_lshl_b32 {s(sBOo)}, {s(sT2)}, 16\ns_add_u32 {s(sBOo)}, {s(sBOo)}, {s(sT1)}")
        P(f"s_mul_i32 {s(sA0)}, {s(sT2)}, {14*1024}\ns_add_u32 {s(sA0)}, {s(sA0)}, {s(sHo)}\ns_lshl_b32 {s(sA1)}, {s(sT2)}, 12\ns_add_u32 {s(sA1)}, {s(sA1)}, {s(sHo)}\ns_add_u32 {s(sA1)}, {s(sA1)}, {112*1024}")
        P(f"s_lshl_b32 {s(sT1)}, {s(sRT)}, 4\ns_add_u32 {s(sT1)}, {s(sT1)}, {s(sT2)}\ns_lshl_b32 {s(sT1)}, {s(sT1)}, 7\ns_and_b32 {s(sFL)}, {s(sW)}, 2\ns_lshl_b32 {s(sFL)}, {s(sFL)}, 3\ns_add_u32 {s(sFL)}, {s(sFL)}, {s(sT1)}\ns_add_u32 {s(sFL)}, {s(sFL)}, {WS_FLG}")
        P(f"s_mul_i32 {s(sR4)}, {s(sN)}, 5\ns_lshr_b32 {s(sR4)}, {s(sR4)}, 1\ns_add_u32 {s(sR4)}, {s(sR4)}, {s(sRT)}\ns_and_b32 {s(sR4)}, {s(sR4)}, 7")
        P(f"s_lshl_b32 {s(sT2)}, {s(sT2)}, 5\ns_add_u32 {s(sN)}, {s(sT0)}, {s(sT2)}")
        P(f"s_lshl_b32 {s(sOo)}, {s(sRT)}, 17\ns_lshl_b32 {s(sT1)}, {s(sW34)}, 13\ns_add_u32 {s(sOo)}, {s(sOo)}, {s(sT1)}\ns_add_u32 {s(sOo)}, {s(sOo)}, {s(sN)}")
        P(f"s_and_b32 {s(sSH)}, {s(sW)}, 1\ns_lshl_b32 {s(sSH)}, {s(sSH)}, 1\ns_lshl_b32 {s(sSK)}, {s(sHALF)}, 1")
        P(f"s_lshl_b32 {s(sMB)}, {s(sHALF)}, 13\ns_lshl_b32 {s(sT1)}, {s(sW34)}, 8\ns_add_u32 {s(sMB)}, {s(sMB)}, {s(sT1)}")
        return
    P(f"s_lshl_b32 {s(sT0)}, {s(sN)}, 7\ns_mul_i32 {s(sB2o)}, {s(sW)}, {224*1024}\ns_add_u32 {s(sB2o)}, {s(sB2o)}, {s(sT0)}")
    P(f"s_lshl_b32 {s(sBOo)}, {s(sW)}, 16\ns_add_u32 {s(sBOo)}, {s(sBOo)}, {s(sT0)}\ns_lshl_b32 {s(sM4)}, {s(sW)}, 12")
    P(f"s_lshl_b32 {s(sOo)}, {s(sM)}, 16\ns_lshl_b32 {s(sT1)}, {s(sW)}, 13\ns_add_u32 {s(sOo)}, {s(sOo)}, {s(sT1)}\ns_add_u32 {s(sOo)}, {s(sOo)}, {s(sT0)}")
    if OPT.get("r8", "1") == "1":
        P(f"s_mul_i32 {s(sT0)}, {s(sM)}, 5\ns_lshr_b32 {s(sT0)}, {s(sT0)}, 1\ns_sub_u32 {s(sN)}, {s(sN)}, {s(sM)}\ns_add_u32 {s(sR4)}, {s(sN)}, {s(sT0)}\ns_add_u32 {s(sN)}, {s(sN)}, {s(sM)}")
    else: P(f"s_mov_b32 {s(sR4)}, {s(sN)}")
    P(f"s_add_u32 {s(sR4)}, {s(sM)}, {s(sR4)}\ns_and_b32 {s(sR4)}, {s(sR4)}, {0 if OPT.get('norot') else 7}\ns_and_b32 {s(sSH)}, {s(sW)}, 1\ns_lshl_b32 {s(sSH)}, {s(sSH)}, 1")
    P(f"s_lshr_b32 {s(sT0)}, {s(sM)}, 1\ns_lshl_b32 {s(sT0)}, {s(sT0)}, 4\ns_add_u32 {s(sT0)}, {s(sT0)}, {s(sW)}\ns_lshl_b32 {s(sT0)}, {s(sT0)}, 7")
    P(f"s_and_b32 {s(sT1)}, {s(sM)}, 1\ns_lshl_b32 {s(sT1)}, {s(sT1)}, 4\ns_add_u32 {s(sT0)}, {s(sT0)}, {s(sT1)}\ns_add_u32 {s(sFL)}, {s(sT0)}, {WS_FLG}")
    P(f"s_mul_i32 {s(sA0)}, {s(sM)}, {2*HF_RB}\ns_mul_i32 {s(sT0)}, {s(sW)}, {14*1024}\ns_add_u32 {s(sA1)}, {s(sA0)}, {s(sM4)}\ns_add_u32 {s(sA1)}, {s(sA1)}, {112*1024}\ns_add_u32 {s(sA0)}, {s(sA0)}, {s(sT0)}")

class Sched:
    def __init__(self, n):
        self.n = n; self.pre = [[] for _ in range(n)]; self.post = [[] for _ in range(n)]
        self.fill = [[] for _ in range(n)]; self.dma = [[] for _ in range(n)]; self.blk = {}
    def spread(self, lst, a, b):
        for i in range(a, b): self.fill[i] += lst[len(lst)*(i-a)//(b-a): len(lst)*(i+1-a)//(b-a)]
    def dmas(self, groups, a, step=1):
        for i, g in enumerate(groups): self.dma[a + i*step] += g

def rd(G):
    b = WF + 4 * (G & 3)
    if G < 96:
        ks = G & 31; st, p = ks >> 2, ks & 3
        L = [f"ds_read_b128 {v(XF+4*ks,4)}, {v(AX+p)} offset:{RA+(st&3)*16384}"] if G < 32 else []
        if ks < 4 and G >= 32: L.append(f"v_xor_b32 {v(AW+p)}, {RB}, {v(AW+p)}")
        return L + [f"ds_read_b64_tr_b16 {v(b+2*t,2)}, {v(AW+p)} offset:{8192*st+512*t}" for t in range(2)]
    i = G - 96
    return [f"ds_read_b64_tr_b16 {v(b+2*t,2)}, {v(AB+(i&1))} offset:{4096*(i>>1)+256*t}" for t in range(2)]
def xq(G): return XF + 4 * (G & 31) if G < 96 else XF + 8 * (G - 96)

def common_sched(S, ffn, accs, MC):
    pitch = 3584 if ffn else 3072
    tp = "f" if ffn else "a"
    c1, c2 = (128, 256) if ffn else (2048, 0)
    S.dmas(item1(2, pitch), 0, 0)
    for st in range(8):
        G = 4 * st + 2
        S.pre[G] += [f".waitvm it{st+1}" if st < 7 else ".waitvm w1q0 lgkm0", "s_barrier"]
        if st <= 4: S.dmas(item1(st + 3, pitch), G)
        else: S.dmas(wquarter(RA, st - 5, c1, pitch, f"w1q{st-5}"), G)
    def m4(d, r, c=None): return f"v_mfma_f32_4x4x4_16b_bf16 {v(d,4)}, {v(r,2)}, {v(r,2)}, {v(d,4) if c is None else c}"
    Q0, Q1 = T + 8, T + 16
    for f in range(0, 32, 2):
        x = XF + 4 * f; a = max(f - 1, 0); c = "0" if f == 0 else None
        if OPT.get("hyb", "0") == "1":
            b = f if f < 30 else 29
            S.post[a] += [m4(Q0, x, c), m16(MS, SEL, x, c)]
            for r, G in ((x + 2, a), (x + 3, b)):
                S.post[G] += [f"v_and_b32 {v(Q1+2)}, 0xffff0000, {v(r)}", f"v_lshlrev_b32 {v(Q1+3)}, 16, {v(r)}",
                              f"v_fmac_f32 {v(Q1)}, {v(Q1+2)}, {v(Q1+2)}", f"v_fmac_f32 {v(Q1+1)}, {v(Q1+3)}, {v(Q1+3)}"]
        else: S.post[a] += [m4(Q0, x, c), m4(Q1, x + 2, c), m16(MS, SEL, x, c)]
    S.post[28] += [f"v_and_b32 {v(S1)}, 3, {v(vL)}", f"v_cmp_eq_u32 {s(sEX,2)}, 1, {v(S1)}", f"s_lshl_b32 {s(sT0)}, {s(sHALF)}, 3",
                   f"v_add_u32 {v(T)}, {s(sT0)}, {v(VSTA)}"]
    if OPT.get("hyb", "0") == "1":
        S.pre[0] += [f"v_mov_b32 {v(Q1)}, 0", f"v_mov_b32 {v(Q1+1)}, 0"]
        S.post[29] += [f"v_add_f32 {v(Q1)}, {v(Q1)}, {v(Q1+1)}"]
    else: S.post[29] += [f"v_add_f32 {v(Q0+i)}, {v(Q0+i)}, {v(Q1+i)}" for i in range(4)]
    S.post[29] += [f"v_cmp_eq_u32 vcc, 2, {v(S1)}", f"v_cndmask_b32 {v(S2)}, {v(Q0)}, {v(Q0+1)}, {s(sEX,2)}", f"v_cmp_eq_u32 {s(sEX,2)}, 3, {v(S1)}",
                   f"v_cndmask_b32 {v(S2)}, {v(S2)}, {v(Q0+2)}, vcc", f"v_cndmask_b32 {v(S2)}, {v(S2)}, {v(Q0+3)}, {s(sEX,2)}"] + ([f"v_add_f32 {v(S2)}, {v(S2)}, {v(Q1)}"] if OPT.get("hyb", "0") == "1" else []) + [
                   f"v_mov_b32 {v(S1)}, {v(S2)}", f"v_permlane32_swap_b32 {v(S1)}, {v(S2)}",
                   f"v_add_f32 {v(MS+1)}, {v(S1)}, {v(S2)}", f"ds_write_b64 {v(T)}, {v(MS,2)}"]
    S.post[30] += [f"ds_read_b128 {v(MS,4)}, {v(VSTA)}"]
    for ps in range(3):
        for st in range(8):
            G = 32 * ps + 4 * st
            S.post[G] += [m16(MC, SEL, WF + 4 * (G & 3), "0" if st == 0 else None)]
        S.post[32*ps + 29] += [f"v_add_u32 {v(MC+1)}, {s(sW34)}, {v(VCSA)}", f"ds_write_b32 {v(MC+1)}, {v(MC)} offset:{1024*ps}"]
    FEW = OPT.get("few", "1") == "1"
    if FEW: S.pre[38] += [".waitvm w1q3", "s_barrier"]
    else:
        for q in (1, 2, 3): S.pre[32 + 8*q - 2] += [f".waitvm w1q{q}", "s_barrier"]
    w2 = sum([wquarter(RB, q, c2, pitch, "w2") for q in range(4)], [])
    for g_, G in zip(wquarter(RA, 3, c1, pitch, "w1q3") + w2, [int(x) for x in OPT.get("w2g", "32,33,35,37,38,40,41,43,44,46").split(",")]): S.dma[G] += g_
    S.pre[62] += [".waitvm w2 lgkm0", "s_barrier"]
    for G in ((int(OPT.get("fb", 82)),) if ffn else (86,)): S.pre[G] += ["s_barrier"]
    if ffn:
        S.post[int(OPT.get("f1", 90))] += flag(1, "h1")
        S.post[int(OPT.get("p1", 99))] += [spoll(0)]; S.blk[("e", int(OPT.get("c1", 105)))] = lambda: (sneed(1, 0), P(spoll(1)))
    else:
        S.post[int(OPT.get("fa", 80))] += flag(1, "po")
        S.post[95] += [spoll(1)]
    if OPT.get("l2t", "0") == "1":
        tg = [int(x) for x in OPT.get("l2gf" if ffn else "l2ga", "52,62,66,70,74" if ffn else "48,52,56,60,64").split(",")]
        DUM = VX0 if False else VW0
        for j in range(5):
            if j < 3:
                L = [f"s_lshr_b32 {s(sT0)}, s2, 3", f"s_mul_i32 {s(sT0)}, {s(sT0)}, 3", f"s_lshl_b32 {s(sT1)}, {s(sSH)}, 4", f"s_add_u32 {s(sT0)}, {s(sT0)}, {s(sT1)}",
                     f"s_add_u32 {s(sT0)}, {s(sT0)}, {128+j}", f"s_sub_u32 {s(sT1)}, {s(sT0)}, 224", f"s_min_u32 {s(sT0)}, {s(sT0)}, {s(sT1)}",
                     f"s_mul_i32 {s(sT1)}, {s(sW)}, 224", f"s_add_u32 {s(sT0)}, {s(sT0)}, {s(sT1)}", f"s_lshl_b32 {s(sT0)}, {s(sT0)}, 10",
                     f"buffer_load_dword {v(VTD)}, {v(VL16)}, {s(SW2,4)}, {s(sT0)} offen ; nodef"]
            else:
                L = [f"s_lshr_b32 {s(sT0)}, s2, 3", f"s_lshl_b32 {s(sT0)}, {s(sT0)}, 11", f"s_lshl_b32 {s(sT1)}, {s(sW)}, 16", f"s_add_u32 {s(sT0)}, {s(sT0)}, {s(sT1)}",
                     f"buffer_load_dword {v(VTD)}, {v(VL16)}, {s(SWO,4)}, {s(sT0)} offen offset:{1024*(j-3)} ; nodef"]
            S.dma[tg[j]] += L
    if OPT.get("touch", "5") == "5" and not ffn:
        tg = [int(x) for x in OPT.get("tgs", "54,56,58,60,62").split(",")]
        gw = [f"s_and_b32 {s(sT0)}, {s(sRT)}, 7", f"s_lshl_b32 {s(sT0)}, {s(sT0)}, 1", f"s_and_b32 {s(sT1)}, {s(sG)}, 1", f"s_add_u32 {s(sT0)}, {s(sT0)}, {s(sT1)}",
              f"s_lshl_b32 {s(sT0)}, {s(sT0)}, 3", f"s_add_u32 {s(sK)}, {s(sT0)}, {s(sW)}"]
        for j in range(4):
            S.dma[tg[j]] += (gw if j == 0 else []) + [f"s_add_u32 {s(sT0)}, {s(sK)}, {128*j}", f"s_min_u32 {s(sT0)}, {s(sT0)}, 447", f"s_mul_i32 {s(sT1)}, {s(sM)}, 448", f"s_add_u32 {s(sT0)}, {s(sT0)}, {s(sT1)}",
                                  f"s_lshl_b32 {s(sT0)}, {s(sT0)}, 10", f"buffer_load_dword {v(VTD)}, {v(VL16)}, {s(SW2,4)}, {s(sT0)} offen ; nodef"]
        S.dma[tg[4]] += [f"s_lshl_b32 {s(sT1)}, {s(sM)}, 7", f"s_add_u32 {s(sT0)}, {s(sK)}, {s(sT1)}",
                         f"s_lshl_b32 {s(sT0)}, {s(sT0)}, 10", f"buffer_load_dword {v(VTD)}, {v(VL16)}, {s(SWO,4)}, {s(sT0)} offen ; nodef"]
        S.dma[tg[4]] += [f"buffer_load_dword {v(VTD)}, {v(VL16)}, {s(SB2,4)}, 0 offen ; nodef"]
    if OPT.get("touch") == "4":
        tg = [int(x) for x in OPT.get("tgs", "47,49,52").split(",")]
        gw = [f"s_and_b32 {s(sT0)}, s2, 0xf8", f"s_add_u32 {s(sT0)}, {s(sT0)}, {s(sW)}"]
        for j in range(2):
            S.dma[tg[j]] += gw + [f"s_add_u32 {s(sT0)}, {s(sT0)}, {256*j}", f"s_min_u32 {s(sT0)}, {s(sT0)}, 447", f"s_mul_i32 {s(sT1)}, {s(sM)}, 448", f"s_add_u32 {s(sT0)}, {s(sT0)}, {s(sT1)}",
                                  f"s_lshl_b32 {s(sT0)}, {s(sT0)}, 10", f"buffer_load_dword {v(VTD)}, {v(VL16)}, {s(SW2,4)}, {s(sT0)} offen ; nodef"]
        S.dma[tg[2]] += gw + [f"s_lshr_b32 {s(sT0)}, {s(sT0)}, 1", f"s_lshl_b32 {s(sT1)}, {s(sM)}, 7", f"s_add_u32 {s(sT0)}, {s(sT0)}, {s(sT1)}",
                              f"s_lshl_b32 {s(sT0)}, {s(sT0)}, 10", f"buffer_load_dword {v(VTD)}, {v(VL16)}, {s(SWO,4)}, {s(sT0)} offen ; nodef"]
    if OPT.get("touch", "5") == "3":
        def mtouch():
            n0 = len(P.ins)
            P(f"s_cmp_lt_u32 {s(sW)}, 6")
            P(f"s_cbranch_scc1 L_mt{tp}")
            P.cond_begin("w67")
            P(f"v_lshlrev_b32 {v(T+1)}, 7, {v(vL)}\ns_mul_i32 {s(sT0)}, s2, 7168\ns_lshl_b32 {s(sT1)}, s2, 11")
            P(f"s_cmp_eq_u32 {s(sW)}, 6\ns_cbranch_scc0 L_mta{tp}")
            P(f"buffer_load_dword {v(T+2)}, {v(T+1)}, {s(SW2,4)}, {s(sT0)} offen")
            P(f"s_branch L_mt{tp}")
            P(f"L_mta{tp}:")
            P(f"v_and_b32 {v(T+1)}, 2047, {v(T+1)}")
            P(f"buffer_load_dword {v(T+2)}, {v(T+1)}, {s(SWO,4)}, {s(sT1)} offen")
            P(f"buffer_load_dword {v(T+3)}, {v(T+1)}, {s(SB2,4)}, 0 offen")
            P.cond_end()
            P(f"L_mt{tp}:")
        S.blk[("e", int(OPT.get("tg", 5)))] = mtouch
    def announce():
        P(f"s_lshl_b32 {s(sT0)}, {s(sW)}, 8\ns_add_u32 {s(sT0)}, {s(sT0)}, s2\ns_sub_u32 {s(sT0)}, {s(sT0)}, 256\ns_cmp_lt_u32 {s(sT0)}, 8")
        P(f"s_cbranch_scc0 L_nd")
        P.cond_begin("zw")
        P(".waitvm zf")
        P(f"s_lshl_b32 {s(sT0)}, s2, 2\nv_mov_b32 {v(VFV)}, 1")
        P(f"buffer_store_dword {v(VFV)}, {v(VZ)}, {s(SDBG,4)}, {s(sT0)} offen sc1")
        P.cond_end()
        P(f"L_nd:")
    if not ffn: S.blk[3] = announce
    ld = f"v_and_b32 {v(VX0)}, 28, {v(vL)}\nbuffer_load_dword {v(VX0)}, {v(VX0)}, {s(SDBG,4)}, 0 offen sc1"
    def poll0():
        P(f"s_cmp_eq_u32 {s(sW)}, 7"); P(f"s_cbranch_scc0 L_np{tp}")
        P.cond_begin("w7")
        P(ld)
        P.cond_end(); P(f"L_np{tp}:")
    def check0():
        P(f"s_cmp_eq_u32 {s(sW)}, 7"); P(f"s_cbranch_scc0 L_nc{tp}")
        P.cond_begin("w7")
        P(f"v_mov_b32 {v(VX0)}, {v(VX0)}")
        spin(f"L_ncs{tp}", ld, f"v_cmp_ne_u32 vcc, 1, {v(VX0)}")
        P.cond_end(); P(f"L_nc{tp}:")
    S.blk[39] = poll0; S.blk[62] = check0

def run_sched(S, accs):
    P(".waitvm it0")
    P("s_barrier")
    stamp("it0")
    P.add(rd(0)); P.add(rd(1))
    for G in range(S.n):
        stamp(f"g{G}")
        if G in S.blk: S.blk[G]()
        late = OPT.get("bam", "1") == "1" and G >= 32
        if not late: P.add(S.pre[G])
        if OPT.get("prio", "1") == "1": P(f"s_setprio {3 - ((G + 2) & 3)}")
        if OPT.get("prio") == "2" and (G < 32 or G % 2 == 0): P(f"s_setprio {3 - ((G + 2) & 3) if G < 32 else 3 - ((G >> 1) & 3)}")
        first = G in (0, 32, 64, 96)
        P(mfma(accs[G >> 5], WF + 4 * (G & 3), xq(G), "0" if first else None))
        if late: P.add(S.pre[G])
        if G + 2 < S.n: P.add(rd(G + 2))
        P.add(S.post[G]); P.add(S.fill[G]); P.add(S.dma[G])
        if ("e", G) in S.blk: S.blk[("e", G)]()
    P("s_setprio 0")

AC = 64; NAF = 8
def AFq(kk, rb): return XF + 4 + 8 * (2 * (kk % NAF) + rb)
def BTq(kk, nb): return XF + 8 * (2 * (kk & 3) + nb)
BA = 2
VXR, VRED = 9, 10
VWR = 20
XR, B2R = 32, 36
def AF2(kk): return XF + 4 + 8 * (kk % 16)
def BT2(kk, nb): return XF + 8 * (4 * (kk & 1) + nb)
def xoff(j, send):
    return ([f"s_xor_b32 {s(sT0)}, s2, {j}", f"s_mul_i32 {s(sT0)}, {s(sT0)}, {3*8192}"] if send else [f"s_mul_i32 {s(sT0)}, s2, {3*8192}"]) + \
           [f"s_lshl_b32 {s(sT1)}, {s(sW)}, 10", f"s_add_u32 {s(sT0)}, {s(sT0)}, {s(sT1)}", f"s_add_u32 {s(sT0)}, {s(sT0)}, {WS_X + (j-1)*8192}"]
def a_jobs(kk):
    so = sA0 if kk < 14 else sA1
    if V2: return [rot_k(kk, sD1) + [f"s_lshl_b32 {s(sD1)}, {s(sD1)}, 10", f"s_add_u32 {s(sD1)}, {s(sD1)}, {s(so)}",
             f"buffer_load_dwordx4 {v(AF2(kk),4)}, {v(VL16)}, {s(SWS,4)}, {s(sD1)} offen sc1"]]
    return [rot_k(kk, sD1) + [f"s_lshl_b32 {s(sD1)}, {s(sD1)}, 10", f"s_add_u32 {s(sD1)}, {s(sD1)}, {s(so)}",
             f"buffer_load_dwordx4 {v(AFq(kk,0),4)}, {v(VL16)}, {s(SWS,4)}, {s(sD1)} offen sc1"],
            [f"s_add_u32 {s(sD1)}, {s(sD1)}, {HF_RB}",
             f"buffer_load_dwordx4 {v(AFq(kk,1),4)}, {v(VL16)}, {s(SWS,4)}, {s(sD1)} offen sc1"]]
def vcheck(regs, t):
    L = [f"v_max3_u32 {v(t)}, {v(regs[0])}, {v(regs[1])}, {v(regs[2])}"]; r = regs[3:]
    while len(r) >= 2: L.append(f"v_max3_u32 {v(t)}, {v(t)}, {v(r[0])}, {v(r[1])}"); r = r[2:]
    if r: L.append(f"v_max_u32 {v(t)}, {v(t)}, {v(r[0])}")
    return L + [f"v_cmp_eq_u32 vcc, -1, {v(t)}"]
SLOW = []
def validate(regs, t, reload):
    lb = P.lab("L_v")
    P.add(vcheck(regs, t))
    P(f"s_cbranch_vccnz {lb}_slow")
    P(f"{lb}_back:")
    dbg = [f"s_add_u32 {s(sST+2*STI['slow'])}, {s(sST+2*STI['slow'])}, {1 << len(SLOW)}"] if STAMP and "slow" in STI else []
    SLOW.append([f"{lb}_slow:"] + dbg + [f"s_mov_b32 {s(sCNT)}, 0", f"{lb}_loop:", "s_sleep 2"] + reload + ["s_waitcnt vmcnt(0)"] + vcheck(regs, t) +
                [f"s_add_u32 {s(sCNT)}, {s(sCNT)}, 1", f"s_cbranch_vccz {lb}_back", f"s_cmp_gt_u32 {s(sCNT)}, {SPIN_MAX}",
                 f"s_cbranch_scc0 {lb}_loop", f"s_branch {lb}_back"])
def flush_slow():
    for blk in SLOW:
        P(".reset"); P.add(blk)
    SLOW.clear()
def spoll(o): return f"s_buffer_load_dwordx4 {s(sPL,4)}, {s(SWS,4)}, {s(sFL)} offset:{0 if o else 1024} glc"
def sneed(level, o):
    lb = P.lab("L_sp")
    P(f"s_mov_b32 {s(sCNT)}, 0")
    P(f"{lb}:")
    P("s_waitcnt lgkmcnt(0)")
    P(f"s_min_u32 {s(sPL)}, {s(sPL)}, {s(sPL+1)}\ns_min_u32 {s(sPL+2)}, {s(sPL+2)}, {s(sPL+3)}\ns_min_u32 {s(sPL)}, {s(sPL)}, {s(sPL+2)}")
    P(f"s_cmp_ge_u32 {s(sPL)}, {level}")
    P(f"s_cbranch_scc1 {lb}_ok")
    P(f"s_add_u32 {s(sCNT)}, {s(sCNT)}, 1\ns_cmp_gt_u32 {s(sCNT)}, {SPIN_MAX}")
    P(f"s_cbranch_scc1 {lb}_ok")
    P("s_sleep 1")
    I = Ins(spoll(o)); I.kind = "salu"; P.ins.append(I)
    P(f"s_branch {lb}")
    P(f"{lb}_ok:")
def own_check():
    lb = P.lab("L_oc")
    P(f"s_mov_b32 {s(sCNT)}, 0")
    P(f"{lb}:")
    P("s_waitcnt lgkmcnt(0)")
    P(f"s_cmp_ge_u32 {s(sK)}, 1")
    P(f"s_cbranch_scc1 {lb}_ok")
    P(f"s_add_u32 {s(sCNT)}, {s(sCNT)}, 1\ns_cmp_gt_u32 {s(sCNT)}, {SPIN_MAX}")
    P(f"s_cbranch_scc1 {lb}_ok")
    P("s_sleep 1")
    I = Ins(f"s_buffer_load_dword {s(sK)}, {s(SWS,4)}, {s(sT2)} glc"); I.kind = "salu"; P.ins.append(I)
    P(f"s_branch {lb}")
    P(f"{lb}_ok:")
def b_reads(kk):
    slot = kk % 9
    var, off = (KAREA[slot] >> 16), KAREA[slot] & 0xffff
    return [f".waitvm b{kk}"] + [f"ds_read_b64_tr_b16 {v(BTq(kk,nb)+2*tt,2)}, {v(BA+2*var+nb)} offset:{off+1024*tt}" for nb in range(2) for tt in range(2)]
def finish(ffn):
    if OPT.get("echo") and OPT.get("echot", "fa").find("f" if ffn else "a") < 0: pass
    elif OPT.get("echo"):
        a_, b_ = [STI[x] for x in OPT["echo"].split(",")]
        lb = P.lab("L_echo")
        stamp("end")
        P("s_waitcnt lgkmcnt(0)")
        P(f"s_sub_u32 {s(sT0)}, {s(sST+2*b_)}, {s(sST+2*a_)}")
        if STAMP == 2:
            P(f"s_lshr_b32 {s(sT0)}, {s(sT0)}, 4\ns_memrealtime {s(sST+22,2)}\ns_waitcnt lgkmcnt(0)")
        P(f"s_min_u32 {s(sT0)}, {s(sT0)}, 10000")
        P(f"{lb}:")
        P(f"s_memrealtime {s(sEX,2)}")
        P("s_waitcnt lgkmcnt(0)")
        P(f"s_sub_u32 {s(sT1)}, {s(sEX)}, {s(sST+22)}\ns_cmp_lt_u32 {s(sT1)}, {s(sT0)}\ns_cbranch_scc1 {lb}")
    elif STAMP:
        stamp("end")
        P("s_waitcnt lgkmcnt(0)")
        P(f"s_lshl_b32 {s(sT0)}, s2, 3\ns_add_u32 {s(sT0)}, {s(sT0)}, {s(sW)}\ns_lshl_b32 {s(sT0)}, {s(sT0)}, 6\ns_add_u32 {s(sT0)}, {s(sT0)}, {WS_STAMP}")
        P(f"v_mov_b32 v2, 0\ns_mov_b64 exec, 1")
        for i in range(12):
            P(f"v_mov_b32 v3, {s(sST+2*i)}\nbuffer_store_dword v3, v2, {s(SWS,4)}, {s(sT0)} offen offset:{4*i}")
    P("s_endpgm")
    flush_slow()

def phase2_v2(bleft, ffn):
    BAR = [2, 3, 4, 5, 6, 7, 8, 9, 10, 11, 14, 15]; VX = 16
    WB = [20, 21, 22]; RBs = [23, 24, 25]; PX = BAUG
    t = T + 8
    P(f"v_bfe_u32 {v(t)}, {v(vL)}, 2, 2\nv_lshrrev_b32 {v(t+1)}, 5, {v(vL)}\nv_and_b32 {v(t+2)}, 63, {v(AW)}\ns_lshl_b32 {s(sT0)}, {s(sHALF)}, 5\nv_xor_b32 {v(t+2)}, {s(sT0)}, {v(t+2)}")
    P(f"v_lshl_add_u32 {v(t+3)}, {v(t+1)}, 2, {v(t)}\nv_lshl_add_u32 {v(t+3)}, {v(t+3)}, 8, {v(t+2)}\ns_lshl_b32 {s(sT0)}, {s(sHALF)}, 13\nv_add_u32 {v(t+3)}, {s(sT0)}, {v(t+3)}")
    P(f"v_xor_b32 {v(t)}, {s(sM)}, {v(t)}\nv_lshl_add_u32 {v(BAR[0])}, {v(t)}, 6, {v(t+3)}")
    for nb in range(1, 4): P(f"v_xor_b32 {v(BAR[nb])}, {64*nb}, {v(BAR[0])}")
    for rg in (2, 1):
        for nb in range(4): P(f"v_add_u32 {v(BAR[4*rg+nb])}, {65536*rg}, {v(BAR[nb])}")
    LP = int(OPT.get("lp", 8))
    SQ = int(OPT.get("sq", 12))
    seq = [(kk, nb) for kk in range(SQ) for nb in range(4) if nb or kk < LP]
    done_at = {}
    for nb in (1, 2, 3):
        seq += [(kk, nb) for kk in range(SQ, 18)]; done_at[nb] = len(seq)
    seq += [(kk, 0) for kk in range(LP, 18)]
    D = 4
    def bq(i): return XF + 8 * (i & 7)
    def br(i):
        kk, nb = seq[i]; a = KAREA[kk >> 1]
        return [f"ds_read_b64_tr_b16 {v(bq(i)+2*tt,2)}, {v(BAR[4*(a>>16)+nb])} offset:{(a&0xffff)+(kk&1)*4096+2048*tt}" for tt in range(2)]
    def val(kk): validate([AF2(kk) + i for i in range(4)], T + 16, a_jobs(kk)[0])
    for i in range(D): P.add(br(i))
    val(0)
    stamp("hseen")
    first = {}
    for i, (kk, nb) in enumerate(seq): first.setdefault(kk, i)
    ev = {}
    def at(i, x): ev.setdefault(i, []).append(x)
    a8, a14 = int(OPT.get("a8", 14)), int(OPT.get("a14", 30))
    for i, g_ in enumerate(sum([b_dma(k2) for k2 in bleft], [])): at(int(OPT.get('bst', 1)) * i, g_)
    ast = int(OPT.get('ast', 1))
    for k2 in range(8, 14): at(a8 + ast * (k2 - 8), a_jobs(k2)[0])
    for k2 in range(14, 18): at(a14 + ast * (k2 - 14), a_jobs(k2)[0])
    F = T + 8
    at(9, lines(f"v_and_b32 {v(T+17)}, 31, {v(vL)}\nv_lshrrev_b32 {v(T+18)}, 5, {v(vL)}\nv_lshlrev_b32 {v(T+18)}, 4, {v(T+18)}\nv_lshl_add_u32 {v(VX)}, {v(T+17)}, 10, {v(T+18)}") +
          [f"buffer_load_dwordx4 {v(XR,4)}, {v(VX)}, {s(SX,4)}, {s(sOo)} offen", f"buffer_load_dwordx4 {v(B2R,4)}, {v(T+18)}, {s(SB2,4)}, {s(sN)} offen"])
    at(24, lines(f"v_add_u32 {v(WB[0])}, {s(sM0x)}, {v(VL16)}\nv_xor_b32 {v(RBs[0])}, 8192, {v(WB[0])}") +
           sum([[f"v_add_u32 {v(WB[rg])}, {65536*rg}, {v(WB[0])}", f"v_add_u32 {v(RBs[rg])}, {65536*rg}, {v(RBs[0])}"] for rg in (1, 2)], []))
    for i in range(4):
        at(40 + i, lines(f"v_lshlrev_b32 {v(F+2*i)}, 16, {v(XR+i)}\nv_and_b32 {v(F+2*i+1)}, 0xffff0000, {v(XR+i)}\nv_lshlrev_b32 {v(T+4)}, 16, {v(B2R+i)}\nv_and_b32 {v(T+5)}, 0xffff0000, {v(B2R+i)}\nv_add_f32 {v(F+2*i)}, {v(F+2*i)}, {v(T+4)}\nv_add_f32 {v(F+2*i+1)}, {v(F+2*i+1)}, {v(T+5)}"))
    px1 = OPT.get("px1") == "1"
    if not px1:
        pxi = int(OPT.get("pxi", a8 + 6))
        at(pxi - 1, [f"v_mov_b32 {v(PX+i)}, -1" for i in range(4)])
        for j in (1, 2, 3): at(pxi + (j - 1) * int(OPT.get("pxs", 1)), xoff(j, True) + [f"buffer_store_dwordx4 {v(PX,4)}, {v(VL16)}, {s(SWS,4)}, {s(sT0)} offen sc1 ; tag=px"])
    at(int(OPT.get("fx", 8 if px1 else 48)), flag(2, "px"))
    bar_i = first[12] - D
    def wr(nb): a = KAREA[nb]; return [f"ds_write_b128 {v(WB[a>>16])}, {v(AC+16*nb+8+4*q,4)} offset:{(a&0xffff)+1024*q}" for q in range(2)]
    def rdp(nb): a = KAREA[nb]; return [f"ds_read_b128 {v(AC+16*nb+8+4*q,4)}, {v(RBs[a>>16])} offset:{(a&0xffff)+1024*q}" for q in range(2)]
    def add(nb, pk): c = AC + 16 * nb; return [f"v_pk_add_f32 {v(c+i,2)}, {v(c+i,2)}, {v(c+8+i,2)}" for i in range(0, 8, 2)] if pk else [f"v_add_f32 {v(c+i)}, {v(c+i)}, {v(c+8+i)}" for i in range(8)]
    def snd(nb): c = AC + 16 * nb; return [f"v_cvt_pk_bf16_f32 {v(c+8+i)}, {v(c+2*i)}, {v(c+2*i+1)}" for i in range(4)] + xoff(nb, True) + [f"buffer_store_dwordx4 {v(c+8,4)}, {v(VL16)}, {s(SWS,4)}, {s(sT0)} offen sc1"]
    VPF, VPA = PX, PX + 1
    pf = f"buffer_load_dword {v(VPF)}, {v(VPA)}, {s(SWS,4)}, 0 offen sc1"
    at(38 if px1 else done_at[3] + 3, lines(f"v_and_b32 {v(VPA)}, 3, {v(vL)}\nv_lshlrev_b32 {v(VPA)}, 8, {v(VPA)}\nv_xor_b32 {v(VPA)}, {s(sFO)}, {v(VPA)}") + [pf])
    if SQ < 18:
        for nb in (1, 2, 3):
            e = done_at[nb]
            at(e + 1, wr(nb)); at(e + 2, ["s_waitcnt lgkmcnt(2)", "s_barrier"] + rdp(nb)); at(e + 4, add(nb, False) + snd(nb))
        at(done_at[3] + 4, stamp_i("xs"))
    else:
        e = done_at[3]
        at(e, wr(1) + wr(2)); at(e + 1, wr(3) + ["s_waitcnt lgkmcnt(0)", "s_barrier"] + rdp(1) + rdp(2) + rdp(3))
        for nb in (1, 2, 3): at(e + 1 + nb, add(nb, False) + snd(nb))
        at(e + 4, stamp_i("xs"))
    seen = set()
    for i, (kk, nb) in enumerate(seq):
        if i % 4 == 0: P(f"s_setprio {3 - ((i >> 2) & 3)}")
        P(mfma(AC + 16 * nb, bq(i), AF2(kk), None if nb in seen else "0")); seen.add(nb)
        if i == bar_i: P(".waitvm b8"); P("s_barrier")
        if i + D < len(seq): P.add(br(i + D))
        if i + 2 < len(seq) and first[seq[i + 2][0]] == i + 2: val(seq[i + 2][0])
        for x in ev.pop(i, []): P.add(x)
        if i + 1 < len(seq) and first[seq[i + 1][0]] == i + 1: stamp(f"k{kk}")
    assert not ev, ev.keys()
    stamp("p2mm")
    P("s_setprio 0")
    P.add(wr(0))
    P(f"v_mov_b32 {v(VPF)}, {v(VPF)}")
    spin(P.lab("L_pf"), pf, f"v_cmp_gt_u32 vcc, 2, {v(VPF)}")
    P("s_waitcnt lgkmcnt(0)")
    R = XF
    rl = sum([xoff(j, False) + [f"buffer_load_dwordx4 {v(R+4*j,4)}, {v(VL16)}, {s(SWS,4)}, {s(sT0)} offen sc1"] for j in range(1, 4)], [])
    P("s_barrier")
    P.add(rdp(0))
    P.add(rl)
    P.add(add(0, True))
    validate([R + 4 + i for i in range(12)], T + 16, rl)
    stamp("xr")
    P(f"s_mov_b32 {s(sT0)}, 0x3f80\ns_mov_b32 {s(sT1)}, 0x3f800000")
    for j in range(1, 4):
        for i in range(4): P(f"v_dot2c_f32_bf16 {v(AC+2*i)}, {s(sT0)}, {v(R+4*j+i)}\nv_dot2c_f32_bf16 {v(AC+2*i+1)}, {s(sT1)}, {v(R+4*j+i)}")
    for i in range(4): P(f"v_permlane32_swap_b32 {v(AC+i)}, {v(AC+4+i)}")
    for i in range(0, 8, 2): P(f"v_pk_add_f32 {v(F+i,2)}, {v(F+i,2)}, {v(AC+i,2)}")
    for i in range(4): P(f"v_cvt_pk_bf16_f32 {v(XR+i)}, {v(F+2*i)}, {v(F+2*i+1)}")
    P(f"buffer_store_dwordx4 {v(XR,4)}, {v(VX)}, {s(SOUT,4)}, {s(sOo)} offen")
    finish(ffn)

def phase2(done=(), ordr="B6 B7 B8 B9 A4 A5 A6 A7 B10 A8 B11 A9 A10 B12 A11 B13 A12 B14 A13 B15 B16 B17 A14 A15 A16 A17", ffn=False):
    P(f"v_bfe_u32 {v(T+8)}, {v(vL)}, 2, 2\nv_lshrrev_b32 {v(T+9)}, 5, {v(vL)}\nv_and_b32 {v(T+10)}, 63, {v(AW)}")
    P(f"v_lshl_add_u32 {v(T+12)}, {v(T+9)}, 2, {v(T+8)}\nv_lshl_add_u32 {v(T+12)}, {v(T+12)}, 7, {v(T+10)}\nv_lshrrev_b32 {v(T+13)}, 1, {v(T+8)}")
    P(f"v_lshl_add_u32 {v(T+12)}, {v(T+13)}, 6, {v(T+12)}\nv_xor_b32 {v(T+13)}, 64, {v(T+12)}")
    P(f"s_add_u32 {s(sT0)}, {s(sM0x)}, 65536\ns_add_u32 {s(sT1)}, {s(sM0x)}, {RC}")
    for nb in range(2):
        P(f"v_add_u32 {v(BA+nb)}, {s(sM0x)}, {v(T+12+nb)}\nv_add_u32 {v(BA+2+nb)}, {s(sT0)}, {v(T+12+nb)}\nv_add_u32 {v(BA+4+nb)}, {s(sT1)}, {v(T+12+nb)}")
    P.add(b_reads(0))
    if OPT.get("r8", "1") == "1": validate([AFq(0, r2) + i for r2 in range(2) for i in range(4)], T + 16, sum(a_jobs(0), []))
    if OPT.get("p2prio") == "y":
        lb = P.lab("L_pr"); P(f"s_cmp_lt_u32 {s(sW)}, 4\ns_cbranch_scc1 {lb}\ns_setprio 1\n{lb}:")
    stamp("hseen")
    order = [j for j in ordr.split() if j not in done]
    jobs = []
    for j in order:
        k2 = int(j[1:]); gs = a_jobs(k2) if j[0] == "A" else b_dma(k2)
        jobs += [(j, gs[0]), (None, gs[1])]
    LEAD = int(OPT.get("lead", 3))
    first_need = min(int(j[1:]) - (0 if j[0] == "A" else 1) for j in order)
    order.sort(key=lambda j: int(j[1:]) - (0.5 if j[0] == "B" else 0)) if LEAD < 9 else None
    jobs = []
    for j in order:
        k2 = int(j[1:]); gs = a_jobs(k2) if j[0] == "A" else b_dma(k2)
        jobs += [(j, gs[0]), (None, gs[1])]
    NT = int(OPT.get("nt", 2))
    for kk in range(18 - NT):
        rem = [x for x, _ in jobs if x]
        assert f"A{kk+1}" not in rem and f"B{kk+2}" not in rem, (kk, rem)
        if OPT.get("v"): print(kk, rem, file=sys.stderr)
        pm = OPT.get("p2prio", "c")
        if pm == "c": P(f"s_setprio {3 - ((kk // int(OPT.get('p2per', 1))) & 3)}")
        br = b_reads(kk + 1) if kk + 1 < 18 else []
        for nb in range(2):
            for rb in range(2):
                mi = 2 * nb + rb
                P(mfma(AC + 16 * mi, BTq(kk, nb), AFq(kk, rb), "0" if kk == 0 else None))
                if mi == 0: P.add(br[:3])
                if mi == 1: P.add(br[3:])
                if mi == 2 and (1 if OPT.get('r8', '1') == '1' else 4) <= kk + 1 < 18:
                    if jobs and jobs[0][0] is None: P.add(jobs.pop(0)[1])
                    validate([AFq(kk + 1, r2) + i for r2 in range(2) for i in range(4)], T + 16, sum(a_jobs(kk + 1), []))
                for rep in range(2 if kk < int(OPT.get("dbl", 0)) else 1):
                    if not jobs: continue
                    j, g_ = jobs[0]
                    if j:
                        k2 = int(j[1:]); last = (nb, rb) == (1, 1)
                        free = k2 - (8 if j[0] == "A" else 9)
                        if free > kk or (free == kk and not last): continue
                        need_at = k2 - (0 if j[0] == "A" else 1)
                        if need_at > max(kk, first_need - 1) + LEAD: continue
                    jobs.pop(0); P.add(g_)
        stamp(f"k{kk}")
        if kk == 8:
            P(f"v_lshrrev_b32 {v(T+17)}, 3, {v(vL)}\nv_and_b32 {v(T+18)}, 7, {v(vL)}\nv_lshlrev_b32 {v(T+18)}, 4, {v(T+18)}\nv_lshl_add_u32 {v(VXR)}, {v(T+17)}, 10, {v(T+18)}")
            P(f"s_lshl_b32 {s(sT0)}, {s(sN)}, 7")
            P(f"buffer_load_dwordx4 {v(XR,4)}, {v(VXR)}, {s(SX,4)}, {s(sOo)} offen")
            P(f"buffer_load_dwordx4 {v(B2R,4)}, {v(T+18)}, {s(SB2,4)}, {s(sT0)} offen")
        if kk == 3:
            for q in range(4):
                P(f"v_xor_b32 {v(VWR+q)}, {64*q}, {v(VL16)}\nv_add_u32 {v(VWR+q)}, {s(sM0x)}, {v(VWR+q)}")
                P(f"v_add_u32 {v(T+q)}, 65536, {v(VWR+q)}")
            P(f"v_lshrrev_b32 {v(T+4)}, 3, {v(vL)}\ns_lshl_b32 {s(sT0)}, {s(sW34)}, 1\nv_add_u32 {v(T+4)}, {s(sT0)}, {v(T+4)}")
            P(f"v_and_b32 {v(T+5)}, 3, {v(vL)}\nv_lshlrev_b32 {v(T+6)}, 2, {v(T+5)}\nv_xor_b32 {v(T+4)}, {v(T+4)}, {v(T+6)}\nv_lshlrev_b32 {v(T+4)}, 4, {v(T+4)}\nv_and_b32 {v(T+6)}, 1, {v(T+5)}\nv_lshl_add_u32 {v(T+4)}, {v(T+6)}, 10, {v(T+4)}\nv_lshrrev_b32 {v(T+6)}, 1, {v(T+5)}\nv_lshl_add_u32 {v(T+4)}, {v(T+6)}, 14, {v(T+4)}")
            P(f"v_bfe_u32 {v(T+5)}, {v(vL)}, 2, 1\nv_lshl_add_u32 {v(T+4)}, {v(T+5)}, 16, {v(T+4)}\ns_lshl_b32 {s(sT0)}, {s(sHALF)}, 15\nv_add_u32 {v(VRED)}, {s(sT0)}, {v(T+4)}")
        F = T + 8
        if kk == 13:
            for i in range(4):
                P(f"v_lshlrev_b32 {v(F+2*i)}, 16, {v(XR+i)}\nv_and_b32 {v(F+2*i+1)}, 0xffff0000, {v(XR+i)}")
                P(f"v_lshlrev_b32 {v(T+4)}, 16, {v(B2R+i)}\nv_and_b32 {v(T+5)}, 0xffff0000, {v(B2R+i)}")
                P(f"v_add_f32 {v(F+2*i)}, {v(F+2*i)}, {v(T+4)}\nv_add_f32 {v(F+2*i+1)}, {v(F+2*i+1)}, {v(T+5)}")
    assert not jobs
    for kk in range(19 - NT, 18):
        P.add(b_reads(kk))
        validate([AFq(kk, r2) + i for r2 in range(2) for i in range(4)], T + 16, sum(a_jobs(kk), []))
    def wr(blk): return [f"ds_write_b128 {v(VWR + q if blk < 2 else T + q)}, {v(AC+16*blk+4*q,4)} offset:{(blk&1)*32768+(q>>1)*16384+(q&1)*1024}" for q in range(4)]
    pend = []
    for mi in range(4):
        for kk in range(18 - NT, 18):
            P(mfma(AC + 16 * mi, BTq(kk, mi >> 1), AFq(kk, mi & 1)))
            if kk > 18 - NT or NT == 1: P.add(pend[:2]); pend = pend[2:]
        P.add(pend); pend = wr(mi)
    stamp("p2mm")
    P.add(pend)
    P("s_waitcnt lgkmcnt(0)")
    stamp("rw")
    P("s_barrier")
    stamp("rb")
    R = XF
    for ww in range(8):
        for hf in range(2): P(f"ds_read_b128 {v(R+8*ww+4*hf,4)}, {v(VRED)} offset:{2048*ww+512*hf}")
    for ww in range(8):
        for i in range(0, 8, 2): P(f"v_pk_add_f32 {v(F+i,2)}, {v(F+i,2)}, {v(R+8*ww+i,2)}")
    for i in range(4): P(f"v_cvt_pk_bf16_f32 {v(XR+i)}, {v(F+2*i)}, {v(F+2*i+1)}")
    P(f"buffer_store_dwordx4 {v(XR,4)}, {v(VXR)}, {s(SOUT,4)}, {s(sOo)} offen {OPT.get('om', '').replace('+', ' ')}")
    finish(ffn)

def softmax(p, out, LS, pk=False):
    t = T + 16
    if pk:
        assert LS == STD + 1
        L = softmax(p, out, LS)[:9]
        L += [f"v_pk_fma_f32 {v(p+i,2)}, {v(p+i,2)}, {v(STD,2)}, {v(t,2)} op_sel:[0,1,0] op_sel_hi:[1,1,0] neg_lo:[0,0,1] neg_hi:[0,0,1]" for i in range(0, 16, 2)]
        L += [f"v_exp_f32 {v(p+i)}, {v(p+i)}" for i in range(16)]
        L += [f"v_pk_add_f32 {v(t,2)}, {v(p,2)}, {v(p+2,2)}", f"v_pk_add_f32 {v(t+2,2)}, {v(p+4,2)}, {v(p+6,2)}"]
        L += [f"v_pk_add_f32 {v(t+2*(i&1),2)}, {v(t+2*(i&1),2)}, {v(p+8+2*i,2)}" for i in range(4)]
        L += [f"v_pk_add_f32 {v(t,2)}, {v(t,2)}, {v(t+2,2)}", f"v_add_f32 {v(t)}, {v(t)}, {v(t+1)}", f"v_rcp_f32 {v(t)}, {v(t)}"]
        L += [f"v_pk_mul_f32 {v(p+i,2)}, {v(p+i,2)}, {v(t,2)} op_sel_hi:[1,0]" for i in range(0, 16, 2)]
        return L + [f"v_cvt_pk_bf16_f32 {v(out+i)}, {v(p+2*i)}, {v(p+2*i+1)}" for i in range(8)]
    L = [f"v_max3_f32 {v(t)}, {v(p)}, {v(p+1)}, {v(p+2)}", f"v_max3_f32 {v(t+1)}, {v(p+3)}, {v(p+4)}, {v(p+5)}",
         f"v_max3_f32 {v(t)}, {v(t)}, {v(p+6)}, {v(p+7)}", f"v_max3_f32 {v(t+1)}, {v(t+1)}, {v(p+8)}, {v(p+9)}",
         f"v_max3_f32 {v(t)}, {v(t)}, {v(p+10)}, {v(p+11)}", f"v_max3_f32 {v(t+1)}, {v(t+1)}, {v(p+12)}, {v(p+13)}",
         f"v_max3_f32 {v(t)}, {v(t)}, {v(p+14)}, {v(p+15)}", f"v_max_f32 {v(t)}, {v(t)}, {v(t+1)}",
         f"v_mul_f32 {v(t)}, {v(t)}, {v(LS)}"]
    L += [f"v_fma_f32 {v(p+i)}, {v(p+i)}, {v(LS)}, -{v(t)}" for i in range(16)]
    L += [f"v_exp_f32 {v(p+i)}, {v(p+i)}" for i in range(16)]
    L += [f"v_add_f32 {v(t)}, {v(p)}, {v(p+1)}", f"v_add_f32 {v(t+1)}, {v(p+2)}, {v(p+3)}"]
    for i in range(4, 16, 2):
        L += [f"v_add_f32 {v(t)}, {v(t)}, {v(p+i)}", f"v_add_f32 {v(t+1)}, {v(t+1)}, {v(p+i+1)}"]
    L += [f"v_add_f32 {v(t)}, {v(t)}, {v(t+1)}", f"v_rcp_f32 {v(t)}, {v(t)}"]
    L += [f"v_mul_f32 {v(p+i)}, {v(p+i)}, {v(t)}" for i in range(16)]
    L += [f"v_cvt_pk_bf16_f32 {v(out+i)}, {v(p+2*i)}, {v(p+2*i+1)}" for i in range(8)]
    return L

setup(False)
KAREA[:] = [RC, RA+3*Q, RB, RA, RA+Q, RA+2*Q, RB+Q, RB+2*Q, RB+3*Q]
LS = K1; VPK = K2; VV = VW3; MC = BIAS
PHI0, PHI1 = AX, AAUG
PHI0 = AX
PHI1 = S1
PHI1 = T + 12
t = T + 16
P(f"v_bfe_u32 {v(t)}, {v(vL)}, 2, 2\nv_lshrrev_b32 {v(t+1)}, 5, {v(vL)}\nv_lshl_add_u32 {v(t)}, {v(t+1)}, 2, {v(t)}\nv_lshlrev_b32 {v(t)}, 5, {v(t)}")
P(f"v_bfe_u32 {v(t+2)}, {v(vL)}, 1, 1\nv_lshl_add_u32 {v(t)}, {v(t+2)}, 3, {v(t)}\nv_bfe_u32 {v(t+2)}, {v(vL)}, 4, 1\nv_lshl_add_u32 {v(t)}, {v(t+2)}, 4, {v(t)}")
P(f"s_lshl_b32 {s(sT1)}, {s(sHALF)}, 10\ns_add_u32 {s(sT1)}, {s(sT1)}, {L_WPHI}\nv_add_u32 {v(AB)}, {s(sT1)}, {v(t)}")
P(f"v_bfe_u32 {v(t)}, {v(vL)}, 2, 1\nv_mul_u32_u24 {v(t)}, 0x8000, {v(t)}\nv_lshl_or_b32 {v(AB+1)}, {v(t)}, 16, {v(t)}")
P(f"v_and_b32 {v(t)}, 31, {v(vL)}\nv_lshlrev_b32 {v(t)}, 6, {v(t)}\ns_lshl_b32 {s(sT1)}, {s(sW34)}, 9\nv_bfe_u32 {v(t+2)}, {v(vL)}, 1, 2")
P(f"v_lshlrev_b32 {v(t+3)}, 1, {v(t+1)}\nv_xor_b32 {v(t+3)}, {v(t+3)}, {v(t+2)}")
P(f"s_lshl_b32 {s(sT2)}, {s(sHALF)}, 14\ns_add_u32 {s(sT2)}, {s(sT2)}, {s(sT1)}\nv_lshl_add_u32 {v(VPK)}, {v(t+3)}, 4, {v(t)}\nv_add_u32 {v(VPK)}, {s(sT2)}, {v(VPK)}")
P(f"v_xor_b32 {v(t+3)}, {v(t+1)}, {v(t+2)}")
P(f"s_lshl_b32 {s(sT2)}, {s(sHALF)}, 13\ns_add_u32 {s(sT2)}, {s(sT2)}, {s(sT1)}\ns_add_u32 {s(sT2)}, {s(sT2)}, {RA+32768}\nv_lshl_add_u32 {v(VV)}, {v(t+3)}, 4, {v(t)}\nv_add_u32 {v(VV)}, {s(sT2)}, {v(VV)}")
def phi_load(hl, dst):
    return [f"ds_read_b64_tr_b16 {v(dst+2*tt,2)}, {v(AB)} offset:{512*hl+256*tt}" for tt in range(2)] + \
           [f"v_xor_b32 {v(dst+i)}, {v(AB+1)}, {v(dst+i)}" for i in range(4)]
S = Sched(96)
common_sched(S, False, None, MC)
S.post[30] += [f"ds_read_b128 {v(CSR,4)}, {v(VCSA)}"]
sKV, sOS = sH0, sH3
P(f"s_lshl_b32 {s(sT0)}, {s(sG)}, 4\ns_add_u32 {s(sT0)}, {s(sT0)}, {s(sRT)}\ns_mul_i32 {s(sT0)}, {s(sT0)}, {KVP_SZ}\ns_mul_i32 {s(sT1)}, {s(sW)}, 1152\ns_add_u32 {s(sT0)}, {s(sT0)}, {s(sT1)}\ns_add_u32 {s(sT0)}, {s(sT0)}, {WS_KVP}")
P(f"s_cmp_lt_u32 {s(sW)}, 4\ns_cselect_b32 {s(sKV)}, {s(sT0)}, 0x7f000000")
P(f"s_lshl_b32 {s(sT0)}, {s(sG)}, 2\ns_lshl_b32 {s(sT1)}, {s(sHALF)}, 1\ns_add_u32 {s(sT0)}, {s(sT0)}, {s(sT1)}\ns_add_u32 {s(sT0)}, {s(sT0)}, 112\ns_lshl_b32 {s(sT0)}, {s(sT0)}, 10\ns_add_u32 {s(sOS)}, {s(sT0)}, {s(sHo)}")
PA = AAUG
OFFL = OPT.get("off", "0") == "1"
if OFFL:
    P(f"s_mul_i32 {s(sT0)}, {s(sG)}, 448\ns_and_b32 {s(sT1)}, {s(sG)}, 1\ns_add_u32 {s(sT2)}, {s(sT1)}, {s(sHALF)}\ns_lshl_b32 {s(sT2)}, {s(sT2)}, 6\ns_add_u32 {s(sT2)}, {s(sT2)}, {s(sT0)}")
    P(f"s_lshl_b32 {s(sT2)}, {s(sT2)}, 5\ns_add_u32 {s(sWq)}, {s(sT2)}, {s(sHo)}\ns_add_u32 {s(sWq)}, {s(sWq)}, 8192")
    P(f"s_xor_b32 {s(sT1)}, {s(sT1)}, 1\ns_mul_i32 {s(sT1)}, {s(sT1)}, 384\ns_add_u32 {s(sT0)}, {s(sT0)}, {s(sT1)}\ns_lshl_b32 {s(sT1)}, {s(sHALF)}, 5\ns_add_u32 {s(sT0)}, {s(sT0)}, {s(sT1)}")
    P(f"s_lshl_b32 {s(sT0)}, {s(sT0)}, 5\ns_add_u32 {s(sW3)}, {s(sT0)}, {s(sHo)}")
S.post[46] += [f"v_mov_b32 {v(PA+i)}, -1" for i in range(4)] + [f"v_lshrrev_b32 {v(S2)}, 2, {v(vL)}", f"v_lshl_add_u32 {v(S2)}, {v(S2)}, 26, {v(VL16)}"]
S.post[47] += [f"buffer_store_dwordx4 {v(PA,4)}, {v(VL16)}, {s(SWS,4)}, {s(sKV)} offen sc1"]
S.post[48] += [f"buffer_store_dwordx4 {v(PA,4)}, {v(S2)}, {s(SWS,4)}, {s(sKV)} offen offset:1024 sc1 ; tag=pz"]
pl = [(sOS, 0), (sOS, 1024)] + ([(sWq, 0), (sWq, 1024), (sW3, 0)] if OFFL else [])
for (so, off), G in zip(pl, [int(x) for x in OPT.get("pza", "50,53,56,59,62").split(",")]):
    S.post[G] += [f"buffer_store_dwordx4 {v(PA,4)}, {v(VL16)}, {s(SWS,4)}, {s(so)} offen offset:{off} sc1 ; tag=po"]
PX1 = OPT.get("px1") == "1"
if V2 and PX1:
    for j, G in zip((1, 2, 3), (56, 59, 62)): S.post[G] += xoff(j, True) + [f"buffer_store_dwordx4 {v(PA,4)}, {v(VL16)}, {s(SWS,4)}, {s(sT0)} offen sc1 ; tag=px"]
S.post[63] += [f"v_mov_b32 {v(PA+2)}, 0", f"v_mov_b32 {v(PA+3)}, 0"]
def ltouch():
    P(f"s_sub_u32 {s(sT0)}, {s(sW)}, 4\ns_cmp_lt_u32 {s(sT0)}, 3")
    P(f"s_cbranch_scc0 L_nlt")
    P.cond_begin("w456")
    P(f"v_lshlrev_b32 {v(S1)}, 7, {v(vL)}\ns_lshl_b32 {s(sT1)}, {s(sRT)}, 3\ns_add_u32 {s(sT1)}, {s(sT1)}, {s(sG)}")
    P(f"s_cmp_eq_u32 {s(sT0)}, 2\ns_cbranch_scc1 L_lt2")
    P(f"s_lshl_b32 {s(sT1)}, {s(sT1)}, 1\ns_add_u32 {s(sT1)}, {s(sT1)}, {s(sT0)}\ns_mul_i32 {s(sT1)}, {s(sT1)}, 7168")
    P(f"buffer_load_dword {v(VX0)}, {v(S1)}, {s(SW2,4)}, {s(sT1)} offen")
    P("s_branch L_nlt")
    P("L_lt2:")
    P(f"v_and_b32 {v(S1)}, 4095, {v(S1)}\ns_lshl_b32 {s(sT1)}, {s(sT1)}, 12")
    P(f"buffer_load_dword {v(VX0)}, {v(S1)}, {s(SWO,4)}, {s(sT1)} offen")
    P(f"buffer_load_dword {v(VX1)}, {v(S1)}, {s(SB2,4)}, 0 offen")
    P.cond_end()
    for I in P.ins[-12:]:
        if I.kind == "vld": I.defs = []
    P("L_nlt:")
if OPT.get("touch", "5") == "2": S.blk[("e", int(OPT.get("tg", 54)))] = ltouch
S.post[31] += stamp_i("pass1")
fill = stats_final() + aug(ACC0, CSR, None) + phi_load(0, AX) + phi_load(1, T + 8) + [f"v_mul_f32 {v(LS)}, {f2u(LOG2E):#x}, {v(RSTD)}"]
fill += [f"v_cvt_pk_bf16_f32 {v(T+i)}, {v(ACC0+2*i)}, {v(ACC0+2*i+1)}" for i in range(8)]
fill += [mfma(ACC2, AX, T, "0"), mfma(ACC0, T + 8, T + 4, "0")]
S.spread(fill, 32, 40)
S.spread(softmax(ACC2, T + 8, LS) + softmax(ACC0, T, LS), 41, 64)
pkg = 62 if OPT.get("few", "1") == "1" else 56
S.post[pkg] += [f"ds_write_b128 {v(VPK)}, {v(T+8,4)}", f"v_xor_b32 {v(VSTA)}, 16, {v(VPK)}"]
S.post[pkg+1] += [f"ds_write_b128 {v(VSTA)}, {v(T+12,4)}"]
S.post[62] += [f"ds_read_b128 {v(MC,4)}, {v(VCSA)} offset:1024"]
S.post[63] += stamp_i("sub1")
S.pre[64] += sum4(CS0, MC)
S.fill[64] += aug(ACC1, MC, None)[3:]
S.post[65] += [f"ds_write_b128 {v(VPK)}, {v(T,4)} offset:8192"]
S.post[66] += [f"ds_write_b128 {v(VSTA)}, {v(T+4,4)} offset:8192"]
fill = []
fill += [f"v_mul_f32 {v(ACC1+i)}, {v(ACC1+i)}, {v(RSTD)}" for i in range(16)]
fill += [f"v_cvt_pk_bf16_f32 {v(ACC1+i)}, {v(ACC1+2*i)}, {v(ACC1+2*i+1)}" for i in range(8)]
fill += [f"ds_write_b128 {v(VV)}, {v(ACC1,4)}", f"v_xor_b32 {v(VV)}, 32, {v(VV)}", f"ds_write_b128 {v(VV)}, {v(ACC1+4,4)}"]
S.spread(fill, 66, 70)
S.dmas(b_dma(0), 65, 3)
S.dmas(b_dma(1), 74, 4); S.dmas(b_dma(2) + b_dma(3) + b_dma(4), 86, 1)
def kvblock():
    P(".waitvm pz lgkm0")
    P("s_barrier")
    kvflag()
    stamp("kv0"); stamp("kv1")
    P(f"s_cmp_lt_u32 {s(sW)}, 4")
    P("s_cbranch_scc0 L_nkv")
    P.cond_begin("lo4")
    t = T + 16; u = S1
    P(f"v_bfe_u32 {v(u)}, {v(vL)}, 2, 2\nv_lshrrev_b32 {v(u+1)}, 5, {v(vL)}\nv_lshl_add_u32 {v(u)}, {v(u+1)}, 3, {v(u)}\nv_lshlrev_b32 {v(u)}, 6, {v(u)}")
    P(f"v_bfe_u32 {v(u+1)}, {v(vL)}, 1, 1\nv_lshl_add_u32 {v(u)}, {v(u+1)}, 3, {v(u)}\nv_bfe_u32 {v(u+1)}, {v(vL)}, 3, 1\nv_and_b32 {v(VSTA)}, 1, {v(vL)}")
    P(f"v_or_b32 {v(t)}, {s(sSH)}, {v(VSTA)}\nv_xor_b32 {v(t)}, {v(t)}, {v(u+1)}\nv_lshl_add_u32 {v(t)}, {v(t)}, 4, {v(u)}")
    P(f"s_lshr_b32 {s(sT0)}, {s(sW)}, 1\ns_lshl_b32 {s(sT0)}, {s(sT0)}, 13\ns_add_u32 {s(sT0)}, {s(sT0)}, {RA+32768}\nv_add_u32 {v(t)}, {s(sT0)}, {v(t)}\nv_xor_b32 {v(t+1)}, 32, {v(t)}")
    P(f"v_bfe_u32 {v(t+2)}, {v(vL)}, 4, 1\nv_lshl_add_u32 {v(t+2)}, {v(VSTA)}, 1, {v(t+2)}\nv_xor_b32 {v(t+2)}, {v(t+2)}, {v(u+1)}\nv_lshl_add_u32 {v(t+2)}, {v(t+2)}, 4, {v(u)}")
    P(f"s_lshl_b32 {s(sT0)}, {s(sW)}, 13\nv_add_u32 {v(t+2)}, {s(sT0)}, {v(t+2)}\nv_xor_b32 {v(t+3)}, 32, {v(t+2)}")
    P(f"v_and_b32 {v(u)}, 16, {v(vL)}\nv_cmp_eq_u32 vcc, 0, {v(u)}\nv_mov_b32 {v(u+1)}, {s(sONE)}")
    KB = [T, T + 8, ACC1, ACC1 + 8]
    def kr(J):
        for tt in range(2):
            P(f"ds_read_b64_tr_b16 {v(KB[J&3]+2*tt,2)}, {v(t+tt)} offset:{1024*J+256*tt}")
            P(f"ds_read_b64_tr_b16 {v(KB[J&3]+4+2*tt,2)}, {v(t+2+tt)} offset:{1024*J+256*tt}")
    kr(0); kr(1); kr(2)
    for J in range(8):
        for i in range(4): P(f"v_cndmask_b32 {v(KB[J&3]+i)}, {v(u+1)}, {v(KB[J&3]+i)}, vcc")
        if J + 3 < 8: kr(J + 3)
        P(mfma(ACC0, KB[J&3] + 4, KB[J&3], "0" if J == 0 else None))
    P(f"v_lshrrev_b32 {v(u)}, 5, {v(vL)}\nv_and_b32 {v(t+2)}, 15, {v(vL)}\nv_lshlrev_b32 {v(t)}, 4, {v(t+2)}\nv_lshl_add_u32 {v(t)}, {v(u)}, 8, {v(t)}\nv_add_u32 {v(t+1)}, 512, {v(t)}")
    P(f"v_lshlrev_b32 {v(u)}, 4, {v(u)}\nv_add_u32 {v(u)}, 1024, {v(u)}\nv_lshl_add_u32 {v(u)}, {v(t+2)}, 26, {v(u)}\nv_add_u32 {v(u+1)}, 32, {v(u)}")
    P(f"v_cndmask_b32 {v(t)}, {v(u)}, {v(t)}, vcc\nv_cndmask_b32 {v(t+1)}, {v(u+1)}, {v(t+1)}, vcc")
    for i in range(8): P(f"v_cvt_pk_bf16_f32 {v(T+i)}, {v(ACC0+2*i)}, {v(ACC0+2*i+1)}")
    stamp("kv1")
    for j in range(2): P(f"buffer_store_dwordx4 {v(T+4*j,4)}, {v(t+j)}, {s(SWS,4)}, {s(sKV)} offen sc1")
    P.cond_end()
    P("L_nkv:")
    stamp("kv2")
S.blk[70] = kvblock
S.pre[94] += ["s_waitcnt lgkmcnt(0)", "s_barrier"]
def kvflag():
    P(f"s_cmp_eq_u32 {s(sW)}, 7")
    P("s_cbranch_scc0 L_nkf")
    P.cond_begin("w0")
    P(f"s_lshl_b32 {s(sT0)}, {s(sG)}, 8\ns_lshl_b32 {s(sT1)}, {s(sRT)}, 2\ns_add_u32 {s(sT0)}, {s(sT0)}, {s(sT1)}\ns_add_u32 {s(sT0)}, {s(sT0)}, {WS_KVF}")
    P(f"v_mov_b32 {v(VFV)}, 1")
    P(f"buffer_store_dword {v(VFV)}, {v(VZ)}, {s(SWS,4)}, {s(sT0)} offen sc1")
    P.cond_end()
    P("L_nkf:")
def kvpoll():
    P(f"s_cmp_eq_u32 {s(sW)}, 7")
    P("s_cbranch_scc0 L_nkp")
    n0 = len(P.ins)
    P(f"s_lshl_b32 {s(sT2)}, {s(sG)}, 8\ns_add_u32 {s(sT2)}, {s(sT2)}, {WS_KVF}\ns_mov_b32 {s(sCNT)}, 0")
    P("s_branch L_spkv1")
    P("L_spkv:")
    P(f"s_buffer_load_dwordx16 s[20:35], {s(SWS,4)}, {s(sT2)} glc")
    P("L_spkv1:")
    P(f"s_add_u32 {s(sCNT)}, {s(sCNT)}, 1")
    P("s_waitcnt lgkmcnt(0)")
    for i in range(22, 36, 2): P(f"s_and_b64 s[20:21], s[20:21], s[{i}:{i+1}]")
    P("s_and_b32 s20, s20, s21")
    P("s_cbranch_scc1 L_nkp")
    P(f"s_cmp_gt_u32 {s(sCNT)}, {SPIN_MAX}")
    P("s_cbranch_scc1 L_nkp")
    P("s_sleep 1")
    P("s_branch L_spkv")
    for I in P.ins[n0:]:
        I.cond = "kvp"
        if I.kind == "smem": I.kind = "opaque"
    P("L_nkp:")
def kvreq():
    P(f"s_cmp_eq_u32 {s(sW)}, 7")
    P("s_cbranch_scc0 L_nkr")
    n0 = len(P.ins)
    P(f"s_lshl_b32 {s(sT2)}, {s(sG)}, 8\ns_add_u32 {s(sT2)}, {s(sT2)}, {WS_KVF}")
    P(f"s_buffer_load_dwordx16 s[20:35], {s(SWS,4)}, {s(sT2)} glc")
    for I in P.ins[n0:]:
        I.cond = "kvp"
        if I.kind == "smem": I.kind = "opaque"
    P("L_nkr:")
S.blk[87] = kvreq; S.blk[94] = kvpoll
S.post[94] += [f"ds_read_b128 {v(CSR,4)}, {v(VCSA)} offset:2048"] + phi_load(1, T + 8)
run_sched(S, [ACC0, ACC1, ACC2])
stamp("sub2")
PQ = WF
def Gq(r): return XF + 8 * r
Z = XF + 80; GA = XF + 64
VG, VGZ = S1, S2
P(f"s_mul_i32 {s(sT2)}, {s(sG)}, {16*KVP_SZ}\ns_lshr_b32 {s(sT0)}, {s(sW)}, 1\ns_mul_i32 {s(sT0)}, {s(sT0)}, 1152\ns_add_u32 {s(sT2)}, {s(sT2)}, {s(sT0)}\ns_add_u32 {s(sT2)}, {s(sT2)}, {WS_KVP}")
P(f"v_and_b32 {v(VGZ)}, 15, {v(vL)}\nv_mul_u32_u24 {v(VGZ)}, {KVP_SZ}, {v(VGZ)}\nv_and_b32 {v(VG)}, 16, {v(vL)}\nv_add_u32 {v(VGZ)}, {v(VGZ)}, {v(VG)}\ns_lshl_b32 {s(sT0)}, {s(sSH)}, 4\nv_add_u32 {v(VGZ)}, {s(sT0)}, {v(VGZ)}")
P(f"v_lshrrev_b32 {v(VG)}, 5, {v(vL)}\nv_mul_u32_u24 {v(VG)}, {8*KVP_SZ - 512}, {v(VG)}\nv_add_u32 {v(VG)}, {v(VG)}, {v(VL16)}\ns_lshl_b32 {s(sT0)}, {s(sSH)}, 8\nv_add_u32 {v(VG)}, {s(sT0)}, {v(VG)}")
gl = [[f"buffer_load_dwordx4 {v(Z,4)}, {v(VGZ)}, {s(SWS,4)}, {s(sT2)} offen offset:1024 sc1"]]
for r in range(8):
    gl.append(lines(f"s_add_u32 {s(sD1)}, {s(sRT)}, {r}\ns_and_b32 {s(sD1)}, {s(sD1)}, 7\ns_mul_i32 {s(sD1)}, {s(sD1)}, {KVP_SZ}\ns_add_u32 {s(sD1)}, {s(sD1)}, {s(sT2)}") +
              [f"buffer_load_dwordx4 {v(Gq(r),4)}, {v(VG)}, {s(SWS,4)}, {s(sD1)} offen sc1"])
P.add(aug(ACC2, CSR, None))
bd = sum([b_dma(kk) for kk in (5, 6, 7)], [])
GD = int(OPT.get("gd", 2))
for g_ in bd[:GD]: P.add(g_)
for i in range(8): P(f"v_cvt_pk_bf16_f32 {v(T+i)}, {v(ACC2+2*i)}, {v(ACC2+2*i+1)}")
P(mfma(ACC1, AX, T, "0"))
P(mfma(ACC2, T + 8, T + 4, "0"))
P.add(interleave(gl, softmax(ACC1, PQ, LS, True)))
stamp("qsm")
sneed(1, 1)
P(spoll(0))
P.add(interleave(bd[GD:], softmax(ACC2, PQ + 8, LS, True)))
stamp("sm2")
sneed(1, 0)
validate([Z + i for i in range(4)] + [Gq(r) + i for r in range(8) for i in range(4)], T + 16, sum(gl, []))
stamp("kvseen")
aj = sum([a_jobs(kk) for kk in range(8 if V2 else 4)], [])
n_o0 = len(P.ins)
P(f"v_lshrrev_b32 {v(T+1)}, 5, {v(vL)}")
P(f"v_bfe_u32 {v(T+2)}, {v(vL)}, 4, 1\nv_lshlrev_b32 {v(T+2)}, 9, {v(T+2)}\nv_lshl_add_u32 {v(T+2)}, {v(T+1)}, 3, {v(T+2)}")
P(f"s_lshl_b32 {s(sT0)}, {s(sW)}, 10\ns_add_u32 {s(sT0)}, {s(sT0)}, {L_KVB}\nv_add_u32 {v(T+2)}, {s(sT0)}, {v(T+2)}")
P(f"v_and_b32 {v(T+3)}, 15, {v(vL)}\nv_lshl_add_u32 {v(T+3)}, {v(T+3)}, 4, {v(T+2)}")
P(f"v_cmp_gt_u32 vcc, 32, {v(vL)}\ns_mov_b32 {s(sT0)}, 0x3f80\ns_mov_b32 {s(sT1)}, 0x3f800000")
P(f"v_cndmask_b32 {v(Z)}, {v(Z+2)}, {v(Z)}, vcc\nv_cndmask_b32 {v(Z+1)}, {v(Z+3)}, {v(Z+1)}, vcc")
P(f"v_lshlrev_b32 {v(Z+8)}, 16, {v(Z)}\nv_and_b32 {v(Z+9)}, 0xffff0000, {v(Z)}\nv_lshlrev_b32 {v(Z+10)}, 16, {v(Z+1)}\nv_and_b32 {v(Z+11)}, 0xffff0000, {v(Z+1)}")
for ror in (8, 4, 2, 1):
    for i in range(4): P(f"v_add_f32_dpp {v(Z+8+i)}, {v(Z+8+i)}, {v(Z+8+i)} row_ror:{ror} row_mask:0xf bank_mask:0xf")
P(f"v_cvt_pk_bf16_f32 {v(Z)}, {v(Z+8)}, {v(Z+9)}\nv_cvt_pk_bf16_f32 {v(Z+1)}, {v(Z+10)}, {v(Z+11)}")
P(f"ds_write_b64 {v(T+2)}, {v(Z,2)} offset:256")
def ga(i): return GA + (i & 3) + 8 * (i >> 2)
for i in range(4):
    P(f"v_lshlrev_b32 {v(ga(2*i))}, 16, {v(Gq(0)+i)}\nv_and_b32 {v(ga(2*i+1))}, 0xffff0000, {v(Gq(0)+i)}")
for r in range(1, 8):
    for i in range(4):
        P(f"v_dot2c_f32_bf16 {v(ga(2*i))}, {s(sT0)}, {v(Gq(r)+i)}\nv_dot2c_f32_bf16 {v(ga(2*i+1))}, {s(sT1)}, {v(Gq(r)+i)}")
for i in range(4): P(f"v_permlane32_swap_b32 {v(ga(i))}, {v(ga(i+4))}")
for i in range(4): P(f"v_add_f32 {v(ga(i))}, {v(ga(i))}, {v(ga(i+4))}")
P(f"v_cvt_pk_bf16_f32 {v(GA)}, {v(GA)}, {v(GA+1)}\nv_cvt_pk_bf16_f32 {v(GA+1)}, {v(GA+2)}, {v(GA+3)}")
P(f"ds_write_b64 {v(T+3)}, {v(GA,2)}")
stamp("gsum")
P(f"v_and_b32 {v(T)}, 31, {v(vL)}\nv_min_u32 {v(T)}, 16, {v(T)}\nv_and_b32 {v(T+1)}, 32, {v(vL)}\nv_add_u32 {v(T)}, {v(T)}, {v(T+1)}\nv_lshlrev_b32 {v(T)}, 4, {v(T)}")
P(f"s_lshl_b32 {s(sT0)}, {s(sHALF)}, 12\ns_add_u32 {s(sT0)}, {s(sT0)}, {L_KVB}\nv_add_u32 {v(T)}, {s(sT0)}, {v(T)}")
P(".waitvm b7 lgkm0")
P("s_barrier")
for i in range(4): P(f"ds_read_b128 {v(Gq(i),4)}, {v(T)} offset:{1024*i}")
P(mfma(ACC0, Gq(0), PQ, "0")); P(mfma(ACC1, Gq(2), PQ + 8, "0"))
P(mfma(ACC0, Gq(1), PQ + 4)); P(mfma(ACC1, Gq(3), PQ + 12))
body = P.ins[n_o0:]; del P.ins[n_o0:]
for i, g_ in enumerate(aj):
    P.add(g_); P.ins += body[len(body)*i//8: len(body)*(i+1)//8]
for hl, acc in enumerate((ACC0, ACC1)):
    P(f"v_add_f32 {v(acc+8)}, {f2u(1e-6):#x}, {v(acc+8)}\nv_rcp_f32 {v(acc+8)}, {v(acc+8)}")
    for i in range(8): P(f"v_mul_f32 {v(acc+i)}, {v(acc+i)}, {v(acc+8)}")
    for i in range(4): P(f"v_cvt_pk_bf16_f32 {v(T+4*hl+i)}, {v(acc+2*i)}, {v(acc+2*i+1)}")
    P(f"buffer_store_dwordx4 {v(T+4*hl,4)}, {v(VL16)}, {s(SWS,4)}, {s(sOS)} offen offset:{1024*hl} sc1 ; ost")
stamp("p1end")
if V2: phase2_v2((8,), False)
else: phase2(("B6", "B7"), "A4 A5 A6 B8 A7 B9 A8 B10 A9 B11 A10 B12 A11 B13 A12 B14 A13 B15 B16 B17 A14 A15 A16 A17")

P("L_ffn:")
P(".reset")
setup(True)
KAREA[:] = [RC, RA+2*Q, RA+3*Q, RB, RB+Q, RB+2*Q, RA, RA+Q, RB+3*Q]
MC = ACC2; CSF = ACC2 + 4
S = Sched(112)
common_sched(S, True, None, MC)
S.post[30] += [f"ds_read_b128 {v(CSF,4)}, {v(VCSA)}"]
S.post[40] += [f"s_add_u32 {s(sT2)}, {s(sH0)}, 4096", f"s_add_u32 {s(sK)}, {s(sH0)}, 8192"]
pzs = [[f"buffer_store_dwordx4 {v(PZ,4)}, {v(VL16)}, {s(SWS,4)}, {s(so)} offen offset:{off} sc1 ; tag=h1"]
       for so, off in ((sT2, 0), (sT2, 1024), (sK, 0), (sK, 1024), (sH3, 0))[:2 if OFFL else 5]]
for g_, G in zip(pzs, [int(x) for x in OPT.get("pz", "50,56,59,67,70").split(",")]): S.post[G] += g_
S.post[31] += stamp_i("pass1")
fill = stats_final() + aug(ACC0, CSF, BIAS)
fill += [f"v_mul_f32 {v(K1)}, {f2u(GC1):#x}, {v(RSTD)}", f"v_mul_f32 {v(K2)}, {v(RSTD)}, {v(RSTD)}",
         f"v_mul_f32 {v(K2)}, {v(K2)}, {v(RSTD)}", f"v_mul_f32 {v(K2)}, {f2u(GC2):#x}, {v(K2)}"]
S.spread(fill, 32, 39)
S.spread(gelu(ACC0, 16) + hstore(sH0, 2, "h1") + [f"s_add_u32 {s(sH0)}, {s(sH0)}, 4096"], 39, 64)
S.post[62] += [f"ds_read_b128 {v(CSF,4)}, {v(VCSA)} offset:1024"]
S.post[63] += stamp_i("sub1")
S.spread(aug(ACC1, CSF, BIAS + 1), 64, 66)
S.spread(gelu(ACC1, 16) + hstore(sH0, 2, "h2") + [f"s_add_u32 {s(sH0)}, {s(sH0)}, 4096"], 67, 96)
w3 = sum([w3quarter(q, 3584) for q in range(4)], [])
for g_, G in zip(w3 + b_dma(0), [int(x) for x in OPT.get("w3", "64,68,72,76,74,75" if OPT.get("few", "1") == "1" else "48,54,60,72,75,76").split(",")]): S.dma[G] += g_
S.dmas(b_dma(1), 78, 2); S.dmas(b_dma(2), 82, 2); S.dmas(b_dma(3), 86, 2); S.dmas(b_dma(4), 90, 2); S.dmas(b_dma(5), 98, 2)
S.pre[94] += [".waitvm w3 lgkm0", "s_barrier"]
S.post[94] += [f"ds_read_b128 {v(CSF,4)}, {v(VCSA)} offset:2048"]
S.post[95] += stamp_i("sub2")
if V2 and PX1:
    for j, G in zip((1, 2, 3), [int(x) for x in OPT.get("pxg", "91,93,102").split(",")]): S.post[G] += xoff(j, True) + [f"buffer_store_dwordx4 {v(PZ,4)}, {v(VL16)}, {s(SWS,4)}, {s(sT0)} offen sc1 ; tag=px"]
S.fill[96] += aug(ACC0, CSF, BIAS + 2)
if OFFL: S.post[106] += [f"s_sub_u32 {s(sT2)}, {s(sFO)}, 1024", f"s_buffer_load_dword {s(sK)}, {s(SWS,4)}, {s(sT2)} glc"]
S.spread(gelu(ACC0, 16), 98, 112)
aj = sum([a_jobs(kk) for kk in range(8 if V2 else 6)], []) + [[]] * 4
S.dmas(aj[:6], 106); aj = aj[2:]
for i in range(0, 16, 2): S.post[96 + i] += [m16(MC, SEL, WF + 4 * (i & 3), "0" if i == 0 else None)]
run_sched(S, [ACC0, ACC1, ACC0, ACC1])
t = T + 16
P(f"v_and_b32 {v(t)}, 31, {v(vL)}\ns_lshl_b32 {s(sT0)}, {s(sHALF)}, 4\nv_xor_b32 {v(t)}, {s(sT0)}, {v(t)}\nv_lshlrev_b32 {v(t)}, 4, {v(t)}\nv_add_u32 {v(t)}, {L_CS+3072}, {v(t)}")
P(f"v_add_u32 {v(t+1)}, {s(sW34)}, {v(VCSA)}")
P(f"ds_write_b32 {v(t+1)}, {v(MC)} offset:3072")
P.add(aj[4])
XO = 4096 if V2 else 1024
P(f"s_add_u32 {s(sT1)}, {s(sMB if V2 else sM0x)}, {KAREA[8]}\ns_xor_b32 {s(sT0)}, {s(sT1)}, 8192\nv_add_u32 {v(t+1)}, {s(sT0)}, {v(VL16)}\nv_add_u32 {v(AB)}, {s(sT1)}, {v(VL16)}")
P(f"ds_write_b128 {v(t+1)}, {v(ACC1+8,4)}\nds_write_b128 {v(t+1)}, {v(ACC1+12,4)} offset:{XO}")
P(".waitvm b5 lgkm0")
P("s_barrier")
stamp("sub3")
P(f"ds_read_b128 {v(CSF,4)}, {v(t)}")
P(f"ds_read_b128 {v(ACC0,4)}, {v(AB)}\nds_read_b128 {v(ACC0+4,4)}, {v(AB)} offset:{XO}")
P.add(aj[5])
P.add(aug(ACC1, CSF, BIAS + 3))
P.add(aj[6] + aj[7])
for i in range(0, 8, 2): P(f"v_pk_add_f32 {v(ACC1+i,2)}, {v(ACC1+i,2)}, {v(ACC0+i,2)}")
stamp("x7")
gt = gelu(ACC1, 8, True, out=BIAS); h3 = hstore(sH0, 2, "h3")
sneed(1, 1)
if OFFL: own_check()
P.add(aj[8] + gt[:10] + aj[9] + gt[10:20] + [h3[0]] + gt[20:30] + [h3[1]] + gt[30:] + hstore(sH3, 1, "h4", BIAS))
stamp("p1end")
if V2: phase2_v2((6, 7, 8), True)
else: phase2(("A4", "A5"), "B6 A6 B7 A7 B8 B9 A8 B10 A9 B11 A10 B12 A11 B13 A12 B14 A13 B15 B16 B17 A14 A15 A16 A17", True)

P("L_end:")
P("s_endpgm")

ins = P.ins
for I in ins:
    if "; nodef" in I.text: I.defs = []
if OPT.get("nodma"): ins = [I for I in ins if I.kind != "dma"]
if OPT.get("notr"): ins = [I for I in ins if not I.op.startswith("ds_read_b64_tr")]
if OPT.get("nofmac"): ins = [I for I in ins if not (I.op.startswith("v_fmac") or (I.op == "v_and_b32" and "0xffff0000" in I.text) or (I.op == "v_lshlrev_b32" and I.ops[1] == "16"))]
if OPT.get("nom16"): ins = [I for I in ins if "16x16x32" not in I.op]
if OPT.get("notrans"): ins = [I for I in ins if not I.op.startswith(("v_exp", "v_rcp"))]
if OPT.get("novalu"): ins = [I for I in ins if not I.op.startswith(("v_exp", "v_rcp", "v_mul_f32", "v_fma_f32", "v_cvt_pk", "v_max3", "v_add_f32"))]
if OPT.get("nopk"): ins = [I for I in ins if not I.op.startswith(("v_pk_", "v_dot2c"))]
if OPT.get("noval"): ins = [I for I in ins if not (I.op == "s_cbranch_vccnz" and "_slow" in I.text)]
if OPT.get("noa"): ins = [I for I in ins if not (I.kind == "vld" and "x4" in I.op and "sc1" in I.mods)]
if OPT.get("nob"): ins = [I for I in ins if not (I.kind == "dma" and (s(SW2,4) in I.text or s(SWO,4) in I.text))]
if OPT.get("anosc"):
    for I in ins:
        if I.kind == "vld" and "x4" in I.op: I.text = I.text.replace(" sc1", " " + OPT["anosc"].replace("0", ""))
if OPT.get("nopz"): ins = [I for I in ins if not (I.kind == "vst" and "x4" in I.op and (v(PZ,4) in I.text or v(AAUG,4) in I.text) and s(SWS,4) in I.text)]
if OPT.get("plain"):
    for I in ins:
        if I.kind == "vst" and "x4" in I.op and s(SWS,4) in I.text and ("tag=h" in I.text or "tag=po" in I.text or "; ost" in I.text): I.text = I.text.replace(" sc1", "")
if OPT.get("nohs"):
    ins = [I for I in ins if not (I.op.startswith("s_buffer_load") or I.text.startswith((".waitvm h", ".waitvm po", ".waitvm zf")) or (I.op == "s_branch" and ("L_sp" in I.text or "L_ncs" in I.text or "L_oc" in I.text) and "spkv1" not in I.text))]
    for I in ins:
        if I.text.startswith(".waitvm pz"): I.text = ".waitvm none lgkm0"
if OPT.get("nost"): ins = [I for I in ins if not (I.kind == "vst" and "x4" in I.op and "tag=h" in I.text)]
if OPT.get("nomfma"): ins = [I for I in ins if I.kind != "mfma"]
if STAMP:
    for I in ins:
        if I.op in ("s_memrealtime", "s_memtime"): I.kind = "salu"
ins = auto_wait(ins)
st = []
ins = hazards(ins, st)
hdr = open("parallel_sum__linear_kernel_hedgehog__dense_activation_gelu__prompt.s.ref").read().split("; Override")[0]
out = hdr + f"; @launch grid=(256,1,1) block=(512,1,1) lds={LDS_SIZE}\n"
out += f'.amdgcn_target "amdgcn-amd-amdhsa--gfx950"\n.text\n.globl {NAME}\n.p2align 8\n.type {NAME},@function\n{NAME}:\n'
out += render(ins)
out += f""".section .rodata,"a"
.p2align 6
.amdhsa_kernel {NAME}
  .amdhsa_next_free_vgpr 256
  .amdhsa_next_free_sgpr 102
  .amdhsa_accum_offset 256
  .amdhsa_group_segment_fixed_size 0
  .amdhsa_kernarg_size 96
  .amdhsa_user_sgpr_count 2
  .amdhsa_user_sgpr_kernarg_segment_ptr 1
  .amdhsa_system_sgpr_workgroup_id_x 1
.end_amdhsa_kernel
"""
open(sys.argv[1], "w").write(out)
print(f"instrs={sum(1 for I in ins if I.kind not in ('label','dir'))} nop-sites={len(st)} nop-states={sum(n for n,_ in st)}", file=sys.stderr)
if OPT.get("nops"):
    for n, tx in st: print(n, tx, file=sys.stderr)
```

```python
import sys, math, struct
from ir import *

NAME = "parallel_sum__linear_kernel_hedgehog__dense_activation_gelu__prompt_kernel"
OPT = dict(a.split("=") for a in sys.argv[2:] if "=" in a)
STAMP = int(OPT.get("stamp", 0))

def f2u(x): return struct.unpack("<I", struct.pack("<f", x))[0]
LOG2E = 1.4426950408889634
GC1 = -2.0 * LOG2E * math.sqrt(2.0 / math.pi)
GC2 = GC1 * 0.044715

HF_RB = 144 * 1024
WS_KVP = 0xA00000
KVP_SZ = 4608
WS_FLG = 0xC00000
WS_KVF = 0xC08000
WS_STAMP = 0xD00000
WS_X = 0x1000000
WS_SIZE = 0x1800000
NP = OPT.get('np', '1') == '1'
if NP: OPT['r8'] = '0'
V3 = OPT.get('p2', '2') == '3'
V2 = OPT.get('p2', '2') in '23'
RA, RB, RC = 0, 65536, 131072
L_KVB = 147456
L_CS = 155648
L_ST = L_CS + 4096
L_WPHI = L_CS + 6144
LDS_SIZE = 163840
SPIN_MAX = 1 << 15

sW, sRT, sG, sM, sN = 3, 4, 5, 6, 7
SX, SW2, SWS, SWT, SAUX, SDBG, SWO, SOUT = 8, 12, 16, 20, 24, 28, 36, 40
sXo, sWo, sROT, sC1 = 32, 33, 34, 35
SB2 = 92
sFL, sOo, sM0x, sT0, sT1, sSIG, sONE, sFO, sHALF, sHo, sWq, sW3, sT2, sCNT, sW34, sT3 = range(44, 60)
sEX = 60
sH0, sH3, sM4, sK = 62, 63, 64, 65
sST = 66
sB2o, sBOo = 90, 91
sA0, sA1, sR4, sSH, sD0, sD1 = range(96, 102)
sOK = sSIG
sQ = [sXo, sWo, sROT, sC1]
sPL = 28
VCSA = 0; vL = 1
AX = 2; AW = 6; AB = 10; VZ, VFV = 12, 13
VX0, VX1, VW, VB, VW3 = 14, 15, 16, 17, 18
VSTA, S1, S2, CS0 = 19, 20, 21, 22
VW0 = 22
RSTD, STD, K1, K2, VL16 = 23, 24, 25, 26, 27
BAUG, AAUG, SEL, BIAS = 28, 32, 36, 40
T = 44
WF = 64
ACC0, ACC1, ACC2 = 80, 96, 112
XF = 128
VTD = int(OPT.get('vtd', 15))
PZ = ACC2 + 8

P = Prog()
STI = dict(start=0, kernarg=1, it0=2, pass1=3, sub1=4, sub2=5, qsm=6, sub3=6, kvseen=7, x7=7, p1end=8, hseen=9, p2mm=10, end=11)
if OPT.get("sp") == "p2": STI = dict(start=0, p1end=1, k1=2, k3=3, k5=4, k7=5, k9=6, k11=7, k13=8, k15=9, p2mm=10, end=11)
if OPT.get("sp") == "att": STI = dict(start=0, sub1=1, kv0=2, kv1=3, kv2=4, sub2=5, qsm=6, kvseen=7, sm2=8, gsum=9, p1end=10, end=11)
if OPT.get("sp", "").startswith("l:"): STI = {n: i for i, n in enumerate(["start"] + OPT["sp"][2:].split(","))}
def stamp_i(name):
    if not STAMP or name not in STI: return []
    i = STI[name]
    return [f"{'s_memrealtime' if STAMP == 1 else 's_memtime'} {s(sST + 2*i, 2)} ; stamp {i} {name}"]
def stamp(name): P.add(stamp_i(name))

def mfma(d, a, b, c=None):
    return f"v_mfma_f32_32x32x16_bf16 {v(d,16)}, {v(a,4)}, {v(b,4)}, {v(d,16) if c is None else c}"
def m16(d, a, b, c=None):
    return f"v_mfma_f32_16x16x32_bf16 {v(d,4)}, {v(a,4)}, {v(b,4)}, {v(d,4) if c is None else c}"
def srd(base, nbytes):
    P(f"s_mov_b32 {s(base+2)}, {nbytes}\ns_mov_b32 {s(base+3)}, 0x20000")
def lines(t): return [l for l in t.split("\n") if l.strip()]

P("s_cmp_ge_u32 s2, 256")
P("s_cbranch_scc1 L_end")
stamp("start")
if OPT.get("exit0"): P("s_endpgm")
if OPT.get("cpf", "1") == "3":
    P(f"s_getpc_b64 {s(sEX,2)}")
    P("L_pc0:")
    P(f"v_subrev_u32 v3, 320, v0\nv_cmp_gt_u32 vcc, 16, v3\ns_lshr_b32 {s(sT0)}, s2, 3\ns_lshl_b32 {s(sT0)}, {s(sT0)}, 11")
    P("s_cbranch_vccz L_ncp0")
    P.cond_begin("cp0")
    P(f"v_and_b32 v3, 15, v3\nv_lshlrev_b32 v3, 7, v3\nv_add_u32 v3, {s(sT0)}, v3\nv_min_u32 v3, L_end-L_pc0, v3")
    P(f"global_load_dword v253, v3, {s(sEX,2)}")
    P.cond_end()
    P("L_ncp0:")
if OPT.get("cpf", "1") == "2":
    P(f"s_getpc_b64 {s(sEX,2)}")
    P("L_pc0:")
    P(f"v_lshlrev_b32 v3, 7, v0")
    P(f"v_min_u32 v3, L_end-L_pc0, v3")
    P(f"global_load_dword v253, v3, {s(sEX,2)}")
P(f"s_load_dwordx2 {s(SX,2)}, s[0:1], 0")
P(f"s_load_dwordx2 {s(SWT,2)}, s[0:1], 8")
P(f"s_load_dwordx2 {s(sA0,2)}, s[0:1], 40")
P(f"v_lshrrev_b32 v2, 6, v0")
P(f"v_and_b32 {v(vL)}, 63, v0")
P(f"s_lshr_b32 {s(sT1)}, s2, 3")
P(f"v_readfirstlane_b32 {s(sW)}, v2")
OWN = False
P(f"s_and_b32 {s(sRT)}, s2, 4\ns_lshl_b32 {s(sRT)}, {s(sRT)}, 1\ns_and_b32 {s(sT2)}, {s(sT1)}, 7\ns_add_u32 {s(sRT)}, {s(sRT)}, {s(sT2)}")
P(f"v_lshrrev_b32 v2, 3, {v(vL)}\nv_and_b32 v3, 7, {v(vL)}\nv_lshrrev_b32 v4, 4, {v(vL)}")
P(f"s_lshl_b32 {s(sXo)}, {s(sRT)}, 17\ns_lshl_b32 {s(sT2)}, {s(sW)}, 14\ns_add_u32 {s(sXo)}, {s(sXo)}, {s(sT2)}")
P(f"v_xor_b32 v5, v3, v4\nv_lshl_add_u32 v5, v5, 4, {s(sXo)}\nv_lshl_add_u32 {v(VX0)}, v2, 10, v5")
P(f"s_lshr_b32 {s(sN)}, {s(sT1)}, 3\ns_lshl_b32 {s(sT2)}, {s(sN)}, 1\ns_add_u32 {s(sROT)}, {s(sRT)}, {s(sT2)}\ns_and_b32 {s(sROT)}, {s(sROT)}, {0 if OPT.get('norot') else OPT.get('rm', 7)}")
P(f"v_xor_b32 v5, 64, {v(VX0)}\nv_add_u32 {v(VX1)}, {8192-1024}, v5")
srd(SX, 2097152)
P(f"s_lshl_b32 {s(sM0x)}, {s(sW)}, 11\ns_lshl_b32 {s(sK)}, {s(sROT)}, 7\ns_mov_b32 m0, {s(sM0x)}")
P(f"v_and_b32 v4, 1, v4\nv_lshlrev_b32 v4, 2, v4\nv_xor_b32 v4, v3, v4\nv_lshlrev_b32 v4, 4, v4")
P(f"s_and_b32 {s(sM)}, s2, 3\ns_lshl_b32 {s(sG)}, {s(sM)}, 1\ns_lshr_b32 {s(sT2)}, {s(sT1)}, 4\ns_add_u32 {s(sG)}, {s(sG)}, {s(sT2)}")
P(f"s_lshr_b32 {s(sD0)}, {s(sM0x)}, 1")
P("s_waitcnt lgkmcnt(0)")
stamp("kernarg")
P(f"buffer_load_dwordx4 {v(VX0)}, {s(SX,4)}, {s(sK)} offen lds")
P(f"buffer_load_dwordx4 {v(VX1)}, {s(SX,4)}, {s(sK)} offen offset:1024 lds")
P(f"s_load_dwordx2 {s(SWS,2)}, s[0:1], 88")
P(f"s_load_dwordx2 {s(SDBG,2)}, s[0:1], 80")
P(f"s_load_dwordx2 {s(SW2,2)}, s[0:1], 56")
P(f"s_load_dwordx2 {s(SWO,2)}, s[0:1], 24")
P(f"s_load_dwordx2 {s(SOUT,2)}, s[0:1], 72")
P(f"s_load_dwordx2 {s(SB2,2)}, s[0:1], 64")
assert V2
P(f"s_bitcmp1_b32 {s(sT1)}, 3")
P("s_cbranch_scc1 L_ffn")

def item1(it, pitch):
    q = it & 3
    return [[f"s_add_u32 m0, {s(sM0x)}, {RA+q*16384}", f"s_mul_i32 {s(sD1)}, {s(sK)}, {pitch//2}",
             f"buffer_load_dwordx4 {v(VX0)}, {s(SX,4)}, {s(sK)} offen lds"],
            [f"buffer_load_dwordx4 {v(VX1)}, {s(SX,4)}, {s(sK)} offen offset:1024 lds"],
            [f"s_add_u32 m0, {s(sD0)}, {RB+it*8192}", f"s_add_u32 {s(sK)}, {s(sK)}, 128",
             f"buffer_load_dwordx4 {v(VW0)}, {s(SWT,4)}, {s(sD1)} offen lds ; tag=it{it}",
             f"s_and_b32 {s(sK)}, {s(sK)}, 1023"]]
def wquarter(region, q, coloff, pitch, tag):
    return [[f"s_add_u32 m0, {s(sM0x)}, {region+q*16384}", f"s_add_u32 {s(sD1)}, {s(sQ[q])}, {coloff}",
             f"buffer_load_dwordx4 {v(VW)}, {s(SWT,4)}, {s(sD1)} offen lds"],
            [f"s_add_u32 {s(sD1)}, {s(sD1)}, {8*pitch-1024}",
             f"buffer_load_dwordx4 {v(VW)}, {s(SWT,4)}, {s(sD1)} offen offset:1024 lds ; tag={tag}"]]
def w3quarter(q, pitch):
    return [[f"s_lshr_b32 {s(sD1)}, {s(sM0x)}, 1", f"s_add_u32 m0, {s(sD1)}, {RA+q*8192}", "s_nop 0",
             f"buffer_load_dwordx4 {v(VW3)}, {s(SWT,4)}, {s(sQ[q])} offen lds ; tag=w3"]]

def spin(label, load, cmp):
    P(f"s_mov_b32 {s(sCNT)}, 0")
    P(f"{label}:")
    P(cmp)
    P(f"s_add_u32 {s(sCNT)}, {s(sCNT)}, 1")
    P(f"s_cbranch_vccz {label}_ok")
    P(f"s_cmp_gt_u32 {s(sCNT)}, {SPIN_MAX}")
    P(f"s_cbranch_scc1 {label}_ok")
    P("s_sleep 1")
    old = P._cond; P._cond = label
    P(load)
    P("s_waitcnt vmcnt(0)")
    P._cond = old
    P(f"s_branch {label}")
    P(f"{label}_ok:")

def gelu(acc, n, pk=False, t0=T, out=T):
    L = []
    for g4 in range(0, n, 4):
        t = t0 + 8 + (g4 & 4)
        a = [acc + g4 + i for i in range(4)]
        if pk:
            L += [f"v_pk_mul_f32 {v(t+i,2)}, {v(a[i],2)}, {v(a[i],2)}" for i in (0, 2)]
            L += [f"v_pk_fma_f32 {v(t+i,2)}, {v(t+i,2)}, {v(K2,2)}, {v(STD,2)} op_sel:[0,0,1] op_sel_hi:[1,0,1]" for i in (0, 2)]
            L += [f"v_pk_mul_f32 {v(t+i,2)}, {v(a[i],2)}, {v(t+i,2)}" for i in (0, 2)]
        else:
            L += [f"v_mul_f32 {v(t+i)}, {v(a[i])}, {v(a[i])}" for i in range(4)]
            L += [f"v_fma_f32 {v(t+i)}, {v(t+i)}, {v(K2)}, {v(K1)}" for i in range(4)]
            L += [f"v_mul_f32 {v(t+i)}, {v(a[i])}, {v(t+i)}" for i in range(4)]
        L += [f"v_exp_f32 {v(t+i)}, {v(t+i)}" for i in range(4)]
        if pk: L += [f"v_pk_fma_f32 {v(t+i,2)}, {v(t+i,2)}, {v(STD,2)}, {v(STD,2)} op_sel_hi:[1,0,0]" for i in (0, 2)]
        else: L += [f"v_fma_f32 {v(t+i)}, {v(t+i)}, {v(STD)}, {v(STD)}" for i in range(4)]
        L += [f"v_rcp_f32 {v(t+i)}, {v(t+i)}" for i in range(4)]
        if pk: L += [f"v_pk_mul_f32 {v(t+i,2)}, {v(a[i],2)}, {v(t+i,2)}" for i in (0, 2)]
        else: L += [f"v_mul_f32 {v(t+i)}, {v(a[i])}, {v(t+i)}" for i in range(4)]
        pr = out + (g4 >> 1)
        L += [f"v_cvt_pk_bf16_f32 {v(pr)}, {v(t)}, {v(t+1)}", f"v_cvt_pk_bf16_f32 {v(pr+1)}, {v(t+2)}, {v(t+3)}"]
    return L
def hstore(soff, n, tagn, src=T):
    return [f"buffer_store_dwordx4 {v(src+4*j,4)}, {v(VL16)}, {s(SWS,4)}, {s(soff)} offen offset:{1024*j} sc1 ; tag={tagn}" for j in range(n)]
assert K1 == STD + 1

def sum4(d, r):
    return [f"v_add_f32 {v(d)}, {v(r)}, {v(r+1)}", f"v_add_f32 {v(r+2)}, {v(r+2)}, {v(r+3)}", f"v_add_f32 {v(d)}, {v(d)}, {v(r+2)}"]

MS, U = T + 4, T + 16
CSR = T + 12
MC = AAUG

def stats_final():
    t = T + 16
    return [f"v_add_f32 {v(S1)}, {v(MS)}, {v(MS+2)}", f"v_add_f32 {v(S2)}, {v(MS+1)}, {v(MS+3)}",
          f"v_mul_f32 {v(S1)}, {f2u(-1.0/512):#x}, {v(S1)}",
          f"v_mul_f32 {v(t)}, {v(S1)}, {v(S1)}",
          f"v_fma_f32 {v(S2)}, {v(S2)}, {s(sT3)}, -{v(t)}",
          f"v_max_f32 {v(S2)}, 0, {v(S2)}",
          f"v_add_f32 {v(S2)}, {f2u(1e-5):#x}, {v(S2)}",
          f"v_rsq_f32 {v(RSTD)}, {v(S2)}",
          f"v_cvt_pk_bf16_f32 {v(t)}, {v(S1)}, {v(S1)}",
          f"v_mul_f32 {v(STD)}, {v(S2)}, {v(RSTD)}",
          f"v_and_b32 {v(t+1)}, 0xffff0000, {v(t)}",
          f"v_sub_f32 {v(t+1)}, {v(S1)}, {v(t+1)}",
          f"v_cvt_pk_bf16_f32 {v(BAUG)}, {v(S1)}, {v(t+1)}",
          f"v_cvt_pk_bf16_f32 {v(BAUG+1)}, {v(S1)}, {v(STD)}",
          f"v_and_b32 {v(t+1)}, 0xffff0000, {v(BAUG+1)}",
          f"v_sub_f32 {v(t+1)}, {v(STD)}, {v(t+1)}",
          f"v_cmp_gt_u32 vcc, 32, {v(vL)}",
          f"v_cvt_pk_bf16_f32 {v(BAUG+2)}, {v(t+1)}, 0",
          f"v_cndmask_b32 {v(BAUG)}, 0, {v(BAUG)}, vcc",
          f"v_cndmask_b32 {v(BAUG+1)}, 0, {v(BAUG+1)}, vcc",
          f"v_cndmask_b32 {v(BAUG+2)}, 0, {v(BAUG+2)}, vcc"]

def aug(acc, part, bias):
    t = T + 18; dst = AAUG
    L = sum4(CS0, part) + [f"v_cvt_pk_bf16_f32 {v(dst)}, {v(CS0)}, {v(CS0)}",
         f"v_and_b32 {v(t)}, 0xffff0000, {v(dst)}",
         f"v_sub_f32 {v(t)}, {v(CS0)}, {v(t)}"]
    if bias is None:
        L += [f"v_cvt_pk_bf16_f32 {v(dst+1)}, {v(t)}, 0"]
    else:
        L += [f"v_cvt_pk_bf16_f32 {v(t)}, {v(t)}, 0", f"v_mov_b32 {v(dst+2)}, {v(bias)}",
              f"v_lshl_or_b32 {v(dst+1)}, {v(bias)}, 16, {v(t)}"]
    return L + [mfma(acc, dst, BAUG)]

def flag(level, tag):
    return [f".waitvm {tag}", f"v_mov_b32 {v(VFV)}, {level}",
            f"buffer_store_dword {v(VFV)}, {v(VZ)}, {s(SWS,4)}, {s(sFO)} offen sc1"]

Q = 16384
KAREA = []
sSK = sM4 if V2 else sSH
sMB = sSIG
def rot_k(kk, dst):
    if kk < 8 and OPT.get("r8", "1") == "1": return [f"s_add_u32 {s(dst)}, {s(sR4)}, {kk}", f"s_and_b32 {s(dst)}, {s(dst)}, 7", f"s_add_u32 {s(dst)}, {s(dst)}, {s(sSK)}"]
    if kk < 12: return [f"s_add_u32 {s(dst)}, {s(sR4)}, {kk}", f"s_and_b32 {s(dst)}, {s(dst)}, 3", f"s_add_u32 {s(dst)}, {s(dst)}, {s(sSK)}"] + \
                       ([f"s_add_u32 {s(dst)}, {s(dst)}, {kk & ~3}"] if kk & ~3 else [])
    if kk < 14: return [f"s_mul_i32 {s(dst)}, {s(sSK)}, 6", f"s_sub_u32 {s(dst)}, {kk}, {s(dst)}"]
    return [f"s_add_u32 {s(dst)}, {s(sR4)}, {kk-14}", f"s_and_b32 {s(dst)}, {s(dst)}, 3"]
def rot_p(sg, dst, sh):
    add = lambda x: ([f"s_add_u32 {s(dst)}, {s(dst)}, {x}"] if x else [])
    shf = (lambda: add(sh)) if isinstance(sh, int) else (lambda: [f"s_add_u32 {s(dst)}, {s(dst)}, {s(sh[0])}"])
    if sg < 4: return [f"s_add_u32 {s(dst)}, {s(sR4)}, {sg}", f"s_and_b32 {s(dst)}, {s(dst)}, 3"] + shf()
    if sg < 6: return [f"s_add_u32 {s(dst)}, {s(sR4)}, {sg}", f"s_and_b32 {s(dst)}, {s(dst)}, 1", f"s_add_u32 {s(dst)}, {s(dst)}, 4"] + shf()
    if sg == 6: return [f"s_mov_b32 {s(dst)}, {6 - 6*sh}"] if isinstance(sh, int) else [f"s_mul_i32 {s(dst)}, {s(sh[0])}, 6", f"s_sub_u32 {s(dst)}, 6, {s(dst)}"]
    return [f"s_add_u32 {s(dst)}, {s(sR4)}, {sg}", f"s_and_b32 {s(dst)}, {s(dst)}, 1"]
def b_dma(kk):
    if V3:
        sr, so = (SW2, sB2o) if kk < 7 else (SWO, sBOo)
        return [rot_p(kk, sD0, [sHALF]) + [f"s_lshl_b32 {s(sD0)}, {s(sD0)}, 15", f"s_add_u32 m0, {s(sMB)}, {KAREA[kk]}", f"s_add_u32 {s(sD0)}, {s(sD0)}, {s(so)}",
                 f"buffer_load_dwordx4 {v(VB)}, {s(sr,4)}, {s(sD0)} offen lds"],
                [f"s_add_u32 m0, {s(sMB)}, {KAREA[kk] + 4096}", f"s_add_u32 {s(sD0)}, {s(sD0)}, 16384",
                 f"buffer_load_dwordx4 {v(VB)}, {s(sr,4)}, {s(sD0)} offen lds ; tag=b{kk}"]]
    if V2:
        G_ = []
        for pos in (2 * kk, 2 * kk + 1):
            sr, so = (SW2, sB2o) if pos < 14 else (SWO, sBOo)
            G_.append(rot_k(pos, sD0) + [f"s_lshl_b32 {s(sD0)}, {s(sD0)}, 14", f"s_add_u32 m0, {s(sMB)}, {KAREA[kk] + (pos & 1) * 4096}", f"s_add_u32 {s(sD0)}, {s(sD0)}, {s(so)}",
                      f"buffer_load_dwordx4 {v(VB)}, {s(sr,4)}, {s(sD0)} offen lds ; tag=b{kk}"])
        return G_
    slot = kk % 9
    m0 = f"s_add_u32 m0, {s(sM0x)}, {KAREA[slot]}"
    sr, so = (SW2, sB2o) if kk < 14 else (SWO, sBOo)
    return [rot_k(kk, sD0) + [f"s_lshl_b32 {s(sD0)}, {s(sD0)}, 14", m0, f"s_add_u32 {s(sD0)}, {s(sD0)}, {s(so)}",
             f"buffer_load_dwordx4 {v(VB)}, {s(sr,4)}, {s(sD0)} offen lds"],
            [f"s_add_u32 {s(sD0)}, {s(sD0)}, {8192 - 1024}",
             f"buffer_load_dwordx4 {v(VB)}, {s(sr,4)}, {s(sD0)} offen offset:1024 lds ; tag=b{kk}"]]

def setup(ffn):
    pitch = 3584 if ffn else 3072
    tp = "f" if ffn else "a"
    if ffn: P(f"s_mov_b64 {s(SWT,2)}, {s(sA0,2)}")
    P(f"s_load_dwordx2 {s(SAUX,2)}, s[0:1], {48 if ffn else 16}")
    srd(SWT, 1835008 if ffn else 1572864)
    P(f"v_mul_u32_u24 {v(VW)}, {pitch}, v2\nv_add_u32 {v(VW)}, {v(VW)}, v4")
    if ffn:
        P(f"s_mul_i32 {s(sT0)}, {s(sG)}, 448\ns_and_b32 {s(sT1)}, {s(sG)}, 1\ns_lshl_b32 {s(sT2)}, {s(sT1)}, 6\ns_add_u32 {s(sWq)}, {s(sT0)}, {s(sT2)}")
        P(f"s_mul_i32 {s(sWo)}, {s(sW)}, {8*pitch}\ns_add_u32 {s(sWo)}, {s(sWo)}, {s(sWq)}")
    else:
        P(f"s_lshl_b32 {s(sWq)}, {s(sG)}, 7")
        P(f"s_mul_i32 {s(sWo)}, {s(sW)}, {8*pitch}\ns_add_u32 {s(sWo)}, {s(sWo)}, {s(sWq)}\ns_add_u32 {s(sWo)}, {s(sWo)}, 1024")
    P(f"v_add_u32 {v(VW0)}, {s(sWo)}, {v(VW)}")
    if STAMP and "slow" in STI: P(f"s_mov_b32 {s(sST+2*STI['slow'])}, {s(sST)}")
    P(f"s_mul_i32 {s(sD1)}, {s(sK)}, {pitch//2}")
    P.add(item1(0, pitch)[2])
    P("s_waitcnt lgkmcnt(0)")
    srd(SWS, WS_SIZE); srd(SDBG, 256); srd(SW2, 1835008); srd(SWO, 524288); srd(SOUT, 2097152); srd(SB2, 1024); srd(SAUX, 3584 if ffn else 16384)
    P(f"v_lshlrev_b32 {v(VL16)}, 4, {v(vL)}")
    P(f"s_lshr_b32 {s(sHALF)}, {s(sW)}, 2")
    P(f"s_and_b32 {s(sW34)}, {s(sW)}, 3\ns_xor_b32 {s(sSIG)}, {s(sW34)}, {s(sHALF)}")
    if not ffn:
        for i in range(4): P(f"v_mov_b32 {v(T+i)}, 0")
        P(f"s_lshl_b32 {s(sT0)}, {s(sW)}, 8\ns_add_u32 {s(sT0)}, {s(sT0)}, s2\ns_sub_u32 {s(sT0)}, {s(sT0)}, 256\ns_cmp_lt_u32 {s(sT0)}, 8")
        P(f"s_cbranch_scc0 L_nzero")
        P.cond_begin("zw")
        P(f"s_lshl_b32 {s(sT0)}, s2, 12\ns_add_u32 {s(sT0)}, {s(sT0)}, {WS_FLG}")
        for i in range(4): P(f"buffer_store_dwordx4 {v(T,4)}, {v(VL16)}, {s(SWS,4)}, {s(sT0)} offen offset:{1024*i} sc1")
        P(f"s_lshl_b32 {s(sT0)}, s2, 8\ns_add_u32 {s(sT0)}, {s(sT0)}, {WS_KVF}\nv_lshlrev_b32 v3, 2, {v(vL)}")
        P(f"buffer_store_dword {v(T)}, v3, {s(SWS,4)}, {s(sT0)} offen sc1 ; tag=zf")
        P.cond_end()
        P(f"L_nzero:")
    if OPT.get("touch", "5") == "1":
        P(f"s_cmp_lt_u32 {s(sW)}, 6")
        P(f"s_cbranch_scc1 L_nt{tp}")
        P.cond_begin("w67")
        P(f"v_lshlrev_b32 v3, 7, {v(vL)}\ns_mul_i32 {s(sT0)}, s2, 7168\ns_lshl_b32 {s(sT1)}, s2, 11")
        P(f"s_cmp_eq_u32 {s(sW)}, 6\ns_cbranch_scc0 L_nta{tp}")
        P(f"buffer_load_dword v255, v3, {s(SW2,4)}, {s(sT0)} offen")
        P(f"s_branch L_nt{tp}")
        P(f"L_nta{tp}:")
        P(f"v_and_b32 v3, 2047, v3")
        P(f"buffer_load_dword v255, v3, {s(SWO,4)}, {s(sT1)} offen")
        P(f"buffer_load_dword v254, v3, {s(SB2,4)}, 0 offen")
        P.cond_end()
        P(f"L_nt{tp}:")
    def wtouch():
        P(f"s_sub_u32 {s(sT0)}, {s(sW)}, 2\ns_cmp_lt_u32 {s(sT0)}, {min(3 if ffn else 2, int(OPT.get('wtn', 3)))}")
        P(f"s_cbranch_scc0 L_nw{tp}")
        P.cond_begin("w234")
        P(f"v_mul_u32_u24 v3, {pitch}, {v(vL)}\ns_mul_i32 {s(sT1)}, {s(sROT)}, {64*pitch}\ns_add_u32 {s(sT1)}, {s(sT1)}, {s(sWq)}")
        if ffn:
            P(f"s_lshl_b32 {s(sT2)}, {s(sT0)}, 7\ns_add_u32 {s(sT1)}, {s(sT1)}, {s(sT2)}\ns_add_u32 {s(sT1)}, {s(sT1)}, 128")
            P(f"s_lshr_b32 {s(sT0)}, {s(sT0)}, 1\ns_and_b32 {s(sT0)}, {s(sT0)}, {s(sG)}\ns_mul_i32 {s(sT0)}, {s(sT0)}, 448\ns_sub_u32 {s(sT1)}, {s(sT1)}, {s(sT0)}")
        else:
            P(f"s_xor_b32 {s(sT0)}, {s(sT0)}, 1\ns_lshl_b32 {s(sT0)}, {s(sT0)}, 11\ns_add_u32 {s(sT1)}, {s(sT1)}, {s(sT0)}")
        if OPT.get("wt", "2") == "2": P(f"s_mov_b32 {s(sCNT)}, {s(sT1)}")
        else: P(f"buffer_load_dword v250, v3, {s(SWT,4)}, {s(sT1)} offen")
        P.cond_end()
        P(f"L_nw{tp}:")
    if OPT.get("wt", "2") == "2": P(f"s_mov_b32 {s(sCNT)}, 0x7f000000")
    if OPT.get("wt", "2") != "0": wtouch()
    if OPT.get("sw", "0") != "0":
        c1_, c2_ = (128, 256) if ffn else (1024, -1024)
        P(f"s_mul_i32 {s(sT0)}, {s(sROT)}, {64*pitch}\ns_add_u32 {s(sT0)}, {s(sT0)}, {s(sWo)}")
        for cc, n_ in ((c1_, 8), (c2_, int(OPT["sw"]) - 8)):
            if n_ <= 0: continue
            P(f"s_add_u32 {s(sT1)}, {s(sT0)}, {cc}")
            for j in range(n_): P(f"s_buffer_load_dword {s(sCNT)}, {s(SWT,4)}, {s(sT1)} offset:{j*pitch} ; nodef")
    if OPT.get("cpf", "1") == "1":
        P(f"s_cmp_eq_u32 {s(sW)}, 5")
        P(f"s_cbranch_scc0 L_ncp{tp}")
        P.cond_begin("w5")
        P(f"s_getpc_b64 {s(sEX,2)}")
        P(f"L_pc{tp}:")
        P(f"s_sub_u32 {s(sEX)}, {s(sEX)}, L_pc{tp}-{NAME}\ns_subb_u32 {s(sEX+1)}, {s(sEX+1)}, 0")
        P(f"s_lshr_b32 {s(sT0)}, s2, 3\ns_lshl_b32 {s(sT0)}, {s(sT0)}, 11\nv_and_b32 v3, 15, {v(vL)}\nv_lshlrev_b32 v3, 7, v3\nv_add_u32 v3, {s(sT0)}, v3")
        P(f"v_min_u32 v3, L_end-{NAME}, v3")
        P(f"global_load_dword v253, v3, {s(sEX,2)}")
        P.cond_end()
        P(f"L_ncp{tp}:")
    if OPT.get("pt", "0") == "1":
        P(f"s_cmp_eq_u32 {s(sW)}, 4")
        P(f"s_cbranch_scc0 L_npt{tp}")
        n0 = len(P.ins)
        P(f"v_lshlrev_b32 v3, 21, {v(vL)}")
        P(f"buffer_load_dword v252, v3, {s(SWS,4)}, 0 offen")
        for i_, sr_ in enumerate((SOUT, SW2, SWO, SB2)): P(f"buffer_load_dword v{248+i_}, v3, {s(sr_,4)}, 0 offen")
        for I in P.ins[n0:]: I.cond = "w4"
        P(f"L_npt{tp}:")
    def stouch():
        n0 = len(P.ins)
        P(f"s_lshl_b32 {s(sT0)}, s2, 3\ns_add_u32 {s(sT0)}, {s(sT0)}, {s(sW)}\ns_mul_i32 {s(sT1)}, {s(sT0)}, 768\ns_mul_i32 {s(sT0)}, {s(sT0)}, 896")
        for i in range(6): P(f"s_load_dword {s(sCNT)}, {s(sEX,2)}, {s(sT1)} offset:{128*i}")
        for i in range(7): P(f"s_load_dword {s(sCNT)}, {s(sA0,2)}, {s(sT0)} offset:{128*i}")
    if OPT.get("stouch", "0") == "1": stouch()
    late1 = OPT.get("late1", "1") == "1"
    if not late1:
        for g_ in item1(1, pitch): P.add(g_)
    P(f"s_lshl_b32 {s(sT0)}, {s(sRT)}, 4\ns_add_u32 {s(sT0)}, {s(sT0)}, {s(sG)}\ns_lshl_b32 {s(sT0)}, {s(sT0)}, 7")
    P(f"s_and_b32 {s(sT1)}, {s(sW)}, 2\ns_lshl_b32 {s(sT1)}, {s(sT1)}, 3\ns_add_u32 {s(sT0)}, {s(sT0)}, {s(sT1)}\ns_and_b32 {s(sT1)}, {s(sW)}, 1\ns_lshl_b32 {s(sT1)}, {s(sT1)}, 2\ns_add_u32 {s(sT0)}, {s(sT0)}, {s(sT1)}\ns_lshl_b32 {s(sT1)}, {s(sHALF)}, 3\ns_add_u32 {s(sT0)}, {s(sT0)}, {s(sT1)}")
    if V3: P(f"s_and_b32 {s(sT1)}, {s(sW)}, 2\ns_lshl_b32 {s(sT1)}, {s(sT1)}, 3\ns_add_u32 {s(sT0)}, {s(sT0)}, {s(sT1)}\ns_and_b32 {s(sT1)}, {s(sG)}, 1\ns_mul_i32 {s(sT1)}, {s(sT1)}, 112\ns_sub_u32 {s(sT0)}, {s(sT0)}, {s(sT1)}")
    P(f"s_add_u32 {s(sFO)}, {s(sT0)}, {WS_FLG + (1024 if ffn else 0)}")
    P(f"s_lshl_b32 {s(sT0)}, {s(sRT)}, 2\ns_add_u32 {s(sT0)}, {s(sT0)}, {s(sW34)}\ns_mul_i32 {s(sHo)}, {s(sT0)}, {HF_RB}")
    if ffn:
        P(f"v_and_b32 v5, 31, {v(vL)}\nv_lshlrev_b32 v5, 1, v5")
        P(f"s_lshl_b32 {s(sT0)}, {s(sHALF)}, 6\ns_add_u32 {s(sT0)}, {s(sT0)}, {s(sWq)}")
        for i in range(3): P(f"buffer_load_ushort {v(BIAS+i)}, v5, {s(SAUX,4)}, {s(sT0)} offen offset:{128*i}")
        P(f"s_lshl_b32 {s(sT0)}, {s(sT0)}, 5\ns_add_u32 {s(sH0)}, {s(sHo)}, {s(sT0)}")
        P(f"s_mul_i32 {s(sW3)}, {s(sG)}, 448\ns_add_u32 {s(sT0)}, {s(sW3)}, 384\ns_bitcmp1_b32 {s(sG)}, 0\ns_cselect_b32 {s(sW3)}, {s(sW3)}, {s(sT0)}")
        P(f"s_lshl_b32 {s(sT0)}, {s(sHALF)}, 5\nv_xor_b32 v5, {s(sT0)}, v5")
        P(f"buffer_load_ushort {v(BIAS+3)}, v5, {s(SAUX,4)}, {s(sW3)} offen")
        P(f"s_add_u32 {s(sT0)}, {s(sT0)}, {s(sW3)}\ns_lshl_b32 {s(sT0)}, {s(sT0)}, 5\ns_add_u32 {s(sH3)}, {s(sHo)}, {s(sT0)}")
        P(f"v_lshrrev_b32 v2, 2, {v(vL)}\nv_and_b32 v4, 3, {v(vL)}\nv_lshlrev_b32 v4, 4, v4\nv_mul_u32_u24 {v(VW3)}, {pitch}, v2\nv_add_u32 {v(VW3)}, {v(VW3)}, v4")
    else:
        P(f"s_cmp_lt_u32 {s(sW)}, 2")
        P(f"s_cbranch_scc0 L_nphi")
        P.cond_begin("w01")
        P(f"s_lshl_b32 {s(sT0)}, {s(sG)}, 11\ns_lshl_b32 {s(sT1)}, {s(sW)}, 10\ns_add_u32 {s(sT0)}, {s(sT0)}, {s(sT1)}\ns_add_u32 m0, {s(sT1)}, {L_WPHI}\ns_nop 0")
        P(f"buffer_load_dwordx4 {v(VL16)}, {s(SAUX,4)}, {s(sT0)} offen lds")
        P.cond_end()
        P("L_nphi:")
        P(f"s_mov_b64 {s(SAUX,2)}, {s(sA0,2)}\ns_mov_b32 {s(SAUX+2)}, 1835008")
    P(f"s_mul_i32 {s(sT0)}, {s(sW34)}, {16*pitch}\ns_add_u32 {s(sWq)}, {s(sWq)}, {s(sT0)}")
    P(f"v_add_u32 {v(VW)}, {s(sWq)}, {v(VW)}")
    if ffn: P(f"s_add_u32 {s(sW3)}, {s(sW3)}, {s(sT0)}\nv_add_u32 {v(VW3)}, {s(sW3)}, {v(VW3)}")
    P(f"s_add_u32 {s(sT0)}, {s(sROT)}, {s(sHALF)}")
    for q in range(4):
        P(f"s_add_u32 {s(sT1)}, {s(sT0)}, {2*q}\ns_and_b32 {s(sT1)}, {s(sT1)}, 7\ns_mul_i32 {s(sQ[q])}, {s(sT1)}, {64*pitch}")
    P(f"s_mov_b32 {s(sT3)}, {f2u(1.0/512):#x}\ns_mov_b32 {s(sONE)}, 0x3f803f80")
    P(f"v_bfe_u32 {v(T)}, {v(vL)}, 2, 2\nv_lshrrev_b32 {v(T+1)}, 5, {v(vL)}")
    P(f"v_bfe_u32 {v(T+2)}, {v(vL)}, 4, 1\nv_lshlrev_b32 {v(T+2)}, 5, {v(T+2)}\nv_and_b32 {v(T+3)}, 3, {v(vL)}\nv_lshl_add_u32 {v(T+2)}, {v(T+3)}, 3, {v(T+2)}")
    P(f"v_and_b32 {v(T+4)}, 31, {v(vL)}\nv_bfe_u32 {v(T+5)}, {v(vL)}, 1, 3\nv_xor_b32 {v(T+5)}, {v(T+5)}, {v(T+1)}")
    P(f"s_lshl_b32 {s(sT0)}, {s(sW34)}, 12\nv_lshlrev_b32 {v(T+8)}, 7, {v(T+4)}\nv_add_u32 {v(T+8)}, {s(sT0)}, {v(T+8)}")
    P(f"v_lshl_add_u32 {v(T+9)}, {v(T+1)}, 3, {v(T)}\nv_lshl_add_u32 {v(T+10)}, {v(T+9)}, 7, {v(T+2)}\nv_lshrrev_b32 {v(T+7)}, 1, {v(T)}\nv_xor_b32 {v(T+7)}, {s(sHALF)}, {v(T+7)}\nv_lshl_add_u32 {v(T+10)}, {v(T+7)}, 6, {v(T+10)}")
    for p in range(4):
        P(f"s_xor_b32 {s(sT0)}, {s(sSIG)}, {p}\ns_lshl_b32 {s(sT1)}, {s(sT0)}, 1\nv_xor_b32 {v(T+6)}, {s(sT1)}, {v(T+5)}\nv_lshl_add_u32 {v(AX+p)}, {v(T+6)}, 4, {v(T+8)}")
        P(f"s_lshl_b32 {s(sT1)}, {s(sT0)}, 11\ns_add_u32 {s(sT1)}, {s(sT1)}, {RB}\nv_add_u32 {v(AW+p)}, {s(sT1)}, {v(T+10)}")
    if ffn:
        P(f"s_lshl_b32 {s(sT0)}, {s(sHALF)}, 5\nv_xor_b32 {v(T+7)}, {s(sT0)}, {v(T+2)}\nv_lshl_add_u32 {v(T+7)}, {v(T+9)}, 6, {v(T+7)}")
        for i, p in enumerate((0, 2)):
            P(f"s_xor_b32 {s(sT0)}, {s(sSIG)}, {p}\ns_lshl_b32 {s(sT0)}, {s(sT0)}, 10\nv_add_u32 {v(AB+i)}, {s(sT0)}, {v(T+7)}")
    P(f"v_lshlrev_b32 {v(T+4)}, 4, {v(T+4)}")
    P(f"s_lshl_b32 {s(sT0)}, {s(sHALF)}, 9\ns_add_u32 {s(sT0)}, {s(sT0)}, {L_CS}\nv_add_u32 {v(VCSA)}, {s(sT0)}, {v(T+4)}")
    P(f"s_lshl_b32 {s(sT0)}, {s(sW34)}, 9\ns_add_u32 {s(sT0)}, {s(sT0)}, {L_ST}\nv_add_u32 {v(VSTA)}, {s(sT0)}, {v(T+4)}")
    P(f"v_lshrrev_b32 {v(T+4)}, 2, {v(vL)}\nv_xor_b32 {v(T+4)}, {v(T+4)}, {v(vL)}\nv_and_b32 {v(T+4)}, 4, {v(T+4)}\nv_cmp_eq_u32 vcc, 0, {v(T+4)}\nv_mov_b32 {v(T+4)}, {s(sONE)}")
    for i in range(4): P(f"v_mov_b32 {v(PZ+i)}, -1")
    for r in (VZ, BAUG+3, AAUG+2, AAUG+3): P(f"v_mov_b32 {v(r)}, 0")
    for i in range(4): P(f"v_cndmask_b32 {v(SEL+i)}, 0, {v(T+4)}, vcc")
    P(f"s_lshl_b32 {s(sW34)}, {s(sW34)}, 2")
    if late1:
        for g_ in item1(1, pitch): P.add(g_)
    if OPT.get("stouch", "0") == "2": stouch()
    if V2:
        P(f"v_lshrrev_b32 {v(T)}, 4, {v(vL)}\nv_lshlrev_b32 {v(T+1)}, 2, {v(T)}\nv_and_b32 {v(T+2)}, 15, {v(vL)}\nv_xor_b32 {v(T+2)}, {v(T+2)}, {v(T+1)}\nv_lshlrev_b32 {v(T+2)}, 4, {v(T+2)}\nv_lshl_add_u32 {v(VB)}, {v(T)}, 10, {v(T+2)}")
        P(f"s_lshl_b32 {s(sT2)}, {s(sM)}, 1\ns_add_u32 {s(sT2)}, {s(sT2)}, {s(sHALF)}")
        P(f"s_lshl_b32 {s(sT0)}, {s(sN)}, 8\ns_lshl_b32 {s(sT1)}, {s(sW34)}, 10\ns_add_u32 {s(sT1)}, {s(sT1)}, {s(sT0)}")
        P(f"s_mul_i32 {s(sB2o)}, {s(sT2)}, {224*1024}\ns_add_u32 {s(sB2o)}, {s(sB2o)}, {s(sT1)}\ns_lshl_b32 {s(sBOo)}, {s(sT2)}, 16\ns_add_u32 {s(sBOo)}, {s(sBOo)}, {s(sT1)}")
        P(f"s_mul_i32 {s(sA0)}, {s(sT2)}, {14*1024}\ns_add_u32 {s(sA0)}, {s(sA0)}, {s(sHo)}\ns_lshl_b32 {s(sA1)}, {s(sT2)}, 12\ns_add_u32 {s(sA1)}, {s(sA1)}, {s(sHo)}\ns_add_u32 {s(sA1)}, {s(sA1)}, {112*1024}")
        P(f"s_lshl_b32 {s(sT1)}, {s(sRT)}, 4\ns_add_u32 {s(sT1)}, {s(sT1)}, {s(sT2)}\ns_lshl_b32 {s(sT1)}, {s(sT1)}, 7\ns_and_b32 {s(sFL)}, {s(sW)}, 2\ns_lshl_b32 {s(sFL)}, {s(sFL)}, 3\ns_add_u32 {s(sFL)}, {s(sFL)}, {s(sT1)}\ns_add_u32 {s(sFL)}, {s(sFL)}, {WS_FLG}")
        P(f"s_mul_i32 {s(sR4)}, {s(sN)}, 5\ns_lshr_b32 {s(sR4)}, {s(sR4)}, 1\ns_add_u32 {s(sR4)}, {s(sR4)}, {s(sRT)}\ns_and_b32 {s(sR4)}, {s(sR4)}, 7")
        P(f"s_lshl_b32 {s(sT2)}, {s(sT2)}, 5\ns_add_u32 {s(sN)}, {s(sT0)}, {s(sT2)}")
        P(f"s_lshl_b32 {s(sOo)}, {s(sRT)}, 17\ns_lshl_b32 {s(sT1)}, {s(sW34)}, 13\ns_add_u32 {s(sOo)}, {s(sOo)}, {s(sT1)}\ns_add_u32 {s(sOo)}, {s(sOo)}, {s(sN)}")
        P(f"s_and_b32 {s(sSH)}, {s(sW)}, 1\ns_lshl_b32 {s(sSH)}, {s(sSH)}, 1\ns_lshl_b32 {s(sSK)}, {s(sHALF)}, 1")
        P(f"s_lshl_b32 {s(sMB)}, {s(sHALF)}, 13\ns_lshl_b32 {s(sT1)}, {s(sW34)}, 8\ns_add_u32 {s(sMB)}, {s(sMB)}, {s(sT1)}")
        if V3:
            P(f"s_lshl_b32 {s(sT0)}, {s(sSH)}, 4\nv_xor_b32 {v(VB)}, {s(sT0)}, {v(VB)}")
            P(f"s_mul_i32 {s(sT0)}, {s(sHALF)}, {14*1024}\ns_sub_u32 {s(sA0)}, {s(sA0)}, {s(sT0)}\ns_lshl_b32 {s(sT0)}, {s(sHALF)}, 12\ns_sub_u32 {s(sA1)}, {s(sA1)}, {s(sT0)}")
            P(f"s_lshl_b32 {s(sT0)}, {s(sHALF)}, 7\ns_sub_u32 {s(sFL)}, {s(sFL)}, {s(sT0)}\ns_and_b32 {s(sT0)}, {s(sW)}, 2\ns_lshl_b32 {s(sT0)}, {s(sT0)}, 3\ns_add_u32 {s(sFL)}, {s(sFL)}, {s(sT0)}")
        return
    P(f"s_lshl_b32 {s(sT0)}, {s(sN)}, 7\ns_mul_i32 {s(sB2o)}, {s(sW)}, {224*1024}\ns_add_u32 {s(sB2o)}, {s(sB2o)}, {s(sT0)}")
    P(f"s_lshl_b32 {s(sBOo)}, {s(sW)}, 16\ns_add_u32 {s(sBOo)}, {s(sBOo)}, {s(sT0)}\ns_lshl_b32 {s(sM4)}, {s(sW)}, 12")
    P(f"s_lshl_b32 {s(sOo)}, {s(sM)}, 16\ns_lshl_b32 {s(sT1)}, {s(sW)}, 13\ns_add_u32 {s(sOo)}, {s(sOo)}, {s(sT1)}\ns_add_u32 {s(sOo)}, {s(sOo)}, {s(sT0)}")
    if OPT.get("r8", "1") == "1":
        P(f"s_mul_i32 {s(sT0)}, {s(sM)}, 5\ns_lshr_b32 {s(sT0)}, {s(sT0)}, 1\ns_sub_u32 {s(sN)}, {s(sN)}, {s(sM)}\ns_add_u32 {s(sR4)}, {s(sN)}, {s(sT0)}\ns_add_u32 {s(sN)}, {s(sN)}, {s(sM)}")
    else: P(f"s_mov_b32 {s(sR4)}, {s(sN)}")
    P(f"s_add_u32 {s(sR4)}, {s(sM)}, {s(sR4)}\ns_and_b32 {s(sR4)}, {s(sR4)}, {0 if OPT.get('norot') else 7}\ns_and_b32 {s(sSH)}, {s(sW)}, 1\ns_lshl_b32 {s(sSH)}, {s(sSH)}, 1")
    P(f"s_lshr_b32 {s(sT0)}, {s(sM)}, 1\ns_lshl_b32 {s(sT0)}, {s(sT0)}, 4\ns_add_u32 {s(sT0)}, {s(sT0)}, {s(sW)}\ns_lshl_b32 {s(sT0)}, {s(sT0)}, 7")
    P(f"s_and_b32 {s(sT1)}, {s(sM)}, 1\ns_lshl_b32 {s(sT1)}, {s(sT1)}, 4\ns_add_u32 {s(sT0)}, {s(sT0)}, {s(sT1)}\ns_add_u32 {s(sFL)}, {s(sT0)}, {WS_FLG}")
    P(f"s_mul_i32 {s(sA0)}, {s(sM)}, {2*HF_RB}\ns_mul_i32 {s(sT0)}, {s(sW)}, {14*1024}\ns_add_u32 {s(sA1)}, {s(sA0)}, {s(sM4)}\ns_add_u32 {s(sA1)}, {s(sA1)}, {112*1024}\ns_add_u32 {s(sA0)}, {s(sA0)}, {s(sT0)}")

class Sched:
    def __init__(self, n):
        self.n = n; self.pre = [[] for _ in range(n)]; self.post = [[] for _ in range(n)]
        self.fill = [[] for _ in range(n)]; self.dma = [[] for _ in range(n)]; self.blk = {}
    def spread(self, lst, a, b):
        for i in range(a, b): self.fill[i] += lst[len(lst)*(i-a)//(b-a): len(lst)*(i+1-a)//(b-a)]
    def dmas(self, groups, a, step=1):
        for i, g in enumerate(groups): self.dma[a + i*step] += g

def rd(G):
    b = WF + 4 * (G & 3)
    if G < 96:
        ks = G & 31; st, p = ks >> 2, ks & 3
        L = [f"ds_read_b128 {v(XF+4*ks,4)}, {v(AX+p)} offset:{RA+(st&3)*16384}"] if G < 32 else []
        if ks < 4 and G >= 32: L.append(f"v_xor_b32 {v(AW+p)}, {RB}, {v(AW+p)}")
        return L + [f"ds_read_b64_tr_b16 {v(b+2*t,2)}, {v(AW+p)} offset:{8192*st+512*t}" for t in range(2)]
    i = G - 96
    return [f"ds_read_b64_tr_b16 {v(b+2*t,2)}, {v(AB+(i&1))} offset:{4096*(i>>1)+256*t}" for t in range(2)]
def xq(G): return XF + 4 * (G & 31) if G < 96 else XF + 8 * (G - 96)

def common_sched(S, ffn, accs, MC):
    pitch = 3584 if ffn else 3072
    tp = "f" if ffn else "a"
    c1, c2 = (128, 256) if ffn else (2048, 0)
    S.dmas(item1(2, pitch), 0, 0)
    for st in range(8):
        G = 4 * st + 2
        S.pre[G] += [f".waitvm it{st+1}" if st < 7 else ".waitvm w1q0 lgkm0", "s_barrier"]
        if st <= 4: S.dmas(item1(st + 3, pitch), G)
        else: S.dmas(wquarter(RA, st - 5, c1, pitch, f"w1q{st-5}"), G)
    def m4(d, r, c=None): return f"v_mfma_f32_4x4x4_16b_bf16 {v(d,4)}, {v(r,2)}, {v(r,2)}, {v(d,4) if c is None else c}"
    Q0, Q1 = T + 8, T + 16
    for f in range(0, 32, 2):
        x = XF + 4 * f; a = max(f - 1, 0); c = "0" if f == 0 else None
        if OPT.get("hyb", "0") == "1":
            b = f if f < 30 else 29
            S.post[a] += [m4(Q0, x, c), m16(MS, SEL, x, c)]
            for r, G in ((x + 2, a), (x + 3, b)):
                S.post[G] += [f"v_and_b32 {v(Q1+2)}, 0xffff0000, {v(r)}", f"v_lshlrev_b32 {v(Q1+3)}, 16, {v(r)}",
                              f"v_fmac_f32 {v(Q1)}, {v(Q1+2)}, {v(Q1+2)}", f"v_fmac_f32 {v(Q1+1)}, {v(Q1+3)}, {v(Q1+3)}"]
        else: S.post[a] += [m4(Q0, x, c), m4(Q1, x + 2, c), m16(MS, SEL, x, c)]
    S.post[28] += [f"v_and_b32 {v(S1)}, 3, {v(vL)}", f"v_cmp_eq_u32 {s(sEX,2)}, 1, {v(S1)}", f"s_lshl_b32 {s(sT0)}, {s(sHALF)}, 3",
                   f"v_add_u32 {v(T)}, {s(sT0)}, {v(VSTA)}"]
    if OPT.get("hyb", "0") == "1":
        S.pre[0] += [f"v_mov_b32 {v(Q1)}, 0", f"v_mov_b32 {v(Q1+1)}, 0"]
        S.post[29] += [f"v_add_f32 {v(Q1)}, {v(Q1)}, {v(Q1+1)}"]
    else: S.post[29] += [f"v_add_f32 {v(Q0+i)}, {v(Q0+i)}, {v(Q1+i)}" for i in range(4)]
    S.post[29] += [f"v_cmp_eq_u32 vcc, 2, {v(S1)}", f"v_cndmask_b32 {v(S2)}, {v(Q0)}, {v(Q0+1)}, {s(sEX,2)}", f"v_cmp_eq_u32 {s(sEX,2)}, 3, {v(S1)}",
                   f"v_cndmask_b32 {v(S2)}, {v(S2)}, {v(Q0+2)}, vcc", f"v_cndmask_b32 {v(S2)}, {v(S2)}, {v(Q0+3)}, {s(sEX,2)}"] + ([f"v_add_f32 {v(S2)}, {v(S2)}, {v(Q1)}"] if OPT.get("hyb", "0") == "1" else []) + [
                   f"v_mov_b32 {v(S1)}, {v(S2)}", f"v_permlane32_swap_b32 {v(S1)}, {v(S2)}",
                   f"v_add_f32 {v(MS+1)}, {v(S1)}, {v(S2)}", f"ds_write_b64 {v(T)}, {v(MS,2)}"]
    S.post[30] += [f"ds_read_b128 {v(MS,4)}, {v(VSTA)}"]
    for ps in range(3):
        for st in range(8):
            G = 32 * ps + 4 * st
            S.post[G] += [m16(MC, SEL, WF + 4 * (G & 3), "0" if st == 0 else None)]
        S.post[32*ps + 29] += [f"v_add_u32 {v(MC+1)}, {s(sW34)}, {v(VCSA)}", f"ds_write_b32 {v(MC+1)}, {v(MC)} offset:{1024*ps}"]
    FEW = OPT.get("few", "1") == "1"
    if FEW: S.pre[38] += [".waitvm w1q3", "s_barrier"]
    else:
        for q in (1, 2, 3): S.pre[32 + 8*q - 2] += [f".waitvm w1q{q}", "s_barrier"]
    w2 = sum([wquarter(RB, q, c2, pitch, "w2") for q in range(4)], [])
    for g_, G in zip(wquarter(RA, 3, c1, pitch, "w1q3") + w2, [int(x) for x in OPT.get("w2g", "32,33,35,37,38,40,41,43,44,46").split(",")]): S.dma[G] += g_
    S.pre[62] += [".waitvm w2 lgkm0", "s_barrier"]
    for G in ((int(OPT.get("fb", 82)),) if ffn else (int(OPT.get("ab", 86)),)): S.pre[G] += ["s_barrier"]
    if ffn:
        S.post[int(OPT.get("f1", 90))] += flag(1, "h1")
        S.post[int(OPT.get("p1", 99))] += [spoll(0)]; S.blk[("e", int(OPT.get("c1", 105)))] = lambda: (sneed(1, 0), P(spoll(1)))
    else:
        S.post[int(OPT.get("fa", 80))] += flag(1, "po")
    if OPT.get("l2t", "0") == "1":
        tg = [int(x) for x in OPT.get("l2gf" if ffn else "l2ga", "52,62,66,70,74" if ffn else "48,52,56,60,64").split(",")]
        DUM = VX0 if False else VW0
        for j in range(5):
            if j < 3:
                L = [f"s_lshr_b32 {s(sT0)}, s2, 3", f"s_mul_i32 {s(sT0)}, {s(sT0)}, 3", f"s_lshl_b32 {s(sT1)}, {s(sSH)}, 4", f"s_add_u32 {s(sT0)}, {s(sT0)}, {s(sT1)}",
                     f"s_add_u32 {s(sT0)}, {s(sT0)}, {128+j}", f"s_sub_u32 {s(sT1)}, {s(sT0)}, 224", f"s_min_u32 {s(sT0)}, {s(sT0)}, {s(sT1)}",
                     f"s_mul_i32 {s(sT1)}, {s(sW)}, 224", f"s_add_u32 {s(sT0)}, {s(sT0)}, {s(sT1)}", f"s_lshl_b32 {s(sT0)}, {s(sT0)}, 10",
                     f"buffer_load_dword {v(VTD)}, {v(VL16)}, {s(SW2,4)}, {s(sT0)} offen ; nodef"]
            else:
                L = [f"s_lshr_b32 {s(sT0)}, s2, 3", f"s_lshl_b32 {s(sT0)}, {s(sT0)}, 11", f"s_lshl_b32 {s(sT1)}, {s(sW)}, 16", f"s_add_u32 {s(sT0)}, {s(sT0)}, {s(sT1)}",
                     f"buffer_load_dword {v(VTD)}, {v(VL16)}, {s(SWO,4)}, {s(sT0)} offen offset:{1024*(j-3)} ; nodef"]
            S.dma[tg[j]] += L
    if (OPT.get("touch", "5") == "5" and not ffn) or (OPT.get("touch") == "6" and ffn):
        tg = [int(x) for x in OPT.get("tgs", "54,56,58,60,62").split(",")]
        gw = [f"s_and_b32 {s(sT0)}, {s(sRT)}, 7", f"s_lshl_b32 {s(sT0)}, {s(sT0)}, 1", f"s_and_b32 {s(sT1)}, {s(sG)}, 1", f"s_add_u32 {s(sT0)}, {s(sT0)}, {s(sT1)}",
              f"s_lshl_b32 {s(sT0)}, {s(sT0)}, 3", f"s_add_u32 {s(sK)}, {s(sT0)}, {s(sW)}"]
        for j in range(4):
            S.dma[tg[j]] += (gw if j == 0 else []) + [f"s_add_u32 {s(sT0)}, {s(sK)}, {128*j}", f"s_min_u32 {s(sT0)}, {s(sT0)}, 447", f"s_mul_i32 {s(sT1)}, {s(sM)}, 448", f"s_add_u32 {s(sT0)}, {s(sT0)}, {s(sT1)}",
                                  f"s_lshl_b32 {s(sT0)}, {s(sT0)}, 10", f"buffer_load_dword {v(VTD)}, {v(VL16)}, {s(SW2,4)}, {s(sT0)} offen ; nodef"]
        S.dma[tg[4]] += [f"s_lshl_b32 {s(sT1)}, {s(sM)}, 7", f"s_add_u32 {s(sT0)}, {s(sK)}, {s(sT1)}",
                         f"s_lshl_b32 {s(sT0)}, {s(sT0)}, 10", f"buffer_load_dword {v(VTD)}, {v(VL16)}, {s(SWO,4)}, {s(sT0)} offen ; nodef"]
        S.dma[tg[4]] += [f"buffer_load_dword {v(VTD)}, {v(VL16)}, {s(SB2,4)}, 0 offen ; nodef"]
        if OPT.get("t3", "0") == "1":
            S.dma[int(OPT.get("t3g", 49))] += gw + [f"s_mul_i32 {s(sT0)}, {s(sK)}, {4*3584}", f"s_mul_i32 {s(sT1)}, {s(sM)}, 896", f"s_add_u32 {s(sT0)}, {s(sT0)}, {s(sT1)}",
                f"v_and_b32 {v(VTD)}, 3, {v(vL)}", f"v_mul_u32_u24 {v(VTD)}, 3584, {v(VTD)}", f"buffer_load_dword {v(VTD)}, {v(VTD)}, {s(SAUX,4)}, {s(sT0)} offen offset:384 ; nodef"]
    if OPT.get("touch") == "4":
        tg = [int(x) for x in OPT.get("tgs", "47,49,52").split(",")]
        gw = [f"s_and_b32 {s(sT0)}, s2, 0xf8", f"s_add_u32 {s(sT0)}, {s(sT0)}, {s(sW)}"]
        for j in range(2):
            S.dma[tg[j]] += gw + [f"s_add_u32 {s(sT0)}, {s(sT0)}, {256*j}", f"s_min_u32 {s(sT0)}, {s(sT0)}, 447", f"s_mul_i32 {s(sT1)}, {s(sM)}, 448", f"s_add_u32 {s(sT0)}, {s(sT0)}, {s(sT1)}",
                                  f"s_lshl_b32 {s(sT0)}, {s(sT0)}, 10", f"buffer_load_dword {v(VTD)}, {v(VL16)}, {s(SW2,4)}, {s(sT0)} offen ; nodef"]
        S.dma[tg[2]] += gw + [f"s_lshr_b32 {s(sT0)}, {s(sT0)}, 1", f"s_lshl_b32 {s(sT1)}, {s(sM)}, 7", f"s_add_u32 {s(sT0)}, {s(sT0)}, {s(sT1)}",
                              f"s_lshl_b32 {s(sT0)}, {s(sT0)}, 10", f"buffer_load_dword {v(VTD)}, {v(VL16)}, {s(SWO,4)}, {s(sT0)} offen ; nodef"]
    if OPT.get("touch", "5") == "3":
        def mtouch():
            n0 = len(P.ins)
            P(f"s_cmp_lt_u32 {s(sW)}, 6")
            P(f"s_cbranch_scc1 L_mt{tp}")
            P.cond_begin("w67")
            P(f"v_lshlrev_b32 {v(T+1)}, 7, {v(vL)}\ns_mul_i32 {s(sT0)}, s2, 7168\ns_lshl_b32 {s(sT1)}, s2, 11")
            P(f"s_cmp_eq_u32 {s(sW)}, 6\ns_cbranch_scc0 L_mta{tp}")
            P(f"buffer_load_dword {v(T+2)}, {v(T+1)}, {s(SW2,4)}, {s(sT0)} offen")
            P(f"s_branch L_mt{tp}")
            P(f"L_mta{tp}:")
            P(f"v_and_b32 {v(T+1)}, 2047, {v(T+1)}")
            P(f"buffer_load_dword {v(T+2)}, {v(T+1)}, {s(SWO,4)}, {s(sT1)} offen")
            P(f"buffer_load_dword {v(T+3)}, {v(T+1)}, {s(SB2,4)}, 0 offen")
            P.cond_end()
            P(f"L_mt{tp}:")
        S.blk[("e", int(OPT.get("tg", 5)))] = mtouch
    if OPT.get("wt", "2") == "2":
        S.dma[int(OPT.get("wg", 5))] += [f"v_mul_u32_u24 {v(T+1)}, {pitch}, {v(vL)}", f"buffer_load_dword {v(T+2)}, {v(T+1)}, {s(SWT,4)}, {s(sCNT)} offen"]
    def announce():
        P(f"s_lshl_b32 {s(sT0)}, {s(sW)}, 8\ns_add_u32 {s(sT0)}, {s(sT0)}, s2\ns_sub_u32 {s(sT0)}, {s(sT0)}, 256\ns_cmp_lt_u32 {s(sT0)}, 8")
        P(f"s_cbranch_scc0 L_nd")
        P.cond_begin("zw")
        P(".waitvm zf")
        P(f"s_lshl_b32 {s(sT0)}, s2, 2\nv_mov_b32 {v(VFV)}, 1")
        P(f"buffer_store_dword {v(VFV)}, {v(VZ)}, {s(SDBG,4)}, {s(sT0)} offen sc1")
        P.cond_end()
        P(f"L_nd:")
    if not ffn: S.blk[3] = announce
    ld = f"v_and_b32 {v(VX0)}, 28, {v(vL)}\nbuffer_load_dword {v(VX0)}, {v(VX0)}, {s(SDBG,4)}, 0 offen sc1"
    def poll0():
        P(f"s_cmp_eq_u32 {s(sW)}, 7"); P(f"s_cbranch_scc0 L_np{tp}")
        P.cond_begin("w7")
        P(ld)
        P.cond_end(); P(f"L_np{tp}:")
    def check0():
        P(f"s_cmp_eq_u32 {s(sW)}, 7"); P(f"s_cbranch_scc0 L_nc{tp}")
        P.cond_begin("w7")
        P(f"v_mov_b32 {v(VX0)}, {v(VX0)}")
        spin(f"L_ncs{tp}", ld, f"v_cmp_ne_u32 vcc, 1, {v(VX0)}")
        P.cond_end(); P(f"L_nc{tp}:")
    S.blk[39] = poll0; S.blk[62] = check0

def run_sched(S, accs):
    P(".waitvm it0")
    P("s_barrier")
    stamp("it0")
    P.add(rd(0)); P.add(rd(1))
    for G in range(S.n):
        stamp(f"g{G}")
        if G in S.blk: S.blk[G]()
        late = OPT.get("bam", "1") == "1" and G >= 32
        if not late: P.add(S.pre[G])
        if OPT.get("prio", "1") == "1": P(f"s_setprio {3 - ((G + 2) & 3)}")
        if OPT.get("prio") == "2" and (G < 32 or G % 2 == 0): P(f"s_setprio {3 - ((G + 2) & 3) if G < 32 else 3 - ((G >> 1) & 3)}")
        first = G in (0, 32, 64, 96)
        P(mfma(accs[G >> 5], WF + 4 * (G & 3), xq(G), "0" if first else None))
        if late: P.add(S.pre[G])
        if G + 2 < S.n: P.add(rd(G + 2))
        P.add(S.post[G]); P.add(S.fill[G]); P.add(S.dma[G])
        if ("e", G) in S.blk: S.blk[("e", G)]()
    P("s_setprio 0")

AC = 64; NAF = 8
def AFq(kk, rb): return XF + 4 + 8 * (2 * (kk % NAF) + rb)
def BTq(kk, nb): return XF + 8 * (2 * (kk & 3) + nb)
BA = 2
VXR, VRED = 9, 10
VWR = 20
XR, B2R = 32, 36
def AF2(kk): return XF + 4 + 8 * (kk % 16)
def BT2(kk, nb): return XF + 8 * (4 * (kk & 1) + nb)
def xoff(j, send):
    return ([f"s_xor_b32 {s(sT0)}, s2, {j}", f"s_mul_i32 {s(sT0)}, {s(sT0)}, {3*8192}"] if send else [f"s_mul_i32 {s(sT0)}, s2, {3*8192}"]) + \
           [f"s_lshl_b32 {s(sT1)}, {s(sW)}, 10", f"s_add_u32 {s(sT0)}, {s(sT0)}, {s(sT1)}", f"s_add_u32 {s(sT0)}, {s(sT0)}, {WS_X + (j-1)*8192}"]
VA3 = 14
def AF3(st, sh):
    if st < 8: return XF + 4 + 8 * (2 * st + sh)
    if st < 12: return XF + 64 + 8 * (2 * (st - 8) + sh)
    if st < 16: return 96 + 4 * (2 * (st - 12) + sh)
    return XF + 4 + 8 * (2 * (st - 16) + sh)
va3_init = lines(f"v_and_b32 {v(VA3)}, 15, {v(vL)}\nv_lshlrev_b32 {v(VA3)}, 4, {v(VA3)}\nv_lshrrev_b32 {v(T+19)}, 4, {v(vL)}\nv_lshl_add_u32 {v(VA3)}, {v(T+19)}, 9, {v(VA3)}")
def a_jobs(kk):
    if V3:
        sg, gm = kk >> 1, kk & 1
        so, gs = (sA0, 14 * 1024) if sg < 7 else (sA1, 4096)
        return [rot_p(sg, sD1, gm) + [f"s_lshl_b32 {s(sD1)}, {s(sD1)}, 11", f"s_add_u32 {s(sD1)}, {s(sD1)}, {s(so)}"] + ([f"s_add_u32 {s(sD1)}, {s(sD1)}, {gs}"] if gm else []) +
                [f"buffer_load_dwordx4 {v(AF3(kk,0),4)}, {v(VA3)}, {s(SWS,4)}, {s(sD1)} offen sc1"],
                [f"buffer_load_dwordx4 {v(AF3(kk,1),4)}, {v(VA3)}, {s(SWS,4)}, {s(sD1)} offen offset:256 sc1"]]
    so = sA0 if kk < 14 else sA1
    if V2: return [rot_k(kk, sD1) + [f"s_lshl_b32 {s(sD1)}, {s(sD1)}, 10", f"s_add_u32 {s(sD1)}, {s(sD1)}, {s(so)}",
             f"buffer_load_dwordx4 {v(AF2(kk),4)}, {v(VL16)}, {s(SWS,4)}, {s(sD1)} offen sc1"]]
    return [rot_k(kk, sD1) + [f"s_lshl_b32 {s(sD1)}, {s(sD1)}, 10", f"s_add_u32 {s(sD1)}, {s(sD1)}, {s(so)}",
             f"buffer_load_dwordx4 {v(AFq(kk,0),4)}, {v(VL16)}, {s(SWS,4)}, {s(sD1)} offen sc1"],
            [f"s_add_u32 {s(sD1)}, {s(sD1)}, {HF_RB}",
             f"buffer_load_dwordx4 {v(AFq(kk,1),4)}, {v(VL16)}, {s(SWS,4)}, {s(sD1)} offen sc1"]]
def vcheck(regs, t):
    L = [f"v_max3_u32 {v(t)}, {v(regs[0])}, {v(regs[1])}, {v(regs[2])}"]; r = regs[3:]
    while len(r) >= 2: L.append(f"v_max3_u32 {v(t)}, {v(t)}, {v(r[0])}, {v(r[1])}"); r = r[2:]
    if r: L.append(f"v_max_u32 {v(t)}, {v(t)}, {v(r[0])}")
    return L + [f"v_cmp_eq_u32 vcc, -1, {v(t)}"]
SLOW = []
def validate(regs, t, reload):
    lb = P.lab("L_v")
    P.add(vcheck(regs, t))
    P(f"s_cbranch_vccnz {lb}_slow")
    P(f"{lb}_back:")
    dbg = [f"s_add_u32 {s(sST+2*STI['slow'])}, {s(sST+2*STI['slow'])}, {1 << len(SLOW)}"] if STAMP and "slow" in STI else []
    SLOW.append([f"{lb}_slow:"] + dbg + [f"s_mov_b32 {s(sCNT)}, 0", f"{lb}_loop:", "s_sleep 2"] + reload + ["s_waitcnt vmcnt(0)"] + vcheck(regs, t) +
                [f"s_add_u32 {s(sCNT)}, {s(sCNT)}, 1", f"s_cbranch_vccz {lb}_back", f"s_cmp_gt_u32 {s(sCNT)}, {SPIN_MAX}",
                 f"s_cbranch_scc0 {lb}_loop", f"s_branch {lb}_back"])
def flush_slow():
    for blk in SLOW:
        P(".reset"); P.add(blk)
    SLOW.clear()
def spoll(o):
    x = f"s_buffer_load_dwordx4 {s(sPL,4)}, {s(SWS,4)}, {s(sFL)} offset:{0 if o else 1024} glc"
    if V3: x = f"s_buffer_load_dwordx8 {s(sPL,8)}, {s(SWS,4)}, {s(sFL)} offset:{0 if o else 1024} glc"
    return x
def sneed(level, o):
    lb = P.lab("L_sp")
    P(f"s_mov_b32 {s(sCNT)}, 0")
    P(f"{lb}:")
    P("s_waitcnt lgkmcnt(0)")
    P(f"s_min_u32 {s(sPL)}, {s(sPL)}, {s(sPL+1)}\ns_min_u32 {s(sPL+2)}, {s(sPL+2)}, {s(sPL+3)}\ns_min_u32 {s(sPL)}, {s(sPL)}, {s(sPL+2)}")
    if V3:
        for i in range(4, 8): P(f"s_min_u32 {s(sPL)}, {s(sPL)}, {s(sPL+i)}")
    P(f"s_cmp_ge_u32 {s(sPL)}, {level}")
    P(f"s_cbranch_scc1 {lb}_ok")
    P(f"s_add_u32 {s(sCNT)}, {s(sCNT)}, 1\ns_cmp_gt_u32 {s(sCNT)}, {SPIN_MAX}")
    P(f"s_cbranch_scc1 {lb}_ok")
    P("s_sleep 1")
    for x in spoll(o).split("\n"):
        I = Ins(x); I.kind = "salu"; P.ins.append(I)
    P(f"s_branch {lb}")
    P(f"{lb}_ok:")
def own_check():
    lb = P.lab("L_oc")
    P(f"s_mov_b32 {s(sCNT)}, 0")
    P(f"{lb}:")
    P("s_waitcnt lgkmcnt(0)")
    P(f"s_cmp_ge_u32 {s(sK)}, 1")
    P(f"s_cbranch_scc1 {lb}_ok")
    P(f"s_add_u32 {s(sCNT)}, {s(sCNT)}, 1\ns_cmp_gt_u32 {s(sCNT)}, {SPIN_MAX}")
    P(f"s_cbranch_scc1 {lb}_ok")
    P("s_sleep 1")
    I = Ins(f"s_buffer_load_dword {s(sK)}, {s(SWS,4)}, {s(sT2)} glc"); I.kind = "salu"; P.ins.append(I)
    P(f"s_branch {lb}")
    P(f"{lb}_ok:")
def b_reads(kk):
    slot = kk % 9
    var, off = (KAREA[slot] >> 16), KAREA[slot] & 0xffff
    return [f".waitvm b{kk}"] + [f"ds_read_b64_tr_b16 {v(BTq(kk,nb)+2*tt,2)}, {v(BA+2*var+nb)} offset:{off+1024*tt}" for nb in range(2) for tt in range(2)]
def finish(ffn):
    if OPT.get("echo") and OPT.get("echot", "fa").find("f" if ffn else "a") < 0: pass
    elif OPT.get("echo"):
        a_, b_ = [STI[x] for x in OPT["echo"].split(",")]
        lb = P.lab("L_echo")
        stamp("end")
        P("s_waitcnt lgkmcnt(0)")
        P(f"s_sub_u32 {s(sT0)}, {s(sST+2*b_)}, {s(sST+2*a_)}")
        if STAMP == 2:
            P(f"s_lshr_b32 {s(sT0)}, {s(sT0)}, 4\ns_memrealtime {s(sST+22,2)}\ns_waitcnt lgkmcnt(0)")
        P(f"s_min_u32 {s(sT0)}, {s(sT0)}, 10000")
        P(f"{lb}:")
        P(f"s_memrealtime {s(sEX,2)}")
        P("s_waitcnt lgkmcnt(0)")
        P(f"s_sub_u32 {s(sT1)}, {s(sEX)}, {s(sST+22)}\ns_cmp_lt_u32 {s(sT1)}, {s(sT0)}\ns_cbranch_scc1 {lb}")
    elif STAMP:
        stamp("end")
        P("s_waitcnt lgkmcnt(0)")
        P(f"s_lshl_b32 {s(sT0)}, s2, 3\ns_add_u32 {s(sT0)}, {s(sT0)}, {s(sW)}\ns_lshl_b32 {s(sT0)}, {s(sT0)}, 6\ns_add_u32 {s(sT0)}, {s(sT0)}, {WS_STAMP}")
        P(f"v_mov_b32 v2, 0\ns_mov_b64 exec, 1")
        for i in range(12):
            P(f"v_mov_b32 v3, {s(sST+2*i)}\nbuffer_store_dword v3, v2, {s(SWS,4)}, {s(sT0)} offen offset:{4*i}")
    P("s_endpgm")
    flush_slow()

def phase2_v2(bleft, ffn):
    BAR = [2, 3, 4, 5, 6, 7, 8, 9, 10, 11, 14, 15]; VX = 16
    WB = [20, 21, 22]; RBs = [23, 24, 25]; PX = BAUG
    t = T + 8
    P(f"v_bfe_u32 {v(t)}, {v(vL)}, 2, 2\nv_lshrrev_b32 {v(t+1)}, 5, {v(vL)}\nv_and_b32 {v(t+2)}, 63, {v(AW)}\ns_lshl_b32 {s(sT0)}, {s(sHALF)}, 5\nv_xor_b32 {v(t+2)}, {s(sT0)}, {v(t+2)}")
    P(f"v_lshl_add_u32 {v(t+3)}, {v(t+1)}, 2, {v(t)}\nv_lshl_add_u32 {v(t+3)}, {v(t+3)}, 8, {v(t+2)}\ns_lshl_b32 {s(sT0)}, {s(sHALF)}, 13\nv_add_u32 {v(t+3)}, {s(sT0)}, {v(t+3)}")
    P(f"v_xor_b32 {v(t)}, {s(sM)}, {v(t)}\nv_lshl_add_u32 {v(BAR[0])}, {v(t)}, 6, {v(t+3)}")
    for nb in range(1, 4): P(f"v_xor_b32 {v(BAR[nb])}, {64*nb}, {v(BAR[0])}")
    for rg in (2, 1):
        for nb in range(4): P(f"v_add_u32 {v(BAR[4*rg+nb])}, {65536*rg}, {v(BAR[nb])}")
    LP = int(OPT.get("lp", 8))
    SQ = int(OPT.get("sq", 12))
    seq = [(kk, nb) for kk in range(SQ) for nb in range(4) if nb or kk < LP]
    done_at = {}
    for nb in (1, 2, 3):
        seq += [(kk, nb) for kk in range(SQ, 18)]; done_at[nb] = len(seq)
    seq += [(kk, 0) for kk in range(LP, 18)]
    D = 4
    def bq(i): return XF + 8 * (i & 7)
    def br(i):
        kk, nb = seq[i]; a = KAREA[kk >> 1]
        return [f"ds_read_b64_tr_b16 {v(bq(i)+2*tt,2)}, {v(BAR[4*(a>>16)+nb])} offset:{(a&0xffff)+(kk&1)*4096+2048*tt}" for tt in range(2)]
    def val(kk):
        if not (NP and kk < 14): validate([AF2(kk) + i for i in range(4)], T + 16, a_jobs(kk)[0])
    for i in range(D): P.add(br(i))
    val(0)
    stamp("hseen")
    first = {}
    for i, (kk, nb) in enumerate(seq): first.setdefault(kk, i)
    ev = {}
    def at(i, x): ev.setdefault(i, []).append(x)
    a8, a14 = int(OPT.get("a8", 14)), int(OPT.get("a14", 30))
    for i, g_ in enumerate(sum([b_dma(k2) for k2 in bleft], [])): at(int(OPT.get('bst', 1)) * i, g_)
    gates = {}
    if NP:
        if ffn:
            g2i = int(OPT.get("g2", 6)); a8 = int(OPT.get("g3f", 24))
            at(0, [spoll(0)]); gates[g2i] = 2
            for k2 in range(4, 8): at(g2i + k2 - 4, a_jobs(k2)[0])
            at(int(OPT.get("f3", 14)), flag(3, "h4"))
            a14 = max(a14, a8 + 6)
        else:
            a8 = int(OPT.get("g3a", 18)); g2i = int(OPT.get("g2a", 2)); gates[g2i] = 2
            for k2 in range(4, 8): at(g2i + k2 - 4, a_jobs(k2)[0])
        at(a8 - int(OPT.get("gl", 10)), [spoll(0)]); gates[a8] = 3
    ast = int(OPT.get('ast', 1))
    for k2 in range(8, 14): at(a8 + ast * (k2 - 8), a_jobs(k2)[0])
    for k2 in range(14, 18): at(a14 + ast * (k2 - 14), a_jobs(k2)[0])
    F = T + 8
    at(9, lines(f"v_and_b32 {v(T+17)}, 31, {v(vL)}\nv_lshrrev_b32 {v(T+18)}, 5, {v(vL)}\nv_lshlrev_b32 {v(T+18)}, 4, {v(T+18)}\nv_lshl_add_u32 {v(VX)}, {v(T+17)}, 10, {v(T+18)}") +
          [f"buffer_load_dwordx4 {v(XR,4)}, {v(VX)}, {s(SX,4)}, {s(sOo)} offen", f"buffer_load_dwordx4 {v(B2R,4)}, {v(T+18)}, {s(SB2,4)}, {s(sN)} offen"])
    at(24, lines(f"v_add_u32 {v(WB[0])}, {s(sM0x)}, {v(VL16)}\nv_xor_b32 {v(RBs[0])}, 8192, {v(WB[0])}") +
           sum([[f"v_add_u32 {v(WB[rg])}, {65536*rg}, {v(WB[0])}", f"v_add_u32 {v(RBs[rg])}, {65536*rg}, {v(RBs[0])}"] for rg in (1, 2)], []))
    for i in range(4):
        at(40 + i, lines(f"v_lshlrev_b32 {v(F+2*i)}, 16, {v(XR+i)}\nv_and_b32 {v(F+2*i+1)}, 0xffff0000, {v(XR+i)}\nv_lshlrev_b32 {v(T+4)}, 16, {v(B2R+i)}\nv_and_b32 {v(T+5)}, 0xffff0000, {v(B2R+i)}\nv_add_f32 {v(F+2*i)}, {v(F+2*i)}, {v(T+4)}\nv_add_f32 {v(F+2*i+1)}, {v(F+2*i+1)}, {v(T+5)}"))
    px1 = OPT.get("px1") == "1"
    if not px1:
        pxi = int(OPT.get("pxi", (16 if ffn else a8 + 6) if NP else a8 + 6))
        at(pxi - 1, [f"v_mov_b32 {v(PX+i)}, -1" for i in range(4)])
        for j in (1, 2, 3): at(pxi + (j - 1) * int(OPT.get("pxs", 1)), xoff(j, True) + [f"buffer_store_dwordx4 {v(PX,4)}, {v(VL16)}, {s(SWS,4)}, {s(sT0)} offen sc1 ; tag=px"])
    at(int(OPT.get("fx", 8 if px1 else 48)), flag(4, "px"))
    bar_i = first[12] - D
    def wr(nb): a = KAREA[nb]; return [f"ds_write_b128 {v(WB[a>>16])}, {v(AC+16*nb+8+4*q,4)} offset:{(a&0xffff)+1024*q}" for q in range(2)]
    def rdp(nb): a = KAREA[nb]; return [f"ds_read_b128 {v(AC+16*nb+8+4*q,4)}, {v(RBs[a>>16])} offset:{(a&0xffff)+1024*q}" for q in range(2)]
    def add(nb, pk): c = AC + 16 * nb; return [f"v_pk_add_f32 {v(c+i,2)}, {v(c+i,2)}, {v(c+8+i,2)}" for i in range(0, 8, 2)] if pk else [f"v_add_f32 {v(c+i)}, {v(c+i)}, {v(c+8+i)}" for i in range(8)]
    def snd(nb): c = AC + 16 * nb; return [f"v_cvt_pk_bf16_f32 {v(c+8+i)}, {v(c+2*i)}, {v(c+2*i+1)}" for i in range(4)] + xoff(nb, True) + [f"buffer_store_dwordx4 {v(c+8,4)}, {v(VL16)}, {s(SWS,4)}, {s(sT0)} offen sc1"]
    VPF, VPA = PX, PX + 1
    pf = f"buffer_load_dword {v(VPF)}, {v(VPA)}, {s(SWS,4)}, 0 offen sc1"
    at(38 if px1 else done_at[3] + 3, lines(f"v_and_b32 {v(VPA)}, 3, {v(vL)}\nv_lshlrev_b32 {v(VPA)}, 8, {v(VPA)}\nv_xor_b32 {v(VPA)}, {s(sFO)}, {v(VPA)}") + [pf])
    if SQ < 18:
        for nb in (1, 2, 3):
            e = done_at[nb]
            at(e + 1, wr(nb)); at(e + 2, ["s_waitcnt lgkmcnt(2)", "s_barrier"] + rdp(nb)); at(e + 4, add(nb, False) + snd(nb))
        at(done_at[3] + 4, stamp_i("xs"))
    else:
        e = done_at[3]
        at(e, wr(1) + wr(2)); at(e + 1, wr(3) + ["s_waitcnt lgkmcnt(0)", "s_barrier"] + rdp(1) + rdp(2) + rdp(3))
        for nb in (1, 2, 3): at(e + 1 + nb, add(nb, False) + snd(nb))
        at(e + 4, stamp_i("xs"))
    seen = set()
    for i, (kk, nb) in enumerate(seq):
        if i % 4 == 0: P(f"s_setprio {3 - ((i >> 2) & 3)}")
        P(mfma(AC + 16 * nb, bq(i), AF2(kk), None if nb in seen else "0")); seen.add(nb)
        if i == bar_i: P(".waitvm b8"); P("s_barrier")
        if i + D < len(seq): P.add(br(i + D))
        if i + 2 < len(seq) and first[seq[i + 2][0]] == i + 2: val(seq[i + 2][0])
        if i in gates: sneed(gates[i], 0)
        for x in ev.pop(i, []): P.add(x)
        if i + 1 < len(seq) and first[seq[i + 1][0]] == i + 1: stamp(f"k{kk}")
    assert not ev, ev.keys()
    stamp("p2mm")
    P("s_setprio 0")
    P.add(wr(0))
    P(f"v_mov_b32 {v(VPF)}, {v(VPF)}")
    spin(P.lab("L_pf"), pf, f"v_cmp_gt_u32 vcc, 4, {v(VPF)}")
    P("s_waitcnt lgkmcnt(0)")
    R = XF
    rl = sum([xoff(j, False) + [f"buffer_load_dwordx4 {v(R+4*j,4)}, {v(VL16)}, {s(SWS,4)}, {s(sT0)} offen sc1"] for j in range(1, 4)], [])
    P("s_barrier")
    P.add(rdp(0))
    P.add(rl)
    P.add(add(0, True))
    validate([R + 4 + i for i in range(12)], T + 16, rl)
    stamp("xr")
    P(f"s_mov_b32 {s(sT0)}, 0x3f80\ns_mov_b32 {s(sT1)}, 0x3f800000")
    for j in range(1, 4):
        for i in range(4): P(f"v_dot2c_f32_bf16 {v(AC+2*i)}, {s(sT0)}, {v(R+4*j+i)}\nv_dot2c_f32_bf16 {v(AC+2*i+1)}, {s(sT1)}, {v(R+4*j+i)}")
    for i in range(4): P(f"v_permlane32_swap_b32 {v(AC+i)}, {v(AC+4+i)}")
    for i in range(0, 8, 2): P(f"v_pk_add_f32 {v(F+i,2)}, {v(F+i,2)}, {v(AC+i,2)}")
    for i in range(4): P(f"v_cvt_pk_bf16_f32 {v(XR+i)}, {v(F+2*i)}, {v(F+2*i+1)}")
    P(f"buffer_store_dwordx4 {v(XR,4)}, {v(VX)}, {s(SOUT,4)}, {s(sOo)} offen")
    finish(ffn)

def phase2_v3(bleft, aleft, ffn):
    BAR = [2, 3, 4, 5, 6, 7, 8, 9, 10, 11, 18, 19]; VX = 16; PX = BAUG
    t = T + 8
    P(f"v_bfe_u32 {v(t)}, {v(vL)}, 2, 2\nv_lshrrev_b32 {v(t+1)}, 5, {v(vL)}\nv_bfe_u32 {v(t+2)}, {v(vL)}, 4, 1\nv_lshl_add_u32 {v(t+3)}, {v(t+2)}, 2, {v(t)}\nv_lshl_add_u32 {v(t+3)}, {v(t+1)}, 4, {v(t+3)}")
    P(f"v_and_b32 {v(t+4)}, 63, {v(AW)}\ns_lshl_b32 {s(sT0)}, {s(sHALF)}, 5\nv_xor_b32 {v(t+4)}, {s(sT0)}, {v(t+4)}\nv_lshl_add_u32 {v(t+3)}, {v(t+3)}, 8, {v(t+4)}")
    P(f"v_xor_b32 {v(t)}, {s(sM)}, {v(t)}\nv_lshl_add_u32 {v(BAR[0])}, {v(t)}, 6, {v(t+3)}")
    for q in range(1, 4): P(f"v_xor_b32 {v(BAR[q])}, {64*q}, {v(BAR[0])}")
    for rg in (2, 1):
        for q in range(4): P(f"v_add_u32 {v(BAR[4*rg+q])}, {65536*rg}, {v(BAR[q])}")
    LP = int(OPT.get("lp", 2)); SQ = int(OPT.get("sq", 14))
    assert LP >= 2
    seq = [(st, q) for st in range(SQ) for q in range(4) if q or st < LP]
    done_at = {}
    for q in (1, 2, 3):
        seq += [(st, q) for st in range(SQ, 18)]; done_at[q] = len(seq)
    seq += [(st, 0) for st in range(LP, 18)]
    D = 4
    def bq(i): return XF + 8 * (i & 7)
    def br(i):
        st, q = seq[i]; a = KAREA[st >> 1]
        return [f"ds_read_b64_tr_b16 {v(bq(i)+2*tt,2)}, {v(BAR[4*(a>>16)+q])} offset:{(a&0xffff)+(st&1)*8192+2048*tt}" for tt in range(2)]
    def val(st): validate([AF3(st, sh) + i for sh in range(2) for i in range(4)], T + 16, sum(a_jobs(st), []))
    for i in range(D): P.add(br(i))
    val(0)
    stamp("hseen")
    first = {}
    for i, (st, q) in enumerate(seq): first.setdefault(st, i)
    ev = {}
    def at(i, x): ev.setdefault(i, []).append(x)
    a8, a14 = int(OPT.get("a8", 8)), int(OPT.get("a14", 26))
    i0 = 0
    for st in aleft: at(i0, sum(a_jobs(st), [])); i0 += 1
    for g_ in sum([b_dma(k2) for k2 in bleft], []): at(i0, g_); i0 += 1
    a8 = max(a8, i0)
    for st in range(8, 14): at(a8 + 2 * (st - 8), sum(a_jobs(st), []))
    for st in range(14, 18): at(a14 + 2 * (st - 14), sum(a_jobs(st), []))
    pxi = int(OPT.get("pxi", a8 + 12))
    at(pxi - 1, [f"v_mov_b32 {v(PX+i)}, -1" for i in range(4)])
    for j in (1, 2, 3): at(pxi + j - 1, xoff(j, True) + [f"buffer_store_dwordx4 {v(PX,4)}, {v(VL16)}, {s(SWS,4)}, {s(sT0)} offen sc1 ; tag=px"])
    at(done_at[1] - int(OPT.get("fxb", 2)), flag(2, "px"))
    F = T + 8
    at(a8 + 1, lines(f"v_and_b32 {v(T+17)}, 31, {v(vL)}\nv_lshrrev_b32 {v(T+18)}, 5, {v(vL)}\nv_lshlrev_b32 {v(T+18)}, 4, {v(T+18)}\nv_lshl_add_u32 {v(VX)}, {v(T+17)}, 10, {v(T+18)}") +
          [f"buffer_load_dwordx4 {v(XR,4)}, {v(VX)}, {s(SX,4)}, {s(sOo)} offen", f"buffer_load_dwordx4 {v(B2R,4)}, {v(T+18)}, {s(SB2,4)}, {s(sN)} offen"])
    for i in range(4):
        at(done_at[3] + 6 + i, lines(f"v_lshlrev_b32 {v(F+2*i)}, 16, {v(XR+i)}\nv_and_b32 {v(F+2*i+1)}, 0xffff0000, {v(XR+i)}\nv_lshlrev_b32 {v(T+4)}, 16, {v(B2R+i)}\nv_and_b32 {v(T+5)}, 0xffff0000, {v(B2R+i)}\nv_add_f32 {v(F+2*i)}, {v(F+2*i)}, {v(T+4)}\nv_add_f32 {v(F+2*i+1)}, {v(F+2*i+1)}, {v(T+5)}"))
    def snd(q): c = AC + 8 * q; return [f"v_cvt_pk_bf16_f32 {v(c+i)}, {v(c+2*i)}, {v(c+2*i+1)}" for i in range(4)] + xoff(q, True) + [f"buffer_store_dwordx4 {v(c,4)}, {v(VL16)}, {s(SWS,4)}, {s(sT0)} offen sc1"]
    VPF, VPA = PX, PX + 1
    pf = f"buffer_load_dword {v(VPF)}, {v(VPA)}, {s(SWS,4)}, 0 offen sc1"
    for q in (1, 2, 3): at(done_at[q] + 1, snd(q))
    at(done_at[3] + 1, stamp_i("xs"))
    at(done_at[3] + int(OPT.get("pfi", 0)), lines(f"v_and_b32 {v(VPA)}, 3, {v(vL)}\nv_lshlrev_b32 {v(VPA)}, 8, {v(VPA)}\nv_xor_b32 {v(VPA)}, {s(sFO)}, {v(VPA)}") + [pf])
    bar_i = first[12] - D
    R = AC + 8 - 4
    RQ = [None, AC + 12, AC + 20, AC + 28]
    rl = sum([xoff(j, False) + [f"buffer_load_dwordx4 {v(RQ[j],4)}, {v(VL16)}, {s(SWS,4)}, {s(sT0)} offen sc1"] for j in range(1, 4)], [])
    ri = min(done_at[3] + int(OPT.get("ri", 12)), len(seq) - 1)
    seen = set()
    for i, (st, q) in enumerate(seq):
        if i % 4 == 0: P(f"s_setprio {3 - ((i >> 2) & 3)}")
        for sh in range(2): P(m16(AC + 8 * q + 4 * sh, bq(i), AF3(st, sh), None if q in seen else "0"))
        seen.add(q)
        if i == bar_i: P(".waitvm b8"); P("s_barrier")
        if i + D < len(seq): P.add(br(i + D))
        if i + 2 < len(seq) and first[seq[i + 2][0]] == i + 2: val(seq[i + 2][0])
        for x in ev.pop(i, []): P.add(x)
        if i == ri:
            P(f"v_mov_b32 {v(VPF)}, {v(VPF)}")
            spin(P.lab("L_pf"), pf, f"v_cmp_gt_u32 vcc, 2, {v(VPF)}")
            P.add(rl)
        if i + 1 < len(seq) and first[seq[i + 1][0]] == i + 1: stamp(f"k{st}")
    assert not ev, ev.keys()
    stamp("p2mm")
    P("s_setprio 0")
    validate([RQ[j] + i for j in (1, 2, 3) for i in range(4)], T + 16, rl)
    stamp("xr")
    P(f"s_mov_b32 {s(sT0)}, 0x3f80\ns_mov_b32 {s(sT1)}, 0x3f800000")
    for j in range(1, 4):
        for i in range(4): P(f"v_dot2c_f32_bf16 {v(AC+2*i)}, {s(sT0)}, {v(RQ[j]+i)}\nv_dot2c_f32_bf16 {v(AC+2*i+1)}, {s(sT1)}, {v(RQ[j]+i)}")
    for i in range(4): P(f"v_permlane16_swap_b32 {v(AC+i)}, {v(AC+4+i)}")
    for i in range(0, 8, 2): P(f"v_pk_add_f32 {v(F+i,2)}, {v(F+i,2)}, {v(AC+i,2)}")
    for i in range(4): P(f"v_cvt_pk_bf16_f32 {v(XR+i)}, {v(F+2*i)}, {v(F+2*i+1)}")
    P(f"buffer_store_dwordx4 {v(XR,4)}, {v(VX)}, {s(SOUT,4)}, {s(sOo)} offen")
    finish(ffn)

def phase2(done=(), ordr="B6 B7 B8 B9 A4 A5 A6 A7 B10 A8 B11 A9 A10 B12 A11 B13 A12 B14 A13 B15 B16 B17 A14 A15 A16 A17", ffn=False):
    P(f"v_bfe_u32 {v(T+8)}, {v(vL)}, 2, 2\nv_lshrrev_b32 {v(T+9)}, 5, {v(vL)}\nv_and_b32 {v(T+10)}, 63, {v(AW)}")
    P(f"v_lshl_add_u32 {v(T+12)}, {v(T+9)}, 2, {v(T+8)}\nv_lshl_add_u32 {v(T+12)}, {v(T+12)}, 7, {v(T+10)}\nv_lshrrev_b32 {v(T+13)}, 1, {v(T+8)}")
    P(f"v_lshl_add_u32 {v(T+12)}, {v(T+13)}, 6, {v(T+12)}\nv_xor_b32 {v(T+13)}, 64, {v(T+12)}")
    P(f"s_add_u32 {s(sT0)}, {s(sM0x)}, 65536\ns_add_u32 {s(sT1)}, {s(sM0x)}, {RC}")
    for nb in range(2):
        P(f"v_add_u32 {v(BA+nb)}, {s(sM0x)}, {v(T+12+nb)}\nv_add_u32 {v(BA+2+nb)}, {s(sT0)}, {v(T+12+nb)}\nv_add_u32 {v(BA+4+nb)}, {s(sT1)}, {v(T+12+nb)}")
    P.add(b_reads(0))
    if OPT.get("r8", "1") == "1": validate([AFq(0, r2) + i for r2 in range(2) for i in range(4)], T + 16, sum(a_jobs(0), []))
    if OPT.get("p2prio") == "y":
        lb = P.lab("L_pr"); P(f"s_cmp_lt_u32 {s(sW)}, 4\ns_cbranch_scc1 {lb}\ns_setprio 1\n{lb}:")
    stamp("hseen")
    order = [j for j in ordr.split() if j not in done]
    jobs = []
    for j in order:
        k2 = int(j[1:]); gs = a_jobs(k2) if j[0] == "A" else b_dma(k2)
        jobs += [(j, gs[0]), (None, gs[1])]
    LEAD = int(OPT.get("lead", 3))
    first_need = min(int(j[1:]) - (0 if j[0] == "A" else 1) for j in order)
    order.sort(key=lambda j: int(j[1:]) - (0.5 if j[0] == "B" else 0)) if LEAD < 9 else None
    jobs = []
    for j in order:
        k2 = int(j[1:]); gs = a_jobs(k2) if j[0] == "A" else b_dma(k2)
        jobs += [(j, gs[0]), (None, gs[1])]
    NT = int(OPT.get("nt", 2))
    for kk in range(18 - NT):
        rem = [x for x, _ in jobs if x]
        assert f"A{kk+1}" not in rem and f"B{kk+2}" not in rem, (kk, rem)
        if OPT.get("v"): print(kk, rem, file=sys.stderr)
        pm = OPT.get("p2prio", "c")
        if pm == "c": P(f"s_setprio {3 - ((kk // int(OPT.get('p2per', 1))) & 3)}")
        br = b_reads(kk + 1) if kk + 1 < 18 else []
        for nb in range(2):
            for rb in range(2):
                mi = 2 * nb + rb
                P(mfma(AC + 16 * mi, BTq(kk, nb), AFq(kk, rb), "0" if kk == 0 else None))
                if mi == 0: P.add(br[:3])
                if mi == 1: P.add(br[3:])
                if mi == 2 and (1 if OPT.get('r8', '1') == '1' else 4) <= kk + 1 < 18:
                    if jobs and jobs[0][0] is None: P.add(jobs.pop(0)[1])
                    validate([AFq(kk + 1, r2) + i for r2 in range(2) for i in range(4)], T + 16, sum(a_jobs(kk + 1), []))
                for rep in range(2 if kk < int(OPT.get("dbl", 0)) else 1):
                    if not jobs: continue
                    j, g_ = jobs[0]
                    if j:
                        k2 = int(j[1:]); last = (nb, rb) == (1, 1)
                        free = k2 - (8 if j[0] == "A" else 9)
                        if free > kk or (free == kk and not last): continue
                        need_at = k2 - (0 if j[0] == "A" else 1)
                        if need_at > max(kk, first_need - 1) + LEAD: continue
                    jobs.pop(0); P.add(g_)
        stamp(f"k{kk}")
        if kk == 8:
            P(f"v_lshrrev_b32 {v(T+17)}, 3, {v(vL)}\nv_and_b32 {v(T+18)}, 7, {v(vL)}\nv_lshlrev_b32 {v(T+18)}, 4, {v(T+18)}\nv_lshl_add_u32 {v(VXR)}, {v(T+17)}, 10, {v(T+18)}")
            P(f"s_lshl_b32 {s(sT0)}, {s(sN)}, 7")
            P(f"buffer_load_dwordx4 {v(XR,4)}, {v(VXR)}, {s(SX,4)}, {s(sOo)} offen")
            P(f"buffer_load_dwordx4 {v(B2R,4)}, {v(T+18)}, {s(SB2,4)}, {s(sT0)} offen")
        if kk == 3:
            for q in range(4):
                P(f"v_xor_b32 {v(VWR+q)}, {64*q}, {v(VL16)}\nv_add_u32 {v(VWR+q)}, {s(sM0x)}, {v(VWR+q)}")
                P(f"v_add_u32 {v(T+q)}, 65536, {v(VWR+q)}")
            P(f"v_lshrrev_b32 {v(T+4)}, 3, {v(vL)}\ns_lshl_b32 {s(sT0)}, {s(sW34)}, 1\nv_add_u32 {v(T+4)}, {s(sT0)}, {v(T+4)}")
            P(f"v_and_b32 {v(T+5)}, 3, {v(vL)}\nv_lshlrev_b32 {v(T+6)}, 2, {v(T+5)}\nv_xor_b32 {v(T+4)}, {v(T+4)}, {v(T+6)}\nv_lshlrev_b32 {v(T+4)}, 4, {v(T+4)}\nv_and_b32 {v(T+6)}, 1, {v(T+5)}\nv_lshl_add_u32 {v(T+4)}, {v(T+6)}, 10, {v(T+4)}\nv_lshrrev_b32 {v(T+6)}, 1, {v(T+5)}\nv_lshl_add_u32 {v(T+4)}, {v(T+6)}, 14, {v(T+4)}")
            P(f"v_bfe_u32 {v(T+5)}, {v(vL)}, 2, 1\nv_lshl_add_u32 {v(T+4)}, {v(T+5)}, 16, {v(T+4)}\ns_lshl_b32 {s(sT0)}, {s(sHALF)}, 15\nv_add_u32 {v(VRED)}, {s(sT0)}, {v(T+4)}")
        F = T + 8
        if kk == 13:
            for i in range(4):
                P(f"v_lshlrev_b32 {v(F+2*i)}, 16, {v(XR+i)}\nv_and_b32 {v(F+2*i+1)}, 0xffff0000, {v(XR+i)}")
                P(f"v_lshlrev_b32 {v(T+4)}, 16, {v(B2R+i)}\nv_and_b32 {v(T+5)}, 0xffff0000, {v(B2R+i)}")
                P(f"v_add_f32 {v(F+2*i)}, {v(F+2*i)}, {v(T+4)}\nv_add_f32 {v(F+2*i+1)}, {v(F+2*i+1)}, {v(T+5)}")
    assert not jobs
    for kk in range(19 - NT, 18):
        P.add(b_reads(kk))
        validate([AFq(kk, r2) + i for r2 in range(2) for i in range(4)], T + 16, sum(a_jobs(kk), []))
    def wr(blk): return [f"ds_write_b128 {v(VWR + q if blk < 2 else T + q)}, {v(AC+16*blk+4*q,4)} offset:{(blk&1)*32768+(q>>1)*16384+(q&1)*1024}" for q in range(4)]
    pend = []
    for mi in range(4):
        for kk in range(18 - NT, 18):
            P(mfma(AC + 16 * mi, BTq(kk, mi >> 1), AFq(kk, mi & 1)))
            if kk > 18 - NT or NT == 1: P.add(pend[:2]); pend = pend[2:]
        P.add(pend); pend = wr(mi)
    stamp("p2mm")
    P.add(pend)
    P("s_waitcnt lgkmcnt(0)")
    stamp("rw")
    P("s_barrier")
    stamp("rb")
    R = XF
    for ww in range(8):
        for hf in range(2): P(f"ds_read_b128 {v(R+8*ww+4*hf,4)}, {v(VRED)} offset:{2048*ww+512*hf}")
    for ww in range(8):
        for i in range(0, 8, 2): P(f"v_pk_add_f32 {v(F+i,2)}, {v(F+i,2)}, {v(R+8*ww+i,2)}")
    for i in range(4): P(f"v_cvt_pk_bf16_f32 {v(XR+i)}, {v(F+2*i)}, {v(F+2*i+1)}")
    P(f"buffer_store_dwordx4 {v(XR,4)}, {v(VXR)}, {s(SOUT,4)}, {s(sOo)} offen {OPT.get('om', '').replace('+', ' ')}")
    finish(ffn)

def softmax(p, out, LS, pk=False):
    t = T + 16
    if pk:
        assert LS == STD + 1
        L = softmax(p, out, LS)[:9]
        L += [f"v_pk_fma_f32 {v(p+i,2)}, {v(p+i,2)}, {v(STD,2)}, {v(t,2)} op_sel:[0,1,0] op_sel_hi:[1,1,0] neg_lo:[0,0,1] neg_hi:[0,0,1]" for i in range(0, 16, 2)]
        L += [f"v_exp_f32 {v(p+i)}, {v(p+i)}" for i in range(16)]
        L += [f"v_pk_add_f32 {v(t,2)}, {v(p,2)}, {v(p+2,2)}", f"v_pk_add_f32 {v(t+2,2)}, {v(p+4,2)}, {v(p+6,2)}"]
        L += [f"v_pk_add_f32 {v(t+2*(i&1),2)}, {v(t+2*(i&1),2)}, {v(p+8+2*i,2)}" for i in range(4)]
        L += [f"v_pk_add_f32 {v(t,2)}, {v(t,2)}, {v(t+2,2)}", f"v_add_f32 {v(t)}, {v(t)}, {v(t+1)}", f"v_rcp_f32 {v(t)}, {v(t)}"]
        L += [f"v_pk_mul_f32 {v(p+i,2)}, {v(p+i,2)}, {v(t,2)} op_sel_hi:[1,0]" for i in range(0, 16, 2)]
        return L + [f"v_cvt_pk_bf16_f32 {v(out+i)}, {v(p+2*i)}, {v(p+2*i+1)}" for i in range(8)]
    L = [f"v_max3_f32 {v(t)}, {v(p)}, {v(p+1)}, {v(p+2)}", f"v_max3_f32 {v(t+1)}, {v(p+3)}, {v(p+4)}, {v(p+5)}",
         f"v_max3_f32 {v(t)}, {v(t)}, {v(p+6)}, {v(p+7)}", f"v_max3_f32 {v(t+1)}, {v(t+1)}, {v(p+8)}, {v(p+9)}",
         f"v_max3_f32 {v(t)}, {v(t)}, {v(p+10)}, {v(p+11)}", f"v_max3_f32 {v(t+1)}, {v(t+1)}, {v(p+12)}, {v(p+13)}",
         f"v_max3_f32 {v(t)}, {v(t)}, {v(p+14)}, {v(p+15)}", f"v_max_f32 {v(t)}, {v(t)}, {v(t+1)}",
         f"v_mul_f32 {v(t)}, {v(t)}, {v(LS)}"]
    L += [f"v_fma_f32 {v(p+i)}, {v(p+i)}, {v(LS)}, -{v(t)}" for i in range(16)]
    L += [f"v_exp_f32 {v(p+i)}, {v(p+i)}" for i in range(16)]
    L += [f"v_add_f32 {v(t)}, {v(p)}, {v(p+1)}", f"v_add_f32 {v(t+1)}, {v(p+2)}, {v(p+3)}"]
    for i in range(4, 16, 2):
        L += [f"v_add_f32 {v(t)}, {v(t)}, {v(p+i)}", f"v_add_f32 {v(t+1)}, {v(t+1)}, {v(p+i+1)}"]
    L += [f"v_add_f32 {v(t)}, {v(t)}, {v(t+1)}", f"v_rcp_f32 {v(t)}, {v(t)}"]
    L += [f"v_mul_f32 {v(p+i)}, {v(p+i)}, {v(t)}" for i in range(16)]
    L += [f"v_cvt_pk_bf16_f32 {v(out+i)}, {v(p+2*i)}, {v(p+2*i+1)}" for i in range(8)]
    return L

setup(False)
KAREA[:] = [RC, RA+3*Q, RB, RA, RA+Q, RA+2*Q, RB+Q, RB+2*Q, RB+3*Q]
LS = K1; VPK = K2; VV = VW3; MC = BIAS
PHI0, PHI1 = AX, AAUG
PHI0 = AX
PHI1 = S1
PHI1 = T + 12
t = T + 16
P(f"v_bfe_u32 {v(t)}, {v(vL)}, 2, 2\nv_lshrrev_b32 {v(t+1)}, 5, {v(vL)}\nv_lshl_add_u32 {v(t)}, {v(t+1)}, 2, {v(t)}\nv_lshlrev_b32 {v(t)}, 5, {v(t)}")
P(f"v_bfe_u32 {v(t+2)}, {v(vL)}, 1, 1\nv_lshl_add_u32 {v(t)}, {v(t+2)}, 3, {v(t)}\nv_bfe_u32 {v(t+2)}, {v(vL)}, 4, 1\nv_lshl_add_u32 {v(t)}, {v(t+2)}, 4, {v(t)}")
P(f"s_lshl_b32 {s(sT1)}, {s(sHALF)}, 10\ns_add_u32 {s(sT1)}, {s(sT1)}, {L_WPHI}\nv_add_u32 {v(AB)}, {s(sT1)}, {v(t)}")
P(f"v_bfe_u32 {v(t)}, {v(vL)}, 2, 1\nv_mul_u32_u24 {v(t)}, 0x8000, {v(t)}\nv_lshl_or_b32 {v(AB+1)}, {v(t)}, 16, {v(t)}")
P(f"v_and_b32 {v(t)}, 31, {v(vL)}\nv_lshlrev_b32 {v(t)}, 6, {v(t)}\ns_lshl_b32 {s(sT1)}, {s(sW34)}, 9\nv_bfe_u32 {v(t+2)}, {v(vL)}, 1, 2")
P(f"v_lshlrev_b32 {v(t+3)}, 1, {v(t+1)}\nv_xor_b32 {v(t+3)}, {v(t+3)}, {v(t+2)}")
P(f"s_lshl_b32 {s(sT2)}, {s(sHALF)}, 14\ns_add_u32 {s(sT2)}, {s(sT2)}, {s(sT1)}\nv_lshl_add_u32 {v(VPK)}, {v(t+3)}, 4, {v(t)}\nv_add_u32 {v(VPK)}, {s(sT2)}, {v(VPK)}")
P(f"v_xor_b32 {v(t+3)}, {v(t+1)}, {v(t+2)}")
P(f"s_lshl_b32 {s(sT2)}, {s(sHALF)}, 13\ns_add_u32 {s(sT2)}, {s(sT2)}, {s(sT1)}\ns_add_u32 {s(sT2)}, {s(sT2)}, {RA+32768}\nv_lshl_add_u32 {v(VV)}, {v(t+3)}, 4, {v(t)}\nv_add_u32 {v(VV)}, {s(sT2)}, {v(VV)}")
def phi_load(hl, dst):
    return [f"ds_read_b64_tr_b16 {v(dst+2*tt,2)}, {v(AB)} offset:{512*hl+256*tt}" for tt in range(2)] + \
           [f"v_xor_b32 {v(dst+i)}, {v(AB+1)}, {v(dst+i)}" for i in range(4)]
S = Sched(96)
common_sched(S, False, None, MC)
S.post[30] += [f"ds_read_b128 {v(CSR,4)}, {v(VCSA)}"]
sKV, sOS = sH0, sH3
P(f"s_lshl_b32 {s(sT0)}, {s(sG)}, 4\ns_add_u32 {s(sT0)}, {s(sT0)}, {s(sRT)}\ns_mul_i32 {s(sT0)}, {s(sT0)}, {KVP_SZ}\ns_mul_i32 {s(sT1)}, {s(sW)}, 1152\ns_add_u32 {s(sT0)}, {s(sT0)}, {s(sT1)}\ns_add_u32 {s(sT0)}, {s(sT0)}, {WS_KVP}")
P(f"s_cmp_lt_u32 {s(sW)}, 4\ns_cselect_b32 {s(sKV)}, {s(sT0)}, 0x7f000000")
P(f"s_lshl_b32 {s(sT0)}, {s(sG)}, 2\ns_lshl_b32 {s(sT1)}, {s(sHALF)}, 1\ns_add_u32 {s(sT0)}, {s(sT0)}, {s(sT1)}\ns_add_u32 {s(sT0)}, {s(sT0)}, 112\ns_lshl_b32 {s(sT0)}, {s(sT0)}, 10\ns_add_u32 {s(sOS)}, {s(sT0)}, {s(sHo)}")
PA = AAUG
OFFL = OPT.get("off", "0") == "1"
if OFFL:
    P(f"s_mul_i32 {s(sT0)}, {s(sG)}, 448\ns_and_b32 {s(sT1)}, {s(sG)}, 1\ns_add_u32 {s(sT2)}, {s(sT1)}, {s(sHALF)}\ns_lshl_b32 {s(sT2)}, {s(sT2)}, 6\ns_add_u32 {s(sT2)}, {s(sT2)}, {s(sT0)}")
    P(f"s_lshl_b32 {s(sT2)}, {s(sT2)}, 5\ns_add_u32 {s(sWq)}, {s(sT2)}, {s(sHo)}\ns_add_u32 {s(sWq)}, {s(sWq)}, 8192")
    P(f"s_xor_b32 {s(sT1)}, {s(sT1)}, 1\ns_mul_i32 {s(sT1)}, {s(sT1)}, 384\ns_add_u32 {s(sT0)}, {s(sT0)}, {s(sT1)}\ns_lshl_b32 {s(sT1)}, {s(sHALF)}, 5\ns_add_u32 {s(sT0)}, {s(sT0)}, {s(sT1)}")
    P(f"s_lshl_b32 {s(sT0)}, {s(sT0)}, 5\ns_add_u32 {s(sW3)}, {s(sT0)}, {s(sHo)}")
S.post[46] += [f"v_mov_b32 {v(PA+i)}, -1" for i in range(4)] + [f"v_lshrrev_b32 {v(S2)}, 2, {v(vL)}", f"v_lshl_add_u32 {v(S2)}, {v(S2)}, 26, {v(VL16)}"]
S.post[47] += [f"buffer_store_dwordx4 {v(PA,4)}, {v(VL16)}, {s(SWS,4)}, {s(sKV)} offen sc1"]
S.post[48] += [f"buffer_store_dwordx4 {v(PA,4)}, {v(S2)}, {s(SWS,4)}, {s(sKV)} offen offset:1024 sc1 ; tag=pz"]
pl = [(sOS, 0), (sOS, 1024)] + ([(sWq, 0), (sWq, 1024), (sW3, 0)] if OFFL else [])
for (so, off), G in zip(pl, [int(x) for x in OPT.get("pza", "50,53,56,59,62").split(",")]):
    S.post[G] += [f"buffer_store_dwordx4 {v(PA,4)}, {v(VL16)}, {s(SWS,4)}, {s(so)} offen offset:{off} sc1 ; tag=po"]
PX1 = OPT.get("px1") == "1"
if V2 and PX1:
    for j, G in zip((1, 2, 3), (56, 59, 62)): S.post[G] += xoff(j, True) + [f"buffer_store_dwordx4 {v(PA,4)}, {v(VL16)}, {s(SWS,4)}, {s(sT0)} offen sc1 ; tag=px"]
S.post[63] += [f"v_mov_b32 {v(PA+2)}, 0", f"v_mov_b32 {v(PA+3)}, 0"]
def ltouch():
    P(f"s_sub_u32 {s(sT0)}, {s(sW)}, 4\ns_cmp_lt_u32 {s(sT0)}, 3")
    P(f"s_cbranch_scc0 L_nlt")
    P.cond_begin("w456")
    P(f"v_lshlrev_b32 {v(S1)}, 7, {v(vL)}\ns_lshl_b32 {s(sT1)}, {s(sRT)}, 3\ns_add_u32 {s(sT1)}, {s(sT1)}, {s(sG)}")
    P(f"s_cmp_eq_u32 {s(sT0)}, 2\ns_cbranch_scc1 L_lt2")
    P(f"s_lshl_b32 {s(sT1)}, {s(sT1)}, 1\ns_add_u32 {s(sT1)}, {s(sT1)}, {s(sT0)}\ns_mul_i32 {s(sT1)}, {s(sT1)}, 7168")
    P(f"buffer_load_dword {v(VX0)}, {v(S1)}, {s(SW2,4)}, {s(sT1)} offen")
    P("s_branch L_nlt")
    P("L_lt2:")
    P(f"v_and_b32 {v(S1)}, 4095, {v(S1)}\ns_lshl_b32 {s(sT1)}, {s(sT1)}, 12")
    P(f"buffer_load_dword {v(VX0)}, {v(S1)}, {s(SWO,4)}, {s(sT1)} offen")
    P(f"buffer_load_dword {v(VX1)}, {v(S1)}, {s(SB2,4)}, 0 offen")
    P.cond_end()
    for I in P.ins[-12:]:
        if I.kind == "vld": I.defs = []
    P("L_nlt:")
if OPT.get("touch", "5") == "2": S.blk[("e", int(OPT.get("tg", 54)))] = ltouch
S.post[31] += stamp_i("pass1")
fill = stats_final() + aug(ACC0, CSR, None) + phi_load(0, AX) + phi_load(1, T + 8) + [f"v_mul_f32 {v(LS)}, {f2u(LOG2E):#x}, {v(RSTD)}"]
fill += [f"v_cvt_pk_bf16_f32 {v(T+i)}, {v(ACC0+2*i)}, {v(ACC0+2*i+1)}" for i in range(8)]
fill += [mfma(ACC2, AX, T, "0"), mfma(ACC0, T + 8, T + 4, "0")]
S.spread(fill, 32, 40)
S.spread(softmax(ACC2, T + 8, LS) + softmax(ACC0, T, LS), 41, 64)
pkg = 62 if OPT.get("few", "1") == "1" else 56
S.post[pkg] += [f"ds_write_b128 {v(VPK)}, {v(T+8,4)}", f"v_xor_b32 {v(VSTA)}, 16, {v(VPK)}"]
S.post[pkg+1] += [f"ds_write_b128 {v(VSTA)}, {v(T+12,4)}"]
S.post[62] += [f"ds_read_b128 {v(MC,4)}, {v(VCSA)} offset:1024"]
S.post[63] += stamp_i("sub1")
S.pre[64] += sum4(CS0, MC)
S.fill[64] += aug(ACC1, MC, None)[3:]
S.post[65] += [f"ds_write_b128 {v(VPK)}, {v(T,4)} offset:8192"]
S.post[66] += [f"ds_write_b128 {v(VSTA)}, {v(T+4,4)} offset:8192"]
fill = []
fill += [f"v_mul_f32 {v(ACC1+i)}, {v(ACC1+i)}, {v(RSTD)}" for i in range(16)]
fill += [f"v_cvt_pk_bf16_f32 {v(ACC1+i)}, {v(ACC1+2*i)}, {v(ACC1+2*i+1)}" for i in range(8)]
fill += [f"ds_write_b128 {v(VV)}, {v(ACC1,4)}", f"v_xor_b32 {v(VV)}, 32, {v(VV)}", f"ds_write_b128 {v(VV)}, {v(ACC1+4,4)}"]
S.spread(fill, 66, 70)
S.dmas(b_dma(0), 65, 3)
S.dmas(b_dma(1), 74, 4); S.dmas(b_dma(2) + b_dma(3) + b_dma(4), int(OPT.get('ab', 86)), 1)
def kvblock():
    P(".waitvm pz lgkm0")
    P("s_barrier")
    kvflag()
    stamp("kv0"); stamp("kv1")
    P(f"s_cmp_lt_u32 {s(sW)}, 4")
    P("s_cbranch_scc0 L_nkv")
    P.cond_begin("lo4")
    P("s_setprio 3")
    t = T + 16; u = S1
    P(f"v_bfe_u32 {v(u)}, {v(vL)}, 2, 2\nv_lshrrev_b32 {v(u+1)}, 5, {v(vL)}\nv_lshl_add_u32 {v(u)}, {v(u+1)}, 3, {v(u)}\nv_lshlrev_b32 {v(u)}, 6, {v(u)}")
    P(f"v_bfe_u32 {v(u+1)}, {v(vL)}, 1, 1\nv_lshl_add_u32 {v(u)}, {v(u+1)}, 3, {v(u)}\nv_bfe_u32 {v(u+1)}, {v(vL)}, 3, 1\nv_and_b32 {v(VSTA)}, 1, {v(vL)}")
    P(f"v_or_b32 {v(t)}, {s(sSH)}, {v(VSTA)}\nv_xor_b32 {v(t)}, {v(t)}, {v(u+1)}\nv_lshl_add_u32 {v(t)}, {v(t)}, 4, {v(u)}")
    P(f"s_lshr_b32 {s(sT0)}, {s(sW)}, 1\ns_lshl_b32 {s(sT0)}, {s(sT0)}, 13\ns_add_u32 {s(sT0)}, {s(sT0)}, {RA+32768}\nv_add_u32 {v(t)}, {s(sT0)}, {v(t)}\nv_xor_b32 {v(t+1)}, 32, {v(t)}")
    P(f"v_bfe_u32 {v(t+2)}, {v(vL)}, 4, 1\nv_lshl_add_u32 {v(t+2)}, {v(VSTA)}, 1, {v(t+2)}\nv_xor_b32 {v(t+2)}, {v(t+2)}, {v(u+1)}\nv_lshl_add_u32 {v(t+2)}, {v(t+2)}, 4, {v(u)}")
    P(f"s_lshl_b32 {s(sT0)}, {s(sW)}, 13\nv_add_u32 {v(t+2)}, {s(sT0)}, {v(t+2)}\nv_xor_b32 {v(t+3)}, 32, {v(t+2)}")
    P(f"v_and_b32 {v(u)}, 16, {v(vL)}\nv_cmp_eq_u32 vcc, 0, {v(u)}\nv_mov_b32 {v(u+1)}, {s(sONE)}")
    KB = [T, T + 8, ACC1, ACC1 + 8]
    def kr(J):
        for tt in range(2):
            P(f"ds_read_b64_tr_b16 {v(KB[J&3]+2*tt,2)}, {v(t+tt)} offset:{1024*J+256*tt}")
            P(f"ds_read_b64_tr_b16 {v(KB[J&3]+4+2*tt,2)}, {v(t+2+tt)} offset:{1024*J+256*tt}")
    kr(0); kr(1); kr(2)
    for J in range(8):
        for i in range(4): P(f"v_cndmask_b32 {v(KB[J&3]+i)}, {v(u+1)}, {v(KB[J&3]+i)}, vcc")
        if J + 3 < 8: kr(J + 3)
        P(mfma(ACC0, KB[J&3] + 4, KB[J&3], "0" if J == 0 else None))
    P(f"v_lshrrev_b32 {v(u)}, 5, {v(vL)}\nv_and_b32 {v(t+2)}, 15, {v(vL)}\nv_lshlrev_b32 {v(t)}, 4, {v(t+2)}\nv_lshl_add_u32 {v(t)}, {v(u)}, 8, {v(t)}\nv_add_u32 {v(t+1)}, 512, {v(t)}")
    P(f"v_lshlrev_b32 {v(u)}, 4, {v(u)}\nv_add_u32 {v(u)}, 1024, {v(u)}\nv_lshl_add_u32 {v(u)}, {v(t+2)}, 26, {v(u)}\nv_add_u32 {v(u+1)}, 32, {v(u)}")
    P(f"v_cndmask_b32 {v(t)}, {v(u)}, {v(t)}, vcc\nv_cndmask_b32 {v(t+1)}, {v(u+1)}, {v(t+1)}, vcc")
    for i in range(8): P(f"v_cvt_pk_bf16_f32 {v(T+i)}, {v(ACC0+2*i)}, {v(ACC0+2*i+1)}")
    stamp("kv1")
    for j in range(2): P(f"buffer_store_dwordx4 {v(T+4*j,4)}, {v(t+j)}, {s(SWS,4)}, {s(sKV)} offen sc1")
    P.cond_end()
    P("L_nkv:")
    stamp("kv2")
S.blk[70] = kvblock
S.pre[94] += ["s_waitcnt lgkmcnt(0)", "s_barrier"]
def kvflag():
    P(f"s_cmp_eq_u32 {s(sW)}, 7")
    P("s_cbranch_scc0 L_nkf")
    P.cond_begin("w0")
    P(f"s_lshl_b32 {s(sT0)}, {s(sG)}, 8\ns_lshl_b32 {s(sT1)}, {s(sRT)}, 2\ns_add_u32 {s(sT0)}, {s(sT0)}, {s(sT1)}\ns_add_u32 {s(sT0)}, {s(sT0)}, {WS_KVF}")
    P(f"v_mov_b32 {v(VFV)}, 1")
    P(f"buffer_store_dword {v(VFV)}, {v(VZ)}, {s(SWS,4)}, {s(sT0)} offen sc1")
    P.cond_end()
    P("L_nkf:")
def kvpoll():
    P(f"s_cmp_eq_u32 {s(sW)}, 7")
    P("s_cbranch_scc0 L_nkp")
    n0 = len(P.ins)
    P(f"s_lshl_b32 {s(sT2)}, {s(sG)}, 8\ns_add_u32 {s(sT2)}, {s(sT2)}, {WS_KVF}\ns_mov_b32 {s(sCNT)}, 0")
    P("s_branch L_spkv1")
    P("L_spkv:")
    P(f"s_buffer_load_dwordx16 s[20:35], {s(SWS,4)}, {s(sT2)} glc")
    P("L_spkv1:")
    P(f"s_add_u32 {s(sCNT)}, {s(sCNT)}, 1")
    P("s_waitcnt lgkmcnt(0)")
    for i in range(22, 36, 2): P(f"s_and_b64 s[20:21], s[20:21], s[{i}:{i+1}]")
    P("s_and_b32 s20, s20, s21")
    P("s_cbranch_scc1 L_nkp")
    P(f"s_cmp_gt_u32 {s(sCNT)}, {SPIN_MAX}")
    P("s_cbranch_scc1 L_nkp")
    P("s_sleep 1")
    P("s_branch L_spkv")
    for I in P.ins[n0:]:
        I.cond = "kvp"
        if I.kind == "smem": I.kind = "opaque"
    P("L_nkp:")
def kvreq():
    P(f"s_cmp_eq_u32 {s(sW)}, 7")
    P("s_cbranch_scc0 L_nkr")
    n0 = len(P.ins)
    P(f"s_lshl_b32 {s(sT2)}, {s(sG)}, 8\ns_add_u32 {s(sT2)}, {s(sT2)}, {WS_KVF}")
    P(f"s_buffer_load_dwordx16 s[20:35], {s(SWS,4)}, {s(sT2)} glc")
    for I in P.ins[n0:]:
        I.cond = "kvp"
        if I.kind == "smem": I.kind = "opaque"
    P("L_nkr:")
VP = OPT.get("vp", "0") == "1"
VPA_, VPV = VX0, VSTA
vpl = f"buffer_load_dword {v(VPV)}, {v(VPA_)}, {s(SWS,4)}, 0 offen sc1"
if VP:
    S.fill[78] += lines(f"s_lshl_b32 {s(sT0)}, {s(sG)}, 8\ns_add_u32 {s(sT0)}, {s(sT0)}, {WS_KVF}\nv_and_b32 {v(VPA_)}, 3, {v(vL)}\nv_lshl_add_u32 {v(VPA_)}, {v(VPA_)}, 2, {s(sFL)}\nv_lshl_add_u32 {v(VPV)}, {v(vL)}, 2, {s(sT0)}\nv_cmp_gt_u32 vcc, 16, {v(vL)}\ns_nop 1\nv_cndmask_b32 {v(VPA_)}, {v(VPA_)}, {v(VPV)}, vcc")
    S.post[int(OPT.get("vpg", 86))] += [vpl]
    def vcheck0():
        P(f"v_mov_b32 {v(VPV)}, {v(VPV)}")
        spin("L_vp", vpl, f"v_cmp_gt_u32 vcc, 1, {v(VPV)}")
    S.blk[("e", 93)] = vcheck0
else:
    ab_ = int(OPT.get('ab', 86)); S.blk[ab_] = lambda: (kvreq(), kvpoll()); S.post[95] += [spoll(1)]
S.post[94] += [f"ds_read_b128 {v(CSR,4)}, {v(VCSA)} offset:2048"]
S.post[80] += phi_load(1, T + 8)[:2]; S.post[82] += phi_load(1, T + 8)[2:]
PQ = WF
def Gq(r): return XF + 8 * r
Z = XF + 80; GA = XF + 64
VG, VGZ = S1, S2
gsetup = lines(f"s_mul_i32 {s(sK)}, {s(sG)}, {16*KVP_SZ}\ns_lshr_b32 {s(sT0)}, {s(sW)}, 1\ns_mul_i32 {s(sT0)}, {s(sT0)}, 1152\ns_add_u32 {s(sK)}, {s(sK)}, {s(sT0)}\ns_add_u32 {s(sK)}, {s(sK)}, {WS_KVP}")
gsetup += lines(f"v_and_b32 {v(VGZ)}, 15, {v(vL)}\nv_mul_u32_u24 {v(VGZ)}, {KVP_SZ}, {v(VGZ)}\nv_and_b32 {v(VG)}, 16, {v(vL)}\nv_add_u32 {v(VGZ)}, {v(VGZ)}, {v(VG)}\ns_lshl_b32 {s(sT0)}, {s(sSH)}, 4\nv_add_u32 {v(VGZ)}, {s(sT0)}, {v(VGZ)}")
gsetup += lines(f"v_lshrrev_b32 {v(VG)}, 5, {v(vL)}\nv_mul_u32_u24 {v(VG)}, {8*KVP_SZ - 512}, {v(VG)}\nv_add_u32 {v(VG)}, {v(VG)}, {v(VL16)}\ns_lshl_b32 {s(sT0)}, {s(sSH)}, 8\nv_add_u32 {v(VG)}, {s(sT0)}, {v(VG)}")
gl = [[f"buffer_load_dwordx4 {v(Z,4)}, {v(VGZ)}, {s(SWS,4)}, {s(sK)} offen offset:1024 sc1"]]
for r in range(8):
    gl.append(lines(f"s_add_u32 {s(sD1)}, {s(sRT)}, {r}\ns_and_b32 {s(sD1)}, {s(sD1)}, 7\ns_mul_i32 {s(sD1)}, {s(sD1)}, {KVP_SZ}\ns_add_u32 {s(sD1)}, {s(sD1)}, {s(sK)}") +
              [f"buffer_load_dwordx4 {v(Gq(r),4)}, {v(VG)}, {s(SWS,4)}, {s(sD1)} offen sc1"])
S.fill[76] += gsetup
g0_ = int(OPT.get("gg", 94))
gl_in = min(9, 96 - g0_)
S.dmas(gl[:gl_in], g0_)
run_sched(S, [ACC0, ACC1, ACC2])
stamp("sub2")
P.add(aug(ACC2, CSR, None))
for g_ in gl[gl_in:gl_in+2]: P.add(g_)
for i in range(8): P(f"v_cvt_pk_bf16_f32 {v(T+i)}, {v(ACC2+2*i)}, {v(ACC2+2*i+1)}")
P(mfma(ACC1, AX, T, "0"))
P(mfma(ACC2, T + 8, T + 4, "0"))
stamp("phi")
bd = sum([b_dma(kk) for kk in (5, 6, 7)], [])
TO = OPT.get("to", "a")
sm1 = softmax(ACC1, PQ, LS, True); sm2 = softmax(ACC2, PQ + 8, LS, True)
if TO == "a":
    P.add(interleave(gl[gl_in+2:], sm1[:30]) + interleave(bd[:2], sm1[30:])); bd = bd[2:]
else:
    P.add(interleave(gl[gl_in+2:], sm1[:30]) + interleave(bd[:4], sm1[30:] + sm2[:33])); bd = bd[4:]; sm2 = sm2[33:]
if not VP: sneed(1, 1)
P(spoll(0))
stamp("qsm")
validate([Z + i for i in range(4)] + [Gq(r) + i for r in range(8) for i in range(4)], T + 4, sum(gl, []))
stamp("kvseen")
aj = sum([a_jobs(kk) for kk in range(8)], [])
n_o0 = len(P.ins)
P(f"v_lshrrev_b32 {v(T+1)}, 5, {v(vL)}")
P(f"v_bfe_u32 {v(T+2)}, {v(vL)}, 4, 1\nv_lshlrev_b32 {v(T+2)}, 9, {v(T+2)}\nv_lshl_add_u32 {v(T+2)}, {v(T+1)}, 3, {v(T+2)}")
P(f"s_lshl_b32 {s(sT0)}, {s(sW)}, 10\ns_add_u32 {s(sT0)}, {s(sT0)}, {L_KVB}\nv_add_u32 {v(T+2)}, {s(sT0)}, {v(T+2)}")
P(f"v_and_b32 {v(T+3)}, 15, {v(vL)}\nv_lshl_add_u32 {v(T+3)}, {v(T+3)}, 4, {v(T+2)}")
P(f"v_cmp_gt_u32 vcc, 32, {v(vL)}\ns_mov_b32 {s(sT0)}, 0x3f80\ns_mov_b32 {s(sT1)}, 0x3f800000")
P(f"v_cndmask_b32 {v(Z)}, {v(Z+2)}, {v(Z)}, vcc\nv_cndmask_b32 {v(Z+1)}, {v(Z+3)}, {v(Z+1)}, vcc")
P(f"v_lshlrev_b32 {v(Z+8)}, 16, {v(Z)}\nv_and_b32 {v(Z+9)}, 0xffff0000, {v(Z)}\nv_lshlrev_b32 {v(Z+10)}, 16, {v(Z+1)}\nv_and_b32 {v(Z+11)}, 0xffff0000, {v(Z+1)}")
for ror in (8, 4, 2, 1):
    for i in range(4): P(f"v_add_f32_dpp {v(Z+8+i)}, {v(Z+8+i)}, {v(Z+8+i)} row_ror:{ror} row_mask:0xf bank_mask:0xf")
P(f"v_cvt_pk_bf16_f32 {v(Z)}, {v(Z+8)}, {v(Z+9)}\nv_cvt_pk_bf16_f32 {v(Z+1)}, {v(Z+10)}, {v(Z+11)}")
P(f"ds_write_b64 {v(T+2)}, {v(Z,2)} offset:256")
def ga(i): return GA + (i & 3) + 8 * (i >> 2)
for i in range(4):
    P(f"v_lshlrev_b32 {v(ga(2*i))}, 16, {v(Gq(0)+i)}\nv_and_b32 {v(ga(2*i+1))}, 0xffff0000, {v(Gq(0)+i)}")
for r in range(1, 8):
    for i in range(4):
        P(f"v_dot2c_f32_bf16 {v(ga(2*i))}, {s(sT0)}, {v(Gq(r)+i)}\nv_dot2c_f32_bf16 {v(ga(2*i+1))}, {s(sT1)}, {v(Gq(r)+i)}")
for i in range(4): P(f"v_permlane32_swap_b32 {v(ga(i))}, {v(ga(i+4))}")
for i in range(4): P(f"v_add_f32 {v(ga(i))}, {v(ga(i))}, {v(ga(i+4))}")
P(f"v_cvt_pk_bf16_f32 {v(GA)}, {v(GA)}, {v(GA+1)}\nv_cvt_pk_bf16_f32 {v(GA+1)}, {v(GA+2)}, {v(GA+3)}")
P(f"ds_write_b64 {v(T+3)}, {v(GA,2)}")
stamp("gsum")
P(f"v_and_b32 {v(T)}, 31, {v(vL)}\nv_min_u32 {v(T)}, 16, {v(T)}\nv_and_b32 {v(T+1)}, 32, {v(vL)}\nv_add_u32 {v(T)}, {v(T)}, {v(T+1)}\nv_lshlrev_b32 {v(T)}, 4, {v(T)}")
P(f"s_lshl_b32 {s(sT0)}, {s(sHALF)}, 12\ns_add_u32 {s(sT0)}, {s(sT0)}, {L_KVB}\nv_add_u32 {v(T)}, {s(sT0)}, {v(T)}")
body = P.ins[n_o0:]; del P.ins[n_o0:]
for i, g_ in enumerate(bd):
    P.add(g_); P.ins += body[len(body)*i//len(bd): len(body)*(i+1)//len(bd)]
stamp("pre1")
sneed(1, 0)
stamp("post1")
if NP: aj = aj[:4]
P.add(interleave(aj, sm2))
stamp("sm2")
P(".waitvm b7 lgkm0")
stamp("ob0")
P("s_barrier")
stamp("ob1")
for i in range(4): P(f"ds_read_b128 {v(Gq(i),4)}, {v(T)} offset:{1024*i}")
P(mfma(ACC0, Gq(0), PQ, "0")); P(mfma(ACC1, Gq(2), PQ + 8, "0"))
P(mfma(ACC0, Gq(1), PQ + 4)); P(mfma(ACC1, Gq(3), PQ + 12))
if NP: P(spoll(0))
for hl, acc in enumerate((ACC0, ACC1)):
    P(f"v_add_f32 {v(acc+8)}, {f2u(1e-6):#x}, {v(acc+8)}\nv_rcp_f32 {v(acc+8)}, {v(acc+8)}")
    for i in range(0, 8, 2): P(f"v_pk_mul_f32 {v(acc+i,2)}, {v(acc+i,2)}, {v(acc+8,2)} op_sel_hi:[1,0]")
    for i in range(4): P(f"v_cvt_pk_bf16_f32 {v(T+4*hl+i)}, {v(acc+2*i)}, {v(acc+2*i+1)}")
    P(f"buffer_store_dwordx4 {v(T+4*hl,4)}, {v(VL16)}, {s(SWS,4)}, {s(sOS)} offen offset:{1024*hl} sc1 ; ost")
stamp("p1end")
if V3: phase2_v3((8,), (), False)
elif V2: phase2_v2((8,), False)
else: phase2(("B6", "B7"), "A4 A5 A6 B8 A7 B9 A8 B10 A9 B11 A10 B12 A11 B13 A12 B14 A13 B15 B16 B17 A14 A15 A16 A17")

P("L_ffn:")
P(".reset")
setup(True)
KAREA[:] = [RC, RA+2*Q, RA+3*Q, RB, RB+Q, RB+2*Q, RA, RA+Q, RB+3*Q]
MC = ACC2; CSF = ACC2 + 4
S = Sched(112)
common_sched(S, True, None, MC)
S.post[30] += [f"ds_read_b128 {v(CSF,4)}, {v(VCSA)}"]
if not NP: S.post[40] += [f"s_add_u32 {s(sT2)}, {s(sH0)}, 4096", f"s_add_u32 {s(sK)}, {s(sH0)}, 8192"]
pzs = [[f"buffer_store_dwordx4 {v(PZ,4)}, {v(VL16)}, {s(SWS,4)}, {s(so)} offen offset:{off} sc1 ; tag=h1"]
       for so, off in ((sT2, 0), (sT2, 1024), (sK, 0), (sK, 1024), (sH3, 0))[:0 if NP else 2 if OFFL else 5]]
for g_, G in zip(pzs, [int(x) for x in OPT.get("pz", "50,56,59,67,70").split(",")]): S.post[G] += g_
S.post[31] += stamp_i("pass1")
fill = stats_final() + aug(ACC0, CSF, BIAS)
fill += [f"v_mul_f32 {v(K1)}, {f2u(GC1):#x}, {v(RSTD)}", f"v_mul_f32 {v(K2)}, {v(RSTD)}, {v(RSTD)}",
         f"v_mul_f32 {v(K2)}, {v(K2)}, {v(RSTD)}", f"v_mul_f32 {v(K2)}, {f2u(GC2):#x}, {v(K2)}"]
S.spread(fill, 32, 39)
S.spread(gelu(ACC0, 16) + hstore(sH0, 2, "h1") + [f"s_add_u32 {s(sH0)}, {s(sH0)}, 4096"], 39, 64)
S.post[62] += [f"ds_read_b128 {v(CSF,4)}, {v(VCSA)} offset:1024"]
S.post[63] += stamp_i("sub1")
S.spread(aug(ACC1, CSF, BIAS + 1), 64, 66)
S.spread(gelu(ACC1, 16) + hstore(sH0, 2, "h2") + [f"s_add_u32 {s(sH0)}, {s(sH0)}, 4096"], 67, 96)
w3 = sum([w3quarter(q, 3584) for q in range(4)], [])
for g_, G in zip(w3 + b_dma(0), [int(x) for x in OPT.get("w3", "64,68,72,76,74,75" if OPT.get("few", "1") == "1" else "48,54,60,72,75,76").split(",")]): S.dma[G] += g_
S.dmas(b_dma(1), 78, 2); S.dmas(b_dma(2), 82, 2); S.dmas(b_dma(3), 86, 2); S.dmas(b_dma(4), 90, 2); S.dmas(b_dma(5), 98, 2)
S.pre[94] += [".waitvm w3 lgkm0", "s_barrier"]
S.post[94] += [f"ds_read_b128 {v(CSF,4)}, {v(VCSA)} offset:2048"]
S.post[95] += stamp_i("sub2")
if V2 and PX1:
    for j, G in zip((1, 2, 3), [int(x) for x in OPT.get("pxg", "91,93,102").split(",")]): S.post[G] += xoff(j, True) + [f"buffer_store_dwordx4 {v(PZ,4)}, {v(VL16)}, {s(SWS,4)}, {s(sT0)} offen sc1 ; tag=px"]
S.fill[96] += aug(ACC0, CSF, BIAS + 2)
if OFFL: S.post[106] += [f"s_sub_u32 {s(sT2)}, {s(sFO)}, 1024", f"s_buffer_load_dword {s(sK)}, {s(SWS,4)}, {s(sT2)} glc"]
S.spread(gelu(ACC0, 16), 98, 112)
if V3: S.post[97] += va3_init
aj = sum([a_jobs(kk) for kk in range(4 if NP else 8 if V2 and not V3 else 6)], []) + [[]] * 8
S.dmas(aj[:6], 106); aj = aj[2:]
for i in range(0, 16, 2): S.post[96 + i] += [m16(MC, SEL, WF + 4 * (i & 3), "0" if i == 0 else None)]
run_sched(S, [ACC0, ACC1, ACC0, ACC1])
t = T + 16
P(f"v_and_b32 {v(t)}, 31, {v(vL)}\ns_lshl_b32 {s(sT0)}, {s(sHALF)}, 4\nv_xor_b32 {v(t)}, {s(sT0)}, {v(t)}\nv_lshlrev_b32 {v(t)}, 4, {v(t)}\nv_add_u32 {v(t)}, {L_CS+3072}, {v(t)}")
P(f"v_add_u32 {v(t+1)}, {s(sW34)}, {v(VCSA)}")
P(f"ds_write_b32 {v(t+1)}, {v(MC)} offset:3072")
P.add(aj[4])
XO = 4096 if V2 else 1024
P(f"s_add_u32 {s(sT1)}, {s(sMB if V2 else sM0x)}, {KAREA[8]}\ns_xor_b32 {s(sT0)}, {s(sT1)}, 8192\nv_add_u32 {v(t+1)}, {s(sT0)}, {v(VL16)}\nv_add_u32 {v(AB)}, {s(sT1)}, {v(VL16)}")
P(f"ds_write_b128 {v(t+1)}, {v(ACC1+8,4)}\nds_write_b128 {v(t+1)}, {v(ACC1+12,4)} offset:{XO}")
P(".waitvm b5 lgkm0")
P("s_barrier")
stamp("sub3")
P(f"ds_read_b128 {v(CSF,4)}, {v(t)}")
P(f"ds_read_b128 {v(ACC0,4)}, {v(AB)}\nds_read_b128 {v(ACC0+4,4)}, {v(AB)} offset:{XO}")
P.add(aj[5])
P.add(aug(ACC1, CSF, BIAS + 3))
P.add(aj[6] + aj[7])
if NP: P.add(flag(2, "h2"))
for i in range(0, 8, 2): P(f"v_pk_add_f32 {v(ACC1+i,2)}, {v(ACC1+i,2)}, {v(ACC0+i,2)}")
stamp("x7")
gt = gelu(ACC1, 8, True, out=BIAS); h3 = hstore(sH0, 2, "h3")
sneed(1, 1)
if OFFL: own_check()
P.add(aj[8] + gt[:10] + aj[9] + gt[10:20] + [h3[0]] + gt[20:30] + [h3[1]] + gt[30:] + hstore(sH3, 1, "h4", BIAS))
stamp("p1end")
if V3: phase2_v3((6, 7, 8), (6, 7), True)
elif V2: phase2_v2((6, 7, 8), True)
else: phase2(("A4", "A5"), "B6 A6 B7 A7 B8 B9 A8 B10 A9 B11 A10 B12 A11 B13 A12 B14 A13 B15 B16 B17 A14 A15 A16 A17", True)

P("L_end:")
P("s_endpgm")

ins = P.ins
for I in ins:
    if "; nodef" in I.text: I.defs = []
if OPT.get("nodma"): ins = [I for I in ins if I.kind != "dma"]
if OPT.get("notr"): ins = [I for I in ins if not I.op.startswith("ds_read_b64_tr")]
if OPT.get("nofmac"): ins = [I for I in ins if not (I.op.startswith("v_fmac") or (I.op == "v_and_b32" and "0xffff0000" in I.text) or (I.op == "v_lshlrev_b32" and I.ops[1] == "16"))]
if OPT.get("nom16"): ins = [I for I in ins if "16x16x32" not in I.op]
if OPT.get("notrans"): ins = [I for I in ins if not I.op.startswith(("v_exp", "v_rcp"))]
if OPT.get("novalu"): ins = [I for I in ins if not I.op.startswith(("v_exp", "v_rcp", "v_mul_f32", "v_fma_f32", "v_cvt_pk", "v_max3", "v_add_f32"))]
if OPT.get("nopk"): ins = [I for I in ins if not I.op.startswith(("v_pk_", "v_dot2c"))]
if OPT.get("noval"): ins = [I for I in ins if not (I.op == "s_cbranch_vccnz" and "_slow" in I.text)]
if OPT.get("noa"): ins = [I for I in ins if not (I.kind == "vld" and "x4" in I.op and "sc1" in I.mods)]
if OPT.get("nob"): ins = [I for I in ins if not (I.kind == "dma" and (s(SW2,4) in I.text or s(SWO,4) in I.text))]
if OPT.get("anosc"):
    for I in ins:
        if I.kind == "vld" and "x4" in I.op: I.text = I.text.replace(" sc1", " " + OPT["anosc"].replace("0", ""))
if OPT.get("nopz"): ins = [I for I in ins if not (I.kind == "vst" and "x4" in I.op and (v(PZ,4) in I.text or v(AAUG,4) in I.text) and s(SWS,4) in I.text)]
if OPT.get("plain"):
    for I in ins:
        if I.kind == "vst" and "x4" in I.op and s(SWS,4) in I.text and ("tag=h" in I.text or "tag=po" in I.text or "; ost" in I.text): I.text = I.text.replace(" sc1", "")
if OPT.get("nohs"):
    ins = [I for I in ins if not (I.op.startswith("s_buffer_load") or I.text.startswith((".waitvm h", ".waitvm po", ".waitvm zf")) or (I.op == "s_branch" and ("L_sp" in I.text or "L_ncs" in I.text or "L_oc" in I.text) and "spkv1" not in I.text))]
    for I in ins:
        if I.text.startswith(".waitvm pz"): I.text = ".waitvm none lgkm0"
if OPT.get("nost"): ins = [I for I in ins if not (I.kind == "vst" and "x4" in I.op and "tag=h" in I.text)]
if OPT.get("nomfma"): ins = [I for I in ins if I.kind != "mfma"]
if STAMP:
    for I in ins:
        if I.op in ("s_memrealtime", "s_memtime"): I.kind = "salu"
if OPT.get("nopx"): ins = [I for I in ins if not (I.kind == "vst" and "tag=px" in I.text)]
if OPT.get("nopo"): ins = [I for I in ins if not (I.kind == "vst" and "x4" in I.op and I.ops[0] == v(AAUG,4) and s(SWS,4) in I.text)]
ins = auto_wait(ins)
st = []
ins = hazards(ins, st)
hdr = open("parallel_sum__linear_kernel_hedgehog__dense_activation_gelu__prompt.s.ref").read().split("; Override")[0]
out = hdr + f"; @launch grid=(256,1,1) block=(512,1,1) lds={LDS_SIZE}\n"
out += f'.amdgcn_target "amdgcn-amd-amdhsa--gfx950"\n.text\n.globl {NAME}\n.p2align 8\n.type {NAME},@function\n{NAME}:\n'
out += render(ins)
out += f""".section .rodata,"a"
.p2align 6
.amdhsa_kernel {NAME}
  .amdhsa_next_free_vgpr 256
  .amdhsa_next_free_sgpr 102
  .amdhsa_accum_offset 256
  .amdhsa_group_segment_fixed_size 0
  .amdhsa_kernarg_size 96
  .amdhsa_user_sgpr_count 2
  .amdhsa_user_sgpr_kernarg_segment_ptr 1
  .amdhsa_system_sgpr_workgroup_id_x 1
.end_amdhsa_kernel
"""
open(sys.argv[1], "w").write(out)
print(f"instrs={sum(1 for I in ins if I.kind not in ('label','dir'))} nop-sites={len(st)} nop-states={sum(n for n,_ in st)}", file=sys.stderr)
if OPT.get("nops"):
    for n, tx in st: print(n, tx, file=sys.stderr)
```

```python
import sys, math, struct
from ir import *

NAME = "parallel_sum__linear_kernel_hedgehog__dense_activation_gelu__prompt_kernel"
OPT = dict(a.split("=") for a in sys.argv[2:] if "=" in a)
STAMP = int(OPT.get("stamp", 0))

def f2u(x): return struct.unpack("<I", struct.pack("<f", x))[0]
LOG2E = 1.4426950408889634
GC1 = -2.0 * LOG2E * math.sqrt(2.0 / math.pi)
GC2 = GC1 * 0.044715

HF_RB = 144 * 1024
WS_KVP = 0xA00000
KVP_SZ = 4608
WS_FLG = 0xC00000
WS_KVF = 0xC08000
WS_STAMP = 0xD00000
WS_X = 0x1000000
WS_SIZE = 0x1800000
NP = OPT.get('np', '1') == '1'
if NP: OPT['r8'] = '0'
V3 = OPT.get('p2', '2') == '3'
V2 = OPT.get('p2', '2') in '23'
RA, RB, RC = 0, 65536, 131072
L_KVB = 147456
L_CS = 155648
L_ST = L_CS + 4096
L_WPHI = L_CS + 6144
LDS_SIZE = 163840
SPIN_MAX = 1 << 15

sW, sRT, sG, sM, sN = 3, 4, 5, 6, 7
SX, SW2, SWS, SWT, SAUX, SDBG, SWO, SOUT = 8, 12, 16, 20, 24, 28, 36, 40
sXo, sWo, sROT, sC1 = 32, 33, 34, 35
SB2 = 92
sFL, sOo, sM0x, sT0, sT1, sSIG, sONE, sFO, sHALF, sHo, sWq, sW3, sT2, sCNT, sW34, sT3 = range(44, 60)
sEX = 60
sH0, sH3, sM4, sK = 62, 63, 64, 65
sST = 66
sB2o, sBOo = 90, 91
sA0, sA1, sR4, sSH, sD0, sD1 = range(96, 102)
sOK = sSIG
sQ = [sXo, sWo, sROT, sC1]
sPL = 28
VCSA = 0; vL = 1
AX = 2; AW = 6; AB = 10; VZ, VFV = 12, 13
VX0, VX1, VW, VB, VW3 = 14, 15, 16, 17, 18
VSTA, S1, S2, CS0 = 19, 20, 21, 22
VW0 = 22
RSTD, STD, K1, K2, VL16 = 23, 24, 25, 26, 27
BAUG, AAUG, SEL, BIAS = 28, 32, 36, 40
T = 44
WF = 64
ACC0, ACC1, ACC2 = 80, 96, 112
XF = 128
VTD = int(OPT.get('vtd', 15))
PZ = ACC2 + 8

P = Prog()
STI = dict(start=0, kernarg=1, it0=2, pass1=3, sub1=4, sub2=5, qsm=6, sub3=6, kvseen=7, x7=7, p1end=8, hseen=9, p2mm=10, end=11)
if OPT.get("sp") == "p2": STI = dict(start=0, p1end=1, k1=2, k3=3, k5=4, k7=5, k9=6, k11=7, k13=8, k15=9, p2mm=10, end=11)
if OPT.get("sp") == "att": STI = dict(start=0, sub1=1, kv0=2, kv1=3, kv2=4, sub2=5, qsm=6, kvseen=7, sm2=8, gsum=9, p1end=10, end=11)
if OPT.get("sp", "").startswith("l:"): STI = {n: i for i, n in enumerate(["start"] + OPT["sp"][2:].split(","))}
def stamp_i(name):
    if not STAMP or name not in STI: return []
    i = STI[name]
    return [f"{'s_memrealtime' if STAMP == 1 else 's_memtime'} {s(sST + 2*i, 2)} ; stamp {i} {name}"]
def stamp(name): P.add(stamp_i(name))

def mfma(d, a, b, c=None):
    return f"v_mfma_f32_32x32x16_bf16 {v(d,16)}, {v(a,4)}, {v(b,4)}, {v(d,16) if c is None else c}"
def m16(d, a, b, c=None):
    return f"v_mfma_f32_16x16x32_bf16 {v(d,4)}, {v(a,4)}, {v(b,4)}, {v(d,4) if c is None else c}"
def srd(base, nbytes):
    P(f"s_mov_b32 {s(base+2)}, {nbytes}\ns_mov_b32 {s(base+3)}, 0x20000")
def lines(t): return [l for l in t.split("\n") if l.strip()]

P("s_cmp_ge_u32 s2, 256")
P("s_cbranch_scc1 L_end")
stamp("start")
if OPT.get("exit0"): P("s_endpgm")
if OPT.get("cpf", "1") == "3":
    P(f"s_getpc_b64 {s(sEX,2)}")
    P("L_pc0:")
    P(f"v_subrev_u32 v3, 320, v0\nv_cmp_gt_u32 vcc, 16, v3\ns_lshr_b32 {s(sT0)}, s2, 3\ns_lshl_b32 {s(sT0)}, {s(sT0)}, 11")
    P("s_cbranch_vccz L_ncp0")
    P.cond_begin("cp0")
    P(f"v_and_b32 v3, 15, v3\nv_lshlrev_b32 v3, 7, v3\nv_add_u32 v3, {s(sT0)}, v3\nv_min_u32 v3, L_end-L_pc0, v3")
    P(f"global_load_dword v253, v3, {s(sEX,2)}")
    P.cond_end()
    P("L_ncp0:")
if OPT.get("cpf", "1") == "2":
    P(f"s_getpc_b64 {s(sEX,2)}")
    P("L_pc0:")
    P(f"v_lshlrev_b32 v3, 7, v0")
    P(f"v_min_u32 v3, L_end-L_pc0, v3")
    P(f"global_load_dword v253, v3, {s(sEX,2)}")
P(f"s_load_dwordx2 {s(SX,2)}, s[0:1], 0")
P(f"s_load_dwordx2 {s(SWT,2)}, s[0:1], 8")
P(f"s_load_dwordx2 {s(sA0,2)}, s[0:1], 40")
P(f"v_lshrrev_b32 v2, 6, v0")
P(f"v_and_b32 {v(vL)}, 63, v0")
P(f"s_lshr_b32 {s(sT1)}, s2, 3")
P(f"v_readfirstlane_b32 {s(sW)}, v2")
OWN = False
P(f"s_and_b32 {s(sRT)}, s2, 4\ns_lshl_b32 {s(sRT)}, {s(sRT)}, 1\ns_and_b32 {s(sT2)}, {s(sT1)}, 7\ns_add_u32 {s(sRT)}, {s(sRT)}, {s(sT2)}")
P(f"v_lshrrev_b32 v2, 3, {v(vL)}\nv_and_b32 v3, 7, {v(vL)}\nv_lshrrev_b32 v4, 4, {v(vL)}")
P(f"s_lshl_b32 {s(sXo)}, {s(sRT)}, 17\ns_lshl_b32 {s(sT2)}, {s(sW)}, 14\ns_add_u32 {s(sXo)}, {s(sXo)}, {s(sT2)}")
P(f"v_xor_b32 v5, v3, v4\nv_lshl_add_u32 v5, v5, 4, {s(sXo)}\nv_lshl_add_u32 {v(VX0)}, v2, 10, v5")
P(f"s_lshr_b32 {s(sN)}, {s(sT1)}, 3\ns_lshl_b32 {s(sT2)}, {s(sN)}, 1\ns_add_u32 {s(sROT)}, {s(sRT)}, {s(sT2)}\ns_and_b32 {s(sROT)}, {s(sROT)}, {0 if OPT.get('norot') else OPT.get('rm', 7)}")
P(f"v_xor_b32 v5, 64, {v(VX0)}\nv_add_u32 {v(VX1)}, {8192-1024}, v5")
srd(SX, 2097152)
P(f"s_lshl_b32 {s(sM0x)}, {s(sW)}, 11\ns_lshl_b32 {s(sK)}, {s(sROT)}, 7\ns_mov_b32 m0, {s(sM0x)}")
P(f"v_and_b32 v4, 1, v4\nv_lshlrev_b32 v4, 2, v4\nv_xor_b32 v4, v3, v4\nv_lshlrev_b32 v4, 4, v4")
P(f"s_and_b32 {s(sM)}, s2, 3\ns_lshl_b32 {s(sG)}, {s(sM)}, 1\ns_lshr_b32 {s(sT2)}, {s(sT1)}, 4\ns_add_u32 {s(sG)}, {s(sG)}, {s(sT2)}")
P(f"s_lshr_b32 {s(sD0)}, {s(sM0x)}, 1")
P("s_waitcnt lgkmcnt(0)")
stamp("kernarg")
P(f"buffer_load_dwordx4 {v(VX0)}, {s(SX,4)}, {s(sK)} offen lds")
P(f"buffer_load_dwordx4 {v(VX1)}, {s(SX,4)}, {s(sK)} offen offset:1024 lds")
P(f"s_load_dwordx2 {s(SWS,2)}, s[0:1], 88")
P(f"s_load_dwordx2 {s(SDBG,2)}, s[0:1], 80")
P(f"s_load_dwordx2 {s(SW2,2)}, s[0:1], 56")
P(f"s_load_dwordx2 {s(SWO,2)}, s[0:1], 24")
P(f"s_load_dwordx2 {s(SOUT,2)}, s[0:1], 72")
P(f"s_load_dwordx2 {s(SB2,2)}, s[0:1], 64")
assert V2
P(f"s_bitcmp1_b32 {s(sT1)}, 3")
P("s_cbranch_scc1 L_ffn")

def item1(it, pitch):
    q = it & 3
    return [[f"s_add_u32 m0, {s(sM0x)}, {RA+q*16384}", f"s_mul_i32 {s(sD1)}, {s(sK)}, {pitch//2}",
             f"buffer_load_dwordx4 {v(VX0)}, {s(SX,4)}, {s(sK)} offen lds"],
            [f"buffer_load_dwordx4 {v(VX1)}, {s(SX,4)}, {s(sK)} offen offset:1024 lds"],
            [f"s_add_u32 m0, {s(sD0)}, {RB+it*8192}", f"s_add_u32 {s(sK)}, {s(sK)}, 128",
             f"buffer_load_dwordx4 {v(VW0)}, {s(SWT,4)}, {s(sD1)} offen lds ; tag=it{it}",
             f"s_and_b32 {s(sK)}, {s(sK)}, 1023"]]
def wquarter(region, q, coloff, pitch, tag):
    return [[f"s_add_u32 m0, {s(sM0x)}, {region+q*16384}", f"s_add_u32 {s(sD1)}, {s(sQ[q])}, {coloff}",
             f"buffer_load_dwordx4 {v(VW)}, {s(SWT,4)}, {s(sD1)} offen lds"],
            [f"s_add_u32 {s(sD1)}, {s(sD1)}, {8*pitch-1024}",
             f"buffer_load_dwordx4 {v(VW)}, {s(SWT,4)}, {s(sD1)} offen offset:1024 lds ; tag={tag}"]]
def w3quarter(q, pitch):
    return [[f"s_lshr_b32 {s(sD1)}, {s(sM0x)}, 1", f"s_add_u32 m0, {s(sD1)}, {RA+q*8192}", "s_nop 0",
             f"buffer_load_dwordx4 {v(VW3)}, {s(SWT,4)}, {s(sQ[q])} offen lds ; tag=w3"]]

def spin(label, load, cmp):
    P(f"s_mov_b32 {s(sCNT)}, 0")
    P(f"{label}:")
    P(cmp)
    P(f"s_add_u32 {s(sCNT)}, {s(sCNT)}, 1")
    P(f"s_cbranch_vccz {label}_ok")
    P(f"s_cmp_gt_u32 {s(sCNT)}, {SPIN_MAX}")
    P(f"s_cbranch_scc1 {label}_ok")
    P("s_sleep 1")
    old = P._cond; P._cond = label
    P(load)
    P("s_waitcnt vmcnt(0)")
    P._cond = old
    P(f"s_branch {label}")
    P(f"{label}_ok:")

def gelu(acc, n, pk=False, t0=T, out=T):
    L = []
    for g4 in range(0, n, 4):
        t = t0 + 8 + (g4 & 4)
        a = [acc + g4 + i for i in range(4)]
        if pk:
            L += [f"v_pk_mul_f32 {v(t+i,2)}, {v(a[i],2)}, {v(a[i],2)}" for i in (0, 2)]
            L += [f"v_pk_fma_f32 {v(t+i,2)}, {v(t+i,2)}, {v(K2,2)}, {v(STD,2)} op_sel:[0,0,1] op_sel_hi:[1,0,1]" for i in (0, 2)]
            L += [f"v_pk_mul_f32 {v(t+i,2)}, {v(a[i],2)}, {v(t+i,2)}" for i in (0, 2)]
        else:
            L += [f"v_mul_f32 {v(t+i)}, {v(a[i])}, {v(a[i])}" for i in range(4)]
            L += [f"v_fma_f32 {v(t+i)}, {v(t+i)}, {v(K2)}, {v(K1)}" for i in range(4)]
            L += [f"v_mul_f32 {v(t+i)}, {v(a[i])}, {v(t+i)}" for i in range(4)]
        L += [f"v_exp_f32 {v(t+i)}, {v(t+i)}" for i in range(4)]
        if pk: L += [f"v_pk_fma_f32 {v(t+i,2)}, {v(t+i,2)}, {v(STD,2)}, {v(STD,2)} op_sel_hi:[1,0,0]" for i in (0, 2)]
        else: L += [f"v_fma_f32 {v(t+i)}, {v(t+i)}, {v(STD)}, {v(STD)}" for i in range(4)]
        L += [f"v_rcp_f32 {v(t+i)}, {v(t+i)}" for i in range(4)]
        if pk: L += [f"v_pk_mul_f32 {v(t+i,2)}, {v(a[i],2)}, {v(t+i,2)}" for i in (0, 2)]
        else: L += [f"v_mul_f32 {v(t+i)}, {v(a[i])}, {v(t+i)}" for i in range(4)]
        pr = out + (g4 >> 1)
        L += [f"v_cvt_pk_bf16_f32 {v(pr)}, {v(t)}, {v(t+1)}", f"v_cvt_pk_bf16_f32 {v(pr+1)}, {v(t+2)}, {v(t+3)}"]
    return L
def hstore(soff, n, tagn, src=T):
    return [f"buffer_store_dwordx4 {v(src+4*j,4)}, {v(VL16)}, {s(SWS,4)}, {s(soff)} offen offset:{1024*j} sc1 ; tag={tagn}" for j in range(n)]
assert K1 == STD + 1

def sum4(d, r):
    return [f"v_add_f32 {v(d)}, {v(r)}, {v(r+1)}", f"v_add_f32 {v(r+2)}, {v(r+2)}, {v(r+3)}", f"v_add_f32 {v(d)}, {v(d)}, {v(r+2)}"]

MS, U = T + 4, T + 16
CSR = T + 12
MC = AAUG

def stats_final():
    t = T + 16
    return [f"v_add_f32 {v(S1)}, {v(MS)}, {v(MS+2)}", f"v_add_f32 {v(S2)}, {v(MS+1)}, {v(MS+3)}",
          f"v_mul_f32 {v(S1)}, {f2u(-1.0/512):#x}, {v(S1)}",
          f"v_mul_f32 {v(t)}, {v(S1)}, {v(S1)}",
          f"v_fma_f32 {v(S2)}, {v(S2)}, {s(sT3)}, -{v(t)}",
          f"v_max_f32 {v(S2)}, 0, {v(S2)}",
          f"v_add_f32 {v(S2)}, {f2u(1e-5):#x}, {v(S2)}",
          f"v_rsq_f32 {v(RSTD)}, {v(S2)}",
          f"v_cvt_pk_bf16_f32 {v(t)}, {v(S1)}, {v(S1)}",
          f"v_mul_f32 {v(STD)}, {v(S2)}, {v(RSTD)}",
          f"v_and_b32 {v(t+1)}, 0xffff0000, {v(t)}",
          f"v_sub_f32 {v(t+1)}, {v(S1)}, {v(t+1)}",
          f"v_cvt_pk_bf16_f32 {v(BAUG)}, {v(S1)}, {v(t+1)}",
          f"v_cvt_pk_bf16_f32 {v(BAUG+1)}, {v(S1)}, {v(STD)}",
          f"v_and_b32 {v(t+1)}, 0xffff0000, {v(BAUG+1)}",
          f"v_sub_f32 {v(t+1)}, {v(STD)}, {v(t+1)}",
          f"v_cmp_gt_u32 vcc, 32, {v(vL)}",
          f"v_cvt_pk_bf16_f32 {v(BAUG+2)}, {v(t+1)}, 0",
          f"v_cndmask_b32 {v(BAUG)}, 0, {v(BAUG)}, vcc",
          f"v_cndmask_b32 {v(BAUG+1)}, 0, {v(BAUG+1)}, vcc",
          f"v_cndmask_b32 {v(BAUG+2)}, 0, {v(BAUG+2)}, vcc"]

def aug(acc, part, bias):
    t = T + 18; dst = AAUG
    L = sum4(CS0, part) + [f"v_cvt_pk_bf16_f32 {v(dst)}, {v(CS0)}, {v(CS0)}",
         f"v_and_b32 {v(t)}, 0xffff0000, {v(dst)}",
         f"v_sub_f32 {v(t)}, {v(CS0)}, {v(t)}"]
    if bias is None:
        L += [f"v_cvt_pk_bf16_f32 {v(dst+1)}, {v(t)}, 0"]
    else:
        L += [f"v_cvt_pk_bf16_f32 {v(t)}, {v(t)}, 0", f"v_mov_b32 {v(dst+2)}, {v(bias)}",
              f"v_lshl_or_b32 {v(dst+1)}, {v(bias)}, 16, {v(t)}"]
    return L + [mfma(acc, dst, BAUG)]

def flag(level, tag):
    return [f".waitvm {tag}", f"v_mov_b32 {v(VFV)}, {level}",
            f"buffer_store_dword {v(VFV)}, {v(VZ)}, {s(SWS,4)}, {s(sFO)} offen sc1"]

Q = 16384
KAREA = []
sSK = sM4 if V2 else sSH
sMB = sSIG
def rot_k(kk, dst):
    if kk < 8 and OPT.get("r8", "1") == "1": return [f"s_add_u32 {s(dst)}, {s(sR4)}, {kk}", f"s_and_b32 {s(dst)}, {s(dst)}, 7", f"s_add_u32 {s(dst)}, {s(dst)}, {s(sSK)}"]
    if kk < 12: return [f"s_add_u32 {s(dst)}, {s(sR4)}, {kk}", f"s_and_b32 {s(dst)}, {s(dst)}, 3", f"s_add_u32 {s(dst)}, {s(dst)}, {s(sSK)}"] + \
                       ([f"s_add_u32 {s(dst)}, {s(dst)}, {kk & ~3}"] if kk & ~3 else [])
    if kk < 14: return [f"s_mul_i32 {s(dst)}, {s(sSK)}, 6", f"s_sub_u32 {s(dst)}, {kk}, {s(dst)}"]
    return [f"s_add_u32 {s(dst)}, {s(sR4)}, {kk-14}", f"s_and_b32 {s(dst)}, {s(dst)}, 3"]
def rot_p(sg, dst, sh):
    add = lambda x: ([f"s_add_u32 {s(dst)}, {s(dst)}, {x}"] if x else [])
    shf = (lambda: add(sh)) if isinstance(sh, int) else (lambda: [f"s_add_u32 {s(dst)}, {s(dst)}, {s(sh[0])}"])
    if sg < 4: return [f"s_add_u32 {s(dst)}, {s(sR4)}, {sg}", f"s_and_b32 {s(dst)}, {s(dst)}, 3"] + shf()
    if sg < 6: return [f"s_add_u32 {s(dst)}, {s(sR4)}, {sg}", f"s_and_b32 {s(dst)}, {s(dst)}, 1", f"s_add_u32 {s(dst)}, {s(dst)}, 4"] + shf()
    if sg == 6: return [f"s_mov_b32 {s(dst)}, {6 - 6*sh}"] if isinstance(sh, int) else [f"s_mul_i32 {s(dst)}, {s(sh[0])}, 6", f"s_sub_u32 {s(dst)}, 6, {s(dst)}"]
    return [f"s_add_u32 {s(dst)}, {s(sR4)}, {sg}", f"s_and_b32 {s(dst)}, {s(dst)}, 1"]
def b_dma(kk):
    if V3:
        sr, so = (SW2, sB2o) if kk < 7 else (SWO, sBOo)
        return [rot_p(kk, sD0, [sHALF]) + [f"s_lshl_b32 {s(sD0)}, {s(sD0)}, 15", f"s_add_u32 m0, {s(sMB)}, {KAREA[kk]}", f"s_add_u32 {s(sD0)}, {s(sD0)}, {s(so)}",
                 f"buffer_load_dwordx4 {v(VB)}, {s(sr,4)}, {s(sD0)} offen lds"],
                [f"s_add_u32 m0, {s(sMB)}, {KAREA[kk] + 4096}", f"s_add_u32 {s(sD0)}, {s(sD0)}, 16384",
                 f"buffer_load_dwordx4 {v(VB)}, {s(sr,4)}, {s(sD0)} offen lds ; tag=b{kk}"]]
    if V2:
        G_ = []
        for pos in (2 * kk, 2 * kk + 1):
            sr, so = (SW2, sB2o) if pos < 14 else (SWO, sBOo)
            G_.append(rot_k(pos, sD0) + [f"s_lshl_b32 {s(sD0)}, {s(sD0)}, 14", f"s_add_u32 m0, {s(sMB)}, {KAREA[kk] + (pos & 1) * 4096}", f"s_add_u32 {s(sD0)}, {s(sD0)}, {s(so)}",
                      f"buffer_load_dwordx4 {v(VB)}, {s(sr,4)}, {s(sD0)} offen lds ; tag=b{kk}"])
        return G_
    slot = kk % 9
    m0 = f"s_add_u32 m0, {s(sM0x)}, {KAREA[slot]}"
    sr, so = (SW2, sB2o) if kk < 14 else (SWO, sBOo)
    return [rot_k(kk, sD0) + [f"s_lshl_b32 {s(sD0)}, {s(sD0)}, 14", m0, f"s_add_u32 {s(sD0)}, {s(sD0)}, {s(so)}",
             f"buffer_load_dwordx4 {v(VB)}, {s(sr,4)}, {s(sD0)} offen lds"],
            [f"s_add_u32 {s(sD0)}, {s(sD0)}, {8192 - 1024}",
             f"buffer_load_dwordx4 {v(VB)}, {s(sr,4)}, {s(sD0)} offen offset:1024 lds ; tag=b{kk}"]]

def setup(ffn):
    pitch = 3584 if ffn else 3072
    tp = "f" if ffn else "a"
    if ffn: P(f"s_mov_b64 {s(SWT,2)}, {s(sA0,2)}")
    P(f"s_load_dwordx2 {s(SAUX,2)}, s[0:1], {48 if ffn else 16}")
    srd(SWT, 1835008 if ffn else 1572864)
    P(f"v_mul_u32_u24 {v(VW)}, {pitch}, v2\nv_add_u32 {v(VW)}, {v(VW)}, v4")
    if ffn:
        P(f"s_mul_i32 {s(sT0)}, {s(sG)}, 448\ns_and_b32 {s(sT1)}, {s(sG)}, 1\ns_lshl_b32 {s(sT2)}, {s(sT1)}, 6\ns_add_u32 {s(sWq)}, {s(sT0)}, {s(sT2)}")
        P(f"s_mul_i32 {s(sWo)}, {s(sW)}, {8*pitch}\ns_add_u32 {s(sWo)}, {s(sWo)}, {s(sWq)}")
    else:
        P(f"s_lshl_b32 {s(sWq)}, {s(sG)}, 7")
        P(f"s_mul_i32 {s(sWo)}, {s(sW)}, {8*pitch}\ns_add_u32 {s(sWo)}, {s(sWo)}, {s(sWq)}\ns_add_u32 {s(sWo)}, {s(sWo)}, 1024")
    P(f"v_add_u32 {v(VW0)}, {s(sWo)}, {v(VW)}")
    if STAMP and "slow" in STI: P(f"s_mov_b32 {s(sST+2*STI['slow'])}, {s(sST)}")
    P(f"s_mul_i32 {s(sD1)}, {s(sK)}, {pitch//2}")
    P.add(item1(0, pitch)[2])
    P("s_waitcnt lgkmcnt(0)")
    srd(SWS, WS_SIZE); srd(SDBG, 256); srd(SW2, 1835008); srd(SWO, 524288); srd(SOUT, 2097152); srd(SB2, 1024); srd(SAUX, 3584 if ffn else 16384)
    P(f"v_lshlrev_b32 {v(VL16)}, 4, {v(vL)}")
    P(f"s_lshr_b32 {s(sHALF)}, {s(sW)}, 2")
    P(f"s_and_b32 {s(sW34)}, {s(sW)}, 3\ns_xor_b32 {s(sSIG)}, {s(sW34)}, {s(sHALF)}")
    if not ffn:
        for i in range(4): P(f"v_mov_b32 {v(T+i)}, 0")
        P(f"s_lshl_b32 {s(sT0)}, {s(sW)}, 8\ns_add_u32 {s(sT0)}, {s(sT0)}, s2\ns_sub_u32 {s(sT0)}, {s(sT0)}, 256\ns_cmp_lt_u32 {s(sT0)}, 8")
        P(f"s_cbranch_scc0 L_nzero")
        P.cond_begin("zw")
        P(f"s_lshl_b32 {s(sT0)}, s2, 12\ns_add_u32 {s(sT0)}, {s(sT0)}, {WS_FLG}")
        for i in range(4): P(f"buffer_store_dwordx4 {v(T,4)}, {v(VL16)}, {s(SWS,4)}, {s(sT0)} offen offset:{1024*i} sc1")
        P(f"s_lshl_b32 {s(sT0)}, s2, 8\ns_add_u32 {s(sT0)}, {s(sT0)}, {WS_KVF}\nv_lshlrev_b32 v3, 2, {v(vL)}")
        P(f"buffer_store_dword {v(T)}, v3, {s(SWS,4)}, {s(sT0)} offen sc1 ; tag=zf")
        P.cond_end()
        P(f"L_nzero:")
    if OPT.get("touch", "5") == "1":
        P(f"s_cmp_lt_u32 {s(sW)}, 6")
        P(f"s_cbranch_scc1 L_nt{tp}")
        P.cond_begin("w67")
        P(f"v_lshlrev_b32 v3, 7, {v(vL)}\ns_mul_i32 {s(sT0)}, s2, 7168\ns_lshl_b32 {s(sT1)}, s2, 11")
        P(f"s_cmp_eq_u32 {s(sW)}, 6\ns_cbranch_scc0 L_nta{tp}")
        P(f"buffer_load_dword v255, v3, {s(SW2,4)}, {s(sT0)} offen")
        P(f"s_branch L_nt{tp}")
        P(f"L_nta{tp}:")
        P(f"v_and_b32 v3, 2047, v3")
        P(f"buffer_load_dword v255, v3, {s(SWO,4)}, {s(sT1)} offen")
        P(f"buffer_load_dword v254, v3, {s(SB2,4)}, 0 offen")
        P.cond_end()
        P(f"L_nt{tp}:")
    def wtouch():
        P(f"s_sub_u32 {s(sT0)}, {s(sW)}, 2\ns_cmp_lt_u32 {s(sT0)}, {min(3 if ffn else 2, int(OPT.get('wtn', 3)))}")
        P(f"s_cbranch_scc0 L_nw{tp}")
        P.cond_begin("w234")
        P(f"v_mul_u32_u24 v3, {pitch}, {v(vL)}\ns_mul_i32 {s(sT1)}, {s(sROT)}, {64*pitch}\ns_add_u32 {s(sT1)}, {s(sT1)}, {s(sWq)}")
        if ffn:
            P(f"s_lshl_b32 {s(sT2)}, {s(sT0)}, 7\ns_add_u32 {s(sT1)}, {s(sT1)}, {s(sT2)}\ns_add_u32 {s(sT1)}, {s(sT1)}, 128")
            P(f"s_lshr_b32 {s(sT0)}, {s(sT0)}, 1\ns_and_b32 {s(sT0)}, {s(sT0)}, {s(sG)}\ns_mul_i32 {s(sT0)}, {s(sT0)}, 448\ns_sub_u32 {s(sT1)}, {s(sT1)}, {s(sT0)}")
        else:
            P(f"s_xor_b32 {s(sT0)}, {s(sT0)}, 1\ns_lshl_b32 {s(sT0)}, {s(sT0)}, 11\ns_add_u32 {s(sT1)}, {s(sT1)}, {s(sT0)}")
        if OPT.get("wt", "2") == "2": P(f"s_mov_b32 {s(sCNT)}, {s(sT1)}")
        else: P(f"buffer_load_dword v250, v3, {s(SWT,4)}, {s(sT1)} offen")
        P.cond_end()
        P(f"L_nw{tp}:")
    if OPT.get("wt", "2") == "2": P(f"s_mov_b32 {s(sCNT)}, 0x7f000000")
    if OPT.get("wt", "2") != "0": wtouch()
    if OPT.get("sw", "0") != "0":
        c1_, c2_ = (128, 256) if ffn else (1024, -1024)
        P(f"s_mul_i32 {s(sT0)}, {s(sROT)}, {64*pitch}\ns_add_u32 {s(sT0)}, {s(sT0)}, {s(sWo)}")
        for cc, n_ in ((c1_, 8), (c2_, int(OPT["sw"]) - 8)):
            if n_ <= 0: continue
            P(f"s_add_u32 {s(sT1)}, {s(sT0)}, {cc}")
            for j in range(n_): P(f"s_buffer_load_dword {s(sCNT)}, {s(SWT,4)}, {s(sT1)} offset:{j*pitch} ; nodef")
    if OPT.get("cpf", "1") == "1":
        P(f"s_cmp_eq_u32 {s(sW)}, 5")
        P(f"s_cbranch_scc0 L_ncp{tp}")
        P.cond_begin("w5")
        P(f"s_getpc_b64 {s(sEX,2)}")
        P(f"L_pc{tp}:")
        P(f"s_sub_u32 {s(sEX)}, {s(sEX)}, L_pc{tp}-{NAME}\ns_subb_u32 {s(sEX+1)}, {s(sEX+1)}, 0")
        P(f"s_lshr_b32 {s(sT0)}, s2, 3\ns_lshl_b32 {s(sT0)}, {s(sT0)}, 11\nv_and_b32 v3, 15, {v(vL)}\nv_lshlrev_b32 v3, 7, v3\nv_add_u32 v3, {s(sT0)}, v3")
        P(f"v_min_u32 v3, L_end-{NAME}, v3")
        P(f"global_load_dword v253, v3, {s(sEX,2)}")
        P.cond_end()
        P(f"L_ncp{tp}:")
    if OPT.get("pt", "0") == "1":
        P(f"s_cmp_eq_u32 {s(sW)}, 4")
        P(f"s_cbranch_scc0 L_npt{tp}")
        n0 = len(P.ins)
        P(f"v_lshlrev_b32 v3, 21, {v(vL)}")
        P(f"buffer_load_dword v252, v3, {s(SWS,4)}, 0 offen")
        for i_, sr_ in enumerate((SOUT, SW2, SWO, SB2)): P(f"buffer_load_dword v{248+i_}, v3, {s(sr_,4)}, 0 offen")
        for I in P.ins[n0:]: I.cond = "w4"
        P(f"L_npt{tp}:")
    def stouch():
        n0 = len(P.ins)
        P(f"s_lshl_b32 {s(sT0)}, s2, 3\ns_add_u32 {s(sT0)}, {s(sT0)}, {s(sW)}\ns_mul_i32 {s(sT1)}, {s(sT0)}, 768\ns_mul_i32 {s(sT0)}, {s(sT0)}, 896")
        for i in range(6): P(f"s_load_dword {s(sCNT)}, {s(sEX,2)}, {s(sT1)} offset:{128*i}")
        for i in range(7): P(f"s_load_dword {s(sCNT)}, {s(sA0,2)}, {s(sT0)} offset:{128*i}")
    if OPT.get("stouch", "0") == "1": stouch()
    late1 = OPT.get("late1", "1") == "1"
    if not late1:
        for g_ in item1(1, pitch): P.add(g_)
    P(f"s_lshl_b32 {s(sT0)}, {s(sRT)}, 4\ns_add_u32 {s(sT0)}, {s(sT0)}, {s(sG)}\ns_lshl_b32 {s(sT0)}, {s(sT0)}, 7")
    P(f"s_and_b32 {s(sT1)}, {s(sW)}, 2\ns_lshl_b32 {s(sT1)}, {s(sT1)}, 3\ns_add_u32 {s(sT0)}, {s(sT0)}, {s(sT1)}\ns_and_b32 {s(sT1)}, {s(sW)}, 1\ns_lshl_b32 {s(sT1)}, {s(sT1)}, 2\ns_add_u32 {s(sT0)}, {s(sT0)}, {s(sT1)}\ns_lshl_b32 {s(sT1)}, {s(sHALF)}, 3\ns_add_u32 {s(sT0)}, {s(sT0)}, {s(sT1)}")
    if V3: P(f"s_and_b32 {s(sT1)}, {s(sW)}, 2\ns_lshl_b32 {s(sT1)}, {s(sT1)}, 3\ns_add_u32 {s(sT0)}, {s(sT0)}, {s(sT1)}\ns_and_b32 {s(sT1)}, {s(sG)}, 1\ns_mul_i32 {s(sT1)}, {s(sT1)}, 112\ns_sub_u32 {s(sT0)}, {s(sT0)}, {s(sT1)}")
    P(f"s_add_u32 {s(sFO)}, {s(sT0)}, {WS_FLG + (1024 if ffn else 0)}")
    P(f"s_lshl_b32 {s(sT0)}, {s(sRT)}, 2\ns_add_u32 {s(sT0)}, {s(sT0)}, {s(sW34)}\ns_mul_i32 {s(sHo)}, {s(sT0)}, {HF_RB}")
    if ffn:
        P(f"v_and_b32 v5, 31, {v(vL)}\nv_lshlrev_b32 v5, 1, v5")
        P(f"s_lshl_b32 {s(sT0)}, {s(sHALF)}, 6\ns_add_u32 {s(sT0)}, {s(sT0)}, {s(sWq)}")
        for i in range(3): P(f"buffer_load_ushort {v(BIAS+i)}, v5, {s(SAUX,4)}, {s(sT0)} offen offset:{128*i}")
        P(f"s_lshl_b32 {s(sT0)}, {s(sT0)}, 5\ns_add_u32 {s(sH0)}, {s(sHo)}, {s(sT0)}")
        P(f"s_mul_i32 {s(sW3)}, {s(sG)}, 448\ns_add_u32 {s(sT0)}, {s(sW3)}, 384\ns_bitcmp1_b32 {s(sG)}, 0\ns_cselect_b32 {s(sW3)}, {s(sW3)}, {s(sT0)}")
        P(f"s_lshl_b32 {s(sT0)}, {s(sHALF)}, 5\nv_xor_b32 v5, {s(sT0)}, v5")
        P(f"buffer_load_ushort {v(BIAS+3)}, v5, {s(SAUX,4)}, {s(sW3)} offen")
        P(f"s_add_u32 {s(sT0)}, {s(sT0)}, {s(sW3)}\ns_lshl_b32 {s(sT0)}, {s(sT0)}, 5\ns_add_u32 {s(sH3)}, {s(sHo)}, {s(sT0)}")
        P(f"v_lshrrev_b32 v2, 2, {v(vL)}\nv_and_b32 v4, 3, {v(vL)}\nv_lshlrev_b32 v4, 4, v4\nv_mul_u32_u24 {v(VW3)}, {pitch}, v2\nv_add_u32 {v(VW3)}, {v(VW3)}, v4")
    else:
        P(f"s_cmp_lt_u32 {s(sW)}, 2")
        P(f"s_cbranch_scc0 L_nphi")
        P.cond_begin("w01")
        P(f"s_lshl_b32 {s(sT0)}, {s(sG)}, 11\ns_lshl_b32 {s(sT1)}, {s(sW)}, 10\ns_add_u32 {s(sT0)}, {s(sT0)}, {s(sT1)}\ns_add_u32 m0, {s(sT1)}, {L_WPHI}\ns_nop 0")
        P(f"buffer_load_dwordx4 {v(VL16)}, {s(SAUX,4)}, {s(sT0)} offen lds")
        P.cond_end()
        P("L_nphi:")
        P(f"s_mov_b64 {s(SAUX,2)}, {s(sA0,2)}\ns_mov_b32 {s(SAUX+2)}, 1835008")
    P(f"s_mul_i32 {s(sT0)}, {s(sW34)}, {16*pitch}\ns_add_u32 {s(sWq)}, {s(sWq)}, {s(sT0)}")
    P(f"v_add_u32 {v(VW)}, {s(sWq)}, {v(VW)}")
    if ffn: P(f"s_add_u32 {s(sW3)}, {s(sW3)}, {s(sT0)}\nv_add_u32 {v(VW3)}, {s(sW3)}, {v(VW3)}")
    P(f"s_add_u32 {s(sT0)}, {s(sROT)}, {s(sHALF)}")
    for q in range(4):
        P(f"s_add_u32 {s(sT1)}, {s(sT0)}, {2*q}\ns_and_b32 {s(sT1)}, {s(sT1)}, 7\ns_mul_i32 {s(sQ[q])}, {s(sT1)}, {64*pitch}")
    P(f"s_mov_b32 {s(sT3)}, {f2u(1.0/512):#x}\ns_mov_b32 {s(sONE)}, 0x3f803f80")
    P(f"v_bfe_u32 {v(T)}, {v(vL)}, 2, 2\nv_lshrrev_b32 {v(T+1)}, 5, {v(vL)}")
    P(f"v_bfe_u32 {v(T+2)}, {v(vL)}, 4, 1\nv_lshlrev_b32 {v(T+2)}, 5, {v(T+2)}\nv_and_b32 {v(T+3)}, 3, {v(vL)}\nv_lshl_add_u32 {v(T+2)}, {v(T+3)}, 3, {v(T+2)}")
    P(f"v_and_b32 {v(T+4)}, 31, {v(vL)}\nv_bfe_u32 {v(T+5)}, {v(vL)}, 1, 3\nv_xor_b32 {v(T+5)}, {v(T+5)}, {v(T+1)}")
    P(f"s_lshl_b32 {s(sT0)}, {s(sW34)}, 12\nv_lshlrev_b32 {v(T+8)}, 7, {v(T+4)}\nv_add_u32 {v(T+8)}, {s(sT0)}, {v(T+8)}")
    P(f"v_lshl_add_u32 {v(T+9)}, {v(T+1)}, 3, {v(T)}\nv_lshl_add_u32 {v(T+10)}, {v(T+9)}, 7, {v(T+2)}\nv_lshrrev_b32 {v(T+7)}, 1, {v(T)}\nv_xor_b32 {v(T+7)}, {s(sHALF)}, {v(T+7)}\nv_lshl_add_u32 {v(T+10)}, {v(T+7)}, 6, {v(T+10)}")
    for p in range(4):
        P(f"s_xor_b32 {s(sT0)}, {s(sSIG)}, {p}\ns_lshl_b32 {s(sT1)}, {s(sT0)}, 1\nv_xor_b32 {v(T+6)}, {s(sT1)}, {v(T+5)}\nv_lshl_add_u32 {v(AX+p)}, {v(T+6)}, 4, {v(T+8)}")
        P(f"s_lshl_b32 {s(sT1)}, {s(sT0)}, 11\ns_add_u32 {s(sT1)}, {s(sT1)}, {RB}\nv_add_u32 {v(AW+p)}, {s(sT1)}, {v(T+10)}")
    if ffn:
        P(f"s_lshl_b32 {s(sT0)}, {s(sHALF)}, 5\nv_xor_b32 {v(T+7)}, {s(sT0)}, {v(T+2)}\nv_lshl_add_u32 {v(T+7)}, {v(T+9)}, 6, {v(T+7)}")
        for i, p in enumerate((0, 2)):
            P(f"s_xor_b32 {s(sT0)}, {s(sSIG)}, {p}\ns_lshl_b32 {s(sT0)}, {s(sT0)}, 10\nv_add_u32 {v(AB+i)}, {s(sT0)}, {v(T+7)}")
    P(f"v_lshlrev_b32 {v(T+4)}, 4, {v(T+4)}")
    P(f"s_lshl_b32 {s(sT0)}, {s(sHALF)}, 9\ns_add_u32 {s(sT0)}, {s(sT0)}, {L_CS}\nv_add_u32 {v(VCSA)}, {s(sT0)}, {v(T+4)}")
    P(f"s_lshl_b32 {s(sT0)}, {s(sW34)}, 9\ns_add_u32 {s(sT0)}, {s(sT0)}, {L_ST}\nv_add_u32 {v(VSTA)}, {s(sT0)}, {v(T+4)}")
    P(f"v_lshrrev_b32 {v(T+4)}, 2, {v(vL)}\nv_xor_b32 {v(T+4)}, {v(T+4)}, {v(vL)}\nv_and_b32 {v(T+4)}, 4, {v(T+4)}\nv_cmp_eq_u32 vcc, 0, {v(T+4)}\nv_mov_b32 {v(T+4)}, {s(sONE)}")
    for i in range(4): P(f"v_mov_b32 {v(PZ+i)}, -1")
    for r in (VZ, BAUG+3, AAUG+2, AAUG+3): P(f"v_mov_b32 {v(r)}, 0")
    for i in range(4): P(f"v_cndmask_b32 {v(SEL+i)}, 0, {v(T+4)}, vcc")
    P(f"s_lshl_b32 {s(sW34)}, {s(sW34)}, 2")
    if late1:
        for g_ in item1(1, pitch): P.add(g_)
    if OPT.get("stouch", "0") == "2": stouch()
    if V2:
        P(f"v_lshrrev_b32 {v(T)}, 4, {v(vL)}\nv_lshlrev_b32 {v(T+1)}, 2, {v(T)}\nv_and_b32 {v(T+2)}, 15, {v(vL)}\nv_xor_b32 {v(T+2)}, {v(T+2)}, {v(T+1)}\nv_lshlrev_b32 {v(T+2)}, 4, {v(T+2)}\nv_lshl_add_u32 {v(VB)}, {v(T)}, 10, {v(T+2)}")
        P(f"s_lshl_b32 {s(sT2)}, {s(sM)}, 1\ns_add_u32 {s(sT2)}, {s(sT2)}, {s(sHALF)}")
        P(f"s_lshl_b32 {s(sT0)}, {s(sN)}, 8\ns_lshl_b32 {s(sT1)}, {s(sW34)}, 10\ns_add_u32 {s(sT1)}, {s(sT1)}, {s(sT0)}")
        P(f"s_mul_i32 {s(sB2o)}, {s(sT2)}, {224*1024}\ns_add_u32 {s(sB2o)}, {s(sB2o)}, {s(sT1)}\ns_lshl_b32 {s(sBOo)}, {s(sT2)}, 16\ns_add_u32 {s(sBOo)}, {s(sBOo)}, {s(sT1)}")
        P(f"s_mul_i32 {s(sA0)}, {s(sT2)}, {14*1024}\ns_add_u32 {s(sA0)}, {s(sA0)}, {s(sHo)}\ns_lshl_b32 {s(sA1)}, {s(sT2)}, 12\ns_add_u32 {s(sA1)}, {s(sA1)}, {s(sHo)}\ns_add_u32 {s(sA1)}, {s(sA1)}, {112*1024}")
        P(f"s_lshl_b32 {s(sT1)}, {s(sRT)}, 4\ns_add_u32 {s(sT1)}, {s(sT1)}, {s(sT2)}\ns_lshl_b32 {s(sT1)}, {s(sT1)}, 7\ns_and_b32 {s(sFL)}, {s(sW)}, 2\ns_lshl_b32 {s(sFL)}, {s(sFL)}, 3\ns_add_u32 {s(sFL)}, {s(sFL)}, {s(sT1)}\ns_add_u32 {s(sFL)}, {s(sFL)}, {WS_FLG}")
        P(f"s_mul_i32 {s(sR4)}, {s(sN)}, 5\ns_lshr_b32 {s(sR4)}, {s(sR4)}, 1\ns_add_u32 {s(sR4)}, {s(sR4)}, {s(sRT)}\ns_and_b32 {s(sR4)}, {s(sR4)}, 7")
        P(f"s_lshl_b32 {s(sT2)}, {s(sT2)}, 5\ns_add_u32 {s(sN)}, {s(sT0)}, {s(sT2)}")
        P(f"s_lshl_b32 {s(sOo)}, {s(sRT)}, 17\ns_lshl_b32 {s(sT1)}, {s(sW34)}, 13\ns_add_u32 {s(sOo)}, {s(sOo)}, {s(sT1)}\ns_add_u32 {s(sOo)}, {s(sOo)}, {s(sN)}")
        P(f"s_and_b32 {s(sSH)}, {s(sW)}, 1\ns_lshl_b32 {s(sSH)}, {s(sSH)}, 1\ns_lshl_b32 {s(sSK)}, {s(sHALF)}, 1")
        P(f"s_lshl_b32 {s(sMB)}, {s(sHALF)}, 13\ns_lshl_b32 {s(sT1)}, {s(sW34)}, 8\ns_add_u32 {s(sMB)}, {s(sMB)}, {s(sT1)}")
        if V3:
            P(f"s_lshl_b32 {s(sT0)}, {s(sSH)}, 4\nv_xor_b32 {v(VB)}, {s(sT0)}, {v(VB)}")
            P(f"s_mul_i32 {s(sT0)}, {s(sHALF)}, {14*1024}\ns_sub_u32 {s(sA0)}, {s(sA0)}, {s(sT0)}\ns_lshl_b32 {s(sT0)}, {s(sHALF)}, 12\ns_sub_u32 {s(sA1)}, {s(sA1)}, {s(sT0)}")
            P(f"s_lshl_b32 {s(sT0)}, {s(sHALF)}, 7\ns_sub_u32 {s(sFL)}, {s(sFL)}, {s(sT0)}\ns_and_b32 {s(sT0)}, {s(sW)}, 2\ns_lshl_b32 {s(sT0)}, {s(sT0)}, 3\ns_add_u32 {s(sFL)}, {s(sFL)}, {s(sT0)}")
        return
    P(f"s_lshl_b32 {s(sT0)}, {s(sN)}, 7\ns_mul_i32 {s(sB2o)}, {s(sW)}, {224*1024}\ns_add_u32 {s(sB2o)}, {s(sB2o)}, {s(sT0)}")
    P(f"s_lshl_b32 {s(sBOo)}, {s(sW)}, 16\ns_add_u32 {s(sBOo)}, {s(sBOo)}, {s(sT0)}\ns_lshl_b32 {s(sM4)}, {s(sW)}, 12")
    P(f"s_lshl_b32 {s(sOo)}, {s(sM)}, 16\ns_lshl_b32 {s(sT1)}, {s(sW)}, 13\ns_add_u32 {s(sOo)}, {s(sOo)}, {s(sT1)}\ns_add_u32 {s(sOo)}, {s(sOo)}, {s(sT0)}")
    if OPT.get("r8", "1") == "1":
        P(f"s_mul_i32 {s(sT0)}, {s(sM)}, 5\ns_lshr_b32 {s(sT0)}, {s(sT0)}, 1\ns_sub_u32 {s(sN)}, {s(sN)}, {s(sM)}\ns_add_u32 {s(sR4)}, {s(sN)}, {s(sT0)}\ns_add_u32 {s(sN)}, {s(sN)}, {s(sM)}")
    else: P(f"s_mov_b32 {s(sR4)}, {s(sN)}")
    P(f"s_add_u32 {s(sR4)}, {s(sM)}, {s(sR4)}\ns_and_b32 {s(sR4)}, {s(sR4)}, {0 if OPT.get('norot') else 7}\ns_and_b32 {s(sSH)}, {s(sW)}, 1\ns_lshl_b32 {s(sSH)}, {s(sSH)}, 1")
    P(f"s_lshr_b32 {s(sT0)}, {s(sM)}, 1\ns_lshl_b32 {s(sT0)}, {s(sT0)}, 4\ns_add_u32 {s(sT0)}, {s(sT0)}, {s(sW)}\ns_lshl_b32 {s(sT0)}, {s(sT0)}, 7")
    P(f"s_and_b32 {s(sT1)}, {s(sM)}, 1\ns_lshl_b32 {s(sT1)}, {s(sT1)}, 4\ns_add_u32 {s(sT0)}, {s(sT0)}, {s(sT1)}\ns_add_u32 {s(sFL)}, {s(sT0)}, {WS_FLG}")
    P(f"s_mul_i32 {s(sA0)}, {s(sM)}, {2*HF_RB}\ns_mul_i32 {s(sT0)}, {s(sW)}, {14*1024}\ns_add_u32 {s(sA1)}, {s(sA0)}, {s(sM4)}\ns_add_u32 {s(sA1)}, {s(sA1)}, {112*1024}\ns_add_u32 {s(sA0)}, {s(sA0)}, {s(sT0)}")

class Sched:
    def __init__(self, n):
        self.n = n; self.pre = [[] for _ in range(n)]; self.post = [[] for _ in range(n)]
        self.fill = [[] for _ in range(n)]; self.dma = [[] for _ in range(n)]; self.blk = {}
    def spread(self, lst, a, b):
        for i in range(a, b): self.fill[i] += lst[len(lst)*(i-a)//(b-a): len(lst)*(i+1-a)//(b-a)]
    def dmas(self, groups, a, step=1):
        for i, g in enumerate(groups): self.dma[a + i*step] += g

def rd(G):
    b = WF + 4 * (G & 3)
    if G < 96:
        ks = G & 31; st, p = ks >> 2, ks & 3
        L = [f"ds_read_b128 {v(XF+4*ks,4)}, {v(AX+p)} offset:{RA+(st&3)*16384}"] if G < 32 else []
        if ks < 4 and G >= 32: L.append(f"v_xor_b32 {v(AW+p)}, {RB}, {v(AW+p)}")
        return L + [f"ds_read_b64_tr_b16 {v(b+2*t,2)}, {v(AW+p)} offset:{8192*st+512*t}" for t in range(2)]
    i = G - 96
    return [f"ds_read_b64_tr_b16 {v(b+2*t,2)}, {v(AB+(i&1))} offset:{4096*(i>>1)+256*t}" for t in range(2)]
def xq(G): return XF + 4 * (G & 31) if G < 96 else XF + 8 * (G - 96)

def common_sched(S, ffn, accs, MC):
    pitch = 3584 if ffn else 3072
    tp = "f" if ffn else "a"
    c1, c2 = (128, 256) if ffn else (2048, 0)
    S.dmas(item1(2, pitch), 0, 0)
    for st in range(8):
        G = 4 * st + 2
        S.pre[G] += [f".waitvm it{st+1}" if st < 7 else ".waitvm w1q0 lgkm0", "s_barrier"]
        if st <= 4: S.dmas(item1(st + 3, pitch), G)
        else: S.dmas(wquarter(RA, st - 5, c1, pitch, f"w1q{st-5}"), G)
    def m4(d, r, c=None): return f"v_mfma_f32_4x4x4_16b_bf16 {v(d,4)}, {v(r,2)}, {v(r,2)}, {v(d,4) if c is None else c}"
    Q0, Q1 = T + 8, T + 16
    for f in range(0, 32, 2):
        x = XF + 4 * f; a = max(f - 1, 0); c = "0" if f == 0 else None
        if OPT.get("hyb", "0") == "1":
            b = f if f < 30 else 29
            S.post[a] += [m4(Q0, x, c), m16(MS, SEL, x, c)]
            for r, G in ((x + 2, a), (x + 3, b)):
                S.post[G] += [f"v_and_b32 {v(Q1+2)}, 0xffff0000, {v(r)}", f"v_lshlrev_b32 {v(Q1+3)}, 16, {v(r)}",
                              f"v_fmac_f32 {v(Q1)}, {v(Q1+2)}, {v(Q1+2)}", f"v_fmac_f32 {v(Q1+1)}, {v(Q1+3)}, {v(Q1+3)}"]
        else: S.post[a] += [m4(Q0, x, c), m4(Q1, x + 2, c), m16(MS, SEL, x, c)]
    S.post[28] += [f"v_and_b32 {v(S1)}, 3, {v(vL)}", f"v_cmp_eq_u32 {s(sEX,2)}, 1, {v(S1)}", f"s_lshl_b32 {s(sT0)}, {s(sHALF)}, 3",
                   f"v_add_u32 {v(T)}, {s(sT0)}, {v(VSTA)}"]
    if OPT.get("hyb", "0") == "1":
        S.pre[0] += [f"v_mov_b32 {v(Q1)}, 0", f"v_mov_b32 {v(Q1+1)}, 0"]
        S.post[29] += [f"v_add_f32 {v(Q1)}, {v(Q1)}, {v(Q1+1)}"]
    else: S.post[29] += [f"v_add_f32 {v(Q0+i)}, {v(Q0+i)}, {v(Q1+i)}" for i in range(4)]
    S.post[29] += [f"v_cmp_eq_u32 vcc, 2, {v(S1)}", f"v_cndmask_b32 {v(S2)}, {v(Q0)}, {v(Q0+1)}, {s(sEX,2)}", f"v_cmp_eq_u32 {s(sEX,2)}, 3, {v(S1)}",
                   f"v_cndmask_b32 {v(S2)}, {v(S2)}, {v(Q0+2)}, vcc", f"v_cndmask_b32 {v(S2)}, {v(S2)}, {v(Q0+3)}, {s(sEX,2)}"] + ([f"v_add_f32 {v(S2)}, {v(S2)}, {v(Q1)}"] if OPT.get("hyb", "0") == "1" else []) + [
                   f"v_mov_b32 {v(S1)}, {v(S2)}", f"v_permlane32_swap_b32 {v(S1)}, {v(S2)}",
                   f"v_add_f32 {v(MS+1)}, {v(S1)}, {v(S2)}", f"ds_write_b64 {v(T)}, {v(MS,2)}"]
    S.post[30] += [f"ds_read_b128 {v(MS,4)}, {v(VSTA)}"]
    for ps in range(3):
        for st in range(8):
            G = 32 * ps + 4 * st
            S.post[G] += [m16(MC, SEL, WF + 4 * (G & 3), "0" if st == 0 else None)]
        S.post[32*ps + 29] += [f"v_add_u32 {v(MC+1)}, {s(sW34)}, {v(VCSA)}", f"ds_write_b32 {v(MC+1)}, {v(MC)} offset:{1024*ps}"]
    FEW = OPT.get("few", "1") == "1"
    if FEW: S.pre[38] += [".waitvm w1q3", "s_barrier"]
    else:
        for q in (1, 2, 3): S.pre[32 + 8*q - 2] += [f".waitvm w1q{q}", "s_barrier"]
    w2 = sum([wquarter(RB, q, c2, pitch, "w2") for q in range(4)], [])
    for g_, G in zip(wquarter(RA, 3, c1, pitch, "w1q3") + w2, [int(x) for x in OPT.get("w2g", "32,33,35,37,38,40,41,43,44,46").split(",")]): S.dma[G] += g_
    S.pre[62] += [".waitvm w2 lgkm0", "s_barrier"]
    for G in ((int(OPT.get("fb", 82)),) if ffn else (int(OPT.get("ab", 86)),)): S.pre[G] += ["s_barrier"]
    if ffn:
        S.post[int(OPT.get("f1", 90))] += flag(1, "h1")
        S.post[int(OPT.get("p1", 99))] += [spoll(0)]; S.blk[("e", int(OPT.get("c1", 105)))] = lambda: (sneed(1, 0), P(spoll(1)))
    else:
        S.post[int(OPT.get("fa", 80))] += flag(1, "po")
    if OPT.get("l2t", "0") == "1":
        tg = [int(x) for x in OPT.get("l2gf" if ffn else "l2ga", "52,62,66,70,74" if ffn else "48,52,56,60,64").split(",")]
        DUM = VX0 if False else VW0
        for j in range(5):
            if j < 3:
                L = [f"s_lshr_b32 {s(sT0)}, s2, 3", f"s_mul_i32 {s(sT0)}, {s(sT0)}, 3", f"s_lshl_b32 {s(sT1)}, {s(sSH)}, 4", f"s_add_u32 {s(sT0)}, {s(sT0)}, {s(sT1)}",
                     f"s_add_u32 {s(sT0)}, {s(sT0)}, {128+j}", f"s_sub_u32 {s(sT1)}, {s(sT0)}, 224", f"s_min_u32 {s(sT0)}, {s(sT0)}, {s(sT1)}",
                     f"s_mul_i32 {s(sT1)}, {s(sW)}, 224", f"s_add_u32 {s(sT0)}, {s(sT0)}, {s(sT1)}", f"s_lshl_b32 {s(sT0)}, {s(sT0)}, 10",
                     f"buffer_load_dword {v(VTD)}, {v(VL16)}, {s(SW2,4)}, {s(sT0)} offen ; nodef"]
            else:
                L = [f"s_lshr_b32 {s(sT0)}, s2, 3", f"s_lshl_b32 {s(sT0)}, {s(sT0)}, 11", f"s_lshl_b32 {s(sT1)}, {s(sW)}, 16", f"s_add_u32 {s(sT0)}, {s(sT0)}, {s(sT1)}",
                     f"buffer_load_dword {v(VTD)}, {v(VL16)}, {s(SWO,4)}, {s(sT0)} offen offset:{1024*(j-3)} ; nodef"]
            S.dma[tg[j]] += L
    if (OPT.get("touch", "5") == "5" and not ffn) or (OPT.get("touch") == "6" and ffn):
        tg = [int(x) for x in OPT.get("tgs", "54,56,58,60,62").split(",")]
        gw = [f"s_and_b32 {s(sT0)}, {s(sRT)}, 7", f"s_lshl_b32 {s(sT0)}, {s(sT0)}, 1", f"s_and_b32 {s(sT1)}, {s(sG)}, 1", f"s_add_u32 {s(sT0)}, {s(sT0)}, {s(sT1)}",
              f"s_lshl_b32 {s(sT0)}, {s(sT0)}, 3", f"s_add_u32 {s(sK)}, {s(sT0)}, {s(sW)}"]
        for j in range(4):
            S.dma[tg[j]] += (gw if j == 0 else []) + [f"s_add_u32 {s(sT0)}, {s(sK)}, {128*j}", f"s_min_u32 {s(sT0)}, {s(sT0)}, 447", f"s_mul_i32 {s(sT1)}, {s(sM)}, 448", f"s_add_u32 {s(sT0)}, {s(sT0)}, {s(sT1)}",
                                  f"s_lshl_b32 {s(sT0)}, {s(sT0)}, 10", f"buffer_load_dword {v(VTD)}, {v(VL16)}, {s(SW2,4)}, {s(sT0)} offen ; nodef"]
        S.dma[tg[4]] += [f"s_lshl_b32 {s(sT1)}, {s(sM)}, 7", f"s_add_u32 {s(sT0)}, {s(sK)}, {s(sT1)}",
                         f"s_lshl_b32 {s(sT0)}, {s(sT0)}, 10", f"buffer_load_dword {v(VTD)}, {v(VL16)}, {s(SWO,4)}, {s(sT0)} offen ; nodef"]
        S.dma[tg[4]] += [f"buffer_load_dword {v(VTD)}, {v(VL16)}, {s(SB2,4)}, 0 offen ; nodef"]
        if OPT.get("t3", "0") == "1":
            S.dma[int(OPT.get("t3g", 49))] += gw + [f"s_mul_i32 {s(sT0)}, {s(sK)}, {4*3584}", f"s_mul_i32 {s(sT1)}, {s(sM)}, 896", f"s_add_u32 {s(sT0)}, {s(sT0)}, {s(sT1)}",
                f"v_and_b32 {v(VTD)}, 3, {v(vL)}", f"v_mul_u32_u24 {v(VTD)}, 3584, {v(VTD)}", f"buffer_load_dword {v(VTD)}, {v(VTD)}, {s(SAUX,4)}, {s(sT0)} offen offset:384 ; nodef"]
    if OPT.get("touch") == "4":
        tg = [int(x) for x in OPT.get("tgs", "47,49,52").split(",")]
        gw = [f"s_and_b32 {s(sT0)}, s2, 0xf8", f"s_add_u32 {s(sT0)}, {s(sT0)}, {s(sW)}"]
        for j in range(2):
            S.dma[tg[j]] += gw + [f"s_add_u32 {s(sT0)}, {s(sT0)}, {256*j}", f"s_min_u32 {s(sT0)}, {s(sT0)}, 447", f"s_mul_i32 {s(sT1)}, {s(sM)}, 448", f"s_add_u32 {s(sT0)}, {s(sT0)}, {s(sT1)}",
                                  f"s_lshl_b32 {s(sT0)}, {s(sT0)}, 10", f"buffer_load_dword {v(VTD)}, {v(VL16)}, {s(SW2,4)}, {s(sT0)} offen ; nodef"]
        S.dma[tg[2]] += gw + [f"s_lshr_b32 {s(sT0)}, {s(sT0)}, 1", f"s_lshl_b32 {s(sT1)}, {s(sM)}, 7", f"s_add_u32 {s(sT0)}, {s(sT0)}, {s(sT1)}",
                              f"s_lshl_b32 {s(sT0)}, {s(sT0)}, 10", f"buffer_load_dword {v(VTD)}, {v(VL16)}, {s(SWO,4)}, {s(sT0)} offen ; nodef"]
    if OPT.get("touch", "5") == "3":
        def mtouch():
            n0 = len(P.ins)
            P(f"s_cmp_lt_u32 {s(sW)}, 6")
            P(f"s_cbranch_scc1 L_mt{tp}")
            P.cond_begin("w67")
            P(f"v_lshlrev_b32 {v(T+1)}, 7, {v(vL)}\ns_mul_i32 {s(sT0)}, s2, 7168\ns_lshl_b32 {s(sT1)}, s2, 11")
            P(f"s_cmp_eq_u32 {s(sW)}, 6\ns_cbranch_scc0 L_mta{tp}")
            P(f"buffer_load_dword {v(T+2)}, {v(T+1)}, {s(SW2,4)}, {s(sT0)} offen")
            P(f"s_branch L_mt{tp}")
            P(f"L_mta{tp}:")
            P(f"v_and_b32 {v(T+1)}, 2047, {v(T+1)}")
            P(f"buffer_load_dword {v(T+2)}, {v(T+1)}, {s(SWO,4)}, {s(sT1)} offen")
            P(f"buffer_load_dword {v(T+3)}, {v(T+1)}, {s(SB2,4)}, 0 offen")
            P.cond_end()
            P(f"L_mt{tp}:")
        S.blk[("e", int(OPT.get("tg", 5)))] = mtouch
    if OPT.get("wt", "2") == "2":
        S.dma[int(OPT.get("wg", 5))] += [f"v_mul_u32_u24 {v(T+1)}, {pitch}, {v(vL)}", f"buffer_load_dword {v(T+2)}, {v(T+1)}, {s(SWT,4)}, {s(sCNT)} offen"]
    def announce():
        P(f"s_lshl_b32 {s(sT0)}, {s(sW)}, 8\ns_add_u32 {s(sT0)}, {s(sT0)}, s2\ns_sub_u32 {s(sT0)}, {s(sT0)}, 256\ns_cmp_lt_u32 {s(sT0)}, 8")
        P(f"s_cbranch_scc0 L_nd")
        P.cond_begin("zw")
        P(".waitvm zf")
        P(f"s_lshl_b32 {s(sT0)}, s2, 2\nv_mov_b32 {v(VFV)}, 1")
        P(f"buffer_store_dword {v(VFV)}, {v(VZ)}, {s(SDBG,4)}, {s(sT0)} offen sc1")
        P.cond_end()
        P(f"L_nd:")
    if not ffn: S.blk[3] = announce
    ld = f"v_and_b32 {v(VX0)}, 28, {v(vL)}\nbuffer_load_dword {v(VX0)}, {v(VX0)}, {s(SDBG,4)}, 0 offen sc1"
    def poll0():
        P(f"s_cmp_eq_u32 {s(sW)}, 7"); P(f"s_cbranch_scc0 L_np{tp}")
        P.cond_begin("w7")
        P(ld)
        P.cond_end(); P(f"L_np{tp}:")
    def check0():
        P(f"s_cmp_eq_u32 {s(sW)}, 7"); P(f"s_cbranch_scc0 L_nc{tp}")
        P.cond_begin("w7")
        P(f"v_mov_b32 {v(VX0)}, {v(VX0)}")
        spin(f"L_ncs{tp}", ld, f"v_cmp_ne_u32 vcc, 1, {v(VX0)}")
        P.cond_end(); P(f"L_nc{tp}:")
    S.blk[39] = poll0; S.blk[62] = check0

def run_sched(S, accs):
    P(".waitvm it0")
    P("s_barrier")
    stamp("it0")
    P.add(rd(0)); P.add(rd(1))
    for G in range(S.n):
        stamp(f"g{G}")
        if G in S.blk: S.blk[G]()
        late = OPT.get("bam", "1") == "1" and G >= 32
        if not late: P.add(S.pre[G])
        if OPT.get("prio", "1") == "1": P(f"s_setprio {3 - ((G + 2) & 3)}")
        if OPT.get("prio") == "2" and (G < 32 or G % 2 == 0): P(f"s_setprio {3 - ((G + 2) & 3) if G < 32 else 3 - ((G >> 1) & 3)}")
        first = G in (0, 32, 64, 96)
        P(mfma(accs[G >> 5], WF + 4 * (G & 3), xq(G), "0" if first else None))
        if late: P.add(S.pre[G])
        if G + 2 < S.n: P.add(rd(G + 2))
        P.add(S.post[G]); P.add(S.fill[G]); P.add(S.dma[G])
        if ("e", G) in S.blk: S.blk[("e", G)]()
    P("s_setprio 0")

AC = 64; NAF = 8
def AFq(kk, rb): return XF + 4 + 8 * (2 * (kk % NAF) + rb)
def BTq(kk, nb): return XF + 8 * (2 * (kk & 3) + nb)
BA = 2
VXR, VRED = 9, 10
VWR = 20
XR, B2R = 32, 36
def AF2(kk): return XF + 4 + 8 * (kk % 16)
def BT2(kk, nb): return XF + 8 * (4 * (kk & 1) + nb)
def xoff(j, send):
    return ([f"s_xor_b32 {s(sT0)}, s2, {j}", f"s_mul_i32 {s(sT0)}, {s(sT0)}, {3*8192}"] if send else [f"s_mul_i32 {s(sT0)}, s2, {3*8192}"]) + \
           [f"s_lshl_b32 {s(sT1)}, {s(sW)}, 10", f"s_add_u32 {s(sT0)}, {s(sT0)}, {s(sT1)}", f"s_add_u32 {s(sT0)}, {s(sT0)}, {WS_X + (j-1)*8192}"]
VA3 = 14
def AF3(st, sh):
    if st < 8: return XF + 4 + 8 * (2 * st + sh)
    if st < 12: return XF + 64 + 8 * (2 * (st - 8) + sh)
    if st < 16: return 96 + 4 * (2 * (st - 12) + sh)
    return XF + 4 + 8 * (2 * (st - 16) + sh)
va3_init = lines(f"v_and_b32 {v(VA3)}, 15, {v(vL)}\nv_lshlrev_b32 {v(VA3)}, 4, {v(VA3)}\nv_lshrrev_b32 {v(T+19)}, 4, {v(vL)}\nv_lshl_add_u32 {v(VA3)}, {v(T+19)}, 9, {v(VA3)}")
def a_jobs(kk):
    if V3:
        sg, gm = kk >> 1, kk & 1
        so, gs = (sA0, 14 * 1024) if sg < 7 else (sA1, 4096)
        return [rot_p(sg, sD1, gm) + [f"s_lshl_b32 {s(sD1)}, {s(sD1)}, 11", f"s_add_u32 {s(sD1)}, {s(sD1)}, {s(so)}"] + ([f"s_add_u32 {s(sD1)}, {s(sD1)}, {gs}"] if gm else []) +
                [f"buffer_load_dwordx4 {v(AF3(kk,0),4)}, {v(VA3)}, {s(SWS,4)}, {s(sD1)} offen sc1"],
                [f"buffer_load_dwordx4 {v(AF3(kk,1),4)}, {v(VA3)}, {s(SWS,4)}, {s(sD1)} offen offset:256 sc1"]]
    so = sA0 if kk < 14 else sA1
    if V2: return [rot_k(kk, sD1) + [f"s_lshl_b32 {s(sD1)}, {s(sD1)}, 10", f"s_add_u32 {s(sD1)}, {s(sD1)}, {s(so)}",
             f"buffer_load_dwordx4 {v(AF2(kk),4)}, {v(VL16)}, {s(SWS,4)}, {s(sD1)} offen sc1"] +
             ([f"s_xor_b32 {s(sD1)}, {s(sD1)}, 0x8000", f"buffer_load_dwordx4 v[252:255], {v(VL16)}, {s(SWS,4)}, {s(sD1)} offen sc1 ; nodef"] if OPT.get("dbla") and kk != 15 else [])]
    return [rot_k(kk, sD1) + [f"s_lshl_b32 {s(sD1)}, {s(sD1)}, 10", f"s_add_u32 {s(sD1)}, {s(sD1)}, {s(so)}",
             f"buffer_load_dwordx4 {v(AFq(kk,0),4)}, {v(VL16)}, {s(SWS,4)}, {s(sD1)} offen sc1"],
            [f"s_add_u32 {s(sD1)}, {s(sD1)}, {HF_RB}",
             f"buffer_load_dwordx4 {v(AFq(kk,1),4)}, {v(VL16)}, {s(SWS,4)}, {s(sD1)} offen sc1"]]
def vcheck(regs, t):
    L = [f"v_max3_u32 {v(t)}, {v(regs[0])}, {v(regs[1])}, {v(regs[2])}"]; r = regs[3:]
    while len(r) >= 2: L.append(f"v_max3_u32 {v(t)}, {v(t)}, {v(r[0])}, {v(r[1])}"); r = r[2:]
    if r: L.append(f"v_max_u32 {v(t)}, {v(t)}, {v(r[0])}")
    return L + [f"v_cmp_eq_u32 vcc, -1, {v(t)}"]
SLOW = []
def validate(regs, t, reload):
    lb = P.lab("L_v")
    P.add(vcheck(regs, t))
    P(f"s_cbranch_vccnz {lb}_slow")
    P(f"{lb}_back:")
    dbg = [f"s_add_u32 {s(sST+2*STI['slow'])}, {s(sST+2*STI['slow'])}, {1 << len(SLOW)}"] if STAMP and "slow" in STI else []
    SLOW.append([f"{lb}_slow:"] + dbg + [f"s_mov_b32 {s(sCNT)}, 0", f"{lb}_loop:", "s_sleep 2"] + reload + ["s_waitcnt vmcnt(0)"] + vcheck(regs, t) +
                [f"s_add_u32 {s(sCNT)}, {s(sCNT)}, 1", f"s_cbranch_vccz {lb}_back", f"s_cmp_gt_u32 {s(sCNT)}, {SPIN_MAX}",
                 f"s_cbranch_scc0 {lb}_loop", f"s_branch {lb}_back"])
def flush_slow():
    for blk in SLOW:
        P(".reset"); P.add(blk)
    SLOW.clear()
def spoll(o):
    x = f"s_buffer_load_dwordx4 {s(sPL,4)}, {s(SWS,4)}, {s(sFL)} offset:{0 if o else 1024} glc"
    if V3: x = f"s_buffer_load_dwordx8 {s(sPL,8)}, {s(SWS,4)}, {s(sFL)} offset:{0 if o else 1024} glc"
    return x
def sneed(level, o):
    lb = P.lab("L_sp")
    P(f"s_mov_b32 {s(sCNT)}, 0")
    P(f"{lb}:")
    P("s_waitcnt lgkmcnt(0)")
    P(f"s_min_u32 {s(sPL)}, {s(sPL)}, {s(sPL+1)}\ns_min_u32 {s(sPL+2)}, {s(sPL+2)}, {s(sPL+3)}\ns_min_u32 {s(sPL)}, {s(sPL)}, {s(sPL+2)}")
    if V3:
        for i in range(4, 8): P(f"s_min_u32 {s(sPL)}, {s(sPL)}, {s(sPL+i)}")
    P(f"s_cmp_ge_u32 {s(sPL)}, {level}")
    P(f"s_cbranch_scc1 {lb}_ok")
    P(f"s_add_u32 {s(sCNT)}, {s(sCNT)}, 1\ns_cmp_gt_u32 {s(sCNT)}, {SPIN_MAX}")
    P(f"s_cbranch_scc1 {lb}_ok")
    P("s_sleep 1")
    for x in spoll(o).split("\n"):
        I = Ins(x); I.kind = "salu"; P.ins.append(I)
    P(f"s_branch {lb}")
    P(f"{lb}_ok:")
def own_check():
    lb = P.lab("L_oc")
    P(f"s_mov_b32 {s(sCNT)}, 0")
    P(f"{lb}:")
    P("s_waitcnt lgkmcnt(0)")
    P(f"s_cmp_ge_u32 {s(sK)}, 1")
    P(f"s_cbranch_scc1 {lb}_ok")
    P(f"s_add_u32 {s(sCNT)}, {s(sCNT)}, 1\ns_cmp_gt_u32 {s(sCNT)}, {SPIN_MAX}")
    P(f"s_cbranch_scc1 {lb}_ok")
    P("s_sleep 1")
    I = Ins(f"s_buffer_load_dword {s(sK)}, {s(SWS,4)}, {s(sT2)} glc"); I.kind = "salu"; P.ins.append(I)
    P(f"s_branch {lb}")
    P(f"{lb}_ok:")
def b_reads(kk):
    slot = kk % 9
    var, off = (KAREA[slot] >> 16), KAREA[slot] & 0xffff
    return [f".waitvm b{kk}"] + [f"ds_read_b64_tr_b16 {v(BTq(kk,nb)+2*tt,2)}, {v(BA+2*var+nb)} offset:{off+1024*tt}" for nb in range(2) for tt in range(2)]
def finish(ffn):
    if OPT.get("echo") and OPT.get("echot", "fa").find("f" if ffn else "a") < 0: pass
    elif OPT.get("echo"):
        a_, b_ = [STI[x] for x in OPT["echo"].split(",")]
        lb = P.lab("L_echo")
        stamp("end")
        P("s_waitcnt lgkmcnt(0)")
        P(f"s_sub_u32 {s(sT0)}, {s(sST+2*b_)}, {s(sST+2*a_)}")
        if STAMP == 2:
            P(f"s_lshr_b32 {s(sT0)}, {s(sT0)}, 4\ns_memrealtime {s(sST+22,2)}\ns_waitcnt lgkmcnt(0)")
        P(f"s_min_u32 {s(sT0)}, {s(sT0)}, 10000")
        P(f"{lb}:")
        P(f"s_memrealtime {s(sEX,2)}")
        P("s_waitcnt lgkmcnt(0)")
        P(f"s_sub_u32 {s(sT1)}, {s(sEX)}, {s(sST+22)}\ns_cmp_lt_u32 {s(sT1)}, {s(sT0)}\ns_cbranch_scc1 {lb}")
    elif STAMP:
        stamp("end")
        P("s_waitcnt lgkmcnt(0)")
        P(f"s_lshl_b32 {s(sT0)}, s2, 3\ns_add_u32 {s(sT0)}, {s(sT0)}, {s(sW)}\ns_lshl_b32 {s(sT0)}, {s(sT0)}, 6\ns_add_u32 {s(sT0)}, {s(sT0)}, {WS_STAMP}")
        P(f"v_mov_b32 v2, 0\ns_mov_b64 exec, 1")
        for i in range(12):
            P(f"v_mov_b32 v3, {s(sST+2*i)}\nbuffer_store_dword v3, v2, {s(SWS,4)}, {s(sT0)} offen offset:{4*i}")
    P("s_endpgm")
    flush_slow()

def phase2_v2(bleft, ffn):
    BAR = [2, 3, 4, 5, 6, 7, 8, 9, 10, 11, 14, 15]; VX = 16
    WB = [20, 21, 22]; RBs = [23, 24, 25]; PX = BAUG
    t = T + 8
    P(f"v_bfe_u32 {v(t)}, {v(vL)}, 2, 2\nv_lshrrev_b32 {v(t+1)}, 5, {v(vL)}\nv_and_b32 {v(t+2)}, 63, {v(AW)}\ns_lshl_b32 {s(sT0)}, {s(sHALF)}, 5\nv_xor_b32 {v(t+2)}, {s(sT0)}, {v(t+2)}")
    P(f"v_lshl_add_u32 {v(t+3)}, {v(t+1)}, 2, {v(t)}\nv_lshl_add_u32 {v(t+3)}, {v(t+3)}, 8, {v(t+2)}\ns_lshl_b32 {s(sT0)}, {s(sHALF)}, 13\nv_add_u32 {v(t+3)}, {s(sT0)}, {v(t+3)}")
    P(f"v_xor_b32 {v(t)}, {s(sM)}, {v(t)}\nv_lshl_add_u32 {v(BAR[0])}, {v(t)}, 6, {v(t+3)}")
    for nb in range(1, 4): P(f"v_xor_b32 {v(BAR[nb])}, {64*nb}, {v(BAR[0])}")
    for rg in (2, 1):
        for nb in range(4): P(f"v_add_u32 {v(BAR[4*rg+nb])}, {65536*rg}, {v(BAR[nb])}")
    LP = int(OPT.get("lp", 8))
    SQ = int(OPT.get("sq", 12))
    seq = [(kk, nb) for kk in range(SQ) for nb in range(4) if nb or kk < LP]
    done_at = {}
    for nb in (1, 2, 3):
        seq += [(kk, nb) for kk in range(SQ, 18)]; done_at[nb] = len(seq)
    seq += [(kk, 0) for kk in range(LP, 18)]
    D = 4
    def bq(i): return XF + 8 * (i & 7)
    def br(i):
        kk, nb = seq[i]; a = KAREA[kk >> 1]
        return [f"ds_read_b64_tr_b16 {v(bq(i)+2*tt,2)}, {v(BAR[4*(a>>16)+nb])} offset:{(a&0xffff)+(kk&1)*4096+2048*tt}" for tt in range(2)]
    def val(kk):
        if not (NP and kk < 14): validate([AF2(kk) + i for i in range(4)], T + 16, a_jobs(kk)[0])
    for i in range(D): P.add(br(i))
    val(0)
    stamp("hseen")
    first = {}
    for i, (kk, nb) in enumerate(seq): first.setdefault(kk, i)
    ev = {}
    def at(i, x): ev.setdefault(i, []).append(x)
    sh = 8 - LP
    a8, a14 = int(OPT.get("a8", 14)), int(OPT.get("a14", 30 - sh))
    for i, g_ in enumerate(sum([b_dma(k2) for k2 in bleft], [])): at(int(OPT.get('bst', 1)) * i, g_)
    gates = {}
    if NP:
        if ffn:
            g2i = int(OPT.get("g2", 6)); a8 = int(OPT.get("g3f", 24 - sh))
            at(0, [spoll(0)]); gates[g2i] = 2
            for k2 in range(4, 8): at(g2i + k2 - 4, a_jobs(k2)[0])
            at(int(OPT.get("f3", 14)), flag(3, "h4"))
            a14 = max(a14, a8 + 6)
        else:
            a8 = int(OPT.get("g3a", 18 - sh // 2)); g2i = int(OPT.get("g2a", 2)); gates[g2i] = 2
            for k2 in range(4, 8): at(g2i + k2 - 4, a_jobs(k2)[0])
        at(a8 - int(OPT.get("gl", 10)), [spoll(0)]); gates[a8] = 3
    ast = int(OPT.get('ast', 1))
    ea = 0 if ffn or NP else int(OPT.get('ea', 0))
    for k2 in range(8 + ea, 14): at(a8 + ast * (k2 - 8), a_jobs(k2)[0])
    if ea and OPT.get('a14a'): a14 = int(OPT['a14a'])
    for k2 in range(14, 18): at(a14 + ast * (k2 - 14), a_jobs(k2)[0])
    F = T + 8
    at(9, lines(f"v_and_b32 {v(T+17)}, 31, {v(vL)}\nv_lshrrev_b32 {v(T+18)}, 5, {v(vL)}\nv_lshlrev_b32 {v(T+18)}, 4, {v(T+18)}\nv_lshl_add_u32 {v(VX)}, {v(T+17)}, 10, {v(T+18)}") +
          [f"buffer_load_dwordx4 {v(XR,4)}, {v(VX)}, {s(SX,4)}, {s(sOo)} offen", f"buffer_load_dwordx4 {v(B2R,4)}, {v(T+18)}, {s(SB2,4)}, {s(sN)} offen"])
    at(24, lines(f"v_add_u32 {v(WB[0])}, {s(sM0x)}, {v(VL16)}\nv_xor_b32 {v(RBs[0])}, 8192, {v(WB[0])}") +
           sum([[f"v_add_u32 {v(WB[rg])}, {65536*rg}, {v(WB[0])}", f"v_add_u32 {v(RBs[rg])}, {65536*rg}, {v(RBs[0])}"] for rg in (1, 2)], []))
    for i in range(4):
        at(40 + i, lines(f"v_lshlrev_b32 {v(F+2*i)}, 16, {v(XR+i)}\nv_and_b32 {v(F+2*i+1)}, 0xffff0000, {v(XR+i)}\nv_lshlrev_b32 {v(T+4)}, 16, {v(B2R+i)}\nv_and_b32 {v(T+5)}, 0xffff0000, {v(B2R+i)}\nv_add_f32 {v(F+2*i)}, {v(F+2*i)}, {v(T+4)}\nv_add_f32 {v(F+2*i+1)}, {v(F+2*i+1)}, {v(T+5)}"))
    px1 = OPT.get("px1") == "1"
    if not px1:
        pxi = int(OPT.get("pxi", (16 if ffn else a8 + 6) if NP else a8 + 6))
        if not ffn and OPT.get("pxia"): pxi = int(OPT["pxia"])
        at(pxi - 1, [f"v_mov_b32 {v(PX+i)}, -1" for i in range(4)])
        for j in (1, 2, 3): at(pxi + (j - 1) * int(OPT.get("pxs", 1)), xoff(j, True) + [f"buffer_store_dwordx4 {v(PX,4)}, {v(VL16)}, {s(SWS,4)}, {s(sT0)} offen sc1 ; tag=px"])
    at(int(OPT.get("fx", 8 if px1 else 48 - sh)), flag(4, "px"))
    bar_i = first[12] - D
    RG = [KAREA[0], L_KVB, KAREA[0], L_KVB] if LP < 8 else KAREA
    def wr(nb): a = RG[nb]; return [f"ds_write_b128 {v(WB[a>>16])}, {v(AC+16*nb+8+4*q,4)} offset:{(a&0xffff)+1024*q}" for q in range(2)]
    def rdp(nb): a = RG[nb]; return [f"ds_read_b128 {v(AC+16*nb+8+4*q,4)}, {v(RBs[a>>16])} offset:{(a&0xffff)+1024*q}" for q in range(2)]
    def add(nb, pk): c = AC + 16 * nb; return [f"v_pk_add_f32 {v(c+i,2)}, {v(c+i,2)}, {v(c+8+i,2)}" for i in range(0, 8, 2)] if pk else [f"v_add_f32 {v(c+i)}, {v(c+i)}, {v(c+8+i)}" for i in range(8)]
    def snd(nb): c = AC + 16 * nb; return [f"v_cvt_pk_bf16_f32 {v(c+8+i)}, {v(c+2*i)}, {v(c+2*i+1)}" for i in range(4)] + xoff(nb, True) + [f"buffer_store_dwordx4 {v(c+8,4)}, {v(VL16)}, {s(SWS,4)}, {s(sT0)} offen sc1"]
    VPF, VPA = PX, PX + 1
    pf = f"buffer_load_dword {v(VPF)}, {v(VPA)}, {s(SWS,4)}, 0 offen sc1"
    at(38 if px1 else done_at[3] + 3, lines(f"v_and_b32 {v(VPA)}, 3, {v(vL)}\nv_lshlrev_b32 {v(VPA)}, 8, {v(VPA)}\nv_xor_b32 {v(VPA)}, {s(sFO)}, {v(VPA)}") + [pf])
    if SQ < 18:
        for nb in (1, 2, 3):
            e = done_at[nb]
            at(e + 1, wr(nb)); at(e + 2, ["s_waitcnt lgkmcnt(2)", "s_barrier"] + rdp(nb)); at(e + 4, add(nb, False) + snd(nb))
        at(done_at[3] + 4, stamp_i("xs"))
    else:
        e = done_at[3]
        at(e, wr(1) + wr(2)); at(e + 1, wr(3) + ["s_waitcnt lgkmcnt(0)", "s_barrier"] + rdp(1) + rdp(2) + rdp(3))
        for nb in (1, 2, 3): at(e + 1 + nb, add(nb, False) + snd(nb))
        at(e + 4, stamp_i("xs"))
    R = XF + 64 - 4 if False else None
    RQ = [None, XF + 64, XF + 72, XF + 80]
    rl = sum([xoff(j, False) + [f"buffer_load_dwordx4 {v(RQ[j],4)}, {v(VL16)}, {s(SWS,4)}, {s(sT0)} offen sc1"] for j in range(1, 4)], [])
    ri = int(OPT.get("ri", 99))
    seen = set()
    for i, (kk, nb) in enumerate(seq):
        if i % 4 == 0: P(f"s_setprio {3 - ((i >> 2) & 3)}")
        P(mfma(AC + 16 * nb, bq(i), AF2(kk), None if nb in seen else "0")); seen.add(nb)
        if i == bar_i: P(".waitvm b8"); P("s_barrier")
        if i + D < len(seq): P.add(br(i + D))
        if i + 2 < len(seq) and first[seq[i + 2][0]] == i + 2: val(seq[i + 2][0])
        if i in gates: sneed(gates[i], 0)
        for x in ev.pop(i, []): P.add(x)
        if i == len(seq) - 1 - ri:
            P(f"v_mov_b32 {v(VPF)}, {v(VPF)}")
            spin(P.lab("L_pf"), pf, f"v_cmp_gt_u32 vcc, 4, {v(VPF)}")
            P.add(rl)
        if i + 1 < len(seq) and first[seq[i + 1][0]] == i + 1: stamp(f"k{kk}")
    assert not ev, ev.keys()
    stamp("p2mm")
    P("s_setprio 0")
    P.add(wr(0))
    if ri >= len(seq):
        P(f"v_mov_b32 {v(VPF)}, {v(VPF)}")
        spin(P.lab("L_pf"), pf, f"v_cmp_gt_u32 vcc, 4, {v(VPF)}")
    P("s_waitcnt lgkmcnt(0)")
    P("s_barrier")
    P.add(rdp(0))
    if ri >= len(seq): P.add(rl)
    P.add(add(0, True))
    validate([RQ[j] + i for j in (1, 2, 3) for i in range(4)], T + 16, rl)
    stamp("xr")
    P(f"s_mov_b32 {s(sT0)}, 0x3f80\ns_mov_b32 {s(sT1)}, 0x3f800000")
    for j in range(1, 4):
        for i in range(4): P(f"v_dot2c_f32_bf16 {v(AC+2*i)}, {s(sT0)}, {v(RQ[j]+i)}\nv_dot2c_f32_bf16 {v(AC+2*i+1)}, {s(sT1)}, {v(RQ[j]+i)}")
    for i in range(4): P(f"v_permlane32_swap_b32 {v(AC+i)}, {v(AC+4+i)}")
    for i in range(0, 8, 2): P(f"v_pk_add_f32 {v(F+i,2)}, {v(F+i,2)}, {v(AC+i,2)}")
    for i in range(4): P(f"v_cvt_pk_bf16_f32 {v(XR+i)}, {v(F+2*i)}, {v(F+2*i+1)}")
    P(f"buffer_store_dwordx4 {v(XR,4)}, {v(VX)}, {s(SOUT,4)}, {s(sOo)} offen")
    finish(ffn)

def phase2_v3(bleft, aleft, ffn):
    BAR = [2, 3, 4, 5, 6, 7, 8, 9, 10, 11, 18, 19]; VX = 16; PX = BAUG
    t = T + 8
    P(f"v_bfe_u32 {v(t)}, {v(vL)}, 2, 2\nv_lshrrev_b32 {v(t+1)}, 5, {v(vL)}\nv_bfe_u32 {v(t+2)}, {v(vL)}, 4, 1\nv_lshl_add_u32 {v(t+3)}, {v(t+2)}, 2, {v(t)}\nv_lshl_add_u32 {v(t+3)}, {v(t+1)}, 4, {v(t+3)}")
    P(f"v_and_b32 {v(t+4)}, 63, {v(AW)}\ns_lshl_b32 {s(sT0)}, {s(sHALF)}, 5\nv_xor_b32 {v(t+4)}, {s(sT0)}, {v(t+4)}\nv_lshl_add_u32 {v(t+3)}, {v(t+3)}, 8, {v(t+4)}")
    P(f"v_xor_b32 {v(t)}, {s(sM)}, {v(t)}\nv_lshl_add_u32 {v(BAR[0])}, {v(t)}, 6, {v(t+3)}")
    for q in range(1, 4): P(f"v_xor_b32 {v(BAR[q])}, {64*q}, {v(BAR[0])}")
    for rg in (2, 1):
        for q in range(4): P(f"v_add_u32 {v(BAR[4*rg+q])}, {65536*rg}, {v(BAR[q])}")
    LP = int(OPT.get("lp", 2)); SQ = int(OPT.get("sq", 14))
    assert LP >= 2
    seq = [(st, q) for st in range(SQ) for q in range(4) if q or st < LP]
    done_at = {}
    for q in (1, 2, 3):
        seq += [(st, q) for st in range(SQ, 18)]; done_at[q] = len(seq)
    seq += [(st, 0) for st in range(LP, 18)]
    D = 4
    def bq(i): return XF + 8 * (i & 7)
    def br(i):
        st, q = seq[i]; a = KAREA[st >> 1]
        return [f"ds_read_b64_tr_b16 {v(bq(i)+2*tt,2)}, {v(BAR[4*(a>>16)+q])} offset:{(a&0xffff)+(st&1)*8192+2048*tt}" for tt in range(2)]
    def val(st): validate([AF3(st, sh) + i for sh in range(2) for i in range(4)], T + 16, sum(a_jobs(st), []))
    for i in range(D): P.add(br(i))
    val(0)
    stamp("hseen")
    first = {}
    for i, (st, q) in enumerate(seq): first.setdefault(st, i)
    ev = {}
    def at(i, x): ev.setdefault(i, []).append(x)
    a8, a14 = int(OPT.get("a8", 8)), int(OPT.get("a14", 26))
    i0 = 0
    for st in aleft: at(i0, sum(a_jobs(st), [])); i0 += 1
    for g_ in sum([b_dma(k2) for k2 in bleft], []): at(i0, g_); i0 += 1
    a8 = max(a8, i0)
    for st in range(8, 14): at(a8 + 2 * (st - 8), sum(a_jobs(st), []))
    for st in range(14, 18): at(a14 + 2 * (st - 14), sum(a_jobs(st), []))
    pxi = int(OPT.get("pxi", a8 + 12))
    at(pxi - 1, [f"v_mov_b32 {v(PX+i)}, -1" for i in range(4)])
    for j in (1, 2, 3): at(pxi + j - 1, xoff(j, True) + [f"buffer_store_dwordx4 {v(PX,4)}, {v(VL16)}, {s(SWS,4)}, {s(sT0)} offen sc1 ; tag=px"])
    at(done_at[1] - int(OPT.get("fxb", 2)), flag(2, "px"))
    F = T + 8
    at(a8 + 1, lines(f"v_and_b32 {v(T+17)}, 31, {v(vL)}\nv_lshrrev_b32 {v(T+18)}, 5, {v(vL)}\nv_lshlrev_b32 {v(T+18)}, 4, {v(T+18)}\nv_lshl_add_u32 {v(VX)}, {v(T+17)}, 10, {v(T+18)}") +
          [f"buffer_load_dwordx4 {v(XR,4)}, {v(VX)}, {s(SX,4)}, {s(sOo)} offen", f"buffer_load_dwordx4 {v(B2R,4)}, {v(T+18)}, {s(SB2,4)}, {s(sN)} offen"])
    for i in range(4):
        at(done_at[3] + 6 + i, lines(f"v_lshlrev_b32 {v(F+2*i)}, 16, {v(XR+i)}\nv_and_b32 {v(F+2*i+1)}, 0xffff0000, {v(XR+i)}\nv_lshlrev_b32 {v(T+4)}, 16, {v(B2R+i)}\nv_and_b32 {v(T+5)}, 0xffff0000, {v(B2R+i)}\nv_add_f32 {v(F+2*i)}, {v(F+2*i)}, {v(T+4)}\nv_add_f32 {v(F+2*i+1)}, {v(F+2*i+1)}, {v(T+5)}"))
    def snd(q): c = AC + 8 * q; return [f"v_cvt_pk_bf16_f32 {v(c+i)}, {v(c+2*i)}, {v(c+2*i+1)}" for i in range(4)] + xoff(q, True) + [f"buffer_store_dwordx4 {v(c,4)}, {v(VL16)}, {s(SWS,4)}, {s(sT0)} offen sc1"]
    VPF, VPA = PX, PX + 1
    pf = f"buffer_load_dword {v(VPF)}, {v(VPA)}, {s(SWS,4)}, 0 offen sc1"
    for q in (1, 2, 3): at(done_at[q] + 1, snd(q))
    at(done_at[3] + 1, stamp_i("xs"))
    at(done_at[3] + int(OPT.get("pfi", 0)), lines(f"v_and_b32 {v(VPA)}, 3, {v(vL)}\nv_lshlrev_b32 {v(VPA)}, 8, {v(VPA)}\nv_xor_b32 {v(VPA)}, {s(sFO)}, {v(VPA)}") + [pf])
    bar_i = first[12] - D
    R = AC + 8 - 4
    RQ = [None, AC + 12, AC + 20, AC + 28]
    rl = sum([xoff(j, False) + [f"buffer_load_dwordx4 {v(RQ[j],4)}, {v(VL16)}, {s(SWS,4)}, {s(sT0)} offen sc1"] for j in range(1, 4)], [])
    ri = min(done_at[3] + int(OPT.get("ri", 12)), len(seq) - 1)
    seen = set()
    for i, (st, q) in enumerate(seq):
        if i % 4 == 0: P(f"s_setprio {3 - ((i >> 2) & 3)}")
        for sh in range(2): P(m16(AC + 8 * q + 4 * sh, bq(i), AF3(st, sh), None if q in seen else "0"))
        seen.add(q)
        if i == bar_i: P(".waitvm b8"); P("s_barrier")
        if i + D < len(seq): P.add(br(i + D))
        if i + 2 < len(seq) and first[seq[i + 2][0]] == i + 2: val(seq[i + 2][0])
        for x in ev.pop(i, []): P.add(x)
        if i == ri:
            P(f"v_mov_b32 {v(VPF)}, {v(VPF)}")
            spin(P.lab("L_pf"), pf, f"v_cmp_gt_u32 vcc, 2, {v(VPF)}")
            P.add(rl)
        if i + 1 < len(seq) and first[seq[i + 1][0]] == i + 1: stamp(f"k{st}")
    assert not ev, ev.keys()
    stamp("p2mm")
    P("s_setprio 0")
    validate([RQ[j] + i for j in (1, 2, 3) for i in range(4)], T + 16, rl)
    stamp("xr")
    P(f"s_mov_b32 {s(sT0)}, 0x3f80\ns_mov_b32 {s(sT1)}, 0x3f800000")
    for j in range(1, 4):
        for i in range(4): P(f"v_dot2c_f32_bf16 {v(AC+2*i)}, {s(sT0)}, {v(RQ[j]+i)}\nv_dot2c_f32_bf16 {v(AC+2*i+1)}, {s(sT1)}, {v(RQ[j]+i)}")
    for i in range(4): P(f"v_permlane16_swap_b32 {v(AC+i)}, {v(AC+4+i)}")
    for i in range(0, 8, 2): P(f"v_pk_add_f32 {v(F+i,2)}, {v(F+i,2)}, {v(AC+i,2)}")
    for i in range(4): P(f"v_cvt_pk_bf16_f32 {v(XR+i)}, {v(F+2*i)}, {v(F+2*i+1)}")
    P(f"buffer_store_dwordx4 {v(XR,4)}, {v(VX)}, {s(SOUT,4)}, {s(sOo)} offen")
    finish(ffn)

def phase2(done=(), ordr="B6 B7 B8 B9 A4 A5 A6 A7 B10 A8 B11 A9 A10 B12 A11 B13 A12 B14 A13 B15 B16 B17 A14 A15 A16 A17", ffn=False):
    P(f"v_bfe_u32 {v(T+8)}, {v(vL)}, 2, 2\nv_lshrrev_b32 {v(T+9)}, 5, {v(vL)}\nv_and_b32 {v(T+10)}, 63, {v(AW)}")
    P(f"v_lshl_add_u32 {v(T+12)}, {v(T+9)}, 2, {v(T+8)}\nv_lshl_add_u32 {v(T+12)}, {v(T+12)}, 7, {v(T+10)}\nv_lshrrev_b32 {v(T+13)}, 1, {v(T+8)}")
    P(f"v_lshl_add_u32 {v(T+12)}, {v(T+13)}, 6, {v(T+12)}\nv_xor_b32 {v(T+13)}, 64, {v(T+12)}")
    P(f"s_add_u32 {s(sT0)}, {s(sM0x)}, 65536\ns_add_u32 {s(sT1)}, {s(sM0x)}, {RC}")
    for nb in range(2):
        P(f"v_add_u32 {v(BA+nb)}, {s(sM0x)}, {v(T+12+nb)}\nv_add_u32 {v(BA+2+nb)}, {s(sT0)}, {v(T+12+nb)}\nv_add_u32 {v(BA+4+nb)}, {s(sT1)}, {v(T+12+nb)}")
    P.add(b_reads(0))
    if OPT.get("r8", "1") == "1": validate([AFq(0, r2) + i for r2 in range(2) for i in range(4)], T + 16, sum(a_jobs(0), []))
    if OPT.get("p2prio") == "y":
        lb = P.lab("L_pr"); P(f"s_cmp_lt_u32 {s(sW)}, 4\ns_cbranch_scc1 {lb}\ns_setprio 1\n{lb}:")
    stamp("hseen")
    order = [j for j in ordr.split() if j not in done]
    jobs = []
    for j in order:
        k2 = int(j[1:]); gs = a_jobs(k2) if j[0] == "A" else b_dma(k2)
        jobs += [(j, gs[0]), (None, gs[1])]
    LEAD = int(OPT.get("lead", 3))
    first_need = min(int(j[1:]) - (0 if j[0] == "A" else 1) for j in order)
    order.sort(key=lambda j: int(j[1:]) - (0.5 if j[0] == "B" else 0)) if LEAD < 9 else None
    jobs = []
    for j in order:
        k2 = int(j[1:]); gs = a_jobs(k2) if j[0] == "A" else b_dma(k2)
        jobs += [(j, gs[0]), (None, gs[1])]
    NT = int(OPT.get("nt", 2))
    for kk in range(18 - NT):
        rem = [x for x, _ in jobs if x]
        assert f"A{kk+1}" not in rem and f"B{kk+2}" not in rem, (kk, rem)
        if OPT.get("v"): print(kk, rem, file=sys.stderr)
        pm = OPT.get("p2prio", "c")
        if pm == "c": P(f"s_setprio {3 - ((kk // int(OPT.get('p2per', 1))) & 3)}")
        br = b_reads(kk + 1) if kk + 1 < 18 else []
        for nb in range(2):
            for rb in range(2):
                mi = 2 * nb + rb
                P(mfma(AC + 16 * mi, BTq(kk, nb), AFq(kk, rb), "0" if kk == 0 else None))
                if mi == 0: P.add(br[:3])
                if mi == 1: P.add(br[3:])
                if mi == 2 and (1 if OPT.get('r8', '1') == '1' else 4) <= kk + 1 < 18:
                    if jobs and jobs[0][0] is None: P.add(jobs.pop(0)[1])
                    validate([AFq(kk + 1, r2) + i for r2 in range(2) for i in range(4)], T + 16, sum(a_jobs(kk + 1), []))
                for rep in range(2 if kk < int(OPT.get("dbl", 0)) else 1):
                    if not jobs: continue
                    j, g_ = jobs[0]
                    if j:
                        k2 = int(j[1:]); last = (nb, rb) == (1, 1)
                        free = k2 - (8 if j[0] == "A" else 9)
                        if free > kk or (free == kk and not last): continue
                        need_at = k2 - (0 if j[0] == "A" else 1)
                        if need_at > max(kk, first_need - 1) + LEAD: continue
                    jobs.pop(0); P.add(g_)
        stamp(f"k{kk}")
        if kk == 8:
            P(f"v_lshrrev_b32 {v(T+17)}, 3, {v(vL)}\nv_and_b32 {v(T+18)}, 7, {v(vL)}\nv_lshlrev_b32 {v(T+18)}, 4, {v(T+18)}\nv_lshl_add_u32 {v(VXR)}, {v(T+17)}, 10, {v(T+18)}")
            P(f"s_lshl_b32 {s(sT0)}, {s(sN)}, 7")
            P(f"buffer_load_dwordx4 {v(XR,4)}, {v(VXR)}, {s(SX,4)}, {s(sOo)} offen")
            P(f"buffer_load_dwordx4 {v(B2R,4)}, {v(T+18)}, {s(SB2,4)}, {s(sT0)} offen")
        if kk == 3:
            for q in range(4):
                P(f"v_xor_b32 {v(VWR+q)}, {64*q}, {v(VL16)}\nv_add_u32 {v(VWR+q)}, {s(sM0x)}, {v(VWR+q)}")
                P(f"v_add_u32 {v(T+q)}, 65536, {v(VWR+q)}")
            P(f"v_lshrrev_b32 {v(T+4)}, 3, {v(vL)}\ns_lshl_b32 {s(sT0)}, {s(sW34)}, 1\nv_add_u32 {v(T+4)}, {s(sT0)}, {v(T+4)}")
            P(f"v_and_b32 {v(T+5)}, 3, {v(vL)}\nv_lshlrev_b32 {v(T+6)}, 2, {v(T+5)}\nv_xor_b32 {v(T+4)}, {v(T+4)}, {v(T+6)}\nv_lshlrev_b32 {v(T+4)}, 4, {v(T+4)}\nv_and_b32 {v(T+6)}, 1, {v(T+5)}\nv_lshl_add_u32 {v(T+4)}, {v(T+6)}, 10, {v(T+4)}\nv_lshrrev_b32 {v(T+6)}, 1, {v(T+5)}\nv_lshl_add_u32 {v(T+4)}, {v(T+6)}, 14, {v(T+4)}")
            P(f"v_bfe_u32 {v(T+5)}, {v(vL)}, 2, 1\nv_lshl_add_u32 {v(T+4)}, {v(T+5)}, 16, {v(T+4)}\ns_lshl_b32 {s(sT0)}, {s(sHALF)}, 15\nv_add_u32 {v(VRED)}, {s(sT0)}, {v(T+4)}")
        F = T + 8
        if kk == 13:
            for i in range(4):
                P(f"v_lshlrev_b32 {v(F+2*i)}, 16, {v(XR+i)}\nv_and_b32 {v(F+2*i+1)}, 0xffff0000, {v(XR+i)}")
                P(f"v_lshlrev_b32 {v(T+4)}, 16, {v(B2R+i)}\nv_and_b32 {v(T+5)}, 0xffff0000, {v(B2R+i)}")
                P(f"v_add_f32 {v(F+2*i)}, {v(F+2*i)}, {v(T+4)}\nv_add_f32 {v(F+2*i+1)}, {v(F+2*i+1)}, {v(T+5)}")
    assert not jobs
    for kk in range(19 - NT, 18):
        P.add(b_reads(kk))
        validate([AFq(kk, r2) + i for r2 in range(2) for i in range(4)], T + 16, sum(a_jobs(kk), []))
    def wr(blk): return [f"ds_write_b128 {v(VWR + q if blk < 2 else T + q)}, {v(AC+16*blk+4*q,4)} offset:{(blk&1)*32768+(q>>1)*16384+(q&1)*1024}" for q in range(4)]
    pend = []
    for mi in range(4):
        for kk in range(18 - NT, 18):
            P(mfma(AC + 16 * mi, BTq(kk, mi >> 1), AFq(kk, mi & 1)))
            if kk > 18 - NT or NT == 1: P.add(pend[:2]); pend = pend[2:]
        P.add(pend); pend = wr(mi)
    stamp("p2mm")
    P.add(pend)
    P("s_waitcnt lgkmcnt(0)")
    stamp("rw")
    P("s_barrier")
    stamp("rb")
    R = XF
    for ww in range(8):
        for hf in range(2): P(f"ds_read_b128 {v(R+8*ww+4*hf,4)}, {v(VRED)} offset:{2048*ww+512*hf}")
    for ww in range(8):
        for i in range(0, 8, 2): P(f"v_pk_add_f32 {v(F+i,2)}, {v(F+i,2)}, {v(R+8*ww+i,2)}")
    for i in range(4): P(f"v_cvt_pk_bf16_f32 {v(XR+i)}, {v(F+2*i)}, {v(F+2*i+1)}")
    P(f"buffer_store_dwordx4 {v(XR,4)}, {v(VXR)}, {s(SOUT,4)}, {s(sOo)} offen {OPT.get('om', '').replace('+', ' ')}")
    finish(ffn)

def softmax(p, out, LS, pk=False):
    t = T + 16
    if pk:
        assert LS == STD + 1
        L = softmax(p, out, LS)[:9]
        L += [f"v_pk_fma_f32 {v(p+i,2)}, {v(p+i,2)}, {v(STD,2)}, {v(t,2)} op_sel:[0,1,0] op_sel_hi:[1,1,0] neg_lo:[0,0,1] neg_hi:[0,0,1]" for i in range(0, 16, 2)]
        L += [f"v_exp_f32 {v(p+i)}, {v(p+i)}" for i in range(16)]
        L += [f"v_pk_add_f32 {v(t,2)}, {v(p,2)}, {v(p+2,2)}", f"v_pk_add_f32 {v(t+2,2)}, {v(p+4,2)}, {v(p+6,2)}"]
        L += [f"v_pk_add_f32 {v(t+2*(i&1),2)}, {v(t+2*(i&1),2)}, {v(p+8+2*i,2)}" for i in range(4)]
        L += [f"v_pk_add_f32 {v(t,2)}, {v(t,2)}, {v(t+2,2)}", f"v_add_f32 {v(t)}, {v(t)}, {v(t+1)}", f"v_rcp_f32 {v(t)}, {v(t)}"]
        L += [f"v_pk_mul_f32 {v(p+i,2)}, {v(p+i,2)}, {v(t,2)} op_sel_hi:[1,0]" for i in range(0, 16, 2)]
        return L + [f"v_cvt_pk_bf16_f32 {v(out+i)}, {v(p+2*i)}, {v(p+2*i+1)}" for i in range(8)]
    L = [f"v_max3_f32 {v(t)}, {v(p)}, {v(p+1)}, {v(p+2)}", f"v_max3_f32 {v(t+1)}, {v(p+3)}, {v(p+4)}, {v(p+5)}",
         f"v_max3_f32 {v(t)}, {v(t)}, {v(p+6)}, {v(p+7)}", f"v_max3_f32 {v(t+1)}, {v(t+1)}, {v(p+8)}, {v(p+9)}",
         f"v_max3_f32 {v(t)}, {v(t)}, {v(p+10)}, {v(p+11)}", f"v_max3_f32 {v(t+1)}, {v(t+1)}, {v(p+12)}, {v(p+13)}",
         f"v_max3_f32 {v(t)}, {v(t)}, {v(p+14)}, {v(p+15)}", f"v_max_f32 {v(t)}, {v(t)}, {v(t+1)}",
         f"v_mul_f32 {v(t)}, {v(t)}, {v(LS)}"]
    L += [f"v_fma_f32 {v(p+i)}, {v(p+i)}, {v(LS)}, -{v(t)}" for i in range(16)]
    L += [f"v_exp_f32 {v(p+i)}, {v(p+i)}" for i in range(16)]
    L += [f"v_add_f32 {v(t)}, {v(p)}, {v(p+1)}", f"v_add_f32 {v(t+1)}, {v(p+2)}, {v(p+3)}"]
    for i in range(4, 16, 2):
        L += [f"v_add_f32 {v(t)}, {v(t)}, {v(p+i)}", f"v_add_f32 {v(t+1)}, {v(t+1)}, {v(p+i+1)}"]
    L += [f"v_add_f32 {v(t)}, {v(t)}, {v(t+1)}", f"v_rcp_f32 {v(t)}, {v(t)}"]
    L += [f"v_mul_f32 {v(p+i)}, {v(p+i)}, {v(t)}" for i in range(16)]
    L += [f"v_cvt_pk_bf16_f32 {v(out+i)}, {v(p+2*i)}, {v(p+2*i+1)}" for i in range(8)]
    return L

setup(False)
KAREA[:] = [RC, RA+3*Q, RB, RA, RA+Q, RA+2*Q, RB+Q, RB+2*Q, RB+3*Q]
LS = K1; VPK = K2; VV = VW3; MC = BIAS
PHI0, PHI1 = AX, AAUG
PHI0 = AX
PHI1 = S1
PHI1 = T + 12
t = T + 16
P(f"v_bfe_u32 {v(t)}, {v(vL)}, 2, 2\nv_lshrrev_b32 {v(t+1)}, 5, {v(vL)}\nv_lshl_add_u32 {v(t)}, {v(t+1)}, 2, {v(t)}\nv_lshlrev_b32 {v(t)}, 5, {v(t)}")
P(f"v_bfe_u32 {v(t+2)}, {v(vL)}, 1, 1\nv_lshl_add_u32 {v(t)}, {v(t+2)}, 3, {v(t)}\nv_bfe_u32 {v(t+2)}, {v(vL)}, 4, 1\nv_lshl_add_u32 {v(t)}, {v(t+2)}, 4, {v(t)}")
P(f"s_lshl_b32 {s(sT1)}, {s(sHALF)}, 10\ns_add_u32 {s(sT1)}, {s(sT1)}, {L_WPHI}\nv_add_u32 {v(AB)}, {s(sT1)}, {v(t)}")
P(f"v_bfe_u32 {v(t)}, {v(vL)}, 2, 1\nv_mul_u32_u24 {v(t)}, 0x8000, {v(t)}\nv_lshl_or_b32 {v(AB+1)}, {v(t)}, 16, {v(t)}")
P(f"v_and_b32 {v(t)}, 31, {v(vL)}\nv_lshlrev_b32 {v(t)}, 6, {v(t)}\ns_lshl_b32 {s(sT1)}, {s(sW34)}, 9\nv_bfe_u32 {v(t+2)}, {v(vL)}, 1, 2")
P(f"v_lshlrev_b32 {v(t+3)}, 1, {v(t+1)}\nv_xor_b32 {v(t+3)}, {v(t+3)}, {v(t+2)}")
P(f"s_lshl_b32 {s(sT2)}, {s(sHALF)}, 14\ns_add_u32 {s(sT2)}, {s(sT2)}, {s(sT1)}\nv_lshl_add_u32 {v(VPK)}, {v(t+3)}, 4, {v(t)}\nv_add_u32 {v(VPK)}, {s(sT2)}, {v(VPK)}")
P(f"v_xor_b32 {v(t+3)}, {v(t+1)}, {v(t+2)}")
P(f"s_lshl_b32 {s(sT2)}, {s(sHALF)}, 13\ns_add_u32 {s(sT2)}, {s(sT2)}, {s(sT1)}\ns_add_u32 {s(sT2)}, {s(sT2)}, {RA+32768}\nv_lshl_add_u32 {v(VV)}, {v(t+3)}, 4, {v(t)}\nv_add_u32 {v(VV)}, {s(sT2)}, {v(VV)}")
def phi_load(hl, dst):
    return [f"ds_read_b64_tr_b16 {v(dst+2*tt,2)}, {v(AB)} offset:{512*hl+256*tt}" for tt in range(2)] + \
           [f"v_xor_b32 {v(dst+i)}, {v(AB+1)}, {v(dst+i)}" for i in range(4)]
S = Sched(96)
common_sched(S, False, None, MC)
S.post[30] += [f"ds_read_b128 {v(CSR,4)}, {v(VCSA)}"]
sKV, sOS = sH0, sH3
P(f"s_lshl_b32 {s(sT0)}, {s(sG)}, 4\ns_add_u32 {s(sT0)}, {s(sT0)}, {s(sRT)}\ns_mul_i32 {s(sT0)}, {s(sT0)}, {KVP_SZ}\ns_mul_i32 {s(sT1)}, {s(sW)}, 1152\ns_add_u32 {s(sT0)}, {s(sT0)}, {s(sT1)}\ns_add_u32 {s(sT0)}, {s(sT0)}, {WS_KVP}")
P(f"s_cmp_lt_u32 {s(sW)}, 4\ns_cselect_b32 {s(sKV)}, {s(sT0)}, 0x7f000000")
P(f"s_lshl_b32 {s(sT0)}, {s(sG)}, 2\ns_lshl_b32 {s(sT1)}, {s(sHALF)}, 1\ns_add_u32 {s(sT0)}, {s(sT0)}, {s(sT1)}\ns_add_u32 {s(sT0)}, {s(sT0)}, 112\ns_lshl_b32 {s(sT0)}, {s(sT0)}, 10\ns_add_u32 {s(sOS)}, {s(sT0)}, {s(sHo)}")
PA = AAUG
OFFL = OPT.get("off", "0") == "1"
if OFFL:
    P(f"s_mul_i32 {s(sT0)}, {s(sG)}, 448\ns_and_b32 {s(sT1)}, {s(sG)}, 1\ns_add_u32 {s(sT2)}, {s(sT1)}, {s(sHALF)}\ns_lshl_b32 {s(sT2)}, {s(sT2)}, 6\ns_add_u32 {s(sT2)}, {s(sT2)}, {s(sT0)}")
    P(f"s_lshl_b32 {s(sT2)}, {s(sT2)}, 5\ns_add_u32 {s(sWq)}, {s(sT2)}, {s(sHo)}\ns_add_u32 {s(sWq)}, {s(sWq)}, 8192")
    P(f"s_xor_b32 {s(sT1)}, {s(sT1)}, 1\ns_mul_i32 {s(sT1)}, {s(sT1)}, 384\ns_add_u32 {s(sT0)}, {s(sT0)}, {s(sT1)}\ns_lshl_b32 {s(sT1)}, {s(sHALF)}, 5\ns_add_u32 {s(sT0)}, {s(sT0)}, {s(sT1)}")
    P(f"s_lshl_b32 {s(sT0)}, {s(sT0)}, 5\ns_add_u32 {s(sW3)}, {s(sT0)}, {s(sHo)}")
S.post[46] += [f"v_mov_b32 {v(PA+i)}, -1" for i in range(4)] + [f"v_lshrrev_b32 {v(S2)}, 2, {v(vL)}", f"v_lshl_add_u32 {v(S2)}, {v(S2)}, 26, {v(VL16)}"]
S.post[47] += [f"buffer_store_dwordx4 {v(PA,4)}, {v(VL16)}, {s(SWS,4)}, {s(sKV)} offen sc1"]
S.post[48] += [f"buffer_store_dwordx4 {v(PA,4)}, {v(S2)}, {s(SWS,4)}, {s(sKV)} offen offset:1024 sc1 ; tag=pz"]
pl = [(sOS, 0), (sOS, 1024)] + ([(sWq, 0), (sWq, 1024), (sW3, 0)] if OFFL else [])
for (so, off), G in zip(pl, [int(x) for x in OPT.get("pza", "50,53,56,59,62").split(",")]):
    S.post[G] += [f"buffer_store_dwordx4 {v(PA,4)}, {v(VL16)}, {s(SWS,4)}, {s(so)} offen offset:{off} sc1 ; tag=po"]
PX1 = OPT.get("px1") == "1"
if V2 and PX1:
    for j, G in zip((1, 2, 3), (56, 59, 62)): S.post[G] += xoff(j, True) + [f"buffer_store_dwordx4 {v(PA,4)}, {v(VL16)}, {s(SWS,4)}, {s(sT0)} offen sc1 ; tag=px"]
S.post[63] += [f"v_mov_b32 {v(PA+2)}, 0", f"v_mov_b32 {v(PA+3)}, 0"]
def ltouch():
    P(f"s_sub_u32 {s(sT0)}, {s(sW)}, 4\ns_cmp_lt_u32 {s(sT0)}, 3")
    P(f"s_cbranch_scc0 L_nlt")
    P.cond_begin("w456")
    P(f"v_lshlrev_b32 {v(S1)}, 7, {v(vL)}\ns_lshl_b32 {s(sT1)}, {s(sRT)}, 3\ns_add_u32 {s(sT1)}, {s(sT1)}, {s(sG)}")
    P(f"s_cmp_eq_u32 {s(sT0)}, 2\ns_cbranch_scc1 L_lt2")
    P(f"s_lshl_b32 {s(sT1)}, {s(sT1)}, 1\ns_add_u32 {s(sT1)}, {s(sT1)}, {s(sT0)}\ns_mul_i32 {s(sT1)}, {s(sT1)}, 7168")
    P(f"buffer_load_dword {v(VX0)}, {v(S1)}, {s(SW2,4)}, {s(sT1)} offen")
    P("s_branch L_nlt")
    P("L_lt2:")
    P(f"v_and_b32 {v(S1)}, 4095, {v(S1)}\ns_lshl_b32 {s(sT1)}, {s(sT1)}, 12")
    P(f"buffer_load_dword {v(VX0)}, {v(S1)}, {s(SWO,4)}, {s(sT1)} offen")
    P(f"buffer_load_dword {v(VX1)}, {v(S1)}, {s(SB2,4)}, 0 offen")
    P.cond_end()
    for I in P.ins[-12:]:
        if I.kind == "vld": I.defs = []
    P("L_nlt:")
if OPT.get("touch", "5") == "2": S.blk[("e", int(OPT.get("tg", 54)))] = ltouch
S.post[31] += stamp_i("pass1")
fill = stats_final() + aug(ACC0, CSR, None) + phi_load(0, AX) + phi_load(1, T + 8) + [f"v_mul_f32 {v(LS)}, {f2u(LOG2E):#x}, {v(RSTD)}"]
fill += [f"v_cvt_pk_bf16_f32 {v(T+i)}, {v(ACC0+2*i)}, {v(ACC0+2*i+1)}" for i in range(8)]
fill += [mfma(ACC2, AX, T, "0"), mfma(ACC0, T + 8, T + 4, "0")]
S.spread(fill, 32, 40)
S.spread(softmax(ACC2, T + 8, LS) + softmax(ACC0, T, LS), 41, 64)
pkg = 62 if OPT.get("few", "1") == "1" else 56
S.post[pkg] += [f"ds_write_b128 {v(VPK)}, {v(T+8,4)}", f"v_xor_b32 {v(VSTA)}, 16, {v(VPK)}"]
S.post[pkg+1] += [f"ds_write_b128 {v(VSTA)}, {v(T+12,4)}"]
S.post[62] += [f"ds_read_b128 {v(MC,4)}, {v(VCSA)} offset:1024"]
S.post[63] += stamp_i("sub1")
S.pre[64] += sum4(CS0, MC)
S.fill[64] += aug(ACC1, MC, None)[3:]
S.post[65] += [f"ds_write_b128 {v(VPK)}, {v(T,4)} offset:8192"]
S.post[66] += [f"ds_write_b128 {v(VSTA)}, {v(T+4,4)} offset:8192"]
fill = []
fill += [f"v_mul_f32 {v(ACC1+i)}, {v(ACC1+i)}, {v(RSTD)}" for i in range(16)]
fill += [f"v_cvt_pk_bf16_f32 {v(ACC1+i)}, {v(ACC1+2*i)}, {v(ACC1+2*i+1)}" for i in range(8)]
fill += [f"ds_write_b128 {v(VV)}, {v(ACC1,4)}", f"v_xor_b32 {v(VV)}, 32, {v(VV)}", f"ds_write_b128 {v(VV)}, {v(ACC1+4,4)}"]
S.spread(fill, 66, 70)
S.dmas(b_dma(0), 65, 3)
S.dmas(b_dma(1), 74, 4); S.dmas(b_dma(2) + b_dma(3) + b_dma(4), int(OPT.get('ab', 86)), 1)
def kvblock():
    P(".waitvm pz lgkm0")
    P("s_barrier")
    kvflag()
    stamp("kv0"); stamp("kv1")
    P(f"s_cmp_lt_u32 {s(sW)}, 4")
    P("s_cbranch_scc0 L_nkv")
    P.cond_begin("lo4")
    P("s_setprio 3")
    t = T + 16; u = S1
    P(f"v_bfe_u32 {v(u)}, {v(vL)}, 2, 2\nv_lshrrev_b32 {v(u+1)}, 5, {v(vL)}\nv_lshl_add_u32 {v(u)}, {v(u+1)}, 3, {v(u)}\nv_lshlrev_b32 {v(u)}, 6, {v(u)}")
    P(f"v_bfe_u32 {v(u+1)}, {v(vL)}, 1, 1\nv_lshl_add_u32 {v(u)}, {v(u+1)}, 3, {v(u)}\nv_bfe_u32 {v(u+1)}, {v(vL)}, 3, 1\nv_and_b32 {v(VSTA)}, 1, {v(vL)}")
    P(f"v_or_b32 {v(t)}, {s(sSH)}, {v(VSTA)}\nv_xor_b32 {v(t)}, {v(t)}, {v(u+1)}\nv_lshl_add_u32 {v(t)}, {v(t)}, 4, {v(u)}")
    P(f"s_lshr_b32 {s(sT0)}, {s(sW)}, 1\ns_lshl_b32 {s(sT0)}, {s(sT0)}, 13\ns_add_u32 {s(sT0)}, {s(sT0)}, {RA+32768}\nv_add_u32 {v(t)}, {s(sT0)}, {v(t)}\nv_xor_b32 {v(t+1)}, 32, {v(t)}")
    P(f"v_bfe_u32 {v(t+2)}, {v(vL)}, 4, 1\nv_lshl_add_u32 {v(t+2)}, {v(VSTA)}, 1, {v(t+2)}\nv_xor_b32 {v(t+2)}, {v(t+2)}, {v(u+1)}\nv_lshl_add_u32 {v(t+2)}, {v(t+2)}, 4, {v(u)}")
    P(f"s_lshl_b32 {s(sT0)}, {s(sW)}, 13\nv_add_u32 {v(t+2)}, {s(sT0)}, {v(t+2)}\nv_xor_b32 {v(t+3)}, 32, {v(t+2)}")
    P(f"v_and_b32 {v(u)}, 16, {v(vL)}\nv_cmp_eq_u32 vcc, 0, {v(u)}\nv_mov_b32 {v(u+1)}, {s(sONE)}")
    KB = [T, T + 8, ACC1, ACC1 + 8]
    def kr(J):
        for tt in range(2):
            P(f"ds_read_b64_tr_b16 {v(KB[J&3]+2*tt,2)}, {v(t+tt)} offset:{1024*J+256*tt}")
            P(f"ds_read_b64_tr_b16 {v(KB[J&3]+4+2*tt,2)}, {v(t+2+tt)} offset:{1024*J+256*tt}")
    kr(0); kr(1); kr(2)
    for J in range(8):
        for i in range(4): P(f"v_cndmask_b32 {v(KB[J&3]+i)}, {v(u+1)}, {v(KB[J&3]+i)}, vcc")
        if J + 3 < 8: kr(J + 3)
        P(mfma(ACC0, KB[J&3] + 4, KB[J&3], "0" if J == 0 else None))
    P(f"v_lshrrev_b32 {v(u)}, 5, {v(vL)}\nv_and_b32 {v(t+2)}, 15, {v(vL)}\nv_lshlrev_b32 {v(t)}, 4, {v(t+2)}\nv_lshl_add_u32 {v(t)}, {v(u)}, 8, {v(t)}\nv_add_u32 {v(t+1)}, 512, {v(t)}")
    P(f"v_lshlrev_b32 {v(u)}, 4, {v(u)}\nv_add_u32 {v(u)}, 1024, {v(u)}\nv_lshl_add_u32 {v(u)}, {v(t+2)}, 26, {v(u)}\nv_add_u32 {v(u+1)}, 32, {v(u)}")
    P(f"v_cndmask_b32 {v(t)}, {v(u)}, {v(t)}, vcc\nv_cndmask_b32 {v(t+1)}, {v(u+1)}, {v(t+1)}, vcc")
    for i in range(8): P(f"v_cvt_pk_bf16_f32 {v(T+i)}, {v(ACC0+2*i)}, {v(ACC0+2*i+1)}")
    stamp("kv1")
    for j in range(2): P(f"buffer_store_dwordx4 {v(T+4*j,4)}, {v(t+j)}, {s(SWS,4)}, {s(sKV)} offen sc1")
    P.cond_end()
    P("L_nkv:")
    stamp("kv2")
S.blk[70] = kvblock
S.pre[94] += ["s_waitcnt lgkmcnt(0)", "s_barrier"]
def kvflag():
    P(f"s_cmp_eq_u32 {s(sW)}, 7")
    P("s_cbranch_scc0 L_nkf")
    P.cond_begin("w0")
    P(f"s_lshl_b32 {s(sT0)}, {s(sG)}, 8\ns_lshl_b32 {s(sT1)}, {s(sRT)}, 2\ns_add_u32 {s(sT0)}, {s(sT0)}, {s(sT1)}\ns_add_u32 {s(sT0)}, {s(sT0)}, {WS_KVF}")
    P(f"v_mov_b32 {v(VFV)}, 1")
    P(f"buffer_store_dword {v(VFV)}, {v(VZ)}, {s(SWS,4)}, {s(sT0)} offen sc1")
    P.cond_end()
    P("L_nkf:")
def kvpoll():
    P(f"s_cmp_eq_u32 {s(sW)}, 7")
    P("s_cbranch_scc0 L_nkp")
    n0 = len(P.ins)
    P(f"s_lshl_b32 {s(sT2)}, {s(sG)}, 8\ns_add_u32 {s(sT2)}, {s(sT2)}, {WS_KVF}\ns_mov_b32 {s(sCNT)}, 0")
    P("s_branch L_spkv1")
    P("L_spkv:")
    P(f"s_buffer_load_dwordx16 s[20:35], {s(SWS,4)}, {s(sT2)} glc")
    P("L_spkv1:")
    P(f"s_add_u32 {s(sCNT)}, {s(sCNT)}, 1")
    P("s_waitcnt lgkmcnt(0)")
    for i in range(22, 36, 2): P(f"s_and_b64 s[20:21], s[20:21], s[{i}:{i+1}]")
    P("s_and_b32 s20, s20, s21")
    P("s_cbranch_scc1 L_nkp")
    P(f"s_cmp_gt_u32 {s(sCNT)}, {SPIN_MAX}")
    P("s_cbranch_scc1 L_nkp")
    P("s_sleep 1")
    P("s_branch L_spkv")
    for I in P.ins[n0:]:
        I.cond = "kvp"
        if I.kind == "smem": I.kind = "opaque"
    P("L_nkp:")
def kvreq():
    P(f"s_cmp_eq_u32 {s(sW)}, 7")
    P("s_cbranch_scc0 L_nkr")
    n0 = len(P.ins)
    P(f"s_lshl_b32 {s(sT2)}, {s(sG)}, 8\ns_add_u32 {s(sT2)}, {s(sT2)}, {WS_KVF}")
    P(f"s_buffer_load_dwordx16 s[20:35], {s(SWS,4)}, {s(sT2)} glc")
    for I in P.ins[n0:]:
        I.cond = "kvp"
        if I.kind == "smem": I.kind = "opaque"
    P("L_nkr:")
VP = OPT.get("vp", "0") == "1"
VPA_, VPV = VX0, VSTA
vpl = f"buffer_load_dword {v(VPV)}, {v(VPA_)}, {s(SWS,4)}, 0 offen sc1"
if VP:
    S.fill[78] += lines(f"s_lshl_b32 {s(sT0)}, {s(sG)}, 8\ns_add_u32 {s(sT0)}, {s(sT0)}, {WS_KVF}\nv_and_b32 {v(VPA_)}, 3, {v(vL)}\nv_lshl_add_u32 {v(VPA_)}, {v(VPA_)}, 2, {s(sFL)}\nv_lshl_add_u32 {v(VPV)}, {v(vL)}, 2, {s(sT0)}\nv_cmp_gt_u32 vcc, 16, {v(vL)}\ns_nop 1\nv_cndmask_b32 {v(VPA_)}, {v(VPA_)}, {v(VPV)}, vcc")
    S.post[int(OPT.get("vpg", 86))] += [vpl]
    def vcheck0():
        P(f"v_mov_b32 {v(VPV)}, {v(VPV)}")
        spin("L_vp", vpl, f"v_cmp_gt_u32 vcc, 1, {v(VPV)}")
    S.blk[("e", 93)] = vcheck0
else:
    ab_ = int(OPT.get('ab', 86)); S.blk[ab_] = lambda: (kvreq(), kvpoll()); S.post[95] += [spoll(1)]
S.post[94] += [f"ds_read_b128 {v(CSR,4)}, {v(VCSA)} offset:2048"]
S.post[80] += phi_load(1, T + 8)[:2]; S.post[82] += phi_load(1, T + 8)[2:]
PQ = WF
def Gq(r): return XF + 8 * r
Z = XF + 80; GA = XF + 64
VG, VGZ = S1, S2
gsetup = lines(f"s_mul_i32 {s(sK)}, {s(sG)}, {16*KVP_SZ}\ns_lshr_b32 {s(sT0)}, {s(sW)}, 1\ns_mul_i32 {s(sT0)}, {s(sT0)}, 1152\ns_add_u32 {s(sK)}, {s(sK)}, {s(sT0)}\ns_add_u32 {s(sK)}, {s(sK)}, {WS_KVP}")
gsetup += lines(f"v_and_b32 {v(VGZ)}, 15, {v(vL)}\nv_mul_u32_u24 {v(VGZ)}, {KVP_SZ}, {v(VGZ)}\nv_and_b32 {v(VG)}, 16, {v(vL)}\nv_add_u32 {v(VGZ)}, {v(VGZ)}, {v(VG)}\ns_lshl_b32 {s(sT0)}, {s(sSH)}, 4\nv_add_u32 {v(VGZ)}, {s(sT0)}, {v(VGZ)}")
gsetup += lines(f"v_lshrrev_b32 {v(VG)}, 5, {v(vL)}\nv_mul_u32_u24 {v(VG)}, {8*KVP_SZ - 512}, {v(VG)}\nv_add_u32 {v(VG)}, {v(VG)}, {v(VL16)}\ns_lshl_b32 {s(sT0)}, {s(sSH)}, 8\nv_add_u32 {v(VG)}, {s(sT0)}, {v(VG)}")
gl = [[f"buffer_load_dwordx4 {v(Z,4)}, {v(VGZ)}, {s(SWS,4)}, {s(sK)} offen offset:1024 sc1"]]
for r in range(8):
    gl.append(lines(f"s_add_u32 {s(sD1)}, {s(sRT)}, {r}\ns_and_b32 {s(sD1)}, {s(sD1)}, 7\ns_mul_i32 {s(sD1)}, {s(sD1)}, {KVP_SZ}\ns_add_u32 {s(sD1)}, {s(sD1)}, {s(sK)}") +
              [f"buffer_load_dwordx4 {v(Gq(r),4)}, {v(VG)}, {s(SWS,4)}, {s(sD1)} offen sc1"])
S.fill[76] += gsetup
g0_ = int(OPT.get("gg", 94))
gl_in = min(9, 96 - g0_)
S.dmas(gl[:gl_in], g0_)
run_sched(S, [ACC0, ACC1, ACC2])
stamp("sub2")
P.add(aug(ACC2, CSR, None))
for g_ in gl[gl_in:gl_in+2]: P.add(g_)
for i in range(8): P(f"v_cvt_pk_bf16_f32 {v(T+i)}, {v(ACC2+2*i)}, {v(ACC2+2*i+1)}")
P(mfma(ACC1, AX, T, "0"))
P(mfma(ACC2, T + 8, T + 4, "0"))
stamp("phi")
n_tail0 = len(P.ins)
bd = sum([b_dma(kk) for kk in (5, 6, 7)], [])
TO = OPT.get("to", "a")
sm1 = softmax(ACC1, PQ, LS, True); sm2 = softmax(ACC2, PQ + 8, LS, True)
if TO == "a":
    P.add(interleave(gl[gl_in+2:], sm1[:30]) + interleave(bd[:2], sm1[30:])); bd = bd[2:]
else:
    P.add(interleave(gl[gl_in+2:], sm1[:30]) + interleave(bd[:4], sm1[30:] + sm2[:33])); bd = bd[4:]; sm2 = sm2[33:]
if not VP: sneed(1, 1)
P(spoll(0))
stamp("qsm")
validate([Z + i for i in range(4)] + [Gq(r) + i for r in range(8) for i in range(4)], T + 4, sum(gl, []))
stamp("kvseen")
aj = sum([a_jobs(kk) for kk in range(8)], [])
n_o0 = len(P.ins)
P(f"v_lshrrev_b32 {v(T+1)}, 5, {v(vL)}")
P(f"v_bfe_u32 {v(T+2)}, {v(vL)}, 4, 1\nv_lshlrev_b32 {v(T+2)}, 9, {v(T+2)}\nv_lshl_add_u32 {v(T+2)}, {v(T+1)}, 3, {v(T+2)}")
P(f"s_lshl_b32 {s(sT0)}, {s(sW)}, 10\ns_add_u32 {s(sT0)}, {s(sT0)}, {L_KVB}\nv_add_u32 {v(T+2)}, {s(sT0)}, {v(T+2)}")
P(f"v_and_b32 {v(T+3)}, 15, {v(vL)}\nv_lshl_add_u32 {v(T+3)}, {v(T+3)}, 4, {v(T+2)}")
P(f"v_cmp_gt_u32 vcc, 32, {v(vL)}\ns_mov_b32 {s(sT0)}, 0x3f80\ns_mov_b32 {s(sT1)}, 0x3f800000")
P(f"v_cndmask_b32 {v(Z)}, {v(Z+2)}, {v(Z)}, vcc\nv_cndmask_b32 {v(Z+1)}, {v(Z+3)}, {v(Z+1)}, vcc")
P(f"v_lshlrev_b32 {v(Z+8)}, 16, {v(Z)}\nv_and_b32 {v(Z+9)}, 0xffff0000, {v(Z)}\nv_lshlrev_b32 {v(Z+10)}, 16, {v(Z+1)}\nv_and_b32 {v(Z+11)}, 0xffff0000, {v(Z+1)}")
for ror in (8, 4, 2, 1):
    for i in range(4): P(f"v_add_f32_dpp {v(Z+8+i)}, {v(Z+8+i)}, {v(Z+8+i)} row_ror:{ror} row_mask:0xf bank_mask:0xf")
P(f"v_cvt_pk_bf16_f32 {v(Z)}, {v(Z+8)}, {v(Z+9)}\nv_cvt_pk_bf16_f32 {v(Z+1)}, {v(Z+10)}, {v(Z+11)}")
P(f"ds_write_b64 {v(T+2)}, {v(Z,2)} offset:256")
def ga(i): return GA + (i & 3) + 8 * (i >> 2)
for i in range(4):
    P(f"v_lshlrev_b32 {v(ga(2*i))}, 16, {v(Gq(0)+i)}\nv_and_b32 {v(ga(2*i+1))}, 0xffff0000, {v(Gq(0)+i)}")
for r in range(1, 8):
    for i in range(4):
        P(f"v_dot2c_f32_bf16 {v(ga(2*i))}, {s(sT0)}, {v(Gq(r)+i)}\nv_dot2c_f32_bf16 {v(ga(2*i+1))}, {s(sT1)}, {v(Gq(r)+i)}")
for i in range(4): P(f"v_permlane32_swap_b32 {v(ga(i))}, {v(ga(i+4))}")
for i in range(4): P(f"v_add_f32 {v(ga(i))}, {v(ga(i))}, {v(ga(i+4))}")
P(f"v_cvt_pk_bf16_f32 {v(GA)}, {v(GA)}, {v(GA+1)}\nv_cvt_pk_bf16_f32 {v(GA+1)}, {v(GA+2)}, {v(GA+3)}")
P(f"ds_write_b64 {v(T+3)}, {v(GA,2)}")
stamp("gsum")
P(f"v_and_b32 {v(T)}, 31, {v(vL)}\nv_min_u32 {v(T)}, 16, {v(T)}\nv_and_b32 {v(T+1)}, 32, {v(vL)}\nv_add_u32 {v(T)}, {v(T)}, {v(T+1)}\nv_lshlrev_b32 {v(T)}, 4, {v(T)}")
P(f"s_lshl_b32 {s(sT0)}, {s(sHALF)}, 12\ns_add_u32 {s(sT0)}, {s(sT0)}, {L_KVB}\nv_add_u32 {v(T)}, {s(sT0)}, {v(T)}")
body = P.ins[n_o0:]; del P.ins[n_o0:]
for i, g_ in enumerate(bd):
    P.add(g_); P.ins += body[len(body)*i//len(bd): len(body)*(i+1)//len(bd)]
stamp("pre1")
sneed(1, 0)
stamp("post1")
if NP: aj = aj[:4]
P.add(interleave(aj, sm2))
stamp("sm2")
P(".waitvm b7 lgkm0")
if OPT.get("tp"):
    per = int(OPT["tp"]); body = P.ins[n_tail0:]; del P.ins[n_tail0:]; c = 0; lv = 3
    P("s_setprio 3")
    for I in body:
        P.ins.append(I)
        if I.kind == "valu" and not I.cond and not I.op.startswith("v_cmp"):
            c += 1
            if c % per == 0: lv = (lv - 1) & 3; P(f"s_setprio {lv}")
stamp("ob0")
P("s_barrier")
stamp("ob1")
for i in range(4): P(f"ds_read_b128 {v(Gq(i),4)}, {v(T)} offset:{1024*i}")
P(mfma(ACC0, Gq(0), PQ, "0")); P(mfma(ACC1, Gq(2), PQ + 8, "0"))
P(mfma(ACC0, Gq(1), PQ + 4)); P(mfma(ACC1, Gq(3), PQ + 12))
if NP: P(spoll(0))
EA = int(OPT.get("ea", 0))
if EA and not NP:
    for kk in range(8, 8 + EA): P.add(a_jobs(kk)[0])
for hl, acc in enumerate((ACC0, ACC1)):
    P(f"v_add_f32 {v(acc+8)}, {f2u(1e-6):#x}, {v(acc+8)}\nv_rcp_f32 {v(acc+8)}, {v(acc+8)}")
    for i in range(0, 8, 2): P(f"v_pk_mul_f32 {v(acc+i,2)}, {v(acc+i,2)}, {v(acc+8,2)} op_sel_hi:[1,0]")
    for i in range(4): P(f"v_cvt_pk_bf16_f32 {v(T+4*hl+i)}, {v(acc+2*i)}, {v(acc+2*i+1)}")
    P(f"buffer_store_dwordx4 {v(T+4*hl,4)}, {v(VL16)}, {s(SWS,4)}, {s(sOS)} offen offset:{1024*hl} sc1 ; ost")
stamp("p1end")
if V3: phase2_v3((8,), (), False)
elif V2: phase2_v2((8,), False)
else: phase2(("B6", "B7"), "A4 A5 A6 B8 A7 B9 A8 B10 A9 B11 A10 B12 A11 B13 A12 B14 A13 B15 B16 B17 A14 A15 A16 A17")

P("L_ffn:")
P(".reset")
setup(True)
KAREA[:] = [RC, RA+2*Q, RA+3*Q, RB, RB+Q, RB+2*Q, RA, RA+Q, RB+3*Q]
MC = ACC2; CSF = ACC2 + 4
S = Sched(112)
common_sched(S, True, None, MC)
S.post[30] += [f"ds_read_b128 {v(CSF,4)}, {v(VCSA)}"]
if not NP: S.post[40] += [f"s_add_u32 {s(sT2)}, {s(sH0)}, 4096", f"s_add_u32 {s(sK)}, {s(sH0)}, 8192"]
pzs = [[f"buffer_store_dwordx4 {v(PZ,4)}, {v(VL16)}, {s(SWS,4)}, {s(so)} offen offset:{off} sc1 ; tag=h1"]
       for so, off in ((sT2, 0), (sT2, 1024), (sK, 0), (sK, 1024), (sH3, 0))[:0 if NP else 2 if OFFL else 5]]
for g_, G in zip(pzs, [int(x) for x in OPT.get("pz", "50,56,59,67,70").split(",")]): S.post[G] += g_
S.post[31] += stamp_i("pass1")
fill = stats_final() + aug(ACC0, CSF, BIAS)
fill += [f"v_mul_f32 {v(K1)}, {f2u(GC1):#x}, {v(RSTD)}", f"v_mul_f32 {v(K2)}, {v(RSTD)}, {v(RSTD)}",
         f"v_mul_f32 {v(K2)}, {v(K2)}, {v(RSTD)}", f"v_mul_f32 {v(K2)}, {f2u(GC2):#x}, {v(K2)}"]
S.spread(fill, 32, 39)
S.spread(gelu(ACC0, 16) + hstore(sH0, 2, "h1") + [f"s_add_u32 {s(sH0)}, {s(sH0)}, 4096"], 39, 64)
S.post[62] += [f"ds_read_b128 {v(CSF,4)}, {v(VCSA)} offset:1024"]
S.post[63] += stamp_i("sub1")
S.spread(aug(ACC1, CSF, BIAS + 1), 64, 66)
S.spread(gelu(ACC1, 16) + hstore(sH0, 2, "h2") + [f"s_add_u32 {s(sH0)}, {s(sH0)}, 4096"], 67, 96)
w3 = sum([w3quarter(q, 3584) for q in range(4)], [])
for g_, G in zip(w3 + b_dma(0), [int(x) for x in OPT.get("w3", "64,68,72,76,74,75" if OPT.get("few", "1") == "1" else "48,54,60,72,75,76").split(",")]): S.dma[G] += g_
S.dmas(b_dma(1), 78, 2); S.dmas(b_dma(2), 82, 2); S.dmas(b_dma(3), 86, 2); S.dmas(b_dma(4), 90, 2); S.dmas(b_dma(5), 98, 2)
S.pre[94] += [".waitvm w3 lgkm0", "s_barrier"]
S.post[94] += [f"ds_read_b128 {v(CSF,4)}, {v(VCSA)} offset:2048"]
S.post[95] += stamp_i("sub2")
if V2 and PX1:
    for j, G in zip((1, 2, 3), [int(x) for x in OPT.get("pxg", "91,93,102").split(",")]): S.post[G] += xoff(j, True) + [f"buffer_store_dwordx4 {v(PZ,4)}, {v(VL16)}, {s(SWS,4)}, {s(sT0)} offen sc1 ; tag=px"]
S.fill[96] += aug(ACC0, CSF, BIAS + 2)
if OFFL: S.post[106] += [f"s_sub_u32 {s(sT2)}, {s(sFO)}, 1024", f"s_buffer_load_dword {s(sK)}, {s(SWS,4)}, {s(sT2)} glc"]
S.spread(gelu(ACC0, 16), 98, 112)
if V3: S.post[97] += va3_init
aj = sum([a_jobs(kk) for kk in range(4 if NP else 8 if V2 and not V3 else 6)], []) + [[]] * 8
S.dmas(aj[:6], 106); aj = aj[2:]
for i in range(0, 16, 2): S.post[96 + i] += [m16(MC, SEL, WF + 4 * (i & 3), "0" if i == 0 else None)]
run_sched(S, [ACC0, ACC1, ACC0, ACC1])
t = T + 16
P(f"v_and_b32 {v(t)}, 31, {v(vL)}\ns_lshl_b32 {s(sT0)}, {s(sHALF)}, 4\nv_xor_b32 {v(t)}, {s(sT0)}, {v(t)}\nv_lshlrev_b32 {v(t)}, 4, {v(t)}\nv_add_u32 {v(t)}, {L_CS+3072}, {v(t)}")
P(f"v_add_u32 {v(t+1)}, {s(sW34)}, {v(VCSA)}")
P(f"ds_write_b32 {v(t+1)}, {v(MC)} offset:3072")
P.add(aj[4])
XO = 4096 if V2 else 1024
P(f"s_add_u32 {s(sT1)}, {s(sMB if V2 else sM0x)}, {KAREA[8]}\ns_xor_b32 {s(sT0)}, {s(sT1)}, 8192\nv_add_u32 {v(t+1)}, {s(sT0)}, {v(VL16)}\nv_add_u32 {v(AB)}, {s(sT1)}, {v(VL16)}")
P(f"ds_write_b128 {v(t+1)}, {v(ACC1+8,4)}\nds_write_b128 {v(t+1)}, {v(ACC1+12,4)} offset:{XO}")
P(".waitvm b5 lgkm0")
P("s_barrier")
stamp("sub3")
P(f"ds_read_b128 {v(CSF,4)}, {v(t)}")
P(f"ds_read_b128 {v(ACC0,4)}, {v(AB)}\nds_read_b128 {v(ACC0+4,4)}, {v(AB)} offset:{XO}")
P.add(aj[5])
P.add(aug(ACC1, CSF, BIAS + 3))
P.add(aj[6] + aj[7])
if NP: P.add(flag(2, "h2"))
for i in range(0, 8, 2): P(f"v_pk_add_f32 {v(ACC1+i,2)}, {v(ACC1+i,2)}, {v(ACC0+i,2)}")
stamp("x7")
gt = gelu(ACC1, 8, True, out=BIAS); h3 = hstore(sH0, 2, "h3")
sneed(1, 1)
if OFFL: own_check()
P.add(aj[8] + gt[:10] + aj[9] + gt[10:20] + [h3[0]] + gt[20:30] + [h3[1]] + gt[30:] + hstore(sH3, 1, "h4", BIAS))
stamp("p1end")
if V3: phase2_v3((6, 7, 8), (6, 7), True)
elif V2: phase2_v2((6, 7, 8), True)
else: phase2(("A4", "A5"), "B6 A6 B7 A7 B8 B9 A8 B10 A9 B11 A10 B12 A11 B13 A12 B14 A13 B15 B16 B17 A14 A15 A16 A17", True)

P("L_end:")
P("s_endpgm")

ins = P.ins
for I in ins:
    if "; nodef" in I.text: I.defs = []
if OPT.get("nodma"): ins = [I for I in ins if I.kind != "dma"]
if OPT.get("notr"): ins = [I for I in ins if not I.op.startswith("ds_read_b64_tr")]
if OPT.get("nofmac"): ins = [I for I in ins if not (I.op.startswith("v_fmac") or (I.op == "v_and_b32" and "0xffff0000" in I.text) or (I.op == "v_lshlrev_b32" and I.ops[1] == "16"))]
if OPT.get("nom16"): ins = [I for I in ins if "16x16x32" not in I.op]
if OPT.get("notrans"): ins = [I for I in ins if not I.op.startswith(("v_exp", "v_rcp"))]
if OPT.get("novalu"): ins = [I for I in ins if not I.op.startswith(("v_exp", "v_rcp", "v_mul_f32", "v_fma_f32", "v_cvt_pk", "v_max3", "v_add_f32"))]
if OPT.get("nopk"): ins = [I for I in ins if not I.op.startswith(("v_pk_", "v_dot2c"))]
if OPT.get("noval"): ins = [I for I in ins if not (I.op == "s_cbranch_vccnz" and "_slow" in I.text)]
if OPT.get("noa"): ins = [I for I in ins if not (I.kind == "vld" and "x4" in I.op and "sc1" in I.mods)]
if OPT.get("nob"): ins = [I for I in ins if not (I.kind == "dma" and (s(SW2,4) in I.text or s(SWO,4) in I.text))]
if OPT.get("anosc"):
    for I in ins:
        if I.kind == "vld" and "x4" in I.op: I.text = I.text.replace(" sc1", " " + OPT["anosc"].replace("0", ""))
if OPT.get("nopz"): ins = [I for I in ins if not (I.kind == "vst" and "x4" in I.op and (v(PZ,4) in I.text or v(AAUG,4) in I.text) and s(SWS,4) in I.text)]
if OPT.get("plain"):
    for I in ins:
        if I.kind == "vst" and "x4" in I.op and s(SWS,4) in I.text and ("tag=h" in I.text or "tag=po" in I.text or "; ost" in I.text): I.text = I.text.replace(" sc1", "")
if OPT.get("nohs"):
    ins = [I for I in ins if not (I.op.startswith("s_buffer_load") or I.text.startswith((".waitvm h", ".waitvm po", ".waitvm zf")) or (I.op == "s_branch" and ("L_sp" in I.text or "L_ncs" in I.text or "L_oc" in I.text) and "spkv1" not in I.text))]
    for I in ins:
        if I.text.startswith(".waitvm pz"): I.text = ".waitvm none lgkm0"
if OPT.get("nost"): ins = [I for I in ins if not (I.kind == "vst" and "x4" in I.op and "tag=h" in I.text)]
if OPT.get("nomfma"): ins = [I for I in ins if I.kind != "mfma"]
if STAMP:
    for I in ins:
        if I.op in ("s_memrealtime", "s_memtime"): I.kind = "salu"
if OPT.get("nopx"): ins = [I for I in ins if not (I.kind == "vst" and "tag=px" in I.text)]
if OPT.get("nopo"): ins = [I for I in ins if not (I.kind == "vst" and "x4" in I.op and I.ops[0] == v(AAUG,4) and s(SWS,4) in I.text)]
ins = auto_wait(ins)
st = []
ins = hazards(ins, st)
hdr = open("parallel_sum__linear_kernel_hedgehog__dense_activation_gelu__prompt.s.ref").read().split("; Override")[0]
out = hdr + f"; @launch grid=(256,1,1) block=(512,1,1) lds={LDS_SIZE}\n"
out += f'.amdgcn_target "amdgcn-amd-amdhsa--gfx950"\n.text\n.globl {NAME}\n.p2align 8\n.type {NAME},@function\n{NAME}:\n'
out += render(ins)
out += f""".section .rodata,"a"
.p2align 6
.amdhsa_kernel {NAME}
  .amdhsa_next_free_vgpr 256
  .amdhsa_next_free_sgpr 102
  .amdhsa_accum_offset 256
  .amdhsa_group_segment_fixed_size 0
  .amdhsa_kernarg_size 96
  .amdhsa_user_sgpr_count 2
  .amdhsa_user_sgpr_kernarg_segment_ptr 1
  .amdhsa_system_sgpr_workgroup_id_x 1
.end_amdhsa_kernel
"""
open(sys.argv[1], "w").write(out)
print(f"instrs={sum(1 for I in ins if I.kind not in ('label','dir'))} nop-sites={len(st)} nop-states={sum(n for n,_ in st)}", file=sys.stderr)
if OPT.get("nops"):
    for n, tx in st: print(n, tx, file=sys.stderr)
```

```python
import sys, math, struct
from ir import *

NAME = "parallel_sum__linear_kernel_hedgehog__dense_activation_gelu__prompt_kernel"
OPT = dict(a.split("=") for a in sys.argv[2:] if "=" in a)
STAMP = int(OPT.get("stamp", 0))

def f2u(x): return struct.unpack("<I", struct.pack("<f", x))[0]
LOG2E = 1.4426950408889634
GC1 = -2.0 * LOG2E * math.sqrt(2.0 / math.pi)
GC2 = GC1 * 0.044715

HF_RB = 144 * 1024
WS_KVP = 0xA00000
KVP_SZ = 4608
WS_FLG = 0xC00000
WS_KVF = 0xC08000
WS_STAMP = 0xD00000
WS_X = 0x1000000
WS_SIZE = 0x1800000
NP = OPT.get('np', '1') == '1'
if NP: OPT['r8'] = '0'
V3 = OPT.get('p2', '2') == '3'
V2 = OPT.get('p2', '2') in '23'
RA, RB, RC = 0, 65536, 131072
L_KVB = 147456
L_CS = 155648
L_ST = L_CS + 4096
L_WPHI = L_CS + 6144
LDS_SIZE = 163840
SPIN_MAX = 1 << 15

sW, sRT, sG, sM, sN = 3, 4, 5, 6, 7
SX, SW2, SWS, SWT, SAUX, SDBG, SWO, SOUT = 8, 12, 16, 20, 24, 28, 36, 40
sXo, sWo, sROT, sC1 = 32, 33, 34, 35
SB2 = 92
sFL, sOo, sM0x, sT0, sT1, sSIG, sONE, sFO, sHALF, sHo, sWq, sW3, sT2, sCNT, sW34, sT3 = range(44, 60)
sEX = 60
sH0, sH3, sM4, sK = 62, 63, 64, 65
sST = 66
sB2o, sBOo = 90, 91
sA0, sA1, sR4, sSH, sD0, sD1 = range(96, 102)
sOK = sSIG
sQ = [sXo, sWo, sROT, sC1]
sPL = 28
VCSA = 0; vL = 1
AX = 2; AW = 6; AB = 10; VZ, VFV = 12, 13
VX0, VX1, VW, VB, VW3 = 14, 15, 16, 17, 18
VSTA, S1, S2, CS0 = 19, 20, 21, 22
VW0 = 22
RSTD, STD, K1, K2, VL16 = 23, 24, 25, 26, 27
BAUG, AAUG, SEL, BIAS = 28, 32, 36, 40
T = 44
WF = 64
ACC0, ACC1, ACC2 = 80, 96, 112
XF = 128
VTD = int(OPT.get('vtd', 15))
PZ = ACC2 + 8

P = Prog()
STI = dict(start=0, kernarg=1, it0=2, pass1=3, sub1=4, sub2=5, qsm=6, sub3=6, kvseen=7, x7=7, p1end=8, hseen=9, p2mm=10, end=11)
if OPT.get("sp") == "p2": STI = dict(start=0, p1end=1, k1=2, k3=3, k5=4, k7=5, k9=6, k11=7, k13=8, k15=9, p2mm=10, end=11)
if OPT.get("sp") == "att": STI = dict(start=0, sub1=1, kv0=2, kv1=3, kv2=4, sub2=5, qsm=6, kvseen=7, sm2=8, gsum=9, p1end=10, end=11)
if OPT.get("sp", "").startswith("l:"): STI = {n: i for i, n in enumerate(["start"] + OPT["sp"][2:].split(","))}
def stamp_i(name):
    if not STAMP or name not in STI: return []
    i = STI[name]
    return [f"{'s_memrealtime' if STAMP == 1 else 's_memtime'} {s(sST + 2*i, 2)} ; stamp {i} {name}"]
def stamp(name): P.add(stamp_i(name))

def mfma(d, a, b, c=None):
    return f"v_mfma_f32_32x32x16_bf16 {v(d,16)}, {v(a,4)}, {v(b,4)}, {v(d,16) if c is None else c}"
def m16(d, a, b, c=None):
    return f"v_mfma_f32_16x16x32_bf16 {v(d,4)}, {v(a,4)}, {v(b,4)}, {v(d,4) if c is None else c}"
def srd(base, nbytes):
    P(f"s_mov_b32 {s(base+2)}, {nbytes}\ns_mov_b32 {s(base+3)}, 0x20000")
def lines(t): return [l for l in t.split("\n") if l.strip()]

P("s_cmp_ge_u32 s2, 256")
P("s_cbranch_scc1 L_end")
stamp("start")
if OPT.get("exit0"): P("s_endpgm")
if OPT.get("cpf", "1") == "3":
    P(f"s_getpc_b64 {s(sEX,2)}")
    P("L_pc0:")
    P(f"v_subrev_u32 v3, 320, v0\nv_cmp_gt_u32 vcc, 16, v3\ns_lshr_b32 {s(sT0)}, s2, 3\ns_lshl_b32 {s(sT0)}, {s(sT0)}, 11")
    P("s_cbranch_vccz L_ncp0")
    P.cond_begin("cp0")
    P(f"v_and_b32 v3, 15, v3\nv_lshlrev_b32 v3, 7, v3\nv_add_u32 v3, {s(sT0)}, v3\nv_min_u32 v3, L_end-L_pc0, v3")
    P(f"global_load_dword v253, v3, {s(sEX,2)}")
    P.cond_end()
    P("L_ncp0:")
if OPT.get("cpf", "1") == "2":
    P(f"s_getpc_b64 {s(sEX,2)}")
    P("L_pc0:")
    P(f"v_lshlrev_b32 v3, 7, v0")
    P(f"v_min_u32 v3, L_end-L_pc0, v3")
    P(f"global_load_dword v253, v3, {s(sEX,2)}")
P(f"s_load_dwordx2 {s(SX,2)}, s[0:1], 0")
P(f"s_load_dwordx2 {s(SWT,2)}, s[0:1], 8")
P(f"s_load_dwordx2 {s(sA0,2)}, s[0:1], 40")
P(f"v_lshrrev_b32 v2, 6, v0")
P(f"v_and_b32 {v(vL)}, 63, v0")
P(f"s_lshr_b32 {s(sT1)}, s2, 3")
P(f"v_readfirstlane_b32 {s(sW)}, v2")
OWN = False
P(f"s_and_b32 {s(sRT)}, s2, 4\ns_lshl_b32 {s(sRT)}, {s(sRT)}, 1\ns_and_b32 {s(sT2)}, {s(sT1)}, 7\ns_add_u32 {s(sRT)}, {s(sRT)}, {s(sT2)}")
P(f"v_lshrrev_b32 v2, 3, {v(vL)}\nv_and_b32 v3, 7, {v(vL)}\nv_lshrrev_b32 v4, 4, {v(vL)}")
P(f"s_lshl_b32 {s(sXo)}, {s(sRT)}, 17\ns_lshl_b32 {s(sT2)}, {s(sW)}, 14\ns_add_u32 {s(sXo)}, {s(sXo)}, {s(sT2)}")
P(f"v_xor_b32 v5, v3, v4\nv_lshl_add_u32 v5, v5, 4, {s(sXo)}\nv_lshl_add_u32 {v(VX0)}, v2, 10, v5")
P(f"s_lshr_b32 {s(sN)}, {s(sT1)}, 3\ns_lshl_b32 {s(sT2)}, {s(sN)}, 1\ns_add_u32 {s(sROT)}, {s(sRT)}, {s(sT2)}\ns_and_b32 {s(sROT)}, {s(sROT)}, {0 if OPT.get('norot') else OPT.get('rm', 7)}")
P(f"v_xor_b32 v5, 64, {v(VX0)}\nv_add_u32 {v(VX1)}, {8192-1024}, v5")
srd(SX, 2097152)
P(f"s_lshl_b32 {s(sM0x)}, {s(sW)}, 11\ns_lshl_b32 {s(sK)}, {s(sROT)}, 7\ns_mov_b32 m0, {s(sM0x)}")
P(f"v_and_b32 v4, 1, v4\nv_lshlrev_b32 v4, 2, v4\nv_xor_b32 v4, v3, v4\nv_lshlrev_b32 v4, 4, v4")
P(f"s_and_b32 {s(sM)}, s2, 3\ns_lshl_b32 {s(sG)}, {s(sM)}, 1\ns_lshr_b32 {s(sT2)}, {s(sT1)}, 4\ns_add_u32 {s(sG)}, {s(sG)}, {s(sT2)}")
P(f"s_lshr_b32 {s(sD0)}, {s(sM0x)}, 1")
P("s_waitcnt lgkmcnt(0)")
stamp("kernarg")
P(f"buffer_load_dwordx4 {v(VX0)}, {s(SX,4)}, {s(sK)} offen lds")
P(f"buffer_load_dwordx4 {v(VX1)}, {s(SX,4)}, {s(sK)} offen offset:1024 lds")
P(f"s_load_dwordx2 {s(SWS,2)}, s[0:1], 88")
P(f"s_load_dwordx2 {s(SDBG,2)}, s[0:1], 80")
P(f"s_load_dwordx2 {s(SW2,2)}, s[0:1], 56")
P(f"s_load_dwordx2 {s(SWO,2)}, s[0:1], 24")
P(f"s_load_dwordx2 {s(SOUT,2)}, s[0:1], 72")
P(f"s_load_dwordx2 {s(SB2,2)}, s[0:1], 64")
assert V2
P(f"s_bitcmp1_b32 {s(sT1)}, 3")
P("s_cbranch_scc1 L_ffn")

def item1(it, pitch):
    q = it & 3
    return [[f"s_add_u32 m0, {s(sM0x)}, {RA+q*16384}", f"s_mul_i32 {s(sD1)}, {s(sK)}, {pitch//2}",
             f"buffer_load_dwordx4 {v(VX0)}, {s(SX,4)}, {s(sK)} offen lds"],
            [f"buffer_load_dwordx4 {v(VX1)}, {s(SX,4)}, {s(sK)} offen offset:1024 lds"],
            [f"s_add_u32 m0, {s(sD0)}, {RB+it*8192}", f"s_add_u32 {s(sK)}, {s(sK)}, 128",
             f"buffer_load_dwordx4 {v(VW0)}, {s(SWT,4)}, {s(sD1)} offen lds ; tag=it{it}",
             f"s_and_b32 {s(sK)}, {s(sK)}, 1023"]]
def wquarter(region, q, coloff, pitch, tag):
    return [[f"s_add_u32 m0, {s(sM0x)}, {region+q*16384}", f"s_add_u32 {s(sD1)}, {s(sQ[q])}, {coloff}",
             f"buffer_load_dwordx4 {v(VW)}, {s(SWT,4)}, {s(sD1)} offen lds"],
            [f"s_add_u32 {s(sD1)}, {s(sD1)}, {8*pitch-1024}",
             f"buffer_load_dwordx4 {v(VW)}, {s(SWT,4)}, {s(sD1)} offen offset:1024 lds ; tag={tag}"]]
def w3quarter(q, pitch):
    return [[f"s_lshr_b32 {s(sD1)}, {s(sM0x)}, 1", f"s_add_u32 m0, {s(sD1)}, {RA+q*8192}", "s_nop 0",
             f"buffer_load_dwordx4 {v(VW3)}, {s(SWT,4)}, {s(sQ[q])} offen lds ; tag=w3"]]

def spin(label, load, cmp):
    P(f"s_mov_b32 {s(sCNT)}, 0")
    P(f"{label}:")
    P(cmp)
    P(f"s_add_u32 {s(sCNT)}, {s(sCNT)}, 1")
    P(f"s_cbranch_vccz {label}_ok")
    P(f"s_cmp_gt_u32 {s(sCNT)}, {SPIN_MAX}")
    P(f"s_cbranch_scc1 {label}_ok")
    P("s_sleep 1")
    old = P._cond; P._cond = label
    P(load)
    P("s_waitcnt vmcnt(0)")
    P._cond = old
    P(f"s_branch {label}")
    P(f"{label}_ok:")

def gelu(acc, n, pk=False, t0=T, out=T):
    L = []
    for g4 in range(0, n, 4):
        t = t0 + 8 + (g4 & 4)
        a = [acc + g4 + i for i in range(4)]
        if pk:
            L += [f"v_pk_mul_f32 {v(t+i,2)}, {v(a[i],2)}, {v(a[i],2)}" for i in (0, 2)]
            L += [f"v_pk_fma_f32 {v(t+i,2)}, {v(t+i,2)}, {v(K2,2)}, {v(STD,2)} op_sel:[0,0,1] op_sel_hi:[1,0,1]" for i in (0, 2)]
            L += [f"v_pk_mul_f32 {v(t+i,2)}, {v(a[i],2)}, {v(t+i,2)}" for i in (0, 2)]
        else:
            L += [f"v_mul_f32 {v(t+i)}, {v(a[i])}, {v(a[i])}" for i in range(4)]
            L += [f"v_fma_f32 {v(t+i)}, {v(t+i)}, {v(K2)}, {v(K1)}" for i in range(4)]
            L += [f"v_mul_f32 {v(t+i)}, {v(a[i])}, {v(t+i)}" for i in range(4)]
        L += [f"v_exp_f32 {v(t+i)}, {v(t+i)}" for i in range(4)]
        if pk: L += [f"v_pk_fma_f32 {v(t+i,2)}, {v(t+i,2)}, {v(STD,2)}, {v(STD,2)} op_sel_hi:[1,0,0]" for i in (0, 2)]
        else: L += [f"v_fma_f32 {v(t+i)}, {v(t+i)}, {v(STD)}, {v(STD)}" for i in range(4)]
        L += [f"v_rcp_f32 {v(t+i)}, {v(t+i)}" for i in range(4)]
        if pk: L += [f"v_pk_mul_f32 {v(t+i,2)}, {v(a[i],2)}, {v(t+i,2)}" for i in (0, 2)]
        else: L += [f"v_mul_f32 {v(t+i)}, {v(a[i])}, {v(t+i)}" for i in range(4)]
        pr = out + (g4 >> 1)
        L += [f"v_cvt_pk_bf16_f32 {v(pr)}, {v(t)}, {v(t+1)}", f"v_cvt_pk_bf16_f32 {v(pr+1)}, {v(t+2)}, {v(t+3)}"]
    return L
def hstore(soff, n, tagn, src=T):
    return [f"buffer_store_dwordx4 {v(src+4*j,4)}, {v(VL16)}, {s(SWS,4)}, {s(soff)} offen offset:{1024*j} sc1 ; tag={tagn}" for j in range(n)]
assert K1 == STD + 1

def sum4(d, r):
    return [f"v_add_f32 {v(d)}, {v(r)}, {v(r+1)}", f"v_add_f32 {v(r+2)}, {v(r+2)}, {v(r+3)}", f"v_add_f32 {v(d)}, {v(d)}, {v(r+2)}"]

MS, U = T + 4, T + 16
CSR = T + 12
MC = AAUG

def stats_final():
    t = T + 16
    return [f"v_add_f32 {v(S1)}, {v(MS)}, {v(MS+2)}", f"v_add_f32 {v(S2)}, {v(MS+1)}, {v(MS+3)}",
          f"v_mul_f32 {v(S1)}, {f2u(-1.0/512):#x}, {v(S1)}",
          f"v_mul_f32 {v(t)}, {v(S1)}, {v(S1)}",
          f"v_fma_f32 {v(S2)}, {v(S2)}, {s(sT3)}, -{v(t)}",
          f"v_max_f32 {v(S2)}, 0, {v(S2)}",
          f"v_add_f32 {v(S2)}, {f2u(1e-5):#x}, {v(S2)}",
          f"v_rsq_f32 {v(RSTD)}, {v(S2)}",
          f"v_cvt_pk_bf16_f32 {v(t)}, {v(S1)}, {v(S1)}",
          f"v_mul_f32 {v(STD)}, {v(S2)}, {v(RSTD)}",
          f"v_and_b32 {v(t+1)}, 0xffff0000, {v(t)}",
          f"v_sub_f32 {v(t+1)}, {v(S1)}, {v(t+1)}",
          f"v_cvt_pk_bf16_f32 {v(BAUG)}, {v(S1)}, {v(t+1)}",
          f"v_cvt_pk_bf16_f32 {v(BAUG+1)}, {v(S1)}, {v(STD)}",
          f"v_and_b32 {v(t+1)}, 0xffff0000, {v(BAUG+1)}",
          f"v_sub_f32 {v(t+1)}, {v(STD)}, {v(t+1)}",
          f"v_cmp_gt_u32 vcc, 32, {v(vL)}",
          f"v_cvt_pk_bf16_f32 {v(BAUG+2)}, {v(t+1)}, 0",
          f"v_cndmask_b32 {v(BAUG)}, 0, {v(BAUG)}, vcc",
          f"v_cndmask_b32 {v(BAUG+1)}, 0, {v(BAUG+1)}, vcc",
          f"v_cndmask_b32 {v(BAUG+2)}, 0, {v(BAUG+2)}, vcc"]

def aug(acc, part, bias):
    t = T + 18; dst = AAUG
    L = sum4(CS0, part) + [f"v_cvt_pk_bf16_f32 {v(dst)}, {v(CS0)}, {v(CS0)}",
         f"v_and_b32 {v(t)}, 0xffff0000, {v(dst)}",
         f"v_sub_f32 {v(t)}, {v(CS0)}, {v(t)}"]
    if bias is None:
        L += [f"v_cvt_pk_bf16_f32 {v(dst+1)}, {v(t)}, 0"]
    else:
        L += [f"v_cvt_pk_bf16_f32 {v(t)}, {v(t)}, 0", f"v_mov_b32 {v(dst+2)}, {v(bias)}",
              f"v_lshl_or_b32 {v(dst+1)}, {v(bias)}, 16, {v(t)}"]
    return L + [mfma(acc, dst, BAUG)]

def flag(level, tag):
    return [f".waitvm {tag}", f"v_mov_b32 {v(VFV)}, {level}",
            f"buffer_store_dword {v(VFV)}, {v(VZ)}, {s(SWS,4)}, {s(sFO)} offen sc1"]

Q = 16384
KAREA = []
sSK = sM4 if V2 else sSH
sMB = sSIG
def rot_k(kk, dst):
    if kk < 8 and OPT.get("r8", "1") == "1": return [f"s_add_u32 {s(dst)}, {s(sR4)}, {kk}", f"s_and_b32 {s(dst)}, {s(dst)}, 7", f"s_add_u32 {s(dst)}, {s(dst)}, {s(sSK)}"]
    if kk < 12: return [f"s_add_u32 {s(dst)}, {s(sR4)}, {kk}", f"s_and_b32 {s(dst)}, {s(dst)}, 3", f"s_add_u32 {s(dst)}, {s(dst)}, {s(sSK)}"] + \
                       ([f"s_add_u32 {s(dst)}, {s(dst)}, {kk & ~3}"] if kk & ~3 else [])
    if kk < 14: return [f"s_mul_i32 {s(dst)}, {s(sSK)}, 6", f"s_sub_u32 {s(dst)}, {kk}, {s(dst)}"]
    return [f"s_add_u32 {s(dst)}, {s(sR4)}, {kk-14}", f"s_and_b32 {s(dst)}, {s(dst)}, 3"]
def rot_p(sg, dst, sh):
    add = lambda x: ([f"s_add_u32 {s(dst)}, {s(dst)}, {x}"] if x else [])
    shf = (lambda: add(sh)) if isinstance(sh, int) else (lambda: [f"s_add_u32 {s(dst)}, {s(dst)}, {s(sh[0])}"])
    if sg < 4: return [f"s_add_u32 {s(dst)}, {s(sR4)}, {sg}", f"s_and_b32 {s(dst)}, {s(dst)}, 3"] + shf()
    if sg < 6: return [f"s_add_u32 {s(dst)}, {s(sR4)}, {sg}", f"s_and_b32 {s(dst)}, {s(dst)}, 1", f"s_add_u32 {s(dst)}, {s(dst)}, 4"] + shf()
    if sg == 6: return [f"s_mov_b32 {s(dst)}, {6 - 6*sh}"] if isinstance(sh, int) else [f"s_mul_i32 {s(dst)}, {s(sh[0])}, 6", f"s_sub_u32 {s(dst)}, 6, {s(dst)}"]
    return [f"s_add_u32 {s(dst)}, {s(sR4)}, {sg}", f"s_and_b32 {s(dst)}, {s(dst)}, 1"]
def b_dma(kk):
    if V3:
        sr, so = (SW2, sB2o) if kk < 7 else (SWO, sBOo)
        return [rot_p(kk, sD0, [sHALF]) + [f"s_lshl_b32 {s(sD0)}, {s(sD0)}, 15", f"s_add_u32 m0, {s(sMB)}, {KAREA[kk]}", f"s_add_u32 {s(sD0)}, {s(sD0)}, {s(so)}",
                 f"buffer_load_dwordx4 {v(VB)}, {s(sr,4)}, {s(sD0)} offen lds"],
                [f"s_add_u32 m0, {s(sMB)}, {KAREA[kk] + 4096}", f"s_add_u32 {s(sD0)}, {s(sD0)}, 16384",
                 f"buffer_load_dwordx4 {v(VB)}, {s(sr,4)}, {s(sD0)} offen lds ; tag=b{kk}"]]
    if V2:
        G_ = []
        for pos in (2 * kk, 2 * kk + 1):
            sr, so = (SW2, sB2o) if pos < 14 else (SWO, sBOo)
            G_.append(rot_k(pos, sD0) + [f"s_lshl_b32 {s(sD0)}, {s(sD0)}, 14", f"s_add_u32 m0, {s(sMB)}, {KAREA[kk] + (pos & 1) * 4096}", f"s_add_u32 {s(sD0)}, {s(sD0)}, {s(so)}",
                      f"buffer_load_dwordx4 {v(VB)}, {s(sr,4)}, {s(sD0)} offen lds ; tag=b{kk}"])
        return G_
    slot = kk % 9
    m0 = f"s_add_u32 m0, {s(sM0x)}, {KAREA[slot]}"
    sr, so = (SW2, sB2o) if kk < 14 else (SWO, sBOo)
    return [rot_k(kk, sD0) + [f"s_lshl_b32 {s(sD0)}, {s(sD0)}, 14", m0, f"s_add_u32 {s(sD0)}, {s(sD0)}, {s(so)}",
             f"buffer_load_dwordx4 {v(VB)}, {s(sr,4)}, {s(sD0)} offen lds"],
            [f"s_add_u32 {s(sD0)}, {s(sD0)}, {8192 - 1024}",
             f"buffer_load_dwordx4 {v(VB)}, {s(sr,4)}, {s(sD0)} offen offset:1024 lds ; tag=b{kk}"]]

def setup(ffn):
    pitch = 3584 if ffn else 3072
    tp = "f" if ffn else "a"
    if ffn: P(f"s_mov_b64 {s(SWT,2)}, {s(sA0,2)}")
    P(f"s_load_dwordx2 {s(SAUX,2)}, s[0:1], {48 if ffn else 16}")
    srd(SWT, 1835008 if ffn else 1572864)
    P(f"v_mul_u32_u24 {v(VW)}, {pitch}, v2\nv_add_u32 {v(VW)}, {v(VW)}, v4")
    if ffn:
        P(f"s_mul_i32 {s(sT0)}, {s(sG)}, 448\ns_and_b32 {s(sT1)}, {s(sG)}, 1\ns_lshl_b32 {s(sT2)}, {s(sT1)}, 6\ns_add_u32 {s(sWq)}, {s(sT0)}, {s(sT2)}")
        P(f"s_mul_i32 {s(sWo)}, {s(sW)}, {8*pitch}\ns_add_u32 {s(sWo)}, {s(sWo)}, {s(sWq)}")
    else:
        P(f"s_lshl_b32 {s(sWq)}, {s(sG)}, 7")
        P(f"s_mul_i32 {s(sWo)}, {s(sW)}, {8*pitch}\ns_add_u32 {s(sWo)}, {s(sWo)}, {s(sWq)}\ns_add_u32 {s(sWo)}, {s(sWo)}, 1024")
    P(f"v_add_u32 {v(VW0)}, {s(sWo)}, {v(VW)}")
    if STAMP and "slow" in STI: P(f"s_mov_b32 {s(sST+2*STI['slow'])}, {s(sST)}")
    P(f"s_mul_i32 {s(sD1)}, {s(sK)}, {pitch//2}")
    P.add(item1(0, pitch)[2])
    P("s_waitcnt lgkmcnt(0)")
    srd(SWS, WS_SIZE); srd(SDBG, 256); srd(SW2, 1835008); srd(SWO, 524288); srd(SOUT, 2097152); srd(SB2, 1024); srd(SAUX, 3584 if ffn else 16384)
    P(f"v_lshlrev_b32 {v(VL16)}, 4, {v(vL)}")
    P(f"s_lshr_b32 {s(sHALF)}, {s(sW)}, 2")
    P(f"s_and_b32 {s(sW34)}, {s(sW)}, 3\ns_xor_b32 {s(sSIG)}, {s(sW34)}, {s(sHALF)}")
    if not ffn:
        for i in range(4): P(f"v_mov_b32 {v(T+i)}, 0")
        P(f"s_lshl_b32 {s(sT0)}, {s(sW)}, 8\ns_add_u32 {s(sT0)}, {s(sT0)}, s2\ns_sub_u32 {s(sT0)}, {s(sT0)}, 256\ns_cmp_lt_u32 {s(sT0)}, 8")
        P(f"s_cbranch_scc0 L_nzero")
        P.cond_begin("zw")
        P(f"s_lshl_b32 {s(sT0)}, s2, 12\ns_add_u32 {s(sT0)}, {s(sT0)}, {WS_FLG}")
        for i in range(4): P(f"buffer_store_dwordx4 {v(T,4)}, {v(VL16)}, {s(SWS,4)}, {s(sT0)} offen offset:{1024*i} sc1")
        P(f"s_lshl_b32 {s(sT0)}, s2, 8\ns_add_u32 {s(sT0)}, {s(sT0)}, {WS_KVF}\nv_lshlrev_b32 v3, 2, {v(vL)}")
        P(f"buffer_store_dword {v(T)}, v3, {s(SWS,4)}, {s(sT0)} offen sc1 ; tag=zf")
        P.cond_end()
        P(f"L_nzero:")
    if OPT.get("touch", "5") == "1":
        P(f"s_cmp_lt_u32 {s(sW)}, 6")
        P(f"s_cbranch_scc1 L_nt{tp}")
        P.cond_begin("w67")
        P(f"v_lshlrev_b32 v3, 7, {v(vL)}\ns_mul_i32 {s(sT0)}, s2, 7168\ns_lshl_b32 {s(sT1)}, s2, 11")
        P(f"s_cmp_eq_u32 {s(sW)}, 6\ns_cbranch_scc0 L_nta{tp}")
        P(f"buffer_load_dword v255, v3, {s(SW2,4)}, {s(sT0)} offen")
        P(f"s_branch L_nt{tp}")
        P(f"L_nta{tp}:")
        P(f"v_and_b32 v3, 2047, v3")
        P(f"buffer_load_dword v255, v3, {s(SWO,4)}, {s(sT1)} offen")
        P(f"buffer_load_dword v254, v3, {s(SB2,4)}, 0 offen")
        P.cond_end()
        P(f"L_nt{tp}:")
    def wtouch():
        P(f"s_sub_u32 {s(sT0)}, {s(sW)}, 2\ns_cmp_lt_u32 {s(sT0)}, {min(3 if ffn else 2, int(OPT.get('wtn', 1)))}")
        P(f"s_cbranch_scc0 L_nw{tp}")
        P.cond_begin("w234")
        P(f"v_mul_u32_u24 v3, {pitch}, {v(vL)}\ns_mul_i32 {s(sT1)}, {s(sROT)}, {64*pitch}\ns_add_u32 {s(sT1)}, {s(sT1)}, {s(sWq)}")
        if ffn:
            P(f"s_lshl_b32 {s(sT2)}, {s(sT0)}, 7\ns_add_u32 {s(sT1)}, {s(sT1)}, {s(sT2)}\ns_add_u32 {s(sT1)}, {s(sT1)}, 128")
            P(f"s_lshr_b32 {s(sT0)}, {s(sT0)}, 1\ns_and_b32 {s(sT0)}, {s(sT0)}, {s(sG)}\ns_mul_i32 {s(sT0)}, {s(sT0)}, 448\ns_sub_u32 {s(sT1)}, {s(sT1)}, {s(sT0)}")
        else:
            P(f"s_xor_b32 {s(sT0)}, {s(sT0)}, 1\ns_lshl_b32 {s(sT0)}, {s(sT0)}, 11\ns_add_u32 {s(sT1)}, {s(sT1)}, {s(sT0)}")
        if OPT.get("wt", "2") == "2": P(f"s_mov_b32 {s(sCNT)}, {s(sT1)}")
        else: P(f"buffer_load_dword v250, v3, {s(SWT,4)}, {s(sT1)} offen")
        P.cond_end()
        P(f"L_nw{tp}:")
    if OPT.get("wt", "2") == "2": P(f"s_mov_b32 {s(sCNT)}, 0x7f000000")
    if OPT.get("wt", "2") != "0": wtouch()
    if OPT.get("sw", "0") != "0":
        c1_, c2_ = (128, 256) if ffn else (1024, -1024)
        P(f"s_mul_i32 {s(sT0)}, {s(sROT)}, {64*pitch}\ns_add_u32 {s(sT0)}, {s(sT0)}, {s(sWo)}")
        for cc, n_ in ((c1_, 8), (c2_, int(OPT["sw"]) - 8)):
            if n_ <= 0: continue
            P(f"s_add_u32 {s(sT1)}, {s(sT0)}, {cc}")
            for j in range(n_): P(f"s_buffer_load_dword {s(sCNT)}, {s(SWT,4)}, {s(sT1)} offset:{j*pitch} ; nodef")
    if OPT.get("cpf", "1") == "1":
        P(f"s_cmp_eq_u32 {s(sW)}, 5")
        P(f"s_cbranch_scc0 L_ncp{tp}")
        P.cond_begin("w5")
        P(f"s_getpc_b64 {s(sEX,2)}")
        P(f"L_pc{tp}:")
        P(f"s_sub_u32 {s(sEX)}, {s(sEX)}, L_pc{tp}-{NAME}\ns_subb_u32 {s(sEX+1)}, {s(sEX+1)}, 0")
        P(f"s_lshr_b32 {s(sT0)}, s2, 3\ns_lshl_b32 {s(sT0)}, {s(sT0)}, 11\nv_and_b32 v3, 15, {v(vL)}\nv_lshlrev_b32 v3, 7, v3\nv_add_u32 v3, {s(sT0)}, v3")
        P(f"v_min_u32 v3, L_end-{NAME}, v3")
        P(f"global_load_dword v253, v3, {s(sEX,2)}")
        P.cond_end()
        P(f"L_ncp{tp}:")
    if OPT.get("pt", "0") == "1":
        P(f"s_cmp_eq_u32 {s(sW)}, 4")
        P(f"s_cbranch_scc0 L_npt{tp}")
        n0 = len(P.ins)
        P(f"v_lshlrev_b32 v3, 21, {v(vL)}")
        P(f"buffer_load_dword v252, v3, {s(SWS,4)}, 0 offen")
        for i_, sr_ in enumerate((SOUT, SW2, SWO, SB2)): P(f"buffer_load_dword v{248+i_}, v3, {s(sr_,4)}, 0 offen")
        for I in P.ins[n0:]: I.cond = "w4"
        P(f"L_npt{tp}:")
    def stouch():
        n0 = len(P.ins)
        P(f"s_lshl_b32 {s(sT0)}, s2, 3\ns_add_u32 {s(sT0)}, {s(sT0)}, {s(sW)}\ns_mul_i32 {s(sT1)}, {s(sT0)}, 768\ns_mul_i32 {s(sT0)}, {s(sT0)}, 896")
        for i in range(6): P(f"s_load_dword {s(sCNT)}, {s(sEX,2)}, {s(sT1)} offset:{128*i}")
        for i in range(7): P(f"s_load_dword {s(sCNT)}, {s(sA0,2)}, {s(sT0)} offset:{128*i}")
    if OPT.get("stouch", "0") == "1": stouch()
    late1 = OPT.get("late1", "1") == "1"
    if not late1:
        for g_ in item1(1, pitch): P.add(g_)
    P(f"s_lshl_b32 {s(sT0)}, {s(sRT)}, 4\ns_add_u32 {s(sT0)}, {s(sT0)}, {s(sG)}\ns_lshl_b32 {s(sT0)}, {s(sT0)}, 7")
    P(f"s_and_b32 {s(sT1)}, {s(sW)}, 2\ns_lshl_b32 {s(sT1)}, {s(sT1)}, 3\ns_add_u32 {s(sT0)}, {s(sT0)}, {s(sT1)}\ns_and_b32 {s(sT1)}, {s(sW)}, 1\ns_lshl_b32 {s(sT1)}, {s(sT1)}, 2\ns_add_u32 {s(sT0)}, {s(sT0)}, {s(sT1)}\ns_lshl_b32 {s(sT1)}, {s(sHALF)}, 3\ns_add_u32 {s(sT0)}, {s(sT0)}, {s(sT1)}")
    if V3: P(f"s_and_b32 {s(sT1)}, {s(sW)}, 2\ns_lshl_b32 {s(sT1)}, {s(sT1)}, 3\ns_add_u32 {s(sT0)}, {s(sT0)}, {s(sT1)}\ns_and_b32 {s(sT1)}, {s(sG)}, 1\ns_mul_i32 {s(sT1)}, {s(sT1)}, 112\ns_sub_u32 {s(sT0)}, {s(sT0)}, {s(sT1)}")
    P(f"s_add_u32 {s(sFO)}, {s(sT0)}, {WS_FLG + (1024 if ffn else 0)}")
    P(f"s_lshl_b32 {s(sT0)}, {s(sRT)}, 2\ns_add_u32 {s(sT0)}, {s(sT0)}, {s(sW34)}\ns_mul_i32 {s(sHo)}, {s(sT0)}, {HF_RB}")
    if ffn:
        P(f"v_and_b32 v5, 31, {v(vL)}\nv_lshlrev_b32 v5, 1, v5")
        P(f"s_lshl_b32 {s(sT0)}, {s(sHALF)}, 6\ns_add_u32 {s(sT0)}, {s(sT0)}, {s(sWq)}")
        for i in range(3): P(f"buffer_load_ushort {v(BIAS+i)}, v5, {s(SAUX,4)}, {s(sT0)} offen offset:{128*i}")
        P(f"s_lshl_b32 {s(sT0)}, {s(sT0)}, 5\ns_add_u32 {s(sH0)}, {s(sHo)}, {s(sT0)}")
        P(f"s_mul_i32 {s(sW3)}, {s(sG)}, 448\ns_add_u32 {s(sT0)}, {s(sW3)}, 384\ns_bitcmp1_b32 {s(sG)}, 0\ns_cselect_b32 {s(sW3)}, {s(sW3)}, {s(sT0)}")
        P(f"s_lshl_b32 {s(sT0)}, {s(sHALF)}, 5\nv_xor_b32 v5, {s(sT0)}, v5")
        P(f"buffer_load_ushort {v(BIAS+3)}, v5, {s(SAUX,4)}, {s(sW3)} offen")
        P(f"s_add_u32 {s(sT0)}, {s(sT0)}, {s(sW3)}\ns_lshl_b32 {s(sT0)}, {s(sT0)}, 5\ns_add_u32 {s(sH3)}, {s(sHo)}, {s(sT0)}")
        P(f"v_lshrrev_b32 v2, 2, {v(vL)}\nv_and_b32 v4, 3, {v(vL)}\nv_lshlrev_b32 v4, 4, v4\nv_mul_u32_u24 {v(VW3)}, {pitch}, v2\nv_add_u32 {v(VW3)}, {v(VW3)}, v4")
    else:
        P(f"s_cmp_lt_u32 {s(sW)}, 2")
        P(f"s_cbranch_scc0 L_nphi")
        P.cond_begin("w01")
        P(f"s_lshl_b32 {s(sT0)}, {s(sG)}, 11\ns_lshl_b32 {s(sT1)}, {s(sW)}, 10\ns_add_u32 {s(sT0)}, {s(sT0)}, {s(sT1)}\ns_add_u32 m0, {s(sT1)}, {L_WPHI}\ns_nop 0")
        P(f"buffer_load_dwordx4 {v(VL16)}, {s(SAUX,4)}, {s(sT0)} offen lds")
        P.cond_end()
        P("L_nphi:")
        P(f"s_mov_b64 {s(SAUX,2)}, {s(sA0,2)}\ns_mov_b32 {s(SAUX+2)}, 1835008")
    P(f"s_mul_i32 {s(sT0)}, {s(sW34)}, {16*pitch}\ns_add_u32 {s(sWq)}, {s(sWq)}, {s(sT0)}")
    P(f"v_add_u32 {v(VW)}, {s(sWq)}, {v(VW)}")
    if ffn: P(f"s_add_u32 {s(sW3)}, {s(sW3)}, {s(sT0)}\nv_add_u32 {v(VW3)}, {s(sW3)}, {v(VW3)}")
    P(f"s_add_u32 {s(sT0)}, {s(sROT)}, {s(sHALF)}")
    for q in range(4):
        P(f"s_add_u32 {s(sT1)}, {s(sT0)}, {2*q}\ns_and_b32 {s(sT1)}, {s(sT1)}, 7\ns_mul_i32 {s(sQ[q])}, {s(sT1)}, {64*pitch}")
    P(f"s_mov_b32 {s(sT3)}, {f2u(1.0/512):#x}\ns_mov_b32 {s(sONE)}, 0x3f803f80")
    P(f"v_bfe_u32 {v(T)}, {v(vL)}, 2, 2\nv_lshrrev_b32 {v(T+1)}, 5, {v(vL)}")
    P(f"v_bfe_u32 {v(T+2)}, {v(vL)}, 4, 1\nv_lshlrev_b32 {v(T+2)}, 5, {v(T+2)}\nv_and_b32 {v(T+3)}, 3, {v(vL)}\nv_lshl_add_u32 {v(T+2)}, {v(T+3)}, 3, {v(T+2)}")
    P(f"v_and_b32 {v(T+4)}, 31, {v(vL)}\nv_bfe_u32 {v(T+5)}, {v(vL)}, 1, 3\nv_xor_b32 {v(T+5)}, {v(T+5)}, {v(T+1)}")
    P(f"s_lshl_b32 {s(sT0)}, {s(sW34)}, 12\nv_lshlrev_b32 {v(T+8)}, 7, {v(T+4)}\nv_add_u32 {v(T+8)}, {s(sT0)}, {v(T+8)}")
    P(f"v_lshl_add_u32 {v(T+9)}, {v(T+1)}, 3, {v(T)}\nv_lshl_add_u32 {v(T+10)}, {v(T+9)}, 7, {v(T+2)}\nv_lshrrev_b32 {v(T+7)}, 1, {v(T)}\nv_xor_b32 {v(T+7)}, {s(sHALF)}, {v(T+7)}\nv_lshl_add_u32 {v(T+10)}, {v(T+7)}, 6, {v(T+10)}")
    for p in range(4):
        P(f"s_xor_b32 {s(sT0)}, {s(sSIG)}, {p}\ns_lshl_b32 {s(sT1)}, {s(sT0)}, 1\nv_xor_b32 {v(T+6)}, {s(sT1)}, {v(T+5)}\nv_lshl_add_u32 {v(AX+p)}, {v(T+6)}, 4, {v(T+8)}")
        P(f"s_lshl_b32 {s(sT1)}, {s(sT0)}, 11\ns_add_u32 {s(sT1)}, {s(sT1)}, {RB}\nv_add_u32 {v(AW+p)}, {s(sT1)}, {v(T+10)}")
    if ffn:
        P(f"s_lshl_b32 {s(sT0)}, {s(sHALF)}, 5\nv_xor_b32 {v(T+7)}, {s(sT0)}, {v(T+2)}\nv_lshl_add_u32 {v(T+7)}, {v(T+9)}, 6, {v(T+7)}")
        for i, p in enumerate((0, 2)):
            P(f"s_xor_b32 {s(sT0)}, {s(sSIG)}, {p}\ns_lshl_b32 {s(sT0)}, {s(sT0)}, 10\nv_add_u32 {v(AB+i)}, {s(sT0)}, {v(T+7)}")
    P(f"v_lshlrev_b32 {v(T+4)}, 4, {v(T+4)}")
    P(f"s_lshl_b32 {s(sT0)}, {s(sHALF)}, 9\ns_add_u32 {s(sT0)}, {s(sT0)}, {L_CS}\nv_add_u32 {v(VCSA)}, {s(sT0)}, {v(T+4)}")
    P(f"s_lshl_b32 {s(sT0)}, {s(sW34)}, 9\ns_add_u32 {s(sT0)}, {s(sT0)}, {L_ST}\nv_add_u32 {v(VSTA)}, {s(sT0)}, {v(T+4)}")
    P(f"v_lshrrev_b32 {v(T+4)}, 2, {v(vL)}\nv_xor_b32 {v(T+4)}, {v(T+4)}, {v(vL)}\nv_and_b32 {v(T+4)}, 4, {v(T+4)}\nv_cmp_eq_u32 vcc, 0, {v(T+4)}\nv_mov_b32 {v(T+4)}, {s(sONE)}")
    for i in range(4): P(f"v_mov_b32 {v(PZ+i)}, -1")
    for r in (VZ, BAUG+3, AAUG+2, AAUG+3): P(f"v_mov_b32 {v(r)}, 0")
    for i in range(4): P(f"v_cndmask_b32 {v(SEL+i)}, 0, {v(T+4)}, vcc")
    P(f"s_lshl_b32 {s(sW34)}, {s(sW34)}, 2")
    if late1:
        for g_ in item1(1, pitch): P.add(g_)
    if OPT.get("stouch", "0") == "2": stouch()
    if V2:
        P(f"v_lshrrev_b32 {v(T)}, 4, {v(vL)}\nv_lshlrev_b32 {v(T+1)}, 2, {v(T)}\nv_and_b32 {v(T+2)}, 15, {v(vL)}\nv_xor_b32 {v(T+2)}, {v(T+2)}, {v(T+1)}\nv_lshlrev_b32 {v(T+2)}, 4, {v(T+2)}\nv_lshl_add_u32 {v(VB)}, {v(T)}, 10, {v(T+2)}")
        P(f"s_lshl_b32 {s(sT2)}, {s(sM)}, 1\ns_add_u32 {s(sT2)}, {s(sT2)}, {s(sHALF)}")
        P(f"s_lshl_b32 {s(sT0)}, {s(sN)}, 8\ns_lshl_b32 {s(sT1)}, {s(sW34)}, 10\ns_add_u32 {s(sT1)}, {s(sT1)}, {s(sT0)}")
        P(f"s_mul_i32 {s(sB2o)}, {s(sT2)}, {224*1024}\ns_add_u32 {s(sB2o)}, {s(sB2o)}, {s(sT1)}\ns_lshl_b32 {s(sBOo)}, {s(sT2)}, 16\ns_add_u32 {s(sBOo)}, {s(sBOo)}, {s(sT1)}")
        P(f"s_mul_i32 {s(sA0)}, {s(sT2)}, {14*1024}\ns_add_u32 {s(sA0)}, {s(sA0)}, {s(sHo)}\ns_lshl_b32 {s(sA1)}, {s(sT2)}, 12\ns_add_u32 {s(sA1)}, {s(sA1)}, {s(sHo)}\ns_add_u32 {s(sA1)}, {s(sA1)}, {112*1024}")
        P(f"s_lshl_b32 {s(sT1)}, {s(sRT)}, 4\ns_add_u32 {s(sT1)}, {s(sT1)}, {s(sT2)}\ns_lshl_b32 {s(sT1)}, {s(sT1)}, 7\ns_and_b32 {s(sFL)}, {s(sW)}, 2\ns_lshl_b32 {s(sFL)}, {s(sFL)}, 3\ns_add_u32 {s(sFL)}, {s(sFL)}, {s(sT1)}\ns_add_u32 {s(sFL)}, {s(sFL)}, {WS_FLG}")
        P(f"s_mul_i32 {s(sR4)}, {s(sN)}, 5\ns_lshr_b32 {s(sR4)}, {s(sR4)}, 1\ns_add_u32 {s(sR4)}, {s(sR4)}, {s(sRT)}\ns_and_b32 {s(sR4)}, {s(sR4)}, 7")
        P(f"s_lshl_b32 {s(sT2)}, {s(sT2)}, 5\ns_add_u32 {s(sN)}, {s(sT0)}, {s(sT2)}")
        P(f"s_lshl_b32 {s(sOo)}, {s(sRT)}, 17\ns_lshl_b32 {s(sT1)}, {s(sW34)}, 13\ns_add_u32 {s(sOo)}, {s(sOo)}, {s(sT1)}\ns_add_u32 {s(sOo)}, {s(sOo)}, {s(sN)}")
        P(f"s_and_b32 {s(sSH)}, {s(sW)}, 1\ns_lshl_b32 {s(sSH)}, {s(sSH)}, 1\ns_lshl_b32 {s(sSK)}, {s(sHALF)}, 1")
        P(f"s_lshl_b32 {s(sMB)}, {s(sHALF)}, 13\ns_lshl_b32 {s(sT1)}, {s(sW34)}, 8\ns_add_u32 {s(sMB)}, {s(sMB)}, {s(sT1)}")
        if V3:
            P(f"s_lshl_b32 {s(sT0)}, {s(sSH)}, 4\nv_xor_b32 {v(VB)}, {s(sT0)}, {v(VB)}")
            P(f"s_mul_i32 {s(sT0)}, {s(sHALF)}, {14*1024}\ns_sub_u32 {s(sA0)}, {s(sA0)}, {s(sT0)}\ns_lshl_b32 {s(sT0)}, {s(sHALF)}, 12\ns_sub_u32 {s(sA1)}, {s(sA1)}, {s(sT0)}")
            P(f"s_lshl_b32 {s(sT0)}, {s(sHALF)}, 7\ns_sub_u32 {s(sFL)}, {s(sFL)}, {s(sT0)}\ns_and_b32 {s(sT0)}, {s(sW)}, 2\ns_lshl_b32 {s(sT0)}, {s(sT0)}, 3\ns_add_u32 {s(sFL)}, {s(sFL)}, {s(sT0)}")
        return
    P(f"s_lshl_b32 {s(sT0)}, {s(sN)}, 7\ns_mul_i32 {s(sB2o)}, {s(sW)}, {224*1024}\ns_add_u32 {s(sB2o)}, {s(sB2o)}, {s(sT0)}")
    P(f"s_lshl_b32 {s(sBOo)}, {s(sW)}, 16\ns_add_u32 {s(sBOo)}, {s(sBOo)}, {s(sT0)}\ns_lshl_b32 {s(sM4)}, {s(sW)}, 12")
    P(f"s_lshl_b32 {s(sOo)}, {s(sM)}, 16\ns_lshl_b32 {s(sT1)}, {s(sW)}, 13\ns_add_u32 {s(sOo)}, {s(sOo)}, {s(sT1)}\ns_add_u32 {s(sOo)}, {s(sOo)}, {s(sT0)}")
    if OPT.get("r8", "1") == "1":
        P(f"s_mul_i32 {s(sT0)}, {s(sM)}, 5\ns_lshr_b32 {s(sT0)}, {s(sT0)}, 1\ns_sub_u32 {s(sN)}, {s(sN)}, {s(sM)}\ns_add_u32 {s(sR4)}, {s(sN)}, {s(sT0)}\ns_add_u32 {s(sN)}, {s(sN)}, {s(sM)}")
    else: P(f"s_mov_b32 {s(sR4)}, {s(sN)}")
    P(f"s_add_u32 {s(sR4)}, {s(sM)}, {s(sR4)}\ns_and_b32 {s(sR4)}, {s(sR4)}, {0 if OPT.get('norot') else 7}\ns_and_b32 {s(sSH)}, {s(sW)}, 1\ns_lshl_b32 {s(sSH)}, {s(sSH)}, 1")
    P(f"s_lshr_b32 {s(sT0)}, {s(sM)}, 1\ns_lshl_b32 {s(sT0)}, {s(sT0)}, 4\ns_add_u32 {s(sT0)}, {s(sT0)}, {s(sW)}\ns_lshl_b32 {s(sT0)}, {s(sT0)}, 7")
    P(f"s_and_b32 {s(sT1)}, {s(sM)}, 1\ns_lshl_b32 {s(sT1)}, {s(sT1)}, 4\ns_add_u32 {s(sT0)}, {s(sT0)}, {s(sT1)}\ns_add_u32 {s(sFL)}, {s(sT0)}, {WS_FLG}")
    P(f"s_mul_i32 {s(sA0)}, {s(sM)}, {2*HF_RB}\ns_mul_i32 {s(sT0)}, {s(sW)}, {14*1024}\ns_add_u32 {s(sA1)}, {s(sA0)}, {s(sM4)}\ns_add_u32 {s(sA1)}, {s(sA1)}, {112*1024}\ns_add_u32 {s(sA0)}, {s(sA0)}, {s(sT0)}")

class Sched:
    def __init__(self, n):
        self.n = n; self.pre = [[] for _ in range(n)]; self.post = [[] for _ in range(n)]
        self.fill = [[] for _ in range(n)]; self.dma = [[] for _ in range(n)]; self.blk = {}
    def spread(self, lst, a, b):
        for i in range(a, b): self.fill[i] += lst[len(lst)*(i-a)//(b-a): len(lst)*(i+1-a)//(b-a)]
    def dmas(self, groups, a, step=1):
        for i, g in enumerate(groups): self.dma[a + i*step] += g

def rd(G):
    b = WF + 4 * (G & 3)
    if G < 96:
        ks = G & 31; st, p = ks >> 2, ks & 3
        L = [f"ds_read_b128 {v(XF+4*ks,4)}, {v(AX+p)} offset:{RA+(st&3)*16384}"] if G < 32 else []
        if ks < 4 and G >= 32: L.append(f"v_xor_b32 {v(AW+p)}, {RB}, {v(AW+p)}")
        return L + [f"ds_read_b64_tr_b16 {v(b+2*t,2)}, {v(AW+p)} offset:{8192*st+512*t}" for t in range(2)]
    i = G - 96
    return [f"ds_read_b64_tr_b16 {v(b+2*t,2)}, {v(AB+(i&1))} offset:{4096*(i>>1)+256*t}" for t in range(2)]
def xq(G): return XF + 4 * (G & 31) if G < 96 else XF + 8 * (G - 96)

def common_sched(S, ffn, accs, MC):
    pitch = 3584 if ffn else 3072
    tp = "f" if ffn else "a"
    c1, c2 = (128, 256) if ffn else (2048, 0)
    S.dmas(item1(2, pitch), 0, 0)
    for st in range(8):
        G = 4 * st + 2
        S.pre[G] += [f".waitvm it{st+1}" if st < 7 else ".waitvm w1q0 lgkm0", "s_barrier"]
        if st <= 4: S.dmas(item1(st + 3, pitch), G)
        else: S.dmas(wquarter(RA, st - 5, c1, pitch, f"w1q{st-5}"), G)
    def m4(d, r, c=None): return f"v_mfma_f32_4x4x4_16b_bf16 {v(d,4)}, {v(r,2)}, {v(r,2)}, {v(d,4) if c is None else c}"
    Q0, Q1 = T + 8, T + 16
    for f in range(0, 32, 2):
        x = XF + 4 * f; a = max(f - 1, 0); c = "0" if f == 0 else None
        if OPT.get("hyb", "0") == "1":
            b = f if f < 30 else 29
            S.post[a] += [m4(Q0, x, c), m16(MS, SEL, x, c)]
            for r, G in ((x + 2, a), (x + 3, b)):
                S.post[G] += [f"v_and_b32 {v(Q1+2)}, 0xffff0000, {v(r)}", f"v_lshlrev_b32 {v(Q1+3)}, 16, {v(r)}",
                              f"v_fmac_f32 {v(Q1)}, {v(Q1+2)}, {v(Q1+2)}", f"v_fmac_f32 {v(Q1+1)}, {v(Q1+3)}, {v(Q1+3)}"]
        else: S.post[a] += [m4(Q0, x, c), m4(Q1, x + 2, c), m16(MS, SEL, x, c)]
    S.post[28] += [f"v_and_b32 {v(S1)}, 3, {v(vL)}", f"v_cmp_eq_u32 {s(sEX,2)}, 1, {v(S1)}", f"s_lshl_b32 {s(sT0)}, {s(sHALF)}, 3",
                   f"v_add_u32 {v(T)}, {s(sT0)}, {v(VSTA)}"]
    if OPT.get("hyb", "0") == "1":
        S.pre[0] += [f"v_mov_b32 {v(Q1)}, 0", f"v_mov_b32 {v(Q1+1)}, 0"]
        S.post[29] += [f"v_add_f32 {v(Q1)}, {v(Q1)}, {v(Q1+1)}"]
    else: S.post[29] += [f"v_add_f32 {v(Q0+i)}, {v(Q0+i)}, {v(Q1+i)}" for i in range(4)]
    S.post[29] += [f"v_cmp_eq_u32 vcc, 2, {v(S1)}", f"v_cndmask_b32 {v(S2)}, {v(Q0)}, {v(Q0+1)}, {s(sEX,2)}", f"v_cmp_eq_u32 {s(sEX,2)}, 3, {v(S1)}",
                   f"v_cndmask_b32 {v(S2)}, {v(S2)}, {v(Q0+2)}, vcc", f"v_cndmask_b32 {v(S2)}, {v(S2)}, {v(Q0+3)}, {s(sEX,2)}"] + ([f"v_add_f32 {v(S2)}, {v(S2)}, {v(Q1)}"] if OPT.get("hyb", "0") == "1" else []) + [
                   f"v_mov_b32 {v(S1)}, {v(S2)}", f"v_permlane32_swap_b32 {v(S1)}, {v(S2)}",
                   f"v_add_f32 {v(MS+1)}, {v(S1)}, {v(S2)}", f"ds_write_b64 {v(T)}, {v(MS,2)}"]
    S.post[30] += [f"ds_read_b128 {v(MS,4)}, {v(VSTA)}"]
    for ps in range(3):
        for st in range(8):
            G = 32 * ps + 4 * st
            S.post[G] += [m16(MC, SEL, WF + 4 * (G & 3), "0" if st == 0 else None)]
        S.post[32*ps + 29] += [f"v_add_u32 {v(MC+1)}, {s(sW34)}, {v(VCSA)}", f"ds_write_b32 {v(MC+1)}, {v(MC)} offset:{1024*ps}"]
    FEW = OPT.get("few", "1") == "1"
    if FEW: S.pre[38] += [".waitvm w1q3", "s_barrier"]
    else:
        for q in (1, 2, 3): S.pre[32 + 8*q - 2] += [f".waitvm w1q{q}", "s_barrier"]
    w2 = sum([wquarter(RB, q, c2, pitch, "w2") for q in range(4)], [])
    for g_, G in zip(wquarter(RA, 3, c1, pitch, "w1q3") + w2, [int(x) for x in OPT.get("w2g", "32,33,35,37,38,40,41,43,44,46").split(",")]): S.dma[G] += g_
    S.pre[62] += [".waitvm w2 lgkm0", "s_barrier"]
    for G in ((int(OPT.get("fb", 82)),) if ffn else (int(OPT.get("ab", 86)),)): S.pre[G] += ["s_barrier"]
    if ffn:
        S.post[int(OPT.get("f1", 90))] += flag(1, "h1")
        S.post[int(OPT.get("p1", 99))] += [spoll(0)]; S.blk[("e", int(OPT.get("c1", 105)))] = lambda: (sneed(1, 0), P(spoll(1)))
    else:
        S.post[int(OPT.get("fa", 80))] += flag(1, "po")
    if OPT.get("l2t", "0") == "1":
        tg = [int(x) for x in OPT.get("l2gf" if ffn else "l2ga", "52,62,66,70,74" if ffn else "48,52,56,60,64").split(",")]
        DUM = VX0 if False else VW0
        for j in range(5):
            if j < 3:
                L = [f"s_lshr_b32 {s(sT0)}, s2, 3", f"s_mul_i32 {s(sT0)}, {s(sT0)}, 3", f"s_lshl_b32 {s(sT1)}, {s(sSH)}, 4", f"s_add_u32 {s(sT0)}, {s(sT0)}, {s(sT1)}",
                     f"s_add_u32 {s(sT0)}, {s(sT0)}, {128+j}", f"s_sub_u32 {s(sT1)}, {s(sT0)}, 224", f"s_min_u32 {s(sT0)}, {s(sT0)}, {s(sT1)}",
                     f"s_mul_i32 {s(sT1)}, {s(sW)}, 224", f"s_add_u32 {s(sT0)}, {s(sT0)}, {s(sT1)}", f"s_lshl_b32 {s(sT0)}, {s(sT0)}, 10",
                     f"buffer_load_dword {v(VTD)}, {v(VL16)}, {s(SW2,4)}, {s(sT0)} offen ; nodef"]
            else:
                L = [f"s_lshr_b32 {s(sT0)}, s2, 3", f"s_lshl_b32 {s(sT0)}, {s(sT0)}, 11", f"s_lshl_b32 {s(sT1)}, {s(sW)}, 16", f"s_add_u32 {s(sT0)}, {s(sT0)}, {s(sT1)}",
                     f"buffer_load_dword {v(VTD)}, {v(VL16)}, {s(SWO,4)}, {s(sT0)} offen offset:{1024*(j-3)} ; nodef"]
            S.dma[tg[j]] += L
    if (OPT.get("touch", "5") == "5" and not ffn) or (OPT.get("touch") == "6" and ffn):
        tg = [int(x) for x in OPT.get("tgs", "54,56,58,60,62").split(",")]
        gw = [f"s_and_b32 {s(sT0)}, {s(sRT)}, 7", f"s_lshl_b32 {s(sT0)}, {s(sT0)}, 1", f"s_and_b32 {s(sT1)}, {s(sG)}, 1", f"s_add_u32 {s(sT0)}, {s(sT0)}, {s(sT1)}",
              f"s_lshl_b32 {s(sT0)}, {s(sT0)}, 3", f"s_add_u32 {s(sK)}, {s(sT0)}, {s(sW)}"]
        for j in range(4):
            S.dma[tg[j]] += (gw if j == 0 else []) + [f"s_add_u32 {s(sT0)}, {s(sK)}, {128*j}", f"s_min_u32 {s(sT0)}, {s(sT0)}, 447", f"s_mul_i32 {s(sT1)}, {s(sM)}, 448", f"s_add_u32 {s(sT0)}, {s(sT0)}, {s(sT1)}",
                                  f"s_lshl_b32 {s(sT0)}, {s(sT0)}, 10", f"buffer_load_dword {v(VTD)}, {v(VL16)}, {s(SW2,4)}, {s(sT0)} offen ; nodef"]
        S.dma[tg[4]] += [f"s_lshl_b32 {s(sT1)}, {s(sM)}, 7", f"s_add_u32 {s(sT0)}, {s(sK)}, {s(sT1)}",
                         f"s_lshl_b32 {s(sT0)}, {s(sT0)}, 10", f"buffer_load_dword {v(VTD)}, {v(VL16)}, {s(SWO,4)}, {s(sT0)} offen ; nodef"]
        S.dma[tg[4]] += [f"buffer_load_dword {v(VTD)}, {v(VL16)}, {s(SB2,4)}, 0 offen ; nodef"]
        if OPT.get("t3", "0") == "1":
            S.dma[int(OPT.get("t3g", 49))] += gw + [f"s_mul_i32 {s(sT0)}, {s(sK)}, {4*3584}", f"s_mul_i32 {s(sT1)}, {s(sM)}, 896", f"s_add_u32 {s(sT0)}, {s(sT0)}, {s(sT1)}",
                f"v_and_b32 {v(VTD)}, 3, {v(vL)}", f"v_mul_u32_u24 {v(VTD)}, 3584, {v(VTD)}", f"buffer_load_dword {v(VTD)}, {v(VTD)}, {s(SAUX,4)}, {s(sT0)} offen offset:384 ; nodef"]
    if OPT.get("touch") == "4":
        tg = [int(x) for x in OPT.get("tgs", "47,49,52").split(",")]
        gw = [f"s_and_b32 {s(sT0)}, s2, 0xf8", f"s_add_u32 {s(sT0)}, {s(sT0)}, {s(sW)}"]
        for j in range(2):
            S.dma[tg[j]] += gw + [f"s_add_u32 {s(sT0)}, {s(sT0)}, {256*j}", f"s_min_u32 {s(sT0)}, {s(sT0)}, 447", f"s_mul_i32 {s(sT1)}, {s(sM)}, 448", f"s_add_u32 {s(sT0)}, {s(sT0)}, {s(sT1)}",
                                  f"s_lshl_b32 {s(sT0)}, {s(sT0)}, 10", f"buffer_load_dword {v(VTD)}, {v(VL16)}, {s(SW2,4)}, {s(sT0)} offen ; nodef"]
        S.dma[tg[2]] += gw + [f"s_lshr_b32 {s(sT0)}, {s(sT0)}, 1", f"s_lshl_b32 {s(sT1)}, {s(sM)}, 7", f"s_add_u32 {s(sT0)}, {s(sT0)}, {s(sT1)}",
                              f"s_lshl_b32 {s(sT0)}, {s(sT0)}, 10", f"buffer_load_dword {v(VTD)}, {v(VL16)}, {s(SWO,4)}, {s(sT0)} offen ; nodef"]
    if OPT.get("touch", "5") == "3":
        def mtouch():
            n0 = len(P.ins)
            P(f"s_cmp_lt_u32 {s(sW)}, 6")
            P(f"s_cbranch_scc1 L_mt{tp}")
            P.cond_begin("w67")
            P(f"v_lshlrev_b32 {v(T+1)}, 7, {v(vL)}\ns_mul_i32 {s(sT0)}, s2, 7168\ns_lshl_b32 {s(sT1)}, s2, 11")
            P(f"s_cmp_eq_u32 {s(sW)}, 6\ns_cbranch_scc0 L_mta{tp}")
            P(f"buffer_load_dword {v(T+2)}, {v(T+1)}, {s(SW2,4)}, {s(sT0)} offen")
            P(f"s_branch L_mt{tp}")
            P(f"L_mta{tp}:")
            P(f"v_and_b32 {v(T+1)}, 2047, {v(T+1)}")
            P(f"buffer_load_dword {v(T+2)}, {v(T+1)}, {s(SWO,4)}, {s(sT1)} offen")
            P(f"buffer_load_dword {v(T+3)}, {v(T+1)}, {s(SB2,4)}, 0 offen")
            P.cond_end()
            P(f"L_mt{tp}:")
        S.blk[("e", int(OPT.get("tg", 5)))] = mtouch
    if OPT.get("wt", "2") == "2":
        S.dma[int(OPT.get("wg", 5))] += [f"v_mul_u32_u24 {v(T+1)}, {pitch}, {v(vL)}", f"buffer_load_dword {v(T+2)}, {v(T+1)}, {s(SWT,4)}, {s(sCNT)} offen"]
    def announce():
        P(f"s_lshl_b32 {s(sT0)}, {s(sW)}, 8\ns_add_u32 {s(sT0)}, {s(sT0)}, s2\ns_sub_u32 {s(sT0)}, {s(sT0)}, 256\ns_cmp_lt_u32 {s(sT0)}, 8")
        P(f"s_cbranch_scc0 L_nd")
        P.cond_begin("zw")
        P(".waitvm zf")
        P(f"s_lshl_b32 {s(sT0)}, s2, 2\nv_mov_b32 {v(VFV)}, 1")
        P(f"buffer_store_dword {v(VFV)}, {v(VZ)}, {s(SDBG,4)}, {s(sT0)} offen sc1")
        P.cond_end()
        P(f"L_nd:")
    if not ffn: S.blk[3] = announce
    ld = f"v_and_b32 {v(VX0)}, 28, {v(vL)}\nbuffer_load_dword {v(VX0)}, {v(VX0)}, {s(SDBG,4)}, 0 offen sc1"
    def poll0():
        P(f"s_cmp_eq_u32 {s(sW)}, 7"); P(f"s_cbranch_scc0 L_np{tp}")
        P.cond_begin("w7")
        P(ld)
        P.cond_end(); P(f"L_np{tp}:")
    def check0():
        P(f"s_cmp_eq_u32 {s(sW)}, 7"); P(f"s_cbranch_scc0 L_nc{tp}")
        P.cond_begin("w7")
        P(f"v_mov_b32 {v(VX0)}, {v(VX0)}")
        spin(f"L_ncs{tp}", ld, f"v_cmp_ne_u32 vcc, 1, {v(VX0)}")
        P.cond_end(); P(f"L_nc{tp}:")
    S.blk[39] = poll0; S.blk[62] = check0

def run_sched(S, accs):
    P(".waitvm it0")
    P("s_barrier")
    stamp("it0")
    P.add(rd(0)); P.add(rd(1))
    for G in range(S.n):
        stamp(f"g{G}")
        if G in S.blk: S.blk[G]()
        late = OPT.get("bam", "1") == "1" and G >= 32
        if not late: P.add(S.pre[G])
        if OPT.get("prio", "2") == "1": P(f"s_setprio {3 - ((G + 2) & 3)}")
        if OPT.get("prio", "2") == "2" and (G < 32 or G % 2 == 0): P(f"s_setprio {3 - ((G + 2) & 3) if G < 32 else 3 - ((G >> 1) & 3)}")
        first = G in (0, 32, 64, 96)
        P(mfma(accs[G >> 5], WF + 4 * (G & 3), xq(G), "0" if first else None))
        if late: P.add(S.pre[G])
        if G + 2 < S.n: P.add(rd(G + 2))
        P.add(S.post[G]); P.add(S.fill[G]); P.add(S.dma[G])
        if ("e", G) in S.blk: S.blk[("e", G)]()
    P("s_setprio 0")

AC = 64; NAF = 8
def AFq(kk, rb): return XF + 4 + 8 * (2 * (kk % NAF) + rb)
def BTq(kk, nb): return XF + 8 * (2 * (kk & 3) + nb)
BA = 2
VXR, VRED = 9, 10
VWR = 20
XR, B2R = 32, 36
def AF2(kk): return XF + 4 + 8 * (kk % 16)
def BT2(kk, nb): return XF + 8 * (4 * (kk & 1) + nb)
def xoff(j, send):
    return ([f"s_xor_b32 {s(sT0)}, s2, {j}", f"s_mul_i32 {s(sT0)}, {s(sT0)}, {3*8192}"] if send else [f"s_mul_i32 {s(sT0)}, s2, {3*8192}"]) + \
           [f"s_lshl_b32 {s(sT1)}, {s(sW)}, 10", f"s_add_u32 {s(sT0)}, {s(sT0)}, {s(sT1)}", f"s_add_u32 {s(sT0)}, {s(sT0)}, {WS_X + (j-1)*8192}"]
VA3 = 14
def AF3(st, sh):
    if st < 8: return XF + 4 + 8 * (2 * st + sh)
    if st < 12: return XF + 64 + 8 * (2 * (st - 8) + sh)
    if st < 16: return 96 + 4 * (2 * (st - 12) + sh)
    return XF + 4 + 8 * (2 * (st - 16) + sh)
va3_init = lines(f"v_and_b32 {v(VA3)}, 15, {v(vL)}\nv_lshlrev_b32 {v(VA3)}, 4, {v(VA3)}\nv_lshrrev_b32 {v(T+19)}, 4, {v(vL)}\nv_lshl_add_u32 {v(VA3)}, {v(T+19)}, 9, {v(VA3)}")
def a_jobs(kk):
    if V3:
        sg, gm = kk >> 1, kk & 1
        so, gs = (sA0, 14 * 1024) if sg < 7 else (sA1, 4096)
        return [rot_p(sg, sD1, gm) + [f"s_lshl_b32 {s(sD1)}, {s(sD1)}, 11", f"s_add_u32 {s(sD1)}, {s(sD1)}, {s(so)}"] + ([f"s_add_u32 {s(sD1)}, {s(sD1)}, {gs}"] if gm else []) +
                [f"buffer_load_dwordx4 {v(AF3(kk,0),4)}, {v(VA3)}, {s(SWS,4)}, {s(sD1)} offen sc1"],
                [f"buffer_load_dwordx4 {v(AF3(kk,1),4)}, {v(VA3)}, {s(SWS,4)}, {s(sD1)} offen offset:256 sc1"]]
    so = sA0 if kk < 14 else sA1
    if V2: return [rot_k(kk, sD1) + [f"s_lshl_b32 {s(sD1)}, {s(sD1)}, 10", f"s_add_u32 {s(sD1)}, {s(sD1)}, {s(so)}",
             f"buffer_load_dwordx4 {v(AF2(kk),4)}, {v(VL16)}, {s(SWS,4)}, {s(sD1)} offen sc1"] +
             ([f"s_xor_b32 {s(sD1)}, {s(sD1)}, 0x8000", f"buffer_load_dwordx4 v[252:255], {v(VL16)}, {s(SWS,4)}, {s(sD1)} offen sc1 ; nodef"] if OPT.get("dbla") and kk != 15 else [])]
    return [rot_k(kk, sD1) + [f"s_lshl_b32 {s(sD1)}, {s(sD1)}, 10", f"s_add_u32 {s(sD1)}, {s(sD1)}, {s(so)}",
             f"buffer_load_dwordx4 {v(AFq(kk,0),4)}, {v(VL16)}, {s(SWS,4)}, {s(sD1)} offen sc1"],
            [f"s_add_u32 {s(sD1)}, {s(sD1)}, {HF_RB}",
             f"buffer_load_dwordx4 {v(AFq(kk,1),4)}, {v(VL16)}, {s(SWS,4)}, {s(sD1)} offen sc1"]]
def vcheck(regs, t):
    L = [f"v_max3_u32 {v(t)}, {v(regs[0])}, {v(regs[1])}, {v(regs[2])}"]; r = regs[3:]
    while len(r) >= 2: L.append(f"v_max3_u32 {v(t)}, {v(t)}, {v(r[0])}, {v(r[1])}"); r = r[2:]
    if r: L.append(f"v_max_u32 {v(t)}, {v(t)}, {v(r[0])}")
    return L + [f"v_cmp_eq_u32 vcc, -1, {v(t)}"]
SLOW = []
def validate(regs, t, reload):
    lb = P.lab("L_v")
    P.add(vcheck(regs, t))
    P(f"s_cbranch_vccnz {lb}_slow")
    P(f"{lb}_back:")
    dbg = [f"s_add_u32 {s(sST+2*STI['slow'])}, {s(sST+2*STI['slow'])}, {1 << len(SLOW)}"] if STAMP and "slow" in STI else []
    SLOW.append([f"{lb}_slow:"] + dbg + [f"s_mov_b32 {s(sCNT)}, 0", f"{lb}_loop:", "s_sleep 2"] + reload + ["s_waitcnt vmcnt(0)"] + vcheck(regs, t) +
                [f"s_add_u32 {s(sCNT)}, {s(sCNT)}, 1", f"s_cbranch_vccz {lb}_back", f"s_cmp_gt_u32 {s(sCNT)}, {SPIN_MAX}",
                 f"s_cbranch_scc0 {lb}_loop", f"s_branch {lb}_back"])
def flush_slow():
    for blk in SLOW:
        P(".reset"); P.add(blk)
    SLOW.clear()
def spoll(o):
    x = f"s_buffer_load_dwordx4 {s(sPL,4)}, {s(SWS,4)}, {s(sFL)} offset:{0 if o else 1024} glc"
    if V3: x = f"s_buffer_load_dwordx8 {s(sPL,8)}, {s(SWS,4)}, {s(sFL)} offset:{0 if o else 1024} glc"
    return x
def sneed(level, o):
    lb = P.lab("L_sp")
    P(f"s_mov_b32 {s(sCNT)}, 0")
    P(f"{lb}:")
    P("s_waitcnt lgkmcnt(0)")
    P(f"s_min_u32 {s(sPL)}, {s(sPL)}, {s(sPL+1)}\ns_min_u32 {s(sPL+2)}, {s(sPL+2)}, {s(sPL+3)}\ns_min_u32 {s(sPL)}, {s(sPL)}, {s(sPL+2)}")
    if V3:
        for i in range(4, 8): P(f"s_min_u32 {s(sPL)}, {s(sPL)}, {s(sPL+i)}")
    P(f"s_cmp_ge_u32 {s(sPL)}, {level}")
    P(f"s_cbranch_scc1 {lb}_ok")
    P(f"s_add_u32 {s(sCNT)}, {s(sCNT)}, 1\ns_cmp_gt_u32 {s(sCNT)}, {SPIN_MAX}")
    P(f"s_cbranch_scc1 {lb}_ok")
    P("s_sleep 1")
    for x in spoll(o).split("\n"):
        I = Ins(x); I.kind = "salu"; P.ins.append(I)
    P(f"s_branch {lb}")
    P(f"{lb}_ok:")
def own_check():
    lb = P.lab("L_oc")
    P(f"s_mov_b32 {s(sCNT)}, 0")
    P(f"{lb}:")
    P("s_waitcnt lgkmcnt(0)")
    P(f"s_cmp_ge_u32 {s(sK)}, 1")
    P(f"s_cbranch_scc1 {lb}_ok")
    P(f"s_add_u32 {s(sCNT)}, {s(sCNT)}, 1\ns_cmp_gt_u32 {s(sCNT)}, {SPIN_MAX}")
    P(f"s_cbranch_scc1 {lb}_ok")
    P("s_sleep 1")
    I = Ins(f"s_buffer_load_dword {s(sK)}, {s(SWS,4)}, {s(sT2)} glc"); I.kind = "salu"; P.ins.append(I)
    P(f"s_branch {lb}")
    P(f"{lb}_ok:")
def b_reads(kk):
    slot = kk % 9
    var, off = (KAREA[slot] >> 16), KAREA[slot] & 0xffff
    return [f".waitvm b{kk}"] + [f"ds_read_b64_tr_b16 {v(BTq(kk,nb)+2*tt,2)}, {v(BA+2*var+nb)} offset:{off+1024*tt}" for nb in range(2) for tt in range(2)]
def finish(ffn):
    if OPT.get("echo") and OPT.get("echot", "fa").find("f" if ffn else "a") < 0: pass
    elif OPT.get("echo"):
        a_, b_ = [STI[x] for x in OPT["echo"].split(",")]
        lb = P.lab("L_echo")
        stamp("end")
        P("s_waitcnt lgkmcnt(0)")
        P(f"s_sub_u32 {s(sT0)}, {s(sST+2*b_)}, {s(sST+2*a_)}")
        if STAMP == 2:
            P(f"s_lshr_b32 {s(sT0)}, {s(sT0)}, 4\ns_memrealtime {s(sST+22,2)}\ns_waitcnt lgkmcnt(0)")
        P(f"s_min_u32 {s(sT0)}, {s(sT0)}, 10000")
        P(f"{lb}:")
        P(f"s_memrealtime {s(sEX,2)}")
        P("s_waitcnt lgkmcnt(0)")
        P(f"s_sub_u32 {s(sT1)}, {s(sEX)}, {s(sST+22)}\ns_cmp_lt_u32 {s(sT1)}, {s(sT0)}\ns_cbranch_scc1 {lb}")
    elif STAMP:
        stamp("end")
        P("s_waitcnt lgkmcnt(0)")
        P(f"s_lshl_b32 {s(sT0)}, s2, 3\ns_add_u32 {s(sT0)}, {s(sT0)}, {s(sW)}\ns_lshl_b32 {s(sT0)}, {s(sT0)}, 6\ns_add_u32 {s(sT0)}, {s(sT0)}, {WS_STAMP}")
        P(f"v_mov_b32 v2, 0\ns_mov_b64 exec, 1")
        for i in range(12):
            P(f"v_mov_b32 v3, {s(sST+2*i)}\nbuffer_store_dword v3, v2, {s(SWS,4)}, {s(sT0)} offen offset:{4*i}")
    P("s_endpgm")
    flush_slow()

def phase2_v2(bleft, ffn):
    BAR = [2, 3, 4, 5, 6, 7, 8, 9, 10, 11, 14, 15]; VX = 16
    WB = [20, 21, 22]; RBs = [23, 24, 25]; PX = BAUG
    t = T + 8
    P(f"v_bfe_u32 {v(t)}, {v(vL)}, 2, 2\nv_lshrrev_b32 {v(t+1)}, 5, {v(vL)}\nv_and_b32 {v(t+2)}, 63, {v(AW)}\ns_lshl_b32 {s(sT0)}, {s(sHALF)}, 5\nv_xor_b32 {v(t+2)}, {s(sT0)}, {v(t+2)}")
    P(f"v_lshl_add_u32 {v(t+3)}, {v(t+1)}, 2, {v(t)}\nv_lshl_add_u32 {v(t+3)}, {v(t+3)}, 8, {v(t+2)}\ns_lshl_b32 {s(sT0)}, {s(sHALF)}, 13\nv_add_u32 {v(t+3)}, {s(sT0)}, {v(t+3)}")
    P(f"v_xor_b32 {v(t)}, {s(sM)}, {v(t)}\nv_lshl_add_u32 {v(BAR[0])}, {v(t)}, 6, {v(t+3)}")
    for nb in range(1, 4): P(f"v_xor_b32 {v(BAR[nb])}, {64*nb}, {v(BAR[0])}")
    for rg in (2, 1):
        for nb in range(4): P(f"v_add_u32 {v(BAR[4*rg+nb])}, {65536*rg}, {v(BAR[nb])}")
    LP = int(OPT.get("lp", 2))
    SQ = int(OPT.get("sq", 12))
    seq = [(kk, nb) for kk in range(SQ) for nb in range(4) if nb or kk < LP]
    done_at = {}
    for nb in (1, 2, 3):
        seq += [(kk, nb) for kk in range(SQ, 18)]; done_at[nb] = len(seq)
    seq += [(kk, 0) for kk in range(LP, 18)]
    D = 4
    def bq(i): return XF + 8 * (i & 7)
    def br(i):
        kk, nb = seq[i]; a = KAREA[kk >> 1]
        return [f"ds_read_b64_tr_b16 {v(bq(i)+2*tt,2)}, {v(BAR[4*(a>>16)+nb])} offset:{(a&0xffff)+(kk&1)*4096+2048*tt}" for tt in range(2)]
    def val(kk):
        if not (NP and kk < 14): validate([AF2(kk) + i for i in range(4)], T + 16, a_jobs(kk)[0])
    for i in range(D): P.add(br(i))
    val(0)
    stamp("hseen")
    first = {}
    for i, (kk, nb) in enumerate(seq): first.setdefault(kk, i)
    ev = {}
    def at(i, x): ev.setdefault(i, []).append(x)
    sh = 8 - LP
    a8, a14 = int(OPT.get("a8", 14)), int(OPT.get("a14", 30 - sh))
    for i, g_ in enumerate(sum([b_dma(k2) for k2 in bleft], [])): at(int(OPT.get('bst', 1)) * i, g_)
    gates = {}
    if NP:
        if ffn:
            g2i = int(OPT.get("g2", 6)); a8 = int(OPT.get("g3f", 24 - sh))
            at(0, [spoll(0)]); gates[g2i] = 2
            for k2 in range(4, 8): at(g2i + k2 - 4, a_jobs(k2)[0])
            at(int(OPT.get("f3", 14)), flag(3, "h4"))
            a14 = max(a14, a8 + 6)
        else:
            a8 = int(OPT.get("g3a", 18 - sh // 2)); g2i = int(OPT.get("g2a", 2)); gates[g2i] = 2
            for k2 in range(4, 8): at(g2i + k2 - 4, a_jobs(k2)[0])
        at(a8 - int(OPT.get("gl", 10)), [spoll(0)]); gates[a8] = 3
    ast = int(OPT.get('ast', 1))
    ea = 0 if ffn or NP else int(OPT.get('ea', 0))
    for k2 in range(8 + ea, 14): at(a8 + ast * (k2 - 8), a_jobs(k2)[0])
    if ea and OPT.get('a14a'): a14 = int(OPT['a14a'])
    for k2 in range(14, 18): at(a14 + ast * (k2 - 14), a_jobs(k2)[0])
    F = T + 8
    at(9, lines(f"v_and_b32 {v(T+17)}, 31, {v(vL)}\nv_lshrrev_b32 {v(T+18)}, 5, {v(vL)}\nv_lshlrev_b32 {v(T+18)}, 4, {v(T+18)}\nv_lshl_add_u32 {v(VX)}, {v(T+17)}, 10, {v(T+18)}") +
          [f"buffer_load_dwordx4 {v(XR,4)}, {v(VX)}, {s(SX,4)}, {s(sOo)} offen", f"buffer_load_dwordx4 {v(B2R,4)}, {v(T+18)}, {s(SB2,4)}, {s(sN)} offen"])
    at(24, lines(f"v_add_u32 {v(WB[0])}, {s(sM0x)}, {v(VL16)}\nv_xor_b32 {v(RBs[0])}, 8192, {v(WB[0])}") +
           sum([[f"v_add_u32 {v(WB[rg])}, {65536*rg}, {v(WB[0])}", f"v_add_u32 {v(RBs[rg])}, {65536*rg}, {v(RBs[0])}"] for rg in (1, 2)], []))
    for i in range(4):
        at(40 + i, lines(f"v_lshlrev_b32 {v(F+2*i)}, 16, {v(XR+i)}\nv_and_b32 {v(F+2*i+1)}, 0xffff0000, {v(XR+i)}\nv_lshlrev_b32 {v(T+4)}, 16, {v(B2R+i)}\nv_and_b32 {v(T+5)}, 0xffff0000, {v(B2R+i)}\nv_add_f32 {v(F+2*i)}, {v(F+2*i)}, {v(T+4)}\nv_add_f32 {v(F+2*i+1)}, {v(F+2*i+1)}, {v(T+5)}"))
    px1 = OPT.get("px1") == "1"
    if not px1:
        pxi = int(OPT.get("pxi", (16 if ffn else a8 + 6) if NP else a8 + 6))
        if not ffn and OPT.get("pxia"): pxi = int(OPT["pxia"])
        at(pxi - 1, [f"v_mov_b32 {v(PX+i)}, -1" for i in range(4)])
        for j in (1, 2, 3): at(pxi + (j - 1) * int(OPT.get("pxs", 1)), xoff(j, True) + [f"buffer_store_dwordx4 {v(PX,4)}, {v(VL16)}, {s(SWS,4)}, {s(sT0)} offen sc1 ; tag=px"])
    at(int(OPT.get("fx", 8 if px1 else 48 - sh)), flag(4, "px"))
    if OPT.get("wb"):
        lbw = P.lab("L_wb")
        at(int(OPT["wb"]), [f"s_lshr_b32 {s(sT0)}, s2, 3", f"s_and_b32 {s(sT0)}, {s(sT0)}, {OPT.get('wbm', 23)}", f"s_or_b32 {s(sT0)}, {s(sT0)}, {s(sW)}", f"s_cbranch_scc1 {lbw}", "buffer_wbl2 sc1", f"{lbw}:"])
    bar_i = first[12] - D
    RG = [KAREA[0], L_KVB, KAREA[0], L_KVB] if LP < 8 else KAREA
    def wr(nb): a = RG[nb]; return [f"ds_write_b128 {v(WB[a>>16])}, {v(AC+16*nb+8+4*q,4)} offset:{(a&0xffff)+1024*q}" for q in range(2)]
    def rdp(nb): a = RG[nb]; return [f"ds_read_b128 {v(AC+16*nb+8+4*q,4)}, {v(RBs[a>>16])} offset:{(a&0xffff)+1024*q}" for q in range(2)]
    def add(nb, pk): c = AC + 16 * nb; return [f"v_pk_add_f32 {v(c+i,2)}, {v(c+i,2)}, {v(c+8+i,2)}" for i in range(0, 8, 2)] if pk else [f"v_add_f32 {v(c+i)}, {v(c+i)}, {v(c+8+i)}" for i in range(8)]
    def snd(nb): c = AC + 16 * nb; return [f"v_cvt_pk_bf16_f32 {v(c+8+i)}, {v(c+2*i)}, {v(c+2*i+1)}" for i in range(4)] + xoff(nb, True) + [f"buffer_store_dwordx4 {v(c+8,4)}, {v(VL16)}, {s(SWS,4)}, {s(sT0)} offen sc1"]
    VPF, VPA = PX, PX + 1
    pf = f"buffer_load_dword {v(VPF)}, {v(VPA)}, {s(SWS,4)}, 0 offen sc1"
    at(38 if px1 else done_at[3] + 3, lines(f"v_and_b32 {v(VPA)}, 3, {v(vL)}\nv_lshlrev_b32 {v(VPA)}, 8, {v(VPA)}\nv_xor_b32 {v(VPA)}, {s(sFO)}, {v(VPA)}") + [pf])
    if SQ < 18:
        for nb in (1, 2, 3):
            e = done_at[nb]
            at(e + 1, wr(nb)); at(e + 2, ["s_waitcnt lgkmcnt(2)", "s_barrier"] + rdp(nb)); at(e + 4, add(nb, False) + snd(nb))
        at(done_at[3] + 4, stamp_i("xs"))
    else:
        e = done_at[3]
        at(e, wr(1) + wr(2)); at(e + 1, wr(3) + ["s_waitcnt lgkmcnt(0)", "s_barrier"] + rdp(1) + rdp(2) + rdp(3))
        for nb in (1, 2, 3): at(e + 1 + nb, add(nb, False) + snd(nb))
        at(e + 4, stamp_i("xs"))
    R = XF + 64 - 4 if False else None
    RQ = [None, XF + 64, XF + 72, XF + 80]
    rl = sum([xoff(j, False) + [f"buffer_load_dwordx4 {v(RQ[j],4)}, {v(VL16)}, {s(SWS,4)}, {s(sT0)} offen sc1"] for j in range(1, 4)], [])
    ri = int(OPT.get("ri", 99))
    seen = set()
    for i, (kk, nb) in enumerate(seq):
        if i % 4 == 0: P(f"s_setprio {3 - ((i >> 2) & 3)}")
        P(mfma(AC + 16 * nb, bq(i), AF2(kk), None if nb in seen else "0")); seen.add(nb)
        if i == bar_i: P(".waitvm b8"); P("s_barrier")
        if i + D < len(seq): P.add(br(i + D))
        if i + 2 < len(seq) and first[seq[i + 2][0]] == i + 2: val(seq[i + 2][0])
        if i in gates: sneed(gates[i], 0)
        for x in ev.pop(i, []): P.add(x)
        if i == len(seq) - 1 - ri:
            P(f"v_mov_b32 {v(VPF)}, {v(VPF)}")
            spin(P.lab("L_pf"), pf, f"v_cmp_gt_u32 vcc, 4, {v(VPF)}")
            P.add(rl)
        if i + 1 < len(seq) and first[seq[i + 1][0]] == i + 1: stamp(f"k{kk}")
    assert not ev, ev.keys()
    stamp("p2mm")
    P("s_setprio 0")
    P.add(wr(0))
    if ri >= len(seq):
        P(f"v_mov_b32 {v(VPF)}, {v(VPF)}")
        spin(P.lab("L_pf"), pf, f"v_cmp_gt_u32 vcc, 4, {v(VPF)}")
    P("s_waitcnt lgkmcnt(0)")
    P("s_barrier")
    P.add(rdp(0))
    if ri >= len(seq): P.add(rl)
    P.add(add(0, True))
    validate([RQ[j] + i for j in (1, 2, 3) for i in range(4)], T + 16, rl)
    stamp("xr")
    P(f"s_mov_b32 {s(sT0)}, 0x3f80\ns_mov_b32 {s(sT1)}, 0x3f800000")
    for j in range(1, 4):
        for i in range(4): P(f"v_dot2c_f32_bf16 {v(AC+2*i)}, {s(sT0)}, {v(RQ[j]+i)}\nv_dot2c_f32_bf16 {v(AC+2*i+1)}, {s(sT1)}, {v(RQ[j]+i)}")
    for i in range(4): P(f"v_permlane32_swap_b32 {v(AC+i)}, {v(AC+4+i)}")
    for i in range(0, 8, 2): P(f"v_pk_add_f32 {v(F+i,2)}, {v(F+i,2)}, {v(AC+i,2)}")
    for i in range(4): P(f"v_cvt_pk_bf16_f32 {v(XR+i)}, {v(F+2*i)}, {v(F+2*i+1)}")
    P(f"buffer_store_dwordx4 {v(XR,4)}, {v(VX)}, {s(SOUT,4)}, {s(sOo)} offen")
    finish(ffn)

def phase2_v3(bleft, aleft, ffn):
    BAR = [2, 3, 4, 5, 6, 7, 8, 9, 10, 11, 18, 19]; VX = 16; PX = BAUG
    t = T + 8
    P(f"v_bfe_u32 {v(t)}, {v(vL)}, 2, 2\nv_lshrrev_b32 {v(t+1)}, 5, {v(vL)}\nv_bfe_u32 {v(t+2)}, {v(vL)}, 4, 1\nv_lshl_add_u32 {v(t+3)}, {v(t+2)}, 2, {v(t)}\nv_lshl_add_u32 {v(t+3)}, {v(t+1)}, 4, {v(t+3)}")
    P(f"v_and_b32 {v(t+4)}, 63, {v(AW)}\ns_lshl_b32 {s(sT0)}, {s(sHALF)}, 5\nv_xor_b32 {v(t+4)}, {s(sT0)}, {v(t+4)}\nv_lshl_add_u32 {v(t+3)}, {v(t+3)}, 8, {v(t+4)}")
    P(f"v_xor_b32 {v(t)}, {s(sM)}, {v(t)}\nv_lshl_add_u32 {v(BAR[0])}, {v(t)}, 6, {v(t+3)}")
    for q in range(1, 4): P(f"v_xor_b32 {v(BAR[q])}, {64*q}, {v(BAR[0])}")
    for rg in (2, 1):
        for q in range(4): P(f"v_add_u32 {v(BAR[4*rg+q])}, {65536*rg}, {v(BAR[q])}")
    LP = int(OPT.get("lp", 2)); SQ = int(OPT.get("sq", 14))
    assert LP >= 2
    seq = [(st, q) for st in range(SQ) for q in range(4) if q or st < LP]
    done_at = {}
    for q in (1, 2, 3):
        seq += [(st, q) for st in range(SQ, 18)]; done_at[q] = len(seq)
    seq += [(st, 0) for st in range(LP, 18)]
    D = 4
    def bq(i): return XF + 8 * (i & 7)
    def br(i):
        st, q = seq[i]; a = KAREA[st >> 1]
        return [f"ds_read_b64_tr_b16 {v(bq(i)+2*tt,2)}, {v(BAR[4*(a>>16)+q])} offset:{(a&0xffff)+(st&1)*8192+2048*tt}" for tt in range(2)]
    def val(st): validate([AF3(st, sh) + i for sh in range(2) for i in range(4)], T + 16, sum(a_jobs(st), []))
    for i in range(D): P.add(br(i))
    val(0)
    stamp("hseen")
    first = {}
    for i, (st, q) in enumerate(seq): first.setdefault(st, i)
    ev = {}
    def at(i, x): ev.setdefault(i, []).append(x)
    a8, a14 = int(OPT.get("a8", 8)), int(OPT.get("a14", 26))
    i0 = 0
    for st in aleft: at(i0, sum(a_jobs(st), [])); i0 += 1
    for g_ in sum([b_dma(k2) for k2 in bleft], []): at(i0, g_); i0 += 1
    a8 = max(a8, i0)
    for st in range(8, 14): at(a8 + 2 * (st - 8), sum(a_jobs(st), []))
    for st in range(14, 18): at(a14 + 2 * (st - 14), sum(a_jobs(st), []))
    pxi = int(OPT.get("pxi", a8 + 12))
    at(pxi - 1, [f"v_mov_b32 {v(PX+i)}, -1" for i in range(4)])
    for j in (1, 2, 3): at(pxi + j - 1, xoff(j, True) + [f"buffer_store_dwordx4 {v(PX,4)}, {v(VL16)}, {s(SWS,4)}, {s(sT0)} offen sc1 ; tag=px"])
    at(done_at[1] - int(OPT.get("fxb", 2)), flag(2, "px"))
    F = T + 8
    at(a8 + 1, lines(f"v_and_b32 {v(T+17)}, 31, {v(vL)}\nv_lshrrev_b32 {v(T+18)}, 5, {v(vL)}\nv_lshlrev_b32 {v(T+18)}, 4, {v(T+18)}\nv_lshl_add_u32 {v(VX)}, {v(T+17)}, 10, {v(T+18)}") +
          [f"buffer_load_dwordx4 {v(XR,4)}, {v(VX)}, {s(SX,4)}, {s(sOo)} offen", f"buffer_load_dwordx4 {v(B2R,4)}, {v(T+18)}, {s(SB2,4)}, {s(sN)} offen"])
    for i in range(4):
        at(done_at[3] + 6 + i, lines(f"v_lshlrev_b32 {v(F+2*i)}, 16, {v(XR+i)}\nv_and_b32 {v(F+2*i+1)}, 0xffff0000, {v(XR+i)}\nv_lshlrev_b32 {v(T+4)}, 16, {v(B2R+i)}\nv_and_b32 {v(T+5)}, 0xffff0000, {v(B2R+i)}\nv_add_f32 {v(F+2*i)}, {v(F+2*i)}, {v(T+4)}\nv_add_f32 {v(F+2*i+1)}, {v(F+2*i+1)}, {v(T+5)}"))
    def snd(q): c = AC + 8 * q; return [f"v_cvt_pk_bf16_f32 {v(c+i)}, {v(c+2*i)}, {v(c+2*i+1)}" for i in range(4)] + xoff(q, True) + [f"buffer_store_dwordx4 {v(c,4)}, {v(VL16)}, {s(SWS,4)}, {s(sT0)} offen sc1"]
    VPF, VPA = PX, PX + 1
    pf = f"buffer_load_dword {v(VPF)}, {v(VPA)}, {s(SWS,4)}, 0 offen sc1"
    for q in (1, 2, 3): at(done_at[q] + 1, snd(q))
    at(done_at[3] + 1, stamp_i("xs"))
    at(done_at[3] + int(OPT.get("pfi", 0)), lines(f"v_and_b32 {v(VPA)}, 3, {v(vL)}\nv_lshlrev_b32 {v(VPA)}, 8, {v(VPA)}\nv_xor_b32 {v(VPA)}, {s(sFO)}, {v(VPA)}") + [pf])
    bar_i = first[12] - D
    R = AC + 8 - 4
    RQ = [None, AC + 12, AC + 20, AC + 28]
    rl = sum([xoff(j, False) + [f"buffer_load_dwordx4 {v(RQ[j],4)}, {v(VL16)}, {s(SWS,4)}, {s(sT0)} offen sc1"] for j in range(1, 4)], [])
    ri = min(done_at[3] + int(OPT.get("ri", 12)), len(seq) - 1)
    seen = set()
    for i, (st, q) in enumerate(seq):
        if i % 4 == 0: P(f"s_setprio {3 - ((i >> 2) & 3)}")
        for sh in range(2): P(m16(AC + 8 * q + 4 * sh, bq(i), AF3(st, sh), None if q in seen else "0"))
        seen.add(q)
        if i == bar_i: P(".waitvm b8"); P("s_barrier")
        if i + D < len(seq): P.add(br(i + D))
        if i + 2 < len(seq) and first[seq[i + 2][0]] == i + 2: val(seq[i + 2][0])
        for x in ev.pop(i, []): P.add(x)
        if i == ri:
            P(f"v_mov_b32 {v(VPF)}, {v(VPF)}")
            spin(P.lab("L_pf"), pf, f"v_cmp_gt_u32 vcc, 2, {v(VPF)}")
            P.add(rl)
        if i + 1 < len(seq) and first[seq[i + 1][0]] == i + 1: stamp(f"k{st}")
    assert not ev, ev.keys()
    stamp("p2mm")
    P("s_setprio 0")
    validate([RQ[j] + i for j in (1, 2, 3) for i in range(4)], T + 16, rl)
    stamp("xr")
    P(f"s_mov_b32 {s(sT0)}, 0x3f80\ns_mov_b32 {s(sT1)}, 0x3f800000")
    for j in range(1, 4):
        for i in range(4): P(f"v_dot2c_f32_bf16 {v(AC+2*i)}, {s(sT0)}, {v(RQ[j]+i)}\nv_dot2c_f32_bf16 {v(AC+2*i+1)}, {s(sT1)}, {v(RQ[j]+i)}")
    for i in range(4): P(f"v_permlane16_swap_b32 {v(AC+i)}, {v(AC+4+i)}")
    for i in range(0, 8, 2): P(f"v_pk_add_f32 {v(F+i,2)}, {v(F+i,2)}, {v(AC+i,2)}")
    for i in range(4): P(f"v_cvt_pk_bf16_f32 {v(XR+i)}, {v(F+2*i)}, {v(F+2*i+1)}")
    P(f"buffer_store_dwordx4 {v(XR,4)}, {v(VX)}, {s(SOUT,4)}, {s(sOo)} offen")
    finish(ffn)

def phase2(done=(), ordr="B6 B7 B8 B9 A4 A5 A6 A7 B10 A8 B11 A9 A10 B12 A11 B13 A12 B14 A13 B15 B16 B17 A14 A15 A16 A17", ffn=False):
    P(f"v_bfe_u32 {v(T+8)}, {v(vL)}, 2, 2\nv_lshrrev_b32 {v(T+9)}, 5, {v(vL)}\nv_and_b32 {v(T+10)}, 63, {v(AW)}")
    P(f"v_lshl_add_u32 {v(T+12)}, {v(T+9)}, 2, {v(T+8)}\nv_lshl_add_u32 {v(T+12)}, {v(T+12)}, 7, {v(T+10)}\nv_lshrrev_b32 {v(T+13)}, 1, {v(T+8)}")
    P(f"v_lshl_add_u32 {v(T+12)}, {v(T+13)}, 6, {v(T+12)}\nv_xor_b32 {v(T+13)}, 64, {v(T+12)}")
    P(f"s_add_u32 {s(sT0)}, {s(sM0x)}, 65536\ns_add_u32 {s(sT1)}, {s(sM0x)}, {RC}")
    for nb in range(2):
        P(f"v_add_u32 {v(BA+nb)}, {s(sM0x)}, {v(T+12+nb)}\nv_add_u32 {v(BA+2+nb)}, {s(sT0)}, {v(T+12+nb)}\nv_add_u32 {v(BA+4+nb)}, {s(sT1)}, {v(T+12+nb)}")
    P.add(b_reads(0))
    if OPT.get("r8", "1") == "1": validate([AFq(0, r2) + i for r2 in range(2) for i in range(4)], T + 16, sum(a_jobs(0), []))
    if OPT.get("p2prio") == "y":
        lb = P.lab("L_pr"); P(f"s_cmp_lt_u32 {s(sW)}, 4\ns_cbranch_scc1 {lb}\ns_setprio 1\n{lb}:")
    stamp("hseen")
    order = [j for j in ordr.split() if j not in done]
    jobs = []
    for j in order:
        k2 = int(j[1:]); gs = a_jobs(k2) if j[0] == "A" else b_dma(k2)
        jobs += [(j, gs[0]), (None, gs[1])]
    LEAD = int(OPT.get("lead", 3))
    first_need = min(int(j[1:]) - (0 if j[0] == "A" else 1) for j in order)
    order.sort(key=lambda j: int(j[1:]) - (0.5 if j[0] == "B" else 0)) if LEAD < 9 else None
    jobs = []
    for j in order:
        k2 = int(j[1:]); gs = a_jobs(k2) if j[0] == "A" else b_dma(k2)
        jobs += [(j, gs[0]), (None, gs[1])]
    NT = int(OPT.get("nt", 2))
    for kk in range(18 - NT):
        rem = [x for x, _ in jobs if x]
        assert f"A{kk+1}" not in rem and f"B{kk+2}" not in rem, (kk, rem)
        if OPT.get("v"): print(kk, rem, file=sys.stderr)
        pm = OPT.get("p2prio", "c")
        if pm == "c": P(f"s_setprio {3 - ((kk // int(OPT.get('p2per', 1))) & 3)}")
        br = b_reads(kk + 1) if kk + 1 < 18 else []
        for nb in range(2):
            for rb in range(2):
                mi = 2 * nb + rb
                P(mfma(AC + 16 * mi, BTq(kk, nb), AFq(kk, rb), "0" if kk == 0 else None))
                if mi == 0: P.add(br[:3])
                if mi == 1: P.add(br[3:])
                if mi == 2 and (1 if OPT.get('r8', '1') == '1' else 4) <= kk + 1 < 18:
                    if jobs and jobs[0][0] is None: P.add(jobs.pop(0)[1])
                    validate([AFq(kk + 1, r2) + i for r2 in range(2) for i in range(4)], T + 16, sum(a_jobs(kk + 1), []))
                for rep in range(2 if kk < int(OPT.get("dbl", 0)) else 1):
                    if not jobs: continue
                    j, g_ = jobs[0]
                    if j:
                        k2 = int(j[1:]); last = (nb, rb) == (1, 1)
                        free = k2 - (8 if j[0] == "A" else 9)
                        if free > kk or (free == kk and not last): continue
                        need_at = k2 - (0 if j[0] == "A" else 1)
                        if need_at > max(kk, first_need - 1) + LEAD: continue
                    jobs.pop(0); P.add(g_)
        stamp(f"k{kk}")
        if kk == 8:
            P(f"v_lshrrev_b32 {v(T+17)}, 3, {v(vL)}\nv_and_b32 {v(T+18)}, 7, {v(vL)}\nv_lshlrev_b32 {v(T+18)}, 4, {v(T+18)}\nv_lshl_add_u32 {v(VXR)}, {v(T+17)}, 10, {v(T+18)}")
            P(f"s_lshl_b32 {s(sT0)}, {s(sN)}, 7")
            P(f"buffer_load_dwordx4 {v(XR,4)}, {v(VXR)}, {s(SX,4)}, {s(sOo)} offen")
            P(f"buffer_load_dwordx4 {v(B2R,4)}, {v(T+18)}, {s(SB2,4)}, {s(sT0)} offen")
        if kk == 3:
            for q in range(4):
                P(f"v_xor_b32 {v(VWR+q)}, {64*q}, {v(VL16)}\nv_add_u32 {v(VWR+q)}, {s(sM0x)}, {v(VWR+q)}")
                P(f"v_add_u32 {v(T+q)}, 65536, {v(VWR+q)}")
            P(f"v_lshrrev_b32 {v(T+4)}, 3, {v(vL)}\ns_lshl_b32 {s(sT0)}, {s(sW34)}, 1\nv_add_u32 {v(T+4)}, {s(sT0)}, {v(T+4)}")
            P(f"v_and_b32 {v(T+5)}, 3, {v(vL)}\nv_lshlrev_b32 {v(T+6)}, 2, {v(T+5)}\nv_xor_b32 {v(T+4)}, {v(T+4)}, {v(T+6)}\nv_lshlrev_b32 {v(T+4)}, 4, {v(T+4)}\nv_and_b32 {v(T+6)}, 1, {v(T+5)}\nv_lshl_add_u32 {v(T+4)}, {v(T+6)}, 10, {v(T+4)}\nv_lshrrev_b32 {v(T+6)}, 1, {v(T+5)}\nv_lshl_add_u32 {v(T+4)}, {v(T+6)}, 14, {v(T+4)}")
            P(f"v_bfe_u32 {v(T+5)}, {v(vL)}, 2, 1\nv_lshl_add_u32 {v(T+4)}, {v(T+5)}, 16, {v(T+4)}\ns_lshl_b32 {s(sT0)}, {s(sHALF)}, 15\nv_add_u32 {v(VRED)}, {s(sT0)}, {v(T+4)}")
        F = T + 8
        if kk == 13:
            for i in range(4):
                P(f"v_lshlrev_b32 {v(F+2*i)}, 16, {v(XR+i)}\nv_and_b32 {v(F+2*i+1)}, 0xffff0000, {v(XR+i)}")
                P(f"v_lshlrev_b32 {v(T+4)}, 16, {v(B2R+i)}\nv_and_b32 {v(T+5)}, 0xffff0000, {v(B2R+i)}")
                P(f"v_add_f32 {v(F+2*i)}, {v(F+2*i)}, {v(T+4)}\nv_add_f32 {v(F+2*i+1)}, {v(F+2*i+1)}, {v(T+5)}")
    assert not jobs
    for kk in range(19 - NT, 18):
        P.add(b_reads(kk))
        validate([AFq(kk, r2) + i for r2 in range(2) for i in range(4)], T + 16, sum(a_jobs(kk), []))
    def wr(blk): return [f"ds_write_b128 {v(VWR + q if blk < 2 else T + q)}, {v(AC+16*blk+4*q,4)} offset:{(blk&1)*32768+(q>>1)*16384+(q&1)*1024}" for q in range(4)]
    pend = []
    for mi in range(4):
        for kk in range(18 - NT, 18):
            P(mfma(AC + 16 * mi, BTq(kk, mi >> 1), AFq(kk, mi & 1)))
            if kk > 18 - NT or NT == 1: P.add(pend[:2]); pend = pend[2:]
        P.add(pend); pend = wr(mi)
    stamp("p2mm")
    P.add(pend)
    P("s_waitcnt lgkmcnt(0)")
    stamp("rw")
    P("s_barrier")
    stamp("rb")
    R = XF
    for ww in range(8):
        for hf in range(2): P(f"ds_read_b128 {v(R+8*ww+4*hf,4)}, {v(VRED)} offset:{2048*ww+512*hf}")
    for ww in range(8):
        for i in range(0, 8, 2): P(f"v_pk_add_f32 {v(F+i,2)}, {v(F+i,2)}, {v(R+8*ww+i,2)}")
    for i in range(4): P(f"v_cvt_pk_bf16_f32 {v(XR+i)}, {v(F+2*i)}, {v(F+2*i+1)}")
    P(f"buffer_store_dwordx4 {v(XR,4)}, {v(VXR)}, {s(SOUT,4)}, {s(sOo)} offen {OPT.get('om', '').replace('+', ' ')}")
    finish(ffn)

def softmax(p, out, LS, pk=False):
    t = T + 16
    if pk:
        assert LS == STD + 1
        L = softmax(p, out, LS)[:9]
        L += [f"v_pk_fma_f32 {v(p+i,2)}, {v(p+i,2)}, {v(STD,2)}, {v(t,2)} op_sel:[0,1,0] op_sel_hi:[1,1,0] neg_lo:[0,0,1] neg_hi:[0,0,1]" for i in range(0, 16, 2)]
        L += [f"v_exp_f32 {v(p+i)}, {v(p+i)}" for i in range(16)]
        L += [f"v_pk_add_f32 {v(t,2)}, {v(p,2)}, {v(p+2,2)}", f"v_pk_add_f32 {v(t+2,2)}, {v(p+4,2)}, {v(p+6,2)}"]
        L += [f"v_pk_add_f32 {v(t+2*(i&1),2)}, {v(t+2*(i&1),2)}, {v(p+8+2*i,2)}" for i in range(4)]
        L += [f"v_pk_add_f32 {v(t,2)}, {v(t,2)}, {v(t+2,2)}", f"v_add_f32 {v(t)}, {v(t)}, {v(t+1)}", f"v_rcp_f32 {v(t)}, {v(t)}"]
        L += [f"v_pk_mul_f32 {v(p+i,2)}, {v(p+i,2)}, {v(t,2)} op_sel_hi:[1,0]" for i in range(0, 16, 2)]
        return L + [f"v_cvt_pk_bf16_f32 {v(out+i)}, {v(p+2*i)}, {v(p+2*i+1)}" for i in range(8)]
    L = [f"v_max3_f32 {v(t)}, {v(p)}, {v(p+1)}, {v(p+2)}", f"v_max3_f32 {v(t+1)}, {v(p+3)}, {v(p+4)}, {v(p+5)}",
         f"v_max3_f32 {v(t)}, {v(t)}, {v(p+6)}, {v(p+7)}", f"v_max3_f32 {v(t+1)}, {v(t+1)}, {v(p+8)}, {v(p+9)}",
         f"v_max3_f32 {v(t)}, {v(t)}, {v(p+10)}, {v(p+11)}", f"v_max3_f32 {v(t+1)}, {v(t+1)}, {v(p+12)}, {v(p+13)}",
         f"v_max3_f32 {v(t)}, {v(t)}, {v(p+14)}, {v(p+15)}", f"v_max_f32 {v(t)}, {v(t)}, {v(t+1)}",
         f"v_mul_f32 {v(t)}, {v(t)}, {v(LS)}"]
    L += [f"v_fma_f32 {v(p+i)}, {v(p+i)}, {v(LS)}, -{v(t)}" for i in range(16)]
    L += [f"v_exp_f32 {v(p+i)}, {v(p+i)}" for i in range(16)]
    L += [f"v_add_f32 {v(t)}, {v(p)}, {v(p+1)}", f"v_add_f32 {v(t+1)}, {v(p+2)}, {v(p+3)}"]
    for i in range(4, 16, 2):
        L += [f"v_add_f32 {v(t)}, {v(t)}, {v(p+i)}", f"v_add_f32 {v(t+1)}, {v(t+1)}, {v(p+i+1)}"]
    L += [f"v_add_f32 {v(t)}, {v(t)}, {v(t+1)}", f"v_rcp_f32 {v(t)}, {v(t)}"]
    L += [f"v_mul_f32 {v(p+i)}, {v(p+i)}, {v(t)}" for i in range(16)]
    L += [f"v_cvt_pk_bf16_f32 {v(out+i)}, {v(p+2*i)}, {v(p+2*i+1)}" for i in range(8)]
    return L

setup(False)
KAREA[:] = [RC, RA+3*Q, RB, RA, RA+Q, RA+2*Q, RB+Q, RB+2*Q, RB+3*Q]
LS = K1; VPK = K2; VV = VW3; MC = BIAS
PHI0, PHI1 = AX, AAUG
PHI0 = AX
PHI1 = S1
PHI1 = T + 12
t = T + 16
P(f"v_bfe_u32 {v(t)}, {v(vL)}, 2, 2\nv_lshrrev_b32 {v(t+1)}, 5, {v(vL)}\nv_lshl_add_u32 {v(t)}, {v(t+1)}, 2, {v(t)}\nv_lshlrev_b32 {v(t)}, 5, {v(t)}")
P(f"v_bfe_u32 {v(t+2)}, {v(vL)}, 1, 1\nv_lshl_add_u32 {v(t)}, {v(t+2)}, 3, {v(t)}\nv_bfe_u32 {v(t+2)}, {v(vL)}, 4, 1\nv_lshl_add_u32 {v(t)}, {v(t+2)}, 4, {v(t)}")
P(f"s_lshl_b32 {s(sT1)}, {s(sHALF)}, 10\ns_add_u32 {s(sT1)}, {s(sT1)}, {L_WPHI}\nv_add_u32 {v(AB)}, {s(sT1)}, {v(t)}")
P(f"v_bfe_u32 {v(t)}, {v(vL)}, 2, 1\nv_mul_u32_u24 {v(t)}, 0x8000, {v(t)}\nv_lshl_or_b32 {v(AB+1)}, {v(t)}, 16, {v(t)}")
P(f"v_and_b32 {v(t)}, 31, {v(vL)}\nv_lshlrev_b32 {v(t)}, 6, {v(t)}\ns_lshl_b32 {s(sT1)}, {s(sW34)}, 9\nv_bfe_u32 {v(t+2)}, {v(vL)}, 1, 2")
P(f"v_lshlrev_b32 {v(t+3)}, 1, {v(t+1)}\nv_xor_b32 {v(t+3)}, {v(t+3)}, {v(t+2)}")
P(f"s_lshl_b32 {s(sT2)}, {s(sHALF)}, 14\ns_add_u32 {s(sT2)}, {s(sT2)}, {s(sT1)}\nv_lshl_add_u32 {v(VPK)}, {v(t+3)}, 4, {v(t)}\nv_add_u32 {v(VPK)}, {s(sT2)}, {v(VPK)}")
P(f"v_xor_b32 {v(t+3)}, {v(t+1)}, {v(t+2)}")
P(f"s_lshl_b32 {s(sT2)}, {s(sHALF)}, 13\ns_add_u32 {s(sT2)}, {s(sT2)}, {s(sT1)}\ns_add_u32 {s(sT2)}, {s(sT2)}, {RA+32768}\nv_lshl_add_u32 {v(VV)}, {v(t+3)}, 4, {v(t)}\nv_add_u32 {v(VV)}, {s(sT2)}, {v(VV)}")
def phi_load(hl, dst):
    return [f"ds_read_b64_tr_b16 {v(dst+2*tt,2)}, {v(AB)} offset:{512*hl+256*tt}" for tt in range(2)] + \
           [f"v_xor_b32 {v(dst+i)}, {v(AB+1)}, {v(dst+i)}" for i in range(4)]
S = Sched(96)
common_sched(S, False, None, MC)
S.post[30] += [f"ds_read_b128 {v(CSR,4)}, {v(VCSA)}"]
sKV, sOS = sH0, sH3
P(f"s_lshl_b32 {s(sT0)}, {s(sG)}, 4\ns_add_u32 {s(sT0)}, {s(sT0)}, {s(sRT)}\ns_mul_i32 {s(sT0)}, {s(sT0)}, {KVP_SZ}\ns_mul_i32 {s(sT1)}, {s(sW)}, 1152\ns_add_u32 {s(sT0)}, {s(sT0)}, {s(sT1)}\ns_add_u32 {s(sT0)}, {s(sT0)}, {WS_KVP}")
P(f"s_cmp_lt_u32 {s(sW)}, 4\ns_cselect_b32 {s(sKV)}, {s(sT0)}, 0x7f000000")
P(f"s_lshl_b32 {s(sT0)}, {s(sG)}, 2\ns_lshl_b32 {s(sT1)}, {s(sHALF)}, 1\ns_add_u32 {s(sT0)}, {s(sT0)}, {s(sT1)}\ns_add_u32 {s(sT0)}, {s(sT0)}, 112\ns_lshl_b32 {s(sT0)}, {s(sT0)}, 10\ns_add_u32 {s(sOS)}, {s(sT0)}, {s(sHo)}")
PA = AAUG
OFFL = OPT.get("off", "0") == "1"
if OFFL:
    P(f"s_mul_i32 {s(sT0)}, {s(sG)}, 448\ns_and_b32 {s(sT1)}, {s(sG)}, 1\ns_add_u32 {s(sT2)}, {s(sT1)}, {s(sHALF)}\ns_lshl_b32 {s(sT2)}, {s(sT2)}, 6\ns_add_u32 {s(sT2)}, {s(sT2)}, {s(sT0)}")
    P(f"s_lshl_b32 {s(sT2)}, {s(sT2)}, 5\ns_add_u32 {s(sWq)}, {s(sT2)}, {s(sHo)}\ns_add_u32 {s(sWq)}, {s(sWq)}, 8192")
    P(f"s_xor_b32 {s(sT1)}, {s(sT1)}, 1\ns_mul_i32 {s(sT1)}, {s(sT1)}, 384\ns_add_u32 {s(sT0)}, {s(sT0)}, {s(sT1)}\ns_lshl_b32 {s(sT1)}, {s(sHALF)}, 5\ns_add_u32 {s(sT0)}, {s(sT0)}, {s(sT1)}")
    P(f"s_lshl_b32 {s(sT0)}, {s(sT0)}, 5\ns_add_u32 {s(sW3)}, {s(sT0)}, {s(sHo)}")
S.post[46] += [f"v_mov_b32 {v(PA+i)}, -1" for i in range(4)] + [f"v_lshrrev_b32 {v(S2)}, 2, {v(vL)}", f"v_lshl_add_u32 {v(S2)}, {v(S2)}, 26, {v(VL16)}"]
S.post[47] += [f"buffer_store_dwordx4 {v(PA,4)}, {v(VL16)}, {s(SWS,4)}, {s(sKV)} offen sc1"]
S.post[48] += [f"buffer_store_dwordx4 {v(PA,4)}, {v(S2)}, {s(SWS,4)}, {s(sKV)} offen offset:1024 sc1 ; tag=pz"]
pl = [(sOS, 0), (sOS, 1024)] + ([(sWq, 0), (sWq, 1024), (sW3, 0)] if OFFL else [])
for (so, off), G in zip(pl, [int(x) for x in OPT.get("pza", "50,53,56,59,62").split(",")]):
    S.post[G] += [f"buffer_store_dwordx4 {v(PA,4)}, {v(VL16)}, {s(SWS,4)}, {s(so)} offen offset:{off} sc1 ; tag=po"]
PX1 = OPT.get("px1") == "1"
if V2 and PX1:
    for j, G in zip((1, 2, 3), (56, 59, 62)): S.post[G] += xoff(j, True) + [f"buffer_store_dwordx4 {v(PA,4)}, {v(VL16)}, {s(SWS,4)}, {s(sT0)} offen sc1 ; tag=px"]
S.post[63] += [f"v_mov_b32 {v(PA+2)}, 0", f"v_mov_b32 {v(PA+3)}, 0"]
def ltouch():
    P(f"s_sub_u32 {s(sT0)}, {s(sW)}, 4\ns_cmp_lt_u32 {s(sT0)}, 3")
    P(f"s_cbranch_scc0 L_nlt")
    P.cond_begin("w456")
    P(f"v_lshlrev_b32 {v(S1)}, 7, {v(vL)}\ns_lshl_b32 {s(sT1)}, {s(sRT)}, 3\ns_add_u32 {s(sT1)}, {s(sT1)}, {s(sG)}")
    P(f"s_cmp_eq_u32 {s(sT0)}, 2\ns_cbranch_scc1 L_lt2")
    P(f"s_lshl_b32 {s(sT1)}, {s(sT1)}, 1\ns_add_u32 {s(sT1)}, {s(sT1)}, {s(sT0)}\ns_mul_i32 {s(sT1)}, {s(sT1)}, 7168")
    P(f"buffer_load_dword {v(VX0)}, {v(S1)}, {s(SW2,4)}, {s(sT1)} offen")
    P("s_branch L_nlt")
    P("L_lt2:")
    P(f"v_and_b32 {v(S1)}, 4095, {v(S1)}\ns_lshl_b32 {s(sT1)}, {s(sT1)}, 12")
    P(f"buffer_load_dword {v(VX0)}, {v(S1)}, {s(SWO,4)}, {s(sT1)} offen")
    P(f"buffer_load_dword {v(VX1)}, {v(S1)}, {s(SB2,4)}, 0 offen")
    P.cond_end()
    for I in P.ins[-12:]:
        if I.kind == "vld": I.defs = []
    P("L_nlt:")
if OPT.get("touch", "5") == "2": S.blk[("e", int(OPT.get("tg", 54)))] = ltouch
S.post[31] += stamp_i("pass1")
fill = stats_final() + aug(ACC0, CSR, None) + phi_load(0, AX) + phi_load(1, T + 8) + [f"v_mul_f32 {v(LS)}, {f2u(LOG2E):#x}, {v(RSTD)}"]
fill += [f"v_cvt_pk_bf16_f32 {v(T+i)}, {v(ACC0+2*i)}, {v(ACC0+2*i+1)}" for i in range(8)]
fill += [mfma(ACC2, AX, T, "0"), mfma(ACC0, T + 8, T + 4, "0")]
S.spread(fill, 32, 40)
S.spread(softmax(ACC2, T + 8, LS) + softmax(ACC0, T, LS), 41, 64)
pkg = 62 if OPT.get("few", "1") == "1" else 56
S.post[pkg] += [f"ds_write_b128 {v(VPK)}, {v(T+8,4)}", f"v_xor_b32 {v(VSTA)}, 16, {v(VPK)}"]
S.post[pkg+1] += [f"ds_write_b128 {v(VSTA)}, {v(T+12,4)}"]
S.post[62] += [f"ds_read_b128 {v(MC,4)}, {v(VCSA)} offset:1024"]
S.post[63] += stamp_i("sub1")
S.pre[64] += sum4(CS0, MC)
S.fill[64] += aug(ACC1, MC, None)[3:]
S.post[65] += [f"ds_write_b128 {v(VPK)}, {v(T,4)} offset:8192"]
S.post[66] += [f"ds_write_b128 {v(VSTA)}, {v(T+4,4)} offset:8192"]
fill = []
fill += [f"v_mul_f32 {v(ACC1+i)}, {v(ACC1+i)}, {v(RSTD)}" for i in range(16)]
fill += [f"v_cvt_pk_bf16_f32 {v(ACC1+i)}, {v(ACC1+2*i)}, {v(ACC1+2*i+1)}" for i in range(8)]
fill += [f"ds_write_b128 {v(VV)}, {v(ACC1,4)}", f"v_xor_b32 {v(VV)}, 32, {v(VV)}", f"ds_write_b128 {v(VV)}, {v(ACC1+4,4)}"]
S.spread(fill, 66, 70)
S.dmas(b_dma(0), 65, 3)
S.dmas(b_dma(1), 74, 4); S.dmas(b_dma(2) + b_dma(3) + b_dma(4), int(OPT.get('ab', 86)), 1)
def kvblock():
    P(".waitvm pz lgkm0")
    P("s_barrier")
    kvflag()
    stamp("kv0"); stamp("kv1")
    P(f"s_cmp_lt_u32 {s(sW)}, 4")
    P("s_cbranch_scc0 L_nkv")
    P.cond_begin("lo4")
    P("s_setprio 3")
    t = T + 16; u = S1
    P(f"v_bfe_u32 {v(u)}, {v(vL)}, 2, 2\nv_lshrrev_b32 {v(u+1)}, 5, {v(vL)}\nv_lshl_add_u32 {v(u)}, {v(u+1)}, 3, {v(u)}\nv_lshlrev_b32 {v(u)}, 6, {v(u)}")
    P(f"v_bfe_u32 {v(u+1)}, {v(vL)}, 1, 1\nv_lshl_add_u32 {v(u)}, {v(u+1)}, 3, {v(u)}\nv_bfe_u32 {v(u+1)}, {v(vL)}, 3, 1\nv_and_b32 {v(VSTA)}, 1, {v(vL)}")
    P(f"v_or_b32 {v(t)}, {s(sSH)}, {v(VSTA)}\nv_xor_b32 {v(t)}, {v(t)}, {v(u+1)}\nv_lshl_add_u32 {v(t)}, {v(t)}, 4, {v(u)}")
    P(f"s_lshr_b32 {s(sT0)}, {s(sW)}, 1\ns_lshl_b32 {s(sT0)}, {s(sT0)}, 13\ns_add_u32 {s(sT0)}, {s(sT0)}, {RA+32768}\nv_add_u32 {v(t)}, {s(sT0)}, {v(t)}\nv_xor_b32 {v(t+1)}, 32, {v(t)}")
    P(f"v_bfe_u32 {v(t+2)}, {v(vL)}, 4, 1\nv_lshl_add_u32 {v(t+2)}, {v(VSTA)}, 1, {v(t+2)}\nv_xor_b32 {v(t+2)}, {v(t+2)}, {v(u+1)}\nv_lshl_add_u32 {v(t+2)}, {v(t+2)}, 4, {v(u)}")
    P(f"s_lshl_b32 {s(sT0)}, {s(sW)}, 13\nv_add_u32 {v(t+2)}, {s(sT0)}, {v(t+2)}\nv_xor_b32 {v(t+3)}, 32, {v(t+2)}")
    P(f"v_and_b32 {v(u)}, 16, {v(vL)}\nv_cmp_eq_u32 vcc, 0, {v(u)}\nv_mov_b32 {v(u+1)}, {s(sONE)}")
    KB = [T, T + 8, ACC1, ACC1 + 8]
    def kr(J):
        for tt in range(2):
            P(f"ds_read_b64_tr_b16 {v(KB[J&3]+2*tt,2)}, {v(t+tt)} offset:{1024*J+256*tt}")
            P(f"ds_read_b64_tr_b16 {v(KB[J&3]+4+2*tt,2)}, {v(t+2+tt)} offset:{1024*J+256*tt}")
    kr(0); kr(1); kr(2)
    for J in range(8):
        for i in range(4): P(f"v_cndmask_b32 {v(KB[J&3]+i)}, {v(u+1)}, {v(KB[J&3]+i)}, vcc")
        if J + 3 < 8: kr(J + 3)
        P(mfma(ACC0, KB[J&3] + 4, KB[J&3], "0" if J == 0 else None))
    P(f"v_lshrrev_b32 {v(u)}, 5, {v(vL)}\nv_and_b32 {v(t+2)}, 15, {v(vL)}\nv_lshlrev_b32 {v(t)}, 4, {v(t+2)}\nv_lshl_add_u32 {v(t)}, {v(u)}, 8, {v(t)}\nv_add_u32 {v(t+1)}, 512, {v(t)}")
    P(f"v_lshlrev_b32 {v(u)}, 4, {v(u)}\nv_add_u32 {v(u)}, 1024, {v(u)}\nv_lshl_add_u32 {v(u)}, {v(t+2)}, 26, {v(u)}\nv_add_u32 {v(u+1)}, 32, {v(u)}")
    P(f"v_cndmask_b32 {v(t)}, {v(u)}, {v(t)}, vcc\nv_cndmask_b32 {v(t+1)}, {v(u+1)}, {v(t+1)}, vcc")
    for i in range(8): P(f"v_cvt_pk_bf16_f32 {v(T+i)}, {v(ACC0+2*i)}, {v(ACC0+2*i+1)}")
    stamp("kv1")
    for j in range(2): P(f"buffer_store_dwordx4 {v(T+4*j,4)}, {v(t+j)}, {s(SWS,4)}, {s(sKV)} offen sc1")
    P.cond_end()
    P("L_nkv:")
    stamp("kv2")
S.blk[70] = kvblock
S.pre[94] += ["s_waitcnt lgkmcnt(0)", "s_barrier"]
def kvflag():
    P(f"s_cmp_eq_u32 {s(sW)}, 7")
    P("s_cbranch_scc0 L_nkf")
    P.cond_begin("w0")
    P(f"s_lshl_b32 {s(sT0)}, {s(sG)}, 8\ns_lshl_b32 {s(sT1)}, {s(sRT)}, 2\ns_add_u32 {s(sT0)}, {s(sT0)}, {s(sT1)}\ns_add_u32 {s(sT0)}, {s(sT0)}, {WS_KVF}")
    P(f"v_mov_b32 {v(VFV)}, 1")
    P(f"buffer_store_dword {v(VFV)}, {v(VZ)}, {s(SWS,4)}, {s(sT0)} offen sc1")
    P.cond_end()
    P("L_nkf:")
def kvpoll():
    P(f"s_cmp_eq_u32 {s(sW)}, 7")
    P("s_cbranch_scc0 L_nkp")
    n0 = len(P.ins)
    P(f"s_lshl_b32 {s(sT2)}, {s(sG)}, 8\ns_add_u32 {s(sT2)}, {s(sT2)}, {WS_KVF}\ns_mov_b32 {s(sCNT)}, 0")
    P("s_branch L_spkv1")
    P("L_spkv:")
    P(f"s_buffer_load_dwordx16 s[20:35], {s(SWS,4)}, {s(sT2)} glc")
    P("L_spkv1:")
    P(f"s_add_u32 {s(sCNT)}, {s(sCNT)}, 1")
    P("s_waitcnt lgkmcnt(0)")
    for i in range(22, 36, 2): P(f"s_and_b64 s[20:21], s[20:21], s[{i}:{i+1}]")
    P("s_and_b32 s20, s20, s21")
    P("s_cbranch_scc1 L_nkp")
    P(f"s_cmp_gt_u32 {s(sCNT)}, {SPIN_MAX}")
    P("s_cbranch_scc1 L_nkp")
    P("s_sleep 1")
    P("s_branch L_spkv")
    for I in P.ins[n0:]:
        I.cond = "kvp"
        if I.kind == "smem": I.kind = "opaque"
    P("L_nkp:")
def kvreq():
    P(f"s_cmp_eq_u32 {s(sW)}, 7")
    P("s_cbranch_scc0 L_nkr")
    n0 = len(P.ins)
    P(f"s_lshl_b32 {s(sT2)}, {s(sG)}, 8\ns_add_u32 {s(sT2)}, {s(sT2)}, {WS_KVF}")
    P(f"s_buffer_load_dwordx16 s[20:35], {s(SWS,4)}, {s(sT2)} glc")
    for I in P.ins[n0:]:
        I.cond = "kvp"
        if I.kind == "smem": I.kind = "opaque"
    P("L_nkr:")
VP = OPT.get("vp", "0") == "1"
VPA_, VPV = VX0, VSTA
vpl = f"buffer_load_dword {v(VPV)}, {v(VPA_)}, {s(SWS,4)}, 0 offen sc1"
if VP:
    S.fill[78] += lines(f"s_lshl_b32 {s(sT0)}, {s(sG)}, 8\ns_add_u32 {s(sT0)}, {s(sT0)}, {WS_KVF}\nv_and_b32 {v(VPA_)}, 3, {v(vL)}\nv_lshl_add_u32 {v(VPA_)}, {v(VPA_)}, 2, {s(sFL)}\nv_lshl_add_u32 {v(VPV)}, {v(vL)}, 2, {s(sT0)}\nv_cmp_gt_u32 vcc, 16, {v(vL)}\ns_nop 1\nv_cndmask_b32 {v(VPA_)}, {v(VPA_)}, {v(VPV)}, vcc")
    S.post[int(OPT.get("vpg", 86))] += [vpl]
    def vcheck0():
        P(f"v_mov_b32 {v(VPV)}, {v(VPV)}")
        spin("L_vp", vpl, f"v_cmp_gt_u32 vcc, 1, {v(VPV)}")
    S.blk[("e", 93)] = vcheck0
else:
    ab_ = int(OPT.get('ab', 86)); S.blk[ab_] = lambda: (kvreq(), kvpoll()); S.post[95] += [spoll(1)]
S.post[94] += [f"ds_read_b128 {v(CSR,4)}, {v(VCSA)} offset:2048"]
S.post[80] += phi_load(1, T + 8)[:2]; S.post[82] += phi_load(1, T + 8)[2:]
PQ = WF
def Gq(r): return XF + 8 * r
Z = XF + 80; GA = XF + 64
VG, VGZ = S1, S2
gsetup = lines(f"s_mul_i32 {s(sK)}, {s(sG)}, {16*KVP_SZ}\ns_lshr_b32 {s(sT0)}, {s(sW)}, 1\ns_mul_i32 {s(sT0)}, {s(sT0)}, 1152\ns_add_u32 {s(sK)}, {s(sK)}, {s(sT0)}\ns_add_u32 {s(sK)}, {s(sK)}, {WS_KVP}")
gsetup += lines(f"v_and_b32 {v(VGZ)}, 15, {v(vL)}\nv_mul_u32_u24 {v(VGZ)}, {KVP_SZ}, {v(VGZ)}\nv_and_b32 {v(VG)}, 16, {v(vL)}\nv_add_u32 {v(VGZ)}, {v(VGZ)}, {v(VG)}\ns_lshl_b32 {s(sT0)}, {s(sSH)}, 4\nv_add_u32 {v(VGZ)}, {s(sT0)}, {v(VGZ)}")
gsetup += lines(f"v_lshrrev_b32 {v(VG)}, 5, {v(vL)}\nv_mul_u32_u24 {v(VG)}, {8*KVP_SZ - 512}, {v(VG)}\nv_add_u32 {v(VG)}, {v(VG)}, {v(VL16)}\ns_lshl_b32 {s(sT0)}, {s(sSH)}, 8\nv_add_u32 {v(VG)}, {s(sT0)}, {v(VG)}")
gl = [[f"buffer_load_dwordx4 {v(Z,4)}, {v(VGZ)}, {s(SWS,4)}, {s(sK)} offen offset:1024 sc1"]]
for r in range(8):
    gl.append(lines(f"s_add_u32 {s(sD1)}, {s(sRT)}, {r}\ns_and_b32 {s(sD1)}, {s(sD1)}, 7\ns_mul_i32 {s(sD1)}, {s(sD1)}, {KVP_SZ}\ns_add_u32 {s(sD1)}, {s(sD1)}, {s(sK)}") +
              [f"buffer_load_dwordx4 {v(Gq(r),4)}, {v(VG)}, {s(SWS,4)}, {s(sD1)} offen sc1"])
S.fill[76] += gsetup
g0_ = int(OPT.get("gg", 94))
gl_in = min(9, 96 - g0_)
S.dmas(gl[:gl_in], g0_)
run_sched(S, [ACC0, ACC1, ACC2])
stamp("sub2")
P.add(aug(ACC2, CSR, None))
for g_ in gl[gl_in:gl_in+2]: P.add(g_)
for i in range(8): P(f"v_cvt_pk_bf16_f32 {v(T+i)}, {v(ACC2+2*i)}, {v(ACC2+2*i+1)}")
P(mfma(ACC1, AX, T, "0"))
P(mfma(ACC2, T + 8, T + 4, "0"))
stamp("phi")
n_tail0 = len(P.ins)
bd = sum([b_dma(kk) for kk in (5, 6, 7)], [])
TO = OPT.get("to", "a")
sm1 = softmax(ACC1, PQ, LS, True); sm2 = softmax(ACC2, PQ + 8, LS, True)
if TO == "a":
    P.add(interleave(gl[gl_in+2:], sm1[:30]) + interleave(bd[:2], sm1[30:])); bd = bd[2:]
else:
    P.add(interleave(gl[gl_in+2:], sm1[:30]) + interleave(bd[:4], sm1[30:] + sm2[:33])); bd = bd[4:]; sm2 = sm2[33:]
if not VP: sneed(1, 1)
P(spoll(0))
stamp("qsm")
validate([Z + i for i in range(4)] + [Gq(r) + i for r in range(8) for i in range(4)], T + 4, sum(gl, []))
stamp("kvseen")
aj = sum([a_jobs(kk) for kk in range(8)], [])
n_o0 = len(P.ins)
P(f"v_lshrrev_b32 {v(T+1)}, 5, {v(vL)}")
P(f"v_bfe_u32 {v(T+2)}, {v(vL)}, 4, 1\nv_lshlrev_b32 {v(T+2)}, 9, {v(T+2)}\nv_lshl_add_u32 {v(T+2)}, {v(T+1)}, 3, {v(T+2)}")
P(f"s_lshl_b32 {s(sT0)}, {s(sW)}, 10\ns_add_u32 {s(sT0)}, {s(sT0)}, {L_KVB}\nv_add_u32 {v(T+2)}, {s(sT0)}, {v(T+2)}")
P(f"v_and_b32 {v(T+3)}, 15, {v(vL)}\nv_lshl_add_u32 {v(T+3)}, {v(T+3)}, 4, {v(T+2)}")
P(f"v_cmp_gt_u32 vcc, 32, {v(vL)}\ns_mov_b32 {s(sT0)}, 0x3f80\ns_mov_b32 {s(sT1)}, 0x3f800000")
P(f"v_cndmask_b32 {v(Z)}, {v(Z+2)}, {v(Z)}, vcc\nv_cndmask_b32 {v(Z+1)}, {v(Z+3)}, {v(Z+1)}, vcc")
P(f"v_lshlrev_b32 {v(Z+8)}, 16, {v(Z)}\nv_and_b32 {v(Z+9)}, 0xffff0000, {v(Z)}\nv_lshlrev_b32 {v(Z+10)}, 16, {v(Z+1)}\nv_and_b32 {v(Z+11)}, 0xffff0000, {v(Z+1)}")
for ror in (8, 4, 2, 1):
    for i in range(4): P(f"v_add_f32_dpp {v(Z+8+i)}, {v(Z+8+i)}, {v(Z+8+i)} row_ror:{ror} row_mask:0xf bank_mask:0xf")
P(f"v_cvt_pk_bf16_f32 {v(Z)}, {v(Z+8)}, {v(Z+9)}\nv_cvt_pk_bf16_f32 {v(Z+1)}, {v(Z+10)}, {v(Z+11)}")
P(f"ds_write_b64 {v(T+2)}, {v(Z,2)} offset:256")
def ga(i): return GA + (i & 3) + 8 * (i >> 2)
for i in range(4):
    P(f"v_lshlrev_b32 {v(ga(2*i))}, 16, {v(Gq(0)+i)}\nv_and_b32 {v(ga(2*i+1))}, 0xffff0000, {v(Gq(0)+i)}")
for r in range(1, 8):
    for i in range(4):
        P(f"v_dot2c_f32_bf16 {v(ga(2*i))}, {s(sT0)}, {v(Gq(r)+i)}\nv_dot2c_f32_bf16 {v(ga(2*i+1))}, {s(sT1)}, {v(Gq(r)+i)}")
for i in range(4): P(f"v_permlane32_swap_b32 {v(ga(i))}, {v(ga(i+4))}")
for i in range(4): P(f"v_add_f32 {v(ga(i))}, {v(ga(i))}, {v(ga(i+4))}")
P(f"v_cvt_pk_bf16_f32 {v(GA)}, {v(GA)}, {v(GA+1)}\nv_cvt_pk_bf16_f32 {v(GA+1)}, {v(GA+2)}, {v(GA+3)}")
P(f"ds_write_b64 {v(T+3)}, {v(GA,2)}")
stamp("gsum")
P(f"v_and_b32 {v(T)}, 31, {v(vL)}\nv_min_u32 {v(T)}, 16, {v(T)}\nv_and_b32 {v(T+1)}, 32, {v(vL)}\nv_add_u32 {v(T)}, {v(T)}, {v(T+1)}\nv_lshlrev_b32 {v(T)}, 4, {v(T)}")
P(f"s_lshl_b32 {s(sT0)}, {s(sHALF)}, 12\ns_add_u32 {s(sT0)}, {s(sT0)}, {L_KVB}\nv_add_u32 {v(T)}, {s(sT0)}, {v(T)}")
body = P.ins[n_o0:]; del P.ins[n_o0:]
for i, g_ in enumerate(bd):
    P.add(g_); P.ins += body[len(body)*i//len(bd): len(body)*(i+1)//len(bd)]
stamp("pre1")
sneed(1, 0)
stamp("post1")
if NP: aj = aj[:4]
P.add(interleave(aj, sm2))
stamp("sm2")
P(".waitvm b7 lgkm0")
if OPT.get("tp"):
    per = int(OPT["tp"]); body = P.ins[n_tail0:]; del P.ins[n_tail0:]; c = 0; lv = 3
    P("s_setprio 3")
    for I in body:
        P.ins.append(I)
        if I.kind == "valu" and not I.cond and not I.op.startswith("v_cmp"):
            c += 1
            if c % per == 0: lv = (lv - 1) & 3; P(f"s_setprio {lv}")
stamp("ob0")
P("s_barrier")
stamp("ob1")
for i in range(4): P(f"ds_read_b128 {v(Gq(i),4)}, {v(T)} offset:{1024*i}")
P(mfma(ACC0, Gq(0), PQ, "0")); P(mfma(ACC1, Gq(2), PQ + 8, "0"))
P(mfma(ACC0, Gq(1), PQ + 4)); P(mfma(ACC1, Gq(3), PQ + 12))
if NP: P(spoll(0))
EA = int(OPT.get("ea", 0))
if EA and not NP:
    for kk in range(8, 8 + EA): P.add(a_jobs(kk)[0])
for hl, acc in enumerate((ACC0, ACC1)):
    P(f"v_add_f32 {v(acc+8)}, {f2u(1e-6):#x}, {v(acc+8)}\nv_rcp_f32 {v(acc+8)}, {v(acc+8)}")
    for i in range(0, 8, 2): P(f"v_pk_mul_f32 {v(acc+i,2)}, {v(acc+i,2)}, {v(acc+8,2)} op_sel_hi:[1,0]")
    for i in range(4): P(f"v_cvt_pk_bf16_f32 {v(T+4*hl+i)}, {v(acc+2*i)}, {v(acc+2*i+1)}")
    P(f"buffer_store_dwordx4 {v(T+4*hl,4)}, {v(VL16)}, {s(SWS,4)}, {s(sOS)} offen offset:{1024*hl} sc1 ; ost")
stamp("p1end")
if V3: phase2_v3((8,), (), False)
elif V2: phase2_v2((8,), False)
else: phase2(("B6", "B7"), "A4 A5 A6 B8 A7 B9 A8 B10 A9 B11 A10 B12 A11 B13 A12 B14 A13 B15 B16 B17 A14 A15 A16 A17")

P("L_ffn:")
P(".reset")
setup(True)
KAREA[:] = [RC, RA+2*Q, RA+3*Q, RB, RB+Q, RB+2*Q, RA, RA+Q, RB+3*Q]
MC = ACC2; CSF = ACC2 + 4
S = Sched(112)
common_sched(S, True, None, MC)
S.post[30] += [f"ds_read_b128 {v(CSF,4)}, {v(VCSA)}"]
if not NP: S.post[40] += [f"s_add_u32 {s(sT2)}, {s(sH0)}, 4096", f"s_add_u32 {s(sK)}, {s(sH0)}, 8192"]
pzs = [[f"buffer_store_dwordx4 {v(PZ,4)}, {v(VL16)}, {s(SWS,4)}, {s(so)} offen offset:{off} sc1 ; tag=h1"]
       for so, off in ((sT2, 0), (sT2, 1024), (sK, 0), (sK, 1024), (sH3, 0))[:0 if NP else 2 if OFFL else 5]]
for g_, G in zip(pzs, [int(x) for x in OPT.get("pz", "50,56,59,67,70").split(",")]): S.post[G] += g_
S.post[31] += stamp_i("pass1")
fill = stats_final() + aug(ACC0, CSF, BIAS)
fill += [f"v_mul_f32 {v(K1)}, {f2u(GC1):#x}, {v(RSTD)}", f"v_mul_f32 {v(K2)}, {v(RSTD)}, {v(RSTD)}",
         f"v_mul_f32 {v(K2)}, {v(K2)}, {v(RSTD)}", f"v_mul_f32 {v(K2)}, {f2u(GC2):#x}, {v(K2)}"]
S.spread(fill, 32, 39)
S.spread(gelu(ACC0, 16) + hstore(sH0, 2, "h1") + [f"s_add_u32 {s(sH0)}, {s(sH0)}, 4096"], 39, 64)
S.post[62] += [f"ds_read_b128 {v(CSF,4)}, {v(VCSA)} offset:1024"]
S.post[63] += stamp_i("sub1")
S.spread(aug(ACC1, CSF, BIAS + 1), 64, 66)
S.spread(gelu(ACC1, 16) + hstore(sH0, 2, "h2") + [f"s_add_u32 {s(sH0)}, {s(sH0)}, 4096"], 67, 96)
w3 = sum([w3quarter(q, 3584) for q in range(4)], [])
for g_, G in zip(w3 + b_dma(0), [int(x) for x in OPT.get("w3", "64,68,72,76,74,75" if OPT.get("few", "1") == "1" else "48,54,60,72,75,76").split(",")]): S.dma[G] += g_
S.dmas(b_dma(1), 78, 2); S.dmas(b_dma(2), 82, 2); S.dmas(b_dma(3), 86, 2); S.dmas(b_dma(4), 90, 2); S.dmas(b_dma(5), 98, 2)
S.pre[94] += [".waitvm w3 lgkm0", "s_barrier"]
S.post[94] += [f"ds_read_b128 {v(CSF,4)}, {v(VCSA)} offset:2048"]
S.post[95] += stamp_i("sub2")
if V2 and PX1:
    for j, G in zip((1, 2, 3), [int(x) for x in OPT.get("pxg", "91,93,102").split(",")]): S.post[G] += xoff(j, True) + [f"buffer_store_dwordx4 {v(PZ,4)}, {v(VL16)}, {s(SWS,4)}, {s(sT0)} offen sc1 ; tag=px"]
S.fill[96] += aug(ACC0, CSF, BIAS + 2)
if OFFL: S.post[106] += [f"s_sub_u32 {s(sT2)}, {s(sFO)}, 1024", f"s_buffer_load_dword {s(sK)}, {s(SWS,4)}, {s(sT2)} glc"]
S.spread(gelu(ACC0, 16), 98, 112)
if V3: S.post[97] += va3_init
aj = sum([a_jobs(kk) for kk in range(4 if NP else 8 if V2 and not V3 else 6)], []) + [[]] * 8
S.dmas(aj[:6], 106); aj = aj[2:]
for i in range(0, 16, 2): S.post[96 + i] += [m16(MC, SEL, WF + 4 * (i & 3), "0" if i == 0 else None)]
run_sched(S, [ACC0, ACC1, ACC0, ACC1])
t = T + 16
P(f"v_and_b32 {v(t)}, 31, {v(vL)}\ns_lshl_b32 {s(sT0)}, {s(sHALF)}, 4\nv_xor_b32 {v(t)}, {s(sT0)}, {v(t)}\nv_lshlrev_b32 {v(t)}, 4, {v(t)}\nv_add_u32 {v(t)}, {L_CS+3072}, {v(t)}")
P(f"v_add_u32 {v(t+1)}, {s(sW34)}, {v(VCSA)}")
P(f"ds_write_b32 {v(t+1)}, {v(MC)} offset:3072")
P.add(aj[4])
XO = 4096 if V2 else 1024
P(f"s_add_u32 {s(sT1)}, {s(sMB if V2 else sM0x)}, {KAREA[8]}\ns_xor_b32 {s(sT0)}, {s(sT1)}, 8192\nv_add_u32 {v(t+1)}, {s(sT0)}, {v(VL16)}\nv_add_u32 {v(AB)}, {s(sT1)}, {v(VL16)}")
P(f"ds_write_b128 {v(t+1)}, {v(ACC1+8,4)}\nds_write_b128 {v(t+1)}, {v(ACC1+12,4)} offset:{XO}")
P(".waitvm b5 lgkm0")
P("s_barrier")
stamp("sub3")
P(f"ds_read_b128 {v(CSF,4)}, {v(t)}")
P(f"ds_read_b128 {v(ACC0,4)}, {v(AB)}\nds_read_b128 {v(ACC0+4,4)}, {v(AB)} offset:{XO}")
P.add(aj[5])
P.add(aug(ACC1, CSF, BIAS + 3))
P.add(aj[6] + aj[7])
if NP: P.add(flag(2, "h2"))
for i in range(0, 8, 2): P(f"v_pk_add_f32 {v(ACC1+i,2)}, {v(ACC1+i,2)}, {v(ACC0+i,2)}")
stamp("x7")
gt = gelu(ACC1, 8, True, out=BIAS); h3 = hstore(sH0, 2, "h3")
sneed(1, 1)
if OFFL: own_check()
P.add(aj[8] + gt[:10] + aj[9] + gt[10:20] + [h3[0]] + gt[20:30] + [h3[1]] + gt[30:] + hstore(sH3, 1, "h4", BIAS))
stamp("p1end")
if V3: phase2_v3((6, 7, 8), (6, 7), True)
elif V2: phase2_v2((6, 7, 8), True)
else: phase2(("A4", "A5"), "B6 A6 B7 A7 B8 B9 A8 B10 A9 B11 A10 B12 A11 B13 A12 B14 A13 B15 B16 B17 A14 A15 A16 A17", True)

P("L_end:")
P("s_endpgm")

ins = P.ins
for I in ins:
    if "; nodef" in I.text: I.defs = []
if OPT.get("nodma"): ins = [I for I in ins if I.kind != "dma"]
if OPT.get("notr"): ins = [I for I in ins if not I.op.startswith("ds_read_b64_tr")]
if OPT.get("nofmac"): ins = [I for I in ins if not (I.op.startswith("v_fmac") or (I.op == "v_and_b32" and "0xffff0000" in I.text) or (I.op == "v_lshlrev_b32" and I.ops[1] == "16"))]
if OPT.get("nom16"): ins = [I for I in ins if "16x16x32" not in I.op]
if OPT.get("notrans"): ins = [I for I in ins if not I.op.startswith(("v_exp", "v_rcp"))]
if OPT.get("novalu"): ins = [I for I in ins if not I.op.startswith(("v_exp", "v_rcp", "v_mul_f32", "v_fma_f32", "v_cvt_pk", "v_max3", "v_add_f32"))]
if OPT.get("nopk"): ins = [I for I in ins if not I.op.startswith(("v_pk_", "v_dot2c"))]
if OPT.get("noval"): ins = [I for I in ins if not (I.op == "s_cbranch_vccnz" and "_slow" in I.text)]
if OPT.get("noa"): ins = [I for I in ins if not (I.kind == "vld" and "x4" in I.op and "sc1" in I.mods)]
if OPT.get("nob"): ins = [I for I in ins if not (I.kind == "dma" and (s(SW2,4) in I.text or s(SWO,4) in I.text))]
if OPT.get("anosc"):
    for I in ins:
        if I.kind == "vld" and "x4" in I.op: I.text = I.text.replace(" sc1", " " + OPT["anosc"].replace("0", ""))
if OPT.get("nopz"): ins = [I for I in ins if not (I.kind == "vst" and "x4" in I.op and (v(PZ,4) in I.text or v(AAUG,4) in I.text) and s(SWS,4) in I.text)]
if OPT.get("plain"):
    for I in ins:
        if I.kind == "vst" and "x4" in I.op and s(SWS,4) in I.text and ("tag=h" in I.text or "tag=po" in I.text or "; ost" in I.text): I.text = I.text.replace(" sc1", "")
if OPT.get("nohs"):
    ins = [I for I in ins if not (I.op.startswith("s_buffer_load") or I.text.startswith((".waitvm h", ".waitvm po", ".waitvm zf")) or (I.op == "s_branch" and ("L_sp" in I.text or "L_ncs" in I.text or "L_oc" in I.text) and "spkv1" not in I.text))]
    for I in ins:
        if I.text.startswith(".waitvm pz"): I.text = ".waitvm none lgkm0"
if OPT.get("nost"): ins = [I for I in ins if not (I.kind == "vst" and "x4" in I.op and "tag=h" in I.text)]
if OPT.get("nomfma"): ins = [I for I in ins if I.kind != "mfma"]
if STAMP:
    for I in ins:
        if I.op in ("s_memrealtime", "s_memtime"): I.kind = "salu"
if OPT.get("nopx"): ins = [I for I in ins if not (I.kind == "vst" and "tag=px" in I.text)]
if OPT.get("nopo"): ins = [I for I in ins if not (I.kind == "vst" and "x4" in I.op and I.ops[0] == v(AAUG,4) and s(SWS,4) in I.text)]
ins = auto_wait(ins)
st = []
ins = hazards(ins, st)
hdr = open("parallel_sum__linear_kernel_hedgehog__dense_activation_gelu__prompt.s.ref").read().split("; Override")[0]
out = hdr + f"; @launch grid=(256,1,1) block=(512,1,1) lds={LDS_SIZE}\n"
out += f'.amdgcn_target "amdgcn-amd-amdhsa--gfx950"\n.text\n.globl {NAME}\n.p2align 8\n.type {NAME},@function\n{NAME}:\n'
out += render(ins)
out += f""".section .rodata,"a"
.p2align 6
.amdhsa_kernel {NAME}
  .amdhsa_next_free_vgpr 256
  .amdhsa_next_free_sgpr 102
  .amdhsa_accum_offset 256
  .amdhsa_group_segment_fixed_size 0
  .amdhsa_kernarg_size 96
  .amdhsa_user_sgpr_count 2
  .amdhsa_user_sgpr_kernarg_segment_ptr 1
  .amdhsa_system_sgpr_workgroup_id_x 1
.end_amdhsa_kernel
"""
open(sys.argv[1], "w").write(out)
print(f"instrs={sum(1 for I in ins if I.kind not in ('label','dir'))} nop-sites={len(st)} nop-states={sum(n for n,_ in st)}", file=sys.stderr)
if OPT.get("nops"):
    for n, tx in st: print(n, tx, file=sys.stderr)
```

```python
import sys, math, struct
from ir import *

NAME = "parallel_sum__linear_kernel_hedgehog__dense_activation_gelu__prompt_kernel"
OPT = dict(a.split("=") for a in sys.argv[2:] if "=" in a)
STAMP = int(OPT.get("stamp", 0))

def f2u(x): return struct.unpack("<I", struct.pack("<f", x))[0]
LOG2E = 1.4426950408889634
GC1 = -2.0 * LOG2E * math.sqrt(2.0 / math.pi)
GC2 = GC1 * 0.044715

HF_RB = 144 * 1024
WS_KVP = 0xA00000
KVP_SZ = 4608
WS_FLG = 0xC00000
WS_KVF = 0xC08000
WS_STAMP = 0xD00000
WS_X = 0x1000000
WS_SIZE = 0x1800000
NP = OPT.get('np', '1') == '1'
if NP: OPT['r8'] = '0'
V3 = OPT.get('p2', '2') == '3'
V2 = OPT.get('p2', '2') in '23'
RA, RB, RC = 0, 65536, 131072
L_KVB = 147456
L_CS = 155648
L_ST = L_CS + 4096
L_WPHI = L_CS + 6144
LDS_SIZE = 163840
SPIN_MAX = 1 << 15

sW, sRT, sG, sM, sN = 3, 4, 5, 6, 7
SX, SW2, SWS, SWT, SAUX, SDBG, SWO, SOUT = 8, 12, 16, 20, 24, 28, 36, 40
sXo, sWo, sROT, sC1 = 32, 33, 34, 35
SB2 = 92
sFL, sOo, sM0x, sT0, sT1, sSIG, sONE, sFO, sHALF, sHo, sWq, sW3, sT2, sCNT, sW34, sT3 = range(44, 60)
sEX = 60
sH0, sH3, sM4, sK = 62, 63, 64, 65
sST = 66
sB2o, sBOo = 90, 91
sA0, sA1, sR4, sSH, sD0, sD1 = range(96, 102)
sOK = sSIG
sQ = [sXo, sWo, sROT, sC1]
sPL = 28
VCSA = 0; vL = 1
AX = 2; AW = 6; AB = 10; VZ, VFV = 12, 13
VX0, VX1, VW, VB, VW3 = 14, 15, 16, 17, 18
VSTA, S1, S2, CS0 = 19, 20, 21, 22
VW0 = 22
RSTD, STD, K1, K2, VL16 = 23, 24, 25, 26, 27
BAUG, AAUG, SEL, BIAS = 28, 32, 36, 40
T = 44
WF = 64
ACC0, ACC1, ACC2 = 80, 96, 112
XF = 128
VTD = int(OPT.get('vtd', 15))
PZ = ACC2 + 8

P = Prog()
STI = dict(start=0, kernarg=1, it0=2, pass1=3, sub1=4, sub2=5, qsm=6, sub3=6, kvseen=7, x7=7, p1end=8, hseen=9, p2mm=10, end=11)
if OPT.get("sp") == "p2": STI = dict(start=0, p1end=1, k1=2, k3=3, k5=4, k7=5, k9=6, k11=7, k13=8, k15=9, p2mm=10, end=11)
if OPT.get("sp") == "att": STI = dict(start=0, sub1=1, kv0=2, kv1=3, kv2=4, sub2=5, qsm=6, kvseen=7, sm2=8, gsum=9, p1end=10, end=11)
if OPT.get("sp", "").startswith("l:"): STI = {n: i for i, n in enumerate(["start"] + OPT["sp"][2:].split(","))}
def stamp_i(name):
    if not STAMP or name not in STI: return []
    i = STI[name]
    return [f"{'s_memrealtime' if STAMP == 1 else 's_memtime'} {s(sST + 2*i, 2)} ; stamp {i} {name}"]
def stamp(name): P.add(stamp_i(name))

def mfma(d, a, b, c=None):
    return f"v_mfma_f32_32x32x16_bf16 {v(d,16)}, {v(a,4)}, {v(b,4)}, {v(d,16) if c is None else c}"
def m16(d, a, b, c=None):
    return f"v_mfma_f32_16x16x32_bf16 {v(d,4)}, {v(a,4)}, {v(b,4)}, {v(d,4) if c is None else c}"
def srd(base, nbytes):
    P(f"s_mov_b32 {s(base+2)}, {nbytes}\ns_mov_b32 {s(base+3)}, 0x20000")
def lines(t): return [l for l in t.split("\n") if l.strip()]

P("s_cmp_ge_u32 s2, 256")
P("s_cbranch_scc1 L_end")
stamp("start")
if OPT.get("exit0"): P("s_endpgm")
if OPT.get("cpf", "1") == "3":
    P(f"s_getpc_b64 {s(sEX,2)}")
    P("L_pc0:")
    P(f"v_subrev_u32 v3, 320, v0\nv_cmp_gt_u32 vcc, 16, v3\ns_lshr_b32 {s(sT0)}, s2, 3\ns_lshl_b32 {s(sT0)}, {s(sT0)}, 11")
    P("s_cbranch_vccz L_ncp0")
    P.cond_begin("cp0")
    P(f"v_and_b32 v3, 15, v3\nv_lshlrev_b32 v3, 7, v3\nv_add_u32 v3, {s(sT0)}, v3\nv_min_u32 v3, L_end-L_pc0, v3")
    P(f"global_load_dword v253, v3, {s(sEX,2)}")
    P.cond_end()
    P("L_ncp0:")
if OPT.get("cpf", "1") == "2":
    P(f"s_getpc_b64 {s(sEX,2)}")
    P("L_pc0:")
    P(f"v_lshlrev_b32 v3, 7, v0")
    P(f"v_min_u32 v3, L_end-L_pc0, v3")
    P(f"global_load_dword v253, v3, {s(sEX,2)}")
P(f"s_load_dwordx2 {s(SX,2)}, s[0:1], 0")
P(f"s_load_dwordx2 {s(SWT,2)}, s[0:1], 8")
P(f"s_load_dwordx2 {s(sA0,2)}, s[0:1], 40")
P(f"v_lshrrev_b32 v2, 6, v0")
P(f"v_and_b32 {v(vL)}, 63, v0")
P(f"s_lshr_b32 {s(sT1)}, s2, 3")
P(f"v_readfirstlane_b32 {s(sW)}, v2")
OWN = False
P(f"s_and_b32 {s(sRT)}, s2, 4\ns_lshl_b32 {s(sRT)}, {s(sRT)}, 1\ns_and_b32 {s(sT2)}, {s(sT1)}, 7\ns_add_u32 {s(sRT)}, {s(sRT)}, {s(sT2)}")
P(f"v_lshrrev_b32 v2, 3, {v(vL)}\nv_and_b32 v3, 7, {v(vL)}\nv_lshrrev_b32 v4, 4, {v(vL)}")
P(f"s_lshl_b32 {s(sXo)}, {s(sRT)}, 17\ns_lshl_b32 {s(sT2)}, {s(sW)}, 14\ns_add_u32 {s(sXo)}, {s(sXo)}, {s(sT2)}")
P(f"v_xor_b32 v5, v3, v4\nv_lshl_add_u32 v5, v5, 4, {s(sXo)}\nv_lshl_add_u32 {v(VX0)}, v2, 10, v5")
P(f"s_lshr_b32 {s(sN)}, {s(sT1)}, 3\ns_lshl_b32 {s(sT2)}, {s(sN)}, 1\ns_add_u32 {s(sROT)}, {s(sRT)}, {s(sT2)}\ns_and_b32 {s(sROT)}, {s(sROT)}, {0 if OPT.get('norot') else OPT.get('rm', 7)}")
P(f"v_xor_b32 v5, 64, {v(VX0)}\nv_add_u32 {v(VX1)}, {8192-1024}, v5")
srd(SX, 2097152)
P(f"s_lshl_b32 {s(sM0x)}, {s(sW)}, 11\ns_lshl_b32 {s(sK)}, {s(sROT)}, 7\ns_mov_b32 m0, {s(sM0x)}")
P(f"v_and_b32 v4, 1, v4\nv_lshlrev_b32 v4, 2, v4\nv_xor_b32 v4, v3, v4\nv_lshlrev_b32 v4, 4, v4")
P(f"s_and_b32 {s(sM)}, s2, 3\ns_lshl_b32 {s(sG)}, {s(sM)}, 1\ns_lshr_b32 {s(sT2)}, {s(sT1)}, 4\ns_add_u32 {s(sG)}, {s(sG)}, {s(sT2)}")
P(f"s_lshr_b32 {s(sD0)}, {s(sM0x)}, 1")
P("s_waitcnt lgkmcnt(0)")
stamp("kernarg")
P(f"buffer_load_dwordx4 {v(VX0)}, {s(SX,4)}, {s(sK)} offen lds")
P(f"buffer_load_dwordx4 {v(VX1)}, {s(SX,4)}, {s(sK)} offen offset:1024 lds")
P(f"s_load_dwordx2 {s(SWS,2)}, s[0:1], 88")
P(f"s_load_dwordx2 {s(SDBG,2)}, s[0:1], 80")
P(f"s_load_dwordx2 {s(SW2,2)}, s[0:1], 56")
P(f"s_load_dwordx2 {s(SWO,2)}, s[0:1], 24")
P(f"s_load_dwordx2 {s(SOUT,2)}, s[0:1], 72")
P(f"s_load_dwordx2 {s(SB2,2)}, s[0:1], 64")
assert V2
P(f"s_bitcmp1_b32 {s(sT1)}, 3")
P("s_cbranch_scc1 L_ffn")

def item1(it, pitch):
    q = it & 3
    return [[f"s_add_u32 m0, {s(sM0x)}, {RA+q*16384}", f"s_mul_i32 {s(sD1)}, {s(sK)}, {pitch//2}",
             f"buffer_load_dwordx4 {v(VX0)}, {s(SX,4)}, {s(sK)} offen lds"],
            [f"buffer_load_dwordx4 {v(VX1)}, {s(SX,4)}, {s(sK)} offen offset:1024 lds"],
            [f"s_add_u32 m0, {s(sD0)}, {RB+it*8192}", f"s_add_u32 {s(sK)}, {s(sK)}, 128",
             f"buffer_load_dwordx4 {v(VW0)}, {s(SWT,4)}, {s(sD1)} offen lds ; tag=it{it}",
             f"s_and_b32 {s(sK)}, {s(sK)}, 1023"]]
def wquarter(region, q, coloff, pitch, tag):
    return [[f"s_add_u32 m0, {s(sM0x)}, {region+q*16384}", f"s_add_u32 {s(sD1)}, {s(sQ[q])}, {coloff}",
             f"buffer_load_dwordx4 {v(VW)}, {s(SWT,4)}, {s(sD1)} offen lds"],
            [f"s_add_u32 {s(sD1)}, {s(sD1)}, {8*pitch-1024}",
             f"buffer_load_dwordx4 {v(VW)}, {s(SWT,4)}, {s(sD1)} offen offset:1024 lds ; tag={tag}"]]
def w3quarter(q, pitch):
    return [[f"s_lshr_b32 {s(sD1)}, {s(sM0x)}, 1", f"s_add_u32 m0, {s(sD1)}, {RA+q*8192}", "s_nop 0",
             f"buffer_load_dwordx4 {v(VW3)}, {s(SWT,4)}, {s(sQ[q])} offen lds ; tag=w3"]]

def spin(label, load, cmp):
    P(f"s_mov_b32 {s(sCNT)}, 0")
    P(f"{label}:")
    P(cmp)
    P(f"s_add_u32 {s(sCNT)}, {s(sCNT)}, 1")
    P(f"s_cbranch_vccz {label}_ok")
    P(f"s_cmp_gt_u32 {s(sCNT)}, {SPIN_MAX}")
    P(f"s_cbranch_scc1 {label}_ok")
    P("s_sleep 1")
    old = P._cond; P._cond = label
    P(load)
    P("s_waitcnt vmcnt(0)")
    P._cond = old
    P(f"s_branch {label}")
    P(f"{label}_ok:")

def gelu(acc, n, pk=False, t0=T, out=T):
    L = []
    for g4 in range(0, n, 4):
        t = t0 + 8 + (g4 & 4)
        a = [acc + g4 + i for i in range(4)]
        if pk:
            L += [f"v_pk_mul_f32 {v(t+i,2)}, {v(a[i],2)}, {v(a[i],2)}" for i in (0, 2)]
            L += [f"v_pk_fma_f32 {v(t+i,2)}, {v(t+i,2)}, {v(K2,2)}, {v(STD,2)} op_sel:[0,0,1] op_sel_hi:[1,0,1]" for i in (0, 2)]
            L += [f"v_pk_mul_f32 {v(t+i,2)}, {v(a[i],2)}, {v(t+i,2)}" for i in (0, 2)]
        else:
            L += [f"v_mul_f32 {v(t+i)}, {v(a[i])}, {v(a[i])}" for i in range(4)]
            L += [f"v_fma_f32 {v(t+i)}, {v(t+i)}, {v(K2)}, {v(K1)}" for i in range(4)]
            L += [f"v_mul_f32 {v(t+i)}, {v(a[i])}, {v(t+i)}" for i in range(4)]
        L += [f"v_exp_f32 {v(t+i)}, {v(t+i)}" for i in range(4)]
        if pk: L += [f"v_pk_fma_f32 {v(t+i,2)}, {v(t+i,2)}, {v(STD,2)}, {v(STD,2)} op_sel_hi:[1,0,0]" for i in (0, 2)]
        else: L += [f"v_fma_f32 {v(t+i)}, {v(t+i)}, {v(STD)}, {v(STD)}" for i in range(4)]
        L += [f"v_rcp_f32 {v(t+i)}, {v(t+i)}" for i in range(4)]
        if pk: L += [f"v_pk_mul_f32 {v(t+i,2)}, {v(a[i],2)}, {v(t+i,2)}" for i in (0, 2)]
        else: L += [f"v_mul_f32 {v(t+i)}, {v(a[i])}, {v(t+i)}" for i in range(4)]
        pr = out + (g4 >> 1)
        L += [f"v_cvt_pk_bf16_f32 {v(pr)}, {v(t)}, {v(t+1)}", f"v_cvt_pk_bf16_f32 {v(pr+1)}, {v(t+2)}, {v(t+3)}"]
    return L
def hstore(soff, n, tagn, src=T):
    return [f"buffer_store_dwordx4 {v(src+4*j,4)}, {v(VL16)}, {s(SWS,4)}, {s(soff)} offen offset:{1024*j} sc1 ; tag={tagn}" for j in range(n)]
assert K1 == STD + 1

def sum4(d, r):
    return [f"v_add_f32 {v(d)}, {v(r)}, {v(r+1)}", f"v_add_f32 {v(r+2)}, {v(r+2)}, {v(r+3)}", f"v_add_f32 {v(d)}, {v(d)}, {v(r+2)}"]

MS, U = T + 4, T + 16
CSR = T + 12
MC = AAUG

def stats_final():
    t = T + 16
    return [f"v_add_f32 {v(S1)}, {v(MS)}, {v(MS+2)}", f"v_add_f32 {v(S2)}, {v(MS+1)}, {v(MS+3)}",
          f"v_mul_f32 {v(S1)}, {f2u(-1.0/512):#x}, {v(S1)}",
          f"v_mul_f32 {v(t)}, {v(S1)}, {v(S1)}",
          f"v_fma_f32 {v(S2)}, {v(S2)}, {s(sT3)}, -{v(t)}",
          f"v_max_f32 {v(S2)}, 0, {v(S2)}",
          f"v_add_f32 {v(S2)}, {f2u(1e-5):#x}, {v(S2)}",
          f"v_rsq_f32 {v(RSTD)}, {v(S2)}",
          f"v_cvt_pk_bf16_f32 {v(t)}, {v(S1)}, {v(S1)}",
          f"v_mul_f32 {v(STD)}, {v(S2)}, {v(RSTD)}",
          f"v_and_b32 {v(t+1)}, 0xffff0000, {v(t)}",
          f"v_sub_f32 {v(t+1)}, {v(S1)}, {v(t+1)}",
          f"v_cvt_pk_bf16_f32 {v(BAUG)}, {v(S1)}, {v(t+1)}",
          f"v_cvt_pk_bf16_f32 {v(BAUG+1)}, {v(S1)}, {v(STD)}",
          f"v_and_b32 {v(t+1)}, 0xffff0000, {v(BAUG+1)}",
          f"v_sub_f32 {v(t+1)}, {v(STD)}, {v(t+1)}",
          f"v_cmp_gt_u32 vcc, 32, {v(vL)}",
          f"v_cvt_pk_bf16_f32 {v(BAUG+2)}, {v(t+1)}, 0",
          f"v_cndmask_b32 {v(BAUG)}, 0, {v(BAUG)}, vcc",
          f"v_cndmask_b32 {v(BAUG+1)}, 0, {v(BAUG+1)}, vcc",
          f"v_cndmask_b32 {v(BAUG+2)}, 0, {v(BAUG+2)}, vcc"]

def aug(acc, part, bias):
    t = T + 18; dst = AAUG
    L = sum4(CS0, part) + [f"v_cvt_pk_bf16_f32 {v(dst)}, {v(CS0)}, {v(CS0)}",
         f"v_and_b32 {v(t)}, 0xffff0000, {v(dst)}",
         f"v_sub_f32 {v(t)}, {v(CS0)}, {v(t)}"]
    if bias is None:
        L += [f"v_cvt_pk_bf16_f32 {v(dst+1)}, {v(t)}, 0"]
    else:
        L += [f"v_cvt_pk_bf16_f32 {v(t)}, {v(t)}, 0", f"v_mov_b32 {v(dst+2)}, {v(bias)}",
              f"v_lshl_or_b32 {v(dst+1)}, {v(bias)}, 16, {v(t)}"]
    return L + [mfma(acc, dst, BAUG)]

def flag(level, tag):
    return [f".waitvm {tag}", f"v_mov_b32 {v(VFV)}, {level}",
            f"buffer_store_dword {v(VFV)}, {v(VZ)}, {s(SWS,4)}, {s(sFO)} offen sc1"]

Q = 16384
KAREA = []
sSK = sM4 if V2 else sSH
sMB = sSIG
def rot_k(kk, dst):
    if kk < 8 and OPT.get("r8", "1") == "1": return [f"s_add_u32 {s(dst)}, {s(sR4)}, {kk}", f"s_and_b32 {s(dst)}, {s(dst)}, 7", f"s_add_u32 {s(dst)}, {s(dst)}, {s(sSK)}"]
    if kk < 12: return [f"s_add_u32 {s(dst)}, {s(sR4)}, {kk}", f"s_and_b32 {s(dst)}, {s(dst)}, 3", f"s_add_u32 {s(dst)}, {s(dst)}, {s(sSK)}"] + \
                       ([f"s_add_u32 {s(dst)}, {s(dst)}, {kk & ~3}"] if kk & ~3 else [])
    if kk < 14: return [f"s_mul_i32 {s(dst)}, {s(sSK)}, 6", f"s_sub_u32 {s(dst)}, {kk}, {s(dst)}"]
    return [f"s_add_u32 {s(dst)}, {s(sR4)}, {kk-14}", f"s_and_b32 {s(dst)}, {s(dst)}, 3"]
def rot_p(sg, dst, sh):
    add = lambda x: ([f"s_add_u32 {s(dst)}, {s(dst)}, {x}"] if x else [])
    shf = (lambda: add(sh)) if isinstance(sh, int) else (lambda: [f"s_add_u32 {s(dst)}, {s(dst)}, {s(sh[0])}"])
    if sg < 4: return [f"s_add_u32 {s(dst)}, {s(sR4)}, {sg}", f"s_and_b32 {s(dst)}, {s(dst)}, 3"] + shf()
    if sg < 6: return [f"s_add_u32 {s(dst)}, {s(sR4)}, {sg}", f"s_and_b32 {s(dst)}, {s(dst)}, 1", f"s_add_u32 {s(dst)}, {s(dst)}, 4"] + shf()
    if sg == 6: return [f"s_mov_b32 {s(dst)}, {6 - 6*sh}"] if isinstance(sh, int) else [f"s_mul_i32 {s(dst)}, {s(sh[0])}, 6", f"s_sub_u32 {s(dst)}, 6, {s(dst)}"]
    return [f"s_add_u32 {s(dst)}, {s(sR4)}, {sg}", f"s_and_b32 {s(dst)}, {s(dst)}, 1"]
def b_dma(kk):
    if V3:
        sr, so = (SW2, sB2o) if kk < 7 else (SWO, sBOo)
        return [rot_p(kk, sD0, [sHALF]) + [f"s_lshl_b32 {s(sD0)}, {s(sD0)}, 15", f"s_add_u32 m0, {s(sMB)}, {KAREA[kk]}", f"s_add_u32 {s(sD0)}, {s(sD0)}, {s(so)}",
                 f"buffer_load_dwordx4 {v(VB)}, {s(sr,4)}, {s(sD0)} offen lds"],
                [f"s_add_u32 m0, {s(sMB)}, {KAREA[kk] + 4096}", f"s_add_u32 {s(sD0)}, {s(sD0)}, 16384",
                 f"buffer_load_dwordx4 {v(VB)}, {s(sr,4)}, {s(sD0)} offen lds ; tag=b{kk}"]]
    if V2:
        G_ = []
        for pos in (2 * kk, 2 * kk + 1):
            sr, so = (SW2, sB2o) if pos < 14 else (SWO, sBOo)
            G_.append(rot_k(pos, sD0) + [f"s_lshl_b32 {s(sD0)}, {s(sD0)}, 14", f"s_add_u32 m0, {s(sMB)}, {KAREA[kk] + (pos & 1) * 4096}", f"s_add_u32 {s(sD0)}, {s(sD0)}, {s(so)}",
                      f"buffer_load_dwordx4 {v(VB)}, {s(sr,4)}, {s(sD0)} offen lds ; tag=b{kk}"])
        return G_
    slot = kk % 9
    m0 = f"s_add_u32 m0, {s(sM0x)}, {KAREA[slot]}"
    sr, so = (SW2, sB2o) if kk < 14 else (SWO, sBOo)
    return [rot_k(kk, sD0) + [f"s_lshl_b32 {s(sD0)}, {s(sD0)}, 14", m0, f"s_add_u32 {s(sD0)}, {s(sD0)}, {s(so)}",
             f"buffer_load_dwordx4 {v(VB)}, {s(sr,4)}, {s(sD0)} offen lds"],
            [f"s_add_u32 {s(sD0)}, {s(sD0)}, {8192 - 1024}",
             f"buffer_load_dwordx4 {v(VB)}, {s(sr,4)}, {s(sD0)} offen offset:1024 lds ; tag=b{kk}"]]

def setup(ffn):
    pitch = 3584 if ffn else 3072
    tp = "f" if ffn else "a"
    if ffn: P(f"s_mov_b64 {s(SWT,2)}, {s(sA0,2)}")
    P(f"s_load_dwordx2 {s(SAUX,2)}, s[0:1], {48 if ffn else 16}")
    srd(SWT, 1835008 if ffn else 1572864)
    P(f"v_mul_u32_u24 {v(VW)}, {pitch}, v2\nv_add_u32 {v(VW)}, {v(VW)}, v4")
    if ffn:
        P(f"s_mul_i32 {s(sT0)}, {s(sG)}, 448\ns_and_b32 {s(sT1)}, {s(sG)}, 1\ns_lshl_b32 {s(sT2)}, {s(sT1)}, 6\ns_add_u32 {s(sWq)}, {s(sT0)}, {s(sT2)}")
        P(f"s_mul_i32 {s(sWo)}, {s(sW)}, {8*pitch}\ns_add_u32 {s(sWo)}, {s(sWo)}, {s(sWq)}")
    else:
        P(f"s_lshl_b32 {s(sWq)}, {s(sG)}, 7")
        P(f"s_mul_i32 {s(sWo)}, {s(sW)}, {8*pitch}\ns_add_u32 {s(sWo)}, {s(sWo)}, {s(sWq)}\ns_add_u32 {s(sWo)}, {s(sWo)}, 1024")
    P(f"v_add_u32 {v(VW0)}, {s(sWo)}, {v(VW)}")
    if STAMP and "slow" in STI: P(f"s_mov_b32 {s(sST+2*STI['slow'])}, {s(sST)}")
    P(f"s_mul_i32 {s(sD1)}, {s(sK)}, {pitch//2}")
    P.add(item1(0, pitch)[2])
    P("s_waitcnt lgkmcnt(0)")
    srd(SWS, WS_SIZE); srd(SDBG, 256); srd(SW2, 1835008); srd(SWO, 524288); srd(SOUT, 2097152); srd(SB2, 1024); srd(SAUX, 3584 if ffn else 16384)
    P(f"v_lshlrev_b32 {v(VL16)}, 4, {v(vL)}")
    P(f"s_lshr_b32 {s(sHALF)}, {s(sW)}, 2")
    P(f"s_and_b32 {s(sW34)}, {s(sW)}, 3\ns_xor_b32 {s(sSIG)}, {s(sW34)}, {s(sHALF)}")
    if not ffn:
        for i in range(4): P(f"v_mov_b32 {v(T+i)}, 0")
        P(f"s_lshl_b32 {s(sT0)}, {s(sW)}, 8\ns_add_u32 {s(sT0)}, {s(sT0)}, s2\ns_sub_u32 {s(sT0)}, {s(sT0)}, 256\ns_cmp_lt_u32 {s(sT0)}, 8")
        P(f"s_cbranch_scc0 L_nzero")
        P.cond_begin("zw")
        P(f"s_lshl_b32 {s(sT0)}, s2, 12\ns_add_u32 {s(sT0)}, {s(sT0)}, {WS_FLG}")
        for i in range(4): P(f"buffer_store_dwordx4 {v(T,4)}, {v(VL16)}, {s(SWS,4)}, {s(sT0)} offen offset:{1024*i} sc1")
        P(f"s_lshl_b32 {s(sT0)}, s2, 8\ns_add_u32 {s(sT0)}, {s(sT0)}, {WS_KVF}\nv_lshlrev_b32 v3, 2, {v(vL)}")
        P(f"buffer_store_dword {v(T)}, v3, {s(SWS,4)}, {s(sT0)} offen sc1 ; tag=zf")
        P.cond_end()
        P(f"L_nzero:")
    if OPT.get("touch", "5") == "1":
        P(f"s_cmp_lt_u32 {s(sW)}, 6")
        P(f"s_cbranch_scc1 L_nt{tp}")
        P.cond_begin("w67")
        P(f"v_lshlrev_b32 v3, 7, {v(vL)}\ns_mul_i32 {s(sT0)}, s2, 7168\ns_lshl_b32 {s(sT1)}, s2, 11")
        P(f"s_cmp_eq_u32 {s(sW)}, 6\ns_cbranch_scc0 L_nta{tp}")
        P(f"buffer_load_dword v255, v3, {s(SW2,4)}, {s(sT0)} offen")
        P(f"s_branch L_nt{tp}")
        P(f"L_nta{tp}:")
        P(f"v_and_b32 v3, 2047, v3")
        P(f"buffer_load_dword v255, v3, {s(SWO,4)}, {s(sT1)} offen")
        P(f"buffer_load_dword v254, v3, {s(SB2,4)}, 0 offen")
        P.cond_end()
        P(f"L_nt{tp}:")
    def wtouch():
        P(f"s_sub_u32 {s(sT0)}, {s(sW)}, 2\ns_cmp_lt_u32 {s(sT0)}, {min(3 if ffn else 2, int(OPT.get('wtn', 1)))}")
        P(f"s_cbranch_scc0 L_nw{tp}")
        P.cond_begin("w234")
        P(f"v_mul_u32_u24 v3, {pitch}, {v(vL)}\ns_mul_i32 {s(sT1)}, {s(sROT)}, {64*pitch}\ns_add_u32 {s(sT1)}, {s(sT1)}, {s(sWq)}")
        if ffn:
            P(f"s_lshl_b32 {s(sT2)}, {s(sT0)}, 7\ns_add_u32 {s(sT1)}, {s(sT1)}, {s(sT2)}\ns_add_u32 {s(sT1)}, {s(sT1)}, 128")
            P(f"s_lshr_b32 {s(sT0)}, {s(sT0)}, 1\ns_and_b32 {s(sT0)}, {s(sT0)}, {s(sG)}\ns_mul_i32 {s(sT0)}, {s(sT0)}, 448\ns_sub_u32 {s(sT1)}, {s(sT1)}, {s(sT0)}")
        else:
            P(f"s_xor_b32 {s(sT0)}, {s(sT0)}, 1\ns_lshl_b32 {s(sT0)}, {s(sT0)}, 11\ns_add_u32 {s(sT1)}, {s(sT1)}, {s(sT0)}")
        if OPT.get("wt", "2") == "2": P(f"s_mov_b32 {s(sCNT)}, {s(sT1)}")
        else: P(f"buffer_load_dword v250, v3, {s(SWT,4)}, {s(sT1)} offen")
        P.cond_end()
        P(f"L_nw{tp}:")
    if OPT.get("wt", "2") == "2": P(f"s_mov_b32 {s(sCNT)}, 0x7f000000")
    if OPT.get("wt", "2") != "0": wtouch()
    if OPT.get("sw", "0") != "0":
        c1_, c2_ = (128, 256) if ffn else (1024, -1024)
        P(f"s_mul_i32 {s(sT0)}, {s(sROT)}, {64*pitch}\ns_add_u32 {s(sT0)}, {s(sT0)}, {s(sWo)}")
        for cc, n_ in ((c1_, 8), (c2_, int(OPT["sw"]) - 8)):
            if n_ <= 0: continue
            P(f"s_add_u32 {s(sT1)}, {s(sT0)}, {cc}")
            for j in range(n_): P(f"s_buffer_load_dword {s(sCNT)}, {s(SWT,4)}, {s(sT1)} offset:{j*pitch} ; nodef")
    if OPT.get("cpf", "1") == "1":
        P(f"s_cmp_eq_u32 {s(sW)}, 5")
        P(f"s_cbranch_scc0 L_ncp{tp}")
        P.cond_begin("w5")
        P(f"s_getpc_b64 {s(sEX,2)}")
        P(f"L_pc{tp}:")
        P(f"s_sub_u32 {s(sEX)}, {s(sEX)}, L_pc{tp}-{NAME}\ns_subb_u32 {s(sEX+1)}, {s(sEX+1)}, 0")
        P(f"s_lshr_b32 {s(sT0)}, s2, 3\ns_lshl_b32 {s(sT0)}, {s(sT0)}, 11\nv_and_b32 v3, 15, {v(vL)}\nv_lshlrev_b32 v3, 7, v3\nv_add_u32 v3, {s(sT0)}, v3")
        P(f"v_min_u32 v3, L_end-{NAME}, v3")
        P(f"global_load_dword v253, v3, {s(sEX,2)}")
        P.cond_end()
        P(f"L_ncp{tp}:")
    if OPT.get("pt", "0") == "1":
        P(f"s_cmp_eq_u32 {s(sW)}, 4")
        P(f"s_cbranch_scc0 L_npt{tp}")
        n0 = len(P.ins)
        P(f"v_lshlrev_b32 v3, 21, {v(vL)}")
        P(f"buffer_load_dword v252, v3, {s(SWS,4)}, 0 offen")
        for i_, sr_ in enumerate((SOUT, SW2, SWO, SB2)): P(f"buffer_load_dword v{248+i_}, v3, {s(sr_,4)}, 0 offen")
        for I in P.ins[n0:]: I.cond = "w4"
        P(f"L_npt{tp}:")
    def stouch():
        n0 = len(P.ins)
        P(f"s_lshl_b32 {s(sT0)}, s2, 3\ns_add_u32 {s(sT0)}, {s(sT0)}, {s(sW)}\ns_mul_i32 {s(sT1)}, {s(sT0)}, 768\ns_mul_i32 {s(sT0)}, {s(sT0)}, 896")
        for i in range(6): P(f"s_load_dword {s(sCNT)}, {s(sEX,2)}, {s(sT1)} offset:{128*i}")
        for i in range(7): P(f"s_load_dword {s(sCNT)}, {s(sA0,2)}, {s(sT0)} offset:{128*i}")
    if OPT.get("stouch", "0") == "1": stouch()
    late1 = OPT.get("late1", "1") == "1"
    if not late1:
        for g_ in item1(1, pitch): P.add(g_)
    P(f"s_lshl_b32 {s(sT0)}, {s(sRT)}, 4\ns_add_u32 {s(sT0)}, {s(sT0)}, {s(sG)}\ns_lshl_b32 {s(sT0)}, {s(sT0)}, 7")
    P(f"s_and_b32 {s(sT1)}, {s(sW)}, 2\ns_lshl_b32 {s(sT1)}, {s(sT1)}, 3\ns_add_u32 {s(sT0)}, {s(sT0)}, {s(sT1)}\ns_and_b32 {s(sT1)}, {s(sW)}, 1\ns_lshl_b32 {s(sT1)}, {s(sT1)}, 2\ns_add_u32 {s(sT0)}, {s(sT0)}, {s(sT1)}\ns_lshl_b32 {s(sT1)}, {s(sHALF)}, 3\ns_add_u32 {s(sT0)}, {s(sT0)}, {s(sT1)}")
    if V3: P(f"s_and_b32 {s(sT1)}, {s(sW)}, 2\ns_lshl_b32 {s(sT1)}, {s(sT1)}, 3\ns_add_u32 {s(sT0)}, {s(sT0)}, {s(sT1)}\ns_and_b32 {s(sT1)}, {s(sG)}, 1\ns_mul_i32 {s(sT1)}, {s(sT1)}, 112\ns_sub_u32 {s(sT0)}, {s(sT0)}, {s(sT1)}")
    P(f"s_add_u32 {s(sFO)}, {s(sT0)}, {WS_FLG + (1024 if ffn else 0)}")
    P(f"s_lshl_b32 {s(sT0)}, {s(sRT)}, 2\ns_add_u32 {s(sT0)}, {s(sT0)}, {s(sW34)}\ns_mul_i32 {s(sHo)}, {s(sT0)}, {HF_RB}")
    if ffn:
        P(f"v_and_b32 v5, 31, {v(vL)}\nv_lshlrev_b32 v5, 1, v5")
        P(f"s_lshl_b32 {s(sT0)}, {s(sHALF)}, 6\ns_add_u32 {s(sT0)}, {s(sT0)}, {s(sWq)}")
        for i in range(3): P(f"buffer_load_ushort {v(BIAS+i)}, v5, {s(SAUX,4)}, {s(sT0)} offen offset:{128*i}")
        P(f"s_lshl_b32 {s(sT0)}, {s(sT0)}, 5\ns_add_u32 {s(sH0)}, {s(sHo)}, {s(sT0)}")
        P(f"s_mul_i32 {s(sW3)}, {s(sG)}, 448\ns_add_u32 {s(sT0)}, {s(sW3)}, 384\ns_bitcmp1_b32 {s(sG)}, 0\ns_cselect_b32 {s(sW3)}, {s(sW3)}, {s(sT0)}")
        P(f"s_lshl_b32 {s(sT0)}, {s(sHALF)}, 5\nv_xor_b32 v5, {s(sT0)}, v5")
        P(f"buffer_load_ushort {v(BIAS+3)}, v5, {s(SAUX,4)}, {s(sW3)} offen")
        P(f"s_add_u32 {s(sT0)}, {s(sT0)}, {s(sW3)}\ns_lshl_b32 {s(sT0)}, {s(sT0)}, 5\ns_add_u32 {s(sH3)}, {s(sHo)}, {s(sT0)}")
        P(f"v_lshrrev_b32 v2, 2, {v(vL)}\nv_and_b32 v4, 3, {v(vL)}\nv_lshlrev_b32 v4, 4, v4\nv_mul_u32_u24 {v(VW3)}, {pitch}, v2\nv_add_u32 {v(VW3)}, {v(VW3)}, v4")
    else:
        P(f"s_cmp_lt_u32 {s(sW)}, 2")
        P(f"s_cbranch_scc0 L_nphi")
        P.cond_begin("w01")
        P(f"s_lshl_b32 {s(sT0)}, {s(sG)}, 11\ns_lshl_b32 {s(sT1)}, {s(sW)}, 10\ns_add_u32 {s(sT0)}, {s(sT0)}, {s(sT1)}\ns_add_u32 m0, {s(sT1)}, {L_WPHI}\ns_nop 0")
        P(f"buffer_load_dwordx4 {v(VL16)}, {s(SAUX,4)}, {s(sT0)} offen lds")
        P.cond_end()
        P("L_nphi:")
        P(f"s_mov_b64 {s(SAUX,2)}, {s(sA0,2)}\ns_mov_b32 {s(SAUX+2)}, 1835008")
    P(f"s_mul_i32 {s(sT0)}, {s(sW34)}, {16*pitch}\ns_add_u32 {s(sWq)}, {s(sWq)}, {s(sT0)}")
    P(f"v_add_u32 {v(VW)}, {s(sWq)}, {v(VW)}")
    if ffn: P(f"s_add_u32 {s(sW3)}, {s(sW3)}, {s(sT0)}\nv_add_u32 {v(VW3)}, {s(sW3)}, {v(VW3)}")
    P(f"s_add_u32 {s(sT0)}, {s(sROT)}, {s(sHALF)}")
    for q in range(4):
        P(f"s_add_u32 {s(sT1)}, {s(sT0)}, {2*q}\ns_and_b32 {s(sT1)}, {s(sT1)}, 7\ns_mul_i32 {s(sQ[q])}, {s(sT1)}, {64*pitch}")
    P(f"s_mov_b32 {s(sT3)}, {f2u(1.0/512):#x}\ns_mov_b32 {s(sONE)}, 0x3f803f80")
    P(f"v_bfe_u32 {v(T)}, {v(vL)}, 2, 2\nv_lshrrev_b32 {v(T+1)}, 5, {v(vL)}")
    P(f"v_bfe_u32 {v(T+2)}, {v(vL)}, 4, 1\nv_lshlrev_b32 {v(T+2)}, 5, {v(T+2)}\nv_and_b32 {v(T+3)}, 3, {v(vL)}\nv_lshl_add_u32 {v(T+2)}, {v(T+3)}, 3, {v(T+2)}")
    P(f"v_and_b32 {v(T+4)}, 31, {v(vL)}\nv_bfe_u32 {v(T+5)}, {v(vL)}, 1, 3\nv_xor_b32 {v(T+5)}, {v(T+5)}, {v(T+1)}")
    P(f"s_lshl_b32 {s(sT0)}, {s(sW34)}, 12\nv_lshlrev_b32 {v(T+8)}, 7, {v(T+4)}\nv_add_u32 {v(T+8)}, {s(sT0)}, {v(T+8)}")
    P(f"v_lshl_add_u32 {v(T+9)}, {v(T+1)}, 3, {v(T)}\nv_lshl_add_u32 {v(T+10)}, {v(T+9)}, 7, {v(T+2)}\nv_lshrrev_b32 {v(T+7)}, 1, {v(T)}\nv_xor_b32 {v(T+7)}, {s(sHALF)}, {v(T+7)}\nv_lshl_add_u32 {v(T+10)}, {v(T+7)}, 6, {v(T+10)}")
    for p in range(4):
        P(f"s_xor_b32 {s(sT0)}, {s(sSIG)}, {p}\ns_lshl_b32 {s(sT1)}, {s(sT0)}, 1\nv_xor_b32 {v(T+6)}, {s(sT1)}, {v(T+5)}\nv_lshl_add_u32 {v(AX+p)}, {v(T+6)}, 4, {v(T+8)}")
        P(f"s_lshl_b32 {s(sT1)}, {s(sT0)}, 11\ns_add_u32 {s(sT1)}, {s(sT1)}, {RB}\nv_add_u32 {v(AW+p)}, {s(sT1)}, {v(T+10)}")
    if ffn:
        P(f"s_lshl_b32 {s(sT0)}, {s(sHALF)}, 5\nv_xor_b32 {v(T+7)}, {s(sT0)}, {v(T+2)}\nv_lshl_add_u32 {v(T+7)}, {v(T+9)}, 6, {v(T+7)}")
        for i, p in enumerate((0, 2)):
            P(f"s_xor_b32 {s(sT0)}, {s(sSIG)}, {p}\ns_lshl_b32 {s(sT0)}, {s(sT0)}, 10\nv_add_u32 {v(AB+i)}, {s(sT0)}, {v(T+7)}")
    P(f"v_lshlrev_b32 {v(T+4)}, 4, {v(T+4)}")
    P(f"s_lshl_b32 {s(sT0)}, {s(sHALF)}, 9\ns_add_u32 {s(sT0)}, {s(sT0)}, {L_CS}\nv_add_u32 {v(VCSA)}, {s(sT0)}, {v(T+4)}")
    P(f"s_lshl_b32 {s(sT0)}, {s(sW34)}, 9\ns_add_u32 {s(sT0)}, {s(sT0)}, {L_ST}\nv_add_u32 {v(VSTA)}, {s(sT0)}, {v(T+4)}")
    P(f"v_lshrrev_b32 {v(T+4)}, 2, {v(vL)}\nv_xor_b32 {v(T+4)}, {v(T+4)}, {v(vL)}\nv_and_b32 {v(T+4)}, 4, {v(T+4)}\nv_cmp_eq_u32 vcc, 0, {v(T+4)}\nv_mov_b32 {v(T+4)}, {s(sONE)}")
    for i in range(4): P(f"v_mov_b32 {v(PZ+i)}, -1")
    for r in (VZ, BAUG+3, AAUG+2, AAUG+3): P(f"v_mov_b32 {v(r)}, 0")
    for i in range(4): P(f"v_cndmask_b32 {v(SEL+i)}, 0, {v(T+4)}, vcc")
    P(f"s_lshl_b32 {s(sW34)}, {s(sW34)}, 2")
    if late1:
        for g_ in item1(1, pitch): P.add(g_)
    if OPT.get("stouch", "0") == "2": stouch()
    if V2:
        P(f"v_lshrrev_b32 {v(T)}, 4, {v(vL)}\nv_lshlrev_b32 {v(T+1)}, 2, {v(T)}\nv_and_b32 {v(T+2)}, 15, {v(vL)}\nv_xor_b32 {v(T+2)}, {v(T+2)}, {v(T+1)}\nv_lshlrev_b32 {v(T+2)}, 4, {v(T+2)}\nv_lshl_add_u32 {v(VB)}, {v(T)}, 10, {v(T+2)}")
        P(f"s_lshl_b32 {s(sT2)}, {s(sM)}, 1\ns_add_u32 {s(sT2)}, {s(sT2)}, {s(sHALF)}")
        P(f"s_lshl_b32 {s(sT0)}, {s(sN)}, 8\ns_lshl_b32 {s(sT1)}, {s(sW34)}, 10\ns_add_u32 {s(sT1)}, {s(sT1)}, {s(sT0)}")
        P(f"s_mul_i32 {s(sB2o)}, {s(sT2)}, {224*1024}\ns_add_u32 {s(sB2o)}, {s(sB2o)}, {s(sT1)}\ns_lshl_b32 {s(sBOo)}, {s(sT2)}, 16\ns_add_u32 {s(sBOo)}, {s(sBOo)}, {s(sT1)}")
        P(f"s_mul_i32 {s(sA0)}, {s(sT2)}, {14*1024}\ns_add_u32 {s(sA0)}, {s(sA0)}, {s(sHo)}\ns_lshl_b32 {s(sA1)}, {s(sT2)}, 12\ns_add_u32 {s(sA1)}, {s(sA1)}, {s(sHo)}\ns_add_u32 {s(sA1)}, {s(sA1)}, {112*1024}")
        P(f"s_lshl_b32 {s(sT1)}, {s(sRT)}, 4\ns_add_u32 {s(sT1)}, {s(sT1)}, {s(sT2)}\ns_lshl_b32 {s(sT1)}, {s(sT1)}, 7\ns_and_b32 {s(sFL)}, {s(sW)}, 2\ns_lshl_b32 {s(sFL)}, {s(sFL)}, 3\ns_add_u32 {s(sFL)}, {s(sFL)}, {s(sT1)}\ns_add_u32 {s(sFL)}, {s(sFL)}, {WS_FLG}")
        P(f"s_mul_i32 {s(sR4)}, {s(sN)}, 5\ns_lshr_b32 {s(sR4)}, {s(sR4)}, 1\ns_add_u32 {s(sR4)}, {s(sR4)}, {s(sRT)}\ns_and_b32 {s(sR4)}, {s(sR4)}, 7")
        P(f"s_lshl_b32 {s(sT2)}, {s(sT2)}, 5\ns_add_u32 {s(sN)}, {s(sT0)}, {s(sT2)}")
        P(f"s_lshl_b32 {s(sOo)}, {s(sRT)}, 17\ns_lshl_b32 {s(sT1)}, {s(sW34)}, 13\ns_add_u32 {s(sOo)}, {s(sOo)}, {s(sT1)}\ns_add_u32 {s(sOo)}, {s(sOo)}, {s(sN)}")
        P(f"s_and_b32 {s(sSH)}, {s(sW)}, 1\ns_lshl_b32 {s(sSH)}, {s(sSH)}, 1\ns_lshl_b32 {s(sSK)}, {s(sHALF)}, 1")
        P(f"s_lshl_b32 {s(sMB)}, {s(sHALF)}, 13\ns_lshl_b32 {s(sT1)}, {s(sW34)}, 8\ns_add_u32 {s(sMB)}, {s(sMB)}, {s(sT1)}")
        if V3:
            P(f"s_lshl_b32 {s(sT0)}, {s(sSH)}, 4\nv_xor_b32 {v(VB)}, {s(sT0)}, {v(VB)}")
            P(f"s_mul_i32 {s(sT0)}, {s(sHALF)}, {14*1024}\ns_sub_u32 {s(sA0)}, {s(sA0)}, {s(sT0)}\ns_lshl_b32 {s(sT0)}, {s(sHALF)}, 12\ns_sub_u32 {s(sA1)}, {s(sA1)}, {s(sT0)}")
            P(f"s_lshl_b32 {s(sT0)}, {s(sHALF)}, 7\ns_sub_u32 {s(sFL)}, {s(sFL)}, {s(sT0)}\ns_and_b32 {s(sT0)}, {s(sW)}, 2\ns_lshl_b32 {s(sT0)}, {s(sT0)}, 3\ns_add_u32 {s(sFL)}, {s(sFL)}, {s(sT0)}")
        return
    P(f"s_lshl_b32 {s(sT0)}, {s(sN)}, 7\ns_mul_i32 {s(sB2o)}, {s(sW)}, {224*1024}\ns_add_u32 {s(sB2o)}, {s(sB2o)}, {s(sT0)}")
    P(f"s_lshl_b32 {s(sBOo)}, {s(sW)}, 16\ns_add_u32 {s(sBOo)}, {s(sBOo)}, {s(sT0)}\ns_lshl_b32 {s(sM4)}, {s(sW)}, 12")
    P(f"s_lshl_b32 {s(sOo)}, {s(sM)}, 16\ns_lshl_b32 {s(sT1)}, {s(sW)}, 13\ns_add_u32 {s(sOo)}, {s(sOo)}, {s(sT1)}\ns_add_u32 {s(sOo)}, {s(sOo)}, {s(sT0)}")
    if OPT.get("r8", "1") == "1":
        P(f"s_mul_i32 {s(sT0)}, {s(sM)}, 5\ns_lshr_b32 {s(sT0)}, {s(sT0)}, 1\ns_sub_u32 {s(sN)}, {s(sN)}, {s(sM)}\ns_add_u32 {s(sR4)}, {s(sN)}, {s(sT0)}\ns_add_u32 {s(sN)}, {s(sN)}, {s(sM)}")
    else: P(f"s_mov_b32 {s(sR4)}, {s(sN)}")
    P(f"s_add_u32 {s(sR4)}, {s(sM)}, {s(sR4)}\ns_and_b32 {s(sR4)}, {s(sR4)}, {0 if OPT.get('norot') else 7}\ns_and_b32 {s(sSH)}, {s(sW)}, 1\ns_lshl_b32 {s(sSH)}, {s(sSH)}, 1")
    P(f"s_lshr_b32 {s(sT0)}, {s(sM)}, 1\ns_lshl_b32 {s(sT0)}, {s(sT0)}, 4\ns_add_u32 {s(sT0)}, {s(sT0)}, {s(sW)}\ns_lshl_b32 {s(sT0)}, {s(sT0)}, 7")
    P(f"s_and_b32 {s(sT1)}, {s(sM)}, 1\ns_lshl_b32 {s(sT1)}, {s(sT1)}, 4\ns_add_u32 {s(sT0)}, {s(sT0)}, {s(sT1)}\ns_add_u32 {s(sFL)}, {s(sT0)}, {WS_FLG}")
    P(f"s_mul_i32 {s(sA0)}, {s(sM)}, {2*HF_RB}\ns_mul_i32 {s(sT0)}, {s(sW)}, {14*1024}\ns_add_u32 {s(sA1)}, {s(sA0)}, {s(sM4)}\ns_add_u32 {s(sA1)}, {s(sA1)}, {112*1024}\ns_add_u32 {s(sA0)}, {s(sA0)}, {s(sT0)}")

class Sched:
    def __init__(self, n):
        self.n = n; self.pre = [[] for _ in range(n)]; self.post = [[] for _ in range(n)]
        self.fill = [[] for _ in range(n)]; self.dma = [[] for _ in range(n)]; self.blk = {}
    def spread(self, lst, a, b):
        for i in range(a, b): self.fill[i] += lst[len(lst)*(i-a)//(b-a): len(lst)*(i+1-a)//(b-a)]
    def dmas(self, groups, a, step=1):
        for i, g in enumerate(groups): self.dma[a + i*step] += g

def rd(G):
    b = WF + 4 * (G & 3)
    if G < 96:
        ks = G & 31; st, p = ks >> 2, ks & 3
        L = [f"ds_read_b128 {v(XF+4*ks,4)}, {v(AX+p)} offset:{RA+(st&3)*16384}"] if G < 32 else []
        if ks < 4 and G >= 32: L.append(f"v_xor_b32 {v(AW+p)}, {RB}, {v(AW+p)}")
        return L + [f"ds_read_b64_tr_b16 {v(b+2*t,2)}, {v(AW+p)} offset:{8192*st+512*t}" for t in range(2)]
    i = G - 96
    return [f"ds_read_b64_tr_b16 {v(b+2*t,2)}, {v(AB+(i&1))} offset:{4096*(i>>1)+256*t}" for t in range(2)]
def xq(G): return XF + 4 * (G & 31) if G < 96 else XF + 8 * (G - 96)

def common_sched(S, ffn, accs, MC):
    pitch = 3584 if ffn else 3072
    tp = "f" if ffn else "a"
    c1, c2 = (128, 256) if ffn else (2048, 0)
    S.dmas(item1(2, pitch), 0, 0)
    for st in range(8):
        G = 4 * st + 2
        S.pre[G] += [f".waitvm it{st+1}" if st < 7 else ".waitvm w1q0 lgkm0", "s_barrier"]
        if st <= 4: S.dmas(item1(st + 3, pitch), G)
        else: S.dmas(wquarter(RA, st - 5, c1, pitch, f"w1q{st-5}"), G)
    def m4(d, r, c=None): return f"v_mfma_f32_4x4x4_16b_bf16 {v(d,4)}, {v(r,2)}, {v(r,2)}, {v(d,4) if c is None else c}"
    Q0, Q1 = T + 8, T + 16
    for f in range(0, 32, 2):
        x = XF + 4 * f; a = max(f - 1, 0); c = "0" if f == 0 else None
        if OPT.get("hyb", "0") == "1":
            b = f if f < 30 else 29
            S.post[a] += [m4(Q0, x, c), m16(MS, SEL, x, c)]
            for r, G in ((x + 2, a), (x + 3, b)):
                S.post[G] += [f"v_and_b32 {v(Q1+2)}, 0xffff0000, {v(r)}", f"v_lshlrev_b32 {v(Q1+3)}, 16, {v(r)}",
                              f"v_fmac_f32 {v(Q1)}, {v(Q1+2)}, {v(Q1+2)}", f"v_fmac_f32 {v(Q1+1)}, {v(Q1+3)}, {v(Q1+3)}"]
        else: S.post[a] += [m4(Q0, x, c), m4(Q1, x + 2, c), m16(MS, SEL, x, c)]
    S.post[28] += [f"v_and_b32 {v(S1)}, 3, {v(vL)}", f"v_cmp_eq_u32 {s(sEX,2)}, 1, {v(S1)}", f"s_lshl_b32 {s(sT0)}, {s(sHALF)}, 3",
                   f"v_add_u32 {v(T)}, {s(sT0)}, {v(VSTA)}"]
    if OPT.get("hyb", "0") == "1":
        S.pre[0] += [f"v_mov_b32 {v(Q1)}, 0", f"v_mov_b32 {v(Q1+1)}, 0"]
        S.post[29] += [f"v_add_f32 {v(Q1)}, {v(Q1)}, {v(Q1+1)}"]
    else: S.post[29] += [f"v_add_f32 {v(Q0+i)}, {v(Q0+i)}, {v(Q1+i)}" for i in range(4)]
    S.post[29] += [f"v_cmp_eq_u32 vcc, 2, {v(S1)}", f"v_cndmask_b32 {v(S2)}, {v(Q0)}, {v(Q0+1)}, {s(sEX,2)}", f"v_cmp_eq_u32 {s(sEX,2)}, 3, {v(S1)}",
                   f"v_cndmask_b32 {v(S2)}, {v(S2)}, {v(Q0+2)}, vcc", f"v_cndmask_b32 {v(S2)}, {v(S2)}, {v(Q0+3)}, {s(sEX,2)}"] + ([f"v_add_f32 {v(S2)}, {v(S2)}, {v(Q1)}"] if OPT.get("hyb", "0") == "1" else []) + [
                   f"v_mov_b32 {v(S1)}, {v(S2)}", f"v_permlane32_swap_b32 {v(S1)}, {v(S2)}",
                   f"v_add_f32 {v(MS+1)}, {v(S1)}, {v(S2)}", f"ds_write_b64 {v(T)}, {v(MS,2)}"]
    S.post[30] += [f"ds_read_b128 {v(MS,4)}, {v(VSTA)}"]
    for ps in range(3):
        for st in range(8):
            G = 32 * ps + 4 * st
            S.post[G] += [m16(MC, SEL, WF + 4 * (G & 3), "0" if st == 0 else None)]
        S.post[32*ps + 29] += [f"v_add_u32 {v(MC+1)}, {s(sW34)}, {v(VCSA)}", f"ds_write_b32 {v(MC+1)}, {v(MC)} offset:{1024*ps}"]
    FEW = OPT.get("few", "1") == "1"
    if FEW: S.pre[38] += [".waitvm w1q3", "s_barrier"]
    else:
        for q in (1, 2, 3): S.pre[32 + 8*q - 2] += [f".waitvm w1q{q}", "s_barrier"]
    w2 = sum([wquarter(RB, q, c2, pitch, "w2") for q in range(4)], [])
    for g_, G in zip(wquarter(RA, 3, c1, pitch, "w1q3") + w2, [int(x) for x in OPT.get("w2g", "32,33,35,37,38,40,41,43,44,46").split(",")]): S.dma[G] += g_
    S.pre[62] += [".waitvm w2 lgkm0", "s_barrier"]
    for G in ((int(OPT.get("fb", 82)),) if ffn else (() if OPT.get("asy", "0") == "1" else (int(OPT.get("ab", 86)),))): S.pre[G] += ["s_barrier"]
    if ffn:
        S.post[int(OPT.get("f1", 90))] += flag(1, "h1")
        S.post[int(OPT.get("p1", 99))] += [spoll(0)]; S.blk[("e", int(OPT.get("c1", 105)))] = lambda: (sneed(1, 0), P(spoll(1)))
    else:
        S.post[int(OPT.get("fa", 80))] += flag(1, "po")
    if OPT.get("l2t", "0") == "1":
        tg = [int(x) for x in OPT.get("l2gf" if ffn else "l2ga", "52,62,66,70,74" if ffn else "48,52,56,60,64").split(",")]
        DUM = VX0 if False else VW0
        for j in range(5):
            if j < 3:
                L = [f"s_lshr_b32 {s(sT0)}, s2, 3", f"s_mul_i32 {s(sT0)}, {s(sT0)}, 3", f"s_lshl_b32 {s(sT1)}, {s(sSH)}, 4", f"s_add_u32 {s(sT0)}, {s(sT0)}, {s(sT1)}",
                     f"s_add_u32 {s(sT0)}, {s(sT0)}, {128+j}", f"s_sub_u32 {s(sT1)}, {s(sT0)}, 224", f"s_min_u32 {s(sT0)}, {s(sT0)}, {s(sT1)}",
                     f"s_mul_i32 {s(sT1)}, {s(sW)}, 224", f"s_add_u32 {s(sT0)}, {s(sT0)}, {s(sT1)}", f"s_lshl_b32 {s(sT0)}, {s(sT0)}, 10",
                     f"buffer_load_dword {v(VTD)}, {v(VL16)}, {s(SW2,4)}, {s(sT0)} offen ; nodef"]
            else:
                L = [f"s_lshr_b32 {s(sT0)}, s2, 3", f"s_lshl_b32 {s(sT0)}, {s(sT0)}, 11", f"s_lshl_b32 {s(sT1)}, {s(sW)}, 16", f"s_add_u32 {s(sT0)}, {s(sT0)}, {s(sT1)}",
                     f"buffer_load_dword {v(VTD)}, {v(VL16)}, {s(SWO,4)}, {s(sT0)} offen offset:{1024*(j-3)} ; nodef"]
            S.dma[tg[j]] += L
    if (OPT.get("touch", "5") == "5" and not ffn) or (OPT.get("touch") == "6" and ffn):
        tg = [int(x) for x in OPT.get("tgs", "54,56,58,60,62").split(",")]
        gw = [f"s_and_b32 {s(sT0)}, {s(sRT)}, 7", f"s_lshl_b32 {s(sT0)}, {s(sT0)}, 1", f"s_and_b32 {s(sT1)}, {s(sG)}, 1", f"s_add_u32 {s(sT0)}, {s(sT0)}, {s(sT1)}",
              f"s_lshl_b32 {s(sT0)}, {s(sT0)}, 3", f"s_add_u32 {s(sK)}, {s(sT0)}, {s(sW)}"]
        for j in range(4):
            S.dma[tg[j]] += (gw if j == 0 else []) + [f"s_add_u32 {s(sT0)}, {s(sK)}, {128*j}", f"s_min_u32 {s(sT0)}, {s(sT0)}, 447", f"s_mul_i32 {s(sT1)}, {s(sM)}, 448", f"s_add_u32 {s(sT0)}, {s(sT0)}, {s(sT1)}",
                                  f"s_lshl_b32 {s(sT0)}, {s(sT0)}, 10", f"buffer_load_dword {v(VTD)}, {v(VL16)}, {s(SW2,4)}, {s(sT0)} offen ; nodef"]
        S.dma[tg[4]] += [f"s_lshl_b32 {s(sT1)}, {s(sM)}, 7", f"s_add_u32 {s(sT0)}, {s(sK)}, {s(sT1)}",
                         f"s_lshl_b32 {s(sT0)}, {s(sT0)}, 10", f"buffer_load_dword {v(VTD)}, {v(VL16)}, {s(SWO,4)}, {s(sT0)} offen ; nodef"]
        S.dma[tg[4]] += [f"buffer_load_dword {v(VTD)}, {v(VL16)}, {s(SB2,4)}, 0 offen ; nodef"]
        if OPT.get("t3", "0") == "1":
            S.dma[int(OPT.get("t3g", 49))] += gw + [f"s_mul_i32 {s(sT0)}, {s(sK)}, {4*3584}", f"s_mul_i32 {s(sT1)}, {s(sM)}, 896", f"s_add_u32 {s(sT0)}, {s(sT0)}, {s(sT1)}",
                f"v_and_b32 {v(VTD)}, 3, {v(vL)}", f"v_mul_u32_u24 {v(VTD)}, 3584, {v(VTD)}", f"buffer_load_dword {v(VTD)}, {v(VTD)}, {s(SAUX,4)}, {s(sT0)} offen offset:384 ; nodef"]
    if OPT.get("touch") == "4":
        tg = [int(x) for x in OPT.get("tgs", "47,49,52").split(",")]
        gw = [f"s_and_b32 {s(sT0)}, s2, 0xf8", f"s_add_u32 {s(sT0)}, {s(sT0)}, {s(sW)}"]
        for j in range(2):
            S.dma[tg[j]] += gw + [f"s_add_u32 {s(sT0)}, {s(sT0)}, {256*j}", f"s_min_u32 {s(sT0)}, {s(sT0)}, 447", f"s_mul_i32 {s(sT1)}, {s(sM)}, 448", f"s_add_u32 {s(sT0)}, {s(sT0)}, {s(sT1)}",
                                  f"s_lshl_b32 {s(sT0)}, {s(sT0)}, 10", f"buffer_load_dword {v(VTD)}, {v(VL16)}, {s(SW2,4)}, {s(sT0)} offen ; nodef"]
        S.dma[tg[2]] += gw + [f"s_lshr_b32 {s(sT0)}, {s(sT0)}, 1", f"s_lshl_b32 {s(sT1)}, {s(sM)}, 7", f"s_add_u32 {s(sT0)}, {s(sT0)}, {s(sT1)}",
                              f"s_lshl_b32 {s(sT0)}, {s(sT0)}, 10", f"buffer_load_dword {v(VTD)}, {v(VL16)}, {s(SWO,4)}, {s(sT0)} offen ; nodef"]
    if OPT.get("touch", "5") == "3":
        def mtouch():
            n0 = len(P.ins)
            P(f"s_cmp_lt_u32 {s(sW)}, 6")
            P(f"s_cbranch_scc1 L_mt{tp}")
            P.cond_begin("w67")
            P(f"v_lshlrev_b32 {v(T+1)}, 7, {v(vL)}\ns_mul_i32 {s(sT0)}, s2, 7168\ns_lshl_b32 {s(sT1)}, s2, 11")
            P(f"s_cmp_eq_u32 {s(sW)}, 6\ns_cbranch_scc0 L_mta{tp}")
            P(f"buffer_load_dword {v(T+2)}, {v(T+1)}, {s(SW2,4)}, {s(sT0)} offen")
            P(f"s_branch L_mt{tp}")
            P(f"L_mta{tp}:")
            P(f"v_and_b32 {v(T+1)}, 2047, {v(T+1)}")
            P(f"buffer_load_dword {v(T+2)}, {v(T+1)}, {s(SWO,4)}, {s(sT1)} offen")
            P(f"buffer_load_dword {v(T+3)}, {v(T+1)}, {s(SB2,4)}, 0 offen")
            P.cond_end()
            P(f"L_mt{tp}:")
        S.blk[("e", int(OPT.get("tg", 5)))] = mtouch
    if OPT.get("wt", "2") == "2":
        S.dma[int(OPT.get("wg", 5))] += [f"v_mul_u32_u24 {v(T+1)}, {pitch}, {v(vL)}", f"buffer_load_dword {v(T+2)}, {v(T+1)}, {s(SWT,4)}, {s(sCNT)} offen"]
    def announce():
        P(f"s_lshl_b32 {s(sT0)}, {s(sW)}, 8\ns_add_u32 {s(sT0)}, {s(sT0)}, s2\ns_sub_u32 {s(sT0)}, {s(sT0)}, 256\ns_cmp_lt_u32 {s(sT0)}, 8")
        P(f"s_cbranch_scc0 L_nd")
        P.cond_begin("zw")
        P(".waitvm zf")
        P(f"s_lshl_b32 {s(sT0)}, s2, 2\nv_mov_b32 {v(VFV)}, 1")
        P(f"buffer_store_dword {v(VFV)}, {v(VZ)}, {s(SDBG,4)}, {s(sT0)} offen sc1")
        P.cond_end()
        P(f"L_nd:")
    if not ffn: S.blk[3] = announce
    ld = f"v_and_b32 {v(VX0)}, 28, {v(vL)}\nbuffer_load_dword {v(VX0)}, {v(VX0)}, {s(SDBG,4)}, 0 offen sc1"
    def poll0():
        P(f"s_cmp_eq_u32 {s(sW)}, 7"); P(f"s_cbranch_scc0 L_np{tp}")
        P.cond_begin("w7")
        P(ld)
        P.cond_end(); P(f"L_np{tp}:")
    def check0():
        P(f"s_cmp_eq_u32 {s(sW)}, 7"); P(f"s_cbranch_scc0 L_nc{tp}")
        P.cond_begin("w7")
        P(f"v_mov_b32 {v(VX0)}, {v(VX0)}")
        spin(f"L_ncs{tp}", ld, f"v_cmp_ne_u32 vcc, 1, {v(VX0)}")
        P.cond_end(); P(f"L_nc{tp}:")
    S.blk[39] = poll0; S.blk[62] = check0

def run_sched(S, accs):
    P(".waitvm it0")
    P("s_barrier")
    stamp("it0")
    P.add(rd(0)); P.add(rd(1))
    for G in range(S.n):
        stamp(f"g{G}")
        if G in S.blk: S.blk[G]()
        late = OPT.get("bam", "1") == "1" and G >= 32
        if not late: P.add(S.pre[G])
        if OPT.get("prio", "2") == "1": P(f"s_setprio {3 - ((G + 2) & 3)}")
        if OPT.get("prio", "2") == "2" and (G < 32 or G % 2 == 0): P(f"s_setprio {3 - ((G + 2) & 3) if G < 32 else 3 - ((G >> 1) & 3)}")
        first = G in (0, 32, 64, 96)
        P(mfma(accs[G >> 5], WF + 4 * (G & 3), xq(G), "0" if first else None))
        if late: P.add(S.pre[G])
        if G + 2 < S.n: P.add(rd(G + 2))
        P.add(S.post[G]); P.add(S.fill[G]); P.add(S.dma[G])
        if ("e", G) in S.blk: S.blk[("e", G)]()
    P("s_setprio 0")

AC = 64; NAF = 8
def AFq(kk, rb): return XF + 4 + 8 * (2 * (kk % NAF) + rb)
def BTq(kk, nb): return XF + 8 * (2 * (kk & 3) + nb)
BA = 2
VXR, VRED = 9, 10
VWR = 20
XR, B2R = 32, 36
def AF2(kk): return XF + 4 + 8 * (kk % 16)
def BT2(kk, nb): return XF + 8 * (4 * (kk & 1) + nb)
def xoff(j, send):
    return ([f"s_xor_b32 {s(sT0)}, s2, {j}", f"s_mul_i32 {s(sT0)}, {s(sT0)}, {3*8192}"] if send else [f"s_mul_i32 {s(sT0)}, s2, {3*8192}"]) + \
           [f"s_lshl_b32 {s(sT1)}, {s(sW)}, 10", f"s_add_u32 {s(sT0)}, {s(sT0)}, {s(sT1)}", f"s_add_u32 {s(sT0)}, {s(sT0)}, {WS_X + (j-1)*8192}"]
VA3 = 14
def AF3(st, sh):
    if st < 8: return XF + 4 + 8 * (2 * st + sh)
    if st < 12: return XF + 64 + 8 * (2 * (st - 8) + sh)
    if st < 16: return 96 + 4 * (2 * (st - 12) + sh)
    return XF + 4 + 8 * (2 * (st - 16) + sh)
va3_init = lines(f"v_and_b32 {v(VA3)}, 15, {v(vL)}\nv_lshlrev_b32 {v(VA3)}, 4, {v(VA3)}\nv_lshrrev_b32 {v(T+19)}, 4, {v(vL)}\nv_lshl_add_u32 {v(VA3)}, {v(T+19)}, 9, {v(VA3)}")
def a_jobs(kk):
    if V3:
        sg, gm = kk >> 1, kk & 1
        so, gs = (sA0, 14 * 1024) if sg < 7 else (sA1, 4096)
        return [rot_p(sg, sD1, gm) + [f"s_lshl_b32 {s(sD1)}, {s(sD1)}, 11", f"s_add_u32 {s(sD1)}, {s(sD1)}, {s(so)}"] + ([f"s_add_u32 {s(sD1)}, {s(sD1)}, {gs}"] if gm else []) +
                [f"buffer_load_dwordx4 {v(AF3(kk,0),4)}, {v(VA3)}, {s(SWS,4)}, {s(sD1)} offen sc1"],
                [f"buffer_load_dwordx4 {v(AF3(kk,1),4)}, {v(VA3)}, {s(SWS,4)}, {s(sD1)} offen offset:256 sc1"]]
    so = sA0 if kk < 14 else sA1
    if V2: return [rot_k(kk, sD1) + [f"s_lshl_b32 {s(sD1)}, {s(sD1)}, 10", f"s_add_u32 {s(sD1)}, {s(sD1)}, {s(so)}",
             f"buffer_load_dwordx4 {v(AF2(kk),4)}, {v(VL16)}, {s(SWS,4)}, {s(sD1)} offen sc1"] +
             ([f"s_xor_b32 {s(sD1)}, {s(sD1)}, 0x8000", f"buffer_load_dwordx4 v[252:255], {v(VL16)}, {s(SWS,4)}, {s(sD1)} offen sc1 ; nodef"] if OPT.get("dbla") and kk != 15 else [])]
    return [rot_k(kk, sD1) + [f"s_lshl_b32 {s(sD1)}, {s(sD1)}, 10", f"s_add_u32 {s(sD1)}, {s(sD1)}, {s(so)}",
             f"buffer_load_dwordx4 {v(AFq(kk,0),4)}, {v(VL16)}, {s(SWS,4)}, {s(sD1)} offen sc1"],
            [f"s_add_u32 {s(sD1)}, {s(sD1)}, {HF_RB}",
             f"buffer_load_dwordx4 {v(AFq(kk,1),4)}, {v(VL16)}, {s(SWS,4)}, {s(sD1)} offen sc1"]]
def vcheck(regs, t):
    L = [f"v_max3_u32 {v(t)}, {v(regs[0])}, {v(regs[1])}, {v(regs[2])}"]; r = regs[3:]
    while len(r) >= 2: L.append(f"v_max3_u32 {v(t)}, {v(t)}, {v(r[0])}, {v(r[1])}"); r = r[2:]
    if r: L.append(f"v_max_u32 {v(t)}, {v(t)}, {v(r[0])}")
    return L + [f"v_cmp_eq_u32 vcc, -1, {v(t)}"]
SLOW = []
def validate(regs, t, reload):
    lb = P.lab("L_v")
    P.add(vcheck(regs, t))
    P(f"s_cbranch_vccnz {lb}_slow")
    P(f"{lb}_back:")
    dbg = [f"s_add_u32 {s(sST+2*STI['slow'])}, {s(sST+2*STI['slow'])}, {1 << len(SLOW)}"] if STAMP and "slow" in STI else []
    SLOW.append([f"{lb}_slow:"] + dbg + [f"s_mov_b32 {s(sCNT)}, 0", f"{lb}_loop:", "s_sleep 2"] + reload + ["s_waitcnt vmcnt(0)"] + vcheck(regs, t) +
                [f"s_add_u32 {s(sCNT)}, {s(sCNT)}, 1", f"s_cbranch_vccz {lb}_back", f"s_cmp_gt_u32 {s(sCNT)}, {SPIN_MAX}",
                 f"s_cbranch_scc0 {lb}_loop", f"s_branch {lb}_back"])
def flush_slow():
    for blk in SLOW:
        P(".reset"); P.add(blk)
    SLOW.clear()
def spoll(o):
    x = f"s_buffer_load_dwordx4 {s(sPL,4)}, {s(SWS,4)}, {s(sFL)} offset:{0 if o else 1024} glc"
    if V3: x = f"s_buffer_load_dwordx8 {s(sPL,8)}, {s(SWS,4)}, {s(sFL)} offset:{0 if o else 1024} glc"
    return x
def sneed(level, o):
    lb = P.lab("L_sp")
    P(f"s_mov_b32 {s(sCNT)}, 0")
    P(f"{lb}:")
    P("s_waitcnt lgkmcnt(0)")
    P(f"s_min_u32 {s(sPL)}, {s(sPL)}, {s(sPL+1)}\ns_min_u32 {s(sPL+2)}, {s(sPL+2)}, {s(sPL+3)}\ns_min_u32 {s(sPL)}, {s(sPL)}, {s(sPL+2)}")
    if V3:
        for i in range(4, 8): P(f"s_min_u32 {s(sPL)}, {s(sPL)}, {s(sPL+i)}")
    P(f"s_cmp_ge_u32 {s(sPL)}, {level}")
    P(f"s_cbranch_scc1 {lb}_ok")
    P(f"s_add_u32 {s(sCNT)}, {s(sCNT)}, 1\ns_cmp_gt_u32 {s(sCNT)}, {SPIN_MAX}")
    P(f"s_cbranch_scc1 {lb}_ok")
    P("s_sleep 1")
    for x in spoll(o).split("\n"):
        I = Ins(x); I.kind = "salu"; P.ins.append(I)
    P(f"s_branch {lb}")
    P(f"{lb}_ok:")
def own_check():
    lb = P.lab("L_oc")
    P(f"s_mov_b32 {s(sCNT)}, 0")
    P(f"{lb}:")
    P("s_waitcnt lgkmcnt(0)")
    P(f"s_cmp_ge_u32 {s(sK)}, 1")
    P(f"s_cbranch_scc1 {lb}_ok")
    P(f"s_add_u32 {s(sCNT)}, {s(sCNT)}, 1\ns_cmp_gt_u32 {s(sCNT)}, {SPIN_MAX}")
    P(f"s_cbranch_scc1 {lb}_ok")
    P("s_sleep 1")
    I = Ins(f"s_buffer_load_dword {s(sK)}, {s(SWS,4)}, {s(sT2)} glc"); I.kind = "salu"; P.ins.append(I)
    P(f"s_branch {lb}")
    P(f"{lb}_ok:")
def b_reads(kk):
    slot = kk % 9
    var, off = (KAREA[slot] >> 16), KAREA[slot] & 0xffff
    return [f".waitvm b{kk}"] + [f"ds_read_b64_tr_b16 {v(BTq(kk,nb)+2*tt,2)}, {v(BA+2*var+nb)} offset:{off+1024*tt}" for nb in range(2) for tt in range(2)]
def finish(ffn):
    if OPT.get("echo") and OPT.get("echot", "fa").find("f" if ffn else "a") < 0: pass
    elif OPT.get("echo"):
        a_, b_ = [STI[x] for x in OPT["echo"].split(",")]
        lb = P.lab("L_echo")
        stamp("end")
        P("s_waitcnt lgkmcnt(0)")
        P(f"s_sub_u32 {s(sT0)}, {s(sST+2*b_)}, {s(sST+2*a_)}")
        if STAMP == 2:
            P(f"s_lshr_b32 {s(sT0)}, {s(sT0)}, 4\ns_memrealtime {s(sST+22,2)}\ns_waitcnt lgkmcnt(0)")
        P(f"s_min_u32 {s(sT0)}, {s(sT0)}, 10000")
        P(f"{lb}:")
        P(f"s_memrealtime {s(sEX,2)}")
        P("s_waitcnt lgkmcnt(0)")
        P(f"s_sub_u32 {s(sT1)}, {s(sEX)}, {s(sST+22)}\ns_cmp_lt_u32 {s(sT1)}, {s(sT0)}\ns_cbranch_scc1 {lb}")
    elif STAMP:
        stamp("end")
        P("s_waitcnt lgkmcnt(0)")
        P(f"s_lshl_b32 {s(sT0)}, s2, 3\ns_add_u32 {s(sT0)}, {s(sT0)}, {s(sW)}\ns_lshl_b32 {s(sT0)}, {s(sT0)}, 6\ns_add_u32 {s(sT0)}, {s(sT0)}, {WS_STAMP}")
        P(f"v_mov_b32 v2, 0\ns_mov_b64 exec, 1")
        for i in range(12):
            P(f"v_mov_b32 v3, {s(sST+2*i)}\nbuffer_store_dword v3, v2, {s(SWS,4)}, {s(sT0)} offen offset:{4*i}")
    P("s_endpgm")
    flush_slow()

def phase2_v2(bleft, ffn):
    BAR = [2, 3, 4, 5, 6, 7, 8, 9, 10, 11, 14, 15]; VX = 16
    WB = [20, 21, 22]; RBs = [23, 24, 25]; PX = BAUG
    t = T + 8
    P(f"v_bfe_u32 {v(t)}, {v(vL)}, 2, 2\nv_lshrrev_b32 {v(t+1)}, 5, {v(vL)}\nv_and_b32 {v(t+2)}, 63, {v(AW)}\ns_lshl_b32 {s(sT0)}, {s(sHALF)}, 5\nv_xor_b32 {v(t+2)}, {s(sT0)}, {v(t+2)}")
    P(f"v_lshl_add_u32 {v(t+3)}, {v(t+1)}, 2, {v(t)}\nv_lshl_add_u32 {v(t+3)}, {v(t+3)}, 8, {v(t+2)}\ns_lshl_b32 {s(sT0)}, {s(sHALF)}, 13\nv_add_u32 {v(t+3)}, {s(sT0)}, {v(t+3)}")
    P(f"v_xor_b32 {v(t)}, {s(sM)}, {v(t)}\nv_lshl_add_u32 {v(BAR[0])}, {v(t)}, 6, {v(t+3)}")
    for nb in range(1, 4): P(f"v_xor_b32 {v(BAR[nb])}, {64*nb}, {v(BAR[0])}")
    for rg in (2, 1):
        for nb in range(4): P(f"v_add_u32 {v(BAR[4*rg+nb])}, {65536*rg}, {v(BAR[nb])}")
    LP = int(OPT.get("lp", 2))
    SQ = int(OPT.get("sq", 12))
    seq = [(kk, nb) for kk in range(SQ) for nb in range(4) if nb or kk < LP]
    done_at = {}
    for nb in (1, 2, 3):
        seq += [(kk, nb) for kk in range(SQ, 18)]; done_at[nb] = len(seq)
    seq += [(kk, 0) for kk in range(LP, 18)]
    D = 4
    def bq(i): return XF + 8 * (i & 7)
    def br(i):
        kk, nb = seq[i]; a = KAREA[kk >> 1]
        return [f"ds_read_b64_tr_b16 {v(bq(i)+2*tt,2)}, {v(BAR[4*(a>>16)+nb])} offset:{(a&0xffff)+(kk&1)*4096+2048*tt}" for tt in range(2)]
    def val(kk):
        if not (NP and kk < 14): validate([AF2(kk) + i for i in range(4)], T + 16, a_jobs(kk)[0])
    for i in range(D): P.add(br(i))
    val(0)
    stamp("hseen")
    first = {}
    for i, (kk, nb) in enumerate(seq): first.setdefault(kk, i)
    ev = {}
    def at(i, x): ev.setdefault(i, []).append(x)
    sh = 8 - LP
    a8, a14 = int(OPT.get("a8", 14)), int(OPT.get("a14", 30 - sh))
    for i, g_ in enumerate(sum([b_dma(k2) for k2 in bleft], [])): at(int(OPT.get('bst', 1)) * i + (0 if ffn else int(OPT.get('b0a', 0))), g_)
    gates = {}
    if NP:
        if ffn:
            g2i = int(OPT.get("g2", 6)); a8 = int(OPT.get("g3f", 24 - sh))
            at(0, [spoll(0)]); gates[g2i] = 2
            for k2 in range(4, 8): at(g2i + k2 - 4, a_jobs(k2)[0])
            at(int(OPT.get("f3", 14)), flag(3, "h4"))
            a14 = max(a14, a8 + 6)
        else:
            a8 = int(OPT.get("g3a", 18 - sh // 2)); g2i = int(OPT.get("g2a", 2)); gates[g2i] = 2
            for k2 in range(4, 8): at(g2i + k2 - 4, a_jobs(k2)[0])
        at(a8 - int(OPT.get("gl", 10)), [spoll(0)]); gates[a8] = 3
    ast = int(OPT.get('ast', 1))
    ea = 0 if ffn or NP else int(OPT.get('ea', 0))
    for k2 in range(8 + ea, 14): at(a8 + ast * (k2 - 8), a_jobs(k2)[0])
    if ea and OPT.get('a14a'): a14 = int(OPT['a14a'])
    for k2 in range(14, 18): at(a14 + ast * (k2 - 14), a_jobs(k2)[0])
    F = T + 8
    at(9, lines(f"v_and_b32 {v(T+17)}, 31, {v(vL)}\nv_lshrrev_b32 {v(T+18)}, 5, {v(vL)}\nv_lshlrev_b32 {v(T+18)}, 4, {v(T+18)}\nv_lshl_add_u32 {v(VX)}, {v(T+17)}, 10, {v(T+18)}") +
          [f"buffer_load_dwordx4 {v(XR,4)}, {v(VX)}, {s(SX,4)}, {s(sOo)} offen", f"buffer_load_dwordx4 {v(B2R,4)}, {v(T+18)}, {s(SB2,4)}, {s(sN)} offen"])
    at(24, lines(f"v_add_u32 {v(WB[0])}, {s(sM0x)}, {v(VL16)}\nv_xor_b32 {v(RBs[0])}, 8192, {v(WB[0])}") +
           sum([[f"v_add_u32 {v(WB[rg])}, {65536*rg}, {v(WB[0])}", f"v_add_u32 {v(RBs[rg])}, {65536*rg}, {v(RBs[0])}"] for rg in (1, 2)], []))
    for i in range(4):
        at(40 + i, lines(f"v_lshlrev_b32 {v(F+2*i)}, 16, {v(XR+i)}\nv_and_b32 {v(F+2*i+1)}, 0xffff0000, {v(XR+i)}\nv_lshlrev_b32 {v(T+4)}, 16, {v(B2R+i)}\nv_and_b32 {v(T+5)}, 0xffff0000, {v(B2R+i)}\nv_add_f32 {v(F+2*i)}, {v(F+2*i)}, {v(T+4)}\nv_add_f32 {v(F+2*i+1)}, {v(F+2*i+1)}, {v(T+5)}"))
    px1 = OPT.get("px1") == "1" or (bool(OPT.get("pxa", "1")) and not ffn)
    if not px1:
        pxi = int(OPT.get("pxi", (16 if ffn else a8 + 6) if NP else a8 + 6))
        if not ffn and OPT.get("pxia"): pxi = int(OPT["pxia"])
        at(pxi - 1, [f"v_mov_b32 {v(PX+i)}, -1" for i in range(4)])
        for j in (1, 2, 3): at(pxi + (j - 1) * int(OPT.get("pxs", 1)), xoff(j, True) + [f"buffer_store_dwordx4 {v(PX,4)}, {v(VL16)}, {s(SWS,4)}, {s(sT0)} offen sc1 ; tag=px"])
    at(int(OPT.get("fx", 8 if px1 else 48 - sh)), flag(4, "px"))
    if OPT.get("wb"):
        lbw = P.lab("L_wb")
        at(int(OPT["wb"]), [f"s_lshr_b32 {s(sT0)}, s2, 3", f"s_and_b32 {s(sT0)}, {s(sT0)}, {OPT.get('wbm', 23)}", f"s_or_b32 {s(sT0)}, {s(sT0)}, {s(sW)}", f"s_cbranch_scc1 {lbw}", "buffer_wbl2 sc1", f"{lbw}:"])
    bar_i = first[min(12, 2 * bleft[0])] - D
    RG = [KAREA[0], L_KVB, KAREA[0], L_KVB] if LP < 8 else KAREA
    def wr(nb): a = RG[nb]; return [f"ds_write_b128 {v(WB[a>>16])}, {v(AC+16*nb+8+4*q,4)} offset:{(a&0xffff)+1024*q}" for q in range(2)]
    def rdp(nb): a = RG[nb]; return [f"ds_read_b128 {v(AC+16*nb+8+4*q,4)}, {v(RBs[a>>16])} offset:{(a&0xffff)+1024*q}" for q in range(2)]
    def add(nb, pk): c = AC + 16 * nb; return [f"v_pk_add_f32 {v(c+i,2)}, {v(c+i,2)}, {v(c+8+i,2)}" for i in range(0, 8, 2)] if pk else [f"v_add_f32 {v(c+i)}, {v(c+i)}, {v(c+8+i)}" for i in range(8)]
    def snd(nb): c = AC + 16 * nb; return [f"v_cvt_pk_bf16_f32 {v(c+8+i)}, {v(c+2*i)}, {v(c+2*i+1)}" for i in range(4)] + xoff(nb, True) + [f"buffer_store_dwordx4 {v(c+8,4)}, {v(VL16)}, {s(SWS,4)}, {s(sT0)} offen sc1"]
    VPF, VPA = PX, PX + 1
    pf = f"buffer_load_dword {v(VPF)}, {v(VPA)}, {s(SWS,4)}, 0 offen sc1"
    at(38 if px1 else done_at[3] + 3, lines(f"v_and_b32 {v(VPA)}, 3, {v(vL)}\nv_lshlrev_b32 {v(VPA)}, 8, {v(VPA)}\nv_xor_b32 {v(VPA)}, {s(sFO)}, {v(VPA)}") + [pf])
    PS = OPT.get("ps", "0") == "1"
    VFW, VFR, VFT = 26, 18, 19
    chk = {}
    if PS:
        assert LP >= 4
        RG[1] = RG[3] = KAREA[1]
        at(bar_i - 8, lines(f"s_lshl_b32 {s(sT0)}, {s(sW)}, 2\ns_add_u32 {s(sT0)}, {s(sT0)}, {L_ST}\nv_mov_b32 {v(VFW)}, {s(sT0)}\nv_xor_b32 {v(VFR)}, 16, {v(VFW)}\nds_write_b32 {v(VFW)}, {v(VZ)}"))
        def wrf(nb, lv): return wr(nb) + [f"v_mov_b32 {v(VFT)}, {lv}", f"ds_write_b32 {v(VFW)}, {v(VFT)}"]
        def rdf(nb): return [f"ds_read_b32 {v(VFT)}, {v(VFR)}"] + rdp(nb)
        def check(nb, lv):
            lb = P.lab("L_ps")
            P(f"v_cmp_gt_u32 vcc, {lv}, {v(VFT)}")
            P(f"s_cbranch_vccnz {lb}_slow")
            P(f"{lb}_back:")
            SLOW.append([f"{lb}_slow:", f"s_mov_b32 {s(sCNT)}, 0", f"{lb}_loop:"] + rdf(nb) + ["s_waitcnt lgkmcnt(0)", f"v_cmp_gt_u32 vcc, {lv}, {v(VFT)}",
                         f"s_add_u32 {s(sCNT)}, {s(sCNT)}, 1", f"s_cbranch_vccz {lb}_back", f"s_cmp_gt_u32 {s(sCNT)}, {SPIN_MAX * 16}", f"s_cbranch_scc0 {lb}_loop", f"s_branch {lb}_back"])
        dl = int(OPT.get("psd", 2))
        for nb in (1, 2, 3):
            e = done_at[nb]
            at(e + 1, wrf(nb, nb)); at(e + 1 + dl, rdf(nb)); chk[e + 2 + dl] = nb; at(e + 2 + dl, add(nb, False) + snd(nb))
        at(done_at[3] + 2 + dl, stamp_i("xs"))
    elif SQ < 18:
        for nb in (1, 2, 3):
            e = done_at[nb]
            at(e + 1, wr(nb)); at(e + 2, ["s_waitcnt lgkmcnt(2)", "s_barrier"] + rdp(nb)); at(e + 4, add(nb, False) + snd(nb))
        at(done_at[3] + 4, stamp_i("xs"))
    else:
        e = done_at[3]
        at(e, wr(1) + wr(2)); at(e + 1, wr(3) + ["s_waitcnt lgkmcnt(0)", "s_barrier"] + rdp(1) + rdp(2) + rdp(3))
        for nb in (1, 2, 3): at(e + 1 + nb, add(nb, False) + snd(nb))
        at(e + 4, stamp_i("xs"))
    R = XF + 64 - 4 if False else None
    RQ = [None, XF + 64, XF + 72, XF + 80]
    rl = sum([xoff(j, False) + [f"buffer_load_dwordx4 {v(RQ[j],4)}, {v(VL16)}, {s(SWS,4)}, {s(sT0)} offen sc1"] for j in range(1, 4)], [])
    ri = int(OPT.get("ri", 99))
    seen = set()
    for i, (kk, nb) in enumerate(seq):
        if i % 4 == 0: P(f"s_setprio {3 - ((i >> 2) & 3)}")
        P(mfma(AC + 16 * nb, bq(i), AF2(kk), None if nb in seen else "0")); seen.add(nb)
        if i == bar_i: P(".waitvm b8"); P("s_barrier")
        if i + D < len(seq): P.add(br(i + D))
        if i + 2 < len(seq) and first[seq[i + 2][0]] == i + 2: val(seq[i + 2][0])
        if i in gates: sneed(gates[i], 0)
        if i in chk: check(chk[i], chk[i])
        for x in ev.pop(i, []): P.add(x)
        if i == len(seq) - 1 - ri:
            P(f"v_mov_b32 {v(VPF)}, {v(VPF)}")
            spin(P.lab("L_pf"), pf, f"v_cmp_gt_u32 vcc, 4, {v(VPF)}")
            P.add(rl)
        if i + 1 < len(seq) and first[seq[i + 1][0]] == i + 1: stamp(f"k{kk}")
    assert not ev, ev.keys()
    stamp("p2mm")
    P("s_setprio 0")
    P.add(wrf(0, 4) if PS else wr(0))
    if ri >= len(seq):
        P(f"v_mov_b32 {v(VPF)}, {v(VPF)}")
        spin(P.lab("L_pf"), pf, f"v_cmp_gt_u32 vcc, 4, {v(VPF)}")
    if PS:
        if ri >= len(seq): P.add(rl)
        P.add(rdf(0)); check(0, 4)
    else:
        P("s_waitcnt lgkmcnt(0)")
        P("s_barrier")
        P.add(rdp(0))
        if ri >= len(seq): P.add(rl)
    P.add(add(0, True))
    validate([RQ[j] + i for j in (1, 2, 3) for i in range(4)], T + 16, rl)
    stamp("xr")
    P(f"s_mov_b32 {s(sT0)}, 0x3f80\ns_mov_b32 {s(sT1)}, 0x3f800000")
    for j in range(1, 4):
        for i in range(4): P(f"v_dot2c_f32_bf16 {v(AC+2*i)}, {s(sT0)}, {v(RQ[j]+i)}\nv_dot2c_f32_bf16 {v(AC+2*i+1)}, {s(sT1)}, {v(RQ[j]+i)}")
    for i in range(4): P(f"v_permlane32_swap_b32 {v(AC+i)}, {v(AC+4+i)}")
    for i in range(0, 8, 2): P(f"v_pk_add_f32 {v(F+i,2)}, {v(F+i,2)}, {v(AC+i,2)}")
    for i in range(4): P(f"v_cvt_pk_bf16_f32 {v(XR+i)}, {v(F+2*i)}, {v(F+2*i+1)}")
    P(f"buffer_store_dwordx4 {v(XR,4)}, {v(VX)}, {s(SOUT,4)}, {s(sOo)} offen")
    finish(ffn)

def phase2_v3(bleft, aleft, ffn):
    BAR = [2, 3, 4, 5, 6, 7, 8, 9, 10, 11, 18, 19]; VX = 16; PX = BAUG
    t = T + 8
    P(f"v_bfe_u32 {v(t)}, {v(vL)}, 2, 2\nv_lshrrev_b32 {v(t+1)}, 5, {v(vL)}\nv_bfe_u32 {v(t+2)}, {v(vL)}, 4, 1\nv_lshl_add_u32 {v(t+3)}, {v(t+2)}, 2, {v(t)}\nv_lshl_add_u32 {v(t+3)}, {v(t+1)}, 4, {v(t+3)}")
    P(f"v_and_b32 {v(t+4)}, 63, {v(AW)}\ns_lshl_b32 {s(sT0)}, {s(sHALF)}, 5\nv_xor_b32 {v(t+4)}, {s(sT0)}, {v(t+4)}\nv_lshl_add_u32 {v(t+3)}, {v(t+3)}, 8, {v(t+4)}")
    P(f"v_xor_b32 {v(t)}, {s(sM)}, {v(t)}\nv_lshl_add_u32 {v(BAR[0])}, {v(t)}, 6, {v(t+3)}")
    for q in range(1, 4): P(f"v_xor_b32 {v(BAR[q])}, {64*q}, {v(BAR[0])}")
    for rg in (2, 1):
        for q in range(4): P(f"v_add_u32 {v(BAR[4*rg+q])}, {65536*rg}, {v(BAR[q])}")
    LP = int(OPT.get("lp", 2)); SQ = int(OPT.get("sq", 14))
    assert LP >= 2
    seq = [(st, q) for st in range(SQ) for q in range(4) if q or st < LP]
    done_at = {}
    for q in (1, 2, 3):
        seq += [(st, q) for st in range(SQ, 18)]; done_at[q] = len(seq)
    seq += [(st, 0) for st in range(LP, 18)]
    D = 4
    def bq(i): return XF + 8 * (i & 7)
    def br(i):
        st, q = seq[i]; a = KAREA[st >> 1]
        return [f"ds_read_b64_tr_b16 {v(bq(i)+2*tt,2)}, {v(BAR[4*(a>>16)+q])} offset:{(a&0xffff)+(st&1)*8192+2048*tt}" for tt in range(2)]
    def val(st): validate([AF3(st, sh) + i for sh in range(2) for i in range(4)], T + 16, sum(a_jobs(st), []))
    for i in range(D): P.add(br(i))
    val(0)
    stamp("hseen")
    first = {}
    for i, (st, q) in enumerate(seq): first.setdefault(st, i)
    ev = {}
    def at(i, x): ev.setdefault(i, []).append(x)
    a8, a14 = int(OPT.get("a8", 8)), int(OPT.get("a14", 26))
    i0 = 0
    for st in aleft: at(i0, sum(a_jobs(st), [])); i0 += 1
    for g_ in sum([b_dma(k2) for k2 in bleft], []): at(i0, g_); i0 += 1
    a8 = max(a8, i0)
    for st in range(8, 14): at(a8 + 2 * (st - 8), sum(a_jobs(st), []))
    for st in range(14, 18): at(a14 + 2 * (st - 14), sum(a_jobs(st), []))
    pxi = int(OPT.get("pxi", a8 + 12))
    at(pxi - 1, [f"v_mov_b32 {v(PX+i)}, -1" for i in range(4)])
    for j in (1, 2, 3): at(pxi + j - 1, xoff(j, True) + [f"buffer_store_dwordx4 {v(PX,4)}, {v(VL16)}, {s(SWS,4)}, {s(sT0)} offen sc1 ; tag=px"])
    at(done_at[1] - int(OPT.get("fxb", 2)), flag(2, "px"))
    F = T + 8
    at(a8 + 1, lines(f"v_and_b32 {v(T+17)}, 31, {v(vL)}\nv_lshrrev_b32 {v(T+18)}, 5, {v(vL)}\nv_lshlrev_b32 {v(T+18)}, 4, {v(T+18)}\nv_lshl_add_u32 {v(VX)}, {v(T+17)}, 10, {v(T+18)}") +
          [f"buffer_load_dwordx4 {v(XR,4)}, {v(VX)}, {s(SX,4)}, {s(sOo)} offen", f"buffer_load_dwordx4 {v(B2R,4)}, {v(T+18)}, {s(SB2,4)}, {s(sN)} offen"])
    for i in range(4):
        at(done_at[3] + 6 + i, lines(f"v_lshlrev_b32 {v(F+2*i)}, 16, {v(XR+i)}\nv_and_b32 {v(F+2*i+1)}, 0xffff0000, {v(XR+i)}\nv_lshlrev_b32 {v(T+4)}, 16, {v(B2R+i)}\nv_and_b32 {v(T+5)}, 0xffff0000, {v(B2R+i)}\nv_add_f32 {v(F+2*i)}, {v(F+2*i)}, {v(T+4)}\nv_add_f32 {v(F+2*i+1)}, {v(F+2*i+1)}, {v(T+5)}"))
    def snd(q): c = AC + 8 * q; return [f"v_cvt_pk_bf16_f32 {v(c+i)}, {v(c+2*i)}, {v(c+2*i+1)}" for i in range(4)] + xoff(q, True) + [f"buffer_store_dwordx4 {v(c,4)}, {v(VL16)}, {s(SWS,4)}, {s(sT0)} offen sc1"]
    VPF, VPA = PX, PX + 1
    pf = f"buffer_load_dword {v(VPF)}, {v(VPA)}, {s(SWS,4)}, 0 offen sc1"
    for q in (1, 2, 3): at(done_at[q] + 1, snd(q))
    at(done_at[3] + 1, stamp_i("xs"))
    at(done_at[3] + int(OPT.get("pfi", 0)), lines(f"v_and_b32 {v(VPA)}, 3, {v(vL)}\nv_lshlrev_b32 {v(VPA)}, 8, {v(VPA)}\nv_xor_b32 {v(VPA)}, {s(sFO)}, {v(VPA)}") + [pf])
    bar_i = first[12] - D
    R = AC + 8 - 4
    RQ = [None, AC + 12, AC + 20, AC + 28]
    rl = sum([xoff(j, False) + [f"buffer_load_dwordx4 {v(RQ[j],4)}, {v(VL16)}, {s(SWS,4)}, {s(sT0)} offen sc1"] for j in range(1, 4)], [])
    ri = min(done_at[3] + int(OPT.get("ri", 12)), len(seq) - 1)
    seen = set()
    for i, (st, q) in enumerate(seq):
        if i % 4 == 0: P(f"s_setprio {3 - ((i >> 2) & 3)}")
        for sh in range(2): P(m16(AC + 8 * q + 4 * sh, bq(i), AF3(st, sh), None if q in seen else "0"))
        seen.add(q)
        if i == bar_i: P(".waitvm b8"); P("s_barrier")
        if i + D < len(seq): P.add(br(i + D))
        if i + 2 < len(seq) and first[seq[i + 2][0]] == i + 2: val(seq[i + 2][0])
        for x in ev.pop(i, []): P.add(x)
        if i == ri:
            P(f"v_mov_b32 {v(VPF)}, {v(VPF)}")
            spin(P.lab("L_pf"), pf, f"v_cmp_gt_u32 vcc, 2, {v(VPF)}")
            P.add(rl)
        if i + 1 < len(seq) and first[seq[i + 1][0]] == i + 1: stamp(f"k{st}")
    assert not ev, ev.keys()
    stamp("p2mm")
    P("s_setprio 0")
    validate([RQ[j] + i for j in (1, 2, 3) for i in range(4)], T + 16, rl)
    stamp("xr")
    P(f"s_mov_b32 {s(sT0)}, 0x3f80\ns_mov_b32 {s(sT1)}, 0x3f800000")
    for j in range(1, 4):
        for i in range(4): P(f"v_dot2c_f32_bf16 {v(AC+2*i)}, {s(sT0)}, {v(RQ[j]+i)}\nv_dot2c_f32_bf16 {v(AC+2*i+1)}, {s(sT1)}, {v(RQ[j]+i)}")
    for i in range(4): P(f"v_permlane16_swap_b32 {v(AC+i)}, {v(AC+4+i)}")
    for i in range(0, 8, 2): P(f"v_pk_add_f32 {v(F+i,2)}, {v(F+i,2)}, {v(AC+i,2)}")
    for i in range(4): P(f"v_cvt_pk_bf16_f32 {v(XR+i)}, {v(F+2*i)}, {v(F+2*i+1)}")
    P(f"buffer_store_dwordx4 {v(XR,4)}, {v(VX)}, {s(SOUT,4)}, {s(sOo)} offen")
    finish(ffn)

def phase2(done=(), ordr="B6 B7 B8 B9 A4 A5 A6 A7 B10 A8 B11 A9 A10 B12 A11 B13 A12 B14 A13 B15 B16 B17 A14 A15 A16 A17", ffn=False):
    P(f"v_bfe_u32 {v(T+8)}, {v(vL)}, 2, 2\nv_lshrrev_b32 {v(T+9)}, 5, {v(vL)}\nv_and_b32 {v(T+10)}, 63, {v(AW)}")
    P(f"v_lshl_add_u32 {v(T+12)}, {v(T+9)}, 2, {v(T+8)}\nv_lshl_add_u32 {v(T+12)}, {v(T+12)}, 7, {v(T+10)}\nv_lshrrev_b32 {v(T+13)}, 1, {v(T+8)}")
    P(f"v_lshl_add_u32 {v(T+12)}, {v(T+13)}, 6, {v(T+12)}\nv_xor_b32 {v(T+13)}, 64, {v(T+12)}")
    P(f"s_add_u32 {s(sT0)}, {s(sM0x)}, 65536\ns_add_u32 {s(sT1)}, {s(sM0x)}, {RC}")
    for nb in range(2):
        P(f"v_add_u32 {v(BA+nb)}, {s(sM0x)}, {v(T+12+nb)}\nv_add_u32 {v(BA+2+nb)}, {s(sT0)}, {v(T+12+nb)}\nv_add_u32 {v(BA+4+nb)}, {s(sT1)}, {v(T+12+nb)}")
    P.add(b_reads(0))
    if OPT.get("r8", "1") == "1": validate([AFq(0, r2) + i for r2 in range(2) for i in range(4)], T + 16, sum(a_jobs(0), []))
    if OPT.get("p2prio") == "y":
        lb = P.lab("L_pr"); P(f"s_cmp_lt_u32 {s(sW)}, 4\ns_cbranch_scc1 {lb}\ns_setprio 1\n{lb}:")
    stamp("hseen")
    order = [j for j in ordr.split() if j not in done]
    jobs = []
    for j in order:
        k2 = int(j[1:]); gs = a_jobs(k2) if j[0] == "A" else b_dma(k2)
        jobs += [(j, gs[0]), (None, gs[1])]
    LEAD = int(OPT.get("lead", 3))
    first_need = min(int(j[1:]) - (0 if j[0] == "A" else 1) for j in order)
    order.sort(key=lambda j: int(j[1:]) - (0.5 if j[0] == "B" else 0)) if LEAD < 9 else None
    jobs = []
    for j in order:
        k2 = int(j[1:]); gs = a_jobs(k2) if j[0] == "A" else b_dma(k2)
        jobs += [(j, gs[0]), (None, gs[1])]
    NT = int(OPT.get("nt", 2))
    for kk in range(18 - NT):
        rem = [x for x, _ in jobs if x]
        assert f"A{kk+1}" not in rem and f"B{kk+2}" not in rem, (kk, rem)
        if OPT.get("v"): print(kk, rem, file=sys.stderr)
        pm = OPT.get("p2prio", "c")
        if pm == "c": P(f"s_setprio {3 - ((kk // int(OPT.get('p2per', 1))) & 3)}")
        br = b_reads(kk + 1) if kk + 1 < 18 else []
        for nb in range(2):
            for rb in range(2):
                mi = 2 * nb + rb
                P(mfma(AC + 16 * mi, BTq(kk, nb), AFq(kk, rb), "0" if kk == 0 else None))
                if mi == 0: P.add(br[:3])
                if mi == 1: P.add(br[3:])
                if mi == 2 and (1 if OPT.get('r8', '1') == '1' else 4) <= kk + 1 < 18:
                    if jobs and jobs[0][0] is None: P.add(jobs.pop(0)[1])
                    validate([AFq(kk + 1, r2) + i for r2 in range(2) for i in range(4)], T + 16, sum(a_jobs(kk + 1), []))
                for rep in range(2 if kk < int(OPT.get("dbl", 0)) else 1):
                    if not jobs: continue
                    j, g_ = jobs[0]
                    if j:
                        k2 = int(j[1:]); last = (nb, rb) == (1, 1)
                        free = k2 - (8 if j[0] == "A" else 9)
                        if free > kk or (free == kk and not last): continue
                        need_at = k2 - (0 if j[0] == "A" else 1)
                        if need_at > max(kk, first_need - 1) + LEAD: continue
                    jobs.pop(0); P.add(g_)
        stamp(f"k{kk}")
        if kk == 8:
            P(f"v_lshrrev_b32 {v(T+17)}, 3, {v(vL)}\nv_and_b32 {v(T+18)}, 7, {v(vL)}\nv_lshlrev_b32 {v(T+18)}, 4, {v(T+18)}\nv_lshl_add_u32 {v(VXR)}, {v(T+17)}, 10, {v(T+18)}")
            P(f"s_lshl_b32 {s(sT0)}, {s(sN)}, 7")
            P(f"buffer_load_dwordx4 {v(XR,4)}, {v(VXR)}, {s(SX,4)}, {s(sOo)} offen")
            P(f"buffer_load_dwordx4 {v(B2R,4)}, {v(T+18)}, {s(SB2,4)}, {s(sT0)} offen")
        if kk == 3:
            for q in range(4):
                P(f"v_xor_b32 {v(VWR+q)}, {64*q}, {v(VL16)}\nv_add_u32 {v(VWR+q)}, {s(sM0x)}, {v(VWR+q)}")
                P(f"v_add_u32 {v(T+q)}, 65536, {v(VWR+q)}")
            P(f"v_lshrrev_b32 {v(T+4)}, 3, {v(vL)}\ns_lshl_b32 {s(sT0)}, {s(sW34)}, 1\nv_add_u32 {v(T+4)}, {s(sT0)}, {v(T+4)}")
            P(f"v_and_b32 {v(T+5)}, 3, {v(vL)}\nv_lshlrev_b32 {v(T+6)}, 2, {v(T+5)}\nv_xor_b32 {v(T+4)}, {v(T+4)}, {v(T+6)}\nv_lshlrev_b32 {v(T+4)}, 4, {v(T+4)}\nv_and_b32 {v(T+6)}, 1, {v(T+5)}\nv_lshl_add_u32 {v(T+4)}, {v(T+6)}, 10, {v(T+4)}\nv_lshrrev_b32 {v(T+6)}, 1, {v(T+5)}\nv_lshl_add_u32 {v(T+4)}, {v(T+6)}, 14, {v(T+4)}")
            P(f"v_bfe_u32 {v(T+5)}, {v(vL)}, 2, 1\nv_lshl_add_u32 {v(T+4)}, {v(T+5)}, 16, {v(T+4)}\ns_lshl_b32 {s(sT0)}, {s(sHALF)}, 15\nv_add_u32 {v(VRED)}, {s(sT0)}, {v(T+4)}")
        F = T + 8
        if kk == 13:
            for i in range(4):
                P(f"v_lshlrev_b32 {v(F+2*i)}, 16, {v(XR+i)}\nv_and_b32 {v(F+2*i+1)}, 0xffff0000, {v(XR+i)}")
                P(f"v_lshlrev_b32 {v(T+4)}, 16, {v(B2R+i)}\nv_and_b32 {v(T+5)}, 0xffff0000, {v(B2R+i)}")
                P(f"v_add_f32 {v(F+2*i)}, {v(F+2*i)}, {v(T+4)}\nv_add_f32 {v(F+2*i+1)}, {v(F+2*i+1)}, {v(T+5)}")
    assert not jobs
    for kk in range(19 - NT, 18):
        P.add(b_reads(kk))
        validate([AFq(kk, r2) + i for r2 in range(2) for i in range(4)], T + 16, sum(a_jobs(kk), []))
    def wr(blk): return [f"ds_write_b128 {v(VWR + q if blk < 2 else T + q)}, {v(AC+16*blk+4*q,4)} offset:{(blk&1)*32768+(q>>1)*16384+(q&1)*1024}" for q in range(4)]
    pend = []
    for mi in range(4):
        for kk in range(18 - NT, 18):
            P(mfma(AC + 16 * mi, BTq(kk, mi >> 1), AFq(kk, mi & 1)))
            if kk > 18 - NT or NT == 1: P.add(pend[:2]); pend = pend[2:]
        P.add(pend); pend = wr(mi)
    stamp("p2mm")
    P.add(pend)
    P("s_waitcnt lgkmcnt(0)")
    stamp("rw")
    P("s_barrier")
    stamp("rb")
    R = XF
    for ww in range(8):
        for hf in range(2): P(f"ds_read_b128 {v(R+8*ww+4*hf,4)}, {v(VRED)} offset:{2048*ww+512*hf}")
    for ww in range(8):
        for i in range(0, 8, 2): P(f"v_pk_add_f32 {v(F+i,2)}, {v(F+i,2)}, {v(R+8*ww+i,2)}")
    for i in range(4): P(f"v_cvt_pk_bf16_f32 {v(XR+i)}, {v(F+2*i)}, {v(F+2*i+1)}")
    P(f"buffer_store_dwordx4 {v(XR,4)}, {v(VXR)}, {s(SOUT,4)}, {s(sOo)} offen {OPT.get('om', '').replace('+', ' ')}")
    finish(ffn)

def softmax(p, out, LS, pk=False):
    t = T + 16
    if pk:
        assert LS == STD + 1
        L = softmax(p, out, LS)[:9]
        L += [f"v_pk_fma_f32 {v(p+i,2)}, {v(p+i,2)}, {v(STD,2)}, {v(t,2)} op_sel:[0,1,0] op_sel_hi:[1,1,0] neg_lo:[0,0,1] neg_hi:[0,0,1]" for i in range(0, 16, 2)]
        L += [f"v_exp_f32 {v(p+i)}, {v(p+i)}" for i in range(16)]
        L += [f"v_pk_add_f32 {v(t,2)}, {v(p,2)}, {v(p+2,2)}", f"v_pk_add_f32 {v(t+2,2)}, {v(p+4,2)}, {v(p+6,2)}"]
        L += [f"v_pk_add_f32 {v(t+2*(i&1),2)}, {v(t+2*(i&1),2)}, {v(p+8+2*i,2)}" for i in range(4)]
        L += [f"v_pk_add_f32 {v(t,2)}, {v(t,2)}, {v(t+2,2)}", f"v_add_f32 {v(t)}, {v(t)}, {v(t+1)}", f"v_rcp_f32 {v(t)}, {v(t)}"]
        L += [f"v_pk_mul_f32 {v(p+i,2)}, {v(p+i,2)}, {v(t,2)} op_sel_hi:[1,0]" for i in range(0, 16, 2)]
        return L + [f"v_cvt_pk_bf16_f32 {v(out+i)}, {v(p+2*i)}, {v(p+2*i+1)}" for i in range(8)]
    L = [f"v_max3_f32 {v(t)}, {v(p)}, {v(p+1)}, {v(p+2)}", f"v_max3_f32 {v(t+1)}, {v(p+3)}, {v(p+4)}, {v(p+5)}",
         f"v_max3_f32 {v(t)}, {v(t)}, {v(p+6)}, {v(p+7)}", f"v_max3_f32 {v(t+1)}, {v(t+1)}, {v(p+8)}, {v(p+9)}",
         f"v_max3_f32 {v(t)}, {v(t)}, {v(p+10)}, {v(p+11)}", f"v_max3_f32 {v(t+1)}, {v(t+1)}, {v(p+12)}, {v(p+13)}",
         f"v_max3_f32 {v(t)}, {v(t)}, {v(p+14)}, {v(p+15)}", f"v_max_f32 {v(t)}, {v(t)}, {v(t+1)}",
         f"v_mul_f32 {v(t)}, {v(t)}, {v(LS)}"]
    L += [f"v_fma_f32 {v(p+i)}, {v(p+i)}, {v(LS)}, -{v(t)}" for i in range(16)]
    L += [f"v_exp_f32 {v(p+i)}, {v(p+i)}" for i in range(16)]
    L += [f"v_add_f32 {v(t)}, {v(p)}, {v(p+1)}", f"v_add_f32 {v(t+1)}, {v(p+2)}, {v(p+3)}"]
    for i in range(4, 16, 2):
        L += [f"v_add_f32 {v(t)}, {v(t)}, {v(p+i)}", f"v_add_f32 {v(t+1)}, {v(t+1)}, {v(p+i+1)}"]
    L += [f"v_add_f32 {v(t)}, {v(t)}, {v(t+1)}", f"v_rcp_f32 {v(t)}, {v(t)}"]
    L += [f"v_mul_f32 {v(p+i)}, {v(p+i)}, {v(t)}" for i in range(16)]
    L += [f"v_cvt_pk_bf16_f32 {v(out+i)}, {v(p+2*i)}, {v(p+2*i+1)}" for i in range(8)]
    return L

setup(False)
KAREA[:] = [RC, RA+3*Q, RA, RA+Q, RA+2*Q, RB, RB+Q, RB+2*Q, RB+3*Q]
ASY = OPT.get('asy', '0') == '1'
LS = K1; VPK = K2; VV = VW3; MC = BIAS
PHI0, PHI1 = AX, AAUG
PHI0 = AX
PHI1 = S1
PHI1 = T + 12
t = T + 16
P(f"v_bfe_u32 {v(t)}, {v(vL)}, 2, 2\nv_lshrrev_b32 {v(t+1)}, 5, {v(vL)}\nv_lshl_add_u32 {v(t)}, {v(t+1)}, 2, {v(t)}\nv_lshlrev_b32 {v(t)}, 5, {v(t)}")
P(f"v_bfe_u32 {v(t+2)}, {v(vL)}, 1, 1\nv_lshl_add_u32 {v(t)}, {v(t+2)}, 3, {v(t)}\nv_bfe_u32 {v(t+2)}, {v(vL)}, 4, 1\nv_lshl_add_u32 {v(t)}, {v(t+2)}, 4, {v(t)}")
P(f"s_lshl_b32 {s(sT1)}, {s(sHALF)}, 10\ns_add_u32 {s(sT1)}, {s(sT1)}, {L_WPHI}\nv_add_u32 {v(AB)}, {s(sT1)}, {v(t)}")
P(f"v_bfe_u32 {v(t)}, {v(vL)}, 2, 1\nv_mul_u32_u24 {v(t)}, 0x8000, {v(t)}\nv_lshl_or_b32 {v(AB+1)}, {v(t)}, 16, {v(t)}")
P(f"v_and_b32 {v(t)}, 31, {v(vL)}\nv_lshlrev_b32 {v(t)}, 6, {v(t)}\ns_lshl_b32 {s(sT1)}, {s(sW34)}, 9\nv_bfe_u32 {v(t+2)}, {v(vL)}, 1, 2")
P(f"v_lshlrev_b32 {v(t+3)}, 1, {v(t+1)}\nv_xor_b32 {v(t+3)}, {v(t+3)}, {v(t+2)}")
P(f"s_lshl_b32 {s(sT2)}, {s(sHALF)}, 14\ns_add_u32 {s(sT2)}, {s(sT2)}, {s(sT1)}\nv_lshl_add_u32 {v(VPK)}, {v(t+3)}, 4, {v(t)}\nv_add_u32 {v(VPK)}, {s(sT2)}, {v(VPK)}")
P(f"v_xor_b32 {v(t+3)}, {v(t+1)}, {v(t+2)}")
P(f"s_lshl_b32 {s(sT2)}, {s(sHALF)}, 13\ns_add_u32 {s(sT2)}, {s(sT2)}, {s(sT1)}\ns_add_u32 {s(sT2)}, {s(sT2)}, {RA+32768}\nv_lshl_add_u32 {v(VV)}, {v(t+3)}, 4, {v(t)}\nv_add_u32 {v(VV)}, {s(sT2)}, {v(VV)}")
def phi_load(hl, dst):
    return [f"ds_read_b64_tr_b16 {v(dst+2*tt,2)}, {v(AB)} offset:{512*hl+256*tt}" for tt in range(2)] + \
           [f"v_xor_b32 {v(dst+i)}, {v(AB+1)}, {v(dst+i)}" for i in range(4)]
S = Sched(96)
common_sched(S, False, None, MC)
S.post[30] += [f"ds_read_b128 {v(CSR,4)}, {v(VCSA)}"]
sKV, sOS = sH0, sH3
P(f"s_lshl_b32 {s(sT0)}, {s(sG)}, 4\ns_add_u32 {s(sT0)}, {s(sT0)}, {s(sRT)}\ns_mul_i32 {s(sT0)}, {s(sT0)}, {KVP_SZ}\ns_mul_i32 {s(sT1)}, {s(sW)}, 1152\ns_add_u32 {s(sT0)}, {s(sT0)}, {s(sT1)}\ns_add_u32 {s(sT0)}, {s(sT0)}, {WS_KVP}")
P(f"s_cmp_lt_u32 {s(sW)}, 4\ns_cselect_b32 {s(sKV)}, {s(sT0)}, 0x7f000000")
P(f"s_lshl_b32 {s(sT0)}, {s(sG)}, 2\ns_lshl_b32 {s(sT1)}, {s(sHALF)}, 1\ns_add_u32 {s(sT0)}, {s(sT0)}, {s(sT1)}\ns_add_u32 {s(sT0)}, {s(sT0)}, 112\ns_lshl_b32 {s(sT0)}, {s(sT0)}, 10\ns_add_u32 {s(sOS)}, {s(sT0)}, {s(sHo)}")
PA = AAUG
OFFL = OPT.get("off", "0") == "1"
if OFFL:
    P(f"s_mul_i32 {s(sT0)}, {s(sG)}, 448\ns_and_b32 {s(sT1)}, {s(sG)}, 1\ns_add_u32 {s(sT2)}, {s(sT1)}, {s(sHALF)}\ns_lshl_b32 {s(sT2)}, {s(sT2)}, 6\ns_add_u32 {s(sT2)}, {s(sT2)}, {s(sT0)}")
    P(f"s_lshl_b32 {s(sT2)}, {s(sT2)}, 5\ns_add_u32 {s(sWq)}, {s(sT2)}, {s(sHo)}\ns_add_u32 {s(sWq)}, {s(sWq)}, 8192")
    P(f"s_xor_b32 {s(sT1)}, {s(sT1)}, 1\ns_mul_i32 {s(sT1)}, {s(sT1)}, 384\ns_add_u32 {s(sT0)}, {s(sT0)}, {s(sT1)}\ns_lshl_b32 {s(sT1)}, {s(sHALF)}, 5\ns_add_u32 {s(sT0)}, {s(sT0)}, {s(sT1)}")
    P(f"s_lshl_b32 {s(sT0)}, {s(sT0)}, 5\ns_add_u32 {s(sW3)}, {s(sT0)}, {s(sHo)}")
S.post[46] += [f"v_mov_b32 {v(PA+i)}, -1" for i in range(4)] + [f"v_lshrrev_b32 {v(S2)}, 2, {v(vL)}", f"v_lshl_add_u32 {v(S2)}, {v(S2)}, 26, {v(VL16)}"]
S.post[47] += [f"buffer_store_dwordx4 {v(PA,4)}, {v(VL16)}, {s(SWS,4)}, {s(sKV)} offen sc1"]
S.post[48] += [f"buffer_store_dwordx4 {v(PA,4)}, {v(S2)}, {s(SWS,4)}, {s(sKV)} offen offset:1024 sc1 ; tag=pz"]
pl = [(sOS, 0), (sOS, 1024)] + ([(sWq, 0), (sWq, 1024), (sW3, 0)] if OFFL else [])
for (so, off), G in zip(pl, [int(x) for x in OPT.get("pza", "50,53,56,59,62").split(",")]):
    S.post[G] += [f"buffer_store_dwordx4 {v(PA,4)}, {v(VL16)}, {s(SWS,4)}, {s(so)} offen offset:{off} sc1 ; tag=po"]
PX1 = OPT.get("px1") == "1"
if V2 and PX1:
    for j, G in zip((1, 2, 3), (56, 59, 62)): S.post[G] += xoff(j, True) + [f"buffer_store_dwordx4 {v(PA,4)}, {v(VL16)}, {s(SWS,4)}, {s(sT0)} offen sc1 ; tag=px"]
S.post[63] += [f"v_mov_b32 {v(PA+2)}, 0", f"v_mov_b32 {v(PA+3)}, 0"]
def ltouch():
    P(f"s_sub_u32 {s(sT0)}, {s(sW)}, 4\ns_cmp_lt_u32 {s(sT0)}, 3")
    P(f"s_cbranch_scc0 L_nlt")
    P.cond_begin("w456")
    P(f"v_lshlrev_b32 {v(S1)}, 7, {v(vL)}\ns_lshl_b32 {s(sT1)}, {s(sRT)}, 3\ns_add_u32 {s(sT1)}, {s(sT1)}, {s(sG)}")
    P(f"s_cmp_eq_u32 {s(sT0)}, 2\ns_cbranch_scc1 L_lt2")
    P(f"s_lshl_b32 {s(sT1)}, {s(sT1)}, 1\ns_add_u32 {s(sT1)}, {s(sT1)}, {s(sT0)}\ns_mul_i32 {s(sT1)}, {s(sT1)}, 7168")
    P(f"buffer_load_dword {v(VX0)}, {v(S1)}, {s(SW2,4)}, {s(sT1)} offen")
    P("s_branch L_nlt")
    P("L_lt2:")
    P(f"v_and_b32 {v(S1)}, 4095, {v(S1)}\ns_lshl_b32 {s(sT1)}, {s(sT1)}, 12")
    P(f"buffer_load_dword {v(VX0)}, {v(S1)}, {s(SWO,4)}, {s(sT1)} offen")
    P(f"buffer_load_dword {v(VX1)}, {v(S1)}, {s(SB2,4)}, 0 offen")
    P.cond_end()
    for I in P.ins[-12:]:
        if I.kind == "vld": I.defs = []
    P("L_nlt:")
if OPT.get("touch", "5") == "2": S.blk[("e", int(OPT.get("tg", 54)))] = ltouch
S.post[31] += stamp_i("pass1")
fill = stats_final() + aug(ACC0, CSR, None) + phi_load(0, AX) + phi_load(1, T + 8) + [f"v_mul_f32 {v(LS)}, {f2u(LOG2E):#x}, {v(RSTD)}"]
fill += [f"v_cvt_pk_bf16_f32 {v(T+i)}, {v(ACC0+2*i)}, {v(ACC0+2*i+1)}" for i in range(8)]
fill += [mfma(ACC2, AX, T, "0"), mfma(ACC0, T + 8, T + 4, "0")]
S.spread(fill, 32, 40)
S.spread(softmax(ACC2, T + 8, LS) + softmax(ACC0, T, LS), 41, 64)
pkg = 62 if OPT.get("few", "1") == "1" else 56
S.post[pkg] += [f"ds_write_b128 {v(VPK)}, {v(T+8,4)}", f"v_xor_b32 {v(VSTA)}, 16, {v(VPK)}"]
S.post[pkg+1] += [f"ds_write_b128 {v(VSTA)}, {v(T+12,4)}"]
S.post[62] += [f"ds_read_b128 {v(MC,4)}, {v(VCSA)} offset:1024"]
S.post[63] += stamp_i("sub1")
S.pre[64] += sum4(CS0, MC)
S.fill[64] += aug(ACC1, MC, None)[3:]
S.post[65] += [f"ds_write_b128 {v(VPK)}, {v(T,4)} offset:8192"]
S.post[66] += [f"ds_write_b128 {v(VSTA)}, {v(T+4,4)} offset:8192"]
fill = []
fill += [f"v_mul_f32 {v(ACC1+i)}, {v(ACC1+i)}, {v(RSTD)}" for i in range(16)]
fill += [f"v_cvt_pk_bf16_f32 {v(ACC1+i)}, {v(ACC1+2*i)}, {v(ACC1+2*i+1)}" for i in range(8)]
fill += [f"ds_write_b128 {v(VV)}, {v(ACC1,4)}", f"v_xor_b32 {v(VV)}, 32, {v(VV)}", f"ds_write_b128 {v(VV)}, {v(ACC1+4,4)}"]
S.spread(fill, 66, 70)
S.dmas(b_dma(0), 65, 3)
S.dmas(b_dma(1), 74, 4); S.dmas(b_dma(2) + b_dma(3) + b_dma(4), int(OPT.get('ab', 86)), 1)
def kvblock():
    P(".waitvm pz lgkm0")
    P("s_barrier")
    kvflag()
    stamp("kv0"); stamp("kv1")
    P(f"s_cmp_lt_u32 {s(sW)}, 4")
    P("s_cbranch_scc0 L_nkv")
    P.cond_begin("lo4")
    P("s_setprio 3")
    t = T + 16; u = S1
    P(f"v_bfe_u32 {v(u)}, {v(vL)}, 2, 2\nv_lshrrev_b32 {v(u+1)}, 5, {v(vL)}\nv_lshl_add_u32 {v(u)}, {v(u+1)}, 3, {v(u)}\nv_lshlrev_b32 {v(u)}, 6, {v(u)}")
    P(f"v_bfe_u32 {v(u+1)}, {v(vL)}, 1, 1\nv_lshl_add_u32 {v(u)}, {v(u+1)}, 3, {v(u)}\nv_bfe_u32 {v(u+1)}, {v(vL)}, 3, 1\nv_and_b32 {v(VSTA)}, 1, {v(vL)}")
    P(f"v_or_b32 {v(t)}, {s(sSH)}, {v(VSTA)}\nv_xor_b32 {v(t)}, {v(t)}, {v(u+1)}\nv_lshl_add_u32 {v(t)}, {v(t)}, 4, {v(u)}")
    P(f"s_lshr_b32 {s(sT0)}, {s(sW)}, 1\ns_lshl_b32 {s(sT0)}, {s(sT0)}, 13\ns_add_u32 {s(sT0)}, {s(sT0)}, {RA+32768}\nv_add_u32 {v(t)}, {s(sT0)}, {v(t)}\nv_xor_b32 {v(t+1)}, 32, {v(t)}")
    P(f"v_bfe_u32 {v(t+2)}, {v(vL)}, 4, 1\nv_lshl_add_u32 {v(t+2)}, {v(VSTA)}, 1, {v(t+2)}\nv_xor_b32 {v(t+2)}, {v(t+2)}, {v(u+1)}\nv_lshl_add_u32 {v(t+2)}, {v(t+2)}, 4, {v(u)}")
    P(f"s_lshl_b32 {s(sT0)}, {s(sW)}, 13\nv_add_u32 {v(t+2)}, {s(sT0)}, {v(t+2)}\nv_xor_b32 {v(t+3)}, 32, {v(t+2)}")
    P(f"v_and_b32 {v(u)}, 16, {v(vL)}\nv_cmp_eq_u32 vcc, 0, {v(u)}\nv_mov_b32 {v(u+1)}, {s(sONE)}")
    KB = [T, T + 8, ACC1, ACC1 + 8]
    def kr(J):
        for tt in range(2):
            P(f"ds_read_b64_tr_b16 {v(KB[J&3]+2*tt,2)}, {v(t+tt)} offset:{1024*J+256*tt}")
            P(f"ds_read_b64_tr_b16 {v(KB[J&3]+4+2*tt,2)}, {v(t+2+tt)} offset:{1024*J+256*tt}")
    kr(0); kr(1); kr(2)
    for J in range(8):
        for i in range(4): P(f"v_cndmask_b32 {v(KB[J&3]+i)}, {v(u+1)}, {v(KB[J&3]+i)}, vcc")
        if J + 3 < 8: kr(J + 3)
        P(mfma(ACC0, KB[J&3] + 4, KB[J&3], "0" if J == 0 else None))
    if ASY: P("s_barrier")
    P(f"v_lshrrev_b32 {v(u)}, 5, {v(vL)}\nv_and_b32 {v(t+2)}, 15, {v(vL)}\nv_lshlrev_b32 {v(t)}, 4, {v(t+2)}\nv_lshl_add_u32 {v(t)}, {v(u)}, 8, {v(t)}\nv_add_u32 {v(t+1)}, 512, {v(t)}")
    P(f"v_lshlrev_b32 {v(u)}, 4, {v(u)}\nv_add_u32 {v(u)}, 1024, {v(u)}\nv_lshl_add_u32 {v(u)}, {v(t+2)}, 26, {v(u)}\nv_add_u32 {v(u+1)}, 32, {v(u)}")
    P(f"v_cndmask_b32 {v(t)}, {v(u)}, {v(t)}, vcc\nv_cndmask_b32 {v(t+1)}, {v(u+1)}, {v(t+1)}, vcc")
    for i in range(8): P(f"v_cvt_pk_bf16_f32 {v(T+i)}, {v(ACC0+2*i)}, {v(ACC0+2*i+1)}")
    stamp("kv1")
    for j in range(2): P(f"buffer_store_dwordx4 {v(T+4*j,4)}, {v(t+j)}, {s(SWS,4)}, {s(sKV)} offen sc1")
    P.cond_end()
    P("L_nkv:")
    stamp("kv2")
S.blk[70] = kvblock
PXA = OPT.get("pxa", "72,76,81")
if PXA:
    gs_ = [int(x) for x in PXA.split(",")]
    if gs_[0] > 64:
        S.post[gs_[0] - 1] += [f"v_mov_b32 {v(PA+i)}, -1" for i in range(4)]
        S.post[gs_[2] + 2] += [f"v_mov_b32 {v(PA+2)}, 0", f"v_mov_b32 {v(PA+3)}, 0"]
    for j, G in zip((1, 2, 3), gs_): S.post[G] += xoff(j, True) + [f"buffer_store_dwordx4 {v(PA,4)}, {v(VL16)}, {s(SWS,4)}, {s(sT0)} offen sc1 ; tag=px"]
S.pre[94] += ["s_waitcnt lgkmcnt(0)", "s_barrier"]
def kvflag():
    P(f"s_cmp_eq_u32 {s(sW)}, 7")
    P("s_cbranch_scc0 L_nkf")
    P.cond_begin("w0")
    P(f"s_lshl_b32 {s(sT0)}, {s(sG)}, 8\ns_lshl_b32 {s(sT1)}, {s(sRT)}, 2\ns_add_u32 {s(sT0)}, {s(sT0)}, {s(sT1)}\ns_add_u32 {s(sT0)}, {s(sT0)}, {WS_KVF}")
    P(f"v_mov_b32 {v(VFV)}, 1")
    P(f"buffer_store_dword {v(VFV)}, {v(VZ)}, {s(SWS,4)}, {s(sT0)} offen sc1")
    P.cond_end()
    P("L_nkf:")
def kvpoll():
    P(f"s_cmp_eq_u32 {s(sW)}, 7")
    P("s_cbranch_scc0 L_nkp")
    n0 = len(P.ins)
    P(f"s_lshl_b32 {s(sT2)}, {s(sG)}, 8\ns_add_u32 {s(sT2)}, {s(sT2)}, {WS_KVF}\ns_mov_b32 {s(sCNT)}, 0")
    P("s_branch L_spkv1")
    P("L_spkv:")
    P(f"s_buffer_load_dwordx16 s[20:35], {s(SWS,4)}, {s(sT2)} glc")
    P("L_spkv1:")
    P(f"s_add_u32 {s(sCNT)}, {s(sCNT)}, 1")
    P("s_waitcnt lgkmcnt(0)")
    for i in range(22, 36, 2): P(f"s_and_b64 s[20:21], s[20:21], s[{i}:{i+1}]")
    P("s_and_b32 s20, s20, s21")
    P("s_cbranch_scc1 L_nkp")
    P(f"s_cmp_gt_u32 {s(sCNT)}, {SPIN_MAX}")
    P("s_cbranch_scc1 L_nkp")
    P("s_sleep 1")
    P("s_branch L_spkv")
    for I in P.ins[n0:]:
        I.cond = "kvp"
        if I.kind == "smem": I.kind = "opaque"
    P("L_nkp:")
def kvreq():
    P(f"s_cmp_eq_u32 {s(sW)}, 7")
    P("s_cbranch_scc0 L_nkr")
    n0 = len(P.ins)
    P(f"s_lshl_b32 {s(sT2)}, {s(sG)}, 8\ns_add_u32 {s(sT2)}, {s(sT2)}, {WS_KVF}")
    P(f"s_buffer_load_dwordx16 s[20:35], {s(SWS,4)}, {s(sT2)} glc")
    for I in P.ins[n0:]:
        I.cond = "kvp"
        if I.kind == "smem": I.kind = "opaque"
    P("L_nkr:")
VP = OPT.get("vp", "0") == "1"
VPA_, VPV = VX0, VSTA
vpl = f"buffer_load_dword {v(VPV)}, {v(VPA_)}, {s(SWS,4)}, 0 offen sc1"
if VP:
    S.fill[78] += lines(f"s_lshl_b32 {s(sT0)}, {s(sG)}, 8\ns_add_u32 {s(sT0)}, {s(sT0)}, {WS_KVF}\nv_and_b32 {v(VPA_)}, 3, {v(vL)}\nv_lshl_add_u32 {v(VPA_)}, {v(VPA_)}, 2, {s(sFL)}\nv_lshl_add_u32 {v(VPV)}, {v(vL)}, 2, {s(sT0)}\nv_cmp_gt_u32 vcc, 16, {v(vL)}\ns_nop 1\nv_cndmask_b32 {v(VPA_)}, {v(VPA_)}, {v(VPV)}, vcc")
    S.post[int(OPT.get("vpg", 86))] += [vpl]
    def vcheck0():
        P(f"v_mov_b32 {v(VPV)}, {v(VPV)}")
        spin("L_vp", vpl, f"v_cmp_gt_u32 vcc, 1, {v(VPV)}")
    S.blk[("e", 93)] = vcheck0
else:
    ab_ = int(OPT.get('ab', 86)); S.post[95] += [spoll(1)]
    if ASY:
        def hibar():
            P(f"s_cmp_lt_u32 {s(sW)}, 4"); P("s_cbranch_scc1 L_nhb")
            P.cond_begin("hi4"); P("s_barrier"); P.cond_end(); P("L_nhb:")
        S.blk[ab_] = hibar; S.blk[94] = lambda: (kvreq(), kvpoll())
    else: S.blk[ab_] = lambda: (kvreq(), kvpoll())
S.post[94] += [f"ds_read_b128 {v(CSR,4)}, {v(VCSA)} offset:2048"]
S.post[80] += phi_load(1, T + 8)[:2]; S.post[82] += phi_load(1, T + 8)[2:]
PQ = WF
def Gq(r): return XF + 8 * r
Z = XF + 80; GA = XF + 64
VG, VGZ = S1, S2
gsetup = lines(f"s_mul_i32 {s(sK)}, {s(sG)}, {16*KVP_SZ}\ns_lshr_b32 {s(sT0)}, {s(sW)}, 1\ns_mul_i32 {s(sT0)}, {s(sT0)}, 1152\ns_add_u32 {s(sK)}, {s(sK)}, {s(sT0)}\ns_add_u32 {s(sK)}, {s(sK)}, {WS_KVP}")
gsetup += lines(f"v_and_b32 {v(VGZ)}, 15, {v(vL)}\nv_mul_u32_u24 {v(VGZ)}, {KVP_SZ}, {v(VGZ)}\nv_and_b32 {v(VG)}, 16, {v(vL)}\nv_add_u32 {v(VGZ)}, {v(VGZ)}, {v(VG)}\ns_lshl_b32 {s(sT0)}, {s(sSH)}, 4\nv_add_u32 {v(VGZ)}, {s(sT0)}, {v(VGZ)}")
gsetup += lines(f"v_lshrrev_b32 {v(VG)}, 5, {v(vL)}\nv_mul_u32_u24 {v(VG)}, {8*KVP_SZ - 512}, {v(VG)}\nv_add_u32 {v(VG)}, {v(VG)}, {v(VL16)}\ns_lshl_b32 {s(sT0)}, {s(sSH)}, 8\nv_add_u32 {v(VG)}, {s(sT0)}, {v(VG)}")
gl = [[f"buffer_load_dwordx4 {v(Z,4)}, {v(VGZ)}, {s(SWS,4)}, {s(sK)} offen offset:1024 sc1"]]
for r in range(8):
    gl.append(lines(f"s_add_u32 {s(sD1)}, {s(sRT)}, {r}\ns_and_b32 {s(sD1)}, {s(sD1)}, 7\ns_mul_i32 {s(sD1)}, {s(sD1)}, {KVP_SZ}\ns_add_u32 {s(sD1)}, {s(sD1)}, {s(sK)}") +
              [f"buffer_load_dwordx4 {v(Gq(r),4)}, {v(VG)}, {s(SWS,4)}, {s(sD1)} offen sc1"])
S.fill[76] += gsetup
g0_ = int(OPT.get("gg", 94))
gl_in = min(9, 96 - g0_)
S.dmas(gl[:gl_in], g0_)
run_sched(S, [ACC0, ACC1, ACC2])
stamp("sub2")
P.add(aug(ACC2, CSR, None))
for g_ in gl[gl_in:gl_in+2]: P.add(g_)
for i in range(8): P(f"v_cvt_pk_bf16_f32 {v(T+i)}, {v(ACC2+2*i)}, {v(ACC2+2*i+1)}")
P(mfma(ACC1, AX, T, "0"))
P(mfma(ACC2, T + 8, T + 4, "0"))
stamp("phi")
n_tail0 = len(P.ins)
NBT = int(OPT.get('nbt', 3))
bd = sum([b_dma(kk) for kk in (5, 6, 7)[:NBT]], []) + [[]] * (6 - 2 * NBT)
TO = OPT.get("to", "a")
sm1 = softmax(ACC1, PQ, LS, True); sm2 = softmax(ACC2, PQ + 8, LS, True)
if TO == "a":
    P.add(interleave(gl[gl_in+2:], sm1[:30]) + interleave(bd[:2], sm1[30:])); bd = bd[2:]
else:
    P.add(interleave(gl[gl_in+2:], sm1[:30]) + interleave(bd[:4], sm1[30:] + sm2[:33])); bd = bd[4:]; sm2 = sm2[33:]
if not VP: sneed(1, 1)
P(spoll(0))
stamp("qsm")
validate([Z + i for i in range(4)] + [Gq(r) + i for r in range(8) for i in range(4)], T + 4, sum(gl, []))
stamp("kvseen")
aj = sum([a_jobs(kk) for kk in range(8)], [])
n_o0 = len(P.ins)
P(f"v_lshrrev_b32 {v(T+1)}, 5, {v(vL)}")
P(f"v_bfe_u32 {v(T+2)}, {v(vL)}, 4, 1\nv_lshlrev_b32 {v(T+2)}, 9, {v(T+2)}\nv_lshl_add_u32 {v(T+2)}, {v(T+1)}, 3, {v(T+2)}")
P(f"s_lshl_b32 {s(sT0)}, {s(sW)}, 10\ns_add_u32 {s(sT0)}, {s(sT0)}, {L_KVB}\nv_add_u32 {v(T+2)}, {s(sT0)}, {v(T+2)}")
P(f"v_and_b32 {v(T+3)}, 15, {v(vL)}\nv_lshl_add_u32 {v(T+3)}, {v(T+3)}, 4, {v(T+2)}")
P(f"v_cmp_gt_u32 vcc, 32, {v(vL)}\ns_mov_b32 {s(sT0)}, 0x3f80\ns_mov_b32 {s(sT1)}, 0x3f800000")
P(f"v_cndmask_b32 {v(Z)}, {v(Z+2)}, {v(Z)}, vcc\nv_cndmask_b32 {v(Z+1)}, {v(Z+3)}, {v(Z+1)}, vcc")
P(f"v_lshlrev_b32 {v(Z+8)}, 16, {v(Z)}\nv_and_b32 {v(Z+9)}, 0xffff0000, {v(Z)}\nv_lshlrev_b32 {v(Z+10)}, 16, {v(Z+1)}\nv_and_b32 {v(Z+11)}, 0xffff0000, {v(Z+1)}")
for ror in (8, 4, 2, 1):
    for i in range(4): P(f"v_add_f32_dpp {v(Z+8+i)}, {v(Z+8+i)}, {v(Z+8+i)} row_ror:{ror} row_mask:0xf bank_mask:0xf")
P(f"v_cvt_pk_bf16_f32 {v(Z)}, {v(Z+8)}, {v(Z+9)}\nv_cvt_pk_bf16_f32 {v(Z+1)}, {v(Z+10)}, {v(Z+11)}")
P(f"ds_write_b64 {v(T+2)}, {v(Z,2)} offset:256")
def ga(i): return GA + (i & 3) + 8 * (i >> 2)
for i in range(4):
    P(f"v_lshlrev_b32 {v(ga(2*i))}, 16, {v(Gq(0)+i)}\nv_and_b32 {v(ga(2*i+1))}, 0xffff0000, {v(Gq(0)+i)}")
for r in range(1, 8):
    for i in range(4):
        P(f"v_dot2c_f32_bf16 {v(ga(2*i))}, {s(sT0)}, {v(Gq(r)+i)}\nv_dot2c_f32_bf16 {v(ga(2*i+1))}, {s(sT1)}, {v(Gq(r)+i)}")
for i in range(4): P(f"v_permlane32_swap_b32 {v(ga(i))}, {v(ga(i+4))}")
for i in range(4): P(f"v_add_f32 {v(ga(i))}, {v(ga(i))}, {v(ga(i+4))}")
P(f"v_cvt_pk_bf16_f32 {v(GA)}, {v(GA)}, {v(GA+1)}\nv_cvt_pk_bf16_f32 {v(GA+1)}, {v(GA+2)}, {v(GA+3)}")
P(f"ds_write_b64 {v(T+3)}, {v(GA,2)}")
stamp("gsum")
P(f"v_and_b32 {v(T)}, 31, {v(vL)}\nv_min_u32 {v(T)}, 16, {v(T)}\nv_and_b32 {v(T+1)}, 32, {v(vL)}\nv_add_u32 {v(T)}, {v(T)}, {v(T+1)}\nv_lshlrev_b32 {v(T)}, 4, {v(T)}")
P(f"s_lshl_b32 {s(sT0)}, {s(sHALF)}, 12\ns_add_u32 {s(sT0)}, {s(sT0)}, {L_KVB}\nv_add_u32 {v(T)}, {s(sT0)}, {v(T)}")
body = P.ins[n_o0:]; del P.ins[n_o0:]
for i, g_ in enumerate(bd):
    P.add(g_); P.ins += body[len(body)*i//len(bd): len(body)*(i+1)//len(bd)]
stamp("pre1")
sneed(1, 0)
stamp("post1")
if NP: aj = aj[:4]
P.add(interleave(aj, sm2))
stamp("sm2")
P(f".waitvm b{4+NBT} lgkm0")
if OPT.get("tp"):
    per = int(OPT["tp"]); body = P.ins[n_tail0:]; del P.ins[n_tail0:]; c = 0; lv = 3
    P("s_setprio 3")
    for I in body:
        P.ins.append(I)
        if I.kind == "valu" and not I.cond and not I.op.startswith("v_cmp"):
            c += 1
            if c % per == 0: lv = (lv - 1) & 3; P(f"s_setprio {lv}")
stamp("ob0")
P("s_barrier")
stamp("ob1")
for i in range(4): P(f"ds_read_b128 {v(Gq(i),4)}, {v(T)} offset:{1024*i}")
P(mfma(ACC0, Gq(0), PQ, "0")); P(mfma(ACC1, Gq(2), PQ + 8, "0"))
P(mfma(ACC0, Gq(1), PQ + 4)); P(mfma(ACC1, Gq(3), PQ + 12))
if NP: P(spoll(0))
EA = int(OPT.get("ea", 0))
if EA and not NP:
    for kk in range(8, 8 + EA): P.add(a_jobs(kk)[0])
for hl, acc in enumerate((ACC0, ACC1)):
    P(f"v_add_f32 {v(acc+8)}, {f2u(1e-6):#x}, {v(acc+8)}\nv_rcp_f32 {v(acc+8)}, {v(acc+8)}")
    for i in range(0, 8, 2): P(f"v_pk_mul_f32 {v(acc+i,2)}, {v(acc+i,2)}, {v(acc+8,2)} op_sel_hi:[1,0]")
    for i in range(4): P(f"v_cvt_pk_bf16_f32 {v(T+4*hl+i)}, {v(acc+2*i)}, {v(acc+2*i+1)}")
    P(f"buffer_store_dwordx4 {v(T+4*hl,4)}, {v(VL16)}, {s(SWS,4)}, {s(sOS)} offen offset:{1024*hl} sc1 ; ost")
stamp("p1end")
if V3: phase2_v3((8,), (), False)
elif V2: phase2_v2(tuple(range(5 + NBT, 9)), False)
else: phase2(("B6", "B7"), "A4 A5 A6 B8 A7 B9 A8 B10 A9 B11 A10 B12 A11 B13 A12 B14 A13 B15 B16 B17 A14 A15 A16 A17")

P("L_ffn:")
P(".reset")
setup(True)
KAREA[:] = [RC, RA+2*Q, RA+3*Q, RB, RB+Q, RB+2*Q, RA, RA+Q, RB+3*Q]
MC = ACC2; CSF = ACC2 + 4
S = Sched(112)
common_sched(S, True, None, MC)
S.post[30] += [f"ds_read_b128 {v(CSF,4)}, {v(VCSA)}"]
if not NP: S.post[40] += [f"s_add_u32 {s(sT2)}, {s(sH0)}, 4096", f"s_add_u32 {s(sK)}, {s(sH0)}, 8192"]
pzs = [[f"buffer_store_dwordx4 {v(PZ,4)}, {v(VL16)}, {s(SWS,4)}, {s(so)} offen offset:{off} sc1 ; tag=h1"]
       for so, off in ((sT2, 0), (sT2, 1024), (sK, 0), (sK, 1024), (sH3, 0))[:0 if NP else 2 if OFFL else 5]]
for g_, G in zip(pzs, [int(x) for x in OPT.get("pz", "50,56,59,67,70").split(",")]): S.post[G] += g_
S.post[31] += stamp_i("pass1")
fill = stats_final() + aug(ACC0, CSF, BIAS)
fill += [f"v_mul_f32 {v(K1)}, {f2u(GC1):#x}, {v(RSTD)}", f"v_mul_f32 {v(K2)}, {v(RSTD)}, {v(RSTD)}",
         f"v_mul_f32 {v(K2)}, {v(K2)}, {v(RSTD)}", f"v_mul_f32 {v(K2)}, {f2u(GC2):#x}, {v(K2)}"]
S.spread(fill, 32, 39)
S.spread(gelu(ACC0, 16) + hstore(sH0, 2, "h1") + [f"s_add_u32 {s(sH0)}, {s(sH0)}, 4096"], 39, 64)
S.post[62] += [f"ds_read_b128 {v(CSF,4)}, {v(VCSA)} offset:1024"]
S.post[63] += stamp_i("sub1")
S.spread(aug(ACC1, CSF, BIAS + 1), 64, 66)
S.spread(gelu(ACC1, 16) + hstore(sH0, 2, "h2") + [f"s_add_u32 {s(sH0)}, {s(sH0)}, 4096"], 67, 96)
w3 = sum([w3quarter(q, 3584) for q in range(4)], [])
for g_, G in zip(w3 + b_dma(0), [int(x) for x in OPT.get("w3", "64,68,72,76,74,75" if OPT.get("few", "1") == "1" else "48,54,60,72,75,76").split(",")]): S.dma[G] += g_
S.dmas(b_dma(1), 78, 2); S.dmas(b_dma(2), 82, 2); S.dmas(b_dma(3), 86, 2); S.dmas(b_dma(4), 90, 2); S.dmas(b_dma(5), 98, 2)
S.pre[94] += [".waitvm w3 lgkm0", "s_barrier"]
S.post[94] += [f"ds_read_b128 {v(CSF,4)}, {v(VCSA)} offset:2048"]
S.post[95] += stamp_i("sub2")
if V2 and PX1:
    for j, G in zip((1, 2, 3), [int(x) for x in OPT.get("pxg", "91,93,102").split(",")]): S.post[G] += xoff(j, True) + [f"buffer_store_dwordx4 {v(PZ,4)}, {v(VL16)}, {s(SWS,4)}, {s(sT0)} offen sc1 ; tag=px"]
S.fill[96] += aug(ACC0, CSF, BIAS + 2)
if OFFL: S.post[106] += [f"s_sub_u32 {s(sT2)}, {s(sFO)}, 1024", f"s_buffer_load_dword {s(sK)}, {s(SWS,4)}, {s(sT2)} glc"]
S.spread(gelu(ACC0, 16), 98, 112)
if V3: S.post[97] += va3_init
aj = sum([a_jobs(kk) for kk in range(4 if NP else 8 if V2 and not V3 else 6)], []) + [[]] * 8
S.dmas(aj[:6], 106); aj = aj[2:]
for i in range(0, 16, 2): S.post[96 + i] += [m16(MC, SEL, WF + 4 * (i & 3), "0" if i == 0 else None)]
run_sched(S, [ACC0, ACC1, ACC0, ACC1])
t = T + 16
P(f"v_and_b32 {v(t)}, 31, {v(vL)}\ns_lshl_b32 {s(sT0)}, {s(sHALF)}, 4\nv_xor_b32 {v(t)}, {s(sT0)}, {v(t)}\nv_lshlrev_b32 {v(t)}, 4, {v(t)}\nv_add_u32 {v(t)}, {L_CS+3072}, {v(t)}")
P(f"v_add_u32 {v(t+1)}, {s(sW34)}, {v(VCSA)}")
P(f"ds_write_b32 {v(t+1)}, {v(MC)} offset:3072")
P.add(aj[4])
XO = 4096 if V2 else 1024
P(f"s_add_u32 {s(sT1)}, {s(sMB if V2 else sM0x)}, {KAREA[8]}\ns_xor_b32 {s(sT0)}, {s(sT1)}, 8192\nv_add_u32 {v(t+1)}, {s(sT0)}, {v(VL16)}\nv_add_u32 {v(AB)}, {s(sT1)}, {v(VL16)}")
P(f"ds_write_b128 {v(t+1)}, {v(ACC1+8,4)}\nds_write_b128 {v(t+1)}, {v(ACC1+12,4)} offset:{XO}")
P(".waitvm b5 lgkm0")
P("s_barrier")
stamp("sub3")
P(f"ds_read_b128 {v(CSF,4)}, {v(t)}")
P(f"ds_read_b128 {v(ACC0,4)}, {v(AB)}\nds_read_b128 {v(ACC0+4,4)}, {v(AB)} offset:{XO}")
P.add(aj[5])
P.add(aug(ACC1, CSF, BIAS + 3))
P.add(aj[6] + aj[7])
if NP: P.add(flag(2, "h2"))
for i in range(0, 8, 2): P(f"v_pk_add_f32 {v(ACC1+i,2)}, {v(ACC1+i,2)}, {v(ACC0+i,2)}")
stamp("x7")
gt = gelu(ACC1, 8, True, out=BIAS); h3 = hstore(sH0, 2, "h3")
sneed(1, 1)
if OFFL: own_check()
P.add(aj[8] + gt[:10] + aj[9] + gt[10:20] + [h3[0]] + gt[20:30] + [h3[1]] + gt[30:] + hstore(sH3, 1, "h4", BIAS))
stamp("p1end")
if V3: phase2_v3((6, 7, 8), (6, 7), True)
elif V2: phase2_v2((6, 7, 8), True)
else: phase2(("A4", "A5"), "B6 A6 B7 A7 B8 B9 A8 B10 A9 B11 A10 B12 A11 B13 A12 B14 A13 B15 B16 B17 A14 A15 A16 A17", True)

P("L_end:")
P("s_endpgm")

ins = P.ins
for I in ins:
    if "; nodef" in I.text: I.defs = []
if OPT.get("nodma"): ins = [I for I in ins if I.kind != "dma"]
if OPT.get("notr"): ins = [I for I in ins if not I.op.startswith("ds_read_b64_tr")]
if OPT.get("nofmac"): ins = [I for I in ins if not (I.op.startswith("v_fmac") or (I.op == "v_and_b32" and "0xffff0000" in I.text) or (I.op == "v_lshlrev_b32" and I.ops[1] == "16"))]
if OPT.get("nom16"): ins = [I for I in ins if "16x16x32" not in I.op]
if OPT.get("notrans"): ins = [I for I in ins if not I.op.startswith(("v_exp", "v_rcp"))]
if OPT.get("novalu"): ins = [I for I in ins if not I.op.startswith(("v_exp", "v_rcp", "v_mul_f32", "v_fma_f32", "v_cvt_pk", "v_max3", "v_add_f32"))]
if OPT.get("nopk"): ins = [I for I in ins if not I.op.startswith(("v_pk_", "v_dot2c"))]
if OPT.get("noval"): ins = [I for I in ins if not (I.op == "s_cbranch_vccnz" and "_slow" in I.text)]
if OPT.get("noa"): ins = [I for I in ins if not (I.kind == "vld" and "x4" in I.op and "sc1" in I.mods)]
if OPT.get("nob"): ins = [I for I in ins if not (I.kind == "dma" and (s(SW2,4) in I.text or s(SWO,4) in I.text))]
if OPT.get("anosc"):
    for I in ins:
        if I.kind == "vld" and "x4" in I.op: I.text = I.text.replace(" sc1", " " + OPT["anosc"].replace("0", ""))
if OPT.get("nopz"): ins = [I for I in ins if not (I.kind == "vst" and "x4" in I.op and (v(PZ,4) in I.text or v(AAUG,4) in I.text) and s(SWS,4) in I.text)]
if OPT.get("plain"):
    for I in ins:
        if I.kind == "vst" and "x4" in I.op and s(SWS,4) in I.text and ("tag=h" in I.text or "tag=po" in I.text or "; ost" in I.text): I.text = I.text.replace(" sc1", "")
if OPT.get("nohs"):
    ins = [I for I in ins if not (I.op.startswith("s_buffer_load") or I.text.startswith((".waitvm h", ".waitvm po", ".waitvm zf")) or (I.op == "s_branch" and ("L_sp" in I.text or "L_ncs" in I.text or "L_oc" in I.text) and "spkv1" not in I.text))]
    for I in ins:
        if I.text.startswith(".waitvm pz"): I.text = ".waitvm none lgkm0"
if OPT.get("nost"): ins = [I for I in ins if not (I.kind == "vst" and "x4" in I.op and "tag=h" in I.text)]
if OPT.get("nomfma"): ins = [I for I in ins if I.kind != "mfma"]
if STAMP:
    for I in ins:
        if I.op in ("s_memrealtime", "s_memtime"): I.kind = "salu"
if OPT.get("nopx"): ins = [I for I in ins if not (I.kind == "vst" and "tag=px" in I.text)]
if OPT.get("nopo"): ins = [I for I in ins if not (I.kind == "vst" and "x4" in I.op and I.ops[0] == v(AAUG,4) and s(SWS,4) in I.text)]
ins = auto_wait(ins)
st = []
ins = hazards(ins, st)
hdr = open("parallel_sum__linear_kernel_hedgehog__dense_activation_gelu__prompt.s.ref").read().split("; Override")[0]
out = hdr + f"; @launch grid=(256,1,1) block=(512,1,1) lds={LDS_SIZE}\n"
out += f'.amdgcn_target "amdgcn-amd-amdhsa--gfx950"\n.text\n.globl {NAME}\n.p2align 8\n.type {NAME},@function\n{NAME}:\n'
out += render(ins)
out += f""".section .rodata,"a"
.p2align 6
.amdhsa_kernel {NAME}
  .amdhsa_next_free_vgpr 256
  .amdhsa_next_free_sgpr 102
  .amdhsa_accum_offset 256
  .amdhsa_group_segment_fixed_size 0
  .amdhsa_kernarg_size 96
  .amdhsa_user_sgpr_count 2
  .amdhsa_user_sgpr_kernarg_segment_ptr 1
  .amdhsa_system_sgpr_workgroup_id_x 1
.end_amdhsa_kernel
"""
open(sys.argv[1], "w").write(out)
print(f"instrs={sum(1 for I in ins if I.kind not in ('label','dir'))} nop-sites={len(st)} nop-states={sum(n for n,_ in st)}", file=sys.stderr)
if OPT.get("nops"):
    for n, tx in st: print(n, tx, file=sys.stderr)
```

```python
import sys, math, struct
from ir import *

NAME = "parallel_sum__linear_kernel_hedgehog__dense_activation_gelu__prompt_kernel"
OPT = dict(a.split("=") for a in sys.argv[2:] if "=" in a)
STAMP = int(OPT.get("stamp", 0))

def f2u(x): return struct.unpack("<I", struct.pack("<f", x))[0]
LOG2E = 1.4426950408889634
GC1 = -2.0 * LOG2E * math.sqrt(2.0 / math.pi)
GC2 = GC1 * 0.044715

HF_RB = 144 * 1024
WS_KVP = 0xA00000
KVP_SZ = 4608
WS_FLG = 0xC00000
WS_KVF = 0xC08000
WS_STAMP = 0xD00000
WS_X = 0x1000000
WS_SIZE = 0x1800000
NP = OPT.get('np', '1') == '1'
if NP: OPT['r8'] = '0'
V3 = OPT.get('p2', '2') == '3'
V2 = OPT.get('p2', '2') in '23'
RA, RB, RC = 0, 65536, 131072
L_KVB = 147456
L_CS = 155648
L_ST = L_CS + 4096
L_WPHI = L_CS + 6144
LDS_SIZE = 163840
SPIN_MAX = 1 << 15

sW, sRT, sG, sM, sN = 3, 4, 5, 6, 7
SX, SW2, SWS, SWT, SAUX, SDBG, SWO, SOUT = 8, 12, 16, 20, 24, 28, 36, 40
sXo, sWo, sROT, sC1 = 32, 33, 34, 35
SB2 = 92
sFL, sOo, sM0x, sT0, sT1, sSIG, sONE, sFO, sHALF, sHo, sWq, sW3, sT2, sCNT, sW34, sT3 = range(44, 60)
sEX = 60
sH0, sH3, sM4, sK = 62, 63, 64, 65
sST = 66
sB2o, sBOo = 90, 91
sA0, sA1, sR4, sSH, sD0, sD1 = range(96, 102)
sOK = sSIG
sQ = [sXo, sWo, sROT, sC1]
sPL = 28
VCSA = 0; vL = 1
AX = 2; AW = 6; AB = 10; VZ, VFV = 12, 13
VX0, VX1, VW, VB, VW3 = 14, 15, 16, 17, 18
VSTA, S1, S2, CS0 = 19, 20, 21, 22
VW0 = 22
RSTD, STD, K1, K2, VL16 = 23, 24, 25, 26, 27
BAUG, AAUG, SEL, BIAS = 28, 32, 36, 40
T = 44
WF = 64
ACC0, ACC1, ACC2 = 80, 96, 112
XF = 128
VTD = int(OPT.get('vtd', 15))
PZ = ACC2 + 8

P = Prog()
STI = dict(start=0, kernarg=1, it0=2, pass1=3, sub1=4, sub2=5, qsm=6, sub3=6, kvseen=7, x7=7, p1end=8, hseen=9, p2mm=10, end=11)
if OPT.get("sp") == "p2": STI = dict(start=0, p1end=1, k1=2, k3=3, k5=4, k7=5, k9=6, k11=7, k13=8, k15=9, p2mm=10, end=11)
if OPT.get("sp") == "att": STI = dict(start=0, sub1=1, kv0=2, kv1=3, kv2=4, sub2=5, qsm=6, kvseen=7, sm2=8, gsum=9, p1end=10, end=11)
if OPT.get("sp", "").startswith("l:"): STI = {n: i for i, n in enumerate(["start"] + OPT["sp"][2:].split(","))}
def stamp_i(name):
    if not STAMP or name not in STI: return []
    i = STI[name]
    return [f"{'s_memrealtime' if STAMP == 1 else 's_memtime'} {s(sST + 2*i, 2)} ; stamp {i} {name}"]
def stamp(name): P.add(stamp_i(name))

def mfma(d, a, b, c=None):
    return f"v_mfma_f32_32x32x16_bf16 {v(d,16)}, {v(a,4)}, {v(b,4)}, {v(d,16) if c is None else c}"
def m16(d, a, b, c=None):
    return f"v_mfma_f32_16x16x32_bf16 {v(d,4)}, {v(a,4)}, {v(b,4)}, {v(d,4) if c is None else c}"
def srd(base, nbytes):
    P(f"s_mov_b32 {s(base+2)}, {nbytes}\ns_mov_b32 {s(base+3)}, 0x20000")
def lines(t): return [l for l in t.split("\n") if l.strip()]

P("s_cmp_ge_u32 s2, 256")
P("s_cbranch_scc1 L_end")
stamp("start")
if OPT.get("exit0"): P("s_endpgm")
if OPT.get("cpf", "1") == "3":
    P(f"s_getpc_b64 {s(sEX,2)}")
    P("L_pc0:")
    P(f"v_subrev_u32 v3, 320, v0\nv_cmp_gt_u32 vcc, 16, v3\ns_lshr_b32 {s(sT0)}, s2, 3\ns_lshl_b32 {s(sT0)}, {s(sT0)}, 11")
    P("s_cbranch_vccz L_ncp0")
    P.cond_begin("cp0")
    P(f"v_and_b32 v3, 15, v3\nv_lshlrev_b32 v3, 7, v3\nv_add_u32 v3, {s(sT0)}, v3\nv_min_u32 v3, L_end-L_pc0, v3")
    P(f"global_load_dword v253, v3, {s(sEX,2)}")
    P.cond_end()
    P("L_ncp0:")
if OPT.get("cpf", "1") == "2":
    P(f"s_getpc_b64 {s(sEX,2)}")
    P("L_pc0:")
    P(f"v_lshlrev_b32 v3, 7, v0")
    P(f"v_min_u32 v3, L_end-L_pc0, v3")
    P(f"global_load_dword v253, v3, {s(sEX,2)}")
P(f"s_load_dwordx2 {s(SX,2)}, s[0:1], 0")
P(f"s_load_dwordx2 {s(SWT,2)}, s[0:1], 8")
P(f"s_load_dwordx2 {s(sA0,2)}, s[0:1], 40")
P(f"v_lshrrev_b32 v2, 6, v0")
P(f"v_and_b32 {v(vL)}, 63, v0")
P(f"s_lshr_b32 {s(sT1)}, s2, 3")
P(f"v_readfirstlane_b32 {s(sW)}, v2")
OWN = False
AF_ = OPT.get('af', '0') == '1'
P(f"s_and_b32 {s(sRT)}, s2, 4\ns_lshl_b32 {s(sRT)}, {s(sRT)}, 1\ns_and_b32 {s(sT2)}, {s(sT1)}, 7\ns_add_u32 {s(sRT)}, {s(sRT)}, {s(sT2)}")
P(f"v_lshrrev_b32 v2, 3, {v(vL)}\nv_and_b32 v3, 7, {v(vL)}\nv_lshrrev_b32 v4, 4, {v(vL)}")
P(f"s_lshl_b32 {s(sXo)}, {s(sRT)}, 17\ns_lshl_b32 {s(sT2)}, {s(sW)}, 14\ns_add_u32 {s(sXo)}, {s(sXo)}, {s(sT2)}")
P(f"v_xor_b32 v5, v3, v4\nv_lshl_add_u32 v5, v5, 4, {s(sXo)}\nv_lshl_add_u32 {v(VX0)}, v2, 10, v5")
P(f"s_lshr_b32 {s(sN)}, {s(sT1)}, 3\ns_lshl_b32 {s(sT2)}, {s(sN)}, 1\ns_add_u32 {s(sROT)}, {s(sRT)}, {s(sT2)}\ns_and_b32 {s(sROT)}, {s(sROT)}, {0 if OPT.get('norot') else OPT.get('rm', 7)}")
P(f"v_xor_b32 v5, 64, {v(VX0)}\nv_add_u32 {v(VX1)}, {8192-1024}, v5")
srd(SX, 2097152)
P(f"s_lshl_b32 {s(sM0x)}, {s(sW)}, 11\ns_lshl_b32 {s(sK)}, {s(sROT)}, 7\ns_mov_b32 m0, {s(sM0x)}")
P(f"v_and_b32 v4, 1, v4\nv_lshlrev_b32 v4, 2, v4\nv_xor_b32 v4, v3, v4\nv_lshlrev_b32 v4, 4, v4")
P(f"s_and_b32 {s(sM)}, s2, 3\ns_lshl_b32 {s(sG)}, {s(sM)}, 1\n" + (f"s_and_b32 {s(sT2)}, {s(sN)}, 1" if AF_ else f"s_lshr_b32 {s(sT2)}, {s(sT1)}, 4") + f"\ns_add_u32 {s(sG)}, {s(sG)}, {s(sT2)}")
P(f"s_lshr_b32 {s(sD0)}, {s(sM0x)}, 1")
P("s_waitcnt lgkmcnt(0)")
stamp("kernarg")
P(f"buffer_load_dwordx4 {v(VX0)}, {s(SX,4)}, {s(sK)} offen lds")
P(f"buffer_load_dwordx4 {v(VX1)}, {s(SX,4)}, {s(sK)} offen offset:1024 lds")
P(f"s_load_dwordx2 {s(SWS,2)}, s[0:1], 88")
P(f"s_load_dwordx2 {s(SDBG,2)}, s[0:1], 80")
P(f"s_load_dwordx2 {s(SW2,2)}, s[0:1], 56")
P(f"s_load_dwordx2 {s(SWO,2)}, s[0:1], 24")
P(f"s_load_dwordx2 {s(SOUT,2)}, s[0:1], 72")
P(f"s_load_dwordx2 {s(SB2,2)}, s[0:1], 64")
assert V2
P(f"s_bitcmp1_b32 {s(sT1)}, {4 if AF_ else 3}")
P("s_cbranch_scc1 L_ffn")

def item1(it, pitch):
    q = it & 3
    return [[f"s_add_u32 m0, {s(sM0x)}, {RA+q*16384}", f"s_mul_i32 {s(sD1)}, {s(sK)}, {pitch//2}",
             f"buffer_load_dwordx4 {v(VX0)}, {s(SX,4)}, {s(sK)} offen lds"],
            [f"buffer_load_dwordx4 {v(VX1)}, {s(SX,4)}, {s(sK)} offen offset:1024 lds"],
            [f"s_add_u32 m0, {s(sD0)}, {RB+it*8192}", f"s_add_u32 {s(sK)}, {s(sK)}, 128",
             f"buffer_load_dwordx4 {v(VW0)}, {s(SWT,4)}, {s(sD1)} offen lds ; tag=it{it}",
             f"s_and_b32 {s(sK)}, {s(sK)}, 1023"]]
def wquarter(region, q, coloff, pitch, tag):
    return [[f"s_add_u32 m0, {s(sM0x)}, {region+q*16384}", f"s_add_u32 {s(sD1)}, {s(sQ[q])}, {coloff}",
             f"buffer_load_dwordx4 {v(VW)}, {s(SWT,4)}, {s(sD1)} offen lds"],
            [f"s_add_u32 {s(sD1)}, {s(sD1)}, {8*pitch-1024}",
             f"buffer_load_dwordx4 {v(VW)}, {s(SWT,4)}, {s(sD1)} offen offset:1024 lds ; tag={tag}"]]
def w3quarter(q, pitch):
    return [[f"s_lshr_b32 {s(sD1)}, {s(sM0x)}, 1", f"s_add_u32 m0, {s(sD1)}, {RA+q*8192}", "s_nop 0",
             f"buffer_load_dwordx4 {v(VW3)}, {s(SWT,4)}, {s(sQ[q])} offen lds ; tag=w3"]]

def spin(label, load, cmp):
    P(f"s_mov_b32 {s(sCNT)}, 0")
    P(f"{label}:")
    P(cmp)
    P(f"s_add_u32 {s(sCNT)}, {s(sCNT)}, 1")
    P(f"s_cbranch_vccz {label}_ok")
    P(f"s_cmp_gt_u32 {s(sCNT)}, {SPIN_MAX}")
    P(f"s_cbranch_scc1 {label}_ok")
    P("s_sleep 1")
    old = P._cond; P._cond = label
    P(load)
    P("s_waitcnt vmcnt(0)")
    P._cond = old
    P(f"s_branch {label}")
    P(f"{label}_ok:")

def gelu(acc, n, pk=False, t0=T, out=T):
    L = []
    for g4 in range(0, n, 4):
        t = t0 + 8 + (g4 & 4)
        a = [acc + g4 + i for i in range(4)]
        if pk:
            L += [f"v_pk_mul_f32 {v(t+i,2)}, {v(a[i],2)}, {v(a[i],2)}" for i in (0, 2)]
            L += [f"v_pk_fma_f32 {v(t+i,2)}, {v(t+i,2)}, {v(K2,2)}, {v(STD,2)} op_sel:[0,0,1] op_sel_hi:[1,0,1]" for i in (0, 2)]
            L += [f"v_pk_mul_f32 {v(t+i,2)}, {v(a[i],2)}, {v(t+i,2)}" for i in (0, 2)]
        else:
            L += [f"v_mul_f32 {v(t+i)}, {v(a[i])}, {v(a[i])}" for i in range(4)]
            L += [f"v_fma_f32 {v(t+i)}, {v(t+i)}, {v(K2)}, {v(K1)}" for i in range(4)]
            L += [f"v_mul_f32 {v(t+i)}, {v(a[i])}, {v(t+i)}" for i in range(4)]
        L += [f"v_exp_f32 {v(t+i)}, {v(t+i)}" for i in range(4)]
        if pk: L += [f"v_pk_fma_f32 {v(t+i,2)}, {v(t+i,2)}, {v(STD,2)}, {v(STD,2)} op_sel_hi:[1,0,0]" for i in (0, 2)]
        else: L += [f"v_fma_f32 {v(t+i)}, {v(t+i)}, {v(STD)}, {v(STD)}" for i in range(4)]
        L += [f"v_rcp_f32 {v(t+i)}, {v(t+i)}" for i in range(4)]
        if pk: L += [f"v_pk_mul_f32 {v(t+i,2)}, {v(a[i],2)}, {v(t+i,2)}" for i in (0, 2)]
        else: L += [f"v_mul_f32 {v(t+i)}, {v(a[i])}, {v(t+i)}" for i in range(4)]
        pr = out + (g4 >> 1)
        L += [f"v_cvt_pk_bf16_f32 {v(pr)}, {v(t)}, {v(t+1)}", f"v_cvt_pk_bf16_f32 {v(pr+1)}, {v(t+2)}, {v(t+3)}"]
    return L
def hstore(soff, n, tagn, src=T):
    return [f"buffer_store_dwordx4 {v(src+4*j,4)}, {v(VL16)}, {s(SWS,4)}, {s(soff)} offen offset:{1024*j} sc1 ; tag={tagn}" for j in range(n)]
assert K1 == STD + 1

def sum4(d, r):
    return [f"v_add_f32 {v(d)}, {v(r)}, {v(r+1)}", f"v_add_f32 {v(r+2)}, {v(r+2)}, {v(r+3)}", f"v_add_f32 {v(d)}, {v(d)}, {v(r+2)}"]

MS, U = T + 4, T + 16
CSR = T + 12
MC = AAUG

def stats_final():
    t = T + 16
    return [f"v_add_f32 {v(S1)}, {v(MS)}, {v(MS+2)}", f"v_add_f32 {v(S2)}, {v(MS+1)}, {v(MS+3)}",
          f"v_mul_f32 {v(S1)}, {f2u(-1.0/512):#x}, {v(S1)}",
          f"v_mul_f32 {v(t)}, {v(S1)}, {v(S1)}",
          f"v_fma_f32 {v(S2)}, {v(S2)}, {s(sT3)}, -{v(t)}",
          f"v_max_f32 {v(S2)}, 0, {v(S2)}",
          f"v_add_f32 {v(S2)}, {f2u(1e-5):#x}, {v(S2)}",
          f"v_rsq_f32 {v(RSTD)}, {v(S2)}",
          f"v_cvt_pk_bf16_f32 {v(t)}, {v(S1)}, {v(S1)}",
          f"v_mul_f32 {v(STD)}, {v(S2)}, {v(RSTD)}",
          f"v_and_b32 {v(t+1)}, 0xffff0000, {v(t)}",
          f"v_sub_f32 {v(t+1)}, {v(S1)}, {v(t+1)}",
          f"v_cvt_pk_bf16_f32 {v(BAUG)}, {v(S1)}, {v(t+1)}",
          f"v_cvt_pk_bf16_f32 {v(BAUG+1)}, {v(S1)}, {v(STD)}",
          f"v_and_b32 {v(t+1)}, 0xffff0000, {v(BAUG+1)}",
          f"v_sub_f32 {v(t+1)}, {v(STD)}, {v(t+1)}",
          f"v_cmp_gt_u32 vcc, 32, {v(vL)}",
          f"v_cvt_pk_bf16_f32 {v(BAUG+2)}, {v(t+1)}, 0",
          f"v_cndmask_b32 {v(BAUG)}, 0, {v(BAUG)}, vcc",
          f"v_cndmask_b32 {v(BAUG+1)}, 0, {v(BAUG+1)}, vcc",
          f"v_cndmask_b32 {v(BAUG+2)}, 0, {v(BAUG+2)}, vcc"]

def aug(acc, part, bias):
    t = T + 18; dst = AAUG
    L = sum4(CS0, part) + [f"v_cvt_pk_bf16_f32 {v(dst)}, {v(CS0)}, {v(CS0)}",
         f"v_and_b32 {v(t)}, 0xffff0000, {v(dst)}",
         f"v_sub_f32 {v(t)}, {v(CS0)}, {v(t)}"]
    if bias is None:
        L += [f"v_cvt_pk_bf16_f32 {v(dst+1)}, {v(t)}, 0"]
    else:
        L += [f"v_cvt_pk_bf16_f32 {v(t)}, {v(t)}, 0", f"v_mov_b32 {v(dst+2)}, {v(bias)}",
              f"v_lshl_or_b32 {v(dst+1)}, {v(bias)}, 16, {v(t)}"]
    return L + [mfma(acc, dst, BAUG)]

def flag(level, tag):
    return [f".waitvm {tag}", f"v_mov_b32 {v(VFV)}, {level}",
            f"buffer_store_dword {v(VFV)}, {v(VZ)}, {s(SWS,4)}, {s(sFO)} offen sc1"]

Q = 16384
KAREA = []
sSK = sM4 if V2 else sSH
sMB = sSIG
def rot_k(kk, dst):
    if kk < 8 and OPT.get("r8", "1") == "1": return [f"s_add_u32 {s(dst)}, {s(sR4)}, {kk}", f"s_and_b32 {s(dst)}, {s(dst)}, 7", f"s_add_u32 {s(dst)}, {s(dst)}, {s(sSK)}"]
    if kk < 12: return [f"s_add_u32 {s(dst)}, {s(sR4)}, {kk}", f"s_and_b32 {s(dst)}, {s(dst)}, 3", f"s_add_u32 {s(dst)}, {s(dst)}, {s(sSK)}"] + \
                       ([f"s_add_u32 {s(dst)}, {s(dst)}, {kk & ~3}"] if kk & ~3 else [])
    if kk < 14: return [f"s_mul_i32 {s(dst)}, {s(sSK)}, 6", f"s_sub_u32 {s(dst)}, {kk}, {s(dst)}"]
    return [f"s_add_u32 {s(dst)}, {s(sR4)}, {kk-14}", f"s_and_b32 {s(dst)}, {s(dst)}, 3"]
def rot_p(sg, dst, sh):
    add = lambda x: ([f"s_add_u32 {s(dst)}, {s(dst)}, {x}"] if x else [])
    shf = (lambda: add(sh)) if isinstance(sh, int) else (lambda: [f"s_add_u32 {s(dst)}, {s(dst)}, {s(sh[0])}"])
    if sg < 4: return [f"s_add_u32 {s(dst)}, {s(sR4)}, {sg}", f"s_and_b32 {s(dst)}, {s(dst)}, 3"] + shf()
    if sg < 6: return [f"s_add_u32 {s(dst)}, {s(sR4)}, {sg}", f"s_and_b32 {s(dst)}, {s(dst)}, 1", f"s_add_u32 {s(dst)}, {s(dst)}, 4"] + shf()
    if sg == 6: return [f"s_mov_b32 {s(dst)}, {6 - 6*sh}"] if isinstance(sh, int) else [f"s_mul_i32 {s(dst)}, {s(sh[0])}, 6", f"s_sub_u32 {s(dst)}, 6, {s(dst)}"]
    return [f"s_add_u32 {s(dst)}, {s(sR4)}, {sg}", f"s_and_b32 {s(dst)}, {s(dst)}, 1"]
def b_dma(kk):
    if V3:
        sr, so = (SW2, sB2o) if kk < 7 else (SWO, sBOo)
        return [rot_p(kk, sD0, [sHALF]) + [f"s_lshl_b32 {s(sD0)}, {s(sD0)}, 15", f"s_add_u32 m0, {s(sMB)}, {KAREA[kk]}", f"s_add_u32 {s(sD0)}, {s(sD0)}, {s(so)}",
                 f"buffer_load_dwordx4 {v(VB)}, {s(sr,4)}, {s(sD0)} offen lds"],
                [f"s_add_u32 m0, {s(sMB)}, {KAREA[kk] + 4096}", f"s_add_u32 {s(sD0)}, {s(sD0)}, 16384",
                 f"buffer_load_dwordx4 {v(VB)}, {s(sr,4)}, {s(sD0)} offen lds ; tag=b{kk}"]]
    if V2:
        G_ = []
        for pos in (2 * kk, 2 * kk + 1):
            sr, so = (SW2, sB2o) if pos < 14 else (SWO, sBOo)
            G_.append(rot_k(pos, sD0) + [f"s_lshl_b32 {s(sD0)}, {s(sD0)}, 14", f"s_add_u32 m0, {s(sMB)}, {KAREA[kk] + (pos & 1) * 4096}", f"s_add_u32 {s(sD0)}, {s(sD0)}, {s(so)}",
                      f"buffer_load_dwordx4 {v(VB)}, {s(sr,4)}, {s(sD0)} offen lds ; tag=b{kk}"])
        return G_
    slot = kk % 9
    m0 = f"s_add_u32 m0, {s(sM0x)}, {KAREA[slot]}"
    sr, so = (SW2, sB2o) if kk < 14 else (SWO, sBOo)
    return [rot_k(kk, sD0) + [f"s_lshl_b32 {s(sD0)}, {s(sD0)}, 14", m0, f"s_add_u32 {s(sD0)}, {s(sD0)}, {s(so)}",
             f"buffer_load_dwordx4 {v(VB)}, {s(sr,4)}, {s(sD0)} offen lds"],
            [f"s_add_u32 {s(sD0)}, {s(sD0)}, {8192 - 1024}",
             f"buffer_load_dwordx4 {v(VB)}, {s(sr,4)}, {s(sD0)} offen offset:1024 lds ; tag=b{kk}"]]

def setup(ffn):
    pitch = 3584 if ffn else 3072
    tp = "f" if ffn else "a"
    if ffn: P(f"s_mov_b64 {s(SWT,2)}, {s(sA0,2)}")
    P(f"s_load_dwordx2 {s(SAUX,2)}, s[0:1], {48 if ffn else 16}")
    srd(SWT, 1835008 if ffn else 1572864)
    P(f"v_mul_u32_u24 {v(VW)}, {pitch}, v2\nv_add_u32 {v(VW)}, {v(VW)}, v4")
    if ffn:
        P(f"s_mul_i32 {s(sT0)}, {s(sG)}, 448\ns_and_b32 {s(sT1)}, {s(sG)}, 1\ns_lshl_b32 {s(sT2)}, {s(sT1)}, 6\ns_add_u32 {s(sWq)}, {s(sT0)}, {s(sT2)}")
        P(f"s_mul_i32 {s(sWo)}, {s(sW)}, {8*pitch}\ns_add_u32 {s(sWo)}, {s(sWo)}, {s(sWq)}")
    else:
        P(f"s_lshl_b32 {s(sWq)}, {s(sG)}, 7")
        P(f"s_mul_i32 {s(sWo)}, {s(sW)}, {8*pitch}\ns_add_u32 {s(sWo)}, {s(sWo)}, {s(sWq)}\ns_add_u32 {s(sWo)}, {s(sWo)}, 1024")
    P(f"v_add_u32 {v(VW0)}, {s(sWo)}, {v(VW)}")
    if STAMP and "slow" in STI: P(f"s_mov_b32 {s(sST+2*STI['slow'])}, {s(sST)}")
    P(f"s_mul_i32 {s(sD1)}, {s(sK)}, {pitch//2}")
    P.add(item1(0, pitch)[2])
    P("s_waitcnt lgkmcnt(0)")
    srd(SWS, WS_SIZE); srd(SDBG, 256); srd(SW2, 1835008); srd(SWO, 524288); srd(SOUT, 2097152); srd(SB2, 1024); srd(SAUX, 3584 if ffn else 16384)
    P(f"v_lshlrev_b32 {v(VL16)}, 4, {v(vL)}")
    P(f"s_lshr_b32 {s(sHALF)}, {s(sW)}, 2")
    P(f"s_and_b32 {s(sW34)}, {s(sW)}, 3\ns_xor_b32 {s(sSIG)}, {s(sW34)}, {s(sHALF)}")
    if not ffn:
        for i in range(4): P(f"v_mov_b32 {v(T+i)}, 0")
        P(f"s_lshl_b32 {s(sT0)}, {s(sW)}, 8\ns_add_u32 {s(sT0)}, {s(sT0)}, s2\ns_sub_u32 {s(sT0)}, {s(sT0)}, 256\ns_cmp_lt_u32 {s(sT0)}, 8")
        P(f"s_cbranch_scc0 L_nzero")
        P.cond_begin("zw")
        P(f"s_lshl_b32 {s(sT0)}, s2, 12\ns_add_u32 {s(sT0)}, {s(sT0)}, {WS_FLG}")
        for i in range(4): P(f"buffer_store_dwordx4 {v(T,4)}, {v(VL16)}, {s(SWS,4)}, {s(sT0)} offen offset:{1024*i} sc1")
        P(f"s_lshl_b32 {s(sT0)}, s2, 8\ns_add_u32 {s(sT0)}, {s(sT0)}, {WS_KVF}\nv_lshlrev_b32 v3, 2, {v(vL)}")
        P(f"buffer_store_dword {v(T)}, v3, {s(SWS,4)}, {s(sT0)} offen sc1 ; tag=zf")
        P.cond_end()
        P(f"L_nzero:")
    if OPT.get("touch", "5") == "1":
        P(f"s_cmp_lt_u32 {s(sW)}, 6")
        P(f"s_cbranch_scc1 L_nt{tp}")
        P.cond_begin("w67")
        P(f"v_lshlrev_b32 v3, 7, {v(vL)}\ns_mul_i32 {s(sT0)}, s2, 7168\ns_lshl_b32 {s(sT1)}, s2, 11")
        P(f"s_cmp_eq_u32 {s(sW)}, 6\ns_cbranch_scc0 L_nta{tp}")
        P(f"buffer_load_dword v255, v3, {s(SW2,4)}, {s(sT0)} offen")
        P(f"s_branch L_nt{tp}")
        P(f"L_nta{tp}:")
        P(f"v_and_b32 v3, 2047, v3")
        P(f"buffer_load_dword v255, v3, {s(SWO,4)}, {s(sT1)} offen")
        P(f"buffer_load_dword v254, v3, {s(SB2,4)}, 0 offen")
        P.cond_end()
        P(f"L_nt{tp}:")
    def wtouch():
        P(f"s_sub_u32 {s(sT0)}, {s(sW)}, 2\ns_cmp_lt_u32 {s(sT0)}, {min(3 if ffn else 2, int(OPT.get('wtn', 2)))}")
        P(f"s_cbranch_scc0 L_nw{tp}")
        P.cond_begin("w234")
        P(f"v_mul_u32_u24 v3, {pitch}, {v(vL)}\ns_mul_i32 {s(sT1)}, {s(sROT)}, {64*pitch}\ns_add_u32 {s(sT1)}, {s(sT1)}, {s(sWq)}")
        if ffn:
            P(f"s_lshl_b32 {s(sT2)}, {s(sT0)}, 7\ns_add_u32 {s(sT1)}, {s(sT1)}, {s(sT2)}\ns_add_u32 {s(sT1)}, {s(sT1)}, 128")
            P(f"s_lshr_b32 {s(sT0)}, {s(sT0)}, 1\ns_and_b32 {s(sT0)}, {s(sT0)}, {s(sG)}\ns_mul_i32 {s(sT0)}, {s(sT0)}, 448\ns_sub_u32 {s(sT1)}, {s(sT1)}, {s(sT0)}")
        else:
            P(f"s_xor_b32 {s(sT0)}, {s(sT0)}, 1\ns_lshl_b32 {s(sT0)}, {s(sT0)}, 11\ns_add_u32 {s(sT1)}, {s(sT1)}, {s(sT0)}")
        if OPT.get("wt", "2") == "2": P(f"s_mov_b32 {s(sCNT)}, {s(sT1)}")
        else: P(f"buffer_load_dword v250, v3, {s(SWT,4)}, {s(sT1)} offen")
        P.cond_end()
        P(f"L_nw{tp}:")
    if OPT.get("wt", "2") == "2": P(f"s_mov_b32 {s(sCNT)}, 0x7f000000")
    if OPT.get("wt", "2") != "0": wtouch()
    if OPT.get("sw", "0") != "0":
        c1_, c2_ = (128, 256) if ffn else (1024, -1024)
        P(f"s_mul_i32 {s(sT0)}, {s(sROT)}, {64*pitch}\ns_add_u32 {s(sT0)}, {s(sT0)}, {s(sWo)}")
        for cc, n_ in ((c1_, 8), (c2_, int(OPT["sw"]) - 8)):
            if n_ <= 0: continue
            P(f"s_add_u32 {s(sT1)}, {s(sT0)}, {cc}")
            for j in range(n_): P(f"s_buffer_load_dword {s(sCNT)}, {s(SWT,4)}, {s(sT1)} offset:{j*pitch} ; nodef")
    if OPT.get("cpf", "1") == "1":
        P(f"s_cmp_eq_u32 {s(sW)}, 5")
        P(f"s_cbranch_scc0 L_ncp{tp}")
        P.cond_begin("w5")
        P(f"s_getpc_b64 {s(sEX,2)}")
        P(f"L_pc{tp}:")
        P(f"s_sub_u32 {s(sEX)}, {s(sEX)}, L_pc{tp}-{NAME}\ns_subb_u32 {s(sEX+1)}, {s(sEX+1)}, 0")
        P(f"s_lshr_b32 {s(sT0)}, s2, 3\ns_lshl_b32 {s(sT0)}, {s(sT0)}, 11\nv_and_b32 v3, 15, {v(vL)}\nv_lshlrev_b32 v3, 7, v3\nv_add_u32 v3, {s(sT0)}, v3")
        P(f"v_min_u32 v3, L_end-{NAME}, v3")
        P(f"global_load_dword v253, v3, {s(sEX,2)}")
        P.cond_end()
        P(f"L_ncp{tp}:")
    if OPT.get("pt", "0") == "1":
        P(f"s_cmp_eq_u32 {s(sW)}, 4")
        P(f"s_cbranch_scc0 L_npt{tp}")
        n0 = len(P.ins)
        P(f"v_lshlrev_b32 v3, 21, {v(vL)}")
        P(f"buffer_load_dword v252, v3, {s(SWS,4)}, 0 offen")
        for i_, sr_ in enumerate((SOUT, SW2, SWO, SB2)): P(f"buffer_load_dword v{248+i_}, v3, {s(sr_,4)}, 0 offen")
        for I in P.ins[n0:]: I.cond = "w4"
        P(f"L_npt{tp}:")
    def stouch():
        n0 = len(P.ins)
        P(f"s_lshl_b32 {s(sT0)}, s2, 3\ns_add_u32 {s(sT0)}, {s(sT0)}, {s(sW)}\ns_mul_i32 {s(sT1)}, {s(sT0)}, 768\ns_mul_i32 {s(sT0)}, {s(sT0)}, 896")
        for i in range(6): P(f"s_load_dword {s(sCNT)}, {s(sEX,2)}, {s(sT1)} offset:{128*i}")
        for i in range(7): P(f"s_load_dword {s(sCNT)}, {s(sA0,2)}, {s(sT0)} offset:{128*i}")
    if OPT.get("stouch", "0") == "1": stouch()
    late1 = OPT.get("late1", "0") == "1"
    if not late1:
        for g_ in item1(1, pitch): P.add(g_)
    P(f"s_lshl_b32 {s(sT0)}, {s(sRT)}, 4\ns_add_u32 {s(sT0)}, {s(sT0)}, {s(sG)}\ns_lshl_b32 {s(sT0)}, {s(sT0)}, 7")
    P(f"s_and_b32 {s(sT1)}, {s(sW)}, 2\ns_lshl_b32 {s(sT1)}, {s(sT1)}, 3\ns_add_u32 {s(sT0)}, {s(sT0)}, {s(sT1)}\ns_and_b32 {s(sT1)}, {s(sW)}, 1\ns_lshl_b32 {s(sT1)}, {s(sT1)}, 2\ns_add_u32 {s(sT0)}, {s(sT0)}, {s(sT1)}\ns_lshl_b32 {s(sT1)}, {s(sHALF)}, 3\ns_add_u32 {s(sT0)}, {s(sT0)}, {s(sT1)}")
    if V3: P(f"s_and_b32 {s(sT1)}, {s(sW)}, 2\ns_lshl_b32 {s(sT1)}, {s(sT1)}, 3\ns_add_u32 {s(sT0)}, {s(sT0)}, {s(sT1)}\ns_and_b32 {s(sT1)}, {s(sG)}, 1\ns_mul_i32 {s(sT1)}, {s(sT1)}, 112\ns_sub_u32 {s(sT0)}, {s(sT0)}, {s(sT1)}")
    P(f"s_add_u32 {s(sFO)}, {s(sT0)}, {WS_FLG + (1024 if ffn else 0)}")
    P(f"s_lshl_b32 {s(sT0)}, {s(sRT)}, 2\ns_add_u32 {s(sT0)}, {s(sT0)}, {s(sW34)}\ns_mul_i32 {s(sHo)}, {s(sT0)}, {HF_RB}")
    if ffn:
        P(f"v_and_b32 v5, 31, {v(vL)}\nv_lshlrev_b32 v5, 1, v5")
        P(f"s_lshl_b32 {s(sT0)}, {s(sHALF)}, 6\ns_add_u32 {s(sT0)}, {s(sT0)}, {s(sWq)}")
        for i in range(3): P(f"buffer_load_ushort {v(BIAS+i)}, v5, {s(SAUX,4)}, {s(sT0)} offen offset:{128*i}")
        P(f"s_lshl_b32 {s(sT0)}, {s(sT0)}, 5\ns_add_u32 {s(sH0)}, {s(sHo)}, {s(sT0)}")
        P(f"s_mul_i32 {s(sW3)}, {s(sG)}, 448\ns_add_u32 {s(sT0)}, {s(sW3)}, 384\ns_bitcmp1_b32 {s(sG)}, 0\ns_cselect_b32 {s(sW3)}, {s(sW3)}, {s(sT0)}")
        P(f"s_lshl_b32 {s(sT0)}, {s(sHALF)}, 5\nv_xor_b32 v5, {s(sT0)}, v5")
        P(f"buffer_load_ushort {v(BIAS+3)}, v5, {s(SAUX,4)}, {s(sW3)} offen")
        P(f"s_add_u32 {s(sT0)}, {s(sT0)}, {s(sW3)}\ns_lshl_b32 {s(sT0)}, {s(sT0)}, 5\ns_add_u32 {s(sH3)}, {s(sHo)}, {s(sT0)}")
        P(f"v_lshrrev_b32 v2, 2, {v(vL)}\nv_and_b32 v4, 3, {v(vL)}\nv_lshlrev_b32 v4, 4, v4\nv_mul_u32_u24 {v(VW3)}, {pitch}, v2\nv_add_u32 {v(VW3)}, {v(VW3)}, v4")
    else:
        P(f"s_cmp_lt_u32 {s(sW)}, 2")
        P(f"s_cbranch_scc0 L_nphi")
        P.cond_begin("w01")
        P(f"s_lshl_b32 {s(sT0)}, {s(sG)}, 11\ns_lshl_b32 {s(sT1)}, {s(sW)}, 10\ns_add_u32 {s(sT0)}, {s(sT0)}, {s(sT1)}\ns_add_u32 m0, {s(sT1)}, {L_WPHI}\ns_nop 0")
        P(f"buffer_load_dwordx4 {v(VL16)}, {s(SAUX,4)}, {s(sT0)} offen lds")
        P.cond_end()
        P("L_nphi:")
        P(f"s_mov_b64 {s(SAUX,2)}, {s(sA0,2)}\ns_mov_b32 {s(SAUX+2)}, 1835008")
    P(f"s_mul_i32 {s(sT0)}, {s(sW34)}, {16*pitch}\ns_add_u32 {s(sWq)}, {s(sWq)}, {s(sT0)}")
    P(f"v_add_u32 {v(VW)}, {s(sWq)}, {v(VW)}")
    if ffn: P(f"s_add_u32 {s(sW3)}, {s(sW3)}, {s(sT0)}\nv_add_u32 {v(VW3)}, {s(sW3)}, {v(VW3)}")
    P(f"s_add_u32 {s(sT0)}, {s(sROT)}, {s(sHALF)}")
    for q in range(4):
        P(f"s_add_u32 {s(sT1)}, {s(sT0)}, {2*q}\ns_and_b32 {s(sT1)}, {s(sT1)}, 7\ns_mul_i32 {s(sQ[q])}, {s(sT1)}, {64*pitch}")
    P(f"s_mov_b32 {s(sT3)}, {f2u(1.0/512):#x}\ns_mov_b32 {s(sONE)}, 0x3f803f80")
    P(f"v_bfe_u32 {v(T)}, {v(vL)}, 2, 2\nv_lshrrev_b32 {v(T+1)}, 5, {v(vL)}")
    P(f"v_bfe_u32 {v(T+2)}, {v(vL)}, 4, 1\nv_lshlrev_b32 {v(T+2)}, 5, {v(T+2)}\nv_and_b32 {v(T+3)}, 3, {v(vL)}\nv_lshl_add_u32 {v(T+2)}, {v(T+3)}, 3, {v(T+2)}")
    P(f"v_and_b32 {v(T+4)}, 31, {v(vL)}\nv_bfe_u32 {v(T+5)}, {v(vL)}, 1, 3\nv_xor_b32 {v(T+5)}, {v(T+5)}, {v(T+1)}")
    P(f"s_lshl_b32 {s(sT0)}, {s(sW34)}, 12\nv_lshlrev_b32 {v(T+8)}, 7, {v(T+4)}\nv_add_u32 {v(T+8)}, {s(sT0)}, {v(T+8)}")
    P(f"v_lshl_add_u32 {v(T+9)}, {v(T+1)}, 3, {v(T)}\nv_lshl_add_u32 {v(T+10)}, {v(T+9)}, 7, {v(T+2)}\nv_lshrrev_b32 {v(T+7)}, 1, {v(T)}\nv_xor_b32 {v(T+7)}, {s(sHALF)}, {v(T+7)}\nv_lshl_add_u32 {v(T+10)}, {v(T+7)}, 6, {v(T+10)}")
    for p in range(4):
        P(f"s_xor_b32 {s(sT0)}, {s(sSIG)}, {p}\ns_lshl_b32 {s(sT1)}, {s(sT0)}, 1\nv_xor_b32 {v(T+6)}, {s(sT1)}, {v(T+5)}\nv_lshl_add_u32 {v(AX+p)}, {v(T+6)}, 4, {v(T+8)}")
        P(f"s_lshl_b32 {s(sT1)}, {s(sT0)}, 11\ns_add_u32 {s(sT1)}, {s(sT1)}, {RB}\nv_add_u32 {v(AW+p)}, {s(sT1)}, {v(T+10)}")
    if ffn:
        P(f"s_lshl_b32 {s(sT0)}, {s(sHALF)}, 5\nv_xor_b32 {v(T+7)}, {s(sT0)}, {v(T+2)}\nv_lshl_add_u32 {v(T+7)}, {v(T+9)}, 6, {v(T+7)}")
        for i, p in enumerate((0, 2)):
            P(f"s_xor_b32 {s(sT0)}, {s(sSIG)}, {p}\ns_lshl_b32 {s(sT0)}, {s(sT0)}, 10\nv_add_u32 {v(AB+i)}, {s(sT0)}, {v(T+7)}")
    P(f"v_lshlrev_b32 {v(T+4)}, 4, {v(T+4)}")
    P(f"s_lshl_b32 {s(sT0)}, {s(sHALF)}, 9\ns_add_u32 {s(sT0)}, {s(sT0)}, {L_CS}\nv_add_u32 {v(VCSA)}, {s(sT0)}, {v(T+4)}")
    P(f"s_lshl_b32 {s(sT0)}, {s(sW34)}, 9\ns_add_u32 {s(sT0)}, {s(sT0)}, {L_ST}\nv_add_u32 {v(VSTA)}, {s(sT0)}, {v(T+4)}")
    P(f"v_lshrrev_b32 {v(T+4)}, 2, {v(vL)}\nv_xor_b32 {v(T+4)}, {v(T+4)}, {v(vL)}\nv_and_b32 {v(T+4)}, 4, {v(T+4)}\nv_cmp_eq_u32 vcc, 0, {v(T+4)}\nv_mov_b32 {v(T+4)}, {s(sONE)}")
    for i in range(4): P(f"v_mov_b32 {v(PZ+i)}, -1")
    for r in (VZ, BAUG+3, AAUG+2, AAUG+3): P(f"v_mov_b32 {v(r)}, 0")
    for i in range(4): P(f"v_cndmask_b32 {v(SEL+i)}, 0, {v(T+4)}, vcc")
    P(f"s_lshl_b32 {s(sW34)}, {s(sW34)}, 2")
    if late1:
        for g_ in item1(1, pitch): P.add(g_)
    if OPT.get("stouch", "0") == "2": stouch()
    if V2:
        P(f"v_lshrrev_b32 {v(T)}, 4, {v(vL)}\nv_lshlrev_b32 {v(T+1)}, 2, {v(T)}\nv_and_b32 {v(T+2)}, 15, {v(vL)}\nv_xor_b32 {v(T+2)}, {v(T+2)}, {v(T+1)}\nv_lshlrev_b32 {v(T+2)}, 4, {v(T+2)}\nv_lshl_add_u32 {v(VB)}, {v(T)}, 10, {v(T+2)}")
        P(f"s_lshl_b32 {s(sT2)}, {s(sM)}, 1\ns_add_u32 {s(sT2)}, {s(sT2)}, {s(sHALF)}")
        P(f"s_lshl_b32 {s(sT0)}, {s(sN)}, 8\ns_lshl_b32 {s(sT1)}, {s(sW34)}, 10\ns_add_u32 {s(sT1)}, {s(sT1)}, {s(sT0)}")
        P(f"s_mul_i32 {s(sB2o)}, {s(sT2)}, {224*1024}\ns_add_u32 {s(sB2o)}, {s(sB2o)}, {s(sT1)}\ns_lshl_b32 {s(sBOo)}, {s(sT2)}, 16\ns_add_u32 {s(sBOo)}, {s(sBOo)}, {s(sT1)}")
        P(f"s_mul_i32 {s(sA0)}, {s(sT2)}, {14*1024}\ns_add_u32 {s(sA0)}, {s(sA0)}, {s(sHo)}\ns_lshl_b32 {s(sA1)}, {s(sT2)}, 12\ns_add_u32 {s(sA1)}, {s(sA1)}, {s(sHo)}\ns_add_u32 {s(sA1)}, {s(sA1)}, {112*1024}")
        P(f"s_lshl_b32 {s(sT1)}, {s(sRT)}, 4\ns_add_u32 {s(sT1)}, {s(sT1)}, {s(sT2)}\ns_lshl_b32 {s(sT1)}, {s(sT1)}, 7\ns_and_b32 {s(sFL)}, {s(sW)}, 2\ns_lshl_b32 {s(sFL)}, {s(sFL)}, 3\ns_add_u32 {s(sFL)}, {s(sFL)}, {s(sT1)}\ns_add_u32 {s(sFL)}, {s(sFL)}, {WS_FLG}")
        P(f"s_mul_i32 {s(sR4)}, {s(sN)}, 5\ns_lshr_b32 {s(sR4)}, {s(sR4)}, 1\ns_add_u32 {s(sR4)}, {s(sR4)}, {s(sRT)}\ns_and_b32 {s(sR4)}, {s(sR4)}, 7")
        P(f"s_lshl_b32 {s(sT2)}, {s(sT2)}, 5\ns_add_u32 {s(sN)}, {s(sT0)}, {s(sT2)}")
        P(f"s_lshl_b32 {s(sOo)}, {s(sRT)}, 17\ns_lshl_b32 {s(sT1)}, {s(sW34)}, 13\ns_add_u32 {s(sOo)}, {s(sOo)}, {s(sT1)}\ns_add_u32 {s(sOo)}, {s(sOo)}, {s(sN)}")
        P(f"s_and_b32 {s(sSH)}, {s(sW)}, 1\ns_lshl_b32 {s(sSH)}, {s(sSH)}, 1\ns_lshl_b32 {s(sSK)}, {s(sHALF)}, 1")
        P(f"s_lshl_b32 {s(sMB)}, {s(sHALF)}, 13\ns_lshl_b32 {s(sT1)}, {s(sW34)}, 8\ns_add_u32 {s(sMB)}, {s(sMB)}, {s(sT1)}")
        if V3:
            P(f"s_lshl_b32 {s(sT0)}, {s(sSH)}, 4\nv_xor_b32 {v(VB)}, {s(sT0)}, {v(VB)}")
            P(f"s_mul_i32 {s(sT0)}, {s(sHALF)}, {14*1024}\ns_sub_u32 {s(sA0)}, {s(sA0)}, {s(sT0)}\ns_lshl_b32 {s(sT0)}, {s(sHALF)}, 12\ns_sub_u32 {s(sA1)}, {s(sA1)}, {s(sT0)}")
            P(f"s_lshl_b32 {s(sT0)}, {s(sHALF)}, 7\ns_sub_u32 {s(sFL)}, {s(sFL)}, {s(sT0)}\ns_and_b32 {s(sT0)}, {s(sW)}, 2\ns_lshl_b32 {s(sT0)}, {s(sT0)}, 3\ns_add_u32 {s(sFL)}, {s(sFL)}, {s(sT0)}")
        return
    P(f"s_lshl_b32 {s(sT0)}, {s(sN)}, 7\ns_mul_i32 {s(sB2o)}, {s(sW)}, {224*1024}\ns_add_u32 {s(sB2o)}, {s(sB2o)}, {s(sT0)}")
    P(f"s_lshl_b32 {s(sBOo)}, {s(sW)}, 16\ns_add_u32 {s(sBOo)}, {s(sBOo)}, {s(sT0)}\ns_lshl_b32 {s(sM4)}, {s(sW)}, 12")
    P(f"s_lshl_b32 {s(sOo)}, {s(sM)}, 16\ns_lshl_b32 {s(sT1)}, {s(sW)}, 13\ns_add_u32 {s(sOo)}, {s(sOo)}, {s(sT1)}\ns_add_u32 {s(sOo)}, {s(sOo)}, {s(sT0)}")
    if OPT.get("r8", "1") == "1":
        P(f"s_mul_i32 {s(sT0)}, {s(sM)}, 5\ns_lshr_b32 {s(sT0)}, {s(sT0)}, 1\ns_sub_u32 {s(sN)}, {s(sN)}, {s(sM)}\ns_add_u32 {s(sR4)}, {s(sN)}, {s(sT0)}\ns_add_u32 {s(sN)}, {s(sN)}, {s(sM)}")
    else: P(f"s_mov_b32 {s(sR4)}, {s(sN)}")
    P(f"s_add_u32 {s(sR4)}, {s(sM)}, {s(sR4)}\ns_and_b32 {s(sR4)}, {s(sR4)}, {0 if OPT.get('norot') else 7}\ns_and_b32 {s(sSH)}, {s(sW)}, 1\ns_lshl_b32 {s(sSH)}, {s(sSH)}, 1")
    P(f"s_lshr_b32 {s(sT0)}, {s(sM)}, 1\ns_lshl_b32 {s(sT0)}, {s(sT0)}, 4\ns_add_u32 {s(sT0)}, {s(sT0)}, {s(sW)}\ns_lshl_b32 {s(sT0)}, {s(sT0)}, 7")
    P(f"s_and_b32 {s(sT1)}, {s(sM)}, 1\ns_lshl_b32 {s(sT1)}, {s(sT1)}, 4\ns_add_u32 {s(sT0)}, {s(sT0)}, {s(sT1)}\ns_add_u32 {s(sFL)}, {s(sT0)}, {WS_FLG}")
    P(f"s_mul_i32 {s(sA0)}, {s(sM)}, {2*HF_RB}\ns_mul_i32 {s(sT0)}, {s(sW)}, {14*1024}\ns_add_u32 {s(sA1)}, {s(sA0)}, {s(sM4)}\ns_add_u32 {s(sA1)}, {s(sA1)}, {112*1024}\ns_add_u32 {s(sA0)}, {s(sA0)}, {s(sT0)}")

class Sched:
    def __init__(self, n):
        self.n = n; self.pre = [[] for _ in range(n)]; self.post = [[] for _ in range(n)]
        self.fill = [[] for _ in range(n)]; self.dma = [[] for _ in range(n)]; self.blk = {}
    def spread(self, lst, a, b):
        for i in range(a, b): self.fill[i] += lst[len(lst)*(i-a)//(b-a): len(lst)*(i+1-a)//(b-a)]
    def dmas(self, groups, a, step=1):
        for i, g in enumerate(groups): self.dma[a + i*step] += g

def rd(G):
    b = WF + 4 * (G & 3)
    if G < 96:
        ks = G & 31; st, p = ks >> 2, ks & 3
        L = [f"ds_read_b128 {v(XF+4*ks,4)}, {v(AX+p)} offset:{RA+(st&3)*16384}"] if G < 32 else []
        if ks < 4 and G >= 32: L.append(f"v_xor_b32 {v(AW+p)}, {RB}, {v(AW+p)}")
        return L + [f"ds_read_b64_tr_b16 {v(b+2*t,2)}, {v(AW+p)} offset:{8192*st+512*t}" for t in range(2)]
    i = G - 96
    return [f"ds_read_b64_tr_b16 {v(b+2*t,2)}, {v(AB+(i&1))} offset:{4096*(i>>1)+256*t}" for t in range(2)]
def xq(G): return XF + 4 * (G & 31) if G < 96 else XF + 8 * (G - 96)

def common_sched(S, ffn, accs, MC):
    pitch = 3584 if ffn else 3072
    tp = "f" if ffn else "a"
    c1, c2 = (128, 256) if ffn else (2048, 0)
    S.dmas(item1(2, pitch), 0, 0)
    for st in range(8):
        G = 4 * st + 2
        S.pre[G] += [f".waitvm it{st+1}" if st < 7 else ".waitvm w1q0 lgkm0", "s_barrier"]
        if st <= 4: S.dmas(item1(st + 3, pitch), G)
        else: S.dmas(wquarter(RA, st - 5, c1, pitch, f"w1q{st-5}"), G)
    def m4(d, r, c=None): return f"v_mfma_f32_4x4x4_16b_bf16 {v(d,4)}, {v(r,2)}, {v(r,2)}, {v(d,4) if c is None else c}"
    Q0, Q1 = T + 8, T + 16
    for f in range(0, 32, 2):
        x = XF + 4 * f; a = max(f - 1, 0); c = "0" if f == 0 else None
        if OPT.get("hyb", "0") == "1":
            b = f if f < 30 else 29
            S.post[a] += [m4(Q0, x, c), m16(MS, SEL, x, c)]
            for r, G in ((x + 2, a), (x + 3, b)):
                S.post[G] += [f"v_and_b32 {v(Q1+2)}, 0xffff0000, {v(r)}", f"v_lshlrev_b32 {v(Q1+3)}, 16, {v(r)}",
                              f"v_fmac_f32 {v(Q1)}, {v(Q1+2)}, {v(Q1+2)}", f"v_fmac_f32 {v(Q1+1)}, {v(Q1+3)}, {v(Q1+3)}"]
        else: S.post[a] += [m4(Q0, x, c), m4(Q1, x + 2, c), m16(MS, SEL, x, c)]
    S.post[28] += [f"v_and_b32 {v(S1)}, 3, {v(vL)}", f"v_cmp_eq_u32 {s(sEX,2)}, 1, {v(S1)}", f"s_lshl_b32 {s(sT0)}, {s(sHALF)}, 3",
                   f"v_add_u32 {v(T)}, {s(sT0)}, {v(VSTA)}"]
    if OPT.get("hyb", "0") == "1":
        S.pre[0] += [f"v_mov_b32 {v(Q1)}, 0", f"v_mov_b32 {v(Q1+1)}, 0"]
        S.post[29] += [f"v_add_f32 {v(Q1)}, {v(Q1)}, {v(Q1+1)}"]
    else: S.post[29] += [f"v_add_f32 {v(Q0+i)}, {v(Q0+i)}, {v(Q1+i)}" for i in range(4)]
    S.post[29] += [f"v_cmp_eq_u32 vcc, 2, {v(S1)}", f"v_cndmask_b32 {v(S2)}, {v(Q0)}, {v(Q0+1)}, {s(sEX,2)}", f"v_cmp_eq_u32 {s(sEX,2)}, 3, {v(S1)}",
                   f"v_cndmask_b32 {v(S2)}, {v(S2)}, {v(Q0+2)}, vcc", f"v_cndmask_b32 {v(S2)}, {v(S2)}, {v(Q0+3)}, {s(sEX,2)}"] + ([f"v_add_f32 {v(S2)}, {v(S2)}, {v(Q1)}"] if OPT.get("hyb", "0") == "1" else []) + [
                   f"v_mov_b32 {v(S1)}, {v(S2)}", f"v_permlane32_swap_b32 {v(S1)}, {v(S2)}",
                   f"v_add_f32 {v(MS+1)}, {v(S1)}, {v(S2)}", f"ds_write_b64 {v(T)}, {v(MS,2)}"]
    S.post[30] += [f"ds_read_b128 {v(MS,4)}, {v(VSTA)}"]
    for ps in range(3):
        for st in range(8):
            G = 32 * ps + 4 * st
            S.post[G] += [m16(MC, SEL, WF + 4 * (G & 3), "0" if st == 0 else None)]
        S.post[32*ps + 29] += [f"v_add_u32 {v(MC+1)}, {s(sW34)}, {v(VCSA)}", f"ds_write_b32 {v(MC+1)}, {v(MC)} offset:{1024*ps}"]
    FEW = OPT.get("few", "1") == "1"
    if FEW: S.pre[38] += [".waitvm w1q3", "s_barrier"]
    else:
        for q in (1, 2, 3): S.pre[32 + 8*q - 2] += [f".waitvm w1q{q}", "s_barrier"]
    w2 = sum([wquarter(RB, q, c2, pitch, "w2") for q in range(4)], [])
    for g_, G in zip(wquarter(RA, 3, c1, pitch, "w1q3") + w2, [int(x) for x in OPT.get("w2g", "32,33,35,37,38,40,41,43,44,46").split(",")]): S.dma[G] += g_
    S.pre[62] += [".waitvm w2 lgkm0", "s_barrier"]
    for G in ((int(OPT.get("fb", 82)),) if ffn else (() if OPT.get("asy", "0") == "1" else (int(OPT.get("ab", 86)),))): S.pre[G] += ["s_barrier"]
    if ffn:
        S.post[int(OPT.get("f1", 90))] += flag(1, "h1")
        S.post[int(OPT.get("p1", 99))] += [spoll(0)]; S.blk[("e", int(OPT.get("c1", 105)))] = lambda: (sneed(1, 0), P(spoll(1)))
    else:
        S.post[int(OPT.get("fa", 80))] += flag(1, "po")
    if OPT.get("l2t", "0") == "1":
        tg = [int(x) for x in OPT.get("l2gf" if ffn else "l2ga", "52,62,66,70,74" if ffn else "48,52,56,60,64").split(",")]
        DUM = VX0 if False else VW0
        for j in range(5):
            if j < 3:
                L = [f"s_lshr_b32 {s(sT0)}, s2, 3", f"s_mul_i32 {s(sT0)}, {s(sT0)}, 3", f"s_lshl_b32 {s(sT1)}, {s(sSH)}, 4", f"s_add_u32 {s(sT0)}, {s(sT0)}, {s(sT1)}",
                     f"s_add_u32 {s(sT0)}, {s(sT0)}, {128+j}", f"s_sub_u32 {s(sT1)}, {s(sT0)}, 224", f"s_min_u32 {s(sT0)}, {s(sT0)}, {s(sT1)}",
                     f"s_mul_i32 {s(sT1)}, {s(sW)}, 224", f"s_add_u32 {s(sT0)}, {s(sT0)}, {s(sT1)}", f"s_lshl_b32 {s(sT0)}, {s(sT0)}, 10",
                     f"buffer_load_dword {v(VTD)}, {v(VL16)}, {s(SW2,4)}, {s(sT0)} offen ; nodef"]
            else:
                L = [f"s_lshr_b32 {s(sT0)}, s2, 3", f"s_lshl_b32 {s(sT0)}, {s(sT0)}, 11", f"s_lshl_b32 {s(sT1)}, {s(sW)}, 16", f"s_add_u32 {s(sT0)}, {s(sT0)}, {s(sT1)}",
                     f"buffer_load_dword {v(VTD)}, {v(VL16)}, {s(SWO,4)}, {s(sT0)} offen offset:{1024*(j-3)} ; nodef"]
            S.dma[tg[j]] += L
    if (OPT.get("touch", "5") == "5" and not ffn) or (OPT.get("touch") == "6" and ffn):
        tg = [int(x) for x in OPT.get("tgs", "54,56,58,60,62").split(",")]
        gw = [f"s_and_b32 {s(sT0)}, {s(sRT)}, 7", f"s_lshl_b32 {s(sT0)}, {s(sT0)}, 1", f"s_and_b32 {s(sT1)}, {s(sG)}, 1", f"s_add_u32 {s(sT0)}, {s(sT0)}, {s(sT1)}",
              f"s_lshl_b32 {s(sT0)}, {s(sT0)}, 3", f"s_add_u32 {s(sK)}, {s(sT0)}, {s(sW)}"]
        for j in range(4):
            S.dma[tg[j]] += (gw if j == 0 else []) + [f"s_add_u32 {s(sT0)}, {s(sK)}, {128*j}", f"s_min_u32 {s(sT0)}, {s(sT0)}, 447", f"s_mul_i32 {s(sT1)}, {s(sM)}, 448", f"s_add_u32 {s(sT0)}, {s(sT0)}, {s(sT1)}",
                                  f"s_lshl_b32 {s(sT0)}, {s(sT0)}, 10", f"buffer_load_dword {v(VTD)}, {v(VL16)}, {s(SW2,4)}, {s(sT0)} offen ; nodef"]
        S.dma[tg[4]] += [f"s_lshl_b32 {s(sT1)}, {s(sM)}, 7", f"s_add_u32 {s(sT0)}, {s(sK)}, {s(sT1)}",
                         f"s_lshl_b32 {s(sT0)}, {s(sT0)}, 10", f"buffer_load_dword {v(VTD)}, {v(VL16)}, {s(SWO,4)}, {s(sT0)} offen ; nodef"]
        S.dma[tg[4]] += [f"buffer_load_dword {v(VTD)}, {v(VL16)}, {s(SB2,4)}, 0 offen ; nodef"]
        if OPT.get("t3", "0") == "1":
            S.dma[int(OPT.get("t3g", 49))] += gw + [f"s_mul_i32 {s(sT0)}, {s(sK)}, {4*3584}", f"s_mul_i32 {s(sT1)}, {s(sM)}, 896", f"s_add_u32 {s(sT0)}, {s(sT0)}, {s(sT1)}",
                f"v_and_b32 {v(VTD)}, 3, {v(vL)}", f"v_mul_u32_u24 {v(VTD)}, 3584, {v(VTD)}", f"buffer_load_dword {v(VTD)}, {v(VTD)}, {s(SAUX,4)}, {s(sT0)} offen offset:384 ; nodef"]
    if OPT.get("touch") == "4":
        tg = [int(x) for x in OPT.get("tgs", "47,49,52").split(",")]
        gw = [f"s_and_b32 {s(sT0)}, s2, 0xf8", f"s_add_u32 {s(sT0)}, {s(sT0)}, {s(sW)}"]
        for j in range(2):
            S.dma[tg[j]] += gw + [f"s_add_u32 {s(sT0)}, {s(sT0)}, {256*j}", f"s_min_u32 {s(sT0)}, {s(sT0)}, 447", f"s_mul_i32 {s(sT1)}, {s(sM)}, 448", f"s_add_u32 {s(sT0)}, {s(sT0)}, {s(sT1)}",
                                  f"s_lshl_b32 {s(sT0)}, {s(sT0)}, 10", f"buffer_load_dword {v(VTD)}, {v(VL16)}, {s(SW2,4)}, {s(sT0)} offen ; nodef"]
        S.dma[tg[2]] += gw + [f"s_lshr_b32 {s(sT0)}, {s(sT0)}, 1", f"s_lshl_b32 {s(sT1)}, {s(sM)}, 7", f"s_add_u32 {s(sT0)}, {s(sT0)}, {s(sT1)}",
                              f"s_lshl_b32 {s(sT0)}, {s(sT0)}, 10", f"buffer_load_dword {v(VTD)}, {v(VL16)}, {s(SWO,4)}, {s(sT0)} offen ; nodef"]
    if OPT.get("touch", "5") == "3":
        def mtouch():
            n0 = len(P.ins)
            P(f"s_cmp_lt_u32 {s(sW)}, 6")
            P(f"s_cbranch_scc1 L_mt{tp}")
            P.cond_begin("w67")
            P(f"v_lshlrev_b32 {v(T+1)}, 7, {v(vL)}\ns_mul_i32 {s(sT0)}, s2, 7168\ns_lshl_b32 {s(sT1)}, s2, 11")
            P(f"s_cmp_eq_u32 {s(sW)}, 6\ns_cbranch_scc0 L_mta{tp}")
            P(f"buffer_load_dword {v(T+2)}, {v(T+1)}, {s(SW2,4)}, {s(sT0)} offen")
            P(f"s_branch L_mt{tp}")
            P(f"L_mta{tp}:")
            P(f"v_and_b32 {v(T+1)}, 2047, {v(T+1)}")
            P(f"buffer_load_dword {v(T+2)}, {v(T+1)}, {s(SWO,4)}, {s(sT1)} offen")
            P(f"buffer_load_dword {v(T+3)}, {v(T+1)}, {s(SB2,4)}, 0 offen")
            P.cond_end()
            P(f"L_mt{tp}:")
        S.blk[("e", int(OPT.get("tg", 5)))] = mtouch
    if OPT.get("wt", "2") == "2":
        S.dma[int(OPT.get("wg", 5))] += [f"v_mul_u32_u24 {v(T+1)}, {pitch}, {v(vL)}", f"buffer_load_dword {v(T+2)}, {v(T+1)}, {s(SWT,4)}, {s(sCNT)} offen"]
    def announce():
        P(f"s_lshl_b32 {s(sT0)}, {s(sW)}, 8\ns_add_u32 {s(sT0)}, {s(sT0)}, s2\ns_sub_u32 {s(sT0)}, {s(sT0)}, 256\ns_cmp_lt_u32 {s(sT0)}, 8")
        P(f"s_cbranch_scc0 L_nd")
        P.cond_begin("zw")
        P(".waitvm zf")
        P(f"s_lshl_b32 {s(sT0)}, s2, 2\nv_mov_b32 {v(VFV)}, 1")
        P(f"buffer_store_dword {v(VFV)}, {v(VZ)}, {s(SDBG,4)}, {s(sT0)} offen sc1")
        P.cond_end()
        P(f"L_nd:")
    if not ffn: S.blk[3] = announce
    ld = f"v_and_b32 {v(VX0)}, 28, {v(vL)}\nbuffer_load_dword {v(VX0)}, {v(VX0)}, {s(SDBG,4)}, 0 offen sc1"
    def poll0():
        P(f"s_cmp_eq_u32 {s(sW)}, 7"); P(f"s_cbranch_scc0 L_np{tp}")
        P.cond_begin("w7")
        P(ld)
        P.cond_end(); P(f"L_np{tp}:")
    def check0():
        P(f"s_cmp_eq_u32 {s(sW)}, 7"); P(f"s_cbranch_scc0 L_nc{tp}")
        P.cond_begin("w7")
        P(f"v_mov_b32 {v(VX0)}, {v(VX0)}")
        spin(f"L_ncs{tp}", ld, f"v_cmp_ne_u32 vcc, 1, {v(VX0)}")
        P.cond_end(); P(f"L_nc{tp}:")
    S.blk[39] = poll0; S.blk[62] = check0

def run_sched(S, accs):
    P(".waitvm it0")
    P("s_barrier")
    stamp("it0")
    P.add(rd(0)); P.add(rd(1))
    for G in range(S.n):
        stamp(f"g{G}")
        if G in S.blk: S.blk[G]()
        late = OPT.get("bam", "1") == "1" and G >= 32
        if not late: P.add(S.pre[G])
        if OPT.get("prio", "2") == "1": P(f"s_setprio {3 - ((G + 2) & 3)}")
        if OPT.get("prio", "2") == "2" and (G < 32 or G % 2 == 0): P(f"s_setprio {3 - ((G + 2) & 3) if G < 32 else 3 - ((G >> 1) & 3)}")
        first = G in (0, 32, 64, 96)
        P(mfma(accs[G >> 5], WF + 4 * (G & 3), xq(G), "0" if first else None))
        if late: P.add(S.pre[G])
        if G + 2 < S.n: P.add(rd(G + 2))
        P.add(S.post[G]); P.add(S.fill[G]); P.add(S.dma[G])
        if ("e", G) in S.blk: S.blk[("e", G)]()
    P("s_setprio 0")

AC = 64; NAF = 8
def AFq(kk, rb): return XF + 4 + 8 * (2 * (kk % NAF) + rb)
def BTq(kk, nb): return XF + 8 * (2 * (kk & 3) + nb)
BA = 2
VXR, VRED = 9, 10
VWR = 20
XR, B2R = 32, 36
def AF2(kk): return XF + 4 + 8 * (kk % 16)
def BT2(kk, nb): return XF + 8 * (4 * (kk & 1) + nb)
def xoff(j, send):
    return ([f"s_xor_b32 {s(sT0)}, s2, {j}", f"s_mul_i32 {s(sT0)}, {s(sT0)}, {3*8192}"] if send else [f"s_mul_i32 {s(sT0)}, s2, {3*8192}"]) + \
           [f"s_lshl_b32 {s(sT1)}, {s(sW)}, 10", f"s_add_u32 {s(sT0)}, {s(sT0)}, {s(sT1)}", f"s_add_u32 {s(sT0)}, {s(sT0)}, {WS_X + (j-1)*8192}"]
VA3 = 14
def AF3(st, sh):
    if st < 8: return XF + 4 + 8 * (2 * st + sh)
    if st < 12: return XF + 64 + 8 * (2 * (st - 8) + sh)
    if st < 16: return 96 + 4 * (2 * (st - 12) + sh)
    return XF + 4 + 8 * (2 * (st - 16) + sh)
va3_init = lines(f"v_and_b32 {v(VA3)}, 15, {v(vL)}\nv_lshlrev_b32 {v(VA3)}, 4, {v(VA3)}\nv_lshrrev_b32 {v(T+19)}, 4, {v(vL)}\nv_lshl_add_u32 {v(VA3)}, {v(T+19)}, 9, {v(VA3)}")
def a_jobs(kk):
    if V3:
        sg, gm = kk >> 1, kk & 1
        so, gs = (sA0, 14 * 1024) if sg < 7 else (sA1, 4096)
        return [rot_p(sg, sD1, gm) + [f"s_lshl_b32 {s(sD1)}, {s(sD1)}, 11", f"s_add_u32 {s(sD1)}, {s(sD1)}, {s(so)}"] + ([f"s_add_u32 {s(sD1)}, {s(sD1)}, {gs}"] if gm else []) +
                [f"buffer_load_dwordx4 {v(AF3(kk,0),4)}, {v(VA3)}, {s(SWS,4)}, {s(sD1)} offen sc1"],
                [f"buffer_load_dwordx4 {v(AF3(kk,1),4)}, {v(VA3)}, {s(SWS,4)}, {s(sD1)} offen offset:256 sc1"]]
    so = sA0 if kk < 14 else sA1
    if V2: return [rot_k(kk, sD1) + [f"s_lshl_b32 {s(sD1)}, {s(sD1)}, 10", f"s_add_u32 {s(sD1)}, {s(sD1)}, {s(so)}",
             f"buffer_load_dwordx4 {v(AF2(kk),4)}, {v(VL16)}, {s(SWS,4)}, {s(sD1)} offen sc1"] +
             ([f"s_xor_b32 {s(sD1)}, {s(sD1)}, 0x8000", f"buffer_load_dwordx4 v[252:255], {v(VL16)}, {s(SWS,4)}, {s(sD1)} offen sc1 ; nodef"] if OPT.get("dbla") and kk != 15 else [])]
    return [rot_k(kk, sD1) + [f"s_lshl_b32 {s(sD1)}, {s(sD1)}, 10", f"s_add_u32 {s(sD1)}, {s(sD1)}, {s(so)}",
             f"buffer_load_dwordx4 {v(AFq(kk,0),4)}, {v(VL16)}, {s(SWS,4)}, {s(sD1)} offen sc1"],
            [f"s_add_u32 {s(sD1)}, {s(sD1)}, {HF_RB}",
             f"buffer_load_dwordx4 {v(AFq(kk,1),4)}, {v(VL16)}, {s(SWS,4)}, {s(sD1)} offen sc1"]]
def vcheck(regs, t):
    L = [f"v_max3_u32 {v(t)}, {v(regs[0])}, {v(regs[1])}, {v(regs[2])}"]; r = regs[3:]
    while len(r) >= 2: L.append(f"v_max3_u32 {v(t)}, {v(t)}, {v(r[0])}, {v(r[1])}"); r = r[2:]
    if r: L.append(f"v_max_u32 {v(t)}, {v(t)}, {v(r[0])}")
    return L + [f"v_cmp_eq_u32 vcc, -1, {v(t)}"]
SLOW = []
def validate(regs, t, reload):
    lb = P.lab("L_v")
    P.add(vcheck(regs, t))
    P(f"s_cbranch_vccnz {lb}_slow")
    P(f"{lb}_back:")
    dbg = [f"s_add_u32 {s(sST+2*STI['slow'])}, {s(sST+2*STI['slow'])}, {1 << len(SLOW)}"] if STAMP and "slow" in STI else []
    SLOW.append([f"{lb}_slow:"] + dbg + [f"s_mov_b32 {s(sCNT)}, 0", f"{lb}_loop:", "s_sleep 2"] + reload + ["s_waitcnt vmcnt(0)"] + vcheck(regs, t) +
                [f"s_add_u32 {s(sCNT)}, {s(sCNT)}, 1", f"s_cbranch_vccz {lb}_back", f"s_cmp_gt_u32 {s(sCNT)}, {SPIN_MAX}",
                 f"s_cbranch_scc0 {lb}_loop", f"s_branch {lb}_back"])
def flush_slow():
    for blk in SLOW:
        P(".reset"); P.add(blk)
    SLOW.clear()
def spoll(o):
    x = f"s_buffer_load_dwordx4 {s(sPL,4)}, {s(SWS,4)}, {s(sFL)} offset:{0 if o else 1024} glc"
    if V3: x = f"s_buffer_load_dwordx8 {s(sPL,8)}, {s(SWS,4)}, {s(sFL)} offset:{0 if o else 1024} glc"
    return x
def sneed(level, o):
    lb = P.lab("L_sp")
    P(f"s_mov_b32 {s(sCNT)}, 0")
    P(f"{lb}:")
    P("s_waitcnt lgkmcnt(0)")
    P(f"s_min_u32 {s(sPL)}, {s(sPL)}, {s(sPL+1)}\ns_min_u32 {s(sPL+2)}, {s(sPL+2)}, {s(sPL+3)}\ns_min_u32 {s(sPL)}, {s(sPL)}, {s(sPL+2)}")
    if V3:
        for i in range(4, 8): P(f"s_min_u32 {s(sPL)}, {s(sPL)}, {s(sPL+i)}")
    P(f"s_cmp_ge_u32 {s(sPL)}, {level}")
    P(f"s_cbranch_scc1 {lb}_ok")
    P(f"s_add_u32 {s(sCNT)}, {s(sCNT)}, 1\ns_cmp_gt_u32 {s(sCNT)}, {SPIN_MAX}")
    P(f"s_cbranch_scc1 {lb}_ok")
    P("s_sleep 1")
    for x in spoll(o).split("\n"):
        I = Ins(x); I.kind = "salu"; P.ins.append(I)
    P(f"s_branch {lb}")
    P(f"{lb}_ok:")
def own_check():
    lb = P.lab("L_oc")
    P(f"s_mov_b32 {s(sCNT)}, 0")
    P(f"{lb}:")
    P("s_waitcnt lgkmcnt(0)")
    P(f"s_cmp_ge_u32 {s(sK)}, 1")
    P(f"s_cbranch_scc1 {lb}_ok")
    P(f"s_add_u32 {s(sCNT)}, {s(sCNT)}, 1\ns_cmp_gt_u32 {s(sCNT)}, {SPIN_MAX}")
    P(f"s_cbranch_scc1 {lb}_ok")
    P("s_sleep 1")
    I = Ins(f"s_buffer_load_dword {s(sK)}, {s(SWS,4)}, {s(sT2)} glc"); I.kind = "salu"; P.ins.append(I)
    P(f"s_branch {lb}")
    P(f"{lb}_ok:")
def b_reads(kk):
    slot = kk % 9
    var, off = (KAREA[slot] >> 16), KAREA[slot] & 0xffff
    return [f".waitvm b{kk}"] + [f"ds_read_b64_tr_b16 {v(BTq(kk,nb)+2*tt,2)}, {v(BA+2*var+nb)} offset:{off+1024*tt}" for nb in range(2) for tt in range(2)]
def finish(ffn):
    if OPT.get("echo") and OPT.get("echot", "fa").find("f" if ffn else "a") < 0: pass
    elif OPT.get("echo"):
        a_, b_ = [STI[x] for x in OPT["echo"].split(",")]
        lb = P.lab("L_echo")
        stamp("end")
        P("s_waitcnt lgkmcnt(0)")
        P(f"s_sub_u32 {s(sT0)}, {s(sST+2*b_)}, {s(sST+2*a_)}")
        if STAMP == 2:
            P(f"s_lshr_b32 {s(sT0)}, {s(sT0)}, 4\ns_memrealtime {s(sST+22,2)}\ns_waitcnt lgkmcnt(0)")
        P(f"s_min_u32 {s(sT0)}, {s(sT0)}, 10000")
        P(f"{lb}:")
        P(f"s_memrealtime {s(sEX,2)}")
        P("s_waitcnt lgkmcnt(0)")
        P(f"s_sub_u32 {s(sT1)}, {s(sEX)}, {s(sST+22)}\ns_cmp_lt_u32 {s(sT1)}, {s(sT0)}\ns_cbranch_scc1 {lb}")
    elif STAMP:
        stamp("end")
        P("s_waitcnt lgkmcnt(0)")
        P(f"s_lshl_b32 {s(sT0)}, s2, 3\ns_add_u32 {s(sT0)}, {s(sT0)}, {s(sW)}\ns_lshl_b32 {s(sT0)}, {s(sT0)}, 6\ns_add_u32 {s(sT0)}, {s(sT0)}, {WS_STAMP}")
        P(f"v_mov_b32 v2, 0\ns_mov_b64 exec, 1")
        for i in range(12):
            P(f"v_mov_b32 v3, {s(sST+2*i)}\nbuffer_store_dword v3, v2, {s(SWS,4)}, {s(sT0)} offen offset:{4*i}")
    P("s_endpgm")
    flush_slow()

def phase2_v2(bleft, ffn):
    BAR = [2, 3, 4, 5, 6, 7, 8, 9, 10, 11, 14, 15]; VX = 16
    WB = [20, 21, 22]; RBs = [23, 24, 25]; PX = BAUG
    t = T + 8
    P(f"v_bfe_u32 {v(t)}, {v(vL)}, 2, 2\nv_lshrrev_b32 {v(t+1)}, 5, {v(vL)}\nv_and_b32 {v(t+2)}, 63, {v(AW)}\ns_lshl_b32 {s(sT0)}, {s(sHALF)}, 5\nv_xor_b32 {v(t+2)}, {s(sT0)}, {v(t+2)}")
    P(f"v_lshl_add_u32 {v(t+3)}, {v(t+1)}, 2, {v(t)}\nv_lshl_add_u32 {v(t+3)}, {v(t+3)}, 8, {v(t+2)}\ns_lshl_b32 {s(sT0)}, {s(sHALF)}, 13\nv_add_u32 {v(t+3)}, {s(sT0)}, {v(t+3)}")
    P(f"v_xor_b32 {v(t)}, {s(sM)}, {v(t)}\nv_lshl_add_u32 {v(BAR[0])}, {v(t)}, 6, {v(t+3)}")
    for nb in range(1, 4): P(f"v_xor_b32 {v(BAR[nb])}, {64*nb}, {v(BAR[0])}")
    for rg in (2, 1):
        for nb in range(4): P(f"v_add_u32 {v(BAR[4*rg+nb])}, {65536*rg}, {v(BAR[nb])}")
    LP = int(OPT.get("lp", 2))
    SQ = int(OPT.get("sq", 12))
    seq = [(kk, nb) for kk in range(SQ) for nb in range(4) if nb or kk < LP]
    done_at = {}
    for nb in (1, 2, 3):
        seq += [(kk, nb) for kk in range(SQ, 18)]; done_at[nb] = len(seq)
    seq += [(kk, 0) for kk in range(LP, 18)]
    D = 4
    def bq(i): return XF + 8 * (i & 7)
    def br(i):
        kk, nb = seq[i]; a = KAREA[kk >> 1]
        return [f"ds_read_b64_tr_b16 {v(bq(i)+2*tt,2)}, {v(BAR[4*(a>>16)+nb])} offset:{(a&0xffff)+(kk&1)*4096+2048*tt}" for tt in range(2)]
    def val(kk):
        if not (NP and kk < 14): validate([AF2(kk) + i for i in range(4)], T + 16, a_jobs(kk)[0])
    for i in range(D): P.add(br(i))
    val(0)
    stamp("hseen")
    first = {}
    for i, (kk, nb) in enumerate(seq): first.setdefault(kk, i)
    ev = {}
    def at(i, x): ev.setdefault(i, []).append(x)
    sh = 8 - LP
    a8, a14 = int(OPT.get("a8", 14)), int(OPT.get("a14", 30 - sh))
    for i, g_ in enumerate(sum([b_dma(k2) for k2 in bleft], [])): at(int(OPT.get('bst', 1)) * i + (0 if ffn else int(OPT.get('b0a', 0))), g_)
    gates = {}
    if NP:
        if ffn:
            g2i = int(OPT.get("g2", 6)); a8 = int(OPT.get("g3f", 24 - sh))
            at(0, [spoll(0)]); gates[g2i] = 2
            for k2 in range(4, 8): at(g2i + k2 - 4, a_jobs(k2)[0])
            at(int(OPT.get("f3", 14)), flag(3, "h4"))
            a14 = max(a14, a8 + 6)
        else:
            a8 = int(OPT.get("g3a", 18 - sh // 2)); g2i = int(OPT.get("g2a", 2)); gates[g2i] = 2
            for k2 in range(4, 8): at(g2i + k2 - 4, a_jobs(k2)[0])
        at(a8 - int(OPT.get("gl", 10)), [spoll(0)]); gates[a8] = 3
    ast = int(OPT.get('ast', 1))
    ea = 0 if ffn or NP else int(OPT.get('ea', 0))
    for k2 in range(8 + ea, 14): at(a8 + ast * (k2 - 8), a_jobs(k2)[0])
    if ea and OPT.get('a14a'): a14 = int(OPT['a14a'])
    for k2 in range(14, 18): at(a14 + ast * (k2 - 14), a_jobs(k2)[0])
    F = T + 8
    at(9, lines(f"v_and_b32 {v(T+17)}, 31, {v(vL)}\nv_lshrrev_b32 {v(T+18)}, 5, {v(vL)}\nv_lshlrev_b32 {v(T+18)}, 4, {v(T+18)}\nv_lshl_add_u32 {v(VX)}, {v(T+17)}, 10, {v(T+18)}") +
          [f"buffer_load_dwordx4 {v(XR,4)}, {v(VX)}, {s(SX,4)}, {s(sOo)} offen", f"buffer_load_dwordx4 {v(B2R,4)}, {v(T+18)}, {s(SB2,4)}, {s(sN)} offen"])
    at(24, lines(f"v_add_u32 {v(WB[0])}, {s(sM0x)}, {v(VL16)}\nv_xor_b32 {v(RBs[0])}, 8192, {v(WB[0])}") +
           sum([[f"v_add_u32 {v(WB[rg])}, {65536*rg}, {v(WB[0])}", f"v_add_u32 {v(RBs[rg])}, {65536*rg}, {v(RBs[0])}"] for rg in (1, 2)], []))
    for i in range(4):
        at(40 + i, lines(f"v_lshlrev_b32 {v(F+2*i)}, 16, {v(XR+i)}\nv_and_b32 {v(F+2*i+1)}, 0xffff0000, {v(XR+i)}\nv_lshlrev_b32 {v(T+4)}, 16, {v(B2R+i)}\nv_and_b32 {v(T+5)}, 0xffff0000, {v(B2R+i)}\nv_add_f32 {v(F+2*i)}, {v(F+2*i)}, {v(T+4)}\nv_add_f32 {v(F+2*i+1)}, {v(F+2*i+1)}, {v(T+5)}"))
    px1 = OPT.get("px1") == "1" or (bool(OPT.get("pxa", "1")) and not ffn)
    if not px1:
        pxi = int(OPT.get("pxi", (16 if ffn else a8 + 6) if NP else a8 + 6))
        if not ffn and OPT.get("pxia"): pxi = int(OPT["pxia"])
        at(pxi - 1, [f"v_mov_b32 {v(PX+i)}, -1" for i in range(4)])
        for j in (1, 2, 3): at(pxi + (j - 1) * int(OPT.get("pxs", 1)), xoff(j, True) + [f"buffer_store_dwordx4 {v(PX,4)}, {v(VL16)}, {s(SWS,4)}, {s(sT0)} offen sc1 ; tag=px"])
    at(int(OPT.get("fx", 8 if px1 else 48 - sh)), flag(4, "px"))
    if OPT.get("wb"):
        lbw = P.lab("L_wb")
        at(int(OPT["wb"]), [f"s_lshr_b32 {s(sT0)}, s2, 3", f"s_and_b32 {s(sT0)}, {s(sT0)}, {OPT.get('wbm', 23)}", f"s_or_b32 {s(sT0)}, {s(sT0)}, {s(sW)}", f"s_cbranch_scc1 {lbw}", "buffer_wbl2 sc1", f"{lbw}:"])
    bar_i = first[min(12, 2 * bleft[0])] - D
    RG = [KAREA[0], L_KVB, KAREA[0], L_KVB] if LP < 8 else KAREA
    def wr(nb): a = RG[nb]; return [f"ds_write_b128 {v(WB[a>>16])}, {v(AC+16*nb+8+4*q,4)} offset:{(a&0xffff)+1024*q}" for q in range(2)]
    def rdp(nb): a = RG[nb]; return [f"ds_read_b128 {v(AC+16*nb+8+4*q,4)}, {v(RBs[a>>16])} offset:{(a&0xffff)+1024*q}" for q in range(2)]
    def add(nb, pk): c = AC + 16 * nb; return [f"v_pk_add_f32 {v(c+i,2)}, {v(c+i,2)}, {v(c+8+i,2)}" for i in range(0, 8, 2)] if pk else [f"v_add_f32 {v(c+i)}, {v(c+i)}, {v(c+8+i)}" for i in range(8)]
    def snd(nb): c = AC + 16 * nb; return [f"v_cvt_pk_bf16_f32 {v(c+8+i)}, {v(c+2*i)}, {v(c+2*i+1)}" for i in range(4)] + xoff(nb, True) + [f"buffer_store_dwordx4 {v(c+8,4)}, {v(VL16)}, {s(SWS,4)}, {s(sT0)} offen sc1"]
    VPF, VPA = PX, PX + 1
    pf = f"buffer_load_dword {v(VPF)}, {v(VPA)}, {s(SWS,4)}, 0 offen sc1"
    at(38 if px1 else done_at[3] + 3, lines(f"v_and_b32 {v(VPA)}, 3, {v(vL)}\nv_lshlrev_b32 {v(VPA)}, 8, {v(VPA)}\nv_xor_b32 {v(VPA)}, {s(sFO)}, {v(VPA)}") + [pf])
    PS = OPT.get("ps", "0") == "1"
    VFW, VFR, VFT = 26, 18, 19
    chk = {}
    if PS:
        assert LP >= 4
        RG[1] = RG[3] = KAREA[1]
        at(bar_i - 8, lines(f"s_lshl_b32 {s(sT0)}, {s(sW)}, 2\ns_add_u32 {s(sT0)}, {s(sT0)}, {L_ST}\nv_mov_b32 {v(VFW)}, {s(sT0)}\nv_xor_b32 {v(VFR)}, 16, {v(VFW)}\nds_write_b32 {v(VFW)}, {v(VZ)}"))
        def wrf(nb, lv): return wr(nb) + [f"v_mov_b32 {v(VFT)}, {lv}", f"ds_write_b32 {v(VFW)}, {v(VFT)}"]
        def rdf(nb): return [f"ds_read_b32 {v(VFT)}, {v(VFR)}"] + rdp(nb)
        def check(nb, lv):
            lb = P.lab("L_ps")
            P(f"v_cmp_gt_u32 vcc, {lv}, {v(VFT)}")
            P(f"s_cbranch_vccnz {lb}_slow")
            P(f"{lb}_back:")
            SLOW.append([f"{lb}_slow:", f"s_mov_b32 {s(sCNT)}, 0", f"{lb}_loop:"] + rdf(nb) + ["s_waitcnt lgkmcnt(0)", f"v_cmp_gt_u32 vcc, {lv}, {v(VFT)}",
                         f"s_add_u32 {s(sCNT)}, {s(sCNT)}, 1", f"s_cbranch_vccz {lb}_back", f"s_cmp_gt_u32 {s(sCNT)}, {SPIN_MAX * 16}", f"s_cbranch_scc0 {lb}_loop", f"s_branch {lb}_back"])
        dl = int(OPT.get("psd", 2))
        for nb in (1, 2, 3):
            e = done_at[nb]
            at(e + 1, wrf(nb, nb)); at(e + 1 + dl, rdf(nb)); chk[e + 2 + dl] = nb; at(e + 2 + dl, add(nb, False) + snd(nb))
        at(done_at[3] + 2 + dl, stamp_i("xs"))
    elif SQ < 18:
        for nb in (1, 2, 3):
            e = done_at[nb]
            at(e + 1, wr(nb)); at(e + 2, ["s_waitcnt lgkmcnt(2)", "s_barrier"] + rdp(nb)); at(e + 4, add(nb, False) + snd(nb))
        at(done_at[3] + 4, stamp_i("xs"))
    else:
        e = done_at[3]
        at(e, wr(1) + wr(2)); at(e + 1, wr(3) + ["s_waitcnt lgkmcnt(0)", "s_barrier"] + rdp(1) + rdp(2) + rdp(3))
        for nb in (1, 2, 3): at(e + 1 + nb, add(nb, False) + snd(nb))
        at(e + 4, stamp_i("xs"))
    R = XF + 64 - 4 if False else None
    RQ = [None, XF + 64, XF + 72, XF + 80]
    rl = sum([xoff(j, False) + [f"buffer_load_dwordx4 {v(RQ[j],4)}, {v(VL16)}, {s(SWS,4)}, {s(sT0)} offen sc1"] for j in range(1, 4)], [])
    ri = int(OPT.get("ri", 99))
    seen = set()
    for i, (kk, nb) in enumerate(seq):
        if i % 4 == 0: P(f"s_setprio {3 - ((i >> 2) & 3)}")
        P(mfma(AC + 16 * nb, bq(i), AF2(kk), None if nb in seen else "0")); seen.add(nb)
        if i == bar_i: P(".waitvm b8"); P("s_barrier")
        if i + D < len(seq): P.add(br(i + D))
        if i + 2 < len(seq) and first[seq[i + 2][0]] == i + 2: val(seq[i + 2][0])
        if i in gates: sneed(gates[i], 0)
        if i in chk: check(chk[i], chk[i])
        for x in ev.pop(i, []): P.add(x)
        if i == len(seq) - 1 - ri:
            P(f"v_mov_b32 {v(VPF)}, {v(VPF)}")
            spin(P.lab("L_pf"), pf, f"v_cmp_gt_u32 vcc, 4, {v(VPF)}")
            P.add(rl)
        if i + 1 < len(seq) and first[seq[i + 1][0]] == i + 1: stamp(f"k{kk}")
    assert not ev, ev.keys()
    stamp("p2mm")
    P("s_setprio 0")
    P.add(wrf(0, 4) if PS else wr(0))
    if ri >= len(seq):
        P(f"v_mov_b32 {v(VPF)}, {v(VPF)}")
        spin(P.lab("L_pf"), pf, f"v_cmp_gt_u32 vcc, 4, {v(VPF)}")
    if PS:
        if ri >= len(seq): P.add(rl)
        P.add(rdf(0)); check(0, 4)
    else:
        P("s_waitcnt lgkmcnt(0)")
        P("s_barrier")
        P.add(rdp(0))
        if ri >= len(seq): P.add(rl)
    P.add(add(0, True))
    validate([RQ[j] + i for j in (1, 2, 3) for i in range(4)], T + 16, rl)
    stamp("xr")
    P(f"s_mov_b32 {s(sT0)}, 0x3f80\ns_mov_b32 {s(sT1)}, 0x3f800000")
    for j in range(1, 4):
        for i in range(4): P(f"v_dot2c_f32_bf16 {v(AC+2*i)}, {s(sT0)}, {v(RQ[j]+i)}\nv_dot2c_f32_bf16 {v(AC+2*i+1)}, {s(sT1)}, {v(RQ[j]+i)}")
    for i in range(4): P(f"v_permlane32_swap_b32 {v(AC+i)}, {v(AC+4+i)}")
    for i in range(0, 8, 2): P(f"v_pk_add_f32 {v(F+i,2)}, {v(F+i,2)}, {v(AC+i,2)}")
    for i in range(4): P(f"v_cvt_pk_bf16_f32 {v(XR+i)}, {v(F+2*i)}, {v(F+2*i+1)}")
    P(f"buffer_store_dwordx4 {v(XR,4)}, {v(VX)}, {s(SOUT,4)}, {s(sOo)} offen")
    finish(ffn)

def phase2_v3(bleft, aleft, ffn):
    BAR = [2, 3, 4, 5, 6, 7, 8, 9, 10, 11, 18, 19]; VX = 16; PX = BAUG
    t = T + 8
    P(f"v_bfe_u32 {v(t)}, {v(vL)}, 2, 2\nv_lshrrev_b32 {v(t+1)}, 5, {v(vL)}\nv_bfe_u32 {v(t+2)}, {v(vL)}, 4, 1\nv_lshl_add_u32 {v(t+3)}, {v(t+2)}, 2, {v(t)}\nv_lshl_add_u32 {v(t+3)}, {v(t+1)}, 4, {v(t+3)}")
    P(f"v_and_b32 {v(t+4)}, 63, {v(AW)}\ns_lshl_b32 {s(sT0)}, {s(sHALF)}, 5\nv_xor_b32 {v(t+4)}, {s(sT0)}, {v(t+4)}\nv_lshl_add_u32 {v(t+3)}, {v(t+3)}, 8, {v(t+4)}")
    P(f"v_xor_b32 {v(t)}, {s(sM)}, {v(t)}\nv_lshl_add_u32 {v(BAR[0])}, {v(t)}, 6, {v(t+3)}")
    for q in range(1, 4): P(f"v_xor_b32 {v(BAR[q])}, {64*q}, {v(BAR[0])}")
    for rg in (2, 1):
        for q in range(4): P(f"v_add_u32 {v(BAR[4*rg+q])}, {65536*rg}, {v(BAR[q])}")
    LP = int(OPT.get("lp", 2)); SQ = int(OPT.get("sq", 14))
    assert LP >= 2
    seq = [(st, q) for st in range(SQ) for q in range(4) if q or st < LP]
    done_at = {}
    for q in (1, 2, 3):
        seq += [(st, q) for st in range(SQ, 18)]; done_at[q] = len(seq)
    seq += [(st, 0) for st in range(LP, 18)]
    D = 4
    def bq(i): return XF + 8 * (i & 7)
    def br(i):
        st, q = seq[i]; a = KAREA[st >> 1]
        return [f"ds_read_b64_tr_b16 {v(bq(i)+2*tt,2)}, {v(BAR[4*(a>>16)+q])} offset:{(a&0xffff)+(st&1)*8192+2048*tt}" for tt in range(2)]
    def val(st): validate([AF3(st, sh) + i for sh in range(2) for i in range(4)], T + 16, sum(a_jobs(st), []))
    for i in range(D): P.add(br(i))
    val(0)
    stamp("hseen")
    first = {}
    for i, (st, q) in enumerate(seq): first.setdefault(st, i)
    ev = {}
    def at(i, x): ev.setdefault(i, []).append(x)
    a8, a14 = int(OPT.get("a8", 8)), int(OPT.get("a14", 26))
    i0 = 0
    for st in aleft: at(i0, sum(a_jobs(st), [])); i0 += 1
    for g_ in sum([b_dma(k2) for k2 in bleft], []): at(i0, g_); i0 += 1
    a8 = max(a8, i0)
    for st in range(8, 14): at(a8 + 2 * (st - 8), sum(a_jobs(st), []))
    for st in range(14, 18): at(a14 + 2 * (st - 14), sum(a_jobs(st), []))
    pxi = int(OPT.get("pxi", a8 + 12))
    at(pxi - 1, [f"v_mov_b32 {v(PX+i)}, -1" for i in range(4)])
    for j in (1, 2, 3): at(pxi + j - 1, xoff(j, True) + [f"buffer_store_dwordx4 {v(PX,4)}, {v(VL16)}, {s(SWS,4)}, {s(sT0)} offen sc1 ; tag=px"])
    at(done_at[1] - int(OPT.get("fxb", 2)), flag(2, "px"))
    F = T + 8
    at(a8 + 1, lines(f"v_and_b32 {v(T+17)}, 31, {v(vL)}\nv_lshrrev_b32 {v(T+18)}, 5, {v(vL)}\nv_lshlrev_b32 {v(T+18)}, 4, {v(T+18)}\nv_lshl_add_u32 {v(VX)}, {v(T+17)}, 10, {v(T+18)}") +
          [f"buffer_load_dwordx4 {v(XR,4)}, {v(VX)}, {s(SX,4)}, {s(sOo)} offen", f"buffer_load_dwordx4 {v(B2R,4)}, {v(T+18)}, {s(SB2,4)}, {s(sN)} offen"])
    for i in range(4):
        at(done_at[3] + 6 + i, lines(f"v_lshlrev_b32 {v(F+2*i)}, 16, {v(XR+i)}\nv_and_b32 {v(F+2*i+1)}, 0xffff0000, {v(XR+i)}\nv_lshlrev_b32 {v(T+4)}, 16, {v(B2R+i)}\nv_and_b32 {v(T+5)}, 0xffff0000, {v(B2R+i)}\nv_add_f32 {v(F+2*i)}, {v(F+2*i)}, {v(T+4)}\nv_add_f32 {v(F+2*i+1)}, {v(F+2*i+1)}, {v(T+5)}"))
    def snd(q): c = AC + 8 * q; return [f"v_cvt_pk_bf16_f32 {v(c+i)}, {v(c+2*i)}, {v(c+2*i+1)}" for i in range(4)] + xoff(q, True) + [f"buffer_store_dwordx4 {v(c,4)}, {v(VL16)}, {s(SWS,4)}, {s(sT0)} offen sc1"]
    VPF, VPA = PX, PX + 1
    pf = f"buffer_load_dword {v(VPF)}, {v(VPA)}, {s(SWS,4)}, 0 offen sc1"
    for q in (1, 2, 3): at(done_at[q] + 1, snd(q))
    at(done_at[3] + 1, stamp_i("xs"))
    at(done_at[3] + int(OPT.get("pfi", 0)), lines(f"v_and_b32 {v(VPA)}, 3, {v(vL)}\nv_lshlrev_b32 {v(VPA)}, 8, {v(VPA)}\nv_xor_b32 {v(VPA)}, {s(sFO)}, {v(VPA)}") + [pf])
    bar_i = first[12] - D
    R = AC + 8 - 4
    RQ = [None, AC + 12, AC + 20, AC + 28]
    rl = sum([xoff(j, False) + [f"buffer_load_dwordx4 {v(RQ[j],4)}, {v(VL16)}, {s(SWS,4)}, {s(sT0)} offen sc1"] for j in range(1, 4)], [])
    ri = min(done_at[3] + int(OPT.get("ri", 12)), len(seq) - 1)
    seen = set()
    for i, (st, q) in enumerate(seq):
        if i % 4 == 0: P(f"s_setprio {3 - ((i >> 2) & 3)}")
        for sh in range(2): P(m16(AC + 8 * q + 4 * sh, bq(i), AF3(st, sh), None if q in seen else "0"))
        seen.add(q)
        if i == bar_i: P(".waitvm b8"); P("s_barrier")
        if i + D < len(seq): P.add(br(i + D))
        if i + 2 < len(seq) and first[seq[i + 2][0]] == i + 2: val(seq[i + 2][0])
        for x in ev.pop(i, []): P.add(x)
        if i == ri:
            P(f"v_mov_b32 {v(VPF)}, {v(VPF)}")
            spin(P.lab("L_pf"), pf, f"v_cmp_gt_u32 vcc, 2, {v(VPF)}")
            P.add(rl)
        if i + 1 < len(seq) and first[seq[i + 1][0]] == i + 1: stamp(f"k{st}")
    assert not ev, ev.keys()
    stamp("p2mm")
    P("s_setprio 0")
    validate([RQ[j] + i for j in (1, 2, 3) for i in range(4)], T + 16, rl)
    stamp("xr")
    P(f"s_mov_b32 {s(sT0)}, 0x3f80\ns_mov_b32 {s(sT1)}, 0x3f800000")
    for j in range(1, 4):
        for i in range(4): P(f"v_dot2c_f32_bf16 {v(AC+2*i)}, {s(sT0)}, {v(RQ[j]+i)}\nv_dot2c_f32_bf16 {v(AC+2*i+1)}, {s(sT1)}, {v(RQ[j]+i)}")
    for i in range(4): P(f"v_permlane16_swap_b32 {v(AC+i)}, {v(AC+4+i)}")
    for i in range(0, 8, 2): P(f"v_pk_add_f32 {v(F+i,2)}, {v(F+i,2)}, {v(AC+i,2)}")
    for i in range(4): P(f"v_cvt_pk_bf16_f32 {v(XR+i)}, {v(F+2*i)}, {v(F+2*i+1)}")
    P(f"buffer_store_dwordx4 {v(XR,4)}, {v(VX)}, {s(SOUT,4)}, {s(sOo)} offen")
    finish(ffn)

def phase2(done=(), ordr="B6 B7 B8 B9 A4 A5 A6 A7 B10 A8 B11 A9 A10 B12 A11 B13 A12 B14 A13 B15 B16 B17 A14 A15 A16 A17", ffn=False):
    P(f"v_bfe_u32 {v(T+8)}, {v(vL)}, 2, 2\nv_lshrrev_b32 {v(T+9)}, 5, {v(vL)}\nv_and_b32 {v(T+10)}, 63, {v(AW)}")
    P(f"v_lshl_add_u32 {v(T+12)}, {v(T+9)}, 2, {v(T+8)}\nv_lshl_add_u32 {v(T+12)}, {v(T+12)}, 7, {v(T+10)}\nv_lshrrev_b32 {v(T+13)}, 1, {v(T+8)}")
    P(f"v_lshl_add_u32 {v(T+12)}, {v(T+13)}, 6, {v(T+12)}\nv_xor_b32 {v(T+13)}, 64, {v(T+12)}")
    P(f"s_add_u32 {s(sT0)}, {s(sM0x)}, 65536\ns_add_u32 {s(sT1)}, {s(sM0x)}, {RC}")
    for nb in range(2):
        P(f"v_add_u32 {v(BA+nb)}, {s(sM0x)}, {v(T+12+nb)}\nv_add_u32 {v(BA+2+nb)}, {s(sT0)}, {v(T+12+nb)}\nv_add_u32 {v(BA+4+nb)}, {s(sT1)}, {v(T+12+nb)}")
    P.add(b_reads(0))
    if OPT.get("r8", "1") == "1": validate([AFq(0, r2) + i for r2 in range(2) for i in range(4)], T + 16, sum(a_jobs(0), []))
    if OPT.get("p2prio") == "y":
        lb = P.lab("L_pr"); P(f"s_cmp_lt_u32 {s(sW)}, 4\ns_cbranch_scc1 {lb}\ns_setprio 1\n{lb}:")
    stamp("hseen")
    order = [j for j in ordr.split() if j not in done]
    jobs = []
    for j in order:
        k2 = int(j[1:]); gs = a_jobs(k2) if j[0] == "A" else b_dma(k2)
        jobs += [(j, gs[0]), (None, gs[1])]
    LEAD = int(OPT.get("lead", 3))
    first_need = min(int(j[1:]) - (0 if j[0] == "A" else 1) for j in order)
    order.sort(key=lambda j: int(j[1:]) - (0.5 if j[0] == "B" else 0)) if LEAD < 9 else None
    jobs = []
    for j in order:
        k2 = int(j[1:]); gs = a_jobs(k2) if j[0] == "A" else b_dma(k2)
        jobs += [(j, gs[0]), (None, gs[1])]
    NT = int(OPT.get("nt", 2))
    for kk in range(18 - NT):
        rem = [x for x, _ in jobs if x]
        assert f"A{kk+1}" not in rem and f"B{kk+2}" not in rem, (kk, rem)
        if OPT.get("v"): print(kk, rem, file=sys.stderr)
        pm = OPT.get("p2prio", "c")
        if pm == "c": P(f"s_setprio {3 - ((kk // int(OPT.get('p2per', 1))) & 3)}")
        br = b_reads(kk + 1) if kk + 1 < 18 else []
        for nb in range(2):
            for rb in range(2):
                mi = 2 * nb + rb
                P(mfma(AC + 16 * mi, BTq(kk, nb), AFq(kk, rb), "0" if kk == 0 else None))
                if mi == 0: P.add(br[:3])
                if mi == 1: P.add(br[3:])
                if mi == 2 and (1 if OPT.get('r8', '1') == '1' else 4) <= kk + 1 < 18:
                    if jobs and jobs[0][0] is None: P.add(jobs.pop(0)[1])
                    validate([AFq(kk + 1, r2) + i for r2 in range(2) for i in range(4)], T + 16, sum(a_jobs(kk + 1), []))
                for rep in range(2 if kk < int(OPT.get("dbl", 0)) else 1):
                    if not jobs: continue
                    j, g_ = jobs[0]
                    if j:
                        k2 = int(j[1:]); last = (nb, rb) == (1, 1)
                        free = k2 - (8 if j[0] == "A" else 9)
                        if free > kk or (free == kk and not last): continue
                        need_at = k2 - (0 if j[0] == "A" else 1)
                        if need_at > max(kk, first_need - 1) + LEAD: continue
                    jobs.pop(0); P.add(g_)
        stamp(f"k{kk}")
        if kk == 8:
            P(f"v_lshrrev_b32 {v(T+17)}, 3, {v(vL)}\nv_and_b32 {v(T+18)}, 7, {v(vL)}\nv_lshlrev_b32 {v(T+18)}, 4, {v(T+18)}\nv_lshl_add_u32 {v(VXR)}, {v(T+17)}, 10, {v(T+18)}")
            P(f"s_lshl_b32 {s(sT0)}, {s(sN)}, 7")
            P(f"buffer_load_dwordx4 {v(XR,4)}, {v(VXR)}, {s(SX,4)}, {s(sOo)} offen")
            P(f"buffer_load_dwordx4 {v(B2R,4)}, {v(T+18)}, {s(SB2,4)}, {s(sT0)} offen")
        if kk == 3:
            for q in range(4):
                P(f"v_xor_b32 {v(VWR+q)}, {64*q}, {v(VL16)}\nv_add_u32 {v(VWR+q)}, {s(sM0x)}, {v(VWR+q)}")
                P(f"v_add_u32 {v(T+q)}, 65536, {v(VWR+q)}")
            P(f"v_lshrrev_b32 {v(T+4)}, 3, {v(vL)}\ns_lshl_b32 {s(sT0)}, {s(sW34)}, 1\nv_add_u32 {v(T+4)}, {s(sT0)}, {v(T+4)}")
            P(f"v_and_b32 {v(T+5)}, 3, {v(vL)}\nv_lshlrev_b32 {v(T+6)}, 2, {v(T+5)}\nv_xor_b32 {v(T+4)}, {v(T+4)}, {v(T+6)}\nv_lshlrev_b32 {v(T+4)}, 4, {v(T+4)}\nv_and_b32 {v(T+6)}, 1, {v(T+5)}\nv_lshl_add_u32 {v(T+4)}, {v(T+6)}, 10, {v(T+4)}\nv_lshrrev_b32 {v(T+6)}, 1, {v(T+5)}\nv_lshl_add_u32 {v(T+4)}, {v(T+6)}, 14, {v(T+4)}")
            P(f"v_bfe_u32 {v(T+5)}, {v(vL)}, 2, 1\nv_lshl_add_u32 {v(T+4)}, {v(T+5)}, 16, {v(T+4)}\ns_lshl_b32 {s(sT0)}, {s(sHALF)}, 15\nv_add_u32 {v(VRED)}, {s(sT0)}, {v(T+4)}")
        F = T + 8
        if kk == 13:
            for i in range(4):
                P(f"v_lshlrev_b32 {v(F+2*i)}, 16, {v(XR+i)}\nv_and_b32 {v(F+2*i+1)}, 0xffff0000, {v(XR+i)}")
                P(f"v_lshlrev_b32 {v(T+4)}, 16, {v(B2R+i)}\nv_and_b32 {v(T+5)}, 0xffff0000, {v(B2R+i)}")
                P(f"v_add_f32 {v(F+2*i)}, {v(F+2*i)}, {v(T+4)}\nv_add_f32 {v(F+2*i+1)}, {v(F+2*i+1)}, {v(T+5)}")
    assert not jobs
    for kk in range(19 - NT, 18):
        P.add(b_reads(kk))
        validate([AFq(kk, r2) + i for r2 in range(2) for i in range(4)], T + 16, sum(a_jobs(kk), []))
    def wr(blk): return [f"ds_write_b128 {v(VWR + q if blk < 2 else T + q)}, {v(AC+16*blk+4*q,4)} offset:{(blk&1)*32768+(q>>1)*16384+(q&1)*1024}" for q in range(4)]
    pend = []
    for mi in range(4):
        for kk in range(18 - NT, 18):
            P(mfma(AC + 16 * mi, BTq(kk, mi >> 1), AFq(kk, mi & 1)))
            if kk > 18 - NT or NT == 1: P.add(pend[:2]); pend = pend[2:]
        P.add(pend); pend = wr(mi)
    stamp("p2mm")
    P.add(pend)
    P("s_waitcnt lgkmcnt(0)")
    stamp("rw")
    P("s_barrier")
    stamp("rb")
    R = XF
    for ww in range(8):
        for hf in range(2): P(f"ds_read_b128 {v(R+8*ww+4*hf,4)}, {v(VRED)} offset:{2048*ww+512*hf}")
    for ww in range(8):
        for i in range(0, 8, 2): P(f"v_pk_add_f32 {v(F+i,2)}, {v(F+i,2)}, {v(R+8*ww+i,2)}")
    for i in range(4): P(f"v_cvt_pk_bf16_f32 {v(XR+i)}, {v(F+2*i)}, {v(F+2*i+1)}")
    P(f"buffer_store_dwordx4 {v(XR,4)}, {v(VXR)}, {s(SOUT,4)}, {s(sOo)} offen {OPT.get('om', '').replace('+', ' ')}")
    finish(ffn)

def softmax(p, out, LS, pk=False):
    t = T + 16
    if pk:
        assert LS == STD + 1
        L = softmax(p, out, LS)[:9]
        L += [f"v_pk_fma_f32 {v(p+i,2)}, {v(p+i,2)}, {v(STD,2)}, {v(t,2)} op_sel:[0,1,0] op_sel_hi:[1,1,0] neg_lo:[0,0,1] neg_hi:[0,0,1]" for i in range(0, 16, 2)]
        L += [f"v_exp_f32 {v(p+i)}, {v(p+i)}" for i in range(16)]
        L += [f"v_pk_add_f32 {v(t,2)}, {v(p,2)}, {v(p+2,2)}", f"v_pk_add_f32 {v(t+2,2)}, {v(p+4,2)}, {v(p+6,2)}"]
        L += [f"v_pk_add_f32 {v(t+2*(i&1),2)}, {v(t+2*(i&1),2)}, {v(p+8+2*i,2)}" for i in range(4)]
        L += [f"v_pk_add_f32 {v(t,2)}, {v(t,2)}, {v(t+2,2)}", f"v_add_f32 {v(t)}, {v(t)}, {v(t+1)}", f"v_rcp_f32 {v(t)}, {v(t)}"]
        L += [f"v_pk_mul_f32 {v(p+i,2)}, {v(p+i,2)}, {v(t,2)} op_sel_hi:[1,0]" for i in range(0, 16, 2)]
        return L + [f"v_cvt_pk_bf16_f32 {v(out+i)}, {v(p+2*i)}, {v(p+2*i+1)}" for i in range(8)]
    L = [f"v_max3_f32 {v(t)}, {v(p)}, {v(p+1)}, {v(p+2)}", f"v_max3_f32 {v(t+1)}, {v(p+3)}, {v(p+4)}, {v(p+5)}",
         f"v_max3_f32 {v(t)}, {v(t)}, {v(p+6)}, {v(p+7)}", f"v_max3_f32 {v(t+1)}, {v(t+1)}, {v(p+8)}, {v(p+9)}",
         f"v_max3_f32 {v(t)}, {v(t)}, {v(p+10)}, {v(p+11)}", f"v_max3_f32 {v(t+1)}, {v(t+1)}, {v(p+12)}, {v(p+13)}",
         f"v_max3_f32 {v(t)}, {v(t)}, {v(p+14)}, {v(p+15)}", f"v_max_f32 {v(t)}, {v(t)}, {v(t+1)}",
         f"v_mul_f32 {v(t)}, {v(t)}, {v(LS)}"]
    L += [f"v_fma_f32 {v(p+i)}, {v(p+i)}, {v(LS)}, -{v(t)}" for i in range(16)]
    L += [f"v_exp_f32 {v(p+i)}, {v(p+i)}" for i in range(16)]
    L += [f"v_add_f32 {v(t)}, {v(p)}, {v(p+1)}", f"v_add_f32 {v(t+1)}, {v(p+2)}, {v(p+3)}"]
    for i in range(4, 16, 2):
        L += [f"v_add_f32 {v(t)}, {v(t)}, {v(p+i)}", f"v_add_f32 {v(t+1)}, {v(t+1)}, {v(p+i+1)}"]
    L += [f"v_add_f32 {v(t)}, {v(t)}, {v(t+1)}", f"v_rcp_f32 {v(t)}, {v(t)}"]
    L += [f"v_mul_f32 {v(p+i)}, {v(p+i)}, {v(t)}" for i in range(16)]
    L += [f"v_cvt_pk_bf16_f32 {v(out+i)}, {v(p+2*i)}, {v(p+2*i+1)}" for i in range(8)]
    return L

setup(False)
KAREA[:] = [RC, RA+3*Q, RA, RA+Q, RA+2*Q, RB, RB+Q, RB+2*Q, RB+3*Q]
ASY = OPT.get('asy', '0') == '1'
LS = K1; VPK = K2; VV = VW3; MC = BIAS
PHI0, PHI1 = AX, AAUG
PHI0 = AX
PHI1 = S1
PHI1 = T + 12
t = T + 16
P(f"v_bfe_u32 {v(t)}, {v(vL)}, 2, 2\nv_lshrrev_b32 {v(t+1)}, 5, {v(vL)}\nv_lshl_add_u32 {v(t)}, {v(t+1)}, 2, {v(t)}\nv_lshlrev_b32 {v(t)}, 5, {v(t)}")
P(f"v_bfe_u32 {v(t+2)}, {v(vL)}, 1, 1\nv_lshl_add_u32 {v(t)}, {v(t+2)}, 3, {v(t)}\nv_bfe_u32 {v(t+2)}, {v(vL)}, 4, 1\nv_lshl_add_u32 {v(t)}, {v(t+2)}, 4, {v(t)}")
P(f"s_lshl_b32 {s(sT1)}, {s(sHALF)}, 10\ns_add_u32 {s(sT1)}, {s(sT1)}, {L_WPHI}\nv_add_u32 {v(AB)}, {s(sT1)}, {v(t)}")
P(f"v_bfe_u32 {v(t)}, {v(vL)}, 2, 1\nv_mul_u32_u24 {v(t)}, 0x8000, {v(t)}\nv_lshl_or_b32 {v(AB+1)}, {v(t)}, 16, {v(t)}")
P(f"v_and_b32 {v(t)}, 31, {v(vL)}\nv_lshlrev_b32 {v(t)}, 6, {v(t)}\ns_lshl_b32 {s(sT1)}, {s(sW34)}, 9\nv_bfe_u32 {v(t+2)}, {v(vL)}, 1, 2")
P(f"v_lshlrev_b32 {v(t+3)}, 1, {v(t+1)}\nv_xor_b32 {v(t+3)}, {v(t+3)}, {v(t+2)}")
P(f"s_lshl_b32 {s(sT2)}, {s(sHALF)}, 14\ns_add_u32 {s(sT2)}, {s(sT2)}, {s(sT1)}\nv_lshl_add_u32 {v(VPK)}, {v(t+3)}, 4, {v(t)}\nv_add_u32 {v(VPK)}, {s(sT2)}, {v(VPK)}")
P(f"v_xor_b32 {v(t+3)}, {v(t+1)}, {v(t+2)}")
P(f"s_lshl_b32 {s(sT2)}, {s(sHALF)}, 13\ns_add_u32 {s(sT2)}, {s(sT2)}, {s(sT1)}\ns_add_u32 {s(sT2)}, {s(sT2)}, {RA+32768}\nv_lshl_add_u32 {v(VV)}, {v(t+3)}, 4, {v(t)}\nv_add_u32 {v(VV)}, {s(sT2)}, {v(VV)}")
def phi_load(hl, dst):
    return [f"ds_read_b64_tr_b16 {v(dst+2*tt,2)}, {v(AB)} offset:{512*hl+256*tt}" for tt in range(2)] + \
           [f"v_xor_b32 {v(dst+i)}, {v(AB+1)}, {v(dst+i)}" for i in range(4)]
S = Sched(96)
common_sched(S, False, None, MC)
S.post[30] += [f"ds_read_b128 {v(CSR,4)}, {v(VCSA)}"]
sKV, sOS = sH0, sH3
P(f"s_lshl_b32 {s(sT0)}, {s(sG)}, 4\ns_add_u32 {s(sT0)}, {s(sT0)}, {s(sRT)}\ns_mul_i32 {s(sT0)}, {s(sT0)}, {KVP_SZ}\ns_mul_i32 {s(sT1)}, {s(sW)}, 1152\ns_add_u32 {s(sT0)}, {s(sT0)}, {s(sT1)}\ns_add_u32 {s(sT0)}, {s(sT0)}, {WS_KVP}")
P(f"s_cmp_lt_u32 {s(sW)}, 4\ns_cselect_b32 {s(sKV)}, {s(sT0)}, 0x7f000000")
P(f"s_lshl_b32 {s(sT0)}, {s(sG)}, 2\ns_lshl_b32 {s(sT1)}, {s(sHALF)}, 1\ns_add_u32 {s(sT0)}, {s(sT0)}, {s(sT1)}\ns_add_u32 {s(sT0)}, {s(sT0)}, 112\ns_lshl_b32 {s(sT0)}, {s(sT0)}, 10\ns_add_u32 {s(sOS)}, {s(sT0)}, {s(sHo)}")
PA = AAUG
OFFL = OPT.get("off", "0") == "1"
if OFFL:
    P(f"s_mul_i32 {s(sT0)}, {s(sG)}, 448\ns_and_b32 {s(sT1)}, {s(sG)}, 1\ns_add_u32 {s(sT2)}, {s(sT1)}, {s(sHALF)}\ns_lshl_b32 {s(sT2)}, {s(sT2)}, 6\ns_add_u32 {s(sT2)}, {s(sT2)}, {s(sT0)}")
    P(f"s_lshl_b32 {s(sT2)}, {s(sT2)}, 5\ns_add_u32 {s(sWq)}, {s(sT2)}, {s(sHo)}\ns_add_u32 {s(sWq)}, {s(sWq)}, 8192")
    P(f"s_xor_b32 {s(sT1)}, {s(sT1)}, 1\ns_mul_i32 {s(sT1)}, {s(sT1)}, 384\ns_add_u32 {s(sT0)}, {s(sT0)}, {s(sT1)}\ns_lshl_b32 {s(sT1)}, {s(sHALF)}, 5\ns_add_u32 {s(sT0)}, {s(sT0)}, {s(sT1)}")
    P(f"s_lshl_b32 {s(sT0)}, {s(sT0)}, 5\ns_add_u32 {s(sW3)}, {s(sT0)}, {s(sHo)}")
S.post[46] += [f"v_mov_b32 {v(PA+i)}, -1" for i in range(4)] + [f"v_lshrrev_b32 {v(S2)}, 2, {v(vL)}", f"v_lshl_add_u32 {v(S2)}, {v(S2)}, 26, {v(VL16)}"]
S.post[47] += [f"buffer_store_dwordx4 {v(PA,4)}, {v(VL16)}, {s(SWS,4)}, {s(sKV)} offen sc1"]
S.post[48] += [f"buffer_store_dwordx4 {v(PA,4)}, {v(S2)}, {s(SWS,4)}, {s(sKV)} offen offset:1024 sc1 ; tag=pz"]
pl = [(sOS, 0), (sOS, 1024)] + ([(sWq, 0), (sWq, 1024), (sW3, 0)] if OFFL else [])
for (so, off), G in zip(pl, [int(x) for x in OPT.get("pza", "50,53,56,59,62").split(",")]):
    S.post[G] += [f"buffer_store_dwordx4 {v(PA,4)}, {v(VL16)}, {s(SWS,4)}, {s(so)} offen offset:{off} sc1 ; tag=po"]
PX1 = OPT.get("px1") == "1"
if V2 and PX1:
    for j, G in zip((1, 2, 3), (56, 59, 62)): S.post[G] += xoff(j, True) + [f"buffer_store_dwordx4 {v(PA,4)}, {v(VL16)}, {s(SWS,4)}, {s(sT0)} offen sc1 ; tag=px"]
S.post[63] += [f"v_mov_b32 {v(PA+2)}, 0", f"v_mov_b32 {v(PA+3)}, 0"]
def ltouch():
    P(f"s_sub_u32 {s(sT0)}, {s(sW)}, 4\ns_cmp_lt_u32 {s(sT0)}, 3")
    P(f"s_cbranch_scc0 L_nlt")
    P.cond_begin("w456")
    P(f"v_lshlrev_b32 {v(S1)}, 7, {v(vL)}\ns_lshl_b32 {s(sT1)}, {s(sRT)}, 3\ns_add_u32 {s(sT1)}, {s(sT1)}, {s(sG)}")
    P(f"s_cmp_eq_u32 {s(sT0)}, 2\ns_cbranch_scc1 L_lt2")
    P(f"s_lshl_b32 {s(sT1)}, {s(sT1)}, 1\ns_add_u32 {s(sT1)}, {s(sT1)}, {s(sT0)}\ns_mul_i32 {s(sT1)}, {s(sT1)}, 7168")
    P(f"buffer_load_dword {v(VX0)}, {v(S1)}, {s(SW2,4)}, {s(sT1)} offen")
    P("s_branch L_nlt")
    P("L_lt2:")
    P(f"v_and_b32 {v(S1)}, 4095, {v(S1)}\ns_lshl_b32 {s(sT1)}, {s(sT1)}, 12")
    P(f"buffer_load_dword {v(VX0)}, {v(S1)}, {s(SWO,4)}, {s(sT1)} offen")
    P(f"buffer_load_dword {v(VX1)}, {v(S1)}, {s(SB2,4)}, 0 offen")
    P.cond_end()
    for I in P.ins[-12:]:
        if I.kind == "vld": I.defs = []
    P("L_nlt:")
if OPT.get("touch", "5") == "2": S.blk[("e", int(OPT.get("tg", 54)))] = ltouch
S.post[31] += stamp_i("pass1")
fill = stats_final() + aug(ACC0, CSR, None) + phi_load(0, AX) + phi_load(1, T + 8) + [f"v_mul_f32 {v(LS)}, {f2u(LOG2E):#x}, {v(RSTD)}"]
fill += [f"v_cvt_pk_bf16_f32 {v(T+i)}, {v(ACC0+2*i)}, {v(ACC0+2*i+1)}" for i in range(8)]
fill += [mfma(ACC2, AX, T, "0"), mfma(ACC0, T + 8, T + 4, "0")]
S.spread(fill, 32, 40)
S.spread(softmax(ACC2, T + 8, LS) + softmax(ACC0, T, LS), 41, 64)
pkg = 62 if OPT.get("few", "1") == "1" else 56
S.post[pkg] += [f"ds_write_b128 {v(VPK)}, {v(T+8,4)}", f"v_xor_b32 {v(VSTA)}, 16, {v(VPK)}"]
S.post[pkg+1] += [f"ds_write_b128 {v(VSTA)}, {v(T+12,4)}"]
S.post[62] += [f"ds_read_b128 {v(MC,4)}, {v(VCSA)} offset:1024"]
S.post[63] += stamp_i("sub1")
S.pre[64] += sum4(CS0, MC)
S.fill[64] += aug(ACC1, MC, None)[3:]
S.post[65] += [f"ds_write_b128 {v(VPK)}, {v(T,4)} offset:8192"]
S.post[66] += [f"ds_write_b128 {v(VSTA)}, {v(T+4,4)} offset:8192"]
fill = []
fill += [f"v_mul_f32 {v(ACC1+i)}, {v(ACC1+i)}, {v(RSTD)}" for i in range(16)]
fill += [f"v_cvt_pk_bf16_f32 {v(ACC1+i)}, {v(ACC1+2*i)}, {v(ACC1+2*i+1)}" for i in range(8)]
fill += [f"ds_write_b128 {v(VV)}, {v(ACC1,4)}", f"v_xor_b32 {v(VV)}, 32, {v(VV)}", f"ds_write_b128 {v(VV)}, {v(ACC1+4,4)}"]
S.spread(fill, 66, 70)
S.dmas(b_dma(0), 65, 3)
S.dmas(b_dma(1), 74, 4); S.dmas(b_dma(2) + b_dma(3) + b_dma(4), int(OPT.get('ab', 86)), 1)
def kvblock():
    P(".waitvm pz lgkm0")
    P("s_barrier")
    kvflag()
    stamp("kv0"); stamp("kv1")
    P(f"s_cmp_lt_u32 {s(sW)}, 4")
    P("s_cbranch_scc0 L_nkv")
    P.cond_begin("lo4")
    P("s_setprio 3")
    t = T + 16; u = S1
    P(f"v_bfe_u32 {v(u)}, {v(vL)}, 2, 2\nv_lshrrev_b32 {v(u+1)}, 5, {v(vL)}\nv_lshl_add_u32 {v(u)}, {v(u+1)}, 3, {v(u)}\nv_lshlrev_b32 {v(u)}, 6, {v(u)}")
    P(f"v_bfe_u32 {v(u+1)}, {v(vL)}, 1, 1\nv_lshl_add_u32 {v(u)}, {v(u+1)}, 3, {v(u)}\nv_bfe_u32 {v(u+1)}, {v(vL)}, 3, 1\nv_and_b32 {v(VSTA)}, 1, {v(vL)}")
    P(f"v_or_b32 {v(t)}, {s(sSH)}, {v(VSTA)}\nv_xor_b32 {v(t)}, {v(t)}, {v(u+1)}\nv_lshl_add_u32 {v(t)}, {v(t)}, 4, {v(u)}")
    P(f"s_lshr_b32 {s(sT0)}, {s(sW)}, 1\ns_lshl_b32 {s(sT0)}, {s(sT0)}, 13\ns_add_u32 {s(sT0)}, {s(sT0)}, {RA+32768}\nv_add_u32 {v(t)}, {s(sT0)}, {v(t)}\nv_xor_b32 {v(t+1)}, 32, {v(t)}")
    P(f"v_bfe_u32 {v(t+2)}, {v(vL)}, 4, 1\nv_lshl_add_u32 {v(t+2)}, {v(VSTA)}, 1, {v(t+2)}\nv_xor_b32 {v(t+2)}, {v(t+2)}, {v(u+1)}\nv_lshl_add_u32 {v(t+2)}, {v(t+2)}, 4, {v(u)}")
    P(f"s_lshl_b32 {s(sT0)}, {s(sW)}, 13\nv_add_u32 {v(t+2)}, {s(sT0)}, {v(t+2)}\nv_xor_b32 {v(t+3)}, 32, {v(t+2)}")
    P(f"v_and_b32 {v(u)}, 16, {v(vL)}\nv_cmp_eq_u32 vcc, 0, {v(u)}\nv_mov_b32 {v(u+1)}, {s(sONE)}")
    KB = [T, T + 8, ACC1, ACC1 + 8]
    def kr(J):
        for tt in range(2):
            P(f"ds_read_b64_tr_b16 {v(KB[J&3]+2*tt,2)}, {v(t+tt)} offset:{1024*J+256*tt}")
            P(f"ds_read_b64_tr_b16 {v(KB[J&3]+4+2*tt,2)}, {v(t+2+tt)} offset:{1024*J+256*tt}")
    kr(0); kr(1); kr(2)
    for J in range(8):
        for i in range(4): P(f"v_cndmask_b32 {v(KB[J&3]+i)}, {v(u+1)}, {v(KB[J&3]+i)}, vcc")
        if J + 3 < 8: kr(J + 3)
        P(mfma(ACC0, KB[J&3] + 4, KB[J&3], "0" if J == 0 else None))
    if ASY: P("s_barrier")
    P(f"v_lshrrev_b32 {v(u)}, 5, {v(vL)}\nv_and_b32 {v(t+2)}, 15, {v(vL)}\nv_lshlrev_b32 {v(t)}, 4, {v(t+2)}\nv_lshl_add_u32 {v(t)}, {v(u)}, 8, {v(t)}\nv_add_u32 {v(t+1)}, 512, {v(t)}")
    P(f"v_lshlrev_b32 {v(u)}, 4, {v(u)}\nv_add_u32 {v(u)}, 1024, {v(u)}\nv_lshl_add_u32 {v(u)}, {v(t+2)}, 26, {v(u)}\nv_add_u32 {v(u+1)}, 32, {v(u)}")
    P(f"v_cndmask_b32 {v(t)}, {v(u)}, {v(t)}, vcc\nv_cndmask_b32 {v(t+1)}, {v(u+1)}, {v(t+1)}, vcc")
    for i in range(8): P(f"v_cvt_pk_bf16_f32 {v(T+i)}, {v(ACC0+2*i)}, {v(ACC0+2*i+1)}")
    stamp("kv1")
    for j in range(2): P(f"buffer_store_dwordx4 {v(T+4*j,4)}, {v(t+j)}, {s(SWS,4)}, {s(sKV)} offen sc1")
    P.cond_end()
    P("L_nkv:")
    stamp("kv2")
S.blk[70] = kvblock
PXA = OPT.get("pxa", "72,76,81")
if PXA:
    gs_ = [int(x) for x in PXA.split(",")]
    if gs_[0] > 64:
        S.post[gs_[0] - 1] += [f"v_mov_b32 {v(PA+i)}, -1" for i in range(4)]
        S.post[gs_[2] + 2] += [f"v_mov_b32 {v(PA+2)}, 0", f"v_mov_b32 {v(PA+3)}, 0"]
    for j, G in zip((1, 2, 3), gs_): S.post[G] += xoff(j, True) + [f"buffer_store_dwordx4 {v(PA,4)}, {v(VL16)}, {s(SWS,4)}, {s(sT0)} offen sc1 ; tag=px"]
S.pre[94] += ["s_waitcnt lgkmcnt(0)", "s_barrier"]
def kvflag():
    P(f"s_cmp_eq_u32 {s(sW)}, 7")
    P("s_cbranch_scc0 L_nkf")
    P.cond_begin("w0")
    P(f"s_lshl_b32 {s(sT0)}, {s(sG)}, 8\ns_lshl_b32 {s(sT1)}, {s(sRT)}, 2\ns_add_u32 {s(sT0)}, {s(sT0)}, {s(sT1)}\ns_add_u32 {s(sT0)}, {s(sT0)}, {WS_KVF}")
    P(f"v_mov_b32 {v(VFV)}, 1")
    P(f"buffer_store_dword {v(VFV)}, {v(VZ)}, {s(SWS,4)}, {s(sT0)} offen sc1")
    P.cond_end()
    P("L_nkf:")
def kvpoll():
    P(f"s_cmp_eq_u32 {s(sW)}, 7")
    P("s_cbranch_scc0 L_nkp")
    n0 = len(P.ins)
    P(f"s_lshl_b32 {s(sT2)}, {s(sG)}, 8\ns_add_u32 {s(sT2)}, {s(sT2)}, {WS_KVF}\ns_mov_b32 {s(sCNT)}, 0")
    P("s_branch L_spkv1")
    P("L_spkv:")
    P(f"s_buffer_load_dwordx16 s[20:35], {s(SWS,4)}, {s(sT2)} glc")
    P("L_spkv1:")
    P(f"s_add_u32 {s(sCNT)}, {s(sCNT)}, 1")
    P("s_waitcnt lgkmcnt(0)")
    for i in range(22, 36, 2): P(f"s_and_b64 s[20:21], s[20:21], s[{i}:{i+1}]")
    P("s_and_b32 s20, s20, s21")
    P("s_cbranch_scc1 L_nkp")
    P(f"s_cmp_gt_u32 {s(sCNT)}, {SPIN_MAX}")
    P("s_cbranch_scc1 L_nkp")
    P("s_sleep 1")
    P("s_branch L_spkv")
    for I in P.ins[n0:]:
        I.cond = "kvp"
        if I.kind == "smem": I.kind = "opaque"
    P("L_nkp:")
def kvreq():
    P(f"s_cmp_eq_u32 {s(sW)}, 7")
    P("s_cbranch_scc0 L_nkr")
    n0 = len(P.ins)
    P(f"s_lshl_b32 {s(sT2)}, {s(sG)}, 8\ns_add_u32 {s(sT2)}, {s(sT2)}, {WS_KVF}")
    P(f"s_buffer_load_dwordx16 s[20:35], {s(SWS,4)}, {s(sT2)} glc")
    for I in P.ins[n0:]:
        I.cond = "kvp"
        if I.kind == "smem": I.kind = "opaque"
    P("L_nkr:")
VP = OPT.get("vp", "0") == "1"
VPA_, VPV = VX0, VSTA
vpl = f"buffer_load_dword {v(VPV)}, {v(VPA_)}, {s(SWS,4)}, 0 offen sc1"
if VP:
    S.fill[78] += lines(f"s_lshl_b32 {s(sT0)}, {s(sG)}, 8\ns_add_u32 {s(sT0)}, {s(sT0)}, {WS_KVF}\nv_and_b32 {v(VPA_)}, 3, {v(vL)}\nv_lshl_add_u32 {v(VPA_)}, {v(VPA_)}, 2, {s(sFL)}\nv_lshl_add_u32 {v(VPV)}, {v(vL)}, 2, {s(sT0)}\nv_cmp_gt_u32 vcc, 16, {v(vL)}\ns_nop 1\nv_cndmask_b32 {v(VPA_)}, {v(VPA_)}, {v(VPV)}, vcc")
    S.post[int(OPT.get("vpg", 86))] += [vpl]
    def vcheck0():
        P(f"v_mov_b32 {v(VPV)}, {v(VPV)}")
        spin("L_vp", vpl, f"v_cmp_gt_u32 vcc, 1, {v(VPV)}")
    S.blk[("e", 93)] = vcheck0
else:
    ab_ = int(OPT.get('ab', 86)); S.post[95] += [spoll(1)]
    if ASY:
        def hibar():
            P(f"s_cmp_lt_u32 {s(sW)}, 4"); P("s_cbranch_scc1 L_nhb")
            P.cond_begin("hi4"); P("s_barrier"); P.cond_end(); P("L_nhb:")
        S.blk[ab_] = hibar; S.blk[94] = lambda: (kvreq(), kvpoll())
    else: S.blk[ab_] = lambda: (kvreq(), kvpoll())
S.post[94] += [f"ds_read_b128 {v(CSR,4)}, {v(VCSA)} offset:2048"]
S.post[80] += phi_load(1, T + 8)[:2]; S.post[82] += phi_load(1, T + 8)[2:]
PQ = WF
def Gq(r): return XF + 8 * r
Z = XF + 80; GA = XF + 64
VG, VGZ = S1, S2
gsetup = lines(f"s_mul_i32 {s(sK)}, {s(sG)}, {16*KVP_SZ}\ns_lshr_b32 {s(sT0)}, {s(sW)}, 1\ns_mul_i32 {s(sT0)}, {s(sT0)}, 1152\ns_add_u32 {s(sK)}, {s(sK)}, {s(sT0)}\ns_add_u32 {s(sK)}, {s(sK)}, {WS_KVP}")
gsetup += lines(f"v_and_b32 {v(VGZ)}, 15, {v(vL)}\nv_mul_u32_u24 {v(VGZ)}, {KVP_SZ}, {v(VGZ)}\nv_and_b32 {v(VG)}, 16, {v(vL)}\nv_add_u32 {v(VGZ)}, {v(VGZ)}, {v(VG)}\ns_lshl_b32 {s(sT0)}, {s(sSH)}, 4\nv_add_u32 {v(VGZ)}, {s(sT0)}, {v(VGZ)}")
gsetup += lines(f"v_lshrrev_b32 {v(VG)}, 5, {v(vL)}\nv_mul_u32_u24 {v(VG)}, {8*KVP_SZ - 512}, {v(VG)}\nv_add_u32 {v(VG)}, {v(VG)}, {v(VL16)}\ns_lshl_b32 {s(sT0)}, {s(sSH)}, 8\nv_add_u32 {v(VG)}, {s(sT0)}, {v(VG)}")
gl = [[f"buffer_load_dwordx4 {v(Z,4)}, {v(VGZ)}, {s(SWS,4)}, {s(sK)} offen offset:1024 sc1"]]
for r in range(8):
    gl.append(lines(f"s_add_u32 {s(sD1)}, {s(sRT)}, {r}\ns_and_b32 {s(sD1)}, {s(sD1)}, 7\ns_mul_i32 {s(sD1)}, {s(sD1)}, {KVP_SZ}\ns_add_u32 {s(sD1)}, {s(sD1)}, {s(sK)}") +
              [f"buffer_load_dwordx4 {v(Gq(r),4)}, {v(VG)}, {s(SWS,4)}, {s(sD1)} offen sc1"])
S.fill[76] += gsetup
g0_ = int(OPT.get("gg", 94))
gl_in = min(9, 96 - g0_)
S.dmas(gl[:gl_in], g0_)
run_sched(S, [ACC0, ACC1, ACC2])
stamp("sub2")
P.add(aug(ACC2, CSR, None))
for g_ in gl[gl_in:gl_in+2]: P.add(g_)
for i in range(8): P(f"v_cvt_pk_bf16_f32 {v(T+i)}, {v(ACC2+2*i)}, {v(ACC2+2*i+1)}")
P(mfma(ACC1, AX, T, "0"))
P(mfma(ACC2, T + 8, T + 4, "0"))
stamp("phi")
n_tail0 = len(P.ins)
NBT = int(OPT.get('nbt', 3))
bd = sum([b_dma(kk) for kk in (5, 6, 7)[:NBT]], []) + [[]] * (6 - 2 * NBT)
TO = OPT.get("to", "a")
sm1 = softmax(ACC1, PQ, LS, True); sm2 = softmax(ACC2, PQ + 8, LS, True)
if TO == "a":
    P.add(interleave(gl[gl_in+2:], sm1[:30]) + interleave(bd[:2], sm1[30:])); bd = bd[2:]
else:
    P.add(interleave(gl[gl_in+2:], sm1[:30]) + interleave(bd[:4], sm1[30:] + sm2[:33])); bd = bd[4:]; sm2 = sm2[33:]
if not VP: sneed(1, 1)
P(spoll(0))
stamp("qsm")
validate([Z + i for i in range(4)] + [Gq(r) + i for r in range(8) for i in range(4)], T + 4, sum(gl, []))
stamp("kvseen")
aj = sum([a_jobs(kk) for kk in range(8)], [])
n_o0 = len(P.ins)
P(f"v_lshrrev_b32 {v(T+1)}, 5, {v(vL)}")
P(f"v_bfe_u32 {v(T+2)}, {v(vL)}, 4, 1\nv_lshlrev_b32 {v(T+2)}, 9, {v(T+2)}\nv_lshl_add_u32 {v(T+2)}, {v(T+1)}, 3, {v(T+2)}")
P(f"s_lshl_b32 {s(sT0)}, {s(sW)}, 10\ns_add_u32 {s(sT0)}, {s(sT0)}, {L_KVB}\nv_add_u32 {v(T+2)}, {s(sT0)}, {v(T+2)}")
P(f"v_and_b32 {v(T+3)}, 15, {v(vL)}\nv_lshl_add_u32 {v(T+3)}, {v(T+3)}, 4, {v(T+2)}")
P(f"v_cmp_gt_u32 vcc, 32, {v(vL)}\ns_mov_b32 {s(sT0)}, 0x3f80\ns_mov_b32 {s(sT1)}, 0x3f800000")
P(f"v_cndmask_b32 {v(Z)}, {v(Z+2)}, {v(Z)}, vcc\nv_cndmask_b32 {v(Z+1)}, {v(Z+3)}, {v(Z+1)}, vcc")
P(f"v_lshlrev_b32 {v(Z+8)}, 16, {v(Z)}\nv_and_b32 {v(Z+9)}, 0xffff0000, {v(Z)}\nv_lshlrev_b32 {v(Z+10)}, 16, {v(Z+1)}\nv_and_b32 {v(Z+11)}, 0xffff0000, {v(Z+1)}")
for ror in (8, 4, 2, 1):
    for i in range(4): P(f"v_add_f32_dpp {v(Z+8+i)}, {v(Z+8+i)}, {v(Z+8+i)} row_ror:{ror} row_mask:0xf bank_mask:0xf")
P(f"v_cvt_pk_bf16_f32 {v(Z)}, {v(Z+8)}, {v(Z+9)}\nv_cvt_pk_bf16_f32 {v(Z+1)}, {v(Z+10)}, {v(Z+11)}")
P(f"ds_write_b64 {v(T+2)}, {v(Z,2)} offset:256")
def ga(i): return GA + (i & 3) + 8 * (i >> 2)
for i in range(4):
    P(f"v_lshlrev_b32 {v(ga(2*i))}, 16, {v(Gq(0)+i)}\nv_and_b32 {v(ga(2*i+1))}, 0xffff0000, {v(Gq(0)+i)}")
for r in range(1, 8):
    for i in range(4):
        P(f"v_dot2c_f32_bf16 {v(ga(2*i))}, {s(sT0)}, {v(Gq(r)+i)}\nv_dot2c_f32_bf16 {v(ga(2*i+1))}, {s(sT1)}, {v(Gq(r)+i)}")
for i in range(4): P(f"v_permlane32_swap_b32 {v(ga(i))}, {v(ga(i+4))}")
for i in range(4): P(f"v_add_f32 {v(ga(i))}, {v(ga(i))}, {v(ga(i+4))}")
P(f"v_cvt_pk_bf16_f32 {v(GA)}, {v(GA)}, {v(GA+1)}\nv_cvt_pk_bf16_f32 {v(GA+1)}, {v(GA+2)}, {v(GA+3)}")
P(f"ds_write_b64 {v(T+3)}, {v(GA,2)}")
stamp("gsum")
P(f"v_and_b32 {v(T)}, 31, {v(vL)}\nv_min_u32 {v(T)}, 16, {v(T)}\nv_and_b32 {v(T+1)}, 32, {v(vL)}\nv_add_u32 {v(T)}, {v(T)}, {v(T+1)}\nv_lshlrev_b32 {v(T)}, 4, {v(T)}")
P(f"s_lshl_b32 {s(sT0)}, {s(sHALF)}, 12\ns_add_u32 {s(sT0)}, {s(sT0)}, {L_KVB}\nv_add_u32 {v(T)}, {s(sT0)}, {v(T)}")
body = P.ins[n_o0:]; del P.ins[n_o0:]
for i, g_ in enumerate(bd):
    P.add(g_); P.ins += body[len(body)*i//len(bd): len(body)*(i+1)//len(bd)]
stamp("pre1")
sneed(1, 0)
stamp("post1")
if NP: aj = aj[:4]
P.add(interleave(aj, sm2))
stamp("sm2")
P(f".waitvm b{4+NBT} lgkm0")
if OPT.get("tp"):
    per = int(OPT["tp"]); body = P.ins[n_tail0:]; del P.ins[n_tail0:]; c = 0; lv = 3
    P("s_setprio 3")
    for I in body:
        P.ins.append(I)
        if I.kind == "valu" and not I.cond and not I.op.startswith("v_cmp"):
            c += 1
            if c % per == 0: lv = (lv - 1) & 3; P(f"s_setprio {lv}")
stamp("ob0")
P("s_barrier")
stamp("ob1")
for i in range(4): P(f"ds_read_b128 {v(Gq(i),4)}, {v(T)} offset:{1024*i}")
P(mfma(ACC0, Gq(0), PQ, "0")); P(mfma(ACC1, Gq(2), PQ + 8, "0"))
P(mfma(ACC0, Gq(1), PQ + 4)); P(mfma(ACC1, Gq(3), PQ + 12))
if NP: P(spoll(0))
EA = int(OPT.get("ea", 0))
if EA and not NP:
    for kk in range(8, 8 + EA): P.add(a_jobs(kk)[0])
for hl, acc in enumerate((ACC0, ACC1)):
    P(f"v_add_f32 {v(acc+8)}, {f2u(1e-6):#x}, {v(acc+8)}\nv_rcp_f32 {v(acc+8)}, {v(acc+8)}")
    for i in range(0, 8, 2): P(f"v_pk_mul_f32 {v(acc+i,2)}, {v(acc+i,2)}, {v(acc+8,2)} op_sel_hi:[1,0]")
    for i in range(4): P(f"v_cvt_pk_bf16_f32 {v(T+4*hl+i)}, {v(acc+2*i)}, {v(acc+2*i+1)}")
    P(f"buffer_store_dwordx4 {v(T+4*hl,4)}, {v(VL16)}, {s(SWS,4)}, {s(sOS)} offen offset:{1024*hl} sc1 ; ost")
stamp("p1end")
if V3: phase2_v3((8,), (), False)
elif V2: phase2_v2(tuple(range(5 + NBT, 9)), False)
else: phase2(("B6", "B7"), "A4 A5 A6 B8 A7 B9 A8 B10 A9 B11 A10 B12 A11 B13 A12 B14 A13 B15 B16 B17 A14 A15 A16 A17")

P("L_ffn:")
P(".reset")
setup(True)
KAREA[:] = [RC, RA+2*Q, RA+3*Q, RB, RB+Q, RB+2*Q, RA, RA+Q, RB+3*Q]
MC = ACC2; CSF = ACC2 + 4
S = Sched(112)
common_sched(S, True, None, MC)
S.post[30] += [f"ds_read_b128 {v(CSF,4)}, {v(VCSA)}"]
if not NP: S.post[40] += [f"s_add_u32 {s(sT2)}, {s(sH0)}, 4096", f"s_add_u32 {s(sK)}, {s(sH0)}, 8192"]
pzs = [[f"buffer_store_dwordx4 {v(PZ,4)}, {v(VL16)}, {s(SWS,4)}, {s(so)} offen offset:{off} sc1 ; tag=h1"]
       for so, off in ((sT2, 0), (sT2, 1024), (sK, 0), (sK, 1024), (sH3, 0))[:0 if NP else 2 if OFFL else 5]]
for g_, G in zip(pzs, [int(x) for x in OPT.get("pz", "50,56,59,67,70").split(",")]): S.post[G] += g_
S.post[31] += stamp_i("pass1")
fill = stats_final() + aug(ACC0, CSF, BIAS)
fill += [f"v_mul_f32 {v(K1)}, {f2u(GC1):#x}, {v(RSTD)}", f"v_mul_f32 {v(K2)}, {v(RSTD)}, {v(RSTD)}",
         f"v_mul_f32 {v(K2)}, {v(K2)}, {v(RSTD)}", f"v_mul_f32 {v(K2)}, {f2u(GC2):#x}, {v(K2)}"]
S.spread(fill, 32, 39)
S.spread(gelu(ACC0, 16) + hstore(sH0, 2, "h1") + [f"s_add_u32 {s(sH0)}, {s(sH0)}, 4096"], 39, 64)
S.post[62] += [f"ds_read_b128 {v(CSF,4)}, {v(VCSA)} offset:1024"]
S.post[63] += stamp_i("sub1")
S.spread(aug(ACC1, CSF, BIAS + 1), 64, 66)
S.spread(gelu(ACC1, 16) + hstore(sH0, 2, "h2") + [f"s_add_u32 {s(sH0)}, {s(sH0)}, 4096"], 67, 96)
w3 = sum([w3quarter(q, 3584) for q in range(4)], [])
for g_, G in zip(w3 + b_dma(0), [int(x) for x in OPT.get("w3", "64,68,72,76,74,75" if OPT.get("few", "1") == "1" else "48,54,60,72,75,76").split(",")]): S.dma[G] += g_
S.dmas(b_dma(1), 78, 2); S.dmas(b_dma(2), 82, 2); S.dmas(b_dma(3), 86, 2); S.dmas(b_dma(4), 90, 2); S.dmas(b_dma(5), 98, 2)
S.pre[94] += [".waitvm w3 lgkm0", "s_barrier"]
S.post[94] += [f"ds_read_b128 {v(CSF,4)}, {v(VCSA)} offset:2048"]
S.post[95] += stamp_i("sub2")
if V2 and PX1:
    for j, G in zip((1, 2, 3), [int(x) for x in OPT.get("pxg", "91,93,102").split(",")]): S.post[G] += xoff(j, True) + [f"buffer_store_dwordx4 {v(PZ,4)}, {v(VL16)}, {s(SWS,4)}, {s(sT0)} offen sc1 ; tag=px"]
S.fill[96] += aug(ACC0, CSF, BIAS + 2)
if OFFL: S.post[106] += [f"s_sub_u32 {s(sT2)}, {s(sFO)}, 1024", f"s_buffer_load_dword {s(sK)}, {s(SWS,4)}, {s(sT2)} glc"]
S.spread(gelu(ACC0, 16), 98, 112)
if V3: S.post[97] += va3_init
aj = sum([a_jobs(kk) for kk in range(4 if NP else 8 if V2 and not V3 else 6)], []) + [[]] * 8
S.dmas(aj[:6], 106); aj = aj[2:]
for i in range(0, 16, 2): S.post[96 + i] += [m16(MC, SEL, WF + 4 * (i & 3), "0" if i == 0 else None)]
run_sched(S, [ACC0, ACC1, ACC0, ACC1])
t = T + 16
P(f"v_and_b32 {v(t)}, 31, {v(vL)}\ns_lshl_b32 {s(sT0)}, {s(sHALF)}, 4\nv_xor_b32 {v(t)}, {s(sT0)}, {v(t)}\nv_lshlrev_b32 {v(t)}, 4, {v(t)}\nv_add_u32 {v(t)}, {L_CS+3072}, {v(t)}")
P(f"v_add_u32 {v(t+1)}, {s(sW34)}, {v(VCSA)}")
P(f"ds_write_b32 {v(t+1)}, {v(MC)} offset:3072")
P.add(aj[4])
XO = 4096 if V2 else 1024
P(f"s_add_u32 {s(sT1)}, {s(sMB if V2 else sM0x)}, {KAREA[8]}\ns_xor_b32 {s(sT0)}, {s(sT1)}, 8192\nv_add_u32 {v(t+1)}, {s(sT0)}, {v(VL16)}\nv_add_u32 {v(AB)}, {s(sT1)}, {v(VL16)}")
P(f"ds_write_b128 {v(t+1)}, {v(ACC1+8,4)}\nds_write_b128 {v(t+1)}, {v(ACC1+12,4)} offset:{XO}")
P(".waitvm b5 lgkm0")
P("s_barrier")
stamp("sub3")
P(f"ds_read_b128 {v(CSF,4)}, {v(t)}")
P(f"ds_read_b128 {v(ACC0,4)}, {v(AB)}\nds_read_b128 {v(ACC0+4,4)}, {v(AB)} offset:{XO}")
P.add(aj[5])
P.add(aug(ACC1, CSF, BIAS + 3))
P.add(aj[6] + aj[7])
if NP: P.add(flag(2, "h2"))
for i in range(0, 8, 2): P(f"v_pk_add_f32 {v(ACC1+i,2)}, {v(ACC1+i,2)}, {v(ACC0+i,2)}")
stamp("x7")
gt = gelu(ACC1, 8, True, out=BIAS); h3 = hstore(sH0, 2, "h3")
sneed(1, 1)
if OFFL: own_check()
P.add(aj[8] + gt[:10] + aj[9] + gt[10:20] + [h3[0]] + gt[20:30] + [h3[1]] + gt[30:] + hstore(sH3, 1, "h4", BIAS))
stamp("p1end")
if V3: phase2_v3((6, 7, 8), (6, 7), True)
elif V2: phase2_v2((6, 7, 8), True)
else: phase2(("A4", "A5"), "B6 A6 B7 A7 B8 B9 A8 B10 A9 B11 A10 B12 A11 B13 A12 B14 A13 B15 B16 B17 A14 A15 A16 A17", True)

P("L_end:")
P("s_endpgm")

ins = P.ins
for I in ins:
    if "; nodef" in I.text: I.defs = []
if OPT.get("nodma"): ins = [I for I in ins if I.kind != "dma"]
if OPT.get("notr"): ins = [I for I in ins if not I.op.startswith("ds_read_b64_tr")]
if OPT.get("nofmac"): ins = [I for I in ins if not (I.op.startswith("v_fmac") or (I.op == "v_and_b32" and "0xffff0000" in I.text) or (I.op == "v_lshlrev_b32" and I.ops[1] == "16"))]
if OPT.get("nom16"): ins = [I for I in ins if "16x16x32" not in I.op]
if OPT.get("notrans"): ins = [I for I in ins if not I.op.startswith(("v_exp", "v_rcp"))]
if OPT.get("novalu"): ins = [I for I in ins if not I.op.startswith(("v_exp", "v_rcp", "v_mul_f32", "v_fma_f32", "v_cvt_pk", "v_max3", "v_add_f32"))]
if OPT.get("nopk"): ins = [I for I in ins if not I.op.startswith(("v_pk_", "v_dot2c"))]
if OPT.get("noval"): ins = [I for I in ins if not (I.op == "s_cbranch_vccnz" and "_slow" in I.text)]
if OPT.get("noa"): ins = [I for I in ins if not (I.kind == "vld" and "x4" in I.op and "sc1" in I.mods)]
if OPT.get("nob"): ins = [I for I in ins if not (I.kind == "dma" and (s(SW2,4) in I.text or s(SWO,4) in I.text))]
if OPT.get("anosc"):
    for I in ins:
        if I.kind == "vld" and "x4" in I.op: I.text = I.text.replace(" sc1", " " + OPT["anosc"].replace("0", ""))
if OPT.get("nopz"): ins = [I for I in ins if not (I.kind == "vst" and "x4" in I.op and (v(PZ,4) in I.text or v(AAUG,4) in I.text) and s(SWS,4) in I.text)]
if OPT.get("plain"):
    for I in ins:
        if I.kind == "vst" and "x4" in I.op and s(SWS,4) in I.text and ("tag=h" in I.text or "tag=po" in I.text or "; ost" in I.text): I.text = I.text.replace(" sc1", "")
if OPT.get("nohs"):
    ins = [I for I in ins if not (I.op.startswith("s_buffer_load") or I.text.startswith((".waitvm h", ".waitvm po", ".waitvm zf")) or (I.op == "s_branch" and ("L_sp" in I.text or "L_ncs" in I.text or "L_oc" in I.text) and "spkv1" not in I.text))]
    for I in ins:
        if I.text.startswith(".waitvm pz"): I.text = ".waitvm none lgkm0"
if OPT.get("nost"): ins = [I for I in ins if not (I.kind == "vst" and "x4" in I.op and "tag=h" in I.text)]
if OPT.get("nomfma"): ins = [I for I in ins if I.kind != "mfma"]
if STAMP:
    for I in ins:
        if I.op in ("s_memrealtime", "s_memtime"): I.kind = "salu"
if OPT.get("nopx"): ins = [I for I in ins if not (I.kind == "vst" and "tag=px" in I.text)]
if OPT.get("nopo"): ins = [I for I in ins if not (I.kind == "vst" and "x4" in I.op and I.ops[0] == v(AAUG,4) and s(SWS,4) in I.text)]
ins = auto_wait(ins)
st = []
ins = hazards(ins, st)
hdr = open("parallel_sum__linear_kernel_hedgehog__dense_activation_gelu__prompt.s.ref").read().split("; Override")[0]
out = hdr + f"; @launch grid=(256,1,1) block=(512,1,1) lds={LDS_SIZE}\n"
out += f'.amdgcn_target "amdgcn-amd-amdhsa--gfx950"\n.text\n.globl {NAME}\n.p2align 8\n.type {NAME},@function\n{NAME}:\n'
out += render(ins)
out += f""".section .rodata,"a"
.p2align 6
.amdhsa_kernel {NAME}
  .amdhsa_next_free_vgpr 256
  .amdhsa_next_free_sgpr 102
  .amdhsa_accum_offset 256
  .amdhsa_group_segment_fixed_size 0
  .amdhsa_kernarg_size 96
  .amdhsa_user_sgpr_count 2
  .amdhsa_user_sgpr_kernarg_segment_ptr 1
  .amdhsa_system_sgpr_workgroup_id_x 1
.end_amdhsa_kernel
"""
open(sys.argv[1], "w").write(out)
print(f"instrs={sum(1 for I in ins if I.kind not in ('label','dir'))} nop-sites={len(st)} nop-states={sum(n for n,_ in st)}", file=sys.stderr)
if OPT.get("nops"):
    for n, tx in st: print(n, tx, file=sys.stderr)
```

```python
import sys, math, struct
from ir import *

NAME = "parallel_sum__linear_kernel_hedgehog__dense_activation_gelu__prompt_kernel"
OPT = dict(a.split("=") for a in sys.argv[2:] if "=" in a)
STAMP = int(OPT.get("stamp", 0))

def f2u(x): return struct.unpack("<I", struct.pack("<f", x))[0]
LOG2E = 1.4426950408889634
GC1 = -2.0 * LOG2E * math.sqrt(2.0 / math.pi)
GC2 = GC1 * 0.044715

HF_RB = 144 * 1024
WS_KVP = 0xA00000
KVP_SZ = 4608
WS_FLG = 0xC00000
WS_KVF = 0xC08000
WS_STAMP = 0xD00000
WS_X = 0x1000000
WS_SIZE = 0x1800000
V5 = OPT.get('v5', '0') == '1'
XRG = OPT.get('xr', '0') == '1'
NP = OPT.get('np', '1') == '1'
if NP: OPT['r8'] = '0'
V3 = OPT.get('p2', '2') == '3'
V2 = OPT.get('p2', '2') in '23'
RA, RB, RC = 0, 65536, 131072
L_KVB = 147456
L_CS = 155648
L_ST = L_CS + 4096
L_WPHI = L_CS + 6144
LDS_SIZE = 163840
SPIN_MAX = 1 << 15

sW, sRT, sG, sM, sN = 3, 4, 5, 6, 7
SX, SW2, SWS, SWT, SAUX, SDBG, SWO, SOUT = 8, 12, 16, 20, 24, 28, 36, 40
sXo, sWo, sROT, sC1 = 32, 33, 34, 35
SB2 = 92
sFL, sOo, sM0x, sT0, sT1, sSIG, sONE, sFO, sHALF, sHo, sWq, sW3, sT2, sCNT, sW34, sT3 = range(44, 60)
sEX = 60
sH0, sH3, sM4, sK = 62, 63, 64, 65
sST = 66
sB2o, sBOo = 90, 91
sA0, sA1, sR4, sSH, sD0, sD1 = range(96, 102)
sOK = sSIG
sQ = [sXo, sWo, sROT, sC1]
sPL = 28
VCSA = 0; vL = 1
AX = 2; AW = 6; AB = 10; VZ, VFV = 12, 13
VX0, VX1, VW, VB, VW3 = 14, 15, 16, 17, 18
VSTA, S1, S2, CS0 = 19, 20, 21, 22
VW0 = 22
RSTD, STD, K1, K2, VL16 = 23, 24, 25, 26, 27
BAUG, AAUG, SEL, BIAS = 28, 32, 36, 40
T = 44
WF = 64
ACC0, ACC1, ACC2 = 80, 96, 112
XF = 128
VTD = int(OPT.get('vtd', 15))
PZ = ACC2 + 8

P = Prog()
STI = dict(start=0, kernarg=1, it0=2, pass1=3, sub1=4, sub2=5, qsm=6, sub3=6, kvseen=7, x7=7, p1end=8, hseen=9, p2mm=10, end=11)
if OPT.get("sp") == "p2": STI = dict(start=0, p1end=1, k1=2, k3=3, k5=4, k7=5, k9=6, k11=7, k13=8, k15=9, p2mm=10, end=11)
if OPT.get("sp") == "att": STI = dict(start=0, sub1=1, kv0=2, kv1=3, kv2=4, sub2=5, qsm=6, kvseen=7, sm2=8, gsum=9, p1end=10, end=11)
if OPT.get("sp", "").startswith("l:"): STI = {n: i for i, n in enumerate(["start"] + OPT["sp"][2:].split(","))}
def stamp_i(name):
    if not STAMP or name not in STI: return []
    i = STI[name]
    return [f"{'s_memrealtime' if STAMP == 1 else 's_memtime'} {s(sST + 2*i, 2)} ; stamp {i} {name}"]
def stamp(name): P.add(stamp_i(name))

def mfma(d, a, b, c=None):
    return f"v_mfma_f32_32x32x16_bf16 {v(d,16)}, {v(a,4)}, {v(b,4)}, {v(d,16) if c is None else c}"
def m16(d, a, b, c=None):
    return f"v_mfma_f32_16x16x32_bf16 {v(d,4)}, {v(a,4)}, {v(b,4)}, {v(d,4) if c is None else c}"
def srd(base, nbytes):
    P(f"s_mov_b32 {s(base+2)}, {nbytes}\ns_mov_b32 {s(base+3)}, 0x20000")
def lines(t): return [l for l in t.split("\n") if l.strip()]

P("s_cmp_ge_u32 s2, 256")
P("s_cbranch_scc1 L_end")
stamp("start")
if OPT.get("exit0"): P("s_endpgm")
if OPT.get("cpf", "1") == "3":
    P(f"s_getpc_b64 {s(sEX,2)}")
    P("L_pc0:")
    P(f"v_subrev_u32 v3, 320, v0\nv_cmp_gt_u32 vcc, 16, v3\ns_lshr_b32 {s(sT0)}, s2, 3\ns_lshl_b32 {s(sT0)}, {s(sT0)}, 11")
    P("s_cbranch_vccz L_ncp0")
    P.cond_begin("cp0")
    P(f"v_and_b32 v3, 15, v3\nv_lshlrev_b32 v3, 7, v3\nv_add_u32 v3, {s(sT0)}, v3\nv_min_u32 v3, L_end-L_pc0, v3")
    P(f"global_load_dword v253, v3, {s(sEX,2)}")
    P.cond_end()
    P("L_ncp0:")
if OPT.get("cpf", "1") == "2":
    P(f"s_getpc_b64 {s(sEX,2)}")
    P("L_pc0:")
    P(f"v_lshlrev_b32 v3, 7, v0")
    P(f"v_min_u32 v3, L_end-L_pc0, v3")
    P(f"global_load_dword v253, v3, {s(sEX,2)}")
P(f"s_load_dwordx2 {s(SX,2)}, s[0:1], 0")
P(f"s_load_dwordx2 {s(SWT,2)}, s[0:1], 8")
P(f"s_load_dwordx2 {s(sA0,2)}, s[0:1], 40")
P(f"v_lshrrev_b32 v2, 6, v0")
P(f"v_and_b32 {v(vL)}, 63, v0")
P(f"s_lshr_b32 {s(sT1)}, s2, 3")
P(f"v_readfirstlane_b32 {s(sW)}, v2")
OWN = False
AF_ = OPT.get('af', '0') == '1'
P(f"s_and_b32 {s(sRT)}, s2, 4\ns_lshl_b32 {s(sRT)}, {s(sRT)}, 1\ns_and_b32 {s(sT2)}, {s(sT1)}, 7\ns_add_u32 {s(sRT)}, {s(sRT)}, {s(sT2)}")
P(f"v_lshrrev_b32 v2, 3, {v(vL)}\nv_and_b32 v3, 7, {v(vL)}\nv_lshrrev_b32 v4, 4, {v(vL)}")
P(f"s_lshl_b32 {s(sXo)}, {s(sRT)}, 17\ns_lshl_b32 {s(sT2)}, {s(sW)}, 14\ns_add_u32 {s(sXo)}, {s(sXo)}, {s(sT2)}")
P(f"v_xor_b32 v5, v3, v4\nv_lshl_add_u32 v5, v5, 4, {s(sXo)}\nv_lshl_add_u32 {v(VX0)}, v2, 10, v5")
P(f"s_lshr_b32 {s(sN)}, {s(sT1)}, 3\ns_lshl_b32 {s(sT2)}, {s(sN)}, 1\ns_add_u32 {s(sROT)}, {s(sRT)}, {s(sT2)}\ns_and_b32 {s(sROT)}, {s(sROT)}, {0 if OPT.get('norot') else OPT.get('rm', 7)}")
P(f"v_xor_b32 v5, 64, {v(VX0)}\nv_add_u32 {v(VX1)}, {8192-1024}, v5")
srd(SX, 2097152)
P(f"s_lshl_b32 {s(sM0x)}, {s(sW)}, 11\ns_lshl_b32 {s(sK)}, {s(sROT)}, 7\ns_mov_b32 m0, {s(sM0x)}")
P(f"v_and_b32 v4, 1, v4\nv_lshlrev_b32 v4, 2, v4\nv_xor_b32 v4, v3, v4\nv_lshlrev_b32 v4, 4, v4")
P(f"s_and_b32 {s(sM)}, s2, 3\ns_lshl_b32 {s(sG)}, {s(sM)}, 1\n" + (f"s_and_b32 {s(sT2)}, {s(sN)}, 1" if AF_ else f"s_lshr_b32 {s(sT2)}, {s(sT1)}, 4") + f"\ns_add_u32 {s(sG)}, {s(sG)}, {s(sT2)}")
P(f"s_lshr_b32 {s(sD0)}, {s(sM0x)}, 1")
P("s_waitcnt lgkmcnt(0)")
stamp("kernarg")
P(f"buffer_load_dwordx4 {v(VX0)}, {s(SX,4)}, {s(sK)} offen lds")
P(f"buffer_load_dwordx4 {v(VX1)}, {s(SX,4)}, {s(sK)} offen offset:1024 lds")
P(f"s_load_dwordx2 {s(SWS,2)}, s[0:1], 88")
P(f"s_load_dwordx2 {s(SDBG,2)}, s[0:1], 80")
P(f"s_load_dwordx2 {s(SW2,2)}, s[0:1], 56")
P(f"s_load_dwordx2 {s(SWO,2)}, s[0:1], 24")
P(f"s_load_dwordx2 {s(SOUT,2)}, s[0:1], 72")
P(f"s_load_dwordx2 {s(SB2,2)}, s[0:1], 64")
assert V2
P(f"s_bitcmp1_b32 {s(sT1)}, {4 if AF_ else 3}")
P("s_cbranch_scc1 L_ffn")

def item1(it, pitch):
    q = it & 3
    return [[f"s_add_u32 m0, {s(sM0x)}, {RA+q*16384}", f"s_mul_i32 {s(sD1)}, {s(sK)}, {pitch//2}",
             f"buffer_load_dwordx4 {v(VX0)}, {s(SX,4)}, {s(sK)} offen lds"],
            [f"buffer_load_dwordx4 {v(VX1)}, {s(SX,4)}, {s(sK)} offen offset:1024 lds"],
            [f"s_add_u32 m0, {s(sD0)}, {RB+it*8192}", f"s_add_u32 {s(sK)}, {s(sK)}, 128",
             f"buffer_load_dwordx4 {v(VW0)}, {s(SWT,4)}, {s(sD1)} offen lds ; tag=it{it}",
             f"s_and_b32 {s(sK)}, {s(sK)}, 1023"]]
def wquarter(region, q, coloff, pitch, tag):
    return [[f"s_add_u32 m0, {s(sM0x)}, {region+q*16384}", f"s_add_u32 {s(sD1)}, {s(sQ[q])}, {coloff}",
             f"buffer_load_dwordx4 {v(VW)}, {s(SWT,4)}, {s(sD1)} offen lds"],
            [f"s_add_u32 {s(sD1)}, {s(sD1)}, {8*pitch-1024}",
             f"buffer_load_dwordx4 {v(VW)}, {s(SWT,4)}, {s(sD1)} offen offset:1024 lds ; tag={tag}"]]
def w3quarter(q, pitch):
    return [[f"s_lshr_b32 {s(sD1)}, {s(sM0x)}, 1", f"s_add_u32 m0, {s(sD1)}, {RA+q*8192}", "s_nop 0",
             f"buffer_load_dwordx4 {v(VW3)}, {s(SWT,4)}, {s(sQ[q])} offen lds ; tag=w3"]]

def spin(label, load, cmp):
    P(f"s_mov_b32 {s(sCNT)}, 0")
    P(f"{label}:")
    P(cmp)
    P(f"s_add_u32 {s(sCNT)}, {s(sCNT)}, 1")
    P(f"s_cbranch_vccz {label}_ok")
    P(f"s_cmp_gt_u32 {s(sCNT)}, {SPIN_MAX}")
    P(f"s_cbranch_scc1 {label}_ok")
    P("s_sleep 1")
    old = P._cond; P._cond = label
    P(load)
    P("s_waitcnt vmcnt(0)")
    P._cond = old
    P(f"s_branch {label}")
    P(f"{label}_ok:")

def gelu(acc, n, pk=False, t0=T, out=T):
    L = []
    for g4 in range(0, n, 4):
        t = t0 + 8 + (g4 & 4)
        a = [acc + g4 + i for i in range(4)]
        if pk:
            L += [f"v_pk_mul_f32 {v(t+i,2)}, {v(a[i],2)}, {v(a[i],2)}" for i in (0, 2)]
            L += [f"v_pk_fma_f32 {v(t+i,2)}, {v(t+i,2)}, {v(K2,2)}, {v(STD,2)} op_sel:[0,0,1] op_sel_hi:[1,0,1]" for i in (0, 2)]
            L += [f"v_pk_mul_f32 {v(t+i,2)}, {v(a[i],2)}, {v(t+i,2)}" for i in (0, 2)]
        else:
            L += [f"v_mul_f32 {v(t+i)}, {v(a[i])}, {v(a[i])}" for i in range(4)]
            L += [f"v_fma_f32 {v(t+i)}, {v(t+i)}, {v(K2)}, {v(K1)}" for i in range(4)]
            L += [f"v_mul_f32 {v(t+i)}, {v(a[i])}, {v(t+i)}" for i in range(4)]
        L += [f"v_exp_f32 {v(t+i)}, {v(t+i)}" for i in range(4)]
        if pk: L += [f"v_pk_fma_f32 {v(t+i,2)}, {v(t+i,2)}, {v(STD,2)}, {v(STD,2)} op_sel_hi:[1,0,0]" for i in (0, 2)]
        else: L += [f"v_fma_f32 {v(t+i)}, {v(t+i)}, {v(STD)}, {v(STD)}" for i in range(4)]
        L += [f"v_rcp_f32 {v(t+i)}, {v(t+i)}" for i in range(4)]
        if pk: L += [f"v_pk_mul_f32 {v(t+i,2)}, {v(a[i],2)}, {v(t+i,2)}" for i in (0, 2)]
        else: L += [f"v_mul_f32 {v(t+i)}, {v(a[i])}, {v(t+i)}" for i in range(4)]
        pr = out + (g4 >> 1)
        L += [f"v_cvt_pk_bf16_f32 {v(pr)}, {v(t)}, {v(t+1)}", f"v_cvt_pk_bf16_f32 {v(pr+1)}, {v(t+2)}, {v(t+3)}"]
    return L
def hstore(soff, n, tagn, src=T):
    return [f"buffer_store_dwordx4 {v(src+4*j,4)}, {v(VL16)}, {s(SWS,4)}, {s(soff)} offen offset:{1024*j} sc1 ; tag={tagn}" for j in range(n)]
assert K1 == STD + 1

def sum4(d, r):
    return [f"v_add_f32 {v(d)}, {v(r)}, {v(r+1)}", f"v_add_f32 {v(r+2)}, {v(r+2)}, {v(r+3)}", f"v_add_f32 {v(d)}, {v(d)}, {v(r+2)}"]

MS, U = T + 4, T + 16
CSR = T + 12
MC = AAUG

def stats_final():
    t = T + 16
    return [f"v_add_f32 {v(S1)}, {v(MS)}, {v(MS+2)}", f"v_add_f32 {v(S2)}, {v(MS+1)}, {v(MS+3)}",
          f"v_mul_f32 {v(S1)}, {f2u(-1.0/512):#x}, {v(S1)}",
          f"v_mul_f32 {v(t)}, {v(S1)}, {v(S1)}",
          f"v_fma_f32 {v(S2)}, {v(S2)}, {s(sT3)}, -{v(t)}",
          f"v_max_f32 {v(S2)}, 0, {v(S2)}",
          f"v_add_f32 {v(S2)}, {f2u(1e-5):#x}, {v(S2)}",
          f"v_rsq_f32 {v(RSTD)}, {v(S2)}",
          f"v_cvt_pk_bf16_f32 {v(t)}, {v(S1)}, {v(S1)}",
          f"v_mul_f32 {v(STD)}, {v(S2)}, {v(RSTD)}",
          f"v_and_b32 {v(t+1)}, 0xffff0000, {v(t)}",
          f"v_sub_f32 {v(t+1)}, {v(S1)}, {v(t+1)}",
          f"v_cvt_pk_bf16_f32 {v(BAUG)}, {v(S1)}, {v(t+1)}",
          f"v_cvt_pk_bf16_f32 {v(BAUG+1)}, {v(S1)}, {v(STD)}",
          f"v_and_b32 {v(t+1)}, 0xffff0000, {v(BAUG+1)}",
          f"v_sub_f32 {v(t+1)}, {v(STD)}, {v(t+1)}",
          f"v_cmp_gt_u32 vcc, 32, {v(vL)}",
          f"v_cvt_pk_bf16_f32 {v(BAUG+2)}, {v(t+1)}, 0",
          f"v_cndmask_b32 {v(BAUG)}, 0, {v(BAUG)}, vcc",
          f"v_cndmask_b32 {v(BAUG+1)}, 0, {v(BAUG+1)}, vcc",
          f"v_cndmask_b32 {v(BAUG+2)}, 0, {v(BAUG+2)}, vcc"]

def aug(acc, part, bias):
    t = T + 18; dst = AAUG
    L = sum4(CS0, part) + [f"v_cvt_pk_bf16_f32 {v(dst)}, {v(CS0)}, {v(CS0)}",
         f"v_and_b32 {v(t)}, 0xffff0000, {v(dst)}",
         f"v_sub_f32 {v(t)}, {v(CS0)}, {v(t)}"]
    if bias is None:
        L += [f"v_cvt_pk_bf16_f32 {v(dst+1)}, {v(t)}, 0"]
    else:
        L += [f"v_cvt_pk_bf16_f32 {v(t)}, {v(t)}, 0", f"v_mov_b32 {v(dst+2)}, {v(bias)}",
              f"v_lshl_or_b32 {v(dst+1)}, {v(bias)}, 16, {v(t)}"]
    return L + [mfma(acc, dst, BAUG)]

def flag(level, tag):
    return [f".waitvm {tag}", f"v_mov_b32 {v(VFV)}, {level}",
            f"buffer_store_dword {v(VFV)}, {v(VZ)}, {s(SWS,4)}, {s(sFO)} offen sc1"]

Q = 16384
KAREA = []
sSK = sM4 if V2 else sSH
sMB = sSIG
def rot_k(kk, dst):
    if kk < 8 and OPT.get("r8", "1") == "1": return [f"s_add_u32 {s(dst)}, {s(sR4)}, {kk}", f"s_and_b32 {s(dst)}, {s(dst)}, 7", f"s_add_u32 {s(dst)}, {s(dst)}, {s(sSK)}"]
    if kk < 12: return [f"s_add_u32 {s(dst)}, {s(sR4)}, {kk}", f"s_and_b32 {s(dst)}, {s(dst)}, 3", f"s_add_u32 {s(dst)}, {s(dst)}, {s(sSK)}"] + \
                       ([f"s_add_u32 {s(dst)}, {s(dst)}, {kk & ~3}"] if kk & ~3 else [])
    if kk < 14: return [f"s_mul_i32 {s(dst)}, {s(sSK)}, 6", f"s_sub_u32 {s(dst)}, {kk}, {s(dst)}"]
    return [f"s_add_u32 {s(dst)}, {s(sR4)}, {kk-14}", f"s_and_b32 {s(dst)}, {s(dst)}, 3"]
def rot_p(sg, dst, sh):
    add = lambda x: ([f"s_add_u32 {s(dst)}, {s(dst)}, {x}"] if x else [])
    shf = (lambda: add(sh)) if isinstance(sh, int) else (lambda: [f"s_add_u32 {s(dst)}, {s(dst)}, {s(sh[0])}"])
    if sg < 4: return [f"s_add_u32 {s(dst)}, {s(sR4)}, {sg}", f"s_and_b32 {s(dst)}, {s(dst)}, 3"] + shf()
    if sg < 6: return [f"s_add_u32 {s(dst)}, {s(sR4)}, {sg}", f"s_and_b32 {s(dst)}, {s(dst)}, 1", f"s_add_u32 {s(dst)}, {s(dst)}, 4"] + shf()
    if sg == 6: return [f"s_mov_b32 {s(dst)}, {6 - 6*sh}"] if isinstance(sh, int) else [f"s_mul_i32 {s(dst)}, {s(sh[0])}, 6", f"s_sub_u32 {s(dst)}, 6, {s(dst)}"]
    return [f"s_add_u32 {s(dst)}, {s(sR4)}, {sg}", f"s_and_b32 {s(dst)}, {s(dst)}, 1"]
VBO = VW3
vbo_init = [f"v_lshrrev_b32 {v(VBO)}, 2, {v(vL)}", f"v_lshlrev_b32 {v(VBO)}, 10, {v(VBO)}", f"v_and_b32 {v(VFV)}, 48, {v(VL16)}", f"v_add_u32 {v(VBO)}, {v(VBO)}, {v(VFV)}"]
def b_dma(kk):
    if V5 and kk >= 7:
        return [[f"s_add_u32 {s(sD0)}, {s(sW3)}, {(kk-7)*8 + e*4}", f"s_and_b32 {s(sD0)}, {s(sD0)}, 15", f"s_lshl_b32 {s(sD0)}, {s(sD0)}, 14",
                 f"s_add_u32 m0, {s(sMB)}, {KAREA[kk] + e*4096}", f"s_add_u32 {s(sD0)}, {s(sD0)}, {s(sBOo)}",
                 f"buffer_load_dwordx4 {v(VBO)}, {s(SWO,4)}, {s(sD0)} offen lds ; tag=b{kk}"] for e in range(2)]
    if V3:
        sr, so = (SW2, sB2o) if kk < 7 else (SWO, sBOo)
        return [rot_p(kk, sD0, [sHALF]) + [f"s_lshl_b32 {s(sD0)}, {s(sD0)}, 15", f"s_add_u32 m0, {s(sMB)}, {KAREA[kk]}", f"s_add_u32 {s(sD0)}, {s(sD0)}, {s(so)}",
                 f"buffer_load_dwordx4 {v(VB)}, {s(sr,4)}, {s(sD0)} offen lds"],
                [f"s_add_u32 m0, {s(sMB)}, {KAREA[kk] + 4096}", f"s_add_u32 {s(sD0)}, {s(sD0)}, 16384",
                 f"buffer_load_dwordx4 {v(VB)}, {s(sr,4)}, {s(sD0)} offen lds ; tag=b{kk}"]]
    if V2:
        G_ = []
        for pos in (2 * kk, 2 * kk + 1):
            sr, so = (SW2, sB2o) if pos < 14 else (SWO, sBOo)
            G_.append(rot_k(pos, sD0) + [f"s_lshl_b32 {s(sD0)}, {s(sD0)}, 14", f"s_add_u32 m0, {s(sMB)}, {KAREA[kk] + (pos & 1) * 4096}", f"s_add_u32 {s(sD0)}, {s(sD0)}, {s(so)}",
                      f"buffer_load_dwordx4 {v(VB)}, {s(sr,4)}, {s(sD0)} offen lds ; tag=b{kk}"])
        return G_
    slot = kk % 9
    m0 = f"s_add_u32 m0, {s(sM0x)}, {KAREA[slot]}"
    sr, so = (SW2, sB2o) if kk < 14 else (SWO, sBOo)
    return [rot_k(kk, sD0) + [f"s_lshl_b32 {s(sD0)}, {s(sD0)}, 14", m0, f"s_add_u32 {s(sD0)}, {s(sD0)}, {s(so)}",
             f"buffer_load_dwordx4 {v(VB)}, {s(sr,4)}, {s(sD0)} offen lds"],
            [f"s_add_u32 {s(sD0)}, {s(sD0)}, {8192 - 1024}",
             f"buffer_load_dwordx4 {v(VB)}, {s(sr,4)}, {s(sD0)} offen offset:1024 lds ; tag=b{kk}"]]

def setup(ffn):
    pitch = 3584 if ffn else 3072
    tp = "f" if ffn else "a"
    if ffn: P(f"s_mov_b64 {s(SWT,2)}, {s(sA0,2)}")
    P(f"s_load_dwordx2 {s(SAUX,2)}, s[0:1], {48 if ffn else 16}")
    srd(SWT, 1835008 if ffn else 1572864)
    P(f"v_mul_u32_u24 {v(VW)}, {pitch}, v2\nv_add_u32 {v(VW)}, {v(VW)}, v4")
    if ffn:
        P(f"s_mul_i32 {s(sT0)}, {s(sG)}, 448\ns_and_b32 {s(sT1)}, {s(sG)}, 1\ns_lshl_b32 {s(sT2)}, {s(sT1)}, 6\ns_add_u32 {s(sWq)}, {s(sT0)}, {s(sT2)}")
        P(f"s_mul_i32 {s(sWo)}, {s(sW)}, {8*pitch}\ns_add_u32 {s(sWo)}, {s(sWo)}, {s(sWq)}")
    else:
        P(f"s_lshl_b32 {s(sWq)}, {s(sG)}, 7")
        P(f"s_mul_i32 {s(sWo)}, {s(sW)}, {8*pitch}\ns_add_u32 {s(sWo)}, {s(sWo)}, {s(sWq)}\ns_add_u32 {s(sWo)}, {s(sWo)}, 1024")
    P(f"v_add_u32 {v(VW0)}, {s(sWo)}, {v(VW)}")
    if STAMP and "slow" in STI: P(f"s_mov_b32 {s(sST+2*STI['slow'])}, {s(sST)}")
    P(f"s_mul_i32 {s(sD1)}, {s(sK)}, {pitch//2}")
    P.add(item1(0, pitch)[2])
    P("s_waitcnt lgkmcnt(0)")
    srd(SWS, WS_SIZE); srd(SDBG, 256); srd(SW2, 1835008); srd(SWO, 524288); srd(SOUT, 2097152); srd(SB2, 1024); srd(SAUX, 3584 if ffn else 16384)
    P(f"v_lshlrev_b32 {v(VL16)}, 4, {v(vL)}")
    P(f"s_lshr_b32 {s(sHALF)}, {s(sW)}, 2")
    P(f"s_and_b32 {s(sW34)}, {s(sW)}, 3\ns_xor_b32 {s(sSIG)}, {s(sW34)}, {s(sHALF)}")
    if not ffn:
        for i in range(4): P(f"v_mov_b32 {v(T+i)}, 0")
        P(f"s_lshl_b32 {s(sT0)}, {s(sW)}, 8\ns_add_u32 {s(sT0)}, {s(sT0)}, s2\ns_sub_u32 {s(sT0)}, {s(sT0)}, 256\ns_cmp_lt_u32 {s(sT0)}, 8")
        P(f"s_cbranch_scc0 L_nzero")
        P.cond_begin("zw")
        P(f"s_lshl_b32 {s(sT0)}, s2, 12\ns_add_u32 {s(sT0)}, {s(sT0)}, {WS_FLG}")
        for i in range(4): P(f"buffer_store_dwordx4 {v(T,4)}, {v(VL16)}, {s(SWS,4)}, {s(sT0)} offen offset:{1024*i} sc1")
        P(f"s_lshl_b32 {s(sT0)}, s2, 8\ns_add_u32 {s(sT0)}, {s(sT0)}, {WS_KVF}\nv_lshlrev_b32 v3, 2, {v(vL)}")
        P(f"buffer_store_dword {v(T)}, v3, {s(SWS,4)}, {s(sT0)} offen sc1 ; tag=zf")
        P.cond_end()
        P(f"L_nzero:")
    if OPT.get("touch", "5") == "1":
        P(f"s_cmp_lt_u32 {s(sW)}, 6")
        P(f"s_cbranch_scc1 L_nt{tp}")
        P.cond_begin("w67")
        P(f"v_lshlrev_b32 v3, 7, {v(vL)}\ns_mul_i32 {s(sT0)}, s2, 7168\ns_lshl_b32 {s(sT1)}, s2, 11")
        P(f"s_cmp_eq_u32 {s(sW)}, 6\ns_cbranch_scc0 L_nta{tp}")
        P(f"buffer_load_dword v255, v3, {s(SW2,4)}, {s(sT0)} offen")
        P(f"s_branch L_nt{tp}")
        P(f"L_nta{tp}:")
        P(f"v_and_b32 v3, 2047, v3")
        P(f"buffer_load_dword v255, v3, {s(SWO,4)}, {s(sT1)} offen")
        P(f"buffer_load_dword v254, v3, {s(SB2,4)}, 0 offen")
        P.cond_end()
        P(f"L_nt{tp}:")
    def wtouch():
        P(f"s_sub_u32 {s(sT0)}, {s(sW)}, 2\ns_cmp_lt_u32 {s(sT0)}, {min(3 if ffn else 2, int(OPT.get('wtn', 2)))}")
        P(f"s_cbranch_scc0 L_nw{tp}")
        P.cond_begin("w234")
        P(f"v_mul_u32_u24 v3, {pitch}, {v(vL)}\ns_mul_i32 {s(sT1)}, {s(sROT)}, {64*pitch}\ns_add_u32 {s(sT1)}, {s(sT1)}, {s(sWq)}")
        if ffn:
            P(f"s_lshl_b32 {s(sT2)}, {s(sT0)}, 7\ns_add_u32 {s(sT1)}, {s(sT1)}, {s(sT2)}\ns_add_u32 {s(sT1)}, {s(sT1)}, 128")
            P(f"s_lshr_b32 {s(sT0)}, {s(sT0)}, 1\ns_and_b32 {s(sT0)}, {s(sT0)}, {s(sG)}\ns_mul_i32 {s(sT0)}, {s(sT0)}, 448\ns_sub_u32 {s(sT1)}, {s(sT1)}, {s(sT0)}")
        else:
            P(f"s_xor_b32 {s(sT0)}, {s(sT0)}, 1\ns_lshl_b32 {s(sT0)}, {s(sT0)}, 11\ns_add_u32 {s(sT1)}, {s(sT1)}, {s(sT0)}")
        if OPT.get("wt", "2") == "2": P(f"s_mov_b32 {s(sCNT)}, {s(sT1)}")
        else: P(f"buffer_load_dword v250, v3, {s(SWT,4)}, {s(sT1)} offen")
        P.cond_end()
        P(f"L_nw{tp}:")
    if OPT.get("wt", "2") == "2": P(f"s_mov_b32 {s(sCNT)}, 0x7f000000")
    if OPT.get("wt", "2") != "0": wtouch()
    if OPT.get("sw", "0") != "0":
        c1_, c2_ = (128, 256) if ffn else (1024, -1024)
        P(f"s_mul_i32 {s(sT0)}, {s(sROT)}, {64*pitch}\ns_add_u32 {s(sT0)}, {s(sT0)}, {s(sWo)}")
        for cc, n_ in ((c1_, 8), (c2_, int(OPT["sw"]) - 8)):
            if n_ <= 0: continue
            P(f"s_add_u32 {s(sT1)}, {s(sT0)}, {cc}")
            for j in range(n_): P(f"s_buffer_load_dword {s(sCNT)}, {s(SWT,4)}, {s(sT1)} offset:{j*pitch} ; nodef")
    if OPT.get("cpf", "1") == "1":
        P(f"s_cmp_eq_u32 {s(sW)}, 5")
        P(f"s_cbranch_scc0 L_ncp{tp}")
        P.cond_begin("w5")
        P(f"s_getpc_b64 {s(sEX,2)}")
        P(f"L_pc{tp}:")
        P(f"s_sub_u32 {s(sEX)}, {s(sEX)}, L_pc{tp}-{NAME}\ns_subb_u32 {s(sEX+1)}, {s(sEX+1)}, 0")
        P(f"s_lshr_b32 {s(sT0)}, s2, 3\ns_lshl_b32 {s(sT0)}, {s(sT0)}, 11\nv_and_b32 v3, 15, {v(vL)}\nv_lshlrev_b32 v3, 7, v3\nv_add_u32 v3, {s(sT0)}, v3")
        P(f"v_min_u32 v3, L_end-{NAME}, v3")
        P(f"global_load_dword v253, v3, {s(sEX,2)}")
        P.cond_end()
        P(f"L_ncp{tp}:")
    if OPT.get("pt", "0") == "1":
        P(f"s_cmp_eq_u32 {s(sW)}, 4")
        P(f"s_cbranch_scc0 L_npt{tp}")
        n0 = len(P.ins)
        P(f"v_lshlrev_b32 v3, 21, {v(vL)}")
        P(f"buffer_load_dword v252, v3, {s(SWS,4)}, 0 offen")
        for i_, sr_ in enumerate((SOUT, SW2, SWO, SB2)): P(f"buffer_load_dword v{248+i_}, v3, {s(sr_,4)}, 0 offen")
        for I in P.ins[n0:]: I.cond = "w4"
        P(f"L_npt{tp}:")
    def stouch():
        n0 = len(P.ins)
        P(f"s_lshl_b32 {s(sT0)}, s2, 3\ns_add_u32 {s(sT0)}, {s(sT0)}, {s(sW)}\ns_mul_i32 {s(sT1)}, {s(sT0)}, 768\ns_mul_i32 {s(sT0)}, {s(sT0)}, 896")
        for i in range(6): P(f"s_load_dword {s(sCNT)}, {s(sEX,2)}, {s(sT1)} offset:{128*i}")
        for i in range(7): P(f"s_load_dword {s(sCNT)}, {s(sA0,2)}, {s(sT0)} offset:{128*i}")
    if OPT.get("stouch", "0") == "1": stouch()
    late1 = OPT.get("late1", "0") == "1"
    if not late1:
        for g_ in item1(1, pitch): P.add(g_)
    P(f"s_lshl_b32 {s(sT0)}, {s(sRT)}, 4\ns_add_u32 {s(sT0)}, {s(sT0)}, {s(sG)}\ns_lshl_b32 {s(sT0)}, {s(sT0)}, 7")
    P(f"s_and_b32 {s(sT1)}, {s(sW)}, 2\ns_lshl_b32 {s(sT1)}, {s(sT1)}, 3\ns_add_u32 {s(sT0)}, {s(sT0)}, {s(sT1)}\ns_and_b32 {s(sT1)}, {s(sW)}, 1\ns_lshl_b32 {s(sT1)}, {s(sT1)}, 2\ns_add_u32 {s(sT0)}, {s(sT0)}, {s(sT1)}\ns_lshl_b32 {s(sT1)}, {s(sHALF)}, 3\ns_add_u32 {s(sT0)}, {s(sT0)}, {s(sT1)}")
    if V3: P(f"s_and_b32 {s(sT1)}, {s(sW)}, 2\ns_lshl_b32 {s(sT1)}, {s(sT1)}, 3\ns_add_u32 {s(sT0)}, {s(sT0)}, {s(sT1)}\ns_and_b32 {s(sT1)}, {s(sG)}, 1\ns_mul_i32 {s(sT1)}, {s(sT1)}, 112\ns_sub_u32 {s(sT0)}, {s(sT0)}, {s(sT1)}")
    P(f"s_add_u32 {s(sFO)}, {s(sT0)}, {WS_FLG + (1024 if ffn else 0)}")
    P(f"s_lshl_b32 {s(sT0)}, {s(sRT)}, 2\ns_add_u32 {s(sT0)}, {s(sT0)}, {s(sW34)}\ns_mul_i32 {s(sHo)}, {s(sT0)}, {HF_RB}")
    if ffn:
        P(f"v_and_b32 v5, 31, {v(vL)}\nv_lshlrev_b32 v5, 1, v5")
        P(f"s_lshl_b32 {s(sT0)}, {s(sHALF)}, 6\ns_add_u32 {s(sT0)}, {s(sT0)}, {s(sWq)}")
        for i in range(3): P(f"buffer_load_ushort {v(BIAS+i)}, v5, {s(SAUX,4)}, {s(sT0)} offen offset:{128*i}")
        P(f"s_lshl_b32 {s(sT0)}, {s(sT0)}, 5\ns_add_u32 {s(sH0)}, {s(sHo)}, {s(sT0)}")
        P(f"s_mul_i32 {s(sW3)}, {s(sG)}, 448\ns_add_u32 {s(sT0)}, {s(sW3)}, 384\ns_bitcmp1_b32 {s(sG)}, 0\ns_cselect_b32 {s(sW3)}, {s(sW3)}, {s(sT0)}")
        P(f"s_lshl_b32 {s(sT0)}, {s(sHALF)}, 5\nv_xor_b32 v5, {s(sT0)}, v5")
        P(f"buffer_load_ushort {v(BIAS+3)}, v5, {s(SAUX,4)}, {s(sW3)} offen")
        P(f"s_add_u32 {s(sT0)}, {s(sT0)}, {s(sW3)}\ns_lshl_b32 {s(sT0)}, {s(sT0)}, 5\ns_add_u32 {s(sH3)}, {s(sHo)}, {s(sT0)}")
        P(f"v_lshrrev_b32 v2, 2, {v(vL)}\nv_and_b32 v4, 3, {v(vL)}\nv_lshlrev_b32 v4, 4, v4\nv_mul_u32_u24 {v(VW3)}, {pitch}, v2\nv_add_u32 {v(VW3)}, {v(VW3)}, v4")
    else:
        P(f"s_cmp_lt_u32 {s(sW)}, 2")
        P(f"s_cbranch_scc0 L_nphi")
        P.cond_begin("w01")
        P(f"s_lshl_b32 {s(sT0)}, {s(sG)}, 11\ns_lshl_b32 {s(sT1)}, {s(sW)}, 10\ns_add_u32 {s(sT0)}, {s(sT0)}, {s(sT1)}\ns_add_u32 m0, {s(sT1)}, {L_WPHI}\ns_nop 0")
        P(f"buffer_load_dwordx4 {v(VL16)}, {s(SAUX,4)}, {s(sT0)} offen lds")
        P.cond_end()
        P("L_nphi:")
        P(f"s_mov_b64 {s(SAUX,2)}, {s(sA0,2)}\ns_mov_b32 {s(SAUX+2)}, 1835008")
    P(f"s_mul_i32 {s(sT0)}, {s(sW34)}, {16*pitch}\ns_add_u32 {s(sWq)}, {s(sWq)}, {s(sT0)}")
    P(f"v_add_u32 {v(VW)}, {s(sWq)}, {v(VW)}")
    if ffn: P(f"s_add_u32 {s(sW3)}, {s(sW3)}, {s(sT0)}\nv_add_u32 {v(VW3)}, {s(sW3)}, {v(VW3)}")
    P(f"s_add_u32 {s(sT0)}, {s(sROT)}, {s(sHALF)}")
    for q in range(4):
        P(f"s_add_u32 {s(sT1)}, {s(sT0)}, {2*q}\ns_and_b32 {s(sT1)}, {s(sT1)}, 7\ns_mul_i32 {s(sQ[q])}, {s(sT1)}, {64*pitch}")
    P(f"s_mov_b32 {s(sT3)}, {f2u(1.0/512):#x}\ns_mov_b32 {s(sONE)}, 0x3f803f80")
    P(f"v_bfe_u32 {v(T)}, {v(vL)}, 2, 2\nv_lshrrev_b32 {v(T+1)}, 5, {v(vL)}")
    P(f"v_bfe_u32 {v(T+2)}, {v(vL)}, 4, 1\nv_lshlrev_b32 {v(T+2)}, 5, {v(T+2)}\nv_and_b32 {v(T+3)}, 3, {v(vL)}\nv_lshl_add_u32 {v(T+2)}, {v(T+3)}, 3, {v(T+2)}")
    P(f"v_and_b32 {v(T+4)}, 31, {v(vL)}\nv_bfe_u32 {v(T+5)}, {v(vL)}, 1, 3\nv_xor_b32 {v(T+5)}, {v(T+5)}, {v(T+1)}")
    P(f"s_lshl_b32 {s(sT0)}, {s(sW34)}, 12\nv_lshlrev_b32 {v(T+8)}, 7, {v(T+4)}\nv_add_u32 {v(T+8)}, {s(sT0)}, {v(T+8)}")
    P(f"v_lshl_add_u32 {v(T+9)}, {v(T+1)}, 3, {v(T)}\nv_lshl_add_u32 {v(T+10)}, {v(T+9)}, 7, {v(T+2)}\nv_lshrrev_b32 {v(T+7)}, 1, {v(T)}\nv_xor_b32 {v(T+7)}, {s(sHALF)}, {v(T+7)}\nv_lshl_add_u32 {v(T+10)}, {v(T+7)}, 6, {v(T+10)}")
    for p in range(4):
        P(f"s_xor_b32 {s(sT0)}, {s(sSIG)}, {p}\ns_lshl_b32 {s(sT1)}, {s(sT0)}, 1\nv_xor_b32 {v(T+6)}, {s(sT1)}, {v(T+5)}\nv_lshl_add_u32 {v(AX+p)}, {v(T+6)}, 4, {v(T+8)}")
        P(f"s_lshl_b32 {s(sT1)}, {s(sT0)}, 11\ns_add_u32 {s(sT1)}, {s(sT1)}, {RB}\nv_add_u32 {v(AW+p)}, {s(sT1)}, {v(T+10)}")
    if ffn:
        P(f"s_lshl_b32 {s(sT0)}, {s(sHALF)}, 5\nv_xor_b32 {v(T+7)}, {s(sT0)}, {v(T+2)}\nv_lshl_add_u32 {v(T+7)}, {v(T+9)}, 6, {v(T+7)}")
        for i, p in enumerate((0, 2)):
            P(f"s_xor_b32 {s(sT0)}, {s(sSIG)}, {p}\ns_lshl_b32 {s(sT0)}, {s(sT0)}, 10\nv_add_u32 {v(AB+i)}, {s(sT0)}, {v(T+7)}")
    P(f"v_lshlrev_b32 {v(T+4)}, 4, {v(T+4)}")
    P(f"s_lshl_b32 {s(sT0)}, {s(sHALF)}, 9\ns_add_u32 {s(sT0)}, {s(sT0)}, {L_CS}\nv_add_u32 {v(VCSA)}, {s(sT0)}, {v(T+4)}")
    P(f"s_lshl_b32 {s(sT0)}, {s(sW34)}, 9\ns_add_u32 {s(sT0)}, {s(sT0)}, {L_ST}\nv_add_u32 {v(VSTA)}, {s(sT0)}, {v(T+4)}")
    P(f"v_lshrrev_b32 {v(T+4)}, 2, {v(vL)}\nv_xor_b32 {v(T+4)}, {v(T+4)}, {v(vL)}\nv_and_b32 {v(T+4)}, 4, {v(T+4)}\nv_cmp_eq_u32 vcc, 0, {v(T+4)}\nv_mov_b32 {v(T+4)}, {s(sONE)}")
    for i in range(4): P(f"v_mov_b32 {v(PZ+i)}, -1")
    for r in (VZ, BAUG+3, AAUG+2, AAUG+3): P(f"v_mov_b32 {v(r)}, 0")
    for i in range(4): P(f"v_cndmask_b32 {v(SEL+i)}, 0, {v(T+4)}, vcc")
    P(f"s_lshl_b32 {s(sW34)}, {s(sW34)}, 2")
    if late1:
        for g_ in item1(1, pitch): P.add(g_)
    if OPT.get("stouch", "0") == "2": stouch()
    if V2:
        P(f"v_lshrrev_b32 {v(T)}, 4, {v(vL)}\nv_lshlrev_b32 {v(T+1)}, 2, {v(T)}\nv_and_b32 {v(T+2)}, 15, {v(vL)}\nv_xor_b32 {v(T+2)}, {v(T+2)}, {v(T+1)}\nv_lshlrev_b32 {v(T+2)}, 4, {v(T+2)}\nv_lshl_add_u32 {v(VB)}, {v(T)}, 10, {v(T+2)}")
        P(f"s_lshl_b32 {s(sT2)}, {s(sM)}, 1\ns_add_u32 {s(sT2)}, {s(sT2)}, {s(sHALF)}")
        P(f"s_lshl_b32 {s(sT0)}, {s(sN)}, 8\ns_lshl_b32 {s(sT1)}, {s(sW34)}, 10\ns_add_u32 {s(sT1)}, {s(sT1)}, {s(sT0)}")
        P(f"s_mul_i32 {s(sB2o)}, {s(sT2)}, {224*1024}\ns_add_u32 {s(sB2o)}, {s(sB2o)}, {s(sT1)}\ns_lshl_b32 {s(sBOo)}, {s(sT2)}, 16\ns_add_u32 {s(sBOo)}, {s(sBOo)}, {s(sT1)}")
        P(f"s_mul_i32 {s(sA0)}, {s(sT2)}, {14*1024}\ns_add_u32 {s(sA0)}, {s(sA0)}, {s(sHo)}\ns_lshl_b32 {s(sA1)}, {s(sT2)}, 12\ns_add_u32 {s(sA1)}, {s(sA1)}, {s(sHo)}\ns_add_u32 {s(sA1)}, {s(sA1)}, {112*1024}")
        P(f"s_lshl_b32 {s(sT1)}, {s(sRT)}, 4\ns_add_u32 {s(sT1)}, {s(sT1)}, {s(sT2)}\ns_lshl_b32 {s(sT1)}, {s(sT1)}, 7\ns_and_b32 {s(sFL)}, {s(sW)}, 2\ns_lshl_b32 {s(sFL)}, {s(sFL)}, 3\ns_add_u32 {s(sFL)}, {s(sFL)}, {s(sT1)}\ns_add_u32 {s(sFL)}, {s(sFL)}, {WS_FLG}")
        P(f"s_mul_i32 {s(sR4)}, {s(sN)}, 5\ns_lshr_b32 {s(sR4)}, {s(sR4)}, 1\ns_add_u32 {s(sR4)}, {s(sR4)}, {s(sRT)}\ns_and_b32 {s(sR4)}, {s(sR4)}, 7")
        P(f"s_lshl_b32 {s(sT2)}, {s(sT2)}, 5\ns_add_u32 {s(sN)}, {s(sT0)}, {s(sT2)}")
        P(f"s_lshl_b32 {s(sOo)}, {s(sRT)}, 17\ns_lshl_b32 {s(sT1)}, {s(sW34)}, 13\ns_add_u32 {s(sOo)}, {s(sOo)}, {s(sT1)}\ns_add_u32 {s(sOo)}, {s(sOo)}, {s(sN)}")
        P(f"s_and_b32 {s(sSH)}, {s(sW)}, 1\ns_lshl_b32 {s(sSH)}, {s(sSH)}, 1\ns_lshl_b32 {s(sSK)}, {s(sHALF)}, 1")
        if XRG:
            P(f"s_lshr_b32 {s(sT0)}, {s(sN)}, 8\ns_lshl_b32 {s(sT0)}, {s(sT0)}, 1\ns_add_u32 {s(sT0)}, {s(sT0)}, {s(sRT)}\ns_lshr_b32 {s(sT1)}, {s(sN)}, 7\ns_sub_u32 {s(sT1)}, {s(sT1)}, {s(sT0)}\ns_and_b32 {s(sT1)}, {s(sT1)}, 7\ns_lshl_b32 {s(sT1)}, {s(sT1)}, 4")
            P(f"s_lshr_b32 {s(sT0)}, {s(sN)}, 5\ns_and_b32 {s(sT0)}, {s(sT0)}, 3\ns_xor_b32 {s(sT0)}, {s(sT0)}, {s(sSIG)}\ns_lshl_b32 {s(sT0)}, {s(sT0)}, 2\ns_add_u32 {s(sWq)}, {s(sT1)}, {s(sT0)}")
        P(f"s_lshl_b32 {s(sMB)}, {s(sHALF)}, 13\ns_lshl_b32 {s(sT1)}, {s(sW34)}, 8\ns_add_u32 {s(sMB)}, {s(sMB)}, {s(sT1)}")
        if V5:
            P(f"s_lshr_b32 {s(sWq)}, {s(sN)}, 8\ns_lshl_b32 {s(sWq)}, {s(sWq)}, 2\ns_lshr_b32 {s(sW3)}, {s(sW34)}, 2\ns_add_u32 {s(sW3)}, {s(sW3)}, {s(sWq)}")
            P(f"s_lshl_b32 {s(sT0)}, {s(sHALF)}, 5\ns_sub_u32 {s(sBOo)}, {s(sN)}, {s(sT0)}\ns_lshl_b32 {s(sT0)}, {s(sHALF)}, 18\ns_add_u32 {s(sBOo)}, {s(sBOo)}, {s(sT0)}")
            P(f"s_lshl_b32 {s(sT0)}, {s(sHALF)}, 14\ns_add_u32 {s(sA1)}, {s(sHo)}, {s(sT0)}\ns_add_u32 {s(sA1)}, {s(sA1)}, {112*1024}")
        if V3:
            P(f"s_lshl_b32 {s(sT0)}, {s(sSH)}, 4\nv_xor_b32 {v(VB)}, {s(sT0)}, {v(VB)}")
            P(f"s_mul_i32 {s(sT0)}, {s(sHALF)}, {14*1024}\ns_sub_u32 {s(sA0)}, {s(sA0)}, {s(sT0)}\ns_lshl_b32 {s(sT0)}, {s(sHALF)}, 12\ns_sub_u32 {s(sA1)}, {s(sA1)}, {s(sT0)}")
            P(f"s_lshl_b32 {s(sT0)}, {s(sHALF)}, 7\ns_sub_u32 {s(sFL)}, {s(sFL)}, {s(sT0)}\ns_and_b32 {s(sT0)}, {s(sW)}, 2\ns_lshl_b32 {s(sT0)}, {s(sT0)}, 3\ns_add_u32 {s(sFL)}, {s(sFL)}, {s(sT0)}")
        return
    P(f"s_lshl_b32 {s(sT0)}, {s(sN)}, 7\ns_mul_i32 {s(sB2o)}, {s(sW)}, {224*1024}\ns_add_u32 {s(sB2o)}, {s(sB2o)}, {s(sT0)}")
    P(f"s_lshl_b32 {s(sBOo)}, {s(sW)}, 16\ns_add_u32 {s(sBOo)}, {s(sBOo)}, {s(sT0)}\ns_lshl_b32 {s(sM4)}, {s(sW)}, 12")
    P(f"s_lshl_b32 {s(sOo)}, {s(sM)}, 16\ns_lshl_b32 {s(sT1)}, {s(sW)}, 13\ns_add_u32 {s(sOo)}, {s(sOo)}, {s(sT1)}\ns_add_u32 {s(sOo)}, {s(sOo)}, {s(sT0)}")
    if OPT.get("r8", "1") == "1":
        P(f"s_mul_i32 {s(sT0)}, {s(sM)}, 5\ns_lshr_b32 {s(sT0)}, {s(sT0)}, 1\ns_sub_u32 {s(sN)}, {s(sN)}, {s(sM)}\ns_add_u32 {s(sR4)}, {s(sN)}, {s(sT0)}\ns_add_u32 {s(sN)}, {s(sN)}, {s(sM)}")
    else: P(f"s_mov_b32 {s(sR4)}, {s(sN)}")
    P(f"s_add_u32 {s(sR4)}, {s(sM)}, {s(sR4)}\ns_and_b32 {s(sR4)}, {s(sR4)}, {0 if OPT.get('norot') else 7}\ns_and_b32 {s(sSH)}, {s(sW)}, 1\ns_lshl_b32 {s(sSH)}, {s(sSH)}, 1")
    P(f"s_lshr_b32 {s(sT0)}, {s(sM)}, 1\ns_lshl_b32 {s(sT0)}, {s(sT0)}, 4\ns_add_u32 {s(sT0)}, {s(sT0)}, {s(sW)}\ns_lshl_b32 {s(sT0)}, {s(sT0)}, 7")
    P(f"s_and_b32 {s(sT1)}, {s(sM)}, 1\ns_lshl_b32 {s(sT1)}, {s(sT1)}, 4\ns_add_u32 {s(sT0)}, {s(sT0)}, {s(sT1)}\ns_add_u32 {s(sFL)}, {s(sT0)}, {WS_FLG}")
    P(f"s_mul_i32 {s(sA0)}, {s(sM)}, {2*HF_RB}\ns_mul_i32 {s(sT0)}, {s(sW)}, {14*1024}\ns_add_u32 {s(sA1)}, {s(sA0)}, {s(sM4)}\ns_add_u32 {s(sA1)}, {s(sA1)}, {112*1024}\ns_add_u32 {s(sA0)}, {s(sA0)}, {s(sT0)}")

class Sched:
    def __init__(self, n):
        self.n = n; self.pre = [[] for _ in range(n)]; self.post = [[] for _ in range(n)]
        self.fill = [[] for _ in range(n)]; self.dma = [[] for _ in range(n)]; self.blk = {}
    def spread(self, lst, a, b):
        for i in range(a, b): self.fill[i] += lst[len(lst)*(i-a)//(b-a): len(lst)*(i+1-a)//(b-a)]
    def dmas(self, groups, a, step=1):
        for i, g in enumerate(groups): self.dma[a + i*step] += g

def rd(G):
    b = WF + 4 * (G & 3)
    if G < 96:
        ks = G & 31; st, p = ks >> 2, ks & 3
        L = [f"ds_read_b128 {v(XF+4*ks,4)}, {v(AX+p)} offset:{RA+(st&3)*16384}"] if G < 32 else []
        if ks < 4 and G >= 32: L.append(f"v_xor_b32 {v(AW+p)}, {RB}, {v(AW+p)}")
        return L + [f"ds_read_b64_tr_b16 {v(b+2*t,2)}, {v(AW+p)} offset:{8192*st+512*t}" for t in range(2)]
    i = G - 96
    return [f"ds_read_b64_tr_b16 {v(b+2*t,2)}, {v(AB+(i&1))} offset:{4096*(i>>1)+256*t}" for t in range(2)]
def xq(G): return XF + 4 * (G & 31) if G < 96 else XF + 8 * (G - 96)

def common_sched(S, ffn, accs, MC):
    pitch = 3584 if ffn else 3072
    tp = "f" if ffn else "a"
    c1, c2 = (128, 256) if ffn else (2048, 0)
    S.dmas(item1(2, pitch), 0, 0)
    for st in range(8):
        G = 4 * st + 2
        S.pre[G] += [f".waitvm it{st+1}" if st < 7 else ".waitvm w1q0 lgkm0", "s_barrier"]
        if st <= 4: S.dmas(item1(st + 3, pitch), G)
        else: S.dmas(wquarter(RA, st - 5, c1, pitch, f"w1q{st-5}"), G)
    def m4(d, r, c=None): return f"v_mfma_f32_4x4x4_16b_bf16 {v(d,4)}, {v(r,2)}, {v(r,2)}, {v(d,4) if c is None else c}"
    Q0, Q1 = T + 8, T + 16
    for f in range(0, 32, 2):
        x = XF + 4 * f; a = max(f - 1, 0); c = "0" if f == 0 else None
        if OPT.get("hyb", "0") == "1":
            b = f if f < 30 else 29
            S.post[a] += [m4(Q0, x, c), m16(MS, SEL, x, c)]
            for r, G in ((x + 2, a), (x + 3, b)):
                S.post[G] += [f"v_and_b32 {v(Q1+2)}, 0xffff0000, {v(r)}", f"v_lshlrev_b32 {v(Q1+3)}, 16, {v(r)}",
                              f"v_fmac_f32 {v(Q1)}, {v(Q1+2)}, {v(Q1+2)}", f"v_fmac_f32 {v(Q1+1)}, {v(Q1+3)}, {v(Q1+3)}"]
        else: S.post[a] += [m4(Q0, x, c), m4(Q1, x + 2, c), m16(MS, SEL, x, c)]
    S.post[28] += [f"v_and_b32 {v(S1)}, 3, {v(vL)}", f"v_cmp_eq_u32 {s(sEX,2)}, 1, {v(S1)}", f"s_lshl_b32 {s(sT0)}, {s(sHALF)}, 3",
                   f"v_add_u32 {v(T)}, {s(sT0)}, {v(VSTA)}"]
    if OPT.get("hyb", "0") == "1":
        S.pre[0] += [f"v_mov_b32 {v(Q1)}, 0", f"v_mov_b32 {v(Q1+1)}, 0"]
        S.post[29] += [f"v_add_f32 {v(Q1)}, {v(Q1)}, {v(Q1+1)}"]
    else: S.post[29] += [f"v_add_f32 {v(Q0+i)}, {v(Q0+i)}, {v(Q1+i)}" for i in range(4)]
    S.post[29] += [f"v_cmp_eq_u32 vcc, 2, {v(S1)}", f"v_cndmask_b32 {v(S2)}, {v(Q0)}, {v(Q0+1)}, {s(sEX,2)}", f"v_cmp_eq_u32 {s(sEX,2)}, 3, {v(S1)}",
                   f"v_cndmask_b32 {v(S2)}, {v(S2)}, {v(Q0+2)}, vcc", f"v_cndmask_b32 {v(S2)}, {v(S2)}, {v(Q0+3)}, {s(sEX,2)}"] + ([f"v_add_f32 {v(S2)}, {v(S2)}, {v(Q1)}"] if OPT.get("hyb", "0") == "1" else []) + [
                   f"v_mov_b32 {v(S1)}, {v(S2)}", f"v_permlane32_swap_b32 {v(S1)}, {v(S2)}",
                   f"v_add_f32 {v(MS+1)}, {v(S1)}, {v(S2)}", f"ds_write_b64 {v(T)}, {v(MS,2)}"]
    S.post[30] += [f"ds_read_b128 {v(MS,4)}, {v(VSTA)}"]
    for ps in range(3):
        for st in range(8):
            G = 32 * ps + 4 * st
            S.post[G] += [m16(MC, SEL, WF + 4 * (G & 3), "0" if st == 0 else None)]
        S.post[32*ps + 29] += [f"v_add_u32 {v(MC+1)}, {s(sW34)}, {v(VCSA)}", f"ds_write_b32 {v(MC+1)}, {v(MC)} offset:{1024*ps}"]
    FEW = OPT.get("few", "1") == "1"
    if FEW: S.pre[38] += [".waitvm w1q3", "s_barrier"]
    else:
        for q in (1, 2, 3): S.pre[32 + 8*q - 2] += [f".waitvm w1q{q}", "s_barrier"]
    w2 = sum([wquarter(RB, q, c2, pitch, "w2") for q in range(4)], [])
    for g_, G in zip(wquarter(RA, 3, c1, pitch, "w1q3") + w2, [int(x) for x in OPT.get("w2g", "32,33,35,37,38,40,41,43,44,46").split(",")]): S.dma[G] += g_
    S.pre[62] += [".waitvm w2 lgkm0", "s_barrier"]
    for G in ((int(OPT.get("fb", 82)),) if ffn else (() if OPT.get("asy", "0") == "1" else (int(OPT.get("ab", 86)),))): S.pre[G] += ["s_barrier"]
    if ffn:
        S.post[int(OPT.get("f1", 90))] += flag(1, "h1")
        S.post[int(OPT.get("p1", 99))] += [spoll(0)]; S.blk[("e", int(OPT.get("c1", 105)))] = lambda: (sneed(1, 0), None if V5 else P(spoll(1)))
    else:
        S.post[int(OPT.get("fa", 80))] += flag(1, "po")
    if OPT.get("l2t", "0") == "1":
        tg = [int(x) for x in OPT.get("l2gf" if ffn else "l2ga", "52,62,66,70,74" if ffn else "48,52,56,60,64").split(",")]
        DUM = VX0 if False else VW0
        for j in range(5):
            if j < 3:
                L = [f"s_lshr_b32 {s(sT0)}, s2, 3", f"s_mul_i32 {s(sT0)}, {s(sT0)}, 3", f"s_lshl_b32 {s(sT1)}, {s(sSH)}, 4", f"s_add_u32 {s(sT0)}, {s(sT0)}, {s(sT1)}",
                     f"s_add_u32 {s(sT0)}, {s(sT0)}, {128+j}", f"s_sub_u32 {s(sT1)}, {s(sT0)}, 224", f"s_min_u32 {s(sT0)}, {s(sT0)}, {s(sT1)}",
                     f"s_mul_i32 {s(sT1)}, {s(sW)}, 224", f"s_add_u32 {s(sT0)}, {s(sT0)}, {s(sT1)}", f"s_lshl_b32 {s(sT0)}, {s(sT0)}, 10",
                     f"buffer_load_dword {v(VTD)}, {v(VL16)}, {s(SW2,4)}, {s(sT0)} offen ; nodef"]
            else:
                L = [f"s_lshr_b32 {s(sT0)}, s2, 3", f"s_lshl_b32 {s(sT0)}, {s(sT0)}, 11", f"s_lshl_b32 {s(sT1)}, {s(sW)}, 16", f"s_add_u32 {s(sT0)}, {s(sT0)}, {s(sT1)}",
                     f"buffer_load_dword {v(VTD)}, {v(VL16)}, {s(SWO,4)}, {s(sT0)} offen offset:{1024*(j-3)} ; nodef"]
            S.dma[tg[j]] += L
    if (OPT.get("touch", "5") == "5" and not ffn) or (OPT.get("touch") == "6" and ffn):
        tg = [int(x) for x in OPT.get("tgs", "54,56,58,60,62").split(",")]
        gw = [f"s_and_b32 {s(sT0)}, {s(sRT)}, 7", f"s_lshl_b32 {s(sT0)}, {s(sT0)}, 1", f"s_and_b32 {s(sT1)}, {s(sG)}, 1", f"s_add_u32 {s(sT0)}, {s(sT0)}, {s(sT1)}",
              f"s_lshl_b32 {s(sT0)}, {s(sT0)}, 3", f"s_add_u32 {s(sK)}, {s(sT0)}, {s(sW)}"]
        for j in range(4):
            S.dma[tg[j]] += (gw if j == 0 else []) + [f"s_add_u32 {s(sT0)}, {s(sK)}, {128*j}", f"s_min_u32 {s(sT0)}, {s(sT0)}, 447", f"s_mul_i32 {s(sT1)}, {s(sM)}, 448", f"s_add_u32 {s(sT0)}, {s(sT0)}, {s(sT1)}",
                                  f"s_lshl_b32 {s(sT0)}, {s(sT0)}, 10", f"buffer_load_dword {v(VTD)}, {v(VL16)}, {s(SW2,4)}, {s(sT0)} offen ; nodef"]
        if V5: S.dma[tg[4]] += [f"s_lshl_b32 {s(sT0)}, {s(sK)}, 12", f"s_and_b32 {s(sT1)}, {s(sM)}, 2", f"s_lshl_b32 {s(sT1)}, {s(sT1)}, 6", f"s_add_u32 {s(sT0)}, {s(sT0)}, {s(sT1)}",
                         f"v_and_b32 {v(S1)}, 15, {v(vL)}", f"v_lshlrev_b32 {v(S1)}, 8, {v(S1)}", f"buffer_load_dword {v(VTD)}, {v(S1)}, {s(SWO,4)}, {s(sT0)} offen ; nodef"]
        else: S.dma[tg[4]] += [f"s_lshl_b32 {s(sT1)}, {s(sM)}, 7", f"s_add_u32 {s(sT0)}, {s(sK)}, {s(sT1)}",
                         f"s_lshl_b32 {s(sT0)}, {s(sT0)}, 10", f"buffer_load_dword {v(VTD)}, {v(VL16)}, {s(SWO,4)}, {s(sT0)} offen ; nodef"]
        S.dma[tg[4]] += [f"buffer_load_dword {v(VTD)}, {v(VL16)}, {s(SB2,4)}, 0 offen ; nodef"]
        if OPT.get("t3", "0") == "1":
            S.dma[int(OPT.get("t3g", 49))] += gw + [f"s_mul_i32 {s(sT0)}, {s(sK)}, {4*3584}", f"s_mul_i32 {s(sT1)}, {s(sM)}, 896", f"s_add_u32 {s(sT0)}, {s(sT0)}, {s(sT1)}",
                f"v_and_b32 {v(VTD)}, 3, {v(vL)}", f"v_mul_u32_u24 {v(VTD)}, 3584, {v(VTD)}", f"buffer_load_dword {v(VTD)}, {v(VTD)}, {s(SAUX,4)}, {s(sT0)} offen offset:384 ; nodef"]
    if OPT.get("touch") == "4":
        tg = [int(x) for x in OPT.get("tgs", "47,49,52").split(",")]
        gw = [f"s_and_b32 {s(sT0)}, s2, 0xf8", f"s_add_u32 {s(sT0)}, {s(sT0)}, {s(sW)}"]
        for j in range(2):
            S.dma[tg[j]] += gw + [f"s_add_u32 {s(sT0)}, {s(sT0)}, {256*j}", f"s_min_u32 {s(sT0)}, {s(sT0)}, 447", f"s_mul_i32 {s(sT1)}, {s(sM)}, 448", f"s_add_u32 {s(sT0)}, {s(sT0)}, {s(sT1)}",
                                  f"s_lshl_b32 {s(sT0)}, {s(sT0)}, 10", f"buffer_load_dword {v(VTD)}, {v(VL16)}, {s(SW2,4)}, {s(sT0)} offen ; nodef"]
        S.dma[tg[2]] += gw + [f"s_lshr_b32 {s(sT0)}, {s(sT0)}, 1", f"s_lshl_b32 {s(sT1)}, {s(sM)}, 7", f"s_add_u32 {s(sT0)}, {s(sT0)}, {s(sT1)}",
                              f"s_lshl_b32 {s(sT0)}, {s(sT0)}, 10", f"buffer_load_dword {v(VTD)}, {v(VL16)}, {s(SWO,4)}, {s(sT0)} offen ; nodef"]
    if OPT.get("touch", "5") == "3":
        def mtouch():
            n0 = len(P.ins)
            P(f"s_cmp_lt_u32 {s(sW)}, 6")
            P(f"s_cbranch_scc1 L_mt{tp}")
            P.cond_begin("w67")
            P(f"v_lshlrev_b32 {v(T+1)}, 7, {v(vL)}\ns_mul_i32 {s(sT0)}, s2, 7168\ns_lshl_b32 {s(sT1)}, s2, 11")
            P(f"s_cmp_eq_u32 {s(sW)}, 6\ns_cbranch_scc0 L_mta{tp}")
            P(f"buffer_load_dword {v(T+2)}, {v(T+1)}, {s(SW2,4)}, {s(sT0)} offen")
            P(f"s_branch L_mt{tp}")
            P(f"L_mta{tp}:")
            P(f"v_and_b32 {v(T+1)}, 2047, {v(T+1)}")
            P(f"buffer_load_dword {v(T+2)}, {v(T+1)}, {s(SWO,4)}, {s(sT1)} offen")
            P(f"buffer_load_dword {v(T+3)}, {v(T+1)}, {s(SB2,4)}, 0 offen")
            P.cond_end()
            P(f"L_mt{tp}:")
        S.blk[("e", int(OPT.get("tg", 5)))] = mtouch
    if OPT.get("wt", "2") == "2":
        S.dma[int(OPT.get("wg", 5))] += [f"v_mul_u32_u24 {v(T+1)}, {pitch}, {v(vL)}", f"buffer_load_dword {v(T+2)}, {v(T+1)}, {s(SWT,4)}, {s(sCNT)} offen"]
    if XRG:
        xd = PZ if ffn else SEL
        S.post[93] += [f"s_set_gpr_idx_on {s(sWq)}, gpr_idx(SRC0)", "s_nop 0"] + [f"v_mov_b32 {v(xd+i)}, {v(XF+i)}" for i in range(4)] + ["s_set_gpr_idx_off"]
    if V5: S.post[92] += vbo_init
    def announce():
        P(f"s_lshl_b32 {s(sT0)}, {s(sW)}, 8\ns_add_u32 {s(sT0)}, {s(sT0)}, s2\ns_sub_u32 {s(sT0)}, {s(sT0)}, 256\ns_cmp_lt_u32 {s(sT0)}, 8")
        P(f"s_cbranch_scc0 L_nd")
        P.cond_begin("zw")
        P(".waitvm zf")
        P(f"s_lshl_b32 {s(sT0)}, s2, 2\nv_mov_b32 {v(VFV)}, 1")
        P(f"buffer_store_dword {v(VFV)}, {v(VZ)}, {s(SDBG,4)}, {s(sT0)} offen sc1")
        P.cond_end()
        P(f"L_nd:")
    if not ffn: S.blk[3] = announce
    ld = f"v_and_b32 {v(VX0)}, 28, {v(vL)}\nbuffer_load_dword {v(VX0)}, {v(VX0)}, {s(SDBG,4)}, 0 offen sc1"
    def poll0():
        P(f"s_cmp_eq_u32 {s(sW)}, 7"); P(f"s_cbranch_scc0 L_np{tp}")
        P.cond_begin("w7")
        P(ld)
        P.cond_end(); P(f"L_np{tp}:")
    def check0():
        P(f"s_cmp_eq_u32 {s(sW)}, 7"); P(f"s_cbranch_scc0 L_nc{tp}")
        P.cond_begin("w7")
        P(f"v_mov_b32 {v(VX0)}, {v(VX0)}")
        spin(f"L_ncs{tp}", ld, f"v_cmp_ne_u32 vcc, 1, {v(VX0)}")
        P.cond_end(); P(f"L_nc{tp}:")
    S.blk[39] = poll0; S.blk[62] = check0

def run_sched(S, accs):
    P(".waitvm it0")
    P("s_barrier")
    stamp("it0")
    P.add(rd(0)); P.add(rd(1))
    for G in range(S.n):
        stamp(f"g{G}")
        if G in S.blk: S.blk[G]()
        late = OPT.get("bam", "1") == "1" and G >= 32
        if not late: P.add(S.pre[G])
        if OPT.get("prio", "2") == "1": P(f"s_setprio {3 - ((G + 2) & 3)}")
        if OPT.get("prio", "2") == "2" and (G < 32 or G % 2 == 0): P(f"s_setprio {3 - ((G + 2) & 3) if G < 32 else 3 - ((G >> 1) & 3)}")
        first = G in (0, 32, 64, 96)
        P(mfma(accs[G >> 5], WF + 4 * (G & 3), xq(G), "0" if first else None))
        if late: P.add(S.pre[G])
        if G + 2 < S.n: P.add(rd(G + 2))
        P.add(S.post[G]); P.add(S.fill[G]); P.add(S.dma[G])
        if ("e", G) in S.blk: S.blk[("e", G)]()
    P("s_setprio 0")

AC = 64; NAF = 8
def AFq(kk, rb): return XF + 4 + 8 * (2 * (kk % NAF) + rb)
def BTq(kk, nb): return XF + 8 * (2 * (kk & 3) + nb)
BA = 2
VXR, VRED = 9, 10
VWR = 20
XR, B2R = 32, 36
def AF2(kk): return XF + 4 + 8 * (kk % 16)
def BT2(kk, nb): return XF + 8 * (4 * (kk & 1) + nb)
def xoff(j, send):
    return ([f"s_xor_b32 {s(sT0)}, s2, {j}", f"s_mul_i32 {s(sT0)}, {s(sT0)}, {3*8192}"] if send else [f"s_mul_i32 {s(sT0)}, s2, {3*8192}"]) + \
           [f"s_lshl_b32 {s(sT1)}, {s(sW)}, 10", f"s_add_u32 {s(sT0)}, {s(sT0)}, {s(sT1)}", f"s_add_u32 {s(sT0)}, {s(sT0)}, {WS_X + (j-1)*8192}"]
VA3 = 14
def AF3(st, sh):
    if st < 8: return XF + 4 + 8 * (2 * st + sh)
    if st < 12: return XF + 64 + 8 * (2 * (st - 8) + sh)
    if st < 16: return 96 + 4 * (2 * (st - 12) + sh)
    return XF + 4 + 8 * (2 * (st - 16) + sh)
va3_init = lines(f"v_and_b32 {v(VA3)}, 15, {v(vL)}\nv_lshlrev_b32 {v(VA3)}, 4, {v(VA3)}\nv_lshrrev_b32 {v(T+19)}, 4, {v(vL)}\nv_lshl_add_u32 {v(VA3)}, {v(T+19)}, 9, {v(VA3)}")
def a_jobs(kk):
    if V3:
        sg, gm = kk >> 1, kk & 1
        so, gs = (sA0, 14 * 1024) if sg < 7 else (sA1, 4096)
        return [rot_p(sg, sD1, gm) + [f"s_lshl_b32 {s(sD1)}, {s(sD1)}, 11", f"s_add_u32 {s(sD1)}, {s(sD1)}, {s(so)}"] + ([f"s_add_u32 {s(sD1)}, {s(sD1)}, {gs}"] if gm else []) +
                [f"buffer_load_dwordx4 {v(AF3(kk,0),4)}, {v(VA3)}, {s(SWS,4)}, {s(sD1)} offen sc1"],
                [f"buffer_load_dwordx4 {v(AF3(kk,1),4)}, {v(VA3)}, {s(SWS,4)}, {s(sD1)} offen offset:256 sc1"]]
    so = sA0 if kk < 14 else sA1
    if V2: return [rot_k(kk, sD1) + [f"s_lshl_b32 {s(sD1)}, {s(sD1)}, 10", f"s_add_u32 {s(sD1)}, {s(sD1)}, {s(so)}",
             f"buffer_load_dwordx4 {v(AF2(kk),4)}, {v(VL16)}, {s(SWS,4)}, {s(sD1)} offen sc1"] +
             ([f"s_xor_b32 {s(sD1)}, {s(sD1)}, 0x8000", f"buffer_load_dwordx4 v[252:255], {v(VL16)}, {s(SWS,4)}, {s(sD1)} offen sc1 ; nodef"] if OPT.get("dbla") and kk != 15 else [])]
    return [rot_k(kk, sD1) + [f"s_lshl_b32 {s(sD1)}, {s(sD1)}, 10", f"s_add_u32 {s(sD1)}, {s(sD1)}, {s(so)}",
             f"buffer_load_dwordx4 {v(AFq(kk,0),4)}, {v(VL16)}, {s(SWS,4)}, {s(sD1)} offen sc1"],
            [f"s_add_u32 {s(sD1)}, {s(sD1)}, {HF_RB}",
             f"buffer_load_dwordx4 {v(AFq(kk,1),4)}, {v(VL16)}, {s(SWS,4)}, {s(sD1)} offen sc1"]]
def vcheck(regs, t):
    L = [f"v_max3_u32 {v(t)}, {v(regs[0])}, {v(regs[1])}, {v(regs[2])}"]; r = regs[3:]
    while len(r) >= 2: L.append(f"v_max3_u32 {v(t)}, {v(t)}, {v(r[0])}, {v(r[1])}"); r = r[2:]
    if r: L.append(f"v_max_u32 {v(t)}, {v(t)}, {v(r[0])}")
    return L + [f"v_cmp_eq_u32 vcc, -1, {v(t)}"]
SLOW = []
def validate(regs, t, reload):
    lb = P.lab("L_v")
    P.add(vcheck(regs, t))
    P(f"s_cbranch_vccnz {lb}_slow")
    P(f"{lb}_back:")
    dbg = [f"s_add_u32 {s(sST+2*STI['slow'])}, {s(sST+2*STI['slow'])}, {1 << len(SLOW)}"] if STAMP and "slow" in STI else []
    SLOW.append([f"{lb}_slow:"] + dbg + [f"s_mov_b32 {s(sCNT)}, 0", f"{lb}_loop:", "s_sleep 2"] + reload + ["s_waitcnt vmcnt(0)"] + vcheck(regs, t) +
                [f"s_add_u32 {s(sCNT)}, {s(sCNT)}, 1", f"s_cbranch_vccz {lb}_back", f"s_cmp_gt_u32 {s(sCNT)}, {SPIN_MAX}",
                 f"s_cbranch_scc0 {lb}_loop", f"s_branch {lb}_back"])
def flush_slow():
    for blk in SLOW:
        P(".reset"); P.add(blk)
    SLOW.clear()
def spoll(o):
    x = f"s_buffer_load_dwordx4 {s(sPL,4)}, {s(SWS,4)}, {s(sFL)} offset:{0 if o else 1024} glc"
    if V3: x = f"s_buffer_load_dwordx8 {s(sPL,8)}, {s(SWS,4)}, {s(sFL)} offset:{0 if o else 1024} glc"
    return x
def sneed(level, o):
    lb = P.lab("L_sp")
    P(f"s_mov_b32 {s(sCNT)}, 0")
    P(f"{lb}:")
    P("s_waitcnt lgkmcnt(0)")
    P(f"s_min_u32 {s(sPL)}, {s(sPL)}, {s(sPL+1)}\ns_min_u32 {s(sPL+2)}, {s(sPL+2)}, {s(sPL+3)}\ns_min_u32 {s(sPL)}, {s(sPL)}, {s(sPL+2)}")
    if V3:
        for i in range(4, 8): P(f"s_min_u32 {s(sPL)}, {s(sPL)}, {s(sPL+i)}")
    P(f"s_cmp_ge_u32 {s(sPL)}, {level}")
    P(f"s_cbranch_scc1 {lb}_ok")
    P(f"s_add_u32 {s(sCNT)}, {s(sCNT)}, 1\ns_cmp_gt_u32 {s(sCNT)}, {SPIN_MAX}")
    P(f"s_cbranch_scc1 {lb}_ok")
    P("s_sleep 1")
    for x in spoll(o).split("\n"):
        I = Ins(x); I.kind = "salu"; P.ins.append(I)
    P(f"s_branch {lb}")
    P(f"{lb}_ok:")
def own_check():
    lb = P.lab("L_oc")
    P(f"s_mov_b32 {s(sCNT)}, 0")
    P(f"{lb}:")
    P("s_waitcnt lgkmcnt(0)")
    P(f"s_cmp_ge_u32 {s(sK)}, 1")
    P(f"s_cbranch_scc1 {lb}_ok")
    P(f"s_add_u32 {s(sCNT)}, {s(sCNT)}, 1\ns_cmp_gt_u32 {s(sCNT)}, {SPIN_MAX}")
    P(f"s_cbranch_scc1 {lb}_ok")
    P("s_sleep 1")
    I = Ins(f"s_buffer_load_dword {s(sK)}, {s(SWS,4)}, {s(sT2)} glc"); I.kind = "salu"; P.ins.append(I)
    P(f"s_branch {lb}")
    P(f"{lb}_ok:")
def b_reads(kk):
    slot = kk % 9
    var, off = (KAREA[slot] >> 16), KAREA[slot] & 0xffff
    return [f".waitvm b{kk}"] + [f"ds_read_b64_tr_b16 {v(BTq(kk,nb)+2*tt,2)}, {v(BA+2*var+nb)} offset:{off+1024*tt}" for nb in range(2) for tt in range(2)]
def finish(ffn):
    if OPT.get("echo") and OPT.get("echot", "fa").find("f" if ffn else "a") < 0: pass
    elif OPT.get("echo"):
        a_, b_ = [STI[x] for x in OPT["echo"].split(",")]
        lb = P.lab("L_echo")
        stamp("end")
        P("s_waitcnt lgkmcnt(0)")
        P(f"s_sub_u32 {s(sT0)}, {s(sST+2*b_)}, {s(sST+2*a_)}")
        if STAMP == 2:
            P(f"s_lshr_b32 {s(sT0)}, {s(sT0)}, 4\ns_memrealtime {s(sST+22,2)}\ns_waitcnt lgkmcnt(0)")
        P(f"s_min_u32 {s(sT0)}, {s(sT0)}, 10000")
        P(f"{lb}:")
        P(f"s_memrealtime {s(sEX,2)}")
        P("s_waitcnt lgkmcnt(0)")
        P(f"s_sub_u32 {s(sT1)}, {s(sEX)}, {s(sST+22)}\ns_cmp_lt_u32 {s(sT1)}, {s(sT0)}\ns_cbranch_scc1 {lb}")
    elif STAMP:
        stamp("end")
        P("s_waitcnt lgkmcnt(0)")
        P(f"s_lshl_b32 {s(sT0)}, s2, 3\ns_add_u32 {s(sT0)}, {s(sT0)}, {s(sW)}\ns_lshl_b32 {s(sT0)}, {s(sT0)}, 6\ns_add_u32 {s(sT0)}, {s(sT0)}, {WS_STAMP}")
        P(f"v_mov_b32 v2, 0\ns_mov_b64 exec, 1")
        for i in range(12):
            P(f"v_mov_b32 v3, {s(sST+2*i)}\nbuffer_store_dword v3, v2, {s(SWS,4)}, {s(sT0)} offen offset:{4*i}")
    P("s_endpgm")
    flush_slow()

def phase2_v2(bleft, ffn):
    BAR = [2, 3, 4, 5, 6, 7, 8, 9, 10, 11, 14, 15]; VX = 16
    WB = [20, 21, 22]; RBs = [23, 24, 25]; PX = BAUG
    t = T + 8
    XR, B2R = (SEL, AAUG) if XRG else (32, 36)
    if XRG and ffn:
        for i in range(4): P(f"v_mov_b32 {v(SEL+i)}, {v(PZ+i)}")
    P(f"v_bfe_u32 {v(t)}, {v(vL)}, 2, 2\nv_lshrrev_b32 {v(t+1)}, 5, {v(vL)}\nv_and_b32 {v(t+2)}, 63, {v(AW)}\ns_lshl_b32 {s(sT0)}, {s(sHALF)}, 5\nv_xor_b32 {v(t+2)}, {s(sT0)}, {v(t+2)}")
    P(f"v_lshl_add_u32 {v(t+3)}, {v(t+1)}, 2, {v(t)}\nv_lshl_add_u32 {v(t+3)}, {v(t+3)}, 8, {v(t+2)}\ns_lshl_b32 {s(sT0)}, {s(sHALF)}, 13\nv_add_u32 {v(t+3)}, {s(sT0)}, {v(t+3)}")
    P(f"v_xor_b32 {v(t)}, {s(sM)}, {v(t)}\nv_lshl_add_u32 {v(BAR[0])}, {v(t)}, 6, {v(t+3)}")
    for nb in range(1, 4): P(f"v_xor_b32 {v(BAR[nb])}, {64*nb}, {v(BAR[0])}")
    for rg in (2, 1):
        for nb in range(4): P(f"v_add_u32 {v(BAR[4*rg+nb])}, {65536*rg}, {v(BAR[nb])}")
    LP = int(OPT.get("lp", 2))
    SQ = int(OPT.get("sq", 12))
    seq = [(kk, nb) for kk in range(SQ) for nb in range(4) if nb or kk < LP]
    done_at = {}
    for nb in (1, 2, 3):
        seq += [(kk, nb) for kk in range(SQ, 18)]; done_at[nb] = len(seq)
    seq += [(kk, 0) for kk in range(LP, 18)]
    D = 4
    def bq(i): return XF + 8 * (i & 7)
    def br(i):
        kk, nb = seq[i]; a = KAREA[kk >> 1]
        return [f"ds_read_b64_tr_b16 {v(bq(i)+2*tt,2)}, {v(BAR[4*(a>>16)+nb])} offset:{(a&0xffff)+(kk&1)*4096+2048*tt}" for tt in range(2)]
    def val(kk):
        if not (NP and kk < 14): validate([AF2(kk) + i for i in range(4)], T + 16, a_jobs(kk)[0])
    for i in range(D): P.add(br(i))
    val(0)
    stamp("hseen")
    first = {}
    for i, (kk, nb) in enumerate(seq): first.setdefault(kk, i)
    ev = {}
    def at(i, x): ev.setdefault(i, []).append(x)
    sh = 8 - LP
    a8, a14 = int(OPT.get("a8", 14)), int(OPT.get("a14", 30 - sh))
    for i, g_ in enumerate(sum([b_dma(k2) for k2 in bleft], [])): at(int(OPT.get('bst', 1)) * i + (0 if ffn else int(OPT.get('b0a', 0))), g_)
    gates = {}
    if NP:
        if ffn:
            g2i = int(OPT.get("g2", 7)); a8 = int(OPT.get("g3f", 23 - sh))
            at(0, [spoll(0)]); gates[g2i] = 2
            for k2 in range(4, 8): at(g2i + k2 - 4, a_jobs(k2)[0])
            at(int(OPT.get("f3", 5)), flag(3, "h4"))
            a14 = max(a14, a8 + 6)
        else:
            a8 = int(OPT.get("g3a", 18 - sh // 2)); g2i = int(OPT.get("g2a", 2)); gates[g2i] = 2
            for k2 in range(4, 8): at(g2i + k2 - 4, a_jobs(k2)[0])
        at(a8 - int(OPT.get("gl", 4)), [spoll(0)]); gates[a8] = 3
    ast = int(OPT.get('ast', 1))
    ea = 0 if ffn or NP else int(OPT.get('ea', 0))
    for k2 in range(8 + ea, 14): at(a8 + ast * (k2 - 8), a_jobs(k2)[0])
    if ea and OPT.get('a14a'): a14 = int(OPT['a14a'])
    for k2 in range(14, 18): at(a14 + ast * (k2 - 14), a_jobs(k2)[0])
    F = T + 8
    at(9, lines(f"v_and_b32 {v(T+17)}, 31, {v(vL)}\nv_lshrrev_b32 {v(T+18)}, 5, {v(vL)}\nv_lshlrev_b32 {v(T+18)}, 4, {v(T+18)}\nv_lshl_add_u32 {v(VX)}, {v(T+17)}, 10, {v(T+18)}") +
          ([] if XRG else [f"buffer_load_dwordx4 {v(XR,4)}, {v(VX)}, {s(SX,4)}, {s(sOo)} offen"]) + [f"buffer_load_dwordx4 {v(B2R,4)}, {v(T+18)}, {s(SB2,4)}, {s(sN)} offen"])
    at(24, lines(f"v_add_u32 {v(WB[0])}, {s(sM0x)}, {v(VL16)}\nv_xor_b32 {v(RBs[0])}, 8192, {v(WB[0])}") +
           sum([[f"v_add_u32 {v(WB[rg])}, {65536*rg}, {v(WB[0])}", f"v_add_u32 {v(RBs[rg])}, {65536*rg}, {v(RBs[0])}"] for rg in (1, 2)], []))
    for i in range(4):
        at(40 + i, lines(f"v_lshlrev_b32 {v(F+2*i)}, 16, {v(XR+i)}\nv_and_b32 {v(F+2*i+1)}, 0xffff0000, {v(XR+i)}\nv_lshlrev_b32 {v(T+4)}, 16, {v(B2R+i)}\nv_and_b32 {v(T+5)}, 0xffff0000, {v(B2R+i)}\nv_add_f32 {v(F+2*i)}, {v(F+2*i)}, {v(T+4)}\nv_add_f32 {v(F+2*i+1)}, {v(F+2*i+1)}, {v(T+5)}"))
    px1 = OPT.get("px1") == "1" or (bool(OPT.get("pxa", "1")) and not ffn)
    if not px1:
        pxi = int(OPT.get("pxi", (12 if ffn else a8 + 6) if NP else a8 + 6))
        if not ffn and OPT.get("pxia"): pxi = int(OPT["pxia"])
        at(pxi - 1, [f"v_mov_b32 {v(PX+i)}, -1" for i in range(4)])
        for j in (1, 2, 3): at(pxi + (j - 1) * int(OPT.get("pxs", 1)), xoff(j, True) + [f"buffer_store_dwordx4 {v(PX,4)}, {v(VL16)}, {s(SWS,4)}, {s(sT0)} offen sc1 ; tag=px"])
    at(int(OPT.get("fx", 8 if px1 else 48 - sh)), flag(4, "px"))
    if OPT.get("wb"):
        lbw = P.lab("L_wb")
        at(int(OPT["wb"]), [f"s_lshr_b32 {s(sT0)}, s2, 3", f"s_and_b32 {s(sT0)}, {s(sT0)}, {OPT.get('wbm', 23)}", f"s_or_b32 {s(sT0)}, {s(sT0)}, {s(sW)}", f"s_cbranch_scc1 {lbw}", "buffer_wbl2 sc1", f"{lbw}:"])
    bar_i = first[min(12, 2 * bleft[0])] - D
    RG = [KAREA[0], L_KVB, KAREA[0], L_KVB] if LP < 8 else KAREA
    def wr(nb): a = RG[nb]; return [f"ds_write_b128 {v(WB[a>>16])}, {v(AC+16*nb+8+4*q,4)} offset:{(a&0xffff)+1024*q}" for q in range(2)]
    def rdp(nb): a = RG[nb]; return [f"ds_read_b128 {v(AC+16*nb+8+4*q,4)}, {v(RBs[a>>16])} offset:{(a&0xffff)+1024*q}" for q in range(2)]
    def add(nb, pk): c = AC + 16 * nb; return [f"v_pk_add_f32 {v(c+i,2)}, {v(c+i,2)}, {v(c+8+i,2)}" for i in range(0, 8, 2)] if pk else [f"v_add_f32 {v(c+i)}, {v(c+i)}, {v(c+8+i)}" for i in range(8)]
    def snd(nb): c = AC + 16 * nb; return [f"v_cvt_pk_bf16_f32 {v(c+8+i)}, {v(c+2*i)}, {v(c+2*i+1)}" for i in range(4)] + xoff(nb, True) + [f"buffer_store_dwordx4 {v(c+8,4)}, {v(VL16)}, {s(SWS,4)}, {s(sT0)} offen sc1"]
    VPF, VPA = PX, PX + 1
    pf = f"buffer_load_dword {v(VPF)}, {v(VPA)}, {s(SWS,4)}, 0 offen sc1"
    at(38 if px1 else done_at[3] + 3, lines(f"v_and_b32 {v(VPA)}, 3, {v(vL)}\nv_lshlrev_b32 {v(VPA)}, 8, {v(VPA)}\nv_xor_b32 {v(VPA)}, {s(sFO)}, {v(VPA)}") + [pf])
    PS = OPT.get("ps", "0") == "1"
    VFW, VFR, VFT = 26, 18, 19
    chk = {}
    if PS:
        assert LP >= 4
        RG[1] = RG[3] = KAREA[1]
        at(bar_i - 8, lines(f"s_lshl_b32 {s(sT0)}, {s(sW)}, 2\ns_add_u32 {s(sT0)}, {s(sT0)}, {L_ST}\nv_mov_b32 {v(VFW)}, {s(sT0)}\nv_xor_b32 {v(VFR)}, 16, {v(VFW)}\nds_write_b32 {v(VFW)}, {v(VZ)}"))
        def wrf(nb, lv): return wr(nb) + [f"v_mov_b32 {v(VFT)}, {lv}", f"ds_write_b32 {v(VFW)}, {v(VFT)}"]
        def rdf(nb): return [f"ds_read_b32 {v(VFT)}, {v(VFR)}"] + rdp(nb)
        def check(nb, lv):
            lb = P.lab("L_ps")
            P(f"v_cmp_gt_u32 vcc, {lv}, {v(VFT)}")
            P(f"s_cbranch_vccnz {lb}_slow")
            P(f"{lb}_back:")
            SLOW.append([f"{lb}_slow:", f"s_mov_b32 {s(sCNT)}, 0", f"{lb}_loop:"] + rdf(nb) + ["s_waitcnt lgkmcnt(0)", f"v_cmp_gt_u32 vcc, {lv}, {v(VFT)}",
                         f"s_add_u32 {s(sCNT)}, {s(sCNT)}, 1", f"s_cbranch_vccz {lb}_back", f"s_cmp_gt_u32 {s(sCNT)}, {SPIN_MAX * 16}", f"s_cbranch_scc0 {lb}_loop", f"s_branch {lb}_back"])
        dl = int(OPT.get("psd", 2))
        for nb in (1, 2, 3):
            e = done_at[nb]
            at(e + 1, wrf(nb, nb)); at(e + 1 + dl, rdf(nb)); chk[e + 2 + dl] = nb; at(e + 2 + dl, add(nb, False) + snd(nb))
        at(done_at[3] + 2 + dl, stamp_i("xs"))
    elif SQ < 18:
        for nb in (1, 2, 3):
            e = done_at[nb]
            at(e + 1, wr(nb)); at(e + 2, ["s_waitcnt lgkmcnt(2)", "s_barrier"] + rdp(nb)); at(e + 4, add(nb, False) + snd(nb))
        at(done_at[3] + 4, stamp_i("xs"))
    else:
        e = done_at[3]
        at(e, wr(1) + wr(2)); at(e + 1, wr(3) + ["s_waitcnt lgkmcnt(0)", "s_barrier"] + rdp(1) + rdp(2) + rdp(3))
        for nb in (1, 2, 3): at(e + 1 + nb, add(nb, False) + snd(nb))
        at(e + 4, stamp_i("xs"))
    R = XF + 64 - 4 if False else None
    RQ = [None, XF + 64, XF + 72, XF + 80]
    rl = sum([xoff(j, False) + [f"buffer_load_dwordx4 {v(RQ[j],4)}, {v(VL16)}, {s(SWS,4)}, {s(sT0)} offen sc1"] for j in range(1, 4)], [])
    ri = int(OPT.get("ri", 99))
    seen = set()
    for i, (kk, nb) in enumerate(seq):
        if i % 4 == 0: P(f"s_setprio {3 - ((i >> 2) & 3)}")
        P(mfma(AC + 16 * nb, bq(i), AF2(kk), None if nb in seen else "0")); seen.add(nb)
        if i == bar_i: P(".waitvm b8"); P("s_barrier")
        if i + D < len(seq): P.add(br(i + D))
        if i + 2 < len(seq) and first[seq[i + 2][0]] == i + 2: val(seq[i + 2][0])
        if i in gates: sneed(gates[i], 0)
        if i in chk: check(chk[i], chk[i])
        for x in ev.pop(i, []): P.add(x)
        if i == len(seq) - 1 - ri:
            P(f"v_mov_b32 {v(VPF)}, {v(VPF)}")
            spin(P.lab("L_pf"), pf, f"v_cmp_gt_u32 vcc, 4, {v(VPF)}")
            P.add(rl)
        if i + 1 < len(seq) and first[seq[i + 1][0]] == i + 1: stamp(f"k{kk}")
    assert not ev, ev.keys()
    stamp("p2mm")
    P("s_setprio 0")
    P.add(wrf(0, 4) if PS else wr(0))
    if ri >= len(seq):
        P(f"v_mov_b32 {v(VPF)}, {v(VPF)}")
        spin(P.lab("L_pf"), pf, f"v_cmp_gt_u32 vcc, 4, {v(VPF)}")
    if PS:
        if ri >= len(seq): P.add(rl)
        P.add(rdf(0)); check(0, 4)
    else:
        P("s_waitcnt lgkmcnt(0)")
        P("s_barrier")
        P.add(rdp(0))
        if ri >= len(seq): P.add(rl)
    P.add(add(0, True))
    validate([RQ[j] + i for j in (1, 2, 3) for i in range(4)], T + 16, rl)
    stamp("xr")
    P(f"s_mov_b32 {s(sT0)}, 0x3f80\ns_mov_b32 {s(sT1)}, 0x3f800000")
    for j in range(1, 4):
        for i in range(4): P(f"v_dot2c_f32_bf16 {v(AC+2*i)}, {s(sT0)}, {v(RQ[j]+i)}\nv_dot2c_f32_bf16 {v(AC+2*i+1)}, {s(sT1)}, {v(RQ[j]+i)}")
    for i in range(4): P(f"v_permlane32_swap_b32 {v(AC+i)}, {v(AC+4+i)}")
    for i in range(0, 8, 2): P(f"v_pk_add_f32 {v(F+i,2)}, {v(F+i,2)}, {v(AC+i,2)}")
    for i in range(4): P(f"v_cvt_pk_bf16_f32 {v(XR+i)}, {v(F+2*i)}, {v(F+2*i+1)}")
    P(f"buffer_store_dwordx4 {v(XR,4)}, {v(VX)}, {s(SOUT,4)}, {s(sOo)} offen")
    finish(ffn)

def phase2_v5(bleft, ffn):
    BAR = [2, 3, 4, 5, 6, 7, 8, 9, 10, 11, 14, 15]; VX = 16; BO = [19, 26]
    WB = [20, 21, 22]; RBs = [23, 24, 25]; PX = BAUG
    VOF, VOA, VOP, VOV = 40, 41, 42, 43
    t = T + 8
    P(f"v_bfe_u32 {v(t)}, {v(vL)}, 2, 2\nv_lshrrev_b32 {v(t+1)}, 5, {v(vL)}\nv_and_b32 {v(t+2)}, 63, {v(AW)}\ns_lshl_b32 {s(sT0)}, {s(sHALF)}, 5\nv_xor_b32 {v(t+2)}, {s(sT0)}, {v(t+2)}")
    P(f"s_lshl_b32 {s(sT0)}, {s(sHALF)}, 13\nv_add_u32 {v(t+2)}, {s(sT0)}, {v(t+2)}\nv_lshl_add_u32 {v(t+4)}, {v(t+1)}, 2, {v(t)}\nv_lshl_add_u32 {v(t+3)}, {v(t+4)}, 8, {v(t+2)}")
    P(f"v_xor_b32 {v(t)}, {s(sM)}, {v(t)}\nv_lshl_add_u32 {v(BAR[0])}, {v(t)}, 6, {v(t+3)}")
    for nb in range(1, 4): P(f"v_xor_b32 {v(BAR[nb])}, {64*nb}, {v(BAR[0])}")
    for rg in (2, 1):
        for nb in range(4): P(f"v_add_u32 {v(BAR[4*rg+nb])}, {65536*rg}, {v(BAR[nb])}")
    bo_init = [f"v_lshl_add_u32 {v(t+4)}, {v(t+4)}, 6, {v(t+2)}"] + [f"v_add_u32 {v(BO[k])}, {KAREA[7+k]}, {v(t+4)}" for k in range(2)]
    LP = 2; SQ = int(OPT.get("sq", 8)); D = 4
    seq = [(kk, nb) for kk in range(SQ) for nb in range(4) if nb or kk < LP]
    done_at = {}
    for nb in (1, 2, 3):
        seq += [(kk, nb) for kk in range(SQ, 14)]; done_at[nb] = len(seq)
    seq += [(kk, 0) for kk in range(LP, 30)]
    def bq(i): return XF + 8 * (i & 7)
    def AFx(kk):
        if kk < 18: return AF2(kk)
        if kk < 26: return XF + 64 + 8 * (kk - 18)
        return AC + 16 + 4 * (kk - 26)
    def br(i):
        kk, nb = seq[i]
        if kk >= 14:
            j = kk - 14
            return [f"ds_read_b64_tr_b16 {v(bq(i)+2*tt,2)}, {v(BO[j>>3])} offset:{(j&7)*1024+512*tt}" for tt in range(2)]
        a = KAREA[kk >> 1]
        return [f"ds_read_b64_tr_b16 {v(bq(i)+2*tt,2)}, {v(BAR[4*(a>>16)+nb])} offset:{(a&0xffff)+(kk&1)*4096+2048*tt}" for tt in range(2)]
    def o_job(j): return [f"s_add_u32 {s(sD1)}, {s(sWq)}, {j}", f"s_and_b32 {s(sD1)}, {s(sD1)}, 15", f"s_lshl_b32 {s(sD1)}, {s(sD1)}, 10", f"s_add_u32 {s(sD1)}, {s(sD1)}, {s(sA1)}",
                          f"buffer_load_dwordx4 {v(AFx(14+j),4)}, {v(VL16)}, {s(SWS,4)}, {s(sD1)} offen sc1"]
    for i in range(D): P.add(br(i))
    stamp("hseen")
    first = {}
    for i, (kk, nb) in enumerate(seq): first.setdefault(kk, i)
    ev = {}; gates = {}; act = {}
    def at(i, x): ev.setdefault(i, []).append(x)
    at(0, bo_init)
    for i, g_ in enumerate(sum([b_dma(k2) for k2 in bleft], [])): at(i, g_)
    if ffn:
        g2i = int(OPT.get("g2", 8)); a8 = int(OPT.get("g3f", 20))
        at(0, [spoll(0)]); at(int(OPT.get("f3", 7)), flag(3, "h4"))
    else: g2i = int(OPT.get("g2a", 2)); a8 = int(OPT.get("g3a", 12))
    one = (not ffn) and OPT.get("one", "1") == "1"
    if one: gates[g2i] = 3; a8 = g2i + 4
    else: gates[g2i] = 2; gates[a8] = 3
    for k2 in range(4, 8): at(g2i + k2 - 4, a_jobs(k2)[0])
    if not one: at(max(a8 - int(OPT.get("gl", 4)), g2i), [spoll(0)])
    for k2 in range(8, 14): at(a8 + k2 - 8, a_jobs(k2)[0])
    F = T + 8
    at(9, lines(f"v_and_b32 {v(T+17)}, 31, {v(vL)}\nv_lshrrev_b32 {v(T+18)}, 5, {v(vL)}\nv_lshlrev_b32 {v(T+18)}, 4, {v(T+18)}\nv_lshl_add_u32 {v(VX)}, {v(T+17)}, 10, {v(T+18)}") +
          [f"buffer_load_dwordx4 {v(XR,4)}, {v(VX)}, {s(SX,4)}, {s(sOo)} offen", f"buffer_load_dwordx4 {v(B2R,4)}, {v(T+18)}, {s(SB2,4)}, {s(sN)} offen"])
    at(20, lines(f"v_add_u32 {v(WB[0])}, {s(sM0x)}, {v(VL16)}\nv_xor_b32 {v(RBs[0])}, 8192, {v(WB[0])}") +
           sum([[f"v_add_u32 {v(WB[rg])}, {65536*rg}, {v(WB[0])}", f"v_add_u32 {v(RBs[rg])}, {65536*rg}, {v(RBs[0])}"] for rg in (1, 2)], []))
    for i in range(4):
        at(50 + i, lines(f"v_lshlrev_b32 {v(F+2*i)}, 16, {v(XR+i)}\nv_and_b32 {v(F+2*i+1)}, 0xffff0000, {v(XR+i)}\nv_lshlrev_b32 {v(T+4)}, 16, {v(B2R+i)}\nv_and_b32 {v(T+5)}, 0xffff0000, {v(B2R+i)}\nv_add_f32 {v(F+2*i)}, {v(F+2*i)}, {v(T+4)}\nv_add_f32 {v(F+2*i+1)}, {v(F+2*i+1)}, {v(T+5)}"))
    if ffn:
        pxi = int(OPT.get("pxi", 13))
        at(pxi - 1, [f"v_mov_b32 {v(PX+i)}, -1" for i in range(4)])
        for j in (1, 2, 3): at(pxi + j - 1, xoff(j, True) + [f"buffer_store_dwordx4 {v(PX,4)}, {v(VL16)}, {s(SWS,4)}, {s(sT0)} offen sc1 ; tag=px"])
    at(done_at[1] if ffn else 8, flag(4, "px"))
    bar_i = first[12] - D
    RG = [KAREA[0], L_KVB, KAREA[0], L_KVB]
    def wr(nb): a = RG[nb]; return [f"ds_write_b128 {v(WB[a>>16])}, {v(AC+16*nb+8+4*q,4)} offset:{(a&0xffff)+1024*q}" for q in range(2)]
    def rdp(nb): a = RG[nb]; return [f"ds_read_b128 {v(AC+16*nb+8+4*q,4)}, {v(RBs[a>>16])} offset:{(a&0xffff)+1024*q}" for q in range(2)]
    def add(nb, pk): c = AC + 16 * nb; return [f"v_pk_add_f32 {v(c+i,2)}, {v(c+i,2)}, {v(c+8+i,2)}" for i in range(0, 8, 2)] if pk else [f"v_add_f32 {v(c+i)}, {v(c+i)}, {v(c+8+i)}" for i in range(8)]
    def snd(nb): c = AC + 16 * nb; return [f"v_cvt_pk_bf16_f32 {v(c+8+i)}, {v(c+2*i)}, {v(c+2*i+1)}" for i in range(4)] + xoff(nb, True) + [f"buffer_store_dwordx4 {v(c+8,4)}, {v(VL16)}, {s(SWS,4)}, {s(sT0)} offen sc1"]
    for nb in (1, 2, 3):
        e = done_at[nb]
        at(e + 1, wr(nb)); at(e + 2, ["s_waitcnt lgkmcnt(2)", "s_barrier"] + rdp(nb)); at(e + 4, add(nb, False) + snd(nb))
    at(done_at[3] + 4, stamp_i("xs"))
    of = f"buffer_load_dword {v(VOF)}, {v(VOA)}, {s(SWS,4)}, 0 offen sc1"
    op = f"buffer_load_dword {v(VOV)}, {v(VOP)}, {s(SWS,4)}, {s(sA1)} offen sc1"
    at(7, lines(f"s_andn2_b32 {s(sT0)}, {s(sFL)}, 0x380\ns_lshl_b32 {s(sT1)}, {s(sHALF)}, 9\ns_add_u32 {s(sT0)}, {s(sT0)}, {s(sT1)}\nv_and_b32 {v(VOA)}, 3, {v(vL)}\nv_lshlrev_b32 {v(VOA)}, 7, {v(VOA)}\nv_and_b32 {v(VOP)}, 12, {v(vL)}\nv_add_u32 {v(VOA)}, {v(VOA)}, {v(VOP)}\nv_add_u32 {v(VOA)}, {s(sT0)}, {v(VOA)}\nv_and_b32 {v(VOP)}, 15, {v(vL)}\nv_lshlrev_b32 {v(VOP)}, 10, {v(VOP)}") + [of])
    ao = int(OPT.get("aof", done_at[3] + 6)) if ffn else int(OPT.get("aoa", 24))
    PROBE = ffn or OPT.get("pra") == "1"
    def ogate():
        P(f"v_mov_b32 {v(VOF)}, {v(VOF)}")
        spin(P.lab("L_of"), of, f"v_cmp_gt_u32 vcc, 1, {v(VOF)}")
        if PROBE:
            P(f"v_mov_b32 {v(VOV)}, -1")
            spin(P.lab("L_op"), op, f"v_cmp_eq_u32 vcc, -1, {v(VOV)}")
    act[ao] = ogate
    i_ = ao; per = 3 if ffn else 1
    for j in range(16):
        if j >= 12: i_ = max(i_, done_at[1] + 6)
        at(i_, o_job(j))
        if (j + 1) % per == 0: i_ += 1
    assert i_ <= first[14] - 1 + (6 if ffn else 0), (i_, first[14])
    VPF, VPA = PX, PX + 1
    pf = f"buffer_load_dword {v(VPF)}, {v(VPA)}, {s(SWS,4)}, 0 offen sc1"
    at(done_at[3] + 3, lines(f"v_and_b32 {v(VPA)}, 3, {v(vL)}\nv_lshlrev_b32 {v(VPA)}, 8, {v(VPA)}\nv_xor_b32 {v(VPA)}, {s(sFO)}, {v(VPA)}") + [pf])
    RQ = [None, AC + 32, AC + 36, AC + 44]
    rl = sum([xoff(j, False) + [f"buffer_load_dwordx4 {v(RQ[j],4)}, {v(VL16)}, {s(SWS,4)}, {s(sT0)} offen sc1"] for j in range(1, 4)], [])
    def recv():
        P(f"v_mov_b32 {v(VPF)}, {v(VPF)}")
        spin(P.lab("L_pf"), pf, f"v_cmp_gt_u32 vcc, 4, {v(VPF)}")
        P.add(rl)
    ri = len(seq) - 1 - int(OPT.get("ri", 8))
    VG_ = int(OPT.get("vg", 4))
    seen = set()
    for i, (kk, nb) in enumerate(seq):
        if i % 4 == 0: P(f"s_setprio {3 - ((i >> 2) & 3)}")
        P(mfma(AC + 16 * nb, bq(i), AFx(kk), None if nb in seen else "0")); seen.add(nb)
        if i == bar_i: P(".waitvm b8"); P("s_barrier")
        if i + D < len(seq): P.add(br(i + D))
        if i in gates: sneed(gates[i], 0)
        if i in act: act[i]()
        for x in ev.pop(i, []): P.add(x)
        if i + 1 < len(seq) and seq[i + 1][0] >= 14 and (seq[i + 1][0] - 14) % VG_ == 0:
            j0 = seq[i + 1][0] - 14
            validate([AFx(14 + j) + r for j in range(j0, j0 + VG_) for r in range(4)], T + 16, sum([o_job(j) for j in range(j0, 16)], []))
        if i == ri: recv()
        if i + 1 < len(seq) and first[seq[i + 1][0]] == i + 1: stamp(f"k{kk}")
    assert not ev, ev.keys()
    stamp("p2mm")
    P("s_setprio 0")
    P.add(wr(0))
    P("s_waitcnt lgkmcnt(0)")
    P("s_barrier")
    P.add(rdp(0))
    validate([RQ[j] + i for j in (1, 2, 3) for i in range(4)], T + 16, rl)
    stamp("xr")
    P(f"s_mov_b32 {s(sT0)}, 0x3f80\ns_mov_b32 {s(sT1)}, 0x3f800000")
    for j in range(1, 4):
        for i in range(4): P(f"v_dot2c_f32_bf16 {v(AC+2*i)}, {s(sT0)}, {v(RQ[j]+i)}\nv_dot2c_f32_bf16 {v(AC+2*i+1)}, {s(sT1)}, {v(RQ[j]+i)}")
    P.add(add(0, True))
    for i in range(4): P(f"v_permlane32_swap_b32 {v(AC+i)}, {v(AC+4+i)}")
    for i in range(0, 8, 2): P(f"v_pk_add_f32 {v(F+i,2)}, {v(F+i,2)}, {v(AC+i,2)}")
    for i in range(4): P(f"v_cvt_pk_bf16_f32 {v(XR+i)}, {v(F+2*i)}, {v(F+2*i+1)}")
    P(f"buffer_store_dwordx4 {v(XR,4)}, {v(VX)}, {s(SOUT,4)}, {s(sOo)} offen")
    finish(ffn)

def phase2_v3(bleft, aleft, ffn):
    BAR = [2, 3, 4, 5, 6, 7, 8, 9, 10, 11, 18, 19]; VX = 16; PX = BAUG
    t = T + 8
    P(f"v_bfe_u32 {v(t)}, {v(vL)}, 2, 2\nv_lshrrev_b32 {v(t+1)}, 5, {v(vL)}\nv_bfe_u32 {v(t+2)}, {v(vL)}, 4, 1\nv_lshl_add_u32 {v(t+3)}, {v(t+2)}, 2, {v(t)}\nv_lshl_add_u32 {v(t+3)}, {v(t+1)}, 4, {v(t+3)}")
    P(f"v_and_b32 {v(t+4)}, 63, {v(AW)}\ns_lshl_b32 {s(sT0)}, {s(sHALF)}, 5\nv_xor_b32 {v(t+4)}, {s(sT0)}, {v(t+4)}\nv_lshl_add_u32 {v(t+3)}, {v(t+3)}, 8, {v(t+4)}")
    P(f"v_xor_b32 {v(t)}, {s(sM)}, {v(t)}\nv_lshl_add_u32 {v(BAR[0])}, {v(t)}, 6, {v(t+3)}")
    for q in range(1, 4): P(f"v_xor_b32 {v(BAR[q])}, {64*q}, {v(BAR[0])}")
    for rg in (2, 1):
        for q in range(4): P(f"v_add_u32 {v(BAR[4*rg+q])}, {65536*rg}, {v(BAR[q])}")
    LP = int(OPT.get("lp", 2)); SQ = int(OPT.get("sq", 14))
    assert LP >= 2
    seq = [(st, q) for st in range(SQ) for q in range(4) if q or st < LP]
    done_at = {}
    for q in (1, 2, 3):
        seq += [(st, q) for st in range(SQ, 18)]; done_at[q] = len(seq)
    seq += [(st, 0) for st in range(LP, 18)]
    D = 4
    def bq(i): return XF + 8 * (i & 7)
    def br(i):
        st, q = seq[i]; a = KAREA[st >> 1]
        return [f"ds_read_b64_tr_b16 {v(bq(i)+2*tt,2)}, {v(BAR[4*(a>>16)+q])} offset:{(a&0xffff)+(st&1)*8192+2048*tt}" for tt in range(2)]
    def val(st): validate([AF3(st, sh) + i for sh in range(2) for i in range(4)], T + 16, sum(a_jobs(st), []))
    for i in range(D): P.add(br(i))
    val(0)
    stamp("hseen")
    first = {}
    for i, (st, q) in enumerate(seq): first.setdefault(st, i)
    ev = {}
    def at(i, x): ev.setdefault(i, []).append(x)
    a8, a14 = int(OPT.get("a8", 8)), int(OPT.get("a14", 26))
    i0 = 0
    for st in aleft: at(i0, sum(a_jobs(st), [])); i0 += 1
    for g_ in sum([b_dma(k2) for k2 in bleft], []): at(i0, g_); i0 += 1
    a8 = max(a8, i0)
    for st in range(8, 14): at(a8 + 2 * (st - 8), sum(a_jobs(st), []))
    for st in range(14, 18): at(a14 + 2 * (st - 14), sum(a_jobs(st), []))
    pxi = int(OPT.get("pxi", a8 + 12))
    at(pxi - 1, [f"v_mov_b32 {v(PX+i)}, -1" for i in range(4)])
    for j in (1, 2, 3): at(pxi + j - 1, xoff(j, True) + [f"buffer_store_dwordx4 {v(PX,4)}, {v(VL16)}, {s(SWS,4)}, {s(sT0)} offen sc1 ; tag=px"])
    at(done_at[1] - int(OPT.get("fxb", 2)), flag(2, "px"))
    F = T + 8
    at(a8 + 1, lines(f"v_and_b32 {v(T+17)}, 31, {v(vL)}\nv_lshrrev_b32 {v(T+18)}, 5, {v(vL)}\nv_lshlrev_b32 {v(T+18)}, 4, {v(T+18)}\nv_lshl_add_u32 {v(VX)}, {v(T+17)}, 10, {v(T+18)}") +
          [f"buffer_load_dwordx4 {v(XR,4)}, {v(VX)}, {s(SX,4)}, {s(sOo)} offen", f"buffer_load_dwordx4 {v(B2R,4)}, {v(T+18)}, {s(SB2,4)}, {s(sN)} offen"])
    for i in range(4):
        at(done_at[3] + 6 + i, lines(f"v_lshlrev_b32 {v(F+2*i)}, 16, {v(XR+i)}\nv_and_b32 {v(F+2*i+1)}, 0xffff0000, {v(XR+i)}\nv_lshlrev_b32 {v(T+4)}, 16, {v(B2R+i)}\nv_and_b32 {v(T+5)}, 0xffff0000, {v(B2R+i)}\nv_add_f32 {v(F+2*i)}, {v(F+2*i)}, {v(T+4)}\nv_add_f32 {v(F+2*i+1)}, {v(F+2*i+1)}, {v(T+5)}"))
    def snd(q): c = AC + 8 * q; return [f"v_cvt_pk_bf16_f32 {v(c+i)}, {v(c+2*i)}, {v(c+2*i+1)}" for i in range(4)] + xoff(q, True) + [f"buffer_store_dwordx4 {v(c,4)}, {v(VL16)}, {s(SWS,4)}, {s(sT0)} offen sc1"]
    VPF, VPA = PX, PX + 1
    pf = f"buffer_load_dword {v(VPF)}, {v(VPA)}, {s(SWS,4)}, 0 offen sc1"
    for q in (1, 2, 3): at(done_at[q] + 1, snd(q))
    at(done_at[3] + 1, stamp_i("xs"))
    at(done_at[3] + int(OPT.get("pfi", 0)), lines(f"v_and_b32 {v(VPA)}, 3, {v(vL)}\nv_lshlrev_b32 {v(VPA)}, 8, {v(VPA)}\nv_xor_b32 {v(VPA)}, {s(sFO)}, {v(VPA)}") + [pf])
    bar_i = first[12] - D
    R = AC + 8 - 4
    RQ = [None, AC + 12, AC + 20, AC + 28]
    rl = sum([xoff(j, False) + [f"buffer_load_dwordx4 {v(RQ[j],4)}, {v(VL16)}, {s(SWS,4)}, {s(sT0)} offen sc1"] for j in range(1, 4)], [])
    ri = min(done_at[3] + int(OPT.get("ri", 12)), len(seq) - 1)
    seen = set()
    for i, (st, q) in enumerate(seq):
        if i % 4 == 0: P(f"s_setprio {3 - ((i >> 2) & 3)}")
        for sh in range(2): P(m16(AC + 8 * q + 4 * sh, bq(i), AF3(st, sh), None if q in seen else "0"))
        seen.add(q)
        if i == bar_i: P(".waitvm b8"); P("s_barrier")
        if i + D < len(seq): P.add(br(i + D))
        if i + 2 < len(seq) and first[seq[i + 2][0]] == i + 2: val(seq[i + 2][0])
        for x in ev.pop(i, []): P.add(x)
        if i == ri:
            P(f"v_mov_b32 {v(VPF)}, {v(VPF)}")
            spin(P.lab("L_pf"), pf, f"v_cmp_gt_u32 vcc, 2, {v(VPF)}")
            P.add(rl)
        if i + 1 < len(seq) and first[seq[i + 1][0]] == i + 1: stamp(f"k{st}")
    assert not ev, ev.keys()
    stamp("p2mm")
    P("s_setprio 0")
    validate([RQ[j] + i for j in (1, 2, 3) for i in range(4)], T + 16, rl)
    stamp("xr")
    P(f"s_mov_b32 {s(sT0)}, 0x3f80\ns_mov_b32 {s(sT1)}, 0x3f800000")
    for j in range(1, 4):
        for i in range(4): P(f"v_dot2c_f32_bf16 {v(AC+2*i)}, {s(sT0)}, {v(RQ[j]+i)}\nv_dot2c_f32_bf16 {v(AC+2*i+1)}, {s(sT1)}, {v(RQ[j]+i)}")
    for i in range(4): P(f"v_permlane16_swap_b32 {v(AC+i)}, {v(AC+4+i)}")
    for i in range(0, 8, 2): P(f"v_pk_add_f32 {v(F+i,2)}, {v(F+i,2)}, {v(AC+i,2)}")
    for i in range(4): P(f"v_cvt_pk_bf16_f32 {v(XR+i)}, {v(F+2*i)}, {v(F+2*i+1)}")
    P(f"buffer_store_dwordx4 {v(XR,4)}, {v(VX)}, {s(SOUT,4)}, {s(sOo)} offen")
    finish(ffn)

def phase2(done=(), ordr="B6 B7 B8 B9 A4 A5 A6 A7 B10 A8 B11 A9 A10 B12 A11 B13 A12 B14 A13 B15 B16 B17 A14 A15 A16 A17", ffn=False):
    P(f"v_bfe_u32 {v(T+8)}, {v(vL)}, 2, 2\nv_lshrrev_b32 {v(T+9)}, 5, {v(vL)}\nv_and_b32 {v(T+10)}, 63, {v(AW)}")
    P(f"v_lshl_add_u32 {v(T+12)}, {v(T+9)}, 2, {v(T+8)}\nv_lshl_add_u32 {v(T+12)}, {v(T+12)}, 7, {v(T+10)}\nv_lshrrev_b32 {v(T+13)}, 1, {v(T+8)}")
    P(f"v_lshl_add_u32 {v(T+12)}, {v(T+13)}, 6, {v(T+12)}\nv_xor_b32 {v(T+13)}, 64, {v(T+12)}")
    P(f"s_add_u32 {s(sT0)}, {s(sM0x)}, 65536\ns_add_u32 {s(sT1)}, {s(sM0x)}, {RC}")
    for nb in range(2):
        P(f"v_add_u32 {v(BA+nb)}, {s(sM0x)}, {v(T+12+nb)}\nv_add_u32 {v(BA+2+nb)}, {s(sT0)}, {v(T+12+nb)}\nv_add_u32 {v(BA+4+nb)}, {s(sT1)}, {v(T+12+nb)}")
    P.add(b_reads(0))
    if OPT.get("r8", "1") == "1": validate([AFq(0, r2) + i for r2 in range(2) for i in range(4)], T + 16, sum(a_jobs(0), []))
    if OPT.get("p2prio") == "y":
        lb = P.lab("L_pr"); P(f"s_cmp_lt_u32 {s(sW)}, 4\ns_cbranch_scc1 {lb}\ns_setprio 1\n{lb}:")
    stamp("hseen")
    order = [j for j in ordr.split() if j not in done]
    jobs = []
    for j in order:
        k2 = int(j[1:]); gs = a_jobs(k2) if j[0] == "A" else b_dma(k2)
        jobs += [(j, gs[0]), (None, gs[1])]
    LEAD = int(OPT.get("lead", 3))
    first_need = min(int(j[1:]) - (0 if j[0] == "A" else 1) for j in order)
    order.sort(key=lambda j: int(j[1:]) - (0.5 if j[0] == "B" else 0)) if LEAD < 9 else None
    jobs = []
    for j in order:
        k2 = int(j[1:]); gs = a_jobs(k2) if j[0] == "A" else b_dma(k2)
        jobs += [(j, gs[0]), (None, gs[1])]
    NT = int(OPT.get("nt", 2))
    for kk in range(18 - NT):
        rem = [x for x, _ in jobs if x]
        assert f"A{kk+1}" not in rem and f"B{kk+2}" not in rem, (kk, rem)
        if OPT.get("v"): print(kk, rem, file=sys.stderr)
        pm = OPT.get("p2prio", "c")
        if pm == "c": P(f"s_setprio {3 - ((kk // int(OPT.get('p2per', 1))) & 3)}")
        br = b_reads(kk + 1) if kk + 1 < 18 else []
        for nb in range(2):
            for rb in range(2):
                mi = 2 * nb + rb
                P(mfma(AC + 16 * mi, BTq(kk, nb), AFq(kk, rb), "0" if kk == 0 else None))
                if mi == 0: P.add(br[:3])
                if mi == 1: P.add(br[3:])
                if mi == 2 and (1 if OPT.get('r8', '1') == '1' else 4) <= kk + 1 < 18:
                    if jobs and jobs[0][0] is None: P.add(jobs.pop(0)[1])
                    validate([AFq(kk + 1, r2) + i for r2 in range(2) for i in range(4)], T + 16, sum(a_jobs(kk + 1), []))
                for rep in range(2 if kk < int(OPT.get("dbl", 0)) else 1):
                    if not jobs: continue
                    j, g_ = jobs[0]
                    if j:
                        k2 = int(j[1:]); last = (nb, rb) == (1, 1)
                        free = k2 - (8 if j[0] == "A" else 9)
                        if free > kk or (free == kk and not last): continue
                        need_at = k2 - (0 if j[0] == "A" else 1)
                        if need_at > max(kk, first_need - 1) + LEAD: continue
                    jobs.pop(0); P.add(g_)
        stamp(f"k{kk}")
        if kk == 8:
            P(f"v_lshrrev_b32 {v(T+17)}, 3, {v(vL)}\nv_and_b32 {v(T+18)}, 7, {v(vL)}\nv_lshlrev_b32 {v(T+18)}, 4, {v(T+18)}\nv_lshl_add_u32 {v(VXR)}, {v(T+17)}, 10, {v(T+18)}")
            P(f"s_lshl_b32 {s(sT0)}, {s(sN)}, 7")
            P(f"buffer_load_dwordx4 {v(XR,4)}, {v(VXR)}, {s(SX,4)}, {s(sOo)} offen")
            P(f"buffer_load_dwordx4 {v(B2R,4)}, {v(T+18)}, {s(SB2,4)}, {s(sT0)} offen")
        if kk == 3:
            for q in range(4):
                P(f"v_xor_b32 {v(VWR+q)}, {64*q}, {v(VL16)}\nv_add_u32 {v(VWR+q)}, {s(sM0x)}, {v(VWR+q)}")
                P(f"v_add_u32 {v(T+q)}, 65536, {v(VWR+q)}")
            P(f"v_lshrrev_b32 {v(T+4)}, 3, {v(vL)}\ns_lshl_b32 {s(sT0)}, {s(sW34)}, 1\nv_add_u32 {v(T+4)}, {s(sT0)}, {v(T+4)}")
            P(f"v_and_b32 {v(T+5)}, 3, {v(vL)}\nv_lshlrev_b32 {v(T+6)}, 2, {v(T+5)}\nv_xor_b32 {v(T+4)}, {v(T+4)}, {v(T+6)}\nv_lshlrev_b32 {v(T+4)}, 4, {v(T+4)}\nv_and_b32 {v(T+6)}, 1, {v(T+5)}\nv_lshl_add_u32 {v(T+4)}, {v(T+6)}, 10, {v(T+4)}\nv_lshrrev_b32 {v(T+6)}, 1, {v(T+5)}\nv_lshl_add_u32 {v(T+4)}, {v(T+6)}, 14, {v(T+4)}")
            P(f"v_bfe_u32 {v(T+5)}, {v(vL)}, 2, 1\nv_lshl_add_u32 {v(T+4)}, {v(T+5)}, 16, {v(T+4)}\ns_lshl_b32 {s(sT0)}, {s(sHALF)}, 15\nv_add_u32 {v(VRED)}, {s(sT0)}, {v(T+4)}")
        F = T + 8
        if kk == 13:
            for i in range(4):
                P(f"v_lshlrev_b32 {v(F+2*i)}, 16, {v(XR+i)}\nv_and_b32 {v(F+2*i+1)}, 0xffff0000, {v(XR+i)}")
                P(f"v_lshlrev_b32 {v(T+4)}, 16, {v(B2R+i)}\nv_and_b32 {v(T+5)}, 0xffff0000, {v(B2R+i)}")
                P(f"v_add_f32 {v(F+2*i)}, {v(F+2*i)}, {v(T+4)}\nv_add_f32 {v(F+2*i+1)}, {v(F+2*i+1)}, {v(T+5)}")
    assert not jobs
    for kk in range(19 - NT, 18):
        P.add(b_reads(kk))
        validate([AFq(kk, r2) + i for r2 in range(2) for i in range(4)], T + 16, sum(a_jobs(kk), []))
    def wr(blk): return [f"ds_write_b128 {v(VWR + q if blk < 2 else T + q)}, {v(AC+16*blk+4*q,4)} offset:{(blk&1)*32768+(q>>1)*16384+(q&1)*1024}" for q in range(4)]
    pend = []
    for mi in range(4):
        for kk in range(18 - NT, 18):
            P(mfma(AC + 16 * mi, BTq(kk, mi >> 1), AFq(kk, mi & 1)))
            if kk > 18 - NT or NT == 1: P.add(pend[:2]); pend = pend[2:]
        P.add(pend); pend = wr(mi)
    stamp("p2mm")
    P.add(pend)
    P("s_waitcnt lgkmcnt(0)")
    stamp("rw")
    P("s_barrier")
    stamp("rb")
    R = XF
    for ww in range(8):
        for hf in range(2): P(f"ds_read_b128 {v(R+8*ww+4*hf,4)}, {v(VRED)} offset:{2048*ww+512*hf}")
    for ww in range(8):
        for i in range(0, 8, 2): P(f"v_pk_add_f32 {v(F+i,2)}, {v(F+i,2)}, {v(R+8*ww+i,2)}")
    for i in range(4): P(f"v_cvt_pk_bf16_f32 {v(XR+i)}, {v(F+2*i)}, {v(F+2*i+1)}")
    P(f"buffer_store_dwordx4 {v(XR,4)}, {v(VXR)}, {s(SOUT,4)}, {s(sOo)} offen {OPT.get('om', '').replace('+', ' ')}")
    finish(ffn)

def softmax(p, out, LS, pk=False):
    t = T + 16
    if pk:
        assert LS == STD + 1
        L = softmax(p, out, LS)[:9]
        L += [f"v_pk_fma_f32 {v(p+i,2)}, {v(p+i,2)}, {v(STD,2)}, {v(t,2)} op_sel:[0,1,0] op_sel_hi:[1,1,0] neg_lo:[0,0,1] neg_hi:[0,0,1]" for i in range(0, 16, 2)]
        L += [f"v_exp_f32 {v(p+i)}, {v(p+i)}" for i in range(16)]
        L += [f"v_pk_add_f32 {v(t,2)}, {v(p,2)}, {v(p+2,2)}", f"v_pk_add_f32 {v(t+2,2)}, {v(p+4,2)}, {v(p+6,2)}"]
        L += [f"v_pk_add_f32 {v(t+2*(i&1),2)}, {v(t+2*(i&1),2)}, {v(p+8+2*i,2)}" for i in range(4)]
        L += [f"v_pk_add_f32 {v(t,2)}, {v(t,2)}, {v(t+2,2)}", f"v_add_f32 {v(t)}, {v(t)}, {v(t+1)}", f"v_rcp_f32 {v(t)}, {v(t)}"]
        L += [f"v_pk_mul_f32 {v(p+i,2)}, {v(p+i,2)}, {v(t,2)} op_sel_hi:[1,0]" for i in range(0, 16, 2)]
        return L + [f"v_cvt_pk_bf16_f32 {v(out+i)}, {v(p+2*i)}, {v(p+2*i+1)}" for i in range(8)]
    L = [f"v_max3_f32 {v(t)}, {v(p)}, {v(p+1)}, {v(p+2)}", f"v_max3_f32 {v(t+1)}, {v(p+3)}, {v(p+4)}, {v(p+5)}",
         f"v_max3_f32 {v(t)}, {v(t)}, {v(p+6)}, {v(p+7)}", f"v_max3_f32 {v(t+1)}, {v(t+1)}, {v(p+8)}, {v(p+9)}",
         f"v_max3_f32 {v(t)}, {v(t)}, {v(p+10)}, {v(p+11)}", f"v_max3_f32 {v(t+1)}, {v(t+1)}, {v(p+12)}, {v(p+13)}",
         f"v_max3_f32 {v(t)}, {v(t)}, {v(p+14)}, {v(p+15)}", f"v_max_f32 {v(t)}, {v(t)}, {v(t+1)}",
         f"v_mul_f32 {v(t)}, {v(t)}, {v(LS)}"]
    L += [f"v_fma_f32 {v(p+i)}, {v(p+i)}, {v(LS)}, -{v(t)}" for i in range(16)]
    L += [f"v_exp_f32 {v(p+i)}, {v(p+i)}" for i in range(16)]
    L += [f"v_add_f32 {v(t)}, {v(p)}, {v(p+1)}", f"v_add_f32 {v(t+1)}, {v(p+2)}, {v(p+3)}"]
    for i in range(4, 16, 2):
        L += [f"v_add_f32 {v(t)}, {v(t)}, {v(p+i)}", f"v_add_f32 {v(t+1)}, {v(t+1)}, {v(p+i+1)}"]
    L += [f"v_add_f32 {v(t)}, {v(t)}, {v(t+1)}", f"v_rcp_f32 {v(t)}, {v(t)}"]
    L += [f"v_mul_f32 {v(p+i)}, {v(p+i)}, {v(t)}" for i in range(16)]
    L += [f"v_cvt_pk_bf16_f32 {v(out+i)}, {v(p+2*i)}, {v(p+2*i+1)}" for i in range(8)]
    return L

setup(False)
KAREA[:] = [RC, RA+3*Q, RA, RA+Q, RA+2*Q, RB, RB+Q, RB+2*Q, RB+3*Q]
ASY = OPT.get('asy', '0') == '1'
LS = K1; VPK = K2; VV = VW3; MC = BIAS
PHI0, PHI1 = AX, AAUG
PHI0 = AX
PHI1 = S1
PHI1 = T + 12
t = T + 16
P(f"v_bfe_u32 {v(t)}, {v(vL)}, 2, 2\nv_lshrrev_b32 {v(t+1)}, 5, {v(vL)}\nv_lshl_add_u32 {v(t)}, {v(t+1)}, 2, {v(t)}\nv_lshlrev_b32 {v(t)}, 5, {v(t)}")
P(f"v_bfe_u32 {v(t+2)}, {v(vL)}, 1, 1\nv_lshl_add_u32 {v(t)}, {v(t+2)}, 3, {v(t)}\nv_bfe_u32 {v(t+2)}, {v(vL)}, 4, 1\nv_lshl_add_u32 {v(t)}, {v(t+2)}, 4, {v(t)}")
P(f"s_lshl_b32 {s(sT1)}, {s(sHALF)}, 10\ns_add_u32 {s(sT1)}, {s(sT1)}, {L_WPHI}\nv_add_u32 {v(AB)}, {s(sT1)}, {v(t)}")
P(f"v_bfe_u32 {v(t)}, {v(vL)}, 2, 1\nv_mul_u32_u24 {v(t)}, 0x8000, {v(t)}\nv_lshl_or_b32 {v(AB+1)}, {v(t)}, 16, {v(t)}")
P(f"v_and_b32 {v(t)}, 31, {v(vL)}\nv_lshlrev_b32 {v(t)}, 6, {v(t)}\ns_lshl_b32 {s(sT1)}, {s(sW34)}, 9\nv_bfe_u32 {v(t+2)}, {v(vL)}, 1, 2")
P(f"v_lshlrev_b32 {v(t+3)}, 1, {v(t+1)}\nv_xor_b32 {v(t+3)}, {v(t+3)}, {v(t+2)}")
P(f"s_lshl_b32 {s(sT2)}, {s(sHALF)}, 14\ns_add_u32 {s(sT2)}, {s(sT2)}, {s(sT1)}\nv_lshl_add_u32 {v(VPK)}, {v(t+3)}, 4, {v(t)}\nv_add_u32 {v(VPK)}, {s(sT2)}, {v(VPK)}")
P(f"v_xor_b32 {v(t+3)}, {v(t+1)}, {v(t+2)}")
P(f"s_lshl_b32 {s(sT2)}, {s(sHALF)}, 13\ns_add_u32 {s(sT2)}, {s(sT2)}, {s(sT1)}\ns_add_u32 {s(sT2)}, {s(sT2)}, {RA+32768}\nv_lshl_add_u32 {v(VV)}, {v(t+3)}, 4, {v(t)}\nv_add_u32 {v(VV)}, {s(sT2)}, {v(VV)}")
def phi_load(hl, dst):
    return [f"ds_read_b64_tr_b16 {v(dst+2*tt,2)}, {v(AB)} offset:{512*hl+256*tt}" for tt in range(2)] + \
           [f"v_xor_b32 {v(dst+i)}, {v(AB+1)}, {v(dst+i)}" for i in range(4)]
S = Sched(96)
common_sched(S, False, None, MC)
S.post[30] += [f"ds_read_b128 {v(CSR,4)}, {v(VCSA)}"]
sKV, sOS = sH0, sH3
P(f"s_lshl_b32 {s(sT0)}, {s(sG)}, 4\ns_add_u32 {s(sT0)}, {s(sT0)}, {s(sRT)}\ns_mul_i32 {s(sT0)}, {s(sT0)}, {KVP_SZ}\ns_mul_i32 {s(sT1)}, {s(sW)}, 1152\ns_add_u32 {s(sT0)}, {s(sT0)}, {s(sT1)}\ns_add_u32 {s(sT0)}, {s(sT0)}, {WS_KVP}")
P(f"s_cmp_lt_u32 {s(sW)}, 4\ns_cselect_b32 {s(sKV)}, {s(sT0)}, 0x7f000000")
P(f"s_lshl_b32 {s(sT0)}, {s(sG)}, 2\ns_lshl_b32 {s(sT1)}, {s(sHALF)}, 1\ns_add_u32 {s(sT0)}, {s(sT0)}, {s(sT1)}\ns_add_u32 {s(sT0)}, {s(sT0)}, 112\ns_lshl_b32 {s(sT0)}, {s(sT0)}, 10\ns_add_u32 {s(sOS)}, {s(sT0)}, {s(sHo)}")
PA = AAUG
OFFL = OPT.get("off", "0") == "1"
if OFFL:
    P(f"s_mul_i32 {s(sT0)}, {s(sG)}, 448\ns_and_b32 {s(sT1)}, {s(sG)}, 1\ns_add_u32 {s(sT2)}, {s(sT1)}, {s(sHALF)}\ns_lshl_b32 {s(sT2)}, {s(sT2)}, 6\ns_add_u32 {s(sT2)}, {s(sT2)}, {s(sT0)}")
    P(f"s_lshl_b32 {s(sT2)}, {s(sT2)}, 5\ns_add_u32 {s(sWq)}, {s(sT2)}, {s(sHo)}\ns_add_u32 {s(sWq)}, {s(sWq)}, 8192")
    P(f"s_xor_b32 {s(sT1)}, {s(sT1)}, 1\ns_mul_i32 {s(sT1)}, {s(sT1)}, 384\ns_add_u32 {s(sT0)}, {s(sT0)}, {s(sT1)}\ns_lshl_b32 {s(sT1)}, {s(sHALF)}, 5\ns_add_u32 {s(sT0)}, {s(sT0)}, {s(sT1)}")
    P(f"s_lshl_b32 {s(sT0)}, {s(sT0)}, 5\ns_add_u32 {s(sW3)}, {s(sT0)}, {s(sHo)}")
S.post[46] += [f"v_mov_b32 {v(PA+i)}, -1" for i in range(4)] + [f"v_lshrrev_b32 {v(S2)}, 2, {v(vL)}", f"v_lshl_add_u32 {v(S2)}, {v(S2)}, 26, {v(VL16)}"]
S.post[47] += [f"buffer_store_dwordx4 {v(PA,4)}, {v(VL16)}, {s(SWS,4)}, {s(sKV)} offen sc1"]
S.post[48] += [f"buffer_store_dwordx4 {v(PA,4)}, {v(S2)}, {s(SWS,4)}, {s(sKV)} offen offset:1024 sc1 ; tag=pz"]
pl = [(sOS, 0), (sOS, 1024)] + ([(sWq, 0), (sWq, 1024), (sW3, 0)] if OFFL else [])
for (so, off), G in zip(pl, [int(x) for x in OPT.get("pza", "50,53,56,59,62").split(",")]):
    S.post[G] += [f"buffer_store_dwordx4 {v(PA,4)}, {v(VL16)}, {s(SWS,4)}, {s(so)} offen offset:{off} sc1 ; tag=po"]
PX1 = OPT.get("px1") == "1"
if V2 and PX1:
    for j, G in zip((1, 2, 3), (56, 59, 62)): S.post[G] += xoff(j, True) + [f"buffer_store_dwordx4 {v(PA,4)}, {v(VL16)}, {s(SWS,4)}, {s(sT0)} offen sc1 ; tag=px"]
S.post[63] += [f"v_mov_b32 {v(PA+2)}, 0", f"v_mov_b32 {v(PA+3)}, 0"]
def ltouch():
    P(f"s_sub_u32 {s(sT0)}, {s(sW)}, 4\ns_cmp_lt_u32 {s(sT0)}, 3")
    P(f"s_cbranch_scc0 L_nlt")
    P.cond_begin("w456")
    P(f"v_lshlrev_b32 {v(S1)}, 7, {v(vL)}\ns_lshl_b32 {s(sT1)}, {s(sRT)}, 3\ns_add_u32 {s(sT1)}, {s(sT1)}, {s(sG)}")
    P(f"s_cmp_eq_u32 {s(sT0)}, 2\ns_cbranch_scc1 L_lt2")
    P(f"s_lshl_b32 {s(sT1)}, {s(sT1)}, 1\ns_add_u32 {s(sT1)}, {s(sT1)}, {s(sT0)}\ns_mul_i32 {s(sT1)}, {s(sT1)}, 7168")
    P(f"buffer_load_dword {v(VX0)}, {v(S1)}, {s(SW2,4)}, {s(sT1)} offen")
    P("s_branch L_nlt")
    P("L_lt2:")
    P(f"v_and_b32 {v(S1)}, 4095, {v(S1)}\ns_lshl_b32 {s(sT1)}, {s(sT1)}, 12")
    P(f"buffer_load_dword {v(VX0)}, {v(S1)}, {s(SWO,4)}, {s(sT1)} offen")
    P(f"buffer_load_dword {v(VX1)}, {v(S1)}, {s(SB2,4)}, 0 offen")
    P.cond_end()
    for I in P.ins[-12:]:
        if I.kind == "vld": I.defs = []
    P("L_nlt:")
if OPT.get("touch", "5") == "2": S.blk[("e", int(OPT.get("tg", 54)))] = ltouch
S.post[31] += stamp_i("pass1")
fill = stats_final() + aug(ACC0, CSR, None) + phi_load(0, AX) + phi_load(1, T + 8) + [f"v_mul_f32 {v(LS)}, {f2u(LOG2E):#x}, {v(RSTD)}"]
fill += [f"v_cvt_pk_bf16_f32 {v(T+i)}, {v(ACC0+2*i)}, {v(ACC0+2*i+1)}" for i in range(8)]
fill += [mfma(ACC2, AX, T, "0"), mfma(ACC0, T + 8, T + 4, "0")]
S.spread(fill, 32, 40)
S.spread(softmax(ACC2, T + 8, LS) + softmax(ACC0, T, LS), 41, 64)
pkg = 62 if OPT.get("few", "1") == "1" else 56
S.post[pkg] += [f"ds_write_b128 {v(VPK)}, {v(T+8,4)}", f"v_xor_b32 {v(VSTA)}, 16, {v(VPK)}"]
S.post[pkg+1] += [f"ds_write_b128 {v(VSTA)}, {v(T+12,4)}"]
S.post[62] += [f"ds_read_b128 {v(MC,4)}, {v(VCSA)} offset:1024"]
S.post[63] += stamp_i("sub1")
S.pre[64] += sum4(CS0, MC)
S.fill[64] += aug(ACC1, MC, None)[3:]
S.post[65] += [f"ds_write_b128 {v(VPK)}, {v(T,4)} offset:8192"]
S.post[66] += [f"ds_write_b128 {v(VSTA)}, {v(T+4,4)} offset:8192"]
fill = []
fill += [f"v_mul_f32 {v(ACC1+i)}, {v(ACC1+i)}, {v(RSTD)}" for i in range(16)]
fill += [f"v_cvt_pk_bf16_f32 {v(ACC1+i)}, {v(ACC1+2*i)}, {v(ACC1+2*i+1)}" for i in range(8)]
fill += [f"ds_write_b128 {v(VV)}, {v(ACC1,4)}", f"v_xor_b32 {v(VV)}, 32, {v(VV)}", f"ds_write_b128 {v(VV)}, {v(ACC1+4,4)}"]
S.spread(fill, 66, 70)
S.dmas(b_dma(0), 65, 3)
S.dmas(b_dma(1), 74, 4); S.dmas(b_dma(2) + b_dma(3) + b_dma(4), int(OPT.get('ab', 86)), 1)
def kvblock():
    P(".waitvm pz lgkm0")
    P("s_barrier")
    kvflag()
    stamp("kv0"); stamp("kv1")
    P(f"s_cmp_lt_u32 {s(sW)}, 4")
    P("s_cbranch_scc0 L_nkv")
    P.cond_begin("lo4")
    P("s_setprio 3")
    t = T + 16; u = S1
    P(f"v_bfe_u32 {v(u)}, {v(vL)}, 2, 2\nv_lshrrev_b32 {v(u+1)}, 5, {v(vL)}\nv_lshl_add_u32 {v(u)}, {v(u+1)}, 3, {v(u)}\nv_lshlrev_b32 {v(u)}, 6, {v(u)}")
    P(f"v_bfe_u32 {v(u+1)}, {v(vL)}, 1, 1\nv_lshl_add_u32 {v(u)}, {v(u+1)}, 3, {v(u)}\nv_bfe_u32 {v(u+1)}, {v(vL)}, 3, 1\nv_and_b32 {v(VSTA)}, 1, {v(vL)}")
    P(f"v_or_b32 {v(t)}, {s(sSH)}, {v(VSTA)}\nv_xor_b32 {v(t)}, {v(t)}, {v(u+1)}\nv_lshl_add_u32 {v(t)}, {v(t)}, 4, {v(u)}")
    P(f"s_lshr_b32 {s(sT0)}, {s(sW)}, 1\ns_lshl_b32 {s(sT0)}, {s(sT0)}, 13\ns_add_u32 {s(sT0)}, {s(sT0)}, {RA+32768}\nv_add_u32 {v(t)}, {s(sT0)}, {v(t)}\nv_xor_b32 {v(t+1)}, 32, {v(t)}")
    P(f"v_bfe_u32 {v(t+2)}, {v(vL)}, 4, 1\nv_lshl_add_u32 {v(t+2)}, {v(VSTA)}, 1, {v(t+2)}\nv_xor_b32 {v(t+2)}, {v(t+2)}, {v(u+1)}\nv_lshl_add_u32 {v(t+2)}, {v(t+2)}, 4, {v(u)}")
    P(f"s_lshl_b32 {s(sT0)}, {s(sW)}, 13\nv_add_u32 {v(t+2)}, {s(sT0)}, {v(t+2)}\nv_xor_b32 {v(t+3)}, 32, {v(t+2)}")
    P(f"v_and_b32 {v(u)}, 16, {v(vL)}\nv_cmp_eq_u32 vcc, 0, {v(u)}\nv_mov_b32 {v(u+1)}, {s(sONE)}")
    KB = [T, T + 8, ACC1, ACC1 + 8]
    def kr(J):
        for tt in range(2):
            P(f"ds_read_b64_tr_b16 {v(KB[J&3]+2*tt,2)}, {v(t+tt)} offset:{1024*J+256*tt}")
            P(f"ds_read_b64_tr_b16 {v(KB[J&3]+4+2*tt,2)}, {v(t+2+tt)} offset:{1024*J+256*tt}")
    kr(0); kr(1); kr(2)
    for J in range(8):
        for i in range(4): P(f"v_cndmask_b32 {v(KB[J&3]+i)}, {v(u+1)}, {v(KB[J&3]+i)}, vcc")
        if J + 3 < 8: kr(J + 3)
        P(mfma(ACC0, KB[J&3] + 4, KB[J&3], "0" if J == 0 else None))
    if ASY: P("s_barrier")
    P(f"v_lshrrev_b32 {v(u)}, 5, {v(vL)}\nv_and_b32 {v(t+2)}, 15, {v(vL)}\nv_lshlrev_b32 {v(t)}, 4, {v(t+2)}\nv_lshl_add_u32 {v(t)}, {v(u)}, 8, {v(t)}\nv_add_u32 {v(t+1)}, 512, {v(t)}")
    P(f"v_lshlrev_b32 {v(u)}, 4, {v(u)}\nv_add_u32 {v(u)}, 1024, {v(u)}\nv_lshl_add_u32 {v(u)}, {v(t+2)}, 26, {v(u)}\nv_add_u32 {v(u+1)}, 32, {v(u)}")
    P(f"v_cndmask_b32 {v(t)}, {v(u)}, {v(t)}, vcc\nv_cndmask_b32 {v(t+1)}, {v(u+1)}, {v(t+1)}, vcc")
    for i in range(8): P(f"v_cvt_pk_bf16_f32 {v(T+i)}, {v(ACC0+2*i)}, {v(ACC0+2*i+1)}")
    stamp("kv1")
    for j in range(2): P(f"buffer_store_dwordx4 {v(T+4*j,4)}, {v(t+j)}, {s(SWS,4)}, {s(sKV)} offen sc1")
    P.cond_end()
    P("L_nkv:")
    stamp("kv2")
S.blk[70] = kvblock
PXA = OPT.get("pxa", "72,76,81")
if PXA:
    gs_ = [int(x) for x in PXA.split(",")]
    if gs_[0] > 64:
        S.post[gs_[0] - 1] += [f"v_mov_b32 {v(PA+i)}, -1" for i in range(4)]
        S.post[gs_[2] + 2] += [f"v_mov_b32 {v(PA+2)}, 0", f"v_mov_b32 {v(PA+3)}, 0"]
    for j, G in zip((1, 2, 3), gs_): S.post[G] += xoff(j, True) + [f"buffer_store_dwordx4 {v(PA,4)}, {v(VL16)}, {s(SWS,4)}, {s(sT0)} offen sc1 ; tag=px"]
S.pre[94] += ["s_waitcnt lgkmcnt(0)", "s_barrier"]
def kvflag():
    P(f"s_cmp_eq_u32 {s(sW)}, 7")
    P("s_cbranch_scc0 L_nkf")
    P.cond_begin("w0")
    P(f"s_lshl_b32 {s(sT0)}, {s(sG)}, 8\ns_lshl_b32 {s(sT1)}, {s(sRT)}, 2\ns_add_u32 {s(sT0)}, {s(sT0)}, {s(sT1)}\ns_add_u32 {s(sT0)}, {s(sT0)}, {WS_KVF}")
    P(f"v_mov_b32 {v(VFV)}, 1")
    P(f"buffer_store_dword {v(VFV)}, {v(VZ)}, {s(SWS,4)}, {s(sT0)} offen sc1")
    P.cond_end()
    P("L_nkf:")
def kvpoll():
    P(f"s_cmp_eq_u32 {s(sW)}, 7")
    P("s_cbranch_scc0 L_nkp")
    n0 = len(P.ins)
    P(f"s_lshl_b32 {s(sT2)}, {s(sG)}, 8\ns_add_u32 {s(sT2)}, {s(sT2)}, {WS_KVF}\ns_mov_b32 {s(sCNT)}, 0")
    P("s_branch L_spkv1")
    P("L_spkv:")
    P(f"s_buffer_load_dwordx16 s[20:35], {s(SWS,4)}, {s(sT2)} glc")
    P("L_spkv1:")
    P(f"s_add_u32 {s(sCNT)}, {s(sCNT)}, 1")
    P("s_waitcnt lgkmcnt(0)")
    for i in range(22, 36, 2): P(f"s_and_b64 s[20:21], s[20:21], s[{i}:{i+1}]")
    P("s_and_b32 s20, s20, s21")
    P("s_cbranch_scc1 L_nkp")
    P(f"s_cmp_gt_u32 {s(sCNT)}, {SPIN_MAX}")
    P("s_cbranch_scc1 L_nkp")
    P("s_sleep 1")
    P("s_branch L_spkv")
    for I in P.ins[n0:]:
        I.cond = "kvp"
        if I.kind == "smem": I.kind = "opaque"
    P("L_nkp:")
def kvreq():
    P(f"s_cmp_eq_u32 {s(sW)}, 7")
    P("s_cbranch_scc0 L_nkr")
    n0 = len(P.ins)
    P(f"s_lshl_b32 {s(sT2)}, {s(sG)}, 8\ns_add_u32 {s(sT2)}, {s(sT2)}, {WS_KVF}")
    P(f"s_buffer_load_dwordx16 s[20:35], {s(SWS,4)}, {s(sT2)} glc")
    for I in P.ins[n0:]:
        I.cond = "kvp"
        if I.kind == "smem": I.kind = "opaque"
    P("L_nkr:")
VP = OPT.get("vp", "0") == "1"
VPA_, VPV = VX0, VSTA
vpl = f"buffer_load_dword {v(VPV)}, {v(VPA_)}, {s(SWS,4)}, 0 offen sc1"
if VP:
    S.fill[78] += lines(f"s_lshl_b32 {s(sT0)}, {s(sG)}, 8\ns_add_u32 {s(sT0)}, {s(sT0)}, {WS_KVF}\nv_and_b32 {v(VPA_)}, 3, {v(vL)}\nv_lshl_add_u32 {v(VPA_)}, {v(VPA_)}, 2, {s(sFL)}\nv_lshl_add_u32 {v(VPV)}, {v(vL)}, 2, {s(sT0)}\nv_cmp_gt_u32 vcc, 16, {v(vL)}\ns_nop 1\nv_cndmask_b32 {v(VPA_)}, {v(VPA_)}, {v(VPV)}, vcc")
    S.post[int(OPT.get("vpg", 86))] += [vpl]
    def vcheck0():
        P(f"v_mov_b32 {v(VPV)}, {v(VPV)}")
        spin("L_vp", vpl, f"v_cmp_gt_u32 vcc, 1, {v(VPV)}")
    S.blk[("e", 93)] = vcheck0
else:
    ab_ = int(OPT.get('ab', 86)); S.post[95] += [] if V5 else [spoll(1)]
    if ASY:
        def hibar():
            P(f"s_cmp_lt_u32 {s(sW)}, 4"); P("s_cbranch_scc1 L_nhb")
            P.cond_begin("hi4"); P("s_barrier"); P.cond_end(); P("L_nhb:")
        S.blk[ab_] = hibar; S.blk[94] = lambda: (kvreq(), kvpoll())
    else: S.blk[ab_] = lambda: (kvreq(), kvpoll())
S.post[94] += [f"ds_read_b128 {v(CSR,4)}, {v(VCSA)} offset:2048"]
S.post[80] += phi_load(1, T + 8)[:2]; S.post[82] += phi_load(1, T + 8)[2:]
PQ = WF
def Gq(r): return XF + 8 * r
Z = XF + 80; GA = XF + 64
VG, VGZ = S1, S2
gsetup = lines(f"s_mul_i32 {s(sK)}, {s(sG)}, {16*KVP_SZ}\ns_lshr_b32 {s(sT0)}, {s(sW)}, 1\ns_mul_i32 {s(sT0)}, {s(sT0)}, 1152\ns_add_u32 {s(sK)}, {s(sK)}, {s(sT0)}\ns_add_u32 {s(sK)}, {s(sK)}, {WS_KVP}")
gsetup += lines(f"v_and_b32 {v(VGZ)}, 15, {v(vL)}\nv_mul_u32_u24 {v(VGZ)}, {KVP_SZ}, {v(VGZ)}\nv_and_b32 {v(VG)}, 16, {v(vL)}\nv_add_u32 {v(VGZ)}, {v(VGZ)}, {v(VG)}\ns_lshl_b32 {s(sT0)}, {s(sSH)}, 4\nv_add_u32 {v(VGZ)}, {s(sT0)}, {v(VGZ)}")
gsetup += lines(f"v_lshrrev_b32 {v(VG)}, 5, {v(vL)}\nv_mul_u32_u24 {v(VG)}, {8*KVP_SZ - 512}, {v(VG)}\nv_add_u32 {v(VG)}, {v(VG)}, {v(VL16)}\ns_lshl_b32 {s(sT0)}, {s(sSH)}, 8\nv_add_u32 {v(VG)}, {s(sT0)}, {v(VG)}")
gl = [[f"buffer_load_dwordx4 {v(Z,4)}, {v(VGZ)}, {s(SWS,4)}, {s(sK)} offen offset:1024 sc1"]]
for r in range(8):
    gl.append(lines(f"s_add_u32 {s(sD1)}, {s(sRT)}, {r}\ns_and_b32 {s(sD1)}, {s(sD1)}, 7\ns_mul_i32 {s(sD1)}, {s(sD1)}, {KVP_SZ}\ns_add_u32 {s(sD1)}, {s(sD1)}, {s(sK)}") +
              [f"buffer_load_dwordx4 {v(Gq(r),4)}, {v(VG)}, {s(SWS,4)}, {s(sD1)} offen sc1"])
S.fill[76] += gsetup
g0_ = int(OPT.get("gg", 94))
gl_in = min(9, 96 - g0_)
S.dmas(gl[:gl_in], g0_)
run_sched(S, [ACC0, ACC1, ACC2])
stamp("sub2")
P.add(aug(ACC2, CSR, None))
for g_ in gl[gl_in:gl_in+2]: P.add(g_)
for i in range(8): P(f"v_cvt_pk_bf16_f32 {v(T+i)}, {v(ACC2+2*i)}, {v(ACC2+2*i+1)}")
P(mfma(ACC1, AX, T, "0"))
P(mfma(ACC2, T + 8, T + 4, "0"))
stamp("phi")
n_tail0 = len(P.ins)
NBT = int(OPT.get('nbt', 3))
bd = sum([b_dma(kk) for kk in (5, 6, 7)[:NBT]], []) + [[]] * (6 - 2 * NBT)
TO = OPT.get("to", "a")
sm1 = softmax(ACC1, PQ, LS, True); sm2 = softmax(ACC2, PQ + 8, LS, True)
if TO == "a":
    P.add(interleave(gl[gl_in+2:], sm1[:30]) + interleave(bd[:2], sm1[30:])); bd = bd[2:]
else:
    P.add(interleave(gl[gl_in+2:], sm1[:30]) + interleave(bd[:4], sm1[30:] + sm2[:33])); bd = bd[4:]; sm2 = sm2[33:]
if not VP and not V5: sneed(1, 1)
P(spoll(0))
stamp("qsm")
validate([Z + i for i in range(4)] + [Gq(r) + i for r in range(8) for i in range(4)], T + 4, sum(gl, []))
stamp("kvseen")
aj = sum([a_jobs(kk) for kk in range(8)], [])
n_o0 = len(P.ins)
P(f"v_lshrrev_b32 {v(T+1)}, 5, {v(vL)}")
P(f"v_bfe_u32 {v(T+2)}, {v(vL)}, 4, 1\nv_lshlrev_b32 {v(T+2)}, 9, {v(T+2)}\nv_lshl_add_u32 {v(T+2)}, {v(T+1)}, 3, {v(T+2)}")
P(f"s_lshl_b32 {s(sT0)}, {s(sW)}, 10\ns_add_u32 {s(sT0)}, {s(sT0)}, {L_KVB}\nv_add_u32 {v(T+2)}, {s(sT0)}, {v(T+2)}")
P(f"v_and_b32 {v(T+3)}, 15, {v(vL)}\nv_lshl_add_u32 {v(T+3)}, {v(T+3)}, 4, {v(T+2)}")
P(f"v_cmp_gt_u32 vcc, 32, {v(vL)}\ns_mov_b32 {s(sT0)}, 0x3f80\ns_mov_b32 {s(sT1)}, 0x3f800000")
P(f"v_cndmask_b32 {v(Z)}, {v(Z+2)}, {v(Z)}, vcc\nv_cndmask_b32 {v(Z+1)}, {v(Z+3)}, {v(Z+1)}, vcc")
P(f"v_lshlrev_b32 {v(Z+8)}, 16, {v(Z)}\nv_and_b32 {v(Z+9)}, 0xffff0000, {v(Z)}\nv_lshlrev_b32 {v(Z+10)}, 16, {v(Z+1)}\nv_and_b32 {v(Z+11)}, 0xffff0000, {v(Z+1)}")
for ror in (8, 4, 2, 1):
    for i in range(4): P(f"v_add_f32_dpp {v(Z+8+i)}, {v(Z+8+i)}, {v(Z+8+i)} row_ror:{ror} row_mask:0xf bank_mask:0xf")
P(f"v_cvt_pk_bf16_f32 {v(Z)}, {v(Z+8)}, {v(Z+9)}\nv_cvt_pk_bf16_f32 {v(Z+1)}, {v(Z+10)}, {v(Z+11)}")
P(f"ds_write_b64 {v(T+2)}, {v(Z,2)} offset:256")
def ga(i): return GA + (i & 3) + 8 * (i >> 2)
for i in range(4):
    P(f"v_lshlrev_b32 {v(ga(2*i))}, 16, {v(Gq(0)+i)}\nv_and_b32 {v(ga(2*i+1))}, 0xffff0000, {v(Gq(0)+i)}")
for r in range(1, 8):
    for i in range(4):
        P(f"v_dot2c_f32_bf16 {v(ga(2*i))}, {s(sT0)}, {v(Gq(r)+i)}\nv_dot2c_f32_bf16 {v(ga(2*i+1))}, {s(sT1)}, {v(Gq(r)+i)}")
for i in range(4): P(f"v_permlane32_swap_b32 {v(ga(i))}, {v(ga(i+4))}")
for i in range(4): P(f"v_add_f32 {v(ga(i))}, {v(ga(i))}, {v(ga(i+4))}")
P(f"v_cvt_pk_bf16_f32 {v(GA)}, {v(GA)}, {v(GA+1)}\nv_cvt_pk_bf16_f32 {v(GA+1)}, {v(GA+2)}, {v(GA+3)}")
P(f"ds_write_b64 {v(T+3)}, {v(GA,2)}")
stamp("gsum")
P(f"v_and_b32 {v(T)}, 31, {v(vL)}\nv_min_u32 {v(T)}, 16, {v(T)}\nv_and_b32 {v(T+1)}, 32, {v(vL)}\nv_add_u32 {v(T)}, {v(T)}, {v(T+1)}\nv_lshlrev_b32 {v(T)}, 4, {v(T)}")
P(f"s_lshl_b32 {s(sT0)}, {s(sHALF)}, 12\ns_add_u32 {s(sT0)}, {s(sT0)}, {L_KVB}\nv_add_u32 {v(T)}, {s(sT0)}, {v(T)}")
body = P.ins[n_o0:]; del P.ins[n_o0:]
for i, g_ in enumerate(bd):
    P.add(g_); P.ins += body[len(body)*i//len(bd): len(body)*(i+1)//len(bd)]
stamp("pre1")
sneed(1, 0)
stamp("post1")
if NP: aj = aj[:4]
P.add(interleave(aj, sm2))
stamp("sm2")
P(f".waitvm b{4+NBT} lgkm0")
if OPT.get("tp"):
    per = int(OPT["tp"]); body = P.ins[n_tail0:]; del P.ins[n_tail0:]; c = 0; lv = 3
    P("s_setprio 3")
    for I in body:
        P.ins.append(I)
        if I.kind == "valu" and not I.cond and not I.op.startswith("v_cmp"):
            c += 1
            if c % per == 0: lv = (lv - 1) & 3; P(f"s_setprio {lv}")
stamp("ob0")
P("s_barrier")
stamp("ob1")
for i in range(4): P(f"ds_read_b128 {v(Gq(i),4)}, {v(T)} offset:{1024*i}")
P(mfma(ACC0, Gq(0), PQ, "0")); P(mfma(ACC1, Gq(2), PQ + 8, "0"))
P(mfma(ACC0, Gq(1), PQ + 4)); P(mfma(ACC1, Gq(3), PQ + 12))
if NP: P(spoll(0))
EA = int(OPT.get("ea", 0))
if EA and not NP:
    for kk in range(8, 8 + EA): P.add(a_jobs(kk)[0])
for hl, acc in enumerate((ACC0, ACC1)):
    P(f"v_add_f32 {v(acc+8)}, {f2u(1e-6):#x}, {v(acc+8)}\nv_rcp_f32 {v(acc+8)}, {v(acc+8)}")
    for i in range(0, 8, 2): P(f"v_pk_mul_f32 {v(acc+i,2)}, {v(acc+i,2)}, {v(acc+8,2)} op_sel_hi:[1,0]")
    for i in range(4): P(f"v_cvt_pk_bf16_f32 {v(T+4*hl+i)}, {v(acc+2*i)}, {v(acc+2*i+1)}")
    P(f"buffer_store_dwordx4 {v(T+4*hl,4)}, {v(VL16)}, {s(SWS,4)}, {s(sOS)} offen offset:{1024*hl} sc1 ; ost")
stamp("p1end")
if V5: phase2_v5(tuple(range(5 + NBT, 9)), False)
elif V3: phase2_v3((8,), (), False)
elif V2: phase2_v2(tuple(range(5 + NBT, 9)), False)
else: phase2(("B6", "B7"), "A4 A5 A6 B8 A7 B9 A8 B10 A9 B11 A10 B12 A11 B13 A12 B14 A13 B15 B16 B17 A14 A15 A16 A17")

P("L_ffn:")
P(".reset")
setup(True)
KAREA[:] = [RC, RA+2*Q, RA+3*Q, RB, RB+Q, RB+2*Q, RA, RA+Q, RB+3*Q]
MC = ACC2; CSF = ACC2 + 4
S = Sched(112)
common_sched(S, True, None, MC)
S.post[30] += [f"ds_read_b128 {v(CSF,4)}, {v(VCSA)}"]
if not NP: S.post[40] += [f"s_add_u32 {s(sT2)}, {s(sH0)}, 4096", f"s_add_u32 {s(sK)}, {s(sH0)}, 8192"]
pzs = [[f"buffer_store_dwordx4 {v(PZ,4)}, {v(VL16)}, {s(SWS,4)}, {s(so)} offen offset:{off} sc1 ; tag=h1"]
       for so, off in ((sT2, 0), (sT2, 1024), (sK, 0), (sK, 1024), (sH3, 0))[:0 if NP else 2 if OFFL else 5]]
for g_, G in zip(pzs, [int(x) for x in OPT.get("pz", "50,56,59,67,70").split(",")]): S.post[G] += g_
S.post[31] += stamp_i("pass1")
fill = stats_final() + aug(ACC0, CSF, BIAS)
fill += [f"v_mul_f32 {v(K1)}, {f2u(GC1):#x}, {v(RSTD)}", f"v_mul_f32 {v(K2)}, {v(RSTD)}, {v(RSTD)}",
         f"v_mul_f32 {v(K2)}, {v(K2)}, {v(RSTD)}", f"v_mul_f32 {v(K2)}, {f2u(GC2):#x}, {v(K2)}"]
S.spread(fill, 32, 39)
S.spread(gelu(ACC0, 16) + hstore(sH0, 2, "h1") + [f"s_add_u32 {s(sH0)}, {s(sH0)}, 4096"], 39, 64)
S.post[62] += [f"ds_read_b128 {v(CSF,4)}, {v(VCSA)} offset:1024"]
S.post[63] += stamp_i("sub1")
S.spread(aug(ACC1, CSF, BIAS + 1), 64, 66)
S.spread(gelu(ACC1, 16) + hstore(sH0, 2, "h2") + [f"s_add_u32 {s(sH0)}, {s(sH0)}, 4096"], 67, 96)
w3 = sum([w3quarter(q, 3584) for q in range(4)], [])
for g_, G in zip(w3 + b_dma(0), [int(x) for x in OPT.get("w3", "64,68,72,76,74,75" if OPT.get("few", "1") == "1" else "48,54,60,72,75,76").split(",")]): S.dma[G] += g_
S.dmas(b_dma(1), 78, 2); S.dmas(b_dma(2), 82, 2); S.dmas(b_dma(3), 86, 2); S.dmas(b_dma(4), 90, 2); S.dmas(b_dma(5), 98, 2)
S.pre[94] += [".waitvm w3 lgkm0", "s_barrier"]
S.post[94] += [f"ds_read_b128 {v(CSF,4)}, {v(VCSA)} offset:2048"]
S.post[95] += stamp_i("sub2")
if V2 and PX1:
    for j, G in zip((1, 2, 3), [int(x) for x in OPT.get("pxg", "91,93,102").split(",")]): S.post[G] += xoff(j, True) + [f"buffer_store_dwordx4 {v(PZ,4)}, {v(VL16)}, {s(SWS,4)}, {s(sT0)} offen sc1 ; tag=px"]
S.fill[96] += aug(ACC0, CSF, BIAS + 2)
if OFFL: S.post[106] += [f"s_sub_u32 {s(sT2)}, {s(sFO)}, 1024", f"s_buffer_load_dword {s(sK)}, {s(SWS,4)}, {s(sT2)} glc"]
S.spread(gelu(ACC0, 16), 98, 112)
if V3: S.post[97] += va3_init
aj = sum([a_jobs(kk) for kk in range(4 if NP else 8 if V2 and not V3 else 6)], []) + [[]] * 8
S.dmas(aj[:6], 106); aj = aj[2:]
for i in range(0, 16, 2): S.post[96 + i] += [m16(MC, SEL, WF + 4 * (i & 3), "0" if i == 0 else None)]
run_sched(S, [ACC0, ACC1, ACC0, ACC1])
t = T + 16
P(f"v_and_b32 {v(t)}, 31, {v(vL)}\ns_lshl_b32 {s(sT0)}, {s(sHALF)}, 4\nv_xor_b32 {v(t)}, {s(sT0)}, {v(t)}\nv_lshlrev_b32 {v(t)}, 4, {v(t)}\nv_add_u32 {v(t)}, {L_CS+3072}, {v(t)}")
P(f"v_add_u32 {v(t+1)}, {s(sW34)}, {v(VCSA)}")
P(f"ds_write_b32 {v(t+1)}, {v(MC)} offset:3072")
P.add(aj[4])
XO = 4096 if V2 else 1024
P(f"s_add_u32 {s(sT1)}, {s(sMB if V2 else sM0x)}, {KAREA[8]}\ns_xor_b32 {s(sT0)}, {s(sT1)}, 8192\nv_add_u32 {v(t+1)}, {s(sT0)}, {v(VL16)}\nv_add_u32 {v(AB)}, {s(sT1)}, {v(VL16)}")
P(f"ds_write_b128 {v(t+1)}, {v(ACC1+8,4)}\nds_write_b128 {v(t+1)}, {v(ACC1+12,4)} offset:{XO}")
P(".waitvm b5 lgkm0")
P("s_barrier")
stamp("sub3")
P(f"ds_read_b128 {v(CSF,4)}, {v(t)}")
P(f"ds_read_b128 {v(ACC0,4)}, {v(AB)}\nds_read_b128 {v(ACC0+4,4)}, {v(AB)} offset:{XO}")
P.add(aj[5])
P.add(aug(ACC1, CSF, BIAS + 3))
P.add(aj[6] + aj[7])
if NP: P.add(flag(2, "h2"))
for i in range(0, 8, 2): P(f"v_pk_add_f32 {v(ACC1+i,2)}, {v(ACC1+i,2)}, {v(ACC0+i,2)}")
stamp("x7")
gt = gelu(ACC1, 8, True, out=BIAS); h3 = hstore(sH0, 2, "h3")
if not V5: sneed(1, 1)
if OFFL: own_check()
P.add(aj[8] + gt[:10] + aj[9] + gt[10:20] + [h3[0]] + gt[20:30] + [h3[1]] + gt[30:] + hstore(sH3, 1, "h4", BIAS))
stamp("p1end")
if V5: phase2_v5((6, 7, 8), True)
elif V3: phase2_v3((6, 7, 8), (6, 7), True)
elif V2: phase2_v2((6, 7, 8), True)
else: phase2(("A4", "A5"), "B6 A6 B7 A7 B8 B9 A8 B10 A9 B11 A10 B12 A11 B13 A12 B14 A13 B15 B16 B17 A14 A15 A16 A17", True)

P("L_end:")
P("s_endpgm")

ins = P.ins
for I in ins:
    if "; nodef" in I.text: I.defs = []
if OPT.get("nodma"): ins = [I for I in ins if I.kind != "dma"]
if OPT.get("notr"): ins = [I for I in ins if not I.op.startswith("ds_read_b64_tr")]
if OPT.get("nofmac"): ins = [I for I in ins if not (I.op.startswith("v_fmac") or (I.op == "v_and_b32" and "0xffff0000" in I.text) or (I.op == "v_lshlrev_b32" and I.ops[1] == "16"))]
if OPT.get("nom16"): ins = [I for I in ins if "16x16x32" not in I.op]
if OPT.get("notrans"): ins = [I for I in ins if not I.op.startswith(("v_exp", "v_rcp"))]
if OPT.get("novalu"): ins = [I for I in ins if not I.op.startswith(("v_exp", "v_rcp", "v_mul_f32", "v_fma_f32", "v_cvt_pk", "v_max3", "v_add_f32"))]
if OPT.get("nopk"): ins = [I for I in ins if not I.op.startswith(("v_pk_", "v_dot2c"))]
if OPT.get("noval"): ins = [I for I in ins if not (I.op == "s_cbranch_vccnz" and "_slow" in I.text)]
if OPT.get("noa"): ins = [I for I in ins if not (I.kind == "vld" and "x4" in I.op and "sc1" in I.mods)]
if OPT.get("nob"): ins = [I for I in ins if not (I.kind == "dma" and (s(SW2,4) in I.text or s(SWO,4) in I.text))]
if OPT.get("anosc"):
    for I in ins:
        if I.kind == "vld" and "x4" in I.op: I.text = I.text.replace(" sc1", " " + OPT["anosc"].replace("0", ""))
if OPT.get("nopz"): ins = [I for I in ins if not (I.kind == "vst" and "x4" in I.op and (v(PZ,4) in I.text or v(AAUG,4) in I.text) and s(SWS,4) in I.text)]
if OPT.get("plain"):
    for I in ins:
        if I.kind == "vst" and "x4" in I.op and s(SWS,4) in I.text and ("tag=h" in I.text or "tag=po" in I.text or "; ost" in I.text): I.text = I.text.replace(" sc1", "")
if OPT.get("nohs"):
    ins = [I for I in ins if not (I.op.startswith("s_buffer_load") or I.text.startswith((".waitvm h", ".waitvm po", ".waitvm zf")) or (I.op == "s_branch" and ("L_sp" in I.text or "L_ncs" in I.text or "L_oc" in I.text) and "spkv1" not in I.text))]
    for I in ins:
        if I.text.startswith(".waitvm pz"): I.text = ".waitvm none lgkm0"
if OPT.get("nost"): ins = [I for I in ins if not (I.kind == "vst" and "x4" in I.op and "tag=h" in I.text)]
if OPT.get("nomfma"): ins = [I for I in ins if I.kind != "mfma"]
if STAMP:
    for I in ins:
        if I.op in ("s_memrealtime", "s_memtime"): I.kind = "salu"
if OPT.get("nopx"): ins = [I for I in ins if not (I.kind == "vst" and "tag=px" in I.text)]
if OPT.get("nopo"): ins = [I for I in ins if not (I.kind == "vst" and "x4" in I.op and I.ops[0] == v(AAUG,4) and s(SWS,4) in I.text)]
AB_ = OPT.get("abl", "")
iffn = [i for i, I in enumerate(ins) if I.text == "L_ffn:"][0]
def att(i): return i < iffn
if "g" in AB_: ins = [I for i, I in enumerate(ins) if not (I.kind == "vld" and I.ops[1] in (v(S1), v(S2)) and "x4" in I.op)]
if "k" in AB_: ins = [I for i, I in enumerate(ins) if not (I.cond == "lo4" and I.kind in ("valu", "dsr", "mfma"))]
if "s" in AB_: ins = [I for i, I in enumerate(ins) if not (att(i) and I.op.startswith(("v_exp", "v_fma_f32", "v_max3_f32", "v_pk_fma", "v_pk_mul_f32")))]
if "b" in AB_: ins = [I for i, I in enumerate(ins) if not (att(i) and I.kind == "dma" and (s(SW2,4) in I.text or s(SWO,4) in I.text))]
if "m" in AB_: ins = [I for I in ins if not ("4x4x4" in I.op or "16x16x32" in I.op)]
if "x" in AB_: ins = [I for I in ins if not (I.kind in ("vld", "vst") and "x4" in I.op and I.ops[3] == s(sT0) and s(SWS,4) in I.text and not I.cond)]
if "e" in AB_: ins = [I for i, I in enumerate(ins) if not (not att(i) and I.op.startswith(("v_exp", "v_rcp", "v_fma_f32", "v_mul_f32")))]
if OPT.get("jit"):
    import random
    rnd = random.Random(int(OPT["jit"])); new = []; n_ = 0
    for I in ins:
        if I.kind == "mfma" and rnd.random() < 0.12:
            n_ += 1; src = rnd.choice([f"{s(sW)}, {rnd.randrange(3)}", f"s2, {rnd.randrange(8)}"])
            for tx in (f"s_bitcmp{rnd.randrange(2)}_b32 {src}", f"s_cbranch_scc0 L_j{n_}", f"s_sleep {rnd.choice([2, 8, 20, 40])}", f"L_j{n_}:"):
                J = Ins(tx, I.cond or ("jit" if tx.startswith("s_sleep") else None)); new.append(J)
        new.append(I)
    ins = new
ins = auto_wait(ins)
st = []
ins = hazards(ins, st)
hdr = open("parallel_sum__linear_kernel_hedgehog__dense_activation_gelu__prompt.s.ref").read().split("; Override")[0]
out = hdr + f"; @launch grid=(256,1,1) block=(512,1,1) lds={LDS_SIZE}\n"
out += f'.amdgcn_target "amdgcn-amd-amdhsa--gfx950"\n.text\n.globl {NAME}\n.p2align 8\n.type {NAME},@function\n{NAME}:\n'
out += render(ins)
out += f""".section .rodata,"a"
.p2align 6
.amdhsa_kernel {NAME}
  .amdhsa_next_free_vgpr 256
  .amdhsa_next_free_sgpr 102
  .amdhsa_accum_offset 256
  .amdhsa_group_segment_fixed_size 0
  .amdhsa_kernarg_size 96
  .amdhsa_user_sgpr_count 2
  .amdhsa_user_sgpr_kernarg_segment_ptr 1
  .amdhsa_system_sgpr_workgroup_id_x 1
.end_amdhsa_kernel
"""
open(sys.argv[1], "w").write(out)
print(f"instrs={sum(1 for I in ins if I.kind not in ('label','dir'))} nop-sites={len(st)} nop-states={sum(n for n,_ in st)}", file=sys.stderr)
if OPT.get("nops"):
    for n, tx in st: print(n, tx, file=sys.stderr)
```

```python
import sys, math, struct
from ir import *

NAME = "parallel_sum__linear_kernel_hedgehog__dense_activation_gelu__prompt_kernel"
OPT = dict(a.split("=") for a in sys.argv[2:] if "=" in a)
STAMP = int(OPT.get("stamp", 0))

def f2u(x): return struct.unpack("<I", struct.pack("<f", x))[0]
LOG2E = 1.4426950408889634
GC1 = -2.0 * LOG2E * math.sqrt(2.0 / math.pi)
GC2 = GC1 * 0.044715

HF_RB = 144 * 1024
WS_KVP = 0xA00000
KVP_SZ = 4608
WS_FLG = 0xC00000
WS_KVF = 0xC08000
WS_STAMP = 0xD00000
WS_X = 0x1000000
WS_SIZE = 0x1800000
V5 = OPT.get('v5', '0') == '1'
XRG = OPT.get('xr', '0') == '1'
NP = OPT.get('np', '1') == '1'
if NP: OPT['r8'] = '0'
V3 = OPT.get('p2', '2') == '3'
V2 = OPT.get('p2', '2') in '23'
RA, RB, RC = 0, 65536, 131072
L_KVB = 147456
L_CS = 155648
L_ST = L_CS + 4096
L_WPHI = L_CS + 6144
LDS_SIZE = 163840
SPIN_MAX = 1 << 15

sW, sRT, sG, sM, sN = 3, 4, 5, 6, 7
SX, SW2, SWS, SWT, SAUX, SDBG, SWO, SOUT = 8, 12, 16, 20, 24, 28, 36, 40
sXo, sWo, sROT, sC1 = 32, 33, 34, 35
SB2 = 92
sFL, sOo, sM0x, sT0, sT1, sSIG, sONE, sFO, sHALF, sHo, sWq, sW3, sT2, sCNT, sW34, sT3 = range(44, 60)
sEX = 60
sH0, sH3, sM4, sK = 62, 63, 64, 65
sST = 66
sB2o, sBOo = 90, 91
sA0, sA1, sR4, sSH, sD0, sD1 = range(96, 102)
sOK = sSIG
sQ = [sXo, sWo, sROT, sC1]
sPL = 28
VCSA = 0; vL = 1
AX = 2; AW = 6; AB = 10; VZ, VFV = 12, 13
VX0, VX1, VW, VB, VW3 = 14, 15, 16, 17, 18
VSTA, S1, S2, CS0 = 19, 20, 21, 22
VW0 = 22
RSTD, STD, K1, K2, VL16 = 23, 24, 25, 26, 27
BAUG, AAUG, SEL, BIAS = 28, 32, 36, 40
T = 44
WF = 64
ACC0, ACC1, ACC2 = 80, 96, 112
XF = 128
VTD = int(OPT.get('vtd', 15))
PZ = ACC2 + 8

P = Prog()
STI = dict(start=0, kernarg=1, it0=2, pass1=3, sub1=4, sub2=5, qsm=6, sub3=6, kvseen=7, x7=7, p1end=8, hseen=9, p2mm=10, end=11)
if OPT.get("sp") == "p2": STI = dict(start=0, p1end=1, k1=2, k3=3, k5=4, k7=5, k9=6, k11=7, k13=8, k15=9, p2mm=10, end=11)
if OPT.get("sp") == "att": STI = dict(start=0, sub1=1, kv0=2, kv1=3, kv2=4, sub2=5, qsm=6, kvseen=7, sm2=8, gsum=9, p1end=10, end=11)
if OPT.get("sp", "").startswith("l:"): STI = {n: i for i, n in enumerate(["start"] + OPT["sp"][2:].split(","))}
def stamp_i(name):
    if not STAMP or name not in STI: return []
    i = STI[name]
    return [f"{'s_memrealtime' if STAMP == 1 else 's_memtime'} {s(sST + 2*i, 2)} ; stamp {i} {name}"]
def stamp(name): P.add(stamp_i(name))

def mfma(d, a, b, c=None):
    return f"v_mfma_f32_32x32x16_bf16 {v(d,16)}, {v(a,4)}, {v(b,4)}, {v(d,16) if c is None else c}"
def m16(d, a, b, c=None):
    return f"v_mfma_f32_16x16x32_bf16 {v(d,4)}, {v(a,4)}, {v(b,4)}, {v(d,4) if c is None else c}"
def srd(base, nbytes):
    P(f"s_mov_b32 {s(base+2)}, {nbytes}\ns_mov_b32 {s(base+3)}, 0x20000")
def lines(t): return [l for l in t.split("\n") if l.strip()]

P("s_cmp_ge_u32 s2, 256")
P("s_cbranch_scc1 L_end")
stamp("start")
if OPT.get("exit0"): P("s_endpgm")
if OPT.get("cpf", "1") == "3":
    P(f"s_getpc_b64 {s(sEX,2)}")
    P("L_pc0:")
    P(f"v_subrev_u32 v3, 320, v0\nv_cmp_gt_u32 vcc, 16, v3\ns_lshr_b32 {s(sT0)}, s2, 3\ns_lshl_b32 {s(sT0)}, {s(sT0)}, 11")
    P("s_cbranch_vccz L_ncp0")
    P.cond_begin("cp0")
    P(f"v_and_b32 v3, 15, v3\nv_lshlrev_b32 v3, 7, v3\nv_add_u32 v3, {s(sT0)}, v3\nv_min_u32 v3, L_end-L_pc0, v3")
    P(f"global_load_dword v253, v3, {s(sEX,2)}")
    P.cond_end()
    P("L_ncp0:")
if OPT.get("cpf", "1") == "2":
    P(f"s_getpc_b64 {s(sEX,2)}")
    P("L_pc0:")
    P(f"v_lshlrev_b32 v3, 7, v0")
    P(f"v_min_u32 v3, L_end-L_pc0, v3")
    P(f"global_load_dword v253, v3, {s(sEX,2)}")
P(f"s_load_dwordx2 {s(SX,2)}, s[0:1], 0")
P(f"s_load_dwordx2 {s(SWT,2)}, s[0:1], 8")
P(f"s_load_dwordx2 {s(sA0,2)}, s[0:1], 40")
P(f"v_lshrrev_b32 v2, 6, v0")
P(f"v_and_b32 {v(vL)}, 63, v0")
P(f"s_lshr_b32 {s(sT1)}, s2, 3")
P(f"v_readfirstlane_b32 {s(sW)}, v2")
OWN = False
AF_ = OPT.get('af', '0') == '1'
P(f"s_and_b32 {s(sRT)}, s2, 4\ns_lshl_b32 {s(sRT)}, {s(sRT)}, 1\ns_and_b32 {s(sT2)}, {s(sT1)}, 7\ns_add_u32 {s(sRT)}, {s(sRT)}, {s(sT2)}")
P(f"v_lshrrev_b32 v2, 3, {v(vL)}\nv_and_b32 v3, 7, {v(vL)}\nv_lshrrev_b32 v4, 4, {v(vL)}")
P(f"s_lshl_b32 {s(sXo)}, {s(sRT)}, 17\ns_lshl_b32 {s(sT2)}, {s(sW)}, 14\ns_add_u32 {s(sXo)}, {s(sXo)}, {s(sT2)}")
P(f"v_xor_b32 v5, v3, v4\nv_lshl_add_u32 v5, v5, 4, {s(sXo)}\nv_lshl_add_u32 {v(VX0)}, v2, 10, v5")
P(f"s_lshr_b32 {s(sN)}, {s(sT1)}, 3\ns_lshl_b32 {s(sT2)}, {s(sN)}, 1\ns_add_u32 {s(sROT)}, {s(sRT)}, {s(sT2)}\ns_and_b32 {s(sROT)}, {s(sROT)}, {0 if OPT.get('norot') else OPT.get('rm', 7)}")
P(f"v_xor_b32 v5, 64, {v(VX0)}\nv_add_u32 {v(VX1)}, {8192-1024}, v5")
srd(SX, 2097152)
P(f"s_lshl_b32 {s(sM0x)}, {s(sW)}, 11\ns_lshl_b32 {s(sK)}, {s(sROT)}, 7\ns_mov_b32 m0, {s(sM0x)}")
P(f"v_and_b32 v4, 1, v4\nv_lshlrev_b32 v4, 2, v4\nv_xor_b32 v4, v3, v4\nv_lshlrev_b32 v4, 4, v4")
P(f"s_and_b32 {s(sM)}, s2, 3\ns_lshl_b32 {s(sG)}, {s(sM)}, 1\n" + (f"s_and_b32 {s(sT2)}, {s(sN)}, 1" if AF_ else f"s_lshr_b32 {s(sT2)}, {s(sT1)}, 4") + f"\ns_add_u32 {s(sG)}, {s(sG)}, {s(sT2)}")
P(f"s_lshr_b32 {s(sD0)}, {s(sM0x)}, 1")
P("s_waitcnt lgkmcnt(0)")
stamp("kernarg")
P(f"buffer_load_dwordx4 {v(VX0)}, {s(SX,4)}, {s(sK)} offen lds")
P(f"buffer_load_dwordx4 {v(VX1)}, {s(SX,4)}, {s(sK)} offen offset:1024 lds")
P(f"s_load_dwordx2 {s(SWS,2)}, s[0:1], 88")
P(f"s_load_dwordx2 {s(SDBG,2)}, s[0:1], 80")
P(f"s_load_dwordx2 {s(SW2,2)}, s[0:1], 56")
P(f"s_load_dwordx2 {s(SWO,2)}, s[0:1], 24")
P(f"s_load_dwordx2 {s(SOUT,2)}, s[0:1], 72")
P(f"s_load_dwordx2 {s(SB2,2)}, s[0:1], 64")
assert V2
P(f"s_bitcmp1_b32 {s(sT1)}, {4 if AF_ else 3}")
P("s_cbranch_scc1 L_ffn")

def item1(it, pitch):
    q = it & 3
    return [[f"s_add_u32 m0, {s(sM0x)}, {RA+q*16384}", f"s_mul_i32 {s(sD1)}, {s(sK)}, {pitch//2}",
             f"buffer_load_dwordx4 {v(VX0)}, {s(SX,4)}, {s(sK)} offen lds"],
            [f"buffer_load_dwordx4 {v(VX1)}, {s(SX,4)}, {s(sK)} offen offset:1024 lds"],
            [f"s_add_u32 m0, {s(sD0)}, {RB+it*8192}", f"s_add_u32 {s(sK)}, {s(sK)}, 128",
             f"buffer_load_dwordx4 {v(VW0)}, {s(SWT,4)}, {s(sD1)} offen lds ; tag=it{it}",
             f"s_and_b32 {s(sK)}, {s(sK)}, 1023"]]
def wquarter(region, q, coloff, pitch, tag):
    return [[f"s_add_u32 m0, {s(sM0x)}, {region+q*16384}", f"s_add_u32 {s(sD1)}, {s(sQ[q])}, {coloff}",
             f"buffer_load_dwordx4 {v(VW)}, {s(SWT,4)}, {s(sD1)} offen lds"],
            [f"s_add_u32 {s(sD1)}, {s(sD1)}, {8*pitch-1024}",
             f"buffer_load_dwordx4 {v(VW)}, {s(SWT,4)}, {s(sD1)} offen offset:1024 lds ; tag={tag}"]]
def w3quarter(q, pitch):
    return [[f"s_lshr_b32 {s(sD1)}, {s(sM0x)}, 1", f"s_add_u32 m0, {s(sD1)}, {RA+q*8192}", "s_nop 0",
             f"buffer_load_dwordx4 {v(VW3)}, {s(SWT,4)}, {s(sQ[q])} offen lds ; tag=w3"]]

def spin(label, load, cmp):
    P(f"s_mov_b32 {s(sCNT)}, 0")
    P(f"{label}:")
    P(cmp)
    P(f"s_add_u32 {s(sCNT)}, {s(sCNT)}, 1")
    P(f"s_cbranch_vccz {label}_ok")
    P(f"s_cmp_gt_u32 {s(sCNT)}, {SPIN_MAX}")
    P(f"s_cbranch_scc1 {label}_ok")
    P("s_sleep 1")
    old = P._cond; P._cond = label
    P(load)
    P("s_waitcnt vmcnt(0)")
    P._cond = old
    P(f"s_branch {label}")
    P(f"{label}_ok:")

def gelu(acc, n, pk=False, t0=T, out=T):
    L = []
    for g4 in range(0, n, 4):
        t = t0 + 8 + (g4 & 4)
        a = [acc + g4 + i for i in range(4)]
        if pk:
            L += [f"v_pk_mul_f32 {v(t+i,2)}, {v(a[i],2)}, {v(a[i],2)}" for i in (0, 2)]
            L += [f"v_pk_fma_f32 {v(t+i,2)}, {v(t+i,2)}, {v(K2,2)}, {v(STD,2)} op_sel:[0,0,1] op_sel_hi:[1,0,1]" for i in (0, 2)]
            L += [f"v_pk_mul_f32 {v(t+i,2)}, {v(a[i],2)}, {v(t+i,2)}" for i in (0, 2)]
        else:
            L += [f"v_mul_f32 {v(t+i)}, {v(a[i])}, {v(a[i])}" for i in range(4)]
            L += [f"v_fma_f32 {v(t+i)}, {v(t+i)}, {v(K2)}, {v(K1)}" for i in range(4)]
            L += [f"v_mul_f32 {v(t+i)}, {v(a[i])}, {v(t+i)}" for i in range(4)]
        L += [f"v_exp_f32 {v(t+i)}, {v(t+i)}" for i in range(4)]
        if pk: L += [f"v_pk_fma_f32 {v(t+i,2)}, {v(t+i,2)}, {v(STD,2)}, {v(STD,2)} op_sel_hi:[1,0,0]" for i in (0, 2)]
        else: L += [f"v_fma_f32 {v(t+i)}, {v(t+i)}, {v(STD)}, {v(STD)}" for i in range(4)]
        L += [f"v_rcp_f32 {v(t+i)}, {v(t+i)}" for i in range(4)]
        if pk: L += [f"v_pk_mul_f32 {v(t+i,2)}, {v(a[i],2)}, {v(t+i,2)}" for i in (0, 2)]
        else: L += [f"v_mul_f32 {v(t+i)}, {v(a[i])}, {v(t+i)}" for i in range(4)]
        pr = out + (g4 >> 1)
        L += [f"v_cvt_pk_bf16_f32 {v(pr)}, {v(t)}, {v(t+1)}", f"v_cvt_pk_bf16_f32 {v(pr+1)}, {v(t+2)}, {v(t+3)}"]
    return L
def hstore(soff, n, tagn, src=T):
    return [f"buffer_store_dwordx4 {v(src+4*j,4)}, {v(VL16)}, {s(SWS,4)}, {s(soff)} offen offset:{1024*j} sc1 ; tag={tagn}" for j in range(n)]
assert K1 == STD + 1

def sum4(d, r):
    return [f"v_add_f32 {v(d)}, {v(r)}, {v(r+1)}", f"v_add_f32 {v(r+2)}, {v(r+2)}, {v(r+3)}", f"v_add_f32 {v(d)}, {v(d)}, {v(r+2)}"]

MS, U = T + 4, T + 16
CSR = T + 12
MC = AAUG

def stats_final():
    t = T + 16
    return [f"v_add_f32 {v(S1)}, {v(MS)}, {v(MS+2)}", f"v_add_f32 {v(S2)}, {v(MS+1)}, {v(MS+3)}",
          f"v_mul_f32 {v(S1)}, {f2u(-1.0/512):#x}, {v(S1)}",
          f"v_mul_f32 {v(t)}, {v(S1)}, {v(S1)}",
          f"v_fma_f32 {v(S2)}, {v(S2)}, {s(sT3)}, -{v(t)}",
          f"v_max_f32 {v(S2)}, 0, {v(S2)}",
          f"v_cvt_pk_bf16_f32 {v(t)}, {v(S2)}, {v(S1)}",
          f"v_lshlrev_b32 {v(S2)}, 16, {v(t)}",
          f"v_add_f32 {v(S2)}, {f2u(1e-5):#x}, {v(S2)}",
          f"v_cvt_pk_bf16_f32 {v(S2)}, {v(S2)}, {v(S2)}",
          f"v_and_b32 {v(S2)}, 0xffff0000, {v(S2)}",
          f"v_sqrt_f32 {v(S2)}, {v(S2)}",
          f"v_lshrrev_b32 {v(BAUG)}, 16, {v(t)}",
          f"v_cmp_gt_u32 vcc, 32, {v(vL)}",
          f"v_cvt_pk_bf16_f32 {v(BAUG+1)}, {v(S1)}, {v(S2)}",
          f"v_mov_b32 {v(BAUG+2)}, 0",
          f"v_and_b32 {v(STD)}, 0xffff0000, {v(BAUG+1)}",
          f"v_rcp_f32 {v(RSTD)}, {v(STD)}",
          f"v_cndmask_b32 {v(BAUG)}, 0, {v(BAUG)}, vcc",
          f"v_cndmask_b32 {v(BAUG+1)}, 0, {v(BAUG+1)}, vcc"]

def aug(acc, part, bias):
    t = T + 18; dst = AAUG
    L = sum4(CS0, part) + [f"v_cvt_pk_bf16_f32 {v(dst)}, {v(CS0)}, {v(CS0)}",
         f"v_and_b32 {v(t)}, 0xffff0000, {v(dst)}",
         f"v_sub_f32 {v(t)}, {v(CS0)}, {v(t)}"]
    if bias is None:
        L += [f"v_cvt_pk_bf16_f32 {v(dst+1)}, {v(t)}, 0"]
    else:
        L += [f"v_cvt_pk_bf16_f32 {v(t)}, {v(t)}, 0", f"v_mov_b32 {v(dst+2)}, {v(bias)}",
              f"v_lshl_or_b32 {v(dst+1)}, {v(bias)}, 16, {v(t)}"]
    return L + [mfma(acc, dst, BAUG)]

def flag(level, tag):
    return [f".waitvm {tag}", f"v_mov_b32 {v(VFV)}, {level}",
            f"buffer_store_dword {v(VFV)}, {v(VZ)}, {s(SWS,4)}, {s(sFO)} offen sc1"]

Q = 16384
KAREA = []
sSK = sM4 if V2 else sSH
sMB = sSIG
def rot_k(kk, dst):
    if kk < 8 and OPT.get("r8", "1") == "1": return [f"s_add_u32 {s(dst)}, {s(sR4)}, {kk}", f"s_and_b32 {s(dst)}, {s(dst)}, 7", f"s_add_u32 {s(dst)}, {s(dst)}, {s(sSK)}"]
    if kk < 12: return [f"s_add_u32 {s(dst)}, {s(sR4)}, {kk}", f"s_and_b32 {s(dst)}, {s(dst)}, 3", f"s_add_u32 {s(dst)}, {s(dst)}, {s(sSK)}"] + \
                       ([f"s_add_u32 {s(dst)}, {s(dst)}, {kk & ~3}"] if kk & ~3 else [])
    if kk < 14: return [f"s_mul_i32 {s(dst)}, {s(sSK)}, 6", f"s_sub_u32 {s(dst)}, {kk}, {s(dst)}"]
    return [f"s_add_u32 {s(dst)}, {s(sR4)}, {kk-14}", f"s_and_b32 {s(dst)}, {s(dst)}, 3"]
def rot_p(sg, dst, sh):
    add = lambda x: ([f"s_add_u32 {s(dst)}, {s(dst)}, {x}"] if x else [])
    shf = (lambda: add(sh)) if isinstance(sh, int) else (lambda: [f"s_add_u32 {s(dst)}, {s(dst)}, {s(sh[0])}"])
    if sg < 4: return [f"s_add_u32 {s(dst)}, {s(sR4)}, {sg}", f"s_and_b32 {s(dst)}, {s(dst)}, 3"] + shf()
    if sg < 6: return [f"s_add_u32 {s(dst)}, {s(sR4)}, {sg}", f"s_and_b32 {s(dst)}, {s(dst)}, 1", f"s_add_u32 {s(dst)}, {s(dst)}, 4"] + shf()
    if sg == 6: return [f"s_mov_b32 {s(dst)}, {6 - 6*sh}"] if isinstance(sh, int) else [f"s_mul_i32 {s(dst)}, {s(sh[0])}, 6", f"s_sub_u32 {s(dst)}, 6, {s(dst)}"]
    return [f"s_add_u32 {s(dst)}, {s(sR4)}, {sg}", f"s_and_b32 {s(dst)}, {s(dst)}, 1"]
VBO = VW3
vbo_init = [f"v_lshrrev_b32 {v(VBO)}, 2, {v(vL)}", f"v_lshlrev_b32 {v(VBO)}, 10, {v(VBO)}", f"v_and_b32 {v(VFV)}, 48, {v(VL16)}", f"v_add_u32 {v(VBO)}, {v(VBO)}, {v(VFV)}"]
def b_dma(kk):
    if V5 and kk >= 7:
        return [[f"s_add_u32 {s(sD0)}, {s(sW3)}, {(kk-7)*8 + e*4}", f"s_and_b32 {s(sD0)}, {s(sD0)}, 15", f"s_lshl_b32 {s(sD0)}, {s(sD0)}, 14",
                 f"s_add_u32 m0, {s(sMB)}, {KAREA[kk] + e*4096}", f"s_add_u32 {s(sD0)}, {s(sD0)}, {s(sBOo)}",
                 f"buffer_load_dwordx4 {v(VBO)}, {s(SWO,4)}, {s(sD0)} offen lds ; tag=b{kk}"] for e in range(2)]
    if V3:
        sr, so = (SW2, sB2o) if kk < 7 else (SWO, sBOo)
        return [rot_p(kk, sD0, [sHALF]) + [f"s_lshl_b32 {s(sD0)}, {s(sD0)}, 15", f"s_add_u32 m0, {s(sMB)}, {KAREA[kk]}", f"s_add_u32 {s(sD0)}, {s(sD0)}, {s(so)}",
                 f"buffer_load_dwordx4 {v(VB)}, {s(sr,4)}, {s(sD0)} offen lds"],
                [f"s_add_u32 m0, {s(sMB)}, {KAREA[kk] + 4096}", f"s_add_u32 {s(sD0)}, {s(sD0)}, 16384",
                 f"buffer_load_dwordx4 {v(VB)}, {s(sr,4)}, {s(sD0)} offen lds ; tag=b{kk}"]]
    if V2:
        G_ = []
        for pos in (2 * kk, 2 * kk + 1):
            sr, so = (SW2, sB2o) if pos < 14 else (SWO, sBOo)
            G_.append(rot_k(pos, sD0) + [f"s_lshl_b32 {s(sD0)}, {s(sD0)}, 14", f"s_add_u32 m0, {s(sMB)}, {KAREA[kk] + (pos & 1) * 4096}", f"s_add_u32 {s(sD0)}, {s(sD0)}, {s(so)}",
                      f"buffer_load_dwordx4 {v(VB)}, {s(sr,4)}, {s(sD0)} offen lds ; tag=b{kk}"])
        return G_
    slot = kk % 9
    m0 = f"s_add_u32 m0, {s(sM0x)}, {KAREA[slot]}"
    sr, so = (SW2, sB2o) if kk < 14 else (SWO, sBOo)
    return [rot_k(kk, sD0) + [f"s_lshl_b32 {s(sD0)}, {s(sD0)}, 14", m0, f"s_add_u32 {s(sD0)}, {s(sD0)}, {s(so)}",
             f"buffer_load_dwordx4 {v(VB)}, {s(sr,4)}, {s(sD0)} offen lds"],
            [f"s_add_u32 {s(sD0)}, {s(sD0)}, {8192 - 1024}",
             f"buffer_load_dwordx4 {v(VB)}, {s(sr,4)}, {s(sD0)} offen offset:1024 lds ; tag=b{kk}"]]

def setup(ffn):
    pitch = 3584 if ffn else 3072
    tp = "f" if ffn else "a"
    if ffn: P(f"s_mov_b64 {s(SWT,2)}, {s(sA0,2)}")
    P(f"s_load_dwordx2 {s(SAUX,2)}, s[0:1], {48 if ffn else 16}")
    srd(SWT, 1835008 if ffn else 1572864)
    P(f"v_mul_u32_u24 {v(VW)}, {pitch}, v2\nv_add_u32 {v(VW)}, {v(VW)}, v4")
    if ffn:
        P(f"s_mul_i32 {s(sT0)}, {s(sG)}, 448\ns_and_b32 {s(sT1)}, {s(sG)}, 1\ns_lshl_b32 {s(sT2)}, {s(sT1)}, 6\ns_add_u32 {s(sWq)}, {s(sT0)}, {s(sT2)}")
        P(f"s_mul_i32 {s(sWo)}, {s(sW)}, {8*pitch}\ns_add_u32 {s(sWo)}, {s(sWo)}, {s(sWq)}")
    else:
        P(f"s_lshl_b32 {s(sWq)}, {s(sG)}, 7")
        P(f"s_mul_i32 {s(sWo)}, {s(sW)}, {8*pitch}\ns_add_u32 {s(sWo)}, {s(sWo)}, {s(sWq)}\ns_add_u32 {s(sWo)}, {s(sWo)}, 1024")
    P(f"v_add_u32 {v(VW0)}, {s(sWo)}, {v(VW)}")
    if STAMP and "slow" in STI: P(f"s_mov_b32 {s(sST+2*STI['slow'])}, {s(sST)}")
    P(f"s_mul_i32 {s(sD1)}, {s(sK)}, {pitch//2}")
    P.add(item1(0, pitch)[2])
    P("s_waitcnt lgkmcnt(0)")
    srd(SWS, WS_SIZE); srd(SDBG, 256); srd(SW2, 1835008); srd(SWO, 524288); srd(SOUT, 2097152); srd(SB2, 1024); srd(SAUX, 3584 if ffn else 16384)
    P(f"v_lshlrev_b32 {v(VL16)}, 4, {v(vL)}")
    P(f"s_lshr_b32 {s(sHALF)}, {s(sW)}, 2")
    P(f"s_and_b32 {s(sW34)}, {s(sW)}, 3\ns_xor_b32 {s(sSIG)}, {s(sW34)}, {s(sHALF)}")
    if not ffn:
        for i in range(4): P(f"v_mov_b32 {v(T+i)}, 0")
        P(f"s_lshl_b32 {s(sT0)}, {s(sW)}, 8\ns_add_u32 {s(sT0)}, {s(sT0)}, s2\ns_sub_u32 {s(sT0)}, {s(sT0)}, 256\ns_cmp_lt_u32 {s(sT0)}, 8")
        P(f"s_cbranch_scc0 L_nzero")
        P.cond_begin("zw")
        P(f"s_lshl_b32 {s(sT0)}, s2, 12\ns_add_u32 {s(sT0)}, {s(sT0)}, {WS_FLG}")
        for i in range(4): P(f"buffer_store_dwordx4 {v(T,4)}, {v(VL16)}, {s(SWS,4)}, {s(sT0)} offen offset:{1024*i} sc1")
        P(f"s_lshl_b32 {s(sT0)}, s2, 8\ns_add_u32 {s(sT0)}, {s(sT0)}, {WS_KVF}\nv_lshlrev_b32 v3, 2, {v(vL)}")
        P(f"buffer_store_dword {v(T)}, v3, {s(SWS,4)}, {s(sT0)} offen sc1 ; tag=zf")
        P.cond_end()
        P(f"L_nzero:")
    if OPT.get("touch", "5") == "1":
        P(f"s_cmp_lt_u32 {s(sW)}, 6")
        P(f"s_cbranch_scc1 L_nt{tp}")
        P.cond_begin("w67")
        P(f"v_lshlrev_b32 v3, 7, {v(vL)}\ns_mul_i32 {s(sT0)}, s2, 7168\ns_lshl_b32 {s(sT1)}, s2, 11")
        P(f"s_cmp_eq_u32 {s(sW)}, 6\ns_cbranch_scc0 L_nta{tp}")
        P(f"buffer_load_dword v255, v3, {s(SW2,4)}, {s(sT0)} offen")
        P(f"s_branch L_nt{tp}")
        P(f"L_nta{tp}:")
        P(f"v_and_b32 v3, 2047, v3")
        P(f"buffer_load_dword v255, v3, {s(SWO,4)}, {s(sT1)} offen")
        P(f"buffer_load_dword v254, v3, {s(SB2,4)}, 0 offen")
        P.cond_end()
        P(f"L_nt{tp}:")
    def wtouch():
        P(f"s_sub_u32 {s(sT0)}, {s(sW)}, 2\ns_cmp_lt_u32 {s(sT0)}, {min(3 if ffn else 2, int(OPT.get('wtn', 2)))}")
        P(f"s_cbranch_scc0 L_nw{tp}")
        P.cond_begin("w234")
        P(f"v_mul_u32_u24 v3, {pitch}, {v(vL)}\ns_mul_i32 {s(sT1)}, {s(sROT)}, {64*pitch}\ns_add_u32 {s(sT1)}, {s(sT1)}, {s(sWq)}")
        if ffn:
            P(f"s_lshl_b32 {s(sT2)}, {s(sT0)}, 7\ns_add_u32 {s(sT1)}, {s(sT1)}, {s(sT2)}\ns_add_u32 {s(sT1)}, {s(sT1)}, 128")
            P(f"s_lshr_b32 {s(sT0)}, {s(sT0)}, 1\ns_and_b32 {s(sT0)}, {s(sT0)}, {s(sG)}\ns_mul_i32 {s(sT0)}, {s(sT0)}, 448\ns_sub_u32 {s(sT1)}, {s(sT1)}, {s(sT0)}")
        else:
            P(f"s_xor_b32 {s(sT0)}, {s(sT0)}, 1\ns_lshl_b32 {s(sT0)}, {s(sT0)}, 11\ns_add_u32 {s(sT1)}, {s(sT1)}, {s(sT0)}")
        if OPT.get("wt", "2") == "2": P(f"s_mov_b32 {s(sCNT)}, {s(sT1)}")
        else: P(f"buffer_load_dword v250, v3, {s(SWT,4)}, {s(sT1)} offen")
        P.cond_end()
        P(f"L_nw{tp}:")
    if OPT.get("wt", "2") == "2": P(f"s_mov_b32 {s(sCNT)}, 0x7f000000")
    if OPT.get("wt", "2") != "0": wtouch()
    if OPT.get("sw", "0") != "0":
        c1_, c2_ = (128, 256) if ffn else (1024, -1024)
        P(f"s_mul_i32 {s(sT0)}, {s(sROT)}, {64*pitch}\ns_add_u32 {s(sT0)}, {s(sT0)}, {s(sWo)}")
        for cc, n_ in ((c1_, 8), (c2_, int(OPT["sw"]) - 8)):
            if n_ <= 0: continue
            P(f"s_add_u32 {s(sT1)}, {s(sT0)}, {cc}")
            for j in range(n_): P(f"s_buffer_load_dword {s(sCNT)}, {s(SWT,4)}, {s(sT1)} offset:{j*pitch} ; nodef")
    if OPT.get("cpf", "1") == "1":
        P(f"s_cmp_eq_u32 {s(sW)}, 5")
        P(f"s_cbranch_scc0 L_ncp{tp}")
        P.cond_begin("w5")
        P(f"s_getpc_b64 {s(sEX,2)}")
        P(f"L_pc{tp}:")
        P(f"s_sub_u32 {s(sEX)}, {s(sEX)}, L_pc{tp}-{NAME}\ns_subb_u32 {s(sEX+1)}, {s(sEX+1)}, 0")
        P(f"s_lshr_b32 {s(sT0)}, s2, 3\ns_lshl_b32 {s(sT0)}, {s(sT0)}, 11\nv_and_b32 v3, 15, {v(vL)}\nv_lshlrev_b32 v3, 7, v3\nv_add_u32 v3, {s(sT0)}, v3")
        P(f"v_min_u32 v3, L_end-{NAME}, v3")
        P(f"global_load_dword v253, v3, {s(sEX,2)}")
        P.cond_end()
        P(f"L_ncp{tp}:")
    if OPT.get("pt", "0") == "1":
        P(f"s_cmp_eq_u32 {s(sW)}, 4")
        P(f"s_cbranch_scc0 L_npt{tp}")
        n0 = len(P.ins)
        P(f"v_lshlrev_b32 v3, 21, {v(vL)}")
        P(f"buffer_load_dword v252, v3, {s(SWS,4)}, 0 offen")
        for i_, sr_ in enumerate((SOUT, SW2, SWO, SB2)): P(f"buffer_load_dword v{248+i_}, v3, {s(sr_,4)}, 0 offen")
        for I in P.ins[n0:]: I.cond = "w4"
        P(f"L_npt{tp}:")
    def stouch():
        n0 = len(P.ins)
        P(f"s_lshl_b32 {s(sT0)}, s2, 3\ns_add_u32 {s(sT0)}, {s(sT0)}, {s(sW)}\ns_mul_i32 {s(sT1)}, {s(sT0)}, 768\ns_mul_i32 {s(sT0)}, {s(sT0)}, 896")
        for i in range(6): P(f"s_load_dword {s(sCNT)}, {s(sEX,2)}, {s(sT1)} offset:{128*i}")
        for i in range(7): P(f"s_load_dword {s(sCNT)}, {s(sA0,2)}, {s(sT0)} offset:{128*i}")
    if OPT.get("stouch", "0") == "1": stouch()
    late1 = OPT.get("late1", "0") == "1"
    if not late1:
        for g_ in item1(1, pitch): P.add(g_)
    P(f"s_lshl_b32 {s(sT0)}, {s(sRT)}, 4\ns_add_u32 {s(sT0)}, {s(sT0)}, {s(sG)}\ns_lshl_b32 {s(sT0)}, {s(sT0)}, 7")
    P(f"s_and_b32 {s(sT1)}, {s(sW)}, 2\ns_lshl_b32 {s(sT1)}, {s(sT1)}, 3\ns_add_u32 {s(sT0)}, {s(sT0)}, {s(sT1)}\ns_and_b32 {s(sT1)}, {s(sW)}, 1\ns_lshl_b32 {s(sT1)}, {s(sT1)}, 2\ns_add_u32 {s(sT0)}, {s(sT0)}, {s(sT1)}\ns_lshl_b32 {s(sT1)}, {s(sHALF)}, 3\ns_add_u32 {s(sT0)}, {s(sT0)}, {s(sT1)}")
    if V3: P(f"s_and_b32 {s(sT1)}, {s(sW)}, 2\ns_lshl_b32 {s(sT1)}, {s(sT1)}, 3\ns_add_u32 {s(sT0)}, {s(sT0)}, {s(sT1)}\ns_and_b32 {s(sT1)}, {s(sG)}, 1\ns_mul_i32 {s(sT1)}, {s(sT1)}, 112\ns_sub_u32 {s(sT0)}, {s(sT0)}, {s(sT1)}")
    P(f"s_add_u32 {s(sFO)}, {s(sT0)}, {WS_FLG + (1024 if ffn else 0)}")
    P(f"s_lshl_b32 {s(sT0)}, {s(sRT)}, 2\ns_add_u32 {s(sT0)}, {s(sT0)}, {s(sW34)}\ns_mul_i32 {s(sHo)}, {s(sT0)}, {HF_RB}")
    if ffn:
        P(f"v_and_b32 v5, 31, {v(vL)}\nv_lshlrev_b32 v5, 1, v5")
        P(f"s_lshl_b32 {s(sT0)}, {s(sHALF)}, 6\ns_add_u32 {s(sT0)}, {s(sT0)}, {s(sWq)}")
        for i in range(3): P(f"buffer_load_ushort {v(BIAS+i)}, v5, {s(SAUX,4)}, {s(sT0)} offen offset:{128*i}")
        P(f"s_lshl_b32 {s(sT0)}, {s(sT0)}, 5\ns_add_u32 {s(sH0)}, {s(sHo)}, {s(sT0)}")
        P(f"s_mul_i32 {s(sW3)}, {s(sG)}, 448\ns_add_u32 {s(sT0)}, {s(sW3)}, 384\ns_bitcmp1_b32 {s(sG)}, 0\ns_cselect_b32 {s(sW3)}, {s(sW3)}, {s(sT0)}")
        P(f"s_lshl_b32 {s(sT0)}, {s(sHALF)}, 5\nv_xor_b32 v5, {s(sT0)}, v5")
        P(f"buffer_load_ushort {v(BIAS+3)}, v5, {s(SAUX,4)}, {s(sW3)} offen")
        P(f"s_add_u32 {s(sT0)}, {s(sT0)}, {s(sW3)}\ns_lshl_b32 {s(sT0)}, {s(sT0)}, 5\ns_add_u32 {s(sH3)}, {s(sHo)}, {s(sT0)}")
        P(f"v_lshrrev_b32 v2, 2, {v(vL)}\nv_and_b32 v4, 3, {v(vL)}\nv_lshlrev_b32 v4, 4, v4\nv_mul_u32_u24 {v(VW3)}, {pitch}, v2\nv_add_u32 {v(VW3)}, {v(VW3)}, v4")
    else:
        P(f"s_cmp_lt_u32 {s(sW)}, 2")
        P(f"s_cbranch_scc0 L_nphi")
        P.cond_begin("w01")
        P(f"s_lshl_b32 {s(sT0)}, {s(sG)}, 11\ns_lshl_b32 {s(sT1)}, {s(sW)}, 10\ns_add_u32 {s(sT0)}, {s(sT0)}, {s(sT1)}\ns_add_u32 m0, {s(sT1)}, {L_WPHI}\ns_nop 0")
        P(f"buffer_load_dwordx4 {v(VL16)}, {s(SAUX,4)}, {s(sT0)} offen lds")
        P.cond_end()
        P("L_nphi:")
        P(f"s_mov_b64 {s(SAUX,2)}, {s(sA0,2)}\ns_mov_b32 {s(SAUX+2)}, 1835008")
    P(f"s_mul_i32 {s(sT0)}, {s(sW34)}, {16*pitch}\ns_add_u32 {s(sWq)}, {s(sWq)}, {s(sT0)}")
    P(f"v_add_u32 {v(VW)}, {s(sWq)}, {v(VW)}")
    if ffn: P(f"s_add_u32 {s(sW3)}, {s(sW3)}, {s(sT0)}\nv_add_u32 {v(VW3)}, {s(sW3)}, {v(VW3)}")
    P(f"s_add_u32 {s(sT0)}, {s(sROT)}, {s(sHALF)}")
    for q in range(4):
        P(f"s_add_u32 {s(sT1)}, {s(sT0)}, {2*q}\ns_and_b32 {s(sT1)}, {s(sT1)}, 7\ns_mul_i32 {s(sQ[q])}, {s(sT1)}, {64*pitch}")
    P(f"s_mov_b32 {s(sT3)}, {f2u(1.0/512):#x}\ns_mov_b32 {s(sONE)}, 0x3f803f80")
    P(f"v_bfe_u32 {v(T)}, {v(vL)}, 2, 2\nv_lshrrev_b32 {v(T+1)}, 5, {v(vL)}")
    P(f"v_bfe_u32 {v(T+2)}, {v(vL)}, 4, 1\nv_lshlrev_b32 {v(T+2)}, 5, {v(T+2)}\nv_and_b32 {v(T+3)}, 3, {v(vL)}\nv_lshl_add_u32 {v(T+2)}, {v(T+3)}, 3, {v(T+2)}")
    P(f"v_and_b32 {v(T+4)}, 31, {v(vL)}\nv_bfe_u32 {v(T+5)}, {v(vL)}, 1, 3\nv_xor_b32 {v(T+5)}, {v(T+5)}, {v(T+1)}")
    P(f"s_lshl_b32 {s(sT0)}, {s(sW34)}, 12\nv_lshlrev_b32 {v(T+8)}, 7, {v(T+4)}\nv_add_u32 {v(T+8)}, {s(sT0)}, {v(T+8)}")
    P(f"v_lshl_add_u32 {v(T+9)}, {v(T+1)}, 3, {v(T)}\nv_lshl_add_u32 {v(T+10)}, {v(T+9)}, 7, {v(T+2)}\nv_lshrrev_b32 {v(T+7)}, 1, {v(T)}\nv_xor_b32 {v(T+7)}, {s(sHALF)}, {v(T+7)}\nv_lshl_add_u32 {v(T+10)}, {v(T+7)}, 6, {v(T+10)}")
    for p in range(4):
        P(f"s_xor_b32 {s(sT0)}, {s(sSIG)}, {p}\ns_lshl_b32 {s(sT1)}, {s(sT0)}, 1\nv_xor_b32 {v(T+6)}, {s(sT1)}, {v(T+5)}\nv_lshl_add_u32 {v(AX+p)}, {v(T+6)}, 4, {v(T+8)}")
        P(f"s_lshl_b32 {s(sT1)}, {s(sT0)}, 11\ns_add_u32 {s(sT1)}, {s(sT1)}, {RB}\nv_add_u32 {v(AW+p)}, {s(sT1)}, {v(T+10)}")
    if ffn:
        P(f"s_lshl_b32 {s(sT0)}, {s(sHALF)}, 5\nv_xor_b32 {v(T+7)}, {s(sT0)}, {v(T+2)}\nv_lshl_add_u32 {v(T+7)}, {v(T+9)}, 6, {v(T+7)}")
        for i, p in enumerate((0, 2)):
            P(f"s_xor_b32 {s(sT0)}, {s(sSIG)}, {p}\ns_lshl_b32 {s(sT0)}, {s(sT0)}, 10\nv_add_u32 {v(AB+i)}, {s(sT0)}, {v(T+7)}")
    P(f"v_lshlrev_b32 {v(T+4)}, 4, {v(T+4)}")
    P(f"s_lshl_b32 {s(sT0)}, {s(sHALF)}, 9\ns_add_u32 {s(sT0)}, {s(sT0)}, {L_CS}\nv_add_u32 {v(VCSA)}, {s(sT0)}, {v(T+4)}")
    P(f"s_lshl_b32 {s(sT0)}, {s(sW34)}, 9\ns_add_u32 {s(sT0)}, {s(sT0)}, {L_ST}\nv_add_u32 {v(VSTA)}, {s(sT0)}, {v(T+4)}")
    P(f"v_lshrrev_b32 {v(T+4)}, 2, {v(vL)}\nv_xor_b32 {v(T+4)}, {v(T+4)}, {v(vL)}\nv_and_b32 {v(T+4)}, 4, {v(T+4)}\nv_cmp_eq_u32 vcc, 0, {v(T+4)}\nv_mov_b32 {v(T+4)}, {s(sONE)}")
    for i in range(4): P(f"v_mov_b32 {v(PZ+i)}, -1")
    for r in (VZ, BAUG+3, AAUG+2, AAUG+3): P(f"v_mov_b32 {v(r)}, 0")
    for i in range(4): P(f"v_cndmask_b32 {v(SEL+i)}, 0, {v(T+4)}, vcc")
    P(f"s_lshl_b32 {s(sW34)}, {s(sW34)}, 2")
    if late1:
        for g_ in item1(1, pitch): P.add(g_)
    if OPT.get("stouch", "0") == "2": stouch()
    if V2:
        P(f"v_lshrrev_b32 {v(T)}, 4, {v(vL)}\nv_lshlrev_b32 {v(T+1)}, 2, {v(T)}\nv_and_b32 {v(T+2)}, 15, {v(vL)}\nv_xor_b32 {v(T+2)}, {v(T+2)}, {v(T+1)}\nv_lshlrev_b32 {v(T+2)}, 4, {v(T+2)}\nv_lshl_add_u32 {v(VB)}, {v(T)}, 10, {v(T+2)}")
        P(f"s_lshl_b32 {s(sT2)}, {s(sM)}, 1\ns_add_u32 {s(sT2)}, {s(sT2)}, {s(sHALF)}")
        P(f"s_lshl_b32 {s(sT0)}, {s(sN)}, 8\ns_lshl_b32 {s(sT1)}, {s(sW34)}, 10\ns_add_u32 {s(sT1)}, {s(sT1)}, {s(sT0)}")
        P(f"s_mul_i32 {s(sB2o)}, {s(sT2)}, {224*1024}\ns_add_u32 {s(sB2o)}, {s(sB2o)}, {s(sT1)}\ns_lshl_b32 {s(sBOo)}, {s(sT2)}, 16\ns_add_u32 {s(sBOo)}, {s(sBOo)}, {s(sT1)}")
        P(f"s_mul_i32 {s(sA0)}, {s(sT2)}, {14*1024}\ns_add_u32 {s(sA0)}, {s(sA0)}, {s(sHo)}\ns_lshl_b32 {s(sA1)}, {s(sT2)}, 12\ns_add_u32 {s(sA1)}, {s(sA1)}, {s(sHo)}\ns_add_u32 {s(sA1)}, {s(sA1)}, {112*1024}")
        P(f"s_lshl_b32 {s(sT1)}, {s(sRT)}, 4\ns_add_u32 {s(sT1)}, {s(sT1)}, {s(sT2)}\ns_lshl_b32 {s(sT1)}, {s(sT1)}, 7\ns_and_b32 {s(sFL)}, {s(sW)}, 2\ns_lshl_b32 {s(sFL)}, {s(sFL)}, 3\ns_add_u32 {s(sFL)}, {s(sFL)}, {s(sT1)}\ns_add_u32 {s(sFL)}, {s(sFL)}, {WS_FLG}")
        P(f"s_mul_i32 {s(sR4)}, {s(sN)}, 5\ns_lshr_b32 {s(sR4)}, {s(sR4)}, 1\ns_add_u32 {s(sR4)}, {s(sR4)}, {s(sRT)}\ns_and_b32 {s(sR4)}, {s(sR4)}, 7")
        P(f"s_lshl_b32 {s(sT2)}, {s(sT2)}, 5\ns_add_u32 {s(sN)}, {s(sT0)}, {s(sT2)}")
        P(f"s_lshl_b32 {s(sOo)}, {s(sRT)}, 17\ns_lshl_b32 {s(sT1)}, {s(sW34)}, 13\ns_add_u32 {s(sOo)}, {s(sOo)}, {s(sT1)}\ns_add_u32 {s(sOo)}, {s(sOo)}, {s(sN)}")
        P(f"s_and_b32 {s(sSH)}, {s(sW)}, 1\ns_lshl_b32 {s(sSH)}, {s(sSH)}, 1\ns_lshl_b32 {s(sSK)}, {s(sHALF)}, 1")
        if XRG:
            P(f"s_lshr_b32 {s(sT0)}, {s(sN)}, 8\ns_lshl_b32 {s(sT0)}, {s(sT0)}, 1\ns_add_u32 {s(sT0)}, {s(sT0)}, {s(sRT)}\ns_lshr_b32 {s(sT1)}, {s(sN)}, 7\ns_sub_u32 {s(sT1)}, {s(sT1)}, {s(sT0)}\ns_and_b32 {s(sT1)}, {s(sT1)}, 7\ns_lshl_b32 {s(sT1)}, {s(sT1)}, 4")
            P(f"s_lshr_b32 {s(sT0)}, {s(sN)}, 5\ns_and_b32 {s(sT0)}, {s(sT0)}, 3\ns_xor_b32 {s(sT0)}, {s(sT0)}, {s(sSIG)}\ns_lshl_b32 {s(sT0)}, {s(sT0)}, 2\ns_add_u32 {s(sWq)}, {s(sT1)}, {s(sT0)}")
        P(f"s_lshl_b32 {s(sMB)}, {s(sHALF)}, 13\ns_lshl_b32 {s(sT1)}, {s(sW34)}, 8\ns_add_u32 {s(sMB)}, {s(sMB)}, {s(sT1)}")
        if V5:
            P(f"s_lshr_b32 {s(sWq)}, {s(sN)}, 8\ns_lshl_b32 {s(sWq)}, {s(sWq)}, 2\ns_lshr_b32 {s(sW3)}, {s(sW34)}, 2\ns_add_u32 {s(sW3)}, {s(sW3)}, {s(sWq)}")
            P(f"s_lshl_b32 {s(sT0)}, {s(sHALF)}, 5\ns_sub_u32 {s(sBOo)}, {s(sN)}, {s(sT0)}\ns_lshl_b32 {s(sT0)}, {s(sHALF)}, 18\ns_add_u32 {s(sBOo)}, {s(sBOo)}, {s(sT0)}")
            P(f"s_lshl_b32 {s(sT0)}, {s(sHALF)}, 14\ns_add_u32 {s(sA1)}, {s(sHo)}, {s(sT0)}\ns_add_u32 {s(sA1)}, {s(sA1)}, {112*1024}")
        if V3:
            P(f"s_lshl_b32 {s(sT0)}, {s(sSH)}, 4\nv_xor_b32 {v(VB)}, {s(sT0)}, {v(VB)}")
            P(f"s_mul_i32 {s(sT0)}, {s(sHALF)}, {14*1024}\ns_sub_u32 {s(sA0)}, {s(sA0)}, {s(sT0)}\ns_lshl_b32 {s(sT0)}, {s(sHALF)}, 12\ns_sub_u32 {s(sA1)}, {s(sA1)}, {s(sT0)}")
            P(f"s_lshl_b32 {s(sT0)}, {s(sHALF)}, 7\ns_sub_u32 {s(sFL)}, {s(sFL)}, {s(sT0)}\ns_and_b32 {s(sT0)}, {s(sW)}, 2\ns_lshl_b32 {s(sT0)}, {s(sT0)}, 3\ns_add_u32 {s(sFL)}, {s(sFL)}, {s(sT0)}")
        return
    P(f"s_lshl_b32 {s(sT0)}, {s(sN)}, 7\ns_mul_i32 {s(sB2o)}, {s(sW)}, {224*1024}\ns_add_u32 {s(sB2o)}, {s(sB2o)}, {s(sT0)}")
    P(f"s_lshl_b32 {s(sBOo)}, {s(sW)}, 16\ns_add_u32 {s(sBOo)}, {s(sBOo)}, {s(sT0)}\ns_lshl_b32 {s(sM4)}, {s(sW)}, 12")
    P(f"s_lshl_b32 {s(sOo)}, {s(sM)}, 16\ns_lshl_b32 {s(sT1)}, {s(sW)}, 13\ns_add_u32 {s(sOo)}, {s(sOo)}, {s(sT1)}\ns_add_u32 {s(sOo)}, {s(sOo)}, {s(sT0)}")
    if OPT.get("r8", "1") == "1":
        P(f"s_mul_i32 {s(sT0)}, {s(sM)}, 5\ns_lshr_b32 {s(sT0)}, {s(sT0)}, 1\ns_sub_u32 {s(sN)}, {s(sN)}, {s(sM)}\ns_add_u32 {s(sR4)}, {s(sN)}, {s(sT0)}\ns_add_u32 {s(sN)}, {s(sN)}, {s(sM)}")
    else: P(f"s_mov_b32 {s(sR4)}, {s(sN)}")
    P(f"s_add_u32 {s(sR4)}, {s(sM)}, {s(sR4)}\ns_and_b32 {s(sR4)}, {s(sR4)}, {0 if OPT.get('norot') else 7}\ns_and_b32 {s(sSH)}, {s(sW)}, 1\ns_lshl_b32 {s(sSH)}, {s(sSH)}, 1")
    P(f"s_lshr_b32 {s(sT0)}, {s(sM)}, 1\ns_lshl_b32 {s(sT0)}, {s(sT0)}, 4\ns_add_u32 {s(sT0)}, {s(sT0)}, {s(sW)}\ns_lshl_b32 {s(sT0)}, {s(sT0)}, 7")
    P(f"s_and_b32 {s(sT1)}, {s(sM)}, 1\ns_lshl_b32 {s(sT1)}, {s(sT1)}, 4\ns_add_u32 {s(sT0)}, {s(sT0)}, {s(sT1)}\ns_add_u32 {s(sFL)}, {s(sT0)}, {WS_FLG}")
    P(f"s_mul_i32 {s(sA0)}, {s(sM)}, {2*HF_RB}\ns_mul_i32 {s(sT0)}, {s(sW)}, {14*1024}\ns_add_u32 {s(sA1)}, {s(sA0)}, {s(sM4)}\ns_add_u32 {s(sA1)}, {s(sA1)}, {112*1024}\ns_add_u32 {s(sA0)}, {s(sA0)}, {s(sT0)}")

class Sched:
    def __init__(self, n):
        self.n = n; self.pre = [[] for _ in range(n)]; self.post = [[] for _ in range(n)]
        self.fill = [[] for _ in range(n)]; self.dma = [[] for _ in range(n)]; self.blk = {}
    def spread(self, lst, a, b):
        for i in range(a, b): self.fill[i] += lst[len(lst)*(i-a)//(b-a): len(lst)*(i+1-a)//(b-a)]
    def dmas(self, groups, a, step=1):
        for i, g in enumerate(groups): self.dma[a + i*step] += g

def rd(G):
    b = WF + 4 * (G & 3)
    if G < 96:
        ks = G & 31; st, p = ks >> 2, ks & 3
        L = [f"ds_read_b128 {v(XF+4*ks,4)}, {v(AX+p)} offset:{RA+(st&3)*16384}"] if G < 32 else []
        if ks < 4 and G >= 32: L.append(f"v_xor_b32 {v(AW+p)}, {RB}, {v(AW+p)}")
        return L + [f"ds_read_b64_tr_b16 {v(b+2*t,2)}, {v(AW+p)} offset:{8192*st+512*t}" for t in range(2)]
    i = G - 96
    return [f"ds_read_b64_tr_b16 {v(b+2*t,2)}, {v(AB+(i&1))} offset:{4096*(i>>1)+256*t}" for t in range(2)]
def xq(G): return XF + 4 * (G & 31) if G < 96 else XF + 8 * (G - 96)

def common_sched(S, ffn, accs, MC):
    pitch = 3584 if ffn else 3072
    tp = "f" if ffn else "a"
    c1, c2 = (128, 256) if ffn else (2048, 0)
    S.dmas(item1(2, pitch), 0, 0)
    for st in range(8):
        G = 4 * st + 2
        S.pre[G] += [f".waitvm it{st+1}" if st < 7 else ".waitvm w1q0 lgkm0", "s_barrier"]
        if st <= 4: S.dmas(item1(st + 3, pitch), G)
        else: S.dmas(wquarter(RA, st - 5, c1, pitch, f"w1q{st-5}"), G)
    def m4(d, r, c=None): return f"v_mfma_f32_4x4x4_16b_bf16 {v(d,4)}, {v(r,2)}, {v(r,2)}, {v(d,4) if c is None else c}"
    Q0, Q1 = T + 8, T + 16
    for f in range(0, 32, 2):
        x = XF + 4 * f; a = max(f - 1, 0); c = "0" if f == 0 else None
        if OPT.get("hyb", "0") == "1":
            b = f if f < 30 else 29
            S.post[a] += [m4(Q0, x, c), m16(MS, SEL, x, c)]
            for r, G in ((x + 2, a), (x + 3, b)):
                S.post[G] += [f"v_and_b32 {v(Q1+2)}, 0xffff0000, {v(r)}", f"v_lshlrev_b32 {v(Q1+3)}, 16, {v(r)}",
                              f"v_fmac_f32 {v(Q1)}, {v(Q1+2)}, {v(Q1+2)}", f"v_fmac_f32 {v(Q1+1)}, {v(Q1+3)}, {v(Q1+3)}"]
        else: S.post[a] += [m4(Q0, x, c), m4(Q1, x + 2, c), m16(MS, SEL, x, c)]
    S.post[28] += [f"v_and_b32 {v(S1)}, 3, {v(vL)}", f"v_cmp_eq_u32 {s(sEX,2)}, 1, {v(S1)}", f"s_lshl_b32 {s(sT0)}, {s(sHALF)}, 3",
                   f"v_add_u32 {v(T)}, {s(sT0)}, {v(VSTA)}"]
    if OPT.get("hyb", "0") == "1":
        S.pre[0] += [f"v_mov_b32 {v(Q1)}, 0", f"v_mov_b32 {v(Q1+1)}, 0"]
        S.post[29] += [f"v_add_f32 {v(Q1)}, {v(Q1)}, {v(Q1+1)}"]
    else: S.post[29] += [f"v_add_f32 {v(Q0+i)}, {v(Q0+i)}, {v(Q1+i)}" for i in range(4)]
    S.post[29] += [f"v_cmp_eq_u32 vcc, 2, {v(S1)}", f"v_cndmask_b32 {v(S2)}, {v(Q0)}, {v(Q0+1)}, {s(sEX,2)}", f"v_cmp_eq_u32 {s(sEX,2)}, 3, {v(S1)}",
                   f"v_cndmask_b32 {v(S2)}, {v(S2)}, {v(Q0+2)}, vcc", f"v_cndmask_b32 {v(S2)}, {v(S2)}, {v(Q0+3)}, {s(sEX,2)}"] + ([f"v_add_f32 {v(S2)}, {v(S2)}, {v(Q1)}"] if OPT.get("hyb", "0") == "1" else []) + [
                   f"v_mov_b32 {v(S1)}, {v(S2)}", f"v_permlane32_swap_b32 {v(S1)}, {v(S2)}",
                   f"v_add_f32 {v(MS+1)}, {v(S1)}, {v(S2)}", f"ds_write_b64 {v(T)}, {v(MS,2)}"]
    S.post[30] += [f"ds_read_b128 {v(MS,4)}, {v(VSTA)}"]
    for ps in range(3):
        for st in range(8):
            G = 32 * ps + 4 * st
            S.post[G] += [m16(MC, SEL, WF + 4 * (G & 3), "0" if st == 0 else None)]
        S.post[32*ps + 29] += [f"v_add_u32 {v(MC+1)}, {s(sW34)}, {v(VCSA)}", f"ds_write_b32 {v(MC+1)}, {v(MC)} offset:{1024*ps}"]
    FEW = OPT.get("few", "1") == "1"
    if FEW: S.pre[38] += [".waitvm w1q3", "s_barrier"]
    else:
        for q in (1, 2, 3): S.pre[32 + 8*q - 2] += [f".waitvm w1q{q}", "s_barrier"]
    w2 = sum([wquarter(RB, q, c2, pitch, "w2") for q in range(4)], [])
    for g_, G in zip(wquarter(RA, 3, c1, pitch, "w1q3") + w2, [int(x) for x in OPT.get("w2g", "32,33,35,37,38,40,41,43,44,46").split(",")]): S.dma[G] += g_
    S.pre[62] += [".waitvm w2 lgkm0", "s_barrier"]
    for G in ((int(OPT.get("fb", 82)),) if ffn else (() if OPT.get("asy", "0") == "1" else (int(OPT.get("ab", 86)),))): S.pre[G] += ["s_barrier"]
    if ffn:
        S.post[int(OPT.get("f1", 90))] += flag(1, "h1")
        S.post[int(OPT.get("p1", 99))] += [spoll(0)]; S.blk[("e", int(OPT.get("c1", 105)))] = lambda: (sneed(1, 0), None if V5 else P(spoll(1)))
    else:
        S.post[int(OPT.get("fa", 80))] += flag(1, "po")
    if OPT.get("l2t", "0") == "1":
        tg = [int(x) for x in OPT.get("l2gf" if ffn else "l2ga", "52,62,66,70,74" if ffn else "48,52,56,60,64").split(",")]
        DUM = VX0 if False else VW0
        for j in range(5):
            if j < 3:
                L = [f"s_lshr_b32 {s(sT0)}, s2, 3", f"s_mul_i32 {s(sT0)}, {s(sT0)}, 3", f"s_lshl_b32 {s(sT1)}, {s(sSH)}, 4", f"s_add_u32 {s(sT0)}, {s(sT0)}, {s(sT1)}",
                     f"s_add_u32 {s(sT0)}, {s(sT0)}, {128+j}", f"s_sub_u32 {s(sT1)}, {s(sT0)}, 224", f"s_min_u32 {s(sT0)}, {s(sT0)}, {s(sT1)}",
                     f"s_mul_i32 {s(sT1)}, {s(sW)}, 224", f"s_add_u32 {s(sT0)}, {s(sT0)}, {s(sT1)}", f"s_lshl_b32 {s(sT0)}, {s(sT0)}, 10",
                     f"buffer_load_dword {v(VTD)}, {v(VL16)}, {s(SW2,4)}, {s(sT0)} offen ; nodef"]
            else:
                L = [f"s_lshr_b32 {s(sT0)}, s2, 3", f"s_lshl_b32 {s(sT0)}, {s(sT0)}, 11", f"s_lshl_b32 {s(sT1)}, {s(sW)}, 16", f"s_add_u32 {s(sT0)}, {s(sT0)}, {s(sT1)}",
                     f"buffer_load_dword {v(VTD)}, {v(VL16)}, {s(SWO,4)}, {s(sT0)} offen offset:{1024*(j-3)} ; nodef"]
            S.dma[tg[j]] += L
    if (OPT.get("touch", "5") == "5" and not ffn) or (OPT.get("touch") == "6" and ffn):
        tg = [int(x) for x in OPT.get("tgs", "54,56,58,60,62").split(",")]
        gw = [f"s_and_b32 {s(sT0)}, {s(sRT)}, 7", f"s_lshl_b32 {s(sT0)}, {s(sT0)}, 1", f"s_and_b32 {s(sT1)}, {s(sG)}, 1", f"s_add_u32 {s(sT0)}, {s(sT0)}, {s(sT1)}",
              f"s_lshl_b32 {s(sT0)}, {s(sT0)}, 3", f"s_add_u32 {s(sK)}, {s(sT0)}, {s(sW)}"]
        for j in range(4):
            S.dma[tg[j]] += (gw if j == 0 else []) + [f"s_add_u32 {s(sT0)}, {s(sK)}, {128*j}", f"s_min_u32 {s(sT0)}, {s(sT0)}, 447", f"s_mul_i32 {s(sT1)}, {s(sM)}, 448", f"s_add_u32 {s(sT0)}, {s(sT0)}, {s(sT1)}",
                                  f"s_lshl_b32 {s(sT0)}, {s(sT0)}, 10", f"buffer_load_dword {v(VTD)}, {v(VL16)}, {s(SW2,4)}, {s(sT0)} offen ; nodef"]
        if V5: S.dma[tg[4]] += [f"s_lshl_b32 {s(sT0)}, {s(sK)}, 12", f"s_and_b32 {s(sT1)}, {s(sM)}, 2", f"s_lshl_b32 {s(sT1)}, {s(sT1)}, 6", f"s_add_u32 {s(sT0)}, {s(sT0)}, {s(sT1)}",
                         f"v_and_b32 {v(S1)}, 15, {v(vL)}", f"v_lshlrev_b32 {v(S1)}, 8, {v(S1)}", f"buffer_load_dword {v(VTD)}, {v(S1)}, {s(SWO,4)}, {s(sT0)} offen ; nodef"]
        else: S.dma[tg[4]] += [f"s_lshl_b32 {s(sT1)}, {s(sM)}, 7", f"s_add_u32 {s(sT0)}, {s(sK)}, {s(sT1)}",
                         f"s_lshl_b32 {s(sT0)}, {s(sT0)}, 10", f"buffer_load_dword {v(VTD)}, {v(VL16)}, {s(SWO,4)}, {s(sT0)} offen ; nodef"]
        S.dma[tg[4]] += [f"buffer_load_dword {v(VTD)}, {v(VL16)}, {s(SB2,4)}, 0 offen ; nodef"]
        if OPT.get("t3", "0") == "1":
            S.dma[int(OPT.get("t3g", 49))] += gw + [f"s_mul_i32 {s(sT0)}, {s(sK)}, {4*3584}", f"s_mul_i32 {s(sT1)}, {s(sM)}, 896", f"s_add_u32 {s(sT0)}, {s(sT0)}, {s(sT1)}",
                f"v_and_b32 {v(VTD)}, 3, {v(vL)}", f"v_mul_u32_u24 {v(VTD)}, 3584, {v(VTD)}", f"buffer_load_dword {v(VTD)}, {v(VTD)}, {s(SAUX,4)}, {s(sT0)} offen offset:384 ; nodef"]
    if OPT.get("touch") == "4":
        tg = [int(x) for x in OPT.get("tgs", "47,49,52").split(",")]
        gw = [f"s_and_b32 {s(sT0)}, s2, 0xf8", f"s_add_u32 {s(sT0)}, {s(sT0)}, {s(sW)}"]
        for j in range(2):
            S.dma[tg[j]] += gw + [f"s_add_u32 {s(sT0)}, {s(sT0)}, {256*j}", f"s_min_u32 {s(sT0)}, {s(sT0)}, 447", f"s_mul_i32 {s(sT1)}, {s(sM)}, 448", f"s_add_u32 {s(sT0)}, {s(sT0)}, {s(sT1)}",
                                  f"s_lshl_b32 {s(sT0)}, {s(sT0)}, 10", f"buffer_load_dword {v(VTD)}, {v(VL16)}, {s(SW2,4)}, {s(sT0)} offen ; nodef"]
        S.dma[tg[2]] += gw + [f"s_lshr_b32 {s(sT0)}, {s(sT0)}, 1", f"s_lshl_b32 {s(sT1)}, {s(sM)}, 7", f"s_add_u32 {s(sT0)}, {s(sT0)}, {s(sT1)}",
                              f"s_lshl_b32 {s(sT0)}, {s(sT0)}, 10", f"buffer_load_dword {v(VTD)}, {v(VL16)}, {s(SWO,4)}, {s(sT0)} offen ; nodef"]
    if OPT.get("touch", "5") == "3":
        def mtouch():
            n0 = len(P.ins)
            P(f"s_cmp_lt_u32 {s(sW)}, 6")
            P(f"s_cbranch_scc1 L_mt{tp}")
            P.cond_begin("w67")
            P(f"v_lshlrev_b32 {v(T+1)}, 7, {v(vL)}\ns_mul_i32 {s(sT0)}, s2, 7168\ns_lshl_b32 {s(sT1)}, s2, 11")
            P(f"s_cmp_eq_u32 {s(sW)}, 6\ns_cbranch_scc0 L_mta{tp}")
            P(f"buffer_load_dword {v(T+2)}, {v(T+1)}, {s(SW2,4)}, {s(sT0)} offen")
            P(f"s_branch L_mt{tp}")
            P(f"L_mta{tp}:")
            P(f"v_and_b32 {v(T+1)}, 2047, {v(T+1)}")
            P(f"buffer_load_dword {v(T+2)}, {v(T+1)}, {s(SWO,4)}, {s(sT1)} offen")
            P(f"buffer_load_dword {v(T+3)}, {v(T+1)}, {s(SB2,4)}, 0 offen")
            P.cond_end()
            P(f"L_mt{tp}:")
        S.blk[("e", int(OPT.get("tg", 5)))] = mtouch
    if OPT.get("wt", "2") == "2":
        S.dma[int(OPT.get("wg", 5))] += [f"v_mul_u32_u24 {v(T+1)}, {pitch}, {v(vL)}", f"buffer_load_dword {v(T+2)}, {v(T+1)}, {s(SWT,4)}, {s(sCNT)} offen"]
    if XRG:
        xd = PZ if ffn else SEL
        S.post[93] += [f"s_set_gpr_idx_on {s(sWq)}, gpr_idx(SRC0)", "s_nop 0"] + [f"v_mov_b32 {v(xd+i)}, {v(XF+i)}" for i in range(4)] + ["s_set_gpr_idx_off"]
    if V5: S.post[92] += vbo_init
    def announce():
        P(f"s_lshl_b32 {s(sT0)}, {s(sW)}, 8\ns_add_u32 {s(sT0)}, {s(sT0)}, s2\ns_sub_u32 {s(sT0)}, {s(sT0)}, 256\ns_cmp_lt_u32 {s(sT0)}, 8")
        P(f"s_cbranch_scc0 L_nd")
        P.cond_begin("zw")
        P(".waitvm zf")
        P(f"s_lshl_b32 {s(sT0)}, s2, 2\nv_mov_b32 {v(VFV)}, 1")
        P(f"buffer_store_dword {v(VFV)}, {v(VZ)}, {s(SDBG,4)}, {s(sT0)} offen sc1")
        P.cond_end()
        P(f"L_nd:")
    if not ffn: S.blk[3] = announce
    ld = f"v_and_b32 {v(VX0)}, 28, {v(vL)}\nbuffer_load_dword {v(VX0)}, {v(VX0)}, {s(SDBG,4)}, 0 offen sc1"
    def poll0():
        P(f"s_cmp_eq_u32 {s(sW)}, 7"); P(f"s_cbranch_scc0 L_np{tp}")
        P.cond_begin("w7")
        P(ld)
        P.cond_end(); P(f"L_np{tp}:")
    def check0():
        P(f"s_cmp_eq_u32 {s(sW)}, 7"); P(f"s_cbranch_scc0 L_nc{tp}")
        P.cond_begin("w7")
        P(f"v_mov_b32 {v(VX0)}, {v(VX0)}")
        spin(f"L_ncs{tp}", ld, f"v_cmp_ne_u32 vcc, 1, {v(VX0)}")
        P.cond_end(); P(f"L_nc{tp}:")
    S.blk[39] = poll0; S.blk[62] = check0

def run_sched(S, accs):
    P(".waitvm it0")
    P("s_barrier")
    stamp("it0")
    P.add(rd(0)); P.add(rd(1))
    for G in range(S.n):
        stamp(f"g{G}")
        if G in S.blk: S.blk[G]()
        late = OPT.get("bam", "1") == "1" and G >= 32
        if not late: P.add(S.pre[G])
        if OPT.get("prio", "2") == "1": P(f"s_setprio {3 - ((G + 2) & 3)}")
        if OPT.get("prio", "2") == "2" and (G < 32 or G % 2 == 0): P(f"s_setprio {3 - ((G + 2) & 3) if G < 32 else 3 - ((G >> 1) & 3)}")
        first = G in (0, 32, 64, 96)
        P(mfma(accs[G >> 5], WF + 4 * (G & 3), xq(G), "0" if first else None))
        if late: P.add(S.pre[G])
        if G + 2 < S.n: P.add(rd(G + 2))
        P.add(S.post[G]); P.add(S.fill[G]); P.add(S.dma[G])
        if ("e", G) in S.blk: S.blk[("e", G)]()
    P("s_setprio 0")

AC = 64; NAF = 8
def AFq(kk, rb): return XF + 4 + 8 * (2 * (kk % NAF) + rb)
def BTq(kk, nb): return XF + 8 * (2 * (kk & 3) + nb)
BA = 2
VXR, VRED = 9, 10
VWR = 20
XR, B2R = 32, 36
def AF2(kk): return XF + 4 + 8 * (kk % 16)
def BT2(kk, nb): return XF + 8 * (4 * (kk & 1) + nb)
def xoff(j, send):
    return ([f"s_xor_b32 {s(sT0)}, s2, {j}", f"s_mul_i32 {s(sT0)}, {s(sT0)}, {3*8192}"] if send else [f"s_mul_i32 {s(sT0)}, s2, {3*8192}"]) + \
           [f"s_lshl_b32 {s(sT1)}, {s(sW)}, 10", f"s_add_u32 {s(sT0)}, {s(sT0)}, {s(sT1)}", f"s_add_u32 {s(sT0)}, {s(sT0)}, {WS_X + (j-1)*8192}"]
VA3 = 14
def AF3(st, sh):
    if st < 8: return XF + 4 + 8 * (2 * st + sh)
    if st < 12: return XF + 64 + 8 * (2 * (st - 8) + sh)
    if st < 16: return 96 + 4 * (2 * (st - 12) + sh)
    return XF + 4 + 8 * (2 * (st - 16) + sh)
va3_init = lines(f"v_and_b32 {v(VA3)}, 15, {v(vL)}\nv_lshlrev_b32 {v(VA3)}, 4, {v(VA3)}\nv_lshrrev_b32 {v(T+19)}, 4, {v(vL)}\nv_lshl_add_u32 {v(VA3)}, {v(T+19)}, 9, {v(VA3)}")
def a_jobs(kk):
    if V3:
        sg, gm = kk >> 1, kk & 1
        so, gs = (sA0, 14 * 1024) if sg < 7 else (sA1, 4096)
        return [rot_p(sg, sD1, gm) + [f"s_lshl_b32 {s(sD1)}, {s(sD1)}, 11", f"s_add_u32 {s(sD1)}, {s(sD1)}, {s(so)}"] + ([f"s_add_u32 {s(sD1)}, {s(sD1)}, {gs}"] if gm else []) +
                [f"buffer_load_dwordx4 {v(AF3(kk,0),4)}, {v(VA3)}, {s(SWS,4)}, {s(sD1)} offen sc1"],
                [f"buffer_load_dwordx4 {v(AF3(kk,1),4)}, {v(VA3)}, {s(SWS,4)}, {s(sD1)} offen offset:256 sc1"]]
    so = sA0 if kk < 14 else sA1
    if V2: return [rot_k(kk, sD1) + [f"s_lshl_b32 {s(sD1)}, {s(sD1)}, 10", f"s_add_u32 {s(sD1)}, {s(sD1)}, {s(so)}",
             f"buffer_load_dwordx4 {v(AF2(kk),4)}, {v(VL16)}, {s(SWS,4)}, {s(sD1)} offen sc1"] +
             ([f"s_xor_b32 {s(sD1)}, {s(sD1)}, 0x8000", f"buffer_load_dwordx4 v[252:255], {v(VL16)}, {s(SWS,4)}, {s(sD1)} offen sc1 ; nodef"] if OPT.get("dbla") and kk != 15 else [])]
    return [rot_k(kk, sD1) + [f"s_lshl_b32 {s(sD1)}, {s(sD1)}, 10", f"s_add_u32 {s(sD1)}, {s(sD1)}, {s(so)}",
             f"buffer_load_dwordx4 {v(AFq(kk,0),4)}, {v(VL16)}, {s(SWS,4)}, {s(sD1)} offen sc1"],
            [f"s_add_u32 {s(sD1)}, {s(sD1)}, {HF_RB}",
             f"buffer_load_dwordx4 {v(AFq(kk,1),4)}, {v(VL16)}, {s(SWS,4)}, {s(sD1)} offen sc1"]]
def vcheck(regs, t):
    L = [f"v_max3_u32 {v(t)}, {v(regs[0])}, {v(regs[1])}, {v(regs[2])}"]; r = regs[3:]
    while len(r) >= 2: L.append(f"v_max3_u32 {v(t)}, {v(t)}, {v(r[0])}, {v(r[1])}"); r = r[2:]
    if r: L.append(f"v_max_u32 {v(t)}, {v(t)}, {v(r[0])}")
    return L + [f"v_cmp_eq_u32 vcc, -1, {v(t)}"]
SLOW = []
def validate(regs, t, reload):
    lb = P.lab("L_v")
    P.add(vcheck(regs, t))
    P(f"s_cbranch_vccnz {lb}_slow")
    P(f"{lb}_back:")
    dbg = [f"s_add_u32 {s(sST+2*STI['slow'])}, {s(sST+2*STI['slow'])}, {1 << len(SLOW)}"] if STAMP and "slow" in STI else []
    SLOW.append([f"{lb}_slow:"] + dbg + [f"s_mov_b32 {s(sCNT)}, 0", f"{lb}_loop:", "s_sleep 2"] + reload + ["s_waitcnt vmcnt(0)"] + vcheck(regs, t) +
                [f"s_add_u32 {s(sCNT)}, {s(sCNT)}, 1", f"s_cbranch_vccz {lb}_back", f"s_cmp_gt_u32 {s(sCNT)}, {SPIN_MAX}",
                 f"s_cbranch_scc0 {lb}_loop", f"s_branch {lb}_back"])
def flush_slow():
    for blk in SLOW:
        P(".reset"); P.add(blk)
    SLOW.clear()
def spoll(o):
    x = f"s_buffer_load_dwordx4 {s(sPL,4)}, {s(SWS,4)}, {s(sFL)} offset:{0 if o else 1024} glc"
    if V3: x = f"s_buffer_load_dwordx8 {s(sPL,8)}, {s(SWS,4)}, {s(sFL)} offset:{0 if o else 1024} glc"
    return x
def sneed(level, o):
    lb = P.lab("L_sp")
    P(f"s_mov_b32 {s(sCNT)}, 0")
    P(f"{lb}:")
    P("s_waitcnt lgkmcnt(0)")
    P(f"s_min_u32 {s(sPL)}, {s(sPL)}, {s(sPL+1)}\ns_min_u32 {s(sPL+2)}, {s(sPL+2)}, {s(sPL+3)}\ns_min_u32 {s(sPL)}, {s(sPL)}, {s(sPL+2)}")
    if V3:
        for i in range(4, 8): P(f"s_min_u32 {s(sPL)}, {s(sPL)}, {s(sPL+i)}")
    P(f"s_cmp_ge_u32 {s(sPL)}, {level}")
    P(f"s_cbranch_scc1 {lb}_ok")
    P(f"s_add_u32 {s(sCNT)}, {s(sCNT)}, 1\ns_cmp_gt_u32 {s(sCNT)}, {SPIN_MAX}")
    P(f"s_cbranch_scc1 {lb}_ok")
    P("s_sleep 1")
    for x in spoll(o).split("\n"):
        I = Ins(x); I.kind = "salu"; P.ins.append(I)
    P(f"s_branch {lb}")
    P(f"{lb}_ok:")
def own_check():
    lb = P.lab("L_oc")
    P(f"s_mov_b32 {s(sCNT)}, 0")
    P(f"{lb}:")
    P("s_waitcnt lgkmcnt(0)")
    P(f"s_cmp_ge_u32 {s(sK)}, 1")
    P(f"s_cbranch_scc1 {lb}_ok")
    P(f"s_add_u32 {s(sCNT)}, {s(sCNT)}, 1\ns_cmp_gt_u32 {s(sCNT)}, {SPIN_MAX}")
    P(f"s_cbranch_scc1 {lb}_ok")
    P("s_sleep 1")
    I = Ins(f"s_buffer_load_dword {s(sK)}, {s(SWS,4)}, {s(sT2)} glc"); I.kind = "salu"; P.ins.append(I)
    P(f"s_branch {lb}")
    P(f"{lb}_ok:")
def b_reads(kk):
    slot = kk % 9
    var, off = (KAREA[slot] >> 16), KAREA[slot] & 0xffff
    return [f".waitvm b{kk}"] + [f"ds_read_b64_tr_b16 {v(BTq(kk,nb)+2*tt,2)}, {v(BA+2*var+nb)} offset:{off+1024*tt}" for nb in range(2) for tt in range(2)]
def finish(ffn):
    if OPT.get("echo") and OPT.get("echot", "fa").find("f" if ffn else "a") < 0: pass
    elif OPT.get("echo"):
        a_, b_ = [STI[x] for x in OPT["echo"].split(",")]
        lb = P.lab("L_echo")
        stamp("end")
        P("s_waitcnt lgkmcnt(0)")
        P(f"s_sub_u32 {s(sT0)}, {s(sST+2*b_)}, {s(sST+2*a_)}")
        if STAMP == 2:
            P(f"s_lshr_b32 {s(sT0)}, {s(sT0)}, 4\ns_memrealtime {s(sST+22,2)}\ns_waitcnt lgkmcnt(0)")
        P(f"s_min_u32 {s(sT0)}, {s(sT0)}, 10000")
        P(f"{lb}:")
        P(f"s_memrealtime {s(sEX,2)}")
        P("s_waitcnt lgkmcnt(0)")
        P(f"s_sub_u32 {s(sT1)}, {s(sEX)}, {s(sST+22)}\ns_cmp_lt_u32 {s(sT1)}, {s(sT0)}\ns_cbranch_scc1 {lb}")
    elif STAMP:
        stamp("end")
        P("s_waitcnt lgkmcnt(0)")
        P(f"s_lshl_b32 {s(sT0)}, s2, 3\ns_add_u32 {s(sT0)}, {s(sT0)}, {s(sW)}\ns_lshl_b32 {s(sT0)}, {s(sT0)}, 6\ns_add_u32 {s(sT0)}, {s(sT0)}, {WS_STAMP}")
        P(f"v_mov_b32 v2, 0\ns_mov_b64 exec, 1")
        for i in range(12):
            P(f"v_mov_b32 v3, {s(sST+2*i)}\nbuffer_store_dword v3, v2, {s(SWS,4)}, {s(sT0)} offen offset:{4*i}")
    P("s_endpgm")
    flush_slow()

def phase2_v2(bleft, ffn):
    BAR = [2, 3, 4, 5, 6, 7, 8, 9, 10, 11, 14, 15]; VX = 16
    WB = [20, 21, 22]; RBs = [23, 24, 25]; PX = BAUG
    t = T + 8
    XR, B2R = (SEL, AAUG) if XRG else (32, 36)
    if XRG and ffn:
        for i in range(4): P(f"v_mov_b32 {v(SEL+i)}, {v(PZ+i)}")
    P(f"v_bfe_u32 {v(t)}, {v(vL)}, 2, 2\nv_lshrrev_b32 {v(t+1)}, 5, {v(vL)}\nv_and_b32 {v(t+2)}, 63, {v(AW)}\ns_lshl_b32 {s(sT0)}, {s(sHALF)}, 5\nv_xor_b32 {v(t+2)}, {s(sT0)}, {v(t+2)}")
    P(f"v_lshl_add_u32 {v(t+3)}, {v(t+1)}, 2, {v(t)}\nv_lshl_add_u32 {v(t+3)}, {v(t+3)}, 8, {v(t+2)}\ns_lshl_b32 {s(sT0)}, {s(sHALF)}, 13\nv_add_u32 {v(t+3)}, {s(sT0)}, {v(t+3)}")
    P(f"v_xor_b32 {v(t)}, {s(sM)}, {v(t)}\nv_lshl_add_u32 {v(BAR[0])}, {v(t)}, 6, {v(t+3)}")
    for nb in range(1, 4): P(f"v_xor_b32 {v(BAR[nb])}, {64*nb}, {v(BAR[0])}")
    for rg in (2, 1):
        for nb in range(4): P(f"v_add_u32 {v(BAR[4*rg+nb])}, {65536*rg}, {v(BAR[nb])}")
    LP = int(OPT.get("lp", 2))
    SQ = int(OPT.get("sq", 12))
    seq = [(kk, nb) for kk in range(SQ) for nb in range(4) if nb or kk < LP]
    done_at = {}
    for nb in (1, 2, 3):
        seq += [(kk, nb) for kk in range(SQ, 18)]; done_at[nb] = len(seq)
    seq += [(kk, 0) for kk in range(LP, 18)]
    D = 4
    def bq(i): return XF + 8 * (i & 7)
    def br(i):
        kk, nb = seq[i]; a = KAREA[kk >> 1]
        return [f"ds_read_b64_tr_b16 {v(bq(i)+2*tt,2)}, {v(BAR[4*(a>>16)+nb])} offset:{(a&0xffff)+(kk&1)*4096+2048*tt}" for tt in range(2)]
    def val(kk):
        if not (NP and kk < 14): validate([AF2(kk) + i for i in range(4)], T + 16, a_jobs(kk)[0])
    for i in range(D): P.add(br(i))
    val(0)
    stamp("hseen")
    first = {}
    for i, (kk, nb) in enumerate(seq): first.setdefault(kk, i)
    ev = {}
    def at(i, x): ev.setdefault(i, []).append(x)
    sh = 8 - LP
    a8, a14 = int(OPT.get("a8", 14)), int(OPT.get("a14", 30 - sh))
    for i, g_ in enumerate(sum([b_dma(k2) for k2 in bleft], [])): at(int(OPT.get('bst', 1)) * i + (0 if ffn else int(OPT.get('b0a', 0))), g_)
    gates = {}
    if NP:
        if ffn:
            g2i = int(OPT.get("g2", 7)); a8 = int(OPT.get("g3f", 23 - sh))
            at(0, [spoll(0)]); gates[g2i] = 2
            for k2 in range(4, 8): at(g2i + k2 - 4, a_jobs(k2)[0])
            at(int(OPT.get("f3", 5)), flag(3, "h4"))
            a14 = max(a14, a8 + 6)
        else:
            a8 = int(OPT.get("g3a", 18 - sh // 2)); g2i = int(OPT.get("g2a", 2)); gates[g2i] = 2
            for k2 in range(4, 8): at(g2i + k2 - 4, a_jobs(k2)[0])
        at(a8 - int(OPT.get("gl", 4)), [spoll(0)]); gates[a8] = 3
    ast = int(OPT.get('ast', 1))
    ea = 0 if ffn or NP else int(OPT.get('ea', 0))
    for k2 in range(8 + ea, 14): at(a8 + ast * (k2 - 8), a_jobs(k2)[0])
    if ea and OPT.get('a14a'): a14 = int(OPT['a14a'])
    for k2 in range(14, 18): at(a14 + ast * (k2 - 14), a_jobs(k2)[0])
    F = T + 8
    at(9, lines(f"v_and_b32 {v(T+17)}, 31, {v(vL)}\nv_lshrrev_b32 {v(T+18)}, 5, {v(vL)}\nv_lshlrev_b32 {v(T+18)}, 4, {v(T+18)}\nv_lshl_add_u32 {v(VX)}, {v(T+17)}, 10, {v(T+18)}") +
          ([] if XRG else [f"buffer_load_dwordx4 {v(XR,4)}, {v(VX)}, {s(SX,4)}, {s(sOo)} offen"]) + [f"buffer_load_dwordx4 {v(B2R,4)}, {v(T+18)}, {s(SB2,4)}, {s(sN)} offen"])
    at(24, lines(f"v_add_u32 {v(WB[0])}, {s(sM0x)}, {v(VL16)}\nv_xor_b32 {v(RBs[0])}, 8192, {v(WB[0])}") +
           sum([[f"v_add_u32 {v(WB[rg])}, {65536*rg}, {v(WB[0])}", f"v_add_u32 {v(RBs[rg])}, {65536*rg}, {v(RBs[0])}"] for rg in (1, 2)], []))
    for i in range(4):
        at(40 + i, lines(f"v_lshlrev_b32 {v(F+2*i)}, 16, {v(XR+i)}\nv_and_b32 {v(F+2*i+1)}, 0xffff0000, {v(XR+i)}\nv_lshlrev_b32 {v(T+4)}, 16, {v(B2R+i)}\nv_and_b32 {v(T+5)}, 0xffff0000, {v(B2R+i)}\nv_add_f32 {v(F+2*i)}, {v(F+2*i)}, {v(T+4)}\nv_add_f32 {v(F+2*i+1)}, {v(F+2*i+1)}, {v(T+5)}"))
    px1 = OPT.get("px1") == "1" or (bool(OPT.get("pxa", "1")) and not ffn)
    if not px1:
        pxi = int(OPT.get("pxi", (12 if ffn else a8 + 6) if NP else a8 + 6))
        if not ffn and OPT.get("pxia"): pxi = int(OPT["pxia"])
        at(pxi - 1, [f"v_mov_b32 {v(PX+i)}, -1" for i in range(4)])
        for j in (1, 2, 3): at(pxi + (j - 1) * int(OPT.get("pxs", 1)), xoff(j, True) + [f"buffer_store_dwordx4 {v(PX,4)}, {v(VL16)}, {s(SWS,4)}, {s(sT0)} offen sc1 ; tag=px"])
    at(int(OPT.get("fx", 8 if px1 else 48 - sh)), flag(4, "px"))
    if OPT.get("wb"):
        lbw = P.lab("L_wb")
        at(int(OPT["wb"]), [f"s_lshr_b32 {s(sT0)}, s2, 3", f"s_and_b32 {s(sT0)}, {s(sT0)}, {OPT.get('wbm', 23)}", f"s_or_b32 {s(sT0)}, {s(sT0)}, {s(sW)}", f"s_cbranch_scc1 {lbw}", "buffer_wbl2 sc1", f"{lbw}:"])
    bar_i = first[min(12, 2 * bleft[0])] - D
    RG = [KAREA[0], L_KVB, KAREA[0], L_KVB] if LP < 8 else KAREA
    def wr(nb): a = RG[nb]; return [f"ds_write_b128 {v(WB[a>>16])}, {v(AC+16*nb+8+4*q,4)} offset:{(a&0xffff)+1024*q}" for q in range(2)]
    def rdp(nb): a = RG[nb]; return [f"ds_read_b128 {v(AC+16*nb+8+4*q,4)}, {v(RBs[a>>16])} offset:{(a&0xffff)+1024*q}" for q in range(2)]
    def add(nb, pk): c = AC + 16 * nb; return [f"v_pk_add_f32 {v(c+i,2)}, {v(c+i,2)}, {v(c+8+i,2)}" for i in range(0, 8, 2)] if pk else [f"v_add_f32 {v(c+i)}, {v(c+i)}, {v(c+8+i)}" for i in range(8)]
    def snd(nb): c = AC + 16 * nb; return [f"v_cvt_pk_bf16_f32 {v(c+8+i)}, {v(c+2*i)}, {v(c+2*i+1)}" for i in range(4)] + xoff(nb, True) + [f"buffer_store_dwordx4 {v(c+8,4)}, {v(VL16)}, {s(SWS,4)}, {s(sT0)} offen sc1"]
    VPF, VPA = PX, PX + 1
    pf = f"buffer_load_dword {v(VPF)}, {v(VPA)}, {s(SWS,4)}, 0 offen sc1"
    at(38 if px1 else done_at[3] + 3, lines(f"v_and_b32 {v(VPA)}, 3, {v(vL)}\nv_lshlrev_b32 {v(VPA)}, 8, {v(VPA)}\nv_xor_b32 {v(VPA)}, {s(sFO)}, {v(VPA)}") + [pf])
    PS = OPT.get("ps", "0") == "1"
    VFW, VFR, VFT = 26, 18, 19
    chk = {}
    if PS:
        assert LP >= 4
        RG[1] = RG[3] = KAREA[1]
        at(bar_i - 8, lines(f"s_lshl_b32 {s(sT0)}, {s(sW)}, 2\ns_add_u32 {s(sT0)}, {s(sT0)}, {L_ST}\nv_mov_b32 {v(VFW)}, {s(sT0)}\nv_xor_b32 {v(VFR)}, 16, {v(VFW)}\nds_write_b32 {v(VFW)}, {v(VZ)}"))
        def wrf(nb, lv): return wr(nb) + [f"v_mov_b32 {v(VFT)}, {lv}", f"ds_write_b32 {v(VFW)}, {v(VFT)}"]
        def rdf(nb): return [f"ds_read_b32 {v(VFT)}, {v(VFR)}"] + rdp(nb)
        def check(nb, lv):
            lb = P.lab("L_ps")
            P(f"v_cmp_gt_u32 vcc, {lv}, {v(VFT)}")
            P(f"s_cbranch_vccnz {lb}_slow")
            P(f"{lb}_back:")
            SLOW.append([f"{lb}_slow:", f"s_mov_b32 {s(sCNT)}, 0", f"{lb}_loop:"] + rdf(nb) + ["s_waitcnt lgkmcnt(0)", f"v_cmp_gt_u32 vcc, {lv}, {v(VFT)}",
                         f"s_add_u32 {s(sCNT)}, {s(sCNT)}, 1", f"s_cbranch_vccz {lb}_back", f"s_cmp_gt_u32 {s(sCNT)}, {SPIN_MAX * 16}", f"s_cbranch_scc0 {lb}_loop", f"s_branch {lb}_back"])
        dl = int(OPT.get("psd", 2))
        for nb in (1, 2, 3):
            e = done_at[nb]
            at(e + 1, wrf(nb, nb)); at(e + 1 + dl, rdf(nb)); chk[e + 2 + dl] = nb; at(e + 2 + dl, add(nb, False) + snd(nb))
        at(done_at[3] + 2 + dl, stamp_i("xs"))
    elif SQ < 18:
        for nb in (1, 2, 3):
            e = done_at[nb]
            at(e + 1, wr(nb)); at(e + 2, ["s_waitcnt lgkmcnt(2)", "s_barrier"] + rdp(nb)); at(e + 4, add(nb, False) + snd(nb))
        at(done_at[3] + 4, stamp_i("xs"))
    else:
        e = done_at[3]
        at(e, wr(1) + wr(2)); at(e + 1, wr(3) + ["s_waitcnt lgkmcnt(0)", "s_barrier"] + rdp(1) + rdp(2) + rdp(3))
        for nb in (1, 2, 3): at(e + 1 + nb, add(nb, False) + snd(nb))
        at(e + 4, stamp_i("xs"))
    R = XF + 64 - 4 if False else None
    RQ = [None, XF + 64, XF + 72, XF + 80]
    rl = sum([xoff(j, False) + [f"buffer_load_dwordx4 {v(RQ[j],4)}, {v(VL16)}, {s(SWS,4)}, {s(sT0)} offen sc1"] for j in range(1, 4)], [])
    ri = int(OPT.get("ri", 99))
    seen = set()
    for i, (kk, nb) in enumerate(seq):
        if i % 4 == 0: P(f"s_setprio {3 - ((i >> 2) & 3)}")
        P(mfma(AC + 16 * nb, bq(i), AF2(kk), None if nb in seen else "0")); seen.add(nb)
        if i == bar_i: P(".waitvm b8"); P("s_barrier")
        if i + D < len(seq): P.add(br(i + D))
        if i + 2 < len(seq) and first[seq[i + 2][0]] == i + 2: val(seq[i + 2][0])
        if i in gates: sneed(gates[i], 0)
        if i in chk: check(chk[i], chk[i])
        for x in ev.pop(i, []): P.add(x)
        if i == len(seq) - 1 - ri:
            P(f"v_mov_b32 {v(VPF)}, {v(VPF)}")
            spin(P.lab("L_pf"), pf, f"v_cmp_gt_u32 vcc, 4, {v(VPF)}")
            P.add(rl)
        if i + 1 < len(seq) and first[seq[i + 1][0]] == i + 1: stamp(f"k{kk}")
    assert not ev, ev.keys()
    stamp("p2mm")
    P("s_setprio 0")
    P.add(wrf(0, 4) if PS else wr(0))
    if ri >= len(seq):
        P(f"v_mov_b32 {v(VPF)}, {v(VPF)}")
        spin(P.lab("L_pf"), pf, f"v_cmp_gt_u32 vcc, 4, {v(VPF)}")
    if PS:
        if ri >= len(seq): P.add(rl)
        P.add(rdf(0)); check(0, 4)
    else:
        P("s_waitcnt lgkmcnt(0)")
        P("s_barrier")
        P.add(rdp(0))
        if ri >= len(seq): P.add(rl)
    P.add(add(0, True))
    validate([RQ[j] + i for j in (1, 2, 3) for i in range(4)], T + 16, rl)
    stamp("xr")
    P(f"s_mov_b32 {s(sT0)}, 0x3f80\ns_mov_b32 {s(sT1)}, 0x3f800000")
    for j in range(1, 4):
        for i in range(4): P(f"v_dot2c_f32_bf16 {v(AC+2*i)}, {s(sT0)}, {v(RQ[j]+i)}\nv_dot2c_f32_bf16 {v(AC+2*i+1)}, {s(sT1)}, {v(RQ[j]+i)}")
    for i in range(4): P(f"v_permlane32_swap_b32 {v(AC+i)}, {v(AC+4+i)}")
    for i in range(0, 8, 2): P(f"v_pk_add_f32 {v(F+i,2)}, {v(F+i,2)}, {v(AC+i,2)}")
    for i in range(4): P(f"v_cvt_pk_bf16_f32 {v(XR+i)}, {v(F+2*i)}, {v(F+2*i+1)}")
    P(f"buffer_store_dwordx4 {v(XR,4)}, {v(VX)}, {s(SOUT,4)}, {s(sOo)} offen")
    finish(ffn)

def phase2_v5(bleft, ffn):
    BAR = [2, 3, 4, 5, 6, 7, 8, 9, 10, 11, 14, 15]; VX = 16; BO = [19, 26]
    WB = [20, 21, 22]; RBs = [23, 24, 25]; PX = BAUG
    VOF, VOA, VOP, VOV = 40, 41, 42, 43
    t = T + 8
    P(f"v_bfe_u32 {v(t)}, {v(vL)}, 2, 2\nv_lshrrev_b32 {v(t+1)}, 5, {v(vL)}\nv_and_b32 {v(t+2)}, 63, {v(AW)}\ns_lshl_b32 {s(sT0)}, {s(sHALF)}, 5\nv_xor_b32 {v(t+2)}, {s(sT0)}, {v(t+2)}")
    P(f"s_lshl_b32 {s(sT0)}, {s(sHALF)}, 13\nv_add_u32 {v(t+2)}, {s(sT0)}, {v(t+2)}\nv_lshl_add_u32 {v(t+4)}, {v(t+1)}, 2, {v(t)}\nv_lshl_add_u32 {v(t+3)}, {v(t+4)}, 8, {v(t+2)}")
    P(f"v_xor_b32 {v(t)}, {s(sM)}, {v(t)}\nv_lshl_add_u32 {v(BAR[0])}, {v(t)}, 6, {v(t+3)}")
    for nb in range(1, 4): P(f"v_xor_b32 {v(BAR[nb])}, {64*nb}, {v(BAR[0])}")
    for rg in (2, 1):
        for nb in range(4): P(f"v_add_u32 {v(BAR[4*rg+nb])}, {65536*rg}, {v(BAR[nb])}")
    bo_init = [f"v_lshl_add_u32 {v(t+4)}, {v(t+4)}, 6, {v(t+2)}"] + [f"v_add_u32 {v(BO[k])}, {KAREA[7+k]}, {v(t+4)}" for k in range(2)]
    LP = 2; SQ = int(OPT.get("sq", 8)); D = 4
    seq = [(kk, nb) for kk in range(SQ) for nb in range(4) if nb or kk < LP]
    done_at = {}
    for nb in (1, 2, 3):
        seq += [(kk, nb) for kk in range(SQ, 14)]; done_at[nb] = len(seq)
    seq += [(kk, 0) for kk in range(LP, 30)]
    def bq(i): return XF + 8 * (i & 7)
    def AFx(kk):
        if kk < 18: return AF2(kk)
        if kk < 26: return XF + 64 + 8 * (kk - 18)
        return AC + 16 + 4 * (kk - 26)
    def br(i):
        kk, nb = seq[i]
        if kk >= 14:
            j = kk - 14
            return [f"ds_read_b64_tr_b16 {v(bq(i)+2*tt,2)}, {v(BO[j>>3])} offset:{(j&7)*1024+512*tt}" for tt in range(2)]
        a = KAREA[kk >> 1]
        return [f"ds_read_b64_tr_b16 {v(bq(i)+2*tt,2)}, {v(BAR[4*(a>>16)+nb])} offset:{(a&0xffff)+(kk&1)*4096+2048*tt}" for tt in range(2)]
    def o_job(j): return [f"s_add_u32 {s(sD1)}, {s(sWq)}, {j}", f"s_and_b32 {s(sD1)}, {s(sD1)}, 15", f"s_lshl_b32 {s(sD1)}, {s(sD1)}, 10", f"s_add_u32 {s(sD1)}, {s(sD1)}, {s(sA1)}",
                          f"buffer_load_dwordx4 {v(AFx(14+j),4)}, {v(VL16)}, {s(SWS,4)}, {s(sD1)} offen sc1"]
    for i in range(D): P.add(br(i))
    stamp("hseen")
    first = {}
    for i, (kk, nb) in enumerate(seq): first.setdefault(kk, i)
    ev = {}; gates = {}; act = {}
    def at(i, x): ev.setdefault(i, []).append(x)
    at(0, bo_init)
    for i, g_ in enumerate(sum([b_dma(k2) for k2 in bleft], [])): at(i, g_)
    if ffn:
        g2i = int(OPT.get("g2", 8)); a8 = int(OPT.get("g3f", 20))
        at(0, [spoll(0)]); at(int(OPT.get("f3", 7)), flag(3, "h4"))
    else: g2i = int(OPT.get("g2a", 2)); a8 = int(OPT.get("g3a", 12))
    one = (not ffn) and OPT.get("one", "1") == "1"
    if one: gates[g2i] = 3; a8 = g2i + 4
    else: gates[g2i] = 2; gates[a8] = 3
    for k2 in range(4, 8): at(g2i + k2 - 4, a_jobs(k2)[0])
    if not one: at(max(a8 - int(OPT.get("gl", 4)), g2i), [spoll(0)])
    for k2 in range(8, 14): at(a8 + k2 - 8, a_jobs(k2)[0])
    F = T + 8
    at(9, lines(f"v_and_b32 {v(T+17)}, 31, {v(vL)}\nv_lshrrev_b32 {v(T+18)}, 5, {v(vL)}\nv_lshlrev_b32 {v(T+18)}, 4, {v(T+18)}\nv_lshl_add_u32 {v(VX)}, {v(T+17)}, 10, {v(T+18)}") +
          [f"buffer_load_dwordx4 {v(XR,4)}, {v(VX)}, {s(SX,4)}, {s(sOo)} offen", f"buffer_load_dwordx4 {v(B2R,4)}, {v(T+18)}, {s(SB2,4)}, {s(sN)} offen"])
    at(20, lines(f"v_add_u32 {v(WB[0])}, {s(sM0x)}, {v(VL16)}\nv_xor_b32 {v(RBs[0])}, 8192, {v(WB[0])}") +
           sum([[f"v_add_u32 {v(WB[rg])}, {65536*rg}, {v(WB[0])}", f"v_add_u32 {v(RBs[rg])}, {65536*rg}, {v(RBs[0])}"] for rg in (1, 2)], []))
    for i in range(4):
        at(50 + i, lines(f"v_lshlrev_b32 {v(F+2*i)}, 16, {v(XR+i)}\nv_and_b32 {v(F+2*i+1)}, 0xffff0000, {v(XR+i)}\nv_lshlrev_b32 {v(T+4)}, 16, {v(B2R+i)}\nv_and_b32 {v(T+5)}, 0xffff0000, {v(B2R+i)}\nv_add_f32 {v(F+2*i)}, {v(F+2*i)}, {v(T+4)}\nv_add_f32 {v(F+2*i+1)}, {v(F+2*i+1)}, {v(T+5)}"))
    if ffn:
        pxi = int(OPT.get("pxi", 13))
        at(pxi - 1, [f"v_mov_b32 {v(PX+i)}, -1" for i in range(4)])
        for j in (1, 2, 3): at(pxi + j - 1, xoff(j, True) + [f"buffer_store_dwordx4 {v(PX,4)}, {v(VL16)}, {s(SWS,4)}, {s(sT0)} offen sc1 ; tag=px"])
    at(done_at[1] if ffn else 8, flag(4, "px"))
    bar_i = first[12] - D
    RG = [KAREA[0], L_KVB, KAREA[0], L_KVB]
    def wr(nb): a = RG[nb]; return [f"ds_write_b128 {v(WB[a>>16])}, {v(AC+16*nb+8+4*q,4)} offset:{(a&0xffff)+1024*q}" for q in range(2)]
    def rdp(nb): a = RG[nb]; return [f"ds_read_b128 {v(AC+16*nb+8+4*q,4)}, {v(RBs[a>>16])} offset:{(a&0xffff)+1024*q}" for q in range(2)]
    def add(nb, pk): c = AC + 16 * nb; return [f"v_pk_add_f32 {v(c+i,2)}, {v(c+i,2)}, {v(c+8+i,2)}" for i in range(0, 8, 2)] if pk else [f"v_add_f32 {v(c+i)}, {v(c+i)}, {v(c+8+i)}" for i in range(8)]
    def snd(nb): c = AC + 16 * nb; return [f"v_cvt_pk_bf16_f32 {v(c+8+i)}, {v(c+2*i)}, {v(c+2*i+1)}" for i in range(4)] + xoff(nb, True) + [f"buffer_store_dwordx4 {v(c+8,4)}, {v(VL16)}, {s(SWS,4)}, {s(sT0)} offen sc1"]
    for nb in (1, 2, 3):
        e = done_at[nb]
        at(e + 1, wr(nb)); at(e + 2, ["s_waitcnt lgkmcnt(2)", "s_barrier"] + rdp(nb)); at(e + 4, add(nb, False) + snd(nb))
    at(done_at[3] + 4, stamp_i("xs"))
    of = f"buffer_load_dword {v(VOF)}, {v(VOA)}, {s(SWS,4)}, 0 offen sc1"
    op = f"buffer_load_dword {v(VOV)}, {v(VOP)}, {s(SWS,4)}, {s(sA1)} offen sc1"
    at(7, lines(f"s_andn2_b32 {s(sT0)}, {s(sFL)}, 0x380\ns_lshl_b32 {s(sT1)}, {s(sHALF)}, 9\ns_add_u32 {s(sT0)}, {s(sT0)}, {s(sT1)}\nv_and_b32 {v(VOA)}, 3, {v(vL)}\nv_lshlrev_b32 {v(VOA)}, 7, {v(VOA)}\nv_and_b32 {v(VOP)}, 12, {v(vL)}\nv_add_u32 {v(VOA)}, {v(VOA)}, {v(VOP)}\nv_add_u32 {v(VOA)}, {s(sT0)}, {v(VOA)}\nv_and_b32 {v(VOP)}, 15, {v(vL)}\nv_lshlrev_b32 {v(VOP)}, 10, {v(VOP)}") + [of])
    ao = int(OPT.get("aof", done_at[3] + 6)) if ffn else int(OPT.get("aoa", 24))
    PROBE = ffn or OPT.get("pra") == "1"
    def ogate():
        P(f"v_mov_b32 {v(VOF)}, {v(VOF)}")
        spin(P.lab("L_of"), of, f"v_cmp_gt_u32 vcc, 1, {v(VOF)}")
        if PROBE:
            P(f"v_mov_b32 {v(VOV)}, -1")
            spin(P.lab("L_op"), op, f"v_cmp_eq_u32 vcc, -1, {v(VOV)}")
    act[ao] = ogate
    i_ = ao; per = 3 if ffn else 1
    for j in range(16):
        if j >= 12: i_ = max(i_, done_at[1] + 6)
        at(i_, o_job(j))
        if (j + 1) % per == 0: i_ += 1
    assert i_ <= first[14] - 1 + (6 if ffn else 0), (i_, first[14])
    VPF, VPA = PX, PX + 1
    pf = f"buffer_load_dword {v(VPF)}, {v(VPA)}, {s(SWS,4)}, 0 offen sc1"
    at(done_at[3] + 3, lines(f"v_and_b32 {v(VPA)}, 3, {v(vL)}\nv_lshlrev_b32 {v(VPA)}, 8, {v(VPA)}\nv_xor_b32 {v(VPA)}, {s(sFO)}, {v(VPA)}") + [pf])
    RQ = [None, AC + 32, AC + 36, AC + 44]
    rl = sum([xoff(j, False) + [f"buffer_load_dwordx4 {v(RQ[j],4)}, {v(VL16)}, {s(SWS,4)}, {s(sT0)} offen sc1"] for j in range(1, 4)], [])
    def recv():
        P(f"v_mov_b32 {v(VPF)}, {v(VPF)}")
        spin(P.lab("L_pf"), pf, f"v_cmp_gt_u32 vcc, 4, {v(VPF)}")
        P.add(rl)
    ri = len(seq) - 1 - int(OPT.get("ri", 8))
    VG_ = int(OPT.get("vg", 4))
    seen = set()
    for i, (kk, nb) in enumerate(seq):
        if i % 4 == 0: P(f"s_setprio {3 - ((i >> 2) & 3)}")
        P(mfma(AC + 16 * nb, bq(i), AFx(kk), None if nb in seen else "0")); seen.add(nb)
        if i == bar_i: P(".waitvm b8"); P("s_barrier")
        if i + D < len(seq): P.add(br(i + D))
        if i in gates: sneed(gates[i], 0)
        if i in act: act[i]()
        for x in ev.pop(i, []): P.add(x)
        if i + 1 < len(seq) and seq[i + 1][0] >= 14 and (seq[i + 1][0] - 14) % VG_ == 0:
            j0 = seq[i + 1][0] - 14
            validate([AFx(14 + j) + r for j in range(j0, j0 + VG_) for r in range(4)], T + 16, sum([o_job(j) for j in range(j0, 16)], []))
        if i == ri: recv()
        if i + 1 < len(seq) and first[seq[i + 1][0]] == i + 1: stamp(f"k{kk}")
    assert not ev, ev.keys()
    stamp("p2mm")
    P("s_setprio 0")
    P.add(wr(0))
    P("s_waitcnt lgkmcnt(0)")
    P("s_barrier")
    P.add(rdp(0))
    validate([RQ[j] + i for j in (1, 2, 3) for i in range(4)], T + 16, rl)
    stamp("xr")
    P(f"s_mov_b32 {s(sT0)}, 0x3f80\ns_mov_b32 {s(sT1)}, 0x3f800000")
    for j in range(1, 4):
        for i in range(4): P(f"v_dot2c_f32_bf16 {v(AC+2*i)}, {s(sT0)}, {v(RQ[j]+i)}\nv_dot2c_f32_bf16 {v(AC+2*i+1)}, {s(sT1)}, {v(RQ[j]+i)}")
    P.add(add(0, True))
    for i in range(4): P(f"v_permlane32_swap_b32 {v(AC+i)}, {v(AC+4+i)}")
    for i in range(0, 8, 2): P(f"v_pk_add_f32 {v(F+i,2)}, {v(F+i,2)}, {v(AC+i,2)}")
    for i in range(4): P(f"v_cvt_pk_bf16_f32 {v(XR+i)}, {v(F+2*i)}, {v(F+2*i+1)}")
    P(f"buffer_store_dwordx4 {v(XR,4)}, {v(VX)}, {s(SOUT,4)}, {s(sOo)} offen")
    finish(ffn)

def phase2_v3(bleft, aleft, ffn):
    BAR = [2, 3, 4, 5, 6, 7, 8, 9, 10, 11, 18, 19]; VX = 16; PX = BAUG
    t = T + 8
    P(f"v_bfe_u32 {v(t)}, {v(vL)}, 2, 2\nv_lshrrev_b32 {v(t+1)}, 5, {v(vL)}\nv_bfe_u32 {v(t+2)}, {v(vL)}, 4, 1\nv_lshl_add_u32 {v(t+3)}, {v(t+2)}, 2, {v(t)}\nv_lshl_add_u32 {v(t+3)}, {v(t+1)}, 4, {v(t+3)}")
    P(f"v_and_b32 {v(t+4)}, 63, {v(AW)}\ns_lshl_b32 {s(sT0)}, {s(sHALF)}, 5\nv_xor_b32 {v(t+4)}, {s(sT0)}, {v(t+4)}\nv_lshl_add_u32 {v(t+3)}, {v(t+3)}, 8, {v(t+4)}")
    P(f"v_xor_b32 {v(t)}, {s(sM)}, {v(t)}\nv_lshl_add_u32 {v(BAR[0])}, {v(t)}, 6, {v(t+3)}")
    for q in range(1, 4): P(f"v_xor_b32 {v(BAR[q])}, {64*q}, {v(BAR[0])}")
    for rg in (2, 1):
        for q in range(4): P(f"v_add_u32 {v(BAR[4*rg+q])}, {65536*rg}, {v(BAR[q])}")
    LP = int(OPT.get("lp", 2)); SQ = int(OPT.get("sq", 14))
    assert LP >= 2
    seq = [(st, q) for st in range(SQ) for q in range(4) if q or st < LP]
    done_at = {}
    for q in (1, 2, 3):
        seq += [(st, q) for st in range(SQ, 18)]; done_at[q] = len(seq)
    seq += [(st, 0) for st in range(LP, 18)]
    D = 4
    def bq(i): return XF + 8 * (i & 7)
    def br(i):
        st, q = seq[i]; a = KAREA[st >> 1]
        return [f"ds_read_b64_tr_b16 {v(bq(i)+2*tt,2)}, {v(BAR[4*(a>>16)+q])} offset:{(a&0xffff)+(st&1)*8192+2048*tt}" for tt in range(2)]
    def val(st): validate([AF3(st, sh) + i for sh in range(2) for i in range(4)], T + 16, sum(a_jobs(st), []))
    for i in range(D): P.add(br(i))
    val(0)
    stamp("hseen")
    first = {}
    for i, (st, q) in enumerate(seq): first.setdefault(st, i)
    ev = {}
    def at(i, x): ev.setdefault(i, []).append(x)
    a8, a14 = int(OPT.get("a8", 8)), int(OPT.get("a14", 26))
    i0 = 0
    for st in aleft: at(i0, sum(a_jobs(st), [])); i0 += 1
    for g_ in sum([b_dma(k2) for k2 in bleft], []): at(i0, g_); i0 += 1
    a8 = max(a8, i0)
    for st in range(8, 14): at(a8 + 2 * (st - 8), sum(a_jobs(st), []))
    for st in range(14, 18): at(a14 + 2 * (st - 14), sum(a_jobs(st), []))
    pxi = int(OPT.get("pxi", a8 + 12))
    at(pxi - 1, [f"v_mov_b32 {v(PX+i)}, -1" for i in range(4)])
    for j in (1, 2, 3): at(pxi + j - 1, xoff(j, True) + [f"buffer_store_dwordx4 {v(PX,4)}, {v(VL16)}, {s(SWS,4)}, {s(sT0)} offen sc1 ; tag=px"])
    at(done_at[1] - int(OPT.get("fxb", 2)), flag(2, "px"))
    F = T + 8
    at(a8 + 1, lines(f"v_and_b32 {v(T+17)}, 31, {v(vL)}\nv_lshrrev_b32 {v(T+18)}, 5, {v(vL)}\nv_lshlrev_b32 {v(T+18)}, 4, {v(T+18)}\nv_lshl_add_u32 {v(VX)}, {v(T+17)}, 10, {v(T+18)}") +
          [f"buffer_load_dwordx4 {v(XR,4)}, {v(VX)}, {s(SX,4)}, {s(sOo)} offen", f"buffer_load_dwordx4 {v(B2R,4)}, {v(T+18)}, {s(SB2,4)}, {s(sN)} offen"])
    for i in range(4):
        at(done_at[3] + 6 + i, lines(f"v_lshlrev_b32 {v(F+2*i)}, 16, {v(XR+i)}\nv_and_b32 {v(F+2*i+1)}, 0xffff0000, {v(XR+i)}\nv_lshlrev_b32 {v(T+4)}, 16, {v(B2R+i)}\nv_and_b32 {v(T+5)}, 0xffff0000, {v(B2R+i)}\nv_add_f32 {v(F+2*i)}, {v(F+2*i)}, {v(T+4)}\nv_add_f32 {v(F+2*i+1)}, {v(F+2*i+1)}, {v(T+5)}"))
    def snd(q): c = AC + 8 * q; return [f"v_cvt_pk_bf16_f32 {v(c+i)}, {v(c+2*i)}, {v(c+2*i+1)}" for i in range(4)] + xoff(q, True) + [f"buffer_store_dwordx4 {v(c,4)}, {v(VL16)}, {s(SWS,4)}, {s(sT0)} offen sc1"]
    VPF, VPA = PX, PX + 1
    pf = f"buffer_load_dword {v(VPF)}, {v(VPA)}, {s(SWS,4)}, 0 offen sc1"
    for q in (1, 2, 3): at(done_at[q] + 1, snd(q))
    at(done_at[3] + 1, stamp_i("xs"))
    at(done_at[3] + int(OPT.get("pfi", 0)), lines(f"v_and_b32 {v(VPA)}, 3, {v(vL)}\nv_lshlrev_b32 {v(VPA)}, 8, {v(VPA)}\nv_xor_b32 {v(VPA)}, {s(sFO)}, {v(VPA)}") + [pf])
    bar_i = first[12] - D
    R = AC + 8 - 4
    RQ = [None, AC + 12, AC + 20, AC + 28]
    rl = sum([xoff(j, False) + [f"buffer_load_dwordx4 {v(RQ[j],4)}, {v(VL16)}, {s(SWS,4)}, {s(sT0)} offen sc1"] for j in range(1, 4)], [])
    ri = min(done_at[3] + int(OPT.get("ri", 12)), len(seq) - 1)
    seen = set()
    for i, (st, q) in enumerate(seq):
        if i % 4 == 0: P(f"s_setprio {3 - ((i >> 2) & 3)}")
        for sh in range(2): P(m16(AC + 8 * q + 4 * sh, bq(i), AF3(st, sh), None if q in seen else "0"))
        seen.add(q)
        if i == bar_i: P(".waitvm b8"); P("s_barrier")
        if i + D < len(seq): P.add(br(i + D))
        if i + 2 < len(seq) and first[seq[i + 2][0]] == i + 2: val(seq[i + 2][0])
        for x in ev.pop(i, []): P.add(x)
        if i == ri:
            P(f"v_mov_b32 {v(VPF)}, {v(VPF)}")
            spin(P.lab("L_pf"), pf, f"v_cmp_gt_u32 vcc, 2, {v(VPF)}")
            P.add(rl)
        if i + 1 < len(seq) and first[seq[i + 1][0]] == i + 1: stamp(f"k{st}")
    assert not ev, ev.keys()
    stamp("p2mm")
    P("s_setprio 0")
    validate([RQ[j] + i for j in (1, 2, 3) for i in range(4)], T + 16, rl)
    stamp("xr")
    P(f"s_mov_b32 {s(sT0)}, 0x3f80\ns_mov_b32 {s(sT1)}, 0x3f800000")
    for j in range(1, 4):
        for i in range(4): P(f"v_dot2c_f32_bf16 {v(AC+2*i)}, {s(sT0)}, {v(RQ[j]+i)}\nv_dot2c_f32_bf16 {v(AC+2*i+1)}, {s(sT1)}, {v(RQ[j]+i)}")
    for i in range(4): P(f"v_permlane16_swap_b32 {v(AC+i)}, {v(AC+4+i)}")
    for i in range(0, 8, 2): P(f"v_pk_add_f32 {v(F+i,2)}, {v(F+i,2)}, {v(AC+i,2)}")
    for i in range(4): P(f"v_cvt_pk_bf16_f32 {v(XR+i)}, {v(F+2*i)}, {v(F+2*i+1)}")
    P(f"buffer_store_dwordx4 {v(XR,4)}, {v(VX)}, {s(SOUT,4)}, {s(sOo)} offen")
    finish(ffn)

def phase2(done=(), ordr="B6 B7 B8 B9 A4 A5 A6 A7 B10 A8 B11 A9 A10 B12 A11 B13 A12 B14 A13 B15 B16 B17 A14 A15 A16 A17", ffn=False):
    P(f"v_bfe_u32 {v(T+8)}, {v(vL)}, 2, 2\nv_lshrrev_b32 {v(T+9)}, 5, {v(vL)}\nv_and_b32 {v(T+10)}, 63, {v(AW)}")
    P(f"v_lshl_add_u32 {v(T+12)}, {v(T+9)}, 2, {v(T+8)}\nv_lshl_add_u32 {v(T+12)}, {v(T+12)}, 7, {v(T+10)}\nv_lshrrev_b32 {v(T+13)}, 1, {v(T+8)}")
    P(f"v_lshl_add_u32 {v(T+12)}, {v(T+13)}, 6, {v(T+12)}\nv_xor_b32 {v(T+13)}, 64, {v(T+12)}")
    P(f"s_add_u32 {s(sT0)}, {s(sM0x)}, 65536\ns_add_u32 {s(sT1)}, {s(sM0x)}, {RC}")
    for nb in range(2):
        P(f"v_add_u32 {v(BA+nb)}, {s(sM0x)}, {v(T+12+nb)}\nv_add_u32 {v(BA+2+nb)}, {s(sT0)}, {v(T+12+nb)}\nv_add_u32 {v(BA+4+nb)}, {s(sT1)}, {v(T+12+nb)}")
    P.add(b_reads(0))
    if OPT.get("r8", "1") == "1": validate([AFq(0, r2) + i for r2 in range(2) for i in range(4)], T + 16, sum(a_jobs(0), []))
    if OPT.get("p2prio") == "y":
        lb = P.lab("L_pr"); P(f"s_cmp_lt_u32 {s(sW)}, 4\ns_cbranch_scc1 {lb}\ns_setprio 1\n{lb}:")
    stamp("hseen")
    order = [j for j in ordr.split() if j not in done]
    jobs = []
    for j in order:
        k2 = int(j[1:]); gs = a_jobs(k2) if j[0] == "A" else b_dma(k2)
        jobs += [(j, gs[0]), (None, gs[1])]
    LEAD = int(OPT.get("lead", 3))
    first_need = min(int(j[1:]) - (0 if j[0] == "A" else 1) for j in order)
    order.sort(key=lambda j: int(j[1:]) - (0.5 if j[0] == "B" else 0)) if LEAD < 9 else None
    jobs = []
    for j in order:
        k2 = int(j[1:]); gs = a_jobs(k2) if j[0] == "A" else b_dma(k2)
        jobs += [(j, gs[0]), (None, gs[1])]
    NT = int(OPT.get("nt", 2))
    for kk in range(18 - NT):
        rem = [x for x, _ in jobs if x]
        assert f"A{kk+1}" not in rem and f"B{kk+2}" not in rem, (kk, rem)
        if OPT.get("v"): print(kk, rem, file=sys.stderr)
        pm = OPT.get("p2prio", "c")
        if pm == "c": P(f"s_setprio {3 - ((kk // int(OPT.get('p2per', 1))) & 3)}")
        br = b_reads(kk + 1) if kk + 1 < 18 else []
        for nb in range(2):
            for rb in range(2):
                mi = 2 * nb + rb
                P(mfma(AC + 16 * mi, BTq(kk, nb), AFq(kk, rb), "0" if kk == 0 else None))
                if mi == 0: P.add(br[:3])
                if mi == 1: P.add(br[3:])
                if mi == 2 and (1 if OPT.get('r8', '1') == '1' else 4) <= kk + 1 < 18:
                    if jobs and jobs[0][0] is None: P.add(jobs.pop(0)[1])
                    validate([AFq(kk + 1, r2) + i for r2 in range(2) for i in range(4)], T + 16, sum(a_jobs(kk + 1), []))
                for rep in range(2 if kk < int(OPT.get("dbl", 0)) else 1):
                    if not jobs: continue
                    j, g_ = jobs[0]
                    if j:
                        k2 = int(j[1:]); last = (nb, rb) == (1, 1)
                        free = k2 - (8 if j[0] == "A" else 9)
                        if free > kk or (free == kk and not last): continue
                        need_at = k2 - (0 if j[0] == "A" else 1)
                        if need_at > max(kk, first_need - 1) + LEAD: continue
                    jobs.pop(0); P.add(g_)
        stamp(f"k{kk}")
        if kk == 8:
            P(f"v_lshrrev_b32 {v(T+17)}, 3, {v(vL)}\nv_and_b32 {v(T+18)}, 7, {v(vL)}\nv_lshlrev_b32 {v(T+18)}, 4, {v(T+18)}\nv_lshl_add_u32 {v(VXR)}, {v(T+17)}, 10, {v(T+18)}")
            P(f"s_lshl_b32 {s(sT0)}, {s(sN)}, 7")
            P(f"buffer_load_dwordx4 {v(XR,4)}, {v(VXR)}, {s(SX,4)}, {s(sOo)} offen")
            P(f"buffer_load_dwordx4 {v(B2R,4)}, {v(T+18)}, {s(SB2,4)}, {s(sT0)} offen")
        if kk == 3:
            for q in range(4):
                P(f"v_xor_b32 {v(VWR+q)}, {64*q}, {v(VL16)}\nv_add_u32 {v(VWR+q)}, {s(sM0x)}, {v(VWR+q)}")
                P(f"v_add_u32 {v(T+q)}, 65536, {v(VWR+q)}")
            P(f"v_lshrrev_b32 {v(T+4)}, 3, {v(vL)}\ns_lshl_b32 {s(sT0)}, {s(sW34)}, 1\nv_add_u32 {v(T+4)}, {s(sT0)}, {v(T+4)}")
            P(f"v_and_b32 {v(T+5)}, 3, {v(vL)}\nv_lshlrev_b32 {v(T+6)}, 2, {v(T+5)}\nv_xor_b32 {v(T+4)}, {v(T+4)}, {v(T+6)}\nv_lshlrev_b32 {v(T+4)}, 4, {v(T+4)}\nv_and_b32 {v(T+6)}, 1, {v(T+5)}\nv_lshl_add_u32 {v(T+4)}, {v(T+6)}, 10, {v(T+4)}\nv_lshrrev_b32 {v(T+6)}, 1, {v(T+5)}\nv_lshl_add_u32 {v(T+4)}, {v(T+6)}, 14, {v(T+4)}")
            P(f"v_bfe_u32 {v(T+5)}, {v(vL)}, 2, 1\nv_lshl_add_u32 {v(T+4)}, {v(T+5)}, 16, {v(T+4)}\ns_lshl_b32 {s(sT0)}, {s(sHALF)}, 15\nv_add_u32 {v(VRED)}, {s(sT0)}, {v(T+4)}")
        F = T + 8
        if kk == 13:
            for i in range(4):
                P(f"v_lshlrev_b32 {v(F+2*i)}, 16, {v(XR+i)}\nv_and_b32 {v(F+2*i+1)}, 0xffff0000, {v(XR+i)}")
                P(f"v_lshlrev_b32 {v(T+4)}, 16, {v(B2R+i)}\nv_and_b32 {v(T+5)}, 0xffff0000, {v(B2R+i)}")
                P(f"v_add_f32 {v(F+2*i)}, {v(F+2*i)}, {v(T+4)}\nv_add_f32 {v(F+2*i+1)}, {v(F+2*i+1)}, {v(T+5)}")
    assert not jobs
    for kk in range(19 - NT, 18):
        P.add(b_reads(kk))
        validate([AFq(kk, r2) + i for r2 in range(2) for i in range(4)], T + 16, sum(a_jobs(kk), []))
    def wr(blk): return [f"ds_write_b128 {v(VWR + q if blk < 2 else T + q)}, {v(AC+16*blk+4*q,4)} offset:{(blk&1)*32768+(q>>1)*16384+(q&1)*1024}" for q in range(4)]
    pend = []
    for mi in range(4):
        for kk in range(18 - NT, 18):
            P(mfma(AC + 16 * mi, BTq(kk, mi >> 1), AFq(kk, mi & 1)))
            if kk > 18 - NT or NT == 1: P.add(pend[:2]); pend = pend[2:]
        P.add(pend); pend = wr(mi)
    stamp("p2mm")
    P.add(pend)
    P("s_waitcnt lgkmcnt(0)")
    stamp("rw")
    P("s_barrier")
    stamp("rb")
    R = XF
    for ww in range(8):
        for hf in range(2): P(f"ds_read_b128 {v(R+8*ww+4*hf,4)}, {v(VRED)} offset:{2048*ww+512*hf}")
    for ww in range(8):
        for i in range(0, 8, 2): P(f"v_pk_add_f32 {v(F+i,2)}, {v(F+i,2)}, {v(R+8*ww+i,2)}")
    for i in range(4): P(f"v_cvt_pk_bf16_f32 {v(XR+i)}, {v(F+2*i)}, {v(F+2*i+1)}")
    P(f"buffer_store_dwordx4 {v(XR,4)}, {v(VXR)}, {s(SOUT,4)}, {s(sOo)} offen {OPT.get('om', '').replace('+', ' ')}")
    finish(ffn)

def softmax(p, out, LS, pk=False):
    t = T + 16
    if pk:
        assert LS == STD + 1
        L = softmax(p, out, LS)[:9]
        L += [f"v_pk_fma_f32 {v(p+i,2)}, {v(p+i,2)}, {v(STD,2)}, {v(t,2)} op_sel:[0,1,0] op_sel_hi:[1,1,0] neg_lo:[0,0,1] neg_hi:[0,0,1]" for i in range(0, 16, 2)]
        L += [f"v_exp_f32 {v(p+i)}, {v(p+i)}" for i in range(16)]
        L += [f"v_pk_add_f32 {v(t,2)}, {v(p,2)}, {v(p+2,2)}", f"v_pk_add_f32 {v(t+2,2)}, {v(p+4,2)}, {v(p+6,2)}"]
        L += [f"v_pk_add_f32 {v(t+2*(i&1),2)}, {v(t+2*(i&1),2)}, {v(p+8+2*i,2)}" for i in range(4)]
        L += [f"v_pk_add_f32 {v(t,2)}, {v(t,2)}, {v(t+2,2)}", f"v_add_f32 {v(t)}, {v(t)}, {v(t+1)}", f"v_rcp_f32 {v(t)}, {v(t)}"]
        L += [f"v_pk_mul_f32 {v(p+i,2)}, {v(p+i,2)}, {v(t,2)} op_sel_hi:[1,0]" for i in range(0, 16, 2)]
        return L + [f"v_cvt_pk_bf16_f32 {v(out+i)}, {v(p+2*i)}, {v(p+2*i+1)}" for i in range(8)]
    L = [f"v_max3_f32 {v(t)}, {v(p)}, {v(p+1)}, {v(p+2)}", f"v_max3_f32 {v(t+1)}, {v(p+3)}, {v(p+4)}, {v(p+5)}",
         f"v_max3_f32 {v(t)}, {v(t)}, {v(p+6)}, {v(p+7)}", f"v_max3_f32 {v(t+1)}, {v(t+1)}, {v(p+8)}, {v(p+9)}",
         f"v_max3_f32 {v(t)}, {v(t)}, {v(p+10)}, {v(p+11)}", f"v_max3_f32 {v(t+1)}, {v(t+1)}, {v(p+12)}, {v(p+13)}",
         f"v_max3_f32 {v(t)}, {v(t)}, {v(p+14)}, {v(p+15)}", f"v_max_f32 {v(t)}, {v(t)}, {v(t+1)}",
         f"v_mul_f32 {v(t)}, {v(t)}, {v(LS)}"]
    L += [f"v_fma_f32 {v(p+i)}, {v(p+i)}, {v(LS)}, -{v(t)}" for i in range(16)]
    L += [f"v_exp_f32 {v(p+i)}, {v(p+i)}" for i in range(16)]
    L += [f"v_add_f32 {v(t)}, {v(p)}, {v(p+1)}", f"v_add_f32 {v(t+1)}, {v(p+2)}, {v(p+3)}"]
    for i in range(4, 16, 2):
        L += [f"v_add_f32 {v(t)}, {v(t)}, {v(p+i)}", f"v_add_f32 {v(t+1)}, {v(t+1)}, {v(p+i+1)}"]
    L += [f"v_add_f32 {v(t)}, {v(t)}, {v(t+1)}", f"v_rcp_f32 {v(t)}, {v(t)}"]
    L += [f"v_mul_f32 {v(p+i)}, {v(p+i)}, {v(t)}" for i in range(16)]
    L += [f"v_cvt_pk_bf16_f32 {v(out+i)}, {v(p+2*i)}, {v(p+2*i+1)}" for i in range(8)]
    return L

setup(False)
KAREA[:] = [RC, RA+3*Q, RA, RA+Q, RA+2*Q, RB, RB+Q, RB+2*Q, RB+3*Q]
ASY = OPT.get('asy', '0') == '1'
LS = K1; VPK = K2; VV = VW3; MC = BIAS
PHI0, PHI1 = AX, AAUG
PHI0 = AX
PHI1 = S1
PHI1 = T + 12
t = T + 16
P(f"v_bfe_u32 {v(t)}, {v(vL)}, 2, 2\nv_lshrrev_b32 {v(t+1)}, 5, {v(vL)}\nv_lshl_add_u32 {v(t)}, {v(t+1)}, 2, {v(t)}\nv_lshlrev_b32 {v(t)}, 5, {v(t)}")
P(f"v_bfe_u32 {v(t+2)}, {v(vL)}, 1, 1\nv_lshl_add_u32 {v(t)}, {v(t+2)}, 3, {v(t)}\nv_bfe_u32 {v(t+2)}, {v(vL)}, 4, 1\nv_lshl_add_u32 {v(t)}, {v(t+2)}, 4, {v(t)}")
P(f"s_lshl_b32 {s(sT1)}, {s(sHALF)}, 10\ns_add_u32 {s(sT1)}, {s(sT1)}, {L_WPHI}\nv_add_u32 {v(AB)}, {s(sT1)}, {v(t)}")
P(f"v_bfe_u32 {v(t)}, {v(vL)}, 2, 1\nv_mul_u32_u24 {v(t)}, 0x8000, {v(t)}\nv_lshl_or_b32 {v(AB+1)}, {v(t)}, 16, {v(t)}")
P(f"v_and_b32 {v(t)}, 31, {v(vL)}\nv_lshlrev_b32 {v(t)}, 6, {v(t)}\ns_lshl_b32 {s(sT1)}, {s(sW34)}, 9\nv_bfe_u32 {v(t+2)}, {v(vL)}, 1, 2")
P(f"v_lshlrev_b32 {v(t+3)}, 1, {v(t+1)}\nv_xor_b32 {v(t+3)}, {v(t+3)}, {v(t+2)}")
P(f"s_lshl_b32 {s(sT2)}, {s(sHALF)}, 14\ns_add_u32 {s(sT2)}, {s(sT2)}, {s(sT1)}\nv_lshl_add_u32 {v(VPK)}, {v(t+3)}, 4, {v(t)}\nv_add_u32 {v(VPK)}, {s(sT2)}, {v(VPK)}")
P(f"v_xor_b32 {v(t+3)}, {v(t+1)}, {v(t+2)}")
P(f"s_lshl_b32 {s(sT2)}, {s(sHALF)}, 13\ns_add_u32 {s(sT2)}, {s(sT2)}, {s(sT1)}\ns_add_u32 {s(sT2)}, {s(sT2)}, {RA+32768}\nv_lshl_add_u32 {v(VV)}, {v(t+3)}, 4, {v(t)}\nv_add_u32 {v(VV)}, {s(sT2)}, {v(VV)}")
def phi_load(hl, dst):
    return [f"ds_read_b64_tr_b16 {v(dst+2*tt,2)}, {v(AB)} offset:{512*hl+256*tt}" for tt in range(2)] + \
           [f"v_xor_b32 {v(dst+i)}, {v(AB+1)}, {v(dst+i)}" for i in range(4)]
S = Sched(96)
common_sched(S, False, None, MC)
S.post[30] += [f"ds_read_b128 {v(CSR,4)}, {v(VCSA)}"]
sKV, sOS = sH0, sH3
P(f"s_lshl_b32 {s(sT0)}, {s(sG)}, 4\ns_add_u32 {s(sT0)}, {s(sT0)}, {s(sRT)}\ns_mul_i32 {s(sT0)}, {s(sT0)}, {KVP_SZ}\ns_mul_i32 {s(sT1)}, {s(sW)}, 1152\ns_add_u32 {s(sT0)}, {s(sT0)}, {s(sT1)}\ns_add_u32 {s(sT0)}, {s(sT0)}, {WS_KVP}")
P(f"s_cmp_lt_u32 {s(sW)}, 4\ns_cselect_b32 {s(sKV)}, {s(sT0)}, 0x7f000000")
P(f"s_lshl_b32 {s(sT0)}, {s(sG)}, 2\ns_lshl_b32 {s(sT1)}, {s(sHALF)}, 1\ns_add_u32 {s(sT0)}, {s(sT0)}, {s(sT1)}\ns_add_u32 {s(sT0)}, {s(sT0)}, 112\ns_lshl_b32 {s(sT0)}, {s(sT0)}, 10\ns_add_u32 {s(sOS)}, {s(sT0)}, {s(sHo)}")
PA = AAUG
OFFL = OPT.get("off", "0") == "1"
if OFFL:
    P(f"s_mul_i32 {s(sT0)}, {s(sG)}, 448\ns_and_b32 {s(sT1)}, {s(sG)}, 1\ns_add_u32 {s(sT2)}, {s(sT1)}, {s(sHALF)}\ns_lshl_b32 {s(sT2)}, {s(sT2)}, 6\ns_add_u32 {s(sT2)}, {s(sT2)}, {s(sT0)}")
    P(f"s_lshl_b32 {s(sT2)}, {s(sT2)}, 5\ns_add_u32 {s(sWq)}, {s(sT2)}, {s(sHo)}\ns_add_u32 {s(sWq)}, {s(sWq)}, 8192")
    P(f"s_xor_b32 {s(sT1)}, {s(sT1)}, 1\ns_mul_i32 {s(sT1)}, {s(sT1)}, 384\ns_add_u32 {s(sT0)}, {s(sT0)}, {s(sT1)}\ns_lshl_b32 {s(sT1)}, {s(sHALF)}, 5\ns_add_u32 {s(sT0)}, {s(sT0)}, {s(sT1)}")
    P(f"s_lshl_b32 {s(sT0)}, {s(sT0)}, 5\ns_add_u32 {s(sW3)}, {s(sT0)}, {s(sHo)}")
S.post[46] += [f"v_mov_b32 {v(PA+i)}, -1" for i in range(4)] + [f"v_lshrrev_b32 {v(S2)}, 2, {v(vL)}", f"v_lshl_add_u32 {v(S2)}, {v(S2)}, 26, {v(VL16)}"]
S.post[47] += [f"buffer_store_dwordx4 {v(PA,4)}, {v(VL16)}, {s(SWS,4)}, {s(sKV)} offen sc1"]
S.post[48] += [f"buffer_store_dwordx4 {v(PA,4)}, {v(S2)}, {s(SWS,4)}, {s(sKV)} offen offset:1024 sc1 ; tag=pz"]
pl = [(sOS, 0), (sOS, 1024)] + ([(sWq, 0), (sWq, 1024), (sW3, 0)] if OFFL else [])
for (so, off), G in zip(pl, [int(x) for x in OPT.get("pza", "50,53,56,59,62").split(",")]):
    S.post[G] += [f"buffer_store_dwordx4 {v(PA,4)}, {v(VL16)}, {s(SWS,4)}, {s(so)} offen offset:{off} sc1 ; tag=po"]
PX1 = OPT.get("px1") == "1"
if V2 and PX1:
    for j, G in zip((1, 2, 3), (56, 59, 62)): S.post[G] += xoff(j, True) + [f"buffer_store_dwordx4 {v(PA,4)}, {v(VL16)}, {s(SWS,4)}, {s(sT0)} offen sc1 ; tag=px"]
S.post[63] += [f"v_mov_b32 {v(PA+2)}, 0", f"v_mov_b32 {v(PA+3)}, 0"]
def ltouch():
    P(f"s_sub_u32 {s(sT0)}, {s(sW)}, 4\ns_cmp_lt_u32 {s(sT0)}, 3")
    P(f"s_cbranch_scc0 L_nlt")
    P.cond_begin("w456")
    P(f"v_lshlrev_b32 {v(S1)}, 7, {v(vL)}\ns_lshl_b32 {s(sT1)}, {s(sRT)}, 3\ns_add_u32 {s(sT1)}, {s(sT1)}, {s(sG)}")
    P(f"s_cmp_eq_u32 {s(sT0)}, 2\ns_cbranch_scc1 L_lt2")
    P(f"s_lshl_b32 {s(sT1)}, {s(sT1)}, 1\ns_add_u32 {s(sT1)}, {s(sT1)}, {s(sT0)}\ns_mul_i32 {s(sT1)}, {s(sT1)}, 7168")
    P(f"buffer_load_dword {v(VX0)}, {v(S1)}, {s(SW2,4)}, {s(sT1)} offen")
    P("s_branch L_nlt")
    P("L_lt2:")
    P(f"v_and_b32 {v(S1)}, 4095, {v(S1)}\ns_lshl_b32 {s(sT1)}, {s(sT1)}, 12")
    P(f"buffer_load_dword {v(VX0)}, {v(S1)}, {s(SWO,4)}, {s(sT1)} offen")
    P(f"buffer_load_dword {v(VX1)}, {v(S1)}, {s(SB2,4)}, 0 offen")
    P.cond_end()
    for I in P.ins[-12:]:
        if I.kind == "vld": I.defs = []
    P("L_nlt:")
if OPT.get("touch", "5") == "2": S.blk[("e", int(OPT.get("tg", 54)))] = ltouch
S.post[31] += stamp_i("pass1")
fill = stats_final() + aug(ACC0, CSR, None) + phi_load(0, AX) + phi_load(1, T + 8) + [f"v_mul_f32 {v(LS)}, {f2u(LOG2E):#x}, {v(RSTD)}"]
fill += [f"v_cvt_pk_bf16_f32 {v(T+i)}, {v(ACC0+2*i)}, {v(ACC0+2*i+1)}" for i in range(8)]
fill += [mfma(ACC2, AX, T, "0"), mfma(ACC0, T + 8, T + 4, "0")]
S.spread(fill, 32, 40)
S.spread(softmax(ACC2, T + 8, LS) + softmax(ACC0, T, LS), 41, 64)
pkg = 62 if OPT.get("few", "1") == "1" else 56
S.post[pkg] += [f"ds_write_b128 {v(VPK)}, {v(T+8,4)}", f"v_xor_b32 {v(VSTA)}, 16, {v(VPK)}"]
S.post[pkg+1] += [f"ds_write_b128 {v(VSTA)}, {v(T+12,4)}"]
S.post[62] += [f"ds_read_b128 {v(MC,4)}, {v(VCSA)} offset:1024"]
S.post[63] += stamp_i("sub1")
S.pre[64] += sum4(CS0, MC)
S.fill[64] += aug(ACC1, MC, None)[3:]
S.post[65] += [f"ds_write_b128 {v(VPK)}, {v(T,4)} offset:8192"]
S.post[66] += [f"ds_write_b128 {v(VSTA)}, {v(T+4,4)} offset:8192"]
fill = []
fill += [f"v_mul_f32 {v(ACC1+i)}, {v(ACC1+i)}, {v(RSTD)}" for i in range(16)]
fill += [f"v_cvt_pk_bf16_f32 {v(ACC1+i)}, {v(ACC1+2*i)}, {v(ACC1+2*i+1)}" for i in range(8)]
fill += [f"ds_write_b128 {v(VV)}, {v(ACC1,4)}", f"v_xor_b32 {v(VV)}, 32, {v(VV)}", f"ds_write_b128 {v(VV)}, {v(ACC1+4,4)}"]
S.spread(fill, 66, 70)
S.dmas(b_dma(0), 65, 3)
S.dmas(b_dma(1), 74, 4); S.dmas(b_dma(2) + b_dma(3) + b_dma(4), int(OPT.get('ab', 86)), 1)
def kvblock():
    P(".waitvm pz lgkm0")
    P("s_barrier")
    kvflag()
    stamp("kv0"); stamp("kv1")
    P(f"s_cmp_lt_u32 {s(sW)}, 4")
    P("s_cbranch_scc0 L_nkv")
    P.cond_begin("lo4")
    P("s_setprio 3")
    t = T + 16; u = S1
    P(f"v_bfe_u32 {v(u)}, {v(vL)}, 2, 2\nv_lshrrev_b32 {v(u+1)}, 5, {v(vL)}\nv_lshl_add_u32 {v(u)}, {v(u+1)}, 3, {v(u)}\nv_lshlrev_b32 {v(u)}, 6, {v(u)}")
    P(f"v_bfe_u32 {v(u+1)}, {v(vL)}, 1, 1\nv_lshl_add_u32 {v(u)}, {v(u+1)}, 3, {v(u)}\nv_bfe_u32 {v(u+1)}, {v(vL)}, 3, 1\nv_and_b32 {v(VSTA)}, 1, {v(vL)}")
    P(f"v_or_b32 {v(t)}, {s(sSH)}, {v(VSTA)}\nv_xor_b32 {v(t)}, {v(t)}, {v(u+1)}\nv_lshl_add_u32 {v(t)}, {v(t)}, 4, {v(u)}")
    P(f"s_lshr_b32 {s(sT0)}, {s(sW)}, 1\ns_lshl_b32 {s(sT0)}, {s(sT0)}, 13\ns_add_u32 {s(sT0)}, {s(sT0)}, {RA+32768}\nv_add_u32 {v(t)}, {s(sT0)}, {v(t)}\nv_xor_b32 {v(t+1)}, 32, {v(t)}")
    P(f"v_bfe_u32 {v(t+2)}, {v(vL)}, 4, 1\nv_lshl_add_u32 {v(t+2)}, {v(VSTA)}, 1, {v(t+2)}\nv_xor_b32 {v(t+2)}, {v(t+2)}, {v(u+1)}\nv_lshl_add_u32 {v(t+2)}, {v(t+2)}, 4, {v(u)}")
    P(f"s_lshl_b32 {s(sT0)}, {s(sW)}, 13\nv_add_u32 {v(t+2)}, {s(sT0)}, {v(t+2)}\nv_xor_b32 {v(t+3)}, 32, {v(t+2)}")
    P(f"v_and_b32 {v(u)}, 16, {v(vL)}\nv_cmp_eq_u32 vcc, 0, {v(u)}\nv_mov_b32 {v(u+1)}, {s(sONE)}")
    KB = [T, T + 8, ACC1, ACC1 + 8]
    def kr(J):
        for tt in range(2):
            P(f"ds_read_b64_tr_b16 {v(KB[J&3]+2*tt,2)}, {v(t+tt)} offset:{1024*J+256*tt}")
            P(f"ds_read_b64_tr_b16 {v(KB[J&3]+4+2*tt,2)}, {v(t+2+tt)} offset:{1024*J+256*tt}")
    kr(0); kr(1); kr(2)
    for J in range(8):
        for i in range(4): P(f"v_cndmask_b32 {v(KB[J&3]+i)}, {v(u+1)}, {v(KB[J&3]+i)}, vcc")
        if J + 3 < 8: kr(J + 3)
        P(mfma(ACC0, KB[J&3] + 4, KB[J&3], "0" if J == 0 else None))
    if ASY: P("s_barrier")
    P(f"v_lshrrev_b32 {v(u)}, 5, {v(vL)}\nv_and_b32 {v(t+2)}, 15, {v(vL)}\nv_lshlrev_b32 {v(t)}, 4, {v(t+2)}\nv_lshl_add_u32 {v(t)}, {v(u)}, 8, {v(t)}\nv_add_u32 {v(t+1)}, 512, {v(t)}")
    P(f"v_lshlrev_b32 {v(u)}, 4, {v(u)}\nv_add_u32 {v(u)}, 1024, {v(u)}\nv_lshl_add_u32 {v(u)}, {v(t+2)}, 26, {v(u)}\nv_add_u32 {v(u+1)}, 32, {v(u)}")
    P(f"v_cndmask_b32 {v(t)}, {v(u)}, {v(t)}, vcc\nv_cndmask_b32 {v(t+1)}, {v(u+1)}, {v(t+1)}, vcc")
    for i in range(8): P(f"v_cvt_pk_bf16_f32 {v(T+i)}, {v(ACC0+2*i)}, {v(ACC0+2*i+1)}")
    stamp("kv1")
    for j in range(2): P(f"buffer_store_dwordx4 {v(T+4*j,4)}, {v(t+j)}, {s(SWS,4)}, {s(sKV)} offen sc1")
    P.cond_end()
    P("L_nkv:")
    stamp("kv2")
S.blk[70] = kvblock
PXA = OPT.get("pxa", "72,76,81")
if PXA:
    gs_ = [int(x) for x in PXA.split(",")]
    if gs_[0] > 64:
        S.post[gs_[0] - 1] += [f"v_mov_b32 {v(PA+i)}, -1" for i in range(4)]
        S.post[gs_[2] + 2] += [f"v_mov_b32 {v(PA+2)}, 0", f"v_mov_b32 {v(PA+3)}, 0"]
    for j, G in zip((1, 2, 3), gs_): S.post[G] += xoff(j, True) + [f"buffer_store_dwordx4 {v(PA,4)}, {v(VL16)}, {s(SWS,4)}, {s(sT0)} offen sc1 ; tag=px"]
S.pre[94] += ["s_waitcnt lgkmcnt(0)", "s_barrier"]
def kvflag():
    P(f"s_cmp_eq_u32 {s(sW)}, 7")
    P("s_cbranch_scc0 L_nkf")
    P.cond_begin("w0")
    P(f"s_lshl_b32 {s(sT0)}, {s(sG)}, 8\ns_lshl_b32 {s(sT1)}, {s(sRT)}, 2\ns_add_u32 {s(sT0)}, {s(sT0)}, {s(sT1)}\ns_add_u32 {s(sT0)}, {s(sT0)}, {WS_KVF}")
    P(f"v_mov_b32 {v(VFV)}, 1")
    P(f"buffer_store_dword {v(VFV)}, {v(VZ)}, {s(SWS,4)}, {s(sT0)} offen sc1")
    P.cond_end()
    P("L_nkf:")
def kvpoll():
    P(f"s_cmp_eq_u32 {s(sW)}, 7")
    P("s_cbranch_scc0 L_nkp")
    n0 = len(P.ins)
    P(f"s_lshl_b32 {s(sT2)}, {s(sG)}, 8\ns_add_u32 {s(sT2)}, {s(sT2)}, {WS_KVF}\ns_mov_b32 {s(sCNT)}, 0")
    P("s_branch L_spkv1")
    P("L_spkv:")
    P(f"s_buffer_load_dwordx16 s[20:35], {s(SWS,4)}, {s(sT2)} glc")
    P("L_spkv1:")
    P(f"s_add_u32 {s(sCNT)}, {s(sCNT)}, 1")
    P("s_waitcnt lgkmcnt(0)")
    for i in range(22, 36, 2): P(f"s_and_b64 s[20:21], s[20:21], s[{i}:{i+1}]")
    P("s_and_b32 s20, s20, s21")
    P("s_cbranch_scc1 L_nkp")
    P(f"s_cmp_gt_u32 {s(sCNT)}, {SPIN_MAX}")
    P("s_cbranch_scc1 L_nkp")
    P("s_sleep 1")
    P("s_branch L_spkv")
    for I in P.ins[n0:]:
        I.cond = "kvp"
        if I.kind == "smem": I.kind = "opaque"
    P("L_nkp:")
def kvreq():
    P(f"s_cmp_eq_u32 {s(sW)}, 7")
    P("s_cbranch_scc0 L_nkr")
    n0 = len(P.ins)
    P(f"s_lshl_b32 {s(sT2)}, {s(sG)}, 8\ns_add_u32 {s(sT2)}, {s(sT2)}, {WS_KVF}")
    P(f"s_buffer_load_dwordx16 s[20:35], {s(SWS,4)}, {s(sT2)} glc")
    for I in P.ins[n0:]:
        I.cond = "kvp"
        if I.kind == "smem": I.kind = "opaque"
    P("L_nkr:")
VP = OPT.get("vp", "0") == "1"
VPA_, VPV = VX0, VSTA
vpl = f"buffer_load_dword {v(VPV)}, {v(VPA_)}, {s(SWS,4)}, 0 offen sc1"
if VP:
    S.fill[78] += lines(f"s_lshl_b32 {s(sT0)}, {s(sG)}, 8\ns_add_u32 {s(sT0)}, {s(sT0)}, {WS_KVF}\nv_and_b32 {v(VPA_)}, 3, {v(vL)}\nv_lshl_add_u32 {v(VPA_)}, {v(VPA_)}, 2, {s(sFL)}\nv_lshl_add_u32 {v(VPV)}, {v(vL)}, 2, {s(sT0)}\nv_cmp_gt_u32 vcc, 16, {v(vL)}\ns_nop 1\nv_cndmask_b32 {v(VPA_)}, {v(VPA_)}, {v(VPV)}, vcc")
    S.post[int(OPT.get("vpg", 86))] += [vpl]
    def vcheck0():
        P(f"v_mov_b32 {v(VPV)}, {v(VPV)}")
        spin("L_vp", vpl, f"v_cmp_gt_u32 vcc, 1, {v(VPV)}")
    S.blk[("e", 93)] = vcheck0
else:
    ab_ = int(OPT.get('ab', 86)); S.post[95] += [] if V5 else [spoll(1)]
    if ASY:
        def hibar():
            P(f"s_cmp_lt_u32 {s(sW)}, 4"); P("s_cbranch_scc1 L_nhb")
            P.cond_begin("hi4"); P("s_barrier"); P.cond_end(); P("L_nhb:")
        S.blk[ab_] = hibar; S.blk[94] = lambda: (kvreq(), kvpoll())
    else: S.blk[ab_] = lambda: (kvreq(), kvpoll())
S.post[94] += [f"ds_read_b128 {v(CSR,4)}, {v(VCSA)} offset:2048"]
S.post[80] += phi_load(1, T + 8)[:2]; S.post[82] += phi_load(1, T + 8)[2:]
PQ = WF
def Gq(r): return XF + 8 * r
Z = XF + 80; GA = XF + 64
VG, VGZ = S1, S2
gsetup = lines(f"s_mul_i32 {s(sK)}, {s(sG)}, {16*KVP_SZ}\ns_lshr_b32 {s(sT0)}, {s(sW)}, 1\ns_mul_i32 {s(sT0)}, {s(sT0)}, 1152\ns_add_u32 {s(sK)}, {s(sK)}, {s(sT0)}\ns_add_u32 {s(sK)}, {s(sK)}, {WS_KVP}")
gsetup += lines(f"v_and_b32 {v(VGZ)}, 15, {v(vL)}\nv_mul_u32_u24 {v(VGZ)}, {KVP_SZ}, {v(VGZ)}\nv_and_b32 {v(VG)}, 16, {v(vL)}\nv_add_u32 {v(VGZ)}, {v(VGZ)}, {v(VG)}\ns_lshl_b32 {s(sT0)}, {s(sSH)}, 4\nv_add_u32 {v(VGZ)}, {s(sT0)}, {v(VGZ)}")
gsetup += lines(f"v_lshrrev_b32 {v(VG)}, 5, {v(vL)}\nv_mul_u32_u24 {v(VG)}, {8*KVP_SZ - 512}, {v(VG)}\nv_add_u32 {v(VG)}, {v(VG)}, {v(VL16)}\ns_lshl_b32 {s(sT0)}, {s(sSH)}, 8\nv_add_u32 {v(VG)}, {s(sT0)}, {v(VG)}")
gl = [[f"buffer_load_dwordx4 {v(Z,4)}, {v(VGZ)}, {s(SWS,4)}, {s(sK)} offen offset:1024 sc1"]]
for r in range(8):
    gl.append(lines(f"s_add_u32 {s(sD1)}, {s(sRT)}, {r}\ns_and_b32 {s(sD1)}, {s(sD1)}, 7\ns_mul_i32 {s(sD1)}, {s(sD1)}, {KVP_SZ}\ns_add_u32 {s(sD1)}, {s(sD1)}, {s(sK)}") +
              [f"buffer_load_dwordx4 {v(Gq(r),4)}, {v(VG)}, {s(SWS,4)}, {s(sD1)} offen sc1"])
S.fill[76] += gsetup
g0_ = int(OPT.get("gg", 94))
gl_in = min(9, 96 - g0_)
S.dmas(gl[:gl_in], g0_)
run_sched(S, [ACC0, ACC1, ACC2])
stamp("sub2")
P.add(aug(ACC2, CSR, None))
for g_ in gl[gl_in:gl_in+2]: P.add(g_)
for i in range(8): P(f"v_cvt_pk_bf16_f32 {v(T+i)}, {v(ACC2+2*i)}, {v(ACC2+2*i+1)}")
P(mfma(ACC1, AX, T, "0"))
P(mfma(ACC2, T + 8, T + 4, "0"))
stamp("phi")
n_tail0 = len(P.ins)
NBT = int(OPT.get('nbt', 3))
bd = sum([b_dma(kk) for kk in (5, 6, 7)[:NBT]], []) + [[]] * (6 - 2 * NBT)
TO = OPT.get("to", "a")
sm1 = softmax(ACC1, PQ, LS, True); sm2 = softmax(ACC2, PQ + 8, LS, True)
if TO == "a":
    P.add(interleave(gl[gl_in+2:], sm1[:30]) + interleave(bd[:2], sm1[30:])); bd = bd[2:]
else:
    P.add(interleave(gl[gl_in+2:], sm1[:30]) + interleave(bd[:4], sm1[30:] + sm2[:33])); bd = bd[4:]; sm2 = sm2[33:]
if not VP and not V5: sneed(1, 1)
P(spoll(0))
stamp("qsm")
validate([Z + i for i in range(4)] + [Gq(r) + i for r in range(8) for i in range(4)], T + 4, sum(gl, []))
stamp("kvseen")
aj = sum([a_jobs(kk) for kk in range(8)], [])
n_o0 = len(P.ins)
P(f"v_lshrrev_b32 {v(T+1)}, 5, {v(vL)}")
P(f"v_bfe_u32 {v(T+2)}, {v(vL)}, 4, 1\nv_lshlrev_b32 {v(T+2)}, 9, {v(T+2)}\nv_lshl_add_u32 {v(T+2)}, {v(T+1)}, 3, {v(T+2)}")
P(f"s_lshl_b32 {s(sT0)}, {s(sW)}, 10\ns_add_u32 {s(sT0)}, {s(sT0)}, {L_KVB}\nv_add_u32 {v(T+2)}, {s(sT0)}, {v(T+2)}")
P(f"v_and_b32 {v(T+3)}, 15, {v(vL)}\nv_lshl_add_u32 {v(T+3)}, {v(T+3)}, 4, {v(T+2)}")
P(f"v_cmp_gt_u32 vcc, 32, {v(vL)}\ns_mov_b32 {s(sT0)}, 0x3f80\ns_mov_b32 {s(sT1)}, 0x3f800000")
P(f"v_cndmask_b32 {v(Z)}, {v(Z+2)}, {v(Z)}, vcc\nv_cndmask_b32 {v(Z+1)}, {v(Z+3)}, {v(Z+1)}, vcc")
P(f"v_lshlrev_b32 {v(Z+8)}, 16, {v(Z)}\nv_and_b32 {v(Z+9)}, 0xffff0000, {v(Z)}\nv_lshlrev_b32 {v(Z+10)}, 16, {v(Z+1)}\nv_and_b32 {v(Z+11)}, 0xffff0000, {v(Z+1)}")
for ror in (8, 4, 2, 1):
    for i in range(4): P(f"v_add_f32_dpp {v(Z+8+i)}, {v(Z+8+i)}, {v(Z+8+i)} row_ror:{ror} row_mask:0xf bank_mask:0xf")
P(f"v_cvt_pk_bf16_f32 {v(Z)}, {v(Z+8)}, {v(Z+9)}\nv_cvt_pk_bf16_f32 {v(Z+1)}, {v(Z+10)}, {v(Z+11)}")
P(f"ds_write_b64 {v(T+2)}, {v(Z,2)} offset:256")
def ga(i): return GA + (i & 3) + 8 * (i >> 2)
for i in range(4):
    P(f"v_lshlrev_b32 {v(ga(2*i))}, 16, {v(Gq(0)+i)}\nv_and_b32 {v(ga(2*i+1))}, 0xffff0000, {v(Gq(0)+i)}")
for r in range(1, 8):
    for i in range(4):
        P(f"v_dot2c_f32_bf16 {v(ga(2*i))}, {s(sT0)}, {v(Gq(r)+i)}\nv_dot2c_f32_bf16 {v(ga(2*i+1))}, {s(sT1)}, {v(Gq(r)+i)}")
for i in range(4): P(f"v_permlane32_swap_b32 {v(ga(i))}, {v(ga(i+4))}")
for i in range(4): P(f"v_add_f32 {v(ga(i))}, {v(ga(i))}, {v(ga(i+4))}")
P(f"v_cvt_pk_bf16_f32 {v(GA)}, {v(GA)}, {v(GA+1)}\nv_cvt_pk_bf16_f32 {v(GA+1)}, {v(GA+2)}, {v(GA+3)}")
P(f"ds_write_b64 {v(T+3)}, {v(GA,2)}")
stamp("gsum")
P(f"v_and_b32 {v(T)}, 31, {v(vL)}\nv_min_u32 {v(T)}, 16, {v(T)}\nv_and_b32 {v(T+1)}, 32, {v(vL)}\nv_add_u32 {v(T)}, {v(T)}, {v(T+1)}\nv_lshlrev_b32 {v(T)}, 4, {v(T)}")
P(f"s_lshl_b32 {s(sT0)}, {s(sHALF)}, 12\ns_add_u32 {s(sT0)}, {s(sT0)}, {L_KVB}\nv_add_u32 {v(T)}, {s(sT0)}, {v(T)}")
body = P.ins[n_o0:]; del P.ins[n_o0:]
for i, g_ in enumerate(bd):
    P.add(g_); P.ins += body[len(body)*i//len(bd): len(body)*(i+1)//len(bd)]
stamp("pre1")
sneed(1, 0)
stamp("post1")
if NP: aj = aj[:4]
P.add(interleave(aj, sm2))
stamp("sm2")
P(f".waitvm b{4+NBT} lgkm0")
if OPT.get("tp"):
    per = int(OPT["tp"]); body = P.ins[n_tail0:]; del P.ins[n_tail0:]; c = 0; lv = 3
    P("s_setprio 3")
    for I in body:
        P.ins.append(I)
        if I.kind == "valu" and not I.cond and not I.op.startswith("v_cmp"):
            c += 1
            if c % per == 0: lv = (lv - 1) & 3; P(f"s_setprio {lv}")
stamp("ob0")
P("s_barrier")
stamp("ob1")
for i in range(4): P(f"ds_read_b128 {v(Gq(i),4)}, {v(T)} offset:{1024*i}")
P(mfma(ACC0, Gq(0), PQ, "0")); P(mfma(ACC1, Gq(2), PQ + 8, "0"))
P(mfma(ACC0, Gq(1), PQ + 4)); P(mfma(ACC1, Gq(3), PQ + 12))
if NP: P(spoll(0))
EA = int(OPT.get("ea", 0))
if EA and not NP:
    for kk in range(8, 8 + EA): P.add(a_jobs(kk)[0])
for hl, acc in enumerate((ACC0, ACC1)):
    P(f"v_add_f32 {v(acc+8)}, {f2u(1e-6):#x}, {v(acc+8)}\nv_rcp_f32 {v(acc+8)}, {v(acc+8)}")
    for i in range(0, 8, 2): P(f"v_pk_mul_f32 {v(acc+i,2)}, {v(acc+i,2)}, {v(acc+8,2)} op_sel_hi:[1,0]")
    for i in range(4): P(f"v_cvt_pk_bf16_f32 {v(T+4*hl+i)}, {v(acc+2*i)}, {v(acc+2*i+1)}")
    P(f"buffer_store_dwordx4 {v(T+4*hl,4)}, {v(VL16)}, {s(SWS,4)}, {s(sOS)} offen offset:{1024*hl} sc1 ; ost")
stamp("p1end")
if V5: phase2_v5(tuple(range(5 + NBT, 9)), False)
elif V3: phase2_v3((8,), (), False)
elif V2: phase2_v2(tuple(range(5 + NBT, 9)), False)
else: phase2(("B6", "B7"), "A4 A5 A6 B8 A7 B9 A8 B10 A9 B11 A10 B12 A11 B13 A12 B14 A13 B15 B16 B17 A14 A15 A16 A17")

P("L_ffn:")
P(".reset")
setup(True)
KAREA[:] = [RC, RA+2*Q, RA+3*Q, RB, RB+Q, RB+2*Q, RA, RA+Q, RB+3*Q]
MC = ACC2; CSF = ACC2 + 4
S = Sched(112)
common_sched(S, True, None, MC)
S.post[30] += [f"ds_read_b128 {v(CSF,4)}, {v(VCSA)}"]
if not NP: S.post[40] += [f"s_add_u32 {s(sT2)}, {s(sH0)}, 4096", f"s_add_u32 {s(sK)}, {s(sH0)}, 8192"]
pzs = [[f"buffer_store_dwordx4 {v(PZ,4)}, {v(VL16)}, {s(SWS,4)}, {s(so)} offen offset:{off} sc1 ; tag=h1"]
       for so, off in ((sT2, 0), (sT2, 1024), (sK, 0), (sK, 1024), (sH3, 0))[:0 if NP else 2 if OFFL else 5]]
for g_, G in zip(pzs, [int(x) for x in OPT.get("pz", "50,56,59,67,70").split(",")]): S.post[G] += g_
S.post[31] += stamp_i("pass1")
fill = stats_final() + aug(ACC0, CSF, BIAS)
fill += [f"v_mul_f32 {v(K1)}, {f2u(GC1):#x}, {v(RSTD)}", f"v_mul_f32 {v(K2)}, {v(RSTD)}, {v(RSTD)}",
         f"v_mul_f32 {v(K2)}, {v(K2)}, {v(RSTD)}", f"v_mul_f32 {v(K2)}, {f2u(GC2):#x}, {v(K2)}"]
S.spread(fill, 32, 39)
S.spread(gelu(ACC0, 16) + hstore(sH0, 2, "h1") + [f"s_add_u32 {s(sH0)}, {s(sH0)}, 4096"], 39, 64)
S.post[62] += [f"ds_read_b128 {v(CSF,4)}, {v(VCSA)} offset:1024"]
S.post[63] += stamp_i("sub1")
S.spread(aug(ACC1, CSF, BIAS + 1), 64, 66)
S.spread(gelu(ACC1, 16) + hstore(sH0, 2, "h2") + [f"s_add_u32 {s(sH0)}, {s(sH0)}, 4096"], 67, 96)
w3 = sum([w3quarter(q, 3584) for q in range(4)], [])
for g_, G in zip(w3 + b_dma(0), [int(x) for x in OPT.get("w3", "64,68,72,76,74,75" if OPT.get("few", "1") == "1" else "48,54,60,72,75,76").split(",")]): S.dma[G] += g_
S.dmas(b_dma(1), 78, 2); S.dmas(b_dma(2), 82, 2); S.dmas(b_dma(3), 86, 2); S.dmas(b_dma(4), 90, 2); S.dmas(b_dma(5), 98, 2)
S.pre[94] += [".waitvm w3 lgkm0", "s_barrier"]
S.post[94] += [f"ds_read_b128 {v(CSF,4)}, {v(VCSA)} offset:2048"]
S.post[95] += stamp_i("sub2")
if V2 and PX1:
    for j, G in zip((1, 2, 3), [int(x) for x in OPT.get("pxg", "91,93,102").split(",")]): S.post[G] += xoff(j, True) + [f"buffer_store_dwordx4 {v(PZ,4)}, {v(VL16)}, {s(SWS,4)}, {s(sT0)} offen sc1 ; tag=px"]
S.fill[96] += aug(ACC0, CSF, BIAS + 2)
if OFFL: S.post[106] += [f"s_sub_u32 {s(sT2)}, {s(sFO)}, 1024", f"s_buffer_load_dword {s(sK)}, {s(SWS,4)}, {s(sT2)} glc"]
S.spread(gelu(ACC0, 16), 98, 112)
if V3: S.post[97] += va3_init
aj = sum([a_jobs(kk) for kk in range(4 if NP else 8 if V2 and not V3 else 6)], []) + [[]] * 8
S.dmas(aj[:6], 106); aj = aj[2:]
for i in range(0, 16, 2): S.post[96 + i] += [m16(MC, SEL, WF + 4 * (i & 3), "0" if i == 0 else None)]
run_sched(S, [ACC0, ACC1, ACC0, ACC1])
t = T + 16
P(f"v_and_b32 {v(t)}, 31, {v(vL)}\ns_lshl_b32 {s(sT0)}, {s(sHALF)}, 4\nv_xor_b32 {v(t)}, {s(sT0)}, {v(t)}\nv_lshlrev_b32 {v(t)}, 4, {v(t)}\nv_add_u32 {v(t)}, {L_CS+3072}, {v(t)}")
P(f"v_add_u32 {v(t+1)}, {s(sW34)}, {v(VCSA)}")
P(f"ds_write_b32 {v(t+1)}, {v(MC)} offset:3072")
P.add(aj[4])
XO = 4096 if V2 else 1024
P(f"s_add_u32 {s(sT1)}, {s(sMB if V2 else sM0x)}, {KAREA[8]}\ns_xor_b32 {s(sT0)}, {s(sT1)}, 8192\nv_add_u32 {v(t+1)}, {s(sT0)}, {v(VL16)}\nv_add_u32 {v(AB)}, {s(sT1)}, {v(VL16)}")
P(f"ds_write_b128 {v(t+1)}, {v(ACC1+8,4)}\nds_write_b128 {v(t+1)}, {v(ACC1+12,4)} offset:{XO}")
P(".waitvm b5 lgkm0")
P("s_barrier")
stamp("sub3")
P(f"ds_read_b128 {v(CSF,4)}, {v(t)}")
P(f"ds_read_b128 {v(ACC0,4)}, {v(AB)}\nds_read_b128 {v(ACC0+4,4)}, {v(AB)} offset:{XO}")
P.add(aj[5])
P.add(aug(ACC1, CSF, BIAS + 3))
P.add(aj[6] + aj[7])
if NP: P.add(flag(2, "h2"))
for i in range(0, 8, 2): P(f"v_pk_add_f32 {v(ACC1+i,2)}, {v(ACC1+i,2)}, {v(ACC0+i,2)}")
stamp("x7")
gt = gelu(ACC1, 8, True, out=BIAS); h3 = hstore(sH0, 2, "h3")
if not V5: sneed(1, 1)
if OFFL: own_check()
P.add(aj[8] + gt[:10] + aj[9] + gt[10:20] + [h3[0]] + gt[20:30] + [h3[1]] + gt[30:] + hstore(sH3, 1, "h4", BIAS))
stamp("p1end")
if V5: phase2_v5((6, 7, 8), True)
elif V3: phase2_v3((6, 7, 8), (6, 7), True)
elif V2: phase2_v2((6, 7, 8), True)
else: phase2(("A4", "A5"), "B6 A6 B7 A7 B8 B9 A8 B10 A9 B11 A10 B12 A11 B13 A12 B14 A13 B15 B16 B17 A14 A15 A16 A17", True)

P("L_end:")
P("s_endpgm")

ins = P.ins
for I in ins:
    if "; nodef" in I.text: I.defs = []
if OPT.get("nodma"): ins = [I for I in ins if I.kind != "dma"]
if OPT.get("notr"): ins = [I for I in ins if not I.op.startswith("ds_read_b64_tr")]
if OPT.get("nofmac"): ins = [I for I in ins if not (I.op.startswith("v_fmac") or (I.op == "v_and_b32" and "0xffff0000" in I.text) or (I.op == "v_lshlrev_b32" and I.ops[1] == "16"))]
if OPT.get("nom16"): ins = [I for I in ins if "16x16x32" not in I.op]
if OPT.get("notrans"): ins = [I for I in ins if not I.op.startswith(("v_exp", "v_rcp"))]
if OPT.get("novalu"): ins = [I for I in ins if not I.op.startswith(("v_exp", "v_rcp", "v_mul_f32", "v_fma_f32", "v_cvt_pk", "v_max3", "v_add_f32"))]
if OPT.get("nopk"): ins = [I for I in ins if not I.op.startswith(("v_pk_", "v_dot2c"))]
if OPT.get("noval"): ins = [I for I in ins if not (I.op == "s_cbranch_vccnz" and "_slow" in I.text)]
if OPT.get("noa"): ins = [I for I in ins if not (I.kind == "vld" and "x4" in I.op and "sc1" in I.mods)]
if OPT.get("nob"): ins = [I for I in ins if not (I.kind == "dma" and (s(SW2,4) in I.text or s(SWO,4) in I.text))]
if OPT.get("anosc"):
    for I in ins:
        if I.kind == "vld" and "x4" in I.op: I.text = I.text.replace(" sc1", " " + OPT["anosc"].replace("0", ""))
if OPT.get("nopz"): ins = [I for I in ins if not (I.kind == "vst" and "x4" in I.op and (v(PZ,4) in I.text or v(AAUG,4) in I.text) and s(SWS,4) in I.text)]
if OPT.get("plain"):
    for I in ins:
        if I.kind == "vst" and "x4" in I.op and s(SWS,4) in I.text and ("tag=h" in I.text or "tag=po" in I.text or "; ost" in I.text): I.text = I.text.replace(" sc1", "")
if OPT.get("nohs"):
    ins = [I for I in ins if not (I.op.startswith("s_buffer_load") or I.text.startswith((".waitvm h", ".waitvm po", ".waitvm zf")) or (I.op == "s_branch" and ("L_sp" in I.text or "L_ncs" in I.text or "L_oc" in I.text) and "spkv1" not in I.text))]
    for I in ins:
        if I.text.startswith(".waitvm pz"): I.text = ".waitvm none lgkm0"
if OPT.get("nost"): ins = [I for I in ins if not (I.kind == "vst" and "x4" in I.op and "tag=h" in I.text)]
if OPT.get("nomfma"): ins = [I for I in ins if I.kind != "mfma"]
if STAMP:
    for I in ins:
        if I.op in ("s_memrealtime", "s_memtime"): I.kind = "salu"
if OPT.get("nopx"): ins = [I for I in ins if not (I.kind == "vst" and "tag=px" in I.text)]
if OPT.get("nopo"): ins = [I for I in ins if not (I.kind == "vst" and "x4" in I.op and I.ops[0] == v(AAUG,4) and s(SWS,4) in I.text)]
AB_ = OPT.get("abl", "")
iffn = [i for i, I in enumerate(ins) if I.text == "L_ffn:"][0]
def att(i): return i < iffn
if "g" in AB_: ins = [I for i, I in enumerate(ins) if not (I.kind == "vld" and I.ops[1] in (v(S1), v(S2)) and "x4" in I.op)]
if "k" in AB_: ins = [I for i, I in enumerate(ins) if not (I.cond == "lo4" and I.kind in ("valu", "dsr", "mfma"))]
if "s" in AB_: ins = [I for i, I in enumerate(ins) if not (att(i) and I.op.startswith(("v_exp", "v_fma_f32", "v_max3_f32", "v_pk_fma", "v_pk_mul_f32")))]
if "b" in AB_: ins = [I for i, I in enumerate(ins) if not (att(i) and I.kind == "dma" and (s(SW2,4) in I.text or s(SWO,4) in I.text))]
if "m" in AB_: ins = [I for I in ins if not ("4x4x4" in I.op or "16x16x32" in I.op)]
if "x" in AB_: ins = [I for I in ins if not (I.kind in ("vld", "vst") and "x4" in I.op and I.ops[3] == s(sT0) and s(SWS,4) in I.text and not I.cond)]
if "e" in AB_: ins = [I for i, I in enumerate(ins) if not (not att(i) and I.op.startswith(("v_exp", "v_rcp", "v_fma_f32", "v_mul_f32")))]
if OPT.get("jit"):
    import random
    rnd = random.Random(int(OPT["jit"])); new = []; n_ = 0
    for I in ins:
        if I.kind == "mfma" and rnd.random() < 0.12:
            n_ += 1; src = rnd.choice([f"{s(sW)}, {rnd.randrange(3)}", f"s2, {rnd.randrange(8)}"])
            for tx in (f"s_bitcmp{rnd.randrange(2)}_b32 {src}", f"s_cbranch_scc0 L_j{n_}", f"s_sleep {rnd.choice([2, 8, 20, 40])}", f"L_j{n_}:"):
                J = Ins(tx, I.cond or ("jit" if tx.startswith("s_sleep") else None)); new.append(J)
        new.append(I)
    ins = new
ins = auto_wait(ins)
st = []
ins = hazards(ins, st)
hdr = open("parallel_sum__linear_kernel_hedgehog__dense_activation_gelu__prompt.s.ref").read().split("; Override")[0]
out = hdr + f"; @launch grid=(256,1,1) block=(512,1,1) lds={LDS_SIZE}\n"
out += f'.amdgcn_target "amdgcn-amd-amdhsa--gfx950"\n.text\n.globl {NAME}\n.p2align 8\n.type {NAME},@function\n{NAME}:\n'
out += render(ins)
out += f""".section .rodata,"a"
.p2align 6
.amdhsa_kernel {NAME}
  .amdhsa_next_free_vgpr 256
  .amdhsa_next_free_sgpr 102
  .amdhsa_accum_offset 256
  .amdhsa_group_segment_fixed_size 0
  .amdhsa_kernarg_size 96
  .amdhsa_user_sgpr_count 2
  .amdhsa_user_sgpr_kernarg_segment_ptr 1
  .amdhsa_system_sgpr_workgroup_id_x 1
.end_amdhsa_kernel
"""
open(sys.argv[1], "w").write(out)
print(f"instrs={sum(1 for I in ins if I.kind not in ('label','dir'))} nop-sites={len(st)} nop-states={sum(n for n,_ in st)}", file=sys.stderr)
if OPT.get("nops"):
    for n, tx in st: print(n, tx, file=sys.stderr)
```

```python
import sys, math, struct
from ir import *

NAME = "parallel_sum__linear_kernel_hedgehog__dense_activation_gelu__prompt_kernel"
OPT = dict(a.split("=") for a in sys.argv[2:] if "=" in a)
STAMP = int(OPT.get("stamp", 0))

def f2u(x): return struct.unpack("<I", struct.pack("<f", x))[0]
LOG2E = 1.4426950408889634
GC1 = -2.0 * LOG2E * math.sqrt(2.0 / math.pi)
GC2 = GC1 * 0.044715

HF_RB = 144 * 1024
WS_KVP = 0xA00000
KVP_SZ = 4608
WS_FLG = 0xC00000
WS_KVF = 0xC08000
WS_STAMP = 0xD00000
WS_X = 0x1000000
WS_SIZE = 0x1800000
V5 = OPT.get('v5', '0') == '1'
XRG = OPT.get('xr', '0') == '1'
NP = OPT.get('np', '1') == '1'
if NP: OPT['r8'] = '0'
V3 = OPT.get('p2', '2') == '3'
V2 = OPT.get('p2', '2') in '23'
RA, RB, RC = 0, 65536, 131072
L_KVB = 147456
L_CS = 155648
L_ST = L_CS + 4096
L_WPHI = L_CS + 6144
LDS_SIZE = 163840
SPIN_MAX = 1 << 15

sW, sRT, sG, sM, sN = 3, 4, 5, 6, 7
SX, SW2, SWS, SWT, SAUX, SDBG, SWO, SOUT = 8, 12, 16, 20, 24, 28, 36, 40
sXo, sWo, sROT, sC1 = 32, 33, 34, 35
SB2 = 92
sFL, sOo, sM0x, sT0, sT1, sSIG, sONE, sFO, sHALF, sHo, sWq, sW3, sT2, sCNT, sW34, sT3 = range(44, 60)
sEX = 60
sH0, sH3, sM4, sK = 62, 63, 64, 65
sST = 66
sB2o, sBOo = 90, 91
sA0, sA1, sR4, sSH, sD0, sD1 = range(96, 102)
sOK = sSIG
sQ = [sXo, sWo, sROT, sC1]
sPL = 28
VCSA = 0; vL = 1
AX = 2; AW = 6; AB = 10; VZ, VFV = 12, 13
VX0, VX1, VW, VB, VW3 = 14, 15, 16, 17, 18
VSTA, S1, S2, CS0 = 19, 20, 21, 22
VW0 = 22
RSTD, STD, K1, K2, VL16 = 23, 24, 25, 26, 27
BAUG, AAUG, SEL, BIAS = 28, 32, 36, 40
T = 44
WF = 64
ACC0, ACC1, ACC2 = 80, 96, 112
XF = 128
VTD = int(OPT.get('vtd', 15))
PZ = ACC2 + 8

P = Prog()
STI = dict(start=0, kernarg=1, it0=2, pass1=3, sub1=4, sub2=5, qsm=6, sub3=6, kvseen=7, x7=7, p1end=8, hseen=9, p2mm=10, end=11)
if OPT.get("sp") == "p2": STI = dict(start=0, p1end=1, k1=2, k3=3, k5=4, k7=5, k9=6, k11=7, k13=8, k15=9, p2mm=10, end=11)
if OPT.get("sp") == "att": STI = dict(start=0, sub1=1, kv0=2, kv1=3, kv2=4, sub2=5, qsm=6, kvseen=7, sm2=8, gsum=9, p1end=10, end=11)
if OPT.get("sp", "").startswith("l:"): STI = {n: i for i, n in enumerate(["start"] + OPT["sp"][2:].split(","))}
def stamp_i(name):
    if not STAMP or name not in STI: return []
    i = STI[name]
    return [f"{'s_memrealtime' if STAMP == 1 else 's_memtime'} {s(sST + 2*i, 2)} ; stamp {i} {name}"]
def stamp(name): P.add(stamp_i(name))

def mfma(d, a, b, c=None):
    return f"v_mfma_f32_32x32x16_bf16 {v(d,16)}, {v(a,4)}, {v(b,4)}, {v(d,16) if c is None else c}"
def m16(d, a, b, c=None):
    return f"v_mfma_f32_16x16x32_bf16 {v(d,4)}, {v(a,4)}, {v(b,4)}, {v(d,4) if c is None else c}"
def srd(base, nbytes):
    P(f"s_mov_b32 {s(base+2)}, {nbytes}\ns_mov_b32 {s(base+3)}, 0x20000")
def lines(t): return [l for l in t.split("\n") if l.strip()]

P("s_cmp_ge_u32 s2, 256")
P("s_cbranch_scc1 L_end")
stamp("start")
if OPT.get("exit0"): P("s_endpgm")
if OPT.get("cpf", "1") == "3":
    P(f"s_getpc_b64 {s(sEX,2)}")
    P("L_pc0:")
    P(f"v_subrev_u32 v3, 320, v0\nv_cmp_gt_u32 vcc, 16, v3\ns_lshr_b32 {s(sT0)}, s2, 3\ns_lshl_b32 {s(sT0)}, {s(sT0)}, 11")
    P("s_cbranch_vccz L_ncp0")
    P.cond_begin("cp0")
    P(f"v_and_b32 v3, 15, v3\nv_lshlrev_b32 v3, 7, v3\nv_add_u32 v3, {s(sT0)}, v3\nv_min_u32 v3, L_end-L_pc0, v3")
    P(f"global_load_dword v253, v3, {s(sEX,2)}")
    P.cond_end()
    P("L_ncp0:")
if OPT.get("cpf", "1") == "2":
    P(f"s_getpc_b64 {s(sEX,2)}")
    P("L_pc0:")
    P(f"v_lshlrev_b32 v3, 7, v0")
    P(f"v_min_u32 v3, L_end-L_pc0, v3")
    P(f"global_load_dword v253, v3, {s(sEX,2)}")
P(f"s_load_dwordx2 {s(SX,2)}, s[0:1], 0")
P(f"s_load_dwordx2 {s(SWT,2)}, s[0:1], 8")
P(f"s_load_dwordx2 {s(sA0,2)}, s[0:1], 40")
P(f"v_lshrrev_b32 v2, 6, v0")
P(f"v_and_b32 {v(vL)}, 63, v0")
P(f"s_lshr_b32 {s(sT1)}, s2, 3")
P(f"v_readfirstlane_b32 {s(sW)}, v2")
OWN = False
AF_ = OPT.get('af', '0') == '1'
P(f"s_and_b32 {s(sRT)}, s2, 4\ns_lshl_b32 {s(sRT)}, {s(sRT)}, 1\ns_and_b32 {s(sT2)}, {s(sT1)}, 7\ns_add_u32 {s(sRT)}, {s(sRT)}, {s(sT2)}")
P(f"v_lshrrev_b32 v2, 3, {v(vL)}\nv_and_b32 v3, 7, {v(vL)}\nv_lshrrev_b32 v4, 4, {v(vL)}")
P(f"s_lshl_b32 {s(sXo)}, {s(sRT)}, 17\ns_lshl_b32 {s(sT2)}, {s(sW)}, 14\ns_add_u32 {s(sXo)}, {s(sXo)}, {s(sT2)}")
P(f"v_xor_b32 v5, v3, v4\nv_lshl_add_u32 v5, v5, 4, {s(sXo)}\nv_lshl_add_u32 {v(VX0)}, v2, 10, v5")
P(f"s_lshr_b32 {s(sN)}, {s(sT1)}, 3\ns_lshl_b32 {s(sT2)}, {s(sN)}, 1\ns_add_u32 {s(sROT)}, {s(sRT)}, {s(sT2)}\ns_and_b32 {s(sROT)}, {s(sROT)}, {0 if OPT.get('norot') else OPT.get('rm', 7)}")
P(f"v_xor_b32 v5, 64, {v(VX0)}\nv_add_u32 {v(VX1)}, {8192-1024}, v5")
srd(SX, 2097152)
P(f"s_lshl_b32 {s(sM0x)}, {s(sW)}, 11\ns_lshl_b32 {s(sK)}, {s(sROT)}, 7\ns_mov_b32 m0, {s(sM0x)}")
P(f"v_and_b32 v4, 1, v4\nv_lshlrev_b32 v4, 2, v4\nv_xor_b32 v4, v3, v4\nv_lshlrev_b32 v4, 4, v4")
P(f"s_and_b32 {s(sM)}, s2, 3\ns_lshl_b32 {s(sG)}, {s(sM)}, 1\n" + (f"s_and_b32 {s(sT2)}, {s(sN)}, 1" if AF_ else f"s_lshr_b32 {s(sT2)}, {s(sT1)}, 4") + f"\ns_add_u32 {s(sG)}, {s(sG)}, {s(sT2)}")
P(f"s_lshr_b32 {s(sD0)}, {s(sM0x)}, 1")
P("s_waitcnt lgkmcnt(0)")
stamp("kernarg")
P(f"buffer_load_dwordx4 {v(VX0)}, {s(SX,4)}, {s(sK)} offen lds")
P(f"buffer_load_dwordx4 {v(VX1)}, {s(SX,4)}, {s(sK)} offen offset:1024 lds")
P(f"s_load_dwordx2 {s(SWS,2)}, s[0:1], 88")
P(f"s_load_dwordx2 {s(SDBG,2)}, s[0:1], 80")
P(f"s_load_dwordx2 {s(SW2,2)}, s[0:1], 56")
P(f"s_load_dwordx2 {s(SWO,2)}, s[0:1], 24")
P(f"s_load_dwordx2 {s(SOUT,2)}, s[0:1], 72")
P(f"s_load_dwordx2 {s(SB2,2)}, s[0:1], 64")
assert V2
P(f"s_bitcmp1_b32 {s(sT1)}, {4 if AF_ else 3}")
P("s_cbranch_scc1 L_ffn")

def item1(it, pitch):
    q = it & 3
    return [[f"s_add_u32 m0, {s(sM0x)}, {RA+q*16384}", f"s_mul_i32 {s(sD1)}, {s(sK)}, {pitch//2}",
             f"buffer_load_dwordx4 {v(VX0)}, {s(SX,4)}, {s(sK)} offen lds"],
            [f"buffer_load_dwordx4 {v(VX1)}, {s(SX,4)}, {s(sK)} offen offset:1024 lds"],
            [f"s_add_u32 m0, {s(sD0)}, {RB+it*8192}", f"s_add_u32 {s(sK)}, {s(sK)}, 128",
             f"buffer_load_dwordx4 {v(VW0)}, {s(SWT,4)}, {s(sD1)} offen lds ; tag=it{it}",
             f"s_and_b32 {s(sK)}, {s(sK)}, 1023"]]
def wquarter(region, q, coloff, pitch, tag):
    return [[f"s_add_u32 m0, {s(sM0x)}, {region+q*16384}", f"s_add_u32 {s(sD1)}, {s(sQ[q])}, {coloff}",
             f"buffer_load_dwordx4 {v(VW)}, {s(SWT,4)}, {s(sD1)} offen lds"],
            [f"s_add_u32 {s(sD1)}, {s(sD1)}, {8*pitch-1024}",
             f"buffer_load_dwordx4 {v(VW)}, {s(SWT,4)}, {s(sD1)} offen offset:1024 lds ; tag={tag}"]]
def w3quarter(q, pitch):
    return [[f"s_lshr_b32 {s(sD1)}, {s(sM0x)}, 1", f"s_add_u32 m0, {s(sD1)}, {RA+q*8192}", "s_nop 0",
             f"buffer_load_dwordx4 {v(VW3)}, {s(SWT,4)}, {s(sQ[q])} offen lds ; tag=w3"]]

def spin(label, load, cmp):
    P(f"s_mov_b32 {s(sCNT)}, 0")
    P(f"{label}:")
    P(cmp)
    P(f"s_add_u32 {s(sCNT)}, {s(sCNT)}, 1")
    P(f"s_cbranch_vccz {label}_ok")
    P(f"s_cmp_gt_u32 {s(sCNT)}, {SPIN_MAX}")
    P(f"s_cbranch_scc1 {label}_ok")
    P("s_sleep 1")
    old = P._cond; P._cond = label
    P(load)
    P("s_waitcnt vmcnt(0)")
    P._cond = old
    P(f"s_branch {label}")
    P(f"{label}_ok:")

def gelu(acc, n, pk=False, t0=T, out=T):
    L = []
    for g4 in range(0, n, 4):
        t = t0 + 8 + (g4 & 4)
        a = [acc + g4 + i for i in range(4)]
        if pk:
            L += [f"v_pk_mul_f32 {v(t+i,2)}, {v(a[i],2)}, {v(a[i],2)}" for i in (0, 2)]
            L += [f"v_pk_fma_f32 {v(t+i,2)}, {v(t+i,2)}, {v(K2,2)}, {v(STD,2)} op_sel:[0,0,1] op_sel_hi:[1,0,1]" for i in (0, 2)]
            L += [f"v_pk_mul_f32 {v(t+i,2)}, {v(a[i],2)}, {v(t+i,2)}" for i in (0, 2)]
        else:
            L += [f"v_mul_f32 {v(t+i)}, {v(a[i])}, {v(a[i])}" for i in range(4)]
            L += [f"v_fma_f32 {v(t+i)}, {v(t+i)}, {v(K2)}, {v(K1)}" for i in range(4)]
            L += [f"v_mul_f32 {v(t+i)}, {v(a[i])}, {v(t+i)}" for i in range(4)]
        L += [f"v_exp_f32 {v(t+i)}, {v(t+i)}" for i in range(4)]
        if pk: L += [f"v_pk_fma_f32 {v(t+i,2)}, {v(t+i,2)}, {v(STD,2)}, {v(STD,2)} op_sel_hi:[1,0,0]" for i in (0, 2)]
        else: L += [f"v_fma_f32 {v(t+i)}, {v(t+i)}, {v(STD)}, {v(STD)}" for i in range(4)]
        L += [f"v_rcp_f32 {v(t+i)}, {v(t+i)}" for i in range(4)]
        if pk: L += [f"v_pk_mul_f32 {v(t+i,2)}, {v(a[i],2)}, {v(t+i,2)}" for i in (0, 2)]
        else: L += [f"v_mul_f32 {v(t+i)}, {v(a[i])}, {v(t+i)}" for i in range(4)]
        pr = out + (g4 >> 1)
        L += [f"v_cvt_pk_bf16_f32 {v(pr)}, {v(t)}, {v(t+1)}", f"v_cvt_pk_bf16_f32 {v(pr+1)}, {v(t+2)}, {v(t+3)}"]
    return L
def hstore(soff, n, tagn, src=T):
    return [f"buffer_store_dwordx4 {v(src+4*j,4)}, {v(VL16)}, {s(SWS,4)}, {s(soff)} offen offset:{1024*j} sc1 ; tag={tagn}" for j in range(n)]
assert K1 == STD + 1

def sum4(d, r):
    return [f"v_add_f32 {v(d)}, {v(r)}, {v(r+1)}", f"v_add_f32 {v(r+2)}, {v(r+2)}, {v(r+3)}", f"v_add_f32 {v(d)}, {v(d)}, {v(r+2)}"]

MS, U = T + 4, T + 16
CSR = T + 12
MC = AAUG

def stats_final():
    t = T + 16
    return [f"v_add_f32 {v(S1)}, {v(MS)}, {v(MS+2)}", f"v_add_f32 {v(S2)}, {v(MS+1)}, {v(MS+3)}",
          f"v_mul_f32 {v(S1)}, {f2u(-1.0/512):#x}, {v(S1)}",
          f"v_mul_f32 {v(t)}, {v(S1)}, {v(S1)}",
          f"v_fma_f32 {v(S2)}, {v(S2)}, {s(sT3)}, -{v(t)}",
          f"v_max_f32 {v(S2)}, 0, {v(S2)}",
          f"v_cvt_pk_bf16_f32 {v(t)}, {v(S2)}, {v(S1)}",
          f"v_lshlrev_b32 {v(S2)}, 16, {v(t)}",
          f"v_add_f32 {v(S2)}, {f2u(1e-5):#x}, {v(S2)}",
          f"v_cvt_pk_bf16_f32 {v(S2)}, {v(S2)}, {v(S2)}",
          f"v_and_b32 {v(S2)}, 0xffff0000, {v(S2)}",
          f"v_sqrt_f32 {v(S2)}, {v(S2)}",
          f"v_lshrrev_b32 {v(BAUG)}, 16, {v(t)}",
          f"v_cmp_gt_u32 vcc, 32, {v(vL)}",
          f"v_cvt_pk_bf16_f32 {v(BAUG+1)}, {v(S1)}, {v(S2)}",
          f"v_mov_b32 {v(BAUG+2)}, 0",
          f"v_and_b32 {v(STD)}, 0xffff0000, {v(BAUG+1)}",
          f"v_rcp_f32 {v(RSTD)}, {v(STD)}",
          f"v_cndmask_b32 {v(BAUG)}, 0, {v(BAUG)}, vcc",
          f"v_cndmask_b32 {v(BAUG+1)}, 0, {v(BAUG+1)}, vcc"]

def aug(acc, part, bias):
    t = T + 18; dst = AAUG
    L = sum4(CS0, part) + [f"v_cvt_pk_bf16_f32 {v(dst)}, {v(CS0)}, {v(CS0)}",
         f"v_and_b32 {v(t)}, 0xffff0000, {v(dst)}",
         f"v_sub_f32 {v(t)}, {v(CS0)}, {v(t)}"]
    if bias is None:
        L += [f"v_cvt_pk_bf16_f32 {v(dst+1)}, {v(t)}, 0"]
    else:
        L += [f"v_cvt_pk_bf16_f32 {v(t)}, {v(t)}, 0", f"v_mov_b32 {v(dst+2)}, {v(bias)}",
              f"v_lshl_or_b32 {v(dst+1)}, {v(bias)}, 16, {v(t)}"]
    return L + [mfma(acc, dst, BAUG)]

def flag(level, tag):
    return [f".waitvm {tag}", f"v_mov_b32 {v(VFV)}, {level}",
            f"buffer_store_dword {v(VFV)}, {v(VZ)}, {s(SWS,4)}, {s(sFO)} offen sc1"]

Q = 16384
KAREA = []
sSK = sM4 if V2 else sSH
sMB = sSIG
def rot_k(kk, dst):
    if kk < 8 and OPT.get("r8", "1") == "1": return [f"s_add_u32 {s(dst)}, {s(sR4)}, {kk}", f"s_and_b32 {s(dst)}, {s(dst)}, 7", f"s_add_u32 {s(dst)}, {s(dst)}, {s(sSK)}"]
    if kk < 12: return [f"s_add_u32 {s(dst)}, {s(sR4)}, {kk}", f"s_and_b32 {s(dst)}, {s(dst)}, 3", f"s_add_u32 {s(dst)}, {s(dst)}, {s(sSK)}"] + \
                       ([f"s_add_u32 {s(dst)}, {s(dst)}, {kk & ~3}"] if kk & ~3 else [])
    if kk < 14: return [f"s_mul_i32 {s(dst)}, {s(sSK)}, 6", f"s_sub_u32 {s(dst)}, {kk}, {s(dst)}"]
    return [f"s_add_u32 {s(dst)}, {s(sR4)}, {kk-14}", f"s_and_b32 {s(dst)}, {s(dst)}, 3"]
def rot_p(sg, dst, sh):
    add = lambda x: ([f"s_add_u32 {s(dst)}, {s(dst)}, {x}"] if x else [])
    shf = (lambda: add(sh)) if isinstance(sh, int) else (lambda: [f"s_add_u32 {s(dst)}, {s(dst)}, {s(sh[0])}"])
    if sg < 4: return [f"s_add_u32 {s(dst)}, {s(sR4)}, {sg}", f"s_and_b32 {s(dst)}, {s(dst)}, 3"] + shf()
    if sg < 6: return [f"s_add_u32 {s(dst)}, {s(sR4)}, {sg}", f"s_and_b32 {s(dst)}, {s(dst)}, 1", f"s_add_u32 {s(dst)}, {s(dst)}, 4"] + shf()
    if sg == 6: return [f"s_mov_b32 {s(dst)}, {6 - 6*sh}"] if isinstance(sh, int) else [f"s_mul_i32 {s(dst)}, {s(sh[0])}, 6", f"s_sub_u32 {s(dst)}, 6, {s(dst)}"]
    return [f"s_add_u32 {s(dst)}, {s(sR4)}, {sg}", f"s_and_b32 {s(dst)}, {s(dst)}, 1"]
VBO = VW3
vbo_init = [f"v_lshrrev_b32 {v(VBO)}, 2, {v(vL)}", f"v_lshlrev_b32 {v(VBO)}, 10, {v(VBO)}", f"v_and_b32 {v(VFV)}, 48, {v(VL16)}", f"v_add_u32 {v(VBO)}, {v(VBO)}, {v(VFV)}"]
def b_dma(kk):
    if V5 and kk >= 7:
        return [[f"s_add_u32 {s(sD0)}, {s(sW3)}, {(kk-7)*8 + e*4}", f"s_and_b32 {s(sD0)}, {s(sD0)}, 15", f"s_lshl_b32 {s(sD0)}, {s(sD0)}, 14",
                 f"s_add_u32 m0, {s(sMB)}, {KAREA[kk] + e*4096}", f"s_add_u32 {s(sD0)}, {s(sD0)}, {s(sBOo)}",
                 f"buffer_load_dwordx4 {v(VBO)}, {s(SWO,4)}, {s(sD0)} offen lds ; tag=b{kk}"] for e in range(2)]
    if V3:
        sr, so = (SW2, sB2o) if kk < 7 else (SWO, sBOo)
        return [rot_p(kk, sD0, [sHALF]) + [f"s_lshl_b32 {s(sD0)}, {s(sD0)}, 15", f"s_add_u32 m0, {s(sMB)}, {KAREA[kk]}", f"s_add_u32 {s(sD0)}, {s(sD0)}, {s(so)}",
                 f"buffer_load_dwordx4 {v(VB)}, {s(sr,4)}, {s(sD0)} offen lds"],
                [f"s_add_u32 m0, {s(sMB)}, {KAREA[kk] + 4096}", f"s_add_u32 {s(sD0)}, {s(sD0)}, 16384",
                 f"buffer_load_dwordx4 {v(VB)}, {s(sr,4)}, {s(sD0)} offen lds ; tag=b{kk}"]]
    if V2:
        G_ = []
        for pos in (2 * kk, 2 * kk + 1):
            sr, so = (SW2, sB2o) if pos < 14 else (SWO, sBOo)
            G_.append(rot_k(pos, sD0) + [f"s_lshl_b32 {s(sD0)}, {s(sD0)}, 14", f"s_add_u32 m0, {s(sMB)}, {KAREA[kk] + (pos & 1) * 4096}", f"s_add_u32 {s(sD0)}, {s(sD0)}, {s(so)}",
                      f"buffer_load_dwordx4 {v(VB)}, {s(sr,4)}, {s(sD0)} offen lds ; tag=b{kk}"])
        return G_
    slot = kk % 9
    m0 = f"s_add_u32 m0, {s(sM0x)}, {KAREA[slot]}"
    sr, so = (SW2, sB2o) if kk < 14 else (SWO, sBOo)
    return [rot_k(kk, sD0) + [f"s_lshl_b32 {s(sD0)}, {s(sD0)}, 14", m0, f"s_add_u32 {s(sD0)}, {s(sD0)}, {s(so)}",
             f"buffer_load_dwordx4 {v(VB)}, {s(sr,4)}, {s(sD0)} offen lds"],
            [f"s_add_u32 {s(sD0)}, {s(sD0)}, {8192 - 1024}",
             f"buffer_load_dwordx4 {v(VB)}, {s(sr,4)}, {s(sD0)} offen offset:1024 lds ; tag=b{kk}"]]

def setup(ffn):
    pitch = 3584 if ffn else 3072
    tp = "f" if ffn else "a"
    if ffn: P(f"s_mov_b64 {s(SWT,2)}, {s(sA0,2)}")
    P(f"s_load_dwordx2 {s(SAUX,2)}, s[0:1], {48 if ffn else 16}")
    srd(SWT, 1835008 if ffn else 1572864)
    P(f"v_mul_u32_u24 {v(VW)}, {pitch}, v2\nv_add_u32 {v(VW)}, {v(VW)}, v4")
    if ffn:
        P(f"s_mul_i32 {s(sT0)}, {s(sG)}, 448\ns_and_b32 {s(sT1)}, {s(sG)}, 1\ns_lshl_b32 {s(sT2)}, {s(sT1)}, 6\ns_add_u32 {s(sWq)}, {s(sT0)}, {s(sT2)}")
        P(f"s_mul_i32 {s(sWo)}, {s(sW)}, {8*pitch}\ns_add_u32 {s(sWo)}, {s(sWo)}, {s(sWq)}")
    else:
        P(f"s_lshl_b32 {s(sWq)}, {s(sG)}, 7")
        P(f"s_mul_i32 {s(sWo)}, {s(sW)}, {8*pitch}\ns_add_u32 {s(sWo)}, {s(sWo)}, {s(sWq)}\ns_add_u32 {s(sWo)}, {s(sWo)}, 1024")
    P(f"v_add_u32 {v(VW0)}, {s(sWo)}, {v(VW)}")
    if STAMP and "slow" in STI: P(f"s_mov_b32 {s(sST+2*STI['slow'])}, {s(sST)}")
    P(f"s_mul_i32 {s(sD1)}, {s(sK)}, {pitch//2}")
    P.add(item1(0, pitch)[2])
    P("s_waitcnt lgkmcnt(0)")
    srd(SWS, WS_SIZE); srd(SDBG, 256); srd(SW2, 1835008); srd(SWO, 524288); srd(SOUT, 2097152); srd(SB2, 1024); srd(SAUX, 3584 if ffn else 16384)
    P(f"v_lshlrev_b32 {v(VL16)}, 4, {v(vL)}")
    P(f"s_lshr_b32 {s(sHALF)}, {s(sW)}, 2")
    P(f"s_and_b32 {s(sW34)}, {s(sW)}, 3\ns_xor_b32 {s(sSIG)}, {s(sW34)}, {s(sHALF)}")
    if not ffn:
        for i in range(4): P(f"v_mov_b32 {v(T+i)}, 0")
        P(f"s_lshl_b32 {s(sT0)}, {s(sW)}, 8\ns_add_u32 {s(sT0)}, {s(sT0)}, s2\ns_sub_u32 {s(sT0)}, {s(sT0)}, 256\ns_cmp_lt_u32 {s(sT0)}, 8")
        P(f"s_cbranch_scc0 L_nzero")
        P.cond_begin("zw")
        P(f"s_lshl_b32 {s(sT0)}, s2, 12\ns_add_u32 {s(sT0)}, {s(sT0)}, {WS_FLG}")
        for i in range(4): P(f"buffer_store_dwordx4 {v(T,4)}, {v(VL16)}, {s(SWS,4)}, {s(sT0)} offen offset:{1024*i} sc1")
        P(f"s_lshl_b32 {s(sT0)}, s2, 8\ns_add_u32 {s(sT0)}, {s(sT0)}, {WS_KVF}\nv_lshlrev_b32 v3, 2, {v(vL)}")
        P(f"buffer_store_dword {v(T)}, v3, {s(SWS,4)}, {s(sT0)} offen sc1 ; tag=zf")
        P.cond_end()
        P(f"L_nzero:")
    if OPT.get("touch", "5") == "1":
        P(f"s_cmp_lt_u32 {s(sW)}, 6")
        P(f"s_cbranch_scc1 L_nt{tp}")
        P.cond_begin("w67")
        P(f"v_lshlrev_b32 v3, 7, {v(vL)}\ns_mul_i32 {s(sT0)}, s2, 7168\ns_lshl_b32 {s(sT1)}, s2, 11")
        P(f"s_cmp_eq_u32 {s(sW)}, 6\ns_cbranch_scc0 L_nta{tp}")
        P(f"buffer_load_dword v255, v3, {s(SW2,4)}, {s(sT0)} offen")
        P(f"s_branch L_nt{tp}")
        P(f"L_nta{tp}:")
        P(f"v_and_b32 v3, 2047, v3")
        P(f"buffer_load_dword v255, v3, {s(SWO,4)}, {s(sT1)} offen")
        P(f"buffer_load_dword v254, v3, {s(SB2,4)}, 0 offen")
        P.cond_end()
        P(f"L_nt{tp}:")
    def wtouch():
        P(f"s_sub_u32 {s(sT0)}, {s(sW)}, 2\ns_cmp_lt_u32 {s(sT0)}, {min(3 if ffn else 2, int(OPT.get('wtn', 2)))}")
        P(f"s_cbranch_scc0 L_nw{tp}")
        P.cond_begin("w234")
        P(f"v_mul_u32_u24 v3, {pitch}, {v(vL)}\ns_mul_i32 {s(sT1)}, {s(sROT)}, {64*pitch}\ns_add_u32 {s(sT1)}, {s(sT1)}, {s(sWq)}")
        if ffn:
            P(f"s_lshl_b32 {s(sT2)}, {s(sT0)}, 7\ns_add_u32 {s(sT1)}, {s(sT1)}, {s(sT2)}\ns_add_u32 {s(sT1)}, {s(sT1)}, 128")
            P(f"s_lshr_b32 {s(sT0)}, {s(sT0)}, 1\ns_and_b32 {s(sT0)}, {s(sT0)}, {s(sG)}\ns_mul_i32 {s(sT0)}, {s(sT0)}, 448\ns_sub_u32 {s(sT1)}, {s(sT1)}, {s(sT0)}")
        else:
            P(f"s_xor_b32 {s(sT0)}, {s(sT0)}, 1\ns_lshl_b32 {s(sT0)}, {s(sT0)}, 11\ns_add_u32 {s(sT1)}, {s(sT1)}, {s(sT0)}")
        if OPT.get("wt", "2") == "2": P(f"s_mov_b32 {s(sCNT)}, {s(sT1)}")
        else: P(f"buffer_load_dword v250, v3, {s(SWT,4)}, {s(sT1)} offen")
        P.cond_end()
        P(f"L_nw{tp}:")
    if OPT.get("wt", "2") == "2": P(f"s_mov_b32 {s(sCNT)}, 0x7f000000")
    if OPT.get("wt", "2") != "0": wtouch()
    if OPT.get("sw", "0") != "0":
        c1_, c2_ = (128, 256) if ffn else (1024, -1024)
        P(f"s_mul_i32 {s(sT0)}, {s(sROT)}, {64*pitch}\ns_add_u32 {s(sT0)}, {s(sT0)}, {s(sWo)}")
        for cc, n_ in ((c1_, 8), (c2_, int(OPT["sw"]) - 8)):
            if n_ <= 0: continue
            P(f"s_add_u32 {s(sT1)}, {s(sT0)}, {cc}")
            for j in range(n_): P(f"s_buffer_load_dword {s(sCNT)}, {s(SWT,4)}, {s(sT1)} offset:{j*pitch} ; nodef")
    if OPT.get("cpf", "1") == "1":
        P(f"s_cmp_eq_u32 {s(sW)}, 5")
        P(f"s_cbranch_scc0 L_ncp{tp}")
        P.cond_begin("w5")
        P(f"s_getpc_b64 {s(sEX,2)}")
        P(f"L_pc{tp}:")
        P(f"s_sub_u32 {s(sEX)}, {s(sEX)}, L_pc{tp}-{NAME}\ns_subb_u32 {s(sEX+1)}, {s(sEX+1)}, 0")
        P(f"s_lshr_b32 {s(sT0)}, s2, 3\ns_lshl_b32 {s(sT0)}, {s(sT0)}, 11\nv_and_b32 v3, 15, {v(vL)}\nv_lshlrev_b32 v3, 7, v3\nv_add_u32 v3, {s(sT0)}, v3")
        P(f"v_min_u32 v3, L_end-{NAME}, v3")
        P(f"global_load_dword v253, v3, {s(sEX,2)}")
        P.cond_end()
        P(f"L_ncp{tp}:")
    if OPT.get("pt", "0") == "1":
        P(f"s_cmp_eq_u32 {s(sW)}, 4")
        P(f"s_cbranch_scc0 L_npt{tp}")
        n0 = len(P.ins)
        P(f"v_lshlrev_b32 v3, 21, {v(vL)}")
        P(f"buffer_load_dword v252, v3, {s(SWS,4)}, 0 offen")
        for i_, sr_ in enumerate((SOUT, SW2, SWO, SB2)): P(f"buffer_load_dword v{248+i_}, v3, {s(sr_,4)}, 0 offen")
        for I in P.ins[n0:]: I.cond = "w4"
        P(f"L_npt{tp}:")
    def stouch():
        n0 = len(P.ins)
        P(f"s_lshl_b32 {s(sT0)}, s2, 3\ns_add_u32 {s(sT0)}, {s(sT0)}, {s(sW)}\ns_mul_i32 {s(sT1)}, {s(sT0)}, 768\ns_mul_i32 {s(sT0)}, {s(sT0)}, 896")
        for i in range(6): P(f"s_load_dword {s(sCNT)}, {s(sEX,2)}, {s(sT1)} offset:{128*i}")
        for i in range(7): P(f"s_load_dword {s(sCNT)}, {s(sA0,2)}, {s(sT0)} offset:{128*i}")
    if OPT.get("stouch", "0") == "1": stouch()
    late1 = OPT.get("late1", "0") == "1"
    if not late1:
        for g_ in item1(1, pitch): P.add(g_)
    P(f"s_lshl_b32 {s(sT0)}, {s(sRT)}, 4\ns_add_u32 {s(sT0)}, {s(sT0)}, {s(sG)}\ns_lshl_b32 {s(sT0)}, {s(sT0)}, 7")
    P(f"s_and_b32 {s(sT1)}, {s(sW)}, 2\ns_lshl_b32 {s(sT1)}, {s(sT1)}, 3\ns_add_u32 {s(sT0)}, {s(sT0)}, {s(sT1)}\ns_and_b32 {s(sT1)}, {s(sW)}, 1\ns_lshl_b32 {s(sT1)}, {s(sT1)}, 2\ns_add_u32 {s(sT0)}, {s(sT0)}, {s(sT1)}\ns_lshl_b32 {s(sT1)}, {s(sHALF)}, 3\ns_add_u32 {s(sT0)}, {s(sT0)}, {s(sT1)}")
    if V3: P(f"s_and_b32 {s(sT1)}, {s(sW)}, 2\ns_lshl_b32 {s(sT1)}, {s(sT1)}, 3\ns_add_u32 {s(sT0)}, {s(sT0)}, {s(sT1)}\ns_and_b32 {s(sT1)}, {s(sG)}, 1\ns_mul_i32 {s(sT1)}, {s(sT1)}, 112\ns_sub_u32 {s(sT0)}, {s(sT0)}, {s(sT1)}")
    P(f"s_add_u32 {s(sFO)}, {s(sT0)}, {WS_FLG + (1024 if ffn else 0)}")
    P(f"s_lshl_b32 {s(sT0)}, {s(sRT)}, 2\ns_add_u32 {s(sT0)}, {s(sT0)}, {s(sW34)}\ns_mul_i32 {s(sHo)}, {s(sT0)}, {HF_RB}")
    if ffn:
        P(f"v_and_b32 v5, 31, {v(vL)}\nv_lshlrev_b32 v5, 1, v5")
        P(f"s_lshl_b32 {s(sT0)}, {s(sHALF)}, 6\ns_add_u32 {s(sT0)}, {s(sT0)}, {s(sWq)}")
        for i in range(3): P(f"buffer_load_ushort {v(BIAS+i)}, v5, {s(SAUX,4)}, {s(sT0)} offen offset:{128*i}")
        P(f"s_lshl_b32 {s(sT0)}, {s(sT0)}, 5\ns_add_u32 {s(sH0)}, {s(sHo)}, {s(sT0)}")
        P(f"s_mul_i32 {s(sW3)}, {s(sG)}, 448\ns_add_u32 {s(sT0)}, {s(sW3)}, 384\ns_bitcmp1_b32 {s(sG)}, 0\ns_cselect_b32 {s(sW3)}, {s(sW3)}, {s(sT0)}")
        P(f"s_lshl_b32 {s(sT0)}, {s(sHALF)}, 5\nv_xor_b32 v5, {s(sT0)}, v5")
        P(f"buffer_load_ushort {v(BIAS+3)}, v5, {s(SAUX,4)}, {s(sW3)} offen")
        P(f"s_add_u32 {s(sT0)}, {s(sT0)}, {s(sW3)}\ns_lshl_b32 {s(sT0)}, {s(sT0)}, 5\ns_add_u32 {s(sH3)}, {s(sHo)}, {s(sT0)}")
        P(f"v_lshrrev_b32 v2, 2, {v(vL)}\nv_and_b32 v4, 3, {v(vL)}\nv_lshlrev_b32 v4, 4, v4\nv_mul_u32_u24 {v(VW3)}, {pitch}, v2\nv_add_u32 {v(VW3)}, {v(VW3)}, v4")
    else:
        P(f"s_cmp_lt_u32 {s(sW)}, 2")
        P(f"s_cbranch_scc0 L_nphi")
        P.cond_begin("w01")
        P(f"s_lshl_b32 {s(sT0)}, {s(sG)}, 11\ns_lshl_b32 {s(sT1)}, {s(sW)}, 10\ns_add_u32 {s(sT0)}, {s(sT0)}, {s(sT1)}\ns_add_u32 m0, {s(sT1)}, {L_WPHI}\ns_nop 0")
        P(f"buffer_load_dwordx4 {v(VL16)}, {s(SAUX,4)}, {s(sT0)} offen lds")
        P.cond_end()
        P("L_nphi:")
        P(f"s_mov_b64 {s(SAUX,2)}, {s(sA0,2)}\ns_mov_b32 {s(SAUX+2)}, 1835008")
    P(f"s_mul_i32 {s(sT0)}, {s(sW34)}, {16*pitch}\ns_add_u32 {s(sWq)}, {s(sWq)}, {s(sT0)}")
    P(f"v_add_u32 {v(VW)}, {s(sWq)}, {v(VW)}")
    if ffn: P(f"s_add_u32 {s(sW3)}, {s(sW3)}, {s(sT0)}\nv_add_u32 {v(VW3)}, {s(sW3)}, {v(VW3)}")
    P(f"s_add_u32 {s(sT0)}, {s(sROT)}, {s(sHALF)}")
    for q in range(4):
        P(f"s_add_u32 {s(sT1)}, {s(sT0)}, {2*q}\ns_and_b32 {s(sT1)}, {s(sT1)}, 7\ns_mul_i32 {s(sQ[q])}, {s(sT1)}, {64*pitch}")
    P(f"s_mov_b32 {s(sT3)}, {f2u(1.0/512):#x}\ns_mov_b32 {s(sONE)}, 0x3f803f80")
    P(f"v_bfe_u32 {v(T)}, {v(vL)}, 2, 2\nv_lshrrev_b32 {v(T+1)}, 5, {v(vL)}")
    P(f"v_bfe_u32 {v(T+2)}, {v(vL)}, 4, 1\nv_lshlrev_b32 {v(T+2)}, 5, {v(T+2)}\nv_and_b32 {v(T+3)}, 3, {v(vL)}\nv_lshl_add_u32 {v(T+2)}, {v(T+3)}, 3, {v(T+2)}")
    P(f"v_and_b32 {v(T+4)}, 31, {v(vL)}\nv_bfe_u32 {v(T+5)}, {v(vL)}, 1, 3\nv_xor_b32 {v(T+5)}, {v(T+5)}, {v(T+1)}")
    P(f"s_lshl_b32 {s(sT0)}, {s(sW34)}, 12\nv_lshlrev_b32 {v(T+8)}, 7, {v(T+4)}\nv_add_u32 {v(T+8)}, {s(sT0)}, {v(T+8)}")
    P(f"v_lshl_add_u32 {v(T+9)}, {v(T+1)}, 3, {v(T)}\nv_lshl_add_u32 {v(T+10)}, {v(T+9)}, 7, {v(T+2)}\nv_lshrrev_b32 {v(T+7)}, 1, {v(T)}\nv_xor_b32 {v(T+7)}, {s(sHALF)}, {v(T+7)}\nv_lshl_add_u32 {v(T+10)}, {v(T+7)}, 6, {v(T+10)}")
    for p in range(4):
        P(f"s_xor_b32 {s(sT0)}, {s(sSIG)}, {p}\ns_lshl_b32 {s(sT1)}, {s(sT0)}, 1\nv_xor_b32 {v(T+6)}, {s(sT1)}, {v(T+5)}\nv_lshl_add_u32 {v(AX+p)}, {v(T+6)}, 4, {v(T+8)}")
        P(f"s_lshl_b32 {s(sT1)}, {s(sT0)}, 11\ns_add_u32 {s(sT1)}, {s(sT1)}, {RB}\nv_add_u32 {v(AW+p)}, {s(sT1)}, {v(T+10)}")
    if ffn:
        P(f"s_lshl_b32 {s(sT0)}, {s(sHALF)}, 5\nv_xor_b32 {v(T+7)}, {s(sT0)}, {v(T+2)}\nv_lshl_add_u32 {v(T+7)}, {v(T+9)}, 6, {v(T+7)}")
        for i, p in enumerate((0, 2)):
            P(f"s_xor_b32 {s(sT0)}, {s(sSIG)}, {p}\ns_lshl_b32 {s(sT0)}, {s(sT0)}, 10\nv_add_u32 {v(AB+i)}, {s(sT0)}, {v(T+7)}")
    P(f"v_lshlrev_b32 {v(T+4)}, 4, {v(T+4)}")
    P(f"s_lshl_b32 {s(sT0)}, {s(sHALF)}, 9\ns_add_u32 {s(sT0)}, {s(sT0)}, {L_CS}\nv_add_u32 {v(VCSA)}, {s(sT0)}, {v(T+4)}")
    P(f"s_lshl_b32 {s(sT0)}, {s(sW34)}, 9\ns_add_u32 {s(sT0)}, {s(sT0)}, {L_ST}\nv_add_u32 {v(VSTA)}, {s(sT0)}, {v(T+4)}")
    P(f"v_lshrrev_b32 {v(T+4)}, 2, {v(vL)}\nv_xor_b32 {v(T+4)}, {v(T+4)}, {v(vL)}\nv_and_b32 {v(T+4)}, 4, {v(T+4)}\nv_cmp_eq_u32 vcc, 0, {v(T+4)}\nv_mov_b32 {v(T+4)}, {s(sONE)}")
    for i in range(4): P(f"v_mov_b32 {v(PZ+i)}, -1")
    for r in (VZ, BAUG+3, AAUG+2, AAUG+3): P(f"v_mov_b32 {v(r)}, 0")
    for i in range(4): P(f"v_cndmask_b32 {v(SEL+i)}, 0, {v(T+4)}, vcc")
    P(f"s_lshl_b32 {s(sW34)}, {s(sW34)}, 2")
    if late1:
        for g_ in item1(1, pitch): P.add(g_)
    if OPT.get("stouch", "0") == "2": stouch()
    if V2:
        P(f"v_lshrrev_b32 {v(T)}, 4, {v(vL)}\nv_lshlrev_b32 {v(T+1)}, 2, {v(T)}\nv_and_b32 {v(T+2)}, 15, {v(vL)}\nv_xor_b32 {v(T+2)}, {v(T+2)}, {v(T+1)}\nv_lshlrev_b32 {v(T+2)}, 4, {v(T+2)}\nv_lshl_add_u32 {v(VB)}, {v(T)}, 10, {v(T+2)}")
        P(f"s_lshl_b32 {s(sT2)}, {s(sM)}, 1\ns_add_u32 {s(sT2)}, {s(sT2)}, {s(sHALF)}")
        P(f"s_lshl_b32 {s(sT0)}, {s(sN)}, 8\ns_lshl_b32 {s(sT1)}, {s(sW34)}, 10\ns_add_u32 {s(sT1)}, {s(sT1)}, {s(sT0)}")
        P(f"s_mul_i32 {s(sB2o)}, {s(sT2)}, {224*1024}\ns_add_u32 {s(sB2o)}, {s(sB2o)}, {s(sT1)}\ns_lshl_b32 {s(sBOo)}, {s(sT2)}, 16\ns_add_u32 {s(sBOo)}, {s(sBOo)}, {s(sT1)}")
        P(f"s_mul_i32 {s(sA0)}, {s(sT2)}, {14*1024}\ns_add_u32 {s(sA0)}, {s(sA0)}, {s(sHo)}\ns_lshl_b32 {s(sA1)}, {s(sT2)}, 12\ns_add_u32 {s(sA1)}, {s(sA1)}, {s(sHo)}\ns_add_u32 {s(sA1)}, {s(sA1)}, {112*1024}")
        P(f"s_lshl_b32 {s(sT1)}, {s(sRT)}, 4\ns_add_u32 {s(sT1)}, {s(sT1)}, {s(sT2)}\ns_lshl_b32 {s(sT1)}, {s(sT1)}, 7\ns_and_b32 {s(sFL)}, {s(sW)}, 2\ns_lshl_b32 {s(sFL)}, {s(sFL)}, 3\ns_add_u32 {s(sFL)}, {s(sFL)}, {s(sT1)}\ns_add_u32 {s(sFL)}, {s(sFL)}, {WS_FLG}")
        P(f"s_mul_i32 {s(sR4)}, {s(sN)}, 5\ns_lshr_b32 {s(sR4)}, {s(sR4)}, 1\ns_add_u32 {s(sR4)}, {s(sR4)}, {s(sRT)}\ns_and_b32 {s(sR4)}, {s(sR4)}, 7")
        P(f"s_lshl_b32 {s(sT2)}, {s(sT2)}, 5\ns_add_u32 {s(sN)}, {s(sT0)}, {s(sT2)}")
        P(f"s_lshl_b32 {s(sOo)}, {s(sRT)}, 17\ns_lshl_b32 {s(sT1)}, {s(sW34)}, 13\ns_add_u32 {s(sOo)}, {s(sOo)}, {s(sT1)}\ns_add_u32 {s(sOo)}, {s(sOo)}, {s(sN)}")
        P(f"s_and_b32 {s(sSH)}, {s(sW)}, 1\ns_lshl_b32 {s(sSH)}, {s(sSH)}, 1\ns_lshl_b32 {s(sSK)}, {s(sHALF)}, 1")
        if XRG:
            P(f"s_lshr_b32 {s(sT0)}, {s(sN)}, 8\ns_lshl_b32 {s(sT0)}, {s(sT0)}, 1\ns_add_u32 {s(sT0)}, {s(sT0)}, {s(sRT)}\ns_lshr_b32 {s(sT1)}, {s(sN)}, 7\ns_sub_u32 {s(sT1)}, {s(sT1)}, {s(sT0)}\ns_and_b32 {s(sT1)}, {s(sT1)}, 7\ns_lshl_b32 {s(sT1)}, {s(sT1)}, 4")
            P(f"s_lshr_b32 {s(sT0)}, {s(sN)}, 5\ns_and_b32 {s(sT0)}, {s(sT0)}, 3\ns_xor_b32 {s(sT0)}, {s(sT0)}, {s(sSIG)}\ns_lshl_b32 {s(sT0)}, {s(sT0)}, 2\ns_add_u32 {s(sWq)}, {s(sT1)}, {s(sT0)}")
        P(f"s_lshl_b32 {s(sMB)}, {s(sHALF)}, 13\ns_lshl_b32 {s(sT1)}, {s(sW34)}, 8\ns_add_u32 {s(sMB)}, {s(sMB)}, {s(sT1)}")
        if V5:
            P(f"s_lshr_b32 {s(sWq)}, {s(sN)}, 8\ns_lshl_b32 {s(sWq)}, {s(sWq)}, 2\ns_lshr_b32 {s(sW3)}, {s(sW34)}, 2\ns_add_u32 {s(sW3)}, {s(sW3)}, {s(sWq)}")
            P(f"s_lshl_b32 {s(sT0)}, {s(sHALF)}, 5\ns_sub_u32 {s(sBOo)}, {s(sN)}, {s(sT0)}\ns_lshl_b32 {s(sT0)}, {s(sHALF)}, 18\ns_add_u32 {s(sBOo)}, {s(sBOo)}, {s(sT0)}")
            P(f"s_lshl_b32 {s(sT0)}, {s(sHALF)}, 14\ns_add_u32 {s(sA1)}, {s(sHo)}, {s(sT0)}\ns_add_u32 {s(sA1)}, {s(sA1)}, {112*1024}")
        if V3:
            P(f"s_lshl_b32 {s(sT0)}, {s(sSH)}, 4\nv_xor_b32 {v(VB)}, {s(sT0)}, {v(VB)}")
            P(f"s_mul_i32 {s(sT0)}, {s(sHALF)}, {14*1024}\ns_sub_u32 {s(sA0)}, {s(sA0)}, {s(sT0)}\ns_lshl_b32 {s(sT0)}, {s(sHALF)}, 12\ns_sub_u32 {s(sA1)}, {s(sA1)}, {s(sT0)}")
            P(f"s_lshl_b32 {s(sT0)}, {s(sHALF)}, 7\ns_sub_u32 {s(sFL)}, {s(sFL)}, {s(sT0)}\ns_and_b32 {s(sT0)}, {s(sW)}, 2\ns_lshl_b32 {s(sT0)}, {s(sT0)}, 3\ns_add_u32 {s(sFL)}, {s(sFL)}, {s(sT0)}")
        return
    P(f"s_lshl_b32 {s(sT0)}, {s(sN)}, 7\ns_mul_i32 {s(sB2o)}, {s(sW)}, {224*1024}\ns_add_u32 {s(sB2o)}, {s(sB2o)}, {s(sT0)}")
    P(f"s_lshl_b32 {s(sBOo)}, {s(sW)}, 16\ns_add_u32 {s(sBOo)}, {s(sBOo)}, {s(sT0)}\ns_lshl_b32 {s(sM4)}, {s(sW)}, 12")
    P(f"s_lshl_b32 {s(sOo)}, {s(sM)}, 16\ns_lshl_b32 {s(sT1)}, {s(sW)}, 13\ns_add_u32 {s(sOo)}, {s(sOo)}, {s(sT1)}\ns_add_u32 {s(sOo)}, {s(sOo)}, {s(sT0)}")
    if OPT.get("r8", "1") == "1":
        P(f"s_mul_i32 {s(sT0)}, {s(sM)}, 5\ns_lshr_b32 {s(sT0)}, {s(sT0)}, 1\ns_sub_u32 {s(sN)}, {s(sN)}, {s(sM)}\ns_add_u32 {s(sR4)}, {s(sN)}, {s(sT0)}\ns_add_u32 {s(sN)}, {s(sN)}, {s(sM)}")
    else: P(f"s_mov_b32 {s(sR4)}, {s(sN)}")
    P(f"s_add_u32 {s(sR4)}, {s(sM)}, {s(sR4)}\ns_and_b32 {s(sR4)}, {s(sR4)}, {0 if OPT.get('norot') else 7}\ns_and_b32 {s(sSH)}, {s(sW)}, 1\ns_lshl_b32 {s(sSH)}, {s(sSH)}, 1")
    P(f"s_lshr_b32 {s(sT0)}, {s(sM)}, 1\ns_lshl_b32 {s(sT0)}, {s(sT0)}, 4\ns_add_u32 {s(sT0)}, {s(sT0)}, {s(sW)}\ns_lshl_b32 {s(sT0)}, {s(sT0)}, 7")
    P(f"s_and_b32 {s(sT1)}, {s(sM)}, 1\ns_lshl_b32 {s(sT1)}, {s(sT1)}, 4\ns_add_u32 {s(sT0)}, {s(sT0)}, {s(sT1)}\ns_add_u32 {s(sFL)}, {s(sT0)}, {WS_FLG}")
    P(f"s_mul_i32 {s(sA0)}, {s(sM)}, {2*HF_RB}\ns_mul_i32 {s(sT0)}, {s(sW)}, {14*1024}\ns_add_u32 {s(sA1)}, {s(sA0)}, {s(sM4)}\ns_add_u32 {s(sA1)}, {s(sA1)}, {112*1024}\ns_add_u32 {s(sA0)}, {s(sA0)}, {s(sT0)}")

class Sched:
    def __init__(self, n):
        self.n = n; self.pre = [[] for _ in range(n)]; self.post = [[] for _ in range(n)]
        self.fill = [[] for _ in range(n)]; self.dma = [[] for _ in range(n)]; self.blk = {}
    def spread(self, lst, a, b):
        for i in range(a, b): self.fill[i] += lst[len(lst)*(i-a)//(b-a): len(lst)*(i+1-a)//(b-a)]
    def dmas(self, groups, a, step=1):
        for i, g in enumerate(groups): self.dma[a + i*step] += g

def rd(G):
    b = WF + 4 * (G & 3)
    if G < 96:
        ks = G & 31; st, p = ks >> 2, ks & 3
        L = [f"ds_read_b128 {v(XF+4*ks,4)}, {v(AX+p)} offset:{RA+(st&3)*16384}"] if G < 32 else []
        if ks < 4 and G >= 32: L.append(f"v_xor_b32 {v(AW+p)}, {RB}, {v(AW+p)}")
        return L + [f"ds_read_b64_tr_b16 {v(b+2*t,2)}, {v(AW+p)} offset:{8192*st+512*t}" for t in range(2)]
    i = G - 96
    return [f"ds_read_b64_tr_b16 {v(b+2*t,2)}, {v(AB+(i&1))} offset:{4096*(i>>1)+256*t}" for t in range(2)]
def xq(G): return XF + 4 * (G & 31) if G < 96 else XF + 8 * (G - 96)

def common_sched(S, ffn, accs, MC):
    pitch = 3584 if ffn else 3072
    tp = "f" if ffn else "a"
    c1, c2 = (128, 256) if ffn else (2048, 0)
    S.dmas(item1(2, pitch), 0, 0)
    for st in range(8):
        G = 4 * st + 2
        S.pre[G] += [f".waitvm it{st+1}" if st < 7 else ".waitvm w1q0 lgkm0", "s_barrier"]
        if st <= 4: S.dmas(item1(st + 3, pitch), G)
        else: S.dmas(wquarter(RA, st - 5, c1, pitch, f"w1q{st-5}"), G)
    def m4(d, r, c=None): return f"v_mfma_f32_4x4x4_16b_bf16 {v(d,4)}, {v(r,2)}, {v(r,2)}, {v(d,4) if c is None else c}"
    Q0, Q1 = T + 8, T + 16
    for f in range(0, 32, 2):
        x = XF + 4 * f; a = max(f - 1, 0); c = "0" if f == 0 else None
        if OPT.get("hyb", "0") == "1":
            b = f if f < 30 else 29
            S.post[a] += [m4(Q0, x, c), m16(MS, SEL, x, c)]
            for r, G in ((x + 2, a), (x + 3, b)):
                S.post[G] += [f"v_and_b32 {v(Q1+2)}, 0xffff0000, {v(r)}", f"v_lshlrev_b32 {v(Q1+3)}, 16, {v(r)}",
                              f"v_fmac_f32 {v(Q1)}, {v(Q1+2)}, {v(Q1+2)}", f"v_fmac_f32 {v(Q1+1)}, {v(Q1+3)}, {v(Q1+3)}"]
        else: S.post[a] += [m4(Q0, x, c), m4(Q1, x + 2, c), m16(MS, SEL, x, c)]
    S.post[28] += [f"v_and_b32 {v(S1)}, 3, {v(vL)}", f"v_cmp_eq_u32 {s(sEX,2)}, 1, {v(S1)}", f"s_lshl_b32 {s(sT0)}, {s(sHALF)}, 3",
                   f"v_add_u32 {v(T)}, {s(sT0)}, {v(VSTA)}"]
    if OPT.get("hyb", "0") == "1":
        S.pre[0] += [f"v_mov_b32 {v(Q1)}, 0", f"v_mov_b32 {v(Q1+1)}, 0"]
        S.post[29] += [f"v_add_f32 {v(Q1)}, {v(Q1)}, {v(Q1+1)}"]
    else: S.post[29] += [f"v_add_f32 {v(Q0+i)}, {v(Q0+i)}, {v(Q1+i)}" for i in range(4)]
    S.post[29] += [f"v_cmp_eq_u32 vcc, 2, {v(S1)}", f"v_cndmask_b32 {v(S2)}, {v(Q0)}, {v(Q0+1)}, {s(sEX,2)}", f"v_cmp_eq_u32 {s(sEX,2)}, 3, {v(S1)}",
                   f"v_cndmask_b32 {v(S2)}, {v(S2)}, {v(Q0+2)}, vcc", f"v_cndmask_b32 {v(S2)}, {v(S2)}, {v(Q0+3)}, {s(sEX,2)}"] + ([f"v_add_f32 {v(S2)}, {v(S2)}, {v(Q1)}"] if OPT.get("hyb", "0") == "1" else []) + [
                   f"v_mov_b32 {v(S1)}, {v(S2)}", f"v_permlane32_swap_b32 {v(S1)}, {v(S2)}",
                   f"v_add_f32 {v(MS+1)}, {v(S1)}, {v(S2)}", f"ds_write_b64 {v(T)}, {v(MS,2)}"]
    S.post[30] += [f"ds_read_b128 {v(MS,4)}, {v(VSTA)}"]
    for ps in range(3):
        for st in range(8):
            G = 32 * ps + 4 * st
            S.post[G] += [m16(MC, SEL, WF + 4 * (G & 3), "0" if st == 0 else None)]
        S.post[32*ps + 29] += [f"v_add_u32 {v(MC+1)}, {s(sW34)}, {v(VCSA)}", f"ds_write_b32 {v(MC+1)}, {v(MC)} offset:{1024*ps}"]
    FEW = OPT.get("few", "1") == "1"
    if FEW: S.pre[38] += [".waitvm w1q3", "s_barrier"]
    else:
        for q in (1, 2, 3): S.pre[32 + 8*q - 2] += [f".waitvm w1q{q}", "s_barrier"]
    w2 = sum([wquarter(RB, q, c2, pitch, "w2") for q in range(4)], [])
    for g_, G in zip(wquarter(RA, 3, c1, pitch, "w1q3") + w2, [int(x) for x in OPT.get("w2g", "32,33,35,37,38,40,41,43,44,46").split(",")]): S.dma[G] += g_
    S.pre[62] += [".waitvm w2 lgkm0", "s_barrier"]
    for G in ((int(OPT.get("fb", 82)),) if ffn else (() if OPT.get("asy", "0") == "1" else (int(OPT.get("ab", 86)),))): S.pre[G] += ["s_barrier"]
    if ffn:
        S.post[int(OPT.get("f1", 90))] += flag(1, "h1")
        S.post[int(OPT.get("p1", 99))] += [spoll(0)]; S.blk[("e", int(OPT.get("c1", 105)))] = lambda: (sneed(1, 0), None if V5 else P(spoll(1)))
    else:
        S.post[int(OPT.get("fa", 80))] += flag(1, "po")
    if OPT.get("l2t", "0") == "1":
        tg = [int(x) for x in OPT.get("l2gf" if ffn else "l2ga", "52,62,66,70,74" if ffn else "48,52,56,60,64").split(",")]
        DUM = VX0 if False else VW0
        for j in range(5):
            if j < 3:
                L = [f"s_lshr_b32 {s(sT0)}, s2, 3", f"s_mul_i32 {s(sT0)}, {s(sT0)}, 3", f"s_lshl_b32 {s(sT1)}, {s(sSH)}, 4", f"s_add_u32 {s(sT0)}, {s(sT0)}, {s(sT1)}",
                     f"s_add_u32 {s(sT0)}, {s(sT0)}, {128+j}", f"s_sub_u32 {s(sT1)}, {s(sT0)}, 224", f"s_min_u32 {s(sT0)}, {s(sT0)}, {s(sT1)}",
                     f"s_mul_i32 {s(sT1)}, {s(sW)}, 224", f"s_add_u32 {s(sT0)}, {s(sT0)}, {s(sT1)}", f"s_lshl_b32 {s(sT0)}, {s(sT0)}, 10",
                     f"buffer_load_dword {v(VTD)}, {v(VL16)}, {s(SW2,4)}, {s(sT0)} offen ; nodef"]
            else:
                L = [f"s_lshr_b32 {s(sT0)}, s2, 3", f"s_lshl_b32 {s(sT0)}, {s(sT0)}, 11", f"s_lshl_b32 {s(sT1)}, {s(sW)}, 16", f"s_add_u32 {s(sT0)}, {s(sT0)}, {s(sT1)}",
                     f"buffer_load_dword {v(VTD)}, {v(VL16)}, {s(SWO,4)}, {s(sT0)} offen offset:{1024*(j-3)} ; nodef"]
            S.dma[tg[j]] += L
    if (OPT.get("touch", "5") == "5" and not ffn) or (OPT.get("touch") == "6" and ffn):
        tg = [int(x) for x in OPT.get("tgs", "54,56,58,60,62").split(",")]
        gw = [f"s_and_b32 {s(sT0)}, {s(sRT)}, 7", f"s_lshl_b32 {s(sT0)}, {s(sT0)}, 1", f"s_and_b32 {s(sT1)}, {s(sG)}, 1", f"s_add_u32 {s(sT0)}, {s(sT0)}, {s(sT1)}",
              f"s_lshl_b32 {s(sT0)}, {s(sT0)}, 3", f"s_add_u32 {s(sK)}, {s(sT0)}, {s(sW)}"]
        for j in range(4):
            S.dma[tg[j]] += (gw if j == 0 else []) + [f"s_add_u32 {s(sT0)}, {s(sK)}, {128*j}", f"s_min_u32 {s(sT0)}, {s(sT0)}, 447", f"s_mul_i32 {s(sT1)}, {s(sM)}, 448", f"s_add_u32 {s(sT0)}, {s(sT0)}, {s(sT1)}",
                                  f"s_lshl_b32 {s(sT0)}, {s(sT0)}, 10", f"buffer_load_dword {v(VTD)}, {v(VL16)}, {s(SW2,4)}, {s(sT0)} offen ; nodef"]
        if V5: S.dma[tg[4]] += [f"s_lshl_b32 {s(sT0)}, {s(sK)}, 12", f"s_and_b32 {s(sT1)}, {s(sM)}, 2", f"s_lshl_b32 {s(sT1)}, {s(sT1)}, 6", f"s_add_u32 {s(sT0)}, {s(sT0)}, {s(sT1)}",
                         f"v_and_b32 {v(S1)}, 15, {v(vL)}", f"v_lshlrev_b32 {v(S1)}, 8, {v(S1)}", f"buffer_load_dword {v(VTD)}, {v(S1)}, {s(SWO,4)}, {s(sT0)} offen ; nodef"]
        else: S.dma[tg[4]] += [f"s_lshl_b32 {s(sT1)}, {s(sM)}, 7", f"s_add_u32 {s(sT0)}, {s(sK)}, {s(sT1)}",
                         f"s_lshl_b32 {s(sT0)}, {s(sT0)}, 10", f"buffer_load_dword {v(VTD)}, {v(VL16)}, {s(SWO,4)}, {s(sT0)} offen ; nodef"]
        S.dma[tg[4]] += [f"buffer_load_dword {v(VTD)}, {v(VL16)}, {s(SB2,4)}, 0 offen ; nodef"]
        if OPT.get("t3", "0") == "1":
            S.dma[int(OPT.get("t3g", 49))] += gw + [f"s_mul_i32 {s(sT0)}, {s(sK)}, {4*3584}", f"s_mul_i32 {s(sT1)}, {s(sM)}, 896", f"s_add_u32 {s(sT0)}, {s(sT0)}, {s(sT1)}",
                f"v_and_b32 {v(VTD)}, 3, {v(vL)}", f"v_mul_u32_u24 {v(VTD)}, 3584, {v(VTD)}", f"buffer_load_dword {v(VTD)}, {v(VTD)}, {s(SAUX,4)}, {s(sT0)} offen offset:384 ; nodef"]
    if OPT.get("touch") == "4":
        tg = [int(x) for x in OPT.get("tgs", "47,49,52").split(",")]
        gw = [f"s_and_b32 {s(sT0)}, s2, 0xf8", f"s_add_u32 {s(sT0)}, {s(sT0)}, {s(sW)}"]
        for j in range(2):
            S.dma[tg[j]] += gw + [f"s_add_u32 {s(sT0)}, {s(sT0)}, {256*j}", f"s_min_u32 {s(sT0)}, {s(sT0)}, 447", f"s_mul_i32 {s(sT1)}, {s(sM)}, 448", f"s_add_u32 {s(sT0)}, {s(sT0)}, {s(sT1)}",
                                  f"s_lshl_b32 {s(sT0)}, {s(sT0)}, 10", f"buffer_load_dword {v(VTD)}, {v(VL16)}, {s(SW2,4)}, {s(sT0)} offen ; nodef"]
        S.dma[tg[2]] += gw + [f"s_lshr_b32 {s(sT0)}, {s(sT0)}, 1", f"s_lshl_b32 {s(sT1)}, {s(sM)}, 7", f"s_add_u32 {s(sT0)}, {s(sT0)}, {s(sT1)}",
                              f"s_lshl_b32 {s(sT0)}, {s(sT0)}, 10", f"buffer_load_dword {v(VTD)}, {v(VL16)}, {s(SWO,4)}, {s(sT0)} offen ; nodef"]
    if OPT.get("touch", "5") == "3":
        def mtouch():
            n0 = len(P.ins)
            P(f"s_cmp_lt_u32 {s(sW)}, 6")
            P(f"s_cbranch_scc1 L_mt{tp}")
            P.cond_begin("w67")
            P(f"v_lshlrev_b32 {v(T+1)}, 7, {v(vL)}\ns_mul_i32 {s(sT0)}, s2, 7168\ns_lshl_b32 {s(sT1)}, s2, 11")
            P(f"s_cmp_eq_u32 {s(sW)}, 6\ns_cbranch_scc0 L_mta{tp}")
            P(f"buffer_load_dword {v(T+2)}, {v(T+1)}, {s(SW2,4)}, {s(sT0)} offen")
            P(f"s_branch L_mt{tp}")
            P(f"L_mta{tp}:")
            P(f"v_and_b32 {v(T+1)}, 2047, {v(T+1)}")
            P(f"buffer_load_dword {v(T+2)}, {v(T+1)}, {s(SWO,4)}, {s(sT1)} offen")
            P(f"buffer_load_dword {v(T+3)}, {v(T+1)}, {s(SB2,4)}, 0 offen")
            P.cond_end()
            P(f"L_mt{tp}:")
        S.blk[("e", int(OPT.get("tg", 5)))] = mtouch
    if OPT.get("wt", "2") == "2":
        S.dma[int(OPT.get("wg", 5))] += [f"v_mul_u32_u24 {v(T+1)}, {pitch}, {v(vL)}", f"buffer_load_dword {v(T+2)}, {v(T+1)}, {s(SWT,4)}, {s(sCNT)} offen"]
    if XRG:
        xd = PZ if ffn else SEL
        S.post[93] += [f"s_set_gpr_idx_on {s(sWq)}, gpr_idx(SRC0)", "s_nop 0"] + [f"v_mov_b32 {v(xd+i)}, {v(XF+i)}" for i in range(4)] + ["s_set_gpr_idx_off"]
    if V5: S.post[92] += vbo_init
    def announce():
        P(f"s_lshl_b32 {s(sT0)}, {s(sW)}, 8\ns_add_u32 {s(sT0)}, {s(sT0)}, s2\ns_sub_u32 {s(sT0)}, {s(sT0)}, 256\ns_cmp_lt_u32 {s(sT0)}, 8")
        P(f"s_cbranch_scc0 L_nd")
        P.cond_begin("zw")
        P(".waitvm zf")
        P(f"s_lshl_b32 {s(sT0)}, s2, 2\nv_mov_b32 {v(VFV)}, 1")
        P(f"buffer_store_dword {v(VFV)}, {v(VZ)}, {s(SDBG,4)}, {s(sT0)} offen sc1")
        P.cond_end()
        P(f"L_nd:")
    if not ffn: S.blk[3] = announce
    ld = f"v_and_b32 {v(VX0)}, 28, {v(vL)}\nbuffer_load_dword {v(VX0)}, {v(VX0)}, {s(SDBG,4)}, 0 offen sc1"
    def poll0():
        P(f"s_cmp_eq_u32 {s(sW)}, 7"); P(f"s_cbranch_scc0 L_np{tp}")
        P.cond_begin("w7")
        P(ld)
        P.cond_end(); P(f"L_np{tp}:")
    def check0():
        P(f"s_cmp_eq_u32 {s(sW)}, 7"); P(f"s_cbranch_scc0 L_nc{tp}")
        P.cond_begin("w7")
        P(f"v_mov_b32 {v(VX0)}, {v(VX0)}")
        spin(f"L_ncs{tp}", ld, f"v_cmp_ne_u32 vcc, 1, {v(VX0)}")
        P.cond_end(); P(f"L_nc{tp}:")
    S.blk[39] = poll0; S.blk[62] = check0

def run_sched(S, accs):
    P(".waitvm it0")
    P("s_barrier")
    stamp("it0")
    P.add(rd(0)); P.add(rd(1))
    for G in range(S.n):
        stamp(f"g{G}")
        if G in S.blk: S.blk[G]()
        late = OPT.get("bam", "1") == "1" and G >= 32
        if not late: P.add(S.pre[G])
        if OPT.get("prio", "2") == "1": P(f"s_setprio {3 - ((G + 2) & 3)}")
        if OPT.get("prio", "2") == "2" and (G < 32 or G % 2 == 0): P(f"s_setprio {3 - ((G + 2) & 3) if G < 32 else 3 - ((G >> 1) & 3)}")
        first = G in (0, 32, 64, 96)
        P(mfma(accs[G >> 5], WF + 4 * (G & 3), xq(G), "0" if first else None))
        if late: P.add(S.pre[G])
        if G + 2 < S.n: P.add(rd(G + 2))
        P.add(S.post[G]); P.add(S.fill[G]); P.add(S.dma[G])
        if ("e", G) in S.blk: S.blk[("e", G)]()
    P("s_setprio 0")

AC = 64; NAF = 8
def AFq(kk, rb): return XF + 4 + 8 * (2 * (kk % NAF) + rb)
def BTq(kk, nb): return XF + 8 * (2 * (kk & 3) + nb)
BA = 2
VXR, VRED = 9, 10
VWR = 20
XR, B2R = 32, 36
def AF2(kk): return XF + 4 + 8 * (kk % 16)
def BT2(kk, nb): return XF + 8 * (4 * (kk & 1) + nb)
def xoff(j, send):
    return ([f"s_xor_b32 {s(sT0)}, s2, {j}", f"s_mul_i32 {s(sT0)}, {s(sT0)}, {3*8192}"] if send else [f"s_mul_i32 {s(sT0)}, s2, {3*8192}"]) + \
           [f"s_lshl_b32 {s(sT1)}, {s(sW)}, 10", f"s_add_u32 {s(sT0)}, {s(sT0)}, {s(sT1)}", f"s_add_u32 {s(sT0)}, {s(sT0)}, {WS_X + (j-1)*8192}"]
VA3 = 14
def AF3(st, sh):
    if st < 8: return XF + 4 + 8 * (2 * st + sh)
    if st < 12: return XF + 64 + 8 * (2 * (st - 8) + sh)
    if st < 16: return 96 + 4 * (2 * (st - 12) + sh)
    return XF + 4 + 8 * (2 * (st - 16) + sh)
va3_init = lines(f"v_and_b32 {v(VA3)}, 15, {v(vL)}\nv_lshlrev_b32 {v(VA3)}, 4, {v(VA3)}\nv_lshrrev_b32 {v(T+19)}, 4, {v(vL)}\nv_lshl_add_u32 {v(VA3)}, {v(T+19)}, 9, {v(VA3)}")
def a_jobs(kk):
    if V3:
        sg, gm = kk >> 1, kk & 1
        so, gs = (sA0, 14 * 1024) if sg < 7 else (sA1, 4096)
        return [rot_p(sg, sD1, gm) + [f"s_lshl_b32 {s(sD1)}, {s(sD1)}, 11", f"s_add_u32 {s(sD1)}, {s(sD1)}, {s(so)}"] + ([f"s_add_u32 {s(sD1)}, {s(sD1)}, {gs}"] if gm else []) +
                [f"buffer_load_dwordx4 {v(AF3(kk,0),4)}, {v(VA3)}, {s(SWS,4)}, {s(sD1)} offen sc1"],
                [f"buffer_load_dwordx4 {v(AF3(kk,1),4)}, {v(VA3)}, {s(SWS,4)}, {s(sD1)} offen offset:256 sc1"]]
    so = sA0 if kk < 14 else sA1
    if V2: return [rot_k(kk, sD1) + [f"s_lshl_b32 {s(sD1)}, {s(sD1)}, 10", f"s_add_u32 {s(sD1)}, {s(sD1)}, {s(so)}",
             f"buffer_load_dwordx4 {v(AF2(kk),4)}, {v(VL16)}, {s(SWS,4)}, {s(sD1)} offen sc1"] +
             ([f"s_xor_b32 {s(sD1)}, {s(sD1)}, 0x8000", f"buffer_load_dwordx4 v[252:255], {v(VL16)}, {s(SWS,4)}, {s(sD1)} offen sc1 ; nodef"] if OPT.get("dbla") and kk != 15 else [])]
    return [rot_k(kk, sD1) + [f"s_lshl_b32 {s(sD1)}, {s(sD1)}, 10", f"s_add_u32 {s(sD1)}, {s(sD1)}, {s(so)}",
             f"buffer_load_dwordx4 {v(AFq(kk,0),4)}, {v(VL16)}, {s(SWS,4)}, {s(sD1)} offen sc1"],
            [f"s_add_u32 {s(sD1)}, {s(sD1)}, {HF_RB}",
             f"buffer_load_dwordx4 {v(AFq(kk,1),4)}, {v(VL16)}, {s(SWS,4)}, {s(sD1)} offen sc1"]]
def vcheck(regs, t):
    L = [f"v_max3_u32 {v(t)}, {v(regs[0])}, {v(regs[1])}, {v(regs[2])}"]; r = regs[3:]
    while len(r) >= 2: L.append(f"v_max3_u32 {v(t)}, {v(t)}, {v(r[0])}, {v(r[1])}"); r = r[2:]
    if r: L.append(f"v_max_u32 {v(t)}, {v(t)}, {v(r[0])}")
    return L + [f"v_cmp_eq_u32 vcc, -1, {v(t)}"]
SLOW = []
def validate(regs, t, reload):
    lb = P.lab("L_v")
    P.add(vcheck(regs, t))
    P(f"s_cbranch_vccnz {lb}_slow")
    P(f"{lb}_back:")
    dbg = [f"s_add_u32 {s(sST+2*STI['slow'])}, {s(sST+2*STI['slow'])}, {1 << len(SLOW)}"] if STAMP and "slow" in STI else []
    SLOW.append([f"{lb}_slow:"] + dbg + [f"s_mov_b32 {s(sCNT)}, 0", f"{lb}_loop:", "s_sleep 2"] + reload + ["s_waitcnt vmcnt(0)"] + vcheck(regs, t) +
                [f"s_add_u32 {s(sCNT)}, {s(sCNT)}, 1", f"s_cbranch_vccz {lb}_back", f"s_cmp_gt_u32 {s(sCNT)}, {SPIN_MAX}",
                 f"s_cbranch_scc0 {lb}_loop", f"s_branch {lb}_back"])
def flush_slow():
    for blk in SLOW:
        P(".reset"); P.add(blk)
    SLOW.clear()
def spoll(o):
    x = f"s_buffer_load_dwordx4 {s(sPL,4)}, {s(SWS,4)}, {s(sFL)} offset:{0 if o else 1024} glc"
    if V3: x = f"s_buffer_load_dwordx8 {s(sPL,8)}, {s(SWS,4)}, {s(sFL)} offset:{0 if o else 1024} glc"
    return x
def sneed(level, o):
    lb = P.lab("L_sp")
    P(f"s_mov_b32 {s(sCNT)}, 0")
    P(f"{lb}:")
    P("s_waitcnt lgkmcnt(0)")
    P(f"s_min_u32 {s(sPL)}, {s(sPL)}, {s(sPL+1)}\ns_min_u32 {s(sPL+2)}, {s(sPL+2)}, {s(sPL+3)}\ns_min_u32 {s(sPL)}, {s(sPL)}, {s(sPL+2)}")
    if V3:
        for i in range(4, 8): P(f"s_min_u32 {s(sPL)}, {s(sPL)}, {s(sPL+i)}")
    P(f"s_cmp_ge_u32 {s(sPL)}, {level}")
    P(f"s_cbranch_scc1 {lb}_ok")
    P(f"s_add_u32 {s(sCNT)}, {s(sCNT)}, 1\ns_cmp_gt_u32 {s(sCNT)}, {SPIN_MAX}")
    P(f"s_cbranch_scc1 {lb}_ok")
    P("s_sleep 1")
    for x in spoll(o).split("\n"):
        I = Ins(x); I.kind = "salu"; P.ins.append(I)
    P(f"s_branch {lb}")
    P(f"{lb}_ok:")
def own_check():
    lb = P.lab("L_oc")
    P(f"s_mov_b32 {s(sCNT)}, 0")
    P(f"{lb}:")
    P("s_waitcnt lgkmcnt(0)")
    P(f"s_cmp_ge_u32 {s(sK)}, 1")
    P(f"s_cbranch_scc1 {lb}_ok")
    P(f"s_add_u32 {s(sCNT)}, {s(sCNT)}, 1\ns_cmp_gt_u32 {s(sCNT)}, {SPIN_MAX}")
    P(f"s_cbranch_scc1 {lb}_ok")
    P("s_sleep 1")
    I = Ins(f"s_buffer_load_dword {s(sK)}, {s(SWS,4)}, {s(sT2)} glc"); I.kind = "salu"; P.ins.append(I)
    P(f"s_branch {lb}")
    P(f"{lb}_ok:")
def b_reads(kk):
    slot = kk % 9
    var, off = (KAREA[slot] >> 16), KAREA[slot] & 0xffff
    return [f".waitvm b{kk}"] + [f"ds_read_b64_tr_b16 {v(BTq(kk,nb)+2*tt,2)}, {v(BA+2*var+nb)} offset:{off+1024*tt}" for nb in range(2) for tt in range(2)]
def finish(ffn):
    if OPT.get("echo") and OPT.get("echot", "fa").find("f" if ffn else "a") < 0: pass
    elif OPT.get("echo"):
        a_, b_ = [STI[x] for x in OPT["echo"].split(",")]
        lb = P.lab("L_echo")
        stamp("end")
        P("s_waitcnt lgkmcnt(0)")
        P(f"s_sub_u32 {s(sT0)}, {s(sST+2*b_)}, {s(sST+2*a_)}")
        if STAMP == 2:
            P(f"s_lshr_b32 {s(sT0)}, {s(sT0)}, 4\ns_memrealtime {s(sST+22,2)}\ns_waitcnt lgkmcnt(0)")
        P(f"s_min_u32 {s(sT0)}, {s(sT0)}, 10000")
        P(f"{lb}:")
        P(f"s_memrealtime {s(sEX,2)}")
        P("s_waitcnt lgkmcnt(0)")
        P(f"s_sub_u32 {s(sT1)}, {s(sEX)}, {s(sST+22)}\ns_cmp_lt_u32 {s(sT1)}, {s(sT0)}\ns_cbranch_scc1 {lb}")
    elif STAMP:
        stamp("end")
        P("s_waitcnt lgkmcnt(0)")
        P(f"s_lshl_b32 {s(sT0)}, s2, 3\ns_add_u32 {s(sT0)}, {s(sT0)}, {s(sW)}\ns_lshl_b32 {s(sT0)}, {s(sT0)}, 6\ns_add_u32 {s(sT0)}, {s(sT0)}, {WS_STAMP}")
        P(f"v_mov_b32 v2, 0\ns_mov_b64 exec, 1")
        for i in range(12):
            P(f"v_mov_b32 v3, {s(sST+2*i)}\nbuffer_store_dword v3, v2, {s(SWS,4)}, {s(sT0)} offen offset:{4*i}")
    P("s_endpgm")
    flush_slow()

def phase2_v2(bleft, ffn):
    BAR = [2, 3, 4, 5, 6, 7, 8, 9, 10, 11, 14, 15]; VX = 16
    WB = [20, 21, 22]; RBs = [23, 24, 25]; PX = BAUG
    t = T + 8
    XR, B2R = (SEL, AAUG) if XRG else (32, 36)
    if XRG and ffn:
        for i in range(4): P(f"v_mov_b32 {v(SEL+i)}, {v(PZ+i)}")
    P(f"v_bfe_u32 {v(t)}, {v(vL)}, 2, 2\nv_lshrrev_b32 {v(t+1)}, 5, {v(vL)}\nv_and_b32 {v(t+2)}, 63, {v(AW)}\ns_lshl_b32 {s(sT0)}, {s(sHALF)}, 5\nv_xor_b32 {v(t+2)}, {s(sT0)}, {v(t+2)}")
    P(f"v_lshl_add_u32 {v(t+3)}, {v(t+1)}, 2, {v(t)}\nv_lshl_add_u32 {v(t+3)}, {v(t+3)}, 8, {v(t+2)}\ns_lshl_b32 {s(sT0)}, {s(sHALF)}, 13\nv_add_u32 {v(t+3)}, {s(sT0)}, {v(t+3)}")
    P(f"v_xor_b32 {v(t)}, {s(sM)}, {v(t)}\nv_lshl_add_u32 {v(BAR[0])}, {v(t)}, 6, {v(t+3)}")
    for nb in range(1, 4): P(f"v_xor_b32 {v(BAR[nb])}, {64*nb}, {v(BAR[0])}")
    for rg in (2, 1):
        for nb in range(4): P(f"v_add_u32 {v(BAR[4*rg+nb])}, {65536*rg}, {v(BAR[nb])}")
    LP = int(OPT.get("lp", 2))
    SQ = int(OPT.get("sq", 12))
    seq = [(kk, nb) for kk in range(SQ) for nb in range(4) if nb or kk < LP]
    done_at = {}
    for nb in (1, 2, 3):
        seq += [(kk, nb) for kk in range(SQ, 18)]; done_at[nb] = len(seq)
    seq += [(kk, 0) for kk in range(LP, 18)]
    D = 4
    def bq(i): return XF + 8 * (i & 7)
    def br(i):
        kk, nb = seq[i]; a = KAREA[kk >> 1]
        return [f"ds_read_b64_tr_b16 {v(bq(i)+2*tt,2)}, {v(BAR[4*(a>>16)+nb])} offset:{(a&0xffff)+(kk&1)*4096+2048*tt}" for tt in range(2)]
    def val(kk):
        if not (NP and kk < 14): validate([AF2(kk) + i for i in range(4)], T + 16, a_jobs(kk)[0])
    for i in range(D): P.add(br(i))
    val(0)
    stamp("hseen")
    first = {}
    for i, (kk, nb) in enumerate(seq): first.setdefault(kk, i)
    ev = {}
    def at(i, x): ev.setdefault(i, []).append(x)
    sh = 8 - LP
    a8, a14 = int(OPT.get("a8", 14)), int(OPT.get("a14", 30 - sh))
    for i, g_ in enumerate(sum([b_dma(k2) for k2 in bleft], [])): at(int(OPT.get('bst', 1)) * i + (0 if ffn else int(OPT.get('b0a', 0))), g_)
    gates = {}
    if NP:
        if ffn:
            g2i = int(OPT.get("g2", 7)); a8 = int(OPT.get("g3f", 23 - sh))
            at(0, [spoll(0)]); gates[g2i] = 2
            for k2 in range(4, 8): at(g2i + k2 - 4, a_jobs(k2)[0])
            at(int(OPT.get("f3", 5)), flag(3, "h4"))
            a14 = max(a14, a8 + 6)
        else:
            a8 = int(OPT.get("g3a", 18 - sh // 2)); g2i = int(OPT.get("g2a", 2)); gates[g2i] = 2
            for k2 in range(4, 8): at(g2i + k2 - 4, a_jobs(k2)[0])
        at(a8 - int(OPT.get("gl", 4)), [spoll(0)]); gates[a8] = 3
    ast = int(OPT.get('ast', 1))
    ea = 0 if ffn or NP else int(OPT.get('ea', 0))
    for k2 in range(8 + ea, 14): at(a8 + ast * (k2 - 8), a_jobs(k2)[0])
    if ea and OPT.get('a14a'): a14 = int(OPT['a14a'])
    for k2 in range(14, 18): at(a14 + ast * (k2 - 14), a_jobs(k2)[0])
    F = T + 8
    at(9, lines(f"v_and_b32 {v(T+17)}, 31, {v(vL)}\nv_lshrrev_b32 {v(T+18)}, 5, {v(vL)}\nv_lshlrev_b32 {v(T+18)}, 4, {v(T+18)}\nv_lshl_add_u32 {v(VX)}, {v(T+17)}, 10, {v(T+18)}") +
          ([] if XRG else [f"buffer_load_dwordx4 {v(XR,4)}, {v(VX)}, {s(SX,4)}, {s(sOo)} offen"]) + [f"buffer_load_dwordx4 {v(B2R,4)}, {v(T+18)}, {s(SB2,4)}, {s(sN)} offen"])
    at(24, lines(f"v_add_u32 {v(WB[0])}, {s(sM0x)}, {v(VL16)}\nv_xor_b32 {v(RBs[0])}, 8192, {v(WB[0])}") +
           sum([[f"v_add_u32 {v(WB[rg])}, {65536*rg}, {v(WB[0])}", f"v_add_u32 {v(RBs[rg])}, {65536*rg}, {v(RBs[0])}"] for rg in (1, 2)], []))
    for i in range(4):
        at(40 + i, lines(f"v_lshlrev_b32 {v(F+2*i)}, 16, {v(XR+i)}\nv_and_b32 {v(F+2*i+1)}, 0xffff0000, {v(XR+i)}\nv_lshlrev_b32 {v(T+4)}, 16, {v(B2R+i)}\nv_and_b32 {v(T+5)}, 0xffff0000, {v(B2R+i)}\nv_add_f32 {v(F+2*i)}, {v(F+2*i)}, {v(T+4)}\nv_add_f32 {v(F+2*i+1)}, {v(F+2*i+1)}, {v(T+5)}"))
    px1 = OPT.get("px1") == "1" or (bool(OPT.get("pxa", "1")) and not ffn)
    if not px1:
        pxi = int(OPT.get("pxi", (12 if ffn else a8 + 6) if NP else a8 + 6))
        if not ffn and OPT.get("pxia"): pxi = int(OPT["pxia"])
        at(pxi - 1, [f"v_mov_b32 {v(PX+i)}, -1" for i in range(4)])
        for j in (1, 2, 3): at(pxi + (j - 1) * int(OPT.get("pxs", 1)), xoff(j, True) + [f"buffer_store_dwordx4 {v(PX,4)}, {v(VL16)}, {s(SWS,4)}, {s(sT0)} offen sc1 ; tag=px"])
    at(int(OPT.get("fx", 8 if px1 else 48 - sh)), flag(4, "px"))
    if OPT.get("wb"):
        lbw = P.lab("L_wb")
        at(int(OPT["wb"]), [f"s_lshr_b32 {s(sT0)}, s2, 3", f"s_and_b32 {s(sT0)}, {s(sT0)}, {OPT.get('wbm', 23)}", f"s_or_b32 {s(sT0)}, {s(sT0)}, {s(sW)}", f"s_cbranch_scc1 {lbw}", "buffer_wbl2 sc1", f"{lbw}:"])
    bar_i = first[min(12, 2 * bleft[0])] - D
    RG = [KAREA[0], L_KVB, KAREA[0], L_KVB] if LP < 8 else KAREA
    def wr(nb): a = RG[nb]; return [f"ds_write_b128 {v(WB[a>>16])}, {v(AC+16*nb+8+4*q,4)} offset:{(a&0xffff)+1024*q}" for q in range(2)]
    def rdp(nb): a = RG[nb]; return [f"ds_read_b128 {v(AC+16*nb+8+4*q,4)}, {v(RBs[a>>16])} offset:{(a&0xffff)+1024*q}" for q in range(2)]
    def add(nb, pk): c = AC + 16 * nb; return [f"v_pk_add_f32 {v(c+i,2)}, {v(c+i,2)}, {v(c+8+i,2)}" for i in range(0, 8, 2)] if pk else [f"v_add_f32 {v(c+i)}, {v(c+i)}, {v(c+8+i)}" for i in range(8)]
    def snd(nb): c = AC + 16 * nb; return [f"v_cvt_pk_bf16_f32 {v(c+8+i)}, {v(c+2*i)}, {v(c+2*i+1)}" for i in range(4)] + xoff(nb, True) + [f"buffer_store_dwordx4 {v(c+8,4)}, {v(VL16)}, {s(SWS,4)}, {s(sT0)} offen sc1"]
    VPF, VPA = PX, PX + 1
    pf = f"buffer_load_dword {v(VPF)}, {v(VPA)}, {s(SWS,4)}, 0 offen sc1"
    at(38 if px1 else done_at[3] + 3, lines(f"v_and_b32 {v(VPA)}, 3, {v(vL)}\nv_lshlrev_b32 {v(VPA)}, 8, {v(VPA)}\nv_xor_b32 {v(VPA)}, {s(sFO)}, {v(VPA)}") + [pf])
    PS = OPT.get("ps", "0") == "1"
    VFW, VFR, VFT = 26, 18, 19
    chk = {}
    if PS:
        assert LP >= 4
        RG[1] = RG[3] = KAREA[1]
        at(bar_i - 8, lines(f"s_lshl_b32 {s(sT0)}, {s(sW)}, 2\ns_add_u32 {s(sT0)}, {s(sT0)}, {L_ST}\nv_mov_b32 {v(VFW)}, {s(sT0)}\nv_xor_b32 {v(VFR)}, 16, {v(VFW)}\nds_write_b32 {v(VFW)}, {v(VZ)}"))
        def wrf(nb, lv): return wr(nb) + [f"v_mov_b32 {v(VFT)}, {lv}", f"ds_write_b32 {v(VFW)}, {v(VFT)}"]
        def rdf(nb): return [f"ds_read_b32 {v(VFT)}, {v(VFR)}"] + rdp(nb)
        def check(nb, lv):
            lb = P.lab("L_ps")
            P(f"v_cmp_gt_u32 vcc, {lv}, {v(VFT)}")
            P(f"s_cbranch_vccnz {lb}_slow")
            P(f"{lb}_back:")
            SLOW.append([f"{lb}_slow:", f"s_mov_b32 {s(sCNT)}, 0", f"{lb}_loop:"] + rdf(nb) + ["s_waitcnt lgkmcnt(0)", f"v_cmp_gt_u32 vcc, {lv}, {v(VFT)}",
                         f"s_add_u32 {s(sCNT)}, {s(sCNT)}, 1", f"s_cbranch_vccz {lb}_back", f"s_cmp_gt_u32 {s(sCNT)}, {SPIN_MAX * 16}", f"s_cbranch_scc0 {lb}_loop", f"s_branch {lb}_back"])
        dl = int(OPT.get("psd", 2))
        for nb in (1, 2, 3):
            e = done_at[nb]
            at(e + 1, wrf(nb, nb)); at(e + 1 + dl, rdf(nb)); chk[e + 2 + dl] = nb; at(e + 2 + dl, add(nb, False) + snd(nb))
        at(done_at[3] + 2 + dl, stamp_i("xs"))
    elif SQ < 18:
        for nb in (1, 2, 3):
            e = done_at[nb]
            at(e + 1, wr(nb)); at(e + 2, ["s_waitcnt lgkmcnt(2)", "s_barrier"] + rdp(nb)); at(e + 4, add(nb, False) + snd(nb))
        at(done_at[3] + 4, stamp_i("xs"))
    else:
        e = done_at[3]
        at(e, wr(1) + wr(2)); at(e + 1, wr(3) + ["s_waitcnt lgkmcnt(0)", "s_barrier"] + rdp(1) + rdp(2) + rdp(3))
        for nb in (1, 2, 3): at(e + 1 + nb, add(nb, False) + snd(nb))
        at(e + 4, stamp_i("xs"))
    R = XF + 64 - 4 if False else None
    RQ = [None, XF + 64, XF + 72, XF + 80]
    rl = sum([xoff(j, False) + [f"buffer_load_dwordx4 {v(RQ[j],4)}, {v(VL16)}, {s(SWS,4)}, {s(sT0)} offen sc1"] for j in range(1, 4)], [])
    ri = int(OPT.get("ri", 99))
    seen = set()
    for i, (kk, nb) in enumerate(seq):
        if i % 4 == 0: P(f"s_setprio {3 - ((i >> 2) & 3)}")
        P(mfma(AC + 16 * nb, bq(i), AF2(kk), None if nb in seen else "0")); seen.add(nb)
        if i == bar_i: P(".waitvm b8"); P("s_barrier")
        if i + D < len(seq): P.add(br(i + D))
        if i + 2 < len(seq) and first[seq[i + 2][0]] == i + 2: val(seq[i + 2][0])
        if i in gates: sneed(gates[i], 0)
        if i in chk: check(chk[i], chk[i])
        for x in ev.pop(i, []): P.add(x)
        if i == len(seq) - 1 - ri:
            P(f"v_mov_b32 {v(VPF)}, {v(VPF)}")
            spin(P.lab("L_pf"), pf, f"v_cmp_gt_u32 vcc, 4, {v(VPF)}")
            P.add(rl)
        if i + 1 < len(seq) and first[seq[i + 1][0]] == i + 1: stamp(f"k{kk}")
    assert not ev, ev.keys()
    stamp("p2mm")
    P("s_setprio 0")
    P.add(wrf(0, 4) if PS else wr(0))
    if ri >= len(seq):
        P(f"v_mov_b32 {v(VPF)}, {v(VPF)}")
        spin(P.lab("L_pf"), pf, f"v_cmp_gt_u32 vcc, 4, {v(VPF)}")
    if PS:
        if ri >= len(seq): P.add(rl)
        P.add(rdf(0)); check(0, 4)
    else:
        P("s_waitcnt lgkmcnt(0)")
        P("s_barrier")
        P.add(rdp(0))
        if ri >= len(seq): P.add(rl)
    P.add(add(0, True))
    validate([RQ[j] + i for j in (1, 2, 3) for i in range(4)], T + 16, rl)
    stamp("xr")
    P(f"s_mov_b32 {s(sT0)}, 0x3f80\ns_mov_b32 {s(sT1)}, 0x3f800000")
    for j in range(1, 4):
        for i in range(4): P(f"v_dot2c_f32_bf16 {v(AC+2*i)}, {s(sT0)}, {v(RQ[j]+i)}\nv_dot2c_f32_bf16 {v(AC+2*i+1)}, {s(sT1)}, {v(RQ[j]+i)}")
    for i in range(4): P(f"v_permlane32_swap_b32 {v(AC+i)}, {v(AC+4+i)}")
    for i in range(0, 8, 2): P(f"v_pk_add_f32 {v(F+i,2)}, {v(F+i,2)}, {v(AC+i,2)}")
    for i in range(4): P(f"v_cvt_pk_bf16_f32 {v(XR+i)}, {v(F+2*i)}, {v(F+2*i+1)}")
    P(f"buffer_store_dwordx4 {v(XR,4)}, {v(VX)}, {s(SOUT,4)}, {s(sOo)} offen")
    finish(ffn)

def phase2_v5(bleft, ffn):
    BAR = [2, 3, 4, 5, 6, 7, 8, 9, 10, 11, 14, 15]; VX = 16; BO = [19, 26]
    WB = [20, 21, 22]; RBs = [23, 24, 25]; PX = BAUG
    VOF, VOA, VOP, VOV = 40, 41, 42, 43
    t = T + 8
    P(f"v_bfe_u32 {v(t)}, {v(vL)}, 2, 2\nv_lshrrev_b32 {v(t+1)}, 5, {v(vL)}\nv_and_b32 {v(t+2)}, 63, {v(AW)}\ns_lshl_b32 {s(sT0)}, {s(sHALF)}, 5\nv_xor_b32 {v(t+2)}, {s(sT0)}, {v(t+2)}")
    P(f"s_lshl_b32 {s(sT0)}, {s(sHALF)}, 13\nv_add_u32 {v(t+2)}, {s(sT0)}, {v(t+2)}\nv_lshl_add_u32 {v(t+4)}, {v(t+1)}, 2, {v(t)}\nv_lshl_add_u32 {v(t+3)}, {v(t+4)}, 8, {v(t+2)}")
    P(f"v_xor_b32 {v(t)}, {s(sM)}, {v(t)}\nv_lshl_add_u32 {v(BAR[0])}, {v(t)}, 6, {v(t+3)}")
    for nb in range(1, 4): P(f"v_xor_b32 {v(BAR[nb])}, {64*nb}, {v(BAR[0])}")
    for rg in (2, 1):
        for nb in range(4): P(f"v_add_u32 {v(BAR[4*rg+nb])}, {65536*rg}, {v(BAR[nb])}")
    bo_init = [f"v_lshl_add_u32 {v(t+4)}, {v(t+4)}, 6, {v(t+2)}"] + [f"v_add_u32 {v(BO[k])}, {KAREA[7+k]}, {v(t+4)}" for k in range(2)]
    LP = 2; SQ = int(OPT.get("sq", 8)); D = 4
    seq = [(kk, nb) for kk in range(SQ) for nb in range(4) if nb or kk < LP]
    done_at = {}
    for nb in (1, 2, 3):
        seq += [(kk, nb) for kk in range(SQ, 14)]; done_at[nb] = len(seq)
    seq += [(kk, 0) for kk in range(LP, 30)]
    def bq(i): return XF + 8 * (i & 7)
    def AFx(kk):
        if kk < 18: return AF2(kk)
        if kk < 26: return XF + 64 + 8 * (kk - 18)
        return AC + 16 + 4 * (kk - 26)
    def br(i):
        kk, nb = seq[i]
        if kk >= 14:
            j = kk - 14
            return [f"ds_read_b64_tr_b16 {v(bq(i)+2*tt,2)}, {v(BO[j>>3])} offset:{(j&7)*1024+512*tt}" for tt in range(2)]
        a = KAREA[kk >> 1]
        return [f"ds_read_b64_tr_b16 {v(bq(i)+2*tt,2)}, {v(BAR[4*(a>>16)+nb])} offset:{(a&0xffff)+(kk&1)*4096+2048*tt}" for tt in range(2)]
    def o_job(j): return [f"s_add_u32 {s(sD1)}, {s(sWq)}, {j}", f"s_and_b32 {s(sD1)}, {s(sD1)}, 15", f"s_lshl_b32 {s(sD1)}, {s(sD1)}, 10", f"s_add_u32 {s(sD1)}, {s(sD1)}, {s(sA1)}",
                          f"buffer_load_dwordx4 {v(AFx(14+j),4)}, {v(VL16)}, {s(SWS,4)}, {s(sD1)} offen sc1"]
    for i in range(D): P.add(br(i))
    stamp("hseen")
    first = {}
    for i, (kk, nb) in enumerate(seq): first.setdefault(kk, i)
    ev = {}; gates = {}; act = {}
    def at(i, x): ev.setdefault(i, []).append(x)
    at(0, bo_init)
    for i, g_ in enumerate(sum([b_dma(k2) for k2 in bleft], [])): at(i, g_)
    if ffn:
        g2i = int(OPT.get("g2", 8)); a8 = int(OPT.get("g3f", 20))
        at(0, [spoll(0)]); at(int(OPT.get("f3", 7)), flag(3, "h4"))
    else: g2i = int(OPT.get("g2a", 2)); a8 = int(OPT.get("g3a", 12))
    one = (not ffn) and OPT.get("one", "1") == "1"
    if one: gates[g2i] = 3; a8 = g2i + 4
    else: gates[g2i] = 2; gates[a8] = 3
    for k2 in range(4, 8): at(g2i + k2 - 4, a_jobs(k2)[0])
    if not one: at(max(a8 - int(OPT.get("gl", 4)), g2i), [spoll(0)])
    for k2 in range(8, 14): at(a8 + k2 - 8, a_jobs(k2)[0])
    F = T + 8
    at(9, lines(f"v_and_b32 {v(T+17)}, 31, {v(vL)}\nv_lshrrev_b32 {v(T+18)}, 5, {v(vL)}\nv_lshlrev_b32 {v(T+18)}, 4, {v(T+18)}\nv_lshl_add_u32 {v(VX)}, {v(T+17)}, 10, {v(T+18)}") +
          [f"buffer_load_dwordx4 {v(XR,4)}, {v(VX)}, {s(SX,4)}, {s(sOo)} offen", f"buffer_load_dwordx4 {v(B2R,4)}, {v(T+18)}, {s(SB2,4)}, {s(sN)} offen"])
    at(20, lines(f"v_add_u32 {v(WB[0])}, {s(sM0x)}, {v(VL16)}\nv_xor_b32 {v(RBs[0])}, 8192, {v(WB[0])}") +
           sum([[f"v_add_u32 {v(WB[rg])}, {65536*rg}, {v(WB[0])}", f"v_add_u32 {v(RBs[rg])}, {65536*rg}, {v(RBs[0])}"] for rg in (1, 2)], []))
    for i in range(4):
        at(50 + i, lines(f"v_lshlrev_b32 {v(F+2*i)}, 16, {v(XR+i)}\nv_and_b32 {v(F+2*i+1)}, 0xffff0000, {v(XR+i)}\nv_lshlrev_b32 {v(T+4)}, 16, {v(B2R+i)}\nv_and_b32 {v(T+5)}, 0xffff0000, {v(B2R+i)}\nv_add_f32 {v(F+2*i)}, {v(F+2*i)}, {v(T+4)}\nv_add_f32 {v(F+2*i+1)}, {v(F+2*i+1)}, {v(T+5)}"))
    if ffn:
        pxi = int(OPT.get("pxi", 13))
        at(pxi - 1, [f"v_mov_b32 {v(PX+i)}, -1" for i in range(4)])
        for j in (1, 2, 3): at(pxi + j - 1, xoff(j, True) + [f"buffer_store_dwordx4 {v(PX,4)}, {v(VL16)}, {s(SWS,4)}, {s(sT0)} offen sc1 ; tag=px"])
    at(done_at[1] if ffn else 8, flag(4, "px"))
    bar_i = first[12] - D
    RG = [KAREA[0], L_KVB, KAREA[0], L_KVB]
    def wr(nb): a = RG[nb]; return [f"ds_write_b128 {v(WB[a>>16])}, {v(AC+16*nb+8+4*q,4)} offset:{(a&0xffff)+1024*q}" for q in range(2)]
    def rdp(nb): a = RG[nb]; return [f"ds_read_b128 {v(AC+16*nb+8+4*q,4)}, {v(RBs[a>>16])} offset:{(a&0xffff)+1024*q}" for q in range(2)]
    def add(nb, pk): c = AC + 16 * nb; return [f"v_pk_add_f32 {v(c+i,2)}, {v(c+i,2)}, {v(c+8+i,2)}" for i in range(0, 8, 2)] if pk else [f"v_add_f32 {v(c+i)}, {v(c+i)}, {v(c+8+i)}" for i in range(8)]
    def snd(nb): c = AC + 16 * nb; return [f"v_cvt_pk_bf16_f32 {v(c+8+i)}, {v(c+2*i)}, {v(c+2*i+1)}" for i in range(4)] + xoff(nb, True) + [f"buffer_store_dwordx4 {v(c+8,4)}, {v(VL16)}, {s(SWS,4)}, {s(sT0)} offen sc1"]
    for nb in (1, 2, 3):
        e = done_at[nb]
        at(e + 1, wr(nb)); at(e + 2, ["s_waitcnt lgkmcnt(2)", "s_barrier"] + rdp(nb)); at(e + 4, add(nb, False) + snd(nb))
    at(done_at[3] + 4, stamp_i("xs"))
    of = f"buffer_load_dword {v(VOF)}, {v(VOA)}, {s(SWS,4)}, 0 offen sc1"
    op = f"buffer_load_dword {v(VOV)}, {v(VOP)}, {s(SWS,4)}, {s(sA1)} offen sc1"
    at(7, lines(f"s_andn2_b32 {s(sT0)}, {s(sFL)}, 0x380\ns_lshl_b32 {s(sT1)}, {s(sHALF)}, 9\ns_add_u32 {s(sT0)}, {s(sT0)}, {s(sT1)}\nv_and_b32 {v(VOA)}, 3, {v(vL)}\nv_lshlrev_b32 {v(VOA)}, 7, {v(VOA)}\nv_and_b32 {v(VOP)}, 12, {v(vL)}\nv_add_u32 {v(VOA)}, {v(VOA)}, {v(VOP)}\nv_add_u32 {v(VOA)}, {s(sT0)}, {v(VOA)}\nv_and_b32 {v(VOP)}, 15, {v(vL)}\nv_lshlrev_b32 {v(VOP)}, 10, {v(VOP)}") + [of])
    ao = int(OPT.get("aof", done_at[3] + 6)) if ffn else int(OPT.get("aoa", 24))
    PROBE = ffn or OPT.get("pra") == "1"
    def ogate():
        P(f"v_mov_b32 {v(VOF)}, {v(VOF)}")
        spin(P.lab("L_of"), of, f"v_cmp_gt_u32 vcc, 1, {v(VOF)}")
        if PROBE:
            P(f"v_mov_b32 {v(VOV)}, -1")
            spin(P.lab("L_op"), op, f"v_cmp_eq_u32 vcc, -1, {v(VOV)}")
    act[ao] = ogate
    i_ = ao; per = 3 if ffn else 1
    for j in range(16):
        if j >= 12: i_ = max(i_, done_at[1] + 6)
        at(i_, o_job(j))
        if (j + 1) % per == 0: i_ += 1
    assert i_ <= first[14] - 1 + (6 if ffn else 0), (i_, first[14])
    VPF, VPA = PX, PX + 1
    pf = f"buffer_load_dword {v(VPF)}, {v(VPA)}, {s(SWS,4)}, 0 offen sc1"
    at(done_at[3] + 3, lines(f"v_and_b32 {v(VPA)}, 3, {v(vL)}\nv_lshlrev_b32 {v(VPA)}, 8, {v(VPA)}\nv_xor_b32 {v(VPA)}, {s(sFO)}, {v(VPA)}") + [pf])
    RQ = [None, AC + 32, AC + 36, AC + 44]
    rl = sum([xoff(j, False) + [f"buffer_load_dwordx4 {v(RQ[j],4)}, {v(VL16)}, {s(SWS,4)}, {s(sT0)} offen sc1"] for j in range(1, 4)], [])
    def recv():
        P(f"v_mov_b32 {v(VPF)}, {v(VPF)}")
        spin(P.lab("L_pf"), pf, f"v_cmp_gt_u32 vcc, 4, {v(VPF)}")
        P.add(rl)
    ri = len(seq) - 1 - int(OPT.get("ri", 8))
    VG_ = int(OPT.get("vg", 4))
    seen = set()
    for i, (kk, nb) in enumerate(seq):
        if i % 4 == 0: P(f"s_setprio {3 - ((i >> 2) & 3)}")
        P(mfma(AC + 16 * nb, bq(i), AFx(kk), None if nb in seen else "0")); seen.add(nb)
        if i == bar_i: P(".waitvm b8"); P("s_barrier")
        if i + D < len(seq): P.add(br(i + D))
        if i in gates: sneed(gates[i], 0)
        if i in act: act[i]()
        for x in ev.pop(i, []): P.add(x)
        if i + 1 < len(seq) and seq[i + 1][0] >= 14 and (seq[i + 1][0] - 14) % VG_ == 0:
            j0 = seq[i + 1][0] - 14
            validate([AFx(14 + j) + r for j in range(j0, j0 + VG_) for r in range(4)], T + 16, sum([o_job(j) for j in range(j0, 16)], []))
        if i == ri: recv()
        if i + 1 < len(seq) and first[seq[i + 1][0]] == i + 1: stamp(f"k{kk}")
    assert not ev, ev.keys()
    stamp("p2mm")
    P("s_setprio 0")
    P.add(wr(0))
    P("s_waitcnt lgkmcnt(0)")
    P("s_barrier")
    P.add(rdp(0))
    validate([RQ[j] + i for j in (1, 2, 3) for i in range(4)], T + 16, rl)
    stamp("xr")
    P(f"s_mov_b32 {s(sT0)}, 0x3f80\ns_mov_b32 {s(sT1)}, 0x3f800000")
    for j in range(1, 4):
        for i in range(4): P(f"v_dot2c_f32_bf16 {v(AC+2*i)}, {s(sT0)}, {v(RQ[j]+i)}\nv_dot2c_f32_bf16 {v(AC+2*i+1)}, {s(sT1)}, {v(RQ[j]+i)}")
    P.add(add(0, True))
    for i in range(4): P(f"v_permlane32_swap_b32 {v(AC+i)}, {v(AC+4+i)}")
    for i in range(0, 8, 2): P(f"v_pk_add_f32 {v(F+i,2)}, {v(F+i,2)}, {v(AC+i,2)}")
    for i in range(4): P(f"v_cvt_pk_bf16_f32 {v(XR+i)}, {v(F+2*i)}, {v(F+2*i+1)}")
    P(f"buffer_store_dwordx4 {v(XR,4)}, {v(VX)}, {s(SOUT,4)}, {s(sOo)} offen")
    finish(ffn)

def phase2_v3(bleft, aleft, ffn):
    BAR = [2, 3, 4, 5, 6, 7, 8, 9, 10, 11, 18, 19]; VX = 16; PX = BAUG
    t = T + 8
    P(f"v_bfe_u32 {v(t)}, {v(vL)}, 2, 2\nv_lshrrev_b32 {v(t+1)}, 5, {v(vL)}\nv_bfe_u32 {v(t+2)}, {v(vL)}, 4, 1\nv_lshl_add_u32 {v(t+3)}, {v(t+2)}, 2, {v(t)}\nv_lshl_add_u32 {v(t+3)}, {v(t+1)}, 4, {v(t+3)}")
    P(f"v_and_b32 {v(t+4)}, 63, {v(AW)}\ns_lshl_b32 {s(sT0)}, {s(sHALF)}, 5\nv_xor_b32 {v(t+4)}, {s(sT0)}, {v(t+4)}\nv_lshl_add_u32 {v(t+3)}, {v(t+3)}, 8, {v(t+4)}")
    P(f"v_xor_b32 {v(t)}, {s(sM)}, {v(t)}\nv_lshl_add_u32 {v(BAR[0])}, {v(t)}, 6, {v(t+3)}")
    for q in range(1, 4): P(f"v_xor_b32 {v(BAR[q])}, {64*q}, {v(BAR[0])}")
    for rg in (2, 1):
        for q in range(4): P(f"v_add_u32 {v(BAR[4*rg+q])}, {65536*rg}, {v(BAR[q])}")
    LP = int(OPT.get("lp", 2)); SQ = int(OPT.get("sq", 14))
    assert LP >= 2
    seq = [(st, q) for st in range(SQ) for q in range(4) if q or st < LP]
    done_at = {}
    for q in (1, 2, 3):
        seq += [(st, q) for st in range(SQ, 18)]; done_at[q] = len(seq)
    seq += [(st, 0) for st in range(LP, 18)]
    D = 4
    def bq(i): return XF + 8 * (i & 7)
    def br(i):
        st, q = seq[i]; a = KAREA[st >> 1]
        return [f"ds_read_b64_tr_b16 {v(bq(i)+2*tt,2)}, {v(BAR[4*(a>>16)+q])} offset:{(a&0xffff)+(st&1)*8192+2048*tt}" for tt in range(2)]
    def val(st): validate([AF3(st, sh) + i for sh in range(2) for i in range(4)], T + 16, sum(a_jobs(st), []))
    for i in range(D): P.add(br(i))
    val(0)
    stamp("hseen")
    first = {}
    for i, (st, q) in enumerate(seq): first.setdefault(st, i)
    ev = {}
    def at(i, x): ev.setdefault(i, []).append(x)
    a8, a14 = int(OPT.get("a8", 8)), int(OPT.get("a14", 26))
    i0 = 0
    for st in aleft: at(i0, sum(a_jobs(st), [])); i0 += 1
    for g_ in sum([b_dma(k2) for k2 in bleft], []): at(i0, g_); i0 += 1
    a8 = max(a8, i0)
    for st in range(8, 14): at(a8 + 2 * (st - 8), sum(a_jobs(st), []))
    for st in range(14, 18): at(a14 + 2 * (st - 14), sum(a_jobs(st), []))
    pxi = int(OPT.get("pxi", a8 + 12))
    at(pxi - 1, [f"v_mov_b32 {v(PX+i)}, -1" for i in range(4)])
    for j in (1, 2, 3): at(pxi + j - 1, xoff(j, True) + [f"buffer_store_dwordx4 {v(PX,4)}, {v(VL16)}, {s(SWS,4)}, {s(sT0)} offen sc1 ; tag=px"])
    at(done_at[1] - int(OPT.get("fxb", 2)), flag(2, "px"))
    F = T + 8
    at(a8 + 1, lines(f"v_and_b32 {v(T+17)}, 31, {v(vL)}\nv_lshrrev_b32 {v(T+18)}, 5, {v(vL)}\nv_lshlrev_b32 {v(T+18)}, 4, {v(T+18)}\nv_lshl_add_u32 {v(VX)}, {v(T+17)}, 10, {v(T+18)}") +
          [f"buffer_load_dwordx4 {v(XR,4)}, {v(VX)}, {s(SX,4)}, {s(sOo)} offen", f"buffer_load_dwordx4 {v(B2R,4)}, {v(T+18)}, {s(SB2,4)}, {s(sN)} offen"])
    for i in range(4):
        at(done_at[3] + 6 + i, lines(f"v_lshlrev_b32 {v(F+2*i)}, 16, {v(XR+i)}\nv_and_b32 {v(F+2*i+1)}, 0xffff0000, {v(XR+i)}\nv_lshlrev_b32 {v(T+4)}, 16, {v(B2R+i)}\nv_and_b32 {v(T+5)}, 0xffff0000, {v(B2R+i)}\nv_add_f32 {v(F+2*i)}, {v(F+2*i)}, {v(T+4)}\nv_add_f32 {v(F+2*i+1)}, {v(F+2*i+1)}, {v(T+5)}"))
    def snd(q): c = AC + 8 * q; return [f"v_cvt_pk_bf16_f32 {v(c+i)}, {v(c+2*i)}, {v(c+2*i+1)}" for i in range(4)] + xoff(q, True) + [f"buffer_store_dwordx4 {v(c,4)}, {v(VL16)}, {s(SWS,4)}, {s(sT0)} offen sc1"]
    VPF, VPA = PX, PX + 1
    pf = f"buffer_load_dword {v(VPF)}, {v(VPA)}, {s(SWS,4)}, 0 offen sc1"
    for q in (1, 2, 3): at(done_at[q] + 1, snd(q))
    at(done_at[3] + 1, stamp_i("xs"))
    at(done_at[3] + int(OPT.get("pfi", 0)), lines(f"v_and_b32 {v(VPA)}, 3, {v(vL)}\nv_lshlrev_b32 {v(VPA)}, 8, {v(VPA)}\nv_xor_b32 {v(VPA)}, {s(sFO)}, {v(VPA)}") + [pf])
    bar_i = first[12] - D
    R = AC + 8 - 4
    RQ = [None, AC + 12, AC + 20, AC + 28]
    rl = sum([xoff(j, False) + [f"buffer_load_dwordx4 {v(RQ[j],4)}, {v(VL16)}, {s(SWS,4)}, {s(sT0)} offen sc1"] for j in range(1, 4)], [])
    ri = min(done_at[3] + int(OPT.get("ri", 12)), len(seq) - 1)
    seen = set()
    for i, (st, q) in enumerate(seq):
        if i % 4 == 0: P(f"s_setprio {3 - ((i >> 2) & 3)}")
        for sh in range(2): P(m16(AC + 8 * q + 4 * sh, bq(i), AF3(st, sh), None if q in seen else "0"))
        seen.add(q)
        if i == bar_i: P(".waitvm b8"); P("s_barrier")
        if i + D < len(seq): P.add(br(i + D))
        if i + 2 < len(seq) and first[seq[i + 2][0]] == i + 2: val(seq[i + 2][0])
        for x in ev.pop(i, []): P.add(x)
        if i == ri:
            P(f"v_mov_b32 {v(VPF)}, {v(VPF)}")
            spin(P.lab("L_pf"), pf, f"v_cmp_gt_u32 vcc, 2, {v(VPF)}")
            P.add(rl)
        if i + 1 < len(seq) and first[seq[i + 1][0]] == i + 1: stamp(f"k{st}")
    assert not ev, ev.keys()
    stamp("p2mm")
    P("s_setprio 0")
    validate([RQ[j] + i for j in (1, 2, 3) for i in range(4)], T + 16, rl)
    stamp("xr")
    P(f"s_mov_b32 {s(sT0)}, 0x3f80\ns_mov_b32 {s(sT1)}, 0x3f800000")
    for j in range(1, 4):
        for i in range(4): P(f"v_dot2c_f32_bf16 {v(AC+2*i)}, {s(sT0)}, {v(RQ[j]+i)}\nv_dot2c_f32_bf16 {v(AC+2*i+1)}, {s(sT1)}, {v(RQ[j]+i)}")
    for i in range(4): P(f"v_permlane16_swap_b32 {v(AC+i)}, {v(AC+4+i)}")
    for i in range(0, 8, 2): P(f"v_pk_add_f32 {v(F+i,2)}, {v(F+i,2)}, {v(AC+i,2)}")
    for i in range(4): P(f"v_cvt_pk_bf16_f32 {v(XR+i)}, {v(F+2*i)}, {v(F+2*i+1)}")
    P(f"buffer_store_dwordx4 {v(XR,4)}, {v(VX)}, {s(SOUT,4)}, {s(sOo)} offen")
    finish(ffn)

def phase2(done=(), ordr="B6 B7 B8 B9 A4 A5 A6 A7 B10 A8 B11 A9 A10 B12 A11 B13 A12 B14 A13 B15 B16 B17 A14 A15 A16 A17", ffn=False):
    P(f"v_bfe_u32 {v(T+8)}, {v(vL)}, 2, 2\nv_lshrrev_b32 {v(T+9)}, 5, {v(vL)}\nv_and_b32 {v(T+10)}, 63, {v(AW)}")
    P(f"v_lshl_add_u32 {v(T+12)}, {v(T+9)}, 2, {v(T+8)}\nv_lshl_add_u32 {v(T+12)}, {v(T+12)}, 7, {v(T+10)}\nv_lshrrev_b32 {v(T+13)}, 1, {v(T+8)}")
    P(f"v_lshl_add_u32 {v(T+12)}, {v(T+13)}, 6, {v(T+12)}\nv_xor_b32 {v(T+13)}, 64, {v(T+12)}")
    P(f"s_add_u32 {s(sT0)}, {s(sM0x)}, 65536\ns_add_u32 {s(sT1)}, {s(sM0x)}, {RC}")
    for nb in range(2):
        P(f"v_add_u32 {v(BA+nb)}, {s(sM0x)}, {v(T+12+nb)}\nv_add_u32 {v(BA+2+nb)}, {s(sT0)}, {v(T+12+nb)}\nv_add_u32 {v(BA+4+nb)}, {s(sT1)}, {v(T+12+nb)}")
    P.add(b_reads(0))
    if OPT.get("r8", "1") == "1": validate([AFq(0, r2) + i for r2 in range(2) for i in range(4)], T + 16, sum(a_jobs(0), []))
    if OPT.get("p2prio") == "y":
        lb = P.lab("L_pr"); P(f"s_cmp_lt_u32 {s(sW)}, 4\ns_cbranch_scc1 {lb}\ns_setprio 1\n{lb}:")
    stamp("hseen")
    order = [j for j in ordr.split() if j not in done]
    jobs = []
    for j in order:
        k2 = int(j[1:]); gs = a_jobs(k2) if j[0] == "A" else b_dma(k2)
        jobs += [(j, gs[0]), (None, gs[1])]
    LEAD = int(OPT.get("lead", 3))
    first_need = min(int(j[1:]) - (0 if j[0] == "A" else 1) for j in order)
    order.sort(key=lambda j: int(j[1:]) - (0.5 if j[0] == "B" else 0)) if LEAD < 9 else None
    jobs = []
    for j in order:
        k2 = int(j[1:]); gs = a_jobs(k2) if j[0] == "A" else b_dma(k2)
        jobs += [(j, gs[0]), (None, gs[1])]
    NT = int(OPT.get("nt", 2))
    for kk in range(18 - NT):
        rem = [x for x, _ in jobs if x]
        assert f"A{kk+1}" not in rem and f"B{kk+2}" not in rem, (kk, rem)
        if OPT.get("v"): print(kk, rem, file=sys.stderr)
        pm = OPT.get("p2prio", "c")
        if pm == "c": P(f"s_setprio {3 - ((kk // int(OPT.get('p2per', 1))) & 3)}")
        br = b_reads(kk + 1) if kk + 1 < 18 else []
        for nb in range(2):
            for rb in range(2):
                mi = 2 * nb + rb
                P(mfma(AC + 16 * mi, BTq(kk, nb), AFq(kk, rb), "0" if kk == 0 else None))
                if mi == 0: P.add(br[:3])
                if mi == 1: P.add(br[3:])
                if mi == 2 and (1 if OPT.get('r8', '1') == '1' else 4) <= kk + 1 < 18:
                    if jobs and jobs[0][0] is None: P.add(jobs.pop(0)[1])
                    validate([AFq(kk + 1, r2) + i for r2 in range(2) for i in range(4)], T + 16, sum(a_jobs(kk + 1), []))
                for rep in range(2 if kk < int(OPT.get("dbl", 0)) else 1):
                    if not jobs: continue
                    j, g_ = jobs[0]
                    if j:
                        k2 = int(j[1:]); last = (nb, rb) == (1, 1)
                        free = k2 - (8 if j[0] == "A" else 9)
                        if free > kk or (free == kk and not last): continue
                        need_at = k2 - (0 if j[0] == "A" else 1)
                        if need_at > max(kk, first_need - 1) + LEAD: continue
                    jobs.pop(0); P.add(g_)
        stamp(f"k{kk}")
        if kk == 8:
            P(f"v_lshrrev_b32 {v(T+17)}, 3, {v(vL)}\nv_and_b32 {v(T+18)}, 7, {v(vL)}\nv_lshlrev_b32 {v(T+18)}, 4, {v(T+18)}\nv_lshl_add_u32 {v(VXR)}, {v(T+17)}, 10, {v(T+18)}")
            P(f"s_lshl_b32 {s(sT0)}, {s(sN)}, 7")
            P(f"buffer_load_dwordx4 {v(XR,4)}, {v(VXR)}, {s(SX,4)}, {s(sOo)} offen")
            P(f"buffer_load_dwordx4 {v(B2R,4)}, {v(T+18)}, {s(SB2,4)}, {s(sT0)} offen")
        if kk == 3:
            for q in range(4):
                P(f"v_xor_b32 {v(VWR+q)}, {64*q}, {v(VL16)}\nv_add_u32 {v(VWR+q)}, {s(sM0x)}, {v(VWR+q)}")
                P(f"v_add_u32 {v(T+q)}, 65536, {v(VWR+q)}")
            P(f"v_lshrrev_b32 {v(T+4)}, 3, {v(vL)}\ns_lshl_b32 {s(sT0)}, {s(sW34)}, 1\nv_add_u32 {v(T+4)}, {s(sT0)}, {v(T+4)}")
            P(f"v_and_b32 {v(T+5)}, 3, {v(vL)}\nv_lshlrev_b32 {v(T+6)}, 2, {v(T+5)}\nv_xor_b32 {v(T+4)}, {v(T+4)}, {v(T+6)}\nv_lshlrev_b32 {v(T+4)}, 4, {v(T+4)}\nv_and_b32 {v(T+6)}, 1, {v(T+5)}\nv_lshl_add_u32 {v(T+4)}, {v(T+6)}, 10, {v(T+4)}\nv_lshrrev_b32 {v(T+6)}, 1, {v(T+5)}\nv_lshl_add_u32 {v(T+4)}, {v(T+6)}, 14, {v(T+4)}")
            P(f"v_bfe_u32 {v(T+5)}, {v(vL)}, 2, 1\nv_lshl_add_u32 {v(T+4)}, {v(T+5)}, 16, {v(T+4)}\ns_lshl_b32 {s(sT0)}, {s(sHALF)}, 15\nv_add_u32 {v(VRED)}, {s(sT0)}, {v(T+4)}")
        F = T + 8
        if kk == 13:
            for i in range(4):
                P(f"v_lshlrev_b32 {v(F+2*i)}, 16, {v(XR+i)}\nv_and_b32 {v(F+2*i+1)}, 0xffff0000, {v(XR+i)}")
                P(f"v_lshlrev_b32 {v(T+4)}, 16, {v(B2R+i)}\nv_and_b32 {v(T+5)}, 0xffff0000, {v(B2R+i)}")
                P(f"v_add_f32 {v(F+2*i)}, {v(F+2*i)}, {v(T+4)}\nv_add_f32 {v(F+2*i+1)}, {v(F+2*i+1)}, {v(T+5)}")
    assert not jobs
    for kk in range(19 - NT, 18):
        P.add(b_reads(kk))
        validate([AFq(kk, r2) + i for r2 in range(2) for i in range(4)], T + 16, sum(a_jobs(kk), []))
    def wr(blk): return [f"ds_write_b128 {v(VWR + q if blk < 2 else T + q)}, {v(AC+16*blk+4*q,4)} offset:{(blk&1)*32768+(q>>1)*16384+(q&1)*1024}" for q in range(4)]
    pend = []
    for mi in range(4):
        for kk in range(18 - NT, 18):
            P(mfma(AC + 16 * mi, BTq(kk, mi >> 1), AFq(kk, mi & 1)))
            if kk > 18 - NT or NT == 1: P.add(pend[:2]); pend = pend[2:]
        P.add(pend); pend = wr(mi)
    stamp("p2mm")
    P.add(pend)
    P("s_waitcnt lgkmcnt(0)")
    stamp("rw")
    P("s_barrier")
    stamp("rb")
    R = XF
    for ww in range(8):
        for hf in range(2): P(f"ds_read_b128 {v(R+8*ww+4*hf,4)}, {v(VRED)} offset:{2048*ww+512*hf}")
    for ww in range(8):
        for i in range(0, 8, 2): P(f"v_pk_add_f32 {v(F+i,2)}, {v(F+i,2)}, {v(R+8*ww+i,2)}")
    for i in range(4): P(f"v_cvt_pk_bf16_f32 {v(XR+i)}, {v(F+2*i)}, {v(F+2*i+1)}")
    P(f"buffer_store_dwordx4 {v(XR,4)}, {v(VXR)}, {s(SOUT,4)}, {s(sOo)} offen {OPT.get('om', '').replace('+', ' ')}")
    finish(ffn)

def softmax(p, out, LS, pk=False):
    t = T + 16
    if pk:
        assert LS == STD + 1
        L = softmax(p, out, LS)[:9]
        L += [f"v_pk_fma_f32 {v(p+i,2)}, {v(p+i,2)}, {v(STD,2)}, {v(t,2)} op_sel:[0,1,0] op_sel_hi:[1,1,0] neg_lo:[0,0,1] neg_hi:[0,0,1]" for i in range(0, 16, 2)]
        L += [f"v_exp_f32 {v(p+i)}, {v(p+i)}" for i in range(16)]
        L += [f"v_pk_add_f32 {v(t,2)}, {v(p,2)}, {v(p+2,2)}", f"v_pk_add_f32 {v(t+2,2)}, {v(p+4,2)}, {v(p+6,2)}"]
        L += [f"v_pk_add_f32 {v(t+2*(i&1),2)}, {v(t+2*(i&1),2)}, {v(p+8+2*i,2)}" for i in range(4)]
        L += [f"v_pk_add_f32 {v(t,2)}, {v(t,2)}, {v(t+2,2)}", f"v_add_f32 {v(t)}, {v(t)}, {v(t+1)}", f"v_rcp_f32 {v(t)}, {v(t)}"]
        L += [f"v_pk_mul_f32 {v(p+i,2)}, {v(p+i,2)}, {v(t,2)} op_sel_hi:[1,0]" for i in range(0, 16, 2)]
        return L + [f"v_cvt_pk_bf16_f32 {v(out+i)}, {v(p+2*i)}, {v(p+2*i+1)}" for i in range(8)]
    L = [f"v_max3_f32 {v(t)}, {v(p)}, {v(p+1)}, {v(p+2)}", f"v_max3_f32 {v(t+1)}, {v(p+3)}, {v(p+4)}, {v(p+5)}",
         f"v_max3_f32 {v(t)}, {v(t)}, {v(p+6)}, {v(p+7)}", f"v_max3_f32 {v(t+1)}, {v(t+1)}, {v(p+8)}, {v(p+9)}",
         f"v_max3_f32 {v(t)}, {v(t)}, {v(p+10)}, {v(p+11)}", f"v_max3_f32 {v(t+1)}, {v(t+1)}, {v(p+12)}, {v(p+13)}",
         f"v_max3_f32 {v(t)}, {v(t)}, {v(p+14)}, {v(p+15)}", f"v_max_f32 {v(t)}, {v(t)}, {v(t+1)}",
         f"v_mul_f32 {v(t)}, {v(t)}, {v(LS)}"]
    L += [f"v_fma_f32 {v(p+i)}, {v(p+i)}, {v(LS)}, -{v(t)}" for i in range(16)]
    L += [f"v_exp_f32 {v(p+i)}, {v(p+i)}" for i in range(16)]
    L += [f"v_add_f32 {v(t)}, {v(p)}, {v(p+1)}", f"v_add_f32 {v(t+1)}, {v(p+2)}, {v(p+3)}"]
    for i in range(4, 16, 2):
        L += [f"v_add_f32 {v(t)}, {v(t)}, {v(p+i)}", f"v_add_f32 {v(t+1)}, {v(t+1)}, {v(p+i+1)}"]
    L += [f"v_add_f32 {v(t)}, {v(t)}, {v(t+1)}", f"v_rcp_f32 {v(t)}, {v(t)}"]
    L += [f"v_mul_f32 {v(p+i)}, {v(p+i)}, {v(t)}" for i in range(16)]
    L += [f"v_cvt_pk_bf16_f32 {v(out+i)}, {v(p+2*i)}, {v(p+2*i+1)}" for i in range(8)]
    return L

setup(False)
KAREA[:] = [RC, RA+3*Q, RA, RA+Q, RA+2*Q, RB, RB+Q, RB+2*Q, RB+3*Q]
ASY = OPT.get('asy', '0') == '1'
LS = K1; VPK = K2; VV = VW3; MC = BIAS
PHI0, PHI1 = AX, AAUG
PHI0 = AX
PHI1 = S1
PHI1 = T + 12
t = T + 16
P(f"v_bfe_u32 {v(t)}, {v(vL)}, 2, 2\nv_lshrrev_b32 {v(t+1)}, 5, {v(vL)}\nv_lshl_add_u32 {v(t)}, {v(t+1)}, 2, {v(t)}\nv_lshlrev_b32 {v(t)}, 5, {v(t)}")
P(f"v_bfe_u32 {v(t+2)}, {v(vL)}, 1, 1\nv_lshl_add_u32 {v(t)}, {v(t+2)}, 3, {v(t)}\nv_bfe_u32 {v(t+2)}, {v(vL)}, 4, 1\nv_lshl_add_u32 {v(t)}, {v(t+2)}, 4, {v(t)}")
P(f"s_lshl_b32 {s(sT1)}, {s(sHALF)}, 10\ns_add_u32 {s(sT1)}, {s(sT1)}, {L_WPHI}\nv_add_u32 {v(AB)}, {s(sT1)}, {v(t)}")
P(f"v_bfe_u32 {v(t)}, {v(vL)}, 2, 1\nv_mul_u32_u24 {v(t)}, 0x8000, {v(t)}\nv_lshl_or_b32 {v(AB+1)}, {v(t)}, 16, {v(t)}")
P(f"v_and_b32 {v(t)}, 31, {v(vL)}\nv_lshlrev_b32 {v(t)}, 6, {v(t)}\ns_lshl_b32 {s(sT1)}, {s(sW34)}, 9\nv_bfe_u32 {v(t+2)}, {v(vL)}, 1, 2")
P(f"v_lshlrev_b32 {v(t+3)}, 1, {v(t+1)}\nv_xor_b32 {v(t+3)}, {v(t+3)}, {v(t+2)}")
P(f"s_lshl_b32 {s(sT2)}, {s(sHALF)}, 14\ns_add_u32 {s(sT2)}, {s(sT2)}, {s(sT1)}\nv_lshl_add_u32 {v(VPK)}, {v(t+3)}, 4, {v(t)}\nv_add_u32 {v(VPK)}, {s(sT2)}, {v(VPK)}")
P(f"v_xor_b32 {v(t+3)}, {v(t+1)}, {v(t+2)}")
P(f"s_lshl_b32 {s(sT2)}, {s(sHALF)}, 13\ns_add_u32 {s(sT2)}, {s(sT2)}, {s(sT1)}\ns_add_u32 {s(sT2)}, {s(sT2)}, {RA+32768}\nv_lshl_add_u32 {v(VV)}, {v(t+3)}, 4, {v(t)}\nv_add_u32 {v(VV)}, {s(sT2)}, {v(VV)}")
def phi_load(hl, dst):
    return [f"ds_read_b64_tr_b16 {v(dst+2*tt,2)}, {v(AB)} offset:{512*hl+256*tt}" for tt in range(2)] + \
           [f"v_xor_b32 {v(dst+i)}, {v(AB+1)}, {v(dst+i)}" for i in range(4)]
S = Sched(96)
common_sched(S, False, None, MC)
S.post[30] += [f"ds_read_b128 {v(CSR,4)}, {v(VCSA)}"]
sKV, sOS = sH0, sH3
P(f"s_lshl_b32 {s(sT0)}, {s(sG)}, 4\ns_add_u32 {s(sT0)}, {s(sT0)}, {s(sRT)}\ns_mul_i32 {s(sT0)}, {s(sT0)}, {KVP_SZ}\ns_mul_i32 {s(sT1)}, {s(sW)}, 1152\ns_add_u32 {s(sT0)}, {s(sT0)}, {s(sT1)}\ns_add_u32 {s(sT0)}, {s(sT0)}, {WS_KVP}")
P(f"s_cmp_lt_u32 {s(sW)}, 4\ns_cselect_b32 {s(sKV)}, {s(sT0)}, 0x7f000000")
P(f"s_lshl_b32 {s(sT0)}, {s(sG)}, 2\ns_lshl_b32 {s(sT1)}, {s(sHALF)}, 1\ns_add_u32 {s(sT0)}, {s(sT0)}, {s(sT1)}\ns_add_u32 {s(sT0)}, {s(sT0)}, 112\ns_lshl_b32 {s(sT0)}, {s(sT0)}, 10\ns_add_u32 {s(sOS)}, {s(sT0)}, {s(sHo)}")
PA = AAUG
OFFL = OPT.get("off", "0") == "1"
if OFFL:
    P(f"s_mul_i32 {s(sT0)}, {s(sG)}, 448\ns_and_b32 {s(sT1)}, {s(sG)}, 1\ns_add_u32 {s(sT2)}, {s(sT1)}, {s(sHALF)}\ns_lshl_b32 {s(sT2)}, {s(sT2)}, 6\ns_add_u32 {s(sT2)}, {s(sT2)}, {s(sT0)}")
    P(f"s_lshl_b32 {s(sT2)}, {s(sT2)}, 5\ns_add_u32 {s(sWq)}, {s(sT2)}, {s(sHo)}\ns_add_u32 {s(sWq)}, {s(sWq)}, 8192")
    P(f"s_xor_b32 {s(sT1)}, {s(sT1)}, 1\ns_mul_i32 {s(sT1)}, {s(sT1)}, 384\ns_add_u32 {s(sT0)}, {s(sT0)}, {s(sT1)}\ns_lshl_b32 {s(sT1)}, {s(sHALF)}, 5\ns_add_u32 {s(sT0)}, {s(sT0)}, {s(sT1)}")
    P(f"s_lshl_b32 {s(sT0)}, {s(sT0)}, 5\ns_add_u32 {s(sW3)}, {s(sT0)}, {s(sHo)}")
S.post[46] += [f"v_mov_b32 {v(PA+i)}, -1" for i in range(4)] + [f"v_lshrrev_b32 {v(S2)}, 2, {v(vL)}", f"v_lshl_add_u32 {v(S2)}, {v(S2)}, 26, {v(VL16)}"]
S.post[47] += [f"buffer_store_dwordx4 {v(PA,4)}, {v(VL16)}, {s(SWS,4)}, {s(sKV)} offen sc1"]
S.post[48] += [f"buffer_store_dwordx4 {v(PA,4)}, {v(S2)}, {s(SWS,4)}, {s(sKV)} offen offset:1024 sc1 ; tag=pz"]
pl = [(sOS, 0), (sOS, 1024)] + ([(sWq, 0), (sWq, 1024), (sW3, 0)] if OFFL else [])
for (so, off), G in zip(pl, [int(x) for x in OPT.get("pza", "50,53,56,59,62").split(",")]):
    S.post[G] += [f"buffer_store_dwordx4 {v(PA,4)}, {v(VL16)}, {s(SWS,4)}, {s(so)} offen offset:{off} sc1 ; tag=po"]
PX1 = OPT.get("px1") == "1"
if V2 and PX1:
    for j, G in zip((1, 2, 3), (56, 59, 62)): S.post[G] += xoff(j, True) + [f"buffer_store_dwordx4 {v(PA,4)}, {v(VL16)}, {s(SWS,4)}, {s(sT0)} offen sc1 ; tag=px"]
S.post[63] += [f"v_mov_b32 {v(PA+2)}, 0", f"v_mov_b32 {v(PA+3)}, 0"]
def ltouch():
    P(f"s_sub_u32 {s(sT0)}, {s(sW)}, 4\ns_cmp_lt_u32 {s(sT0)}, 3")
    P(f"s_cbranch_scc0 L_nlt")
    P.cond_begin("w456")
    P(f"v_lshlrev_b32 {v(S1)}, 7, {v(vL)}\ns_lshl_b32 {s(sT1)}, {s(sRT)}, 3\ns_add_u32 {s(sT1)}, {s(sT1)}, {s(sG)}")
    P(f"s_cmp_eq_u32 {s(sT0)}, 2\ns_cbranch_scc1 L_lt2")
    P(f"s_lshl_b32 {s(sT1)}, {s(sT1)}, 1\ns_add_u32 {s(sT1)}, {s(sT1)}, {s(sT0)}\ns_mul_i32 {s(sT1)}, {s(sT1)}, 7168")
    P(f"buffer_load_dword {v(VX0)}, {v(S1)}, {s(SW2,4)}, {s(sT1)} offen")
    P("s_branch L_nlt")
    P("L_lt2:")
    P(f"v_and_b32 {v(S1)}, 4095, {v(S1)}\ns_lshl_b32 {s(sT1)}, {s(sT1)}, 12")
    P(f"buffer_load_dword {v(VX0)}, {v(S1)}, {s(SWO,4)}, {s(sT1)} offen")
    P(f"buffer_load_dword {v(VX1)}, {v(S1)}, {s(SB2,4)}, 0 offen")
    P.cond_end()
    for I in P.ins[-12:]:
        if I.kind == "vld": I.defs = []
    P("L_nlt:")
if OPT.get("touch", "5") == "2": S.blk[("e", int(OPT.get("tg", 54)))] = ltouch
S.post[31] += stamp_i("pass1")
fill = stats_final() + aug(ACC0, CSR, None) + phi_load(0, AX) + phi_load(1, T + 8) + [f"v_mul_f32 {v(LS)}, {f2u(LOG2E):#x}, {v(RSTD)}"]
fill += [f"v_cvt_pk_bf16_f32 {v(T+i)}, {v(ACC0+2*i)}, {v(ACC0+2*i+1)}" for i in range(8)]
fill += [mfma(ACC2, AX, T, "0"), mfma(ACC0, T + 8, T + 4, "0")]
S.spread(fill, 32, 40)
S.spread(softmax(ACC2, T + 8, LS) + softmax(ACC0, T, LS), 41, 64)
pkg = 62 if OPT.get("few", "1") == "1" else 56
S.post[pkg] += [f"ds_write_b128 {v(VPK)}, {v(T+8,4)}", f"v_xor_b32 {v(VSTA)}, 16, {v(VPK)}"]
S.post[pkg+1] += [f"ds_write_b128 {v(VSTA)}, {v(T+12,4)}"]
S.post[62] += [f"ds_read_b128 {v(MC,4)}, {v(VCSA)} offset:1024"]
S.post[63] += stamp_i("sub1")
S.pre[64] += sum4(CS0, MC)
S.fill[64] += aug(ACC1, MC, None)[3:]
S.post[65] += [f"ds_write_b128 {v(VPK)}, {v(T,4)} offset:8192"]
S.post[66] += [f"ds_write_b128 {v(VSTA)}, {v(T+4,4)} offset:8192"]
fill = []
fill += [f"v_mul_f32 {v(ACC1+i)}, {v(ACC1+i)}, {v(RSTD)}" for i in range(16)]
fill += [f"v_cvt_pk_bf16_f32 {v(ACC1+i)}, {v(ACC1+2*i)}, {v(ACC1+2*i+1)}" for i in range(8)]
fill += [f"ds_write_b128 {v(VV)}, {v(ACC1,4)}", f"v_xor_b32 {v(VV)}, 32, {v(VV)}", f"ds_write_b128 {v(VV)}, {v(ACC1+4,4)}"]
S.spread(fill, 66, 70)
S.dmas(b_dma(0), 65, 3)
S.dmas(b_dma(1), 74, 4); S.dmas(b_dma(2) + b_dma(3) + b_dma(4), int(OPT.get('ab', 86)), 1)
def kvblock():
    P(".waitvm pz lgkm0")
    P("s_barrier")
    kvflag()
    stamp("kv0"); stamp("kv1")
    P(f"s_cmp_lt_u32 {s(sW)}, 4")
    P("s_cbranch_scc0 L_nkv")
    P.cond_begin("lo4")
    P("s_setprio 3")
    t = T + 16; u = S1
    P(f"v_bfe_u32 {v(u)}, {v(vL)}, 2, 2\nv_lshrrev_b32 {v(u+1)}, 5, {v(vL)}\nv_lshl_add_u32 {v(u)}, {v(u+1)}, 3, {v(u)}\nv_lshlrev_b32 {v(u)}, 6, {v(u)}")
    P(f"v_bfe_u32 {v(u+1)}, {v(vL)}, 1, 1\nv_lshl_add_u32 {v(u)}, {v(u+1)}, 3, {v(u)}\nv_bfe_u32 {v(u+1)}, {v(vL)}, 3, 1\nv_and_b32 {v(VSTA)}, 1, {v(vL)}")
    P(f"v_or_b32 {v(t)}, {s(sSH)}, {v(VSTA)}\nv_xor_b32 {v(t)}, {v(t)}, {v(u+1)}\nv_lshl_add_u32 {v(t)}, {v(t)}, 4, {v(u)}")
    P(f"s_lshr_b32 {s(sT0)}, {s(sW)}, 1\ns_lshl_b32 {s(sT0)}, {s(sT0)}, 13\ns_add_u32 {s(sT0)}, {s(sT0)}, {RA+32768}\nv_add_u32 {v(t)}, {s(sT0)}, {v(t)}\nv_xor_b32 {v(t+1)}, 32, {v(t)}")
    P(f"v_bfe_u32 {v(t+2)}, {v(vL)}, 4, 1\nv_lshl_add_u32 {v(t+2)}, {v(VSTA)}, 1, {v(t+2)}\nv_xor_b32 {v(t+2)}, {v(t+2)}, {v(u+1)}\nv_lshl_add_u32 {v(t+2)}, {v(t+2)}, 4, {v(u)}")
    P(f"s_lshl_b32 {s(sT0)}, {s(sW)}, 13\nv_add_u32 {v(t+2)}, {s(sT0)}, {v(t+2)}\nv_xor_b32 {v(t+3)}, 32, {v(t+2)}")
    P(f"v_and_b32 {v(u)}, 16, {v(vL)}\nv_cmp_eq_u32 vcc, 0, {v(u)}\nv_mov_b32 {v(u+1)}, {s(sONE)}")
    KB = [T, T + 8, ACC1, ACC1 + 8]
    def kr(J):
        for tt in range(2):
            P(f"ds_read_b64_tr_b16 {v(KB[J&3]+2*tt,2)}, {v(t+tt)} offset:{1024*J+256*tt}")
            P(f"ds_read_b64_tr_b16 {v(KB[J&3]+4+2*tt,2)}, {v(t+2+tt)} offset:{1024*J+256*tt}")
    kr(0); kr(1); kr(2)
    for J in range(8):
        for i in range(4): P(f"v_cndmask_b32 {v(KB[J&3]+i)}, {v(u+1)}, {v(KB[J&3]+i)}, vcc")
        if J + 3 < 8: kr(J + 3)
        P(mfma(ACC0, KB[J&3] + 4, KB[J&3], "0" if J == 0 else None))
    if ASY: P("s_barrier")
    P(f"v_lshrrev_b32 {v(u)}, 5, {v(vL)}\nv_and_b32 {v(t+2)}, 15, {v(vL)}\nv_lshlrev_b32 {v(t)}, 4, {v(t+2)}\nv_lshl_add_u32 {v(t)}, {v(u)}, 8, {v(t)}\nv_add_u32 {v(t+1)}, 512, {v(t)}")
    P(f"v_lshlrev_b32 {v(u)}, 4, {v(u)}\nv_add_u32 {v(u)}, 1024, {v(u)}\nv_lshl_add_u32 {v(u)}, {v(t+2)}, 26, {v(u)}\nv_add_u32 {v(u+1)}, 32, {v(u)}")
    P(f"v_cndmask_b32 {v(t)}, {v(u)}, {v(t)}, vcc\nv_cndmask_b32 {v(t+1)}, {v(u+1)}, {v(t+1)}, vcc")
    for i in range(8): P(f"v_cvt_pk_bf16_f32 {v(T+i)}, {v(ACC0+2*i)}, {v(ACC0+2*i+1)}")
    stamp("kv1")
    for j in range(2): P(f"buffer_store_dwordx4 {v(T+4*j,4)}, {v(t+j)}, {s(SWS,4)}, {s(sKV)} offen sc1")
    P.cond_end()
    P("L_nkv:")
    stamp("kv2")
S.blk[70] = kvblock
PXA = OPT.get("pxa", "72,76,81")
if PXA:
    gs_ = [int(x) for x in PXA.split(",")]
    if gs_[0] > 64:
        S.post[gs_[0] - 1] += [f"v_mov_b32 {v(PA+i)}, -1" for i in range(4)]
        S.post[gs_[2] + 2] += [f"v_mov_b32 {v(PA+2)}, 0", f"v_mov_b32 {v(PA+3)}, 0"]
    for j, G in zip((1, 2, 3), gs_): S.post[G] += xoff(j, True) + [f"buffer_store_dwordx4 {v(PA,4)}, {v(VL16)}, {s(SWS,4)}, {s(sT0)} offen sc1 ; tag=px"]
S.pre[94] += ["s_waitcnt lgkmcnt(0)", "s_barrier"]
def kvflag():
    P(f"s_cmp_eq_u32 {s(sW)}, 7")
    P("s_cbranch_scc0 L_nkf")
    P.cond_begin("w0")
    P(f"s_lshl_b32 {s(sT0)}, {s(sG)}, 8\ns_lshl_b32 {s(sT1)}, {s(sRT)}, 2\ns_add_u32 {s(sT0)}, {s(sT0)}, {s(sT1)}\ns_add_u32 {s(sT0)}, {s(sT0)}, {WS_KVF}")
    P(f"v_mov_b32 {v(VFV)}, 1")
    P(f"buffer_store_dword {v(VFV)}, {v(VZ)}, {s(SWS,4)}, {s(sT0)} offen sc1")
    P.cond_end()
    P("L_nkf:")
def kvpoll():
    P(f"s_cmp_eq_u32 {s(sW)}, 7")
    P("s_cbranch_scc0 L_nkp")
    n0 = len(P.ins)
    P(f"s_lshl_b32 {s(sT2)}, {s(sG)}, 8\ns_add_u32 {s(sT2)}, {s(sT2)}, {WS_KVF}\ns_mov_b32 {s(sCNT)}, 0")
    P("s_branch L_spkv1")
    P("L_spkv:")
    P(f"s_buffer_load_dwordx16 s[20:35], {s(SWS,4)}, {s(sT2)} glc")
    P("L_spkv1:")
    P(f"s_add_u32 {s(sCNT)}, {s(sCNT)}, 1")
    P("s_waitcnt lgkmcnt(0)")
    for i in range(22, 36, 2): P(f"s_and_b64 s[20:21], s[20:21], s[{i}:{i+1}]")
    P("s_and_b32 s20, s20, s21")
    P("s_cbranch_scc1 L_nkp")
    P(f"s_cmp_gt_u32 {s(sCNT)}, {SPIN_MAX}")
    P("s_cbranch_scc1 L_nkp")
    P("s_sleep 1")
    P("s_branch L_spkv")
    for I in P.ins[n0:]:
        I.cond = "kvp"
        if I.kind == "smem": I.kind = "opaque"
    P("L_nkp:")
def kvreq():
    P(f"s_cmp_eq_u32 {s(sW)}, 7")
    P("s_cbranch_scc0 L_nkr")
    n0 = len(P.ins)
    P(f"s_lshl_b32 {s(sT2)}, {s(sG)}, 8\ns_add_u32 {s(sT2)}, {s(sT2)}, {WS_KVF}")
    P(f"s_buffer_load_dwordx16 s[20:35], {s(SWS,4)}, {s(sT2)} glc")
    for I in P.ins[n0:]:
        I.cond = "kvp"
        if I.kind == "smem": I.kind = "opaque"
    P("L_nkr:")
VP = OPT.get("vp", "0") == "1"
VPA_, VPV = VX0, VSTA
vpl = f"buffer_load_dword {v(VPV)}, {v(VPA_)}, {s(SWS,4)}, 0 offen sc1"
if VP:
    S.fill[78] += lines(f"s_lshl_b32 {s(sT0)}, {s(sG)}, 8\ns_add_u32 {s(sT0)}, {s(sT0)}, {WS_KVF}\nv_and_b32 {v(VPA_)}, 3, {v(vL)}\nv_lshl_add_u32 {v(VPA_)}, {v(VPA_)}, 2, {s(sFL)}\nv_lshl_add_u32 {v(VPV)}, {v(vL)}, 2, {s(sT0)}\nv_cmp_gt_u32 vcc, 16, {v(vL)}\ns_nop 1\nv_cndmask_b32 {v(VPA_)}, {v(VPA_)}, {v(VPV)}, vcc")
    S.post[int(OPT.get("vpg", 86))] += [vpl]
    def vcheck0():
        P(f"v_mov_b32 {v(VPV)}, {v(VPV)}")
        spin("L_vp", vpl, f"v_cmp_gt_u32 vcc, 1, {v(VPV)}")
    S.blk[("e", 93)] = vcheck0
else:
    ab_ = int(OPT.get('ab', 86)); S.post[95] += [] if V5 else [spoll(1)]
    if ASY:
        def hibar():
            P(f"s_cmp_lt_u32 {s(sW)}, 4"); P("s_cbranch_scc1 L_nhb")
            P.cond_begin("hi4"); P("s_barrier"); P.cond_end(); P("L_nhb:")
        S.blk[ab_] = hibar; S.blk[94] = lambda: (kvreq(), kvpoll())
    else: S.blk[ab_] = lambda: (kvreq(), kvpoll())
S.post[94] += [f"ds_read_b128 {v(CSR,4)}, {v(VCSA)} offset:2048"]
S.post[80] += phi_load(1, T + 8)[:2]; S.post[82] += phi_load(1, T + 8)[2:]
PQ = WF
def Gq(r): return XF + 8 * r
Z = XF + 80; GA = XF + 64
VG, VGZ = S1, S2
gsetup = lines(f"s_mul_i32 {s(sK)}, {s(sG)}, {16*KVP_SZ}\ns_lshr_b32 {s(sT0)}, {s(sW)}, 1\ns_mul_i32 {s(sT0)}, {s(sT0)}, 1152\ns_add_u32 {s(sK)}, {s(sK)}, {s(sT0)}\ns_add_u32 {s(sK)}, {s(sK)}, {WS_KVP}")
gsetup += lines(f"v_and_b32 {v(VGZ)}, 15, {v(vL)}\nv_mul_u32_u24 {v(VGZ)}, {KVP_SZ}, {v(VGZ)}\nv_and_b32 {v(VG)}, 16, {v(vL)}\nv_add_u32 {v(VGZ)}, {v(VGZ)}, {v(VG)}\ns_lshl_b32 {s(sT0)}, {s(sSH)}, 4\nv_add_u32 {v(VGZ)}, {s(sT0)}, {v(VGZ)}")
gsetup += lines(f"v_lshrrev_b32 {v(VG)}, 5, {v(vL)}\nv_mul_u32_u24 {v(VG)}, {8*KVP_SZ - 512}, {v(VG)}\nv_add_u32 {v(VG)}, {v(VG)}, {v(VL16)}\ns_lshl_b32 {s(sT0)}, {s(sSH)}, 8\nv_add_u32 {v(VG)}, {s(sT0)}, {v(VG)}")
gl = [[f"buffer_load_dwordx4 {v(Z,4)}, {v(VGZ)}, {s(SWS,4)}, {s(sK)} offen offset:1024 sc1"]]
for r in range(8):
    gl.append(lines(f"s_add_u32 {s(sD1)}, {s(sRT)}, {r}\ns_and_b32 {s(sD1)}, {s(sD1)}, 7\ns_mul_i32 {s(sD1)}, {s(sD1)}, {KVP_SZ}\ns_add_u32 {s(sD1)}, {s(sD1)}, {s(sK)}") +
              [f"buffer_load_dwordx4 {v(Gq(r),4)}, {v(VG)}, {s(SWS,4)}, {s(sD1)} offen sc1"])
S.fill[76] += gsetup
g0_ = int(OPT.get("gg", 94))
gl_in = min(9, 96 - g0_)
S.dmas(gl[:gl_in], g0_)
run_sched(S, [ACC0, ACC1, ACC2])
stamp("sub2")
P.add(aug(ACC2, CSR, None))
for g_ in gl[gl_in:gl_in+2]: P.add(g_)
for i in range(8): P(f"v_cvt_pk_bf16_f32 {v(T+i)}, {v(ACC2+2*i)}, {v(ACC2+2*i+1)}")
P(mfma(ACC1, AX, T, "0"))
P(mfma(ACC2, T + 8, T + 4, "0"))
stamp("phi")
n_tail0 = len(P.ins)
NBT = int(OPT.get('nbt', 3))
bd = sum([b_dma(kk) for kk in (5, 6, 7)[:NBT]], []) + [[]] * (6 - 2 * NBT)
TO = OPT.get("to", "a")
sm1 = softmax(ACC1, PQ, LS, True); sm2 = softmax(ACC2, PQ + 8, LS, True)
if TO == "a":
    P.add(interleave(gl[gl_in+2:], sm1[:30]) + interleave(bd[:2], sm1[30:])); bd = bd[2:]
else:
    P.add(interleave(gl[gl_in+2:], sm1[:30]) + interleave(bd[:4], sm1[30:] + sm2[:33])); bd = bd[4:]; sm2 = sm2[33:]
if not VP and not V5: sneed(1, 1)
P(spoll(0))
stamp("qsm")
validate([Z + i for i in range(4)] + [Gq(r) + i for r in range(8) for i in range(4)], T + 4, sum(gl, []))
stamp("kvseen")
aj = sum([a_jobs(kk) for kk in range(8)], [])
n_o0 = len(P.ins)
P(f"v_lshrrev_b32 {v(T+1)}, 5, {v(vL)}")
P(f"v_bfe_u32 {v(T+2)}, {v(vL)}, 4, 1\nv_lshlrev_b32 {v(T+2)}, 9, {v(T+2)}\nv_lshl_add_u32 {v(T+2)}, {v(T+1)}, 3, {v(T+2)}")
P(f"s_lshl_b32 {s(sT0)}, {s(sW)}, 10\ns_add_u32 {s(sT0)}, {s(sT0)}, {L_KVB}\nv_add_u32 {v(T+2)}, {s(sT0)}, {v(T+2)}")
P(f"v_and_b32 {v(T+3)}, 15, {v(vL)}\nv_lshl_add_u32 {v(T+3)}, {v(T+3)}, 4, {v(T+2)}")
P(f"v_cmp_gt_u32 vcc, 32, {v(vL)}\ns_mov_b32 {s(sT0)}, 0x3f80\ns_mov_b32 {s(sT1)}, 0x3f800000")
P(f"v_cndmask_b32 {v(Z)}, {v(Z+2)}, {v(Z)}, vcc\nv_cndmask_b32 {v(Z+1)}, {v(Z+3)}, {v(Z+1)}, vcc")
P(f"v_lshlrev_b32 {v(Z+8)}, 16, {v(Z)}\nv_and_b32 {v(Z+9)}, 0xffff0000, {v(Z)}\nv_lshlrev_b32 {v(Z+10)}, 16, {v(Z+1)}\nv_and_b32 {v(Z+11)}, 0xffff0000, {v(Z+1)}")
for ror in (8, 4, 2, 1):
    for i in range(4): P(f"v_add_f32_dpp {v(Z+8+i)}, {v(Z+8+i)}, {v(Z+8+i)} row_ror:{ror} row_mask:0xf bank_mask:0xf")
P(f"v_cvt_pk_bf16_f32 {v(Z)}, {v(Z+8)}, {v(Z+9)}\nv_cvt_pk_bf16_f32 {v(Z+1)}, {v(Z+10)}, {v(Z+11)}")
P(f"ds_write_b64 {v(T+2)}, {v(Z,2)} offset:256")
def ga(i): return GA + (i & 3) + 8 * (i >> 2)
for i in range(4):
    P(f"v_lshlrev_b32 {v(ga(2*i))}, 16, {v(Gq(0)+i)}\nv_and_b32 {v(ga(2*i+1))}, 0xffff0000, {v(Gq(0)+i)}")
for r in range(1, 8):
    for i in range(4):
        P(f"v_dot2c_f32_bf16 {v(ga(2*i))}, {s(sT0)}, {v(Gq(r)+i)}\nv_dot2c_f32_bf16 {v(ga(2*i+1))}, {s(sT1)}, {v(Gq(r)+i)}")
for i in range(4): P(f"v_permlane32_swap_b32 {v(ga(i))}, {v(ga(i+4))}")
for i in range(4): P(f"v_add_f32 {v(ga(i))}, {v(ga(i))}, {v(ga(i+4))}")
P(f"v_cvt_pk_bf16_f32 {v(GA)}, {v(GA)}, {v(GA+1)}\nv_cvt_pk_bf16_f32 {v(GA+1)}, {v(GA+2)}, {v(GA+3)}")
P(f"ds_write_b64 {v(T+3)}, {v(GA,2)}")
stamp("gsum")
P(f"v_and_b32 {v(T)}, 31, {v(vL)}\nv_min_u32 {v(T)}, 16, {v(T)}\nv_and_b32 {v(T+1)}, 32, {v(vL)}\nv_add_u32 {v(T)}, {v(T)}, {v(T+1)}\nv_lshlrev_b32 {v(T)}, 4, {v(T)}")
P(f"s_lshl_b32 {s(sT0)}, {s(sHALF)}, 12\ns_add_u32 {s(sT0)}, {s(sT0)}, {L_KVB}\nv_add_u32 {v(T)}, {s(sT0)}, {v(T)}")
body = P.ins[n_o0:]; del P.ins[n_o0:]
for i, g_ in enumerate(bd):
    P.add(g_); P.ins += body[len(body)*i//len(bd): len(body)*(i+1)//len(bd)]
stamp("pre1")
sneed(1, 0)
stamp("post1")
if NP: aj = aj[:4]
P.add(interleave(aj, sm2))
stamp("sm2")
P(f".waitvm b{4+NBT} lgkm0")
if OPT.get("tp"):
    per = int(OPT["tp"]); body = P.ins[n_tail0:]; del P.ins[n_tail0:]; c = 0; lv = 3
    P("s_setprio 3")
    for I in body:
        P.ins.append(I)
        if I.kind == "valu" and not I.cond and not I.op.startswith("v_cmp"):
            c += 1
            if c % per == 0: lv = (lv - 1) & 3; P(f"s_setprio {lv}")
stamp("ob0")
P("s_barrier")
stamp("ob1")
for i in range(4): P(f"ds_read_b128 {v(Gq(i),4)}, {v(T)} offset:{1024*i}")
P(mfma(ACC0, Gq(0), PQ, "0")); P(mfma(ACC1, Gq(2), PQ + 8, "0"))
P(mfma(ACC0, Gq(1), PQ + 4)); P(mfma(ACC1, Gq(3), PQ + 12))
if NP: P(spoll(0))
EA = int(OPT.get("ea", 0))
if EA and not NP:
    for kk in range(8, 8 + EA): P.add(a_jobs(kk)[0])
for hl, acc in enumerate((ACC0, ACC1)):
    P(f"v_add_f32 {v(acc+8)}, {f2u(1e-6):#x}, {v(acc+8)}\nv_rcp_f32 {v(acc+8)}, {v(acc+8)}")
    for i in range(0, 8, 2): P(f"v_pk_mul_f32 {v(acc+i,2)}, {v(acc+i,2)}, {v(acc+8,2)} op_sel_hi:[1,0]")
    for i in range(4): P(f"v_cvt_pk_bf16_f32 {v(T+4*hl+i)}, {v(acc+2*i)}, {v(acc+2*i+1)}")
    P(f"buffer_store_dwordx4 {v(T+4*hl,4)}, {v(VL16)}, {s(SWS,4)}, {s(sOS)} offen offset:{1024*hl} sc1 ; ost")
stamp("p1end")
if V5: phase2_v5(tuple(range(5 + NBT, 9)), False)
elif V3: phase2_v3((8,), (), False)
elif V2: phase2_v2(tuple(range(5 + NBT, 9)), False)
else: phase2(("B6", "B7"), "A4 A5 A6 B8 A7 B9 A8 B10 A9 B11 A10 B12 A11 B13 A12 B14 A13 B15 B16 B17 A14 A15 A16 A17")

P("L_ffn:")
P(".reset")
setup(True)
KAREA[:] = [RC, RA+2*Q, RA+3*Q, RB, RB+Q, RB+2*Q, RA, RA+Q, RB+3*Q]
MC = ACC2; CSF = ACC2 + 4
S = Sched(112)
common_sched(S, True, None, MC)
S.post[30] += [f"ds_read_b128 {v(CSF,4)}, {v(VCSA)}"]
if not NP: S.post[40] += [f"s_add_u32 {s(sT2)}, {s(sH0)}, 4096", f"s_add_u32 {s(sK)}, {s(sH0)}, 8192"]
pzs = [[f"buffer_store_dwordx4 {v(PZ,4)}, {v(VL16)}, {s(SWS,4)}, {s(so)} offen offset:{off} sc1 ; tag=h1"]
       for so, off in ((sT2, 0), (sT2, 1024), (sK, 0), (sK, 1024), (sH3, 0))[:0 if NP else 2 if OFFL else 5]]
for g_, G in zip(pzs, [int(x) for x in OPT.get("pz", "50,56,59,67,70").split(",")]): S.post[G] += g_
S.post[31] += stamp_i("pass1")
fill = stats_final() + aug(ACC0, CSF, BIAS)
fill += [f"v_mul_f32 {v(K1)}, {f2u(GC1):#x}, {v(RSTD)}", f"v_mul_f32 {v(K2)}, {v(RSTD)}, {v(RSTD)}",
         f"v_mul_f32 {v(K2)}, {v(K2)}, {v(RSTD)}", f"v_mul_f32 {v(K2)}, {f2u(GC2):#x}, {v(K2)}"]
S.spread(fill, 32, 39)
S.spread(gelu(ACC0, 16) + hstore(sH0, 2, "h1") + [f"s_add_u32 {s(sH0)}, {s(sH0)}, 4096"], 39, 64)
S.post[62] += [f"ds_read_b128 {v(CSF,4)}, {v(VCSA)} offset:1024"]
S.post[63] += stamp_i("sub1")
S.spread(aug(ACC1, CSF, BIAS + 1), 64, 66)
S.spread(gelu(ACC1, 16) + hstore(sH0, 2, "h2") + [f"s_add_u32 {s(sH0)}, {s(sH0)}, 4096"], 67, 96)
w3 = sum([w3quarter(q, 3584) for q in range(4)], [])
for g_, G in zip(w3 + b_dma(0), [int(x) for x in OPT.get("w3", "64,68,72,76,74,75" if OPT.get("few", "1") == "1" else "48,54,60,72,75,76").split(",")]): S.dma[G] += g_
S.dmas(b_dma(1), 78, 2); S.dmas(b_dma(2), 82, 2); S.dmas(b_dma(3), 86, 2); S.dmas(b_dma(4), 90, 2); S.dmas(b_dma(5), 98, 2)
S.pre[94] += [".waitvm w3 lgkm0", "s_barrier"]
S.post[94] += [f"ds_read_b128 {v(CSF,4)}, {v(VCSA)} offset:2048"]
S.post[95] += stamp_i("sub2")
if V2 and PX1:
    for j, G in zip((1, 2, 3), [int(x) for x in OPT.get("pxg", "91,93,102").split(",")]): S.post[G] += xoff(j, True) + [f"buffer_store_dwordx4 {v(PZ,4)}, {v(VL16)}, {s(SWS,4)}, {s(sT0)} offen sc1 ; tag=px"]
S.fill[96] += aug(ACC0, CSF, BIAS + 2)
if OFFL: S.post[106] += [f"s_sub_u32 {s(sT2)}, {s(sFO)}, 1024", f"s_buffer_load_dword {s(sK)}, {s(SWS,4)}, {s(sT2)} glc"]
S.spread(gelu(ACC0, 16), 98, 112)
if V3: S.post[97] += va3_init
aj = sum([a_jobs(kk) for kk in range(4 if NP else 8 if V2 and not V3 else 6)], []) + [[]] * 8
S.dmas(aj[:6], 106); aj = aj[2:]
for i in range(0, 16, 2): S.post[96 + i] += [m16(MC, SEL, WF + 4 * (i & 3), "0" if i == 0 else None)]
run_sched(S, [ACC0, ACC1, ACC0, ACC1])
t = T + 16
P(f"v_and_b32 {v(t)}, 31, {v(vL)}\ns_lshl_b32 {s(sT0)}, {s(sHALF)}, 4\nv_xor_b32 {v(t)}, {s(sT0)}, {v(t)}\nv_lshlrev_b32 {v(t)}, 4, {v(t)}\nv_add_u32 {v(t)}, {L_CS+3072}, {v(t)}")
P(f"v_add_u32 {v(t+1)}, {s(sW34)}, {v(VCSA)}")
P(f"ds_write_b32 {v(t+1)}, {v(MC)} offset:3072")
P.add(aj[4])
XO = 4096 if V2 else 1024
P(f"s_add_u32 {s(sT1)}, {s(sMB if V2 else sM0x)}, {KAREA[8]}\ns_xor_b32 {s(sT0)}, {s(sT1)}, 8192\nv_add_u32 {v(t+1)}, {s(sT0)}, {v(VL16)}\nv_add_u32 {v(AB)}, {s(sT1)}, {v(VL16)}")
P(f"ds_write_b128 {v(t+1)}, {v(ACC1+8,4)}\nds_write_b128 {v(t+1)}, {v(ACC1+12,4)} offset:{XO}")
P(".waitvm b5 lgkm0")
P("s_barrier")
stamp("sub3")
P(f"ds_read_b128 {v(CSF,4)}, {v(t)}")
P(f"ds_read_b128 {v(ACC0,4)}, {v(AB)}\nds_read_b128 {v(ACC0+4,4)}, {v(AB)} offset:{XO}")
P.add(aj[5])
P.add(aug(ACC1, CSF, BIAS + 3))
P.add(aj[6] + aj[7])
if NP: P.add(flag(2, "h2"))
for i in range(0, 8, 2): P(f"v_pk_add_f32 {v(ACC1+i,2)}, {v(ACC1+i,2)}, {v(ACC0+i,2)}")
stamp("x7")
gt = gelu(ACC1, 8, True, out=BIAS); h3 = hstore(sH0, 2, "h3")
if not V5: sneed(1, 1)
if OFFL: own_check()
P.add(aj[8] + gt[:10] + aj[9] + gt[10:20] + [h3[0]] + gt[20:30] + [h3[1]] + gt[30:] + hstore(sH3, 1, "h4", BIAS))
stamp("p1end")
if V5: phase2_v5((6, 7, 8), True)
elif V3: phase2_v3((6, 7, 8), (6, 7), True)
elif V2: phase2_v2((6, 7, 8), True)
else: phase2(("A4", "A5"), "B6 A6 B7 A7 B8 B9 A8 B10 A9 B11 A10 B12 A11 B13 A12 B14 A13 B15 B16 B17 A14 A15 A16 A17", True)

P("L_end:")
P("s_endpgm")

ins = P.ins
for I in ins:
    if "; nodef" in I.text: I.defs = []
if OPT.get("nodma"): ins = [I for I in ins if I.kind != "dma"]
if OPT.get("notr"): ins = [I for I in ins if not I.op.startswith("ds_read_b64_tr")]
if OPT.get("nofmac"): ins = [I for I in ins if not (I.op.startswith("v_fmac") or (I.op == "v_and_b32" and "0xffff0000" in I.text) or (I.op == "v_lshlrev_b32" and I.ops[1] == "16"))]
if OPT.get("nom16"): ins = [I for I in ins if "16x16x32" not in I.op]
if OPT.get("notrans"): ins = [I for I in ins if not I.op.startswith(("v_exp", "v_rcp"))]
if OPT.get("novalu"): ins = [I for I in ins if not I.op.startswith(("v_exp", "v_rcp", "v_mul_f32", "v_fma_f32", "v_cvt_pk", "v_max3", "v_add_f32"))]
if OPT.get("nopk"): ins = [I for I in ins if not I.op.startswith(("v_pk_", "v_dot2c"))]
if OPT.get("noval"): ins = [I for I in ins if not (I.op == "s_cbranch_vccnz" and "_slow" in I.text)]
if OPT.get("noa"): ins = [I for I in ins if not (I.kind == "vld" and "x4" in I.op and "sc1" in I.mods)]
if OPT.get("nob"): ins = [I for I in ins if not (I.kind == "dma" and (s(SW2,4) in I.text or s(SWO,4) in I.text))]
if OPT.get("anosc"):
    for I in ins:
        if I.kind == "vld" and "x4" in I.op: I.text = I.text.replace(" sc1", " " + OPT["anosc"].replace("0", ""))
if OPT.get("nopz"): ins = [I for I in ins if not (I.kind == "vst" and "x4" in I.op and (v(PZ,4) in I.text or v(AAUG,4) in I.text) and s(SWS,4) in I.text)]
if OPT.get("plain"):
    for I in ins:
        if I.kind == "vst" and "x4" in I.op and s(SWS,4) in I.text and ("tag=h" in I.text or "tag=po" in I.text or "; ost" in I.text): I.text = I.text.replace(" sc1", "")
if OPT.get("nohs"):
    ins = [I for I in ins if not (I.op.startswith("s_buffer_load") or I.text.startswith((".waitvm h", ".waitvm po", ".waitvm zf")) or (I.op == "s_branch" and ("L_sp" in I.text or "L_ncs" in I.text or "L_oc" in I.text) and "spkv1" not in I.text))]
    for I in ins:
        if I.text.startswith(".waitvm pz"): I.text = ".waitvm none lgkm0"
if OPT.get("nost"): ins = [I for I in ins if not (I.kind == "vst" and "x4" in I.op and "tag=h" in I.text)]
if OPT.get("nomfma"): ins = [I for I in ins if I.kind != "mfma"]
if STAMP:
    for I in ins:
        if I.op in ("s_memrealtime", "s_memtime"): I.kind = "salu"
if OPT.get("nopx"): ins = [I for I in ins if not (I.kind == "vst" and "tag=px" in I.text)]
if OPT.get("nopo"): ins = [I for I in ins if not (I.kind == "vst" and "x4" in I.op and I.ops[0] == v(AAUG,4) and s(SWS,4) in I.text)]
AB_ = OPT.get("abl", "")
iffn = [i for i, I in enumerate(ins) if I.text == "L_ffn:"][0]
def att(i): return i < iffn
if "g" in AB_: ins = [I for i, I in enumerate(ins) if not (I.kind == "vld" and I.ops[1] in (v(S1), v(S2)) and "x4" in I.op)]
if "k" in AB_: ins = [I for i, I in enumerate(ins) if not (I.cond == "lo4" and I.kind in ("valu", "dsr", "mfma"))]
if "s" in AB_: ins = [I for i, I in enumerate(ins) if not (att(i) and I.op.startswith(("v_exp", "v_fma_f32", "v_max3_f32", "v_pk_fma", "v_pk_mul_f32")))]
if "b" in AB_: ins = [I for i, I in enumerate(ins) if not (att(i) and I.kind == "dma" and (s(SW2,4) in I.text or s(SWO,4) in I.text))]
if "m" in AB_: ins = [I for I in ins if not ("4x4x4" in I.op or "16x16x32" in I.op)]
if "x" in AB_: ins = [I for I in ins if not (I.kind in ("vld", "vst") and "x4" in I.op and I.ops[3] == s(sT0) and s(SWS,4) in I.text and not I.cond)]
if "e" in AB_: ins = [I for i, I in enumerate(ins) if not (not att(i) and I.op.startswith(("v_exp", "v_rcp", "v_fma_f32", "v_mul_f32")))]
if OPT.get("jit"):
    import random
    rnd = random.Random(int(OPT["jit"])); new = []; n_ = 0
    for I in ins:
        if I.kind == "mfma" and rnd.random() < 0.12:
            n_ += 1; src = rnd.choice([f"{s(sW)}, {rnd.randrange(3)}", f"s2, {rnd.randrange(8)}"])
            for tx in (f"s_bitcmp{rnd.randrange(2)}_b32 {src}", f"s_cbranch_scc0 L_j{n_}", f"s_sleep {rnd.choice([2, 8, 20, 40])}", f"L_j{n_}:"):
                J = Ins(tx, I.cond or ("jit" if tx.startswith("s_sleep") else None)); new.append(J)
        new.append(I)
    ins = new
ins = auto_wait(ins)
st = []
ins = hazards(ins, st)
hdr = open("parallel_sum__linear_kernel_hedgehog__dense_activation_gelu__prompt.s.ref").read().split("; Override")[0]
out = hdr + f"; @launch grid=(256,1,1) block=(512,1,1) lds={LDS_SIZE}\n"
out += """; One fused launch, 256 workgroups (one per CU) of 8 waves, generated by the author's own script.
;  phase 1: [128 rows x 6|7 blocks of 32 columns] of x @ [wqkv | w1]; layer norm folded in as one extra MFMA k-step
;  phase 2: [128 x 128] output tile over a quarter of K of [h | o] @ [w2 ; wo]; four workgroups exchange partial tiles.
;  hand-offs: flag words in d_ws (cleared in-launch, announced through d_debug) and in-launch poisoned slots.
"""
out += f'.amdgcn_target "amdgcn-amd-amdhsa--gfx950"\n.text\n.globl {NAME}\n.p2align 8\n.type {NAME},@function\n{NAME}:\n'
out += render(ins)
out += f""".section .rodata,"a"
.p2align 6
.amdhsa_kernel {NAME}
  .amdhsa_next_free_vgpr 256
  .amdhsa_next_free_sgpr 102
  .amdhsa_accum_offset 256
  .amdhsa_group_segment_fixed_size 0
  .amdhsa_kernarg_size 96
  .amdhsa_user_sgpr_count 2
  .amdhsa_user_sgpr_kernarg_segment_ptr 1
  .amdhsa_system_sgpr_workgroup_id_x 1
.end_amdhsa_kernel
"""
open(sys.argv[1], "w").write(out)
print(f"instrs={sum(1 for I in ins if I.kind not in ('label','dir'))} nop-sites={len(st)} nop-states={sum(n for n,_ in st)}", file=sys.stderr)
if OPT.get("nops"):
    for n, tx in st: print(n, tx, file=sys.stderr)
```

```python
import sys, math, struct
from ir import *

NAME = "parallel_sum__linear_kernel_hedgehog__dense_activation_gelu__prompt_kernel"
OPT = dict(a.split("=") for a in sys.argv[2:] if "=" in a)
STAMP = int(OPT.get("stamp", 0))

def f2u(x): return struct.unpack("<I", struct.pack("<f", x))[0]
LOG2E = 1.4426950408889634
GC1 = -2.0 * LOG2E * math.sqrt(2.0 / math.pi)
GC2 = GC1 * 0.044715

HF_RB = 144 * 1024
WS_KVP = 0xA00000
KVP_SZ = 4608
WS_FLG = 0xC00000
WS_KVF = 0xC08000
WS_STAMP = 0xD00000
WS_X = 0x1000000
WS_SIZE = 0x1800000
V5 = OPT.get('v5', '0') == '1'
XRG = OPT.get('xr', '0') == '1'
NP = OPT.get('np', '1') == '1'
if NP: OPT['r8'] = '0'
V3 = OPT.get('p2', '2') == '3'
V2 = OPT.get('p2', '2') in '23'
RA, RB, RC = 0, 65536, 131072
L_KVB = 147456
L_CS = 155648
L_ST = L_CS + 4096
L_WPHI = L_CS + 6144
LDS_SIZE = 163840
SPIN_MAX = 1 << 15

sW, sRT, sG, sM, sN = 3, 4, 5, 6, 7
SX, SW2, SWS, SWT, SAUX, SDBG, SWO, SOUT = 8, 12, 16, 20, 24, 28, 36, 40
sXo, sWo, sROT, sC1 = 32, 33, 34, 35
SB2 = 92
sFL, sOo, sM0x, sT0, sT1, sSIG, sONE, sFO, sHALF, sHo, sWq, sW3, sT2, sCNT, sW34, sT3 = range(44, 60)
sEX = 60
sH0, sH3, sM4, sK = 62, 63, 64, 65
sST = 66
sB2o, sBOo = 90, 91
sA0, sA1, sR4, sSH, sD0, sD1 = range(96, 102)
sOK = sSIG
sQ = [sXo, sWo, sROT, sC1]
sPL = 28
VCSA = 0; vL = 1
AX = 2; AW = 6; AB = 10; VZ, VFV = 12, 13
VX0, VX1, VW, VB, VW3 = 14, 15, 16, 17, 18
VSTA, S1, S2, CS0 = 19, 20, 21, 22
VW0 = 22
RSTD, STD, K1, K2, VL16 = 23, 24, 25, 26, 27
BAUG, AAUG, SEL, BIAS = 28, 32, 36, 40
T = 44
WF = 64
ACC0, ACC1, ACC2 = 80, 96, 112
XF = 128
VTD = int(OPT.get('vtd', 15))
PZ = ACC2 + 8

P = Prog()
STI = dict(start=0, kernarg=1, it0=2, pass1=3, sub1=4, sub2=5, qsm=6, sub3=6, kvseen=7, x7=7, p1end=8, hseen=9, p2mm=10, end=11)
if OPT.get("sp") == "p2": STI = dict(start=0, p1end=1, k1=2, k3=3, k5=4, k7=5, k9=6, k11=7, k13=8, k15=9, p2mm=10, end=11)
if OPT.get("sp") == "att": STI = dict(start=0, sub1=1, kv0=2, kv1=3, kv2=4, sub2=5, qsm=6, kvseen=7, sm2=8, gsum=9, p1end=10, end=11)
if OPT.get("sp", "").startswith("l:"): STI = {n: i for i, n in enumerate(["start"] + OPT["sp"][2:].split(","))}
def stamp_i(name):
    if not STAMP or name not in STI: return []
    i = STI[name]
    return [f"{'s_memrealtime' if STAMP == 1 else 's_memtime'} {s(sST + 2*i, 2)} ; stamp {i} {name}"]
def stamp(name): P.add(stamp_i(name))

def mfma(d, a, b, c=None):
    return f"v_mfma_f32_32x32x16_bf16 {v(d,16)}, {v(a,4)}, {v(b,4)}, {v(d,16) if c is None else c}"
def m16(d, a, b, c=None):
    return f"v_mfma_f32_16x16x32_bf16 {v(d,4)}, {v(a,4)}, {v(b,4)}, {v(d,4) if c is None else c}"
def srd(base, nbytes):
    P(f"s_mov_b32 {s(base+2)}, {nbytes}\ns_mov_b32 {s(base+3)}, 0x20000")
def lines(t): return [l for l in t.split("\n") if l.strip()]

P("s_cmp_ge_u32 s2, 256")
P("s_cbranch_scc1 L_end")
stamp("start")
if OPT.get("exit0"): P("s_endpgm")
if OPT.get("cpf", "1") == "3":
    P(f"s_getpc_b64 {s(sEX,2)}")
    P("L_pc0:")
    P(f"v_subrev_u32 v3, 320, v0\nv_cmp_gt_u32 vcc, 16, v3\ns_lshr_b32 {s(sT0)}, s2, 3\ns_lshl_b32 {s(sT0)}, {s(sT0)}, 11")
    P("s_cbranch_vccz L_ncp0")
    P.cond_begin("cp0")
    P(f"v_and_b32 v3, 15, v3\nv_lshlrev_b32 v3, 7, v3\nv_add_u32 v3, {s(sT0)}, v3\nv_min_u32 v3, L_end-L_pc0, v3")
    P(f"global_load_dword v253, v3, {s(sEX,2)}")
    P.cond_end()
    P("L_ncp0:")
if OPT.get("cpf", "1") == "2":
    P(f"s_getpc_b64 {s(sEX,2)}")
    P("L_pc0:")
    P(f"v_lshlrev_b32 v3, 7, v0")
    P(f"v_min_u32 v3, L_end-L_pc0, v3")
    P(f"global_load_dword v253, v3, {s(sEX,2)}")
P(f"s_load_dwordx2 {s(SX,2)}, s[0:1], 0")
P(f"s_load_dwordx2 {s(SWT,2)}, s[0:1], 8")
P(f"s_load_dwordx2 {s(sA0,2)}, s[0:1], 40")
P(f"v_lshrrev_b32 v2, 6, v0")
P(f"v_and_b32 {v(vL)}, 63, v0")
P(f"s_lshr_b32 {s(sT1)}, s2, 3")
P(f"v_readfirstlane_b32 {s(sW)}, v2")
OWN = False
AF_ = OPT.get('af', '0') == '1'
P(f"s_and_b32 {s(sRT)}, s2, 4\ns_lshl_b32 {s(sRT)}, {s(sRT)}, 1\ns_and_b32 {s(sT2)}, {s(sT1)}, 7\ns_add_u32 {s(sRT)}, {s(sRT)}, {s(sT2)}")
P(f"v_lshrrev_b32 v2, 3, {v(vL)}\nv_and_b32 v3, 7, {v(vL)}\nv_lshrrev_b32 v4, 4, {v(vL)}")
P(f"s_lshl_b32 {s(sXo)}, {s(sRT)}, 17\ns_lshl_b32 {s(sT2)}, {s(sW)}, 14\ns_add_u32 {s(sXo)}, {s(sXo)}, {s(sT2)}")
P(f"v_xor_b32 v5, v3, v4\nv_lshl_add_u32 v5, v5, 4, {s(sXo)}\nv_lshl_add_u32 {v(VX0)}, v2, 10, v5")
P(f"s_lshr_b32 {s(sN)}, {s(sT1)}, 3\ns_lshl_b32 {s(sT2)}, {s(sN)}, 1\ns_add_u32 {s(sROT)}, {s(sRT)}, {s(sT2)}\ns_and_b32 {s(sROT)}, {s(sROT)}, {0 if OPT.get('norot') else OPT.get('rm', 7)}")
P(f"v_xor_b32 v5, 64, {v(VX0)}\nv_add_u32 {v(VX1)}, {8192-1024}, v5")
srd(SX, 2097152)
P(f"s_lshl_b32 {s(sM0x)}, {s(sW)}, 11\ns_lshl_b32 {s(sK)}, {s(sROT)}, 7\ns_mov_b32 m0, {s(sM0x)}")
P(f"v_and_b32 v4, 1, v4\nv_lshlrev_b32 v4, 2, v4\nv_xor_b32 v4, v3, v4\nv_lshlrev_b32 v4, 4, v4")
P(f"s_and_b32 {s(sM)}, s2, 3\ns_lshl_b32 {s(sG)}, {s(sM)}, 1\n" + (f"s_and_b32 {s(sT2)}, {s(sN)}, 1" if AF_ else f"s_lshr_b32 {s(sT2)}, {s(sT1)}, 4") + f"\ns_add_u32 {s(sG)}, {s(sG)}, {s(sT2)}")
P(f"s_lshr_b32 {s(sD0)}, {s(sM0x)}, 1")
P("s_waitcnt lgkmcnt(0)")
stamp("kernarg")
P(f"buffer_load_dwordx4 {v(VX0)}, {s(SX,4)}, {s(sK)} offen lds")
P(f"buffer_load_dwordx4 {v(VX1)}, {s(SX,4)}, {s(sK)} offen offset:1024 lds")
P(f"s_load_dwordx2 {s(SWS,2)}, s[0:1], 88")
P(f"s_load_dwordx2 {s(SDBG,2)}, s[0:1], 80")
P(f"s_load_dwordx2 {s(SW2,2)}, s[0:1], 56")
P(f"s_load_dwordx2 {s(SWO,2)}, s[0:1], 24")
P(f"s_load_dwordx2 {s(SOUT,2)}, s[0:1], 72")
P(f"s_load_dwordx2 {s(SB2,2)}, s[0:1], 64")
assert V2
P(f"s_bitcmp1_b32 {s(sT1)}, {4 if AF_ else 3}")
P("s_cbranch_scc1 L_ffn")

def item1(it, pitch):
    q = it & 3
    return [[f"s_add_u32 m0, {s(sM0x)}, {RA+q*16384}", f"s_mul_i32 {s(sD1)}, {s(sK)}, {pitch//2}",
             f"buffer_load_dwordx4 {v(VX0)}, {s(SX,4)}, {s(sK)} offen lds"],
            [f"buffer_load_dwordx4 {v(VX1)}, {s(SX,4)}, {s(sK)} offen offset:1024 lds"],
            [f"s_add_u32 m0, {s(sD0)}, {RB+it*8192}", f"s_add_u32 {s(sK)}, {s(sK)}, 128",
             f"buffer_load_dwordx4 {v(VW0)}, {s(SWT,4)}, {s(sD1)} offen lds ; tag=it{it}",
             f"s_and_b32 {s(sK)}, {s(sK)}, 1023"]]
def wquarter(region, q, coloff, pitch, tag):
    return [[f"s_add_u32 m0, {s(sM0x)}, {region+q*16384}", f"s_add_u32 {s(sD1)}, {s(sQ[q])}, {coloff}",
             f"buffer_load_dwordx4 {v(VW)}, {s(SWT,4)}, {s(sD1)} offen lds"],
            [f"s_add_u32 {s(sD1)}, {s(sD1)}, {8*pitch-1024}",
             f"buffer_load_dwordx4 {v(VW)}, {s(SWT,4)}, {s(sD1)} offen offset:1024 lds ; tag={tag}"]]
def w3quarter(q, pitch):
    return [[f"s_lshr_b32 {s(sD1)}, {s(sM0x)}, 1", f"s_add_u32 m0, {s(sD1)}, {RA+q*8192}", "s_nop 0",
             f"buffer_load_dwordx4 {v(VW3)}, {s(SWT,4)}, {s(sQ[q])} offen lds ; tag=w3"]]

def spin(label, load, cmp):
    P(f"s_mov_b32 {s(sCNT)}, 0")
    P(f"{label}:")
    P(cmp)
    P(f"s_add_u32 {s(sCNT)}, {s(sCNT)}, 1")
    P(f"s_cbranch_vccz {label}_ok")
    P(f"s_cmp_gt_u32 {s(sCNT)}, {SPIN_MAX}")
    P(f"s_cbranch_scc1 {label}_ok")
    P("s_sleep 1")
    old = P._cond; P._cond = label
    P(load)
    P("s_waitcnt vmcnt(0)")
    P._cond = old
    P(f"s_branch {label}")
    P(f"{label}_ok:")

def gelu(acc, n, pk=False, t0=T, out=T):
    L = []
    for g4 in range(0, n, 4):
        t = t0 + 8 + (g4 & 4)
        a = [acc + g4 + i for i in range(4)]
        if pk:
            L += [f"v_pk_mul_f32 {v(t+i,2)}, {v(a[i],2)}, {v(a[i],2)}" for i in (0, 2)]
            L += [f"v_pk_fma_f32 {v(t+i,2)}, {v(t+i,2)}, {v(K2,2)}, {v(STD,2)} op_sel:[0,0,1] op_sel_hi:[1,0,1]" for i in (0, 2)]
            L += [f"v_pk_mul_f32 {v(t+i,2)}, {v(a[i],2)}, {v(t+i,2)}" for i in (0, 2)]
        else:
            L += [f"v_mul_f32 {v(t+i)}, {v(a[i])}, {v(a[i])}" for i in range(4)]
            L += [f"v_fma_f32 {v(t+i)}, {v(t+i)}, {v(K2)}, {v(K1)}" for i in range(4)]
            L += [f"v_mul_f32 {v(t+i)}, {v(a[i])}, {v(t+i)}" for i in range(4)]
        L += [f"v_exp_f32 {v(t+i)}, {v(t+i)}" for i in range(4)]
        if pk: L += [f"v_pk_fma_f32 {v(t+i,2)}, {v(t+i,2)}, {v(STD,2)}, {v(STD,2)} op_sel_hi:[1,0,0]" for i in (0, 2)]
        else: L += [f"v_fma_f32 {v(t+i)}, {v(t+i)}, {v(STD)}, {v(STD)}" for i in range(4)]
        L += [f"v_rcp_f32 {v(t+i)}, {v(t+i)}" for i in range(4)]
        if pk: L += [f"v_pk_mul_f32 {v(t+i,2)}, {v(a[i],2)}, {v(t+i,2)}" for i in (0, 2)]
        else: L += [f"v_mul_f32 {v(t+i)}, {v(a[i])}, {v(t+i)}" for i in range(4)]
        pr = out + (g4 >> 1)
        L += [f"v_cvt_pk_bf16_f32 {v(pr)}, {v(t)}, {v(t+1)}", f"v_cvt_pk_bf16_f32 {v(pr+1)}, {v(t+2)}, {v(t+3)}"]
    return L
def hstore(soff, n, tagn, src=T):
    return [f"buffer_store_dwordx4 {v(src+4*j,4)}, {v(VL16)}, {s(SWS,4)}, {s(soff)} offen offset:{1024*j} sc1 ; tag={tagn}" for j in range(n)]
assert K1 == STD + 1

def sum4(d, r):
    return [f"v_add_f32 {v(d)}, {v(r)}, {v(r+1)}", f"v_add_f32 {v(r+2)}, {v(r+2)}, {v(r+3)}", f"v_add_f32 {v(d)}, {v(d)}, {v(r+2)}"]

MS, U = T + 4, T + 16
CSR = T + 12
MC = AAUG

def stats_final():
    t = T + 16
    return [f"v_add_f32 {v(S1)}, {v(MS)}, {v(MS+2)}", f"v_add_f32 {v(S2)}, {v(MS+1)}, {v(MS+3)}",
          f"v_mul_f32 {v(S1)}, {f2u(-1.0/512):#x}, {v(S1)}",
          f"v_mul_f32 {v(t)}, {v(S1)}, {v(S1)}",
          f"v_fma_f32 {v(S2)}, {v(S2)}, {s(sT3)}, -{v(t)}",
          f"v_max_f32 {v(S2)}, 0, {v(S2)}",
          f"v_cvt_pk_bf16_f32 {v(t)}, {v(S2)}, {v(S1)}",
          f"v_lshlrev_b32 {v(S2)}, 16, {v(t)}",
          f"v_add_f32 {v(S2)}, {f2u(1e-5):#x}, {v(S2)}",
          f"v_cvt_pk_bf16_f32 {v(S2)}, {v(S2)}, {v(S2)}",
          f"v_and_b32 {v(S2)}, 0xffff0000, {v(S2)}",
          f"v_sqrt_f32 {v(S2)}, {v(S2)}",
          f"v_lshrrev_b32 {v(BAUG)}, 16, {v(t)}",
          f"v_cmp_gt_u32 vcc, 32, {v(vL)}",
          f"v_cvt_pk_bf16_f32 {v(BAUG+1)}, {v(S1)}, {v(S2)}",
          f"v_mov_b32 {v(BAUG+2)}, 0",
          f"v_and_b32 {v(STD)}, 0xffff0000, {v(BAUG+1)}",
          f"v_rcp_f32 {v(RSTD)}, {v(STD)}",
          f"v_cndmask_b32 {v(BAUG)}, 0, {v(BAUG)}, vcc",
          f"v_cndmask_b32 {v(BAUG+1)}, 0, {v(BAUG+1)}, vcc"]

def aug(acc, part, bias):
    t = T + 18; dst = AAUG
    L = sum4(CS0, part) + [f"v_cvt_pk_bf16_f32 {v(dst)}, {v(CS0)}, {v(CS0)}",
         f"v_and_b32 {v(t)}, 0xffff0000, {v(dst)}",
         f"v_sub_f32 {v(t)}, {v(CS0)}, {v(t)}"]
    if bias is None:
        L += [f"v_cvt_pk_bf16_f32 {v(dst+1)}, {v(t)}, 0"]
    else:
        L += [f"v_cvt_pk_bf16_f32 {v(t)}, {v(t)}, 0", f"v_mov_b32 {v(dst+2)}, {v(bias)}",
              f"v_lshl_or_b32 {v(dst+1)}, {v(bias)}, 16, {v(t)}"]
    return L + [mfma(acc, dst, BAUG)]

def flag(level, tag):
    return [f".waitvm {tag}", f"v_mov_b32 {v(VFV)}, {level}",
            f"buffer_store_dword {v(VFV)}, {v(VZ)}, {s(SWS,4)}, {s(sFO)} offen sc1"]

Q = 16384
KAREA = []
sSK = sM4 if V2 else sSH
sMB = sSIG
def rot_k(kk, dst):
    if kk < 8 and OPT.get("r8", "1") == "1": return [f"s_add_u32 {s(dst)}, {s(sR4)}, {kk}", f"s_and_b32 {s(dst)}, {s(dst)}, 7", f"s_add_u32 {s(dst)}, {s(dst)}, {s(sSK)}"]
    if kk < 12: return [f"s_add_u32 {s(dst)}, {s(sR4)}, {kk}", f"s_and_b32 {s(dst)}, {s(dst)}, 3", f"s_add_u32 {s(dst)}, {s(dst)}, {s(sSK)}"] + \
                       ([f"s_add_u32 {s(dst)}, {s(dst)}, {kk & ~3}"] if kk & ~3 else [])
    if kk < 14: return [f"s_mul_i32 {s(dst)}, {s(sSK)}, 6", f"s_sub_u32 {s(dst)}, {kk}, {s(dst)}"]
    return [f"s_add_u32 {s(dst)}, {s(sR4)}, {kk-14}", f"s_and_b32 {s(dst)}, {s(dst)}, 3"]
def rot_p(sg, dst, sh):
    add = lambda x: ([f"s_add_u32 {s(dst)}, {s(dst)}, {x}"] if x else [])
    shf = (lambda: add(sh)) if isinstance(sh, int) else (lambda: [f"s_add_u32 {s(dst)}, {s(dst)}, {s(sh[0])}"])
    if sg < 4: return [f"s_add_u32 {s(dst)}, {s(sR4)}, {sg}", f"s_and_b32 {s(dst)}, {s(dst)}, 3"] + shf()
    if sg < 6: return [f"s_add_u32 {s(dst)}, {s(sR4)}, {sg}", f"s_and_b32 {s(dst)}, {s(dst)}, 1", f"s_add_u32 {s(dst)}, {s(dst)}, 4"] + shf()
    if sg == 6: return [f"s_mov_b32 {s(dst)}, {6 - 6*sh}"] if isinstance(sh, int) else [f"s_mul_i32 {s(dst)}, {s(sh[0])}, 6", f"s_sub_u32 {s(dst)}, 6, {s(dst)}"]
    return [f"s_add_u32 {s(dst)}, {s(sR4)}, {sg}", f"s_and_b32 {s(dst)}, {s(dst)}, 1"]
VBO = VW3
vbo_init = [f"v_lshrrev_b32 {v(VBO)}, 2, {v(vL)}", f"v_lshlrev_b32 {v(VBO)}, 10, {v(VBO)}", f"v_and_b32 {v(VFV)}, 48, {v(VL16)}", f"v_add_u32 {v(VBO)}, {v(VBO)}, {v(VFV)}"]
def b_dma(kk):
    if V5 and kk >= 7:
        return [[f"s_add_u32 {s(sD0)}, {s(sW3)}, {(kk-7)*8 + e*4}", f"s_and_b32 {s(sD0)}, {s(sD0)}, 15", f"s_lshl_b32 {s(sD0)}, {s(sD0)}, 14",
                 f"s_add_u32 m0, {s(sMB)}, {KAREA[kk] + e*4096}", f"s_add_u32 {s(sD0)}, {s(sD0)}, {s(sBOo)}",
                 f"buffer_load_dwordx4 {v(VBO)}, {s(SWO,4)}, {s(sD0)} offen lds ; tag=b{kk}"] for e in range(2)]
    if V3:
        sr, so = (SW2, sB2o) if kk < 7 else (SWO, sBOo)
        return [rot_p(kk, sD0, [sHALF]) + [f"s_lshl_b32 {s(sD0)}, {s(sD0)}, 15", f"s_add_u32 m0, {s(sMB)}, {KAREA[kk]}", f"s_add_u32 {s(sD0)}, {s(sD0)}, {s(so)}",
                 f"buffer_load_dwordx4 {v(VB)}, {s(sr,4)}, {s(sD0)} offen lds"],
                [f"s_add_u32 m0, {s(sMB)}, {KAREA[kk] + 4096}", f"s_add_u32 {s(sD0)}, {s(sD0)}, 16384",
                 f"buffer_load_dwordx4 {v(VB)}, {s(sr,4)}, {s(sD0)} offen lds ; tag=b{kk}"]]
    if V2:
        G_ = []
        for pos in (2 * kk, 2 * kk + 1):
            sr, so = (SW2, sB2o) if pos < 14 else (SWO, sBOo)
            G_.append(rot_k(pos, sD0) + [f"s_lshl_b32 {s(sD0)}, {s(sD0)}, 14", f"s_add_u32 m0, {s(sMB)}, {KAREA[kk] + (pos & 1) * 4096}", f"s_add_u32 {s(sD0)}, {s(sD0)}, {s(so)}",
                      f"buffer_load_dwordx4 {v(VB)}, {s(sr,4)}, {s(sD0)} offen lds ; tag=b{kk}"])
        return G_
    slot = kk % 9
    m0 = f"s_add_u32 m0, {s(sM0x)}, {KAREA[slot]}"
    sr, so = (SW2, sB2o) if kk < 14 else (SWO, sBOo)
    return [rot_k(kk, sD0) + [f"s_lshl_b32 {s(sD0)}, {s(sD0)}, 14", m0, f"s_add_u32 {s(sD0)}, {s(sD0)}, {s(so)}",
             f"buffer_load_dwordx4 {v(VB)}, {s(sr,4)}, {s(sD0)} offen lds"],
            [f"s_add_u32 {s(sD0)}, {s(sD0)}, {8192 - 1024}",
             f"buffer_load_dwordx4 {v(VB)}, {s(sr,4)}, {s(sD0)} offen offset:1024 lds ; tag=b{kk}"]]

def setup(ffn):
    pitch = 3584 if ffn else 3072
    tp = "f" if ffn else "a"
    FD = OPT.get("fd", "0") != "0"
    if ffn and FD: P(f"s_mov_b64 s[88:89], {s(SWT,2)}")
    if ffn: P(f"s_mov_b64 {s(SWT,2)}, {s(sA0,2)}")
    P(f"s_load_dwordx2 {s(SAUX,2)}, s[0:1], {48 if ffn else 16}")
    srd(SWT, 1835008 if ffn else 1572864)
    P(f"v_mul_u32_u24 {v(VW)}, {pitch}, v2\nv_add_u32 {v(VW)}, {v(VW)}, v4")
    if ffn:
        P(f"s_mul_i32 {s(sT0)}, {s(sG)}, 448\ns_and_b32 {s(sT1)}, {s(sG)}, 1\ns_lshl_b32 {s(sT2)}, {s(sT1)}, 6\ns_add_u32 {s(sWq)}, {s(sT0)}, {s(sT2)}")
        P(f"s_mul_i32 {s(sWo)}, {s(sW)}, {8*pitch}\ns_add_u32 {s(sWo)}, {s(sWo)}, {s(sWq)}")
    else:
        P(f"s_lshl_b32 {s(sWq)}, {s(sG)}, 7")
        P(f"s_mul_i32 {s(sWo)}, {s(sW)}, {8*pitch}\ns_add_u32 {s(sWo)}, {s(sWo)}, {s(sWq)}\ns_add_u32 {s(sWo)}, {s(sWo)}, 1024")
    P(f"v_add_u32 {v(VW0)}, {s(sWo)}, {v(VW)}")
    if STAMP and "slow" in STI: P(f"s_mov_b32 {s(sST+2*STI['slow'])}, {s(sST)}")
    P(f"s_mul_i32 {s(sD1)}, {s(sK)}, {pitch//2}")
    P.add(item1(0, pitch)[2])
    P("s_waitcnt lgkmcnt(0)")
    srd(SWS, WS_SIZE); srd(SDBG, 256); srd(SW2, 1835008); srd(SWO, 524288); srd(SOUT, 2097152); srd(SB2, 1024); srd(SAUX, 3584 if ffn else 16384)
    P(f"v_lshlrev_b32 {v(VL16)}, 4, {v(vL)}")
    P(f"s_lshr_b32 {s(sHALF)}, {s(sW)}, 2")
    P(f"s_and_b32 {s(sW34)}, {s(sW)}, 3\ns_xor_b32 {s(sSIG)}, {s(sW34)}, {s(sHALF)}")
    if not ffn:
        for i in range(4): P(f"v_mov_b32 {v(T+i)}, 0")
        P(f"s_lshl_b32 {s(sT0)}, {s(sW)}, 8\ns_add_u32 {s(sT0)}, {s(sT0)}, s2\ns_sub_u32 {s(sT0)}, {s(sT0)}, 256\ns_cmp_lt_u32 {s(sT0)}, 8")
        P(f"s_cbranch_scc0 L_nzero")
        P.cond_begin("zw")
        P(f"s_lshl_b32 {s(sT0)}, s2, 12\ns_add_u32 {s(sT0)}, {s(sT0)}, {WS_FLG}")
        for i in range(4): P(f"buffer_store_dwordx4 {v(T,4)}, {v(VL16)}, {s(SWS,4)}, {s(sT0)} offen offset:{1024*i} sc1")
        P(f"s_lshl_b32 {s(sT0)}, s2, 8\ns_add_u32 {s(sT0)}, {s(sT0)}, {WS_KVF}\nv_lshlrev_b32 v3, 2, {v(vL)}")
        P(f"buffer_store_dword {v(T)}, v3, {s(SWS,4)}, {s(sT0)} offen sc1 ; tag=zf")
        P.cond_end()
        P(f"L_nzero:")
    if OPT.get("touch", "5") == "1":
        P(f"s_cmp_lt_u32 {s(sW)}, 6")
        P(f"s_cbranch_scc1 L_nt{tp}")
        P.cond_begin("w67")
        P(f"v_lshlrev_b32 v3, 7, {v(vL)}\ns_mul_i32 {s(sT0)}, s2, 7168\ns_lshl_b32 {s(sT1)}, s2, 11")
        P(f"s_cmp_eq_u32 {s(sW)}, 6\ns_cbranch_scc0 L_nta{tp}")
        P(f"buffer_load_dword v255, v3, {s(SW2,4)}, {s(sT0)} offen")
        P(f"s_branch L_nt{tp}")
        P(f"L_nta{tp}:")
        P(f"v_and_b32 v3, 2047, v3")
        P(f"buffer_load_dword v255, v3, {s(SWO,4)}, {s(sT1)} offen")
        P(f"buffer_load_dword v254, v3, {s(SB2,4)}, 0 offen")
        P.cond_end()
        P(f"L_nt{tp}:")
    def wtouch():
        P(f"s_sub_u32 {s(sT0)}, {s(sW)}, 2\ns_cmp_lt_u32 {s(sT0)}, {min(3 if ffn else 2, int(OPT.get('wtn', 2)))}")
        P(f"s_cbranch_scc0 L_nw{tp}")
        P.cond_begin("w234")
        P(f"v_mul_u32_u24 v3, {pitch}, {v(vL)}\ns_mul_i32 {s(sT1)}, {s(sROT)}, {64*pitch}\ns_add_u32 {s(sT1)}, {s(sT1)}, {s(sWq)}")
        if ffn:
            P(f"s_lshl_b32 {s(sT2)}, {s(sT0)}, 7\ns_add_u32 {s(sT1)}, {s(sT1)}, {s(sT2)}\ns_add_u32 {s(sT1)}, {s(sT1)}, 128")
            P(f"s_lshr_b32 {s(sT0)}, {s(sT0)}, 1\ns_and_b32 {s(sT0)}, {s(sT0)}, {s(sG)}\ns_mul_i32 {s(sT0)}, {s(sT0)}, 448\ns_sub_u32 {s(sT1)}, {s(sT1)}, {s(sT0)}")
        else:
            P(f"s_xor_b32 {s(sT0)}, {s(sT0)}, 1\ns_lshl_b32 {s(sT0)}, {s(sT0)}, 11\ns_add_u32 {s(sT1)}, {s(sT1)}, {s(sT0)}")
        if OPT.get("wt", "2") == "2": P(f"s_mov_b32 {s(sCNT)}, {s(sT1)}")
        else: P(f"buffer_load_dword v250, v3, {s(SWT,4)}, {s(sT1)} offen")
        P.cond_end()
        P(f"L_nw{tp}:")
    if OPT.get("wt", "2") == "2": P(f"s_mov_b32 {s(sCNT)}, 0x7f000000")
    if OPT.get("wt", "2") != "0" and not (FD and not ffn): wtouch()
    if FD and ffn:
        P(f"s_mul_i32 {s(sT0)}, {s(sROT)}, {64*3072}\ns_lshl_b32 {s(sT1)}, {s(sG)}, 7\ns_add_u32 {s(sT0)}, {s(sT0)}, {s(sT1)}\ns_add_u32 {s(sT1)}, {s(sT0)}, 2048")
        P(f"s_cmp_eq_u32 {s(sW)}, 6\ns_cselect_b32 s87, {s(sT1)}, 0x7f000000")
        if OPT["fd"] == "2": P(f"s_cmp_eq_u32 {s(sW)}, 7\ns_cselect_b32 s87, {s(sT0)}, s87")
    if OPT.get("sw", "0") != "0":
        c1_, c2_ = (128, 256) if ffn else (1024, -1024)
        P(f"s_mul_i32 {s(sT0)}, {s(sROT)}, {64*pitch}\ns_add_u32 {s(sT0)}, {s(sT0)}, {s(sWo)}")
        for cc, n_ in ((c1_, 8), (c2_, int(OPT["sw"]) - 8)):
            if n_ <= 0: continue
            P(f"s_add_u32 {s(sT1)}, {s(sT0)}, {cc}")
            for j in range(n_): P(f"s_buffer_load_dword {s(sCNT)}, {s(SWT,4)}, {s(sT1)} offset:{j*pitch} ; nodef")
    if OPT.get("cpf", "1") == "1":
        P(f"s_cmp_eq_u32 {s(sW)}, 5")
        P(f"s_cbranch_scc0 L_ncp{tp}")
        P.cond_begin("w5")
        P(f"s_getpc_b64 {s(sEX,2)}")
        P(f"L_pc{tp}:")
        P(f"s_sub_u32 {s(sEX)}, {s(sEX)}, L_pc{tp}-{NAME}\ns_subb_u32 {s(sEX+1)}, {s(sEX+1)}, 0")
        P(f"s_lshr_b32 {s(sT0)}, s2, 3\ns_lshl_b32 {s(sT0)}, {s(sT0)}, 11\nv_and_b32 v3, 15, {v(vL)}\nv_lshlrev_b32 v3, 7, v3\nv_add_u32 v3, {s(sT0)}, v3")
        P(f"v_min_u32 v3, L_end-{NAME}, v3")
        P(f"global_load_dword v253, v3, {s(sEX,2)}")
        P.cond_end()
        P(f"L_ncp{tp}:")
    if OPT.get("pt", "0") == "1":
        P(f"s_cmp_eq_u32 {s(sW)}, 4")
        P(f"s_cbranch_scc0 L_npt{tp}")
        n0 = len(P.ins)
        P(f"v_lshlrev_b32 v3, 21, {v(vL)}")
        P(f"buffer_load_dword v252, v3, {s(SWS,4)}, 0 offen")
        for i_, sr_ in enumerate((SOUT, SW2, SWO, SB2)): P(f"buffer_load_dword v{248+i_}, v3, {s(sr_,4)}, 0 offen")
        for I in P.ins[n0:]: I.cond = "w4"
        P(f"L_npt{tp}:")
    def stouch():
        n0 = len(P.ins)
        P(f"s_lshl_b32 {s(sT0)}, s2, 3\ns_add_u32 {s(sT0)}, {s(sT0)}, {s(sW)}\ns_mul_i32 {s(sT1)}, {s(sT0)}, 768\ns_mul_i32 {s(sT0)}, {s(sT0)}, 896")
        for i in range(6): P(f"s_load_dword {s(sCNT)}, {s(sEX,2)}, {s(sT1)} offset:{128*i}")
        for i in range(7): P(f"s_load_dword {s(sCNT)}, {s(sA0,2)}, {s(sT0)} offset:{128*i}")
    if OPT.get("stouch", "0") == "1": stouch()
    late1 = OPT.get("late1", "0") == "1"
    if not late1:
        for g_ in item1(1, pitch): P.add(g_)
    P(f"s_lshl_b32 {s(sT0)}, {s(sRT)}, 4\ns_add_u32 {s(sT0)}, {s(sT0)}, {s(sG)}\ns_lshl_b32 {s(sT0)}, {s(sT0)}, 7")
    P(f"s_and_b32 {s(sT1)}, {s(sW)}, 2\ns_lshl_b32 {s(sT1)}, {s(sT1)}, 3\ns_add_u32 {s(sT0)}, {s(sT0)}, {s(sT1)}\ns_and_b32 {s(sT1)}, {s(sW)}, 1\ns_lshl_b32 {s(sT1)}, {s(sT1)}, 2\ns_add_u32 {s(sT0)}, {s(sT0)}, {s(sT1)}\ns_lshl_b32 {s(sT1)}, {s(sHALF)}, 3\ns_add_u32 {s(sT0)}, {s(sT0)}, {s(sT1)}")
    if V3: P(f"s_and_b32 {s(sT1)}, {s(sW)}, 2\ns_lshl_b32 {s(sT1)}, {s(sT1)}, 3\ns_add_u32 {s(sT0)}, {s(sT0)}, {s(sT1)}\ns_and_b32 {s(sT1)}, {s(sG)}, 1\ns_mul_i32 {s(sT1)}, {s(sT1)}, 112\ns_sub_u32 {s(sT0)}, {s(sT0)}, {s(sT1)}")
    P(f"s_add_u32 {s(sFO)}, {s(sT0)}, {WS_FLG + (1024 if ffn else 0)}")
    P(f"s_lshl_b32 {s(sT0)}, {s(sRT)}, 2\ns_add_u32 {s(sT0)}, {s(sT0)}, {s(sW34)}\ns_mul_i32 {s(sHo)}, {s(sT0)}, {HF_RB}")
    if ffn:
        P(f"v_and_b32 v5, 31, {v(vL)}\nv_lshlrev_b32 v5, 1, v5")
        P(f"s_lshl_b32 {s(sT0)}, {s(sHALF)}, 6\ns_add_u32 {s(sT0)}, {s(sT0)}, {s(sWq)}")
        for i in range(3): P(f"buffer_load_ushort {v(BIAS+i)}, v5, {s(SAUX,4)}, {s(sT0)} offen offset:{128*i}")
        P(f"s_lshl_b32 {s(sT0)}, {s(sT0)}, 5\ns_add_u32 {s(sH0)}, {s(sHo)}, {s(sT0)}")
        P(f"s_mul_i32 {s(sW3)}, {s(sG)}, 448\ns_add_u32 {s(sT0)}, {s(sW3)}, 384\ns_bitcmp1_b32 {s(sG)}, 0\ns_cselect_b32 {s(sW3)}, {s(sW3)}, {s(sT0)}")
        P(f"s_lshl_b32 {s(sT0)}, {s(sHALF)}, 5\nv_xor_b32 v5, {s(sT0)}, v5")
        P(f"buffer_load_ushort {v(BIAS+3)}, v5, {s(SAUX,4)}, {s(sW3)} offen")
        P(f"s_add_u32 {s(sT0)}, {s(sT0)}, {s(sW3)}\ns_lshl_b32 {s(sT0)}, {s(sT0)}, 5\ns_add_u32 {s(sH3)}, {s(sHo)}, {s(sT0)}")
        if FD: P(f"s_mov_b64 {s(SAUX,2)}, s[88:89]\ns_mov_b32 {s(SAUX+2)}, 1572864")
        P(f"v_lshrrev_b32 v2, 2, {v(vL)}\nv_and_b32 v4, 3, {v(vL)}\nv_lshlrev_b32 v4, 4, v4\nv_mul_u32_u24 {v(VW3)}, {pitch}, v2\nv_add_u32 {v(VW3)}, {v(VW3)}, v4")
    else:
        P(f"s_cmp_lt_u32 {s(sW)}, 2")
        P(f"s_cbranch_scc0 L_nphi")
        P.cond_begin("w01")
        P(f"s_lshl_b32 {s(sT0)}, {s(sG)}, 11\ns_lshl_b32 {s(sT1)}, {s(sW)}, 10\ns_add_u32 {s(sT0)}, {s(sT0)}, {s(sT1)}\ns_add_u32 m0, {s(sT1)}, {L_WPHI}\ns_nop 0")
        P(f"buffer_load_dwordx4 {v(VL16)}, {s(SAUX,4)}, {s(sT0)} offen lds")
        P.cond_end()
        P("L_nphi:")
        P(f"s_mov_b64 {s(SAUX,2)}, {s(sA0,2)}\ns_mov_b32 {s(SAUX+2)}, 1835008")
    P(f"s_mul_i32 {s(sT0)}, {s(sW34)}, {16*pitch}\ns_add_u32 {s(sWq)}, {s(sWq)}, {s(sT0)}")
    P(f"v_add_u32 {v(VW)}, {s(sWq)}, {v(VW)}")
    if ffn: P(f"s_add_u32 {s(sW3)}, {s(sW3)}, {s(sT0)}\nv_add_u32 {v(VW3)}, {s(sW3)}, {v(VW3)}")
    P(f"s_add_u32 {s(sT0)}, {s(sROT)}, {s(sHALF)}")
    for q in range(4):
        P(f"s_add_u32 {s(sT1)}, {s(sT0)}, {2*q}\ns_and_b32 {s(sT1)}, {s(sT1)}, 7\ns_mul_i32 {s(sQ[q])}, {s(sT1)}, {64*pitch}")
    P(f"s_mov_b32 {s(sT3)}, {f2u(1.0/512):#x}\ns_mov_b32 {s(sONE)}, 0x3f803f80")
    P(f"v_bfe_u32 {v(T)}, {v(vL)}, 2, 2\nv_lshrrev_b32 {v(T+1)}, 5, {v(vL)}")
    P(f"v_bfe_u32 {v(T+2)}, {v(vL)}, 4, 1\nv_lshlrev_b32 {v(T+2)}, 5, {v(T+2)}\nv_and_b32 {v(T+3)}, 3, {v(vL)}\nv_lshl_add_u32 {v(T+2)}, {v(T+3)}, 3, {v(T+2)}")
    P(f"v_and_b32 {v(T+4)}, 31, {v(vL)}\nv_bfe_u32 {v(T+5)}, {v(vL)}, 1, 3\nv_xor_b32 {v(T+5)}, {v(T+5)}, {v(T+1)}")
    P(f"s_lshl_b32 {s(sT0)}, {s(sW34)}, 12\nv_lshlrev_b32 {v(T+8)}, 7, {v(T+4)}\nv_add_u32 {v(T+8)}, {s(sT0)}, {v(T+8)}")
    P(f"v_lshl_add_u32 {v(T+9)}, {v(T+1)}, 3, {v(T)}\nv_lshl_add_u32 {v(T+10)}, {v(T+9)}, 7, {v(T+2)}\nv_lshrrev_b32 {v(T+7)}, 1, {v(T)}\nv_xor_b32 {v(T+7)}, {s(sHALF)}, {v(T+7)}\nv_lshl_add_u32 {v(T+10)}, {v(T+7)}, 6, {v(T+10)}")
    for p in range(4):
        P(f"s_xor_b32 {s(sT0)}, {s(sSIG)}, {p}\ns_lshl_b32 {s(sT1)}, {s(sT0)}, 1\nv_xor_b32 {v(T+6)}, {s(sT1)}, {v(T+5)}\nv_lshl_add_u32 {v(AX+p)}, {v(T+6)}, 4, {v(T+8)}")
        P(f"s_lshl_b32 {s(sT1)}, {s(sT0)}, 11\ns_add_u32 {s(sT1)}, {s(sT1)}, {RB}\nv_add_u32 {v(AW+p)}, {s(sT1)}, {v(T+10)}")
    if ffn:
        P(f"s_lshl_b32 {s(sT0)}, {s(sHALF)}, 5\nv_xor_b32 {v(T+7)}, {s(sT0)}, {v(T+2)}\nv_lshl_add_u32 {v(T+7)}, {v(T+9)}, 6, {v(T+7)}")
        for i, p in enumerate((0, 2)):
            P(f"s_xor_b32 {s(sT0)}, {s(sSIG)}, {p}\ns_lshl_b32 {s(sT0)}, {s(sT0)}, 10\nv_add_u32 {v(AB+i)}, {s(sT0)}, {v(T+7)}")
    P(f"v_lshlrev_b32 {v(T+4)}, 4, {v(T+4)}")
    P(f"s_lshl_b32 {s(sT0)}, {s(sHALF)}, 9\ns_add_u32 {s(sT0)}, {s(sT0)}, {L_CS}\nv_add_u32 {v(VCSA)}, {s(sT0)}, {v(T+4)}")
    P(f"s_lshl_b32 {s(sT0)}, {s(sW34)}, 9\ns_add_u32 {s(sT0)}, {s(sT0)}, {L_ST}\nv_add_u32 {v(VSTA)}, {s(sT0)}, {v(T+4)}")
    P(f"v_lshrrev_b32 {v(T+4)}, 2, {v(vL)}\nv_xor_b32 {v(T+4)}, {v(T+4)}, {v(vL)}\nv_and_b32 {v(T+4)}, 4, {v(T+4)}\nv_cmp_eq_u32 vcc, 0, {v(T+4)}\nv_mov_b32 {v(T+4)}, {s(sONE)}")
    for i in range(4): P(f"v_mov_b32 {v(PZ+i)}, -1")
    for r in (VZ, BAUG+3, AAUG+2, AAUG+3): P(f"v_mov_b32 {v(r)}, 0")
    for i in range(4): P(f"v_cndmask_b32 {v(SEL+i)}, 0, {v(T+4)}, vcc")
    P(f"s_lshl_b32 {s(sW34)}, {s(sW34)}, 2")
    if late1:
        for g_ in item1(1, pitch): P.add(g_)
    if OPT.get("stouch", "0") == "2": stouch()
    if V2:
        P(f"v_lshrrev_b32 {v(T)}, 4, {v(vL)}\nv_lshlrev_b32 {v(T+1)}, 2, {v(T)}\nv_and_b32 {v(T+2)}, 15, {v(vL)}\nv_xor_b32 {v(T+2)}, {v(T+2)}, {v(T+1)}\nv_lshlrev_b32 {v(T+2)}, 4, {v(T+2)}\nv_lshl_add_u32 {v(VB)}, {v(T)}, 10, {v(T+2)}")
        P(f"s_lshl_b32 {s(sT2)}, {s(sM)}, 1\ns_add_u32 {s(sT2)}, {s(sT2)}, {s(sHALF)}")
        P(f"s_lshl_b32 {s(sT0)}, {s(sN)}, 8\ns_lshl_b32 {s(sT1)}, {s(sW34)}, 10\ns_add_u32 {s(sT1)}, {s(sT1)}, {s(sT0)}")
        P(f"s_mul_i32 {s(sB2o)}, {s(sT2)}, {224*1024}\ns_add_u32 {s(sB2o)}, {s(sB2o)}, {s(sT1)}\ns_lshl_b32 {s(sBOo)}, {s(sT2)}, 16\ns_add_u32 {s(sBOo)}, {s(sBOo)}, {s(sT1)}")
        P(f"s_mul_i32 {s(sA0)}, {s(sT2)}, {14*1024}\ns_add_u32 {s(sA0)}, {s(sA0)}, {s(sHo)}\ns_lshl_b32 {s(sA1)}, {s(sT2)}, 12\ns_add_u32 {s(sA1)}, {s(sA1)}, {s(sHo)}\ns_add_u32 {s(sA1)}, {s(sA1)}, {112*1024}")
        P(f"s_lshl_b32 {s(sT1)}, {s(sRT)}, 4\ns_add_u32 {s(sT1)}, {s(sT1)}, {s(sT2)}\ns_lshl_b32 {s(sT1)}, {s(sT1)}, 7\ns_and_b32 {s(sFL)}, {s(sW)}, 2\ns_lshl_b32 {s(sFL)}, {s(sFL)}, 3\ns_add_u32 {s(sFL)}, {s(sFL)}, {s(sT1)}\ns_add_u32 {s(sFL)}, {s(sFL)}, {WS_FLG}")
        P(f"s_mul_i32 {s(sR4)}, {s(sN)}, 5\ns_lshr_b32 {s(sR4)}, {s(sR4)}, 1\ns_add_u32 {s(sR4)}, {s(sR4)}, {s(sRT)}\ns_and_b32 {s(sR4)}, {s(sR4)}, 7")
        P(f"s_lshl_b32 {s(sT2)}, {s(sT2)}, 5\ns_add_u32 {s(sN)}, {s(sT0)}, {s(sT2)}")
        P(f"s_lshl_b32 {s(sOo)}, {s(sRT)}, 17\ns_lshl_b32 {s(sT1)}, {s(sW34)}, 13\ns_add_u32 {s(sOo)}, {s(sOo)}, {s(sT1)}\ns_add_u32 {s(sOo)}, {s(sOo)}, {s(sN)}")
        P(f"s_and_b32 {s(sSH)}, {s(sW)}, 1\ns_lshl_b32 {s(sSH)}, {s(sSH)}, 1\ns_lshl_b32 {s(sSK)}, {s(sHALF)}, 1")
        if XRG:
            P(f"s_lshr_b32 {s(sT0)}, {s(sN)}, 8\ns_lshl_b32 {s(sT0)}, {s(sT0)}, 1\ns_add_u32 {s(sT0)}, {s(sT0)}, {s(sRT)}\ns_lshr_b32 {s(sT1)}, {s(sN)}, 7\ns_sub_u32 {s(sT1)}, {s(sT1)}, {s(sT0)}\ns_and_b32 {s(sT1)}, {s(sT1)}, 7\ns_lshl_b32 {s(sT1)}, {s(sT1)}, 4")
            P(f"s_lshr_b32 {s(sT0)}, {s(sN)}, 5\ns_and_b32 {s(sT0)}, {s(sT0)}, 3\ns_xor_b32 {s(sT0)}, {s(sT0)}, {s(sSIG)}\ns_lshl_b32 {s(sT0)}, {s(sT0)}, 2\ns_add_u32 {s(sWq)}, {s(sT1)}, {s(sT0)}")
        P(f"s_lshl_b32 {s(sMB)}, {s(sHALF)}, 13\ns_lshl_b32 {s(sT1)}, {s(sW34)}, 8\ns_add_u32 {s(sMB)}, {s(sMB)}, {s(sT1)}")
        if V5:
            P(f"s_lshr_b32 {s(sWq)}, {s(sN)}, 8\ns_lshl_b32 {s(sWq)}, {s(sWq)}, 2\ns_lshr_b32 {s(sW3)}, {s(sW34)}, 2\ns_add_u32 {s(sW3)}, {s(sW3)}, {s(sWq)}")
            P(f"s_lshl_b32 {s(sT0)}, {s(sHALF)}, 5\ns_sub_u32 {s(sBOo)}, {s(sN)}, {s(sT0)}\ns_lshl_b32 {s(sT0)}, {s(sHALF)}, 18\ns_add_u32 {s(sBOo)}, {s(sBOo)}, {s(sT0)}")
            P(f"s_lshl_b32 {s(sT0)}, {s(sHALF)}, 14\ns_add_u32 {s(sA1)}, {s(sHo)}, {s(sT0)}\ns_add_u32 {s(sA1)}, {s(sA1)}, {112*1024}")
        if V3:
            P(f"s_lshl_b32 {s(sT0)}, {s(sSH)}, 4\nv_xor_b32 {v(VB)}, {s(sT0)}, {v(VB)}")
            P(f"s_mul_i32 {s(sT0)}, {s(sHALF)}, {14*1024}\ns_sub_u32 {s(sA0)}, {s(sA0)}, {s(sT0)}\ns_lshl_b32 {s(sT0)}, {s(sHALF)}, 12\ns_sub_u32 {s(sA1)}, {s(sA1)}, {s(sT0)}")
            P(f"s_lshl_b32 {s(sT0)}, {s(sHALF)}, 7\ns_sub_u32 {s(sFL)}, {s(sFL)}, {s(sT0)}\ns_and_b32 {s(sT0)}, {s(sW)}, 2\ns_lshl_b32 {s(sT0)}, {s(sT0)}, 3\ns_add_u32 {s(sFL)}, {s(sFL)}, {s(sT0)}")
        return
    P(f"s_lshl_b32 {s(sT0)}, {s(sN)}, 7\ns_mul_i32 {s(sB2o)}, {s(sW)}, {224*1024}\ns_add_u32 {s(sB2o)}, {s(sB2o)}, {s(sT0)}")
    P(f"s_lshl_b32 {s(sBOo)}, {s(sW)}, 16\ns_add_u32 {s(sBOo)}, {s(sBOo)}, {s(sT0)}\ns_lshl_b32 {s(sM4)}, {s(sW)}, 12")
    P(f"s_lshl_b32 {s(sOo)}, {s(sM)}, 16\ns_lshl_b32 {s(sT1)}, {s(sW)}, 13\ns_add_u32 {s(sOo)}, {s(sOo)}, {s(sT1)}\ns_add_u32 {s(sOo)}, {s(sOo)}, {s(sT0)}")
    if OPT.get("r8", "1") == "1":
        P(f"s_mul_i32 {s(sT0)}, {s(sM)}, 5\ns_lshr_b32 {s(sT0)}, {s(sT0)}, 1\ns_sub_u32 {s(sN)}, {s(sN)}, {s(sM)}\ns_add_u32 {s(sR4)}, {s(sN)}, {s(sT0)}\ns_add_u32 {s(sN)}, {s(sN)}, {s(sM)}")
    else: P(f"s_mov_b32 {s(sR4)}, {s(sN)}")
    P(f"s_add_u32 {s(sR4)}, {s(sM)}, {s(sR4)}\ns_and_b32 {s(sR4)}, {s(sR4)}, {0 if OPT.get('norot') else 7}\ns_and_b32 {s(sSH)}, {s(sW)}, 1\ns_lshl_b32 {s(sSH)}, {s(sSH)}, 1")
    P(f"s_lshr_b32 {s(sT0)}, {s(sM)}, 1\ns_lshl_b32 {s(sT0)}, {s(sT0)}, 4\ns_add_u32 {s(sT0)}, {s(sT0)}, {s(sW)}\ns_lshl_b32 {s(sT0)}, {s(sT0)}, 7")
    P(f"s_and_b32 {s(sT1)}, {s(sM)}, 1\ns_lshl_b32 {s(sT1)}, {s(sT1)}, 4\ns_add_u32 {s(sT0)}, {s(sT0)}, {s(sT1)}\ns_add_u32 {s(sFL)}, {s(sT0)}, {WS_FLG}")
    P(f"s_mul_i32 {s(sA0)}, {s(sM)}, {2*HF_RB}\ns_mul_i32 {s(sT0)}, {s(sW)}, {14*1024}\ns_add_u32 {s(sA1)}, {s(sA0)}, {s(sM4)}\ns_add_u32 {s(sA1)}, {s(sA1)}, {112*1024}\ns_add_u32 {s(sA0)}, {s(sA0)}, {s(sT0)}")

class Sched:
    def __init__(self, n):
        self.n = n; self.pre = [[] for _ in range(n)]; self.post = [[] for _ in range(n)]
        self.fill = [[] for _ in range(n)]; self.dma = [[] for _ in range(n)]; self.blk = {}
    def spread(self, lst, a, b):
        for i in range(a, b): self.fill[i] += lst[len(lst)*(i-a)//(b-a): len(lst)*(i+1-a)//(b-a)]
    def dmas(self, groups, a, step=1):
        for i, g in enumerate(groups): self.dma[a + i*step] += g

def rd(G):
    b = WF + 4 * (G & 3)
    if G < 96:
        ks = G & 31; st, p = ks >> 2, ks & 3
        L = [f"ds_read_b128 {v(XF+4*ks,4)}, {v(AX+p)} offset:{RA+(st&3)*16384}"] if G < 32 else []
        if ks < 4 and G >= 32: L.append(f"v_xor_b32 {v(AW+p)}, {RB}, {v(AW+p)}")
        return L + [f"ds_read_b64_tr_b16 {v(b+2*t,2)}, {v(AW+p)} offset:{8192*st+512*t}" for t in range(2)]
    i = G - 96
    return [f"ds_read_b64_tr_b16 {v(b+2*t,2)}, {v(AB+(i&1))} offset:{4096*(i>>1)+256*t}" for t in range(2)]
def xq(G): return XF + 4 * (G & 31) if G < 96 else XF + 8 * (G - 96)

def common_sched(S, ffn, accs, MC):
    pitch = 3584 if ffn else 3072
    tp = "f" if ffn else "a"
    c1, c2 = (128, 256) if ffn else (2048, 0)
    S.dmas(item1(2, pitch), 0, 0)
    for st in range(8):
        G = 4 * st + 2
        S.pre[G] += [f".waitvm it{st+1}" if st < 7 else ".waitvm w1q0 lgkm0", "s_barrier"]
        if st <= 4: S.dmas(item1(st + 3, pitch), G)
        else: S.dmas(wquarter(RA, st - 5, c1, pitch, f"w1q{st-5}"), G)
    def m4(d, r, c=None): return f"v_mfma_f32_4x4x4_16b_bf16 {v(d,4)}, {v(r,2)}, {v(r,2)}, {v(d,4) if c is None else c}"
    Q0, Q1 = T + 8, T + 16
    for f in range(0, 32, 2):
        x = XF + 4 * f; a = max(f - 1, 0); c = "0" if f == 0 else None
        if OPT.get("hyb", "0") == "1":
            b = f if f < 30 else 29
            S.post[a] += [m4(Q0, x, c), m16(MS, SEL, x, c)]
            for r, G in ((x + 2, a), (x + 3, b)):
                S.post[G] += [f"v_and_b32 {v(Q1+2)}, 0xffff0000, {v(r)}", f"v_lshlrev_b32 {v(Q1+3)}, 16, {v(r)}",
                              f"v_fmac_f32 {v(Q1)}, {v(Q1+2)}, {v(Q1+2)}", f"v_fmac_f32 {v(Q1+1)}, {v(Q1+3)}, {v(Q1+3)}"]
        else: S.post[a] += [m4(Q0, x, c), m4(Q1, x + 2, c), m16(MS, SEL, x, c)]
    S.post[28] += [f"v_and_b32 {v(S1)}, 3, {v(vL)}", f"v_cmp_eq_u32 {s(sEX,2)}, 1, {v(S1)}", f"s_lshl_b32 {s(sT0)}, {s(sHALF)}, 3",
                   f"v_add_u32 {v(T)}, {s(sT0)}, {v(VSTA)}"]
    if OPT.get("hyb", "0") == "1":
        S.pre[0] += [f"v_mov_b32 {v(Q1)}, 0", f"v_mov_b32 {v(Q1+1)}, 0"]
        S.post[29] += [f"v_add_f32 {v(Q1)}, {v(Q1)}, {v(Q1+1)}"]
    else: S.post[29] += [f"v_add_f32 {v(Q0+i)}, {v(Q0+i)}, {v(Q1+i)}" for i in range(4)]
    S.post[29] += [f"v_cmp_eq_u32 vcc, 2, {v(S1)}", f"v_cndmask_b32 {v(S2)}, {v(Q0)}, {v(Q0+1)}, {s(sEX,2)}", f"v_cmp_eq_u32 {s(sEX,2)}, 3, {v(S1)}",
                   f"v_cndmask_b32 {v(S2)}, {v(S2)}, {v(Q0+2)}, vcc", f"v_cndmask_b32 {v(S2)}, {v(S2)}, {v(Q0+3)}, {s(sEX,2)}"] + ([f"v_add_f32 {v(S2)}, {v(S2)}, {v(Q1)}"] if OPT.get("hyb", "0") == "1" else []) + [
                   f"v_mov_b32 {v(S1)}, {v(S2)}", f"v_permlane32_swap_b32 {v(S1)}, {v(S2)}",
                   f"v_add_f32 {v(MS+1)}, {v(S1)}, {v(S2)}", f"ds_write_b64 {v(T)}, {v(MS,2)}"]
    S.post[30] += [f"ds_read_b128 {v(MS,4)}, {v(VSTA)}"]
    for ps in range(3):
        for st in range(8):
            G = 32 * ps + 4 * st
            S.post[G] += [m16(MC, SEL, WF + 4 * (G & 3), "0" if st == 0 else None)]
        S.post[32*ps + 29] += [f"v_add_u32 {v(MC+1)}, {s(sW34)}, {v(VCSA)}", f"ds_write_b32 {v(MC+1)}, {v(MC)} offset:{1024*ps}"]
    FEW = OPT.get("few", "1") == "1"
    if FEW: S.pre[38] += [".waitvm w1q3", "s_barrier"]
    else:
        for q in (1, 2, 3): S.pre[32 + 8*q - 2] += [f".waitvm w1q{q}", "s_barrier"]
    w2 = sum([wquarter(RB, q, c2, pitch, "w2") for q in range(4)], [])
    for g_, G in zip(wquarter(RA, 3, c1, pitch, "w1q3") + w2, [int(x) for x in OPT.get("w2g", "32,33,35,37,38,40,41,43,44,46").split(",")]): S.dma[G] += g_
    S.pre[62] += [".waitvm w2 lgkm0", "s_barrier"]
    for G in ((int(OPT.get("fb", 82)),) if ffn else (() if OPT.get("asy", "0") == "1" else (int(OPT.get("ab", 86)),))): S.pre[G] += ["s_barrier"]
    if ffn:
        S.post[int(OPT.get("f1", 90))] += flag(1, "h1")
        S.post[int(OPT.get("p1", 99))] += [spoll(0)]; S.blk[("e", int(OPT.get("c1", 105)))] = lambda: (sneed(1, 0), None if V5 else P(spoll(1)))
    else:
        S.post[int(OPT.get("fa", 80))] += flag(1, "po")
    if OPT.get("l2t", "0") == "1":
        tg = [int(x) for x in OPT.get("l2gf" if ffn else "l2ga", "52,62,66,70,74" if ffn else "48,52,56,60,64").split(",")]
        DUM = VX0 if False else VW0
        for j in range(5):
            if j < 3:
                L = [f"s_lshr_b32 {s(sT0)}, s2, 3", f"s_mul_i32 {s(sT0)}, {s(sT0)}, 3", f"s_lshl_b32 {s(sT1)}, {s(sSH)}, 4", f"s_add_u32 {s(sT0)}, {s(sT0)}, {s(sT1)}",
                     f"s_add_u32 {s(sT0)}, {s(sT0)}, {128+j}", f"s_sub_u32 {s(sT1)}, {s(sT0)}, 224", f"s_min_u32 {s(sT0)}, {s(sT0)}, {s(sT1)}",
                     f"s_mul_i32 {s(sT1)}, {s(sW)}, 224", f"s_add_u32 {s(sT0)}, {s(sT0)}, {s(sT1)}", f"s_lshl_b32 {s(sT0)}, {s(sT0)}, 10",
                     f"buffer_load_dword {v(VTD)}, {v(VL16)}, {s(SW2,4)}, {s(sT0)} offen ; nodef"]
            else:
                L = [f"s_lshr_b32 {s(sT0)}, s2, 3", f"s_lshl_b32 {s(sT0)}, {s(sT0)}, 11", f"s_lshl_b32 {s(sT1)}, {s(sW)}, 16", f"s_add_u32 {s(sT0)}, {s(sT0)}, {s(sT1)}",
                     f"buffer_load_dword {v(VTD)}, {v(VL16)}, {s(SWO,4)}, {s(sT0)} offen offset:{1024*(j-3)} ; nodef"]
            S.dma[tg[j]] += L
    if (OPT.get("touch", "5") == "5" and not ffn) or (OPT.get("touch") == "6" and ffn):
        tg = [int(x) for x in OPT.get("tgs", "54,56,58,60,62").split(",")]
        gw = [f"s_and_b32 {s(sT0)}, {s(sRT)}, 7", f"s_lshl_b32 {s(sT0)}, {s(sT0)}, 1", f"s_and_b32 {s(sT1)}, {s(sG)}, 1", f"s_add_u32 {s(sT0)}, {s(sT0)}, {s(sT1)}",
              f"s_lshl_b32 {s(sT0)}, {s(sT0)}, 3", f"s_add_u32 {s(sK)}, {s(sT0)}, {s(sW)}"]
        for j in range(4):
            S.dma[tg[j]] += (gw if j == 0 else []) + [f"s_add_u32 {s(sT0)}, {s(sK)}, {128*j}", f"s_min_u32 {s(sT0)}, {s(sT0)}, 447", f"s_mul_i32 {s(sT1)}, {s(sM)}, 448", f"s_add_u32 {s(sT0)}, {s(sT0)}, {s(sT1)}",
                                  f"s_lshl_b32 {s(sT0)}, {s(sT0)}, 10", f"buffer_load_dword {v(VTD)}, {v(VL16)}, {s(SW2,4)}, {s(sT0)} offen ; nodef"]
        if V5: S.dma[tg[4]] += [f"s_lshl_b32 {s(sT0)}, {s(sK)}, 12", f"s_and_b32 {s(sT1)}, {s(sM)}, 2", f"s_lshl_b32 {s(sT1)}, {s(sT1)}, 6", f"s_add_u32 {s(sT0)}, {s(sT0)}, {s(sT1)}",
                         f"v_and_b32 {v(S1)}, 15, {v(vL)}", f"v_lshlrev_b32 {v(S1)}, 8, {v(S1)}", f"buffer_load_dword {v(VTD)}, {v(S1)}, {s(SWO,4)}, {s(sT0)} offen ; nodef"]
        else: S.dma[tg[4]] += [f"s_lshl_b32 {s(sT1)}, {s(sM)}, 7", f"s_add_u32 {s(sT0)}, {s(sK)}, {s(sT1)}",
                         f"s_lshl_b32 {s(sT0)}, {s(sT0)}, 10", f"buffer_load_dword {v(VTD)}, {v(VL16)}, {s(SWO,4)}, {s(sT0)} offen ; nodef"]
        S.dma[tg[4]] += [f"buffer_load_dword {v(VTD)}, {v(VL16)}, {s(SB2,4)}, 0 offen ; nodef"]
        if OPT.get("t3", "0") == "1":
            S.dma[int(OPT.get("t3g", 49))] += gw + [f"s_mul_i32 {s(sT0)}, {s(sK)}, {4*3584}", f"s_mul_i32 {s(sT1)}, {s(sM)}, 896", f"s_add_u32 {s(sT0)}, {s(sT0)}, {s(sT1)}",
                f"v_and_b32 {v(VTD)}, 3, {v(vL)}", f"v_mul_u32_u24 {v(VTD)}, 3584, {v(VTD)}", f"buffer_load_dword {v(VTD)}, {v(VTD)}, {s(SAUX,4)}, {s(sT0)} offen offset:384 ; nodef"]
    if OPT.get("touch") == "4":
        tg = [int(x) for x in OPT.get("tgs", "47,49,52").split(",")]
        gw = [f"s_and_b32 {s(sT0)}, s2, 0xf8", f"s_add_u32 {s(sT0)}, {s(sT0)}, {s(sW)}"]
        for j in range(2):
            S.dma[tg[j]] += gw + [f"s_add_u32 {s(sT0)}, {s(sT0)}, {256*j}", f"s_min_u32 {s(sT0)}, {s(sT0)}, 447", f"s_mul_i32 {s(sT1)}, {s(sM)}, 448", f"s_add_u32 {s(sT0)}, {s(sT0)}, {s(sT1)}",
                                  f"s_lshl_b32 {s(sT0)}, {s(sT0)}, 10", f"buffer_load_dword {v(VTD)}, {v(VL16)}, {s(SW2,4)}, {s(sT0)} offen ; nodef"]
        S.dma[tg[2]] += gw + [f"s_lshr_b32 {s(sT0)}, {s(sT0)}, 1", f"s_lshl_b32 {s(sT1)}, {s(sM)}, 7", f"s_add_u32 {s(sT0)}, {s(sT0)}, {s(sT1)}",
                              f"s_lshl_b32 {s(sT0)}, {s(sT0)}, 10", f"buffer_load_dword {v(VTD)}, {v(VL16)}, {s(SWO,4)}, {s(sT0)} offen ; nodef"]
    if OPT.get("touch", "5") == "3":
        def mtouch():
            n0 = len(P.ins)
            P(f"s_cmp_lt_u32 {s(sW)}, 6")
            P(f"s_cbranch_scc1 L_mt{tp}")
            P.cond_begin("w67")
            P(f"v_lshlrev_b32 {v(T+1)}, 7, {v(vL)}\ns_mul_i32 {s(sT0)}, s2, 7168\ns_lshl_b32 {s(sT1)}, s2, 11")
            P(f"s_cmp_eq_u32 {s(sW)}, 6\ns_cbranch_scc0 L_mta{tp}")
            P(f"buffer_load_dword {v(T+2)}, {v(T+1)}, {s(SW2,4)}, {s(sT0)} offen")
            P(f"s_branch L_mt{tp}")
            P(f"L_mta{tp}:")
            P(f"v_and_b32 {v(T+1)}, 2047, {v(T+1)}")
            P(f"buffer_load_dword {v(T+2)}, {v(T+1)}, {s(SWO,4)}, {s(sT1)} offen")
            P(f"buffer_load_dword {v(T+3)}, {v(T+1)}, {s(SB2,4)}, 0 offen")
            P.cond_end()
            P(f"L_mt{tp}:")
        S.blk[("e", int(OPT.get("tg", 5)))] = mtouch
    if OPT.get("fd", "0") != "0" and ffn:
        S.dma[int(OPT.get("wg", 5))] += [f"v_mul_u32_u24 {v(T+1)}, 3072, {v(vL)}", f"buffer_load_dword {v(T+3)}, {v(T+1)}, {s(SAUX,4)}, s87 offen"]
    if OPT.get("wt", "2") == "2" and not (OPT.get("fd", "0") != "0" and not ffn):
        S.dma[int(OPT.get("wg", 5))] += [f"v_mul_u32_u24 {v(T+1)}, {pitch}, {v(vL)}", f"buffer_load_dword {v(T+2)}, {v(T+1)}, {s(SWT,4)}, {s(sCNT)} offen"]
    if XRG:
        xd = PZ if ffn else SEL
        S.post[93] += [f"s_set_gpr_idx_on {s(sWq)}, gpr_idx(SRC0)", "s_nop 0"] + [f"v_mov_b32 {v(xd+i)}, {v(XF+i)}" for i in range(4)] + ["s_set_gpr_idx_off"]
    if V5: S.post[92] += vbo_init
    def announce():
        P(f"s_lshl_b32 {s(sT0)}, {s(sW)}, 8\ns_add_u32 {s(sT0)}, {s(sT0)}, s2\ns_sub_u32 {s(sT0)}, {s(sT0)}, 256\ns_cmp_lt_u32 {s(sT0)}, 8")
        P(f"s_cbranch_scc0 L_nd")
        P.cond_begin("zw")
        P(".waitvm zf")
        P(f"s_lshl_b32 {s(sT0)}, s2, 2\nv_mov_b32 {v(VFV)}, 1")
        P(f"buffer_store_dword {v(VFV)}, {v(VZ)}, {s(SDBG,4)}, {s(sT0)} offen sc1")
        P.cond_end()
        P(f"L_nd:")
    if not ffn: S.blk[3] = announce
    ld = f"v_and_b32 {v(VX0)}, 28, {v(vL)}\nbuffer_load_dword {v(VX0)}, {v(VX0)}, {s(SDBG,4)}, 0 offen sc1"
    def poll0():
        P(f"s_cmp_eq_u32 {s(sW)}, 7"); P(f"s_cbranch_scc0 L_np{tp}")
        P.cond_begin("w7")
        P(ld)
        P.cond_end(); P(f"L_np{tp}:")
    def check0():
        P(f"s_cmp_eq_u32 {s(sW)}, 7"); P(f"s_cbranch_scc0 L_nc{tp}")
        P.cond_begin("w7")
        P(f"v_mov_b32 {v(VX0)}, {v(VX0)}")
        spin(f"L_ncs{tp}", ld, f"v_cmp_ne_u32 vcc, 1, {v(VX0)}")
        P.cond_end(); P(f"L_nc{tp}:")
    S.blk[39] = poll0; S.blk[62] = check0

def run_sched(S, accs):
    P(".waitvm it0")
    P("s_barrier")
    stamp("it0")
    P.add(rd(0)); P.add(rd(1))
    for G in range(S.n):
        stamp(f"g{G}")
        if G in S.blk: S.blk[G]()
        late = OPT.get("bam", "1") == "1" and G >= 32
        if not late: P.add(S.pre[G])
        if OPT.get("prio", "2") == "1": P(f"s_setprio {3 - ((G + 2) & 3)}")
        pp = int(OPT.get("pp", 2)); p1m = OPT.get("p1m", "1")
        if OPT.get("prio", "2") == "2":
            if G < 32:
                if p1m == "1": P(f"s_setprio {3 - ((G + 2) & 3)}")
                elif p1m == "2" and G % 2 == 0: P(f"s_setprio {1 - (((G + 2) >> 1) & 1)}")
            elif pp and G % pp == 0: P(f"s_setprio {3 - ((G // pp) & 3)}")
            elif not pp and G == 32: P("s_setprio 0")
        first = G in (0, 32, 64, 96)
        P(mfma(accs[G >> 5], WF + 4 * (G & 3), xq(G), "0" if first else None))
        if late: P.add(S.pre[G])
        if G + 2 < S.n: P.add(rd(G + 2))
        P.add(S.post[G]); P.add(S.fill[G]); P.add(S.dma[G])
        if ("e", G) in S.blk: S.blk[("e", G)]()
    P("s_setprio 0")

AC = 64; NAF = 8
def AFq(kk, rb): return XF + 4 + 8 * (2 * (kk % NAF) + rb)
def BTq(kk, nb): return XF + 8 * (2 * (kk & 3) + nb)
BA = 2
VXR, VRED = 9, 10
VWR = 20
XR, B2R = 32, 36
def AF2(kk): return XF + 4 + 8 * (kk % 16)
def BT2(kk, nb): return XF + 8 * (4 * (kk & 1) + nb)
def xoff(j, send):
    return ([f"s_xor_b32 {s(sT0)}, s2, {j}", f"s_mul_i32 {s(sT0)}, {s(sT0)}, {3*8192}"] if send else [f"s_mul_i32 {s(sT0)}, s2, {3*8192}"]) + \
           [f"s_lshl_b32 {s(sT1)}, {s(sW)}, 10", f"s_add_u32 {s(sT0)}, {s(sT0)}, {s(sT1)}", f"s_add_u32 {s(sT0)}, {s(sT0)}, {WS_X + (j-1)*8192}"]
VA3 = 14
def AF3(st, sh):
    if st < 8: return XF + 4 + 8 * (2 * st + sh)
    if st < 12: return XF + 64 + 8 * (2 * (st - 8) + sh)
    if st < 16: return 96 + 4 * (2 * (st - 12) + sh)
    return XF + 4 + 8 * (2 * (st - 16) + sh)
va3_init = lines(f"v_and_b32 {v(VA3)}, 15, {v(vL)}\nv_lshlrev_b32 {v(VA3)}, 4, {v(VA3)}\nv_lshrrev_b32 {v(T+19)}, 4, {v(vL)}\nv_lshl_add_u32 {v(VA3)}, {v(T+19)}, 9, {v(VA3)}")
def a_jobs(kk):
    if V3:
        sg, gm = kk >> 1, kk & 1
        so, gs = (sA0, 14 * 1024) if sg < 7 else (sA1, 4096)
        return [rot_p(sg, sD1, gm) + [f"s_lshl_b32 {s(sD1)}, {s(sD1)}, 11", f"s_add_u32 {s(sD1)}, {s(sD1)}, {s(so)}"] + ([f"s_add_u32 {s(sD1)}, {s(sD1)}, {gs}"] if gm else []) +
                [f"buffer_load_dwordx4 {v(AF3(kk,0),4)}, {v(VA3)}, {s(SWS,4)}, {s(sD1)} offen sc1"],
                [f"buffer_load_dwordx4 {v(AF3(kk,1),4)}, {v(VA3)}, {s(SWS,4)}, {s(sD1)} offen offset:256 sc1"]]
    so = sA0 if kk < 14 else sA1
    if V2: return [rot_k(kk, sD1) + [f"s_lshl_b32 {s(sD1)}, {s(sD1)}, 10", f"s_add_u32 {s(sD1)}, {s(sD1)}, {s(so)}",
             f"buffer_load_dwordx4 {v(AF2(kk),4)}, {v(VL16)}, {s(SWS,4)}, {s(sD1)} offen sc1"] +
             ([f"s_xor_b32 {s(sD1)}, {s(sD1)}, 0x8000", f"buffer_load_dwordx4 v[252:255], {v(VL16)}, {s(SWS,4)}, {s(sD1)} offen sc1 ; nodef"] if OPT.get("dbla") and kk != 15 else [])]
    return [rot_k(kk, sD1) + [f"s_lshl_b32 {s(sD1)}, {s(sD1)}, 10", f"s_add_u32 {s(sD1)}, {s(sD1)}, {s(so)}",
             f"buffer_load_dwordx4 {v(AFq(kk,0),4)}, {v(VL16)}, {s(SWS,4)}, {s(sD1)} offen sc1"],
            [f"s_add_u32 {s(sD1)}, {s(sD1)}, {HF_RB}",
             f"buffer_load_dwordx4 {v(AFq(kk,1),4)}, {v(VL16)}, {s(SWS,4)}, {s(sD1)} offen sc1"]]
def vcheck(regs, t):
    L = [f"v_max3_u32 {v(t)}, {v(regs[0])}, {v(regs[1])}, {v(regs[2])}"]; r = regs[3:]
    while len(r) >= 2: L.append(f"v_max3_u32 {v(t)}, {v(t)}, {v(r[0])}, {v(r[1])}"); r = r[2:]
    if r: L.append(f"v_max_u32 {v(t)}, {v(t)}, {v(r[0])}")
    return L + [f"v_cmp_eq_u32 vcc, -1, {v(t)}"]
SLOW = []
def validate(regs, t, reload):
    lb = P.lab("L_v")
    P.add(vcheck(regs, t))
    P(f"s_cbranch_vccnz {lb}_slow")
    P(f"{lb}_back:")
    dbg = [f"s_add_u32 {s(sST+2*STI['slow'])}, {s(sST+2*STI['slow'])}, {1 << len(SLOW)}"] if STAMP and "slow" in STI else []
    SLOW.append([f"{lb}_slow:"] + dbg + [f"s_mov_b32 {s(sCNT)}, 0", f"{lb}_loop:", "s_sleep 2"] + reload + ["s_waitcnt vmcnt(0)"] + vcheck(regs, t) +
                [f"s_add_u32 {s(sCNT)}, {s(sCNT)}, 1", f"s_cbranch_vccz {lb}_back", f"s_cmp_gt_u32 {s(sCNT)}, {SPIN_MAX}",
                 f"s_cbranch_scc0 {lb}_loop", f"s_branch {lb}_back"])
def flush_slow():
    for blk in SLOW:
        P(".reset"); P.add(blk)
    SLOW.clear()
def spoll(o):
    x = f"s_buffer_load_dwordx4 {s(sPL,4)}, {s(SWS,4)}, {s(sFL)} offset:{0 if o else 1024} glc"
    if V3: x = f"s_buffer_load_dwordx8 {s(sPL,8)}, {s(SWS,4)}, {s(sFL)} offset:{0 if o else 1024} glc"
    return x
def sneed(level, o):
    lb = P.lab("L_sp")
    P(f"s_mov_b32 {s(sCNT)}, 0")
    P(f"{lb}:")
    P("s_waitcnt lgkmcnt(0)")
    P(f"s_min_u32 {s(sPL)}, {s(sPL)}, {s(sPL+1)}\ns_min_u32 {s(sPL+2)}, {s(sPL+2)}, {s(sPL+3)}\ns_min_u32 {s(sPL)}, {s(sPL)}, {s(sPL+2)}")
    if V3:
        for i in range(4, 8): P(f"s_min_u32 {s(sPL)}, {s(sPL)}, {s(sPL+i)}")
    P(f"s_cmp_ge_u32 {s(sPL)}, {level}")
    P(f"s_cbranch_scc1 {lb}_ok")
    P(f"s_add_u32 {s(sCNT)}, {s(sCNT)}, 1\ns_cmp_gt_u32 {s(sCNT)}, {SPIN_MAX}")
    P(f"s_cbranch_scc1 {lb}_ok")
    P("s_sleep 1")
    for x in spoll(o).split("\n"):
        I = Ins(x); I.kind = "salu"; P.ins.append(I)
    P(f"s_branch {lb}")
    P(f"{lb}_ok:")
def own_check():
    lb = P.lab("L_oc")
    P(f"s_mov_b32 {s(sCNT)}, 0")
    P(f"{lb}:")
    P("s_waitcnt lgkmcnt(0)")
    P(f"s_cmp_ge_u32 {s(sK)}, 1")
    P(f"s_cbranch_scc1 {lb}_ok")
    P(f"s_add_u32 {s(sCNT)}, {s(sCNT)}, 1\ns_cmp_gt_u32 {s(sCNT)}, {SPIN_MAX}")
    P(f"s_cbranch_scc1 {lb}_ok")
    P("s_sleep 1")
    I = Ins(f"s_buffer_load_dword {s(sK)}, {s(SWS,4)}, {s(sT2)} glc"); I.kind = "salu"; P.ins.append(I)
    P(f"s_branch {lb}")
    P(f"{lb}_ok:")
def b_reads(kk):
    slot = kk % 9
    var, off = (KAREA[slot] >> 16), KAREA[slot] & 0xffff
    return [f".waitvm b{kk}"] + [f"ds_read_b64_tr_b16 {v(BTq(kk,nb)+2*tt,2)}, {v(BA+2*var+nb)} offset:{off+1024*tt}" for nb in range(2) for tt in range(2)]
def finish(ffn):
    if OPT.get("echo") and OPT.get("echot", "fa").find("f" if ffn else "a") < 0: pass
    elif OPT.get("echo"):
        a_, b_ = [STI[x] for x in OPT["echo"].split(",")]
        lb = P.lab("L_echo")
        stamp("end")
        P("s_waitcnt lgkmcnt(0)")
        P(f"s_sub_u32 {s(sT0)}, {s(sST+2*b_)}, {s(sST+2*a_)}")
        if STAMP == 2:
            P(f"s_lshr_b32 {s(sT0)}, {s(sT0)}, 4\ns_memrealtime {s(sST+22,2)}\ns_waitcnt lgkmcnt(0)")
        P(f"s_min_u32 {s(sT0)}, {s(sT0)}, 10000")
        P(f"{lb}:")
        P(f"s_memrealtime {s(sEX,2)}")
        P("s_waitcnt lgkmcnt(0)")
        P(f"s_sub_u32 {s(sT1)}, {s(sEX)}, {s(sST+22)}\ns_cmp_lt_u32 {s(sT1)}, {s(sT0)}\ns_cbranch_scc1 {lb}")
    elif STAMP:
        stamp("end")
        P("s_waitcnt lgkmcnt(0)")
        P(f"s_lshl_b32 {s(sT0)}, s2, 3\ns_add_u32 {s(sT0)}, {s(sT0)}, {s(sW)}\ns_lshl_b32 {s(sT0)}, {s(sT0)}, 6\ns_add_u32 {s(sT0)}, {s(sT0)}, {WS_STAMP}")
        P(f"v_mov_b32 v2, 0\ns_mov_b64 exec, 1")
        for i in range(12):
            P(f"v_mov_b32 v3, {s(sST+2*i)}\nbuffer_store_dword v3, v2, {s(SWS,4)}, {s(sT0)} offen offset:{4*i}")
    P("s_endpgm")
    flush_slow()

def phase2_v2(bleft, ffn):
    BAR = [2, 3, 4, 5, 6, 7, 8, 9, 10, 11, 14, 15]; VX = 16
    WB = [20, 21, 22]; RBs = [23, 24, 25]; PX = BAUG
    t = T + 8
    XR, B2R = (SEL, AAUG) if XRG else (32, 36)
    if XRG and ffn:
        for i in range(4): P(f"v_mov_b32 {v(SEL+i)}, {v(PZ+i)}")
    P(f"v_bfe_u32 {v(t)}, {v(vL)}, 2, 2\nv_lshrrev_b32 {v(t+1)}, 5, {v(vL)}\nv_and_b32 {v(t+2)}, 63, {v(AW)}\ns_lshl_b32 {s(sT0)}, {s(sHALF)}, 5\nv_xor_b32 {v(t+2)}, {s(sT0)}, {v(t+2)}")
    P(f"v_lshl_add_u32 {v(t+3)}, {v(t+1)}, 2, {v(t)}\nv_lshl_add_u32 {v(t+3)}, {v(t+3)}, 8, {v(t+2)}\ns_lshl_b32 {s(sT0)}, {s(sHALF)}, 13\nv_add_u32 {v(t+3)}, {s(sT0)}, {v(t+3)}")
    P(f"v_xor_b32 {v(t)}, {s(sM)}, {v(t)}\nv_lshl_add_u32 {v(BAR[0])}, {v(t)}, 6, {v(t+3)}")
    for nb in range(1, 4): P(f"v_xor_b32 {v(BAR[nb])}, {64*nb}, {v(BAR[0])}")
    for rg in (2, 1):
        for nb in range(4): P(f"v_add_u32 {v(BAR[4*rg+nb])}, {65536*rg}, {v(BAR[nb])}")
    LP = int(OPT.get("lp", 2))
    SQ = int(OPT.get("sq", 12))
    seq = [(kk, nb) for kk in range(SQ) for nb in range(4) if nb or kk < LP]
    done_at = {}
    for nb in (1, 2, 3):
        seq += [(kk, nb) for kk in range(SQ, 18)]; done_at[nb] = len(seq)
    seq += [(kk, 0) for kk in range(LP, 18)]
    D = 4
    def bq(i): return XF + 8 * (i & 7)
    def br(i):
        kk, nb = seq[i]; a = KAREA[kk >> 1]
        return [f"ds_read_b64_tr_b16 {v(bq(i)+2*tt,2)}, {v(BAR[4*(a>>16)+nb])} offset:{(a&0xffff)+(kk&1)*4096+2048*tt}" for tt in range(2)]
    def val(kk):
        if not (NP and kk < 14): validate([AF2(kk) + i for i in range(4)], T + 16, a_jobs(kk)[0])
    for i in range(D): P.add(br(i))
    val(0)
    stamp("hseen")
    first = {}
    for i, (kk, nb) in enumerate(seq): first.setdefault(kk, i)
    ev = {}
    def at(i, x): ev.setdefault(i, []).append(x)
    sh = 8 - LP
    a8, a14 = int(OPT.get("a8", 14)), int(OPT.get("a14", 30 - sh))
    for i, g_ in enumerate(sum([b_dma(k2) for k2 in bleft], [])): at(int(OPT.get('bst', 1)) * i + (0 if ffn else int(OPT.get('b0a', 0))), g_)
    gates = {}
    if NP:
        if ffn:
            g2i = int(OPT.get("g2", 7)); a8 = int(OPT.get("g3f", 23 - sh))
            at(0, [spoll(0)]); gates[g2i] = 2
            for k2 in range(4, 8): at(g2i + k2 - 4, a_jobs(k2)[0])
            at(int(OPT.get("f3", 5)), flag(3, "h4"))
            a14 = max(a14, a8 + 6)
        else:
            a8 = int(OPT.get("g3a", 18 - sh // 2)); g2i = int(OPT.get("g2a", 2)); gates[g2i] = 2
            for k2 in range(4, 8): at(g2i + k2 - 4, a_jobs(k2)[0])
        at(a8 - int(OPT.get("gl", 4)), [spoll(0)]); gates[a8] = 3
    ast = int(OPT.get('ast', 1))
    ea = 0 if ffn or NP else int(OPT.get('ea', 0))
    for k2 in range(8 + ea, 14): at(a8 + ast * (k2 - 8), a_jobs(k2)[0])
    if ea and OPT.get('a14a'): a14 = int(OPT['a14a'])
    for k2 in range(14, 18): at(a14 + ast * (k2 - 14), a_jobs(k2)[0])
    F = T + 8
    at(9, lines(f"v_and_b32 {v(T+17)}, 31, {v(vL)}\nv_lshrrev_b32 {v(T+18)}, 5, {v(vL)}\nv_lshlrev_b32 {v(T+18)}, 4, {v(T+18)}\nv_lshl_add_u32 {v(VX)}, {v(T+17)}, 10, {v(T+18)}") +
          ([] if XRG else [f"buffer_load_dwordx4 {v(XR,4)}, {v(VX)}, {s(SX,4)}, {s(sOo)} offen"]) + [f"buffer_load_dwordx4 {v(B2R,4)}, {v(T+18)}, {s(SB2,4)}, {s(sN)} offen"])
    at(24, lines(f"v_add_u32 {v(WB[0])}, {s(sM0x)}, {v(VL16)}\nv_xor_b32 {v(RBs[0])}, 8192, {v(WB[0])}") +
           sum([[f"v_add_u32 {v(WB[rg])}, {65536*rg}, {v(WB[0])}", f"v_add_u32 {v(RBs[rg])}, {65536*rg}, {v(RBs[0])}"] for rg in (1, 2)], []))
    for i in range(4):
        at(40 + i, lines(f"v_lshlrev_b32 {v(F+2*i)}, 16, {v(XR+i)}\nv_and_b32 {v(F+2*i+1)}, 0xffff0000, {v(XR+i)}\nv_lshlrev_b32 {v(T+4)}, 16, {v(B2R+i)}\nv_and_b32 {v(T+5)}, 0xffff0000, {v(B2R+i)}\nv_add_f32 {v(F+2*i)}, {v(F+2*i)}, {v(T+4)}\nv_add_f32 {v(F+2*i+1)}, {v(F+2*i+1)}, {v(T+5)}"))
    px1 = OPT.get("px1") == "1" or (bool(OPT.get("pxa", "1")) and not ffn)
    if not px1:
        pxi = int(OPT.get("pxi", (12 if ffn else a8 + 6) if NP else a8 + 6))
        if not ffn and OPT.get("pxia"): pxi = int(OPT["pxia"])
        at(pxi - 1, [f"v_mov_b32 {v(PX+i)}, -1" for i in range(4)])
        for j in (1, 2, 3): at(pxi + (j - 1) * int(OPT.get("pxs", 1)), xoff(j, True) + [f"buffer_store_dwordx4 {v(PX,4)}, {v(VL16)}, {s(SWS,4)}, {s(sT0)} offen sc1 ; tag=px"])
    at(int(OPT.get("fx", 8 if px1 else 48 - sh)), flag(4, "px"))
    if OPT.get("wb"):
        lbw = P.lab("L_wb")
        at(int(OPT["wb"]), [f"s_lshr_b32 {s(sT0)}, s2, 3", f"s_and_b32 {s(sT0)}, {s(sT0)}, {OPT.get('wbm', 23)}", f"s_or_b32 {s(sT0)}, {s(sT0)}, {s(sW)}", f"s_cbranch_scc1 {lbw}", "buffer_wbl2 sc1", f"{lbw}:"])
    bar_i = first[min(12, 2 * bleft[0])] - D
    RG = [KAREA[0], L_KVB, KAREA[0], L_KVB] if LP < 8 else KAREA
    def wr(nb): a = RG[nb]; return [f"ds_write_b128 {v(WB[a>>16])}, {v(AC+16*nb+8+4*q,4)} offset:{(a&0xffff)+1024*q}" for q in range(2)]
    def rdp(nb): a = RG[nb]; return [f"ds_read_b128 {v(AC+16*nb+8+4*q,4)}, {v(RBs[a>>16])} offset:{(a&0xffff)+1024*q}" for q in range(2)]
    def add(nb, pk): c = AC + 16 * nb; return [f"v_pk_add_f32 {v(c+i,2)}, {v(c+i,2)}, {v(c+8+i,2)}" for i in range(0, 8, 2)] if pk else [f"v_add_f32 {v(c+i)}, {v(c+i)}, {v(c+8+i)}" for i in range(8)]
    def snd(nb): c = AC + 16 * nb; return [f"v_cvt_pk_bf16_f32 {v(c+8+i)}, {v(c+2*i)}, {v(c+2*i+1)}" for i in range(4)] + xoff(nb, True) + [f"buffer_store_dwordx4 {v(c+8,4)}, {v(VL16)}, {s(SWS,4)}, {s(sT0)} offen sc1"]
    VPF, VPA = PX, PX + 1
    pf = f"buffer_load_dword {v(VPF)}, {v(VPA)}, {s(SWS,4)}, 0 offen sc1"
    at(38 if px1 else done_at[3] + 3, lines(f"v_and_b32 {v(VPA)}, 3, {v(vL)}\nv_lshlrev_b32 {v(VPA)}, 8, {v(VPA)}\nv_xor_b32 {v(VPA)}, {s(sFO)}, {v(VPA)}") + [pf])
    PS = OPT.get("ps", "0") == "1"
    VFW, VFR, VFT = 26, 18, 19
    chk = {}
    if PS:
        assert LP >= 4
        RG[1] = RG[3] = KAREA[1]
        at(bar_i - 8, lines(f"s_lshl_b32 {s(sT0)}, {s(sW)}, 2\ns_add_u32 {s(sT0)}, {s(sT0)}, {L_ST}\nv_mov_b32 {v(VFW)}, {s(sT0)}\nv_xor_b32 {v(VFR)}, 16, {v(VFW)}\nds_write_b32 {v(VFW)}, {v(VZ)}"))
        def wrf(nb, lv): return wr(nb) + [f"v_mov_b32 {v(VFT)}, {lv}", f"ds_write_b32 {v(VFW)}, {v(VFT)}"]
        def rdf(nb): return [f"ds_read_b32 {v(VFT)}, {v(VFR)}"] + rdp(nb)
        def check(nb, lv):
            lb = P.lab("L_ps")
            P(f"v_cmp_gt_u32 vcc, {lv}, {v(VFT)}")
            P(f"s_cbranch_vccnz {lb}_slow")
            P(f"{lb}_back:")
            SLOW.append([f"{lb}_slow:", f"s_mov_b32 {s(sCNT)}, 0", f"{lb}_loop:"] + rdf(nb) + ["s_waitcnt lgkmcnt(0)", f"v_cmp_gt_u32 vcc, {lv}, {v(VFT)}",
                         f"s_add_u32 {s(sCNT)}, {s(sCNT)}, 1", f"s_cbranch_vccz {lb}_back", f"s_cmp_gt_u32 {s(sCNT)}, {SPIN_MAX * 16}", f"s_cbranch_scc0 {lb}_loop", f"s_branch {lb}_back"])
        dl = int(OPT.get("psd", 2))
        for nb in (1, 2, 3):
            e = done_at[nb]
            at(e + 1, wrf(nb, nb)); at(e + 1 + dl, rdf(nb)); chk[e + 2 + dl] = nb; at(e + 2 + dl, add(nb, False) + snd(nb))
        at(done_at[3] + 2 + dl, stamp_i("xs"))
    elif SQ < 18:
        for nb in (1, 2, 3):
            e = done_at[nb]
            at(e + 1, wr(nb)); at(e + 2, ["s_waitcnt lgkmcnt(2)", "s_barrier"] + rdp(nb)); at(e + 4, add(nb, False) + snd(nb))
        at(done_at[3] + 4, stamp_i("xs"))
    else:
        e = done_at[3]
        at(e, wr(1) + wr(2)); at(e + 1, wr(3) + ["s_waitcnt lgkmcnt(0)", "s_barrier"] + rdp(1) + rdp(2) + rdp(3))
        for nb in (1, 2, 3): at(e + 1 + nb, add(nb, False) + snd(nb))
        at(e + 4, stamp_i("xs"))
    R = XF + 64 - 4 if False else None
    RQ = [None, XF + 64, XF + 72, XF + 80]
    rl = sum([xoff(j, False) + [f"buffer_load_dwordx4 {v(RQ[j],4)}, {v(VL16)}, {s(SWS,4)}, {s(sT0)} offen sc1"] for j in range(1, 4)], [])
    ri = int(OPT.get("ri", 99))
    seen = set()
    for i, (kk, nb) in enumerate(seq):
        q2 = int(OPT.get("q2", 4))
        if q2 and i % q2 == 0: P(f"s_setprio {3 - ((i // q2) & 3)}")
        P(mfma(AC + 16 * nb, bq(i), AF2(kk), None if nb in seen else "0")); seen.add(nb)
        if i == bar_i: P(".waitvm b8"); P("s_barrier")
        if i + D < len(seq): P.add(br(i + D))
        if i + 2 < len(seq) and first[seq[i + 2][0]] == i + 2: val(seq[i + 2][0])
        if i in gates: sneed(gates[i], 0)
        if i in chk: check(chk[i], chk[i])
        for x in ev.pop(i, []): P.add(x)
        if i == len(seq) - 1 - ri:
            P(f"v_mov_b32 {v(VPF)}, {v(VPF)}")
            spin(P.lab("L_pf"), pf, f"v_cmp_gt_u32 vcc, 4, {v(VPF)}")
            P.add(rl)
        if i + 1 < len(seq) and first[seq[i + 1][0]] == i + 1: stamp(f"k{kk}")
    assert not ev, ev.keys()
    stamp("p2mm")
    P("s_setprio 0")
    P.add(wrf(0, 4) if PS else wr(0))
    if ri >= len(seq):
        P(f"v_mov_b32 {v(VPF)}, {v(VPF)}")
        spin(P.lab("L_pf"), pf, f"v_cmp_gt_u32 vcc, 4, {v(VPF)}")
    if PS:
        if ri >= len(seq): P.add(rl)
        P.add(rdf(0)); check(0, 4)
    else:
        P("s_waitcnt lgkmcnt(0)")
        P("s_barrier")
        P.add(rdp(0))
        if ri >= len(seq): P.add(rl)
    P.add(add(0, True))
    validate([RQ[j] + i for j in (1, 2, 3) for i in range(4)], T + 16, rl)
    stamp("xr")
    P(f"s_mov_b32 {s(sT0)}, 0x3f80\ns_mov_b32 {s(sT1)}, 0x3f800000")
    for j in range(1, 4):
        for i in range(4): P(f"v_dot2c_f32_bf16 {v(AC+2*i)}, {s(sT0)}, {v(RQ[j]+i)}\nv_dot2c_f32_bf16 {v(AC+2*i+1)}, {s(sT1)}, {v(RQ[j]+i)}")
    for i in range(4): P(f"v_permlane32_swap_b32 {v(AC+i)}, {v(AC+4+i)}")
    for i in range(0, 8, 2): P(f"v_pk_add_f32 {v(F+i,2)}, {v(F+i,2)}, {v(AC+i,2)}")
    for i in range(4): P(f"v_cvt_pk_bf16_f32 {v(XR+i)}, {v(F+2*i)}, {v(F+2*i+1)}")
    P(f"buffer_store_dwordx4 {v(XR,4)}, {v(VX)}, {s(SOUT,4)}, {s(sOo)} offen")
    finish(ffn)

def phase2_v5(bleft, ffn):
    BAR = [2, 3, 4, 5, 6, 7, 8, 9, 10, 11, 14, 15]; VX = 16; BO = [19, 26]
    WB = [20, 21, 22]; RBs = [23, 24, 25]; PX = BAUG
    VOF, VOA, VOP, VOV = 40, 41, 42, 43
    t = T + 8
    P(f"v_bfe_u32 {v(t)}, {v(vL)}, 2, 2\nv_lshrrev_b32 {v(t+1)}, 5, {v(vL)}\nv_and_b32 {v(t+2)}, 63, {v(AW)}\ns_lshl_b32 {s(sT0)}, {s(sHALF)}, 5\nv_xor_b32 {v(t+2)}, {s(sT0)}, {v(t+2)}")
    P(f"s_lshl_b32 {s(sT0)}, {s(sHALF)}, 13\nv_add_u32 {v(t+2)}, {s(sT0)}, {v(t+2)}\nv_lshl_add_u32 {v(t+4)}, {v(t+1)}, 2, {v(t)}\nv_lshl_add_u32 {v(t+3)}, {v(t+4)}, 8, {v(t+2)}")
    P(f"v_xor_b32 {v(t)}, {s(sM)}, {v(t)}\nv_lshl_add_u32 {v(BAR[0])}, {v(t)}, 6, {v(t+3)}")
    for nb in range(1, 4): P(f"v_xor_b32 {v(BAR[nb])}, {64*nb}, {v(BAR[0])}")
    for rg in (2, 1):
        for nb in range(4): P(f"v_add_u32 {v(BAR[4*rg+nb])}, {65536*rg}, {v(BAR[nb])}")
    bo_init = [f"v_lshl_add_u32 {v(t+4)}, {v(t+4)}, 6, {v(t+2)}"] + [f"v_add_u32 {v(BO[k])}, {KAREA[7+k]}, {v(t+4)}" for k in range(2)]
    LP = 2; SQ = int(OPT.get("sq", 8)); D = 4
    seq = [(kk, nb) for kk in range(SQ) for nb in range(4) if nb or kk < LP]
    done_at = {}
    for nb in (1, 2, 3):
        seq += [(kk, nb) for kk in range(SQ, 14)]; done_at[nb] = len(seq)
    seq += [(kk, 0) for kk in range(LP, 30)]
    def bq(i): return XF + 8 * (i & 7)
    def AFx(kk):
        if kk < 18: return AF2(kk)
        if kk < 26: return XF + 64 + 8 * (kk - 18)
        return AC + 16 + 4 * (kk - 26)
    def br(i):
        kk, nb = seq[i]
        if kk >= 14:
            j = kk - 14
            return [f"ds_read_b64_tr_b16 {v(bq(i)+2*tt,2)}, {v(BO[j>>3])} offset:{(j&7)*1024+512*tt}" for tt in range(2)]
        a = KAREA[kk >> 1]
        return [f"ds_read_b64_tr_b16 {v(bq(i)+2*tt,2)}, {v(BAR[4*(a>>16)+nb])} offset:{(a&0xffff)+(kk&1)*4096+2048*tt}" for tt in range(2)]
    def o_job(j): return [f"s_add_u32 {s(sD1)}, {s(sWq)}, {j}", f"s_and_b32 {s(sD1)}, {s(sD1)}, 15", f"s_lshl_b32 {s(sD1)}, {s(sD1)}, 10", f"s_add_u32 {s(sD1)}, {s(sD1)}, {s(sA1)}",
                          f"buffer_load_dwordx4 {v(AFx(14+j),4)}, {v(VL16)}, {s(SWS,4)}, {s(sD1)} offen sc1"]
    for i in range(D): P.add(br(i))
    stamp("hseen")
    first = {}
    for i, (kk, nb) in enumerate(seq): first.setdefault(kk, i)
    ev = {}; gates = {}; act = {}
    def at(i, x): ev.setdefault(i, []).append(x)
    at(0, bo_init)
    for i, g_ in enumerate(sum([b_dma(k2) for k2 in bleft], [])): at(i, g_)
    if ffn:
        g2i = int(OPT.get("g2", 8)); a8 = int(OPT.get("g3f", 20))
        at(0, [spoll(0)]); at(int(OPT.get("f3", 7)), flag(3, "h4"))
    else: g2i = int(OPT.get("g2a", 2)); a8 = int(OPT.get("g3a", 12))
    one = (not ffn) and OPT.get("one", "1") == "1"
    if one: gates[g2i] = 3; a8 = g2i + 4
    else: gates[g2i] = 2; gates[a8] = 3
    for k2 in range(4, 8): at(g2i + k2 - 4, a_jobs(k2)[0])
    if not one: at(max(a8 - int(OPT.get("gl", 4)), g2i), [spoll(0)])
    for k2 in range(8, 14): at(a8 + k2 - 8, a_jobs(k2)[0])
    F = T + 8
    at(9, lines(f"v_and_b32 {v(T+17)}, 31, {v(vL)}\nv_lshrrev_b32 {v(T+18)}, 5, {v(vL)}\nv_lshlrev_b32 {v(T+18)}, 4, {v(T+18)}\nv_lshl_add_u32 {v(VX)}, {v(T+17)}, 10, {v(T+18)}") +
          [f"buffer_load_dwordx4 {v(XR,4)}, {v(VX)}, {s(SX,4)}, {s(sOo)} offen", f"buffer_load_dwordx4 {v(B2R,4)}, {v(T+18)}, {s(SB2,4)}, {s(sN)} offen"])
    at(20, lines(f"v_add_u32 {v(WB[0])}, {s(sM0x)}, {v(VL16)}\nv_xor_b32 {v(RBs[0])}, 8192, {v(WB[0])}") +
           sum([[f"v_add_u32 {v(WB[rg])}, {65536*rg}, {v(WB[0])}", f"v_add_u32 {v(RBs[rg])}, {65536*rg}, {v(RBs[0])}"] for rg in (1, 2)], []))
    for i in range(4):
        at(50 + i, lines(f"v_lshlrev_b32 {v(F+2*i)}, 16, {v(XR+i)}\nv_and_b32 {v(F+2*i+1)}, 0xffff0000, {v(XR+i)}\nv_lshlrev_b32 {v(T+4)}, 16, {v(B2R+i)}\nv_and_b32 {v(T+5)}, 0xffff0000, {v(B2R+i)}\nv_add_f32 {v(F+2*i)}, {v(F+2*i)}, {v(T+4)}\nv_add_f32 {v(F+2*i+1)}, {v(F+2*i+1)}, {v(T+5)}"))
    if ffn:
        pxi = int(OPT.get("pxi", 13))
        at(pxi - 1, [f"v_mov_b32 {v(PX+i)}, -1" for i in range(4)])
        for j in (1, 2, 3): at(pxi + j - 1, xoff(j, True) + [f"buffer_store_dwordx4 {v(PX,4)}, {v(VL16)}, {s(SWS,4)}, {s(sT0)} offen sc1 ; tag=px"])
    at(done_at[1] if ffn else 8, flag(4, "px"))
    bar_i = first[12] - D
    RG = [KAREA[0], L_KVB, KAREA[0], L_KVB]
    def wr(nb): a = RG[nb]; return [f"ds_write_b128 {v(WB[a>>16])}, {v(AC+16*nb+8+4*q,4)} offset:{(a&0xffff)+1024*q}" for q in range(2)]
    def rdp(nb): a = RG[nb]; return [f"ds_read_b128 {v(AC+16*nb+8+4*q,4)}, {v(RBs[a>>16])} offset:{(a&0xffff)+1024*q}" for q in range(2)]
    def add(nb, pk): c = AC + 16 * nb; return [f"v_pk_add_f32 {v(c+i,2)}, {v(c+i,2)}, {v(c+8+i,2)}" for i in range(0, 8, 2)] if pk else [f"v_add_f32 {v(c+i)}, {v(c+i)}, {v(c+8+i)}" for i in range(8)]
    def snd(nb): c = AC + 16 * nb; return [f"v_cvt_pk_bf16_f32 {v(c+8+i)}, {v(c+2*i)}, {v(c+2*i+1)}" for i in range(4)] + xoff(nb, True) + [f"buffer_store_dwordx4 {v(c+8,4)}, {v(VL16)}, {s(SWS,4)}, {s(sT0)} offen sc1"]
    for nb in (1, 2, 3):
        e = done_at[nb]
        at(e + 1, wr(nb)); at(e + 2, ["s_waitcnt lgkmcnt(2)", "s_barrier"] + rdp(nb)); at(e + 4, add(nb, False) + snd(nb))
    at(done_at[3] + 4, stamp_i("xs"))
    of = f"buffer_load_dword {v(VOF)}, {v(VOA)}, {s(SWS,4)}, 0 offen sc1"
    op = f"buffer_load_dword {v(VOV)}, {v(VOP)}, {s(SWS,4)}, {s(sA1)} offen sc1"
    at(7, lines(f"s_andn2_b32 {s(sT0)}, {s(sFL)}, 0x380\ns_lshl_b32 {s(sT1)}, {s(sHALF)}, 9\ns_add_u32 {s(sT0)}, {s(sT0)}, {s(sT1)}\nv_and_b32 {v(VOA)}, 3, {v(vL)}\nv_lshlrev_b32 {v(VOA)}, 7, {v(VOA)}\nv_and_b32 {v(VOP)}, 12, {v(vL)}\nv_add_u32 {v(VOA)}, {v(VOA)}, {v(VOP)}\nv_add_u32 {v(VOA)}, {s(sT0)}, {v(VOA)}\nv_and_b32 {v(VOP)}, 15, {v(vL)}\nv_lshlrev_b32 {v(VOP)}, 10, {v(VOP)}") + [of])
    ao = int(OPT.get("aof", done_at[3] + 6)) if ffn else int(OPT.get("aoa", 24))
    PROBE = ffn or OPT.get("pra") == "1"
    def ogate():
        P(f"v_mov_b32 {v(VOF)}, {v(VOF)}")
        spin(P.lab("L_of"), of, f"v_cmp_gt_u32 vcc, 1, {v(VOF)}")
        if PROBE:
            P(f"v_mov_b32 {v(VOV)}, -1")
            spin(P.lab("L_op"), op, f"v_cmp_eq_u32 vcc, -1, {v(VOV)}")
    act[ao] = ogate
    i_ = ao; per = 3 if ffn else 1
    for j in range(16):
        if j >= 12: i_ = max(i_, done_at[1] + 6)
        at(i_, o_job(j))
        if (j + 1) % per == 0: i_ += 1
    assert i_ <= first[14] - 1 + (6 if ffn else 0), (i_, first[14])
    VPF, VPA = PX, PX + 1
    pf = f"buffer_load_dword {v(VPF)}, {v(VPA)}, {s(SWS,4)}, 0 offen sc1"
    at(done_at[3] + 3, lines(f"v_and_b32 {v(VPA)}, 3, {v(vL)}\nv_lshlrev_b32 {v(VPA)}, 8, {v(VPA)}\nv_xor_b32 {v(VPA)}, {s(sFO)}, {v(VPA)}") + [pf])
    RQ = [None, AC + 32, AC + 36, AC + 44]
    rl = sum([xoff(j, False) + [f"buffer_load_dwordx4 {v(RQ[j],4)}, {v(VL16)}, {s(SWS,4)}, {s(sT0)} offen sc1"] for j in range(1, 4)], [])
    def recv():
        P(f"v_mov_b32 {v(VPF)}, {v(VPF)}")
        spin(P.lab("L_pf"), pf, f"v_cmp_gt_u32 vcc, 4, {v(VPF)}")
        P.add(rl)
    ri = len(seq) - 1 - int(OPT.get("ri", 8))
    VG_ = int(OPT.get("vg", 4))
    seen = set()
    for i, (kk, nb) in enumerate(seq):
        if i % 4 == 0: P(f"s_setprio {3 - ((i >> 2) & 3)}")
        P(mfma(AC + 16 * nb, bq(i), AFx(kk), None if nb in seen else "0")); seen.add(nb)
        if i == bar_i: P(".waitvm b8"); P("s_barrier")
        if i + D < len(seq): P.add(br(i + D))
        if i in gates: sneed(gates[i], 0)
        if i in act: act[i]()
        for x in ev.pop(i, []): P.add(x)
        if i + 1 < len(seq) and seq[i + 1][0] >= 14 and (seq[i + 1][0] - 14) % VG_ == 0:
            j0 = seq[i + 1][0] - 14
            validate([AFx(14 + j) + r for j in range(j0, j0 + VG_) for r in range(4)], T + 16, sum([o_job(j) for j in range(j0, 16)], []))
        if i == ri: recv()
        if i + 1 < len(seq) and first[seq[i + 1][0]] == i + 1: stamp(f"k{kk}")
    assert not ev, ev.keys()
    stamp("p2mm")
    P("s_setprio 0")
    P.add(wr(0))
    P("s_waitcnt lgkmcnt(0)")
    P("s_barrier")
    P.add(rdp(0))
    validate([RQ[j] + i for j in (1, 2, 3) for i in range(4)], T + 16, rl)
    stamp("xr")
    P(f"s_mov_b32 {s(sT0)}, 0x3f80\ns_mov_b32 {s(sT1)}, 0x3f800000")
    for j in range(1, 4):
        for i in range(4): P(f"v_dot2c_f32_bf16 {v(AC+2*i)}, {s(sT0)}, {v(RQ[j]+i)}\nv_dot2c_f32_bf16 {v(AC+2*i+1)}, {s(sT1)}, {v(RQ[j]+i)}")
    P.add(add(0, True))
    for i in range(4): P(f"v_permlane32_swap_b32 {v(AC+i)}, {v(AC+4+i)}")
    for i in range(0, 8, 2): P(f"v_pk_add_f32 {v(F+i,2)}, {v(F+i,2)}, {v(AC+i,2)}")
    for i in range(4): P(f"v_cvt_pk_bf16_f32 {v(XR+i)}, {v(F+2*i)}, {v(F+2*i+1)}")
    P(f"buffer_store_dwordx4 {v(XR,4)}, {v(VX)}, {s(SOUT,4)}, {s(sOo)} offen")
    finish(ffn)

def phase2_v3(bleft, aleft, ffn):
    BAR = [2, 3, 4, 5, 6, 7, 8, 9, 10, 11, 18, 19]; VX = 16; PX = BAUG
    t = T + 8
    P(f"v_bfe_u32 {v(t)}, {v(vL)}, 2, 2\nv_lshrrev_b32 {v(t+1)}, 5, {v(vL)}\nv_bfe_u32 {v(t+2)}, {v(vL)}, 4, 1\nv_lshl_add_u32 {v(t+3)}, {v(t+2)}, 2, {v(t)}\nv_lshl_add_u32 {v(t+3)}, {v(t+1)}, 4, {v(t+3)}")
    P(f"v_and_b32 {v(t+4)}, 63, {v(AW)}\ns_lshl_b32 {s(sT0)}, {s(sHALF)}, 5\nv_xor_b32 {v(t+4)}, {s(sT0)}, {v(t+4)}\nv_lshl_add_u32 {v(t+3)}, {v(t+3)}, 8, {v(t+4)}")
    P(f"v_xor_b32 {v(t)}, {s(sM)}, {v(t)}\nv_lshl_add_u32 {v(BAR[0])}, {v(t)}, 6, {v(t+3)}")
    for q in range(1, 4): P(f"v_xor_b32 {v(BAR[q])}, {64*q}, {v(BAR[0])}")
    for rg in (2, 1):
        for q in range(4): P(f"v_add_u32 {v(BAR[4*rg+q])}, {65536*rg}, {v(BAR[q])}")
    LP = int(OPT.get("lp", 2)); SQ = int(OPT.get("sq", 14))
    assert LP >= 2
    seq = [(st, q) for st in range(SQ) for q in range(4) if q or st < LP]
    done_at = {}
    for q in (1, 2, 3):
        seq += [(st, q) for st in range(SQ, 18)]; done_at[q] = len(seq)
    seq += [(st, 0) for st in range(LP, 18)]
    D = 4
    def bq(i): return XF + 8 * (i & 7)
    def br(i):
        st, q = seq[i]; a = KAREA[st >> 1]
        return [f"ds_read_b64_tr_b16 {v(bq(i)+2*tt,2)}, {v(BAR[4*(a>>16)+q])} offset:{(a&0xffff)+(st&1)*8192+2048*tt}" for tt in range(2)]
    def val(st): validate([AF3(st, sh) + i for sh in range(2) for i in range(4)], T + 16, sum(a_jobs(st), []))
    for i in range(D): P.add(br(i))
    val(0)
    stamp("hseen")
    first = {}
    for i, (st, q) in enumerate(seq): first.setdefault(st, i)
    ev = {}
    def at(i, x): ev.setdefault(i, []).append(x)
    a8, a14 = int(OPT.get("a8", 8)), int(OPT.get("a14", 26))
    i0 = 0
    for st in aleft: at(i0, sum(a_jobs(st), [])); i0 += 1
    for g_ in sum([b_dma(k2) for k2 in bleft], []): at(i0, g_); i0 += 1
    a8 = max(a8, i0)
    for st in range(8, 14): at(a8 + 2 * (st - 8), sum(a_jobs(st), []))
    for st in range(14, 18): at(a14 + 2 * (st - 14), sum(a_jobs(st), []))
    pxi = int(OPT.get("pxi", a8 + 12))
    at(pxi - 1, [f"v_mov_b32 {v(PX+i)}, -1" for i in range(4)])
    for j in (1, 2, 3): at(pxi + j - 1, xoff(j, True) + [f"buffer_store_dwordx4 {v(PX,4)}, {v(VL16)}, {s(SWS,4)}, {s(sT0)} offen sc1 ; tag=px"])
    at(done_at[1] - int(OPT.get("fxb", 2)), flag(2, "px"))
    F = T + 8
    at(a8 + 1, lines(f"v_and_b32 {v(T+17)}, 31, {v(vL)}\nv_lshrrev_b32 {v(T+18)}, 5, {v(vL)}\nv_lshlrev_b32 {v(T+18)}, 4, {v(T+18)}\nv_lshl_add_u32 {v(VX)}, {v(T+17)}, 10, {v(T+18)}") +
          [f"buffer_load_dwordx4 {v(XR,4)}, {v(VX)}, {s(SX,4)}, {s(sOo)} offen", f"buffer_load_dwordx4 {v(B2R,4)}, {v(T+18)}, {s(SB2,4)}, {s(sN)} offen"])
    for i in range(4):
        at(done_at[3] + 6 + i, lines(f"v_lshlrev_b32 {v(F+2*i)}, 16, {v(XR+i)}\nv_and_b32 {v(F+2*i+1)}, 0xffff0000, {v(XR+i)}\nv_lshlrev_b32 {v(T+4)}, 16, {v(B2R+i)}\nv_and_b32 {v(T+5)}, 0xffff0000, {v(B2R+i)}\nv_add_f32 {v(F+2*i)}, {v(F+2*i)}, {v(T+4)}\nv_add_f32 {v(F+2*i+1)}, {v(F+2*i+1)}, {v(T+5)}"))
    def snd(q): c = AC + 8 * q; return [f"v_cvt_pk_bf16_f32 {v(c+i)}, {v(c+2*i)}, {v(c+2*i+1)}" for i in range(4)] + xoff(q, True) + [f"buffer_store_dwordx4 {v(c,4)}, {v(VL16)}, {s(SWS,4)}, {s(sT0)} offen sc1"]
    VPF, VPA = PX, PX + 1
    pf = f"buffer_load_dword {v(VPF)}, {v(VPA)}, {s(SWS,4)}, 0 offen sc1"
    for q in (1, 2, 3): at(done_at[q] + 1, snd(q))
    at(done_at[3] + 1, stamp_i("xs"))
    at(done_at[3] + int(OPT.get("pfi", 0)), lines(f"v_and_b32 {v(VPA)}, 3, {v(vL)}\nv_lshlrev_b32 {v(VPA)}, 8, {v(VPA)}\nv_xor_b32 {v(VPA)}, {s(sFO)}, {v(VPA)}") + [pf])
    bar_i = first[12] - D
    R = AC + 8 - 4
    RQ = [None, AC + 12, AC + 20, AC + 28]
    rl = sum([xoff(j, False) + [f"buffer_load_dwordx4 {v(RQ[j],4)}, {v(VL16)}, {s(SWS,4)}, {s(sT0)} offen sc1"] for j in range(1, 4)], [])
    ri = min(done_at[3] + int(OPT.get("ri", 12)), len(seq) - 1)
    seen = set()
    for i, (st, q) in enumerate(seq):
        if i % 4 == 0: P(f"s_setprio {3 - ((i >> 2) & 3)}")
        for sh in range(2): P(m16(AC + 8 * q + 4 * sh, bq(i), AF3(st, sh), None if q in seen else "0"))
        seen.add(q)
        if i == bar_i: P(".waitvm b8"); P("s_barrier")
        if i + D < len(seq): P.add(br(i + D))
        if i + 2 < len(seq) and first[seq[i + 2][0]] == i + 2: val(seq[i + 2][0])
        for x in ev.pop(i, []): P.add(x)
        if i == ri:
            P(f"v_mov_b32 {v(VPF)}, {v(VPF)}")
            spin(P.lab("L_pf"), pf, f"v_cmp_gt_u32 vcc, 2, {v(VPF)}")
            P.add(rl)
        if i + 1 < len(seq) and first[seq[i + 1][0]] == i + 1: stamp(f"k{st}")
    assert not ev, ev.keys()
    stamp("p2mm")
    P("s_setprio 0")
    validate([RQ[j] + i for j in (1, 2, 3) for i in range(4)], T + 16, rl)
    stamp("xr")
    P(f"s_mov_b32 {s(sT0)}, 0x3f80\ns_mov_b32 {s(sT1)}, 0x3f800000")
    for j in range(1, 4):
        for i in range(4): P(f"v_dot2c_f32_bf16 {v(AC+2*i)}, {s(sT0)}, {v(RQ[j]+i)}\nv_dot2c_f32_bf16 {v(AC+2*i+1)}, {s(sT1)}, {v(RQ[j]+i)}")
    for i in range(4): P(f"v_permlane16_swap_b32 {v(AC+i)}, {v(AC+4+i)}")
    for i in range(0, 8, 2): P(f"v_pk_add_f32 {v(F+i,2)}, {v(F+i,2)}, {v(AC+i,2)}")
    for i in range(4): P(f"v_cvt_pk_bf16_f32 {v(XR+i)}, {v(F+2*i)}, {v(F+2*i+1)}")
    P(f"buffer_store_dwordx4 {v(XR,4)}, {v(VX)}, {s(SOUT,4)}, {s(sOo)} offen")
    finish(ffn)

def phase2(done=(), ordr="B6 B7 B8 B9 A4 A5 A6 A7 B10 A8 B11 A9 A10 B12 A11 B13 A12 B14 A13 B15 B16 B17 A14 A15 A16 A17", ffn=False):
    P(f"v_bfe_u32 {v(T+8)}, {v(vL)}, 2, 2\nv_lshrrev_b32 {v(T+9)}, 5, {v(vL)}\nv_and_b32 {v(T+10)}, 63, {v(AW)}")
    P(f"v_lshl_add_u32 {v(T+12)}, {v(T+9)}, 2, {v(T+8)}\nv_lshl_add_u32 {v(T+12)}, {v(T+12)}, 7, {v(T+10)}\nv_lshrrev_b32 {v(T+13)}, 1, {v(T+8)}")
    P(f"v_lshl_add_u32 {v(T+12)}, {v(T+13)}, 6, {v(T+12)}\nv_xor_b32 {v(T+13)}, 64, {v(T+12)}")
    P(f"s_add_u32 {s(sT0)}, {s(sM0x)}, 65536\ns_add_u32 {s(sT1)}, {s(sM0x)}, {RC}")
    for nb in range(2):
        P(f"v_add_u32 {v(BA+nb)}, {s(sM0x)}, {v(T+12+nb)}\nv_add_u32 {v(BA+2+nb)}, {s(sT0)}, {v(T+12+nb)}\nv_add_u32 {v(BA+4+nb)}, {s(sT1)}, {v(T+12+nb)}")
    P.add(b_reads(0))
    if OPT.get("r8", "1") == "1": validate([AFq(0, r2) + i for r2 in range(2) for i in range(4)], T + 16, sum(a_jobs(0), []))
    if OPT.get("p2prio") == "y":
        lb = P.lab("L_pr"); P(f"s_cmp_lt_u32 {s(sW)}, 4\ns_cbranch_scc1 {lb}\ns_setprio 1\n{lb}:")
    stamp("hseen")
    order = [j for j in ordr.split() if j not in done]
    jobs = []
    for j in order:
        k2 = int(j[1:]); gs = a_jobs(k2) if j[0] == "A" else b_dma(k2)
        jobs += [(j, gs[0]), (None, gs[1])]
    LEAD = int(OPT.get("lead", 3))
    first_need = min(int(j[1:]) - (0 if j[0] == "A" else 1) for j in order)
    order.sort(key=lambda j: int(j[1:]) - (0.5 if j[0] == "B" else 0)) if LEAD < 9 else None
    jobs = []
    for j in order:
        k2 = int(j[1:]); gs = a_jobs(k2) if j[0] == "A" else b_dma(k2)
        jobs += [(j, gs[0]), (None, gs[1])]
    NT = int(OPT.get("nt", 2))
    for kk in range(18 - NT):
        rem = [x for x, _ in jobs if x]
        assert f"A{kk+1}" not in rem and f"B{kk+2}" not in rem, (kk, rem)
        if OPT.get("v"): print(kk, rem, file=sys.stderr)
        pm = OPT.get("p2prio", "c")
        if pm == "c": P(f"s_setprio {3 - ((kk // int(OPT.get('p2per', 1))) & 3)}")
        br = b_reads(kk + 1) if kk + 1 < 18 else []
        for nb in range(2):
            for rb in range(2):
                mi = 2 * nb + rb
                P(mfma(AC + 16 * mi, BTq(kk, nb), AFq(kk, rb), "0" if kk == 0 else None))
                if mi == 0: P.add(br[:3])
                if mi == 1: P.add(br[3:])
                if mi == 2 and (1 if OPT.get('r8', '1') == '1' else 4) <= kk + 1 < 18:
                    if jobs and jobs[0][0] is None: P.add(jobs.pop(0)[1])
                    validate([AFq(kk + 1, r2) + i for r2 in range(2) for i in range(4)], T + 16, sum(a_jobs(kk + 1), []))
                for rep in range(2 if kk < int(OPT.get("dbl", 0)) else 1):
                    if not jobs: continue
                    j, g_ = jobs[0]
                    if j:
                        k2 = int(j[1:]); last = (nb, rb) == (1, 1)
                        free = k2 - (8 if j[0] == "A" else 9)
                        if free > kk or (free == kk and not last): continue
                        need_at = k2 - (0 if j[0] == "A" else 1)
                        if need_at > max(kk, first_need - 1) + LEAD: continue
                    jobs.pop(0); P.add(g_)
        stamp(f"k{kk}")
        if kk == 8:
            P(f"v_lshrrev_b32 {v(T+17)}, 3, {v(vL)}\nv_and_b32 {v(T+18)}, 7, {v(vL)}\nv_lshlrev_b32 {v(T+18)}, 4, {v(T+18)}\nv_lshl_add_u32 {v(VXR)}, {v(T+17)}, 10, {v(T+18)}")
            P(f"s_lshl_b32 {s(sT0)}, {s(sN)}, 7")
            P(f"buffer_load_dwordx4 {v(XR,4)}, {v(VXR)}, {s(SX,4)}, {s(sOo)} offen")
            P(f"buffer_load_dwordx4 {v(B2R,4)}, {v(T+18)}, {s(SB2,4)}, {s(sT0)} offen")
        if kk == 3:
            for q in range(4):
                P(f"v_xor_b32 {v(VWR+q)}, {64*q}, {v(VL16)}\nv_add_u32 {v(VWR+q)}, {s(sM0x)}, {v(VWR+q)}")
                P(f"v_add_u32 {v(T+q)}, 65536, {v(VWR+q)}")
            P(f"v_lshrrev_b32 {v(T+4)}, 3, {v(vL)}\ns_lshl_b32 {s(sT0)}, {s(sW34)}, 1\nv_add_u32 {v(T+4)}, {s(sT0)}, {v(T+4)}")
            P(f"v_and_b32 {v(T+5)}, 3, {v(vL)}\nv_lshlrev_b32 {v(T+6)}, 2, {v(T+5)}\nv_xor_b32 {v(T+4)}, {v(T+4)}, {v(T+6)}\nv_lshlrev_b32 {v(T+4)}, 4, {v(T+4)}\nv_and_b32 {v(T+6)}, 1, {v(T+5)}\nv_lshl_add_u32 {v(T+4)}, {v(T+6)}, 10, {v(T+4)}\nv_lshrrev_b32 {v(T+6)}, 1, {v(T+5)}\nv_lshl_add_u32 {v(T+4)}, {v(T+6)}, 14, {v(T+4)}")
            P(f"v_bfe_u32 {v(T+5)}, {v(vL)}, 2, 1\nv_lshl_add_u32 {v(T+4)}, {v(T+5)}, 16, {v(T+4)}\ns_lshl_b32 {s(sT0)}, {s(sHALF)}, 15\nv_add_u32 {v(VRED)}, {s(sT0)}, {v(T+4)}")
        F = T + 8
        if kk == 13:
            for i in range(4):
                P(f"v_lshlrev_b32 {v(F+2*i)}, 16, {v(XR+i)}\nv_and_b32 {v(F+2*i+1)}, 0xffff0000, {v(XR+i)}")
                P(f"v_lshlrev_b32 {v(T+4)}, 16, {v(B2R+i)}\nv_and_b32 {v(T+5)}, 0xffff0000, {v(B2R+i)}")
                P(f"v_add_f32 {v(F+2*i)}, {v(F+2*i)}, {v(T+4)}\nv_add_f32 {v(F+2*i+1)}, {v(F+2*i+1)}, {v(T+5)}")
    assert not jobs
    for kk in range(19 - NT, 18):
        P.add(b_reads(kk))
        validate([AFq(kk, r2) + i for r2 in range(2) for i in range(4)], T + 16, sum(a_jobs(kk), []))
    def wr(blk): return [f"ds_write_b128 {v(VWR + q if blk < 2 else T + q)}, {v(AC+16*blk+4*q,4)} offset:{(blk&1)*32768+(q>>1)*16384+(q&1)*1024}" for q in range(4)]
    pend = []
    for mi in range(4):
        for kk in range(18 - NT, 18):
            P(mfma(AC + 16 * mi, BTq(kk, mi >> 1), AFq(kk, mi & 1)))
            if kk > 18 - NT or NT == 1: P.add(pend[:2]); pend = pend[2:]
        P.add(pend); pend = wr(mi)
    stamp("p2mm")
    P.add(pend)
    P("s_waitcnt lgkmcnt(0)")
    stamp("rw")
    P("s_barrier")
    stamp("rb")
    R = XF
    for ww in range(8):
        for hf in range(2): P(f"ds_read_b128 {v(R+8*ww+4*hf,4)}, {v(VRED)} offset:{2048*ww+512*hf}")
    for ww in range(8):
        for i in range(0, 8, 2): P(f"v_pk_add_f32 {v(F+i,2)}, {v(F+i,2)}, {v(R+8*ww+i,2)}")
    for i in range(4): P(f"v_cvt_pk_bf16_f32 {v(XR+i)}, {v(F+2*i)}, {v(F+2*i+1)}")
    P(f"buffer_store_dwordx4 {v(XR,4)}, {v(VXR)}, {s(SOUT,4)}, {s(sOo)} offen {OPT.get('om', '').replace('+', ' ')}")
    finish(ffn)

def softmax(p, out, LS, pk=False):
    t = T + 16
    if pk:
        assert LS == STD + 1
        L = softmax(p, out, LS)[:9]
        L += [f"v_pk_fma_f32 {v(p+i,2)}, {v(p+i,2)}, {v(STD,2)}, {v(t,2)} op_sel:[0,1,0] op_sel_hi:[1,1,0] neg_lo:[0,0,1] neg_hi:[0,0,1]" for i in range(0, 16, 2)]
        L += [f"v_exp_f32 {v(p+i)}, {v(p+i)}" for i in range(16)]
        L += [f"v_pk_add_f32 {v(t,2)}, {v(p,2)}, {v(p+2,2)}", f"v_pk_add_f32 {v(t+2,2)}, {v(p+4,2)}, {v(p+6,2)}"]
        L += [f"v_pk_add_f32 {v(t+2*(i&1),2)}, {v(t+2*(i&1),2)}, {v(p+8+2*i,2)}" for i in range(4)]
        L += [f"v_pk_add_f32 {v(t,2)}, {v(t,2)}, {v(t+2,2)}", f"v_add_f32 {v(t)}, {v(t)}, {v(t+1)}", f"v_rcp_f32 {v(t)}, {v(t)}"]
        L += [f"v_pk_mul_f32 {v(p+i,2)}, {v(p+i,2)}, {v(t,2)} op_sel_hi:[1,0]" for i in range(0, 16, 2)]
        return L + [f"v_cvt_pk_bf16_f32 {v(out+i)}, {v(p+2*i)}, {v(p+2*i+1)}" for i in range(8)]
    L = [f"v_max3_f32 {v(t)}, {v(p)}, {v(p+1)}, {v(p+2)}", f"v_max3_f32 {v(t+1)}, {v(p+3)}, {v(p+4)}, {v(p+5)}",
         f"v_max3_f32 {v(t)}, {v(t)}, {v(p+6)}, {v(p+7)}", f"v_max3_f32 {v(t+1)}, {v(t+1)}, {v(p+8)}, {v(p+9)}",
         f"v_max3_f32 {v(t)}, {v(t)}, {v(p+10)}, {v(p+11)}", f"v_max3_f32 {v(t+1)}, {v(t+1)}, {v(p+12)}, {v(p+13)}",
         f"v_max3_f32 {v(t)}, {v(t)}, {v(p+14)}, {v(p+15)}", f"v_max_f32 {v(t)}, {v(t)}, {v(t+1)}",
         f"v_mul_f32 {v(t)}, {v(t)}, {v(LS)}"]
    L += [f"v_fma_f32 {v(p+i)}, {v(p+i)}, {v(LS)}, -{v(t)}" for i in range(16)]
    L += [f"v_exp_f32 {v(p+i)}, {v(p+i)}" for i in range(16)]
    L += [f"v_add_f32 {v(t)}, {v(p)}, {v(p+1)}", f"v_add_f32 {v(t+1)}, {v(p+2)}, {v(p+3)}"]
    for i in range(4, 16, 2):
        L += [f"v_add_f32 {v(t)}, {v(t)}, {v(p+i)}", f"v_add_f32 {v(t+1)}, {v(t+1)}, {v(p+i+1)}"]
    L += [f"v_add_f32 {v(t)}, {v(t)}, {v(t+1)}", f"v_rcp_f32 {v(t)}, {v(t)}"]
    L += [f"v_mul_f32 {v(p+i)}, {v(p+i)}, {v(t)}" for i in range(16)]
    L += [f"v_cvt_pk_bf16_f32 {v(out+i)}, {v(p+2*i)}, {v(p+2*i+1)}" for i in range(8)]
    return L

setup(False)
KAREA[:] = [RC, RA+3*Q, RA, RA+Q, RA+2*Q, RB, RB+Q, RB+2*Q, RB+3*Q]
ASY = OPT.get('asy', '0') == '1'
LS = K1; VPK = K2; VV = VW3; MC = BIAS
PHI0, PHI1 = AX, AAUG
PHI0 = AX
PHI1 = S1
PHI1 = T + 12
t = T + 16
P(f"v_bfe_u32 {v(t)}, {v(vL)}, 2, 2\nv_lshrrev_b32 {v(t+1)}, 5, {v(vL)}\nv_lshl_add_u32 {v(t)}, {v(t+1)}, 2, {v(t)}\nv_lshlrev_b32 {v(t)}, 5, {v(t)}")
P(f"v_bfe_u32 {v(t+2)}, {v(vL)}, 1, 1\nv_lshl_add_u32 {v(t)}, {v(t+2)}, 3, {v(t)}\nv_bfe_u32 {v(t+2)}, {v(vL)}, 4, 1\nv_lshl_add_u32 {v(t)}, {v(t+2)}, 4, {v(t)}")
P(f"s_lshl_b32 {s(sT1)}, {s(sHALF)}, 10\ns_add_u32 {s(sT1)}, {s(sT1)}, {L_WPHI}\nv_add_u32 {v(AB)}, {s(sT1)}, {v(t)}")
P(f"v_bfe_u32 {v(t)}, {v(vL)}, 2, 1\nv_mul_u32_u24 {v(t)}, 0x8000, {v(t)}\nv_lshl_or_b32 {v(AB+1)}, {v(t)}, 16, {v(t)}")
P(f"v_and_b32 {v(t)}, 31, {v(vL)}\nv_lshlrev_b32 {v(t)}, 6, {v(t)}\ns_lshl_b32 {s(sT1)}, {s(sW34)}, 9\nv_bfe_u32 {v(t+2)}, {v(vL)}, 1, 2")
P(f"v_lshlrev_b32 {v(t+3)}, 1, {v(t+1)}\nv_xor_b32 {v(t+3)}, {v(t+3)}, {v(t+2)}")
P(f"s_lshl_b32 {s(sT2)}, {s(sHALF)}, 14\ns_add_u32 {s(sT2)}, {s(sT2)}, {s(sT1)}\nv_lshl_add_u32 {v(VPK)}, {v(t+3)}, 4, {v(t)}\nv_add_u32 {v(VPK)}, {s(sT2)}, {v(VPK)}")
P(f"v_xor_b32 {v(t+3)}, {v(t+1)}, {v(t+2)}")
P(f"s_lshl_b32 {s(sT2)}, {s(sHALF)}, 13\ns_add_u32 {s(sT2)}, {s(sT2)}, {s(sT1)}\ns_add_u32 {s(sT2)}, {s(sT2)}, {RA+32768}\nv_lshl_add_u32 {v(VV)}, {v(t+3)}, 4, {v(t)}\nv_add_u32 {v(VV)}, {s(sT2)}, {v(VV)}")
def phi_load(hl, dst):
    return [f"ds_read_b64_tr_b16 {v(dst+2*tt,2)}, {v(AB)} offset:{512*hl+256*tt}" for tt in range(2)] + \
           [f"v_xor_b32 {v(dst+i)}, {v(AB+1)}, {v(dst+i)}" for i in range(4)]
S = Sched(96)
common_sched(S, False, None, MC)
S.post[30] += [f"ds_read_b128 {v(CSR,4)}, {v(VCSA)}"]
sKV, sOS = sH0, sH3
P(f"s_lshl_b32 {s(sT0)}, {s(sG)}, 4\ns_add_u32 {s(sT0)}, {s(sT0)}, {s(sRT)}\ns_mul_i32 {s(sT0)}, {s(sT0)}, {KVP_SZ}\ns_mul_i32 {s(sT1)}, {s(sW)}, 1152\ns_add_u32 {s(sT0)}, {s(sT0)}, {s(sT1)}\ns_add_u32 {s(sT0)}, {s(sT0)}, {WS_KVP}")
P(f"s_cmp_lt_u32 {s(sW)}, 4\ns_cselect_b32 {s(sKV)}, {s(sT0)}, 0x7f000000")
P(f"s_lshl_b32 {s(sT0)}, {s(sG)}, 2\ns_lshl_b32 {s(sT1)}, {s(sHALF)}, 1\ns_add_u32 {s(sT0)}, {s(sT0)}, {s(sT1)}\ns_add_u32 {s(sT0)}, {s(sT0)}, 112\ns_lshl_b32 {s(sT0)}, {s(sT0)}, 10\ns_add_u32 {s(sOS)}, {s(sT0)}, {s(sHo)}")
PA = AAUG
OFFL = OPT.get("off", "0") == "1"
if OFFL:
    P(f"s_mul_i32 {s(sT0)}, {s(sG)}, 448\ns_and_b32 {s(sT1)}, {s(sG)}, 1\ns_add_u32 {s(sT2)}, {s(sT1)}, {s(sHALF)}\ns_lshl_b32 {s(sT2)}, {s(sT2)}, 6\ns_add_u32 {s(sT2)}, {s(sT2)}, {s(sT0)}")
    P(f"s_lshl_b32 {s(sT2)}, {s(sT2)}, 5\ns_add_u32 {s(sWq)}, {s(sT2)}, {s(sHo)}\ns_add_u32 {s(sWq)}, {s(sWq)}, 8192")
    P(f"s_xor_b32 {s(sT1)}, {s(sT1)}, 1\ns_mul_i32 {s(sT1)}, {s(sT1)}, 384\ns_add_u32 {s(sT0)}, {s(sT0)}, {s(sT1)}\ns_lshl_b32 {s(sT1)}, {s(sHALF)}, 5\ns_add_u32 {s(sT0)}, {s(sT0)}, {s(sT1)}")
    P(f"s_lshl_b32 {s(sT0)}, {s(sT0)}, 5\ns_add_u32 {s(sW3)}, {s(sT0)}, {s(sHo)}")
S.post[46] += [f"v_mov_b32 {v(PA+i)}, -1" for i in range(4)] + [f"v_lshrrev_b32 {v(S2)}, 2, {v(vL)}", f"v_lshl_add_u32 {v(S2)}, {v(S2)}, 26, {v(VL16)}"]
S.post[47] += [f"buffer_store_dwordx4 {v(PA,4)}, {v(VL16)}, {s(SWS,4)}, {s(sKV)} offen sc1"]
S.post[48] += [f"buffer_store_dwordx4 {v(PA,4)}, {v(S2)}, {s(SWS,4)}, {s(sKV)} offen offset:1024 sc1 ; tag=pz"]
pl = [(sOS, 0), (sOS, 1024)] + ([(sWq, 0), (sWq, 1024), (sW3, 0)] if OFFL else [])
for (so, off), G in zip(pl, [int(x) for x in OPT.get("pza", "50,53,56,59,62").split(",")]):
    S.post[G] += [f"buffer_store_dwordx4 {v(PA,4)}, {v(VL16)}, {s(SWS,4)}, {s(so)} offen offset:{off} sc1 ; tag=po"]
PX1 = OPT.get("px1") == "1"
if V2 and PX1:
    for j, G in zip((1, 2, 3), (56, 59, 62)): S.post[G] += xoff(j, True) + [f"buffer_store_dwordx4 {v(PA,4)}, {v(VL16)}, {s(SWS,4)}, {s(sT0)} offen sc1 ; tag=px"]
S.post[63] += [f"v_mov_b32 {v(PA+2)}, 0", f"v_mov_b32 {v(PA+3)}, 0"]
def ltouch():
    P(f"s_sub_u32 {s(sT0)}, {s(sW)}, 4\ns_cmp_lt_u32 {s(sT0)}, 3")
    P(f"s_cbranch_scc0 L_nlt")
    P.cond_begin("w456")
    P(f"v_lshlrev_b32 {v(S1)}, 7, {v(vL)}\ns_lshl_b32 {s(sT1)}, {s(sRT)}, 3\ns_add_u32 {s(sT1)}, {s(sT1)}, {s(sG)}")
    P(f"s_cmp_eq_u32 {s(sT0)}, 2\ns_cbranch_scc1 L_lt2")
    P(f"s_lshl_b32 {s(sT1)}, {s(sT1)}, 1\ns_add_u32 {s(sT1)}, {s(sT1)}, {s(sT0)}\ns_mul_i32 {s(sT1)}, {s(sT1)}, 7168")
    P(f"buffer_load_dword {v(VX0)}, {v(S1)}, {s(SW2,4)}, {s(sT1)} offen")
    P("s_branch L_nlt")
    P("L_lt2:")
    P(f"v_and_b32 {v(S1)}, 4095, {v(S1)}\ns_lshl_b32 {s(sT1)}, {s(sT1)}, 12")
    P(f"buffer_load_dword {v(VX0)}, {v(S1)}, {s(SWO,4)}, {s(sT1)} offen")
    P(f"buffer_load_dword {v(VX1)}, {v(S1)}, {s(SB2,4)}, 0 offen")
    P.cond_end()
    for I in P.ins[-12:]:
        if I.kind == "vld": I.defs = []
    P("L_nlt:")
if OPT.get("touch", "5") == "2": S.blk[("e", int(OPT.get("tg", 54)))] = ltouch
S.post[31] += stamp_i("pass1")
fill = stats_final() + aug(ACC0, CSR, None) + phi_load(0, AX) + phi_load(1, T + 8) + [f"v_mul_f32 {v(LS)}, {f2u(LOG2E):#x}, {v(RSTD)}"]
fill += [f"v_cvt_pk_bf16_f32 {v(T+i)}, {v(ACC0+2*i)}, {v(ACC0+2*i+1)}" for i in range(8)]
fill += [mfma(ACC2, AX, T, "0"), mfma(ACC0, T + 8, T + 4, "0")]
S.spread(fill, 32, 40)
S.spread(softmax(ACC2, T + 8, LS) + softmax(ACC0, T, LS), 41, 64)
pkg = 62 if OPT.get("few", "1") == "1" else 56
S.post[pkg] += [f"ds_write_b128 {v(VPK)}, {v(T+8,4)}", f"v_xor_b32 {v(VSTA)}, 16, {v(VPK)}"]
S.post[pkg+1] += [f"ds_write_b128 {v(VSTA)}, {v(T+12,4)}"]
S.post[62] += [f"ds_read_b128 {v(MC,4)}, {v(VCSA)} offset:1024"]
S.post[63] += stamp_i("sub1")
S.pre[64] += sum4(CS0, MC)
S.fill[64] += aug(ACC1, MC, None)[3:]
S.post[65] += [f"ds_write_b128 {v(VPK)}, {v(T,4)} offset:8192"]
S.post[66] += [f"ds_write_b128 {v(VSTA)}, {v(T+4,4)} offset:8192"]
fill = []
fill += [f"v_mul_f32 {v(ACC1+i)}, {v(ACC1+i)}, {v(RSTD)}" for i in range(16)]
fill += [f"v_cvt_pk_bf16_f32 {v(ACC1+i)}, {v(ACC1+2*i)}, {v(ACC1+2*i+1)}" for i in range(8)]
fill += [f"ds_write_b128 {v(VV)}, {v(ACC1,4)}", f"v_xor_b32 {v(VV)}, 32, {v(VV)}", f"ds_write_b128 {v(VV)}, {v(ACC1+4,4)}"]
S.spread(fill, 66, 70)
S.dmas(b_dma(0), 65, 3)
S.dmas(b_dma(1), 74, 4); S.dmas(b_dma(2) + b_dma(3) + b_dma(4), int(OPT.get('ab', 86)), 1)
def kvblock():
    P(".waitvm pz lgkm0")
    P("s_barrier")
    kvflag()
    stamp("kv0"); stamp("kv1")
    P(f"s_cmp_lt_u32 {s(sW)}, 4")
    P("s_cbranch_scc0 L_nkv")
    P.cond_begin("lo4")
    P("s_setprio 3")
    t = T + 16; u = S1
    P(f"v_bfe_u32 {v(u)}, {v(vL)}, 2, 2\nv_lshrrev_b32 {v(u+1)}, 5, {v(vL)}\nv_lshl_add_u32 {v(u)}, {v(u+1)}, 3, {v(u)}\nv_lshlrev_b32 {v(u)}, 6, {v(u)}")
    P(f"v_bfe_u32 {v(u+1)}, {v(vL)}, 1, 1\nv_lshl_add_u32 {v(u)}, {v(u+1)}, 3, {v(u)}\nv_bfe_u32 {v(u+1)}, {v(vL)}, 3, 1\nv_and_b32 {v(VSTA)}, 1, {v(vL)}")
    P(f"v_or_b32 {v(t)}, {s(sSH)}, {v(VSTA)}\nv_xor_b32 {v(t)}, {v(t)}, {v(u+1)}\nv_lshl_add_u32 {v(t)}, {v(t)}, 4, {v(u)}")
    P(f"s_lshr_b32 {s(sT0)}, {s(sW)}, 1\ns_lshl_b32 {s(sT0)}, {s(sT0)}, 13\ns_add_u32 {s(sT0)}, {s(sT0)}, {RA+32768}\nv_add_u32 {v(t)}, {s(sT0)}, {v(t)}\nv_xor_b32 {v(t+1)}, 32, {v(t)}")
    P(f"v_bfe_u32 {v(t+2)}, {v(vL)}, 4, 1\nv_lshl_add_u32 {v(t+2)}, {v(VSTA)}, 1, {v(t+2)}\nv_xor_b32 {v(t+2)}, {v(t+2)}, {v(u+1)}\nv_lshl_add_u32 {v(t+2)}, {v(t+2)}, 4, {v(u)}")
    P(f"s_lshl_b32 {s(sT0)}, {s(sW)}, 13\nv_add_u32 {v(t+2)}, {s(sT0)}, {v(t+2)}\nv_xor_b32 {v(t+3)}, 32, {v(t+2)}")
    P(f"v_and_b32 {v(u)}, 16, {v(vL)}\nv_cmp_eq_u32 vcc, 0, {v(u)}\nv_mov_b32 {v(u+1)}, {s(sONE)}")
    KB = [T, T + 8, ACC1, ACC1 + 8]
    def kr(J):
        for tt in range(2):
            P(f"ds_read_b64_tr_b16 {v(KB[J&3]+2*tt,2)}, {v(t+tt)} offset:{1024*J+256*tt}")
            P(f"ds_read_b64_tr_b16 {v(KB[J&3]+4+2*tt,2)}, {v(t+2+tt)} offset:{1024*J+256*tt}")
    kr(0); kr(1); kr(2)
    for J in range(8):
        for i in range(4): P(f"v_cndmask_b32 {v(KB[J&3]+i)}, {v(u+1)}, {v(KB[J&3]+i)}, vcc")
        if J + 3 < 8: kr(J + 3)
        P(mfma(ACC0, KB[J&3] + 4, KB[J&3], "0" if J == 0 else None))
    if ASY: P("s_barrier")
    P(f"v_lshrrev_b32 {v(u)}, 5, {v(vL)}\nv_and_b32 {v(t+2)}, 15, {v(vL)}\nv_lshlrev_b32 {v(t)}, 4, {v(t+2)}\nv_lshl_add_u32 {v(t)}, {v(u)}, 8, {v(t)}\nv_add_u32 {v(t+1)}, 512, {v(t)}")
    P(f"v_lshlrev_b32 {v(u)}, 4, {v(u)}\nv_add_u32 {v(u)}, 1024, {v(u)}\nv_lshl_add_u32 {v(u)}, {v(t+2)}, 26, {v(u)}\nv_add_u32 {v(u+1)}, 32, {v(u)}")
    P(f"v_cndmask_b32 {v(t)}, {v(u)}, {v(t)}, vcc\nv_cndmask_b32 {v(t+1)}, {v(u+1)}, {v(t+1)}, vcc")
    for i in range(8): P(f"v_cvt_pk_bf16_f32 {v(T+i)}, {v(ACC0+2*i)}, {v(ACC0+2*i+1)}")
    stamp("kv1")
    for j in range(2): P(f"buffer_store_dwordx4 {v(T+4*j,4)}, {v(t+j)}, {s(SWS,4)}, {s(sKV)} offen sc1")
    P.cond_end()
    P("L_nkv:")
    stamp("kv2")
S.blk[70] = kvblock
PXA = OPT.get("pxa", "72,76,81")
if PXA:
    gs_ = [int(x) for x in PXA.split(",")]
    if gs_[0] > 64:
        S.post[gs_[0] - 1] += [f"v_mov_b32 {v(PA+i)}, -1" for i in range(4)]
        S.post[gs_[2] + 2] += [f"v_mov_b32 {v(PA+2)}, 0", f"v_mov_b32 {v(PA+3)}, 0"]
    for j, G in zip((1, 2, 3), gs_): S.post[G] += xoff(j, True) + [f"buffer_store_dwordx4 {v(PA,4)}, {v(VL16)}, {s(SWS,4)}, {s(sT0)} offen sc1 ; tag=px"]
S.pre[94] += ["s_waitcnt lgkmcnt(0)", "s_barrier"]
def kvflag():
    P(f"s_cmp_eq_u32 {s(sW)}, 7")
    P("s_cbranch_scc0 L_nkf")
    P.cond_begin("w0")
    P(f"s_lshl_b32 {s(sT0)}, {s(sG)}, 8\ns_lshl_b32 {s(sT1)}, {s(sRT)}, 2\ns_add_u32 {s(sT0)}, {s(sT0)}, {s(sT1)}\ns_add_u32 {s(sT0)}, {s(sT0)}, {WS_KVF}")
    P(f"v_mov_b32 {v(VFV)}, 1")
    P(f"buffer_store_dword {v(VFV)}, {v(VZ)}, {s(SWS,4)}, {s(sT0)} offen sc1")
    P.cond_end()
    P("L_nkf:")
def kvpoll():
    P(f"s_cmp_eq_u32 {s(sW)}, 7")
    P("s_cbranch_scc0 L_nkp")
    n0 = len(P.ins)
    P(f"s_lshl_b32 {s(sT2)}, {s(sG)}, 8\ns_add_u32 {s(sT2)}, {s(sT2)}, {WS_KVF}\ns_mov_b32 {s(sCNT)}, 0")
    P("s_branch L_spkv1")
    P("L_spkv:")
    P(f"s_buffer_load_dwordx16 s[20:35], {s(SWS,4)}, {s(sT2)} glc")
    P("L_spkv1:")
    P(f"s_add_u32 {s(sCNT)}, {s(sCNT)}, 1")
    P("s_waitcnt lgkmcnt(0)")
    for i in range(22, 36, 2): P(f"s_and_b64 s[20:21], s[20:21], s[{i}:{i+1}]")
    P("s_and_b32 s20, s20, s21")
    P("s_cbranch_scc1 L_nkp")
    P(f"s_cmp_gt_u32 {s(sCNT)}, {SPIN_MAX}")
    P("s_cbranch_scc1 L_nkp")
    P("s_sleep 1")
    P("s_branch L_spkv")
    for I in P.ins[n0:]:
        I.cond = "kvp"
        if I.kind == "smem": I.kind = "opaque"
    P("L_nkp:")
def kvreq():
    P(f"s_cmp_eq_u32 {s(sW)}, 7")
    P("s_cbranch_scc0 L_nkr")
    n0 = len(P.ins)
    P(f"s_lshl_b32 {s(sT2)}, {s(sG)}, 8\ns_add_u32 {s(sT2)}, {s(sT2)}, {WS_KVF}")
    P(f"s_buffer_load_dwordx16 s[20:35], {s(SWS,4)}, {s(sT2)} glc")
    for I in P.ins[n0:]:
        I.cond = "kvp"
        if I.kind == "smem": I.kind = "opaque"
    P("L_nkr:")
VP = OPT.get("vp", "0") == "1"
VPA_, VPV = VX0, VSTA
vpl = f"buffer_load_dword {v(VPV)}, {v(VPA_)}, {s(SWS,4)}, 0 offen sc1"
if VP:
    S.fill[78] += lines(f"s_lshl_b32 {s(sT0)}, {s(sG)}, 8\ns_add_u32 {s(sT0)}, {s(sT0)}, {WS_KVF}\nv_and_b32 {v(VPA_)}, 3, {v(vL)}\nv_lshl_add_u32 {v(VPA_)}, {v(VPA_)}, 2, {s(sFL)}\nv_lshl_add_u32 {v(VPV)}, {v(vL)}, 2, {s(sT0)}\nv_cmp_gt_u32 vcc, 16, {v(vL)}\ns_nop 1\nv_cndmask_b32 {v(VPA_)}, {v(VPA_)}, {v(VPV)}, vcc")
    S.post[int(OPT.get("vpg", 86))] += [vpl]
    def vcheck0():
        P(f"v_mov_b32 {v(VPV)}, {v(VPV)}")
        spin("L_vp", vpl, f"v_cmp_gt_u32 vcc, 1, {v(VPV)}")
    S.blk[("e", 93)] = vcheck0
else:
    ab_ = int(OPT.get('ab', 86)); S.post[95] += [] if V5 else [spoll(1)]
    if ASY:
        def hibar():
            P(f"s_cmp_lt_u32 {s(sW)}, 4"); P("s_cbranch_scc1 L_nhb")
            P.cond_begin("hi4"); P("s_barrier"); P.cond_end(); P("L_nhb:")
        S.blk[ab_] = hibar; S.blk[94] = lambda: (kvreq(), kvpoll())
    else: S.blk[ab_] = lambda: (kvreq(), kvpoll())
S.post[94] += [f"ds_read_b128 {v(CSR,4)}, {v(VCSA)} offset:2048"]
S.post[80] += phi_load(1, T + 8)[:2]; S.post[82] += phi_load(1, T + 8)[2:]
PQ = WF
def Gq(r): return XF + 8 * r
Z = XF + 80; GA = XF + 64
VG, VGZ = S1, S2
gsetup = lines(f"s_mul_i32 {s(sK)}, {s(sG)}, {16*KVP_SZ}\ns_lshr_b32 {s(sT0)}, {s(sW)}, 1\ns_mul_i32 {s(sT0)}, {s(sT0)}, 1152\ns_add_u32 {s(sK)}, {s(sK)}, {s(sT0)}\ns_add_u32 {s(sK)}, {s(sK)}, {WS_KVP}")
gsetup += lines(f"v_and_b32 {v(VGZ)}, 15, {v(vL)}\nv_mul_u32_u24 {v(VGZ)}, {KVP_SZ}, {v(VGZ)}\nv_and_b32 {v(VG)}, 16, {v(vL)}\nv_add_u32 {v(VGZ)}, {v(VGZ)}, {v(VG)}\ns_lshl_b32 {s(sT0)}, {s(sSH)}, 4\nv_add_u32 {v(VGZ)}, {s(sT0)}, {v(VGZ)}")
gsetup += lines(f"v_lshrrev_b32 {v(VG)}, 5, {v(vL)}\nv_mul_u32_u24 {v(VG)}, {8*KVP_SZ - 512}, {v(VG)}\nv_add_u32 {v(VG)}, {v(VG)}, {v(VL16)}\ns_lshl_b32 {s(sT0)}, {s(sSH)}, 8\nv_add_u32 {v(VG)}, {s(sT0)}, {v(VG)}")
gl = [[f"buffer_load_dwordx4 {v(Z,4)}, {v(VGZ)}, {s(SWS,4)}, {s(sK)} offen offset:1024 sc1"]]
for r in range(8):
    gl.append(lines(f"s_add_u32 {s(sD1)}, {s(sRT)}, {r}\ns_and_b32 {s(sD1)}, {s(sD1)}, 7\ns_mul_i32 {s(sD1)}, {s(sD1)}, {KVP_SZ}\ns_add_u32 {s(sD1)}, {s(sD1)}, {s(sK)}") +
              [f"buffer_load_dwordx4 {v(Gq(r),4)}, {v(VG)}, {s(SWS,4)}, {s(sD1)} offen sc1"])
S.fill[76] += gsetup
g0_ = int(OPT.get("gg", 94))
gl_in = min(9, 96 - g0_)
S.dmas(gl[:gl_in], g0_)
run_sched(S, [ACC0, ACC1, ACC2])
stamp("sub2")
P.add(aug(ACC2, CSR, None))
for g_ in gl[gl_in:gl_in+2]: P.add(g_)
for i in range(8): P(f"v_cvt_pk_bf16_f32 {v(T+i)}, {v(ACC2+2*i)}, {v(ACC2+2*i+1)}")
P(mfma(ACC1, AX, T, "0"))
P(mfma(ACC2, T + 8, T + 4, "0"))
stamp("phi")
n_tail0 = len(P.ins)
NBT = int(OPT.get('nbt', 3))
bd = sum([b_dma(kk) for kk in (5, 6, 7)[:NBT]], []) + [[]] * (6 - 2 * NBT)
TO = OPT.get("to", "a")
sm1 = softmax(ACC1, PQ, LS, True); sm2 = softmax(ACC2, PQ + 8, LS, True)
if TO == "a":
    P.add(interleave(gl[gl_in+2:], sm1[:30]) + interleave(bd[:2], sm1[30:])); bd = bd[2:]
else:
    P.add(interleave(gl[gl_in+2:], sm1[:30]) + interleave(bd[:4], sm1[30:] + sm2[:33])); bd = bd[4:]; sm2 = sm2[33:]
if not VP and not V5: sneed(1, 1)
P(spoll(0))
stamp("qsm")
validate([Z + i for i in range(4)] + [Gq(r) + i for r in range(8) for i in range(4)], T + 4, sum(gl, []))
stamp("kvseen")
aj = sum([a_jobs(kk) for kk in range(8)], [])
n_o0 = len(P.ins)
P(f"v_lshrrev_b32 {v(T+1)}, 5, {v(vL)}")
P(f"v_bfe_u32 {v(T+2)}, {v(vL)}, 4, 1\nv_lshlrev_b32 {v(T+2)}, 9, {v(T+2)}\nv_lshl_add_u32 {v(T+2)}, {v(T+1)}, 3, {v(T+2)}")
P(f"s_lshl_b32 {s(sT0)}, {s(sW)}, 10\ns_add_u32 {s(sT0)}, {s(sT0)}, {L_KVB}\nv_add_u32 {v(T+2)}, {s(sT0)}, {v(T+2)}")
P(f"v_and_b32 {v(T+3)}, 15, {v(vL)}\nv_lshl_add_u32 {v(T+3)}, {v(T+3)}, 4, {v(T+2)}")
P(f"v_cmp_gt_u32 vcc, 32, {v(vL)}\ns_mov_b32 {s(sT0)}, 0x3f80\ns_mov_b32 {s(sT1)}, 0x3f800000")
P(f"v_cndmask_b32 {v(Z)}, {v(Z+2)}, {v(Z)}, vcc\nv_cndmask_b32 {v(Z+1)}, {v(Z+3)}, {v(Z+1)}, vcc")
P(f"v_lshlrev_b32 {v(Z+8)}, 16, {v(Z)}\nv_and_b32 {v(Z+9)}, 0xffff0000, {v(Z)}\nv_lshlrev_b32 {v(Z+10)}, 16, {v(Z+1)}\nv_and_b32 {v(Z+11)}, 0xffff0000, {v(Z+1)}")
for ror in (8, 4, 2, 1):
    for i in range(4): P(f"v_add_f32_dpp {v(Z+8+i)}, {v(Z+8+i)}, {v(Z+8+i)} row_ror:{ror} row_mask:0xf bank_mask:0xf")
P(f"v_cvt_pk_bf16_f32 {v(Z)}, {v(Z+8)}, {v(Z+9)}\nv_cvt_pk_bf16_f32 {v(Z+1)}, {v(Z+10)}, {v(Z+11)}")
P(f"ds_write_b64 {v(T+2)}, {v(Z,2)} offset:256")
def ga(i): return GA + (i & 3) + 8 * (i >> 2)
for i in range(4):
    P(f"v_lshlrev_b32 {v(ga(2*i))}, 16, {v(Gq(0)+i)}\nv_and_b32 {v(ga(2*i+1))}, 0xffff0000, {v(Gq(0)+i)}")
for r in range(1, 8):
    for i in range(4):
        P(f"v_dot2c_f32_bf16 {v(ga(2*i))}, {s(sT0)}, {v(Gq(r)+i)}\nv_dot2c_f32_bf16 {v(ga(2*i+1))}, {s(sT1)}, {v(Gq(r)+i)}")
for i in range(4): P(f"v_permlane32_swap_b32 {v(ga(i))}, {v(ga(i+4))}")
for i in range(4): P(f"v_add_f32 {v(ga(i))}, {v(ga(i))}, {v(ga(i+4))}")
P(f"v_cvt_pk_bf16_f32 {v(GA)}, {v(GA)}, {v(GA+1)}\nv_cvt_pk_bf16_f32 {v(GA+1)}, {v(GA+2)}, {v(GA+3)}")
P(f"ds_write_b64 {v(T+3)}, {v(GA,2)}")
stamp("gsum")
P(f"v_and_b32 {v(T)}, 31, {v(vL)}\nv_min_u32 {v(T)}, 16, {v(T)}\nv_and_b32 {v(T+1)}, 32, {v(vL)}\nv_add_u32 {v(T)}, {v(T)}, {v(T+1)}\nv_lshlrev_b32 {v(T)}, 4, {v(T)}")
P(f"s_lshl_b32 {s(sT0)}, {s(sHALF)}, 12\ns_add_u32 {s(sT0)}, {s(sT0)}, {L_KVB}\nv_add_u32 {v(T)}, {s(sT0)}, {v(T)}")
body = P.ins[n_o0:]; del P.ins[n_o0:]
for i, g_ in enumerate(bd):
    P.add(g_); P.ins += body[len(body)*i//len(bd): len(body)*(i+1)//len(bd)]
stamp("pre1")
sneed(1, 0)
stamp("post1")
if NP: aj = aj[:4]
P.add(interleave(aj, sm2))
stamp("sm2")
P(f".waitvm b{4+NBT} lgkm0")
if OPT.get("tp"):
    per = int(OPT["tp"]); body = P.ins[n_tail0:]; del P.ins[n_tail0:]; c = 0; lv = 3
    P("s_setprio 3")
    for I in body:
        P.ins.append(I)
        if I.kind == "valu" and not I.cond and not I.op.startswith("v_cmp"):
            c += 1
            if c % per == 0: lv = (lv - 1) & 3; P(f"s_setprio {lv}")
stamp("ob0")
P("s_barrier")
stamp("ob1")
for i in range(4): P(f"ds_read_b128 {v(Gq(i),4)}, {v(T)} offset:{1024*i}")
P(mfma(ACC0, Gq(0), PQ, "0")); P(mfma(ACC1, Gq(2), PQ + 8, "0"))
P(mfma(ACC0, Gq(1), PQ + 4)); P(mfma(ACC1, Gq(3), PQ + 12))
if NP: P(spoll(0))
EA = int(OPT.get("ea", 0))
if EA and not NP:
    for kk in range(8, 8 + EA): P.add(a_jobs(kk)[0])
for hl, acc in enumerate((ACC0, ACC1)):
    P(f"v_add_f32 {v(acc+8)}, {f2u(1e-6):#x}, {v(acc+8)}\nv_rcp_f32 {v(acc+8)}, {v(acc+8)}")
    for i in range(0, 8, 2): P(f"v_pk_mul_f32 {v(acc+i,2)}, {v(acc+i,2)}, {v(acc+8,2)} op_sel_hi:[1,0]")
    for i in range(4): P(f"v_cvt_pk_bf16_f32 {v(T+4*hl+i)}, {v(acc+2*i)}, {v(acc+2*i+1)}")
    P(f"buffer_store_dwordx4 {v(T+4*hl,4)}, {v(VL16)}, {s(SWS,4)}, {s(sOS)} offen offset:{1024*hl} sc1 ; ost")
stamp("p1end")
if V5: phase2_v5(tuple(range(5 + NBT, 9)), False)
elif V3: phase2_v3((8,), (), False)
elif V2: phase2_v2(tuple(range(5 + NBT, 9)), False)
else: phase2(("B6", "B7"), "A4 A5 A6 B8 A7 B9 A8 B10 A9 B11 A10 B12 A11 B13 A12 B14 A13 B15 B16 B17 A14 A15 A16 A17")

P("L_ffn:")
P(".reset")
setup(True)
KAREA[:] = [RC, RA+2*Q, RA+3*Q, RB, RB+Q, RB+2*Q, RA, RA+Q, RB+3*Q]
MC = ACC2; CSF = ACC2 + 4
S = Sched(112)
common_sched(S, True, None, MC)
S.post[30] += [f"ds_read_b128 {v(CSF,4)}, {v(VCSA)}"]
if not NP: S.post[40] += [f"s_add_u32 {s(sT2)}, {s(sH0)}, 4096", f"s_add_u32 {s(sK)}, {s(sH0)}, 8192"]
pzs = [[f"buffer_store_dwordx4 {v(PZ,4)}, {v(VL16)}, {s(SWS,4)}, {s(so)} offen offset:{off} sc1 ; tag=h1"]
       for so, off in ((sT2, 0), (sT2, 1024), (sK, 0), (sK, 1024), (sH3, 0))[:0 if NP else 2 if OFFL else 5]]
for g_, G in zip(pzs, [int(x) for x in OPT.get("pz", "50,56,59,67,70").split(",")]): S.post[G] += g_
S.post[31] += stamp_i("pass1")
fill = stats_final() + aug(ACC0, CSF, BIAS)
fill += [f"v_mul_f32 {v(K1)}, {f2u(GC1):#x}, {v(RSTD)}", f"v_mul_f32 {v(K2)}, {v(RSTD)}, {v(RSTD)}",
         f"v_mul_f32 {v(K2)}, {v(K2)}, {v(RSTD)}", f"v_mul_f32 {v(K2)}, {f2u(GC2):#x}, {v(K2)}"]
S.spread(fill, 32, 39)
S.spread(gelu(ACC0, 16) + hstore(sH0, 2, "h1") + [f"s_add_u32 {s(sH0)}, {s(sH0)}, 4096"], 39, 64)
S.post[62] += [f"ds_read_b128 {v(CSF,4)}, {v(VCSA)} offset:1024"]
S.post[63] += stamp_i("sub1")
S.spread(aug(ACC1, CSF, BIAS + 1), 64, 66)
S.spread(gelu(ACC1, 16) + hstore(sH0, 2, "h2") + [f"s_add_u32 {s(sH0)}, {s(sH0)}, 4096"], 67, 96)
w3 = sum([w3quarter(q, 3584) for q in range(4)], [])
for g_, G in zip(w3 + b_dma(0), [int(x) for x in OPT.get("w3", "64,68,72,76,74,75" if OPT.get("few", "1") == "1" else "48,54,60,72,75,76").split(",")]): S.dma[G] += g_
S.dmas(b_dma(1), 78, 2); S.dmas(b_dma(2), 82, 2); S.dmas(b_dma(3), 86, 2); S.dmas(b_dma(4), 90, 2); S.dmas(b_dma(5), 98, 2)
S.pre[94] += [".waitvm w3 lgkm0", "s_barrier"]
S.post[94] += [f"ds_read_b128 {v(CSF,4)}, {v(VCSA)} offset:2048"]
S.post[95] += stamp_i("sub2")
if V2 and PX1:
    for j, G in zip((1, 2, 3), [int(x) for x in OPT.get("pxg", "91,93,102").split(",")]): S.post[G] += xoff(j, True) + [f"buffer_store_dwordx4 {v(PZ,4)}, {v(VL16)}, {s(SWS,4)}, {s(sT0)} offen sc1 ; tag=px"]
S.fill[96] += aug(ACC0, CSF, BIAS + 2)
if OFFL: S.post[106] += [f"s_sub_u32 {s(sT2)}, {s(sFO)}, 1024", f"s_buffer_load_dword {s(sK)}, {s(SWS,4)}, {s(sT2)} glc"]
S.spread(gelu(ACC0, 16), 98, 112)
if V3: S.post[97] += va3_init
aj = sum([a_jobs(kk) for kk in range(4 if NP else 8 if V2 and not V3 else 6)], []) + [[]] * 8
S.dmas(aj[:6], 106); aj = aj[2:]
for i in range(0, 16, 2): S.post[96 + i] += [m16(MC, SEL, WF + 4 * (i & 3), "0" if i == 0 else None)]
run_sched(S, [ACC0, ACC1, ACC0, ACC1])
t = T + 16
P(f"v_and_b32 {v(t)}, 31, {v(vL)}\ns_lshl_b32 {s(sT0)}, {s(sHALF)}, 4\nv_xor_b32 {v(t)}, {s(sT0)}, {v(t)}\nv_lshlrev_b32 {v(t)}, 4, {v(t)}\nv_add_u32 {v(t)}, {L_CS+3072}, {v(t)}")
P(f"v_add_u32 {v(t+1)}, {s(sW34)}, {v(VCSA)}")
P(f"ds_write_b32 {v(t+1)}, {v(MC)} offset:3072")
P.add(aj[4])
XO = 4096 if V2 else 1024
P(f"s_add_u32 {s(sT1)}, {s(sMB if V2 else sM0x)}, {KAREA[8]}\ns_xor_b32 {s(sT0)}, {s(sT1)}, 8192\nv_add_u32 {v(t+1)}, {s(sT0)}, {v(VL16)}\nv_add_u32 {v(AB)}, {s(sT1)}, {v(VL16)}")
P(f"ds_write_b128 {v(t+1)}, {v(ACC1+8,4)}\nds_write_b128 {v(t+1)}, {v(ACC1+12,4)} offset:{XO}")
P(".waitvm b5 lgkm0")
P("s_barrier")
stamp("sub3")
P(f"ds_read_b128 {v(CSF,4)}, {v(t)}")
P(f"ds_read_b128 {v(ACC0,4)}, {v(AB)}\nds_read_b128 {v(ACC0+4,4)}, {v(AB)} offset:{XO}")
P.add(aj[5])
P.add(aug(ACC1, CSF, BIAS + 3))
P.add(aj[6] + aj[7])
if NP: P.add(flag(2, "h2"))
for i in range(0, 8, 2): P(f"v_pk_add_f32 {v(ACC1+i,2)}, {v(ACC1+i,2)}, {v(ACC0+i,2)}")
stamp("x7")
gt = gelu(ACC1, 8, True, out=BIAS); h3 = hstore(sH0, 2, "h3")
if not V5: sneed(1, 1)
if OFFL: own_check()
P.add(aj[8] + gt[:10] + aj[9] + gt[10:20] + [h3[0]] + gt[20:30] + [h3[1]] + gt[30:] + hstore(sH3, 1, "h4", BIAS))
stamp("p1end")
if V5: phase2_v5((6, 7, 8), True)
elif V3: phase2_v3((6, 7, 8), (6, 7), True)
elif V2: phase2_v2((6, 7, 8), True)
else: phase2(("A4", "A5"), "B6 A6 B7 A7 B8 B9 A8 B10 A9 B11 A10 B12 A11 B13 A12 B14 A13 B15 B16 B17 A14 A15 A16 A17", True)

P("L_end:")
P("s_endpgm")

ins = P.ins
for I in ins:
    if "; nodef" in I.text: I.defs = []
if OPT.get("nodma"): ins = [I for I in ins if I.kind != "dma"]
if OPT.get("notr"): ins = [I for I in ins if not I.op.startswith("ds_read_b64_tr")]
if OPT.get("nofmac"): ins = [I for I in ins if not (I.op.startswith("v_fmac") or (I.op == "v_and_b32" and "0xffff0000" in I.text) or (I.op == "v_lshlrev_b32" and I.ops[1] == "16"))]
if OPT.get("nom16"): ins = [I for I in ins if "16x16x32" not in I.op]
if OPT.get("notrans"): ins = [I for I in ins if not I.op.startswith(("v_exp", "v_rcp"))]
if OPT.get("novalu"): ins = [I for I in ins if not I.op.startswith(("v_exp", "v_rcp", "v_mul_f32", "v_fma_f32", "v_cvt_pk", "v_max3", "v_add_f32"))]
if OPT.get("nopk"): ins = [I for I in ins if not I.op.startswith(("v_pk_", "v_dot2c"))]
if OPT.get("noval"): ins = [I for I in ins if not (I.op == "s_cbranch_vccnz" and "_slow" in I.text)]
if OPT.get("noa"): ins = [I for I in ins if not (I.kind == "vld" and "x4" in I.op and "sc1" in I.mods)]
if OPT.get("nob"): ins = [I for I in ins if not (I.kind == "dma" and (s(SW2,4) in I.text or s(SWO,4) in I.text))]
if OPT.get("anosc"):
    for I in ins:
        if I.kind == "vld" and "x4" in I.op: I.text = I.text.replace(" sc1", " " + OPT["anosc"].replace("0", ""))
if OPT.get("nopz"): ins = [I for I in ins if not (I.kind == "vst" and "x4" in I.op and (v(PZ,4) in I.text or v(AAUG,4) in I.text) and s(SWS,4) in I.text)]
if OPT.get("plain"):
    for I in ins:
        if I.kind == "vst" and "x4" in I.op and s(SWS,4) in I.text and ("tag=h" in I.text or "tag=po" in I.text or "; ost" in I.text): I.text = I.text.replace(" sc1", "")
if OPT.get("nohs"):
    ins = [I for I in ins if not (I.op.startswith("s_buffer_load") or I.text.startswith((".waitvm h", ".waitvm po", ".waitvm zf")) or (I.op == "s_branch" and ("L_sp" in I.text or "L_ncs" in I.text or "L_oc" in I.text) and "spkv1" not in I.text))]
    for I in ins:
        if I.text.startswith(".waitvm pz"): I.text = ".waitvm none lgkm0"
if OPT.get("nost"): ins = [I for I in ins if not (I.kind == "vst" and "x4" in I.op and "tag=h" in I.text)]
if OPT.get("nomfma"): ins = [I for I in ins if I.kind != "mfma"]
if STAMP:
    for I in ins:
        if I.op in ("s_memrealtime", "s_memtime"): I.kind = "salu"
if OPT.get("nopx"): ins = [I for I in ins if not (I.kind == "vst" and "tag=px" in I.text)]
if OPT.get("nopo"): ins = [I for I in ins if not (I.kind == "vst" and "x4" in I.op and I.ops[0] == v(AAUG,4) and s(SWS,4) in I.text)]
AB_ = OPT.get("abl", "")
iffn = [i for i, I in enumerate(ins) if I.text == "L_ffn:"][0]
def att(i): return i < iffn
if "g" in AB_: ins = [I for i, I in enumerate(ins) if not (I.kind == "vld" and I.ops[1] in (v(S1), v(S2)) and "x4" in I.op)]
if "k" in AB_: ins = [I for i, I in enumerate(ins) if not (I.cond == "lo4" and I.kind in ("valu", "dsr", "mfma"))]
if "s" in AB_: ins = [I for i, I in enumerate(ins) if not (att(i) and I.op.startswith(("v_exp", "v_fma_f32", "v_max3_f32", "v_pk_fma", "v_pk_mul_f32")))]
if "b" in AB_: ins = [I for i, I in enumerate(ins) if not (att(i) and I.kind == "dma" and (s(SW2,4) in I.text or s(SWO,4) in I.text))]
if "m" in AB_: ins = [I for I in ins if not ("4x4x4" in I.op or "16x16x32" in I.op)]
if "x" in AB_: ins = [I for I in ins if not (I.kind in ("vld", "vst") and "x4" in I.op and I.ops[3] == s(sT0) and s(SWS,4) in I.text and not I.cond)]
if "e" in AB_: ins = [I for i, I in enumerate(ins) if not (not att(i) and I.op.startswith(("v_exp", "v_rcp", "v_fma_f32", "v_mul_f32")))]
if OPT.get("jit"):
    import random
    rnd = random.Random(int(OPT["jit"])); new = []; n_ = 0
    for I in ins:
        if I.kind == "mfma" and rnd.random() < 0.12:
            n_ += 1; src = rnd.choice([f"{s(sW)}, {rnd.randrange(3)}", f"s2, {rnd.randrange(8)}"])
            for tx in (f"s_bitcmp{rnd.randrange(2)}_b32 {src}", f"s_cbranch_scc0 L_j{n_}", f"s_sleep {rnd.choice([2, 8, 20, 40])}", f"L_j{n_}:"):
                J = Ins(tx, I.cond or ("jit" if tx.startswith("s_sleep") else None)); new.append(J)
        new.append(I)
    ins = new
ins = auto_wait(ins)
st = []
ins = hazards(ins, st)
hdr = open("parallel_sum__linear_kernel_hedgehog__dense_activation_gelu__prompt.s.ref").read().split("; Override")[0]
out = hdr + f"; @launch grid=(256,1,1) block=(512,1,1) lds={LDS_SIZE}\n"
out += """; One fused launch, 256 workgroups (one per CU) of 8 waves, generated by the author's own script.
;  phase 1: [128 rows x 6|7 blocks of 32 columns] of x @ [wqkv | w1]; layer norm folded in as one extra MFMA k-step
;  phase 2: [128 x 128] output tile over a quarter of K of [h | o] @ [w2 ; wo]; four workgroups exchange partial tiles.
;  hand-offs: flag words in d_ws (cleared in-launch, announced through d_debug) and in-launch poisoned slots.
"""
out += f'.amdgcn_target "amdgcn-amd-amdhsa--gfx950"\n.text\n.globl {NAME}\n.p2align 8\n.type {NAME},@function\n{NAME}:\n'
out += render(ins)
out += f""".section .rodata,"a"
.p2align 6
.amdhsa_kernel {NAME}
  .amdhsa_next_free_vgpr 256
  .amdhsa_next_free_sgpr 102
  .amdhsa_accum_offset 256
  .amdhsa_group_segment_fixed_size 0
  .amdhsa_kernarg_size 96
  .amdhsa_user_sgpr_count 2
  .amdhsa_user_sgpr_kernarg_segment_ptr 1
  .amdhsa_system_sgpr_workgroup_id_x 1
.end_amdhsa_kernel
"""
open(sys.argv[1], "w").write(out)
print(f"instrs={sum(1 for I in ins if I.kind not in ('label','dir'))} nop-sites={len(st)} nop-states={sum(n for n,_ in st)}", file=sys.stderr)
if OPT.get("nops"):
    for n, tx in st: print(n, tx, file=sys.stderr)
```
